```python
import torch

def _softmax(x, axis=-1):
    return torch.softmax(x, dim=axis)
def _gelu(x):
    return torch.nn.functional.gelu(x, approximate="tanh")
def _silu(x):
    return torch.nn.functional.silu(x)
def _sigmoid(x):
    return torch.sigmoid(x)
def _layernorm(x, axis=-1, eps=1e-5):
    m = x.mean(dim=axis, keepdim=True)
    v = x.var(dim=axis, keepdim=True, unbiased=False)
    return (x - m) / torch.sqrt(v + eps)
def _scatter_add(tgt, idx, src, axis=0):
    return tgt.clone().index_add_(axis, idx, src)
def _segment_sum(src, seg, n):
    out = torch.zeros((n,) + src.shape[1:], dtype=src.dtype)
    return out.index_add_(0, seg, src)
def _pad(x, pw):
    flat = tuple(v for pair in reversed(pw) for v in pair)
    return torch.nn.functional.pad(x, flat)

kernel_name = 'gated_mix__spectral_fnet__softmax_full_mha__prompt'

def setup_inputs():

    _w = (lambda a: (lambda t: t.to(torch.bfloat16) if t.is_floating_point() else t)(torch.as_tensor(a)))
    def _A_setup():
        B, S, D = 1, 2048, 640
        ns = torch.arange(S)[:, None] * torch.arange(S)[None, :]
        nd = torch.arange(D)[:, None] * torch.arange(D)[None, :]
        Ws_re = torch.cos(-2.0 * torch.pi * ns / S).to(float)
        Ws_im = torch.sin(-2.0 * torch.pi * ns / S).to(float)
        Wd_re = torch.cos(-2.0 * torch.pi * nd / D).to(float)
        Wd_im = torch.sin(-2.0 * torch.pi * nd / D).to(float)
        return {
            "x": _w((lambda *s: torch.randn(*s, dtype=torch.bfloat16) * 0.05)(B, S, D)),
            "dft_seq_re": _w(Ws_re),
            "dft_seq_im": _w(Ws_im),
            "dft_hid_re": _w(Wd_re),
            "dft_hid_im": _w(Wd_im),
        }
    _A_in = _A_setup()

    def _B_setup():
        B, S, D = 1, 2048, 640
        return {
            "x": _w((lambda *s: torch.randn(*s, dtype=torch.bfloat16) * 0.05)(B, S, D)),
            "wqkv": _w((lambda *s: torch.randn(*s, dtype=torch.bfloat16) * 1.6)(D, 3 * D)),
            "wo": _w((lambda *s: torch.randn(*s, dtype=torch.bfloat16) * 1.6)(D, D)),
        }
    _B_in = _B_setup()

    return {
        "A_x": _A_in["x"],
        "A_dft_seq_re": _A_in["dft_seq_re"],
        "A_dft_seq_im": _A_in["dft_seq_im"],
        "A_dft_hid_re": _A_in["dft_hid_re"],
        "A_dft_hid_im": _A_in["dft_hid_im"],
        "B_x": _B_in["x"],
        "B_wqkv": _B_in["wqkv"],
        "B_wo": _B_in["wo"],
        "gate_w": _w((lambda *s: torch.randn(*s, dtype=torch.bfloat16) * 0.05)(640) * 16.0),
    }

def reference(A_x, A_dft_seq_re, A_dft_seq_im, A_dft_hid_re, A_dft_hid_im, B_x, B_wqkv, B_wo, gate_w):
    def _A_ref(x, dft_seq_re, dft_seq_im, dft_hid_re, dft_hid_im):
        a = torch.einsum("bsd,ed->bse", x, dft_hid_re)
        b = torch.einsum("bsd,ed->bse", x, dft_hid_im)
        y = torch.einsum("ts,bse->bte", dft_seq_re, a) - torch.einsum("ts,bse->bte", dft_seq_im, b)
        return y

    def _B_ref(x, wqkv, wo):
        B, S, D = x.shape
        H = 32; Dh = D // H
        qkv = (lambda x, *d: x.permute(*d))((x @ wqkv).reshape(B, S, 3, H, Dh), 2, 0, 3, 1, 4)
        q, k, v = qkv[0], qkv[1], qkv[2]
        scale = Dh ** -0.5
        scores = torch.einsum("bhqd,bhkd->bhqk", q, k) * scale
        p = _softmax(scores, axis=-1)
        o = torch.einsum("bhqk,bhkd->bhqd", p, v)
        return (lambda x, *d: x.permute(*d))(o, 0, 2, 1, 3).reshape(B, S, D) @ wo

    x = A_x
    g = _sigmoid((x * gate_w).sum(-1, keepdims=True))
    a = _A_ref(x, A_dft_seq_re, A_dft_seq_im, A_dft_hid_re, A_dft_hid_im)
    b = _B_ref(x, B_wqkv, B_wo)
    return g * a + (1 - g) * b
```

```python
import sys, math, struct

NAME = "gated_mix__spectral_fnet__softmax_full_mha__prompt"
HS = 163840
KV_OFF = 0
Q_OFF = 32 * HS
FE_OFF = 64 * HS
FO_DELTA = 655360
X512_OFF = FE_OFF + 2 * FO_DELTA
TB_OFF = X512_OFF + 4096
Y_OFF = TB_OFF + 33 * 65536
G_OFF = Y_OFF + 2621440
OF_OFF = G_OFF + 8192
WOF_OFF = OF_OFF + 2621440
WS_USED = WOF_OFF + 819200

def f32bits(x): return struct.unpack("<I", struct.pack("<f", x))[0]
QSCALE = f32bits((20 ** -0.5) * math.log2(math.e))

class A:
    def __init__(self): self.l = []
    def __call__(self, s):
        for line in s.split("\n"):
            t = line.strip()
            if not t: continue
            self.l.append(t if t.endswith(":") or t.startswith(".") else "    " + t)
    def text(self): return "\n".join(self.l) + "\n"

def vr(a, n): return f"v[{a}:{a+n-1}]" if n > 1 else f"v{a}"
def srd(a, lo, base, size):
    return f"""s_mov_b32 s{lo}, s{base}
s_mov_b32 s{lo+1}, s{base+1}
s_mov_b32 s{lo+2}, {size}
s_mov_b32 s{lo+3}, 0x20000"""

def header(a, label):
    a(f".p2align 8\n.globl {label}\n.type {label},@function\n{label}:")

def desc(label, nv, ns):
    return f""".amdhsa_kernel {label}
  .amdhsa_next_free_vgpr {nv}
  .amdhsa_next_free_sgpr {ns}
  .amdhsa_accum_offset {(nv + 3) // 4 * 4}
  .amdhsa_group_segment_fixed_size 0
  .amdhsa_kernarg_size 96
  .amdhsa_user_sgpr_count 2
  .amdhsa_user_sgpr_kernarg_segment_ptr 1
  .amdhsa_system_sgpr_workgroup_id_x 1
.end_amdhsa_kernel
"""

STAG1 = int(sys.argv[2]) if len(sys.argv) > 2 else 1

def k1(a):
    header(a, "k1_kernel")
    a(f"""
    s_cmp_ge_u32 s2, 256
    s_cbranch_scc1 K1_END
    s_load_dwordx2 s[4:5], s[0:1], 0
    s_load_dwordx4 s[8:11], s[0:1], 24
    s_load_dwordx2 s[12:13], s[0:1], 48
    s_load_dwordx2 s[14:15], s[0:1], 88
    v_lshrrev_b32 v1, 6, v0
    v_and_b32 v0, 63, v0
    s_and_b32 s17, s2, 7
    v_readfirstlane_b32 s16, v1
    s_lshr_b32 s18, s2, 3
    s_and_b32 s19, s18, 7
    s_lshr_b32 s20, s18, 3
    s_and_b32 s21, s17, 1
    s_lshl_b32 s21, s21, 3
    s_add_u32 s21, s21, s19
    s_lshr_b32 s22, s17, 1
    s_cmp_lt_u32 s16, 4
    s_cbranch_scc1 K1_COMPUTE
    """)
    a(f"""
    s_sub_u32 s16, s16, 4
    v_lshrrev_b32 v2, 3, v0
    v_and_b32 v3, 7, v0
    v_lshrrev_b32 v4, 4, v0
    v_xor_b32 v3, v3, v4
    v_lshlrev_b32 v3, 4, v3
    v_xor_b32 v4, 64, v3
    s_cmp_eq_u32 s22, 3
    s_cbranch_scc1 K1_LD_DFT
    s_lshl_b32 s23, s21, 7
    s_lshl_b32 s24, s16, 5
    s_add_u32 s23, s23, s24
    v_add_u32 v5, s23, v2
    v_add_u32 v6, 8, v5
    v_add_u32 v7, 16, v5
    v_add_u32 v8, 24, v5
    s_movk_i32 s25, 3840
    s_lshl_b32 s26, s22, 2
    s_add_u32 s26, s26, s20
    s_mul_i32 s26, s26, 320
    s_waitcnt lgkmcnt(0)
    s_mov_b32 s32, s12
    s_mov_b32 s33, s13
    s_mov_b32 s34, {640*3840}
    s_branch K1_LD_JOIN
K1_LD_DFT:
    s_lshl_b32 s23, s21, 5
    s_lshl_b32 s24, s16, 3
    s_add_u32 s23, s23, s24
    v_add_u32 v5, s23, v2
    v_sub_u32 v6, 0x800, v5
    v_sub_u32 v7, 0x400, v5
    v_add_u32 v8, 0x400, v5
    v_cmp_eq_u32 vcc, 0, v5
    v_mov_b32 v9, 0x200
    v_mov_b32 v10, 0x600
    v_cndmask_b32 v6, v6, v9, vcc
    v_cndmask_b32 v8, v8, v10, vcc
    s_movk_i32 s25, 1280
    s_and_b32 s26, s20, 1
    s_mul_i32 s26, s26, 320
    s_waitcnt lgkmcnt(0)
    s_cmp_lt_u32 s20, 2
    s_cselect_b32 s32, s8, s10
    s_cselect_b32 s33, s9, s11
    s_mov_b32 s34, {640*1280}
K1_LD_JOIN:
    s_mov_b32 s35, 0x20000
    {srd(a, 28, 4, 2048*1280)}
    s_movk_i32 s27, 1280
    v_mad_u32_u24 v10, v5, s27, v3
    v_mad_u32_u24 v11, v6, s27, v4
    v_mad_u32_u24 v12, v7, s27, v3
    v_mad_u32_u24 v13, v8, s27, v4
    s_lshl_b32 s27, s16, 4
    s_mul_i32 s27, s27, s25
    s_add_u32 s26, s26, s27
    s_sub_u32 s27, s25, 320
    """)
    for i in range(5):
        a(f"""
        v_add_u32 v5, {64*i}, v0
        v_mul_u32_u24 v6, 3277, v5
        v_lshrrev_b32 v6, 16, v6
        v_lshl_add_u32 v5, v5, 4, s26
        v_mad_u32_u24 v{14+i}, v6, s27, v5
        """)
    if STAG1:
        a(f"""
        s_lshl_b32 s36, s19, 3
        s_lshl_b32 s37, s20, 4
        s_add_u32 s36, s36, s37
        s_add_u32 s36, s36, s17
        s_and_b32 s36, s36, 63
        s_mul_i32 s36, s36, 10
        s_lshr_b32 s36, s36, 6
        """)
    else:
        a("s_mov_b32 s36, 0")
    a(f"""
    s_lshl_b32 s25, s25, 6
    s_lshl_b32 s38, s16, 12
    s_mul_i32 s39, s16, 5120
    s_add_u32 s39, s39, 0x10000
    s_mov_b32 s40, 0
K1_LD_LOOP:
    s_lshl_b32 s41, s36, 7
    s_mul_i32 s42, s36, s25
    s_and_b32 s43, s40, 3
    s_lshl_b32 s44, s43, 14
    s_add_u32 s44, s44, s38
    s_mul_i32 s45, s43, 20480
    s_add_u32 s45, s45, s39
    """)
    for i in range(4):
        a(f"s_add_u32 m0, s44, {1024*i}\ns_nop 0\nbuffer_load_dwordx4 v{10+i}, s[28:31], s41 offen lds")
    for i in range(5):
        a(f"s_add_u32 m0, s45, {1024*i}\ns_nop 0\nbuffer_load_dwordx4 v{14+i}, s[32:35], s42 offen lds")
    a(f"""
    s_add_u32 s36, s36, 1
    s_cmp_eq_u32 s36, 10
    s_cselect_b32 s36, 0, s36
    s_add_u32 s40, s40, 1
    s_cmp_eq_u32 s40, 1
    s_cbranch_scc1 K1_LD_LOOP
    s_waitcnt vmcnt(9)
    s_barrier
    s_cmp_lt_u32 s40, 10
    s_cbranch_scc1 K1_LD_LOOP
    s_waitcnt vmcnt(0)
    s_barrier
    s_endpgm
    """)
    ACC = 0
    SA, SB = 80, 104
    L, H5, L31 = 128, 129, 130
    XA0, WA = 131, 132
    CX = 133
    CW = 137
    PC = 138
    T0 = 140
    a(f"""
K1_COMPUTE:
    v_mov_b32 v{L}, v0
    v_lshrrev_b32 v{H5}, 5, v0
    v_and_b32 v{L31}, 31, v0
    s_waitcnt lgkmcnt(0)
    {srd(a, 28, 14, WS_USED)}
    s_lshl_b32 s23, s2, 2
    s_add_u32 s23, s23, s16
    v_lshlrev_b32 v{T0+10}, 4, v{L}
K1_TBL:
    s_lshr_b32 s24, s23, 5
    s_and_b32 s25, s23, 31
    s_and_b32 s26, s24, 1
    s_lshr_b32 s27, s24, 1
    s_lshl_b32 s27, s27, 6
    s_add_u32 s27, s27, s26
    v_lshl_add_u32 v{T0}, v{L31}, 1, s27
    s_lshl_b32 s25, s25, 4
    v_lshl_add_u32 v{T0+1}, v{H5}, 3, s25
    v_mul_u32_u24 v{T0+1}, v{T0}, v{T0+1}
    v_and_b32 v{T0+1}, 0x7ff, v{T0+1}
    v_cvt_f32_u32 v{T0}, v{T0}
    v_cvt_f32_u32 v{T0+1}, v{T0+1}
    v_mul_f32 v{T0}, 0x3a000000, v{T0}
    v_mul_f32 v0, 0x3a000000, v{T0+1}
    """)
    for u in range(1, 8):
        a(f"v_add_f32 v{u}, v{u-1}, v{T0}")
    for u in range(1, 8):
        a(f"v_fract_f32 v{u}, v{u}")
    for u in range(8):
        a(f"v_cos_f32 v{8+u}, v{u}")
    for u in range(8):
        a(f"v_sin_f32 v{16+u}, v{u}")
    for j in range(4):
        a(f"v_cvt_pk_bf16_f32 v{24+j}, v{8+2*j}, v{9+2*j}")
    for j in range(4):
        a(f"v_cvt_pk_bf16_f32 v{28+j}, v{16+2*j}, v{17+2*j}")
    a(f"""
    s_lshl_b32 s24, s23, 11
    s_add_u32 s24, s24, {TB_OFF}
    buffer_store_dwordx4 v[24:27], v{T0+10}, s[28:31], s24 offen
    buffer_store_dwordx4 v[28:31], v{T0+10}, s[28:31], s24 offen offset:1024
    s_add_u32 s23, s23, 1024
    s_cmp_lt_u32 s23, 1056
    s_cbranch_scc1 K1_TBL
    """)
    a(f"""
    v_lshrrev_b32 v{T0}, 1, v{L}
    v_and_b32 v{T0}, 7, v{T0}
    v_xor_b32 v{T0}, v{T0}, v{H5}
    v_lshlrev_b32 v{T0}, 4, v{T0}
    v_lshl_add_u32 v{T0}, v{L31}, 7, v{T0}
    s_lshl_b32 s23, s16, 12
    v_add_u32 v{XA0}, s23, v{T0}
    v_bfe_u32 v{T0}, v{L}, 2, 2
    v_lshl_add_u32 v{T0}, v{H5}, 3, v{T0}
    v_mul_u32_u24 v{T0}, 320, v{T0}
    v_and_b32 v{T0+1}, 3, v{L}
    v_lshlrev_b32 v{T0+1}, 3, v{T0+1}
    v_and_b32 v{T0+2}, 16, v{L}
    v_lshlrev_b32 v{T0+2}, 1, v{T0+2}
    v_add3_u32 v{WA}, v{T0}, v{T0+1}, v{T0+2}
    v_add_u32 v{WA}, 0x10000, v{WA}
    v_mov_b32 v{PC}, 0xbf803f80
    s_mov_b32 s24, 0
    s_mov_b32 s25, 0
    s_lshl_b32 s26, s22, 2
    s_add_u32 s26, s26, s20
    s_cmp_eq_u32 s26, 14
    s_cselect_b32 s24, 1, 0
    s_mov_b32 s25, s24
    s_mov_b32 s40, 0
    """)
    for r in range(80): a(f"v_mov_b32 v{ACC+r}, 0")
    for r in range(24): a(f"v_mov_b32 v{SB+r}, 0")
    a("s_cmp_ge_u32 s22, 2\ns_cbranch_scc1 K1_LOOP_V")

    def group(cur, nxt, step, qk):
        def mf(T):
            d = vr(ACC + 16 * T, 16); x = vr(cur, 4); w = vr(cur + 4 + 4 * T, 4)
            return f"v_mfma_f32_32x32x16_bf16 {d}, {w}, {x}, {d}" if qk else f"v_mfma_f32_32x32x16_bf16 {d}, {x}, {w}, {d}"
        def rw(T):
            if step is None: return ""
            o = step * 5120 + T * 64; d = nxt + 4 + 4 * T
            return f"ds_read_b64_tr_b16 {vr(d,2)}, v{CW} offset:{o}\nds_read_b64_tr_b16 {vr(d+2,2)}, v{CW} offset:{o+1280}"
        rd = step is not None
        a(f"s_waitcnt lgkmcnt(8)"); a(mf(1))
        if rd: a(f"ds_read_b128 {vr(nxt,4)}, v{CX+step}")
        a(rw(1))
        a(f"s_waitcnt lgkmcnt({9 if rd else 6})"); a(mf(2)); a(rw(2))
        a(f"s_waitcnt lgkmcnt({9 if rd else 4})"); a(mf(3)); a(rw(3))
        a(f"s_waitcnt lgkmcnt({7 if rd else 0})")
        if not qk:
            for j in range(4): a(f"v_cndmask_b32 v{cur+4+j}, v{cur+4+j}, v{PC}, s[24:25]")
        a(mf(4)); a(rw(4))
        if not rd: a("s_nop 0")
        a(mf(0)); a(rw(0))

    for qk, lab in ((True, "QK"), (False, "V")):
        a(f"""
K1_LOOP_{lab}:
        s_and_b32 s41, s40, 3
        s_lshl_b32 s42, s41, 14
        s_mul_i32 s43, s41, 20480
        v_add_u32 v{CX}, s42, v{XA0}
        v_add_u32 v{CW}, s43, v{WA}
        v_xor_b32 v{CX+1}, 32, v{CX}
        v_xor_b32 v{CX+2}, 64, v{CX}
        v_xor_b32 v{CX+3}, 0x60, v{CX}
        s_barrier
        """)
        group(SB, SA, 0, qk); group(SA, SB, 1, qk); group(SB, SA, 2, qk); group(SA, SB, 3, qk)
        a(f"s_add_u32 s40, s40, 1\ns_cmp_lt_u32 s40, 10\ns_cbranch_scc1 K1_LOOP_{lab}")
        group(SB, SA, None, qk)
        a("s_lshl_b32 s23, s21, 2\ns_add_u32 s23, s23, s16")
        if qk:
            a(f"""
            s_mul_i32 s26, s20, {8*HS}
            s_mul_i32 s27, s23, 2560
            s_add_u32 s26, s26, s27
            s_cmp_eq_u32 s22, 0
            s_cselect_b32 s27, {Q_OFF}, {KV_OFF}
            s_cselect_b32 s36, {QSCALE}, 1.0
            s_mov_b32 s37, s36
            s_add_u32 s26, s26, s27
            v_lshlrev_b32 v{T0}, 4, v{L}
            s_mov_b32 s27, {HS}
            v_mul_lo_u32 v{T0+1}, v{H5}, s27
            v_lshl_add_u32 v{T0+1}, v{L31}, 3, v{T0+1}
            s_nop 7
            """)
            for p in range(4):
                base = SA + (p % 2) * 12
                for gi, dst in ((0, 0), (1, 2), (3, 4), (4, 6), (2, 8)):
                    r = ACC + 4 * (5 * p + gi)
                    a(f"v_pk_mul_f32 {vr(r,2)}, {vr(r,2)}, s[36:37]\nv_pk_mul_f32 {vr(r+2,2)}, {vr(r+2,2)}, s[36:37]")
                    a(f"v_cvt_pk_bf16_f32 v{base+dst}, v{r}, v{r+1}\nv_cvt_pk_bf16_f32 v{base+dst+1}, v{r+2}, v{r+3}")
                a(f"""
                s_add_u32 s38, s26, {HS}
                buffer_store_dwordx4 {vr(base,4)}, v{T0}, s[28:31], s26 offen
                buffer_store_dwordx4 {vr(base+4,4)}, v{T0}, s[28:31], s38 offen
                buffer_store_dwordx2 {vr(base+8,2)}, v{T0+1}, s[28:31], s26 offen offset:1024
                s_add_u32 s26, s26, {2*HS}
                """)
            a("s_endpgm")
        else:
            a("s_cmp_eq_u32 s22, 3\ns_cbranch_scc1 K1_EPI_DFT")
            a(f"""
            s_mul_i32 s26, s20, {8*HS}
            s_mul_i32 s27, s23, 2560
            s_add_u32 s26, s26, s27
            s_add_u32 s26, s26, {KV_OFF + 1280}
            s_mov_b32 s27, {HS - 320}
            v_mul_u32_u24 v{T0+5}, 320, v{H5}
            """)
            for T in range(5):
                a(f"""
                v_add_u32 v{T0+6}, {32*T}, v{L31}
                v_mul_u32_u24 v{T0+7}, 3277, v{T0+6}
                v_lshrrev_b32 v{T0+7}, 16, v{T0+7}
                v_lshl_add_u32 v{T0+6}, v{T0+6}, 4, v{T0+5}
                v_mad_u32_u24 v{T0+T}, v{T0+7}, s27, v{T0+6}
                """)
            for T in (1, 2, 3, 4, 0):
                base = SA + (T % 3) * 8
                for j in range(8):
                    a(f"v_cvt_pk_bf16_f32 v{base+j}, v{ACC+16*T+2*j}, v{ACC+16*T+2*j+1}")
                a(f"buffer_store_dwordx4 {vr(base,4)}, v{T0+T}, s[28:31], s26 offen")
                a(f"buffer_store_dwordx4 {vr(base+4,4)}, v{T0+T}, s[28:31], s26 offen offset:640")
            a("s_endpgm")
            TAU, TAU0, VD = T0, T0 + 1, T0 + 2
            a(f"""
K1_EPI_DFT:
            s_cmp_lt_u32 s20, 2
            s_cselect_b32 s36, 1.0, -1.0
            v_mov_b32 v{TAU}, s36
            v_cndmask_b32 v{TAU0}, v{TAU}, 1.0, s[24:25]
            v_lshlrev_b32 v{VD}, 4, v{L31}
            v_lshl_add_u32 v{VD}, v{H5}, 3, v{VD}
            s_mul_i32 s26, s20, {5*32768}
            s_lshl_b32 s27, s23, 9
            s_add_u32 s26, s26, s27
            s_add_u32 s26, s26, {FE_OFF}
            s_nop 7
            s_cmp_lg_u32 s23, 0
            s_cbranch_scc1 K1_EPI_DFT2
            s_mov_b32 exec_hi, 0
            s_mul_i32 s27, s20, 640
            s_add_u32 s27, s27, {X512_OFF}
            v_lshlrev_b32 v{T0+3}, 2, v{L31}
            """)
            for T in range(5):
                r = ACC + 16 * T
                a(f"v_fma_f32 v{SA+T}, v{r+12}, v{TAU0 if T == 0 else TAU}, v{r+4}")
                a(f"v_mov_b32 v{r+4}, 0\nv_mov_b32 v{r+12}, 0")
                a(f"buffer_store_dword v{SA+T}, v{T0+3}, s[28:31], s27 offen offset:{128*T}")
            a("s_mov_b32 exec_hi, -1\nK1_EPI_DFT2:")
            for T in range(5):
                r = ACC + 16 * T; tau = TAU0 if T == 0 else TAU
                base = SB + (T % 3) * 4
                for q in range(4):
                    a(f"v_fma_f32 v{r+q}, v{r+4+q}, v{tau}, v{r+q}")
                    a(f"v_fma_f32 v{r+12+q}, v{r+8+q}, v{tau}, v{r+12+q}")
                for q in range(4):
                    a(f"v_add_f32 v{r+4+q}, v{r+q}, v{r+12+q}")
                    a(f"v_sub_f32 v{r+8+q}, v{r+q}, v{r+12+q}")
                a(f"v_cvt_pk_bf16_f32 v{base}, v{r+4}, v{r+5}\nv_cvt_pk_bf16_f32 v{base+1}, v{r+6}, v{r+7}")
                a(f"v_cvt_pk_bf16_f32 v{base+2}, v{r+8}, v{r+9}\nv_cvt_pk_bf16_f32 v{base+3}, v{r+10}, v{r+11}")
                a(f"""
                s_add_u32 s27, s26, {FO_DELTA}
                buffer_store_dwordx2 {vr(base,2)}, v{VD}, s[28:31], s26 offen
                buffer_store_dwordx2 {vr(base+2,2)}, v{VD}, s[28:31], s27 offen
                s_add_u32 s26, s26, 32768
                """)
    a("K1_END:\ns_endpgm")
    return desc("k1_kernel", 152, 48)

def k2(a):
    header(a, "k2_kernel")
    a(f"""
    s_cmp_ge_u32 s2, 256
    s_cbranch_scc1 K2_END
    s_load_dwordx2 s[14:15], s[0:1], 88
    s_load_dwordx2 s[4:5], s[0:1], 0
    s_load_dwordx4 s[8:11], s[0:1], 56
    v_lshrrev_b32 v1, 6, v0
    v_and_b32 v0, 63, v0
    s_and_b32 s17, s2, 7
    v_readfirstlane_b32 s16, v1
    s_lshr_b32 s18, s2, 3
    s_lshr_b32 s19, s18, 3
    s_lshl_b32 s20, s17, 2
    s_add_u32 s19, s19, s20
    s_and_b32 s20, s18, 7
    s_mul_i32 s21, s19, {HS}
    s_waitcnt lgkmcnt(0)
    {srd(a, 28, 14, WS_USED)}
    s_cmp_ge_u32 s16, 8
    s_cbranch_scc1 K2_HELPER
    """)
    O = 0; S = [16, 32]; P = 48; Q1 = 56; Q2 = 60; K1 = 64; K2 = 62; V1 = 68; V2 = [72, 76]
    AK1, AK2, AV = 80, 81, 82; L31, H5 = 83, 84; T = 86
    a(f"""
    v_and_b32 v{L31}, 31, v0
    v_lshrrev_b32 v{H5}, 5, v0
    v_lshlrev_b32 v{AK1}, 4, v0
    v_lshlrev_b32 v{AK2}, 2, v{H5}
    v_lshl_add_u32 v{AK2}, v{L31}, 3, v{AK2}
    s_lshl_b32 s22, s20, 3
    s_add_u32 s22, s22, s16
    s_mul_i32 s23, s22, 2560
    s_add_u32 s23, s23, s21
    s_add_u32 s23, s23, {Q_OFF}
    buffer_load_dwordx4 {vr(Q1,4)}, v{AK1}, s[28:31], s23 offen
    buffer_load_dword v{Q2}, v{AK2}, s[28:31], s23 offen offset:1024
    v_mul_u32_u24 v{AV}, 320, v{H5}
    v_lshl_add_u32 v{AV}, v{L31}, 4, v{AV}
    s_mov_b32 s24, 0xfffff
    s_mov_b32 s25, 0xfffff
    v_mov_b32 v{Q2+1}, 0
    v_mov_b32 v{K2+1}, 0x3f803f80
    """)
    for r in range(12): a(f"v_mov_b32 v{V1+r}, 0x3f803f80")
    for r in range(16): a(f"v_mov_b32 v{O+r}, 0")
    for r in range(4): a(f"v_mov_b32 v{P+4+r}, 0")
    def qk1(d): return f"v_mfma_f32_32x32x16_bf16 {vr(d,16)}, {vr(K1,4)}, {vr(Q1,4)}, 0"
    def qk2(d): return f"v_mfma_f32_32x32x8_bf16 {vr(d,16)}, {vr(K2,2)}, {vr(Q2,2)}, {vr(d,16)}"
    def pv(v, p): return f"v_mfma_f32_32x32x16_bf16 {vr(O,16)}, {vr(v,4)}, {vr(p,4)}, {vr(O,16)}"
    def rdk1(t): return f"ds_read_b128 {vr(K1,4)}, v{AK1} offset:{t*2560}"
    def rdk2(t): return f"ds_read_b32 v{K2}, v{AK2} offset:{t*2560+1024}"
    def rdv(t, v2): return f"s_mov_b64 exec, s[24:25]\nds_read_b128 {vr(V1,4)}, v{AV} offset:{t*2560+1280}\nds_read_b128 {vr(v2,4)}, v{AV} offset:{t*2560+1920}\ns_mov_b64 exec, -1"
    def maxtree(s, m, first):
        if first:
            a(f"v_max3_f32 v{m}, v{s}, v{s+1}, v{s+2}")
            for j in range(3, 15, 2): a(f"v_max3_f32 v{m}, v{s+j}, v{s+j+1}, v{m}")
            a(f"v_max_f32 v{m}, v{s+15}, v{m}")
        else:
            for j in range(0, 16, 2): a(f"v_max3_f32 v{m}, v{s+j}, v{s+j+1}, v{m}")
    def xhalf(m):
        a(f"v_mov_b32 v{m+1}, v{m}\ns_nop 1\nv_permlane32_swap_b32 v{m}, v{m+1}\ns_nop 0\nv_max_f32 v{m}, v{m}, v{m+1}")
    a(f"""
    s_barrier
    {rdk1(0)}
    {rdk2(0)}
    s_waitcnt vmcnt(0) lgkmcnt(0)
    {qk1(S[0])}
    {qk2(S[0])}
    {rdv(0, V2[0])}
    s_nop 7
    """)
    maxtree(S[0], T, True); xhalf(T)
    a(f"""
    v_mul_f32 v{T}, -0.5, v{T}
    v_cvt_pk_bf16_f32 v{Q2+1}, v{T}, 0
    {qk1(S[0])}
    s_nop 0
    {qk2(S[0])}
    {rdk1(1)}
    {rdk2(1)}
    s_mov_b32 s26, 0
    s_waitcnt lgkmcnt(0)
    s_barrier
    s_nop 4
K2_LOOP:
    """)
    def e(s, j): return f"v_exp_f32 v{s+j}, v{s+j}"
    def c(s, j): return f"v_cvt_pk_bf16_f32 v{P+j}, v{s+2*j}, v{s+2*j+1}"
    for j in range(8):
        cur, nxt = S[j % 2], S[(j + 1) % 2]
        a("s_waitcnt lgkmcnt(3)")
        a(qk1(nxt)); a(rdk1(j + 2))
        for q in range(4): a(e(cur, q))
        a(pv(V2[(j + 1) % 2], P + 4))
        for q in range(4, 8): a(e(cur, q))
        a(c(cur, 0)); a(c(cur, 1))
        a("s_waitcnt lgkmcnt(3)")
        a(qk2(nxt)); a(rdk2(j + 2))
        a(c(cur, 2)); a(c(cur, 3))
        for q in range(8, 12): a(e(cur, q))
        a("s_waitcnt lgkmcnt(3)")
        a(pv(V1, P)); a(rdv(j + 1, V2[(j + 1) % 2]))
        for q in range(12, 16): a(e(cur, q))
        for q in range(4, 8): a(c(cur, q))
    a(f"""
    v_add_u32 v{AK1}, 0x5000, v{AK1}
    v_add_u32 v{AK2}, 0x5000, v{AK2}
    v_add_u32 v{AV}, 0x5000, v{AV}
    s_add_u32 s26, s26, 1
    s_cmp_lg_u32 s26, 1
    s_cbranch_scc1 K2_NOBAR
    s_barrier
K2_NOBAR:
    s_cmp_lt_u32 s26, 8
    s_cbranch_scc1 K2_LOOP
    s_waitcnt lgkmcnt(0)
    {pv(V2[1], P+4)}
    s_nop 7
    s_nop 4
    """)
    a(f"v_max3_f32 v{T}, |v{O}|, |v{O+1}|, |v{O+12}|")
    for j in range(2, 12, 2): a(f"v_max3_f32 v{T}, |v{O+j}|, |v{O+j+1}|, v{T}")
    a(f"""
    v_add_f32 v{T+1}, v{O}, v{O+1}
    v_add_f32 v{T+2}, v{O+2}, v{O+3}
    """)
    for j in range(4, 12, 2): a(f"v_add_f32 v{T+1}, v{O+j}, v{T+1}\nv_add_f32 v{T+2}, v{O+j+1}, v{T+2}")
    a(f"""
    v_add_f32 v{T+1}, v{T+1}, v{T+2}
    s_mov_b32 s27, 0x71800000
    v_cmp_gt_f32 vcc, s27, v{T}
    v_cmp_o_f32 s[32:33], v{T+1}, v{T+1}
    s_mov_b32 s27, 0x3e800000
    v_cmp_le_f32 s[34:35], s27, v{O+12}
    s_and_b64 vcc, vcc, s[32:33]
    s_and_b64 vcc, vcc, s[34:35]
    s_cmp_eq_u64 vcc, -1
    s_cbranch_scc0 K2_FALLBACK
K2_FINISH:
    v_rcp_f32 v{T}, v{O+12}
    s_lshl_b32 s27, s22, 1
    s_mul_i32 s27, s27, 20480
    s_add_u32 s27, s27, {OF_OFF}
    v_lshrrev_b32 v{T+1}, 4, v{L31}
    v_mul_u32_u24 v{T+1}, 20480, v{T+1}
    v_and_b32 v{T+2}, 15, v{L31}
    v_lshl_add_u32 v{T+1}, v{T+2}, 4, v{T+1}
    v_lshl_add_u32 v{T+2}, v{H5}, 8, v{T+1}
    s_lshl_b32 s32, s19, 9
    s_add_u32 s32, s32, s27
    s_lshr_b32 s33, s19, 1
    s_lshl_b32 s33, s33, 8
    s_and_b32 s34, s19, 1
    s_lshl_b32 s34, s34, 3
    s_add_u32 s33, s33, s34
    s_add_u32 s33, s33, s27
    s_add_u32 s33, s33, 16384
    """)
    for j in range(12): a(f"v_mul_f32 v{O+j}, v{O+j}, v{T}")
    for j in range(6): a(f"v_cvt_pk_bf16_f32 v{P+j}, v{O+2*j}, v{O+2*j+1}")
    a(f"""
    buffer_store_dwordx4 {vr(P,4)}, v{T+2}, s[28:31], s32 offen
    s_mov_b32 exec_hi, 0
    buffer_store_dwordx2 {vr(P+4,2)}, v{T+1}, s[28:31], s33 offen
    s_endpgm
    """)
    a(f"""
K2_FALLBACK:
    v_mov_b32 v{Q2+1}, 0
    v_mov_b32 v{T}, 0xff800000
    v_subrev_u32 v{AK1}, {HS}, v{AK1}
    v_subrev_u32 v{AK2}, {HS}, v{AK2}
    v_subrev_u32 v{AV}, {HS}, v{AV}
    s_mov_b32 s26, 0
K2_FB1:
    {rdk1(0)}
    {rdk2(0)}
    v_add_u32 v{AK1}, 2560, v{AK1}
    v_add_u32 v{AK2}, 2560, v{AK2}
    s_waitcnt lgkmcnt(0)
    {qk1(S[0])}
    {qk2(S[0])}
    s_nop 15
    """)
    maxtree(S[0], T, False)
    a(f"""
    s_add_u32 s26, s26, 1
    s_cmp_lt_u32 s26, 64
    s_cbranch_scc1 K2_FB1
    """)
    xhalf(T)
    a(f"v_subrev_u32 v{AK1}, {HS}, v{AK1}\nv_subrev_u32 v{AK2}, {HS}, v{AK2}\ns_mov_b32 s26, 0")
    for r in range(16): a(f"v_mov_b32 v{O+r}, 0")
    a(f"""
K2_FB2:
    {rdk1(0)}
    {rdk2(0)}
    {rdv(0, V2[0])}
    v_add_u32 v{AK1}, 2560, v{AK1}
    v_add_u32 v{AK2}, 2560, v{AK2}
    v_add_u32 v{AV}, 2560, v{AV}
    s_waitcnt lgkmcnt(0)
    {qk1(S[0])}
    {qk2(S[0])}
    s_nop 15
    """)
    for q in range(16): a(f"v_sub_f32 v{S[0]+q}, v{S[0]+q}, v{T}")
    for q in range(16): a(e(S[0], q))
    a("s_nop 0")
    for q in range(8): a(c(S[0], q))
    a(f"""
    s_nop 1
    {pv(V1, P)}
    {pv(V2[0], P+4)}
    s_add_u32 s26, s26, 1
    s_cmp_lt_u32 s26, 64
    s_cbranch_scc1 K2_FB2
    s_nop 15
    s_branch K2_FINISH
    """)
    a(f"""
K2_HELPER:
    s_setprio 2
    s_sub_u32 s16, s16, 8
    v_lshlrev_b32 v1, 4, v0
    s_lshl_b32 s22, s16, 10
    s_mul_i32 s23, s20, 20480
    s_add_u32 s23, s23, s22
    s_add_u32 s24, s21, {KV_OFF}
    s_mov_b32 s25, 0
K2_DMA:
    s_mov_b32 m0, s22
    s_add_u32 s26, s23, s24
    buffer_load_dwordx4 v1, s[28:31], s26 offen lds
    s_add_u32 s22, s22, 4096
    s_add_u32 s23, s23, 4096
    s_sub_u32 s26, s23, {HS}
    s_cmp_ge_u32 s23, {HS}
    s_cselect_b32 s23, s26, s23
    s_add_u32 s25, s25, 1
    s_cmp_eq_u32 s25, 7
    s_cbranch_scc0 K2_DMA_A
    s_waitcnt vmcnt(5)
    s_barrier
K2_DMA_A:
    s_cmp_eq_u32 s25, 13
    s_cbranch_scc0 K2_DMA_B
    s_waitcnt vmcnt(6)
    s_barrier
K2_DMA_B:
    s_cmp_lt_u32 s25, 40
    s_cbranch_scc1 K2_DMA
    s_waitcnt vmcnt(0)
    s_barrier
    """)
    a(f"""
    s_lshl_b32 s22, s2, 2
    s_add_u32 s22, s22, s16
    s_cmp_ge_u32 s22, 800
    s_cbranch_scc1 K2_NOWO
    s_mul_i32 s23, s22, 52429
    s_lshr_b32 s23, s23, 18
    s_mul_i32 s24, s23, 5
    s_sub_u32 s24, s22, s24
    s_mul_i32 s25, s23, 3277
    s_lshr_b32 s25, s25, 16
    s_mul_i32 s26, s25, 20
    s_sub_u32 s26, s23, s26
    {srd(a, 32, 8, 640*1280)}
    v_lshrrev_b32 v2, 4, v0
    v_bfe_u32 v3, v0, 2, 2
    v_and_b32 v4, 3, v0
    v_mul_u32_u24 v3, 20, v3
    s_mul_i32 s27, s25, 80
    s_lshl_b32 s36, s24, 2
    s_add_u32 s27, s27, s36
    v_add3_u32 v3, v3, v4, s27
    s_cmp_ge_u32 s26, 16
    s_cbranch_scc1 K2_WO_TAIL
    v_lshrrev_b32 v4, 1, v2
    v_mul_u32_u24 v4, 20, v4
    v_and_b32 v5, 1, v2
    v_lshl_add_u32 v4, v5, 2, v4
    s_mul_i32 s27, s26, 40
    s_movk_i32 s36, {8*1280}
    s_branch K2_WO_JOIN
K2_WO_TAIL:
    v_mul_u32_u24 v4, 40, v2
    s_sub_u32 s27, s26, 16
    s_mul_i32 s27, s27, 160
    s_add_u32 s27, s27, 16
    s_movk_i32 s36, {20*1280}
K2_WO_JOIN:
    v_add_u32 v4, s27, v4
    v_mul_u32_u24 v4, 1280, v4
    v_lshl_add_u32 v4, v3, 1, v4
    """)
    for u in range(8):
        a(f"buffer_load_ushort v{8+u}, v4, s[32:35], {'0' if u < 4 else 's36'} offen offset:{(u & 3) * 1280}")
    a(f"""
    s_lshl_b32 s27, s22, 10
    s_add_u32 s27, s27, {WOF_OFF}
    s_waitcnt vmcnt(0)
    """)
    for j in range(4): a(f"v_lshl_or_b32 v{16+j}, v{9+2*j}, 16, v{8+2*j}")
    a(f"""
    buffer_store_dwordx4 v[16:19], v1, s[28:31], s27 offen
K2_NOWO:
    s_cmp_lt_u32 s16, 2
    s_cbranch_scc1 K2_FNET
    s_cmp_eq_u32 s16, 3
    s_cbranch_scc0 K2_END
    """)
    a(f"""
    {srd(a, 32, 4, 2048*1280)}
    {srd(a, 36, 10, 1280)}
    v_lshrrev_b32 v2, 3, v0
    v_and_b32 v3, 7, v0
    v_lshlrev_b32 v3, 4, v3
    s_movk_i32 s22, 1280
    v_mad_u32_u24 v4, v2, s22, v3
    s_mul_i32 s23, s2, {8*1280}
    """)
    for j in range(10):
        a(f"buffer_load_dwordx4 {vr(24+8*j,4)}, v4, s[32:35], s23 offen offset:{128*j}")
        a(f"buffer_load_dwordx4 {vr(28+8*j,4)}, v3, s[36:39], 0 offen offset:{128*j}")
    a("v_mov_b32 v5, 0\nv_mov_b32 v6, 0\ns_waitcnt vmcnt(0)")
    for j in range(10):
        for q in range(4):
            a(f"v_dot2c_f32_bf16 v{5 + (q & 1)}, v{24+8*j+q}, v{28+8*j+q}")
    a(f"""
    s_nop 2
    v_add_f32 v5, v5, v6
    s_nop 1
    v_add_f32_dpp v5, v5, v5 quad_perm:[1,0,3,2] row_mask:0xf bank_mask:0xf
    s_nop 1
    v_add_f32_dpp v5, v5, v5 quad_perm:[2,3,0,1] row_mask:0xf bank_mask:0xf
    s_nop 1
    v_add_f32_dpp v5, v5, v5 row_half_mirror row_mask:0xf bank_mask:0xf
    v_mul_f32 v5, {f32bits(-math.log2(math.e)):#x}, v5
    v_exp_f32 v5, v5
    v_lshlrev_b32 v2, 2, v2
    v_add_f32 v5, 1.0, v5
    v_rcp_f32 v5, v5
    s_lshl_b32 s23, s2, 5
    s_add_u32 s23, s23, {G_OFF}
    buffer_store_dword v5, v2, s[28:31], s23 offen
    s_endpgm
    """)
    C, SN, FB = 0, 16, 32
    a(f"""
K2_FNET:
    s_lshl_b32 s22, s16, 5
    s_add_u32 s22, s22, s18
    s_cmp_lt_u32 s22, 44
    s_cbranch_scc1 K2_FN_A
    s_sub_u32 s24, s22, 44
    s_lshl_b32 s24, s24, 3
    s_add_u32 s24, s24, s17
    s_cmp_ge_u32 s24, 11
    s_cbranch_scc1 K2_END
    s_mov_b32 s23, 32
    s_branch K2_FN_B
K2_FN_A:
    s_mul_i32 s23, s22, 5958
    s_lshr_b32 s23, s23, 16
    s_mul_i32 s24, s23, 11
    s_sub_u32 s24, s22, s24
    s_lshl_b32 s23, s23, 3
    s_add_u32 s23, s23, s17
K2_FN_B:
    s_and_b32 s25, s23, 1
    s_add_u32 s26, s24, 10
    s_cmp_eq_u32 s24, 10
    s_cselect_b32 s26, 10, s26
    s_lshl_b32 s32, s23, 16
    s_add_u32 s32, s32, {TB_OFF}
    s_mul_i32 s27, s25, {FO_DELTA}
    s_add_u32 s27, s27, {FE_OFF}
    s_lshl_b32 s33, s24, 15
    s_add_u32 s33, s33, s27
    s_lshl_b32 s34, s26, 15
    s_add_u32 s34, s34, s27
    s_cmp_eq_u32 s25, 0
    s_cselect_b32 s35, s24, s26
    s_lshl_b32 s35, s35, 7
    s_add_u32 s35, s35, {X512_OFF}
    v_and_b32 v160, 31, v0
    v_lshrrev_b32 v161, 5, v0
    v_lshlrev_b32 v162, 2, v160
    v_mov_b32 v163, v1
    buffer_load_dword v164, v162, s[28:31], s35 offen
    """)
    def fl(j):
        r = FB + 16 * j
        o2 = (j % 2) * 2048; o1 = (j % 4) * 1024
        s = f"""buffer_load_dwordx4 {vr(r,4)}, v163, s[28:31], s32 offen offset:{o2}
        buffer_load_dwordx4 {vr(r+4,4)}, v163, s[28:31], s33 offen offset:{o1}
        buffer_load_dwordx4 {vr(r+8,4)}, v163, s[28:31], s32 offen offset:{o2+1024}
        buffer_load_dwordx4 {vr(r+12,4)}, v163, s[28:31], s34 offen offset:{o1}
        """
        if j % 2 == 1: s += "s_add_u32 s32, s32, 4096\n"
        if j % 4 == 3: s += "s_add_u32 s33, s33, 4096\ns_add_u32 s34, s34, 4096\n"
        return s
    def fm(j):
        r = FB + 16 * j
        return f"""v_mfma_f32_32x32x16_bf16 {vr(C,16)}, {vr(r,4)}, {vr(r+4,4)}, {vr(C,16)}
        v_mfma_f32_32x32x16_bf16 {vr(SN,16)}, {vr(r+8,4)}, {vr(r+12,4)}, {vr(SN,16)}"""
    for j in range(8): a(fl(j))
    a(f"""
    s_waitcnt vmcnt(32)
    s_cmp_eq_u32 s25, 0
    s_cselect_b32 s36, 1.0, 0
    s_cselect_b32 s37, 0, 1.0
    v_mul_f32 v165, s36, v164
    v_mul_f32 v166, s37, v164
    """)
    for r in range(16):
        if r % 2 == 0: a(f"v_mov_b32 v{C+r}, v165\nv_mov_b32 v{SN+r}, v166")
        else: a(f"v_sub_f32 v{C+r}, 0, v165\nv_sub_f32 v{SN+r}, 0, v166")
    a("s_mov_b32 s38, 0\nK2_FN_LOOP:")
    for j in range(8):
        a("s_waitcnt vmcnt(28)"); a(fm(j)); a(fl(j))
    a("s_add_u32 s38, s38, 1\ns_cmp_lt_u32 s38, 3\ns_cbranch_scc1 K2_FN_LOOP")
    for j in range(8):
        a(f"s_waitcnt vmcnt({28-4*j})"); a(fm(j))
    a(f"""
    s_add_u32 s40, s14, {Y_OFF}
    s_addc_u32 s41, s15, 0
    s_mov_b32 s42, 2621440
    s_mov_b32 s43, 0x20000
    s_lshl_b32 s27, s24, 5
    v_add_u32 v32, s27, v160
    v_sub_u32 v33, 640, v32
    s_lshr_b32 s26, s23, 1
    s_lshl_b32 s26, s26, 6
    s_add_u32 s26, s26, s25
    v_lshl_add_u32 v34, v161, 3, s26
    v_sub_u32 v35, {2048 - 54}, v34
    v_mul_u32_u24 v34, 1280, v34
    v_mul_u32_u24 v35, 1280, v35
    v_lshlrev_b32 v36, 1, v32
    v_lshlrev_b32 v37, 1, v33
    v_mov_b32 v38, 0x40000000
    s_movk_i32 s27, 320
    v_cmp_lt_u32 vcc, s27, v32
    v_cmp_eq_u32 s[44:45], 0, v32
    v_cmp_le_u32 s[46:47], s27, v32
    s_or_b64 s[44:45], s[44:45], s[46:47]
    v_cndmask_b32 v36, v36, v38, vcc
    v_cndmask_b32 v37, v37, v38, s[44:45]
    v_add_u32 v40, v34, v36
    v_add_u32 v41, v34, v37
    v_add_u32 v42, v35, v36
    v_add_u32 v43, v35, v37
    """)
    for r in range(16): a(f"v_cndmask_b32 v{SN+r}, v{SN+r}, 0, s[44:45]")
    for r in range(16):
        a(f"v_add_f32 v{48+r}, v{C+r}, v{SN+r}\nv_sub_f32 v{C+r}, v{C+r}, v{SN+r}")
    for r in range(16): a(f"v_cvt_pk_bf16_f32 v{48+r}, v{48+r}, v{C+r}")
    a(f"""
    s_cmp_eq_u32 s23, 32
    s_cbranch_scc0 K2_FN_FULL
    s_mov_b32 exec_hi, 0
    buffer_store_short v48, v40, s[40:43], 0 offen
    buffer_store_short_d16_hi v48, v41, s[40:43], 0 offen
    s_endpgm
K2_FN_FULL:
    """)
    for r in range(16):
        row = 8 * (r >> 2) + (r & 3)
        a(f"""
        s_mov_b32 s26, {2560*row}
        s_mov_b32 s27, {2560*(27-row)}
        buffer_store_short v{48+r}, v40, s[40:43], s26 offen
        buffer_store_short_d16_hi v{48+r}, v41, s[40:43], s26 offen
        buffer_store_short_d16_hi v{48+r}, v42, s[40:43], s27 offen
        buffer_store_short v{48+r}, v43, s[40:43], s27 offen
        """)
    a("K2_END:\ns_endpgm")
    return desc("k2_kernel", 168, 56)

def k3(a):
    header(a, "k3_kernel")
    OFR = 0; ACC = 80; BF = 100; Y = 140; G = 150; VA = 151; VY = 152; T = 153
    a(f"""
    s_cmp_ge_u32 s2, 256
    s_cbranch_scc1 K3_END
    s_load_dwordx2 s[14:15], s[0:1], 88
    s_load_dwordx2 s[4:5], s[0:1], 72
    v_lshrrev_b32 v1, 6, v0
    v_and_b32 v0, 63, v0
    s_and_b32 s17, s2, 7
    v_readfirstlane_b32 s16, v1
    s_lshr_b32 s18, s2, 3
    s_lshr_b32 s19, s17, 1
    s_lshl_b32 s19, s19, 3
    s_and_b32 s20, s18, 7
    s_add_u32 s19, s19, s20
    s_and_b32 s20, s17, 1
    s_lshl_b32 s20, s20, 2
    s_lshr_b32 s21, s18, 3
    s_add_u32 s20, s20, s21
    v_lshlrev_b32 v{VA}, 4, v0
    v_and_b32 v{T}, 15, v0
    v_lshrrev_b32 v{T+1}, 4, v0
    s_lshl_b32 s21, s19, 2
    s_add_u32 s21, s21, s16
    s_mul_i32 s22, s21, 20480
    s_add_u32 s22, s22, {OF_OFF}
    s_mul_i32 s23, s20, 102400
    s_mul_i32 s24, s16, 5120
    s_add_u32 s23, s23, s24
    s_add_u32 s23, s23, {WOF_OFF}
    s_waitcnt lgkmcnt(0)
    {srd(a, 28, 14, WS_USED)}
    """)
    def issue(ph):
        s = ""
        for i in range(5):
            s += f"s_add_u32 m0, s24, {ph*20480 + i*1024}\ns_add_u32 s25, s23, {ph*20480 + i*1024}\nbuffer_load_dwordx4 v{VA}, s[28:31], s25 offen lds\n"
        s += f"s_add_u32 s25, s22, {ph*4096}\n"
        for i in range(4):
            s += f"buffer_load_dwordx4 {vr(OFR+16*ph+4*i,4)}, v{VA}, s[28:31], s25 offen offset:{1024*i}\n"
        return s
    a(issue(0)); a(issue(1))
    a(f"""
    s_lshl_b32 s26, s21, 4
    v_add_u32 v{T}, s26, v{T}
    v_mul_u32_u24 v{VY}, 1280, v{T}
    v_mul_u32_u24 v{T+1}, 40, v{T+1}
    s_mul_i32 s26, s20, 160
    v_add3_u32 v{VY}, v{VY}, v{T+1}, s26
    v_lshlrev_b32 v{T}, 2, v{T}
    {srd(a, 32, 4, 2621440)}
    """)
    for r in range(20): a(f"v_mov_b32 v{ACC+r}, 0")
    for ph in range(5):
        a(f"s_waitcnt vmcnt({9 if ph < 4 else 4})\ns_barrier")
        if ph + 2 < 5: a(issue(ph + 2))
        if ph == 3:
            a(f"""
            s_mov_b32 s26, {Y_OFF}
            s_mov_b32 s27, {G_OFF}
            buffer_load_dwordx4 {vr(Y,4)}, v{VY}, s[28:31], s26 offen
            buffer_load_dwordx4 {vr(Y+4,4)}, v{VY}, s[28:31], s26 offen offset:16
            buffer_load_dwordx2 {vr(Y+8,2)}, v{VY}, s[28:31], s26 offen offset:32
            buffer_load_dword v{G}, v{T}, s[28:31], s27 offen
            """)
        if ph == 3: a(f"v_add_u32 v{T+2}, 0xf000, v{VA}")
        areg = VA if ph < 3 else T + 2
        def rd(st, set_):
            o = ph * 20480 + st * 5120 - (0 if ph < 3 else 0xf000)
            return "\n".join(f"ds_read_b128 {vr(BF+20*set_+4*t,4)}, v{areg} offset:{o+1024*t}" for t in range(5))
        a(rd(0, 0))
        for st in range(4):
            if st < 3: a(rd(st + 1, (st + 1) % 2))
            a(f"s_waitcnt lgkmcnt({5 if st < 3 else 0})")
            for t in range(5):
                a(f"v_mfma_f32_16x16x32_bf16 {vr(ACC+4*t,4)}, {vr(BF+20*(st%2)+4*t,4)}, {vr(OFR+16*ph+4*st,4)}, {vr(ACC+4*t,4)}")
    a(f"""
    s_waitcnt vmcnt(0)
    v_sub_f32 v{T}, 1.0, v{G}
    """)
    for j in range(10):
        a(f"v_lshlrev_b32 v{2*j}, 16, v{Y+j}\nv_and_b32 v{2*j+1}, 0xffff0000, v{Y+j}")
    for j in range(20): a(f"v_mul_f32 v{j}, v{j}, v{G}")
    for j in range(20): a(f"v_fmac_f32 v{j}, v{ACC+j}, v{T}")
    for j in range(10): a(f"v_cvt_pk_bf16_f32 v{24+j}, v{2*j}, v{2*j+1}")
    a(f"""
    buffer_store_dwordx4 v[24:27], v{VY}, s[32:35], 0 offen
    buffer_store_dwordx4 v[28:31], v{VY}, s[32:35], 0 offen offset:16
    buffer_store_dwordx2 v[32:33], v{VY}, s[32:35], 0 offen offset:32
K3_END:
    s_endpgm
    """)
    return desc("k3_kernel", 160, 40)

def main():
    a = A()
    top = open("cdna_kernels/" + NAME + ".s.ref").read().split("; Override launch")[0]
    top += "; @launch kernel=k1_kernel grid=(256,1,1) block=(512,1,1) lds=147456\n"
    top += "; @launch kernel=k2_kernel grid=(256,1,1) block=(768,1,1) lds=163840\n"
    top += "; @launch kernel=k3_kernel grid=(256,1,1) block=(256,1,1) lds=102400\n"
    a('.amdgcn_target "amdgcn-amd-amdhsa--gfx950"\n.text')
    d = k1(a); d += ".p2align 6\n" + k2(a); d += ".p2align 6\n" + k3(a)
    out = top + a.text() + '.section .rodata,"a"\n.p2align 6\n' + d
    open(sys.argv[1], "w").write(out)
if __name__ == "__main__":
    main()
```

```python
import sys, math, struct

NAME = "gated_mix__spectral_fnet__softmax_full_mha__prompt"
HS = 163840
KV_OFF = 0
Q_OFF = 32 * HS
FE_OFF = 64 * HS
FO_DELTA = 655360
X512_OFF = FE_OFF + 2 * FO_DELTA
TB_OFF = X512_OFF + 4096
Y_OFF = TB_OFF + 33 * 65536
G_OFF = Y_OFF + 2621440
OF_OFF = G_OFF + 8192
WOF_OFF = OF_OFF + 2621440
WS_USED = WOF_OFF + 819200

def f32bits(x): return struct.unpack("<I", struct.pack("<f", x))[0]
QSCALE = f32bits((20 ** -0.5) * math.log2(math.e))

class A:
    def __init__(self): self.l = []
    def __call__(self, s):
        for line in s.split("\n"):
            t = line.strip()
            if not t: continue
            self.l.append(t if t.endswith(":") or t.startswith(".") else "    " + t)
    def text(self):
        fl = OPT.get("stflag", "").replace("+", " ")
        if fl: self.l = [x + " " + fl if x.strip().startswith("buffer_store") else x for x in self.l]
        return "\n".join(self.l) + "\n"

def vr(a, n): return f"v[{a}:{a+n-1}]" if n > 1 else f"v{a}"
def srd(a, lo, base, size):
    return f"""s_mov_b32 s{lo}, s{base}
s_mov_b32 s{lo+1}, s{base+1}
s_mov_b32 s{lo+2}, {size}
s_mov_b32 s{lo+3}, 0x20000"""

def header(a, label):
    a(f".p2align 8\n.globl {label}\n.type {label},@function\n{label}:")

def desc(label, nv, ns):
    return f""".amdhsa_kernel {label}
  .amdhsa_next_free_vgpr {nv}
  .amdhsa_next_free_sgpr {96 if STAMP else ns}
  .amdhsa_accum_offset {(nv + 3) // 4 * 4}
  .amdhsa_group_segment_fixed_size 0
  .amdhsa_kernarg_size 96
  .amdhsa_user_sgpr_count 2
  .amdhsa_user_sgpr_kernarg_segment_ptr 1
  .amdhsa_system_sgpr_workgroup_id_x 1
.end_amdhsa_kernel
"""

OPT = dict(x.split("=") for x in sys.argv[2:])
STAG1 = int(OPT.get("stag1", 1))
STAMP = int(OPT.get("stamp", 0))
STAMP_OFF = 1 << 25
NST = 8
def st(i, real=False):
    if not STAMP: return ""
    return f"{'s_memrealtime' if STAMP == 1 else 's_memtime'} s[{64+2*i}:{65+2*i}]"
def st_init():
    if not STAMP: return ""
    return "\n".join(f"s_mov_b32 s{64+j}, 0" for j in range(2, 2*NST)) + "\n" + st(0) + "\nv_lshrrev_b32 v1, 6, v0\ns_nop 0\nv_readfirstlane_b32 s81, v1"
def fin(k): return f's_branch K{k}_DONE' if STAMP else 's_endpgm'
def st_end(kidx):
    if not STAMP: return ""
    r = f"s_waitcnt vmcnt(0)\n{st(NST-1)}\ns_mov_b64 exec, 1\ns_add_u32 s84, s14, {STAMP_OFF + kidx * 262144}\ns_addc_u32 s85, s15, 0\ns_mov_b32 s86, 262144\ns_mov_b32 s87, 0x20000\n"
    r += "s_lshl_b32 s82, s2, 4\ns_add_u32 s82, s82, s81\ns_lshl_b32 s82, s82, 5\ns_waitcnt lgkmcnt(0)\nv_mov_b32 v8, 0\n"
    for i in range(NST): r += f"v_mov_b32 v{i}, s{64+2*i}\n"
    r += "buffer_store_dwordx4 v[0:3], v8, s[84:87], s82 offen\nbuffer_store_dwordx4 v[4:7], v8, s[84:87], s82 offen offset:16\n"
    return r

def k1(a):
    header(a, "k1_kernel")
    a(f"""
    s_cmp_ge_u32 s2, 256
    s_cbranch_scc1 K1_END
    {st_init()}
    s_load_dwordx2 s[4:5], s[0:1], 0
    s_load_dwordx4 s[8:11], s[0:1], 24
    s_load_dwordx2 s[12:13], s[0:1], 48
    s_load_dwordx2 s[14:15], s[0:1], 88
    v_lshrrev_b32 v1, 6, v0
    v_and_b32 v0, 63, v0
    s_and_b32 s17, s2, 7
    v_readfirstlane_b32 s16, v1
    s_lshr_b32 s18, s2, 3
    s_and_b32 s19, s18, 7
    s_lshr_b32 s20, s18, 3
    s_and_b32 s21, s17, 1
    s_lshl_b32 s21, s21, 3
    s_add_u32 s21, s21, s19
    s_lshr_b32 s22, s17, 1
    s_cmp_lt_u32 s16, 4
    s_cbranch_scc1 K1_COMPUTE
    """)
    a(f"""
    s_sub_u32 s16, s16, 4
    v_lshrrev_b32 v2, 3, v0
    v_and_b32 v3, 7, v0
    v_lshrrev_b32 v4, 4, v0
    v_xor_b32 v3, v3, v4
    v_lshlrev_b32 v3, 4, v3
    v_xor_b32 v4, 64, v3
    s_cmp_eq_u32 s22, 3
    s_cbranch_scc1 K1_LD_DFT
    s_lshl_b32 s23, s21, 7
    s_lshl_b32 s24, s16, 5
    s_add_u32 s23, s23, s24
    v_add_u32 v5, s23, v2
    v_add_u32 v6, 8, v5
    v_add_u32 v7, 16, v5
    v_add_u32 v8, 24, v5
    s_movk_i32 s25, 3840
    s_lshl_b32 s26, s22, 2
    s_add_u32 s26, s26, s20
    s_mul_i32 s26, s26, 320
    s_waitcnt lgkmcnt(0)
    s_mov_b32 s32, s12
    s_mov_b32 s33, s13
    s_mov_b32 s34, {640*3840}
    s_branch K1_LD_JOIN
K1_LD_DFT:
    s_lshl_b32 s23, s21, 5
    s_lshl_b32 s24, s16, 3
    s_add_u32 s23, s23, s24
    v_add_u32 v5, s23, v2
    v_sub_u32 v6, 0x800, v5
    v_sub_u32 v7, 0x400, v5
    v_add_u32 v8, 0x400, v5
    v_cmp_eq_u32 vcc, 0, v5
    v_mov_b32 v9, 0x200
    v_mov_b32 v10, 0x600
    v_cndmask_b32 v6, v6, v9, vcc
    v_cndmask_b32 v8, v8, v10, vcc
    s_movk_i32 s25, 1280
    s_and_b32 s26, s20, 1
    s_mul_i32 s26, s26, 320
    s_waitcnt lgkmcnt(0)
    s_cmp_lt_u32 s20, 2
    s_cselect_b32 s32, s8, s10
    s_cselect_b32 s33, s9, s11
    s_mov_b32 s34, {640*1280}
K1_LD_JOIN:
    s_mov_b32 s35, 0x20000
    {srd(a, 28, 4, 2048*1280)}
    s_movk_i32 s27, 1280
    v_mad_u32_u24 v10, v5, s27, v3
    v_mad_u32_u24 v11, v6, s27, v4
    v_mad_u32_u24 v12, v7, s27, v3
    v_mad_u32_u24 v13, v8, s27, v4
    s_lshl_b32 s27, s16, 4
    s_mul_i32 s27, s27, s25
    s_add_u32 s26, s26, s27
    s_sub_u32 s27, s25, 320
    """)
    for i in range(5):
        a(f"""
        v_add_u32 v5, {64*i}, v0
        v_mul_u32_u24 v6, 3277, v5
        v_lshrrev_b32 v6, 16, v6
        v_lshl_add_u32 v5, v5, 4, s26
        v_mad_u32_u24 v{14+i}, v6, s27, v5
        """)
    if STAG1:
        a(f"""
        s_lshl_b32 s36, s19, 3
        s_lshl_b32 s37, s20, 4
        s_add_u32 s36, s36, s37
        s_add_u32 s36, s36, s17
        s_and_b32 s36, s36, 63
        s_mul_i32 s36, s36, 10
        s_lshr_b32 s36, s36, 6
        """)
    else:
        a("s_mov_b32 s36, 0")
    a(f"""
    s_lshl_b32 s25, s25, 6
    s_lshl_b32 s38, s16, 12
    s_mul_i32 s39, s16, 5120
    s_add_u32 s39, s39, 0x10000
    s_mov_b32 s40, 0
    {st(1)}
K1_LD_LOOP:
    s_lshl_b32 s41, s36, 7
    s_mul_i32 s42, s36, s25
    s_and_b32 s43, s40, 3
    s_lshl_b32 s44, s43, 14
    s_add_u32 s44, s44, s38
    s_mul_i32 s45, s43, 20480
    s_add_u32 s45, s45, s39
    """)
    for i in range(4):
        a(f"s_add_u32 m0, s44, {1024*i}\ns_nop 0\nbuffer_load_dwordx4 v{10+i}, s[28:31], s41 offen lds")
    for i in range(5):
        a(f"s_add_u32 m0, s45, {1024*i}\ns_nop 0\nbuffer_load_dwordx4 v{14+i}, s[32:35], s42 offen lds")
    a(f"""
    s_add_u32 s36, s36, 1
    s_cmp_eq_u32 s36, 10
    s_cselect_b32 s36, 0, s36
    s_add_u32 s40, s40, 1
    s_cmp_eq_u32 s40, 1
    s_cbranch_scc1 K1_LD_LOOP
    s_waitcnt vmcnt(9)
    s_barrier
    s_cmp_lt_u32 s40, 10
    s_cbranch_scc1 K1_LD_LOOP
    s_waitcnt vmcnt(0)
    s_barrier
    {fin(1)}
    """)
    ACC = 0
    SA, SB = 80, 104
    L, H5, L31 = 128, 129, 130
    XA0, WA = 131, 132
    CX = 133
    CW = 137
    PC = 138
    T0 = 140
    a(f"""
K1_COMPUTE:
    v_mov_b32 v{L}, v0
    v_lshrrev_b32 v{H5}, 5, v0
    v_and_b32 v{L31}, 31, v0
    s_waitcnt lgkmcnt(0)
    {srd(a, 28, 14, WS_USED)}
    s_lshl_b32 s23, s2, 2
    s_add_u32 s23, s23, s16
    v_lshlrev_b32 v{T0+10}, 4, v{L}
K1_TBL:
    s_lshr_b32 s24, s23, 5
    s_and_b32 s25, s23, 31
    s_and_b32 s26, s24, 1
    s_lshr_b32 s27, s24, 1
    s_lshl_b32 s27, s27, 6
    s_add_u32 s27, s27, s26
    v_lshl_add_u32 v{T0}, v{L31}, 1, s27
    s_lshl_b32 s25, s25, 4
    v_lshl_add_u32 v{T0+1}, v{H5}, 3, s25
    v_mul_u32_u24 v{T0+1}, v{T0}, v{T0+1}
    v_and_b32 v{T0+1}, 0x7ff, v{T0+1}
    v_cvt_f32_u32 v{T0}, v{T0}
    v_cvt_f32_u32 v{T0+1}, v{T0+1}
    v_mul_f32 v{T0}, 0x3a000000, v{T0}
    v_mul_f32 v0, 0x3a000000, v{T0+1}
    """)
    for u in range(1, 8):
        a(f"v_add_f32 v{u}, v{u-1}, v{T0}")
    for u in range(1, 8):
        a(f"v_fract_f32 v{u}, v{u}")
    for u in range(8):
        a(f"v_cos_f32 v{8+u}, v{u}")
    for u in range(8):
        a(f"v_sin_f32 v{16+u}, v{u}")
    for j in range(4):
        a(f"v_cvt_pk_bf16_f32 v{24+j}, v{8+2*j}, v{9+2*j}")
    for j in range(4):
        a(f"v_cvt_pk_bf16_f32 v{28+j}, v{16+2*j}, v{17+2*j}")
    a(f"""
    s_lshl_b32 s24, s23, 11
    s_add_u32 s24, s24, {TB_OFF}
    buffer_store_dwordx4 v[24:27], v{T0+10}, s[28:31], s24 offen
    buffer_store_dwordx4 v[28:31], v{T0+10}, s[28:31], s24 offen offset:1024
    s_add_u32 s23, s23, 1024
    s_cmp_lt_u32 s23, 1056
    s_cbranch_scc1 K1_TBL
    """)
    if int(OPT.get("pretouch", 0)):
        a(f"""
        s_lshl_b32 s23, s21, 2
        s_add_u32 s23, s23, s16
        s_cmp_eq_u32 s22, 3
        s_cbranch_scc1 K1_PT_DFT
        s_mul_i32 s26, s20, {8*HS}
        s_mul_i32 s27, s23, 2560
        s_add_u32 s26, s26, s27
        s_cmp_eq_u32 s22, 0
        s_cselect_b32 s27, {Q_OFF}, {KV_OFF}
        s_add_u32 s26, s26, s27
        s_cmp_eq_u32 s22, 2
        s_cselect_b32 s27, 1280, 0
        s_add_u32 s26, s26, s27
        v_lshlrev_b32 v{T0}, 2, v{L}
        """)
        for hd in range(8):
            a(f"buffer_store_dwordx4 v[24:27], v{T0+10}, s[28:31], s26 offen\nbuffer_store_dword v24, v{T0}, s[28:31], s26 offen offset:1024\ns_add_u32 s26, s26, {HS}")
        a(f"""
        s_branch K1_PT_END
K1_PT_DFT:
        s_mul_i32 s26, s20, {5*32768}
        s_lshl_b32 s27, s23, 9
        s_add_u32 s26, s26, s27
        s_add_u32 s26, s26, {FE_OFF}
        v_lshlrev_b32 v{T0}, 3, v{L}
        """)
        for T in range(5):
            a(f"s_add_u32 s27, s26, {FO_DELTA}\nbuffer_store_dwordx2 v[24:25], v{T0}, s[28:31], s26 offen\nbuffer_store_dwordx2 v[24:25], v{T0}, s[28:31], s27 offen\ns_add_u32 s26, s26, 32768")
        a("K1_PT_END:")
    a(f"""
    v_lshrrev_b32 v{T0}, 1, v{L}
    v_and_b32 v{T0}, 7, v{T0}
    v_xor_b32 v{T0}, v{T0}, v{H5}
    v_lshlrev_b32 v{T0}, 4, v{T0}
    v_lshl_add_u32 v{T0}, v{L31}, 7, v{T0}
    s_lshl_b32 s23, s16, 12
    v_add_u32 v{XA0}, s23, v{T0}
    v_bfe_u32 v{T0}, v{L}, 2, 2
    v_lshl_add_u32 v{T0}, v{H5}, 3, v{T0}
    v_mul_u32_u24 v{T0}, 320, v{T0}
    v_and_b32 v{T0+1}, 3, v{L}
    v_lshlrev_b32 v{T0+1}, 3, v{T0+1}
    v_and_b32 v{T0+2}, 16, v{L}
    v_lshlrev_b32 v{T0+2}, 1, v{T0+2}
    v_add3_u32 v{WA}, v{T0}, v{T0+1}, v{T0+2}
    v_add_u32 v{WA}, 0x10000, v{WA}
    v_mov_b32 v{PC}, 0xbf803f80
    s_mov_b32 s24, 0
    s_mov_b32 s25, 0
    s_lshl_b32 s26, s22, 2
    s_add_u32 s26, s26, s20
    s_cmp_eq_u32 s26, 14
    s_cselect_b32 s24, 1, 0
    s_mov_b32 s25, s24
    s_mov_b32 s40, 0
    """)
    for r in range(80): a(f"v_mov_b32 v{ACC+r}, 0")
    for r in range(24): a(f"v_mov_b32 v{SB+r}, 0")
    a(st(1))
    a("s_cmp_ge_u32 s22, 2\ns_cbranch_scc1 K1_LOOP_V")

    def group(cur, nxt, step, qk):
        def mf(T):
            d = vr(ACC + 16 * T, 16); x = vr(cur, 4); w = vr(cur + 4 + 4 * T, 4)
            return f"v_mfma_f32_32x32x16_bf16 {d}, {w}, {x}, {d}" if qk else f"v_mfma_f32_32x32x16_bf16 {d}, {x}, {w}, {d}"
        def rw(T):
            if step is None: return ""
            o = step * 5120 + T * 64; d = nxt + 4 + 4 * T
            return f"ds_read_b64_tr_b16 {vr(d,2)}, v{CW} offset:{o}\nds_read_b64_tr_b16 {vr(d+2,2)}, v{CW} offset:{o+1280}"
        rd = step is not None
        a(f"s_waitcnt lgkmcnt(8)"); a(mf(1))
        if rd: a(f"ds_read_b128 {vr(nxt,4)}, v{CX+step}")
        a(rw(1))
        a(f"s_waitcnt lgkmcnt({9 if rd else 6})"); a(mf(2)); a(rw(2))
        a(f"s_waitcnt lgkmcnt({9 if rd else 4})"); a(mf(3)); a(rw(3))
        a(f"s_waitcnt lgkmcnt({7 if rd else 0})")
        if not qk:
            for j in range(4): a(f"v_cndmask_b32 v{cur+4+j}, v{cur+4+j}, v{PC}, s[24:25]")
        a(mf(4)); a(rw(4))
        if not rd: a("s_nop 0")
        a(mf(0)); a(rw(0))

    for qk, lab in ((True, "QK"), (False, "V")):
        a(f"""
K1_LOOP_{lab}:
        s_and_b32 s41, s40, 3
        s_lshl_b32 s42, s41, 14
        s_mul_i32 s43, s41, 20480
        v_add_u32 v{CX}, s42, v{XA0}
        v_add_u32 v{CW}, s43, v{WA}
        v_xor_b32 v{CX+1}, 32, v{CX}
        v_xor_b32 v{CX+2}, 64, v{CX}
        v_xor_b32 v{CX+3}, 0x60, v{CX}
        s_barrier
        """)
        if STAMP: a(f"s_cmp_lg_u32 s40, 0\ns_cbranch_scc1 K1_ST_{lab}\n{st(2)}\nK1_ST_{lab}:\ns_cmp_lg_u32 s40, 5\ns_cbranch_scc1 K1_ST2_{lab}\n{st(3)}\nK1_ST2_{lab}:")
        group(SB, SA, 0, qk); group(SA, SB, 1, qk); group(SB, SA, 2, qk); group(SA, SB, 3, qk)
        a(f"s_add_u32 s40, s40, 1\ns_cmp_lt_u32 s40, 10\ns_cbranch_scc1 K1_LOOP_{lab}")
        group(SB, SA, None, qk)
        a(st(4))
        a("s_lshl_b32 s23, s21, 2\ns_add_u32 s23, s23, s16")
        if qk:
            a(f"""
            s_mul_i32 s26, s20, {8*HS}
            s_mul_i32 s27, s23, 2560
            s_add_u32 s26, s26, s27
            s_cmp_eq_u32 s22, 0
            s_cselect_b32 s27, {Q_OFF}, {KV_OFF}
            s_cselect_b32 s36, {QSCALE}, 1.0
            s_mov_b32 s37, s36
            s_add_u32 s26, s26, s27
            v_lshlrev_b32 v{T0}, 4, v{L}
            s_mov_b32 s27, {HS}
            v_mul_lo_u32 v{T0+1}, v{H5}, s27
            v_lshl_add_u32 v{T0+1}, v{L31}, 3, v{T0+1}
            s_nop 7
            """)
            for p in range(4):
                base = SA + (p % 2) * 12
                for gi, dst in ((0, 0), (1, 2), (3, 4), (4, 6), (2, 8)):
                    r = ACC + 4 * (5 * p + gi)
                    a(f"v_pk_mul_f32 {vr(r,2)}, {vr(r,2)}, s[36:37]\nv_pk_mul_f32 {vr(r+2,2)}, {vr(r+2,2)}, s[36:37]")
                    a(f"v_cvt_pk_bf16_f32 v{base+dst}, v{r}, v{r+1}\nv_cvt_pk_bf16_f32 v{base+dst+1}, v{r+2}, v{r+3}")
                a(f"""
                s_add_u32 s38, s26, {HS}
                buffer_store_dwordx4 {vr(base,4)}, v{T0}, s[28:31], s26 offen
                buffer_store_dwordx4 {vr(base+4,4)}, v{T0}, s[28:31], s38 offen
                buffer_store_dwordx2 {vr(base+8,2)}, v{T0+1}, s[28:31], s26 offen offset:1024
                s_add_u32 s26, s26, {2*HS}
                """)
            a(fin(1))
        else:
            a("s_cmp_eq_u32 s22, 3\ns_cbranch_scc1 K1_EPI_DFT")
            a(f"""
            s_mul_i32 s26, s20, {8*HS}
            s_mul_i32 s27, s23, 2560
            s_add_u32 s26, s26, s27
            s_add_u32 s26, s26, {KV_OFF + 1280}
            s_mov_b32 s27, {HS - 320}
            v_mul_u32_u24 v{T0+5}, 320, v{H5}
            """)
            for T in range(5):
                a(f"""
                v_add_u32 v{T0+6}, {32*T}, v{L31}
                v_mul_u32_u24 v{T0+7}, 3277, v{T0+6}
                v_lshrrev_b32 v{T0+7}, 16, v{T0+7}
                v_lshl_add_u32 v{T0+6}, v{T0+6}, 4, v{T0+5}
                v_mad_u32_u24 v{T0+T}, v{T0+7}, s27, v{T0+6}
                """)
            for T in (1, 2, 3, 4, 0):
                base = SA + (T % 3) * 8
                for j in range(8):
                    a(f"v_cvt_pk_bf16_f32 v{base+j}, v{ACC+16*T+2*j}, v{ACC+16*T+2*j+1}")
                a(f"buffer_store_dwordx4 {vr(base,4)}, v{T0+T}, s[28:31], s26 offen")
                a(f"buffer_store_dwordx4 {vr(base+4,4)}, v{T0+T}, s[28:31], s26 offen offset:640")
            a(fin(1))
            TAU, TAU0, VD = T0, T0 + 1, T0 + 2
            a(f"""
K1_EPI_DFT:
            s_cmp_lt_u32 s20, 2
            s_cselect_b32 s36, 1.0, -1.0
            v_mov_b32 v{TAU}, s36
            v_cndmask_b32 v{TAU0}, v{TAU}, 1.0, s[24:25]
            v_lshlrev_b32 v{VD}, 4, v{L31}
            v_lshl_add_u32 v{VD}, v{H5}, 3, v{VD}
            s_mul_i32 s26, s20, {5*32768}
            s_lshl_b32 s27, s23, 9
            s_add_u32 s26, s26, s27
            s_add_u32 s26, s26, {FE_OFF}
            s_nop 7
            s_cmp_lg_u32 s23, 0
            s_cbranch_scc1 K1_EPI_DFT2
            s_mov_b32 exec_hi, 0
            s_mul_i32 s27, s20, 640
            s_add_u32 s27, s27, {X512_OFF}
            v_lshlrev_b32 v{T0+3}, 2, v{L31}
            """)
            for T in range(5):
                r = ACC + 16 * T
                a(f"v_fma_f32 v{SA+T}, v{r+12}, v{TAU0 if T == 0 else TAU}, v{r+4}")
                a(f"v_mov_b32 v{r+4}, 0\nv_mov_b32 v{r+12}, 0")
                a(f"buffer_store_dword v{SA+T}, v{T0+3}, s[28:31], s27 offen offset:{128*T}")
            a("s_mov_b32 exec_hi, -1\nK1_EPI_DFT2:")
            for T in range(5):
                r = ACC + 16 * T; tau = TAU0 if T == 0 else TAU
                base = SB + (T % 3) * 4
                for q in range(4):
                    a(f"v_fma_f32 v{r+q}, v{r+4+q}, v{tau}, v{r+q}")
                    a(f"v_fma_f32 v{r+12+q}, v{r+8+q}, v{tau}, v{r+12+q}")
                for q in range(4):
                    a(f"v_add_f32 v{r+4+q}, v{r+q}, v{r+12+q}")
                    a(f"v_sub_f32 v{r+8+q}, v{r+q}, v{r+12+q}")
                a(f"v_cvt_pk_bf16_f32 v{base}, v{r+4}, v{r+5}\nv_cvt_pk_bf16_f32 v{base+1}, v{r+6}, v{r+7}")
                a(f"v_cvt_pk_bf16_f32 v{base+2}, v{r+8}, v{r+9}\nv_cvt_pk_bf16_f32 v{base+3}, v{r+10}, v{r+11}")
                a(f"""
                s_add_u32 s27, s26, {FO_DELTA}
                buffer_store_dwordx2 {vr(base,2)}, v{VD}, s[28:31], s26 offen
                buffer_store_dwordx2 {vr(base+2,2)}, v{VD}, s[28:31], s27 offen
                s_add_u32 s26, s26, 32768
                """)
    a("K1_DONE:\n" + st_end(0) + "\nK1_END:\ns_endpgm")
    return desc("k1_kernel", 152, 48)

def k2(a):
    header(a, "k2_kernel")
    a(f"""
    s_cmp_ge_u32 s2, 256
    s_cbranch_scc1 K2_END
    {st_init()}
    s_load_dwordx2 s[14:15], s[0:1], 88
    s_load_dwordx2 s[4:5], s[0:1], 0
    s_load_dwordx4 s[8:11], s[0:1], 56
    v_lshrrev_b32 v1, 6, v0
    v_and_b32 v0, 63, v0
    s_and_b32 s17, s2, 7
    v_readfirstlane_b32 s16, v1
    s_lshr_b32 s18, s2, 3
    s_lshr_b32 s19, s18, 3
    s_lshl_b32 s20, s17, 2
    s_add_u32 s19, s19, s20
    s_and_b32 s20, s18, 7
    s_mul_i32 s21, s19, {HS}
    s_waitcnt lgkmcnt(0)
    {srd(a, 28, 14, WS_USED)}
    s_cmp_ge_u32 s16, 8
    s_cbranch_scc1 K2_HELPER
    """)
    O = 0; S = [16, 32]; P = 48; Q1 = 56; Q2 = 60; K1 = 64; K2 = 62; V1 = 68; V2 = [72, 76]
    AK1, AK2, AV = 80, 81, 82; L31, H5 = 83, 84; T = 86
    a(f"""
    v_and_b32 v{L31}, 31, v0
    v_lshrrev_b32 v{H5}, 5, v0
    v_lshlrev_b32 v{AK1}, 4, v0
    v_lshlrev_b32 v{AK2}, 2, v{H5}
    v_lshl_add_u32 v{AK2}, v{L31}, 3, v{AK2}
    s_lshl_b32 s22, s20, 3
    s_add_u32 s22, s22, s16
    s_mul_i32 s23, s22, 2560
    s_add_u32 s23, s23, s21
    s_add_u32 s23, s23, {Q_OFF}
    buffer_load_dwordx4 {vr(Q1,4)}, v{AK1}, s[28:31], s23 offen
    buffer_load_dword v{Q2}, v{AK2}, s[28:31], s23 offen offset:1024
    v_mul_u32_u24 v{AV}, 320, v{H5}
    v_lshl_add_u32 v{AV}, v{L31}, 4, v{AV}
    s_mov_b32 s24, 0xfffff
    s_mov_b32 s25, 0xfffff
    v_mov_b32 v{Q2+1}, 0
    v_mov_b32 v{K2+1}, 0x3f803f80
    """)
    for r in range(12): a(f"v_mov_b32 v{V1+r}, 0x3f803f80")
    for r in range(16): a(f"v_mov_b32 v{O+r}, 0")
    for r in range(4): a(f"v_mov_b32 v{P+4+r}, 0")
    def qk1(d): return f"v_mfma_f32_32x32x16_bf16 {vr(d,16)}, {vr(K1,4)}, {vr(Q1,4)}, 0"
    def qk2(d): return f"v_mfma_f32_32x32x8_bf16 {vr(d,16)}, {vr(K2,2)}, {vr(Q2,2)}, {vr(d,16)}"
    def pv(v, p): return f"v_mfma_f32_32x32x16_bf16 {vr(O,16)}, {vr(v,4)}, {vr(p,4)}, {vr(O,16)}"
    def rdk1(t): return f"ds_read_b128 {vr(K1,4)}, v{AK1} offset:{t*2560}"
    def rdk2(t): return f"ds_read_b32 v{K2}, v{AK2} offset:{t*2560+1024}"
    def rdv(t, v2): return f"s_mov_b64 exec, s[24:25]\nds_read_b128 {vr(V1,4)}, v{AV} offset:{t*2560+1280}\nds_read_b128 {vr(v2,4)}, v{AV} offset:{t*2560+1920}\ns_mov_b64 exec, -1"
    def maxtree(s, m, first):
        if first:
            a(f"v_max3_f32 v{m}, v{s}, v{s+1}, v{s+2}")
            for j in range(3, 15, 2): a(f"v_max3_f32 v{m}, v{s+j}, v{s+j+1}, v{m}")
            a(f"v_max_f32 v{m}, v{s+15}, v{m}")
        else:
            for j in range(0, 16, 2): a(f"v_max3_f32 v{m}, v{s+j}, v{s+j+1}, v{m}")
    def xhalf(m):
        a(f"v_mov_b32 v{m+1}, v{m}\ns_nop 1\nv_permlane32_swap_b32 v{m}, v{m+1}\ns_nop 0\nv_max_f32 v{m}, v{m}, v{m+1}")
    a(f"""
    {st(1)}
    s_barrier
    {st(2)}
    {rdk1(0)}
    {rdk2(0)}
    s_waitcnt vmcnt(0) lgkmcnt(0)
    {qk1(S[0])}
    {qk2(S[0])}
    {rdv(0, V2[0])}
    s_nop 7
    """)
    maxtree(S[0], T, True); xhalf(T)
    a(f"""
    v_mul_f32 v{T}, -0.5, v{T}
    v_cvt_pk_bf16_f32 v{Q2+1}, v{T}, 0
    {qk1(S[0])}
    s_nop 0
    {qk2(S[0])}
    {rdk1(1)}
    {rdk2(1)}
    s_mov_b32 s26, 0
    s_waitcnt lgkmcnt(0)
    s_barrier
    {st(3)}
    s_nop 4
K2_LOOP:
    """)
    def e(s, j): return f"v_exp_f32 v{s+j}, v{s+j}"
    def c(s, j): return f"v_cvt_pk_bf16_f32 v{P+j}, v{s+2*j}, v{s+2*j+1}"
    for j in range(8):
        cur, nxt = S[j % 2], S[(j + 1) % 2]
        a("s_waitcnt lgkmcnt(3)")
        a(qk1(nxt)); a(rdk1(j + 2))
        for q in range(4): a(e(cur, q))
        a(pv(V2[(j + 1) % 2], P + 4))
        for q in range(4, 8): a(e(cur, q))
        a(c(cur, 0)); a(c(cur, 1))
        a("s_waitcnt lgkmcnt(3)")
        a(qk2(nxt)); a(rdk2(j + 2))
        a(c(cur, 2)); a(c(cur, 3))
        for q in range(8, 12): a(e(cur, q))
        a("s_waitcnt lgkmcnt(3)")
        a(pv(V1, P)); a(rdv(j + 1, V2[(j + 1) % 2]))
        for q in range(12, 16): a(e(cur, q))
        for q in range(4, 8): a(c(cur, q))
    a(f"""
    v_add_u32 v{AK1}, 0x5000, v{AK1}
    v_add_u32 v{AK2}, 0x5000, v{AK2}
    v_add_u32 v{AV}, 0x5000, v{AV}
    s_add_u32 s26, s26, 1
    s_cmp_lg_u32 s26, 1
    s_cbranch_scc1 K2_NOBAR
    {st(4)}
    s_barrier
    {st(5)}
K2_NOBAR:
    s_cmp_lt_u32 s26, 8
    s_cbranch_scc1 K2_LOOP
    {st(6)}
    s_waitcnt lgkmcnt(0)
    {pv(V2[1], P+4)}
    s_nop 7
    s_nop 4
    """)
    a(f"v_max3_f32 v{T}, |v{O}|, |v{O+1}|, |v{O+12}|")
    for j in range(2, 12, 2): a(f"v_max3_f32 v{T}, |v{O+j}|, |v{O+j+1}|, v{T}")
    a(f"""
    v_add_f32 v{T+1}, v{O}, v{O+1}
    v_add_f32 v{T+2}, v{O+2}, v{O+3}
    """)
    for j in range(4, 12, 2): a(f"v_add_f32 v{T+1}, v{O+j}, v{T+1}\nv_add_f32 v{T+2}, v{O+j+1}, v{T+2}")
    a(f"""
    v_add_f32 v{T+1}, v{T+1}, v{T+2}
    s_mov_b32 s27, 0x71800000
    v_cmp_gt_f32 vcc, s27, v{T}
    v_cmp_o_f32 s[32:33], v{T+1}, v{T+1}
    s_mov_b32 s27, 0x3e800000
    v_cmp_le_f32 s[34:35], s27, v{O+12}
    s_and_b64 vcc, vcc, s[32:33]
    s_and_b64 vcc, vcc, s[34:35]
    s_cmp_eq_u64 vcc, -1
    s_cbranch_scc0 K2_FALLBACK
K2_FINISH:
    v_rcp_f32 v{T}, v{O+12}
    s_lshl_b32 s27, s22, 1
    s_mul_i32 s27, s27, 20480
    s_add_u32 s27, s27, {OF_OFF}
    v_lshrrev_b32 v{T+1}, 4, v{L31}
    v_mul_u32_u24 v{T+1}, 20480, v{T+1}
    v_and_b32 v{T+2}, 15, v{L31}
    v_lshl_add_u32 v{T+1}, v{T+2}, 4, v{T+1}
    v_lshl_add_u32 v{T+2}, v{H5}, 8, v{T+1}
    s_lshl_b32 s32, s19, 9
    s_add_u32 s32, s32, s27
    s_lshr_b32 s33, s19, 1
    s_lshl_b32 s33, s33, 8
    s_and_b32 s34, s19, 1
    s_lshl_b32 s34, s34, 3
    s_add_u32 s33, s33, s34
    s_add_u32 s33, s33, s27
    s_add_u32 s33, s33, 16384
    """)
    for j in range(12): a(f"v_mul_f32 v{O+j}, v{O+j}, v{T}")
    for j in range(6): a(f"v_cvt_pk_bf16_f32 v{P+j}, v{O+2*j}, v{O+2*j+1}")
    a(f"""
    buffer_store_dwordx4 {vr(P,4)}, v{T+2}, s[28:31], s32 offen
    s_mov_b32 exec_hi, 0
    buffer_store_dwordx2 {vr(P+4,2)}, v{T+1}, s[28:31], s33 offen
    {fin(2)}
    """)
    a(f"""
K2_FALLBACK:
    v_mov_b32 v{Q2+1}, 0
    v_mov_b32 v{T}, 0xff800000
    v_subrev_u32 v{AK1}, {HS}, v{AK1}
    v_subrev_u32 v{AK2}, {HS}, v{AK2}
    v_subrev_u32 v{AV}, {HS}, v{AV}
    s_mov_b32 s26, 0
K2_FB1:
    {rdk1(0)}
    {rdk2(0)}
    v_add_u32 v{AK1}, 2560, v{AK1}
    v_add_u32 v{AK2}, 2560, v{AK2}
    s_waitcnt lgkmcnt(0)
    {qk1(S[0])}
    {qk2(S[0])}
    s_nop 15
    """)
    maxtree(S[0], T, False)
    a(f"""
    s_add_u32 s26, s26, 1
    s_cmp_lt_u32 s26, 64
    s_cbranch_scc1 K2_FB1
    """)
    xhalf(T)
    a(f"v_subrev_u32 v{AK1}, {HS}, v{AK1}\nv_subrev_u32 v{AK2}, {HS}, v{AK2}\ns_mov_b32 s26, 0")
    for r in range(16): a(f"v_mov_b32 v{O+r}, 0")
    a(f"""
K2_FB2:
    {rdk1(0)}
    {rdk2(0)}
    {rdv(0, V2[0])}
    v_add_u32 v{AK1}, 2560, v{AK1}
    v_add_u32 v{AK2}, 2560, v{AK2}
    v_add_u32 v{AV}, 2560, v{AV}
    s_waitcnt lgkmcnt(0)
    {qk1(S[0])}
    {qk2(S[0])}
    s_nop 15
    """)
    for q in range(16): a(f"v_sub_f32 v{S[0]+q}, v{S[0]+q}, v{T}")
    for q in range(16): a(e(S[0], q))
    a("s_nop 0")
    for q in range(8): a(c(S[0], q))
    a(f"""
    s_nop 1
    {pv(V1, P)}
    {pv(V2[0], P+4)}
    s_add_u32 s26, s26, 1
    s_cmp_lt_u32 s26, 64
    s_cbranch_scc1 K2_FB2
    s_nop 15
    s_branch K2_FINISH
    """)
    a(f"""
K2_HELPER:
    s_setprio 2
    s_sub_u32 s16, s16, 8
    v_lshlrev_b32 v1, 4, v0
    s_lshl_b32 s22, s16, 10
    s_mul_i32 s23, s20, 20480
    s_add_u32 s23, s23, s22
    s_add_u32 s24, s21, {KV_OFF}
    s_mov_b32 s25, 0
K2_DMA:
    s_mov_b32 m0, s22
    s_add_u32 s26, s23, s24
    buffer_load_dwordx4 v1, s[28:31], s26 offen lds
    s_add_u32 s22, s22, 4096
    s_add_u32 s23, s23, 4096
    s_sub_u32 s26, s23, {HS}
    s_cmp_ge_u32 s23, {HS}
    s_cselect_b32 s23, s26, s23
    s_add_u32 s25, s25, 1
    s_cmp_eq_u32 s25, 7
    s_cbranch_scc0 K2_DMA_A
    s_waitcnt vmcnt(5)
    s_barrier
K2_DMA_A:
    s_cmp_eq_u32 s25, 13
    s_cbranch_scc0 K2_DMA_B
    s_waitcnt vmcnt(6)
    s_barrier
K2_DMA_B:
    s_cmp_lt_u32 s25, 40
    s_cbranch_scc1 K2_DMA
    {st(1)}
    s_waitcnt vmcnt(0)
    {st(2)}
    s_barrier
    {st(3)}
    """)
    a(f"""
    s_lshl_b32 s22, s2, 2
    s_add_u32 s22, s22, s16
    s_cmp_ge_u32 s22, 800
    s_cbranch_scc1 K2_NOWO
    s_mul_i32 s23, s22, 52429
    s_lshr_b32 s23, s23, 18
    s_mul_i32 s24, s23, 5
    s_sub_u32 s24, s22, s24
    s_mul_i32 s25, s23, 3277
    s_lshr_b32 s25, s25, 16
    s_mul_i32 s26, s25, 20
    s_sub_u32 s26, s23, s26
    {srd(a, 32, 8, 640*1280)}
    v_lshrrev_b32 v2, 4, v0
    v_bfe_u32 v3, v0, 2, 2
    v_and_b32 v4, 3, v0
    v_mul_u32_u24 v3, 20, v3
    s_mul_i32 s27, s25, 80
    s_lshl_b32 s36, s24, 2
    s_add_u32 s27, s27, s36
    v_add3_u32 v3, v3, v4, s27
    s_cmp_ge_u32 s26, 16
    s_cbranch_scc1 K2_WO_TAIL
    v_lshrrev_b32 v4, 1, v2
    v_mul_u32_u24 v4, 20, v4
    v_and_b32 v5, 1, v2
    v_lshl_add_u32 v4, v5, 2, v4
    s_mul_i32 s27, s26, 40
    s_movk_i32 s36, {8*1280}
    s_branch K2_WO_JOIN
K2_WO_TAIL:
    v_mul_u32_u24 v4, 40, v2
    s_sub_u32 s27, s26, 16
    s_mul_i32 s27, s27, 160
    s_add_u32 s27, s27, 16
    s_movk_i32 s36, {20*1280}
K2_WO_JOIN:
    v_add_u32 v4, s27, v4
    v_mul_u32_u24 v4, 1280, v4
    v_lshl_add_u32 v4, v3, 1, v4
    """)
    for u in range(8):
        a(f"buffer_load_ushort v{8+u}, v4, s[32:35], {'0' if u < 4 else 's36'} offen offset:{(u & 3) * 1280}")
    a(f"""
    s_lshl_b32 s27, s22, 10
    s_add_u32 s27, s27, {WOF_OFF}
    s_waitcnt vmcnt(0)
    """)
    for j in range(4): a(f"v_lshl_or_b32 v{16+j}, v{9+2*j}, 16, v{8+2*j}")
    a(f"""
    buffer_store_dwordx4 v[16:19], v1, s[28:31], s27 offen
K2_NOWO:
    {st(4)}
    s_cmp_lt_u32 s16, 2
    s_cbranch_scc1 K2_FNET
    s_cmp_eq_u32 s16, 3
    s_cbranch_scc0 K2_DONE
    """)
    a(f"""
    {srd(a, 32, 4, 2048*1280)}
    {srd(a, 36, 10, 1280)}
    v_lshrrev_b32 v2, 3, v0
    v_and_b32 v3, 7, v0
    v_lshlrev_b32 v3, 4, v3
    s_movk_i32 s22, 1280
    v_mad_u32_u24 v4, v2, s22, v3
    s_mul_i32 s23, s2, {8*1280}
    """)
    for j in range(10):
        a(f"buffer_load_dwordx4 {vr(24+8*j,4)}, v4, s[32:35], s23 offen offset:{128*j}")
        a(f"buffer_load_dwordx4 {vr(28+8*j,4)}, v3, s[36:39], 0 offen offset:{128*j}")
    a("v_mov_b32 v5, 0\nv_mov_b32 v6, 0\ns_waitcnt vmcnt(0)")
    for j in range(10):
        for q in range(4):
            a(f"v_dot2c_f32_bf16 v{5 + (q & 1)}, v{24+8*j+q}, v{28+8*j+q}")
    a(f"""
    s_nop 2
    v_add_f32 v5, v5, v6
    s_nop 1
    v_add_f32_dpp v5, v5, v5 quad_perm:[1,0,3,2] row_mask:0xf bank_mask:0xf
    s_nop 1
    v_add_f32_dpp v5, v5, v5 quad_perm:[2,3,0,1] row_mask:0xf bank_mask:0xf
    s_nop 1
    v_add_f32_dpp v5, v5, v5 row_half_mirror row_mask:0xf bank_mask:0xf
    v_mul_f32 v5, {f32bits(-math.log2(math.e)):#x}, v5
    v_exp_f32 v5, v5
    v_lshlrev_b32 v2, 2, v2
    v_add_f32 v5, 1.0, v5
    v_rcp_f32 v5, v5
    s_lshl_b32 s23, s2, 5
    s_add_u32 s23, s23, {G_OFF}
    buffer_store_dword v5, v2, s[28:31], s23 offen
    {fin(2)}
    """)
    C, SN, FB = 0, 16, 32
    a(f"""
K2_FNET:
    s_lshl_b32 s22, s16, 5
    s_add_u32 s22, s22, s18
    s_cmp_lt_u32 s22, 44
    s_cbranch_scc1 K2_FN_A
    s_sub_u32 s24, s22, 44
    s_lshl_b32 s24, s24, 3
    s_add_u32 s24, s24, s17
    s_cmp_ge_u32 s24, 11
    s_cbranch_scc1 K2_DONE
    s_mov_b32 s23, 32
    s_branch K2_FN_B
K2_FN_A:
    s_mul_i32 s23, s22, 5958
    s_lshr_b32 s23, s23, 16
    s_mul_i32 s24, s23, 11
    s_sub_u32 s24, s22, s24
    s_lshl_b32 s23, s23, 3
    s_add_u32 s23, s23, s17
K2_FN_B:
    s_and_b32 s25, s23, 1
    s_add_u32 s26, s24, 10
    s_cmp_eq_u32 s24, 10
    s_cselect_b32 s26, 10, s26
    s_lshl_b32 s32, s23, 16
    s_add_u32 s32, s32, {TB_OFF}
    s_mul_i32 s27, s25, {FO_DELTA}
    s_add_u32 s27, s27, {FE_OFF}
    s_lshl_b32 s33, s24, 15
    s_add_u32 s33, s33, s27
    s_lshl_b32 s34, s26, 15
    s_add_u32 s34, s34, s27
    s_cmp_eq_u32 s25, 0
    s_cselect_b32 s35, s24, s26
    s_lshl_b32 s35, s35, 7
    s_add_u32 s35, s35, {X512_OFF}
    v_and_b32 v160, 31, v0
    v_lshrrev_b32 v161, 5, v0
    v_lshlrev_b32 v162, 2, v160
    v_mov_b32 v163, v1
    buffer_load_dword v164, v162, s[28:31], s35 offen
    """)
    def fl(j):
        r = FB + 16 * j
        o2 = (j % 2) * 2048; o1 = (j % 4) * 1024
        s = f"""buffer_load_dwordx4 {vr(r,4)}, v163, s[28:31], s32 offen offset:{o2}
        buffer_load_dwordx4 {vr(r+4,4)}, v163, s[28:31], s33 offen offset:{o1}
        buffer_load_dwordx4 {vr(r+8,4)}, v163, s[28:31], s32 offen offset:{o2+1024}
        buffer_load_dwordx4 {vr(r+12,4)}, v163, s[28:31], s34 offen offset:{o1}
        """
        if j % 2 == 1: s += "s_add_u32 s32, s32, 4096\n"
        if j % 4 == 3: s += "s_add_u32 s33, s33, 4096\ns_add_u32 s34, s34, 4096\n"
        return s
    def fm(j):
        r = FB + 16 * j
        return f"""v_mfma_f32_32x32x16_bf16 {vr(C,16)}, {vr(r,4)}, {vr(r+4,4)}, {vr(C,16)}
        v_mfma_f32_32x32x16_bf16 {vr(SN,16)}, {vr(r+8,4)}, {vr(r+12,4)}, {vr(SN,16)}"""
    for j in range(8): a(fl(j))
    a(f"""
    s_waitcnt vmcnt(32)
    s_cmp_eq_u32 s25, 0
    s_cselect_b32 s36, 1.0, 0
    s_cselect_b32 s37, 0, 1.0
    v_mul_f32 v165, s36, v164
    v_mul_f32 v166, s37, v164
    """)
    for r in range(16):
        if r % 2 == 0: a(f"v_mov_b32 v{C+r}, v165\nv_mov_b32 v{SN+r}, v166")
        else: a(f"v_sub_f32 v{C+r}, 0, v165\nv_sub_f32 v{SN+r}, 0, v166")
    a("s_mov_b32 s38, 0\nK2_FN_LOOP:")
    for j in range(8):
        a("s_waitcnt vmcnt(28)"); a(fm(j)); a(fl(j))
    a("s_add_u32 s38, s38, 1\ns_cmp_lt_u32 s38, 3\ns_cbranch_scc1 K2_FN_LOOP")
    for j in range(8):
        a(f"s_waitcnt vmcnt({28-4*j})"); a(fm(j))
    a(st(5))
    a(f"""
    s_add_u32 s40, s14, {Y_OFF}
    s_addc_u32 s41, s15, 0
    s_mov_b32 s42, 2621440
    s_mov_b32 s43, 0x20000
    s_lshl_b32 s27, s24, 5
    v_add_u32 v32, s27, v160
    v_sub_u32 v33, 640, v32
    s_lshr_b32 s26, s23, 1
    s_lshl_b32 s26, s26, 6
    s_add_u32 s26, s26, s25
    v_lshl_add_u32 v34, v161, 3, s26
    v_sub_u32 v35, {2048 - 54}, v34
    v_mul_u32_u24 v34, 1280, v34
    v_mul_u32_u24 v35, 1280, v35
    v_lshlrev_b32 v36, 1, v32
    v_lshlrev_b32 v37, 1, v33
    v_mov_b32 v38, 0x40000000
    s_movk_i32 s27, 320
    v_cmp_lt_u32 vcc, s27, v32
    v_cmp_eq_u32 s[44:45], 0, v32
    v_cmp_le_u32 s[46:47], s27, v32
    s_or_b64 s[44:45], s[44:45], s[46:47]
    v_cndmask_b32 v36, v36, v38, vcc
    v_cndmask_b32 v37, v37, v38, s[44:45]
    v_add_u32 v40, v34, v36
    v_add_u32 v41, v34, v37
    v_add_u32 v42, v35, v36
    v_add_u32 v43, v35, v37
    """)
    for r in range(16): a(f"v_cndmask_b32 v{SN+r}, v{SN+r}, 0, s[44:45]")
    for r in range(16):
        a(f"v_add_f32 v{48+r}, v{C+r}, v{SN+r}\nv_sub_f32 v{C+r}, v{C+r}, v{SN+r}")
    for r in range(16): a(f"v_cvt_pk_bf16_f32 v{48+r}, v{48+r}, v{C+r}")
    a(f"""
    s_cmp_eq_u32 s23, 32
    s_cbranch_scc0 K2_FN_FULL
    s_mov_b32 exec_hi, 0
    buffer_store_short v48, v40, s[40:43], 0 offen
    buffer_store_short_d16_hi v48, v41, s[40:43], 0 offen
    {fin(2)}
K2_FN_FULL:
    """)
    for r in range(16):
        row = 8 * (r >> 2) + (r & 3)
        a(f"""
        s_mov_b32 s26, {2560*row}
        s_mov_b32 s27, {2560*(27-row)}
        buffer_store_short v{48+r}, v40, s[40:43], s26 offen
        buffer_store_short_d16_hi v{48+r}, v41, s[40:43], s26 offen
        buffer_store_short_d16_hi v{48+r}, v42, s[40:43], s27 offen
        buffer_store_short v{48+r}, v43, s[40:43], s27 offen
        """)
    a("K2_DONE:\n" + st_end(1) + "\nK2_END:\ns_endpgm")
    return desc("k2_kernel", 168, 56)

def k3(a):
    header(a, "k3_kernel")
    OFR = 0; ACC = 80; BF = 100; Y = 140; G = 150; VA = 151; VY = 152; T = 153
    a(f"""
    s_cmp_ge_u32 s2, 256
    s_cbranch_scc1 K3_END
    {st_init()}
    s_load_dwordx2 s[14:15], s[0:1], 88
    s_load_dwordx2 s[4:5], s[0:1], 72
    v_lshrrev_b32 v1, 6, v0
    v_and_b32 v0, 63, v0
    s_and_b32 s17, s2, 7
    v_readfirstlane_b32 s16, v1
    s_lshr_b32 s18, s2, 3
    s_lshr_b32 s19, s17, 1
    s_lshl_b32 s19, s19, 3
    s_and_b32 s20, s18, 7
    s_add_u32 s19, s19, s20
    s_and_b32 s20, s17, 1
    s_lshl_b32 s20, s20, 2
    s_lshr_b32 s21, s18, 3
    s_add_u32 s20, s20, s21
    v_lshlrev_b32 v{VA}, 4, v0
    v_and_b32 v{T}, 15, v0
    v_lshrrev_b32 v{T+1}, 4, v0
    s_lshl_b32 s21, s19, 2
    s_add_u32 s21, s21, s16
    s_mul_i32 s22, s21, 20480
    s_add_u32 s22, s22, {OF_OFF}
    s_mul_i32 s23, s20, 102400
    s_mul_i32 s24, s16, 5120
    s_add_u32 s23, s23, s24
    s_add_u32 s23, s23, {WOF_OFF}
    s_waitcnt lgkmcnt(0)
    {srd(a, 28, 14, WS_USED)}
    """)
    def issue(ph):
        s = ""
        for i in range(5):
            s += f"s_add_u32 m0, s24, {ph*20480 + i*1024}\ns_add_u32 s25, s23, {ph*20480 + i*1024}\nbuffer_load_dwordx4 v{VA}, s[28:31], s25 offen lds\n"
        s += f"s_add_u32 s25, s22, {ph*4096}\n"
        for i in range(4):
            s += f"buffer_load_dwordx4 {vr(OFR+16*ph+4*i,4)}, v{VA}, s[28:31], s25 offen offset:{1024*i}\n"
        return s
    a(issue(0)); a(issue(1))
    a(f"""
    s_lshl_b32 s26, s21, 4
    v_add_u32 v{T}, s26, v{T}
    v_mul_u32_u24 v{VY}, 1280, v{T}
    v_mul_u32_u24 v{T+1}, 40, v{T+1}
    s_mul_i32 s26, s20, 160
    v_add3_u32 v{VY}, v{VY}, v{T+1}, s26
    v_lshlrev_b32 v{T}, 2, v{T}
    {srd(a, 32, 4, 2621440)}
    """)
    for r in range(20): a(f"v_mov_b32 v{ACC+r}, 0")
    for ph in range(5):
        a(f"s_waitcnt vmcnt({9 if ph < 4 else 4})\ns_barrier")
        a(st(ph + 1))
        if ph + 2 < 5: a(issue(ph + 2))
        if ph == 3:
            a(f"""
            s_mov_b32 s26, {Y_OFF}
            s_mov_b32 s27, {G_OFF}
            buffer_load_dwordx4 {vr(Y,4)}, v{VY}, s[28:31], s26 offen
            buffer_load_dwordx4 {vr(Y+4,4)}, v{VY}, s[28:31], s26 offen offset:16
            buffer_load_dwordx2 {vr(Y+8,2)}, v{VY}, s[28:31], s26 offen offset:32
            buffer_load_dword v{G}, v{T}, s[28:31], s27 offen
            """)
        if ph == 3: a(f"v_add_u32 v{T+2}, 0xf000, v{VA}")
        areg = VA if ph < 3 else T + 2
        def rd(sp, set_):
            o = ph * 20480 + sp * 5120 - (0 if ph < 3 else 0xf000)
            return "\n".join(f"ds_read_b128 {vr(BF+20*set_+4*t,4)}, v{areg} offset:{o+1024*t}" for t in range(5))
        a(rd(0, 0))
        for sp in range(4):
            if sp < 3: a(rd(sp + 1, (sp + 1) % 2))
            a(f"s_waitcnt lgkmcnt({5 if sp < 3 else 0})")
            for t in range(5):
                a(f"v_mfma_f32_16x16x32_bf16 {vr(ACC+4*t,4)}, {vr(BF+20*(sp%2)+4*t,4)}, {vr(OFR+16*ph+4*sp,4)}, {vr(ACC+4*t,4)}")
    a(f"""
    s_waitcnt vmcnt(0)
    {st(6)}
    v_sub_f32 v{T}, 1.0, v{G}
    """)
    for j in range(10):
        a(f"v_lshlrev_b32 v{2*j}, 16, v{Y+j}\nv_and_b32 v{2*j+1}, 0xffff0000, v{Y+j}")
    for j in range(20): a(f"v_mul_f32 v{j}, v{j}, v{G}")
    for j in range(20): a(f"v_fmac_f32 v{j}, v{ACC+j}, v{T}")
    for j in range(10): a(f"v_cvt_pk_bf16_f32 v{24+j}, v{2*j}, v{2*j+1}")
    a(f"""
    buffer_store_dwordx4 v[24:27], v{VY}, s[32:35], 0 offen
    buffer_store_dwordx4 v[28:31], v{VY}, s[32:35], 0 offen offset:16
    buffer_store_dwordx2 v[32:33], v{VY}, s[32:35], 0 offen offset:32
{st_end(2)}
K3_END:
    s_endpgm
    """)
    return desc("k3_kernel", 160, 40)

def main():
    a = A()
    top = open("cdna_kernels/" + NAME + ".s.ref").read().split("; Override launch")[0]
    top += "; @launch kernel=k1_kernel grid=(256,1,1) block=(512,1,1) lds=147456\n"
    top += "; @launch kernel=k2_kernel grid=(256,1,1) block=(768,1,1) lds=163840\n"
    top += "; @launch kernel=k3_kernel grid=(256,1,1) block=(256,1,1) lds=102400\n"
    a('.amdgcn_target "amdgcn-amd-amdhsa--gfx950"\n.text')
    d = k1(a); d += ".p2align 6\n" + k2(a); d += ".p2align 6\n" + k3(a)
    out = top + a.text() + '.section .rodata,"a"\n.p2align 6\n' + d
    open(sys.argv[1], "w").write(out)
if __name__ == "__main__":
    main()
```

```python
import sys, math, struct

NAME = "gated_mix__spectral_fnet__softmax_full_mha__prompt"
HS = 163840
KV_OFF = 0
Q_OFF = 32 * HS
FE_OFF = 64 * HS
FO_DELTA = 655360
X512_OFF = FE_OFF + 2 * FO_DELTA
TB_OFF = X512_OFF + 4096
Y_OFF = TB_OFF + 33 * 65536
ZR = 5632
G_OFF = Y_OFF + 33 * 8 * ZR
OF_OFF = G_OFF + 8192
FLG_OFF = OF_OFF + 2621440
WS_USED = FLG_OFF + 8192
L_T, L_Y, L_O = 16, 24, 32

def f32bits(x): return struct.unpack("<I", struct.pack("<f", x))[0]
QSCALE = f32bits((20 ** -0.5) * math.log2(math.e))
OPT = dict(x.split("=") for x in sys.argv[2:])
def opt(k, d): return int(OPT.get(k, d))
STAMP = opt("stamp", 0)
STAMP_OFF = 1 << 25
NST = 16

class A:
    def __init__(self): self.l = []; self.n = 0
    def __call__(self, s):
        for line in s.split("\n"):
            t = line.strip()
            if not t: continue
            self.l.append(t if t.endswith(":") or t.startswith(".") else "    " + t)
    def uid(self): self.n += 1; return self.n
    def text(self): return "\n".join(self.l) + "\n"

def vr(a, n): return f"v[{a}:{a+n-1}]" if n > 1 else f"v{a}"
def srd(lo, base, size):
    return f"s_mov_b32 s{lo}, s{base}\ns_mov_b32 s{lo+1}, s{base+1}\ns_mov_b32 s{lo+2}, {size}\ns_mov_b32 s{lo+3}, 0x20000"
def st(i):
    if not STAMP: return ""
    return f"{'s_memrealtime' if STAMP == 1 else 's_memtime'} s[{64+2*i}:{65+2*i}]"
def fin(): return "s_branch L_DONE" if STAMP else "s_endpgm"

X_P, WD_P, WQKV_P, WO_P, GATE_P, OUT_P, DBG_P, WS_P = 4, 8, 48, 50, 52, 54, 56, 58

def poll(a, vaddr, vdat, mask, target, sreg=60):
    u = a.uid()
    a(f"""
    s_mov_b64 exec, {mask}
    s_mov_b32 s{sreg}, 0
L_POLL{u}:
    buffer_load_dword v{vdat}, v{vaddr}, s[28:31], 0 offen sc1
    s_waitcnt vmcnt(0)
    v_cmp_gt_u32 vcc, {target}, v{vdat}
    s_cbranch_vccz L_POLLD{u}
    {'s_sleep 1' if opt('psleep', 0) else ''}
    s_add_u32 s{sreg}, s{sreg}, 1
    s_cmp_lt_u32 s{sreg}, 0x40000
    s_cbranch_scc1 L_POLL{u}
L_POLLD{u}:
    s_mov_b64 exec, -1
    """)

def gen(a):
    label = NAME + "_kernel"
    a(f".p2align 8\n.globl {label}\n.type {label},@function\n{label}:")
    a(f"""
    s_cmp_ge_u32 s2, 256
    s_cbranch_scc1 L_END
    s_load_dwordx2 s[4:5], s[0:1], 0
    s_load_dwordx8 s[48:55], s[0:1], 48
    s_load_dwordx4 s[8:11], s[0:1], 24
    s_load_dwordx4 s[56:59], s[0:1], 80
    """)
    if STAMP:
        a("\n".join(f"s_mov_b32 s{64+j}, 0" for j in range(2, 2 * NST)) + "\n" + st(0))
    a(f"""
    v_lshrrev_b32 v1, 6, v0
    v_and_b32 v0, 63, v0
    s_and_b32 s17, s2, 7
    v_readfirstlane_b32 s16, v1
    s_lshr_b32 s18, s2, 3
    s_and_b32 s19, s18, 7
    s_lshr_b32 s20, s18, 3
    s_and_b32 s21, s17, 1
    s_lshl_b32 s21, s21, 3
    s_add_u32 s21, s21, s19
    s_lshr_b32 s22, s17, 1
    s_cmp_ge_u32 s16, 4
    s_cbranch_scc1 P1_NOTLOADER
    """)
    p1_loader(a)
    a(f"""
P1_NOTLOADER:
    s_cmp_ge_u32 s16, 8
    s_cbranch_scc1 P1_EXTRA
    """)
    p1_compute(a)
    p1_extra(a)
    attention(a)
    helpers(a)
    a("L_DONE:")
    if STAMP:
        r = f"s_waitcnt vmcnt(0)\n{st(NST-1)}\ns_mov_b64 exec, 1\ns_add_u32 s44, s{WS_P}, {STAMP_OFF}\ns_addc_u32 s45, s{WS_P+1}, 0\ns_mov_b32 s46, 262144\ns_mov_b32 s47, 0x20000\n"
        r += "s_lshl_b32 s60, s2, 4\ns_add_u32 s60, s60, s16\ns_lshl_b32 s60, s60, 6\ns_waitcnt lgkmcnt(0)\nv_mov_b32 v16, 0\n"
        for i in range(NST): r += f"v_mov_b32 v{i}, s{64+2*i}\n"
        for i in range(4): r += f"buffer_store_dwordx4 v[{4*i}:{4*i+3}], v16, s[44:47], s60 offen offset:{16*i}\n"
        a(r)
    a("L_END:\ns_endpgm")
    return f""".amdhsa_kernel {label}
  .amdhsa_next_free_vgpr 168
  .amdhsa_next_free_sgpr {100 if STAMP else 64}
  .amdhsa_accum_offset 168
  .amdhsa_group_segment_fixed_size 0
  .amdhsa_kernarg_size 96
  .amdhsa_user_sgpr_count 2
  .amdhsa_user_sgpr_kernarg_segment_ptr 1
  .amdhsa_system_sgpr_workgroup_id_x 1
.end_amdhsa_kernel
"""

def p1_loader(a):
    a(f"""
    s_setprio 3
    v_lshrrev_b32 v2, 3, v0
    v_and_b32 v3, 7, v0
    v_lshrrev_b32 v4, 4, v0
    v_xor_b32 v3, v3, v4
    v_lshlrev_b32 v3, 4, v3
    v_xor_b32 v4, 64, v3
    s_cmp_eq_u32 s22, 3
    s_cbranch_scc1 P1_LD_DFT
    s_lshl_b32 s23, s21, 7
    s_lshl_b32 s24, s16, 5
    s_add_u32 s23, s23, s24
    v_add_u32 v5, s23, v2
    v_add_u32 v6, 8, v5
    v_add_u32 v7, 16, v5
    v_add_u32 v8, 24, v5
    s_movk_i32 s25, 3840
    s_lshl_b32 s26, s22, 2
    s_add_u32 s26, s26, s20
    s_mul_i32 s26, s26, 320
    s_branch P1_LD_JOIN
P1_LD_DFT:
    s_lshl_b32 s23, s21, 5
    s_lshl_b32 s24, s16, 3
    s_add_u32 s23, s23, s24
    v_add_u32 v5, s23, v2
    v_sub_u32 v6, 0x800, v5
    v_sub_u32 v7, 0x400, v5
    v_add_u32 v8, 0x400, v5
    v_cmp_eq_u32 vcc, 0, v5
    v_mov_b32 v9, 0x200
    v_mov_b32 v10, 0x600
    v_cndmask_b32 v6, v6, v9, vcc
    v_cndmask_b32 v8, v8, v10, vcc
    s_movk_i32 s25, 1280
    s_and_b32 s26, s20, 1
    s_mul_i32 s26, s26, 320
P1_LD_JOIN:
    s_movk_i32 s27, 1280
    v_mad_u32_u24 v10, v5, s27, v3
    v_mad_u32_u24 v11, v6, s27, v4
    v_mad_u32_u24 v12, v7, s27, v3
    v_mad_u32_u24 v13, v8, s27, v4
    s_lshl_b32 s27, s16, 4
    s_mul_i32 s27, s27, s25
    s_add_u32 s26, s26, s27
    s_sub_u32 s27, s25, 320
    """)
    for i in range(5):
        a(f"""
        v_add_u32 v5, {64*i}, v0
        v_mul_u32_u24 v6, 3277, v5
        v_lshrrev_b32 v6, 16, v6
        v_lshl_add_u32 v5, v5, 4, s26
        v_mad_u32_u24 v{14+i}, v6, s27, v5
        """)
    sg = opt("stag1", 1)
    if sg == 1:
        a("s_lshl_b32 s36, s19, 3\ns_lshl_b32 s37, s20, 4\ns_add_u32 s36, s36, s37\ns_add_u32 s36, s36, s17\ns_and_b32 s36, s36, 63\ns_mul_i32 s36, s36, 10\ns_lshr_b32 s36, s36, 6")
    elif sg == 2:
        a("s_add_u32 s36, s19, s20\ns_lshl_b32 s36, s36, 4\ns_add_u32 s36, s36, s17\ns_add_u32 s36, s36, s17\ns_and_b32 s36, s36, 63\ns_mul_i32 s36, s36, 10\ns_lshr_b32 s36, s36, 6")
    elif sg == 3:
        a("s_add_u32 s36, s19, s20\ns_lshl_b32 s36, s36, 5\ns_lshl_b32 s37, s17, 2\ns_add_u32 s36, s36, s37\ns_and_b32 s36, s36, 63\ns_mul_i32 s36, s36, 10\ns_lshr_b32 s36, s36, 6")
    else:
        a("s_mov_b32 s36, 0")
    a(f"""
    s_lshl_b32 s38, s16, 12
    s_mul_i32 s39, s16, 5120
    s_add_u32 s39, s39, 0x10000
    s_mov_b32 s40, 0
    s_mul_i32 s34, s25, 640
    s_lshl_b32 s25, s25, 6
    s_mov_b32 s35, 0x20000
    s_waitcnt lgkmcnt(0)
    {srd(28, X_P, 2048*1280)}
    s_cmp_lt_u32 s20, 2
    s_cselect_b32 s32, s8, s10
    s_cselect_b32 s33, s9, s11
    s_cmp_eq_u32 s22, 3
    s_cselect_b32 s32, s32, s{WQKV_P}
    s_cselect_b32 s33, s33, s{WQKV_P+1}
    {st(1)}
P1_LD_LOOP:
    s_lshl_b32 s41, s36, 7
    s_mul_i32 s42, s36, s25
    s_and_b32 s43, s40, 3
    s_lshl_b32 s44, s43, 14
    s_add_u32 s44, s44, s38
    s_mul_i32 s45, s43, 20480
    s_add_u32 s45, s45, s39
    """)
    for i in range(4):
        a(f"s_add_u32 m0, s44, {1024*i}\ns_nop 0\nbuffer_load_dwordx4 v{10+i}, s[28:31], s41 offen lds")
    for i in range(5):
        a(f"s_add_u32 m0, s45, {1024*i}\ns_nop 0\nbuffer_load_dwordx4 v{14+i}, s[32:35], s42 offen lds")
    a(f"""
    s_add_u32 s36, s36, 1
    s_cmp_eq_u32 s36, 10
    s_cselect_b32 s36, 0, s36
    s_add_u32 s40, s40, 1
    s_cmp_eq_u32 s40, 1
    s_cbranch_scc1 P1_LD_LOOP
    s_waitcnt vmcnt(9)
    s_barrier
    s_cmp_lt_u32 s40, 10
    s_cbranch_scc1 P1_LD_LOOP
    s_waitcnt vmcnt(0)
    s_barrier
    s_branch HELPER
    """)

def p1_compute(a):
    ACC = 0; SA, SB = 80, 104
    L, H5, L31 = 128, 129, 130
    XA0, WA, CX, CW, PC, T0 = 131, 132, 133, 137, 138, 140
    a(f"""
    s_sub_u32 s61, s16, 4
    v_mov_b32 v{L}, v0
    v_lshrrev_b32 v{H5}, 5, v0
    v_and_b32 v{L31}, 31, v0
    v_lshrrev_b32 v{T0}, 1, v{L}
    v_and_b32 v{T0}, 7, v{T0}
    v_xor_b32 v{T0}, v{T0}, v{H5}
    v_lshlrev_b32 v{T0}, 4, v{T0}
    v_lshl_add_u32 v{T0}, v{L31}, 7, v{T0}
    s_lshl_b32 s23, s61, 12
    v_add_u32 v{XA0}, s23, v{T0}
    v_bfe_u32 v{T0}, v{L}, 2, 2
    v_lshl_add_u32 v{T0}, v{H5}, 3, v{T0}
    v_mul_u32_u24 v{T0}, 320, v{T0}
    v_and_b32 v{T0+1}, 3, v{L}
    v_lshlrev_b32 v{T0+1}, 3, v{T0+1}
    v_and_b32 v{T0+2}, 16, v{L}
    v_lshlrev_b32 v{T0+2}, 1, v{T0+2}
    v_add3_u32 v{WA}, v{T0}, v{T0+1}, v{T0+2}
    v_add_u32 v{WA}, 0x10000, v{WA}
    v_mov_b32 v{PC}, 0xbf803f80
    s_lshl_b32 s26, s22, 2
    s_add_u32 s26, s26, s20
    s_cmp_eq_u32 s26, 14
    s_cselect_b32 s24, 1, 0
    s_mov_b32 s25, s24
    s_mov_b32 s40, 0
    """)
    for r in range(80): a(f"v_mov_b32 v{ACC+r}, 0")
    for r in range(24): a(f"v_mov_b32 v{SB+r}, 0")
    a(f"s_waitcnt lgkmcnt(0)\n{srd(28, WS_P, WS_USED)}\n{st(1)}")
    a("s_cmp_ge_u32 s22, 2\ns_cbranch_scc1 P1_LOOP_V")

    def group(cur, nxt, step, qk):
        def mf(T):
            d = vr(ACC + 16 * T, 16); x = vr(cur, 4); w = vr(cur + 4 + 4 * T, 4)
            return f"v_mfma_f32_32x32x16_bf16 {d}, {w}, {x}, {d}" if qk else f"v_mfma_f32_32x32x16_bf16 {d}, {x}, {w}, {d}"
        def rw(T):
            if step is None: return ""
            o = step * 5120 + T * 64; d = nxt + 4 + 4 * T
            return f"ds_read_b64_tr_b16 {vr(d,2)}, v{CW} offset:{o}\nds_read_b64_tr_b16 {vr(d+2,2)}, v{CW} offset:{o+1280}"
        rd = step is not None
        a(f"s_waitcnt lgkmcnt(8)"); a(mf(1))
        if rd: a(f"ds_read_b128 {vr(nxt,4)}, v{CX+step}")
        a(rw(1))
        a(f"s_waitcnt lgkmcnt({9 if rd else 6})"); a(mf(2)); a(rw(2))
        a(f"s_waitcnt lgkmcnt({9 if rd else 4})"); a(mf(3)); a(rw(3))
        a(f"s_waitcnt lgkmcnt({7 if rd else 0})")
        if not qk:
            for j in range(4): a(f"v_cndmask_b32 v{cur+4+j}, v{cur+4+j}, v{PC}, s[24:25]")
        a(mf(4)); a(rw(4))
        if not rd: a("s_nop 0")
        a(mf(0)); a(rw(0))

    for qk, lab in ((True, "QK"), (False, "V")):
        a(f"""
P1_LOOP_{lab}:
        s_and_b32 s41, s40, 3
        s_lshl_b32 s42, s41, 14
        s_mul_i32 s43, s41, 20480
        v_add_u32 v{CX}, s42, v{XA0}
        v_add_u32 v{CW}, s43, v{WA}
        v_xor_b32 v{CX+1}, 32, v{CX}
        v_xor_b32 v{CX+2}, 64, v{CX}
        v_xor_b32 v{CX+3}, 0x60, v{CX}
        s_barrier
        """)
        if STAMP: a(f"s_cmp_lg_u32 s40, 0\ns_cbranch_scc1 P1_ST_{lab}\n{st(2)}\nP1_ST_{lab}:")
        group(SB, SA, 0, qk); group(SA, SB, 1, qk); group(SB, SA, 2, qk); group(SA, SB, 3, qk)
        a(f"s_add_u32 s40, s40, 1\ns_cmp_lt_u32 s40, 10\ns_cbranch_scc1 P1_LOOP_{lab}")
        group(SB, SA, None, qk)
        a(st(3))
        a("s_lshl_b32 s23, s21, 2\ns_add_u32 s23, s23, s61")
        if qk:
            a(f"""
            s_mul_i32 s26, s20, {8*HS}
            s_mul_i32 s27, s23, 2560
            s_add_u32 s26, s26, s27
            s_cmp_eq_u32 s22, 0
            s_cselect_b32 s27, {Q_OFF}, {KV_OFF}
            s_cselect_b32 s36, {QSCALE}, 1.0
            s_mov_b32 s37, s36
            s_add_u32 s26, s26, s27
            v_lshlrev_b32 v{T0}, 4, v{L}
            s_mov_b32 s27, {HS}
            v_bfe_u32 v{T0+1}, v{L}, 4, 1
            v_lshl_add_u32 v{T0+1}, v{T0+1}, 1, v{H5}
            v_mul_lo_u32 v{T0+1}, v{T0+1}, s27
            v_and_b32 v{T0+2}, 15, v{L}
            v_lshl_add_u32 v{T0+1}, v{T0+2}, 4, v{T0+1}
            """)
            for n_, p in enumerate((2, 3, 1, 0)):
                base = SA + (n_ % 2) * 8
                xk = SA + 16 + (n_ // 2) * 4 + (p % 2) * 2
                for gi, dst in ((0, base), (1, base + 2), (3, base + 4), (4, base + 6), (2, xk)):
                    r = ACC + 4 * (5 * p + gi)
                    a(f"v_pk_mul_f32 {vr(r,2)}, {vr(r,2)}, s[36:37]\nv_pk_mul_f32 {vr(r+2,2)}, {vr(r+2,2)}, s[36:37]")
                    a(f"v_cvt_pk_bf16_f32 v{dst}, v{r}, v{r+1}\nv_cvt_pk_bf16_f32 v{dst+1}, v{r+2}, v{r+3}")
                a(f"""
                s_add_u32 s38, s26, {2*p*HS}
                s_add_u32 s39, s26, {(2*p+1)*HS}
                buffer_store_dwordx4 {vr(base,4)}, v{T0}, s[28:31], s38 offen sc1
                buffer_store_dwordx4 {vr(base+4,4)}, v{T0}, s[28:31], s39 offen sc1
                """)
                if n_ % 2 == 1:
                    x4 = SA + 16 + (n_ // 2) * 4
                    a(f"""
                    v_permlane16_swap_b32 v{x4}, v{x4+2}
                    v_permlane16_swap_b32 v{x4+1}, v{x4+3}
                    s_add_u32 s38, s26, {(p // 2) * 4 * HS}
                    buffer_store_dwordx4 {vr(x4,4)}, v{T0+1}, s[28:31], s38 offen offset:1024 sc1
                    """)
            a("s_branch P1_DONE")
        else:
            a("s_cmp_eq_u32 s22, 3\ns_cbranch_scc1 P1_EPI_DFT")
            a(f"""
            s_mul_i32 s26, s20, {8*HS}
            s_mul_i32 s27, s23, 2560
            s_add_u32 s26, s26, s27
            s_add_u32 s26, s26, {KV_OFF + 1280}
            s_mov_b32 s27, {HS - 320}
            v_mul_u32_u24 v{T0+5}, 320, v{H5}
            """)
            for T in range(5):
                a(f"""
                v_add_u32 v{T0+6}, {32*T}, v{L31}
                v_mul_u32_u24 v{T0+7}, 3277, v{T0+6}
                v_lshrrev_b32 v{T0+7}, 16, v{T0+7}
                v_lshl_add_u32 v{T0+6}, v{T0+6}, 4, v{T0+5}
                v_mad_u32_u24 v{T0+T}, v{T0+7}, s27, v{T0+6}
                """)
            for T in (1, 2, 3, 4, 0):
                base = SA + (T % 3) * 8
                for j in range(8):
                    a(f"v_cvt_pk_bf16_f32 v{base+j}, v{ACC+16*T+2*j}, v{ACC+16*T+2*j+1}")
                a(f"buffer_store_dwordx4 {vr(base,4)}, v{T0+T}, s[28:31], s26 offen sc1")
                a(f"buffer_store_dwordx4 {vr(base+4,4)}, v{T0+T}, s[28:31], s26 offen offset:640 sc1")
            a("s_branch P1_DONE")
            TAU, TAU0, VD = T0, T0 + 1, T0 + 2
            a(f"""
P1_EPI_DFT:
            s_cmp_lt_u32 s20, 2
            s_cselect_b32 s36, 1.0, -1.0
            v_mov_b32 v{TAU}, s36
            v_cndmask_b32 v{TAU0}, v{TAU}, 1.0, s[24:25]
            s_mov_b32 s27, {FO_DELTA}
            v_mul_lo_u32 v{VD}, v{H5}, s27
            v_lshl_add_u32 v{VD}, v{L31}, 4, v{VD}
            s_mul_i32 s26, s20, {5*32768}
            s_lshl_b32 s27, s23, 9
            s_add_u32 s26, s26, s27
            s_add_u32 s26, s26, {FE_OFF}
            s_nop 1
            s_cmp_lg_u32 s23, 0
            s_cbranch_scc1 P1_EPI_DFT2
            s_mov_b32 exec_hi, 0
            s_mul_i32 s27, s20, 640
            s_add_u32 s27, s27, {X512_OFF}
            v_lshlrev_b32 v{T0+3}, 2, v{L31}
            """)
            for T in range(5):
                r = ACC + 16 * T
                a(f"v_fma_f32 v{SA+T}, v{r+12}, v{TAU0 if T == 0 else TAU}, v{r+4}")
                a(f"v_mov_b32 v{r+4}, 0\nv_mov_b32 v{r+12}, 0")
                a(f"buffer_store_dword v{SA+T}, v{T0+3}, s[28:31], s27 offen offset:{128*T} sc1")
            a("s_mov_b32 exec_hi, -1\nP1_EPI_DFT2:")
            for T in range(5):
                r = ACC + 16 * T; tau = TAU0 if T == 0 else TAU
                base = SB + (T % 3) * 4
                for q in range(4):
                    a(f"v_fma_f32 v{r+q}, v{r+4+q}, v{tau}, v{r+q}")
                    a(f"v_fma_f32 v{r+12+q}, v{r+8+q}, v{tau}, v{r+12+q}")
                for q in range(4):
                    a(f"v_add_f32 v{r+4+q}, v{r+q}, v{r+12+q}")
                    a(f"v_sub_f32 v{r+8+q}, v{r+q}, v{r+12+q}")
                a(f"v_cvt_pk_bf16_f32 v{base}, v{r+4}, v{r+5}\nv_cvt_pk_bf16_f32 v{base+1}, v{r+6}, v{r+7}")
                a(f"v_cvt_pk_bf16_f32 v{base+2}, v{r+8}, v{r+9}\nv_cvt_pk_bf16_f32 v{base+3}, v{r+10}, v{r+11}")
                a(f"""
                s_nop 1
                v_permlane32_swap_b32 v{base}, v{base+2}
                v_permlane32_swap_b32 v{base+1}, v{base+3}
                buffer_store_dwordx4 {vr(base,4)}, v{VD}, s[28:31], s26 offen sc1
                s_add_u32 s26, s26, 32768
                """)
    a(f"""
P1_DONE:
    v_mov_b32 v0, v{L}
    s_branch ATT
    """)

def p1_extra(a):
    T0 = 40
    a(f"""
P1_EXTRA:
    s_sub_u32 s61, s16, 8
    v_lshrrev_b32 v37, 5, v0
    v_and_b32 v38, 31, v0
    v_lshlrev_b32 v39, 4, v0
    v_mov_b32 v36, v0
    s_waitcnt lgkmcnt(0)
    {srd(28, WS_P, WS_USED)}
    {srd(32, DBG_P, 256)}
    s_cmp_lg_u32 s61, 0
    s_cbranch_scc1 P1_EX_A
    v_mov_b32 v1, 0
    s_cmp_lg_u32 s2, 0
    s_cbranch_scc1 P1_EX_WAITRDY
    v_lshlrev_b32 v2, 7, v0
    s_mov_b32 s23, {FLG_OFF}
    buffer_store_dword v1, v2, s[28:31], s23 offen sc1
    v_mov_b32 v3, 1
    s_waitcnt vmcnt(0)
    s_mov_b64 exec, 1
    buffer_store_dword v3, v1, s[32:35], 0 offen sc1
    s_mov_b64 exec, -1
P1_EX_WAITRDY:
P1_EX_A:
    s_lshl_b32 s23, s2, 2
    s_add_u32 s23, s23, s61
    s_mov_b32 s40, 0
P1_TBL:
    s_lshr_b32 s24, s23, 5
    s_and_b32 s25, s23, 31
    s_and_b32 s26, s24, 1
    s_lshr_b32 s27, s24, 1
    s_lshl_b32 s27, s27, 6
    s_add_u32 s27, s27, s26
    v_lshl_add_u32 v{T0}, v38, 1, s27
    s_lshl_b32 s25, s25, 4
    v_lshl_add_u32 v{T0+1}, v37, 3, s25
    v_mul_u32_u24 v{T0+1}, v{T0}, v{T0+1}
    v_and_b32 v{T0+1}, 0x7ff, v{T0+1}
    v_cvt_f32_u32 v{T0}, v{T0}
    v_cvt_f32_u32 v{T0+1}, v{T0+1}
    v_mul_f32 v{T0}, 0x3a000000, v{T0}
    v_mul_f32 v0, 0x3a000000, v{T0+1}
    """)
    for u in range(1, 8): a(f"v_add_f32 v{u}, v{u-1}, v{T0}")
    for u in range(1, 8): a(f"v_fract_f32 v{u}, v{u}")
    for u in range(8): a(f"v_cos_f32 v{8+u}, v{u}")
    for u in range(8): a(f"v_sin_f32 v{16+u}, v{u}")
    for j in range(4): a(f"v_cvt_pk_bf16_f32 v{24+j}, v{8+2*j}, v{9+2*j}")
    for j in range(4): a(f"v_cvt_pk_bf16_f32 v{28+j}, v{16+2*j}, v{17+2*j}")
    NB0 = opt("tblbar", 2)
    a(f"""
    s_cmp_lg_u32 s40, 0
    s_cbranch_scc1 P1_TBL_ST
    """ + "s_barrier\n" * NB0 + f"""
    s_mov_b32 s40, 1
P1_TBL_ST:
    s_lshl_b32 s24, s23, 11
    s_add_u32 s24, s24, {TB_OFF}
    buffer_store_dwordx4 v[24:27], v39, s[28:31], s24 offen sc1
    buffer_store_dwordx4 v[28:31], v39, s[28:31], s24 offen offset:1024 sc1
    s_add_u32 s23, s23, 1024
    s_cmp_lt_u32 s23, 1056
    s_cbranch_scc1 P1_TBL
    """)
    nb = NB0
    tl = opt("tlb", 0)
    if tl:
        n_ws = (WS_USED + (1 << tl) - 1) >> tl
        a(f"{srd(44, OUT_P, 2621440)}\nv_lshlrev_b32 v40, {tl}, v36\ns_lshl_b32 s23, s61, {tl+6}")
        for i in range((n_ws + 255) // 256):
            a(f"buffer_load_dword v41, v40, s[28:31], s23 offen sc1\ns_add_u32 s23, s23, {256 << tl}")
        a(f"s_lshl_b32 s23, s61, {tl+6}\nbuffer_load_dword v41, v40, s[44:47], s23 offen sc1")
        a(f"{srd(44, WO_P, 819200)}\nbuffer_load_dword v41, v40, s[44:47], s23 offen sc1")
    if opt("pretouch", 0):
        a(f"""
        s_lshl_b32 s23, s21, 2
        s_add_u32 s23, s23, s61
        s_mul_i32 s26, s20, {8*HS}
        s_mul_i32 s27, s23, 2560
        s_add_u32 s26, s26, s27
        s_cmp_eq_u32 s22, 0
        s_cselect_b32 s27, {Q_OFF}, {KV_OFF}
        s_add_u32 s26, s26, s27
        s_cmp_eq_u32 s22, 2
        s_cselect_b32 s27, 1280, 0
        s_add_u32 s26, s26, s27
        s_cmp_eq_u32 s22, 3
        s_cselect_b32 s26, 0x40000000, s26
        v_lshrrev_b32 v40, 4, v36
        s_mov_b32 s27, {HS}
        v_mul_lo_u32 v40, v40, s27
        v_and_b32 v41, 15, v36
        v_lshl_add_u32 v40, v41, 4, v40
        """)
        for hd in range(8):
            if hd % 2 == 0: a("s_barrier"); nb += 1
            if hd % 4 == 0: a(f"buffer_store_dwordx4 v[24:27], v40, s[28:31], s26 offen offset:1024 sc1")
            a(f"buffer_store_dwordx4 v[24:27], v39, s[28:31], s26 offen sc1\ns_add_u32 s26, s26, {HS}")
    a("s_barrier\n" * (9 - nb))
    u = a.uid()
    a(f"""
    s_cmp_lg_u32 s61, 0
    s_cbranch_scc1 P1_EX_B
    v_mov_b32 v1, 0
    s_mov_b32 s60, 0
L_RDY{u}:
    buffer_load_dword v2, v1, s[32:35], 0 offen sc1
    s_waitcnt vmcnt(0)
    v_cmp_ne_u32 vcc, 0, v2
    s_cbranch_vccnz P1_EX_B
    s_sleep 1
    s_add_u32 s60, s60, 1
    s_cmp_lt_u32 s60, 0x40000
    s_cbranch_scc1 L_RDY{u}
P1_EX_B:
    s_waitcnt vmcnt(0)
    s_barrier
    v_mov_b32 v0, v36
    """)

def attention(a):
    O = [0, 16]; S = [32, 48]; P = 64
    Q1 = [72, 76]; Q2 = [80, 82]; K2 = 84; K1 = 88; V1 = 92; V2 = [96, 100]
    AK1, AK2, AV, L31, H5, OA1, OA2, T = 104, 105, 106, 107, 108, 109, 110, 112
    a(f"""
ATT:
    s_lshr_b32 s19, s18, 3
    s_lshl_b32 s23, s17, 2
    s_add_u32 s19, s19, s23
    s_and_b32 s62, s18, 7
    s_mul_i32 s21, s19, {HS}
    s_sub_u32 s61, s16, 4
    s_and_b32 s36, s61, 3
    s_lshr_b32 s37, s61, 2
    v_and_b32 v{L31}, 31, v0
    v_lshrrev_b32 v{H5}, 5, v0
    v_lshlrev_b32 v{AK1}, 4, v0
    v_lshrrev_b32 v{AK2}, 4, v{L31}
    v_lshl_add_u32 v{AK2}, v{AK2}, 1, v{H5}
    v_and_b32 v{AV}, 15, v0
    v_lshl_add_u32 v{AK2}, v{AV}, 2, v{AK2}
    v_lshlrev_b32 v{AK2}, 2, v{AK2}
    v_mul_u32_u24 v{AV}, 320, v{H5}
    v_lshl_add_u32 v{AV}, v{L31}, 4, v{AV}
    s_waitcnt vmcnt(0)
    {st(4)}
    s_barrier
    s_cmp_eq_u32 s16, 9
    s_cbranch_scc1 ATT_POLL
    s_cmp_lg_u32 s16, 8
    s_cbranch_scc1 ATT_NOSYNC
    s_lshl_b32 s23, s22, 2
    s_add_u32 s23, s23, s20
    s_lshl_b32 s23, s23, 7
    s_add_u32 s23, s23, {FLG_OFF}
    s_lshl_b32 s24, s17, 7
    s_add_u32 s24, s24, {FLG_OFF + 128*L_T}
    v_mov_b32 v{T}, s23
    v_mov_b32 v{T+1}, 1
    v_writelane_b32 v{T}, s24, 1
    s_mov_b64 exec, 3
    buffer_atomic_add v{T+1}, v{T}, s[28:31], 0 offen sc1
    s_mov_b64 exec, -1
    s_branch ATT_NOSYNC
ATT_POLL:
    s_lshr_b32 s23, s19, 3
    s_lshl_b32 s23, s23, 7
    s_add_u32 s23, s23, {FLG_OFF}
    v_lshlrev_b32 v{T+2}, 9, v0
    v_add_u32 v{T+2}, s23, v{T+2}
    """)
    poll(a, T + 2, T + 3, 7, 16)
    a(f"""
ATT_NOSYNC:
    s_lshl_b32 s38, s62, 3
    s_lshl_b32 s23, s36, 1
    s_add_u32 s38, s38, s23
    s_mul_i32 s23, s38, 2560
    s_add_u32 s23, s23, s21
    s_add_u32 s23, s23, {Q_OFF}
    s_add_u32 s38, s38, s37
    s_barrier
    {st(5)}
    buffer_load_dwordx4 {vr(Q1[0],4)}, v{AK1}, s[28:31], s23 offen sc1
    buffer_load_dword v{Q2[0]}, v{AK2}, s[28:31], s23 offen offset:1024 sc1
    buffer_load_dwordx4 {vr(Q1[1],4)}, v{AK1}, s[28:31], s23 offen offset:2560 sc1
    buffer_load_dword v{Q2[1]}, v{AK2}, s[28:31], s23 offen offset:3584 sc1
    s_mov_b32 s24, 0xfffff
    s_mov_b32 s25, 0xfffff
    v_mov_b32 v{Q2[0]+1}, 0
    v_mov_b32 v{Q2[1]+1}, 0
    v_mov_b32 v{K2+1}, 0x3f803f80
    v_and_b32 v{T}, 27, v{L31}
    v_cmp_eq_u32 vcc, 24, v{T}
    v_mov_b32 v{T}, 0
    s_mul_i32 s27, s38, 40960
    v_cndmask_b32 v{V1}, v{T}, v{K2+1}, vcc
    s_add_u32 s27, s27, {OF_OFF}
    v_bfe_u32 v{OA2}, v{L31}, 3, 1
    v_mul_u32_u24 v{OA2}, 20480, v{OA2}
    v_and_b32 v{T}, 7, v{L31}
    v_lshl_add_u32 v{OA2}, v{T}, 4, v{OA2}
    v_lshrrev_b32 v{T}, 4, v0
    v_lshl_add_u32 v{OA1}, v{T}, 7, v{OA2}
    s_lshl_b32 s32, s19, 9
    s_add_u32 s32, s32, s27
    s_lshl_b32 s33, s19, 7
    s_add_u32 s33, s33, s27
    s_add_u32 s33, s33, 16384
    """)
    for r in range(1, 12): a(f"v_mov_b32 v{V1+r}, v{V1}")
    for r in range(32): a(f"v_mov_b32 v{r}, 0")
    for r in range(4): a(f"v_mov_b32 v{P+4+r}, 0")
    def qk1(x): return f"v_mfma_f32_32x32x16_bf16 {vr(S[x],16)}, {vr(K1,4)}, {vr(Q1[x],4)}, 0"
    def qk2(x): return f"v_mfma_f32_32x32x8_bf16 {vr(S[x],16)}, {vr(K2,2)}, {vr(Q2[x],2)}, {vr(S[x],16)}"
    def pv(x, v, p): return f"v_mfma_f32_32x32x16_bf16 {vr(O[x],16)}, {vr(v,4)}, {vr(p,4)}, {vr(O[x],16)}"
    def rdk1(o): return f"ds_read_b128 {vr(K1,4)}, v{AK1} offset:{o}"
    def rdk2(o): return f"ds_read_b32 v{K2}, v{AK2} offset:{o+1024}"
    def rdv(o, v2): return f"s_mov_b64 exec, s[24:25]\nds_read_b128 {vr(V1,4)}, v{AV} offset:{o+1280}\nds_read_b128 {vr(v2,4)}, v{AV} offset:{o+1920}\ns_mov_b64 exec, -1"
    def maxtree(s, m, first):
        if first:
            a(f"v_max3_f32 v{m}, v{s}, v{s+1}, v{s+2}")
            for j in range(3, 15, 2): a(f"v_max3_f32 v{m}, v{s+j}, v{s+j+1}, v{m}")
            a(f"v_max_f32 v{m}, v{s+15}, v{m}")
        else:
            for j in range(0, 16, 2): a(f"v_max3_f32 v{m}, v{s+j}, v{s+j+1}, v{m}")
    def xhalf(m):
        a(f"v_mov_b32 v{m+1}, v{m}\ns_nop 1\nv_permlane32_swap_b32 v{m}, v{m+1}\ns_nop 0\nv_max_f32 v{m}, v{m}, v{m+1}")
    a(f"""
    s_mul_i32 s23, s37, 2560
    s_barrier
    {st(6)}
    {rdk1(0)}
    {rdk2(0)}
    v_add_u32 v{AK1}, s23, v{AK1}
    v_add_u32 v{AK2}, s23, v{AK2}
    v_add_u32 v{AV}, s23, v{AV}
    s_waitcnt vmcnt(0) lgkmcnt(0)
    {qk1(0)}
    {qk2(0)}
    {qk1(1)}
    {qk2(1)}
    {rdk1(0)}
    {rdk2(0)}
    {rdv(0, V2[0])}
    s_nop 3
    """)
    maxtree(S[0], T, True); maxtree(S[1], T + 2, True); xhalf(T); xhalf(T + 2)
    a(f"""
    v_mul_f32 v{T}, -0.5, v{T}
    v_mul_f32 v{T+2}, -0.5, v{T+2}
    v_cvt_pk_bf16_f32 v{Q2[0]+1}, v{T}, 0
    v_cvt_pk_bf16_f32 v{Q2[1]+1}, v{T+2}, 0
    s_waitcnt lgkmcnt(0)
    {qk1(0)}
    {qk2(0)}
    s_mov_b32 s26, 0
    s_setprio {opt("prio0", 0)}
    s_barrier
    {st(7)}
    s_nop 7
ATT_LOOP:
    """)
    def e(s, j): return f"v_exp_f32 v{s+j}, v{s+j}"
    def c(s, j): return f"v_cvt_pk_bf16_f32 v{P+j}, v{s+2*j}, v{s+2*j+1}"
    PL = opt("place", 0)
    for i in range(4):
        for x in (0, 1):
            cur = S[x]; y = 1 - x
            o = (i + 1) * 5120
            if PL == 1 and x == 0: a(rdv(o - 5120, V2[i % 2]))
            if x == 1: a("s_waitcnt lgkmcnt(0)")
            a(qk1(y))
            if PL == 0 and x == 0: a(rdk1(o))
            for q in range(4): a(e(cur, q))
            if PL == 1 and x == 0: a(rdk1(o))
            a(pv(y, V2[(i + 1) % 2] if x == 0 else V2[i % 2], P + 4))
            for q in range(4, 8): a(e(cur, q))
            a(c(cur, 0)); a(c(cur, 1))
            a(qk2(y))
            if PL == 0 and x == 0: a(rdk2(o))
            a(c(cur, 2)); a(c(cur, 3))
            for q in range(8, 12): a(e(cur, q))
            if PL == 1 and x == 0: a(rdk2(o))
            if x == 0: a("s_waitcnt lgkmcnt(2)")
            a(pv(x, V1, P))
            if PL == 0 and x == 1: a(rdv(o, V2[(i + 1) % 2]))
            for q in range(12, 16): a(e(cur, q))
            for q in range(4, 8): a(c(cur, q))
    a(f"""
    v_add_u32 v{AK1}, 0x5000, v{AK1}
    v_add_u32 v{AK2}, 0x5000, v{AK2}
    v_add_u32 v{AV}, 0x5000, v{AV}
    s_add_u32 s26, s26, 1
    s_bitcmp1_b32 0x26, s26
    s_cbranch_scc0 ATT_NOBAR
    s_barrier
ATT_NOBAR:
    """)
    if opt("prio0", 0):
        a(f"s_cmp_eq_u32 s26, {opt('pt1', 4)}\ns_cbranch_scc0 ATT_NP1\ns_setprio 1\nATT_NP1:\ns_cmp_eq_u32 s26, {opt('pt2', 7)}\ns_cbranch_scc0 ATT_NP2\ns_setprio 0\nATT_NP2:")
    XB = 102400
    a(f"""
    s_cmp_lt_u32 s26, 8
    s_cbranch_scc1 ATT_LOOP
    {pv(1, V2[1], P+4)}
    {st(8)}
    s_lshl_b32 s23, s61, 12
    s_xor_b32 s27, s23, 16384
    s_add_u32 s23, s23, {XB}
    s_add_u32 s27, s27, {XB}
    s_nop 0
    v_lshlrev_b32 v{T}, 4, v{L31}
    v_lshl_add_u32 v{T}, v{H5}, 9, v{T}
    v_add_u32 v{T+1}, s27, v{T}
    v_add_u32 v{T}, s23, v{T}
    s_waitcnt lgkmcnt(0)
    s_barrier
    s_cmp_eq_u32 s37, 0
    s_cbranch_scc1 ATT_X0
    """)
    for j in range(4): a(f"ds_write_b128 v{T}, {vr(O[0]+4*j,4)} offset:{1024*j}")
    a("s_nop 1")
    for r in range(13): a(f"v_mov_b32 v{O[0]+r}, v{O[1]+r}")
    for r in range(4): a(f"v_mov_b32 v{Q1[0]+r}, v{Q1[1]+r}")
    a(f"v_mov_b32 v{Q2[0]}, v{Q2[1]}\ns_branch ATT_X1\nATT_X0:")
    for j in range(4): a(f"ds_write_b128 v{T}, {vr(O[1]+4*j,4)} offset:{1024*j}")
    a("ATT_X1:\ns_waitcnt lgkmcnt(0)\ns_barrier")
    for j in range(4): a(f"ds_read_b128 {vr(S[0]+4*j,4)}, v{T+1} offset:{1024*j}")
    a("s_waitcnt lgkmcnt(0)")
    for r in range(13): a(f"v_add_f32 v{r}, v{r}, v{S[0]+r}")
    Oo = 0
    a(f"v_max3_f32 v{T}, |v{Oo}|, |v{Oo+1}|, |v{Oo+12}|")
    for j in range(2, 12, 2): a(f"v_max3_f32 v{T}, |v{Oo+j}|, |v{Oo+j+1}|, v{T}")
    a(f"v_add_f32 v{T+1}, v{Oo}, v{Oo+1}\nv_add_f32 v{T+2}, v{Oo+2}, v{Oo+3}")
    for j in range(4, 12, 2): a(f"v_add_f32 v{T+1}, v{Oo+j}, v{T+1}\nv_add_f32 v{T+2}, v{Oo+j+1}, v{T+2}")
    a(f"""
    v_add_f32 v{T+1}, v{T+1}, v{T+2}
    s_mov_b32 s27, 0x71800000
    v_cmp_gt_f32 vcc, s27, v{T}
    v_cmp_o_f32 s[40:41], v{T+1}, v{T+1}
    s_mov_b32 s27, 0x3e800000
    v_cmp_le_f32 s[42:43], s27, v{Oo+12}
    s_and_b64 vcc, vcc, s[40:41]
    s_and_b64 vcc, vcc, s[42:43]
    s_cmp_eq_u64 vcc, -1
    s_cbranch_scc0 ATT_FALLBACK
ATT_FINISH:
    v_rcp_f32 v{T}, v{Oo+12}
    s_nop 0
    """)
    for j in range(12): a(f"v_mul_f32 v{Oo+j}, v{Oo+j}, v{T}")
    for j in range(6): a(f"v_cvt_pk_bf16_f32 v{P+j}, v{Oo+2*j}, v{Oo+2*j+1}")
    a(f"""
    buffer_store_dwordx4 {vr(P,4)}, v{OA1}, s[28:31], s32 offen sc1
    s_nop 0
    v_permlane16_swap_b32 v{P+4}, v{P+6}
    v_permlane16_swap_b32 v{P+5}, v{P+7}
    s_mov_b64 exec, 0xffff
    buffer_store_dwordx4 {vr(P+4,4)}, v{OA2}, s[28:31], s33 offen sc1
    {st(9)}
    s_waitcnt vmcnt(0)
    s_barrier
    {fin()}
    """)
    def gk(): return f"buffer_load_dwordx4 {vr(K1,4)}, v{AK1}, s[28:31], s23 offen sc1\nbuffer_load_dword v{K2}, v{AK2}, s[28:31], s23 offen offset:1024 sc1"
    a(f"""
ATT_FALLBACK:
    s_mul_i32 s23, s37, 2560
    s_add_u32 s23, s23, {HS}
    v_mov_b32 v{Q2[0]+1}, 0
    v_mov_b32 v{T}, 0xff800000
    v_subrev_u32 v{AK1}, s23, v{AK1}
    v_subrev_u32 v{AK2}, s23, v{AK2}
    v_subrev_u32 v{AV}, s23, v{AV}
    s_add_u32 s23, s21, {KV_OFF}
    s_mov_b32 s26, 0
ATT_FB1:
    {gk()}
    s_add_u32 s23, s23, 2560
    s_waitcnt vmcnt(0)
    {qk1(0)}
    {qk2(0)}
    s_nop 15
    """)
    maxtree(S[0], T, False)
    a("s_add_u32 s26, s26, 1\ns_cmp_lt_u32 s26, 64\ns_cbranch_scc1 ATT_FB1")
    xhalf(T)
    a(f"s_add_u32 s23, s21, {KV_OFF}\ns_mov_b32 s26, 0")
    for r in range(16): a(f"v_mov_b32 v{r}, 0")
    a(f"""
ATT_FB2:
    {gk()}
    s_mov_b64 exec, s[24:25]
    buffer_load_dwordx4 {vr(V1,4)}, v{AV}, s[28:31], s23 offen offset:1280 sc1
    buffer_load_dwordx4 {vr(V2[0],4)}, v{AV}, s[28:31], s23 offen offset:1920 sc1
    s_mov_b64 exec, -1
    s_add_u32 s23, s23, 2560
    s_waitcnt vmcnt(0)
    {qk1(0)}
    {qk2(0)}
    s_nop 15
    """)
    for q in range(16): a(f"v_sub_f32 v{S[0]+q}, v{S[0]+q}, v{T}")
    for q in range(16): a(e(S[0], q))
    a("s_nop 0")
    for q in range(8): a(c(S[0], q))
    a(f"""
    s_nop 1
    {pv(0, V1, P)}
    {pv(0, V2[0], P+4)}
    s_add_u32 s26, s26, 1
    s_cmp_lt_u32 s26, 64
    s_cbranch_scc1 ATT_FB2
    s_nop 15
    s_branch ATT_FINISH
    """)

def helpers(a):
    a(f"""
HELPER:
    {st(2)}
    {srd(28, WS_P, WS_USED)}
    s_lshr_b32 s19, s18, 3
    s_lshl_b32 s23, s17, 2
    s_add_u32 s19, s19, s23
    s_and_b32 s62, s18, 7
    s_mul_i32 s21, s19, {HS}
    v_lshlrev_b32 v1, 4, v0
    s_lshl_b32 s22, s16, 10
    s_mul_i32 s23, s62, 20480
    s_add_u32 s23, s23, s22
    s_add_u32 s24, s21, {KV_OFF}
    s_mov_b32 s25, 0
    s_barrier
    s_barrier
    {st(3)}
H_DMA:
    s_mov_b32 m0, s22
    s_add_u32 s26, s23, s24
    buffer_load_dwordx4 v1, s[28:31], s26 offen sc1 lds
    s_add_u32 s22, s22, 4096
    s_add_u32 s23, s23, 4096
    s_sub_u32 s26, s23, {HS}
    s_cmp_ge_u32 s23, {HS}
    s_cselect_b32 s23, s26, s23
    s_add_u32 s25, s25, 1
    s_cmp_eq_u32 s25, 7
    s_cbranch_scc0 H_DMA_A
    s_waitcnt vmcnt(5)
    s_barrier
H_DMA_A:
    s_cmp_eq_u32 s25, {opt("dma0", 17)}
    s_cbranch_scc0 H_DMA_B
    s_waitcnt vmcnt({opt("dma0", 17) - 7})
    s_barrier
H_DMA_B:
    s_cmp_lt_u32 s25, 40
    s_cbranch_scc1 H_DMA
    s_waitcnt vmcnt(28)
    s_barrier
    s_waitcnt vmcnt(0)
    {st(4)}
    s_barrier
    v_mov_b32 v167, v0
    s_cmp_lt_u32 s16, 2
    s_cbranch_scc1 H_FNET
    s_cmp_eq_u32 s16, 3
    s_cbranch_scc0 H_MID
    """)
    a(f"""
    {srd(32, X_P, 2048*1280)}
    {srd(36, GATE_P, 1280)}
    v_lshrrev_b32 v2, 3, v0
    v_and_b32 v3, 7, v0
    v_lshlrev_b32 v3, 4, v3
    s_movk_i32 s22, 1280
    v_mad_u32_u24 v4, v2, s22, v3
    s_mul_i32 s23, s2, {8*1280}
    """)
    for j in range(10):
        a(f"buffer_load_dwordx4 {vr(24+8*j,4)}, v4, s[32:35], s23 offen offset:{128*j}")
        a(f"buffer_load_dwordx4 {vr(28+8*j,4)}, v3, s[36:39], 0 offen offset:{128*j}")
    a("v_mov_b32 v5, 0\nv_mov_b32 v6, 0\ns_waitcnt vmcnt(0)")
    for j in range(10):
        for q in range(4):
            a(f"v_dot2c_f32_bf16 v{5 + (q & 1)}, v{24+8*j+q}, v{28+8*j+q}")
    a(f"""
    s_nop 2
    v_add_f32 v5, v5, v6
    s_nop 1
    v_add_f32_dpp v5, v5, v5 quad_perm:[1,0,3,2] row_mask:0xf bank_mask:0xf
    s_nop 1
    v_add_f32_dpp v5, v5, v5 quad_perm:[2,3,0,1] row_mask:0xf bank_mask:0xf
    s_nop 1
    v_add_f32_dpp v5, v5, v5 row_half_mirror row_mask:0xf bank_mask:0xf
    v_mul_f32 v5, {f32bits(-math.log2(math.e)):#x}, v5
    v_exp_f32 v5, v5
    v_lshlrev_b32 v2, 2, v2
    v_add_f32 v5, 1.0, v5
    v_rcp_f32 v5, v5
    s_lshl_b32 s23, s2, 5
    s_add_u32 s23, s23, {G_OFF}
    buffer_store_dword v5, v2, s[28:31], s23 offen sc1
    s_branch H_MID
    """)
    C, SN, FB = 0, 16, 32
    a(f"""
H_FNET:
    s_lshl_b32 s22, s16, 5
    s_add_u32 s22, s22, s18
    s_cmp_lt_u32 s22, 44
    s_cbranch_scc1 H_FN_A
    s_sub_u32 s24, s22, 44
    s_lshl_b32 s24, s24, 3
    s_add_u32 s24, s24, s17
    s_cmp_ge_u32 s24, 11
    s_cbranch_scc1 H_MID
    s_mov_b32 s23, 32
    s_branch H_FN_B
H_FN_A:
    s_mul_i32 s23, s22, 5958
    s_lshr_b32 s23, s23, 16
    s_mul_i32 s24, s23, 11
    s_sub_u32 s24, s22, s24
    s_lshl_b32 s23, s23, 3
    s_add_u32 s23, s23, s17
H_FN_B:
    v_lshlrev_b32 v2, 7, v0
    v_add_u32 v2, {FLG_OFF + 128*L_T}, v2
    """)
    poll(a, 2, 3, 0xff, 32)
    a(f"""
    s_and_b32 s25, s23, 1
    s_add_u32 s26, s24, 10
    s_cmp_eq_u32 s24, 10
    s_cselect_b32 s26, 10, s26
    s_lshl_b32 s32, s23, 16
    s_add_u32 s32, s32, {TB_OFF}
    s_mul_i32 s27, s25, {FO_DELTA}
    s_add_u32 s27, s27, {FE_OFF}
    s_lshl_b32 s33, s24, 15
    s_add_u32 s33, s33, s27
    s_lshl_b32 s34, s26, 15
    s_add_u32 s34, s34, s27
    s_cmp_eq_u32 s25, 0
    s_cselect_b32 s35, s24, s26
    s_lshl_b32 s35, s35, 7
    s_add_u32 s35, s35, {X512_OFF}
    v_and_b32 v160, 31, v0
    v_lshrrev_b32 v161, 5, v0
    v_lshlrev_b32 v162, 2, v160
    v_mov_b32 v163, v1
    buffer_load_dword v164, v162, s[28:31], s35 offen sc1
    """)
    def fl(j):
        r = FB + 16 * j
        o2 = (j % 2) * 2048; o1 = (j % 4) * 1024
        s = f"""buffer_load_dwordx4 {vr(r,4)}, v163, s[28:31], s32 offen offset:{o2} sc1
        buffer_load_dwordx4 {vr(r+4,4)}, v163, s[28:31], s33 offen offset:{o1} sc1
        buffer_load_dwordx4 {vr(r+8,4)}, v163, s[28:31], s32 offen offset:{o2+1024} sc1
        buffer_load_dwordx4 {vr(r+12,4)}, v163, s[28:31], s34 offen offset:{o1} sc1
        """
        if j % 2 == 1: s += "s_add_u32 s32, s32, 4096\n"
        if j % 4 == 3: s += "s_add_u32 s33, s33, 4096\ns_add_u32 s34, s34, 4096\n"
        return s
    def fm(j):
        r = FB + 16 * j
        return f"""v_mfma_f32_32x32x16_bf16 {vr(C,16)}, {vr(r,4)}, {vr(r+4,4)}, {vr(C,16)}
        v_mfma_f32_32x32x16_bf16 {vr(SN,16)}, {vr(r+8,4)}, {vr(r+12,4)}, {vr(SN,16)}"""
    for j in range(8): a(fl(j))
    a(f"""
    s_waitcnt vmcnt(32)
    s_cmp_eq_u32 s25, 0
    s_cselect_b32 s36, 1.0, 0
    s_cselect_b32 s37, 0, 1.0
    v_mul_f32 v165, s36, v164
    v_mul_f32 v166, s37, v164
    """)
    for r in range(16):
        if r % 2 == 0: a(f"v_mov_b32 v{C+r}, v165\nv_mov_b32 v{SN+r}, v166")
        else: a(f"v_sub_f32 v{C+r}, 0, v165\nv_sub_f32 v{SN+r}, 0, v166")
    a("s_mov_b32 s38, 0\nH_FN_LOOP:")
    for j in range(8):
        a("s_waitcnt vmcnt(28)"); a(fm(j)); a(fl(j))
    a("s_add_u32 s38, s38, 1\ns_cmp_lt_u32 s38, 3\ns_cbranch_scc1 H_FN_LOOP")
    for j in range(8):
        a(f"s_waitcnt vmcnt({28-4*j})"); a(fm(j))
    a(f"""
    s_lshl_b32 s27, s24, 5
    v_add_u32 v32, s27, v160
    s_movk_i32 s27, 320
    v_cmp_eq_u32 s[44:45], 0, v32
    v_cmp_le_u32 s[46:47], s27, v32
    s_or_b64 s[44:45], s[44:45], s[46:47]
    v_mul_u32_u24 v33, {ZR}, v161
    v_lshl_add_u32 v33, v32, 4, v33
    s_mul_i32 s26, s23, {8*ZR}
    s_add_u32 s26, s26, {Y_OFF}
    s_nop 3
    """)
    for r in range(16): a(f"v_cndmask_b32 v{SN+r}, v{SN+r}, 0, s[44:45]")
    for r in range(16):
        a(f"v_add_f32 v{48+r}, v{C+r}, v{SN+r}\nv_sub_f32 v{C+r}, v{C+r}, v{SN+r}")
    for r in range(16): a(f"v_cvt_pk_bf16_f32 v{48+r}, v{48+r}, v{C+r}")
    for g in range(4):
        a(f"buffer_store_dwordx4 {vr(48+4*g,4)}, v33, s[28:31], s26 offen sc1\ns_add_u32 s26, s26, {2*ZR}")
    OFR = 0; ACC = 80; BF = 100; Y = 128; G = 148; VA = 149; VY = 150; BMM = 151; BMT = 152; VT = 153; VG = 154; VZ = 155; T = 156
    a(f"""
H_MID:
    v_mov_b32 v0, v167
    s_lshr_b32 s19, s17, 1
    s_lshl_b32 s19, s19, 3
    s_add_u32 s19, s19, s62
    s_and_b32 s20, s17, 1
    s_lshl_b32 s20, s20, 2
    s_lshr_b32 s63, s18, 3
    s_add_u32 s20, s20, s63
    {srd(32, WO_P, 640*1280)}
    {srd(36, OUT_P, 2621440)}
    s_mul_i32 s26, s20, 160
    s_mul_i32 s27, s16, {160*1280}
    s_add_u32 s27, s27, s26
    s_movk_i32 s23, {1280 - 160}
    """)
    for i in range(5):
        a(f"""
        v_add_u32 v{T}, {64*i}, v0
        v_mul_u32_u24 v{T+1}, 6554, v{T}
        v_lshrrev_b32 v{T+1}, 16, v{T+1}
        v_lshlrev_b32 v{T}, 4, v{T}
        v_mad_u32_u24 v{BF+i}, v{T+1}, s23, v{T}
        """)
    a(f"""
    v_lshlrev_b32 v{VA}, 4, v0
    s_lshl_b32 s21, s19, 2
    s_add_u32 s21, s21, s16
    s_lshr_b32 s22, s21, 1
    s_lshl_b32 s22, s22, 5
    s_and_b32 s24, s21, 1
    s_lshl_b32 s24, s24, 3
    s_add_u32 s22, s22, s24
    v_and_b32 v{T}, 7, v0
    v_bfe_u32 v{T+2}, v0, 3, 1
    v_lshrrev_b32 v{T+1}, 4, v0
    v_lshlrev_b32 v{VT}, 8, v{T+1}
    v_lshl_add_u32 v{VT}, v{T}, 4, v{VT}
    v_lshl_add_u32 v{VT}, v{T+2}, 3, v{VT}
    v_lshl_add_u32 v{T}, v{T+2}, 4, v{T}
    v_add_u32 v{T}, s22, v{T}
    v_mul_u32_u24 v{VY}, 1280, v{T}
    v_mul_u32_u24 v{T+2}, 40, v{T+1}
    v_add3_u32 v{VY}, v{VY}, v{T+2}, s26
    v_lshlrev_b32 v{VG}, 2, v{T}
    v_sub_u32 v{T+3}, 0x800, v{T}
    v_cmp_lt_u32 vcc, 0x400, v{T}
    v_min_u32 v{T}, v{T}, v{T+3}
    v_lshrrev_b32 v{T+3}, 6, v{T}
    v_and_b32 v{T+4}, 1, v{T}
    v_lshl_add_u32 v{T+3}, v{T+3}, 1, v{T+4}
    v_bfe_u32 v{T+4}, v{T}, 3, 3
    v_lshl_add_u32 v{T+3}, v{T+3}, 3, v{T+4}
    v_mul_u32_u24 v{VZ}, {ZR}, v{T+3}
    v_bfe_u32 v{T+4}, v{T}, 1, 2
    v_lshl_add_u32 v{VZ}, v{T+4}, 2, v{VZ}
    v_cndmask_b32 v{T+3}, 0, 2, vcc
    s_cmp_ge_u32 s20, 4
    s_cselect_b32 s24, 2, 0
    s_cselect_b32 s40, -16, 16
    s_cselect_b32 s41, {640*16}, 0
    v_xor_b32 v{T+3}, s24, v{T+3}
    v_add3_u32 v{VZ}, v{VZ}, v{T+3}, s41
    s_mul_i32 s41, s20, 80
    v_mul_u32_u24 v{T+3}, 20, v{T+1}
    v_add_u32 v{T+3}, s41, v{T+3}
    v_mul_lo_u32 v{T+3}, v{T+3}, s40
    v_add_u32 v{VZ}, v{VZ}, v{T+3}
    v_bfe_u32 v{T}, v0, 2, 2
    v_and_b32 v{T+3}, 3, v0
    v_mul_u32_u24 v{T+3}, 40, v{T+3}
    s_mul_i32 s24, s63, 25600
    v_add3_u32 v{T+2}, v{T+2}, v{T}, 16
    v_mul_u32_u24 v{T+2}, 160, v{T+2}
    v_add3_u32 v{BMT}, v{T+2}, v{T+3}, s24
    v_lshrrev_b32 v{T+2}, 1, v{T+1}
    v_mul_u32_u24 v{T+2}, 20, v{T+2}
    v_and_b32 v{T+1}, 1, v{T+1}
    v_lshl_add_u32 v{T+2}, v{T+1}, 2, v{T+2}
    v_add_u32 v{T+2}, v{T+2}, v{T}
    v_mul_u32_u24 v{T+2}, 160, v{T+2}
    v_add3_u32 v{BMM}, v{T+2}, v{T+3}, s24
    """)
    for r in range(20): a(f"v_mov_b32 v{ACC+r}, 0")
    a(f"""
    s_mul_i32 s22, s16, 25600
    s_waitcnt vmcnt(0)
    {st(5)}
    s_barrier
    {st(6)}
    s_cmp_lg_u32 s16, 3
    s_cbranch_scc1 H_NOSIG
    s_lshl_b32 s23, s17, 7
    s_add_u32 s23, s23, {FLG_OFF + 128*L_Y}
    v_mov_b32 v{T}, s23
    v_mov_b32 v{T+1}, 1
    s_mov_b64 exec, 1
    buffer_atomic_add v{T+1}, v{T}, s[28:31], 0 offen sc1
    s_mov_b64 exec, -1
H_NOSIG:
    s_mov_b32 s25, 0
H_WO:
    """)
    for i in range(5):
        a(f"s_add_u32 m0, s22, {1024*i}\ns_nop 0\nbuffer_load_dwordx4 v{BF+i}, s[32:35], s27 offen lds")
    a(f"""
    s_add_u32 s22, s22, 5120
    s_add_u32 s27, s27, {32*1280}
    s_add_u32 s25, s25, 1
    s_cmp_lt_u32 s25, 5
    s_cbranch_scc1 H_WO
    v_lshlrev_b32 v{T}, 7, v0
    v_add_u32 v{T}, {FLG_OFF + 128*L_Y}, v{T}
    """)
    poll(a, T, T + 1, 0xff, 32)
    a(f"s_mov_b32 s26, {Y_OFF}\ns_mov_b32 s27, {G_OFF}\nbuffer_load_dword v{G}, v{VG}, s[28:31], s27 offen sc1")
    for j in range(20):
        a(f"buffer_load_ushort v{Y+j}, v{VZ}, s[28:31], s26 offen sc1\nv_add_u32 v{VZ}, s40, v{VZ}")
    a(f"s_mul_i32 s22, s21, 20480\ns_add_u32 s22, s22, {OF_OFF}")
    tl = (24, 25, 46, 47)
    for g in range(4):
        a(f"""
        s_add_u32 s23, s63, {g}
        s_and_b32 s23, s23, 3
        s_lshl_b32 s{42+g}, s23, 12
        s_add_u32 s{42+g}, s{42+g}, s22
        s_lshl_b32 s{tl[g]}, s23, 10
        s_add_u32 s{tl[g]}, s{tl[g]}, s22
        s_add_u32 s{tl[g]}, s{tl[g]}, 16384
        """)
        if g: a(f"s_cmp_eq_u32 s23, 0\ns_cselect_b32 s{7+g}, {-3*25600 - 25600}, 0\ns_add_u32 s{7+g}, s{7+g}, 25600")
    a("s_waitcnt vmcnt(0)")
    for j in range(20): a(f"v_lshlrev_b32 v{Y+j}, 16, v{Y+j}")
    for j in range(20): a(f"v_mul_f32 v{Y+j}, v{Y+j}, v{G}")
    a(f"""
    v_sub_f32 v{G}, 1.0, v{G}
    {st(7)}
    s_barrier
    s_barrier
    """)
    NS = 7
    def rdb(n):
        sp, t = divmod(n, 5); d = BF + 4 * (n % NS); g, k = divmod(sp, 5)
        r = ""
        if k < 4:
            if k == 0 and t == 0 and g: r = f"v_add_u32 v{BMM}, s{7+g}, v{BMM}\n"
            b = BMM; o = k * 6400 + t * 8; dj = 1280
        else:
            if t == 0 and g: r = f"v_add_u32 v{BMT}, s{7+g}, v{BMT}\n"
            b = BMT; o = t * 8; dj = 3200
        return r + f"ds_read_b64_tr_b16 {vr(d,2)}, v{b} offset:{o}\nds_read_b64_tr_b16 {vr(d+2,2)}, v{b} offset:{o+dj}"
    for n in range(NS): a(rdb(n))
    a(f"""
    s_barrier
    {st(8)}
    s_cmp_eq_u32 s16, 0
    s_cbranch_scc1 H_POLL2
    s_cmp_lg_u32 s16, 1
    s_cbranch_scc1 H_NOSIG2
    s_lshl_b32 s23, s62, 7
    s_add_u32 s23, s23, {FLG_OFF + 128*L_O}
    v_mov_b32 v{T}, s23
    v_mov_b32 v{T+1}, 1
    s_mov_b64 exec, 1
    buffer_atomic_add v{T+1}, v{T}, s[28:31], 0 offen sc1
    s_mov_b64 exec, -1
    s_branch H_NOSIG2
H_POLL2:
    s_lshr_b32 s23, s19, 2
    s_lshl_b32 s23, s23, 7
    s_add_u32 s23, s23, {FLG_OFF + 128*L_O}
    v_mov_b32 v{T+2}, s23
    """)
    poll(a, T + 2, T + 3, 1, 32)
    a(f"H_NOSIG2:\ns_barrier\n{st(9)}")
    for g in range(4):
        for k in range(4):
            a(f"buffer_load_dwordx4 {vr(OFR+20*g+4*k,4)}, v{VA}, s[28:31], s{42+g} offen offset:{1024*k} sc1")
        a(f"buffer_load_dwordx2 {vr(OFR+20*g+16,2)}, v{VT}, s[28:31], s{tl[g]} offen sc1")
        a(f"buffer_load_dwordx2 {vr(OFR+20*g+18,2)}, v{VT}, s[28:31], s{tl[g]} offen offset:128 sc1")
    for n in range(100):
        sp, t = divmod(n, 5); g, k = divmod(sp, 5)
        w = min(2 * (NS - 1), 2 * (99 - n))
        done = 6 * g + (k + 1 if k < 4 else 6)
        a(f"s_waitcnt vmcnt({24-done}) lgkmcnt({w})" if t == 0 else f"s_waitcnt lgkmcnt({w})")
        a(f"v_mfma_f32_16x16x32_bf16 {vr(ACC+4*t,4)}, {vr(BF+4*(n%NS),4)}, {vr(OFR+4*sp,4)}, {vr(ACC+4*t,4)}")
        if n + NS < 100: a(rdb(n + NS))
    a(f"{st(10)}\ns_nop 4")
    for j in range(20): a(f"v_fmac_f32 v{Y+j}, v{ACC+j}, v{G}")
    for j in range(10): a(f"v_cvt_pk_bf16_f32 v{24+j}, v{Y+2*j}, v{Y+2*j+1}")
    fl_ = " sc1" if opt("outsc1", 0) else ""
    a(f"""
    buffer_store_dwordx4 v[24:27], v{VY}, s[36:39], 0 offen{fl_}
    buffer_store_dwordx4 v[28:31], v{VY}, s[36:39], 0 offen offset:16{fl_}
    buffer_store_dwordx2 v[32:33], v{VY}, s[36:39], 0 offen offset:32{fl_}
    """)

def main():
    a = A()
    top = open("cdna_kernels/" + NAME + ".s.ref").read().split("; Override launch")[0]
    top += "; @launch grid=(256,1,1) block=(768,1,1) lds=163840\n"
    a('.amdgcn_target "amdgcn-amd-amdhsa--gfx950"\n.text')
    d = gen(a)
    open(sys.argv[1], "w").write(top + a.text() + '.section .rodata,"a"\n.p2align 6\n' + d)
if __name__ == "__main__":
    main()
```

```python
import sys, math, struct

NAME = "gated_mix__spectral_fnet__softmax_full_mha__prompt"
HS = 163840
KV_OFF = 0
Q_OFF = 32 * HS
FE_OFF = 64 * HS
FO_DELTA = 655360
X512_OFF = FE_OFF + 2 * FO_DELTA
TB_OFF = X512_OFF + 4096
Y_OFF = TB_OFF + 33 * 65536
ZR = 5632
G_OFF = Y_OFF + 33 * 8 * ZR
OF_OFF = G_OFF + 8192
FLG_OFF = OF_OFF + 2621440
WS_USED = FLG_OFF + 8192
L_T, L_Y, L_O = 16, 24, 32

def f32bits(x): return struct.unpack("<I", struct.pack("<f", x))[0]
QSCALE = f32bits((20 ** -0.5) * math.log2(math.e))
OPT = dict(x.split("=") for x in sys.argv[2:])
def opt(k, d): return int(OPT.get(k, d))
STAMP = opt("stamp", 0)
STAMP_OFF = 1 << 25
NST = 16

class A:
    def __init__(self): self.l = []; self.n = 0
    def __call__(self, s):
        for line in s.split("\n"):
            t = line.strip()
            if not t: continue
            self.l.append(t if t.endswith(":") or t.startswith(".") else "    " + t)
    def uid(self): self.n += 1; return self.n
    def text(self): return "\n".join(self.l) + "\n"

def vr(a, n): return f"v[{a}:{a+n-1}]" if n > 1 else f"v{a}"
def srd(lo, base, size):
    return f"s_mov_b32 s{lo}, s{base}\ns_mov_b32 s{lo+1}, s{base+1}\ns_mov_b32 s{lo+2}, {size}\ns_mov_b32 s{lo+3}, 0x20000"
def st(i):
    if not STAMP: return ""
    return f"{'s_memrealtime' if STAMP in (1, 3) else 's_memtime'} s[{64+2*i}:{65+2*i}]"
def fin(): return "s_branch L_DONE" if STAMP else "s_endpgm"

X_P, WD_P, WQKV_P, WO_P, GATE_P, OUT_P, DBG_P, WS_P = 4, 8, 48, 50, 52, 54, 56, 58

def poll(a, vaddr, vdat, mask, target, sreg=60):
    u = a.uid()
    a(f"""
    s_mov_b64 exec, {mask}
    s_mov_b32 s{sreg}, 0
L_POLL{u}:
    buffer_load_dword v{vdat}, v{vaddr}, s[28:31], 0 offen sc1
    s_waitcnt vmcnt(0)
    v_cmp_gt_u32 vcc, {target}, v{vdat}
    s_cbranch_vccz L_POLLD{u}
    {'s_sleep 1' if opt('psleep', 0) else ''}
    s_add_u32 s{sreg}, s{sreg}, 1
    s_cmp_lt_u32 s{sreg}, 0x40000
    s_cbranch_scc1 L_POLL{u}
L_POLLD{u}:
    s_mov_b64 exec, -1
    """)

def gen(a):
    label = NAME + "_kernel"
    a(f".p2align 8\n.globl {label}\n.type {label},@function\n{label}:")
    a(f"""
    s_cmp_ge_u32 s2, 256
    s_cbranch_scc1 L_END
    s_load_dwordx2 s[4:5], s[0:1], 0
    s_load_dwordx8 s[48:55], s[0:1], 48
    s_load_dwordx4 s[8:11], s[0:1], 24
    s_load_dwordx4 s[56:59], s[0:1], 80
    """)
    if STAMP:
        a("\n".join(f"s_mov_b32 s{64+j}, 0" for j in range(2, 2 * NST)) + "\n" + st(0))
    a(f"""
    v_lshrrev_b32 v1, 6, v0
    v_and_b32 v0, 63, v0
    s_and_b32 s17, s2, 7
    v_readfirstlane_b32 s16, v1
    s_lshr_b32 s18, s2, 3
    s_and_b32 s19, s18, 7
    s_lshr_b32 s20, s18, 3
    s_and_b32 s21, s17, 1
    s_lshl_b32 s21, s21, 3
    s_add_u32 s21, s21, s19
    s_lshr_b32 s22, s17, 1
    s_cmp_ge_u32 s16, 4
    s_cbranch_scc1 P1_NOTLOADER
    """)
    p1_loader(a)
    a(f"""
P1_NOTLOADER:
    s_cmp_ge_u32 s16, 8
    s_cbranch_scc1 P1_EXTRA
    """)
    p1_compute(a)
    p1_extra(a)
    attention(a)
    helpers(a)
    a("L_DONE:")
    if STAMP == 3:
        r = f"s_waitcnt vmcnt(0)\n{st(NST-1)}\ns_mov_b64 exec, 1\n{srd(44, DBG_P, 256)}\ns_waitcnt lgkmcnt(0)\nv_mov_b32 v16, 0\n"
        r += "s_not_b32 s60, s64\nv_mov_b32 v0, s60\nbuffer_atomic_umax v0, v16, s[44:47], 0 offen offset:4 sc1\n"
        r += "s_cmp_eq_u32 s16, 0\ns_cbranch_scc1 L_D0\ns_cmp_eq_u32 s16, 4\ns_cbranch_scc0 L_END\n"
        for n, i in enumerate((2, 3, 4, 5, 7, 8, 9)): r += f"v_mov_b32 v{n+1}, s{64+2*i}\nbuffer_atomic_umax v{n+1}, v16, s[44:47], 0 offen offset:{8+4*n} sc1\n"
        r += "s_endpgm\nL_D0:\n"
        for n, i in enumerate((0, 1, 6, 8, 9, 10, 15)): r += f"v_mov_b32 v{n+1}, s{64+2*i}\nbuffer_atomic_umax v{n+1}, v16, s[44:47], 0 offen offset:{36+4*n} sc1\n"
        a(r)
    elif STAMP:
        r = f"s_waitcnt vmcnt(0)\n{st(NST-1)}\ns_mov_b64 exec, 1\ns_add_u32 s44, s{WS_P}, {STAMP_OFF}\ns_addc_u32 s45, s{WS_P+1}, 0\ns_mov_b32 s46, 262144\ns_mov_b32 s47, 0x20000\n"
        r += "s_lshl_b32 s60, s2, 4\ns_add_u32 s60, s60, s16\ns_lshl_b32 s60, s60, 6\ns_waitcnt lgkmcnt(0)\nv_mov_b32 v16, 0\n"
        for i in range(NST): r += f"v_mov_b32 v{i}, s{64+2*i}\n"
        for i in range(4): r += f"buffer_store_dwordx4 v[{4*i}:{4*i+3}], v16, s[44:47], s60 offen offset:{16*i}\n"
        a(r)
    a("L_END:\ns_endpgm")
    return f""".amdhsa_kernel {label}
  .amdhsa_next_free_vgpr 168
  .amdhsa_next_free_sgpr {100 if STAMP else 64}
  .amdhsa_accum_offset 168
  .amdhsa_group_segment_fixed_size 0
  .amdhsa_kernarg_size 96
  .amdhsa_user_sgpr_count 2
  .amdhsa_user_sgpr_kernarg_segment_ptr 1
  .amdhsa_system_sgpr_workgroup_id_x 1
.end_amdhsa_kernel
"""

def p1_loader(a):
    a(f"""
    s_setprio 3
    v_lshrrev_b32 v2, 3, v0
    v_and_b32 v3, 7, v0
    v_lshrrev_b32 v4, 4, v0
    v_xor_b32 v3, v3, v4
    v_lshlrev_b32 v3, 4, v3
    v_xor_b32 v4, 64, v3
    s_cmp_eq_u32 s22, 3
    s_cbranch_scc1 P1_LD_DFT
    s_lshl_b32 s23, s21, 7
    s_lshl_b32 s24, s16, 5
    s_add_u32 s23, s23, s24
    v_add_u32 v5, s23, v2
    v_add_u32 v6, 8, v5
    v_add_u32 v7, 16, v5
    v_add_u32 v8, 24, v5
    s_movk_i32 s25, 3840
    s_lshl_b32 s26, s22, 2
    s_add_u32 s26, s26, s20
    s_mul_i32 s26, s26, 320
    s_branch P1_LD_JOIN
P1_LD_DFT:
    s_lshl_b32 s23, s21, 5
    s_lshl_b32 s24, s16, 3
    s_add_u32 s23, s23, s24
    v_add_u32 v5, s23, v2
    v_sub_u32 v6, 0x800, v5
    v_sub_u32 v7, 0x400, v5
    v_add_u32 v8, 0x400, v5
    v_cmp_eq_u32 vcc, 0, v5
    v_mov_b32 v9, 0x200
    v_mov_b32 v10, 0x600
    v_cndmask_b32 v6, v6, v9, vcc
    v_cndmask_b32 v8, v8, v10, vcc
    s_movk_i32 s25, 1280
    s_and_b32 s26, s20, 1
    s_mul_i32 s26, s26, 320
P1_LD_JOIN:
    s_movk_i32 s27, 1280
    v_mad_u32_u24 v10, v5, s27, v3
    v_mad_u32_u24 v11, v6, s27, v4
    v_mad_u32_u24 v12, v7, s27, v3
    v_mad_u32_u24 v13, v8, s27, v4
    s_lshl_b32 s27, s16, 4
    s_mul_i32 s27, s27, s25
    s_add_u32 s26, s26, s27
    s_sub_u32 s27, s25, 320
    """)
    for i in range(5):
        a(f"""
        v_add_u32 v5, {64*i}, v0
        v_mul_u32_u24 v6, 3277, v5
        v_lshrrev_b32 v6, 16, v6
        v_lshl_add_u32 v5, v5, 4, s26
        v_mad_u32_u24 v{14+i}, v6, s27, v5
        """)
    sg = opt("stag1", 1)
    if sg == 1:
        a("s_lshl_b32 s36, s19, 3\ns_lshl_b32 s37, s20, 4\ns_add_u32 s36, s36, s37\ns_add_u32 s36, s36, s17\ns_and_b32 s36, s36, 63\ns_mul_i32 s36, s36, 10\ns_lshr_b32 s36, s36, 6")
    elif sg == 2:
        a("s_add_u32 s36, s19, s20\ns_lshl_b32 s36, s36, 4\ns_add_u32 s36, s36, s17\ns_add_u32 s36, s36, s17\ns_and_b32 s36, s36, 63\ns_mul_i32 s36, s36, 10\ns_lshr_b32 s36, s36, 6")
    elif sg == 3:
        a("s_add_u32 s36, s19, s20\ns_lshl_b32 s36, s36, 5\ns_lshl_b32 s37, s17, 2\ns_add_u32 s36, s36, s37\ns_and_b32 s36, s36, 63\ns_mul_i32 s36, s36, 10\ns_lshr_b32 s36, s36, 6")
    else:
        a("s_mov_b32 s36, 0")
    a(f"""
    s_lshl_b32 s38, s16, 12
    s_mul_i32 s39, s16, 5120
    s_add_u32 s39, s39, 0x10000
    s_mov_b32 s40, 0
    s_mul_i32 s34, s25, 640
    s_lshl_b32 s25, s25, 6
    s_mov_b32 s35, 0x20000
    s_waitcnt lgkmcnt(0)
    {srd(28, X_P, 2048*1280)}
    s_cmp_lt_u32 s20, 2
    s_cselect_b32 s32, s8, s10
    s_cselect_b32 s33, s9, s11
    s_cmp_eq_u32 s22, 3
    s_cselect_b32 s32, s32, s{WQKV_P}
    s_cselect_b32 s33, s33, s{WQKV_P+1}
    {st(1)}
P1_LD_LOOP:
    s_lshl_b32 s41, s36, 7
    s_mul_i32 s42, s36, s25
    s_and_b32 s43, s40, 3
    s_lshl_b32 s44, s43, 14
    s_add_u32 s44, s44, s38
    s_mul_i32 s45, s43, 20480
    s_add_u32 s45, s45, s39
    """)
    for i in range(4):
        a(f"s_add_u32 m0, s44, {1024*i}\ns_nop 0\nbuffer_load_dwordx4 v{10+i}, s[28:31], s41 offen lds")
    for i in range(5):
        a(f"s_add_u32 m0, s45, {1024*i}\ns_nop 0\nbuffer_load_dwordx4 v{14+i}, s[32:35], s42 offen lds")
    a(f"""
    s_add_u32 s36, s36, 1
    s_cmp_eq_u32 s36, 10
    s_cselect_b32 s36, 0, s36
    s_add_u32 s40, s40, 1
    s_cmp_eq_u32 s40, 1
    s_cbranch_scc1 P1_LD_LOOP
    s_waitcnt vmcnt(9)
    s_barrier
    s_cmp_lt_u32 s40, 10
    s_cbranch_scc1 P1_LD_LOOP
    s_waitcnt vmcnt(0)
    s_barrier
    s_branch HELPER
    """)

def p1_compute(a):
    ACC = 0; SA, SB = 80, 104
    L, H5, L31 = 128, 129, 130
    XA0, WA, CX, CW, PC, T0 = 131, 132, 133, 137, 138, 140
    a(f"""
    s_sub_u32 s61, s16, 4
    v_mov_b32 v{L}, v0
    v_lshrrev_b32 v{H5}, 5, v0
    v_and_b32 v{L31}, 31, v0
    v_lshrrev_b32 v{T0}, 1, v{L}
    v_and_b32 v{T0}, 7, v{T0}
    v_xor_b32 v{T0}, v{T0}, v{H5}
    v_lshlrev_b32 v{T0}, 4, v{T0}
    v_lshl_add_u32 v{T0}, v{L31}, 7, v{T0}
    s_lshl_b32 s23, s61, 12
    v_add_u32 v{XA0}, s23, v{T0}
    v_bfe_u32 v{T0}, v{L}, 2, 2
    v_lshl_add_u32 v{T0}, v{H5}, 3, v{T0}
    v_mul_u32_u24 v{T0}, 320, v{T0}
    v_and_b32 v{T0+1}, 3, v{L}
    v_lshlrev_b32 v{T0+1}, 3, v{T0+1}
    v_and_b32 v{T0+2}, 16, v{L}
    v_lshlrev_b32 v{T0+2}, 1, v{T0+2}
    v_add3_u32 v{WA}, v{T0}, v{T0+1}, v{T0+2}
    v_add_u32 v{WA}, 0x10000, v{WA}
    v_mov_b32 v{PC}, 0xbf803f80
    s_lshl_b32 s26, s22, 2
    s_add_u32 s26, s26, s20
    s_cmp_eq_u32 s26, 14
    s_cselect_b32 s24, 1, 0
    s_mov_b32 s25, s24
    s_mov_b32 s40, 0
    """)
    for r in range(80): a(f"v_mov_b32 v{ACC+r}, 0")
    for r in range(24): a(f"v_mov_b32 v{SB+r}, 0")
    a(f"s_waitcnt lgkmcnt(0)\n{srd(28, WS_P, WS_USED)}\n{st(1)}")
    a("s_cmp_ge_u32 s22, 2\ns_cbranch_scc1 P1_LOOP_V")

    def group(cur, nxt, step, qk):
        def mf(T):
            d = vr(ACC + 16 * T, 16); x = vr(cur, 4); w = vr(cur + 4 + 4 * T, 4)
            return f"v_mfma_f32_32x32x16_bf16 {d}, {w}, {x}, {d}" if qk else f"v_mfma_f32_32x32x16_bf16 {d}, {x}, {w}, {d}"
        def rw(T):
            if step is None: return ""
            o = step * 5120 + T * 64; d = nxt + 4 + 4 * T
            return f"ds_read_b64_tr_b16 {vr(d,2)}, v{CW} offset:{o}\nds_read_b64_tr_b16 {vr(d+2,2)}, v{CW} offset:{o+1280}"
        rd = step is not None
        a(f"s_waitcnt lgkmcnt(8)"); a(mf(1))
        if rd: a(f"ds_read_b128 {vr(nxt,4)}, v{CX+step}")
        a(rw(1))
        a(f"s_waitcnt lgkmcnt({9 if rd else 6})"); a(mf(2)); a(rw(2))
        a(f"s_waitcnt lgkmcnt({9 if rd else 4})"); a(mf(3)); a(rw(3))
        a(f"s_waitcnt lgkmcnt({7 if rd else 0})")
        if not qk:
            for j in range(4): a(f"v_cndmask_b32 v{cur+4+j}, v{cur+4+j}, v{PC}, s[24:25]")
        a(mf(4)); a(rw(4))
        if not rd: a("s_nop 0")
        a(mf(0)); a(rw(0))

    for qk, lab in ((True, "QK"), (False, "V")):
        a(f"""
P1_LOOP_{lab}:
        s_and_b32 s41, s40, 3
        s_lshl_b32 s42, s41, 14
        s_mul_i32 s43, s41, 20480
        v_add_u32 v{CX}, s42, v{XA0}
        v_add_u32 v{CW}, s43, v{WA}
        v_xor_b32 v{CX+1}, 32, v{CX}
        v_xor_b32 v{CX+2}, 64, v{CX}
        v_xor_b32 v{CX+3}, 0x60, v{CX}
        s_barrier
        """)
        if STAMP: a(f"s_cmp_lg_u32 s40, 0\ns_cbranch_scc1 P1_ST_{lab}\n{st(2)}\nP1_ST_{lab}:")
        group(SB, SA, 0, qk); group(SA, SB, 1, qk); group(SB, SA, 2, qk); group(SA, SB, 3, qk)
        a(f"s_add_u32 s40, s40, 1\ns_cmp_lt_u32 s40, 10\ns_cbranch_scc1 P1_LOOP_{lab}")
        group(SB, SA, None, qk)
        a(st(3))
        a("s_lshl_b32 s23, s21, 2\ns_add_u32 s23, s23, s61")
        if qk:
            a(f"""
            s_mul_i32 s26, s20, {8*HS}
            s_mul_i32 s27, s23, 2560
            s_add_u32 s26, s26, s27
            s_cmp_eq_u32 s22, 0
            s_cselect_b32 s27, {Q_OFF}, {KV_OFF}
            s_cselect_b32 s36, {QSCALE}, 1.0
            s_mov_b32 s37, s36
            s_add_u32 s26, s26, s27
            v_lshlrev_b32 v{T0}, 4, v{L}
            s_mov_b32 s27, {HS}
            v_bfe_u32 v{T0+1}, v{L}, 4, 1
            v_lshl_add_u32 v{T0+1}, v{T0+1}, 1, v{H5}
            v_mul_lo_u32 v{T0+1}, v{T0+1}, s27
            v_and_b32 v{T0+2}, 15, v{L}
            v_lshl_add_u32 v{T0+1}, v{T0+2}, 4, v{T0+1}
            """)
            for n_, p in enumerate((2, 3, 1, 0)):
                base = SA + (n_ % 2) * 8
                xk = SA + 16 + (n_ // 2) * 4 + (p % 2) * 2
                for gi, dst in ((0, base), (1, base + 2), (3, base + 4), (4, base + 6), (2, xk)):
                    r = ACC + 4 * (5 * p + gi)
                    a(f"v_pk_mul_f32 {vr(r,2)}, {vr(r,2)}, s[36:37]\nv_pk_mul_f32 {vr(r+2,2)}, {vr(r+2,2)}, s[36:37]")
                    a(f"v_cvt_pk_bf16_f32 v{dst}, v{r}, v{r+1}\nv_cvt_pk_bf16_f32 v{dst+1}, v{r+2}, v{r+3}")
                a(f"""
                s_add_u32 s38, s26, {2*p*HS}
                s_add_u32 s39, s26, {(2*p+1)*HS}
                buffer_store_dwordx4 {vr(base,4)}, v{T0}, s[28:31], s38 offen sc1
                buffer_store_dwordx4 {vr(base+4,4)}, v{T0}, s[28:31], s39 offen sc1
                """)
                if n_ % 2 == 1:
                    x4 = SA + 16 + (n_ // 2) * 4
                    a(f"""
                    v_permlane16_swap_b32 v{x4}, v{x4+2}
                    v_permlane16_swap_b32 v{x4+1}, v{x4+3}
                    s_add_u32 s38, s26, {(p // 2) * 4 * HS}
                    buffer_store_dwordx4 {vr(x4,4)}, v{T0+1}, s[28:31], s38 offen offset:1024 sc1
                    """)
            a("s_branch P1_DONE")
        else:
            a("s_cmp_eq_u32 s22, 3\ns_cbranch_scc1 P1_EPI_DFT")
            a(f"""
            s_mul_i32 s26, s20, {8*HS}
            s_mul_i32 s27, s23, 2560
            s_add_u32 s26, s26, s27
            s_add_u32 s26, s26, {KV_OFF + 1280}
            s_mov_b32 s27, {HS - 320}
            v_mul_u32_u24 v{T0+5}, 320, v{H5}
            """)
            for T in range(5):
                a(f"""
                v_add_u32 v{T0+6}, {32*T}, v{L31}
                v_mul_u32_u24 v{T0+7}, 3277, v{T0+6}
                v_lshrrev_b32 v{T0+7}, 16, v{T0+7}
                v_lshl_add_u32 v{T0+6}, v{T0+6}, 4, v{T0+5}
                v_mad_u32_u24 v{T0+T}, v{T0+7}, s27, v{T0+6}
                """)
            for T in (1, 2, 3, 4, 0):
                base = SA + (T % 3) * 8
                for j in range(8):
                    a(f"v_cvt_pk_bf16_f32 v{base+j}, v{ACC+16*T+2*j}, v{ACC+16*T+2*j+1}")
                a(f"buffer_store_dwordx4 {vr(base,4)}, v{T0+T}, s[28:31], s26 offen sc1")
                a(f"buffer_store_dwordx4 {vr(base+4,4)}, v{T0+T}, s[28:31], s26 offen offset:640 sc1")
            a("s_branch P1_DONE")
            TAU, TAU0, VD = T0, T0 + 1, T0 + 2
            a(f"""
P1_EPI_DFT:
            s_cmp_lt_u32 s20, 2
            s_cselect_b32 s36, 1.0, -1.0
            v_mov_b32 v{TAU}, s36
            v_cndmask_b32 v{TAU0}, v{TAU}, 1.0, s[24:25]
            s_mov_b32 s27, {FO_DELTA}
            v_mul_lo_u32 v{VD}, v{H5}, s27
            v_lshl_add_u32 v{VD}, v{L31}, 4, v{VD}
            s_mul_i32 s26, s20, {5*32768}
            s_lshl_b32 s27, s23, 9
            s_add_u32 s26, s26, s27
            s_add_u32 s26, s26, {FE_OFF}
            s_nop 1
            s_cmp_lg_u32 s23, 0
            s_cbranch_scc1 P1_EPI_DFT2
            s_mov_b32 exec_hi, 0
            s_mul_i32 s27, s20, 640
            s_add_u32 s27, s27, {X512_OFF}
            v_lshlrev_b32 v{T0+3}, 2, v{L31}
            """)
            for T in range(5):
                r = ACC + 16 * T
                a(f"v_fma_f32 v{SA+T}, v{r+12}, v{TAU0 if T == 0 else TAU}, v{r+4}")
                a(f"v_mov_b32 v{r+4}, 0\nv_mov_b32 v{r+12}, 0")
                a(f"buffer_store_dword v{SA+T}, v{T0+3}, s[28:31], s27 offen offset:{128*T} sc1")
            a("s_mov_b32 exec_hi, -1\nP1_EPI_DFT2:")
            for T in range(5):
                r = ACC + 16 * T; tau = TAU0 if T == 0 else TAU
                base = SB + (T % 3) * 4
                for q in range(4):
                    a(f"v_fma_f32 v{r+q}, v{r+4+q}, v{tau}, v{r+q}")
                    a(f"v_fma_f32 v{r+12+q}, v{r+8+q}, v{tau}, v{r+12+q}")
                for q in range(4):
                    a(f"v_add_f32 v{r+4+q}, v{r+q}, v{r+12+q}")
                    a(f"v_sub_f32 v{r+8+q}, v{r+q}, v{r+12+q}")
                a(f"v_cvt_pk_bf16_f32 v{base}, v{r+4}, v{r+5}\nv_cvt_pk_bf16_f32 v{base+1}, v{r+6}, v{r+7}")
                a(f"v_cvt_pk_bf16_f32 v{base+2}, v{r+8}, v{r+9}\nv_cvt_pk_bf16_f32 v{base+3}, v{r+10}, v{r+11}")
                a(f"""
                s_nop 1
                v_permlane32_swap_b32 v{base}, v{base+2}
                v_permlane32_swap_b32 v{base+1}, v{base+3}
                buffer_store_dwordx4 {vr(base,4)}, v{VD}, s[28:31], s26 offen sc1
                s_add_u32 s26, s26, 32768
                """)
    a(f"""
P1_DONE:
    v_mov_b32 v0, v{L}
    s_branch ATT
    """)

def p1_extra(a):
    T0 = 40
    a(f"""
P1_EXTRA:
    s_sub_u32 s61, s16, 8
    v_lshrrev_b32 v37, 5, v0
    v_and_b32 v38, 31, v0
    v_lshlrev_b32 v39, 4, v0
    v_mov_b32 v36, v0
    s_waitcnt lgkmcnt(0)
    {srd(28, WS_P, WS_USED)}
    {srd(32, DBG_P, 256)}
    s_cmp_lg_u32 s61, 0
    s_cbranch_scc1 P1_EX_A
    v_mov_b32 v1, 0
    s_cmp_lg_u32 s2, 0
    s_cbranch_scc1 P1_EX_WAITRDY
    v_lshlrev_b32 v2, 7, v0
    s_mov_b32 s23, {FLG_OFF}
    buffer_store_dword v1, v2, s[28:31], s23 offen sc1
    v_mov_b32 v3, 1
    s_waitcnt vmcnt(0)
    s_mov_b64 exec, 1
    buffer_store_dword v3, v1, s[32:35], 0 offen sc1
    s_mov_b64 exec, -1
P1_EX_WAITRDY:
P1_EX_A:
    s_lshl_b32 s23, s2, 2
    s_add_u32 s23, s23, s61
    s_mov_b32 s40, 0
P1_TBL:
    s_lshr_b32 s24, s23, 5
    s_and_b32 s25, s23, 31
    s_and_b32 s26, s24, 1
    s_lshr_b32 s27, s24, 1
    s_lshl_b32 s27, s27, 6
    s_add_u32 s27, s27, s26
    v_lshl_add_u32 v{T0}, v38, 1, s27
    s_lshl_b32 s25, s25, 4
    v_lshl_add_u32 v{T0+1}, v37, 3, s25
    v_mul_u32_u24 v{T0+1}, v{T0}, v{T0+1}
    v_and_b32 v{T0+1}, 0x7ff, v{T0+1}
    v_cvt_f32_u32 v{T0}, v{T0}
    v_cvt_f32_u32 v{T0+1}, v{T0+1}
    v_mul_f32 v{T0}, 0x3a000000, v{T0}
    v_mul_f32 v0, 0x3a000000, v{T0+1}
    """)
    for u in range(1, 8): a(f"v_add_f32 v{u}, v{u-1}, v{T0}")
    for u in range(1, 8): a(f"v_fract_f32 v{u}, v{u}")
    for u in range(8): a(f"v_cos_f32 v{8+u}, v{u}")
    for u in range(8): a(f"v_sin_f32 v{16+u}, v{u}")
    for j in range(4): a(f"v_cvt_pk_bf16_f32 v{24+j}, v{8+2*j}, v{9+2*j}")
    for j in range(4): a(f"v_cvt_pk_bf16_f32 v{28+j}, v{16+2*j}, v{17+2*j}")
    NB0 = opt("tblbar", 2)
    a(f"""
    s_cmp_lg_u32 s40, 0
    s_cbranch_scc1 P1_TBL_ST
    """ + "s_barrier\n" * NB0 + f"""
    s_mov_b32 s40, 1
P1_TBL_ST:
    s_lshl_b32 s24, s23, 11
    s_add_u32 s24, s24, {TB_OFF}
    buffer_store_dwordx4 v[24:27], v39, s[28:31], s24 offen sc1
    buffer_store_dwordx4 v[28:31], v39, s[28:31], s24 offen offset:1024 sc1
    s_add_u32 s23, s23, 1024
    s_cmp_lt_u32 s23, 1056
    s_cbranch_scc1 P1_TBL
    """)
    nb = NB0
    tl = opt("tlb", 0)
    if tl:
        n_ws = (WS_USED + (1 << tl) - 1) >> tl
        a(f"{srd(44, OUT_P, 2621440)}\nv_lshlrev_b32 v40, {tl}, v36\ns_lshl_b32 s23, s61, {tl+6}")
        for i in range((n_ws + 255) // 256):
            a(f"buffer_load_dword v41, v40, s[28:31], s23 offen sc1\ns_add_u32 s23, s23, {256 << tl}")
        a(f"s_lshl_b32 s23, s61, {tl+6}\nbuffer_load_dword v41, v40, s[44:47], s23 offen sc1")
        a(f"{srd(44, WO_P, 819200)}\nbuffer_load_dword v41, v40, s[44:47], s23 offen sc1")
    if opt("pretouch", 0):
        a(f"""
        s_lshl_b32 s23, s21, 2
        s_add_u32 s23, s23, s61
        s_mul_i32 s26, s20, {8*HS}
        s_mul_i32 s27, s23, 2560
        s_add_u32 s26, s26, s27
        s_cmp_eq_u32 s22, 0
        s_cselect_b32 s27, {Q_OFF}, {KV_OFF}
        s_add_u32 s26, s26, s27
        s_cmp_eq_u32 s22, 2
        s_cselect_b32 s27, 1280, 0
        s_add_u32 s26, s26, s27
        s_cmp_eq_u32 s22, 3
        s_cselect_b32 s26, 0x40000000, s26
        v_lshrrev_b32 v40, 4, v36
        s_mov_b32 s27, {HS}
        v_mul_lo_u32 v40, v40, s27
        v_and_b32 v41, 15, v36
        v_lshl_add_u32 v40, v41, 4, v40
        """)
        for hd in range(8):
            if hd % 2 == 0: a("s_barrier"); nb += 1
            if hd % 4 == 0: a(f"buffer_store_dwordx4 v[24:27], v40, s[28:31], s26 offen offset:1024 sc1")
            a(f"buffer_store_dwordx4 v[24:27], v39, s[28:31], s26 offen sc1\ns_add_u32 s26, s26, {HS}")
    a("s_barrier\n" * (9 - nb))
    u = a.uid()
    a(f"""
    s_cmp_lg_u32 s61, 0
    s_cbranch_scc1 P1_EX_B
    v_mov_b32 v1, 0
    s_mov_b32 s60, 0
L_RDY{u}:
    buffer_load_dword v2, v1, s[32:35], 0 offen sc1
    s_waitcnt vmcnt(0)
    v_cmp_ne_u32 vcc, 0, v2
    s_cbranch_vccnz P1_EX_B
    s_sleep 1
    s_add_u32 s60, s60, 1
    s_cmp_lt_u32 s60, 0x40000
    s_cbranch_scc1 L_RDY{u}
P1_EX_B:
    s_waitcnt vmcnt(0)
    s_barrier
    v_mov_b32 v0, v36
    """)

def attention(a):
    O = [0, 16]; S = [32, 48]; P = 64
    Q1 = [72, 76]; Q2 = [80, 82]; K2 = 84; K1 = 88; V1 = 92; V2 = [96, 100]
    AK1, AK2, AV, L31, H5, OA1, OA2, T = 104, 105, 106, 107, 108, 109, 110, 112
    a(f"""
ATT:
    s_lshr_b32 s19, s18, 3
    s_lshl_b32 s23, s17, 2
    s_add_u32 s19, s19, s23
    s_and_b32 s62, s18, 7
    s_mul_i32 s21, s19, {HS}
    s_sub_u32 s61, s16, 4
    s_and_b32 s36, s61, 3
    s_lshr_b32 s37, s61, 2
    v_and_b32 v{L31}, 31, v0
    v_lshrrev_b32 v{H5}, 5, v0
    v_lshlrev_b32 v{AK1}, 4, v0
    v_lshrrev_b32 v{AK2}, 4, v{L31}
    v_lshl_add_u32 v{AK2}, v{AK2}, 1, v{H5}
    v_and_b32 v{AV}, 15, v0
    v_lshl_add_u32 v{AK2}, v{AV}, 2, v{AK2}
    v_lshlrev_b32 v{AK2}, 2, v{AK2}
    v_mul_u32_u24 v{AV}, 320, v{H5}
    v_lshl_add_u32 v{AV}, v{L31}, 4, v{AV}
    s_waitcnt vmcnt(0)
    {st(4)}
    s_barrier
    s_cmp_eq_u32 s16, 9
    s_cbranch_scc1 ATT_POLL
    s_cmp_lg_u32 s16, 8
    s_cbranch_scc1 ATT_NOSYNC
    s_lshl_b32 s23, s22, 2
    s_add_u32 s23, s23, s20
    s_lshl_b32 s23, s23, 7
    s_add_u32 s23, s23, {FLG_OFF}
    s_lshl_b32 s24, s17, 7
    s_add_u32 s24, s24, {FLG_OFF + 128*L_T}
    v_mov_b32 v{T}, s23
    v_mov_b32 v{T+1}, 1
    v_writelane_b32 v{T}, s24, 1
    s_mov_b64 exec, 3
    buffer_atomic_add v{T+1}, v{T}, s[28:31], 0 offen sc1
    s_mov_b64 exec, -1
    s_branch ATT_NOSYNC
ATT_POLL:
    s_lshr_b32 s23, s19, 3
    s_lshl_b32 s23, s23, 7
    s_add_u32 s23, s23, {FLG_OFF}
    v_lshlrev_b32 v{T+2}, 9, v0
    v_add_u32 v{T+2}, s23, v{T+2}
    """)
    poll(a, T + 2, T + 3, 7, 16)
    a(f"""
ATT_NOSYNC:
    s_lshl_b32 s38, s62, 3
    s_lshl_b32 s23, s36, 1
    s_add_u32 s38, s38, s23
    s_mul_i32 s23, s38, 2560
    s_add_u32 s23, s23, s21
    s_add_u32 s23, s23, {Q_OFF}
    s_add_u32 s38, s38, s37
    s_barrier
    {st(5)}
    buffer_load_dwordx4 {vr(Q1[0],4)}, v{AK1}, s[28:31], s23 offen sc1
    buffer_load_dword v{Q2[0]}, v{AK2}, s[28:31], s23 offen offset:1024 sc1
    buffer_load_dwordx4 {vr(Q1[1],4)}, v{AK1}, s[28:31], s23 offen offset:2560 sc1
    buffer_load_dword v{Q2[1]}, v{AK2}, s[28:31], s23 offen offset:3584 sc1
    s_mov_b32 s24, 0xfffff
    s_mov_b32 s25, 0xfffff
    v_mov_b32 v{Q2[0]+1}, 0
    v_mov_b32 v{Q2[1]+1}, 0
    v_mov_b32 v{K2+1}, 0x3f803f80
    v_and_b32 v{T}, 27, v{L31}
    v_cmp_eq_u32 vcc, 24, v{T}
    v_mov_b32 v{T}, 0
    s_mul_i32 s27, s38, 40960
    v_cndmask_b32 v{V1}, v{T}, v{K2+1}, vcc
    s_add_u32 s27, s27, {OF_OFF}
    v_bfe_u32 v{OA2}, v{L31}, 3, 1
    v_mul_u32_u24 v{OA2}, 20480, v{OA2}
    v_and_b32 v{T}, 7, v{L31}
    v_lshl_add_u32 v{OA2}, v{T}, 4, v{OA2}
    v_lshrrev_b32 v{T}, 4, v0
    v_lshl_add_u32 v{OA1}, v{T}, 7, v{OA2}
    s_lshl_b32 s32, s19, 9
    s_add_u32 s32, s32, s27
    s_lshl_b32 s33, s19, 7
    s_add_u32 s33, s33, s27
    s_add_u32 s33, s33, 16384
    """)
    for r in range(1, 12): a(f"v_mov_b32 v{V1+r}, v{V1}")
    for r in range(32): a(f"v_mov_b32 v{r}, 0")
    for r in range(4): a(f"v_mov_b32 v{P+4+r}, 0")
    def qk1(x): return f"v_mfma_f32_32x32x16_bf16 {vr(S[x],16)}, {vr(K1,4)}, {vr(Q1[x],4)}, 0"
    def qk2(x): return f"v_mfma_f32_32x32x8_bf16 {vr(S[x],16)}, {vr(K2,2)}, {vr(Q2[x],2)}, {vr(S[x],16)}"
    def pv(x, v, p): return f"v_mfma_f32_32x32x16_bf16 {vr(O[x],16)}, {vr(v,4)}, {vr(p,4)}, {vr(O[x],16)}"
    def rdk1(o): return f"ds_read_b128 {vr(K1,4)}, v{AK1} offset:{o}"
    def rdk2(o): return f"ds_read_b32 v{K2}, v{AK2} offset:{o+1024}"
    def rdv(o, v2): return f"s_mov_b64 exec, s[24:25]\nds_read_b128 {vr(V1,4)}, v{AV} offset:{o+1280}\nds_read_b128 {vr(v2,4)}, v{AV} offset:{o+1920}\ns_mov_b64 exec, -1"
    def maxtree(s, m, first):
        if first:
            a(f"v_max3_f32 v{m}, v{s}, v{s+1}, v{s+2}")
            for j in range(3, 15, 2): a(f"v_max3_f32 v{m}, v{s+j}, v{s+j+1}, v{m}")
            a(f"v_max_f32 v{m}, v{s+15}, v{m}")
        else:
            for j in range(0, 16, 2): a(f"v_max3_f32 v{m}, v{s+j}, v{s+j+1}, v{m}")
    def xhalf(m):
        a(f"v_mov_b32 v{m+1}, v{m}\ns_nop 1\nv_permlane32_swap_b32 v{m}, v{m+1}\ns_nop 0\nv_max_f32 v{m}, v{m}, v{m+1}")
    a(f"""
    s_mul_i32 s23, s37, 2560
    s_barrier
    {st(6)}
    {rdk1(0)}
    {rdk2(0)}
    v_add_u32 v{AK1}, s23, v{AK1}
    v_add_u32 v{AK2}, s23, v{AK2}
    v_add_u32 v{AV}, s23, v{AV}
    s_waitcnt vmcnt(0) lgkmcnt(0)
    {qk1(0)}
    {qk2(0)}
    {qk1(1)}
    {qk2(1)}
    {rdk1(0)}
    {rdk2(0)}
    {rdv(0, V2[0])}
    s_nop 3
    """)
    maxtree(S[0], T, True); maxtree(S[1], T + 2, True); xhalf(T); xhalf(T + 2)
    a(f"""
    v_mul_f32 v{T}, -0.5, v{T}
    v_mul_f32 v{T+2}, -0.5, v{T+2}
    v_cvt_pk_bf16_f32 v{Q2[0]+1}, v{T}, 0
    v_cvt_pk_bf16_f32 v{Q2[1]+1}, v{T+2}, 0
    s_waitcnt lgkmcnt(0)
    {qk1(0)}
    {qk2(0)}
    s_mov_b32 s26, 0
    s_setprio {opt("prio0", 0)}
    s_barrier
    {st(7)}
    s_nop 7
ATT_LOOP:
    """)
    def e(s, j): return f"v_exp_f32 v{s+j}, v{s+j}"
    def c(s, j): return f"v_cvt_pk_bf16_f32 v{P+j}, v{s+2*j}, v{s+2*j+1}"
    PL = opt("place", 0)
    for i in range(4):
        for x in (0, 1):
            cur = S[x]; y = 1 - x
            o = (i + 1) * 5120
            if PL == 1 and x == 0: a(rdv(o - 5120, V2[i % 2]))
            if x == 1: a("s_waitcnt lgkmcnt(0)")
            a(qk1(y))
            if PL == 0 and x == 0: a(rdk1(o))
            for q in range(4): a(e(cur, q))
            if PL == 1 and x == 0: a(rdk1(o))
            a(pv(y, V2[(i + 1) % 2] if x == 0 else V2[i % 2], P + 4))
            for q in range(4, 8): a(e(cur, q))
            a(c(cur, 0)); a(c(cur, 1))
            a(qk2(y))
            if PL == 0 and x == 0: a(rdk2(o))
            a(c(cur, 2)); a(c(cur, 3))
            for q in range(8, 12): a(e(cur, q))
            if PL == 1 and x == 0: a(rdk2(o))
            if x == 0: a("s_waitcnt lgkmcnt(2)")
            a(pv(x, V1, P))
            if PL == 0 and x == 1: a(rdv(o, V2[(i + 1) % 2]))
            for q in range(12, 16): a(e(cur, q))
            for q in range(4, 8): a(c(cur, q))
    a(f"""
    v_add_u32 v{AK1}, 0x5000, v{AK1}
    v_add_u32 v{AK2}, 0x5000, v{AK2}
    v_add_u32 v{AV}, 0x5000, v{AV}
    s_add_u32 s26, s26, 1
    s_bitcmp1_b32 0x26, s26
    s_cbranch_scc0 ATT_NOBAR
    s_barrier
ATT_NOBAR:
    """)
    if opt("prio0", 0):
        a(f"s_cmp_eq_u32 s26, {opt('pt1', 4)}\ns_cbranch_scc0 ATT_NP1\ns_setprio 1\nATT_NP1:\ns_cmp_eq_u32 s26, {opt('pt2', 7)}\ns_cbranch_scc0 ATT_NP2\ns_setprio 0\nATT_NP2:")
    XB = 102400
    a(f"""
    s_cmp_lt_u32 s26, 8
    s_cbranch_scc1 ATT_LOOP
    {pv(1, V2[1], P+4)}
    {st(8)}
    s_lshl_b32 s23, s61, 12
    s_xor_b32 s27, s23, 16384
    s_add_u32 s23, s23, {XB}
    s_add_u32 s27, s27, {XB}
    s_nop 0
    v_lshlrev_b32 v{T}, 4, v{L31}
    v_lshl_add_u32 v{T}, v{H5}, 9, v{T}
    v_add_u32 v{T+1}, s27, v{T}
    v_add_u32 v{T}, s23, v{T}
    s_waitcnt lgkmcnt(0)
    s_barrier
    s_cmp_eq_u32 s37, 0
    s_cbranch_scc1 ATT_X0
    """)
    for j in range(4): a(f"ds_write_b128 v{T}, {vr(O[0]+4*j,4)} offset:{1024*j}")
    a("s_nop 1")
    for r in range(13): a(f"v_mov_b32 v{O[0]+r}, v{O[1]+r}")
    for r in range(4): a(f"v_mov_b32 v{Q1[0]+r}, v{Q1[1]+r}")
    a(f"v_mov_b32 v{Q2[0]}, v{Q2[1]}\ns_branch ATT_X1\nATT_X0:")
    for j in range(4): a(f"ds_write_b128 v{T}, {vr(O[1]+4*j,4)} offset:{1024*j}")
    a("ATT_X1:\ns_waitcnt lgkmcnt(0)\ns_barrier")
    for j in range(4): a(f"ds_read_b128 {vr(S[0]+4*j,4)}, v{T+1} offset:{1024*j}")
    a("s_waitcnt lgkmcnt(0)")
    for r in range(13): a(f"v_add_f32 v{r}, v{r}, v{S[0]+r}")
    Oo = 0
    a(f"v_max3_f32 v{T}, |v{Oo}|, |v{Oo+1}|, |v{Oo+12}|")
    for j in range(2, 12, 2): a(f"v_max3_f32 v{T}, |v{Oo+j}|, |v{Oo+j+1}|, v{T}")
    a(f"v_add_f32 v{T+1}, v{Oo}, v{Oo+1}\nv_add_f32 v{T+2}, v{Oo+2}, v{Oo+3}")
    for j in range(4, 12, 2): a(f"v_add_f32 v{T+1}, v{Oo+j}, v{T+1}\nv_add_f32 v{T+2}, v{Oo+j+1}, v{T+2}")
    a(f"""
    v_add_f32 v{T+1}, v{T+1}, v{T+2}
    s_mov_b32 s27, 0x71800000
    v_cmp_gt_f32 vcc, s27, v{T}
    v_cmp_o_f32 s[40:41], v{T+1}, v{T+1}
    s_mov_b32 s27, 0x3e800000
    v_cmp_le_f32 s[42:43], s27, v{Oo+12}
    s_and_b64 vcc, vcc, s[40:41]
    s_and_b64 vcc, vcc, s[42:43]
    s_cmp_eq_u64 vcc, -1
    s_cbranch_scc0 ATT_FALLBACK
ATT_FINISH:
    v_rcp_f32 v{T}, v{Oo+12}
    s_nop 0
    """)
    for j in range(12): a(f"v_mul_f32 v{Oo+j}, v{Oo+j}, v{T}")
    for j in range(6): a(f"v_cvt_pk_bf16_f32 v{P+j}, v{Oo+2*j}, v{Oo+2*j+1}")
    a(f"""
    buffer_store_dwordx4 {vr(P,4)}, v{OA1}, s[28:31], s32 offen sc1
    s_nop 0
    v_permlane16_swap_b32 v{P+4}, v{P+6}
    v_permlane16_swap_b32 v{P+5}, v{P+7}
    s_mov_b64 exec, 0xffff
    buffer_store_dwordx4 {vr(P+4,4)}, v{OA2}, s[28:31], s33 offen sc1
    {st(9)}
    s_waitcnt vmcnt(0)
    s_barrier
    {fin()}
    """)
    def gk(): return f"buffer_load_dwordx4 {vr(K1,4)}, v{AK1}, s[28:31], s23 offen sc1\nbuffer_load_dword v{K2}, v{AK2}, s[28:31], s23 offen offset:1024 sc1"
    a(f"""
ATT_FALLBACK:
    s_mul_i32 s23, s37, 2560
    s_add_u32 s23, s23, {HS}
    v_mov_b32 v{Q2[0]+1}, 0
    v_mov_b32 v{T}, 0xff800000
    v_subrev_u32 v{AK1}, s23, v{AK1}
    v_subrev_u32 v{AK2}, s23, v{AK2}
    v_subrev_u32 v{AV}, s23, v{AV}
    s_add_u32 s23, s21, {KV_OFF}
    s_mov_b32 s26, 0
ATT_FB1:
    {gk()}
    s_add_u32 s23, s23, 2560
    s_waitcnt vmcnt(0)
    {qk1(0)}
    {qk2(0)}
    s_nop 15
    """)
    maxtree(S[0], T, False)
    a("s_add_u32 s26, s26, 1\ns_cmp_lt_u32 s26, 64\ns_cbranch_scc1 ATT_FB1")
    xhalf(T)
    a(f"s_add_u32 s23, s21, {KV_OFF}\ns_mov_b32 s26, 0")
    for r in range(16): a(f"v_mov_b32 v{r}, 0")
    a(f"""
ATT_FB2:
    {gk()}
    s_mov_b64 exec, s[24:25]
    buffer_load_dwordx4 {vr(V1,4)}, v{AV}, s[28:31], s23 offen offset:1280 sc1
    buffer_load_dwordx4 {vr(V2[0],4)}, v{AV}, s[28:31], s23 offen offset:1920 sc1
    s_mov_b64 exec, -1
    s_add_u32 s23, s23, 2560
    s_waitcnt vmcnt(0)
    {qk1(0)}
    {qk2(0)}
    s_nop 15
    """)
    for q in range(16): a(f"v_sub_f32 v{S[0]+q}, v{S[0]+q}, v{T}")
    for q in range(16): a(e(S[0], q))
    a("s_nop 0")
    for q in range(8): a(c(S[0], q))
    a(f"""
    s_nop 1
    {pv(0, V1, P)}
    {pv(0, V2[0], P+4)}
    s_add_u32 s26, s26, 1
    s_cmp_lt_u32 s26, 64
    s_cbranch_scc1 ATT_FB2
    s_nop 15
    s_branch ATT_FINISH
    """)

def helpers(a):
    a(f"""
HELPER:
    {st(2)}
    {srd(28, WS_P, WS_USED)}
    s_lshr_b32 s19, s18, 3
    s_lshl_b32 s23, s17, 2
    s_add_u32 s19, s19, s23
    s_and_b32 s62, s18, 7
    s_mul_i32 s21, s19, {HS}
    v_lshlrev_b32 v1, 4, v0
    s_lshl_b32 s22, s16, 10
    s_mul_i32 s23, s62, 20480
    s_add_u32 s23, s23, s22
    s_add_u32 s24, s21, {KV_OFF}
    s_mov_b32 s25, 0
    s_barrier
    s_barrier
    {st(3)}
H_DMA:
    s_mov_b32 m0, s22
    s_add_u32 s26, s23, s24
    buffer_load_dwordx4 v1, s[28:31], s26 offen sc1 lds
    s_add_u32 s22, s22, 4096
    s_add_u32 s23, s23, 4096
    s_sub_u32 s26, s23, {HS}
    s_cmp_ge_u32 s23, {HS}
    s_cselect_b32 s23, s26, s23
    s_add_u32 s25, s25, 1
    s_cmp_eq_u32 s25, 7
    s_cbranch_scc0 H_DMA_A
    s_waitcnt vmcnt(5)
    s_barrier
H_DMA_A:
    s_cmp_eq_u32 s25, {opt("dma0", 17)}
    s_cbranch_scc0 H_DMA_B
    s_waitcnt vmcnt({opt("dma0", 17) - 7})
    s_barrier
H_DMA_B:
    s_cmp_lt_u32 s25, 40
    s_cbranch_scc1 H_DMA
    s_waitcnt vmcnt(28)
    s_barrier
    s_waitcnt vmcnt(0)
    {st(4)}
    s_barrier
    v_mov_b32 v167, v0
    s_cmp_lt_u32 s16, 2
    s_cbranch_scc1 H_FNET
    s_cmp_eq_u32 s16, 3
    s_cbranch_scc0 H_MID
    """)
    a(f"""
    {srd(32, X_P, 2048*1280)}
    {srd(36, GATE_P, 1280)}
    v_lshrrev_b32 v2, 3, v0
    v_and_b32 v3, 7, v0
    v_lshlrev_b32 v3, 4, v3
    s_movk_i32 s22, 1280
    v_mad_u32_u24 v4, v2, s22, v3
    s_mul_i32 s23, s2, {8*1280}
    """)
    for j in range(10):
        a(f"buffer_load_dwordx4 {vr(24+8*j,4)}, v4, s[32:35], s23 offen offset:{128*j}")
        a(f"buffer_load_dwordx4 {vr(28+8*j,4)}, v3, s[36:39], 0 offen offset:{128*j}")
    a("v_mov_b32 v5, 0\nv_mov_b32 v6, 0\ns_waitcnt vmcnt(0)")
    for j in range(10):
        for q in range(4):
            a(f"v_dot2c_f32_bf16 v{5 + (q & 1)}, v{24+8*j+q}, v{28+8*j+q}")
    a(f"""
    s_nop 2
    v_add_f32 v5, v5, v6
    s_nop 1
    v_add_f32_dpp v5, v5, v5 quad_perm:[1,0,3,2] row_mask:0xf bank_mask:0xf
    s_nop 1
    v_add_f32_dpp v5, v5, v5 quad_perm:[2,3,0,1] row_mask:0xf bank_mask:0xf
    s_nop 1
    v_add_f32_dpp v5, v5, v5 row_half_mirror row_mask:0xf bank_mask:0xf
    v_mul_f32 v5, {f32bits(-math.log2(math.e)):#x}, v5
    v_exp_f32 v5, v5
    v_lshlrev_b32 v2, 2, v2
    v_add_f32 v5, 1.0, v5
    v_rcp_f32 v5, v5
    s_lshl_b32 s23, s2, 5
    s_add_u32 s23, s23, {G_OFF}
    buffer_store_dword v5, v2, s[28:31], s23 offen sc1
    s_branch H_MID
    """)
    C, SN, FB = 0, 16, 32
    a(f"""
H_FNET:
    s_lshl_b32 s22, s16, 5
    s_add_u32 s22, s22, s18
    s_cmp_lt_u32 s22, 44
    s_cbranch_scc1 H_FN_A
    s_sub_u32 s24, s22, 44
    s_lshl_b32 s24, s24, 3
    s_add_u32 s24, s24, s17
    s_cmp_ge_u32 s24, 11
    s_cbranch_scc1 H_MID
    s_mov_b32 s23, 32
    s_branch H_FN_B
H_FN_A:
    s_mul_i32 s23, s22, 5958
    s_lshr_b32 s23, s23, 16
    s_mul_i32 s24, s23, 11
    s_sub_u32 s24, s22, s24
    s_lshl_b32 s23, s23, 3
    s_add_u32 s23, s23, s17
H_FN_B:
    v_lshlrev_b32 v2, 7, v0
    v_add_u32 v2, {FLG_OFF + 128*L_T}, v2
    """)
    poll(a, 2, 3, 0xff, 32)
    a(f"""
    s_and_b32 s25, s23, 1
    s_add_u32 s26, s24, 10
    s_cmp_eq_u32 s24, 10
    s_cselect_b32 s26, 10, s26
    s_lshl_b32 s32, s23, 16
    s_add_u32 s32, s32, {TB_OFF}
    s_mul_i32 s27, s25, {FO_DELTA}
    s_add_u32 s27, s27, {FE_OFF}
    s_lshl_b32 s33, s24, 15
    s_add_u32 s33, s33, s27
    s_lshl_b32 s34, s26, 15
    s_add_u32 s34, s34, s27
    s_cmp_eq_u32 s25, 0
    s_cselect_b32 s35, s24, s26
    s_lshl_b32 s35, s35, 7
    s_add_u32 s35, s35, {X512_OFF}
    v_and_b32 v160, 31, v0
    v_lshrrev_b32 v161, 5, v0
    v_lshlrev_b32 v162, 2, v160
    v_mov_b32 v163, v1
    buffer_load_dword v164, v162, s[28:31], s35 offen sc1
    """)
    def fl(j):
        r = FB + 16 * j
        o2 = (j % 2) * 2048; o1 = (j % 4) * 1024
        s = f"""buffer_load_dwordx4 {vr(r,4)}, v163, s[28:31], s32 offen offset:{o2} sc1
        buffer_load_dwordx4 {vr(r+4,4)}, v163, s[28:31], s33 offen offset:{o1} sc1
        buffer_load_dwordx4 {vr(r+8,4)}, v163, s[28:31], s32 offen offset:{o2+1024} sc1
        buffer_load_dwordx4 {vr(r+12,4)}, v163, s[28:31], s34 offen offset:{o1} sc1
        """
        if j % 2 == 1: s += "s_add_u32 s32, s32, 4096\n"
        if j % 4 == 3: s += "s_add_u32 s33, s33, 4096\ns_add_u32 s34, s34, 4096\n"
        return s
    def fm(j):
        r = FB + 16 * j
        return f"""v_mfma_f32_32x32x16_bf16 {vr(C,16)}, {vr(r,4)}, {vr(r+4,4)}, {vr(C,16)}
        v_mfma_f32_32x32x16_bf16 {vr(SN,16)}, {vr(r+8,4)}, {vr(r+12,4)}, {vr(SN,16)}"""
    for j in range(8): a(fl(j))
    a(f"""
    s_waitcnt vmcnt(32)
    s_cmp_eq_u32 s25, 0
    s_cselect_b32 s36, 1.0, 0
    s_cselect_b32 s37, 0, 1.0
    v_mul_f32 v165, s36, v164
    v_mul_f32 v166, s37, v164
    """)
    for r in range(16):
        if r % 2 == 0: a(f"v_mov_b32 v{C+r}, v165\nv_mov_b32 v{SN+r}, v166")
        else: a(f"v_sub_f32 v{C+r}, 0, v165\nv_sub_f32 v{SN+r}, 0, v166")
    a("s_mov_b32 s38, 0\nH_FN_LOOP:")
    for j in range(8):
        a("s_waitcnt vmcnt(28)"); a(fm(j)); a(fl(j))
    a("s_add_u32 s38, s38, 1\ns_cmp_lt_u32 s38, 3\ns_cbranch_scc1 H_FN_LOOP")
    for j in range(8):
        a(f"s_waitcnt vmcnt({28-4*j})"); a(fm(j))
    a(f"""
    s_lshl_b32 s27, s24, 5
    v_add_u32 v32, s27, v160
    s_movk_i32 s27, 320
    v_cmp_eq_u32 s[44:45], 0, v32
    v_cmp_le_u32 s[46:47], s27, v32
    s_or_b64 s[44:45], s[44:45], s[46:47]
    v_mul_u32_u24 v33, {ZR}, v161
    v_lshl_add_u32 v33, v32, 4, v33
    s_mul_i32 s26, s23, {8*ZR}
    s_add_u32 s26, s26, {Y_OFF}
    s_nop 3
    """)
    for r in range(16): a(f"v_cndmask_b32 v{SN+r}, v{SN+r}, 0, s[44:45]")
    for r in range(16):
        a(f"v_add_f32 v{48+r}, v{C+r}, v{SN+r}\nv_sub_f32 v{C+r}, v{C+r}, v{SN+r}")
    for r in range(16): a(f"v_cvt_pk_bf16_f32 v{48+r}, v{48+r}, v{C+r}")
    for g in range(4):
        a(f"buffer_store_dwordx4 {vr(48+4*g,4)}, v33, s[28:31], s26 offen sc1\ns_add_u32 s26, s26, {2*ZR}")
    OFR = 0; ACC = 80; BF = 100; Y = 128; G = 148; VA = 149; VY = 150; BMM = 151; BMT = 152; VT = 153; VG = 154; VZ = 155; T = 156
    a(f"""
H_MID:
    v_mov_b32 v0, v167
    s_lshr_b32 s19, s17, 1
    s_lshl_b32 s19, s19, 3
    s_add_u32 s19, s19, s62
    s_and_b32 s20, s17, 1
    s_lshl_b32 s20, s20, 2
    s_lshr_b32 s63, s18, 3
    s_add_u32 s20, s20, s63
    {srd(32, WO_P, 640*1280)}
    {srd(36, OUT_P, 2621440)}
    s_mul_i32 s26, s20, 160
    s_mul_i32 s27, s16, {160*1280}
    s_add_u32 s27, s27, s26
    s_movk_i32 s23, {1280 - 160}
    """)
    for i in range(5):
        a(f"""
        v_add_u32 v{T}, {64*i}, v0
        v_mul_u32_u24 v{T+1}, 6554, v{T}
        v_lshrrev_b32 v{T+1}, 16, v{T+1}
        v_lshlrev_b32 v{T}, 4, v{T}
        v_mad_u32_u24 v{BF+i}, v{T+1}, s23, v{T}
        """)
    a(f"""
    v_lshlrev_b32 v{VA}, 4, v0
    s_lshl_b32 s21, s19, 2
    s_add_u32 s21, s21, s16
    s_lshr_b32 s22, s21, 1
    s_lshl_b32 s22, s22, 5
    s_and_b32 s24, s21, 1
    s_lshl_b32 s24, s24, 3
    s_add_u32 s22, s22, s24
    v_and_b32 v{T}, 7, v0
    v_bfe_u32 v{T+2}, v0, 3, 1
    v_lshrrev_b32 v{T+1}, 4, v0
    v_lshlrev_b32 v{VT}, 8, v{T+1}
    v_lshl_add_u32 v{VT}, v{T}, 4, v{VT}
    v_lshl_add_u32 v{VT}, v{T+2}, 3, v{VT}
    v_lshl_add_u32 v{T}, v{T+2}, 4, v{T}
    v_add_u32 v{T}, s22, v{T}
    v_mul_u32_u24 v{VY}, 1280, v{T}
    v_mul_u32_u24 v{T+2}, 40, v{T+1}
    v_add3_u32 v{VY}, v{VY}, v{T+2}, s26
    v_lshlrev_b32 v{VG}, 2, v{T}
    v_sub_u32 v{T+3}, 0x800, v{T}
    v_cmp_lt_u32 vcc, 0x400, v{T}
    v_min_u32 v{T}, v{T}, v{T+3}
    v_lshrrev_b32 v{T+3}, 6, v{T}
    v_and_b32 v{T+4}, 1, v{T}
    v_lshl_add_u32 v{T+3}, v{T+3}, 1, v{T+4}
    v_bfe_u32 v{T+4}, v{T}, 3, 3
    v_lshl_add_u32 v{T+3}, v{T+3}, 3, v{T+4}
    v_mul_u32_u24 v{VZ}, {ZR}, v{T+3}
    v_bfe_u32 v{T+4}, v{T}, 1, 2
    v_lshl_add_u32 v{VZ}, v{T+4}, 2, v{VZ}
    v_cndmask_b32 v{T+3}, 0, 2, vcc
    s_cmp_ge_u32 s20, 4
    s_cselect_b32 s24, 2, 0
    s_cselect_b32 s40, -16, 16
    s_cselect_b32 s41, {640*16}, 0
    v_xor_b32 v{T+3}, s24, v{T+3}
    v_add3_u32 v{VZ}, v{VZ}, v{T+3}, s41
    s_mul_i32 s41, s20, 80
    v_mul_u32_u24 v{T+3}, 20, v{T+1}
    v_add_u32 v{T+3}, s41, v{T+3}
    v_mul_lo_u32 v{T+3}, v{T+3}, s40
    v_add_u32 v{VZ}, v{VZ}, v{T+3}
    v_bfe_u32 v{T}, v0, 2, 2
    v_and_b32 v{T+3}, 3, v0
    v_mul_u32_u24 v{T+3}, 40, v{T+3}
    s_mul_i32 s24, s63, 25600
    v_add3_u32 v{T+2}, v{T+2}, v{T}, 16
    v_mul_u32_u24 v{T+2}, 160, v{T+2}
    v_add3_u32 v{BMT}, v{T+2}, v{T+3}, s24
    v_lshrrev_b32 v{T+2}, 1, v{T+1}
    v_mul_u32_u24 v{T+2}, 20, v{T+2}
    v_and_b32 v{T+1}, 1, v{T+1}
    v_lshl_add_u32 v{T+2}, v{T+1}, 2, v{T+2}
    v_add_u32 v{T+2}, v{T+2}, v{T}
    v_mul_u32_u24 v{T+2}, 160, v{T+2}
    v_add3_u32 v{BMM}, v{T+2}, v{T+3}, s24
    """)
    for r in range(20): a(f"v_mov_b32 v{ACC+r}, 0")
    a(f"""
    s_mul_i32 s22, s16, 25600
    s_waitcnt vmcnt(0)
    {st(5)}
    s_barrier
    {st(6)}
    s_cmp_lg_u32 s16, 3
    s_cbranch_scc1 H_NOSIG
    s_lshl_b32 s23, s17, 7
    s_add_u32 s23, s23, {FLG_OFF + 128*L_Y}
    v_mov_b32 v{T}, s23
    v_mov_b32 v{T+1}, 1
    s_mov_b64 exec, 1
    buffer_atomic_add v{T+1}, v{T}, s[28:31], 0 offen sc1
    s_mov_b64 exec, -1
H_NOSIG:
    s_mov_b32 s25, 0
H_WO:
    """)
    for i in range(5):
        a(f"s_add_u32 m0, s22, {1024*i}\ns_nop 0\nbuffer_load_dwordx4 v{BF+i}, s[32:35], s27 offen lds")
    a(f"""
    s_add_u32 s22, s22, 5120
    s_add_u32 s27, s27, {32*1280}
    s_add_u32 s25, s25, 1
    s_cmp_lt_u32 s25, 5
    s_cbranch_scc1 H_WO
    v_lshlrev_b32 v{T}, 7, v0
    v_add_u32 v{T}, {FLG_OFF + 128*L_Y}, v{T}
    """)
    poll(a, T, T + 1, 0xff, 32)
    a(f"s_mov_b32 s26, {Y_OFF}\ns_mov_b32 s27, {G_OFF}\nbuffer_load_dword v{G}, v{VG}, s[28:31], s27 offen sc1")
    for j in range(20):
        a(f"buffer_load_ushort v{Y+j}, v{VZ}, s[28:31], s26 offen sc1\nv_add_u32 v{VZ}, s40, v{VZ}")
    a(f"s_mul_i32 s22, s21, 20480\ns_add_u32 s22, s22, {OF_OFF}")
    tl = (24, 25, 46, 47)
    for g in range(4):
        a(f"""
        s_add_u32 s23, s63, {g}
        s_and_b32 s23, s23, 3
        s_lshl_b32 s{42+g}, s23, 12
        s_add_u32 s{42+g}, s{42+g}, s22
        s_lshl_b32 s{tl[g]}, s23, 10
        s_add_u32 s{tl[g]}, s{tl[g]}, s22
        s_add_u32 s{tl[g]}, s{tl[g]}, 16384
        """)
        if g: a(f"s_cmp_eq_u32 s23, 0\ns_cselect_b32 s{7+g}, {-3*25600 - 25600}, 0\ns_add_u32 s{7+g}, s{7+g}, 25600")
    a("s_waitcnt vmcnt(0)")
    for j in range(20): a(f"v_lshlrev_b32 v{Y+j}, 16, v{Y+j}")
    for j in range(20): a(f"v_mul_f32 v{Y+j}, v{Y+j}, v{G}")
    a(f"""
    v_sub_f32 v{G}, 1.0, v{G}
    {st(7)}
    s_barrier
    s_barrier
    """)
    NS = 7
    def rdb(n):
        sp, t = divmod(n, 5); d = BF + 4 * (n % NS); g, k = divmod(sp, 5)
        r = ""
        if k < 4:
            if k == 0 and t == 0 and g: r = f"v_add_u32 v{BMM}, s{7+g}, v{BMM}\n"
            b = BMM; o = k * 6400 + t * 8; dj = 1280
        else:
            if t == 0 and g: r = f"v_add_u32 v{BMT}, s{7+g}, v{BMT}\n"
            b = BMT; o = t * 8; dj = 3200
        return r + f"ds_read_b64_tr_b16 {vr(d,2)}, v{b} offset:{o}\nds_read_b64_tr_b16 {vr(d+2,2)}, v{b} offset:{o+dj}"
    for n in range(NS): a(rdb(n))
    a(f"""
    s_barrier
    {st(8)}
    s_cmp_eq_u32 s16, 0
    s_cbranch_scc1 H_POLL2
    s_cmp_lg_u32 s16, 1
    s_cbranch_scc1 H_NOSIG2
    s_lshl_b32 s23, s62, 7
    s_add_u32 s23, s23, {FLG_OFF + 128*L_O}
    v_mov_b32 v{T}, s23
    v_mov_b32 v{T+1}, 1
    s_mov_b64 exec, 1
    buffer_atomic_add v{T+1}, v{T}, s[28:31], 0 offen sc1
    s_mov_b64 exec, -1
    s_branch H_NOSIG2
H_POLL2:
    s_lshr_b32 s23, s19, 2
    s_lshl_b32 s23, s23, 7
    s_add_u32 s23, s23, {FLG_OFF + 128*L_O}
    v_mov_b32 v{T+2}, s23
    """)
    poll(a, T + 2, T + 3, 1, 32)
    a(f"H_NOSIG2:\ns_barrier\n{st(9)}")
    for g in range(4):
        for k in range(4):
            a(f"buffer_load_dwordx4 {vr(OFR+20*g+4*k,4)}, v{VA}, s[28:31], s{42+g} offen offset:{1024*k} sc1")
        a(f"buffer_load_dwordx2 {vr(OFR+20*g+16,2)}, v{VT}, s[28:31], s{tl[g]} offen sc1")
        a(f"buffer_load_dwordx2 {vr(OFR+20*g+18,2)}, v{VT}, s[28:31], s{tl[g]} offen offset:128 sc1")
    for n in range(100):
        sp, t = divmod(n, 5); g, k = divmod(sp, 5)
        w = min(2 * (NS - 1), 2 * (99 - n))
        done = 6 * g + (k + 1 if k < 4 else 6)
        a(f"s_waitcnt vmcnt({24-done}) lgkmcnt({w})" if t == 0 else f"s_waitcnt lgkmcnt({w})")
        a(f"v_mfma_f32_16x16x32_bf16 {vr(ACC+4*t,4)}, {vr(BF+4*(n%NS),4)}, {vr(OFR+4*sp,4)}, {vr(ACC+4*t,4)}")
        if n + NS < 100: a(rdb(n + NS))
    a(f"{st(10)}\ns_nop 4")
    for j in range(20): a(f"v_fmac_f32 v{Y+j}, v{ACC+j}, v{G}")
    for j in range(10): a(f"v_cvt_pk_bf16_f32 v{24+j}, v{Y+2*j}, v{Y+2*j+1}")
    fl_ = " sc1" if opt("outsc1", 0) else ""
    a(f"""
    buffer_store_dwordx4 v[24:27], v{VY}, s[36:39], 0 offen{fl_}
    buffer_store_dwordx4 v[28:31], v{VY}, s[36:39], 0 offen offset:16{fl_}
    buffer_store_dwordx2 v[32:33], v{VY}, s[36:39], 0 offen offset:32{fl_}
    """)

def main():
    a = A()
    top = open("cdna_kernels/" + NAME + ".s.ref").read().split("; Override launch")[0]
    top += "; @launch grid=(256,1,1) block=(768,1,1) lds=163840\n"
    a('.amdgcn_target "amdgcn-amd-amdhsa--gfx950"\n.text')
    d = gen(a)
    open(sys.argv[1], "w").write(top + a.text() + '.section .rodata,"a"\n.p2align 6\n' + d)
if __name__ == "__main__":
    main()
```

```python
import sys, math, struct

NAME = "gated_mix__spectral_fnet__softmax_full_mha__prompt"
HS = 163840
KV_OFF = 0
Q_OFF = 32 * HS
FE_OFF = 64 * HS
FO_DELTA = 655360
X512_OFF = FE_OFF + 2 * FO_DELTA
TB_OFF = X512_OFF + 4096
Y_OFF = TB_OFF + 33 * 65536
ZR = 5632
G_OFF = Y_OFF + 33 * 8 * ZR
OF_OFF = G_OFF + 8192
FLG_OFF = OF_OFF + 2621440
WS_USED = FLG_OFF + 8192
L_T, L_Y, L_O = 16, 24, 32

def f32bits(x): return struct.unpack("<I", struct.pack("<f", x))[0]
QSCALE = f32bits((20 ** -0.5) * math.log2(math.e))
OPT = dict(x.split("=") for x in sys.argv[2:])
def opt(k, d): return int(OPT.get(k, d))
STAMP = opt("stamp", 0)
STAMP_OFF = 1 << 25
NST = 16

class A:
    def __init__(self): self.l = []; self.n = 0
    def __call__(self, s):
        for line in s.split("\n"):
            t = line.strip()
            if not t: continue
            self.l.append(t if t.endswith(":") or t.startswith(".") else "    " + t)
    def uid(self): self.n += 1; return self.n
    def text(self): return "\n".join(self.l) + "\n"

def vr(a, n): return f"v[{a}:{a+n-1}]" if n > 1 else f"v{a}"
def srd(lo, base, size):
    return f"s_mov_b32 s{lo}, s{base}\ns_mov_b32 s{lo+1}, s{base+1}\ns_mov_b32 s{lo+2}, {size}\ns_mov_b32 s{lo+3}, 0x20000"
def st(i):
    if not STAMP: return ""
    return f"{'s_memrealtime' if STAMP in (1, 3, 4) else 's_memtime'} s[{64+2*i}:{65+2*i}]"
def fin(): return "s_branch L_DONE" if STAMP else "s_endpgm"

X_P, WD_P, WQKV_P, WO_P, GATE_P, OUT_P, DBG_P, WS_P = 4, 8, 48, 50, 52, 54, 56, 58

def poll(a, vaddr, vdat, mask, target, sreg=60):
    u = a.uid()
    a(f"""
    s_mov_b64 exec, {mask}
    s_mov_b32 s{sreg}, 0
L_POLL{u}:
    buffer_load_dword v{vdat}, v{vaddr}, s[28:31], 0 offen sc1
    s_waitcnt vmcnt(0)
    v_cmp_gt_u32 vcc, {target}, v{vdat}
    s_cbranch_vccz L_POLLD{u}
    {'s_sleep 1' if opt('psleep', 0) else ''}
    s_add_u32 s{sreg}, s{sreg}, 1
    s_cmp_lt_u32 s{sreg}, 0x40000
    s_cbranch_scc1 L_POLL{u}
L_POLLD{u}:
    s_mov_b64 exec, -1
    """)

def gen(a):
    label = NAME + "_kernel"
    a(f".p2align 8\n.globl {label}\n.type {label},@function\n{label}:")
    a(f"""
    s_cmp_ge_u32 s2, 256
    s_cbranch_scc1 L_END
    s_load_dwordx2 s[4:5], s[0:1], 0
    s_load_dwordx8 s[48:55], s[0:1], 48
    s_load_dwordx4 s[8:11], s[0:1], 24
    s_load_dwordx4 s[56:59], s[0:1], 80
    """)
    if STAMP:
        a("\n".join(f"s_mov_b32 s{64+j}, 0" for j in range(2, 2 * NST)) + "\n" + st(0))
    a(f"""
    v_lshrrev_b32 v1, 6, v0
    v_and_b32 v0, 63, v0
    s_and_b32 s17, s2, 7
    v_readfirstlane_b32 s16, v1
    s_lshr_b32 s18, s2, 3
    s_and_b32 s19, s18, 7
    s_lshr_b32 s20, s18, 3
    s_and_b32 s21, s17, 1
    s_lshl_b32 s21, s21, 3
    s_add_u32 s21, s21, s19
    s_lshr_b32 s22, s17, 1
    s_cmp_ge_u32 s16, 4
    s_cbranch_scc1 P1_NOTLOADER
    """)
    p1_loader(a)
    a(f"""
P1_NOTLOADER:
    s_cmp_ge_u32 s16, 8
    s_cbranch_scc1 P1_EXTRA
    """)
    p1_compute(a)
    p1_extra(a)
    attention(a)
    helpers(a)
    a("L_DONE:")
    if STAMP == 4:
        i_, j_ = opt("ai", 0), opt("aj", 0)
        a(f"""s_waitcnt vmcnt(0)
        {st(NST-1)}
        s_waitcnt lgkmcnt(0)
        s_cmp_lg_u32 s16, 0
        s_cbranch_scc1 L_END
        s_and_b32 s60, s2, 31
        s_cmp_lg_u32 s60, 5
        s_cbranch_scc1 L_END
        s_sub_u32 s60, s{64+2*j_}, s{64+2*i_}
        s_lshl_b32 s60, s60, 2
        s_min_u32 s60, s60, 100000
L_AMP:
        s_memrealtime s[44:45]
        s_waitcnt lgkmcnt(0)
        s_sub_u32 s44, s44, s{64+2*(NST-1)}
        s_cmp_lt_u32 s44, s60
        s_cbranch_scc1 L_AMP
        """)
    elif STAMP == 3:
        r = f"s_waitcnt vmcnt(0)\n{st(NST-1)}\ns_mov_b64 exec, 1\n{srd(44, DBG_P, 256)}\ns_waitcnt lgkmcnt(0)\nv_mov_b32 v16, 0\n"
        r += "s_not_b32 s60, s64\nv_mov_b32 v0, s60\nbuffer_atomic_umax v0, v16, s[44:47], 0 offen offset:4 sc1\n"
        r += "s_cmp_eq_u32 s16, 0\ns_cbranch_scc1 L_D0\ns_cmp_eq_u32 s16, 4\ns_cbranch_scc0 L_END\n"
        for n, i in enumerate((2, 3, 4, 5, 7, 8, 9)): r += f"v_mov_b32 v{n+1}, s{64+2*i}\nbuffer_atomic_umax v{n+1}, v16, s[44:47], 0 offen offset:{8+4*n} sc1\n"
        r += "s_endpgm\nL_D0:\n"
        for n, i in enumerate((0, 1, 6, 8, 9, 10, 15)): r += f"v_mov_b32 v{n+1}, s{64+2*i}\nbuffer_atomic_umax v{n+1}, v16, s[44:47], 0 offen offset:{36+4*n} sc1\n"
        a(r)
    elif STAMP:
        r = f"s_waitcnt vmcnt(0)\n{st(NST-1)}\ns_mov_b64 exec, 1\ns_add_u32 s44, s{WS_P}, {STAMP_OFF}\ns_addc_u32 s45, s{WS_P+1}, 0\ns_mov_b32 s46, 262144\ns_mov_b32 s47, 0x20000\n"
        r += "s_lshl_b32 s60, s2, 4\ns_add_u32 s60, s60, s16\ns_lshl_b32 s60, s60, 6\ns_waitcnt lgkmcnt(0)\nv_mov_b32 v16, 0\n"
        for i in range(NST): r += f"v_mov_b32 v{i}, s{64+2*i}\n"
        for i in range(4): r += f"buffer_store_dwordx4 v[{4*i}:{4*i+3}], v16, s[44:47], s60 offen offset:{16*i}\n"
        a(r)
    a("L_END:\ns_endpgm")
    return f""".amdhsa_kernel {label}
  .amdhsa_next_free_vgpr 168
  .amdhsa_next_free_sgpr {100 if STAMP else 64}
  .amdhsa_accum_offset 168
  .amdhsa_group_segment_fixed_size 0
  .amdhsa_kernarg_size 96
  .amdhsa_user_sgpr_count 2
  .amdhsa_user_sgpr_kernarg_segment_ptr 1
  .amdhsa_system_sgpr_workgroup_id_x 1
.end_amdhsa_kernel
"""

def p1_loader(a):
    a(f"""
    s_setprio 3
    v_lshrrev_b32 v2, 3, v0
    v_and_b32 v3, 7, v0
    v_lshrrev_b32 v4, 4, v0
    v_xor_b32 v3, v3, v4
    v_lshlrev_b32 v3, 4, v3
    v_xor_b32 v4, 64, v3
    s_cmp_eq_u32 s22, 3
    s_cbranch_scc1 P1_LD_DFT
    s_lshl_b32 s23, s21, 7
    s_lshl_b32 s24, s16, 5
    s_add_u32 s23, s23, s24
    v_add_u32 v5, s23, v2
    v_add_u32 v6, 8, v5
    v_add_u32 v7, 16, v5
    v_add_u32 v8, 24, v5
    s_movk_i32 s25, 3840
    s_lshl_b32 s26, s22, 2
    s_add_u32 s26, s26, s20
    s_mul_i32 s26, s26, 320
    s_branch P1_LD_JOIN
P1_LD_DFT:
    s_lshl_b32 s23, s21, 5
    s_lshl_b32 s24, s16, 3
    s_add_u32 s23, s23, s24
    v_add_u32 v5, s23, v2
    v_sub_u32 v6, 0x800, v5
    v_sub_u32 v7, 0x400, v5
    v_add_u32 v8, 0x400, v5
    v_cmp_eq_u32 vcc, 0, v5
    v_mov_b32 v9, 0x200
    v_mov_b32 v10, 0x600
    v_cndmask_b32 v6, v6, v9, vcc
    v_cndmask_b32 v8, v8, v10, vcc
    s_movk_i32 s25, 1280
    s_and_b32 s26, s20, 1
    s_mul_i32 s26, s26, 320
P1_LD_JOIN:
    s_movk_i32 s27, 1280
    v_mad_u32_u24 v10, v5, s27, v3
    v_mad_u32_u24 v11, v6, s27, v4
    v_mad_u32_u24 v12, v7, s27, v3
    v_mad_u32_u24 v13, v8, s27, v4
    s_lshl_b32 s27, s16, 4
    s_mul_i32 s27, s27, s25
    s_add_u32 s26, s26, s27
    s_sub_u32 s27, s25, 320
    """)
    for i in range(5):
        a(f"""
        v_add_u32 v5, {64*i}, v0
        v_mul_u32_u24 v6, 3277, v5
        v_lshrrev_b32 v6, 16, v6
        v_lshl_add_u32 v5, v5, 4, s26
        v_mad_u32_u24 v{14+i}, v6, s27, v5
        """)
    sg = opt("stag1", 1)
    if sg == 1:
        a("s_lshl_b32 s36, s19, 3\ns_lshl_b32 s37, s20, 4\ns_add_u32 s36, s36, s37\ns_add_u32 s36, s36, s17\ns_and_b32 s36, s36, 63\ns_mul_i32 s36, s36, 10\ns_lshr_b32 s36, s36, 6")
    elif sg == 2:
        a("s_add_u32 s36, s19, s20\ns_lshl_b32 s36, s36, 4\ns_add_u32 s36, s36, s17\ns_add_u32 s36, s36, s17\ns_and_b32 s36, s36, 63\ns_mul_i32 s36, s36, 10\ns_lshr_b32 s36, s36, 6")
    elif sg == 3:
        a("s_add_u32 s36, s19, s20\ns_lshl_b32 s36, s36, 5\ns_lshl_b32 s37, s17, 2\ns_add_u32 s36, s36, s37\ns_and_b32 s36, s36, 63\ns_mul_i32 s36, s36, 10\ns_lshr_b32 s36, s36, 6")
    else:
        a("s_mov_b32 s36, 0")
    a(f"""
    s_lshl_b32 s38, s16, 12
    s_mul_i32 s39, s16, 5120
    s_add_u32 s39, s39, 0x10000
    s_mov_b32 s40, 0
    s_mul_i32 s34, s25, 640
    s_lshl_b32 s25, s25, 6
    s_mov_b32 s35, 0x20000
    s_waitcnt lgkmcnt(0)
    {srd(28, X_P, 2048*1280)}
    s_cmp_lt_u32 s20, 2
    s_cselect_b32 s32, s8, s10
    s_cselect_b32 s33, s9, s11
    s_cmp_eq_u32 s22, 3
    s_cselect_b32 s32, s32, s{WQKV_P}
    s_cselect_b32 s33, s33, s{WQKV_P+1}
    {st(1)}
P1_LD_LOOP:
    s_lshl_b32 s41, s36, 7
    s_mul_i32 s42, s36, s25
    s_and_b32 s43, s40, 3
    s_lshl_b32 s44, s43, 14
    s_add_u32 s44, s44, s38
    s_mul_i32 s45, s43, 20480
    s_add_u32 s45, s45, s39
    """)
    for i in range(4):
        a(f"s_add_u32 m0, s44, {1024*i}\ns_nop 0\nbuffer_load_dwordx4 v{10+i}, s[28:31], s41 offen lds")
    for i in range(5):
        a(f"s_add_u32 m0, s45, {1024*i}\ns_nop 0\nbuffer_load_dwordx4 v{14+i}, s[32:35], s42 offen lds")
    a(f"""
    s_add_u32 s36, s36, 1
    s_cmp_eq_u32 s36, 10
    s_cselect_b32 s36, 0, s36
    s_add_u32 s40, s40, 1
    s_cmp_eq_u32 s40, 1
    s_cbranch_scc1 P1_LD_LOOP
    s_waitcnt vmcnt(9)
    s_barrier
    s_cmp_lt_u32 s40, 10
    s_cbranch_scc1 P1_LD_LOOP
    s_waitcnt vmcnt(0)
    s_barrier
    s_branch HELPER
    """)

def p1_compute(a):
    ACC = 0; SA, SB = 80, 104
    L, H5, L31 = 128, 129, 130
    XA0, WA, CX, CW, PC, T0 = 131, 132, 133, 137, 138, 140
    a(f"""
    s_sub_u32 s61, s16, 4
    v_mov_b32 v{L}, v0
    v_lshrrev_b32 v{H5}, 5, v0
    v_and_b32 v{L31}, 31, v0
    v_lshrrev_b32 v{T0}, 1, v{L}
    v_and_b32 v{T0}, 7, v{T0}
    v_xor_b32 v{T0}, v{T0}, v{H5}
    v_lshlrev_b32 v{T0}, 4, v{T0}
    v_lshl_add_u32 v{T0}, v{L31}, 7, v{T0}
    s_lshl_b32 s23, s61, 12
    v_add_u32 v{XA0}, s23, v{T0}
    v_bfe_u32 v{T0}, v{L}, 2, 2
    v_lshl_add_u32 v{T0}, v{H5}, 3, v{T0}
    v_mul_u32_u24 v{T0}, 320, v{T0}
    v_and_b32 v{T0+1}, 3, v{L}
    v_lshlrev_b32 v{T0+1}, 3, v{T0+1}
    v_and_b32 v{T0+2}, 16, v{L}
    v_lshlrev_b32 v{T0+2}, 1, v{T0+2}
    v_add3_u32 v{WA}, v{T0}, v{T0+1}, v{T0+2}
    v_add_u32 v{WA}, 0x10000, v{WA}
    v_mov_b32 v{PC}, 0xbf803f80
    s_lshl_b32 s26, s22, 2
    s_add_u32 s26, s26, s20
    s_cmp_eq_u32 s26, 14
    s_cselect_b32 s24, 1, 0
    s_mov_b32 s25, s24
    s_mov_b32 s40, 0
    """)
    for r in range(80): a(f"v_mov_b32 v{ACC+r}, 0")
    for r in range(24): a(f"v_mov_b32 v{SB+r}, 0")
    a(f"s_waitcnt lgkmcnt(0)\n{srd(28, WS_P, WS_USED)}\n{st(1)}")
    a("s_cmp_ge_u32 s22, 2\ns_cbranch_scc1 P1_LOOP_V")

    def group(cur, nxt, step, qk):
        def mf(T):
            d = vr(ACC + 16 * T, 16); x = vr(cur, 4); w = vr(cur + 4 + 4 * T, 4)
            return f"v_mfma_f32_32x32x16_bf16 {d}, {w}, {x}, {d}" if qk else f"v_mfma_f32_32x32x16_bf16 {d}, {x}, {w}, {d}"
        def rw(T):
            if step is None: return ""
            o = step * 5120 + T * 64; d = nxt + 4 + 4 * T
            return f"ds_read_b64_tr_b16 {vr(d,2)}, v{CW} offset:{o}\nds_read_b64_tr_b16 {vr(d+2,2)}, v{CW} offset:{o+1280}"
        rd = step is not None
        a(f"s_waitcnt lgkmcnt(8)"); a(mf(1))
        if rd: a(f"ds_read_b128 {vr(nxt,4)}, v{CX+step}")
        a(rw(1))
        a(f"s_waitcnt lgkmcnt({9 if rd else 6})"); a(mf(2)); a(rw(2))
        a(f"s_waitcnt lgkmcnt({9 if rd else 4})"); a(mf(3)); a(rw(3))
        a(f"s_waitcnt lgkmcnt({7 if rd else 0})")
        if not qk:
            for j in range(4): a(f"v_cndmask_b32 v{cur+4+j}, v{cur+4+j}, v{PC}, s[24:25]")
        a(mf(4)); a(rw(4))
        if not rd: a("s_nop 0")
        a(mf(0)); a(rw(0))

    for qk, lab in ((True, "QK"), (False, "V")):
        a(f"""
P1_LOOP_{lab}:
        s_and_b32 s41, s40, 3
        s_lshl_b32 s42, s41, 14
        s_mul_i32 s43, s41, 20480
        v_add_u32 v{CX}, s42, v{XA0}
        v_add_u32 v{CW}, s43, v{WA}
        v_xor_b32 v{CX+1}, 32, v{CX}
        v_xor_b32 v{CX+2}, 64, v{CX}
        v_xor_b32 v{CX+3}, 0x60, v{CX}
        s_barrier
        """)
        if STAMP: a(f"s_cmp_lg_u32 s40, 0\ns_cbranch_scc1 P1_ST_{lab}\n{st(2)}\nP1_ST_{lab}:")
        group(SB, SA, 0, qk); group(SA, SB, 1, qk); group(SB, SA, 2, qk); group(SA, SB, 3, qk)
        a(f"s_add_u32 s40, s40, 1\ns_cmp_lt_u32 s40, 10\ns_cbranch_scc1 P1_LOOP_{lab}")
        group(SB, SA, None, qk)
        a(st(3))
        a("s_lshl_b32 s23, s21, 2\ns_add_u32 s23, s23, s61")
        if qk:
            a(f"""
            s_mul_i32 s26, s20, {8*HS}
            s_mul_i32 s27, s23, 2560
            s_add_u32 s26, s26, s27
            s_cmp_eq_u32 s22, 0
            s_cselect_b32 s27, {Q_OFF}, {KV_OFF}
            s_cselect_b32 s36, {QSCALE}, 1.0
            s_mov_b32 s37, s36
            s_add_u32 s26, s26, s27
            v_lshlrev_b32 v{T0}, 4, v{L}
            s_mov_b32 s27, {HS}
            v_bfe_u32 v{T0+1}, v{L}, 4, 1
            v_lshl_add_u32 v{T0+1}, v{T0+1}, 1, v{H5}
            v_mul_lo_u32 v{T0+1}, v{T0+1}, s27
            v_and_b32 v{T0+2}, 15, v{L}
            v_lshl_add_u32 v{T0+1}, v{T0+2}, 4, v{T0+1}
            """)
            for n_, p in enumerate((2, 3, 1, 0)):
                base = SA + (n_ % 2) * 8
                xk = SA + 16 + (n_ // 2) * 4 + (p % 2) * 2
                for gi, dst in ((0, base), (1, base + 2), (3, base + 4), (4, base + 6), (2, xk)):
                    r = ACC + 4 * (5 * p + gi)
                    a(f"v_pk_mul_f32 {vr(r,2)}, {vr(r,2)}, s[36:37]\nv_pk_mul_f32 {vr(r+2,2)}, {vr(r+2,2)}, s[36:37]")
                    a(f"v_cvt_pk_bf16_f32 v{dst}, v{r}, v{r+1}\nv_cvt_pk_bf16_f32 v{dst+1}, v{r+2}, v{r+3}")
                a(f"""
                s_add_u32 s38, s26, {2*p*HS}
                s_add_u32 s39, s26, {(2*p+1)*HS}
                buffer_store_dwordx4 {vr(base,4)}, v{T0}, s[28:31], s38 offen sc1
                buffer_store_dwordx4 {vr(base+4,4)}, v{T0}, s[28:31], s39 offen sc1
                """)
                if n_ % 2 == 1:
                    x4 = SA + 16 + (n_ // 2) * 4
                    a(f"""
                    v_permlane16_swap_b32 v{x4}, v{x4+2}
                    v_permlane16_swap_b32 v{x4+1}, v{x4+3}
                    s_add_u32 s38, s26, {(p // 2) * 4 * HS}
                    buffer_store_dwordx4 {vr(x4,4)}, v{T0+1}, s[28:31], s38 offen offset:1024 sc1
                    """)
            a("s_branch P1_DONE")
        else:
            a("s_cmp_eq_u32 s22, 3\ns_cbranch_scc1 P1_EPI_DFT")
            a(f"""
            s_mul_i32 s26, s20, {8*HS}
            s_mul_i32 s27, s23, 2560
            s_add_u32 s26, s26, s27
            s_add_u32 s26, s26, {KV_OFF + 1280}
            s_mov_b32 s27, {HS - 320}
            v_mul_u32_u24 v{T0+5}, 320, v{H5}
            """)
            for T in range(5):
                a(f"""
                v_add_u32 v{T0+6}, {32*T}, v{L31}
                v_mul_u32_u24 v{T0+7}, 3277, v{T0+6}
                v_lshrrev_b32 v{T0+7}, 16, v{T0+7}
                v_lshl_add_u32 v{T0+6}, v{T0+6}, 4, v{T0+5}
                v_mad_u32_u24 v{T0+T}, v{T0+7}, s27, v{T0+6}
                """)
            for T in (1, 2, 3, 4, 0):
                base = SA + (T % 3) * 8
                for j in range(8):
                    a(f"v_cvt_pk_bf16_f32 v{base+j}, v{ACC+16*T+2*j}, v{ACC+16*T+2*j+1}")
                a(f"buffer_store_dwordx4 {vr(base,4)}, v{T0+T}, s[28:31], s26 offen sc1")
                a(f"buffer_store_dwordx4 {vr(base+4,4)}, v{T0+T}, s[28:31], s26 offen offset:640 sc1")
            a("s_branch P1_DONE")
            TAU, TAU0, VD = T0, T0 + 1, T0 + 2
            a(f"""
P1_EPI_DFT:
            s_cmp_lt_u32 s20, 2
            s_cselect_b32 s36, 1.0, -1.0
            v_mov_b32 v{TAU}, s36
            v_cndmask_b32 v{TAU0}, v{TAU}, 1.0, s[24:25]
            s_mov_b32 s27, {FO_DELTA}
            v_mul_lo_u32 v{VD}, v{H5}, s27
            v_lshl_add_u32 v{VD}, v{L31}, 4, v{VD}
            s_mul_i32 s26, s20, {5*32768}
            s_lshl_b32 s27, s23, 9
            s_add_u32 s26, s26, s27
            s_add_u32 s26, s26, {FE_OFF}
            s_nop 1
            s_cmp_lg_u32 s23, 0
            s_cbranch_scc1 P1_EPI_DFT2
            s_mov_b32 exec_hi, 0
            s_mul_i32 s27, s20, 640
            s_add_u32 s27, s27, {X512_OFF}
            v_lshlrev_b32 v{T0+3}, 2, v{L31}
            """)
            for T in range(5):
                r = ACC + 16 * T
                a(f"v_fma_f32 v{SA+T}, v{r+12}, v{TAU0 if T == 0 else TAU}, v{r+4}")
                a(f"v_mov_b32 v{r+4}, 0\nv_mov_b32 v{r+12}, 0")
                a(f"buffer_store_dword v{SA+T}, v{T0+3}, s[28:31], s27 offen offset:{128*T} sc1")
            a("s_mov_b32 exec_hi, -1\nP1_EPI_DFT2:")
            for T in range(5):
                r = ACC + 16 * T; tau = TAU0 if T == 0 else TAU
                base = SB + (T % 3) * 4
                for q in range(4):
                    a(f"v_fma_f32 v{r+q}, v{r+4+q}, v{tau}, v{r+q}")
                    a(f"v_fma_f32 v{r+12+q}, v{r+8+q}, v{tau}, v{r+12+q}")
                for q in range(4):
                    a(f"v_add_f32 v{r+4+q}, v{r+q}, v{r+12+q}")
                    a(f"v_sub_f32 v{r+8+q}, v{r+q}, v{r+12+q}")
                a(f"v_cvt_pk_bf16_f32 v{base}, v{r+4}, v{r+5}\nv_cvt_pk_bf16_f32 v{base+1}, v{r+6}, v{r+7}")
                a(f"v_cvt_pk_bf16_f32 v{base+2}, v{r+8}, v{r+9}\nv_cvt_pk_bf16_f32 v{base+3}, v{r+10}, v{r+11}")
                a(f"""
                s_nop 1
                v_permlane32_swap_b32 v{base}, v{base+2}
                v_permlane32_swap_b32 v{base+1}, v{base+3}
                buffer_store_dwordx4 {vr(base,4)}, v{VD}, s[28:31], s26 offen sc1
                s_add_u32 s26, s26, 32768
                """)
    a(f"""
P1_DONE:
    v_mov_b32 v0, v{L}
    s_branch ATT
    """)

def p1_extra(a):
    T0 = 40
    a(f"""
P1_EXTRA:
    s_sub_u32 s61, s16, 8
    v_lshrrev_b32 v37, 5, v0
    v_and_b32 v38, 31, v0
    v_lshlrev_b32 v39, 4, v0
    v_mov_b32 v36, v0
    s_waitcnt lgkmcnt(0)
    {srd(28, WS_P, WS_USED)}
    {srd(32, DBG_P, 256)}
    s_cmp_lg_u32 s61, 0
    s_cbranch_scc1 P1_EX_A
    v_mov_b32 v1, 0
    s_cmp_lg_u32 s2, 0
    s_cbranch_scc1 P1_EX_WAITRDY
    v_lshlrev_b32 v2, 7, v0
    s_mov_b32 s23, {FLG_OFF}
    buffer_store_dword v1, v2, s[28:31], s23 offen sc1
    v_mov_b32 v3, 1
    s_waitcnt vmcnt(0)
    s_mov_b64 exec, 1
    buffer_store_dword v3, v1, s[32:35], 0 offen sc1
    s_mov_b64 exec, -1
P1_EX_WAITRDY:
P1_EX_A:
    s_lshl_b32 s23, s2, 2
    s_add_u32 s23, s23, s61
    s_mov_b32 s40, 0
P1_TBL:
    s_lshr_b32 s24, s23, 5
    s_and_b32 s25, s23, 31
    s_and_b32 s26, s24, 1
    s_lshr_b32 s27, s24, 1
    s_lshl_b32 s27, s27, 6
    s_add_u32 s27, s27, s26
    v_lshl_add_u32 v{T0}, v38, 1, s27
    s_lshl_b32 s25, s25, 4
    v_lshl_add_u32 v{T0+1}, v37, 3, s25
    v_mul_u32_u24 v{T0+1}, v{T0}, v{T0+1}
    v_and_b32 v{T0+1}, 0x7ff, v{T0+1}
    v_cvt_f32_u32 v{T0}, v{T0}
    v_cvt_f32_u32 v{T0+1}, v{T0+1}
    v_mul_f32 v{T0}, 0x3a000000, v{T0}
    v_mul_f32 v0, 0x3a000000, v{T0+1}
    """)
    for u in range(1, 8): a(f"v_add_f32 v{u}, v{u-1}, v{T0}")
    for u in range(1, 8): a(f"v_fract_f32 v{u}, v{u}")
    for u in range(8): a(f"v_cos_f32 v{8+u}, v{u}")
    for u in range(8): a(f"v_sin_f32 v{16+u}, v{u}")
    for j in range(4): a(f"v_cvt_pk_bf16_f32 v{24+j}, v{8+2*j}, v{9+2*j}")
    for j in range(4): a(f"v_cvt_pk_bf16_f32 v{28+j}, v{16+2*j}, v{17+2*j}")
    NB0 = opt("tblbar", 2)
    a(f"""
    s_cmp_lg_u32 s40, 0
    s_cbranch_scc1 P1_TBL_ST
    """ + "s_barrier\n" * NB0 + f"""
    s_mov_b32 s40, 1
P1_TBL_ST:
    s_lshl_b32 s24, s23, 11
    s_add_u32 s24, s24, {TB_OFF}
    buffer_store_dwordx4 v[24:27], v39, s[28:31], s24 offen sc1
    buffer_store_dwordx4 v[28:31], v39, s[28:31], s24 offen offset:1024 sc1
    s_add_u32 s23, s23, 1024
    s_cmp_lt_u32 s23, 1056
    s_cbranch_scc1 P1_TBL
    """)
    nb = NB0
    tl = opt("tlb", 0)
    if tl:
        n_ws = (WS_USED + (1 << tl) - 1) >> tl
        a(f"{srd(44, OUT_P, 2621440)}\nv_lshlrev_b32 v40, {tl}, v36\ns_lshl_b32 s23, s61, {tl+6}")
        for i in range((n_ws + 255) // 256):
            a(f"buffer_load_dword v41, v40, s[28:31], s23 offen sc1\ns_add_u32 s23, s23, {256 << tl}")
        a(f"s_lshl_b32 s23, s61, {tl+6}\nbuffer_load_dword v41, v40, s[44:47], s23 offen sc1")
        a(f"{srd(44, WO_P, 819200)}\nbuffer_load_dword v41, v40, s[44:47], s23 offen sc1")
    if opt("pretouch", 0):
        a(f"""
        s_lshl_b32 s23, s21, 2
        s_add_u32 s23, s23, s61
        s_mul_i32 s26, s20, {8*HS}
        s_mul_i32 s27, s23, 2560
        s_add_u32 s26, s26, s27
        s_cmp_eq_u32 s22, 0
        s_cselect_b32 s27, {Q_OFF}, {KV_OFF}
        s_add_u32 s26, s26, s27
        s_cmp_eq_u32 s22, 2
        s_cselect_b32 s27, 1280, 0
        s_add_u32 s26, s26, s27
        s_cmp_eq_u32 s22, 3
        s_cselect_b32 s26, 0x40000000, s26
        v_lshrrev_b32 v40, 4, v36
        s_mov_b32 s27, {HS}
        v_mul_lo_u32 v40, v40, s27
        v_and_b32 v41, 15, v36
        v_lshl_add_u32 v40, v41, 4, v40
        """)
        for hd in range(8):
            if hd % 2 == 0: a("s_barrier"); nb += 1
            if hd % 4 == 0: a(f"buffer_store_dwordx4 v[24:27], v40, s[28:31], s26 offen offset:1024 sc1")
            a(f"buffer_store_dwordx4 v[24:27], v39, s[28:31], s26 offen sc1\ns_add_u32 s26, s26, {HS}")
    a("s_barrier\n" * (9 - nb))
    u = a.uid()
    a(f"""
    s_cmp_lg_u32 s61, 0
    s_cbranch_scc1 P1_EX_B
    v_mov_b32 v1, 0
    s_mov_b32 s60, 0
L_RDY{u}:
    buffer_load_dword v2, v1, s[32:35], 0 offen sc1
    s_waitcnt vmcnt(0)
    v_cmp_ne_u32 vcc, 0, v2
    s_cbranch_vccnz P1_EX_B
    s_sleep 1
    s_add_u32 s60, s60, 1
    s_cmp_lt_u32 s60, 0x40000
    s_cbranch_scc1 L_RDY{u}
P1_EX_B:
    s_waitcnt vmcnt(0)
    s_barrier
    v_mov_b32 v0, v36
    """)

def attention(a):
    O = [0, 16]; S = [32, 48]; P = 64
    Q1 = [72, 76]; Q2 = [80, 82]; K2 = 84; K1 = 88; V1 = 92; V2 = [96, 100]
    AK1, AK2, AV, L31, H5, OA1, OA2, T = 104, 105, 106, 107, 108, 109, 110, 112
    a(f"""
ATT:
    s_lshr_b32 s19, s18, 3
    s_lshl_b32 s23, s17, 2
    s_add_u32 s19, s19, s23
    s_and_b32 s62, s18, 7
    s_mul_i32 s21, s19, {HS}
    s_sub_u32 s61, s16, 4
    s_and_b32 s36, s61, 3
    s_lshr_b32 s37, s61, 2
    v_and_b32 v{L31}, 31, v0
    v_lshrrev_b32 v{H5}, 5, v0
    v_lshlrev_b32 v{AK1}, 4, v0
    v_lshrrev_b32 v{AK2}, 4, v{L31}
    v_lshl_add_u32 v{AK2}, v{AK2}, 1, v{H5}
    v_and_b32 v{AV}, 15, v0
    v_lshl_add_u32 v{AK2}, v{AV}, 2, v{AK2}
    v_lshlrev_b32 v{AK2}, 2, v{AK2}
    v_mul_u32_u24 v{AV}, 320, v{H5}
    v_lshl_add_u32 v{AV}, v{L31}, 4, v{AV}
    s_waitcnt vmcnt(0)
    {st(4)}
    s_barrier
    s_cmp_eq_u32 s16, 9
    s_cbranch_scc1 ATT_POLL
    s_cmp_lg_u32 s16, 8
    s_cbranch_scc1 ATT_NOSYNC
    s_lshl_b32 s23, s22, 2
    s_add_u32 s23, s23, s20
    s_lshl_b32 s23, s23, 7
    s_add_u32 s23, s23, {FLG_OFF}
    s_lshl_b32 s24, s17, 7
    s_add_u32 s24, s24, {FLG_OFF + 128*L_T}
    v_mov_b32 v{T}, s23
    v_mov_b32 v{T+1}, 1
    v_writelane_b32 v{T}, s24, 1
    s_mov_b64 exec, 3
    buffer_atomic_add v{T+1}, v{T}, s[28:31], 0 offen sc1
    s_mov_b64 exec, -1
    s_branch ATT_NOSYNC
ATT_POLL:
    s_lshr_b32 s23, s19, 3
    s_lshl_b32 s23, s23, 7
    s_add_u32 s23, s23, {FLG_OFF}
    v_lshlrev_b32 v{T+2}, 9, v0
    v_add_u32 v{T+2}, s23, v{T+2}
    """)
    poll(a, T + 2, T + 3, 7, 16)
    a(f"""
ATT_NOSYNC:
    s_lshl_b32 s38, s62, 3
    s_lshl_b32 s23, s36, 1
    s_add_u32 s38, s38, s23
    s_mul_i32 s23, s38, 2560
    s_add_u32 s23, s23, s21
    s_add_u32 s23, s23, {Q_OFF}
    s_add_u32 s38, s38, s37
    s_barrier
    {st(5)}
    buffer_load_dwordx4 {vr(Q1[0],4)}, v{AK1}, s[28:31], s23 offen sc1
    buffer_load_dword v{Q2[0]}, v{AK2}, s[28:31], s23 offen offset:1024 sc1
    buffer_load_dwordx4 {vr(Q1[1],4)}, v{AK1}, s[28:31], s23 offen offset:2560 sc1
    buffer_load_dword v{Q2[1]}, v{AK2}, s[28:31], s23 offen offset:3584 sc1
    s_mov_b32 s24, 0xfffff
    s_mov_b32 s25, 0xfffff
    v_mov_b32 v{Q2[0]+1}, 0
    v_mov_b32 v{Q2[1]+1}, 0
    v_mov_b32 v{K2+1}, 0x3f803f80
    v_and_b32 v{T}, 27, v{L31}
    v_cmp_eq_u32 vcc, 24, v{T}
    v_mov_b32 v{T}, 0
    s_mul_i32 s27, s38, 40960
    v_cndmask_b32 v{V1}, v{T}, v{K2+1}, vcc
    s_add_u32 s27, s27, {OF_OFF}
    v_bfe_u32 v{OA2}, v{L31}, 3, 1
    v_mul_u32_u24 v{OA2}, 20480, v{OA2}
    v_and_b32 v{T}, 7, v{L31}
    v_lshl_add_u32 v{OA2}, v{T}, 4, v{OA2}
    v_lshrrev_b32 v{T}, 4, v0
    v_lshl_add_u32 v{OA1}, v{T}, 7, v{OA2}
    s_lshl_b32 s32, s19, 9
    s_add_u32 s32, s32, s27
    s_lshl_b32 s33, s19, 7
    s_add_u32 s33, s33, s27
    s_add_u32 s33, s33, 16384
    """)
    for r in range(1, 12): a(f"v_mov_b32 v{V1+r}, v{V1}")
    for r in range(32): a(f"v_mov_b32 v{r}, 0")
    for r in range(4): a(f"v_mov_b32 v{P+4+r}, 0")
    def qk1(x): return f"v_mfma_f32_32x32x16_bf16 {vr(S[x],16)}, {vr(K1,4)}, {vr(Q1[x],4)}, 0"
    def qk2(x): return f"v_mfma_f32_32x32x8_bf16 {vr(S[x],16)}, {vr(K2,2)}, {vr(Q2[x],2)}, {vr(S[x],16)}"
    def pv(x, v, p): return f"v_mfma_f32_32x32x16_bf16 {vr(O[x],16)}, {vr(v,4)}, {vr(p,4)}, {vr(O[x],16)}"
    def rdk1(o): return f"ds_read_b128 {vr(K1,4)}, v{AK1} offset:{o}"
    def rdk2(o): return f"ds_read_b32 v{K2}, v{AK2} offset:{o+1024}"
    def rdv(o, v2): return f"s_mov_b64 exec, s[24:25]\nds_read_b128 {vr(V1,4)}, v{AV} offset:{o+1280}\nds_read_b128 {vr(v2,4)}, v{AV} offset:{o+1920}\ns_mov_b64 exec, -1"
    def maxtree(s, m, first):
        if first:
            a(f"v_max3_f32 v{m}, v{s}, v{s+1}, v{s+2}")
            for j in range(3, 15, 2): a(f"v_max3_f32 v{m}, v{s+j}, v{s+j+1}, v{m}")
            a(f"v_max_f32 v{m}, v{s+15}, v{m}")
        else:
            for j in range(0, 16, 2): a(f"v_max3_f32 v{m}, v{s+j}, v{s+j+1}, v{m}")
    def xhalf(m):
        a(f"v_mov_b32 v{m+1}, v{m}\ns_nop 1\nv_permlane32_swap_b32 v{m}, v{m+1}\ns_nop 0\nv_max_f32 v{m}, v{m}, v{m+1}")
    a(f"""
    s_mul_i32 s23, s37, 2560
    s_barrier
    {st(6)}
    {rdk1(0)}
    {rdk2(0)}
    v_add_u32 v{AK1}, s23, v{AK1}
    v_add_u32 v{AK2}, s23, v{AK2}
    v_add_u32 v{AV}, s23, v{AV}
    s_waitcnt vmcnt(0) lgkmcnt(0)
    {qk1(0)}
    {qk2(0)}
    {qk1(1)}
    {qk2(1)}
    {rdk1(0)}
    {rdk2(0)}
    {rdv(0, V2[0])}
    s_nop 3
    """)
    maxtree(S[0], T, True); maxtree(S[1], T + 2, True); xhalf(T); xhalf(T + 2)
    a(f"""
    v_mul_f32 v{T}, -0.5, v{T}
    v_mul_f32 v{T+2}, -0.5, v{T+2}
    v_cvt_pk_bf16_f32 v{Q2[0]+1}, v{T}, 0
    v_cvt_pk_bf16_f32 v{Q2[1]+1}, v{T+2}, 0
    s_waitcnt lgkmcnt(0)
    {qk1(0)}
    {qk2(0)}
    s_mov_b32 s26, 0
    s_setprio {opt("prio0", 0)}
    s_barrier
    {st(7)}
    s_nop 7
ATT_LOOP:
    """)
    def e(s, j): return f"v_exp_f32 v{s+j}, v{s+j}"
    def c(s, j): return f"v_cvt_pk_bf16_f32 v{P+j}, v{s+2*j}, v{s+2*j+1}"
    PL = opt("place", 0)
    for i in range(4):
        for x in (0, 1):
            cur = S[x]; y = 1 - x
            o = (i + 1) * 5120
            if PL == 1 and x == 0: a(rdv(o - 5120, V2[i % 2]))
            if x == 1: a("s_waitcnt lgkmcnt(0)")
            a(qk1(y))
            if PL == 0 and x == 0: a(rdk1(o))
            for q in range(4): a(e(cur, q))
            if PL == 1 and x == 0: a(rdk1(o))
            a(pv(y, V2[(i + 1) % 2] if x == 0 else V2[i % 2], P + 4))
            for q in range(4, 8): a(e(cur, q))
            a(c(cur, 0)); a(c(cur, 1))
            a(qk2(y))
            if PL == 0 and x == 0: a(rdk2(o))
            a(c(cur, 2)); a(c(cur, 3))
            for q in range(8, 12): a(e(cur, q))
            if PL == 1 and x == 0: a(rdk2(o))
            if x == 0: a("s_waitcnt lgkmcnt(2)")
            a(pv(x, V1, P))
            if PL == 0 and x == 1: a(rdv(o, V2[(i + 1) % 2]))
            for q in range(12, 16): a(e(cur, q))
            for q in range(4, 8): a(c(cur, q))
    a(f"""
    v_add_u32 v{AK1}, 0x5000, v{AK1}
    v_add_u32 v{AK2}, 0x5000, v{AK2}
    v_add_u32 v{AV}, 0x5000, v{AV}
    s_add_u32 s26, s26, 1
    s_bitcmp1_b32 0x26, s26
    s_cbranch_scc0 ATT_NOBAR
    s_barrier
ATT_NOBAR:
    """)
    if opt("prio0", 0):
        a(f"s_cmp_eq_u32 s26, {opt('pt1', 4)}\ns_cbranch_scc0 ATT_NP1\ns_setprio 1\nATT_NP1:\ns_cmp_eq_u32 s26, {opt('pt2', 7)}\ns_cbranch_scc0 ATT_NP2\ns_setprio 0\nATT_NP2:")
    XB = 102400
    a(f"""
    s_cmp_lt_u32 s26, 8
    s_cbranch_scc1 ATT_LOOP
    {pv(1, V2[1], P+4)}
    {st(8)}
    s_lshl_b32 s23, s61, 12
    s_xor_b32 s27, s23, 16384
    s_add_u32 s23, s23, {XB}
    s_add_u32 s27, s27, {XB}
    s_nop 0
    v_lshlrev_b32 v{T}, 4, v{L31}
    v_lshl_add_u32 v{T}, v{H5}, 9, v{T}
    v_add_u32 v{T+1}, s27, v{T}
    v_add_u32 v{T}, s23, v{T}
    s_waitcnt lgkmcnt(0)
    s_barrier
    s_cmp_eq_u32 s37, 0
    s_cbranch_scc1 ATT_X0
    """)
    for j in range(4): a(f"ds_write_b128 v{T}, {vr(O[0]+4*j,4)} offset:{1024*j}")
    a("s_nop 1")
    for r in range(13): a(f"v_mov_b32 v{O[0]+r}, v{O[1]+r}")
    for r in range(4): a(f"v_mov_b32 v{Q1[0]+r}, v{Q1[1]+r}")
    a(f"v_mov_b32 v{Q2[0]}, v{Q2[1]}\ns_branch ATT_X1\nATT_X0:")
    for j in range(4): a(f"ds_write_b128 v{T}, {vr(O[1]+4*j,4)} offset:{1024*j}")
    a("ATT_X1:\ns_waitcnt lgkmcnt(0)\ns_barrier")
    for j in range(4): a(f"ds_read_b128 {vr(S[0]+4*j,4)}, v{T+1} offset:{1024*j}")
    a("s_waitcnt lgkmcnt(0)")
    for r in range(13): a(f"v_add_f32 v{r}, v{r}, v{S[0]+r}")
    Oo = 0
    a(f"v_max3_f32 v{T}, |v{Oo}|, |v{Oo+1}|, |v{Oo+12}|")
    for j in range(2, 12, 2): a(f"v_max3_f32 v{T}, |v{Oo+j}|, |v{Oo+j+1}|, v{T}")
    a(f"v_add_f32 v{T+1}, v{Oo}, v{Oo+1}\nv_add_f32 v{T+2}, v{Oo+2}, v{Oo+3}")
    for j in range(4, 12, 2): a(f"v_add_f32 v{T+1}, v{Oo+j}, v{T+1}\nv_add_f32 v{T+2}, v{Oo+j+1}, v{T+2}")
    a(f"""
    v_add_f32 v{T+1}, v{T+1}, v{T+2}
    s_mov_b32 s27, 0x71800000
    v_cmp_gt_f32 vcc, s27, v{T}
    v_cmp_o_f32 s[40:41], v{T+1}, v{T+1}
    s_mov_b32 s27, 0x3e800000
    v_cmp_le_f32 s[42:43], s27, v{Oo+12}
    s_and_b64 vcc, vcc, s[40:41]
    s_and_b64 vcc, vcc, s[42:43]
    s_cmp_eq_u64 vcc, -1
    s_cbranch_scc0 ATT_FALLBACK
ATT_FINISH:
    v_rcp_f32 v{T}, v{Oo+12}
    s_nop 0
    """)
    for j in range(12): a(f"v_mul_f32 v{Oo+j}, v{Oo+j}, v{T}")
    for j in range(6): a(f"v_cvt_pk_bf16_f32 v{P+j}, v{Oo+2*j}, v{Oo+2*j+1}")
    a(f"""
    buffer_store_dwordx4 {vr(P,4)}, v{OA1}, s[28:31], s32 offen sc1
    s_nop 0
    v_permlane16_swap_b32 v{P+4}, v{P+6}
    v_permlane16_swap_b32 v{P+5}, v{P+7}
    s_mov_b64 exec, 0xffff
    buffer_store_dwordx4 {vr(P+4,4)}, v{OA2}, s[28:31], s33 offen sc1
    {st(9)}
    s_waitcnt vmcnt(0)
    s_barrier
    {fin()}
    """)
    def gk(): return f"buffer_load_dwordx4 {vr(K1,4)}, v{AK1}, s[28:31], s23 offen sc1\nbuffer_load_dword v{K2}, v{AK2}, s[28:31], s23 offen offset:1024 sc1"
    a(f"""
ATT_FALLBACK:
    s_mul_i32 s23, s37, 2560
    s_add_u32 s23, s23, {HS}
    v_mov_b32 v{Q2[0]+1}, 0
    v_mov_b32 v{T}, 0xff800000
    v_subrev_u32 v{AK1}, s23, v{AK1}
    v_subrev_u32 v{AK2}, s23, v{AK2}
    v_subrev_u32 v{AV}, s23, v{AV}
    s_add_u32 s23, s21, {KV_OFF}
    s_mov_b32 s26, 0
ATT_FB1:
    {gk()}
    s_add_u32 s23, s23, 2560
    s_waitcnt vmcnt(0)
    {qk1(0)}
    {qk2(0)}
    s_nop 15
    """)
    maxtree(S[0], T, False)
    a("s_add_u32 s26, s26, 1\ns_cmp_lt_u32 s26, 64\ns_cbranch_scc1 ATT_FB1")
    xhalf(T)
    a(f"s_add_u32 s23, s21, {KV_OFF}\ns_mov_b32 s26, 0")
    for r in range(16): a(f"v_mov_b32 v{r}, 0")
    a(f"""
ATT_FB2:
    {gk()}
    s_mov_b64 exec, s[24:25]
    buffer_load_dwordx4 {vr(V1,4)}, v{AV}, s[28:31], s23 offen offset:1280 sc1
    buffer_load_dwordx4 {vr(V2[0],4)}, v{AV}, s[28:31], s23 offen offset:1920 sc1
    s_mov_b64 exec, -1
    s_add_u32 s23, s23, 2560
    s_waitcnt vmcnt(0)
    {qk1(0)}
    {qk2(0)}
    s_nop 15
    """)
    for q in range(16): a(f"v_sub_f32 v{S[0]+q}, v{S[0]+q}, v{T}")
    for q in range(16): a(e(S[0], q))
    a("s_nop 0")
    for q in range(8): a(c(S[0], q))
    a(f"""
    s_nop 1
    {pv(0, V1, P)}
    {pv(0, V2[0], P+4)}
    s_add_u32 s26, s26, 1
    s_cmp_lt_u32 s26, 64
    s_cbranch_scc1 ATT_FB2
    s_nop 15
    s_branch ATT_FINISH
    """)

def helpers(a):
    a(f"""
HELPER:
    {st(2)}
    {srd(28, WS_P, WS_USED)}
    s_lshr_b32 s19, s18, 3
    s_lshl_b32 s23, s17, 2
    s_add_u32 s19, s19, s23
    s_and_b32 s62, s18, 7
    s_mul_i32 s21, s19, {HS}
    v_lshlrev_b32 v1, 4, v0
    s_lshl_b32 s22, s16, 10
    s_mul_i32 s23, s62, 20480
    s_add_u32 s23, s23, s22
    s_add_u32 s24, s21, {KV_OFF}
    s_mov_b32 s25, 0
    s_barrier
    s_barrier
    {st(3)}
H_DMA:
    s_mov_b32 m0, s22
    s_add_u32 s26, s23, s24
    buffer_load_dwordx4 v1, s[28:31], s26 offen sc1 lds
    s_add_u32 s22, s22, 4096
    s_add_u32 s23, s23, 4096
    s_sub_u32 s26, s23, {HS}
    s_cmp_ge_u32 s23, {HS}
    s_cselect_b32 s23, s26, s23
    s_add_u32 s25, s25, 1
    s_cmp_eq_u32 s25, 7
    s_cbranch_scc0 H_DMA_A
    s_waitcnt vmcnt(5)
    s_barrier
H_DMA_A:
    s_cmp_eq_u32 s25, {opt("dma0", 17)}
    s_cbranch_scc0 H_DMA_B
    s_waitcnt vmcnt({opt("dma0", 17) - 7})
    s_barrier
H_DMA_B:
    s_cmp_lt_u32 s25, 40
    s_cbranch_scc1 H_DMA
    s_waitcnt vmcnt(28)
    s_barrier
    s_waitcnt vmcnt(0)
    {st(4)}
    s_barrier
    v_mov_b32 v167, v0
    s_cmp_lt_u32 s16, 2
    s_cbranch_scc1 H_FNET
    s_cmp_eq_u32 s16, 3
    s_cbranch_scc0 H_MID
    """)
    a(f"""
    {srd(32, X_P, 2048*1280)}
    {srd(36, GATE_P, 1280)}
    v_lshrrev_b32 v2, 3, v0
    v_and_b32 v3, 7, v0
    v_lshlrev_b32 v3, 4, v3
    s_movk_i32 s22, 1280
    v_mad_u32_u24 v4, v2, s22, v3
    s_mul_i32 s23, s2, {8*1280}
    """)
    for j in range(10):
        a(f"buffer_load_dwordx4 {vr(24+8*j,4)}, v4, s[32:35], s23 offen offset:{128*j}")
        a(f"buffer_load_dwordx4 {vr(28+8*j,4)}, v3, s[36:39], 0 offen offset:{128*j}")
    a("v_mov_b32 v5, 0\nv_mov_b32 v6, 0\ns_waitcnt vmcnt(0)")
    for j in range(10):
        for q in range(4):
            a(f"v_dot2c_f32_bf16 v{5 + (q & 1)}, v{24+8*j+q}, v{28+8*j+q}")
    a(f"""
    s_nop 2
    v_add_f32 v5, v5, v6
    s_nop 1
    v_add_f32_dpp v5, v5, v5 quad_perm:[1,0,3,2] row_mask:0xf bank_mask:0xf
    s_nop 1
    v_add_f32_dpp v5, v5, v5 quad_perm:[2,3,0,1] row_mask:0xf bank_mask:0xf
    s_nop 1
    v_add_f32_dpp v5, v5, v5 row_half_mirror row_mask:0xf bank_mask:0xf
    v_mul_f32 v5, {f32bits(-math.log2(math.e)):#x}, v5
    v_exp_f32 v5, v5
    v_lshlrev_b32 v2, 2, v2
    v_add_f32 v5, 1.0, v5
    v_rcp_f32 v5, v5
    s_lshl_b32 s23, s2, 5
    s_add_u32 s23, s23, {G_OFF}
    buffer_store_dword v5, v2, s[28:31], s23 offen sc1
    s_branch H_MID
    """)
    C, SN, FB = 0, 16, 32
    a(f"""
H_FNET:
    s_lshl_b32 s22, s16, 5
    s_add_u32 s22, s22, s18
    s_cmp_lt_u32 s22, 44
    s_cbranch_scc1 H_FN_A
    s_sub_u32 s24, s22, 44
    s_lshl_b32 s24, s24, 3
    s_add_u32 s24, s24, s17
    s_cmp_ge_u32 s24, 11
    s_cbranch_scc1 H_MID
    s_mov_b32 s23, 32
    s_branch H_FN_B
H_FN_A:
    s_mul_i32 s23, s22, 5958
    s_lshr_b32 s23, s23, 16
    s_mul_i32 s24, s23, 11
    s_sub_u32 s24, s22, s24
    s_lshl_b32 s23, s23, 3
    s_add_u32 s23, s23, s17
H_FN_B:
    v_lshlrev_b32 v2, 7, v0
    v_add_u32 v2, {FLG_OFF + 128*L_T}, v2
    """)
    poll(a, 2, 3, 0xff, 32)
    a(f"""
    s_and_b32 s25, s23, 1
    s_add_u32 s26, s24, 10
    s_cmp_eq_u32 s24, 10
    s_cselect_b32 s26, 10, s26
    s_lshl_b32 s32, s23, 16
    s_add_u32 s32, s32, {TB_OFF}
    s_mul_i32 s27, s25, {FO_DELTA}
    s_add_u32 s27, s27, {FE_OFF}
    s_lshl_b32 s33, s24, 15
    s_add_u32 s33, s33, s27
    s_lshl_b32 s34, s26, 15
    s_add_u32 s34, s34, s27
    s_cmp_eq_u32 s25, 0
    s_cselect_b32 s35, s24, s26
    s_lshl_b32 s35, s35, 7
    s_add_u32 s35, s35, {X512_OFF}
    v_and_b32 v160, 31, v0
    v_lshrrev_b32 v161, 5, v0
    v_lshlrev_b32 v162, 2, v160
    v_mov_b32 v163, v1
    buffer_load_dword v164, v162, s[28:31], s35 offen sc1
    """)
    def fl(j):
        r = FB + 16 * j
        o2 = (j % 2) * 2048; o1 = (j % 4) * 1024
        s = f"""buffer_load_dwordx4 {vr(r,4)}, v163, s[28:31], s32 offen offset:{o2} sc1
        buffer_load_dwordx4 {vr(r+4,4)}, v163, s[28:31], s33 offen offset:{o1} sc1
        buffer_load_dwordx4 {vr(r+8,4)}, v163, s[28:31], s32 offen offset:{o2+1024} sc1
        buffer_load_dwordx4 {vr(r+12,4)}, v163, s[28:31], s34 offen offset:{o1} sc1
        """
        if j % 2 == 1: s += "s_add_u32 s32, s32, 4096\n"
        if j % 4 == 3: s += "s_add_u32 s33, s33, 4096\ns_add_u32 s34, s34, 4096\n"
        return s
    def fm(j):
        r = FB + 16 * j
        return f"""v_mfma_f32_32x32x16_bf16 {vr(C,16)}, {vr(r,4)}, {vr(r+4,4)}, {vr(C,16)}
        v_mfma_f32_32x32x16_bf16 {vr(SN,16)}, {vr(r+8,4)}, {vr(r+12,4)}, {vr(SN,16)}"""
    for j in range(8): a(fl(j))
    a(f"""
    s_waitcnt vmcnt(32)
    s_cmp_eq_u32 s25, 0
    s_cselect_b32 s36, 1.0, 0
    s_cselect_b32 s37, 0, 1.0
    v_mul_f32 v165, s36, v164
    v_mul_f32 v166, s37, v164
    """)
    for r in range(16):
        if r % 2 == 0: a(f"v_mov_b32 v{C+r}, v165\nv_mov_b32 v{SN+r}, v166")
        else: a(f"v_sub_f32 v{C+r}, 0, v165\nv_sub_f32 v{SN+r}, 0, v166")
    a("s_mov_b32 s38, 0\nH_FN_LOOP:")
    for j in range(8):
        a("s_waitcnt vmcnt(28)"); a(fm(j)); a(fl(j))
    a("s_add_u32 s38, s38, 1\ns_cmp_lt_u32 s38, 3\ns_cbranch_scc1 H_FN_LOOP")
    for j in range(8):
        a(f"s_waitcnt vmcnt({28-4*j})"); a(fm(j))
    a(f"""
    s_lshl_b32 s27, s24, 5
    v_add_u32 v32, s27, v160
    s_movk_i32 s27, 320
    v_cmp_eq_u32 s[44:45], 0, v32
    v_cmp_le_u32 s[46:47], s27, v32
    s_or_b64 s[44:45], s[44:45], s[46:47]
    v_mul_u32_u24 v33, {ZR}, v161
    v_lshl_add_u32 v33, v32, 4, v33
    s_mul_i32 s26, s23, {8*ZR}
    s_add_u32 s26, s26, {Y_OFF}
    s_nop 3
    """)
    for r in range(16): a(f"v_cndmask_b32 v{SN+r}, v{SN+r}, 0, s[44:45]")
    for r in range(16):
        a(f"v_add_f32 v{48+r}, v{C+r}, v{SN+r}\nv_sub_f32 v{C+r}, v{C+r}, v{SN+r}")
    for r in range(16): a(f"v_cvt_pk_bf16_f32 v{48+r}, v{48+r}, v{C+r}")
    for g in range(4):
        a(f"buffer_store_dwordx4 {vr(48+4*g,4)}, v33, s[28:31], s26 offen sc1\ns_add_u32 s26, s26, {2*ZR}")
    OFR = 0; ACC = 80; BF = 100; Y = 128; G = 148; VA = 149; VY = 150; BMM = 151; BMT = 152; VT = 153; VG = 154; VZ = 155; T = 156
    a(f"""
H_MID:
    v_mov_b32 v0, v167
    s_lshr_b32 s19, s17, 1
    s_lshl_b32 s19, s19, 3
    s_add_u32 s19, s19, s62
    s_and_b32 s20, s17, 1
    s_lshl_b32 s20, s20, 2
    s_lshr_b32 s63, s18, 3
    s_add_u32 s20, s20, s63
    {srd(32, WO_P, 640*1280)}
    {srd(36, OUT_P, 2621440)}
    s_mul_i32 s26, s20, 160
    s_mul_i32 s27, s16, {160*1280}
    s_add_u32 s27, s27, s26
    s_movk_i32 s23, {1280 - 160}
    """)
    for i in range(5):
        a(f"""
        v_add_u32 v{T}, {64*i}, v0
        v_mul_u32_u24 v{T+1}, 6554, v{T}
        v_lshrrev_b32 v{T+1}, 16, v{T+1}
        v_lshlrev_b32 v{T}, 4, v{T}
        v_mad_u32_u24 v{BF+i}, v{T+1}, s23, v{T}
        """)
    a(f"""
    v_lshlrev_b32 v{VA}, 4, v0
    s_lshl_b32 s21, s19, 2
    s_add_u32 s21, s21, s16
    s_lshr_b32 s22, s21, 1
    s_lshl_b32 s22, s22, 5
    s_and_b32 s24, s21, 1
    s_lshl_b32 s24, s24, 3
    s_add_u32 s22, s22, s24
    v_and_b32 v{T}, 7, v0
    v_bfe_u32 v{T+2}, v0, 3, 1
    v_lshrrev_b32 v{T+1}, 4, v0
    v_lshlrev_b32 v{VT}, 8, v{T+1}
    v_lshl_add_u32 v{VT}, v{T}, 4, v{VT}
    v_lshl_add_u32 v{VT}, v{T+2}, 3, v{VT}
    v_lshl_add_u32 v{T}, v{T+2}, 4, v{T}
    v_add_u32 v{T}, s22, v{T}
    v_mul_u32_u24 v{VY}, 1280, v{T}
    v_mul_u32_u24 v{T+2}, 40, v{T+1}
    v_add3_u32 v{VY}, v{VY}, v{T+2}, s26
    v_lshlrev_b32 v{VG}, 2, v{T}
    v_sub_u32 v{T+3}, 0x800, v{T}
    v_cmp_lt_u32 vcc, 0x400, v{T}
    v_min_u32 v{T}, v{T}, v{T+3}
    v_lshrrev_b32 v{T+3}, 6, v{T}
    v_and_b32 v{T+4}, 1, v{T}
    v_lshl_add_u32 v{T+3}, v{T+3}, 1, v{T+4}
    v_bfe_u32 v{T+4}, v{T}, 3, 3
    v_lshl_add_u32 v{T+3}, v{T+3}, 3, v{T+4}
    v_mul_u32_u24 v{VZ}, {ZR}, v{T+3}
    v_bfe_u32 v{T+4}, v{T}, 1, 2
    v_lshl_add_u32 v{VZ}, v{T+4}, 2, v{VZ}
    v_cndmask_b32 v{T+3}, 0, 2, vcc
    s_cmp_ge_u32 s20, 4
    s_cselect_b32 s24, 2, 0
    s_cselect_b32 s40, -16, 16
    s_cselect_b32 s41, {640*16}, 0
    v_xor_b32 v{T+3}, s24, v{T+3}
    v_add3_u32 v{VZ}, v{VZ}, v{T+3}, s41
    s_mul_i32 s41, s20, 80
    v_mul_u32_u24 v{T+3}, 20, v{T+1}
    v_add_u32 v{T+3}, s41, v{T+3}
    v_mul_lo_u32 v{T+3}, v{T+3}, s40
    v_add_u32 v{VZ}, v{VZ}, v{T+3}
    v_bfe_u32 v{T}, v0, 2, 2
    v_and_b32 v{T+3}, 3, v0
    v_mul_u32_u24 v{T+3}, 40, v{T+3}
    s_mul_i32 s24, s63, 25600
    v_add3_u32 v{T+2}, v{T+2}, v{T}, 16
    v_mul_u32_u24 v{T+2}, 160, v{T+2}
    v_add3_u32 v{BMT}, v{T+2}, v{T+3}, s24
    v_lshrrev_b32 v{T+2}, 1, v{T+1}
    v_mul_u32_u24 v{T+2}, 20, v{T+2}
    v_and_b32 v{T+1}, 1, v{T+1}
    v_lshl_add_u32 v{T+2}, v{T+1}, 2, v{T+2}
    v_add_u32 v{T+2}, v{T+2}, v{T}
    v_mul_u32_u24 v{T+2}, 160, v{T+2}
    v_add3_u32 v{BMM}, v{T+2}, v{T+3}, s24
    """)
    for r in range(20): a(f"v_mov_b32 v{ACC+r}, 0")
    a(f"""
    s_mul_i32 s22, s16, 25600
    s_waitcnt vmcnt(0)
    {st(5)}
    s_barrier
    {st(6)}
    s_cmp_lg_u32 s16, 3
    s_cbranch_scc1 H_NOSIG
    s_lshl_b32 s23, s17, 7
    s_add_u32 s23, s23, {FLG_OFF + 128*L_Y}
    v_mov_b32 v{T}, s23
    v_mov_b32 v{T+1}, 1
    s_mov_b64 exec, 1
    buffer_atomic_add v{T+1}, v{T}, s[28:31], 0 offen sc1
    s_mov_b64 exec, -1
H_NOSIG:
    s_mov_b32 s25, 0
H_WO:
    """)
    for i in range(5):
        a(f"s_add_u32 m0, s22, {1024*i}\ns_nop 0\nbuffer_load_dwordx4 v{BF+i}, s[32:35], s27 offen lds")
    a(f"""
    s_add_u32 s22, s22, 5120
    s_add_u32 s27, s27, {32*1280}
    s_add_u32 s25, s25, 1
    s_cmp_lt_u32 s25, 5
    s_cbranch_scc1 H_WO
    v_lshlrev_b32 v{T}, 7, v0
    v_add_u32 v{T}, {FLG_OFF + 128*L_Y}, v{T}
    """)
    poll(a, T, T + 1, 0xff, 32)
    a(f"s_mov_b32 s26, {Y_OFF}\ns_mov_b32 s27, {G_OFF}\nbuffer_load_dword v{G}, v{VG}, s[28:31], s27 offen sc1")
    for j in range(20):
        a(f"buffer_load_ushort v{Y+j}, v{VZ}, s[28:31], s26 offen sc1\nv_add_u32 v{VZ}, s40, v{VZ}")
    a(f"s_mul_i32 s22, s21, 20480\ns_add_u32 s22, s22, {OF_OFF}")
    tl = (24, 25, 46, 47)
    for g in range(4):
        a(f"""
        s_add_u32 s23, s63, {g}
        s_and_b32 s23, s23, 3
        s_lshl_b32 s{42+g}, s23, 12
        s_add_u32 s{42+g}, s{42+g}, s22
        s_lshl_b32 s{tl[g]}, s23, 10
        s_add_u32 s{tl[g]}, s{tl[g]}, s22
        s_add_u32 s{tl[g]}, s{tl[g]}, 16384
        """)
        if g: a(f"s_cmp_eq_u32 s23, 0\ns_cselect_b32 s{7+g}, {-3*25600 - 25600}, 0\ns_add_u32 s{7+g}, s{7+g}, 25600")
    a("s_waitcnt vmcnt(0)")
    for j in range(20): a(f"v_lshlrev_b32 v{Y+j}, 16, v{Y+j}")
    for j in range(20): a(f"v_mul_f32 v{Y+j}, v{Y+j}, v{G}")
    a(f"""
    v_sub_f32 v{G}, 1.0, v{G}
    {st(7)}
    s_barrier
    s_barrier
    """)
    NS = 7
    def rdb(n):
        sp, t = divmod(n, 5); d = BF + 4 * (n % NS); g, k = divmod(sp, 5)
        r = ""
        if k < 4:
            if k == 0 and t == 0 and g: r = f"v_add_u32 v{BMM}, s{7+g}, v{BMM}\n"
            b = BMM; o = k * 6400 + t * 8; dj = 1280
        else:
            if t == 0 and g: r = f"v_add_u32 v{BMT}, s{7+g}, v{BMT}\n"
            b = BMT; o = t * 8; dj = 3200
        return r + f"ds_read_b64_tr_b16 {vr(d,2)}, v{b} offset:{o}\nds_read_b64_tr_b16 {vr(d+2,2)}, v{b} offset:{o+dj}"
    for n in range(NS): a(rdb(n))
    a(f"""
    s_barrier
    {st(8)}
    s_cmp_eq_u32 s16, 0
    s_cbranch_scc1 H_POLL2
    s_cmp_lg_u32 s16, 1
    s_cbranch_scc1 H_NOSIG2
    s_lshl_b32 s23, s62, 7
    s_add_u32 s23, s23, {FLG_OFF + 128*L_O}
    v_mov_b32 v{T}, s23
    v_mov_b32 v{T+1}, 1
    s_mov_b64 exec, 1
    buffer_atomic_add v{T+1}, v{T}, s[28:31], 0 offen sc1
    s_mov_b64 exec, -1
    s_branch H_NOSIG2
H_POLL2:
    s_lshr_b32 s23, s19, 2
    s_lshl_b32 s23, s23, 7
    s_add_u32 s23, s23, {FLG_OFF + 128*L_O}
    v_mov_b32 v{T+2}, s23
    """)
    poll(a, T + 2, T + 3, 1, 32)
    a(f"H_NOSIG2:\ns_barrier\n{st(9)}")
    for g in range(4):
        for k in range(4):
            a(f"buffer_load_dwordx4 {vr(OFR+20*g+4*k,4)}, v{VA}, s[28:31], s{42+g} offen offset:{1024*k} sc1")
        a(f"buffer_load_dwordx2 {vr(OFR+20*g+16,2)}, v{VT}, s[28:31], s{tl[g]} offen sc1")
        a(f"buffer_load_dwordx2 {vr(OFR+20*g+18,2)}, v{VT}, s[28:31], s{tl[g]} offen offset:128 sc1")
    for n in range(100):
        sp, t = divmod(n, 5); g, k = divmod(sp, 5)
        w = min(2 * (NS - 1), 2 * (99 - n))
        done = 6 * g + (k + 1 if k < 4 else 6)
        a(f"s_waitcnt vmcnt({24-done}) lgkmcnt({w})" if t == 0 else f"s_waitcnt lgkmcnt({w})")
        a(f"v_mfma_f32_16x16x32_bf16 {vr(ACC+4*t,4)}, {vr(BF+4*(n%NS),4)}, {vr(OFR+4*sp,4)}, {vr(ACC+4*t,4)}")
        if n + NS < 100: a(rdb(n + NS))
    a(f"{st(10)}\ns_nop 4")
    for j in range(20): a(f"v_fmac_f32 v{Y+j}, v{ACC+j}, v{G}")
    for j in range(10): a(f"v_cvt_pk_bf16_f32 v{24+j}, v{Y+2*j}, v{Y+2*j+1}")
    fl_ = " sc1" if opt("outsc1", 0) else ""
    a(f"""
    buffer_store_dwordx4 v[24:27], v{VY}, s[36:39], 0 offen{fl_}
    buffer_store_dwordx4 v[28:31], v{VY}, s[36:39], 0 offen offset:16{fl_}
    buffer_store_dwordx2 v[32:33], v{VY}, s[36:39], 0 offen offset:32{fl_}
    """)

def main():
    a = A()
    top = open("cdna_kernels/" + NAME + ".s.ref").read().split("; Override launch")[0]
    top += "; @launch grid=(256,1,1) block=(768,1,1) lds=163840\n"
    a('.amdgcn_target "amdgcn-amd-amdhsa--gfx950"\n.text')
    d = gen(a)
    open(sys.argv[1], "w").write(top + a.text() + '.section .rodata,"a"\n.p2align 6\n' + d)
if __name__ == "__main__":
    main()
```

```python
import sys, math, struct

NAME = "gated_mix__spectral_fnet__softmax_full_mha__prompt"
HS = 163840
KV_OFF = 0
Q_OFF = 32 * HS
FE_OFF = 64 * HS
FO_DELTA = 655360
X512_OFF = FE_OFF + 2 * FO_DELTA
TB_OFF = X512_OFF + 4096
Y_OFF = TB_OFF + 33 * 65536
ZP = 8704
G_OFF = Y_OFF + 85 * 2 * ZP
OF_OFF = G_OFF + 8192
FLG_OFF = OF_OFF + 2621440
WS_USED = FLG_OFF + 8192
XB = 102400
L_T, L_Y, L_O = 16, 24, 32

def f32bits(x): return struct.unpack("<I", struct.pack("<f", x))[0]
QSCALE = f32bits((20 ** -0.5) * math.log2(math.e))
OPT = dict(x.split("=") for x in sys.argv[2:])
def opt(k, d): return int(OPT.get(k, d))
STAMP = opt("stamp", 0)
STAMP_OFF = 1 << 25
NST = 16

class A:
    def __init__(self): self.l = []; self.n = 0
    def __call__(self, s):
        for line in s.split("\n"):
            t = line.strip()
            if not t: continue
            self.l.append(t if t.endswith(":") or t.startswith(".") else "    " + t)
    def uid(self): self.n += 1; return self.n
    def text(self): return "\n".join(self.l) + "\n"

def vr(a, n): return f"v[{a}:{a+n-1}]" if n > 1 else f"v{a}"
def srd(lo, base, size):
    return f"s_mov_b32 s{lo}, s{base}\ns_mov_b32 s{lo+1}, s{base+1}\ns_mov_b32 s{lo+2}, {size}\ns_mov_b32 s{lo+3}, 0x20000"
P1ST = opt("p1st", 0)
def st(i, p1=False):
    if not STAMP: return ""
    if P1ST and not p1 and 0 < i < 15 and i not in (4, 5): return ""
    if P1ST and not p1 and i in (4, 5): i += 8
    if p1 and not P1ST: return ""
    return f"{'s_memrealtime' if STAMP in (1, 3, 4) else 's_memtime'} s[{64+2*i}:{65+2*i}]"
def fin(): return "s_branch L_DONE" if STAMP else "s_endpgm"

X_P, WD_P, WQKV_P, WO_P, GATE_P, OUT_P, DBG_P, WS_P = 4, 8, 48, 50, 52, 54, 56, 58

def poll(a, vaddr, vdat, mask, target, sreg=60):
    u = a.uid()
    a(f"""
    s_mov_b64 exec, {mask}
    s_mov_b32 s{sreg}, 0
L_POLL{u}:
    buffer_load_dword v{vdat}, v{vaddr}, s[28:31], 0 offen sc1
    s_waitcnt vmcnt(0)
    v_cmp_gt_u32 vcc, {target}, v{vdat}
    s_cbranch_vccz L_POLLD{u}
    {'s_sleep 1' if opt('psleep', 0) else ''}
    s_add_u32 s{sreg}, s{sreg}, 1
    s_cmp_lt_u32 s{sreg}, 0x40000
    s_cbranch_scc1 L_POLL{u}
L_POLLD{u}:
    s_mov_b64 exec, -1
    """)

def gen(a):
    label = NAME + "_kernel"
    a(f".p2align 8\n.globl {label}\n.type {label},@function\n{label}:")
    a(f"""
    s_cmp_ge_u32 s2, 256
    s_cbranch_scc1 L_END
    s_load_dwordx2 s[4:5], s[0:1], 0
    s_load_dwordx8 s[48:55], s[0:1], 48
    s_load_dwordx4 s[8:11], s[0:1], 24
    s_load_dwordx4 s[56:59], s[0:1], 80
    """)
    if STAMP:
        a("\n".join(f"s_mov_b32 s{64+j}, 0" for j in range(2, 2 * NST)) + "\n" + st(0))
    a(f"""
    v_lshrrev_b32 v1, 6, v0
    v_and_b32 v0, 63, v0
    s_and_b32 s17, s2, 7
    v_readfirstlane_b32 s16, v1
    s_lshr_b32 s18, s2, 3
    s_and_b32 s19, s18, 7
    s_lshr_b32 s22, s18, 3
    s_and_b32 s21, s17, 1
    s_lshl_b32 s21, s21, 3
    s_add_u32 s21, s21, s19
    s_lshr_b32 s20, s17, 1
    s_cmp_ge_u32 s16, 4
    s_cbranch_scc1 P1_NOTLOADER
    """)
    p1_loader(a)
    a(f"""
P1_NOTLOADER:
    s_cmp_ge_u32 s16, 8
    s_cbranch_scc1 P1_EXTRA
    """)
    p1_compute(a)
    p1_extra(a)
    attention(a)
    helpers(a)
    a("L_DONE:")
    if STAMP == 4:
        i_, j_ = opt("ai", 0), opt("aj", 0)
        a(f"""s_waitcnt vmcnt(0)
        {st(NST-1)}
        s_waitcnt lgkmcnt(0)
        s_cmp_lg_u32 s16, 0
        s_cbranch_scc1 L_END
        s_and_b32 s60, s2, {opt("am", 31)}
        s_cmp_lg_u32 s60, {opt("av", 5)}
        s_cbranch_scc1 L_END
        s_sub_u32 s60, s{64+2*j_}, s{64+2*i_}
        s_lshl_b32 s60, s60, 2
        s_min_u32 s60, s60, 100000
        {f's_mov_b32 s60, {opt("fix", 0)}' if opt("fix", 0) else ''}
L_AMP:
        s_memrealtime s[44:45]
        s_waitcnt lgkmcnt(0)
        s_sub_u32 s44, s44, s{64 if opt("fix", 0) else 64+2*(NST-1)}
        s_cmp_lt_u32 s44, s60
        s_cbranch_scc1 L_AMP
        """)
    elif STAMP == 3:
        r = f"s_waitcnt vmcnt(0)\n{st(NST-1)}\ns_mov_b64 exec, 1\n{srd(44, DBG_P, 256)}\ns_waitcnt lgkmcnt(0)\nv_mov_b32 v16, 0\n"
        r += "s_not_b32 s60, s64\nv_mov_b32 v0, s60\nbuffer_atomic_umax v0, v16, s[44:47], 0 offen offset:4 sc1\n"
        r += "s_cmp_eq_u32 s16, 0\ns_cbranch_scc1 L_D0\ns_cmp_eq_u32 s16, 4\ns_cbranch_scc0 L_END\n"
        for n, i in enumerate((2, 3, 4, 5, 7, 8, 9)): r += f"v_mov_b32 v{n+1}, s{64+2*i}\nbuffer_atomic_umax v{n+1}, v16, s[44:47], 0 offen offset:{8+4*n} sc1\n"
        r += "s_endpgm\nL_D0:\n"
        for n, i in enumerate((0, 1, 6, 8, 9, 10, 15)): r += f"v_mov_b32 v{n+1}, s{64+2*i}\nbuffer_atomic_umax v{n+1}, v16, s[44:47], 0 offen offset:{36+4*n} sc1\n"
        a(r)
    elif STAMP:
        r = f"s_waitcnt vmcnt(0)\n{st(NST-1)}\ns_mov_b64 exec, 1\ns_add_u32 s44, s{WS_P}, {STAMP_OFF}\ns_addc_u32 s45, s{WS_P+1}, 0\ns_mov_b32 s46, 262144\ns_mov_b32 s47, 0x20000\n"
        r += "s_lshl_b32 s60, s2, 4\ns_add_u32 s60, s60, s16\ns_lshl_b32 s60, s60, 6\ns_waitcnt lgkmcnt(0)\nv_mov_b32 v16, 0\n"
        for i in range(NST): r += f"v_mov_b32 v{i}, s{64+2*i}\n"
        for i in range(4): r += f"buffer_store_dwordx4 v[{4*i}:{4*i+3}], v16, s[44:47], s60 offen offset:{16*i}\n"
        a(r)
    a("L_END:\ns_endpgm")
    return f""".amdhsa_kernel {label}
  .amdhsa_next_free_vgpr 168
  .amdhsa_next_free_sgpr {100 if STAMP else 64}
  .amdhsa_accum_offset 168
  .amdhsa_group_segment_fixed_size 0
  .amdhsa_kernarg_size 96
  .amdhsa_user_sgpr_count 2
  .amdhsa_user_sgpr_kernarg_segment_ptr 1
  .amdhsa_system_sgpr_workgroup_id_x 1
.end_amdhsa_kernel
"""

def p1_loader(a):
    a(f"""
    s_setprio 3
    v_lshrrev_b32 v2, 3, v0
    v_and_b32 v3, 7, v0
    v_lshrrev_b32 v4, 4, v0
    v_xor_b32 v3, v3, v4
    v_lshlrev_b32 v3, 4, v3
    v_xor_b32 v4, 64, v3
    s_lshl_b32 s23, s21, 5
    s_lshl_b32 s24, s16, 3
    s_add_u32 s23, s23, s24
    v_add_u32 v5, s23, v2
    v_sub_u32 v6, 0x800, v5
    v_sub_u32 v7, 0x400, v5
    v_add_u32 v8, 0x400, v5
    v_cmp_eq_u32 vcc, 0, v5
    v_mov_b32 v9, 0x200
    v_mov_b32 v10, 0x600
    v_cndmask_b32 v6, v6, v9, vcc
    v_cndmask_b32 v8, v8, v10, vcc
    s_lshl_b32 s26, s22, 2
    s_add_u32 s26, s26, s20
    s_and_b32 s27, s20, 1
    s_movk_i32 s25, 3840
    s_cmp_eq_u32 s22, 3
    s_cselect_b32 s25, 1280, s25
    s_cselect_b32 s26, s27, s26
    s_mul_i32 s26, s26, 320
    s_movk_i32 s27, 1280
    v_mad_u32_u24 v10, v5, s27, v3
    v_mad_u32_u24 v11, v6, s27, v4
    v_mad_u32_u24 v12, v7, s27, v3
    v_mad_u32_u24 v13, v8, s27, v4
    s_lshl_b32 s27, s16, 4
    s_mul_i32 s27, s27, s25
    s_add_u32 s26, s26, s27
    s_sub_u32 s27, s25, 320
    """)
    for i in range(5):
        a(f"""
        v_add_u32 v5, {64*i}, v0
        v_mul_u32_u24 v6, 3277, v5
        v_lshrrev_b32 v6, 16, v6
        v_lshl_add_u32 v5, v5, 4, s26
        v_mad_u32_u24 v{14+i}, v6, s27, v5
        """)
    sg = opt("stag1", 2)
    if sg == 1:
        a("s_lshl_b32 s36, s19, 3\ns_lshl_b32 s37, s22, 4\ns_add_u32 s36, s36, s37\ns_add_u32 s36, s36, s17\ns_and_b32 s36, s36, 63\ns_mul_i32 s36, s36, 10\ns_lshr_b32 s36, s36, 6")
    elif sg == 2:
        a("s_add_u32 s36, s19, s22\ns_lshl_b32 s36, s36, 4\ns_add_u32 s36, s36, s17\ns_add_u32 s36, s36, s17\ns_and_b32 s36, s36, 63\ns_mul_i32 s36, s36, 10\ns_lshr_b32 s36, s36, 6")
    elif sg == 3:
        a("s_add_u32 s36, s19, s22\ns_lshl_b32 s36, s36, 5\ns_lshl_b32 s37, s17, 2\ns_add_u32 s36, s36, s37\ns_and_b32 s36, s36, 63\ns_mul_i32 s36, s36, 10\ns_lshr_b32 s36, s36, 6")
    else:
        a("s_mov_b32 s36, 0")
    a(f"""
    s_lshl_b32 s38, s16, 12
    s_mul_i32 s39, s16, 5120
    s_add_u32 s39, s39, 0x10000
    s_mov_b32 s40, 0
    s_mul_i32 s34, s25, 640
    s_lshl_b32 s25, s25, 6
    s_mov_b32 s35, 0x20000
    s_waitcnt lgkmcnt(0)
    {srd(28, X_P, 2048*1280)}
    s_cmp_lt_u32 s20, 2
    s_cselect_b32 s32, s8, s10
    s_cselect_b32 s33, s9, s11
    s_cmp_eq_u32 s22, 3
    s_cselect_b32 s32, s32, s{WQKV_P}
    s_cselect_b32 s33, s33, s{WQKV_P+1}
    {st(1)}
    """)
    if opt("dftdelay", 0):
        a(f"""s_cmp_lg_u32 s22, 3
        s_cbranch_scc1 P1_LD_LOOP
        s_memrealtime s[46:47]
        s_waitcnt lgkmcnt(0)
        s_add_u32 s46, s46, {opt("dftdelay", 0)}
P1_DLY:
        s_memrealtime s[44:45]
        s_waitcnt lgkmcnt(0)
        s_cmp_lt_u32 s44, s46
        s_cbranch_scc1 P1_DLY
        """)
    a(f"""
P1_LD_LOOP:
    s_lshl_b32 s41, s36, 7
    s_mul_i32 s42, s36, s25
    s_and_b32 s43, s40, 3
    s_lshl_b32 s44, s43, 14
    s_add_u32 s44, s44, s38
    s_mul_i32 s45, s43, 20480
    s_add_u32 s45, s45, s39
    """)
    for i in range(4):
        a(f"s_add_u32 m0, s44, {1024*i}\ns_nop 0\nbuffer_load_dwordx4 v{10+i}, s[28:31], s41 offen lds")
    for i in range(5):
        a(f"s_add_u32 m0, s45, {1024*i}\ns_nop 0\nbuffer_load_dwordx4 v{14+i}, s[32:35], s42 offen lds")
    if opt("noload", 0): a("s_cmp_ge_u32 s40, 3\ns_cselect_b32 s30, 0, s30\ns_cselect_b32 s34, 0, s34")
    a(f"""
    s_add_u32 s36, s36, 1
    s_cmp_eq_u32 s36, 10
    s_cselect_b32 s36, 0, s36
    s_add_u32 s40, s40, 1
    s_cmp_eq_u32 s40, 1
    s_cbranch_scc1 P1_LD_LOOP
    s_waitcnt vmcnt(9)
    s_barrier
    s_cmp_lt_u32 s40, 10
    s_cbranch_scc1 P1_LD_LOOP
    s_waitcnt vmcnt(0)
    s_barrier
    s_branch HELPER
    """)

def p1_compute(a):
    ACC = 0; SA, SB = 80, 104
    L, H5, L31 = 128, 129, 130
    XA0, WA, CX, CW, PC, T0 = 131, 132, 133, 137, 138, 140
    a(f"""
    s_sub_u32 s61, s16, 4
    v_mov_b32 v{L}, v0
    v_lshrrev_b32 v{H5}, 5, v0
    v_and_b32 v{L31}, 31, v0
    v_lshrrev_b32 v{T0}, 1, v{L}
    v_and_b32 v{T0}, 7, v{T0}
    v_xor_b32 v{T0}, v{T0}, v{H5}
    v_lshlrev_b32 v{T0}, 4, v{T0}
    v_lshl_add_u32 v{T0}, v{L31}, 7, v{T0}
    s_lshl_b32 s23, s61, 12
    v_add_u32 v{XA0}, s23, v{T0}
    v_bfe_u32 v{T0}, v{L}, 2, 2
    v_lshl_add_u32 v{T0}, v{H5}, 3, v{T0}
    v_mul_u32_u24 v{T0}, 320, v{T0}
    v_and_b32 v{T0+1}, 3, v{L}
    v_lshlrev_b32 v{T0+1}, 3, v{T0+1}
    v_and_b32 v{T0+2}, 16, v{L}
    v_lshlrev_b32 v{T0+2}, 1, v{T0+2}
    v_add3_u32 v{WA}, v{T0}, v{T0+1}, v{T0+2}
    v_add_u32 v{WA}, 0x10000, v{WA}
    v_mov_b32 v{PC}, 0xbf803f80
    s_lshl_b32 s26, s22, 2
    s_add_u32 s26, s26, s20
    s_cmp_eq_u32 s26, 14
    s_cselect_b32 s24, 1, 0
    s_mov_b32 s25, s24
    s_mov_b32 s40, 0
    """)
    for r in range(80): a(f"v_mov_b32 v{ACC+r}, 0")
    for r in range(24): a(f"v_mov_b32 v{SB+r}, 0")
    a(f"s_waitcnt lgkmcnt(0)\n{srd(28, WS_P, WS_USED)}\n{st(1)}")
    a("s_cmp_ge_u32 s22, 2\ns_cbranch_scc1 P1_LOOP_V")

    def group(cur, nxt, step, qk):
        def mf(T):
            d = vr(ACC + 16 * T, 16); x = vr(cur, 4); w = vr(cur + 4 + 4 * T, 4)
            if opt("nomfma", 0): return "s_nop 0"
            return f"v_mfma_f32_32x32x16_bf16 {d}, {w}, {x}, {d}" if qk else f"v_mfma_f32_32x32x16_bf16 {d}, {x}, {w}, {d}"
        def rw(T):
            if step is None or opt("nolds", 0): return ""
            o = step * 5120 + T * 64; d = nxt + 4 + 4 * T
            return f"ds_read_b64_tr_b16 {vr(d,2)}, v{CW} offset:{o}\nds_read_b64_tr_b16 {vr(d+2,2)}, v{CW} offset:{o+1280}"
        rd = step is not None
        a(f"s_waitcnt lgkmcnt(8)"); a(mf(1))
        if rd: a(f"ds_read_b128 {vr(nxt,4)}, v{CX+step}")
        a(rw(1))
        a(f"s_waitcnt lgkmcnt({9 if rd else 6})"); a(mf(2)); a(rw(2))
        a(f"s_waitcnt lgkmcnt({9 if rd else 4})"); a(mf(3)); a(rw(3))
        a(f"s_waitcnt lgkmcnt({7 if rd else 0})")
        if not qk:
            for j in range(4): a(f"v_cndmask_b32 v{cur+4+j}, v{cur+4+j}, v{PC}, s[24:25]")
        a(mf(4)); a(rw(4))
        if not rd: a("s_nop 0")
        a(mf(0)); a(rw(0))

    for qk, lab in ((True, "QK"), (False, "V")):
        a(f"""
P1_LOOP_{lab}:
        s_and_b32 s41, s40, 3
        s_lshl_b32 s42, s41, 14
        s_mul_i32 s43, s41, 20480
        v_add_u32 v{CX}, s42, v{XA0}
        v_add_u32 v{CW}, s43, v{WA}
        v_xor_b32 v{CX+1}, 32, v{CX}
        v_xor_b32 v{CX+2}, 64, v{CX}
        v_xor_b32 v{CX+3}, 0x60, v{CX}
        s_barrier
        """)
        if STAMP: a(f"s_cmp_lg_u32 s40, 0\ns_cbranch_scc1 P1_ST_{lab}\n{st(2)}\nP1_ST_{lab}:\ns_cmp_lg_u32 s40, 5\ns_cbranch_scc1 P1_SU_{lab}\n{st(1)}\nP1_SU_{lab}:")
        group(SB, SA, 0, qk); group(SA, SB, 1, qk); group(SB, SA, 2, qk); group(SA, SB, 3, qk)
        a(f"s_add_u32 s40, s40, 1\ns_cmp_lt_u32 s40, 10\ns_cbranch_scc1 P1_LOOP_{lab}")
        group(SB, SA, None, qk)
        a(st(3))
        a("s_lshl_b32 s23, s21, 2\ns_add_u32 s23, s23, s61")
        if qk:
            a(f"""
            s_mul_i32 s26, s20, {8*HS}
            s_mul_i32 s27, s23, 2560
            s_add_u32 s26, s26, s27
            s_cmp_eq_u32 s22, 0
            s_cselect_b32 s27, {Q_OFF}, {KV_OFF}
            s_cselect_b32 s36, {QSCALE}, 1.0
            s_mov_b32 s37, s36
            s_add_u32 s26, s26, s27
            v_lshlrev_b32 v{T0}, 4, v{L}
            s_mov_b32 s27, {HS}
            v_bfe_u32 v{T0+1}, v{L}, 4, 1
            v_lshl_add_u32 v{T0+1}, v{T0+1}, 1, v{H5}
            v_mul_lo_u32 v{T0+1}, v{T0+1}, s27
            v_and_b32 v{T0+2}, 15, v{L}
            v_lshl_add_u32 v{T0+1}, v{T0+2}, 4, v{T0+1}
            """)
            for n_, p in enumerate((2, 3, 1, 0)):
                base = SA + (n_ % 2) * 8
                xk = SA + 16 + (n_ // 2) * 4 + (p % 2) * 2
                for gi, dst in ((0, base), (1, base + 2), (3, base + 4), (4, base + 6), (2, xk)):
                    r = ACC + 4 * (5 * p + gi)
                    a(f"v_pk_mul_f32 {vr(r,2)}, {vr(r,2)}, s[36:37]\nv_pk_mul_f32 {vr(r+2,2)}, {vr(r+2,2)}, s[36:37]")
                    a(f"v_cvt_pk_bf16_f32 v{dst}, v{r}, v{r+1}\nv_cvt_pk_bf16_f32 v{dst+1}, v{r+2}, v{r+3}")
                a(f"""
                s_add_u32 s38, s26, {2*p*HS}
                s_add_u32 s39, s26, {(2*p+1)*HS}
                buffer_store_dwordx4 {vr(base,4)}, v{T0}, s[28:31], s38 offen sc1
                buffer_store_dwordx4 {vr(base+4,4)}, v{T0}, s[28:31], s39 offen sc1
                """)
                if n_ % 2 == 1:
                    x4 = SA + 16 + (n_ // 2) * 4
                    a(f"""
                    v_permlane16_swap_b32 v{x4}, v{x4+2}
                    v_permlane16_swap_b32 v{x4+1}, v{x4+3}
                    s_add_u32 s38, s26, {(p // 2) * 4 * HS}
                    buffer_store_dwordx4 {vr(x4,4)}, v{T0+1}, s[28:31], s38 offen offset:1024 sc1
                    """)
            a("s_branch P1_DONE")
        else:
            a("s_cmp_eq_u32 s22, 3\ns_cbranch_scc1 P1_EPI_DFT")
            a(f"""
            s_mul_i32 s26, s20, {8*HS}
            s_mul_i32 s27, s23, 2560
            s_add_u32 s26, s26, s27
            s_add_u32 s26, s26, {KV_OFF + 1280}
            s_mov_b32 s27, {HS - 320}
            v_mul_u32_u24 v{T0+5}, 320, v{H5}
            """)
            for T in range(5):
                a(f"""
                v_add_u32 v{T0+6}, {32*T}, v{L31}
                v_mul_u32_u24 v{T0+7}, 3277, v{T0+6}
                v_lshrrev_b32 v{T0+7}, 16, v{T0+7}
                v_lshl_add_u32 v{T0+6}, v{T0+6}, 4, v{T0+5}
                v_mad_u32_u24 v{T0+T}, v{T0+7}, s27, v{T0+6}
                """)
            for T in (1, 2, 3, 4, 0):
                base = SA + (T % 3) * 8
                for j in range(8):
                    a(f"v_cvt_pk_bf16_f32 v{base+j}, v{ACC+16*T+2*j}, v{ACC+16*T+2*j+1}")
                a(f"buffer_store_dwordx4 {vr(base,4)}, v{T0+T}, s[28:31], s26 offen sc1")
                a(f"buffer_store_dwordx4 {vr(base+4,4)}, v{T0+T}, s[28:31], s26 offen offset:640 sc1")
            a("s_branch P1_DONE")
            TAU, TAU0, VD = T0, T0 + 1, T0 + 2
            a(f"""
P1_EPI_DFT:
            s_cmp_lt_u32 s20, 2
            s_cselect_b32 s36, 1.0, -1.0
            v_mov_b32 v{TAU}, s36
            v_cndmask_b32 v{TAU0}, v{TAU}, 1.0, s[24:25]
            s_mov_b32 s27, {FO_DELTA}
            v_mul_lo_u32 v{VD}, v{H5}, s27
            v_and_b32 v{T0+3}, 15, v{L31}
            v_lshl_add_u32 v{VD}, v{T0+3}, 4, v{VD}
            v_lshrrev_b32 v{T0+3}, 4, v{L31}
            v_lshl_add_u32 v{VD}, v{T0+3}, 14, v{VD}
            s_mul_i32 s26, s20, {5*32768}
            s_lshl_b32 s27, s23, 8
            s_add_u32 s26, s26, s27
            s_add_u32 s26, s26, {FE_OFF}
            s_nop 1
            s_cmp_lg_u32 s23, 0
            s_cbranch_scc1 P1_EPI_DFT2
            s_mov_b32 exec_hi, 0
            s_mul_i32 s27, s20, 640
            s_add_u32 s27, s27, {X512_OFF}
            v_lshlrev_b32 v{T0+3}, 2, v{L31}
            """)
            for T in range(5):
                r = ACC + 16 * T
                a(f"v_fma_f32 v{SA+T}, v{r+12}, v{TAU0 if T == 0 else TAU}, v{r+4}")
                a(f"v_mov_b32 v{r+4}, 0\nv_mov_b32 v{r+12}, 0")
                a(f"buffer_store_dword v{SA+T}, v{T0+3}, s[28:31], s27 offen offset:{128*T} sc1")
            a("s_mov_b32 exec_hi, -1\nP1_EPI_DFT2:")
            for T in range(5):
                r = ACC + 16 * T; tau = TAU0 if T == 0 else TAU
                base = SB + (T % 3) * 4
                for q in range(4):
                    a(f"v_fma_f32 v{r+q}, v{r+4+q}, v{tau}, v{r+q}")
                    a(f"v_fma_f32 v{r+12+q}, v{r+8+q}, v{tau}, v{r+12+q}")
                for q in range(4):
                    a(f"v_add_f32 v{r+4+q}, v{r+q}, v{r+12+q}")
                    a(f"v_sub_f32 v{r+8+q}, v{r+q}, v{r+12+q}")
                a(f"v_cvt_pk_bf16_f32 v{base}, v{r+4}, v{r+5}\nv_cvt_pk_bf16_f32 v{base+1}, v{r+6}, v{r+7}")
                a(f"v_cvt_pk_bf16_f32 v{base+2}, v{r+8}, v{r+9}\nv_cvt_pk_bf16_f32 v{base+3}, v{r+10}, v{r+11}")
                a(f"""
                s_nop 1
                v_permlane32_swap_b32 v{base}, v{base+2}
                v_permlane32_swap_b32 v{base+1}, v{base+3}
                buffer_store_dwordx4 {vr(base,4)}, v{VD}, s[28:31], s26 offen sc1
                s_add_u32 s26, s26, 32768
                """)
    a(f"""
P1_DONE:
    v_mov_b32 v0, v{L}
    s_branch ATT
    """)

def p1_extra(a):
    T0 = 40
    a(f"""
P1_EXTRA:
    s_sub_u32 s61, s16, 8
    v_lshrrev_b32 v37, 4, v0
    v_and_b32 v38, 15, v0
    v_lshlrev_b32 v39, 4, v0
    v_mov_b32 v36, v0
    s_waitcnt lgkmcnt(0)
    {srd(28, WS_P, WS_USED)}
    {srd(32, DBG_P, 256)}
    s_cmp_lg_u32 s61, 0
    s_cbranch_scc1 P1_EX_A
    v_mov_b32 v1, 0
    s_cmp_lg_u32 s2, 0
    s_cbranch_scc1 P1_EX_WAITRDY
    v_lshlrev_b32 v2, 7, v0
    s_mov_b32 s23, {FLG_OFF}
    buffer_store_dword v1, v2, s[28:31], s23 offen sc1
    v_mov_b32 v3, 1
    s_waitcnt vmcnt(0)
    s_mov_b64 exec, 1
    buffer_store_dword v3, v1, s[32:35], 0 offen sc1
    s_mov_b64 exec, -1
P1_EX_WAITRDY:
P1_EX_A:
    s_lshl_b32 s23, s2, 2
    s_add_u32 s23, s23, s61
    s_mov_b32 s40, 0
P1_TBL:
    s_lshr_b32 s24, s23, 5
    s_and_b32 s25, s23, 30
    s_and_b32 s26, s24, 1
    s_lshr_b32 s27, s24, 1
    s_lshl_b32 s27, s27, 6
    s_add_u32 s27, s27, s26
    s_and_b32 s26, s23, 1
    s_lshl_b32 s26, s26, 5
    s_add_u32 s27, s27, s26
    v_lshl_add_u32 v{T0}, v38, 1, s27
    s_lshl_b32 s25, s25, 4
    v_lshl_add_u32 v{T0+1}, v37, 3, s25
    v_mul_u32_u24 v{T0+1}, v{T0}, v{T0+1}
    v_and_b32 v{T0+1}, 0x7ff, v{T0+1}
    v_cvt_f32_u32 v{T0}, v{T0}
    v_cvt_f32_u32 v{T0+1}, v{T0+1}
    v_mul_f32 v{T0}, 0x3a000000, v{T0}
    v_mul_f32 v0, 0x3a000000, v{T0+1}
    """)
    for u in range(1, 8): a(f"v_add_f32 v{u}, v{u-1}, v{T0}")
    for u in range(1, 8): a(f"v_fract_f32 v{u}, v{u}")
    for u in range(8): a(f"v_cos_f32 v{8+u}, v{u}")
    for u in range(8): a(f"v_sin_f32 v{16+u}, v{u}")
    for j in range(4): a(f"v_cvt_pk_bf16_f32 v{24+j}, v{8+2*j}, v{9+2*j}")
    for j in range(4): a(f"v_cvt_pk_bf16_f32 v{28+j}, v{16+2*j}, v{17+2*j}")
    NB0 = opt("tblbar", 2)
    a(f"""
    s_cmp_lg_u32 s40, 0
    s_cbranch_scc1 P1_TBL_ST
    """ + "".join(f"s_barrier\n{st(1 + b_, True)}\n" for b_ in range(NB0)) + f"""
    s_mov_b32 s40, 1
P1_TBL_ST:
    s_lshl_b32 s24, s23, 11
    s_add_u32 s24, s24, {TB_OFF}
    buffer_store_dwordx4 v[24:27], v39, s[28:31], s24 offen sc1
    buffer_store_dwordx4 v[28:31], v39, s[28:31], s24 offen offset:1024 sc1
    s_add_u32 s23, s23, 1024
    s_cmp_lt_u32 s23, 1056
    s_cbranch_scc1 P1_TBL
    """)
    nb = NB0
    tl = opt("tlb", 0)
    if tl:
        n_ws = (WS_USED + (1 << tl) - 1) >> tl
        a(f"{srd(44, OUT_P, 2621440)}\nv_lshlrev_b32 v40, {tl}, v36\ns_lshl_b32 s23, s61, {tl+6}")
        for i in range((n_ws + 255) // 256):
            a(f"buffer_load_dword v41, v40, s[28:31], s23 offen sc1\ns_add_u32 s23, s23, {256 << tl}")
        a(f"s_lshl_b32 s23, s61, {tl+6}\nbuffer_load_dword v41, v40, s[44:47], s23 offen sc1")
        a(f"{srd(44, WO_P, 819200)}\nbuffer_load_dword v41, v40, s[44:47], s23 offen sc1")
    if opt("pretouch", 0):
        a(f"""
        s_lshl_b32 s23, s21, 2
        s_add_u32 s23, s23, s61
        s_mul_i32 s26, s20, {8*HS}
        s_mul_i32 s27, s23, 2560
        s_add_u32 s26, s26, s27
        s_cmp_eq_u32 s22, 0
        s_cselect_b32 s27, {Q_OFF}, {KV_OFF}
        s_add_u32 s26, s26, s27
        s_cmp_eq_u32 s22, 2
        s_cselect_b32 s27, 1280, 0
        s_add_u32 s26, s26, s27
        s_cmp_eq_u32 s22, 3
        s_cselect_b32 s26, 0x40000000, s26
        v_lshrrev_b32 v40, 4, v36
        s_mov_b32 s27, {HS}
        v_mul_lo_u32 v40, v40, s27
        v_and_b32 v41, 15, v36
        v_lshl_add_u32 v40, v41, 4, v40
        """)
        for hd in range(8):
            if hd % 2 == 0: a("s_barrier"); nb += 1
            if hd % 4 == 0: a(f"buffer_store_dwordx4 v[24:27], v40, s[28:31], s26 offen offset:1024 sc1")
            a(f"buffer_store_dwordx4 v[24:27], v39, s[28:31], s26 offen sc1\ns_add_u32 s26, s26, {HS}")
    a("".join(f"s_barrier\n{st(1 + b_, True)}\n" for b_ in range(nb, 9)))
    u = a.uid()
    a(f"""
    s_cmp_lg_u32 s61, 0
    s_cbranch_scc1 P1_EX_B
    v_mov_b32 v1, 0
    s_mov_b32 s60, 0
L_RDY{u}:
    buffer_load_dword v2, v1, s[32:35], 0 offen sc1
    s_waitcnt vmcnt(0)
    v_cmp_ne_u32 vcc, 0, v2
    s_cbranch_vccnz P1_EX_B
    s_sleep 1
    s_add_u32 s60, s60, 1
    s_cmp_lt_u32 s60, 0x40000
    s_cbranch_scc1 L_RDY{u}
P1_EX_B:
    s_waitcnt vmcnt(0)
    s_barrier
    {st(10, True)}
    v_mov_b32 v0, v36
    """)

def attention(a):
    O = [0, 16]; S = [32, 48]; P = 64
    Q1 = [72, 76]; Q2 = [80, 82]; K2 = 84; K1 = 88; V1 = 92; V2 = [96, 100]
    AK1, AK2, AV, L31, H5, OA1, OA2, T = 104, 105, 106, 107, 108, 109, 110, 112
    VA, VT, BMM, BMT = 164, 165, 166, 167
    a(f"""
ATT:
    s_setprio 2
    s_lshr_b32 s19, s18, 3
    s_lshl_b32 s23, s17, 2
    s_add_u32 s19, s19, s23
    s_and_b32 s62, s18, 7
    s_mul_i32 s21, s19, {HS}
    s_sub_u32 s61, s16, 4
    s_and_b32 s36, s61, 3
    s_lshr_b32 s37, s61, 2
    v_and_b32 v{L31}, 31, v0
    v_lshrrev_b32 v{H5}, 5, v0
    v_lshlrev_b32 v{AK1}, 4, v0
    v_lshrrev_b32 v{AK2}, 4, v{L31}
    v_lshl_add_u32 v{AK2}, v{AK2}, 1, v{H5}
    v_and_b32 v{AV}, 15, v0
    v_lshl_add_u32 v{AK2}, v{AV}, 2, v{AK2}
    v_lshlrev_b32 v{AK2}, 2, v{AK2}
    v_mul_u32_u24 v{AV}, 320, v{H5}
    v_lshl_add_u32 v{AV}, v{L31}, 4, v{AV}
    v_mov_b32 v{VA}, v{AK1}
    v_and_b32 v{T}, 7, v0
    v_bfe_u32 v{T+2}, v0, 3, 1
    v_lshrrev_b32 v{T+1}, 4, v0
    v_lshlrev_b32 v{VT}, 8, v{T+1}
    v_lshl_add_u32 v{VT}, v{T}, 4, v{VT}
    v_lshl_add_u32 v{VT}, v{T+2}, 3, v{VT}
    s_lshr_b32 s23, s18, 2
    s_lshl_b32 s24, s37, 1
    s_add_u32 s23, s23, s24
    s_and_b32 s23, s23, 3
    s_lshl_b32 s25, s17, 2
    s_and_b32 s24, s18, 3
    s_add_u32 s25, s25, s24
    s_lshl_b32 s25, s25, 2
    s_add_u32 s25, s25, s36
    s_mul_i32 s25, s25, 20480
    s_add_u32 s25, s25, {OF_OFF}
    s_lshl_b32 s44, s23, 12
    s_add_u32 s44, s44, s25
    s_lshl_b32 s46, s23, 10
    s_add_u32 s46, s46, s25
    s_add_u32 s46, s46, 16384
    s_cmp_eq_u32 s23, 3
    s_cselect_b32 s63, -3, 1
    s_lshl_b32 s45, s63, 12
    s_add_u32 s45, s45, s44
    s_lshl_b32 s47, s63, 10
    s_add_u32 s47, s47, s46
    s_mul_i32 s63, s63, 25600
    s_mul_i32 s24, s23, 25600
    v_bfe_u32 v{T}, v0, 2, 2
    v_and_b32 v{T+3}, 3, v0
    v_mul_u32_u24 v{T+3}, 40, v{T+3}
    v_mul_u32_u24 v{T+2}, 40, v{T+1}
    v_add3_u32 v{T+2}, v{T+2}, v{T}, 16
    v_mul_u32_u24 v{T+2}, 160, v{T+2}
    v_add3_u32 v{BMT}, v{T+2}, v{T+3}, s24
    v_lshrrev_b32 v{T+2}, 1, v{T+1}
    v_mul_u32_u24 v{T+2}, 20, v{T+2}
    v_and_b32 v{T+1}, 1, v{T+1}
    v_lshl_add_u32 v{T+2}, v{T+1}, 2, v{T+2}
    v_add_u32 v{T+2}, v{T+2}, v{T}
    v_mul_u32_u24 v{T+2}, 160, v{T+2}
    v_add3_u32 v{BMM}, v{T+2}, v{T+3}, s24
    s_waitcnt vmcnt(0)
    {st(4)}
    s_barrier
    s_cmp_eq_u32 s16, 9
    s_cbranch_scc1 ATT_POLL
    s_cmp_lg_u32 s16, 8
    s_cbranch_scc1 ATT_NOSYNC
    s_lshl_b32 s23, s22, 2
    s_add_u32 s23, s23, s20
    s_lshl_b32 s23, s23, 7
    s_add_u32 s23, s23, {FLG_OFF}
    s_lshl_b32 s24, s17, 7
    s_add_u32 s24, s24, {FLG_OFF + 128*L_T}
    v_mov_b32 v{T}, s23
    v_mov_b32 v{T+1}, 1
    v_writelane_b32 v{T}, s24, 1
    s_mov_b64 exec, 3
    buffer_atomic_add v{T+1}, v{T}, s[28:31], 0 offen sc1
    s_mov_b64 exec, -1
    s_branch ATT_NOSYNC
ATT_POLL:
    s_lshr_b32 s23, s19, 3
    s_lshl_b32 s23, s23, 7
    s_add_u32 s23, s23, {FLG_OFF}
    v_lshlrev_b32 v{T+2}, 9, v0
    v_add_u32 v{T+2}, s23, v{T+2}
    """)
    poll(a, T + 2, T + 3, 7, 16)
    a(f"""
ATT_NOSYNC:
    s_lshl_b32 s38, s62, 3
    s_lshl_b32 s23, s36, 1
    s_add_u32 s38, s38, s23
    s_mul_i32 s23, s38, 2560
    s_add_u32 s23, s23, s21
    s_add_u32 s23, s23, {Q_OFF}
    s_add_u32 s38, s38, s37
    s_barrier
    {st(5)}
    buffer_load_dwordx4 {vr(Q1[0],4)}, v{AK1}, s[28:31], s23 offen sc1
    buffer_load_dword v{Q2[0]}, v{AK2}, s[28:31], s23 offen offset:1024 sc1
    buffer_load_dwordx4 {vr(Q1[1],4)}, v{AK1}, s[28:31], s23 offen offset:2560 sc1
    buffer_load_dword v{Q2[1]}, v{AK2}, s[28:31], s23 offen offset:3584 sc1
    s_mov_b32 s24, 0xfffff
    s_mov_b32 s25, 0xfffff
    v_mov_b32 v{Q2[0]+1}, 0
    v_mov_b32 v{Q2[1]+1}, 0
    v_mov_b32 v{K2+1}, 0x3f803f80
    v_and_b32 v{T}, 27, v{L31}
    v_cmp_eq_u32 vcc, 24, v{T}
    v_mov_b32 v{T}, 0
    s_mul_i32 s27, s38, 40960
    v_cndmask_b32 v{V1}, v{T}, v{K2+1}, vcc
    s_add_u32 s27, s27, {OF_OFF}
    v_bfe_u32 v{OA2}, v{L31}, 3, 1
    v_mul_u32_u24 v{OA2}, 20480, v{OA2}
    v_and_b32 v{T}, 7, v{L31}
    v_lshl_add_u32 v{OA2}, v{T}, 4, v{OA2}
    v_lshrrev_b32 v{T}, 4, v0
    v_lshl_add_u32 v{OA1}, v{T}, 7, v{OA2}
    s_lshl_b32 s32, s19, 9
    s_add_u32 s32, s32, s27
    s_lshl_b32 s33, s19, 7
    s_add_u32 s33, s33, s27
    s_add_u32 s33, s33, 16384
    """)
    for r in range(1, 12): a(f"v_mov_b32 v{V1+r}, v{V1}")
    for r in range(32): a(f"v_mov_b32 v{r}, 0")
    for r in range(4): a(f"v_mov_b32 v{P+4+r}, 0")
    def qk1(x): return f"v_mfma_f32_32x32x16_bf16 {vr(S[x],16)}, {vr(K1,4)}, {vr(Q1[x],4)}, 0"
    def qk2(x): return f"v_mfma_f32_32x32x8_bf16 {vr(S[x],16)}, {vr(K2,2)}, {vr(Q2[x],2)}, {vr(S[x],16)}"
    def pv(x, v, p): return f"v_mfma_f32_32x32x16_bf16 {vr(O[x],16)}, {vr(v,4)}, {vr(p,4)}, {vr(O[x],16)}"
    def rdk1(o): return f"ds_read_b128 {vr(K1,4)}, v{AK1} offset:{o}"
    def rdk2(o): return f"ds_read_b32 v{K2}, v{AK2} offset:{o+1024}"
    def rdv(o, v2): return f"s_mov_b64 exec, s[24:25]\nds_read_b128 {vr(V1,4)}, v{AV} offset:{o+1280}\nds_read_b128 {vr(v2,4)}, v{AV} offset:{o+1920}\ns_mov_b64 exec, -1"
    def maxtree(s, m, first):
        if first:
            a(f"v_max3_f32 v{m}, v{s}, v{s+1}, v{s+2}")
            for j in range(3, 15, 2): a(f"v_max3_f32 v{m}, v{s+j}, v{s+j+1}, v{m}")
            a(f"v_max_f32 v{m}, v{s+15}, v{m}")
        else:
            for j in range(0, 16, 2): a(f"v_max3_f32 v{m}, v{s+j}, v{s+j+1}, v{m}")
    def xhalf(m):
        a(f"v_mov_b32 v{m+1}, v{m}\ns_nop 1\nv_permlane32_swap_b32 v{m}, v{m+1}\ns_nop 0\nv_max_f32 v{m}, v{m}, v{m+1}")
    a(f"""
    s_mul_i32 s23, s37, 2560
    s_barrier
    {st(6)}
    {rdk1(0)}
    {rdk2(0)}
    v_add_u32 v{AK1}, s23, v{AK1}
    v_add_u32 v{AK2}, s23, v{AK2}
    v_add_u32 v{AV}, s23, v{AV}
    s_waitcnt vmcnt(0) lgkmcnt(0)
    {st(13)}
    {qk1(0)}
    {qk2(0)}
    {qk1(1)}
    {qk2(1)}
    {rdk1(0)}
    {rdk2(0)}
    {rdv(0, V2[0])}
    s_nop 3
    """)
    for r in range(4): a(f"v_mov_b32 v{P+r}, -1")
    a(f"buffer_store_dwordx4 {vr(P,4)}, v{OA1}, s[28:31], s32 offen sc1\ns_mov_b64 exec, 0xffff\nbuffer_store_dwordx4 {vr(P,4)}, v{OA2}, s[28:31], s33 offen sc1\ns_mov_b64 exec, -1")
    maxtree(S[0], T, True); maxtree(S[1], T + 2, True); xhalf(T); xhalf(T + 2)
    a(f"""
    v_mul_f32 v{T}, -0.5, v{T}
    v_mul_f32 v{T+2}, -0.5, v{T+2}
    v_cvt_pk_bf16_f32 v{Q2[0]+1}, v{T}, 0
    v_cvt_pk_bf16_f32 v{Q2[1]+1}, v{T+2}, 0
    s_waitcnt lgkmcnt(0)
    {qk1(0)}
    {qk2(0)}
    s_mov_b32 s26, 0
    s_setprio {opt("prio0", 2)}
    {st(14)}
    s_barrier
    {st(7)}
    s_nop 7
ATT_LOOP:
    """)
    def e(s, j): return f"v_exp_f32 v{s+j}, v{s+j}"
    def c(s, j): return f"v_cvt_pk_bf16_f32 v{P+j}, v{s+2*j}, v{s+2*j+1}"
    PL = opt("place", 0)
    for i in range(4):
        for x in (0, 1):
            cur = S[x]; y = 1 - x
            o = (i + 1) * 5120
            if PL == 1 and x == 0: a(rdv(o - 5120, V2[i % 2]))
            if x == 1: a("s_waitcnt lgkmcnt(0)")
            a(qk1(y))
            if PL == 0 and x == 0: a(rdk1(o))
            for q in range(4): a(e(cur, q))
            if PL == 1 and x == 0: a(rdk1(o))
            a(pv(y, V2[(i + 1) % 2] if x == 0 else V2[i % 2], P + 4))
            for q in range(4, 8): a(e(cur, q))
            a(c(cur, 0)); a(c(cur, 1))
            a(qk2(y))
            if PL == 0 and x == 0: a(rdk2(o))
            a(c(cur, 2)); a(c(cur, 3))
            for q in range(8, 12): a(e(cur, q))
            if PL == 1 and x == 0: a(rdk2(o))
            if x == 0: a("s_waitcnt lgkmcnt(2)")
            a(pv(x, V1, P))
            if PL == 0 and x == 1: a(rdv(o, V2[(i + 1) % 2]))
            for q in range(12, 16): a(e(cur, q))
            for q in range(4, 8): a(c(cur, q))
    a(f"""
    v_add_u32 v{AK1}, 0x5000, v{AK1}
    v_add_u32 v{AK2}, 0x5000, v{AK2}
    v_add_u32 v{AV}, 0x5000, v{AV}
    s_add_u32 s26, s26, 1
    s_bitcmp1_b32 {0xa6 if opt('b2', 0) else 0xa2}, s26
    s_cbranch_scc0 ATT_NOBAR
    s_waitcnt vmcnt(0)
    s_barrier
    {st(10)}
ATT_NOBAR:
    """)
    if opt("prio0", 2):
        a(f"s_cmp_eq_u32 s26, {opt('pt1', 4)}\ns_cbranch_scc0 ATT_NP1\ns_setprio 1\nATT_NP1:\ns_cmp_eq_u32 s26, {opt('pt2', 7)}\ns_cbranch_scc0 ATT_NP2\ns_setprio 0\nATT_NP2:")
    a(f"""
    s_cmp_lt_u32 s26, 8
    s_cbranch_scc1 ATT_LOOP
    {pv(1, V2[1], P+4)}
    {st(8)}
    s_mul_i32 s23, s61, 5120
    s_xor_b32 s35, s61, 4
    s_mul_i32 s35, s35, 5120
    s_add_u32 s23, s23, {XB}
    s_add_u32 s35, s35, {XB}
    v_add_u32 v{T+1}, s35, v{VA}
    v_add_u32 v{T}, s23, v{VA}
    s_nop 3
    s_cmp_eq_u32 s37, 0
    s_cbranch_scc1 ATT_X0
    """)
    for j in range(4): a(f"ds_write_b128 v{T}, {vr(O[0]+4*j,4)} offset:{1024*j}")
    a("s_nop 1")
    for r in range(13): a(f"v_mov_b32 v{O[0]+r}, v{O[1]+r}")
    for r in range(4): a(f"v_mov_b32 v{Q1[0]+r}, v{Q1[1]+r}")
    a(f"v_mov_b32 v{Q2[0]}, v{Q2[1]}\ns_branch ATT_X1\nATT_X0:")
    for j in range(4): a(f"ds_write_b128 v{T}, {vr(O[1]+4*j,4)} offset:{1024*j}")
    a("ATT_X1:\ns_waitcnt lgkmcnt(0)\ns_barrier")
    for j in range(4): a(f"ds_read_b128 {vr(S[0]+4*j,4)}, v{T+1} offset:{1024*j}")
    a("s_waitcnt lgkmcnt(0)")
    for r in range(13): a(f"v_add_f32 v{r}, v{r}, v{S[0]+r}")
    Oo = 0
    a(f"v_add_f32 v{T}, |v{Oo}|, |v{Oo+1}|\nv_add_f32 v{T+1}, |v{Oo+2}|, |v{Oo+3}|")
    for j in range(4, 12, 2): a(f"v_add_f32 v{T}, |v{Oo+j}|, v{T}\nv_add_f32 v{T+1}, |v{Oo+j+1}|, v{T+1}")
    a(f"""
    v_add_f32 v{T}, v{T}, v{Oo+12}
    s_mov_b32 s27, 0x3e800000
    v_add_f32 v{T}, v{T}, v{T+1}
    v_cmp_le_f32 s[42:43], s27, v{Oo+12}
    s_mov_b32 s27, 0x71800000
    v_cmp_gt_f32 vcc, s27, v{T}
    s_and_b64 vcc, vcc, s[42:43]
    s_cmp_eq_u64 vcc, -1
    s_cbranch_scc0 ATT_FALLBACK
ATT_FINISH:
    v_rcp_f32 v{T}, v{Oo+12}
    s_nop 0
    """)
    for j in range(12): a(f"v_mul_f32 v{Oo+j}, v{Oo+j}, v{T}")
    for j in range(6): a(f"v_cvt_pk_bf16_f32 v{P+j}, v{Oo+2*j}, v{Oo+2*j+1}")
    for j in range(6): a(f"v_min_u32 v{P+j}, -2, v{P+j}")
    a(f"""
    buffer_store_dwordx4 {vr(P,4)}, v{OA1}, s[28:31], s32 offen sc1
    s_nop 0
    v_permlane16_swap_b32 v{P+4}, v{P+6}
    v_permlane16_swap_b32 v{P+5}, v{P+7}
    s_mov_b64 exec, 0xffff
    buffer_store_dwordx4 {vr(P+4,4)}, v{OA2}, s[28:31], s33 offen sc1
    s_mov_b64 exec, -1
    {st(9)}
    """)
    OFR, AC3, BF, NS = 0, 40, 72, 23
    def rdb(n):
        sp, t = divmod(n, 5); d = BF + 4 * (n % NS); g, k = divmod(sp, 5)
        r = ""
        if k < 4:
            if k == 0 and t == 0 and g: r = f"v_add_u32 v{BMM}, s63, v{BMM}\n"
            b = BMM; o = k * 6400 + t * 8; dj = 1280
        else:
            if t == 0 and g: r = f"v_add_u32 v{BMT}, s63, v{BMT}\n"
            b = BMT; o = t * 8; dj = 3200
        return r + f"ds_read_b64_tr_b16 {vr(d,2)}, v{b} offset:{o}\nds_read_b64_tr_b16 {vr(d+2,2)}, v{b} offset:{o+dj}"
    def ldg(g):
        r = ""
        for k in range(4):
            r += f"buffer_load_dwordx4 {vr(OFR+20*g+4*k,4)}, v{VA}, s[28:31], s{44+g} offen offset:{1024*k} sc1\n"
        r += f"buffer_load_dwordx2 {vr(OFR+20*g+16,2)}, v{VT}, s[28:31], s{46+g} offen sc1\n"
        r += f"buffer_load_dwordx2 {vr(OFR+20*g+18,2)}, v{VT}, s[28:31], s{46+g} offen offset:128 sc1\n"
        return r
    def chk(g, retry, again):
        b = OFR + 20 * g
        a(f"v_max3_u32 v61, v{b}, v{b+1}, v{b+2}\nv_max3_u32 v62, v{b+3}, v{b+4}, v{b+5}")
        for j in range(6, 18, 4): a(f"v_max3_u32 v61, v{b+j}, v{b+j+1}, v61\nv_max3_u32 v62, v{b+j+2}, v{b+j+3}, v62")
        a(f"""
        v_max3_u32 v61, v{b+18}, v{b+19}, v61
        s_add_u32 s26, s26, 1
        v_max_u32 v61, v61, v62
        s_cmp_lt_u32 s26, 0x40000
        v_cmp_eq_u32 vcc, -1, v61
        s_cbranch_scc0 P3_OK{g}
        s_cbranch_vccnz {retry}
P3_OK{g}:
        """)
    for n in range(NS): a(rdb(n))
    for r in range(20): a(f"v_mov_b32 v{AC3+r}, 0")
    a(f"v_add_u32 v60, s35, v{VA}\ns_mov_b32 s26, 0\n{st(11)}\nP3_R0:")
    a(ldg(0))
    a("s_waitcnt vmcnt(0) lgkmcnt(0)")
    chk(0, "P3_R0", None)
    a(ldg(1))
    for n in range(50):
        sp, t = divmod(n, 5)
        if n == 25:
            a("s_branch P3_C1\nP3_R1:"); a(ldg(1)); a("P3_C1:\ns_waitcnt vmcnt(0)")
            chk(1, "P3_R1", None)
        if n >= NS and (n - NS) % 5 == 0:
            need = min(n + 4, 49); issued = min(n + NS - 1, 49)
            a(f"s_waitcnt lgkmcnt({min(14, 2 * (issued - need))})")
        a(f"v_mfma_f32_16x16x32_bf16 {vr(AC3+4*t,4)}, {vr(BF+4*(n%NS),4)}, {vr(OFR+4*sp,4)}, {vr(AC3+4*t,4)}")
        if n + NS < 50: a(rdb(n + NS))
    a(f"{st(12)}\ns_nop 3")
    for j in range(5): a(f"ds_write_b128 v60, {vr(AC3+4*j,4)} offset:{1024*j}")
    a(f"s_waitcnt lgkmcnt(0)\ns_barrier\n{fin()}")
    def gk(): return f"buffer_load_dwordx4 {vr(K1,4)}, v{AK1}, s[28:31], s23 offen sc1\nbuffer_load_dword v{K2}, v{AK2}, s[28:31], s23 offen offset:1024 sc1"
    a(f"""
ATT_FALLBACK:
    s_mul_i32 s23, s37, 2560
    s_add_u32 s23, s23, {HS}
    v_mov_b32 v{Q2[0]+1}, 0
    v_mov_b32 v{T}, 0xff800000
    v_subrev_u32 v{AK1}, s23, v{AK1}
    v_subrev_u32 v{AK2}, s23, v{AK2}
    v_subrev_u32 v{AV}, s23, v{AV}
    s_add_u32 s23, s21, {KV_OFF}
    s_mov_b32 s26, 0
ATT_FB1:
    {gk()}
    s_add_u32 s23, s23, 2560
    s_waitcnt vmcnt(0)
    {qk1(0)}
    {qk2(0)}
    s_nop 15
    """)
    maxtree(S[0], T, False)
    a("s_add_u32 s26, s26, 1\ns_cmp_lt_u32 s26, 64\ns_cbranch_scc1 ATT_FB1")
    xhalf(T)
    a(f"s_add_u32 s23, s21, {KV_OFF}\ns_mov_b32 s26, 0")
    for r in range(16): a(f"v_mov_b32 v{r}, 0")
    a(f"""
ATT_FB2:
    {gk()}
    s_mov_b64 exec, s[24:25]
    buffer_load_dwordx4 {vr(V1,4)}, v{AV}, s[28:31], s23 offen offset:1280 sc1
    buffer_load_dwordx4 {vr(V2[0],4)}, v{AV}, s[28:31], s23 offen offset:1920 sc1
    s_mov_b64 exec, -1
    s_add_u32 s23, s23, 2560
    s_waitcnt vmcnt(0)
    {qk1(0)}
    {qk2(0)}
    s_nop 15
    """)
    for q in range(16): a(f"v_sub_f32 v{S[0]+q}, v{S[0]+q}, v{T}")
    for q in range(16): a(e(S[0], q))
    a("s_nop 0")
    for q in range(8): a(c(S[0], q))
    a(f"""
    s_nop 1
    {pv(0, V1, P)}
    {pv(0, V2[0], P+4)}
    s_add_u32 s26, s26, 1
    s_cmp_lt_u32 s26, 64
    s_cbranch_scc1 ATT_FB2
    s_nop 15
    s_branch ATT_FINISH
    """)

def helpers(a):
    a(f"""
HELPER:
    {st(2)}
    {srd(28, WS_P, WS_USED)}
    s_lshr_b32 s19, s18, 3
    s_lshl_b32 s23, s17, 2
    s_add_u32 s19, s19, s23
    s_and_b32 s62, s18, 7
    s_mul_i32 s21, s19, {HS}
    v_lshlrev_b32 v1, 4, v0
    s_lshl_b32 s22, s16, 10
    s_add_u32 s24, s21, s22
    s_add_u32 s24, s24, {KV_OFF}
    s_setprio {opt("hp0", 1)}
    s_barrier
    s_barrier
    {st(3)}
    """)
    n0 = opt("dma0", 10)
    for n in range(40):
        a(f"s_add_u32 m0, s22, {4096*n}\ns_add_u32 s26, s24, {4096*n}\nbuffer_load_dwordx4 v1, s[28:31], s26 offen sc1 lds")
        if n == 6: a("s_setprio 3\ns_waitcnt vmcnt(5)\ns_barrier")
        if n == n0 - 1: a(f"s_waitcnt vmcnt({n0 - 7})\ns_barrier")
    a(f"""
    {'s_waitcnt vmcnt(28)' + chr(10) + 's_barrier' if opt("b2", 0) else ''}
    s_waitcnt vmcnt(0)
    {st(4)}
    s_barrier
    v_mov_b32 v167, v0
    s_cmp_lt_u32 s16, 3
    s_cbranch_scc1 H_FNET
    """)
    a(f"""
    {srd(32, X_P, 2048*1280)}
    {srd(36, GATE_P, 1280)}
    v_lshrrev_b32 v2, 3, v0
    v_and_b32 v3, 7, v0
    v_lshlrev_b32 v3, 4, v3
    s_movk_i32 s22, 1280
    v_mad_u32_u24 v4, v2, s22, v3
    s_mul_i32 s23, s2, {8*1280}
    """)
    for j in range(10):
        a(f"buffer_load_dwordx4 {vr(24+8*j,4)}, v4, s[32:35], s23 offen offset:{128*j}")
        a(f"buffer_load_dwordx4 {vr(28+8*j,4)}, v3, s[36:39], 0 offen offset:{128*j}")
    a("v_mov_b32 v5, 0\nv_mov_b32 v6, 0\ns_waitcnt vmcnt(0)")
    for j in range(10):
        for q in range(4):
            a(f"v_dot2c_f32_bf16 v{5 + (q & 1)}, v{24+8*j+q}, v{28+8*j+q}")
    a(f"""
    s_nop 2
    v_add_f32 v5, v5, v6
    s_nop 1
    v_add_f32_dpp v5, v5, v5 quad_perm:[1,0,3,2] row_mask:0xf bank_mask:0xf
    s_nop 1
    v_add_f32_dpp v5, v5, v5 quad_perm:[2,3,0,1] row_mask:0xf bank_mask:0xf
    s_nop 1
    v_add_f32_dpp v5, v5, v5 row_half_mirror row_mask:0xf bank_mask:0xf
    v_mul_f32 v5, {f32bits(-math.log2(math.e)):#x}, v5
    v_exp_f32 v5, v5
    v_lshlrev_b32 v2, 2, v2
    v_add_f32 v5, 1.0, v5
    v_rcp_f32 v5, v5
    s_lshl_b32 s23, s2, 5
    s_add_u32 s23, s23, {G_OFF}
    buffer_store_dword v5, v2, s[28:31], s23 offen sc1
    s_branch H_MID
    """)
    C, SN, FB = 0, 8, 16
    a(f"""
H_FNET:
    s_lshl_b32 s22, s16, 5
    s_add_u32 s22, s22, s18
    s_cmp_lt_u32 s22, 84
    s_cbranch_scc1 H_FN_A
    s_sub_u32 s24, s22, 84
    s_lshl_b32 s24, s24, 3
    s_add_u32 s24, s24, s17
    s_cmp_ge_u32 s24, 21
    s_cbranch_scc1 H_MID
    s_mov_b32 s23, 32
    s_branch H_FN_B
H_FN_A:
    s_mul_i32 s23, s22, 3121
    s_lshr_b32 s23, s23, 16
    s_mul_i32 s24, s23, 21
    s_sub_u32 s24, s22, s24
    s_lshl_b32 s23, s23, 3
    s_add_u32 s23, s23, s17
H_FN_B:
    v_lshlrev_b32 v2, 7, v0
    v_add_u32 v2, {FLG_OFF + 128*L_T}, v2
    """)
    poll(a, 2, 3, 0xff, 32)
    a(f"""
    s_and_b32 s25, s23, 1
    s_add_u32 s26, s24, 20
    s_cmp_eq_u32 s24, 20
    s_cselect_b32 s26, 20, s26
    s_lshl_b32 s32, s23, 16
    s_add_u32 s32, s32, {TB_OFF}
    s_mul_i32 s27, s25, {FO_DELTA}
    s_add_u32 s27, s27, {FE_OFF}
    s_lshl_b32 s33, s24, 14
    s_add_u32 s33, s33, s27
    s_lshl_b32 s34, s26, 14
    s_add_u32 s34, s34, s27
    s_cmp_eq_u32 s25, 0
    s_cselect_b32 s35, s24, s26
    s_lshl_b32 s35, s35, 6
    s_add_u32 s35, s35, {X512_OFF}
    v_and_b32 v162, 48, v0
    v_mov_b32 v163, v1
    buffer_load_dwordx4 v[156:159], v162, s[28:31], s35 offen sc1
    """)
    def fl(j):
        r = FB + 24 * j
        s_ = f"buffer_load_dwordx4 {vr(r,4)}, v163, s[28:31], s33 offen offset:{1024*j} sc1\n"
        s_ += f"buffer_load_dwordx4 {vr(r+4,4)}, v163, s[28:31], s34 offen offset:{1024*j} sc1\n"
        for k in range(4): s_ += f"buffer_load_dwordx4 {vr(r+8+4*k,4)}, v163, s[28:31], s32 offen offset:{1024*k} sc1\n"
        s_ += "s_add_u32 s32, s32, 4096\n"
        if j == 3: s_ += "s_add_u32 s33, s33, 4096\ns_add_u32 s34, s34, 4096\n"
        return s_
    def fm(j):
        r = FB + 24 * j
        s_ = ""
        for sub in range(2):
            s_ += f"v_mfma_f32_16x16x32_bf16 {vr(C+4*sub,4)}, {vr(r,4)}, {vr(r+8+8*sub,4)}, {vr(C+4*sub,4)}\n"
            s_ += f"v_mfma_f32_16x16x32_bf16 {vr(SN+4*sub,4)}, {vr(r+4,4)}, {vr(r+12+8*sub,4)}, {vr(SN+4*sub,4)}\n"
        return s_
    for j in range(4): a(fl(j))
    a(f"""
    v_lshlrev_b32 v160, 31, v167
    s_cmp_eq_u32 s25, 0
    s_cselect_b32 s36, 1.0, 0
    s_cselect_b32 s37, 0, 1.0
    v_or_b32 v161, s37, v160
    v_or_b32 v160, s36, v160
    s_waitcnt vmcnt(24)
    """)
    for r in range(8): a(f"v_mul_f32 v{C+r}, v160, v{156 + r % 4}\nv_mul_f32 v{SN+r}, v161, v{156 + r % 4}")
    a("s_mov_b32 s38, 0\nH_FN_LOOP:")
    for j in range(4):
        a("s_waitcnt vmcnt(18)"); a(fm(j)); a(fl(j))
    a("s_add_u32 s38, s38, 1\ns_cmp_lt_u32 s38, 3\ns_cbranch_scc1 H_FN_LOOP")
    for j in range(4):
        a(f"s_waitcnt vmcnt({18-6*j})"); a(fm(j))
    a(f"""
    s_cmp_eq_u32 s26, 20
    s_cselect_b32 s44, 0xffff, 0
    s_mov_b32 s45, 0
    v_lshrrev_b32 v32, 4, v167
    v_mul_u32_u24 v32, {2*ZP}, v32
    v_and_b32 v33, 15, v167
    v_lshl_add_u32 v32, v33, 4, v32
    s_mul_i32 s26, s24, {8*ZP}
    s_mul_i32 s27, s25, {ZP}
    s_add_u32 s26, s26, s27
    s_lshr_b32 s27, s23, 1
    s_lshl_b32 s27, s27, 9
    s_add_u32 s26, s26, s27
    s_add_u32 s26, s26, {Y_OFF}
    v_cndmask_b32 v{SN}, v{SN}, 0, s[44:45]
    v_cndmask_b32 v{SN+4}, v{SN+4}, 0, s[44:45]
    """)
    for r in range(8):
        a(f"v_add_f32 v{16+r}, v{C+r}, v{SN+r}\nv_sub_f32 v{C+r}, v{C+r}, v{SN+r}")
    for r in range(8): a(f"v_cvt_pk_bf16_f32 v{16+r}, v{16+r}, v{C+r}")
    a("buffer_store_dwordx4 v[16:19], v32, s[28:31], s26 offen sc1\nbuffer_store_dwordx4 v[20:23], v32, s[28:31], s26 offen offset:256 sc1")
    WA = 100; ZL = 40; Y = 64; G = 148; VY = 150; VG = 154; VZ = 155; T = 156; SH = 151
    a(f"""
H_MID:
    v_mov_b32 v0, v167
    s_lshl_b32 s19, s17, 2
    s_and_b32 s20, s18, 3
    s_add_u32 s19, s19, s20
    s_lshr_b32 s20, s18, 2
    {srd(32, WO_P, 640*1280)}
    {srd(36, OUT_P, 2621440)}
    s_mul_i32 s26, s20, 160
    s_mul_i32 s27, s16, {160*1280}
    s_add_u32 s27, s27, s26
    s_movk_i32 s23, {1280 - 160}
    """)
    for i in range(5):
        a(f"""
        v_add_u32 v{T}, {64*i}, v0
        v_mul_u32_u24 v{T+1}, 6554, v{T}
        v_lshrrev_b32 v{T+1}, 16, v{T+1}
        v_lshlrev_b32 v{T}, 4, v{T}
        v_mad_u32_u24 v{WA+i}, v{T+1}, s23, v{T}
        """)
    a(f"""
    s_lshl_b32 s21, s19, 2
    s_add_u32 s21, s21, s16
    s_lshr_b32 s22, s21, 1
    s_lshl_b32 s22, s22, 3
    v_and_b32 v{T}, 7, v0
    v_add_u32 v{T}, s22, v{T}
    s_bitcmp1_b32 s21, 0
    s_cselect_b32 s22, 0x800, 0
    s_cselect_b32 s24, -1, 1
    s_cselect_b32 s40, 0x200, 0
    v_mul_lo_u32 v{T+1}, v{T}, s24
    v_sub_u32 v{T+2}, 0x400, v{T+1}
    v_add_u32 v{T+1}, s22, v{T+1}
    v_and_b32 v{T+3}, 8, v0
    v_cmp_ne_u32 vcc, 0, v{T+3}
    v_cmp_eq_u32 s[42:43], 0, v{T}
    v_lshlrev_b32 v{T+3}, 7, v{T+3}
    v_add_u32 v{T+3}, s40, v{T+3}
    v_cndmask_b32 v{T}, v{T+1}, v{T+2}, vcc
    v_lshrrev_b32 v{T+1}, 4, v0
    v_cndmask_b32 v{T}, v{T}, v{T+3}, s[42:43]
    v_mul_u32_u24 v{VY}, 1280, v{T}
    v_mul_u32_u24 v{T+2}, 40, v{T+1}
    v_add3_u32 v{VY}, v{VY}, v{T+2}, s26
    v_lshlrev_b32 v{VG}, 2, v{T}
    v_sub_u32 v{T+3}, 0x800, v{T}
    v_cmp_lt_u32 vcc, 0x400, v{T}
    v_min_u32 v{T}, v{T}, v{T+3}
    v_and_b32 v{T+3}, 1, v{T}
    v_mul_u32_u24 v{VZ}, {ZP}, v{T+3}
    v_lshrrev_b32 v{T+3}, 1, v{T}
    v_lshl_add_u32 v{VZ}, v{T+3}, 4, v{VZ}
    v_cndmask_b32 v{SH}, 16, 0, vcc
    s_cmp_ge_u32 s20, 4
    s_cselect_b32 s24, 16, 0
    s_cselect_b32 s40, -1, 1
    s_cselect_b32 s41, 155, 0
    v_xor_b32 v{SH}, s24, v{SH}
    s_mul_i32 s24, s20, 20
    v_mul_u32_u24 v{T+3}, 5, v{T+1}
    v_add_u32 v{T+3}, s24, v{T+3}
    v_mul_lo_u32 v{T+3}, v{T+3}, s40
    v_add_u32 v{T+3}, s41, v{T+3}
    v_mul_u32_u24 v{T+3}, {2*ZP}, v{T+3}
    v_add_u32 v{VZ}, v{VZ}, v{T+3}
    s_mul_i32 s22, s16, 25600
    s_waitcnt vmcnt(0)
    {st(5)}
    s_barrier
    {st(6)}
    s_cmp_lg_u32 s16, 3
    s_cbranch_scc1 H_NOSIG
    s_lshl_b32 s23, s17, 7
    s_add_u32 s23, s23, {FLG_OFF + 128*L_Y}
    v_mov_b32 v{T}, s23
    v_mov_b32 v{T+1}, 1
    s_mov_b64 exec, 1
    buffer_atomic_add v{T+1}, v{T}, s[28:31], 0 offen sc1
    s_mov_b64 exec, -1
H_NOSIG:
    s_mov_b32 s25, 0
H_WO:
    """)
    for i in range(5):
        a(f"s_add_u32 m0, s22, {1024*i}\ns_nop 0\nbuffer_load_dwordx4 v{WA+i}, s[32:35], s27 offen lds")
    a(f"""
    s_add_u32 s22, s22, 5120
    s_add_u32 s27, s27, {32*1280}
    s_add_u32 s25, s25, 1
    s_cmp_lt_u32 s25, 5
    s_cbranch_scc1 H_WO
    s_waitcnt vmcnt(0)
    {st(7)}
    s_barrier
    v_lshlrev_b32 v{T}, 7, v0
    v_add_u32 v{T}, {FLG_OFF + 128*L_Y}, v{T}
    """)
    poll(a, T, T + 1, 0xff, 32)
    a(f"s_mov_b32 s26, {Y_OFF}\ns_mov_b32 s27, {G_OFF}\nbuffer_load_dword v{G}, v{VG}, s[28:31], s27 offen sc1")
    for j in range(6):
        a(f"buffer_load_dwordx4 {vr(ZL+4*j,4)}, v{VZ}, s[28:31], s26 offen sc1\ns_add_u32 s26, s26, {2*ZP}")
    a(f"""
    s_mul_i32 s22, s16, 5120
    s_add_u32 s22, s22, {XB}
    v_lshl_add_u32 v{T+4}, v0, 4, s22
    s_barrier
    {st(8)}
    s_waitcnt vmcnt(0)
    s_cmp_ge_u32 s20, 4
    s_cbranch_scc1 H_DESC
    """)
    for k in range(20): a(f"v_lshlrev_b32 v{Y+k}, v{SH}, v{ZL+k}")
    a("s_branch H_UNP\nH_DESC:")
    for k in range(20): a(f"v_lshlrev_b32 v{Y+k}, v{SH}, v{ZL+20-k}")
    a("H_UNP:")
    for k in range(20): a(f"v_and_b32 v{Y+k}, 0xffff0000, v{Y+k}")
    for k in range(20): a(f"v_mul_f32 v{Y+k}, v{Y+k}, v{G}")
    a(f"v_sub_f32 v{G}, 1.0, v{G}\ns_barrier\n{st(10)}")
    for j in range(5):
        a(f"ds_read_b128 {vr(4*j,4)}, v{T+4} offset:{1024*j}\nds_read_b128 {vr(20+4*j,4)}, v{T+4} offset:{20480+1024*j}")
    for j in range(5):
        a(f"s_waitcnt lgkmcnt({8-2*j})")
        for r in range(4): a(f"v_add_f32 v{4*j+r}, v{4*j+r}, v{20+4*j+r}")
        for r in range(4): a(f"v_fmac_f32 v{Y+4*j+r}, v{4*j+r}, v{G}")
        a(f"v_cvt_pk_bf16_f32 v{ZL+2*j}, v{Y+4*j}, v{Y+4*j+1}\nv_cvt_pk_bf16_f32 v{ZL+2*j+1}, v{Y+4*j+2}, v{Y+4*j+3}")
        if j == 1: a(f"buffer_store_dwordx4 {vr(ZL,4)}, v{VY}, s[36:39], 0 offen")
        if j == 3: a(f"buffer_store_dwordx4 {vr(ZL+4,4)}, v{VY}, s[36:39], 0 offen offset:16")
    a(f"buffer_store_dwordx2 {vr(ZL+8,2)}, v{VY}, s[36:39], 0 offen offset:32")

def main():
    a = A()
    top = open("cdna_kernels/" + NAME + ".s.ref").read().split("; Override launch")[0]
    top += "; @launch grid=(256,1,1) block=(768,1,1) lds=163840\n"
    a('.amdgcn_target "amdgcn-amd-amdhsa--gfx950"\n.text')
    d = gen(a)
    open(sys.argv[1], "w").write(top + a.text() + '.section .rodata,"a"\n.p2align 6\n' + d)
if __name__ == "__main__":
    main()
```

```python
import sys, math, struct

NAME = "gated_mix__spectral_fnet__softmax_full_mha__prompt"
HS = 163840
KV_OFF = 0
Q_OFF = 32 * HS
FE_OFF = 64 * HS
FO_DELTA = 655360
X512_OFF = FE_OFF + 2 * FO_DELTA
TB_OFF = X512_OFF + 4096
Y_OFF = TB_OFF + 33 * 65536
ZP = 8704
G_OFF = Y_OFF + 85 * 2 * ZP
OF_OFF = G_OFF + 8192
FLG_OFF = OF_OFF + 2621440
WS_USED = FLG_OFF + 8192
XB = 102400
L_T, L_Y, L_O = 16, 24, 32

def f32bits(x): return struct.unpack("<I", struct.pack("<f", x))[0]
QSCALE = f32bits((20 ** -0.5) * math.log2(math.e))
OPT = dict(x.split("=") for x in sys.argv[2:])
def opt(k, d): return int(OPT.get(k, d))
STAMP = opt("stamp", 0)
STAMP_OFF = 1 << 25
NST = 16

class A:
    def __init__(self): self.l = []; self.n = 0
    def __call__(self, s):
        for line in s.split("\n"):
            t = line.strip()
            if not t: continue
            self.l.append(t if t.endswith(":") or t.startswith(".") else "    " + t)
    def uid(self): self.n += 1; return self.n
    def text(self): return "\n".join(self.l) + "\n"

def vr(a, n): return f"v[{a}:{a+n-1}]" if n > 1 else f"v{a}"
def srd(lo, base, size):
    return f"s_mov_b32 s{lo}, s{base}\ns_mov_b32 s{lo+1}, s{base+1}\ns_mov_b32 s{lo+2}, {size}\ns_mov_b32 s{lo+3}, 0x20000"
OSC = " sc1" if opt("outsc1", 0) else ""
P1ST = opt("p1st", 0)
def st(i, p1=False):
    if not STAMP: return ""
    if P1ST and not p1 and 0 < i < 15 and i not in (4, 5): return ""
    if P1ST and not p1 and i in (4, 5): i += 8
    if p1 and not P1ST: return ""
    return f"{'s_memrealtime' if STAMP in (1, 3, 4) else 's_memtime'} s[{64+2*i}:{65+2*i}]"
def fin(): return "s_branch L_DONE" if STAMP else "s_endpgm"

X_P, WD_P, WQKV_P, WO_P, GATE_P, OUT_P, DBG_P, WS_P = 4, 8, 48, 50, 52, 54, 56, 58

def poll(a, vaddr, vdat, mask, target, sreg=60):
    u = a.uid()
    a(f"""
    s_mov_b64 exec, {mask}
    s_mov_b32 s{sreg}, 0
L_POLL{u}:
    buffer_load_dword v{vdat}, v{vaddr}, s[28:31], 0 offen sc1
    s_waitcnt vmcnt(0)
    v_cmp_gt_u32 vcc, {target}, v{vdat}
    s_cbranch_vccz L_POLLD{u}
    {'s_sleep 1' if opt('psleep', 0) else ''}
    s_add_u32 s{sreg}, s{sreg}, 1
    s_cmp_lt_u32 s{sreg}, 0x40000
    s_cbranch_scc1 L_POLL{u}
L_POLLD{u}:
    s_mov_b64 exec, -1
    """)

def gen(a):
    label = NAME + "_kernel"
    a(f".p2align 8\n.globl {label}\n.type {label},@function\n{label}:")
    a(f"""
    s_cmp_ge_u32 s2, 256
    s_cbranch_scc1 L_END
    {st(0) + chr(10) + 's_waitcnt lgkmcnt(0)' if opt("st0first", 0) else ''}
    s_load_dwordx2 s[4:5], s[0:1], 0
    s_load_dwordx8 s[48:55], s[0:1], 48
    s_load_dwordx4 s[8:11], s[0:1], 24
    s_load_dwordx4 s[56:59], s[0:1], 80
    """)
    if STAMP:
        a("\n".join(f"s_mov_b32 s{64+j}, 0" for j in range(2, 2 * NST)) + "\n" + ("" if opt("st0first", 0) else st(0)))
    a(f"""
    v_lshrrev_b32 v1, 6, v0
    v_and_b32 v0, 63, v0
    s_and_b32 s17, s2, 7
    v_readfirstlane_b32 s16, v1
    s_lshr_b32 s18, s2, 3
    s_and_b32 s19, s18, 7
    s_lshr_b32 s22, s18, 3
    s_and_b32 s21, s17, 1
    s_lshl_b32 s21, s21, 3
    s_add_u32 s21, s21, s19
    s_lshr_b32 s20, s17, 1
    s_cmp_ge_u32 s16, 4
    s_cbranch_scc1 P1_NOTLOADER
    """)
    p1_loader(a)
    a(f"""
P1_NOTLOADER:
    s_cmp_ge_u32 s16, 8
    s_cbranch_scc1 P1_EXTRA
    """)
    p1_compute(a)
    p1_extra(a)
    attention(a)
    helpers(a)
    a("L_DONE:")
    if STAMP == 4:
        i_, j_ = opt("ai", 0), opt("aj", 0)
        a(f"""s_waitcnt vmcnt(0)
        {st(NST-1)}
        s_waitcnt lgkmcnt(0)
        s_cmp_lg_u32 s16, 0
        s_cbranch_scc1 L_END
        s_and_b32 s60, s2, {opt("am", 31)}
        s_cmp_lg_u32 s60, {opt("av", 5)}
        s_cbranch_scc1 L_END
        s_sub_u32 s60, s{64+2*j_}, s{64+2*i_}
        s_lshl_b32 s60, s60, 2
        s_min_u32 s60, s60, 100000
        {f's_mov_b32 s60, {opt("fix", 0)}' if opt("fix", 0) else ''}
L_AMP:
        s_memrealtime s[44:45]
        s_waitcnt lgkmcnt(0)
        s_sub_u32 s44, s44, s{64 if opt("fix", 0) else 64+2*(NST-1)}
        s_cmp_lt_u32 s44, s60
        s_cbranch_scc1 L_AMP
        """)
    elif STAMP == 3:
        r = f"s_waitcnt vmcnt(0)\n{st(NST-1)}\ns_mov_b64 exec, 1\n{srd(44, DBG_P, 256)}\ns_waitcnt lgkmcnt(0)\nv_mov_b32 v16, 0\n"
        r += "s_not_b32 s60, s64\nv_mov_b32 v0, s60\nbuffer_atomic_umax v0, v16, s[44:47], 0 offen offset:4 sc1\n"
        r += "s_cmp_eq_u32 s16, 0\ns_cbranch_scc1 L_D0\ns_cmp_eq_u32 s16, 4\ns_cbranch_scc0 L_END\n"
        for n, i in enumerate((2, 3, 4, 5, 7, 8, 9)): r += f"v_mov_b32 v{n+1}, s{64+2*i}\nbuffer_atomic_umax v{n+1}, v16, s[44:47], 0 offen offset:{8+4*n} sc1\n"
        r += "s_endpgm\nL_D0:\n"
        for n, i in enumerate((0, 1, 6, 8, 9, 10, 15)): r += f"v_mov_b32 v{n+1}, s{64+2*i}\nbuffer_atomic_umax v{n+1}, v16, s[44:47], 0 offen offset:{36+4*n} sc1\n"
        a(r)
    elif STAMP:
        r = f"s_waitcnt vmcnt(0)\n{st(NST-1)}\ns_mov_b64 exec, 1\ns_add_u32 s44, s{WS_P}, {STAMP_OFF}\ns_addc_u32 s45, s{WS_P+1}, 0\ns_mov_b32 s46, 262144\ns_mov_b32 s47, 0x20000\n"
        r += "s_lshl_b32 s60, s2, 4\ns_add_u32 s60, s60, s16\ns_lshl_b32 s60, s60, 6\ns_waitcnt lgkmcnt(0)\nv_mov_b32 v16, 0\n"
        for i in range(NST): r += f"v_mov_b32 v{i}, s{64+2*i}\n"
        for i in range(4): r += f"buffer_store_dwordx4 v[{4*i}:{4*i+3}], v16, s[44:47], s60 offen offset:{16*i}\n"
        a(r)
    a("L_END:\ns_endpgm")
    return f""".amdhsa_kernel {label}
  .amdhsa_next_free_vgpr 168
  .amdhsa_next_free_sgpr {100 if STAMP else 64}
  .amdhsa_accum_offset 168
  .amdhsa_group_segment_fixed_size 0
  .amdhsa_kernarg_size 96
  .amdhsa_user_sgpr_count 2
  .amdhsa_user_sgpr_kernarg_segment_ptr 1
  .amdhsa_system_sgpr_workgroup_id_x 1
.end_amdhsa_kernel
"""

def p1_loader(a):
    a(f"""
    s_setprio 3
    v_lshrrev_b32 v2, 3, v0
    v_and_b32 v3, 7, v0
    v_lshrrev_b32 v4, 4, v0
    v_xor_b32 v3, v3, v4
    v_lshlrev_b32 v3, 4, v3
    v_xor_b32 v4, 64, v3
    s_lshl_b32 s23, s21, 5
    s_lshl_b32 s24, s16, 3
    s_add_u32 s23, s23, s24
    v_add_u32 v5, s23, v2
    v_sub_u32 v6, 0x800, v5
    v_sub_u32 v7, 0x400, v5
    v_add_u32 v8, 0x400, v5
    v_cmp_eq_u32 vcc, 0, v5
    v_mov_b32 v9, 0x200
    v_mov_b32 v10, 0x600
    v_cndmask_b32 v6, v6, v9, vcc
    v_cndmask_b32 v8, v8, v10, vcc
    s_lshl_b32 s26, s22, 2
    s_add_u32 s26, s26, s20
    s_and_b32 s27, s20, 1
    s_movk_i32 s25, 3840
    s_cmp_eq_u32 s22, 3
    s_cselect_b32 s25, 1280, s25
    s_cselect_b32 s26, s27, s26
    s_mul_i32 s26, s26, 320
    s_movk_i32 s27, 1280
    v_mad_u32_u24 v10, v5, s27, v3
    v_mad_u32_u24 v11, v6, s27, v4
    v_mad_u32_u24 v12, v7, s27, v3
    v_mad_u32_u24 v13, v8, s27, v4
    s_lshl_b32 s27, s16, 4
    s_mul_i32 s27, s27, s25
    s_add_u32 s26, s26, s27
    s_sub_u32 s27, s25, 320
    """)
    for i in range(5):
        a(f"""
        v_add_u32 v5, {64*i}, v0
        v_mul_u32_u24 v6, 3277, v5
        v_lshrrev_b32 v6, 16, v6
        v_lshl_add_u32 v5, v5, 4, s26
        v_mad_u32_u24 v{14+i}, v6, s27, v5
        """)
    sg = opt("stag1", 0)
    if sg == 1:
        a("s_lshl_b32 s36, s19, 3\ns_lshl_b32 s37, s22, 4\ns_add_u32 s36, s36, s37\ns_add_u32 s36, s36, s17\ns_and_b32 s36, s36, 63\ns_mul_i32 s36, s36, 10\ns_lshr_b32 s36, s36, 6")
    elif sg == 2:
        a("s_add_u32 s36, s19, s22\ns_lshl_b32 s36, s36, 4\ns_add_u32 s36, s36, s17\ns_add_u32 s36, s36, s17\ns_and_b32 s36, s36, 63\ns_mul_i32 s36, s36, 10\ns_lshr_b32 s36, s36, 6")
    elif sg == 3:
        a("s_add_u32 s36, s19, s22\ns_lshl_b32 s36, s36, 5\ns_lshl_b32 s37, s17, 2\ns_add_u32 s36, s36, s37\ns_and_b32 s36, s36, 63\ns_mul_i32 s36, s36, 10\ns_lshr_b32 s36, s36, 6")
    else:
        a("s_mov_b32 s36, 0")
    a(f"""
    s_lshl_b32 s38, s16, 12
    s_mul_i32 s39, s16, 5120
    s_add_u32 s39, s39, 0x10000
    s_mov_b32 s40, 0
    s_mul_i32 s34, s25, 640
    s_lshl_b32 s25, s25, 6
    s_mov_b32 s35, 0x20000
    s_waitcnt lgkmcnt(0)
    {srd(28, X_P, 2048*1280)}
    s_cmp_lt_u32 s20, 2
    s_cselect_b32 s32, s8, s10
    s_cselect_b32 s33, s9, s11
    s_cmp_eq_u32 s22, 3
    s_cselect_b32 s32, s32, s{WQKV_P}
    s_cselect_b32 s33, s33, s{WQKV_P+1}
    {st(1)}
    """)
    if opt("dftdelay", 0):
        a(f"""s_cmp_lg_u32 s22, 3
        s_cbranch_scc1 P1_LD_LOOP
        s_memrealtime s[46:47]
        s_waitcnt lgkmcnt(0)
        s_add_u32 s46, s46, {opt("dftdelay", 0)}
P1_DLY:
        s_memrealtime s[44:45]
        s_waitcnt lgkmcnt(0)
        s_cmp_lt_u32 s44, s46
        s_cbranch_scc1 P1_DLY
        """)
    a(f"""
P1_LD_LOOP:
    s_lshl_b32 s41, s36, 7
    s_mul_i32 s42, s36, s25
    s_and_b32 s43, s40, 3
    s_lshl_b32 s44, s43, 14
    s_add_u32 s44, s44, s38
    s_mul_i32 s45, s43, 20480
    s_add_u32 s45, s45, s39
    """)
    for i in range(4):
        a(f"s_add_u32 m0, s44, {1024*i}\ns_nop 0\nbuffer_load_dwordx4 v{10+i}, s[28:31], s41 offen lds")
    for i in range(5):
        a(f"s_add_u32 m0, s45, {1024*i}\ns_nop 0\nbuffer_load_dwordx4 v{14+i}, s[32:35], s42 offen lds")
    if opt("noload", 0): a("s_cmp_ge_u32 s40, 3\ns_cselect_b32 s30, 0, s30\ns_cselect_b32 s34, 0, s34")
    a(f"""
    s_add_u32 s36, s36, 1
    s_cmp_eq_u32 s36, 10
    s_cselect_b32 s36, 0, s36
    s_add_u32 s40, s40, 1
    s_cmp_eq_u32 s40, 1
    s_cbranch_scc1 P1_LD_LOOP
    s_waitcnt vmcnt(9)
    s_barrier
    s_cmp_lt_u32 s40, 10
    s_cbranch_scc1 P1_LD_LOOP
    s_waitcnt vmcnt(0)
    s_barrier
    s_branch HELPER
    """)

def p1_compute(a):
    ACC = 0; SA, SB = 80, 104
    L, H5, L31 = 128, 129, 130
    XA0, WA, CX, CW, PC, T0 = 131, 132, 133, 137, 138, 140
    a(f"""
    s_sub_u32 s61, s16, 4
    v_mov_b32 v{L}, v0
    v_lshrrev_b32 v{H5}, 5, v0
    v_and_b32 v{L31}, 31, v0
    v_lshrrev_b32 v{T0}, 1, v{L}
    v_and_b32 v{T0}, 7, v{T0}
    v_xor_b32 v{T0}, v{T0}, v{H5}
    v_lshlrev_b32 v{T0}, 4, v{T0}
    v_lshl_add_u32 v{T0}, v{L31}, 7, v{T0}
    s_lshl_b32 s23, s61, 12
    v_add_u32 v{XA0}, s23, v{T0}
    v_bfe_u32 v{T0}, v{L}, 2, 2
    v_lshl_add_u32 v{T0}, v{H5}, 3, v{T0}
    v_mul_u32_u24 v{T0}, 320, v{T0}
    v_and_b32 v{T0+1}, 3, v{L}
    v_lshlrev_b32 v{T0+1}, 3, v{T0+1}
    v_and_b32 v{T0+2}, 16, v{L}
    v_lshlrev_b32 v{T0+2}, 1, v{T0+2}
    v_add3_u32 v{WA}, v{T0}, v{T0+1}, v{T0+2}
    v_add_u32 v{WA}, 0x10000, v{WA}
    v_mov_b32 v{PC}, 0xbf803f80
    s_lshl_b32 s26, s22, 2
    s_add_u32 s26, s26, s20
    s_cmp_eq_u32 s26, 14
    s_cselect_b32 s24, 1, 0
    s_mov_b32 s25, s24
    s_mov_b32 s40, 0
    """)
    for r in range(80): a(f"v_mov_b32 v{ACC+r}, 0")
    for r in range(24): a(f"v_mov_b32 v{SB+r}, 0")
    a(f"s_waitcnt lgkmcnt(0)\n{srd(28, WS_P, WS_USED)}\n{st(1)}")
    a("s_cmp_ge_u32 s22, 2\ns_cbranch_scc1 P1_LOOP_V")

    def group(cur, nxt, step, qk):
        def mf(T):
            d = vr(ACC + 16 * T, 16); x = vr(cur, 4); w = vr(cur + 4 + 4 * T, 4)
            if opt("nomfma", 0): return "s_nop 0"
            return f"v_mfma_f32_32x32x16_bf16 {d}, {w}, {x}, {d}" if qk else f"v_mfma_f32_32x32x16_bf16 {d}, {x}, {w}, {d}"
        def rw(T):
            if step is None or opt("nolds", 0): return ""
            o = step * 5120 + T * 64; d = nxt + 4 + 4 * T
            return f"ds_read_b64_tr_b16 {vr(d,2)}, v{CW} offset:{o}\nds_read_b64_tr_b16 {vr(d+2,2)}, v{CW} offset:{o+1280}"
        rd = step is not None
        a(f"s_waitcnt lgkmcnt(8)"); a(mf(1))
        if rd: a(f"ds_read_b128 {vr(nxt,4)}, v{CX+step}")
        a(rw(1))
        a(f"s_waitcnt lgkmcnt({9 if rd else 6})"); a(mf(2)); a(rw(2))
        a(f"s_waitcnt lgkmcnt({9 if rd else 4})"); a(mf(3)); a(rw(3))
        a(f"s_waitcnt lgkmcnt({7 if rd else 0})")
        if not qk:
            for j in range(4): a(f"v_cndmask_b32 v{cur+4+j}, v{cur+4+j}, v{PC}, s[24:25]")
        a(mf(4)); a(rw(4))
        if not rd: a("s_nop 0")
        a(mf(0)); a(rw(0))

    for qk, lab in ((True, "QK"), (False, "V")):
        a(f"""
P1_LOOP_{lab}:
        s_and_b32 s41, s40, 3
        s_lshl_b32 s42, s41, 14
        s_mul_i32 s43, s41, 20480
        v_add_u32 v{CX}, s42, v{XA0}
        v_add_u32 v{CW}, s43, v{WA}
        v_xor_b32 v{CX+1}, 32, v{CX}
        v_xor_b32 v{CX+2}, 64, v{CX}
        v_xor_b32 v{CX+3}, 0x60, v{CX}
        s_barrier
        """)
        if STAMP: a(f"s_cmp_lg_u32 s40, 0\ns_cbranch_scc1 P1_ST_{lab}\n{st(2)}\nP1_ST_{lab}:\ns_cmp_lg_u32 s40, 5\ns_cbranch_scc1 P1_SU_{lab}\n{st(1)}\nP1_SU_{lab}:")
        group(SB, SA, 0, qk); group(SA, SB, 1, qk); group(SB, SA, 2, qk); group(SA, SB, 3, qk)
        a(f"s_add_u32 s40, s40, 1\ns_cmp_lt_u32 s40, 10\ns_cbranch_scc1 P1_LOOP_{lab}")
        group(SB, SA, None, qk)
        a(st(3))
        a("s_lshl_b32 s23, s21, 2\ns_add_u32 s23, s23, s61")
        if qk:
            a(f"""
            s_mul_i32 s26, s20, {8*HS}
            s_mul_i32 s27, s23, 2560
            s_add_u32 s26, s26, s27
            s_cmp_eq_u32 s22, 0
            s_cselect_b32 s27, {Q_OFF}, {KV_OFF}
            s_cselect_b32 s36, {QSCALE}, 1.0
            s_mov_b32 s37, s36
            s_add_u32 s26, s26, s27
            v_lshlrev_b32 v{T0}, 4, v{L}
            s_mov_b32 s27, {HS}
            v_bfe_u32 v{T0+1}, v{L}, 4, 1
            v_lshl_add_u32 v{T0+1}, v{T0+1}, 1, v{H5}
            v_mul_lo_u32 v{T0+1}, v{T0+1}, s27
            v_and_b32 v{T0+2}, 15, v{L}
            v_lshl_add_u32 v{T0+1}, v{T0+2}, 4, v{T0+1}
            """)
            for n_, p in enumerate((2, 3, 1, 0)):
                base = SA + (n_ % 2) * 8
                xk = SA + 16 + (n_ // 2) * 4 + (p % 2) * 2
                for gi, dst in ((0, base), (1, base + 2), (3, base + 4), (4, base + 6), (2, xk)):
                    r = ACC + 4 * (5 * p + gi)
                    a(f"v_pk_mul_f32 {vr(r,2)}, {vr(r,2)}, s[36:37]\nv_pk_mul_f32 {vr(r+2,2)}, {vr(r+2,2)}, s[36:37]")
                    a(f"v_cvt_pk_bf16_f32 v{dst}, v{r}, v{r+1}\nv_cvt_pk_bf16_f32 v{dst+1}, v{r+2}, v{r+3}")
                a(f"""
                s_add_u32 s38, s26, {2*p*HS}
                s_add_u32 s39, s26, {(2*p+1)*HS}
                buffer_store_dwordx4 {vr(base,4)}, v{T0}, s[28:31], s38 offen sc1
                buffer_store_dwordx4 {vr(base+4,4)}, v{T0}, s[28:31], s39 offen sc1
                """)
                if n_ % 2 == 1:
                    x4 = SA + 16 + (n_ // 2) * 4
                    a(f"""
                    v_permlane16_swap_b32 v{x4}, v{x4+2}
                    v_permlane16_swap_b32 v{x4+1}, v{x4+3}
                    s_add_u32 s38, s26, {(p // 2) * 4 * HS}
                    buffer_store_dwordx4 {vr(x4,4)}, v{T0+1}, s[28:31], s38 offen offset:1024 sc1
                    """)
            a("s_branch P1_DONE")
        else:
            a("s_cmp_eq_u32 s22, 3\ns_cbranch_scc1 P1_EPI_DFT")
            a(f"""
            s_mul_i32 s26, s20, {8*HS}
            s_mul_i32 s27, s23, 2560
            s_add_u32 s26, s26, s27
            s_add_u32 s26, s26, {KV_OFF + 1280}
            s_mov_b32 s27, {HS - 320}
            v_mul_u32_u24 v{T0+5}, 320, v{H5}
            """)
            for T in range(5):
                a(f"""
                v_add_u32 v{T0+6}, {32*T}, v{L31}
                v_mul_u32_u24 v{T0+7}, 3277, v{T0+6}
                v_lshrrev_b32 v{T0+7}, 16, v{T0+7}
                v_lshl_add_u32 v{T0+6}, v{T0+6}, 4, v{T0+5}
                v_mad_u32_u24 v{T0+T}, v{T0+7}, s27, v{T0+6}
                """)
            for T in (1, 2, 3, 4, 0):
                base = SA + (T % 3) * 8
                for j in range(8):
                    a(f"v_cvt_pk_bf16_f32 v{base+j}, v{ACC+16*T+2*j}, v{ACC+16*T+2*j+1}")
                a(f"buffer_store_dwordx4 {vr(base,4)}, v{T0+T}, s[28:31], s26 offen sc1")
                a(f"buffer_store_dwordx4 {vr(base+4,4)}, v{T0+T}, s[28:31], s26 offen offset:640 sc1")
            a("s_branch P1_DONE")
            TAU, TAU0, VD = T0, T0 + 1, T0 + 2
            a(f"""
P1_EPI_DFT:
            s_cmp_lt_u32 s20, 2
            s_cselect_b32 s36, 1.0, -1.0
            v_mov_b32 v{TAU}, s36
            v_cndmask_b32 v{TAU0}, v{TAU}, 1.0, s[24:25]
            s_mov_b32 s27, {FO_DELTA}
            v_mul_lo_u32 v{VD}, v{H5}, s27
            v_and_b32 v{T0+3}, 15, v{L31}
            v_lshl_add_u32 v{VD}, v{T0+3}, 4, v{VD}
            v_lshrrev_b32 v{T0+3}, 4, v{L31}
            v_lshl_add_u32 v{VD}, v{T0+3}, 14, v{VD}
            s_mul_i32 s26, s20, {5*32768}
            s_lshl_b32 s27, s23, 8
            s_add_u32 s26, s26, s27
            s_add_u32 s26, s26, {FE_OFF}
            s_nop 1
            s_cmp_lg_u32 s23, 0
            s_cbranch_scc1 P1_EPI_DFT2
            s_mov_b32 exec_hi, 0
            s_mul_i32 s27, s20, 640
            s_add_u32 s27, s27, {X512_OFF}
            v_lshlrev_b32 v{T0+3}, 2, v{L31}
            """)
            for T in range(5):
                r = ACC + 16 * T
                a(f"v_fma_f32 v{SA+T}, v{r+12}, v{TAU0 if T == 0 else TAU}, v{r+4}")
                a(f"v_mov_b32 v{r+4}, 0\nv_mov_b32 v{r+12}, 0")
                a(f"buffer_store_dword v{SA+T}, v{T0+3}, s[28:31], s27 offen offset:{128*T} sc1")
            a("s_mov_b32 exec_hi, -1\nP1_EPI_DFT2:")
            for T in range(5):
                r = ACC + 16 * T; tau = TAU0 if T == 0 else TAU
                base = SB + (T % 3) * 4
                for q in range(4):
                    a(f"v_fma_f32 v{r+q}, v{r+4+q}, v{tau}, v{r+q}")
                    a(f"v_fma_f32 v{r+12+q}, v{r+8+q}, v{tau}, v{r+12+q}")
                for q in range(4):
                    a(f"v_add_f32 v{r+4+q}, v{r+q}, v{r+12+q}")
                    a(f"v_sub_f32 v{r+8+q}, v{r+q}, v{r+12+q}")
                a(f"v_cvt_pk_bf16_f32 v{base}, v{r+4}, v{r+5}\nv_cvt_pk_bf16_f32 v{base+1}, v{r+6}, v{r+7}")
                a(f"v_cvt_pk_bf16_f32 v{base+2}, v{r+8}, v{r+9}\nv_cvt_pk_bf16_f32 v{base+3}, v{r+10}, v{r+11}")
                a(f"""
                s_nop 1
                v_permlane32_swap_b32 v{base}, v{base+2}
                v_permlane32_swap_b32 v{base+1}, v{base+3}
                buffer_store_dwordx4 {vr(base,4)}, v{VD}, s[28:31], s26 offen sc1
                s_add_u32 s26, s26, 32768
                """)
    a(f"""
P1_DONE:
    v_mov_b32 v0, v{L}
    s_branch ATT
    """)

def p1_extra(a):
    T0 = 40
    a(f"""
P1_EXTRA:
    s_sub_u32 s61, s16, 8
    v_lshrrev_b32 v37, 4, v0
    v_and_b32 v38, 15, v0
    v_lshlrev_b32 v39, 4, v0
    v_mov_b32 v36, v0
    s_waitcnt lgkmcnt(0)
    {srd(28, WS_P, WS_USED)}
    {srd(32, DBG_P, 256)}
    s_cmp_lg_u32 s61, 0
    s_cbranch_scc1 P1_EX_A
    v_mov_b32 v1, 0
    s_cmp_lg_u32 s2, 0
    s_cbranch_scc1 P1_EX_WAITRDY
    v_lshlrev_b32 v2, 7, v0
    s_mov_b32 s23, {FLG_OFF}
    buffer_store_dword v1, v2, s[28:31], s23 offen sc1
    v_mov_b32 v3, 1
    s_waitcnt vmcnt(0)
    s_mov_b64 exec, 1
    buffer_store_dword v3, v1, s[32:35], 0 offen sc1
    s_mov_b64 exec, -1
P1_EX_WAITRDY:
P1_EX_A:
    s_lshl_b32 s23, s2, 2
    s_add_u32 s23, s23, s61
    s_mov_b32 s40, 0
P1_TBL:
    s_lshr_b32 s24, s23, 5
    s_and_b32 s25, s23, 30
    s_and_b32 s26, s24, 1
    s_lshr_b32 s27, s24, 1
    s_lshl_b32 s27, s27, 6
    s_add_u32 s27, s27, s26
    s_and_b32 s26, s23, 1
    s_lshl_b32 s26, s26, 5
    s_add_u32 s27, s27, s26
    v_lshl_add_u32 v{T0}, v38, 1, s27
    s_lshl_b32 s25, s25, 4
    v_lshl_add_u32 v{T0+1}, v37, 3, s25
    v_mul_u32_u24 v{T0+1}, v{T0}, v{T0+1}
    v_and_b32 v{T0+1}, 0x7ff, v{T0+1}
    v_cvt_f32_u32 v{T0}, v{T0}
    v_cvt_f32_u32 v{T0+1}, v{T0+1}
    v_mul_f32 v{T0}, 0x3a000000, v{T0}
    v_mul_f32 v0, 0x3a000000, v{T0+1}
    """)
    for u in range(1, 8): a(f"v_add_f32 v{u}, v{u-1}, v{T0}")
    for u in range(1, 8): a(f"v_fract_f32 v{u}, v{u}")
    for u in range(8): a(f"v_cos_f32 v{8+u}, v{u}")
    for u in range(8): a(f"v_sin_f32 v{16+u}, v{u}")
    for j in range(4): a(f"v_cvt_pk_bf16_f32 v{24+j}, v{8+2*j}, v{9+2*j}")
    for j in range(4): a(f"v_cvt_pk_bf16_f32 v{28+j}, v{16+2*j}, v{17+2*j}")
    NB0 = opt("tblbar", 8)
    a(f"""
    s_cmp_lg_u32 s40, 0
    s_cbranch_scc1 P1_TBL_ST
    """ + "".join(f"s_barrier\n{st(1 + b_, True)}\n" for b_ in range(NB0)) + f"""
    s_mov_b32 s40, 1
P1_TBL_ST:
    s_lshl_b32 s24, s23, 11
    s_add_u32 s24, s24, {TB_OFF}
    buffer_store_dwordx4 v[24:27], v39, s[28:31], s24 offen sc1
    buffer_store_dwordx4 v[28:31], v39, s[28:31], s24 offen offset:1024 sc1
    s_add_u32 s23, s23, 1024
    s_cmp_lt_u32 s23, 1056
    s_cbranch_scc1 P1_TBL
    """)
    nb = NB0
    tl = opt("tlb", 0)
    if tl:
        n_ws = (WS_USED + (1 << tl) - 1) >> tl
        a(f"{srd(44, OUT_P, 2621440)}\nv_lshlrev_b32 v40, {tl}, v36\ns_lshl_b32 s23, s61, {tl+6}")
        for i in range((n_ws + 255) // 256):
            a(f"buffer_load_dword v41, v40, s[28:31], s23 offen sc1\ns_add_u32 s23, s23, {256 << tl}")
        a(f"s_lshl_b32 s23, s61, {tl+6}\nbuffer_load_dword v41, v40, s[44:47], s23 offen sc1")
        a(f"{srd(44, WO_P, 819200)}\nbuffer_load_dword v41, v40, s[44:47], s23 offen sc1")
    if opt("pretouch", 0):
        a(f"""
        s_lshl_b32 s23, s21, 2
        s_add_u32 s23, s23, s61
        s_mul_i32 s26, s20, {8*HS}
        s_mul_i32 s27, s23, 2560
        s_add_u32 s26, s26, s27
        s_cmp_eq_u32 s22, 0
        s_cselect_b32 s27, {Q_OFF}, {KV_OFF}
        s_add_u32 s26, s26, s27
        s_cmp_eq_u32 s22, 2
        s_cselect_b32 s27, 1280, 0
        s_add_u32 s26, s26, s27
        s_cmp_eq_u32 s22, 3
        s_cselect_b32 s26, 0x40000000, s26
        v_lshrrev_b32 v40, 4, v36
        s_mov_b32 s27, {HS}
        v_mul_lo_u32 v40, v40, s27
        v_and_b32 v41, 15, v36
        v_lshl_add_u32 v40, v41, 4, v40
        """)
        for hd in range(8):
            if hd % 2 == 0: a("s_barrier"); nb += 1
            if hd % 4 == 0: a(f"buffer_store_dwordx4 v[24:27], v40, s[28:31], s26 offen offset:1024 sc1")
            a(f"buffer_store_dwordx4 v[24:27], v39, s[28:31], s26 offen sc1\ns_add_u32 s26, s26, {HS}")
    a("".join(f"s_barrier\n{st(1 + b_, True)}\n" for b_ in range(nb, 9)))
    u = a.uid()
    a(f"""
    s_cmp_lg_u32 s61, 0
    s_cbranch_scc1 P1_EX_B
    v_mov_b32 v1, 0
    s_mov_b32 s60, 0
L_RDY{u}:
    buffer_load_dword v2, v1, s[32:35], 0 offen sc1
    s_waitcnt vmcnt(0)
    v_cmp_ne_u32 vcc, 0, v2
    s_cbranch_vccnz P1_EX_B
    s_sleep 1
    s_add_u32 s60, s60, 1
    s_cmp_lt_u32 s60, 0x40000
    s_cbranch_scc1 L_RDY{u}
P1_EX_B:
    s_waitcnt vmcnt(0)
    s_barrier
    {st(10, True)}
    v_mov_b32 v0, v36
    """)

def attention(a):
    O = [0, 16]; S = [32, 48]; P = 64
    Q1 = [72, 76]; Q2 = [80, 82]; K2 = 84; K1 = 88; V1 = 92; V2 = [96, 100]
    AK1, AK2, AV, L31, H5, OA1, OA2, T = 104, 105, 106, 107, 108, 109, 110, 112
    VA, VT, BMM, BMT = 164, 165, 166, 167
    a(f"""
ATT:
    s_setprio 2
    s_lshr_b32 s19, s18, 3
    s_lshl_b32 s23, s17, 2
    s_add_u32 s19, s19, s23
    s_and_b32 s62, s18, 7
    s_mul_i32 s21, s19, {HS}
    s_sub_u32 s61, s16, 4
    s_and_b32 s36, s61, 3
    s_lshr_b32 s37, s61, 2
    v_and_b32 v{L31}, 31, v0
    v_lshrrev_b32 v{H5}, 5, v0
    v_lshlrev_b32 v{AK1}, 4, v0
    v_lshrrev_b32 v{AK2}, 4, v{L31}
    v_lshl_add_u32 v{AK2}, v{AK2}, 1, v{H5}
    v_and_b32 v{AV}, 15, v0
    v_lshl_add_u32 v{AK2}, v{AV}, 2, v{AK2}
    v_lshlrev_b32 v{AK2}, 2, v{AK2}
    v_mul_u32_u24 v{AV}, 320, v{H5}
    v_lshl_add_u32 v{AV}, v{L31}, 4, v{AV}
    v_mov_b32 v{VA}, v{AK1}
    v_and_b32 v{T}, 7, v0
    v_bfe_u32 v{T+2}, v0, 3, 1
    v_lshrrev_b32 v{T+1}, 4, v0
    v_lshlrev_b32 v{VT}, 8, v{T+1}
    v_lshl_add_u32 v{VT}, v{T}, 4, v{VT}
    v_lshl_add_u32 v{VT}, v{T+2}, 3, v{VT}
    s_lshr_b32 s23, s18, 2
    s_lshl_b32 s24, s37, 1
    s_add_u32 s23, s23, s24
    s_and_b32 s23, s23, 3
    s_lshl_b32 s25, s17, 2
    s_and_b32 s24, s18, 3
    s_add_u32 s25, s25, s24
    s_lshl_b32 s25, s25, 2
    s_add_u32 s25, s25, s36
    s_mul_i32 s25, s25, 20480
    s_add_u32 s25, s25, {OF_OFF}
    s_lshl_b32 s44, s23, 12
    s_add_u32 s44, s44, s25
    s_lshl_b32 s46, s23, 10
    s_add_u32 s46, s46, s25
    s_add_u32 s46, s46, 16384
    s_cmp_eq_u32 s23, 3
    s_cselect_b32 s63, -3, 1
    s_lshl_b32 s45, s63, 12
    s_add_u32 s45, s45, s44
    s_lshl_b32 s47, s63, 10
    s_add_u32 s47, s47, s46
    s_mul_i32 s63, s63, 25600
    s_mul_i32 s24, s23, 25600
    v_bfe_u32 v{T}, v0, 2, 2
    v_and_b32 v{T+3}, 3, v0
    v_mul_u32_u24 v{T+3}, 40, v{T+3}
    v_mul_u32_u24 v{T+2}, 40, v{T+1}
    v_add3_u32 v{T+2}, v{T+2}, v{T}, 16
    v_mul_u32_u24 v{T+2}, 160, v{T+2}
    v_add3_u32 v{BMT}, v{T+2}, v{T+3}, s24
    v_lshrrev_b32 v{T+2}, 1, v{T+1}
    v_mul_u32_u24 v{T+2}, 20, v{T+2}
    v_and_b32 v{T+1}, 1, v{T+1}
    v_lshl_add_u32 v{T+2}, v{T+1}, 2, v{T+2}
    v_add_u32 v{T+2}, v{T+2}, v{T}
    v_mul_u32_u24 v{T+2}, 160, v{T+2}
    v_add3_u32 v{BMM}, v{T+2}, v{T+3}, s24
    s_waitcnt vmcnt(0)
    {st(4)}
    s_barrier
    s_cmp_eq_u32 s16, 9
    s_cbranch_scc1 ATT_POLL
    s_cmp_lg_u32 s16, 8
    s_cbranch_scc1 ATT_NOSYNC
    s_lshl_b32 s23, s22, 2
    s_add_u32 s23, s23, s20
    s_lshl_b32 s23, s23, 7
    s_add_u32 s23, s23, {FLG_OFF}
    s_lshl_b32 s24, s17, 7
    s_add_u32 s24, s24, {FLG_OFF + 128*L_T}
    v_mov_b32 v{T}, s23
    v_mov_b32 v{T+1}, 1
    v_writelane_b32 v{T}, s24, 1
    s_mov_b64 exec, 3
    buffer_atomic_add v{T+1}, v{T}, s[28:31], 0 offen sc1
    s_mov_b64 exec, -1
    s_branch ATT_NOSYNC
ATT_POLL:
    s_lshr_b32 s23, s19, 3
    s_lshl_b32 s23, s23, 7
    s_add_u32 s23, s23, {FLG_OFF}
    v_lshlrev_b32 v{T+2}, 9, v0
    v_add_u32 v{T+2}, s23, v{T+2}
    """)
    poll(a, T + 2, T + 3, 7, 16)
    a(f"""
ATT_NOSYNC:
    s_lshl_b32 s38, s62, 3
    s_lshl_b32 s23, s36, 1
    s_add_u32 s38, s38, s23
    s_mul_i32 s23, s38, 2560
    s_add_u32 s23, s23, s21
    s_add_u32 s23, s23, {Q_OFF}
    s_add_u32 s38, s38, s37
    s_barrier
    {st(5)}
    buffer_load_dwordx4 {vr(Q1[0],4)}, v{AK1}, s[28:31], s23 offen sc1
    buffer_load_dword v{Q2[0]}, v{AK2}, s[28:31], s23 offen offset:1024 sc1
    buffer_load_dwordx4 {vr(Q1[1],4)}, v{AK1}, s[28:31], s23 offen offset:2560 sc1
    buffer_load_dword v{Q2[1]}, v{AK2}, s[28:31], s23 offen offset:3584 sc1
    s_mov_b32 s24, 0xfffff
    s_mov_b32 s25, 0xfffff
    v_mov_b32 v{Q2[0]+1}, 0
    v_mov_b32 v{Q2[1]+1}, 0
    v_mov_b32 v{K2+1}, 0x3f803f80
    v_and_b32 v{T}, 27, v{L31}
    v_cmp_eq_u32 vcc, 24, v{T}
    v_mov_b32 v{T}, 0
    s_mul_i32 s27, s38, 40960
    v_cndmask_b32 v{V1}, v{T}, v{K2+1}, vcc
    s_add_u32 s27, s27, {OF_OFF}
    v_bfe_u32 v{OA2}, v{L31}, 3, 1
    v_mul_u32_u24 v{OA2}, 20480, v{OA2}
    v_and_b32 v{T}, 7, v{L31}
    v_lshl_add_u32 v{OA2}, v{T}, 4, v{OA2}
    v_lshrrev_b32 v{T}, 4, v0
    v_lshl_add_u32 v{OA1}, v{T}, 7, v{OA2}
    s_lshl_b32 s32, s19, 9
    s_add_u32 s32, s32, s27
    s_lshl_b32 s33, s19, 7
    s_add_u32 s33, s33, s27
    s_add_u32 s33, s33, 16384
    """)
    for r in range(1, 12): a(f"v_mov_b32 v{V1+r}, v{V1}")
    for r in range(32): a(f"v_mov_b32 v{r}, 0")
    for r in range(4): a(f"v_mov_b32 v{P+4+r}, 0")
    def qk1(x): return f"v_mfma_f32_32x32x16_bf16 {vr(S[x],16)}, {vr(K1,4)}, {vr(Q1[x],4)}, 0"
    def qk2(x): return f"v_mfma_f32_32x32x8_bf16 {vr(S[x],16)}, {vr(K2,2)}, {vr(Q2[x],2)}, {vr(S[x],16)}"
    def pv(x, v, p): return f"v_mfma_f32_32x32x16_bf16 {vr(O[x],16)}, {vr(v,4)}, {vr(p,4)}, {vr(O[x],16)}"
    def rdk1(o): return f"ds_read_b128 {vr(K1,4)}, v{AK1} offset:{o}"
    def rdk2(o): return f"ds_read_b32 v{K2}, v{AK2} offset:{o+1024}"
    def rdv(o, v2): return f"s_mov_b64 exec, s[24:25]\nds_read_b128 {vr(V1,4)}, v{AV} offset:{o+1280}\nds_read_b128 {vr(v2,4)}, v{AV} offset:{o+1920}\ns_mov_b64 exec, -1"
    def maxtree(s, m, first):
        if first:
            a(f"v_max3_f32 v{m}, v{s}, v{s+1}, v{s+2}")
            for j in range(3, 15, 2): a(f"v_max3_f32 v{m}, v{s+j}, v{s+j+1}, v{m}")
            a(f"v_max_f32 v{m}, v{s+15}, v{m}")
        else:
            for j in range(0, 16, 2): a(f"v_max3_f32 v{m}, v{s+j}, v{s+j+1}, v{m}")
    def xhalf(m):
        a(f"v_mov_b32 v{m+1}, v{m}\ns_nop 1\nv_permlane32_swap_b32 v{m}, v{m+1}\ns_nop 0\nv_max_f32 v{m}, v{m}, v{m+1}")
    a(f"""
    s_mul_i32 s23, s37, 2560
    s_barrier
    {st(6)}
    {rdk1(0)}
    {rdk2(0)}
    v_add_u32 v{AK1}, s23, v{AK1}
    v_add_u32 v{AK2}, s23, v{AK2}
    v_add_u32 v{AV}, s23, v{AV}
    s_waitcnt vmcnt(0) lgkmcnt(0)
    {st(13)}
    {qk1(0)}
    {qk2(0)}
    {qk1(1)}
    {qk2(1)}
    {rdk1(0)}
    {rdk2(0)}
    {rdv(0, V2[0])}
    s_nop 3
    """)
    for r in range(4): a(f"v_mov_b32 v{P+r}, -1")
    a(f"buffer_store_dwordx4 {vr(P,4)}, v{OA1}, s[28:31], s32 offen sc1\ns_mov_b64 exec, 0xffff\nbuffer_store_dwordx4 {vr(P,4)}, v{OA2}, s[28:31], s33 offen sc1\ns_mov_b64 exec, -1")
    maxtree(S[0], T, True); maxtree(S[1], T + 2, True); xhalf(T); xhalf(T + 2)
    a(f"""
    v_mul_f32 v{T}, -0.5, v{T}
    v_mul_f32 v{T+2}, -0.5, v{T+2}
    v_cvt_pk_bf16_f32 v{Q2[0]+1}, v{T}, 0
    v_cvt_pk_bf16_f32 v{Q2[1]+1}, v{T+2}, 0
    s_waitcnt lgkmcnt(0)
    {qk1(0)}
    {qk2(0)}
    s_mov_b32 s26, 0
    s_setprio {opt("prio0", 2)}
    {st(14)}
    s_barrier
    {st(7)}
    s_nop 7
ATT_LOOP:
    """)
    def e(s, j): return f"v_exp_f32 v{s+j}, v{s+j}"
    def c(s, j): return f"v_cvt_pk_bf16_f32 v{P+j}, v{s+2*j}, v{s+2*j+1}"
    PL = opt("place", 0)
    for i in range(4):
        for x in (0, 1):
            cur = S[x]; y = 1 - x
            o = (i + 1) * 5120
            if PL == 1 and x == 0: a(rdv(o - 5120, V2[i % 2]))
            if x == 1: a("s_waitcnt lgkmcnt(0)")
            a(qk1(y))
            if PL == 0 and x == 0: a(rdk1(o))
            for q in range(4): a(e(cur, q))
            if PL == 1 and x == 0: a(rdk1(o))
            a(pv(y, V2[(i + 1) % 2] if x == 0 else V2[i % 2], P + 4))
            for q in range(4, 8): a(e(cur, q))
            a(c(cur, 0)); a(c(cur, 1))
            a(qk2(y))
            if PL == 0 and x == 0: a(rdk2(o))
            a(c(cur, 2)); a(c(cur, 3))
            for q in range(8, 12): a(e(cur, q))
            if PL == 1 and x == 0: a(rdk2(o))
            if x == 0: a("s_waitcnt lgkmcnt(2)")
            a(pv(x, V1, P))
            if PL == 0 and x == 1: a(rdv(o, V2[(i + 1) % 2]))
            for q in range(12, 16): a(e(cur, q))
            for q in range(4, 8): a(c(cur, q))
    a(f"""
    v_add_u32 v{AK1}, 0x5000, v{AK1}
    v_add_u32 v{AK2}, 0x5000, v{AK2}
    v_add_u32 v{AV}, 0x5000, v{AV}
    s_add_u32 s26, s26, 1
    s_bitcmp1_b32 {0xa6 if opt('b2', 0) else 0xa2}, s26
    s_cbranch_scc0 ATT_NOBAR
    s_waitcnt vmcnt(0)
    s_barrier
    {st(10)}
ATT_NOBAR:
    """)
    if opt("prio0", 2):
        a(f"s_cmp_eq_u32 s26, {opt('pt1', 4)}\ns_cbranch_scc0 ATT_NP1\ns_setprio 1\nATT_NP1:\ns_cmp_eq_u32 s26, {opt('pt2', 7)}\ns_cbranch_scc0 ATT_NP2\ns_setprio 0\nATT_NP2:")
    a(f"""
    s_cmp_lt_u32 s26, 8
    s_cbranch_scc1 ATT_LOOP
    {pv(1, V2[1], P+4)}
    {st(8)}
    s_mul_i32 s23, s61, 5120
    s_xor_b32 s35, s61, 4
    s_mul_i32 s35, s35, 5120
    s_add_u32 s23, s23, {XB}
    s_add_u32 s35, s35, {XB}
    v_add_u32 v{T+1}, s35, v{VA}
    v_add_u32 v{T}, s23, v{VA}
    s_nop 3
    s_cmp_eq_u32 s37, 0
    s_cbranch_scc1 ATT_X0
    """)
    for j in range(4): a(f"ds_write_b128 v{T}, {vr(O[0]+4*j,4)} offset:{1024*j}")
    a("s_nop 1")
    for r in range(13): a(f"v_mov_b32 v{O[0]+r}, v{O[1]+r}")
    for r in range(4): a(f"v_mov_b32 v{Q1[0]+r}, v{Q1[1]+r}")
    a(f"v_mov_b32 v{Q2[0]}, v{Q2[1]}\ns_branch ATT_X1\nATT_X0:")
    for j in range(4): a(f"ds_write_b128 v{T}, {vr(O[1]+4*j,4)} offset:{1024*j}")
    a("ATT_X1:\ns_waitcnt lgkmcnt(0)\ns_barrier")
    for j in range(4): a(f"ds_read_b128 {vr(S[0]+4*j,4)}, v{T+1} offset:{1024*j}")
    a("s_waitcnt lgkmcnt(0)")
    for r in range(13): a(f"v_add_f32 v{r}, v{r}, v{S[0]+r}")
    Oo = 0
    a(f"v_add_f32 v{T}, |v{Oo}|, |v{Oo+1}|\nv_add_f32 v{T+1}, |v{Oo+2}|, |v{Oo+3}|")
    for j in range(4, 12, 2): a(f"v_add_f32 v{T}, |v{Oo+j}|, v{T}\nv_add_f32 v{T+1}, |v{Oo+j+1}|, v{T+1}")
    a(f"""
    v_add_f32 v{T}, v{T}, v{Oo+12}
    s_mov_b32 s27, 0x3e800000
    v_add_f32 v{T}, v{T}, v{T+1}
    v_cmp_le_f32 s[42:43], s27, v{Oo+12}
    s_mov_b32 s27, 0x71800000
    v_cmp_gt_f32 vcc, s27, v{T}
    s_and_b64 vcc, vcc, s[42:43]
    s_cmp_eq_u64 vcc, -1
    s_cbranch_scc0 ATT_FALLBACK
ATT_FINISH:
    v_rcp_f32 v{T}, v{Oo+12}
    s_nop 0
    """)
    for j in range(12): a(f"v_mul_f32 v{Oo+j}, v{Oo+j}, v{T}")
    for j in range(6): a(f"v_cvt_pk_bf16_f32 v{P+j}, v{Oo+2*j}, v{Oo+2*j+1}")
    for j in range(6): a(f"v_min_u32 v{P+j}, -2, v{P+j}")
    a(f"""
    buffer_store_dwordx4 {vr(P,4)}, v{OA1}, s[28:31], s32 offen sc1
    s_nop 0
    v_permlane16_swap_b32 v{P+4}, v{P+6}
    v_permlane16_swap_b32 v{P+5}, v{P+7}
    s_mov_b64 exec, 0xffff
    buffer_store_dwordx4 {vr(P+4,4)}, v{OA2}, s[28:31], s33 offen sc1
    s_mov_b64 exec, -1
    {st(9)}
    """)
    OFR, AC3, BF, NS = 0, 40, 72, 23
    def rdb(n):
        sp, t = divmod(n, 5); d = BF + 4 * (n % NS); g, k = divmod(sp, 5)
        r = ""
        if k < 4:
            if k == 0 and t == 0 and g: r = f"v_add_u32 v{BMM}, s63, v{BMM}\n"
            b = BMM; o = k * 6400 + t * 8; dj = 1280
        else:
            if t == 0 and g: r = f"v_add_u32 v{BMT}, s63, v{BMT}\n"
            b = BMT; o = t * 8; dj = 3200
        return r + f"ds_read_b64_tr_b16 {vr(d,2)}, v{b} offset:{o}\nds_read_b64_tr_b16 {vr(d+2,2)}, v{b} offset:{o+dj}"
    def ldg(g):
        r = ""
        for k in range(4):
            r += f"buffer_load_dwordx4 {vr(OFR+20*g+4*k,4)}, v{VA}, s[28:31], s{44+g} offen offset:{1024*k} sc1\n"
        r += f"buffer_load_dwordx2 {vr(OFR+20*g+16,2)}, v{VT}, s[28:31], s{46+g} offen sc1\n"
        r += f"buffer_load_dwordx2 {vr(OFR+20*g+18,2)}, v{VT}, s[28:31], s{46+g} offen offset:128 sc1\n"
        return r
    def chk(g, retry, again):
        b = OFR + 20 * g
        a(f"v_max3_u32 v61, v{b}, v{b+1}, v{b+2}\nv_max3_u32 v62, v{b+3}, v{b+4}, v{b+5}")
        for j in range(6, 18, 4): a(f"v_max3_u32 v61, v{b+j}, v{b+j+1}, v61\nv_max3_u32 v62, v{b+j+2}, v{b+j+3}, v62")
        a(f"""
        v_max3_u32 v61, v{b+18}, v{b+19}, v61
        s_add_u32 s26, s26, 1
        v_max_u32 v61, v61, v62
        s_cmp_lt_u32 s26, 0x40000
        v_cmp_eq_u32 vcc, -1, v61
        s_cbranch_scc0 P3_OK{g}
        s_cbranch_vccnz {retry}
P3_OK{g}:
        """)
    for n in range(NS): a(rdb(n))
    for r in range(20): a(f"v_mov_b32 v{AC3+r}, 0")
    a(f"v_add_u32 v60, s35, v{VA}\ns_mov_b32 s26, 0\n{st(11)}\nP3_R0:")
    a(ldg(0))
    a("s_waitcnt vmcnt(0) lgkmcnt(0)")
    chk(0, "P3_R0", None)
    a(ldg(1))
    for n in range(50):
        sp, t = divmod(n, 5)
        if n == 25:
            a("s_branch P3_C1\nP3_R1:"); a(ldg(1)); a("P3_C1:\ns_waitcnt vmcnt(0)")
            chk(1, "P3_R1", None)
        if n >= NS and (n - NS) % 5 == 0:
            need = min(n + 4, 49); issued = min(n + NS - 1, 49)
            a(f"s_waitcnt lgkmcnt({min(14, 2 * (issued - need))})")
        a(f"v_mfma_f32_16x16x32_bf16 {vr(AC3+4*t,4)}, {vr(BF+4*(n%NS),4)}, {vr(OFR+4*sp,4)}, {vr(AC3+4*t,4)}")
        if n + NS < 50: a(rdb(n + NS))
    a(f"{st(12)}\ns_nop 3")
    for j in range(5): a(f"ds_write_b128 v60, {vr(AC3+4*j,4)} offset:{1024*j}")
    a(f"s_waitcnt lgkmcnt(0)\ns_barrier\n{fin()}")
    def gk(): return f"buffer_load_dwordx4 {vr(K1,4)}, v{AK1}, s[28:31], s23 offen sc1\nbuffer_load_dword v{K2}, v{AK2}, s[28:31], s23 offen offset:1024 sc1"
    a(f"""
ATT_FALLBACK:
    s_mul_i32 s23, s37, 2560
    s_add_u32 s23, s23, {HS}
    v_mov_b32 v{Q2[0]+1}, 0
    v_mov_b32 v{T}, 0xff800000
    v_subrev_u32 v{AK1}, s23, v{AK1}
    v_subrev_u32 v{AK2}, s23, v{AK2}
    v_subrev_u32 v{AV}, s23, v{AV}
    s_add_u32 s23, s21, {KV_OFF}
    s_mov_b32 s26, 0
ATT_FB1:
    {gk()}
    s_add_u32 s23, s23, 2560
    s_waitcnt vmcnt(0)
    {qk1(0)}
    {qk2(0)}
    s_nop 15
    """)
    maxtree(S[0], T, False)
    a("s_add_u32 s26, s26, 1\ns_cmp_lt_u32 s26, 64\ns_cbranch_scc1 ATT_FB1")
    xhalf(T)
    a(f"s_add_u32 s23, s21, {KV_OFF}\ns_mov_b32 s26, 0")
    for r in range(16): a(f"v_mov_b32 v{r}, 0")
    a(f"""
ATT_FB2:
    {gk()}
    s_mov_b64 exec, s[24:25]
    buffer_load_dwordx4 {vr(V1,4)}, v{AV}, s[28:31], s23 offen offset:1280 sc1
    buffer_load_dwordx4 {vr(V2[0],4)}, v{AV}, s[28:31], s23 offen offset:1920 sc1
    s_mov_b64 exec, -1
    s_add_u32 s23, s23, 2560
    s_waitcnt vmcnt(0)
    {qk1(0)}
    {qk2(0)}
    s_nop 15
    """)
    for q in range(16): a(f"v_sub_f32 v{S[0]+q}, v{S[0]+q}, v{T}")
    for q in range(16): a(e(S[0], q))
    a("s_nop 0")
    for q in range(8): a(c(S[0], q))
    a(f"""
    s_nop 1
    {pv(0, V1, P)}
    {pv(0, V2[0], P+4)}
    s_add_u32 s26, s26, 1
    s_cmp_lt_u32 s26, 64
    s_cbranch_scc1 ATT_FB2
    s_nop 15
    s_branch ATT_FINISH
    """)

def helpers(a):
    a(f"""
HELPER:
    {st(2)}
    {srd(28, WS_P, WS_USED)}
    s_lshr_b32 s19, s18, 3
    s_lshl_b32 s23, s17, 2
    s_add_u32 s19, s19, s23
    s_and_b32 s62, s18, 7
    s_mul_i32 s21, s19, {HS}
    v_lshlrev_b32 v1, 4, v0
    s_lshl_b32 s22, s16, 10
    s_add_u32 s24, s21, s22
    s_add_u32 s24, s24, {KV_OFF}
    s_setprio {opt("hp0", 1)}
    s_barrier
    s_barrier
    {st(3)}
    """)
    n0 = opt("dma0", 10)
    for n in range(40):
        a(f"s_add_u32 m0, s22, {4096*n}\ns_add_u32 s26, s24, {4096*n}\nbuffer_load_dwordx4 v1, s[28:31], s26 offen sc1 lds")
        if n == 6: a("s_setprio 3\ns_waitcnt vmcnt(5)\ns_barrier")
        if n == n0 - 1: a(f"s_waitcnt vmcnt({n0 - 7})\ns_barrier")
    a(f"""
    {'s_waitcnt vmcnt(28)' + chr(10) + 's_barrier' if opt("b2", 0) else ''}
    s_waitcnt vmcnt(0)
    {st(4)}
    s_barrier
    v_mov_b32 v167, v0
    s_cmp_lt_u32 s16, 3
    s_cbranch_scc1 H_FNET
    """)
    a(f"""
    {srd(32, X_P, 2048*1280)}
    {srd(36, GATE_P, 1280)}
    v_lshrrev_b32 v2, 3, v0
    v_and_b32 v3, 7, v0
    v_lshlrev_b32 v3, 4, v3
    s_movk_i32 s22, 1280
    v_mad_u32_u24 v4, v2, s22, v3
    s_mul_i32 s23, s2, {8*1280}
    """)
    for j in range(10):
        a(f"buffer_load_dwordx4 {vr(24+8*j,4)}, v4, s[32:35], s23 offen offset:{128*j}")
        a(f"buffer_load_dwordx4 {vr(28+8*j,4)}, v3, s[36:39], 0 offen offset:{128*j}")
    a("v_mov_b32 v5, 0\nv_mov_b32 v6, 0\ns_waitcnt vmcnt(0)")
    for j in range(10):
        for q in range(4):
            a(f"v_dot2c_f32_bf16 v{5 + (q & 1)}, v{24+8*j+q}, v{28+8*j+q}")
    a(f"""
    s_nop 2
    v_add_f32 v5, v5, v6
    s_nop 1
    v_add_f32_dpp v5, v5, v5 quad_perm:[1,0,3,2] row_mask:0xf bank_mask:0xf
    s_nop 1
    v_add_f32_dpp v5, v5, v5 quad_perm:[2,3,0,1] row_mask:0xf bank_mask:0xf
    s_nop 1
    v_add_f32_dpp v5, v5, v5 row_half_mirror row_mask:0xf bank_mask:0xf
    v_mul_f32 v5, {f32bits(-math.log2(math.e)):#x}, v5
    v_exp_f32 v5, v5
    v_lshlrev_b32 v2, 2, v2
    v_add_f32 v5, 1.0, v5
    v_rcp_f32 v5, v5
    s_lshl_b32 s23, s2, 5
    s_add_u32 s23, s23, {G_OFF}
    buffer_store_dword v5, v2, s[28:31], s23 offen sc1
    s_branch H_MID
    """)
    C, SN, FB = 0, 8, 16
    a(f"""
H_FNET:
    s_lshl_b32 s22, s16, 5
    s_add_u32 s22, s22, s18
    s_cmp_lt_u32 s22, 84
    s_cbranch_scc1 H_FN_A
    s_sub_u32 s24, s22, 84
    s_lshl_b32 s24, s24, 3
    s_add_u32 s24, s24, s17
    s_cmp_ge_u32 s24, 21
    s_cbranch_scc1 H_MID
    s_mov_b32 s23, 32
    s_branch H_FN_B
H_FN_A:
    s_mul_i32 s23, s22, 3121
    s_lshr_b32 s23, s23, 16
    s_mul_i32 s24, s23, 21
    s_sub_u32 s24, s22, s24
    s_lshl_b32 s23, s23, 3
    s_add_u32 s23, s23, s17
H_FN_B:
    v_lshlrev_b32 v2, 7, v0
    v_add_u32 v2, {FLG_OFF + 128*L_T}, v2
    """)
    poll(a, 2, 3, 0xff, 32)
    a(f"""
    s_and_b32 s25, s23, 1
    s_add_u32 s26, s24, 20
    s_cmp_eq_u32 s24, 20
    s_cselect_b32 s26, 20, s26
    s_lshl_b32 s32, s23, 16
    s_add_u32 s32, s32, {TB_OFF}
    s_mul_i32 s27, s25, {FO_DELTA}
    s_add_u32 s27, s27, {FE_OFF}
    s_lshl_b32 s33, s24, 14
    s_add_u32 s33, s33, s27
    s_lshl_b32 s34, s26, 14
    s_add_u32 s34, s34, s27
    s_cmp_eq_u32 s25, 0
    s_cselect_b32 s35, s24, s26
    s_lshl_b32 s35, s35, 6
    s_add_u32 s35, s35, {X512_OFF}
    v_and_b32 v162, 48, v0
    v_mov_b32 v163, v1
    buffer_load_dwordx4 v[156:159], v162, s[28:31], s35 offen sc1
    """)
    def fl(j):
        r = FB + 24 * j
        s_ = f"buffer_load_dwordx4 {vr(r,4)}, v163, s[28:31], s33 offen offset:{1024*j} sc1\n"
        s_ += f"buffer_load_dwordx4 {vr(r+4,4)}, v163, s[28:31], s34 offen offset:{1024*j} sc1\n"
        for k in range(4): s_ += f"buffer_load_dwordx4 {vr(r+8+4*k,4)}, v163, s[28:31], s32 offen offset:{1024*k} sc1\n"
        s_ += "s_add_u32 s32, s32, 4096\n"
        if j == 3: s_ += "s_add_u32 s33, s33, 4096\ns_add_u32 s34, s34, 4096\n"
        return s_
    def fm(j):
        r = FB + 24 * j
        s_ = ""
        for sub in range(2):
            s_ += f"v_mfma_f32_16x16x32_bf16 {vr(C+4*sub,4)}, {vr(r,4)}, {vr(r+8+8*sub,4)}, {vr(C+4*sub,4)}\n"
            s_ += f"v_mfma_f32_16x16x32_bf16 {vr(SN+4*sub,4)}, {vr(r+4,4)}, {vr(r+12+8*sub,4)}, {vr(SN+4*sub,4)}\n"
        return s_
    for j in range(4): a(fl(j))
    a(f"""
    v_lshlrev_b32 v160, 31, v167
    s_cmp_eq_u32 s25, 0
    s_cselect_b32 s36, 1.0, 0
    s_cselect_b32 s37, 0, 1.0
    v_or_b32 v161, s37, v160
    v_or_b32 v160, s36, v160
    s_waitcnt vmcnt(24)
    """)
    for r in range(8): a(f"v_mul_f32 v{C+r}, v160, v{156 + r % 4}\nv_mul_f32 v{SN+r}, v161, v{156 + r % 4}")
    a("s_mov_b32 s38, 0\nH_FN_LOOP:")
    for j in range(4):
        a("s_waitcnt vmcnt(18)"); a(fm(j)); a(fl(j))
    a("s_add_u32 s38, s38, 1\ns_cmp_lt_u32 s38, 3\ns_cbranch_scc1 H_FN_LOOP")
    for j in range(4):
        a(f"s_waitcnt vmcnt({18-6*j})"); a(fm(j))
    a(f"""
    s_cmp_eq_u32 s26, 20
    s_cselect_b32 s44, 0xffff, 0
    s_mov_b32 s45, 0
    v_lshrrev_b32 v32, 4, v167
    v_mul_u32_u24 v32, {2*ZP}, v32
    v_and_b32 v33, 15, v167
    v_lshl_add_u32 v32, v33, 4, v32
    s_mul_i32 s26, s24, {8*ZP}
    s_mul_i32 s27, s25, {ZP}
    s_add_u32 s26, s26, s27
    s_lshr_b32 s27, s23, 1
    s_lshl_b32 s27, s27, 9
    s_add_u32 s26, s26, s27
    s_add_u32 s26, s26, {Y_OFF}
    v_cndmask_b32 v{SN}, v{SN}, 0, s[44:45]
    v_cndmask_b32 v{SN+4}, v{SN+4}, 0, s[44:45]
    """)
    for r in range(8):
        a(f"v_add_f32 v{16+r}, v{C+r}, v{SN+r}\nv_sub_f32 v{C+r}, v{C+r}, v{SN+r}")
    for r in range(8): a(f"v_cvt_pk_bf16_f32 v{16+r}, v{16+r}, v{C+r}")
    a("buffer_store_dwordx4 v[16:19], v32, s[28:31], s26 offen sc1\nbuffer_store_dwordx4 v[20:23], v32, s[28:31], s26 offen offset:256 sc1")
    WA = 100; ZL = 40; Y = 64; G = 148; VY = 150; VG = 154; VZ = 155; T = 156; SH = 151
    a(f"""
H_MID:
    v_mov_b32 v0, v167
    s_lshl_b32 s19, s17, 2
    s_and_b32 s20, s18, 3
    s_add_u32 s19, s19, s20
    s_lshr_b32 s20, s18, 2
    {srd(32, WO_P, 640*1280)}
    {srd(36, OUT_P, 2621440)}
    s_mul_i32 s26, s20, 160
    s_mul_i32 s27, s16, {160*1280}
    s_add_u32 s27, s27, s26
    s_movk_i32 s23, {1280 - 160}
    """)
    for i in range(5):
        a(f"""
        v_add_u32 v{T}, {64*i}, v0
        v_mul_u32_u24 v{T+1}, 6554, v{T}
        v_lshrrev_b32 v{T+1}, 16, v{T+1}
        v_lshlrev_b32 v{T}, 4, v{T}
        v_mad_u32_u24 v{WA+i}, v{T+1}, s23, v{T}
        """)
    a(f"""
    s_lshl_b32 s21, s19, 2
    s_add_u32 s21, s21, s16
    s_lshr_b32 s22, s21, 1
    s_lshl_b32 s22, s22, 3
    v_and_b32 v{T}, 7, v0
    v_add_u32 v{T}, s22, v{T}
    s_bitcmp1_b32 s21, 0
    s_cselect_b32 s22, 0x800, 0
    s_cselect_b32 s24, -1, 1
    s_cselect_b32 s40, 0x200, 0
    v_mul_lo_u32 v{T+1}, v{T}, s24
    v_sub_u32 v{T+2}, 0x400, v{T+1}
    v_add_u32 v{T+1}, s22, v{T+1}
    v_and_b32 v{T+3}, 8, v0
    v_cmp_ne_u32 vcc, 0, v{T+3}
    v_cmp_eq_u32 s[42:43], 0, v{T}
    v_lshlrev_b32 v{T+3}, 7, v{T+3}
    v_add_u32 v{T+3}, s40, v{T+3}
    v_cndmask_b32 v{T}, v{T+1}, v{T+2}, vcc
    v_lshrrev_b32 v{T+1}, 4, v0
    v_cndmask_b32 v{T}, v{T}, v{T+3}, s[42:43]
    v_mul_u32_u24 v{VY}, 1280, v{T}
    v_mul_u32_u24 v{T+2}, 40, v{T+1}
    v_add3_u32 v{VY}, v{VY}, v{T+2}, s26
    v_lshlrev_b32 v{VG}, 2, v{T}
    v_sub_u32 v{T+3}, 0x800, v{T}
    v_cmp_lt_u32 vcc, 0x400, v{T}
    v_min_u32 v{T}, v{T}, v{T+3}
    v_and_b32 v{T+3}, 1, v{T}
    v_mul_u32_u24 v{VZ}, {ZP}, v{T+3}
    v_lshrrev_b32 v{T+3}, 1, v{T}
    v_lshl_add_u32 v{VZ}, v{T+3}, 4, v{VZ}
    v_cndmask_b32 v{SH}, 16, 0, vcc
    s_cmp_ge_u32 s20, 4
    s_cselect_b32 s24, 16, 0
    s_cselect_b32 s40, -1, 1
    s_cselect_b32 s41, 155, 0
    v_xor_b32 v{SH}, s24, v{SH}
    s_mul_i32 s24, s20, 20
    v_mul_u32_u24 v{T+3}, 5, v{T+1}
    v_add_u32 v{T+3}, s24, v{T+3}
    v_mul_lo_u32 v{T+3}, v{T+3}, s40
    v_add_u32 v{T+3}, s41, v{T+3}
    v_mul_u32_u24 v{T+3}, {2*ZP}, v{T+3}
    v_add_u32 v{VZ}, v{VZ}, v{T+3}
    s_mul_i32 s22, s16, 25600
    s_waitcnt vmcnt(0)
    {st(5)}
    s_barrier
    {st(6)}
    s_cmp_lg_u32 s16, 3
    s_cbranch_scc1 H_NOSIG
    s_lshl_b32 s23, s17, 7
    s_add_u32 s23, s23, {FLG_OFF + 128*L_Y}
    v_mov_b32 v{T}, s23
    v_mov_b32 v{T+1}, 1
    s_mov_b64 exec, 1
    buffer_atomic_add v{T+1}, v{T}, s[28:31], 0 offen sc1
    s_mov_b64 exec, -1
H_NOSIG:
    s_mov_b32 s25, 0
H_WO:
    """)
    for i in range(5):
        a(f"s_add_u32 m0, s22, {1024*i}\ns_nop 0\nbuffer_load_dwordx4 v{WA+i}, s[32:35], s27 offen lds")
    a(f"""
    s_add_u32 s22, s22, 5120
    s_add_u32 s27, s27, {32*1280}
    s_add_u32 s25, s25, 1
    s_cmp_lt_u32 s25, 5
    s_cbranch_scc1 H_WO
    s_waitcnt vmcnt(0)
    {st(7)}
    s_barrier
    v_lshlrev_b32 v{T}, 7, v0
    v_add_u32 v{T}, {FLG_OFF + 128*L_Y}, v{T}
    """)
    poll(a, T, T + 1, 0xff, 32)
    a(f"s_mov_b32 s26, {Y_OFF}\ns_mov_b32 s27, {G_OFF}\nbuffer_load_dword v{G}, v{VG}, s[28:31], s27 offen sc1")
    for j in range(6):
        a(f"buffer_load_dwordx4 {vr(ZL+4*j,4)}, v{VZ}, s[28:31], s26 offen sc1\ns_add_u32 s26, s26, {2*ZP}")
    a(f"""
    s_mul_i32 s22, s16, 5120
    s_add_u32 s22, s22, {XB}
    v_lshl_add_u32 v{T+4}, v0, 4, s22
    s_barrier
    {st(8)}
    s_waitcnt vmcnt(0)
    s_cmp_ge_u32 s20, 4
    s_cbranch_scc1 H_DESC
    """)
    for k in range(20): a(f"v_lshlrev_b32 v{Y+k}, v{SH}, v{ZL+k}")
    a("s_branch H_UNP\nH_DESC:")
    for k in range(20): a(f"v_lshlrev_b32 v{Y+k}, v{SH}, v{ZL+20-k}")
    a("H_UNP:")
    for k in range(20): a(f"v_and_b32 v{Y+k}, 0xffff0000, v{Y+k}")
    for k in range(20): a(f"v_mul_f32 v{Y+k}, v{Y+k}, v{G}")
    a(f"v_sub_f32 v{G}, 1.0, v{G}\ns_barrier\n{st(10)}")
    for j in range(5):
        a(f"ds_read_b128 {vr(4*j,4)}, v{T+4} offset:{1024*j}\nds_read_b128 {vr(20+4*j,4)}, v{T+4} offset:{20480+1024*j}")
    for j in range(5):
        a(f"s_waitcnt lgkmcnt({8-2*j})")
        for r in range(4): a(f"v_add_f32 v{4*j+r}, v{4*j+r}, v{20+4*j+r}")
        for r in range(4): a(f"v_fmac_f32 v{Y+4*j+r}, v{4*j+r}, v{G}")
        a(f"v_cvt_pk_bf16_f32 v{ZL+2*j}, v{Y+4*j}, v{Y+4*j+1}\nv_cvt_pk_bf16_f32 v{ZL+2*j+1}, v{Y+4*j+2}, v{Y+4*j+3}")
        if j == 1: a(f"buffer_store_dwordx4 {vr(ZL,4)}, v{VY}, s[36:39], 0 offen" + OSC)
        if j == 3: a(f"buffer_store_dwordx4 {vr(ZL+4,4)}, v{VY}, s[36:39], 0 offen offset:16" + OSC)
    a(f"buffer_store_dwordx2 {vr(ZL+8,2)}, v{VY}, s[36:39], 0 offen offset:32" + OSC)

def main():
    a = A()
    top = open("cdna_kernels/" + NAME + ".s.ref").read().split("; Override launch")[0]
    top += "; @launch grid=(256,1,1) block=(768,1,1) lds=163840\n"
    a('.amdgcn_target "amdgcn-amd-amdhsa--gfx950"\n.text')
    d = gen(a)
    open(sys.argv[1], "w").write(top + a.text() + '.section .rodata,"a"\n.p2align 6\n' + d)
if __name__ == "__main__":
    main()
```

```python
import sys, math, struct

OPT = dict(x.split("=") for x in sys.argv[2:])
def opt(k, d): return int(OPT.get(k, d))
NAME = "gated_mix__spectral_fnet__softmax_full_mha__prompt"
HS = 163840
KV_OFF = 0
HG = HS + opt('pad', 512)
HQ = 81920 + opt('pad', 512)
Q_OFF = 32 * HG
FE_OFF = Q_OFF + 32 * HQ
FO_DELTA = 655360
X512_OFF = FE_OFF + 2 * FO_DELTA
TB_OFF = X512_OFF + 4096
Y_OFF = TB_OFF + 33 * 65536
ZP = 8704
G_OFF = Y_OFF + 85 * 2 * ZP
OF_OFF = G_OFF + 8192
FLG_OFF = OF_OFF + 2621440
WS_USED = FLG_OFF + 320 * 128
XB = 102400
L_Y = 256
QLDS = 61440
RB0, RSL = 11264, 36864
LFB = 158720
WOL = 5120
AK1, AK2, AV, BK1, BK2, BV, OA1, OA2, ONES, PA, FA = range(152, 163)
VA, VT, BMM, BMT, CM, CT = 163, 164, 165, 166, 160, 161
PXB = 107520
def p3_addr(l):
    return f"""v_lshlrev_b32 v{VA}, 4, v{l}
    v_and_b32 v2, 7, v{l}
    v_bfe_u32 v4, v{l}, 3, 1
    v_lshrrev_b32 v3, 4, v{l}
    v_lshlrev_b32 v{VT}, 8, v3
    v_lshl_add_u32 v{VT}, v2, 4, v{VT}
    v_lshl_add_u32 v{VT}, v4, 3, v{VT}
    v_bfe_u32 v2, v{l}, 2, 2
    v_and_b32 v5, 3, v{l}
    v_mul_u32_u24 v5, 40, v5
    v_mul_u32_u24 v4, 40, v3
    v_add3_u32 v4, v4, v2, 16
    v_mul_u32_u24 v4, 160, v4
    v_add_u32 v{BMT}, v4, v5
    v_lshrrev_b32 v4, 1, v3
    v_mul_u32_u24 v4, 20, v4
    v_and_b32 v3, 1, v3
    v_lshl_add_u32 v4, v3, 2, v4
    v_add_u32 v4, v4, v2
    v_mul_u32_u24 v4, 160, v4
    v_add_u32 v{BMM}, v4, v5"""

def f32bits(x): return struct.unpack("<I", struct.pack("<f", x))[0]
QSCALE = f32bits((20 ** -0.5) * math.log2(math.e))
STAMP = opt("stamp", 0)
STAMP_OFF = 1 << 25
NST = 16

class A:
    def __init__(self): self.l = []; self.n = 0
    def __call__(self, s):
        for line in s.split("\n"):
            t = line.strip()
            if not t: continue
            self.l.append(t if t.endswith(":") or t.startswith(".") else "    " + t)
    def uid(self): self.n += 1; return self.n
    def text(self): return "\n".join(self.l) + "\n"

def vr(a, n): return f"v[{a}:{a+n-1}]" if n > 1 else f"v{a}"
def srd(lo, base, size):
    return f"s_mov_b32 s{lo}, s{base}\ns_mov_b32 s{lo+1}, s{base+1}\ns_mov_b32 s{lo+2}, {size}\ns_mov_b32 s{lo+3}, 0x20000"
OSC = " sc1" if opt("outsc1", 0) else ""
P1ST = opt("p1st", 0)
def st(i, p1=False):
    if not STAMP: return ""
    if P1ST and not p1 and 0 < i < 15 and i not in (4, 5): return ""
    if P1ST and not p1 and i in (4, 5): i += 8
    if p1 and not P1ST: return ""
    return f"{'s_memrealtime' if STAMP in (1, 3, 4) else 's_memtime'} s[{64+2*i}:{65+2*i}]"
def fin(): return "s_branch L_DONE" if STAMP else "s_endpgm"

X_P, WD_P, WQKV_P, WO_P, GATE_P, OUT_P, DBG_P, WS_P = 4, 8, 48, 50, 52, 54, 56, 58

def poll(a, vaddr, vdat, mask, target, sreg=60):
    u = a.uid()
    a(f"""
    s_mov_b64 exec, {mask}
    s_mov_b32 s{sreg}, 0
L_POLL{u}:
    buffer_load_dword v{vdat}, v{vaddr}, s[28:31], 0 offen sc1
    s_waitcnt vmcnt(0)
    v_cmp_gt_u32 vcc, {target}, v{vdat}
    s_cbranch_vccz L_POLLD{u}
    {'s_sleep 1' if opt('psleep', 0) else ''}
    s_add_u32 s{sreg}, s{sreg}, 1
    s_cmp_lt_u32 s{sreg}, 0x40000
    s_cbranch_scc1 L_POLL{u}
L_POLLD{u}:
    s_mov_b64 exec, -1
    """)

def poll4(a, vaddr, vdat, mask, soff="0", sreg=60, slp=None):
    u = a.uid()
    a(f"""
    s_mov_b64 exec, {mask}
    s_mov_b32 s{sreg}, 0
    s_branch L_POLLE{u}
L_POLL{u}:
    s_sleep {slp or opt("ps4", 2)}
L_POLLE{u}:
    buffer_load_dwordx4 {vr(vdat,4)}, v{vaddr}, s[28:31], {soff} offen sc1
    s_add_u32 s{sreg}, s{sreg}, 1
    s_waitcnt vmcnt(0)
    v_min3_u32 v{vdat}, v{vdat}, v{vdat+1}, v{vdat+2}
    s_cmp_lt_u32 s{sreg}, 0x40000
    v_min_u32 v{vdat}, v{vdat}, v{vdat+3}
    s_cbranch_scc0 L_POLLD{u}
    v_cmp_eq_u32 vcc, 0, v{vdat}
    s_cbranch_vccnz L_POLL{u}
L_POLLD{u}:
    s_mov_b64 exec, -1
    """)

def gen(a):
    label = NAME + "_kernel"
    a(f".p2align 8\n.globl {label}\n.type {label},@function\n{label}:")
    a(f"""
    s_cmp_ge_u32 s2, 256
    s_cbranch_scc1 L_END
    {st(0) + chr(10) + 's_waitcnt lgkmcnt(0)' if opt("st0first", 0) else ''}
    s_load_dwordx2 s[4:5], s[0:1], 0
    s_load_dwordx8 s[48:55], s[0:1], 48
    s_load_dwordx4 s[8:11], s[0:1], 24
    s_load_dwordx4 s[56:59], s[0:1], 80
    """)
    if STAMP:
        a("\n".join(f"s_mov_b32 s{64+j}, 0" for j in range(2, 2 * NST)) + "\n" + ("" if opt("st0first", 0) else st(0)))
    a(f"""
    v_lshrrev_b32 v1, 6, v0
    v_and_b32 v0, 63, v0
    s_and_b32 s17, s2, 7
    v_readfirstlane_b32 s16, v1
    s_lshr_b32 s18, s2, 3
    s_and_b32 s19, s18, 7
    s_lshr_b32 s22, s18, 3
    s_and_b32 s21, s17, 1
    s_lshl_b32 s23, s19, 1
    s_add_u32 s21, s21, s23
    s_lshr_b32 s20, s17, 1
    s_cmp_ge_u32 s16, 4
    s_cbranch_scc1 P1_NOTLOADER
    """)
    p1_loader(a)
    a(f"""
P1_NOTLOADER:
    s_lshl_b32 s63, s17, 2
    s_add_u32 s63, s63, s22
    s_mul_i32 s14, s63, {HG}
    s_sub_u32 s13, s16, 4
    s_lshl_b32 s23, s19, 3
    s_add_u32 s23, s23, s13
    s_mul_i32 s23, s23, 40960
    s_add_u32 s23, s23, {OF_OFF}
    s_lshl_b32 s6, s63, 9
    s_add_u32 s6, s6, s23
    s_lshl_b32 s7, s63, 7
    s_add_u32 s7, s7, s23
    s_add_u32 s7, s7, 16384
    s_lshl_b32 s15, s20, 2
    s_add_u32 s15, s15, s22
    s_lshl_b32 s15, s15, 4
    s_add_u32 s15, s15, s21
    s_lshl_b32 s15, s15, 5
    s_add_u32 s15, s15, s13
    s_lshl_b32 s15, s15, 2
    s_add_u32 s15, s15, {FLG_OFF}
    v_and_b32 v1, 31, v0
    v_lshrrev_b32 v2, 5, v0
    v_lshlrev_b32 v{AK1}, 4, v0
    v_lshrrev_b32 v3, 4, v1
    v_lshl_add_u32 v3, v3, 1, v2
    v_and_b32 v4, 15, v0
    v_lshl_add_u32 v3, v4, 2, v3
    v_lshlrev_b32 v{AK2}, 2, v3
    v_mul_u32_u24 v{AV}, 384, v2
    v_lshlrev_b32 v3, 6, v2
    v_cmp_gt_u32 vcc, 16, v1
    s_nop 1
    v_cndmask_b32 v{AV}, v3, v{AV}, vcc
    v_lshl_add_u32 v{AV}, v1, 4, v{AV}
    v_add_u32 v{BK1}, 15360, v{AK1}
    v_add_u32 v{BK2}, 15360, v{AK2}
    v_add_u32 v{BV}, 15360, v{AV}
    v_and_b32 v3, 27, v1
    v_cmp_eq_u32 vcc, 24, v3
    v_mov_b32 v3, 0x3f803f80
    v_bfe_u32 v{OA2}, v1, 3, 1
    v_cndmask_b32 v{ONES}, 0, v3, vcc
    v_mul_u32_u24 v{OA2}, 20480, v{OA2}
    v_and_b32 v3, 7, v1
    v_lshl_add_u32 v{OA2}, v3, 4, v{OA2}
    v_lshrrev_b32 v3, 4, v0
    v_lshl_add_u32 v{OA1}, v3, 7, v{OA2}
    s_lshl_b32 s23, s13, 2
    s_add_u32 s23, s23, {LFB}
    v_mov_b32 v{PA}, s23
    v_mov_b32 v{FA}, {LFB + 56}
    {p3_addr(0)}
    s_cmp_ge_u32 s16, 8
    s_cbranch_scc1 P1_EXTRA
    """)
    p1_compute(a)
    p1_extra(a)
    attention(a)
    helpers(a)
    a("L_DONE:")
    if STAMP == 4:
        i_, j_ = opt("ai", 0), opt("aj", 0)
        a(f"""s_waitcnt vmcnt(0)
        {st(NST-1)}
        s_waitcnt lgkmcnt(0)
        s_cmp_lg_u32 s16, 0
        s_cbranch_scc1 L_END
        s_and_b32 s60, s2, {opt("am", 31)}
        s_cmp_lg_u32 s60, {opt("av", 5)}
        s_cbranch_scc1 L_END
        s_sub_u32 s60, s{64+2*j_}, s{64+2*i_}
        s_lshl_b32 s60, s60, 2
        s_min_u32 s60, s60, 100000
        {f's_mov_b32 s60, {opt("fix", 0)}' if opt("fix", 0) else ''}
L_AMP:
        s_memrealtime s[44:45]
        s_waitcnt lgkmcnt(0)
        s_sub_u32 s44, s44, s{64 if opt("fix", 0) else 64+2*(NST-1)}
        s_cmp_lt_u32 s44, s60
        s_cbranch_scc1 L_AMP
        """)
    elif STAMP == 3:
        r = f"s_waitcnt vmcnt(0)\n{st(NST-1)}\ns_mov_b64 exec, 1\n{srd(44, DBG_P, 256)}\ns_waitcnt lgkmcnt(0)\nv_mov_b32 v16, 0\n"
        r += "s_not_b32 s60, s64\nv_mov_b32 v0, s60\nbuffer_atomic_umax v0, v16, s[44:47], 0 offen offset:4 sc1\n"
        r += "s_cmp_eq_u32 s16, 0\ns_cbranch_scc1 L_D0\ns_cmp_eq_u32 s16, 4\ns_cbranch_scc0 L_END\n"
        for n, i in enumerate((2, 3, 4, 5, 7, 8, 9)): r += f"v_mov_b32 v{n+1}, s{64+2*i}\nbuffer_atomic_umax v{n+1}, v16, s[44:47], 0 offen offset:{8+4*n} sc1\n"
        r += "s_endpgm\nL_D0:\n"
        for n, i in enumerate((0, 1, 6, 8, 9, 10, 15)): r += f"v_mov_b32 v{n+1}, s{64+2*i}\nbuffer_atomic_umax v{n+1}, v16, s[44:47], 0 offen offset:{36+4*n} sc1\n"
        a(r)
    elif STAMP:
        r = f"s_waitcnt vmcnt(0)\n{st(NST-1)}\ns_mov_b64 exec, 1\ns_add_u32 s44, s{WS_P}, {STAMP_OFF}\ns_addc_u32 s45, s{WS_P+1}, 0\ns_mov_b32 s46, 262144\ns_mov_b32 s47, 0x20000\n"
        r += "s_lshl_b32 s60, s2, 4\ns_add_u32 s60, s60, s16\ns_lshl_b32 s60, s60, 6\ns_waitcnt lgkmcnt(0)\nv_mov_b32 v16, 0\n"
        for i in range(NST): r += f"v_mov_b32 v{i}, s{64+2*i}\n"
        for i in range(4): r += f"buffer_store_dwordx4 v[{4*i}:{4*i+3}], v16, s[44:47], s60 offen offset:{16*i}\n"
        a(r)
    a("L_END:\ns_endpgm\n.fill 256, 4, 0xbf810000\nL_CODE_END:")
    return f""".amdhsa_kernel {label}
  .amdhsa_next_free_vgpr 168
  .amdhsa_next_free_sgpr {100 if STAMP else 64}
  .amdhsa_accum_offset 168
  .amdhsa_group_segment_fixed_size 0
  .amdhsa_kernarg_size 96
  .amdhsa_user_sgpr_count 2
  .amdhsa_user_sgpr_kernarg_segment_ptr 1
  .amdhsa_system_sgpr_workgroup_id_x 1
.end_amdhsa_kernel
"""

def p1_loader(a):
    a(f"""
    s_setprio 3
    v_lshrrev_b32 v2, 3, v0
    v_and_b32 v3, 7, v0
    v_lshrrev_b32 v4, 4, v0
    v_xor_b32 v3, v3, v4
    v_lshlrev_b32 v3, 4, v3
    v_xor_b32 v4, 64, v3
    s_lshl_b32 s23, s21, 5
    s_lshr_b32 s24, s16, 1
    s_lshl_b32 s24, s24, 4
    s_add_u32 s23, s23, s24
    v_add_u32 v9, s23, v2
    s_bitcmp1_b32 s16, 0
    s_cselect_b32 s23, -1, 1
    s_cselect_b32 s24, 0x400, 0
    s_cselect_b32 s25, -8, 8
    v_mul_lo_u32 v10, v9, s23
    s_sub_u32 s27, 0x800, s24
    v_add_u32 v5, s24, v10
    v_sub_u32 v7, s27, v10
    v_add_u32 v6, s25, v5
    v_subrev_u32 v8, s25, v7
    v_cmp_eq_u32 vcc, 0, v9
    s_add_u32 s24, s24, 0x200
    v_mov_b32 v9, s24
    s_cmp_lg_u32 s22, 2
    v_cndmask_b32 v7, v7, v9, vcc
    s_cbranch_scc1 P1_LD_NV
    v_swap_b32 v6, v7
P1_LD_NV:
    s_lshl_b32 s26, s22, 2
    s_add_u32 s26, s26, s20
    s_and_b32 s27, s20, 1
    s_movk_i32 s25, 3840
    s_cmp_eq_u32 s22, 3
    s_cselect_b32 s25, 1280, s25
    s_cselect_b32 s26, s27, s26
    s_mul_i32 s26, s26, 320
    s_movk_i32 s27, 1280
    v_mad_u32_u24 v10, v5, s27, v3
    v_mad_u32_u24 v11, v6, s27, v4
    v_mad_u32_u24 v12, v7, s27, v3
    v_mad_u32_u24 v13, v8, s27, v4
    s_lshl_b32 s27, s16, 4
    s_mul_i32 s27, s27, s25
    s_add_u32 s26, s26, s27
    s_sub_u32 s27, s25, 320
    """)
    for i in range(5):
        a(f"""
        v_add_u32 v5, {64*i}, v0
        v_mul_u32_u24 v6, 3277, v5
        v_lshrrev_b32 v6, 16, v6
        v_lshrrev_b32 v7, 2, v6
        v_and_b32 v7, 2, v7
        v_xor_b32 v5, v5, v7
        v_lshl_add_u32 v5, v5, 4, s26
        v_mad_u32_u24 v{14+i}, v6, s27, v5
        """)
    sg = opt("stag1", 0)
    if sg == 1:
        a("s_lshl_b32 s36, s19, 3\ns_lshl_b32 s37, s22, 4\ns_add_u32 s36, s36, s37\ns_add_u32 s36, s36, s17\ns_and_b32 s36, s36, 63\ns_mul_i32 s36, s36, 10\ns_lshr_b32 s36, s36, 6")
    elif sg == 2:
        a("s_add_u32 s36, s19, s22\ns_lshl_b32 s36, s36, 4\ns_add_u32 s36, s36, s17\ns_add_u32 s36, s36, s17\ns_and_b32 s36, s36, 63\ns_mul_i32 s36, s36, 10\ns_lshr_b32 s36, s36, 6")
    elif sg == 3:
        a("s_add_u32 s36, s19, s22\ns_lshl_b32 s36, s36, 5\ns_lshl_b32 s37, s17, 2\ns_add_u32 s36, s36, s37\ns_and_b32 s36, s36, 63\ns_mul_i32 s36, s36, 10\ns_lshr_b32 s36, s36, 6")
    else:
        a("s_mov_b32 s36, 0")
    a(f"""
    s_lshl_b32 s38, s16, 12
    s_add_u32 s38, s38, {RB0}
    s_mul_i32 s39, s16, 5120
    s_add_u32 s39, s39, {RB0 + 16384}
    s_mov_b32 s40, 0
    s_mul_i32 s34, s25, 640
    s_lshl_b32 s25, s25, 6
    s_mov_b32 s35, 0x20000
    s_waitcnt lgkmcnt(0)
    {srd(28, X_P, 2048*1280)}
    s_cmp_lt_u32 s20, 2
    s_cselect_b32 s32, s8, s10
    s_cselect_b32 s33, s9, s11
    s_cmp_eq_u32 s22, 3
    s_cselect_b32 s32, s32, s{WQKV_P}
    s_cselect_b32 s33, s33, s{WQKV_P+1}
    {st(1)}
    """)
    if opt("dftdelay", 0):
        a(f"""s_cmp_lg_u32 s22, 3
        s_cbranch_scc1 P1_LD_LOOP
        s_memrealtime s[46:47]
        s_waitcnt lgkmcnt(0)
        s_add_u32 s46, s46, {opt("dftdelay", 0)}
P1_DLY:
        s_memrealtime s[44:45]
        s_waitcnt lgkmcnt(0)
        s_cmp_lt_u32 s44, s46
        s_cbranch_scc1 P1_DLY
        """)
    a(f"""
P1_LD_LOOP:
    s_lshl_b32 s41, s36, 7
    s_mul_i32 s42, s36, s25
    s_add_u32 s43, s40, 2
    s_and_b32 s43, s43, 3
    s_mul_i32 s43, s43, {RSL}
    s_add_u32 s44, s43, s38
    s_add_u32 s45, s43, s39
    """)
    for i in range(4):
        a(f"s_add_u32 m0, s44, {1024*i}\ns_nop 0\nbuffer_load_dwordx4 v{10+i}, s[28:31], s41 offen lds")
    for i in range(5):
        a(f"s_add_u32 m0, s45, {1024*i}\ns_nop 0\nbuffer_load_dwordx4 v{14+i}, s[32:35], s42 offen lds")
    if opt("noload", 0): a("s_cmp_ge_u32 s40, 3\ns_cselect_b32 s30, 0, s30\ns_cselect_b32 s34, 0, s34")
    a(f"""
    s_add_u32 s36, s36, 1
    s_cmp_eq_u32 s36, 10
    s_cselect_b32 s36, 0, s36
    s_add_u32 s40, s40, 1
    s_cmp_eq_u32 s40, 1
    s_cbranch_scc1 P1_LD_LOOP
    s_waitcnt vmcnt(9)
    s_barrier
    s_cmp_lt_u32 s40, 10
    s_cbranch_scc1 P1_LD_LOOP
    s_waitcnt vmcnt(0)
    s_barrier
    s_branch HELPER
    """)

def p1_compute(a):
    X = 80; W = [96, 116]; XA = 136; WA = 137; CX = 142; CW = 144; PC = 149; L = 150; TT = 96
    def acc(b, T): return 20 * b + 4 * T
    a(f"""
    s_sub_u32 s61, s16, 4
    s_and_b32 s36, s61, 1
    s_lshr_b32 s37, s61, 1
    v_mov_b32 v{L}, v0
    v_and_b32 v1, 15, v0
    v_lshrrev_b32 v2, 4, v0
    v_lshrrev_b32 v3, 1, v1
    v_xor_b32 v3, v3, v2
    v_lshlrev_b32 v3, 4, v3
    v_lshl_add_u32 v3, v1, 7, v3
    s_lshl_b32 s23, s36, 13
    s_add_u32 s23, s23, {RB0}
    v_add_u32 v{XA}, s23, v3
    v_bfe_u32 v3, v0, 2, 2
    v_lshl_add_u32 v3, v2, 3, v3
    v_mul_u32_u24 v3, 320, v3
    v_add_u32 v3, {RB0 + 16384}, v3
    v_and_b32 v4, 16, v0
    v_lshlrev_b32 v4, 1, v4
    v_and_b32 v5, 3, v0
    s_mul_i32 s23, s37, 160
    v_lshl_add_u32 v6, v5, 3, s23
    """)
    for T in range(4):
        a(f"v_xor_b32 v7, v6, v4\nv_add_u32 v{WA+T}, v7, v3\nv_add_u32 v6, 40, v6")
    a(f"""
    v_mul_u32_u24 v6, 40, v5
    v_add3_u32 v6, v6, s23, 32
    v_xor_b32 v7, v6, v4
    v_add_u32 v{WA+4}, v7, v3
    v_mov_b32 v{PC}, 0xbf803f80
    s_lshl_b32 s26, s22, 2
    s_add_u32 s26, s26, s20
    s_lshl_b32 s26, s26, 1
    s_add_u32 s26, s26, s37
    s_cmp_eq_u32 s26, 28
    s_cselect_b32 s24, 0x10001, 0
    s_mov_b32 s25, s24
    s_cmp_eq_u32 s22, 3
    s_cselect_b32 s43, 10, 8
    s_mov_b32 s40, 0
    s_mov_b32 s42, {2 * RSL}
    """)
    for r in range(96): a(f"v_mov_b32 v{r}, 0")
    for r in range(20): a(f"v_mov_b32 v{W[1]+r}, 0")
    a(f"v_add_u32 v{CX}, s42, v{XA}")
    for T in range(5): a(f"v_add_u32 v{CW+T}, s42, v{WA+T}")
    a(f"s_waitcnt lgkmcnt(0)\n{srd(28, WS_P, WS_USED)}")
    a("s_cmp_ge_u32 s22, 2\ns_cbranch_scc1 P1_PRE_V")
    def mf(b, T, x, w, qk):
        d = vr(acc(b, T), 4)
        return f"v_mfma_f32_16x16x32_bf16 {d}, {vr(w,4)}, {vr(x,4)}, {d}" if qk else f"v_mfma_f32_16x16x32_bf16 {d}, {vr(x,4)}, {vr(w,4)}, {d}"
    def rdw(d, T, step): return [f"ds_read_b64_tr_b16 {vr(d+2*j,2)}, v{CW+T} offset:{(step // 2) * RSL + (step % 2) * 10240 + 1280 * j}" for j in range(2)]
    def rdx(d, b, step): return f"ds_read_b128 {vr(d,4)}, v{CX + step % 2} offset:{(step // 2) * RSL + 2048 * b}"
    TO = (1, 2, 3, 4, 0)
    def group(step, qk, reads=True):
        cur = W[1 - step]; nxt = W[step]
        rq = []
        for T in TO: rq += rdw(nxt + 4 * T, T, step)
        fill = []
        if step == 1:
            fill = ["s_add_u32 s40, s40, 1", "s_add_u32 s41, s40, 2", "s_and_b32 s41, s41, 3", f"s_mul_i32 s42, s41, {RSL}", f"v_add_u32 v{CX}, s42, v{XA}"] + [f"v_add_u32 v{CW+T}, s42, v{WA+T}" for T in range(5)]
        issued = 0
        for b in range(4):
            if reads:
                allow = [2, 15, issued + 1, issued][b]
                if b != 1: a(f"s_waitcnt lgkmcnt({min(15, allow)})")
            elif b == 0: a("s_waitcnt lgkmcnt(0)")
            for n, T in enumerate(TO):
                a(mf(b, T, X + 4 * b, cur + 4 * T, qk))
                if b == 0 and n < 2 and not qk:
                    for j in range(2): a(f"v_cndmask_b32 v{cur+2*n+j}, v{cur+2*n+j}, v{PC}, s[24:25]")
                if not reads: continue
                if step == 0 and b == 0:
                    if n == 0: a(f"v_xor_b32 v{CX+1}, 64, v{CX}")
                    if n == 1: a("s_barrier")
                    if n < 2: continue
                if n == 4: a(rdx(X + 4 * b, b, step)); issued += 1
                elif rq: a(rq.pop(0)); issued += 1
                elif fill:
                    a(fill.pop(0))
                    if fill: a(fill.pop(0))
        assert not reads or (not rq and not fill), (rq, fill)

    def tail(qk, epi):
        seq = [(b, T, ("x0", b), ("w0", T)) for b in range(4) for T in TO]
        marks = {}
        for ph, Ts in enumerate(((0, 1), (2, 3), (4,))):
            for step in range(4):
                for b in range(4):
                    for T in Ts: seq.append((b, T, ("x", ph, step, b), ("w", step, T)))
            marks[len(seq) - 1] = ph
        last = {}
        for n, (_, _, x, w) in enumerate(seq): last[x] = n; last[w] = n
        loc = {("x0", b): X + 4 * b for b in range(4)}; loc.update({("w0", T): W[1] + 4 * T for T in range(5)})
        free = [W[0] + 4 * k for k in range(5)]
        order = []
        for _, _, x, w in seq:
            for f in (w, x):
                if f not in loc and f not in order: order.append(f)
        done_at = {}; nrd = 0; waited = 0; pend = []; fill = []; hold = 0
        a(f"v_xor_b32 v{CX+1}, 64, v{CX}\ns_waitcnt lgkmcnt(0)\ns_barrier")
        bar2 = [True]
        def take():
            f = order.pop(0); loc[f] = free.pop(0)
            if bar2 and (f[1] if f[0] == "w" else f[2]) >= 2: a("s_barrier"); bar2.pop()
            p_ = rdw(loc[f], f[2], f[1]) if f[0] == "w" else [rdx(loc[f], f[3], f[2])]
            done_at[f] = nrd + len(p_)
            return p_
        for n, (b, T, x, w) in enumerate(seq):
            while any(f not in loc or (f in done_at and done_at[f] > nrd) for f in (x, w)):
                if not pend: pend = take()
                a(pend.pop(0)); nrd += 1
            need = max(done_at.get(x, 0), done_at.get(w, 0))
            if need > waited:
                waited = max(need, nrd - opt("tw", 6)); a(f"s_waitcnt lgkmcnt({nrd - waited})")
            a(mf(b, T, loc[x], loc[w], qk))
            for f in (x, w):
                if last[f] == n: free.append(loc[f])
            if not pend and order and free: pend = take()
            if pend: a(pend.pop(0)); nrd += 1
            if hold: hold -= 1
            else:
                for _ in range(2):
                    if fill: a(fill.pop(0))
            if n in marks and marks[n] < 2:
                for f in fill: a(f)
                fill = epi(marks[n]); hold = 4
        for f in fill: a(f)
        a(st(3)); a("s_nop 4")
        for f in epi(2): a(f)

    EA, EB = 167, 151
    def cv(d, r): return [f"v_cvt_pk_bf16_f32 v{d}, v{r}, v{r+1}", f"v_cvt_pk_bf16_f32 v{d+1}, v{r+2}, v{r+3}"]
    def epi_qk(ph):
        if ph < 0:
            return f"""s_mov_b32 s35, {HG}
            s_movk_i32 s38, 2560
            s_cmp_eq_u32 s22, 0
            s_cselect_b32 s35, {HQ}, s35
            s_cselect_b32 s27, {Q_OFF}, {KV_OFF}
            s_cselect_b32 s38, 1280, s38
            s_lshl_b32 s26, s20, 1
            s_add_u32 s26, s26, s37
            s_lshl_b32 s26, s26, 2
            s_mul_i32 s26, s26, s35
            s_add_u32 s26, s26, s27
            s_lshl_b32 s23, s21, 1
            s_add_u32 s23, s23, s36
            s_lshl_b32 s23, s23, 1
            s_mul_i32 s23, s23, s38
            s_add_u32 s26, s26, s23
            s_add_u32 s27, s26, s38
            v_lshrrev_b32 v{EA}, 4, v{L}
            v_mul_lo_u32 v{EA}, v{EA}, s35
            v_and_b32 v{TT}, 15, v{L}
            v_lshl_add_u32 v{EA}, v{TT}, 4, v{EA}
            v_lshlrev_b32 v{EB}, 4, v{L}
            s_add_u32 s44, s26, s35
            s_add_u32 s45, s27, s35
            s_add_u32 s46, s44, s35
            s_add_u32 s47, s45, s35
            s_add_u32 s32, s46, s35
            s_add_u32 s33, s47, s35""".split("\n")
        sc = lambda r: []
        o = []
        if ph < 2:
            for jj in range(2):
                Ts = (2 * ph, 2 * ph + 1)
                for T in Ts: o += cv(acc(2 * jj, T), acc(2 * jj, T)) + cv(acc(2 * jj, T) + 2, acc(2 * jj + 1, T))
                for T in Ts:
                    r0 = acc(2 * jj, T)
                    o += [f"v_permlane16_swap_b32 v{r0}, v{r0+2}", f"v_permlane16_swap_b32 v{r0+1}, v{r0+3}"]
                for T in Ts:
                    o.append(f"buffer_store_dwordx4 {vr(acc(2 * jj, T),4)}, v{EB}, s[28:31], s{(26, 44, 46, 32)[T] + jj} offen sc1")
        else:
            for jj in range(2):
                r0, r1 = acc(2 * jj, 4), acc(2 * jj + 1, 4)
                o += sc(r0) + sc(r1) + cv(r0, r0) + cv(r0 + 2, r1)
                o.append(f"buffer_store_dwordx4 {vr(r0,4)}, v{EA}, s[28:31], s{26 + jj} offen offset:1024 sc1")
        return o
    def epi_v(ph):
        if ph < 0:
            return f"""s_lshl_b32 s26, s20, 1
            s_add_u32 s26, s26, s37
            s_mul_i32 s26, s26, {4*HG}
            s_lshl_b32 s23, s21, 1
            s_add_u32 s23, s23, s36
            s_mul_i32 s23, s23, 5120
            s_add_u32 s26, s26, s23
            s_add_u32 s26, s26, {KV_OFF + 1280}
            s_add_u32 s44, s26, {HG}
            s_add_u32 s45, s26, {2*HG}
            s_add_u32 s46, s26, {3*HG}
            s_mov_b32 s35, {HG}
            v_lshrrev_b32 v{EA}, 5, v{L}
            v_mul_u32_u24 v{EA}, 640, v{EA}
            v_bfe_u32 v{TT}, v{L}, 4, 1
            v_lshl_add_u32 v{EB}, v{TT}, 6, v{EA}
            v_mul_u32_u24 v{TT}, 384, v{TT}
            v_add_u32 v{EA}, v{EA}, v{TT}
            v_and_b32 v{TT}, 15, v{L}
            v_lshl_add_u32 v{EA}, v{TT}, 4, v{EA}
            v_and_b32 v{TT}, 3, v{L}
            v_lshl_add_u32 v{EB}, v{TT}, 4, v{EB}
            v_bfe_u32 v{TT}, v{L}, 2, 2
            v_mul_lo_u32 v{TT}, v{TT}, s35
            v_add_u32 v{EB}, v{EB}, v{TT}""".split("\n")
        o = []
        for jj in range(2):
            for T in ((0, 1), (2, 3), (4,))[ph]:
                r0, r1 = acc(2 * jj, T), acc(2 * jj + 1, T)
                o += cv(r0, r0) + cv(r0 + 2, r1)
                if T < 4: o.append(f"buffer_store_dwordx4 {vr(r0,4)}, v{EA}, s[28:31], s{(26, 44, 45, 46)[T]} offen offset:{2560 * jj} sc1")
                else: o.append(f"buffer_store_dwordx4 {vr(r0,4)}, v{EB}, s[28:31], s26 offen offset:{2560 * jj + 256} sc1")
        return o

    for qk, lab in ((True, "QK"), (False, "V")):
        a(f"P1_PRE_{lab}:")
        for f in (epi_qk if qk else epi_v)(-1): a(f)
        a(f"P1_LOOP_{lab}:")
        group(0, qk)
        if STAMP: a(f"s_cmp_lg_u32 s40, 0\ns_cbranch_scc1 P1_ST_{lab}\n{st(2)}\nP1_ST_{lab}:\ns_cmp_lg_u32 s40, 5\ns_cbranch_scc1 P1_SU_{lab}\n{st(1)}\nP1_SU_{lab}:")
        group(1, qk)
        a(f"s_cmp_lt_u32 s40, s43\ns_cbranch_scc1 P1_LOOP_{lab}")
        if not qk: a("s_cmp_eq_u32 s22, 3\ns_cbranch_scc1 P1_EPI_DFT")
        tail(qk, epi_qk if qk else epi_v)
        a("s_branch P1_DONE")
    a("P1_EPI_DFT:")
    group(0, False, reads=False)
    TAU, TAU0, E0 = 80, 81, 82
    a(f"""
    {st(3)}
    s_cmp_lt_u32 s20, 2
    s_cselect_b32 s38, 1.0, -1.0
    v_mov_b32 v{TAU}, s38
    v_cndmask_b32 v{TAU0}, v{TAU}, 1.0, s[24:25]
    s_lshl_b32 s26, s20, 1
    s_add_u32 s26, s26, s37
    s_mul_i32 s26, s26, 80
    v_and_b32 v88, 15, v{L}
    v_add_u32 v{E0}, s26, v88
    v_add_u32 v{E0+1}, 20, v{E0}
    v_add_u32 v{E0+2}, 40, v{E0}
    v_add_u32 v{E0+3}, 60, v{E0}
    v_and_b32 v89, 12, v{L}
    v_lshl_add_u32 v{E0+4}, v89, 2, v{E0}
    v_add_u32 v{E0+4}, 16, v{E0+4}
    s_lshl_b32 s23, s21, 1
    s_add_u32 s23, s23, s36
    s_cmp_lg_u32 s23, 0
    s_cbranch_scc1 P1_EPI_DFT2
    s_mov_b64 exec, 0xffff
    s_mov_b32 s27, {X512_OFF}
    """)
    for T in range(5):
        a(f"v_fma_f32 v{96+T}, v{acc(3,T)}, v{TAU0 if T == 0 else TAU}, v{acc(1,T)}")
        a(f"v_lshlrev_b32 v{104+T}, 2, v{E0+T}\nv_mov_b32 v{acc(1,T)}, 0\nv_mov_b32 v{acc(3,T)}, 0")
        a(f"buffer_store_dword v{96+T}, v{104+T}, s[28:31], s27 offen sc1")
    a(f"""
    s_mov_b64 exec, -1
P1_EPI_DFT2:
    s_lshl_b32 s26, s23, 9
    s_add_u32 s26, s26, {FE_OFF}
    s_mov_b32 s27, {FO_DELTA}
    v_bfe_u32 v88, v{L}, 4, 1
    v_mul_lo_u32 v88, v88, s27
    v_lshrrev_b32 v89, 5, v{L}
    v_lshl_add_u32 v88, v89, 8, v88
    """)
    for T in range(5):
        tau = TAU0 if T == 0 else TAU
        a0, a1, a2, a3 = (acc(b, T) for b in range(4))
        for q in range(4):
            a(f"v_fma_f32 v{a0+q}, v{a1+q}, v{tau}, v{a0+q}\nv_fma_f32 v{a3+q}, v{a2+q}, v{tau}, v{a3+q}")
        for q in range(4):
            a(f"v_add_f32 v{a1+q}, v{a0+q}, v{a3+q}\nv_sub_f32 v{a2+q}, v{a0+q}, v{a3+q}")
        for f in cv(a0, a1) + cv(a0 + 2, a2): a(f)
        a(f"""
        v_lshrrev_b32 v89, 4, v{E0+T}
        v_lshl_add_u32 v89, v89, 14, v88
        v_and_b32 v{E0+T}, 15, v{E0+T}
        v_lshl_add_u32 v{E0+T}, v{E0+T}, 4, v89
        v_permlane16_swap_b32 v{a0}, v{a0+2}
        v_permlane16_swap_b32 v{a0+1}, v{a0+3}
        buffer_store_dwordx4 {vr(a0,4)}, v{E0+T}, s[28:31], s26 offen sc1
        """)
    a(f"""
P1_DONE:
    {st(14)}
    s_mov_b32 s34, 1
    s_branch ATT
    """)

def p1_extra(a):
    T0 = 40
    a(f"""
P1_EXTRA:
    s_sub_u32 s61, s16, 8
    """)
    if opt("cwarm", 1):
        a(f"""
        s_cmp_lg_u32 s16, 10
        s_cbranch_scc1 P1_NOCW
        s_lshl_b32 s23, s18, 10
        s_cmp_ge_u32 s23, L_CODE_END - {NAME}_kernel - 1023
        s_cbranch_scc1 P1_NOCW
        s_getpc_b64 s[44:45]
L_PC:
        s_sub_u32 s44, s44, L_PC - {NAME}_kernel
        s_subb_u32 s45, s45, 0
        v_lshl_add_u32 v40, v0, 4, s23
        global_load_dwordx4 v[44:47], v40, s[44:45]
P1_NOCW:
        """)
    a(f"""
    v_lshrrev_b32 v37, 4, v0
    v_and_b32 v38, 15, v0
    v_lshlrev_b32 v39, 4, v0
    v_mov_b32 v36, v0
    s_waitcnt lgkmcnt(0)
    {srd(28, WS_P, WS_USED)}
    {srd(32, DBG_P, 256)}
    s_cmp_lg_u32 s61, 0
    s_cbranch_scc1 P1_EX_A
    v_mov_b32 v1, 0
    v_lshlrev_b32 v2, 2, v0
    v_add_u32 v2, {LFB}, v2
    ds_write_b32 v2, v1
    s_waitcnt lgkmcnt(0)
    s_cmp_lg_u32 s2, 255
    s_cbranch_scc1 P1_EX_WAITRDY
    v_lshlrev_b32 v2, 7, v0
    v_mov_b32 v4, 0
    v_mov_b32 v5, 0
    v_mov_b32 v6, 0
    v_mov_b32 v7, 0
    s_mov_b32 s23, {FLG_OFF}
    buffer_store_dwordx4 v[4:7], v2, s[28:31], s23 offen sc1
    buffer_store_dwordx4 v[4:7], v2, s[28:31], s23 offen offset:16 sc1
    s_add_u32 s23, s23, 8192
    buffer_store_dwordx4 v[4:7], v2, s[28:31], s23 offen sc1
    buffer_store_dwordx4 v[4:7], v2, s[28:31], s23 offen offset:16 sc1
    s_add_u32 s23, s23, 8192
    buffer_store_dwordx4 v[4:7], v2, s[28:31], s23 offen sc1
    buffer_store_dwordx4 v[4:7], v2, s[28:31], s23 offen offset:16 sc1
    s_add_u32 s23, s23, 8192
    buffer_store_dwordx4 v[4:7], v2, s[28:31], s23 offen sc1
    buffer_store_dwordx4 v[4:7], v2, s[28:31], s23 offen offset:16 sc1
    s_add_u32 s23, s23, 8192
    v_mov_b32 v3, 1
    s_waitcnt vmcnt(0)
    s_mov_b64 exec, 1
    buffer_store_dword v3, v1, s[32:35], 0 offen sc1
    s_mov_b64 exec, -1
P1_EX_WAITRDY:
P1_EX_A:
    s_lshl_b32 s23, s2, 2
    s_add_u32 s23, s23, s61
    s_mov_b32 s40, 0
P1_TBL:
    s_lshr_b32 s24, s23, 5
    s_and_b32 s25, s23, 30
    s_and_b32 s26, s24, 1
    s_lshr_b32 s27, s24, 1
    s_lshl_b32 s27, s27, 6
    s_add_u32 s27, s27, s26
    s_and_b32 s26, s23, 1
    s_lshl_b32 s26, s26, 5
    s_add_u32 s27, s27, s26
    v_lshl_add_u32 v{T0}, v38, 1, s27
    s_lshl_b32 s25, s25, 4
    v_lshl_add_u32 v{T0+1}, v37, 3, s25
    v_mul_u32_u24 v{T0+1}, v{T0}, v{T0+1}
    v_and_b32 v{T0+1}, 0x7ff, v{T0+1}
    v_cvt_f32_u32 v{T0}, v{T0}
    v_cvt_f32_u32 v{T0+1}, v{T0+1}
    v_mul_f32 v{T0}, 0x3a000000, v{T0}
    v_mul_f32 v0, 0x3a000000, v{T0+1}
    """)
    for u in range(1, 8): a(f"v_add_f32 v{u}, v{u-1}, v{T0}")
    for u in range(1, 8): a(f"v_fract_f32 v{u}, v{u}")
    for u in range(8): a(f"v_cos_f32 v{8+u}, v{u}")
    for u in range(8): a(f"v_sin_f32 v{16+u}, v{u}")
    for j in range(4): a(f"v_cvt_pk_bf16_f32 v{24+j}, v{8+2*j}, v{9+2*j}")
    for j in range(4): a(f"v_cvt_pk_bf16_f32 v{28+j}, v{16+2*j}, v{17+2*j}")
    NB0 = opt("tblbar", 5)
    a(f"""
    s_cmp_lg_u32 s40, 0
    s_cbranch_scc1 P1_TBL_ST
    """ + "".join(f"s_barrier\n{st(1 + b_, True)}\n" for b_ in range(NB0)) + f"""
    s_mov_b32 s40, 1
P1_TBL_ST:
    s_lshl_b32 s24, s23, 11
    s_add_u32 s24, s24, {TB_OFF}
    buffer_store_dwordx4 v[24:27], v39, s[28:31], s24 offen sc1
    buffer_store_dwordx4 v[28:31], v39, s[28:31], s24 offen offset:1024 sc1
    s_add_u32 s23, s23, 1024
    s_cmp_lt_u32 s23, 1056
    s_cbranch_scc1 P1_TBL
    """)
    nb = NB0
    a("".join(f"s_barrier\n{st(1 + b_, True)}\n" for b_ in range(nb, 9)))
    u = a.uid()
    a(f"""
    s_cmp_lg_u32 s61, 0
    s_cbranch_scc1 P1_EX_B
    v_mov_b32 v1, 0
    s_mov_b32 s60, 0
L_RDY{u}:
    buffer_load_dword v2, v1, s[32:35], 0 offen sc1
    s_waitcnt vmcnt(0)
    v_cmp_ne_u32 vcc, 0, v2
    s_cbranch_vccnz P1_EX_B
    s_sleep 1
    s_add_u32 s60, s60, 1
    s_cmp_lt_u32 s60, 0x40000
    s_cbranch_scc1 L_RDY{u}
P1_EX_B:
    s_waitcnt vmcnt(0)
    s_barrier
    {st(10, True)}
    s_mov_b32 s34, 0
    """)

def attention(a):
    O = 0; S = [16, 32]; P = 48; Q1 = 56; Q2 = 60; K2 = 62; K1 = 64; V1 = 68; V2 = [72, 76]; T = 80
    a(f"""
ATT:
    s_setprio 3
    s_cmp_lt_u32 s13, 4
    s_cselect_b32 s32, {opt("o1", 4)}, {opt("y1", 4)}
    s_cselect_b32 s33, {opt("o2", 7)}, {opt("y2", 7)}
    s_movk_i32 s35, 0x106
    s_bitset1_b32 s35, s32
    s_bitset1_b32 s35, s33
    s_mov_b32 s24, 0xfffff
    s_mov_b32 s25, 0xfffff
    s_mul_i32 s27, s13, 1280
    v_mov_b32 v{Q2+1}, 0
    v_mov_b32 v{K2+1}, 0x3f803f80
    v_add_u32 v{T}, s27, v{AK1}
    v_add_u32 v{T+1}, s27, v{AK2}
    v_mov_b32 v{T+2}, 1
    """)
    for r in range(12): a(f"v_mov_b32 v{V1+r}, v{ONES}")
    for r in range(16): a(f"v_mov_b32 v{O+r}, 0")
    for r in range(4): a(f"v_mov_b32 v{P+4+r}, 0\nv_mov_b32 v{P+r}, -1")
    def qk1(d): return f"v_mfma_f32_32x32x16_bf16 {vr(d,16)}, {vr(K1,4)}, {vr(Q1,4)}, 0"
    def qk2(d): return f"v_mfma_f32_32x32x8_bf16 {vr(d,16)}, {vr(K2,2)}, {vr(Q2,2)}, {vr(d,16)}"
    def pv(v, p): return f"v_mfma_f32_32x32x16_bf16 {vr(O,16)}, {vr(v,4)}, {vr(p,4)}, {vr(O,16)}"
    def of(t): return (t - 6 if t in (6, 7) else t) * 2560
    def rdk1(t): return f"ds_read_b128 {vr(K1,4)}, v{BK1 if t in (6, 7) else AK1} offset:{of(t)}"
    def rdk2(t): return f"ds_read_b32 v{K2}, v{BK2 if t in (6, 7) else AK2} offset:{of(t)+1024}"
    def rdv(t, v2):
        b = BV if t in (6, 7) else AV
        return f"s_mov_b64 exec, s[24:25]\nds_read_b128 {vr(V1,4)}, v{b} offset:{of(t)+1280}\nds_read_b128 {vr(v2,4)}, v{b} offset:{of(t)+1920}\ns_mov_b64 exec, -1"
    def maxtree(s, m, first):
        if first:
            a(f"v_max3_f32 v{m}, v{s}, v{s+1}, v{s+2}\nv_max3_f32 v{m+1}, v{s+3}, v{s+4}, v{s+5}")
            for j in range(6, 14, 4): a(f"v_max3_f32 v{m}, v{s+j}, v{s+j+1}, v{m}\nv_max3_f32 v{m+1}, v{s+j+2}, v{s+j+3}, v{m+1}")
            a(f"v_max3_f32 v{m}, v{s+14}, v{s+15}, v{m}\nv_max_f32 v{m}, v{m}, v{m+1}")
        else:
            for j in range(0, 16, 2): a(f"v_max3_f32 v{m}, v{s+j}, v{s+j+1}, v{m}")
    def xhalf(m):
        a(f"v_mov_b32 v{m+1}, v{m}\ns_nop 1\nv_permlane32_swap_b32 v{m}, v{m+1}\ns_nop 0\nv_max_f32 v{m}, v{m}, v{m+1}")
    a(f"""
    s_cmp_lg_u32 s34, 1
    s_cbranch_scc1 ATT_NOSIG
    s_waitcnt vmcnt(0)
    s_mov_b64 exec, 1
    buffer_store_dword v{T+2}, v{O}, s[28:31], s15 offen sc1
    s_mov_b64 exec, -1
ATT_NOSIG:
    {st(4)}
    s_barrier
    {st(6)}
    ds_read_b128 {vr(Q1,4)}, v{T} offset:{QLDS}
    ds_read_b32 v{Q2}, v{T+1} offset:{QLDS+1024}
    {rdk1(0)}
    {rdk2(0)}
    {rdv(0, V2[0])}
    s_waitcnt lgkmcnt(4)
    """)
    for j in range(5): a(f"v_lshlrev_b32 v{S[0]+2*j}, 16, v{Q1+j}\nv_and_b32 v{S[0]+2*j+1}, 0xffff0000, v{Q1+j}")
    for j in range(10): a(f"v_mul_f32 v{S[0]+j}, {QSCALE:#x}, v{S[0]+j}")
    for j in range(5): a(f"v_cvt_pk_bf16_f32 v{Q1+j}, v{S[0]+2*j}, v{S[0]+2*j+1}")
    a(f"""
    s_waitcnt lgkmcnt(2)
    {qk1(S[1])}
    {qk2(S[1])}
    {qk1(S[0])}
    {rdk1(1)}
    s_mov_b32 s26, 0
    buffer_store_dwordx4 {vr(P,4)}, v{OA1}, s[28:31], s6 offen sc1
    s_mov_b64 exec, 0xffff
    buffer_store_dwordx4 {vr(P,4)}, v{OA2}, s[28:31], s7 offen sc1
    s_mov_b64 exec, -1
    s_nop 4
    """)
    maxtree(S[1], T, True); xhalf(T)
    a(f"""
    v_mul_f32 v{T}, -0.5, v{T}
    v_cvt_pk_bf16_f32 v{Q2+1}, v{T}, 0
    s_nop 1
    {qk2(S[0])}
    {rdk2(1)}
    s_waitcnt lgkmcnt(0)
    {st(7)}
    s_nop 7
ATT_LOOP:
    """)
    def e(s, j): return f"v_exp_f32 v{s+j}, v{s+j}"
    def c(s, j): return f"v_cvt_pk_bf16_f32 v{P+j}, v{s+2*j}, v{s+2*j+1}"
    for j in range(8):
        cur, nxt = S[j % 2], S[(j + 1) % 2]
        a("s_waitcnt lgkmcnt(2)")
        a(qk1(nxt)); a(rdk1(j + 2))
        for q in range(4): a(e(cur, q))
        a(pv(V2[(j + 1) % 2], P + 4))
        a("s_waitcnt lgkmcnt(1)")
        if j == 2: a(f"ds_write_b32 v{PA}, v{T+2}")
        for q in range(4, 8): a(e(cur, q))
        a(c(cur, 0)); a(c(cur, 1))
        a(qk2(nxt)); a(rdk2(j + 2))
        a(c(cur, 2)); a(c(cur, 3))
        for q in range(8, 12): a(e(cur, q))
        a(pv(V1, P)); a(rdv(j + 1, V2[(j + 1) % 2]))
        for q in range(12, 16): a(e(cur, q))
        for q in range(4, 8): a(c(cur, q))
    a(f"""
    s_add_u32 s26, s26, 1
    s_movk_i32 s27, 0x5000
    s_cmp_eq_u32 s26, 7
    s_cselect_b32 s27, {(0x5000 - 62 * 2560) & 0xffffffff}, s27
    v_add_u32 v{AK1}, 0x5000, v{AK1}
    v_add_u32 v{AK2}, 0x5000, v{AK2}
    v_add_u32 v{AV}, 0x5000, v{AV}
    v_add_u32 v{BK1}, s27, v{BK1}
    v_add_u32 v{BK2}, s27, v{BK2}
    v_add_u32 v{BV}, s27, v{BV}
    v_add_u32 v{T+2}, 1, v{T+2}
    s_bitcmp1_b32 s35, s26
    s_cbranch_scc0 ATT_LOOP
    s_cmp_gt_u32 s26, 2
    s_cbranch_scc1 ATT_EV
    v_add_u32 v{FA}, 8, v{FA}
    s_waitcnt vmcnt(0)
ATT_WAIT:
    ds_read_b32 v{T}, v{FA}
    s_waitcnt lgkmcnt(0)
    v_readfirstlane_b32 s23, v{T}
    s_cmp_ge_u32 s23, 4
    s_cbranch_scc1 ATT_LOOP
    s_sleep 1
    s_branch ATT_WAIT
ATT_EV:
    s_setprio 2
    s_cmp_eq_u32 s26, s32
    s_cbranch_scc1 ATT_LOOP
    s_setprio 1
    s_cmp_lt_u32 s26, 8
    s_cbranch_scc1 ATT_LOOP
    s_setprio 3
    {pv(V2[1], P+4)}
    {st(8)}
    s_mov_b32 s27, 0x3e800000
    s_mov_b32 s23, 0x71800000
    s_nop 9
    """)
    a(f"v_rcp_f32 v{T+2}, v{O+12}\nv_add_f32 v{T}, |v{O}|, |v{O+1}|\nv_add_f32 v{T+1}, |v{O+2}|, |v{O+3}|")
    for j in range(4, 12, 2): a(f"v_add_f32 v{T}, |v{O+j}|, v{T}\nv_add_f32 v{T+1}, |v{O+j+1}|, v{T+1}")
    a(f"""
    v_add_f32 v{T}, v{T}, v{O+12}
    v_cmp_le_f32 s[42:43], s27, v{O+12}
    v_add_f32 v{T}, v{T}, v{T+1}
    v_cmp_gt_f32 vcc, s23, v{T}
    s_and_b64 vcc, vcc, s[42:43]
    s_cmp_eq_u64 vcc, -1
    s_cbranch_scc0 ATT_FALLBACK
ATT_FINISH:
    """)
    for j in range(8): a(f"v_mul_f32 v{O+j}, v{O+j}, v{T+2}")
    for j in range(4): a(f"v_cvt_pk_bf16_f32 v{P+j}, v{O+2*j}, v{O+2*j+1}")
    for j in range(4): a(f"v_min_u32 v{P+j}, -2, v{P+j}")
    a(f"buffer_store_dwordx4 {vr(P,4)}, v{OA1}, s[28:31], s6 offen sc1")
    for j in range(8, 12): a(f"v_mul_f32 v{O+j}, v{O+j}, v{T+2}")
    for j in range(4, 6): a(f"v_cvt_pk_bf16_f32 v{P+j}, v{O+2*j}, v{O+2*j+1}")
    for j in range(4, 6): a(f"v_min_u32 v{P+j}, -2, v{P+j}")
    a(f"""
    s_nop 1
    v_permlane16_swap_b32 v{P+4}, v{P+6}
    v_permlane16_swap_b32 v{P+5}, v{P+7}
    s_mov_b64 exec, 0xffff
    buffer_store_dwordx4 {vr(P+4,4)}, v{OA2}, s[28:31], s7 offen sc1
    {st(9)}
    s_cmp_ge_u32 s13, 4
    s_cbranch_scc1 {"L_DONE" if STAMP else "L_END"}
    s_mov_b64 exec, -1
    s_mov_b32 s41, s13
    s_mov_b32 s47, 1
    s_branch P3_GO
    """)
    def gk(): return f"buffer_load_dwordx4 {vr(K1,4)}, v{AK1}, s[28:31], s23 offen sc1\nbuffer_load_dword v{K2}, v{AK2}, s[28:31], s23 offen offset:1024 sc1"
    a(f"""
ATT_FALLBACK:
    s_waitcnt lgkmcnt(0)
    v_mov_b32 v{Q2+1}, 0
    v_mov_b32 v{T}, 0xff800000
    v_subrev_u32 v{AK1}, {HS}, v{AK1}
    v_subrev_u32 v{AK2}, {HS}, v{AK2}
    v_subrev_u32 v{AV}, {HS}, v{AV}
    s_add_u32 s23, s14, {KV_OFF}
    s_mov_b32 s26, 0
ATT_FB1:
    {gk()}
    s_add_u32 s23, s23, 2560
    s_waitcnt vmcnt(0)
    {qk1(S[0])}
    {qk2(S[0])}
    s_nop 15
    """)
    maxtree(S[0], T, False)
    a("s_add_u32 s26, s26, 1\ns_cmp_lt_u32 s26, 64\ns_cbranch_scc1 ATT_FB1")
    xhalf(T)
    a(f"s_add_u32 s23, s14, {KV_OFF}\ns_mov_b32 s26, 0")
    for r in range(16): a(f"v_mov_b32 v{O+r}, 0")
    a(f"""
ATT_FB2:
    {gk()}
    s_mov_b64 exec, s[24:25]
    buffer_load_dwordx4 {vr(V1,4)}, v{AV}, s[28:31], s23 offen offset:1280 sc1
    buffer_load_dwordx4 {vr(V2[0],4)}, v{AV}, s[28:31], s23 offen offset:1920 sc1
    s_mov_b64 exec, -1
    s_add_u32 s23, s23, 2560
    s_waitcnt vmcnt(0)
    {qk1(S[0])}
    {qk2(S[0])}
    s_nop 15
    """)
    for q in range(16): a(f"v_sub_f32 v{S[0]+q}, v{S[0]+q}, v{T}")
    for q in range(16): a(e(S[0], q))
    a("s_nop 0")
    for q in range(8): a(c(S[0], q))
    a(f"""
    s_nop 1
    {pv(V1, P)}
    {pv(V2[0], P+4)}
    s_add_u32 s26, s26, 1
    s_cmp_lt_u32 s26, 64
    s_cbranch_scc1 ATT_FB2
    s_nop 15
    v_rcp_f32 v{T+2}, v{O+12}
    s_nop 0
    s_branch ATT_FINISH
    """)

def lwait(a, vaddr, vdat, mask, target, slp=8):
    u = a.uid()
    a(f"""
    s_mov_b64 exec, {mask}
    s_branch L_LWE{u}
L_LW{u}:
    s_sleep {slp}
L_LWE{u}:
    ds_read_b32 v{vdat}, v{vaddr}
    s_waitcnt lgkmcnt(0)
    v_cmp_gt_u32 vcc, {target}, v{vdat}
    s_cbranch_vccnz L_LW{u}
    s_mov_b64 exec, -1
    """)
def ladd(a, vaddr, vone, off):
    a(f"s_mov_b64 exec, 1\nds_add_u32 v{vaddr}, v{vone} offset:{off}\ns_mov_b64 exec, -1")

def helpers(a):
    HPA, HONE = 165, 166
    a(f"""
HELPER:
    {st(2)}
    {srd(28, WS_P, WS_USED)}
    s_lshr_b32 s19, s18, 3
    s_lshl_b32 s23, s17, 2
    s_add_u32 s19, s19, s23
    s_and_b32 s62, s18, 7
    s_mul_i32 s21, s19, {HG}
    v_lshlrev_b32 v1, 4, v0
    {st(3)}
    s_lshr_b32 s23, s19, 3
    s_lshl_b32 s23, s23, 13
    s_add_u32 s23, s23, {FLG_OFF}
    v_lshlrev_b32 v2, 7, v0
    v_add_u32 v2, s23, v2
    s_add_u32 s24, s21, {KV_OFF}
    s_lshl_b32 s40, 0x10000, s16
    s_lshl_b32 s41, 1, s16
    s_mul_i32 s22, s16, 10240
    s_add_u32 s26, s24, s22
    s_cmp_lg_u32 s16, 3
    s_cbranch_scc1 H_JA
    s_lshl_b32 s25, s62, 1
    s_lshl_b32 s40, 3, s25
    s_mov_b32 s41, 0
    s_mov_b32 s22, {QLDS}
    s_mul_i32 s26, s19, {HQ}
    s_mul_i32 s25, s62, 10240
    s_add_u32 s26, s26, s25
    s_add_u32 s26, s26, {Q_OFF}
H_JA:
    """)
    def job():
        r = f"s_add_u32 s25, s22, 5120\ns_cmp_ge_u32 s25, {LFB}\ns_cselect_b32 s25, 0, s25\n"
        for n in range(10):
            if n in (0, 3): r += f"s_add_u32 m0, s22, {1024*n}\ns_add_u32 s27, s26, {1024*n}\n"; o = 0
            if n in (5, 8): r += f"s_add_u32 m0, s25, {1024*(n-5)}\ns_add_u32 s27, s26, {1024*n}\n"; o = 0
            r += f"buffer_load_dwordx4 v1, s[28:31], s27 offen offset:{o} sc1 lds\n"; o += 1024
        return r
    poll4(a, 2, 4, "s[40:41]")
    a(st(11)); a(job())
    a(f"""
    v_lshlrev_b32 v{HPA}, 2, v0
    v_add_u32 v{HPA}, {LFB}, v{HPA}
    v_mov_b32 v{HONE}, 1
    s_mov_b32 s40, 0xffff0000
    s_mov_b32 s41, 0xffff
    s_add_u32 s22, s16, 3
    s_cmp_eq_u32 s16, 3
    s_cselect_b32 s22, 7, s22
    s_mul_i32 s22, s22, 10240
    s_add_u32 s26, s24, s22
    s_waitcnt vmcnt(0)
    {st(12)}
    s_barrier
    """)
    poll4(a, 2, 4, "s[40:41]")
    a(job())
    a(f"""
    s_add_u32 s22, s16, 6
    s_cmp_eq_u32 s16, 1
    s_cselect_b32 s22, 11, s22
    s_mul_i32 s22, s22, 10240
    s_add_u32 s26, s24, s22
    s_waitcnt vmcnt(0)
    """)
    ladd(a, HPA, HONE, 64)
    lwait(a, HPA, 4, 0xff, 1)
    a(f"{st(13)}\nH_JC:"); a(job())
    a(f"""
    s_add_u32 s22, s22, 40960
    s_add_u32 s26, s26, 40960
    s_cmp_lt_u32 s22, {HS}
    s_cbranch_scc1 H_JC
    s_waitcnt vmcnt(0)
    {st(4)}
    """)
    ladd(a, HPA, HONE, 72)
    a(f"""
    v_mov_b32 v167, v0
    s_cmp_lt_u32 s16, 3
    s_cbranch_scc1 H_FNET
    """)
    a(f"""
    {srd(32, X_P, 2048*1280)}
    {srd(36, GATE_P, 1280)}
    v_lshrrev_b32 v2, 3, v0
    v_and_b32 v3, 7, v0
    v_lshlrev_b32 v3, 4, v3
    s_movk_i32 s22, 1280
    v_mad_u32_u24 v4, v2, s22, v3
    s_mul_i32 s23, s2, {8*1280}
    """)
    for j in range(10):
        a(f"buffer_load_dwordx4 {vr(24+8*j,4)}, v4, s[32:35], s23 offen offset:{128*j}")
        a(f"buffer_load_dwordx4 {vr(28+8*j,4)}, v3, s[36:39], 0 offen offset:{128*j}")
    a("v_mov_b32 v5, 0\nv_mov_b32 v6, 0\ns_waitcnt vmcnt(0)")
    for j in range(10):
        for q in range(4):
            a(f"v_dot2c_f32_bf16 v{5 + (q & 1)}, v{24+8*j+q}, v{28+8*j+q}")
    a(f"""
    s_nop 2
    v_add_f32 v5, v5, v6
    s_nop 1
    v_add_f32_dpp v5, v5, v5 quad_perm:[1,0,3,2] row_mask:0xf bank_mask:0xf
    s_nop 1
    v_add_f32_dpp v5, v5, v5 quad_perm:[2,3,0,1] row_mask:0xf bank_mask:0xf
    s_nop 1
    v_add_f32_dpp v5, v5, v5 row_half_mirror row_mask:0xf bank_mask:0xf
    v_mul_f32 v5, {f32bits(-math.log2(math.e)):#x}, v5
    v_exp_f32 v5, v5
    v_lshlrev_b32 v2, 2, v2
    v_add_f32 v5, 1.0, v5
    v_rcp_f32 v5, v5
    s_lshl_b32 s23, s2, 5
    s_add_u32 s23, s23, {G_OFF}
    buffer_store_dword v5, v2, s[28:31], s23 offen sc1
    s_branch H_MID
    """)
    C, SN, FB = 0, 8, 16
    a(f"""
H_FNET:
    {'s_branch H_MID' if opt('nofnet', 0) == 1 else ''}
    s_lshl_b32 s22, s16, 5
    s_add_u32 s22, s22, s18
    s_cmp_lt_u32 s22, 84
    s_cbranch_scc1 H_FN_A
    s_sub_u32 s24, s22, 84
    s_lshl_b32 s24, s24, 3
    s_add_u32 s24, s24, s17
    s_cmp_ge_u32 s24, 21
    s_cbranch_scc1 H_MID
    s_mov_b32 s23, 32
    s_branch H_FN_B
H_FN_A:
    s_mul_i32 s23, s22, 3121
    s_lshr_b32 s23, s23, 16
    s_mul_i32 s24, s23, 21
    s_sub_u32 s24, s22, s24
    s_lshl_b32 s23, s23, 3
    s_add_u32 s23, s23, s17
H_FN_B:
    v_lshlrev_b32 v2, 7, v0
    s_mov_b32 s27, {FLG_OFF}
H_FN_P:
    """)
    poll4(a, 2, 4, "-1", "s27")
    a(f"s_add_u32 s27, s27, 8192\ns_cmp_lt_u32 s27, {FLG_OFF + 32768}\ns_cbranch_scc1 H_FN_P")
    a(f"""
    s_and_b32 s25, s23, 1
    s_add_u32 s26, s24, 20
    s_cmp_eq_u32 s24, 20
    s_cselect_b32 s26, 20, s26
    s_lshl_b32 s32, s23, 16
    s_add_u32 s32, s32, {TB_OFF}
    s_mul_i32 s27, s25, {FO_DELTA}
    s_add_u32 s27, s27, {FE_OFF}
    s_lshl_b32 s33, s24, 14
    s_add_u32 s33, s33, s27
    s_lshl_b32 s34, s26, 14
    s_add_u32 s34, s34, s27
    s_cmp_eq_u32 s25, 0
    s_cselect_b32 s35, s24, s26
    s_lshl_b32 s35, s35, 6
    s_add_u32 s35, s35, {X512_OFF}
    v_and_b32 v162, 48, v0
    v_mov_b32 v163, v1
    buffer_load_dwordx4 v[156:159], v162, s[28:31], s35 offen sc1
    """)
    def fl(j):
        r = FB + 24 * j
        s_ = f"buffer_load_dwordx4 {vr(r,4)}, v163, s[28:31], s33 offen offset:{1024*j} sc1\n"
        s_ += f"buffer_load_dwordx4 {vr(r+4,4)}, v163, s[28:31], s34 offen offset:{1024*j} sc1\n"
        for k in range(4): s_ += f"buffer_load_dwordx4 {vr(r+8+4*k,4)}, v163, s[28:31], s32 offen offset:{1024*k} sc1\n"
        s_ += "s_add_u32 s32, s32, 4096\n"
        if j == 3: s_ += "s_add_u32 s33, s33, 4096\ns_add_u32 s34, s34, 4096\n"
        return s_
    def fm(j):
        r = FB + 24 * j
        s_ = ""
        if opt("nofnet", 0) == 2: return s_
        for sub in range(2):
            s_ += f"v_mfma_f32_16x16x32_bf16 {vr(C+4*sub,4)}, {vr(r,4)}, {vr(r+8+8*sub,4)}, {vr(C+4*sub,4)}\n"
            s_ += f"v_mfma_f32_16x16x32_bf16 {vr(SN+4*sub,4)}, {vr(r+4,4)}, {vr(r+12+8*sub,4)}, {vr(SN+4*sub,4)}\n"
        return s_
    for j in range(4): a(fl(j))
    a(f"""
    v_lshlrev_b32 v160, 31, v167
    s_cmp_eq_u32 s25, 0
    s_cselect_b32 s36, 1.0, 0
    s_cselect_b32 s37, 0, 1.0
    v_or_b32 v161, s37, v160
    v_or_b32 v160, s36, v160
    s_waitcnt vmcnt(24)
    """)
    for r in range(8): a(f"v_mul_f32 v{C+r}, v160, v{156 + r % 4}\nv_mul_f32 v{SN+r}, v161, v{156 + r % 4}")
    a("s_mov_b32 s38, 0\nH_FN_LOOP:")
    for j in range(4):
        a("s_waitcnt vmcnt(18)"); a(fm(j)); a(fl(j))
    a("s_add_u32 s38, s38, 1\ns_cmp_lt_u32 s38, 3\ns_cbranch_scc1 H_FN_LOOP")
    for j in range(4):
        a(f"s_waitcnt vmcnt({18-6*j})"); a(fm(j))
    a(f"""
    s_cmp_eq_u32 s26, 20
    s_cselect_b32 s44, 0xffff, 0
    s_mov_b32 s45, 0
    v_lshrrev_b32 v32, 4, v167
    v_mul_u32_u24 v32, {2*ZP}, v32
    v_and_b32 v33, 15, v167
    v_lshl_add_u32 v32, v33, 4, v32
    s_mul_i32 s26, s24, {8*ZP}
    s_mul_i32 s27, s25, {ZP}
    s_add_u32 s26, s26, s27
    s_lshr_b32 s27, s23, 1
    s_lshl_b32 s27, s27, 9
    s_add_u32 s26, s26, s27
    s_add_u32 s26, s26, {Y_OFF}
    v_cndmask_b32 v{SN}, v{SN}, 0, s[44:45]
    v_cndmask_b32 v{SN+4}, v{SN+4}, 0, s[44:45]
    """)
    for r in range(8):
        a(f"v_add_f32 v{16+r}, v{C+r}, v{SN+r}\nv_sub_f32 v{C+r}, v{C+r}, v{SN+r}")
    for r in range(8): a(f"v_cvt_pk_bf16_f32 v{16+r}, v{16+r}, v{C+r}")
    a("buffer_store_dwordx4 v[16:19], v32, s[28:31], s26 offen sc1\nbuffer_store_dwordx4 v[20:23], v32, s[28:31], s26 offen offset:256 sc1")
    WA = 100; ZL = 40; Y = 64; G = 148; VY = 150; VG = 154; VZ = 155; T = 156; SH = 151
    a(f"""
H_MID:
    v_mov_b32 v0, v167
    s_lshl_b32 s19, s17, 2
    s_and_b32 s20, s18, 3
    s_add_u32 s19, s19, s20
    s_lshr_b32 s20, s18, 2
    {srd(32, WO_P, 640*1280)}
    {srd(36, OUT_P, 2621440)}
    s_mul_i32 s26, s20, 160
    s_mul_i32 s27, s16, {160*1280}
    s_add_u32 s27, s27, s26
    s_movk_i32 s23, {1280 - 160}
    """)
    for i in range(5):
        a(f"""
        v_add_u32 v{T}, {64*i}, v0
        v_mul_u32_u24 v{T+1}, 6554, v{T}
        v_lshrrev_b32 v{T+1}, 16, v{T+1}
        v_lshlrev_b32 v{T}, 4, v{T}
        v_mad_u32_u24 v{WA+i}, v{T+1}, s23, v{T}
        """)
    a(f"""
    s_lshl_b32 s21, s17, 3
    s_and_b32 s22, s18, 3
    s_add_u32 s21, s21, s22
    s_lshr_b32 s22, s16, 1
    s_lshl_b32 s22, s22, 2
    s_add_u32 s21, s21, s22
    s_lshl_b32 s21, s21, 1
    s_and_b32 s22, s16, 1
    s_add_u32 s21, s21, s22
    s_lshr_b32 s22, s21, 2
    s_lshl_b32 s22, s22, 1
    s_and_b32 s24, s21, 1
    s_add_u32 s22, s22, s24
    s_lshl_b32 s22, s22, 3
    v_and_b32 v{T}, 7, v0
    v_add_u32 v{T}, s22, v{T}
    s_bitcmp1_b32 s21, 1
    s_cselect_b32 s22, 0x400, 0
    s_cselect_b32 s24, -1, 1
    v_mul_lo_u32 v{T+1}, v{T}, s24
    s_sub_u32 s24, 0x800, s22
    v_sub_u32 v{T+2}, s24, v{T+1}
    v_add_u32 v{T+1}, s22, v{T+1}
    v_and_b32 v{T+3}, 8, v0
    v_cmp_ne_u32 vcc, 0, v{T+3}
    v_cmp_eq_u32 s[42:43], 0, v{T}
    v_lshlrev_b32 v{T+3}, 6, v{T+3}
    v_add_u32 v{T+3}, s22, v{T+3}
    v_cndmask_b32 v{T}, v{T+1}, v{T+2}, vcc
    v_lshrrev_b32 v{T+1}, 4, v0
    v_cndmask_b32 v{T}, v{T}, v{T+3}, s[42:43]
    v_mul_u32_u24 v{VY}, 1280, v{T}
    v_mul_u32_u24 v{T+2}, 40, v{T+1}
    v_add3_u32 v{VY}, v{VY}, v{T+2}, s26
    v_lshlrev_b32 v{VG}, 2, v{T}
    v_sub_u32 v{T+3}, 0x800, v{T}
    v_cmp_lt_u32 vcc, 0x400, v{T}
    v_min_u32 v{T}, v{T}, v{T+3}
    v_and_b32 v{T+3}, 1, v{T}
    v_mul_u32_u24 v{VZ}, {ZP}, v{T+3}
    v_lshrrev_b32 v{T+3}, 1, v{T}
    v_lshl_add_u32 v{VZ}, v{T+3}, 4, v{VZ}
    v_cndmask_b32 v{SH}, 16, 0, vcc
    s_cmp_ge_u32 s20, 4
    s_cselect_b32 s24, 16, 0
    s_cselect_b32 s40, -1, 1
    s_cselect_b32 s41, 155, 0
    v_xor_b32 v{SH}, s24, v{SH}
    s_mul_i32 s24, s20, 20
    v_mul_u32_u24 v{T+3}, 5, v{T+1}
    v_add_u32 v{T+3}, s24, v{T+3}
    v_mul_lo_u32 v{T+3}, v{T+3}, s40
    v_add_u32 v{T+3}, s41, v{T+3}
    v_mul_u32_u24 v{T+3}, {2*ZP}, v{T+3}
    v_add_u32 v{VZ}, v{VZ}, v{T+3}
    s_add_u32 s25, s16, 1
    s_and_b32 s25, s25, 3
    s_mul_i32 s22, s25, 25600
    s_add_u32 s22, s22, {WOL}
    s_add_u32 s25, s25, 3
    s_lshl_b32 s23, s2, 5
    s_add_u32 s23, s23, s16
    s_lshl_b32 s23, s23, 2
    s_add_u32 s23, s23, {FLG_OFF + 16}
    v_mov_b32 v{T}, s23
    s_waitcnt vmcnt(0)
    {st(5)}
    """)
    lwait(a, HPA, T + 1, 0xff, 2)
    a(f"s_mov_b64 exec, 1\nbuffer_store_dword v{HONE}, v{T}, s[28:31], 0 offen sc1\ns_mov_b64 exec, -1")
    lwait(a, HPA, T + 1, 0xff, "s25")
    a(f"{st(6)}\ns_mov_b32 s25, 0\nH_WO:")
    for i in range(5):
        a(f"s_add_u32 m0, s22, {1024*i}\ns_nop 0\nbuffer_load_dwordx4 v{WA+i}, s[32:35], s27 offen lds")
    a(f"""
    s_add_u32 s22, s22, 5120
    s_add_u32 s27, s27, {32*1280}
    s_add_u32 s25, s25, 1
    s_cmp_lt_u32 s25, 5
    s_cbranch_scc1 H_WO
    s_cmp_lg_u32 s16, 3
    s_cbranch_scc1 H_YW
    v_lshlrev_b32 v2, 7, v0
    """)
    lwait(a, HPA, T + 1, 0xff, opt("ypr", 5), 16)
    a(f"s_mov_b32 s27, {FLG_OFF + 16}\nH_YP:")
    poll4(a, 2, 4, "-1", "s27", slp=32)
    a(f"s_add_u32 s27, s27, 8192\ns_cmp_lt_u32 s27, {FLG_OFF + 32768}\ns_cbranch_scc1 H_YP")
    ladd(a, HPA, HONE, 40)
    a(f"H_YW:\nv_add_u32 v{T}, 40, v{HPA}")
    lwait(a, T, T + 1, 1, 1, 16)
    a("s_waitcnt vmcnt(0)")
    a(f"v_mov_b32 v{T}, 2")
    ladd(a, HPA, T, 32)
    a(f"{st(7)}\ns_mov_b32 s26, {Y_OFF}\ns_mov_b32 s27, {G_OFF}\nbuffer_load_dword v{G}, v{VG}, s[28:31], s27 offen sc1")
    for j in range(6):
        a(f"buffer_load_dwordx4 {vr(ZL+4*j,4)}, v{VZ}, s[28:31], s26 offen sc1\ns_add_u32 s26, s26, {2*ZP}")
    BF, OFR, ACC, YG = 0, 100, 120, 140
    VY2, G2 = 162, 167
    a(f"""
    v_mov_b32 v7, v{HPA}
    {p3_addr(0)}
    v_mov_b32 v{VY2}, v{VY}
    v_mov_b32 v6, v{SH}
    s_mul_i32 s22, s21, 20480
    s_add_u32 s22, s22, {OF_OFF}
    s_waitcnt vmcnt(0)
    v_mov_b32 v{G2}, v{G}
    s_cmp_ge_u32 s20, 4
    s_cbranch_scc1 H_DESC
    """)
    for k in range(20): a(f"v_lshlrev_b32 v{YG+k}, v6, v{ZL+k}")
    a("s_branch H_UNP\nH_DESC:")
    for k in range(20): a(f"v_lshlrev_b32 v{YG+k}, v6, v{ZL+20-k}")
    a("H_UNP:")
    for k in range(20): a(f"v_and_b32 v{YG+k}, 0xffff0000, v{YG+k}")
    for k in range(20): a(f"v_mul_f32 v{YG+k}, v{YG+k}, v{G2}")
    a(f"v_sub_f32 v{G2}, 1.0, v{G2}")
    lwait(a, 7, 8, 0xf, 8)
    a(f"""
    {st(8)}
    s_mov_b32 s41, s16
    s_mov_b32 s47, 0
P3_GO:
    s_setprio 0
    s_lshl_b32 s22, s17, 3
    s_and_b32 s23, s18, 3
    s_add_u32 s22, s22, s23
    s_lshl_b32 s22, s22, 1
    s_add_u32 s22, s22, s47
    s_mul_i32 s22, s22, 20480
    s_add_u32 s22, s22, {OF_OFF}
    s_lshl_b32 s44, s41, 12
    s_add_u32 s44, s44, s22
    s_lshl_b32 s45, s41, 10
    s_add_u32 s45, s45, s22
    s_add_u32 s45, s45, 16384
    s_lshl_b32 s46, s47, 2
    s_add_u32 s40, s46, {LFB + 80}
    s_add_u32 s46, s46, s41
    s_mul_i32 s46, s46, 5120
    s_add_u32 s46, s46, {WOL}
    s_mov_b32 s26, 0
    s_mov_b32 s42, 0
    v_mov_b32 v{CM}, {LFB + 32}
    """)
    lwait(a, CM, CT, 1, 8)
    a("P3_TRY:")
    for k in range(4):
        a(f"buffer_load_dwordx4 {vr(OFR+4*k,4)}, v{VA}, s[28:31], s44 offen offset:{1024*k} sc1")
    a(f"buffer_load_dwordx2 {vr(OFR+16,2)}, v{VT}, s[28:31], s45 offen sc1\nbuffer_load_dwordx2 {vr(OFR+18,2)}, v{VT}, s[28:31], s45 offen offset:128 sc1")
    a(f"""
    s_cmp_lg_u32 s26, 0
    s_cbranch_scc1 P3_CHK
    s_add_u32 s23, s41, 1
    s_and_b32 s23, s23, 3
    s_mul_i32 s23, s23, 25600
    s_add_u32 s23, s23, {WOL}
    v_add_u32 v{CM}, s23, v{BMM}
    v_add_u32 v{CT}, s23, v{BMT}
    """)
    for n in range(25):
        k, t = divmod(n, 5); d = BF + 4 * n
        bb, o, dj = (CM, k * 6400 + t * 8, 1280) if k < 4 else (CT, t * 8, 3200)
        a(f"ds_read_b64_tr_b16 {vr(d,2)}, v{bb} offset:{o}\nds_read_b64_tr_b16 {vr(d+2,2)}, v{bb} offset:{o+dj}")
    a(f"v_mov_b32 v{BMM}, {LFB + 36}\nv_mov_b32 v{BMT}, 1\ns_waitcnt lgkmcnt(0)")
    ladd(a, BMM, BMT, 0)
    b = OFR
    a(f"P3_CHK:\ns_add_u32 s26, s26, 1\ns_waitcnt vmcnt(4)\nv_max3_u32 v{CM}, v{b}, v{b+1}, v{b+2}\nv_max3_u32 v{CT}, v{b+3}, v{b+4}, v{b+5}\nv_max3_u32 v{CM}, v{b+6}, v{b+7}, v{CM}\ns_waitcnt vmcnt(2)")
    a(f"v_max3_u32 v{CT}, v{b+8}, v{b+9}, v{CT}\nv_max3_u32 v{CM}, v{b+10}, v{b+11}, v{CM}\nv_max3_u32 v{CT}, v{b+12}, v{b+13}, v{CT}\nv_max3_u32 v{CM}, v{b+14}, v{b+15}, v{CM}\ns_waitcnt vmcnt(0)")
    a(f"""
    v_max3_u32 v{CT}, v{b+16}, v{b+17}, v{CT}
    v_max3_u32 v{CM}, v{b+18}, v{b+19}, v{CM}
    s_cmp_lt_u32 s26, 0x40000
    v_max_u32 v{CM}, v{CM}, v{CT}
    s_cbranch_scc0 P3_OK
    v_cmp_eq_u32 vcc, -1, v{CM}
    s_cbranch_vccz P3_OK
    s_sleep {opt("p3s", 4)}
    s_branch P3_TRY
P3_OK:
    {st(11)}
    """)
    for n in range(25):
        k, t = divmod(n, 5)
        a(f"v_mfma_f32_16x16x32_bf16 {vr(ACC+4*t,4)}, {vr(BF+4*n,4)}, {vr(OFR+4*k,4)}, {vr(ACC+4*t,4) if k else 0}")
    a("s_cmp_lg_u32 s42, 0\ns_cbranch_scc1 P3_WR")
    lwait(a, BMM, CT, 1, 8, 2)
    a(f"{st(12)}\nP3_WR:\nv_add_u32 v{CM}, s46, v{VA}\nv_mov_b32 v{CT}, s40\ns_nop 1")
    for j in range(5): a(f"ds_write_b128 v{CM}, {vr(ACC+4*j,4)} offset:{1024*j}")
    a("s_waitcnt lgkmcnt(0)")
    ladd(a, CT, BMT, 0)
    a(f"""
    s_add_u32 s44, s44, {8*20480}
    s_add_u32 s45, s45, {8*20480}
    s_add_u32 s46, s46, {8*5120}
    s_add_u32 s40, s40, 8
    s_add_u32 s42, s42, 1
    s_cmp_lt_u32 s42, 2
    s_cbranch_scc1 P3_TRY
    {st(10)}
    s_cmp_ge_u32 s16, 4
    s_cbranch_scc1 {"L_DONE" if STAMP else "L_END"}
    s_setprio 3
    s_lshl_b32 s23, s16, 2
    s_add_u32 s23, s23, {LFB + 80}
    v_mov_b32 v{CT}, s23
    s_mul_i32 s23, s16, 20480
    s_add_u32 s23, s23, {WOL}
    v_add_u32 v{CM}, s23, v{VA}
    """)
    lwait(a, CT, BMM, 1, 4, 1)
    a(st(9))
    for j in range(5):
        for g in range(4): a(f"ds_read_b128 {vr(16*j+4*g,4)}, v{CM} offset:{5120*g+1024*j}")
    for j in range(5):
        a(f"s_waitcnt lgkmcnt({min(15, 16-4*j)})")
        for r in range(4): a(f"v_add_f32 v{16*j+r}, v{16*j+r}, v{16*j+4+r}\nv_add_f32 v{16*j+8+r}, v{16*j+8+r}, v{16*j+12+r}")
        for r in range(4): a(f"v_add_f32 v{16*j+r}, v{16*j+r}, v{16*j+8+r}")
        for r in range(4): a(f"v_fmac_f32 v{YG+4*j+r}, v{16*j+r}, v{G2}")
        a(f"v_cvt_pk_bf16_f32 v{84+2*j}, v{YG+4*j}, v{YG+4*j+1}\nv_cvt_pk_bf16_f32 v{84+2*j+1}, v{YG+4*j+2}, v{YG+4*j+3}")
        if j == 1: a(f"buffer_store_dwordx4 v[84:87], v{VY2}, s[36:39], 0 offen" + OSC)
        if j == 3: a(f"buffer_store_dwordx4 v[88:91], v{VY2}, s[36:39], 0 offen offset:16" + OSC)
    a(f"buffer_store_dwordx2 v[92:93], v{VY2}, s[36:39], 0 offen offset:32" + OSC)

def main():
    a = A()
    top = open("cdna_kernels/" + NAME + ".s.ref").read().split("; Override launch")[0]
    top += "; @launch grid=(256,1,1) block=(768,1,1) lds=163840\n"
    a('.amdgcn_target "amdgcn-amd-amdhsa--gfx950"\n.text')
    d = gen(a)
    open(sys.argv[1], "w").write(top + a.text() + '.section .rodata,"a"\n.p2align 6\n' + d)
if __name__ == "__main__":
    main()
```

```python
import sys, math, struct

OPT = dict(x.split("=") for x in sys.argv[2:])
def opt(k, d): return int(OPT.get(k, d))
NAME = "gated_mix__spectral_fnet__softmax_full_mha__prompt"
HS = 163840
KV_OFF = 0
HG = HS + opt('pad', 512)
HQ = 81920 + opt('pad', 512)
Q_OFF = 32 * HG
FE_OFF = Q_OFF + 32 * HQ
FO_DELTA = 655360
X512_OFF = FE_OFF + 2 * FO_DELTA
TB_OFF = X512_OFF + 4096
Y_OFF = TB_OFF + 33 * 65536
ZP = 8704
G_OFF = Y_OFF + 85 * 2 * ZP
OF_OFF = G_OFF + 8192
FLG_OFF = OF_OFF + 2621440
WS_USED = FLG_OFF + 320 * 128
XB = 102400
L_Y = 256
QLDS = 61440
RB0, RSL = 11264, 36864
LFB = 158720
WOL = 5120
AK1, AK2, AV, BK1, BK2, BV, OA1, OA2, ONES, PA, FA = range(152, 163)
VA, VT, BMM, BMT, CM, CT = 163, 164, 165, 166, 160, 161
PXB = 107520
def p3_addr(l):
    return f"""v_lshlrev_b32 v{VA}, 4, v{l}
    v_and_b32 v2, 7, v{l}
    v_bfe_u32 v4, v{l}, 3, 1
    v_lshrrev_b32 v3, 4, v{l}
    v_lshlrev_b32 v{VT}, 8, v3
    v_lshl_add_u32 v{VT}, v2, 4, v{VT}
    v_lshl_add_u32 v{VT}, v4, 3, v{VT}
    v_bfe_u32 v2, v{l}, 2, 2
    v_and_b32 v5, 3, v{l}
    v_mul_u32_u24 v5, 40, v5
    v_mul_u32_u24 v4, 40, v3
    v_add3_u32 v4, v4, v2, 16
    v_mul_u32_u24 v4, 160, v4
    v_add_u32 v{BMT}, v4, v5
    v_lshrrev_b32 v4, 1, v3
    v_mul_u32_u24 v4, 20, v4
    v_and_b32 v3, 1, v3
    v_lshl_add_u32 v4, v3, 2, v4
    v_add_u32 v4, v4, v2
    v_mul_u32_u24 v4, 160, v4
    v_add_u32 v{BMM}, v4, v5"""

def f32bits(x): return struct.unpack("<I", struct.pack("<f", x))[0]
QSCALE = f32bits((20 ** -0.5) * math.log2(math.e))
STAMP = opt("stamp", 0)
STAMP_OFF = 1 << 25
NST = 16

class A:
    def __init__(self): self.l = []; self.n = 0
    def __call__(self, s):
        for line in s.split("\n"):
            t = line.strip()
            if not t: continue
            self.l.append(t if t.endswith(":") or t.startswith(".") else "    " + t)
    def uid(self): self.n += 1; return self.n
    def text(self): return "\n".join(self.l) + "\n"

def vr(a, n): return f"v[{a}:{a+n-1}]" if n > 1 else f"v{a}"
def srd(lo, base, size):
    return f"s_mov_b32 s{lo}, s{base}\ns_mov_b32 s{lo+1}, s{base+1}\ns_mov_b32 s{lo+2}, {size}\ns_mov_b32 s{lo+3}, 0x20000"
OSC = " sc1" if opt("outsc1", 0) else ""
P1ST = opt("p1st", 0)
def st(i, p1=False):
    if not STAMP: return ""
    if P1ST and not p1 and 0 < i < 15 and i not in (4, 5): return ""
    if P1ST and not p1 and i in (4, 5): i += 8
    if p1 and not P1ST: return ""
    return f"{'s_memrealtime' if STAMP in (1, 3, 4) else 's_memtime'} s[{64+2*i}:{65+2*i}]"
def fin(): return "s_branch L_DONE" if STAMP else "s_endpgm"

X_P, WD_P, WQKV_P, WO_P, GATE_P, OUT_P, DBG_P, WS_P = 4, 8, 48, 50, 52, 54, 56, 58

def poll(a, vaddr, vdat, mask, target, sreg=60):
    u = a.uid()
    a(f"""
    s_mov_b64 exec, {mask}
    s_mov_b32 s{sreg}, 0
L_POLL{u}:
    buffer_load_dword v{vdat}, v{vaddr}, s[28:31], 0 offen sc1
    s_waitcnt vmcnt(0)
    v_cmp_gt_u32 vcc, {target}, v{vdat}
    s_cbranch_vccz L_POLLD{u}
    {'s_sleep 1' if opt('psleep', 0) else ''}
    s_add_u32 s{sreg}, s{sreg}, 1
    s_cmp_lt_u32 s{sreg}, 0x40000
    s_cbranch_scc1 L_POLL{u}
L_POLLD{u}:
    s_mov_b64 exec, -1
    """)

def poll4(a, vaddr, vdat, mask, soff="0", sreg=60, slp=None):
    u = a.uid()
    a(f"""
    s_mov_b64 exec, {mask}
    s_mov_b32 s{sreg}, 0
    s_branch L_POLLE{u}
L_POLL{u}:
    s_sleep {slp or opt("ps4", 2)}
L_POLLE{u}:
    buffer_load_dwordx4 {vr(vdat,4)}, v{vaddr}, s[28:31], {soff} offen sc1
    s_add_u32 s{sreg}, s{sreg}, 1
    s_waitcnt vmcnt(0)
    v_min3_u32 v{vdat}, v{vdat}, v{vdat+1}, v{vdat+2}
    s_cmp_lt_u32 s{sreg}, 0x40000
    v_min_u32 v{vdat}, v{vdat}, v{vdat+3}
    s_cbranch_scc0 L_POLLD{u}
    v_cmp_eq_u32 vcc, 0, v{vdat}
    s_cbranch_vccnz L_POLL{u}
L_POLLD{u}:
    s_mov_b64 exec, -1
    """)

def gen(a):
    label = NAME + "_kernel"
    a(f".p2align 8\n.globl {label}\n.type {label},@function\n{label}:")
    a(f"""
    s_cmp_ge_u32 s2, 256
    s_cbranch_scc1 L_END
    {st(0) + chr(10) + 's_waitcnt lgkmcnt(0)' if opt("st0first", 0) else ''}
    s_load_dwordx2 s[4:5], s[0:1], 0
    s_load_dwordx8 s[48:55], s[0:1], 48
    s_load_dwordx4 s[8:11], s[0:1], 24
    s_load_dwordx4 s[56:59], s[0:1], 80
    """)
    if STAMP:
        a("\n".join(f"s_mov_b32 s{64+j}, 0" for j in range(2, 2 * NST)) + "\n" + ("" if opt("st0first", 0) else st(0)))
    a(f"""
    v_lshrrev_b32 v1, 6, v0
    v_and_b32 v0, 63, v0
    s_and_b32 s17, s2, 7
    v_readfirstlane_b32 s16, v1
    s_lshr_b32 s18, s2, 3
    s_and_b32 s19, s18, 7
    s_lshr_b32 s22, s18, 3
    s_and_b32 s21, s17, 1
    s_lshl_b32 s23, s19, 1
    s_add_u32 s21, s21, s23
    s_lshr_b32 s20, s17, 1
    s_cmp_ge_u32 s16, 4
    s_cbranch_scc1 P1_NOTLOADER
    """)
    p1_loader(a)
    a(f"""
P1_NOTLOADER:
    s_lshl_b32 s63, s17, 2
    s_add_u32 s63, s63, s22
    s_mul_i32 s14, s63, {HG}
    s_sub_u32 s13, s16, 4
    s_lshl_b32 s23, s19, 3
    s_add_u32 s23, s23, s13
    s_mul_i32 s23, s23, 40960
    s_add_u32 s23, s23, {OF_OFF}
    s_lshl_b32 s6, s63, 9
    s_add_u32 s6, s6, s23
    s_lshl_b32 s7, s63, 7
    s_add_u32 s7, s7, s23
    s_add_u32 s7, s7, 16384
    s_lshl_b32 s15, s20, 2
    s_add_u32 s15, s15, s22
    s_lshl_b32 s15, s15, 4
    s_add_u32 s15, s15, s21
    s_lshl_b32 s15, s15, 5
    s_add_u32 s15, s15, s13
    s_lshl_b32 s15, s15, 2
    s_add_u32 s15, s15, {FLG_OFF}
    v_and_b32 v1, 31, v0
    v_lshrrev_b32 v2, 5, v0
    v_lshlrev_b32 v{AK1}, 4, v0
    v_lshrrev_b32 v3, 4, v1
    v_lshl_add_u32 v3, v3, 1, v2
    v_and_b32 v4, 15, v0
    v_lshl_add_u32 v3, v4, 2, v3
    v_lshlrev_b32 v{AK2}, 2, v3
    v_mul_u32_u24 v{AV}, 384, v2
    v_lshlrev_b32 v3, 6, v2
    v_cmp_gt_u32 vcc, 16, v1
    s_nop 1
    v_cndmask_b32 v{AV}, v3, v{AV}, vcc
    v_lshl_add_u32 v{AV}, v1, 4, v{AV}
    v_add_u32 v{BK1}, 15360, v{AK1}
    v_add_u32 v{BK2}, 15360, v{AK2}
    v_add_u32 v{BV}, 15360, v{AV}
    v_and_b32 v3, 27, v1
    v_cmp_eq_u32 vcc, 24, v3
    v_mov_b32 v3, 0x3f803f80
    v_bfe_u32 v{OA2}, v1, 3, 1
    v_cndmask_b32 v{ONES}, 0, v3, vcc
    v_mul_u32_u24 v{OA2}, 20480, v{OA2}
    v_and_b32 v3, 7, v1
    v_lshl_add_u32 v{OA2}, v3, 4, v{OA2}
    v_lshrrev_b32 v3, 4, v0
    v_lshl_add_u32 v{OA1}, v3, 7, v{OA2}
    s_lshl_b32 s23, s13, 2
    s_add_u32 s23, s23, {LFB}
    v_mov_b32 v{PA}, s23
    v_mov_b32 v{FA}, {LFB + 56}
    {p3_addr(0)}
    s_cmp_ge_u32 s16, 8
    s_cbranch_scc1 P1_EXTRA
    """)
    p1_compute(a)
    p1_extra(a)
    attention(a)
    helpers(a)
    a("L_DONE:")
    if STAMP == 4:
        i_, j_ = opt("ai", 0), opt("aj", 0)
        a(f"""s_waitcnt vmcnt(0)
        {st(NST-1)}
        s_waitcnt lgkmcnt(0)
        s_cmp_lg_u32 s16, 0
        s_cbranch_scc1 L_END
        s_and_b32 s60, s2, {opt("am", 31)}
        s_cmp_lg_u32 s60, {opt("av", 5)}
        s_cbranch_scc1 L_END
        s_sub_u32 s60, s{64+2*j_}, s{64+2*i_}
        s_lshl_b32 s60, s60, 2
        s_min_u32 s60, s60, 100000
        {f's_mov_b32 s60, {opt("fix", 0)}' if opt("fix", 0) else ''}
L_AMP:
        s_memrealtime s[44:45]
        s_waitcnt lgkmcnt(0)
        s_sub_u32 s44, s44, s{64 if opt("fix", 0) else 64+2*(NST-1)}
        s_cmp_lt_u32 s44, s60
        s_cbranch_scc1 L_AMP
        """)
    elif STAMP == 3:
        r = f"s_waitcnt vmcnt(0)\n{st(NST-1)}\ns_mov_b64 exec, 1\n{srd(44, DBG_P, 256)}\ns_waitcnt lgkmcnt(0)\nv_mov_b32 v16, 0\n"
        r += "s_not_b32 s60, s64\nv_mov_b32 v0, s60\nbuffer_atomic_umax v0, v16, s[44:47], 0 offen offset:4 sc1\n"
        r += "s_cmp_eq_u32 s16, 0\ns_cbranch_scc1 L_D0\ns_cmp_eq_u32 s16, 4\ns_cbranch_scc0 L_END\n"
        for n, i in enumerate((2, 3, 4, 5, 7, 8, 9)): r += f"v_mov_b32 v{n+1}, s{64+2*i}\nbuffer_atomic_umax v{n+1}, v16, s[44:47], 0 offen offset:{8+4*n} sc1\n"
        r += "s_endpgm\nL_D0:\n"
        for n, i in enumerate((0, 1, 6, 8, 9, 10, 15)): r += f"v_mov_b32 v{n+1}, s{64+2*i}\nbuffer_atomic_umax v{n+1}, v16, s[44:47], 0 offen offset:{36+4*n} sc1\n"
        a(r)
    elif STAMP:
        r = f"s_waitcnt vmcnt(0)\n{st(NST-1)}\ns_mov_b64 exec, 1\ns_add_u32 s44, s{WS_P}, {STAMP_OFF}\ns_addc_u32 s45, s{WS_P+1}, 0\ns_mov_b32 s46, 262144\ns_mov_b32 s47, 0x20000\n"
        r += "s_lshl_b32 s60, s2, 4\ns_add_u32 s60, s60, s16\ns_lshl_b32 s60, s60, 6\ns_waitcnt lgkmcnt(0)\nv_mov_b32 v16, 0\n"
        for i in range(NST): r += f"v_mov_b32 v{i}, s{64+2*i}\n"
        for i in range(4): r += f"buffer_store_dwordx4 v[{4*i}:{4*i+3}], v16, s[44:47], s60 offen offset:{16*i}\n"
        a(r)
    a("L_END:\ns_endpgm\n.fill 256, 4, 0xbf810000\nL_CODE_END:")
    return f""".amdhsa_kernel {label}
  .amdhsa_next_free_vgpr 168
  .amdhsa_next_free_sgpr {100 if STAMP else 64}
  .amdhsa_accum_offset 168
  .amdhsa_group_segment_fixed_size 0
  .amdhsa_kernarg_size 96
  .amdhsa_user_sgpr_count 2
  .amdhsa_user_sgpr_kernarg_segment_ptr 1
  .amdhsa_system_sgpr_workgroup_id_x 1
.end_amdhsa_kernel
"""

def p1_loader(a):
    a(f"""
    s_setprio 3
    v_lshrrev_b32 v2, 3, v0
    v_and_b32 v3, 7, v0
    v_lshrrev_b32 v4, 4, v0
    v_xor_b32 v3, v3, v4
    v_lshlrev_b32 v3, 4, v3
    v_xor_b32 v4, 64, v3
    s_lshl_b32 s23, s21, 5
    s_lshr_b32 s24, s16, 1
    s_lshl_b32 s24, s24, 4
    s_add_u32 s23, s23, s24
    v_add_u32 v9, s23, v2
    s_bitcmp1_b32 s16, 0
    s_cselect_b32 s23, -1, 1
    s_cselect_b32 s24, 0x400, 0
    s_cselect_b32 s25, -8, 8
    v_mul_lo_u32 v10, v9, s23
    s_sub_u32 s27, 0x800, s24
    v_add_u32 v5, s24, v10
    v_sub_u32 v7, s27, v10
    v_add_u32 v6, s25, v5
    v_subrev_u32 v8, s25, v7
    v_cmp_eq_u32 vcc, 0, v9
    s_add_u32 s24, s24, 0x200
    v_mov_b32 v9, s24
    s_cmp_lg_u32 s22, 2
    v_cndmask_b32 v7, v7, v9, vcc
    s_cbranch_scc1 P1_LD_NV
    v_swap_b32 v6, v7
P1_LD_NV:
    s_lshl_b32 s26, s22, 2
    s_add_u32 s26, s26, s20
    s_and_b32 s27, s20, 1
    s_movk_i32 s25, 3840
    s_cmp_eq_u32 s22, 3
    s_cselect_b32 s25, 1280, s25
    s_cselect_b32 s26, s27, s26
    s_mul_i32 s26, s26, 320
    s_movk_i32 s27, 1280
    v_mad_u32_u24 v10, v5, s27, v3
    v_mad_u32_u24 v11, v6, s27, v4
    v_mad_u32_u24 v12, v7, s27, v3
    v_mad_u32_u24 v13, v8, s27, v4
    s_lshl_b32 s27, s16, 4
    s_mul_i32 s27, s27, s25
    s_add_u32 s26, s26, s27
    s_sub_u32 s27, s25, 320
    """)
    for i in range(5):
        a(f"""
        v_add_u32 v5, {64*i}, v0
        v_mul_u32_u24 v6, 3277, v5
        v_lshrrev_b32 v6, 16, v6
        v_lshrrev_b32 v7, 2, v6
        v_and_b32 v7, 2, v7
        v_xor_b32 v5, v5, v7
        v_lshl_add_u32 v5, v5, 4, s26
        v_mad_u32_u24 v{14+i}, v6, s27, v5
        """)
    sg = opt("stag1", 0)
    if sg == 1:
        a("s_lshl_b32 s36, s19, 3\ns_lshl_b32 s37, s22, 4\ns_add_u32 s36, s36, s37\ns_add_u32 s36, s36, s17\ns_and_b32 s36, s36, 63\ns_mul_i32 s36, s36, 10\ns_lshr_b32 s36, s36, 6")
    elif sg == 2:
        a("s_add_u32 s36, s19, s22\ns_lshl_b32 s36, s36, 4\ns_add_u32 s36, s36, s17\ns_add_u32 s36, s36, s17\ns_and_b32 s36, s36, 63\ns_mul_i32 s36, s36, 10\ns_lshr_b32 s36, s36, 6")
    elif sg == 3:
        a("s_add_u32 s36, s19, s22\ns_lshl_b32 s36, s36, 5\ns_lshl_b32 s37, s17, 2\ns_add_u32 s36, s36, s37\ns_and_b32 s36, s36, 63\ns_mul_i32 s36, s36, 10\ns_lshr_b32 s36, s36, 6")
    elif sg >= 5:
        tsh = {5: 0, 6: 1, 7: 0}[sg]
        a(f"""
        s_lshr_b32 s36, s17, 1
        s_xor_b32 s36, s36, s17
        s_and_b32 s36, s36, 1
        s_lshr_b32 s37, s22, {tsh}
        s_add_u32 s37, s37, s19
        s_lshr_b32 s46, s17, 2
        s_lshl_b32 s46, s46, 1
        s_add_u32 s37, s37, s46
        s_mul_i32 s46, s37, 52
        s_lshr_b32 s46, s46, 8
        s_mul_i32 s46, s46, 5
        s_sub_u32 s37, s37, s46
        s_lshl_b32 s37, s37, 2
        s_mov_b32 s46, 0x42086420
        s_mov_b32 s47, 0x6
        s_lshr_b64 s[46:47], s[46:47], s37
        s_and_b32 s46, s46, 0xfffff
        s_or_b32 s46, s46, 0x53100000
        s_mov_b32 s47, 0x97
        s_mul_i32 s37, s36, 0x11111111
        s_xor_b32 s46, s46, s37
        s_xor_b32 s47, s47, s37
        """)
        if sg == 7:
            a("s_lshr_b32 s37, s47, 4\ns_and_b32 s37, s37, 15\ns_lshl_b64 s[46:47], s[46:47], 4\ns_or_b32 s46, s46, s37")
        a("s_and_b32 s36, s46, 15")
    else:
        a("s_mov_b32 s36, 0")
    a(f"""
    s_lshl_b32 s38, s16, 12
    s_add_u32 s38, s38, {RB0}
    s_mul_i32 s39, s16, 5120
    s_add_u32 s39, s39, {RB0 + 16384}
    s_mov_b32 s40, 0
    s_mul_i32 s34, s25, 640
    s_lshl_b32 s25, s25, 6
    s_mov_b32 s35, 0x20000
    s_waitcnt lgkmcnt(0)
    {srd(28, X_P, 2048*1280)}
    s_cmp_lt_u32 s20, 2
    s_cselect_b32 s32, s8, s10
    s_cselect_b32 s33, s9, s11
    s_cmp_eq_u32 s22, 3
    s_cselect_b32 s32, s32, s{WQKV_P}
    s_cselect_b32 s33, s33, s{WQKV_P+1}
    {st(1)}
    """)
    if opt("dftdelay", 0):
        a(f"""s_cmp_lg_u32 s22, 3
        s_cbranch_scc1 P1_LD_LOOP
        s_memrealtime s[46:47]
        s_waitcnt lgkmcnt(0)
        s_add_u32 s46, s46, {opt("dftdelay", 0)}
P1_DLY:
        s_memrealtime s[44:45]
        s_waitcnt lgkmcnt(0)
        s_cmp_lt_u32 s44, s46
        s_cbranch_scc1 P1_DLY
        """)
    a(f"""
P1_LD_LOOP:
    s_lshl_b32 s41, s36, 7
    s_mul_i32 s42, s36, s25
    s_add_u32 s43, s40, 2
    s_and_b32 s43, s43, 3
    s_mul_i32 s43, s43, {RSL}
    s_add_u32 s44, s43, s38
    s_add_u32 s45, s43, s39
    """)
    for i in range(4):
        a(f"s_add_u32 m0, s44, {1024*i}\ns_nop 0\nbuffer_load_dwordx4 v{10+i}, s[28:31], s41 offen lds")
    for i in range(5):
        a(f"s_add_u32 m0, s45, {1024*i}\ns_nop 0\nbuffer_load_dwordx4 v{14+i}, s[32:35], s42 offen lds")
    if opt("noload", 0): a("s_cmp_ge_u32 s40, 3\ns_cselect_b32 s30, 0, s30\ns_cselect_b32 s34, 0, s34")
    a(f"""
    {'s_lshr_b64 s[46:47], s[46:47], 4' + chr(10) + 's_and_b32 s36, s46, 15' if sg >= 5 else 's_add_u32 s36, s36, 1' + chr(10) + 's_cmp_eq_u32 s36, 10' + chr(10) + 's_cselect_b32 s36, 0, s36'}
    s_add_u32 s40, s40, 1
    s_cmp_eq_u32 s40, 1
    s_cbranch_scc1 P1_LD_LOOP
    s_waitcnt vmcnt(9)
    s_barrier
    s_cmp_lt_u32 s40, 10
    s_cbranch_scc1 P1_LD_LOOP
    s_waitcnt vmcnt(0)
    s_barrier
    s_branch HELPER
    """)

def p1_compute(a):
    X = 80; W = [96, 116]; XA = 136; WA = 137; CX = 142; CW = 144; PC = 149; L = 150; TT = 96
    def acc(b, T): return 20 * b + 4 * T
    a(f"""
    s_sub_u32 s61, s16, 4
    s_and_b32 s36, s61, 1
    s_lshr_b32 s37, s61, 1
    v_mov_b32 v{L}, v0
    v_and_b32 v1, 15, v0
    v_lshrrev_b32 v2, 4, v0
    v_lshrrev_b32 v3, 1, v1
    v_xor_b32 v3, v3, v2
    v_lshlrev_b32 v3, 4, v3
    v_lshl_add_u32 v3, v1, 7, v3
    s_lshl_b32 s23, s36, 13
    s_add_u32 s23, s23, {RB0}
    v_add_u32 v{XA}, s23, v3
    v_bfe_u32 v3, v0, 2, 2
    v_lshl_add_u32 v3, v2, 3, v3
    v_mul_u32_u24 v3, 320, v3
    v_add_u32 v3, {RB0 + 16384}, v3
    v_and_b32 v4, 16, v0
    v_lshlrev_b32 v4, 1, v4
    v_and_b32 v5, 3, v0
    s_mul_i32 s23, s37, 160
    v_lshl_add_u32 v6, v5, 3, s23
    """)
    for T in range(4):
        a(f"v_xor_b32 v7, v6, v4\nv_add_u32 v{WA+T}, v7, v3\nv_add_u32 v6, 40, v6")
    a(f"""
    v_mul_u32_u24 v6, 40, v5
    v_add3_u32 v6, v6, s23, 32
    v_xor_b32 v7, v6, v4
    v_add_u32 v{WA+4}, v7, v3
    v_mov_b32 v{PC}, 0xbf803f80
    s_lshl_b32 s26, s22, 2
    s_add_u32 s26, s26, s20
    s_lshl_b32 s26, s26, 1
    s_add_u32 s26, s26, s37
    s_cmp_eq_u32 s26, 28
    s_cselect_b32 s24, 0x10001, 0
    s_mov_b32 s25, s24
    s_cmp_eq_u32 s22, 3
    s_cselect_b32 s43, 10, 8
    s_mov_b32 s40, 0
    s_mov_b32 s42, {2 * RSL}
    """)
    for r in range(96): a(f"v_mov_b32 v{r}, 0")
    for r in range(20): a(f"v_mov_b32 v{W[1]+r}, 0")
    a(f"v_add_u32 v{CX}, s42, v{XA}")
    for T in range(5): a(f"v_add_u32 v{CW+T}, s42, v{WA+T}")
    a(f"s_waitcnt lgkmcnt(0)\n{srd(28, WS_P, WS_USED)}")
    a("s_cmp_ge_u32 s22, 2\ns_cbranch_scc1 P1_PRE_V")
    def mf(b, T, x, w, qk):
        d = vr(acc(b, T), 4)
        return f"v_mfma_f32_16x16x32_bf16 {d}, {vr(w,4)}, {vr(x,4)}, {d}" if qk else f"v_mfma_f32_16x16x32_bf16 {d}, {vr(x,4)}, {vr(w,4)}, {d}"
    def rdw(d, T, step): return [f"ds_read_b64_tr_b16 {vr(d+2*j,2)}, v{CW+T} offset:{(step // 2) * RSL + (step % 2) * 10240 + 1280 * j}" for j in range(2)]
    def rdx(d, b, step): return f"ds_read_b128 {vr(d,4)}, v{CX + step % 2} offset:{(step // 2) * RSL + 2048 * b}"
    TO = (1, 2, 3, 4, 0)
    def group(step, qk, reads=True):
        cur = W[1 - step]; nxt = W[step]
        rq = []
        for T in TO: rq += rdw(nxt + 4 * T, T, step)
        fill = []
        if step == 1:
            fill = ["s_add_u32 s40, s40, 1", "s_add_u32 s41, s40, 2", "s_and_b32 s41, s41, 3", f"s_mul_i32 s42, s41, {RSL}", f"v_add_u32 v{CX}, s42, v{XA}"] + [f"v_add_u32 v{CW+T}, s42, v{WA+T}" for T in range(5)]
        issued = 0
        for b in range(4):
            if reads:
                allow = [2, 15, issued + 1, issued][b]
                if b != 1: a(f"s_waitcnt lgkmcnt({min(15, allow)})")
            elif b == 0: a("s_waitcnt lgkmcnt(0)")
            for n, T in enumerate(TO):
                a(mf(b, T, X + 4 * b, cur + 4 * T, qk))
                if b == 0 and n < 2 and not qk:
                    for j in range(2): a(f"v_cndmask_b32 v{cur+2*n+j}, v{cur+2*n+j}, v{PC}, s[24:25]")
                if not reads: continue
                if step == 0 and b == 0:
                    if n == 0: a(f"v_xor_b32 v{CX+1}, 64, v{CX}")
                    if n == 1: a("s_barrier")
                    if n < 2: continue
                if n == 4: a(rdx(X + 4 * b, b, step)); issued += 1
                elif rq: a(rq.pop(0)); issued += 1
                elif fill:
                    a(fill.pop(0))
                    if fill: a(fill.pop(0))
        assert not reads or (not rq and not fill), (rq, fill)

    def tail(qk, epi):
        seq = [(b, T, ("x0", b), ("w0", T)) for b in range(4) for T in TO]
        marks = {}
        for ph, Ts in enumerate(((0, 1), (2, 3), (4,))):
            for step in range(4):
                for b in range(4):
                    for T in Ts: seq.append((b, T, ("x", ph, step, b), ("w", step, T)))
            marks[len(seq) - 1] = ph
        last = {}
        for n, (_, _, x, w) in enumerate(seq): last[x] = n; last[w] = n
        loc = {("x0", b): X + 4 * b for b in range(4)}; loc.update({("w0", T): W[1] + 4 * T for T in range(5)})
        free = [W[0] + 4 * k for k in range(5)]
        order = []
        for _, _, x, w in seq:
            for f in (w, x):
                if f not in loc and f not in order: order.append(f)
        done_at = {}; nrd = 0; waited = 0; pend = []; fill = []; hold = 0
        a(f"v_xor_b32 v{CX+1}, 64, v{CX}\ns_waitcnt lgkmcnt(0)\ns_barrier")
        bar2 = [True]
        def take():
            f = order.pop(0); loc[f] = free.pop(0)
            if bar2 and (f[1] if f[0] == "w" else f[2]) >= 2: a("s_barrier"); bar2.pop()
            p_ = rdw(loc[f], f[2], f[1]) if f[0] == "w" else [rdx(loc[f], f[3], f[2])]
            done_at[f] = nrd + len(p_)
            return p_
        for n, (b, T, x, w) in enumerate(seq):
            while any(f not in loc or (f in done_at and done_at[f] > nrd) for f in (x, w)):
                if not pend: pend = take()
                a(pend.pop(0)); nrd += 1
            need = max(done_at.get(x, 0), done_at.get(w, 0))
            if need > waited:
                waited = max(need, nrd - opt("tw", 6)); a(f"s_waitcnt lgkmcnt({nrd - waited})")
            a(mf(b, T, loc[x], loc[w], qk))
            for f in (x, w):
                if last[f] == n: free.append(loc[f])
            if not pend and order and free: pend = take()
            if pend: a(pend.pop(0)); nrd += 1
            if hold: hold -= 1
            else:
                for _ in range(2):
                    if fill: a(fill.pop(0))
            if n in marks and marks[n] < 2:
                for f in fill: a(f)
                fill = epi(marks[n]); hold = 4
        for f in fill: a(f)
        a(st(3)); a("s_nop 4")
        for f in epi(2): a(f)

    EA, EB = 167, 151
    def cv(d, r): return [f"v_cvt_pk_bf16_f32 v{d}, v{r}, v{r+1}", f"v_cvt_pk_bf16_f32 v{d+1}, v{r+2}, v{r+3}"]
    def epi_qk(ph):
        if ph < 0:
            return f"""s_mov_b32 s35, {HG}
            s_movk_i32 s38, 2560
            s_cmp_eq_u32 s22, 0
            s_cselect_b32 s35, {HQ}, s35
            s_cselect_b32 s27, {Q_OFF}, {KV_OFF}
            s_cselect_b32 s38, 1280, s38
            s_lshl_b32 s26, s20, 1
            s_add_u32 s26, s26, s37
            s_lshl_b32 s26, s26, 2
            s_mul_i32 s26, s26, s35
            s_add_u32 s26, s26, s27
            s_lshl_b32 s23, s21, 1
            s_add_u32 s23, s23, s36
            s_lshl_b32 s23, s23, 1
            s_mul_i32 s23, s23, s38
            s_add_u32 s26, s26, s23
            s_add_u32 s27, s26, s38
            v_lshrrev_b32 v{EA}, 4, v{L}
            v_mul_lo_u32 v{EA}, v{EA}, s35
            v_and_b32 v{TT}, 15, v{L}
            v_lshl_add_u32 v{EA}, v{TT}, 4, v{EA}
            v_lshlrev_b32 v{EB}, 4, v{L}
            s_add_u32 s44, s26, s35
            s_add_u32 s45, s27, s35
            s_add_u32 s46, s44, s35
            s_add_u32 s47, s45, s35
            s_add_u32 s32, s46, s35
            s_add_u32 s33, s47, s35""".split("\n")
        sc = lambda r: []
        o = []
        if ph < 2:
            for jj in range(2):
                Ts = (2 * ph, 2 * ph + 1)
                for T in Ts: o += cv(acc(2 * jj, T), acc(2 * jj, T)) + cv(acc(2 * jj, T) + 2, acc(2 * jj + 1, T))
                for T in Ts:
                    r0 = acc(2 * jj, T)
                    o += [f"v_permlane16_swap_b32 v{r0}, v{r0+2}", f"v_permlane16_swap_b32 v{r0+1}, v{r0+3}"]
                for T in Ts:
                    o.append(f"buffer_store_dwordx4 {vr(acc(2 * jj, T),4)}, v{EB}, s[28:31], s{(26, 44, 46, 32)[T] + jj} offen sc1")
        else:
            for jj in range(2):
                r0, r1 = acc(2 * jj, 4), acc(2 * jj + 1, 4)
                o += sc(r0) + sc(r1) + cv(r0, r0) + cv(r0 + 2, r1)
                o.append(f"buffer_store_dwordx4 {vr(r0,4)}, v{EA}, s[28:31], s{26 + jj} offen offset:1024 sc1")
        return o
    def epi_v(ph):
        if ph < 0:
            return f"""s_lshl_b32 s26, s20, 1
            s_add_u32 s26, s26, s37
            s_mul_i32 s26, s26, {4*HG}
            s_lshl_b32 s23, s21, 1
            s_add_u32 s23, s23, s36
            s_mul_i32 s23, s23, 5120
            s_add_u32 s26, s26, s23
            s_add_u32 s26, s26, {KV_OFF + 1280}
            s_add_u32 s44, s26, {HG}
            s_add_u32 s45, s26, {2*HG}
            s_add_u32 s46, s26, {3*HG}
            s_mov_b32 s35, {HG}
            v_lshrrev_b32 v{EA}, 5, v{L}
            v_mul_u32_u24 v{EA}, 640, v{EA}
            v_bfe_u32 v{TT}, v{L}, 4, 1
            v_lshl_add_u32 v{EB}, v{TT}, 6, v{EA}
            v_mul_u32_u24 v{TT}, 384, v{TT}
            v_add_u32 v{EA}, v{EA}, v{TT}
            v_and_b32 v{TT}, 15, v{L}
            v_lshl_add_u32 v{EA}, v{TT}, 4, v{EA}
            v_and_b32 v{TT}, 3, v{L}
            v_lshl_add_u32 v{EB}, v{TT}, 4, v{EB}
            v_bfe_u32 v{TT}, v{L}, 2, 2
            v_mul_lo_u32 v{TT}, v{TT}, s35
            v_add_u32 v{EB}, v{EB}, v{TT}""".split("\n")
        o = []
        for jj in range(2):
            for T in ((0, 1), (2, 3), (4,))[ph]:
                r0, r1 = acc(2 * jj, T), acc(2 * jj + 1, T)
                o += cv(r0, r0) + cv(r0 + 2, r1)
                if T < 4: o.append(f"buffer_store_dwordx4 {vr(r0,4)}, v{EA}, s[28:31], s{(26, 44, 45, 46)[T]} offen offset:{2560 * jj} sc1")
                else: o.append(f"buffer_store_dwordx4 {vr(r0,4)}, v{EB}, s[28:31], s26 offen offset:{2560 * jj + 256} sc1")
        return o

    for qk, lab in ((True, "QK"), (False, "V")):
        a(f"P1_PRE_{lab}:")
        for f in (epi_qk if qk else epi_v)(-1): a(f)
        a(f"P1_LOOP_{lab}:")
        group(0, qk)
        if STAMP: a(f"s_cmp_lg_u32 s40, 0\ns_cbranch_scc1 P1_ST_{lab}\n{st(2)}\nP1_ST_{lab}:\ns_cmp_lg_u32 s40, 5\ns_cbranch_scc1 P1_SU_{lab}\n{st(1)}\nP1_SU_{lab}:")
        group(1, qk)
        a(f"s_cmp_lt_u32 s40, s43\ns_cbranch_scc1 P1_LOOP_{lab}")
        if not qk: a("s_cmp_eq_u32 s22, 3\ns_cbranch_scc1 P1_EPI_DFT")
        tail(qk, epi_qk if qk else epi_v)
        a("s_branch P1_DONE")
    a("P1_EPI_DFT:")
    group(0, False, reads=False)
    TAU, TAU0, E0 = 80, 81, 82
    a(f"""
    {st(3)}
    s_cmp_lt_u32 s20, 2
    s_cselect_b32 s38, 1.0, -1.0
    v_mov_b32 v{TAU}, s38
    v_cndmask_b32 v{TAU0}, v{TAU}, 1.0, s[24:25]
    s_lshl_b32 s26, s20, 1
    s_add_u32 s26, s26, s37
    s_mul_i32 s26, s26, 80
    v_and_b32 v88, 15, v{L}
    v_add_u32 v{E0}, s26, v88
    v_add_u32 v{E0+1}, 20, v{E0}
    v_add_u32 v{E0+2}, 40, v{E0}
    v_add_u32 v{E0+3}, 60, v{E0}
    v_and_b32 v89, 12, v{L}
    v_lshl_add_u32 v{E0+4}, v89, 2, v{E0}
    v_add_u32 v{E0+4}, 16, v{E0+4}
    s_lshl_b32 s23, s21, 1
    s_add_u32 s23, s23, s36
    s_cmp_lg_u32 s23, 0
    s_cbranch_scc1 P1_EPI_DFT2
    s_mov_b64 exec, 0xffff
    s_mov_b32 s27, {X512_OFF}
    """)
    for T in range(5):
        a(f"v_fma_f32 v{96+T}, v{acc(3,T)}, v{TAU0 if T == 0 else TAU}, v{acc(1,T)}")
        a(f"v_lshlrev_b32 v{104+T}, 2, v{E0+T}\nv_mov_b32 v{acc(1,T)}, 0\nv_mov_b32 v{acc(3,T)}, 0")
        a(f"buffer_store_dword v{96+T}, v{104+T}, s[28:31], s27 offen sc1")
    a(f"""
    s_mov_b64 exec, -1
P1_EPI_DFT2:
    s_lshl_b32 s26, s23, 9
    s_add_u32 s26, s26, {FE_OFF}
    s_mov_b32 s27, {FO_DELTA}
    v_bfe_u32 v88, v{L}, 4, 1
    v_mul_lo_u32 v88, v88, s27
    v_lshrrev_b32 v89, 5, v{L}
    v_lshl_add_u32 v88, v89, 8, v88
    """)
    for T in range(5):
        tau = TAU0 if T == 0 else TAU
        a0, a1, a2, a3 = (acc(b, T) for b in range(4))
        for q in range(4):
            a(f"v_fma_f32 v{a0+q}, v{a1+q}, v{tau}, v{a0+q}\nv_fma_f32 v{a3+q}, v{a2+q}, v{tau}, v{a3+q}")
        for q in range(4):
            a(f"v_add_f32 v{a1+q}, v{a0+q}, v{a3+q}\nv_sub_f32 v{a2+q}, v{a0+q}, v{a3+q}")
        for f in cv(a0, a1) + cv(a0 + 2, a2): a(f)
        a(f"""
        v_lshrrev_b32 v89, 4, v{E0+T}
        v_lshl_add_u32 v89, v89, 14, v88
        v_and_b32 v{E0+T}, 15, v{E0+T}
        v_lshl_add_u32 v{E0+T}, v{E0+T}, 4, v89
        v_permlane16_swap_b32 v{a0}, v{a0+2}
        v_permlane16_swap_b32 v{a0+1}, v{a0+3}
        buffer_store_dwordx4 {vr(a0,4)}, v{E0+T}, s[28:31], s26 offen sc1
        """)
    a(f"""
P1_DONE:
    {st(14)}
    s_mov_b32 s34, 1
    s_branch ATT
    """)

def p1_extra(a):
    T0 = 40
    a(f"""
P1_EXTRA:
    s_sub_u32 s61, s16, 8
    """)
    if opt("cwarm", 1):
        a(f"""
        s_cmp_lg_u32 s16, 10
        s_cbranch_scc1 P1_NOCW
        s_lshl_b32 s23, s18, 10
        s_cmp_ge_u32 s23, L_CODE_END - {NAME}_kernel - 1023
        s_cbranch_scc1 P1_NOCW
        s_getpc_b64 s[44:45]
L_PC:
        s_sub_u32 s44, s44, L_PC - {NAME}_kernel
        s_subb_u32 s45, s45, 0
        v_lshl_add_u32 v40, v0, 4, s23
        global_load_dwordx4 v[44:47], v40, s[44:45]
P1_NOCW:
        """)
    a(f"""
    v_lshrrev_b32 v37, 4, v0
    v_and_b32 v38, 15, v0
    v_lshlrev_b32 v39, 4, v0
    v_mov_b32 v36, v0
    s_waitcnt lgkmcnt(0)
    {srd(28, WS_P, WS_USED)}
    {srd(32, DBG_P, 256)}
    s_cmp_lg_u32 s61, 0
    s_cbranch_scc1 P1_EX_A
    v_mov_b32 v1, 0
    v_lshlrev_b32 v2, 2, v0
    v_add_u32 v2, {LFB}, v2
    ds_write_b32 v2, v1
    s_waitcnt lgkmcnt(0)
    s_cmp_lg_u32 s2, 255
    s_cbranch_scc1 P1_EX_WAITRDY
    v_lshlrev_b32 v2, 7, v0
    v_mov_b32 v4, 0
    v_mov_b32 v5, 0
    v_mov_b32 v6, 0
    v_mov_b32 v7, 0
    s_mov_b32 s23, {FLG_OFF}
    buffer_store_dwordx4 v[4:7], v2, s[28:31], s23 offen sc1
    buffer_store_dwordx4 v[4:7], v2, s[28:31], s23 offen offset:16 sc1
    s_add_u32 s23, s23, 8192
    buffer_store_dwordx4 v[4:7], v2, s[28:31], s23 offen sc1
    buffer_store_dwordx4 v[4:7], v2, s[28:31], s23 offen offset:16 sc1
    s_add_u32 s23, s23, 8192
    buffer_store_dwordx4 v[4:7], v2, s[28:31], s23 offen sc1
    buffer_store_dwordx4 v[4:7], v2, s[28:31], s23 offen offset:16 sc1
    s_add_u32 s23, s23, 8192
    buffer_store_dwordx4 v[4:7], v2, s[28:31], s23 offen sc1
    buffer_store_dwordx4 v[4:7], v2, s[28:31], s23 offen offset:16 sc1
    s_add_u32 s23, s23, 8192
    v_mov_b32 v3, 1
    s_waitcnt vmcnt(0)
    s_mov_b64 exec, 1
    buffer_store_dword v3, v1, s[32:35], 0 offen sc1
    s_mov_b64 exec, -1
P1_EX_WAITRDY:
P1_EX_A:
    s_lshl_b32 s23, s2, 2
    s_add_u32 s23, s23, s61
    s_mov_b32 s40, 0
P1_TBL:
    s_lshr_b32 s24, s23, 5
    s_and_b32 s25, s23, 30
    s_and_b32 s26, s24, 1
    s_lshr_b32 s27, s24, 1
    s_lshl_b32 s27, s27, 6
    s_add_u32 s27, s27, s26
    s_and_b32 s26, s23, 1
    s_lshl_b32 s26, s26, 5
    s_add_u32 s27, s27, s26
    v_lshl_add_u32 v{T0}, v38, 1, s27
    s_lshl_b32 s25, s25, 4
    v_lshl_add_u32 v{T0+1}, v37, 3, s25
    v_mul_u32_u24 v{T0+1}, v{T0}, v{T0+1}
    v_and_b32 v{T0+1}, 0x7ff, v{T0+1}
    v_cvt_f32_u32 v{T0}, v{T0}
    v_cvt_f32_u32 v{T0+1}, v{T0+1}
    v_mul_f32 v{T0}, 0x3a000000, v{T0}
    v_mul_f32 v0, 0x3a000000, v{T0+1}
    """)
    for u in range(1, 8): a(f"v_add_f32 v{u}, v{u-1}, v{T0}")
    for u in range(1, 8): a(f"v_fract_f32 v{u}, v{u}")
    for u in range(8): a(f"v_cos_f32 v{8+u}, v{u}")
    for u in range(8): a(f"v_sin_f32 v{16+u}, v{u}")
    for j in range(4): a(f"v_cvt_pk_bf16_f32 v{24+j}, v{8+2*j}, v{9+2*j}")
    for j in range(4): a(f"v_cvt_pk_bf16_f32 v{28+j}, v{16+2*j}, v{17+2*j}")
    NB0 = opt("tblbar", 5)
    a(f"""
    s_cmp_lg_u32 s40, 0
    s_cbranch_scc1 P1_TBL_ST
    """ + "".join(f"s_barrier\n{st(1 + b_, True)}\n" for b_ in range(NB0)) + f"""
    s_mov_b32 s40, 1
P1_TBL_ST:
    s_lshl_b32 s24, s23, 11
    s_add_u32 s24, s24, {TB_OFF}
    buffer_store_dwordx4 v[24:27], v39, s[28:31], s24 offen sc1
    buffer_store_dwordx4 v[28:31], v39, s[28:31], s24 offen offset:1024 sc1
    s_add_u32 s23, s23, 1024
    s_cmp_lt_u32 s23, 1056
    s_cbranch_scc1 P1_TBL
    """)
    nb = NB0
    a("".join(f"s_barrier\n{st(1 + b_, True)}\n" for b_ in range(nb, 9)))
    u = a.uid()
    a(f"""
    s_cmp_lg_u32 s61, 0
    s_cbranch_scc1 P1_EX_B
    v_mov_b32 v1, 0
    s_mov_b32 s60, 0
L_RDY{u}:
    buffer_load_dword v2, v1, s[32:35], 0 offen sc1
    s_waitcnt vmcnt(0)
    v_cmp_ne_u32 vcc, 0, v2
    s_cbranch_vccnz P1_EX_B
    s_sleep 1
    s_add_u32 s60, s60, 1
    s_cmp_lt_u32 s60, 0x40000
    s_cbranch_scc1 L_RDY{u}
P1_EX_B:
    s_waitcnt vmcnt(0)
    s_barrier
    {st(10, True)}
    s_mov_b32 s34, 0
    """)

def attention(a):
    O = 0; S = [16, 32]; P = 48; Q1 = 56; Q2 = 60; K2 = 62; K1 = 64; V1 = 68; V2 = [72, 76]; T = 80
    a(f"""
ATT:
    s_setprio 3
    s_cmp_lt_u32 s13, 4
    s_cselect_b32 s32, {opt("o1", 4)}, {opt("y1", 4)}
    s_cselect_b32 s33, {opt("o2", 7)}, {opt("y2", 7)}
    s_movk_i32 s35, 0x106
    s_bitset1_b32 s35, s32
    s_bitset1_b32 s35, s33
    s_mov_b32 s24, 0xfffff
    s_mov_b32 s25, 0xfffff
    s_mul_i32 s27, s13, 1280
    v_mov_b32 v{Q2+1}, 0
    v_mov_b32 v{K2+1}, 0x3f803f80
    v_add_u32 v{T}, s27, v{AK1}
    v_add_u32 v{T+1}, s27, v{AK2}
    v_mov_b32 v{T+2}, 1
    """)
    for r in range(12): a(f"v_mov_b32 v{V1+r}, v{ONES}")
    for r in range(16): a(f"v_mov_b32 v{O+r}, 0")
    for r in range(4): a(f"v_mov_b32 v{P+4+r}, 0\nv_mov_b32 v{P+r}, -1")
    def qk1(d): return f"v_mfma_f32_32x32x16_bf16 {vr(d,16)}, {vr(K1,4)}, {vr(Q1,4)}, 0"
    def qk2(d): return f"v_mfma_f32_32x32x8_bf16 {vr(d,16)}, {vr(K2,2)}, {vr(Q2,2)}, {vr(d,16)}"
    def pv(v, p): return f"v_mfma_f32_32x32x16_bf16 {vr(O,16)}, {vr(v,4)}, {vr(p,4)}, {vr(O,16)}"
    def of(t): return (t - 6 if t in (6, 7) else t) * 2560
    def rdk1(t): return f"ds_read_b128 {vr(K1,4)}, v{BK1 if t in (6, 7) else AK1} offset:{of(t)}"
    def rdk2(t): return f"ds_read_b32 v{K2}, v{BK2 if t in (6, 7) else AK2} offset:{of(t)+1024}"
    def rdv(t, v2):
        b = BV if t in (6, 7) else AV
        return f"s_mov_b64 exec, s[24:25]\nds_read_b128 {vr(V1,4)}, v{b} offset:{of(t)+1280}\nds_read_b128 {vr(v2,4)}, v{b} offset:{of(t)+1920}\ns_mov_b64 exec, -1"
    def maxtree(s, m, first):
        if first:
            a(f"v_max3_f32 v{m}, v{s}, v{s+1}, v{s+2}\nv_max3_f32 v{m+1}, v{s+3}, v{s+4}, v{s+5}")
            for j in range(6, 14, 4): a(f"v_max3_f32 v{m}, v{s+j}, v{s+j+1}, v{m}\nv_max3_f32 v{m+1}, v{s+j+2}, v{s+j+3}, v{m+1}")
            a(f"v_max3_f32 v{m}, v{s+14}, v{s+15}, v{m}\nv_max_f32 v{m}, v{m}, v{m+1}")
        else:
            for j in range(0, 16, 2): a(f"v_max3_f32 v{m}, v{s+j}, v{s+j+1}, v{m}")
    def xhalf(m):
        a(f"v_mov_b32 v{m+1}, v{m}\ns_nop 1\nv_permlane32_swap_b32 v{m}, v{m+1}\ns_nop 0\nv_max_f32 v{m}, v{m}, v{m+1}")
    a(f"""
    s_cmp_lg_u32 s34, 1
    s_cbranch_scc1 ATT_NOSIG
    s_waitcnt vmcnt(0)
    s_mov_b64 exec, 1
    buffer_store_dword v{T+2}, v{O}, s[28:31], s15 offen sc1
    s_mov_b64 exec, -1
ATT_NOSIG:
    {st(4)}
    s_barrier
    {st(6)}
    ds_read_b128 {vr(Q1,4)}, v{T} offset:{QLDS}
    ds_read_b32 v{Q2}, v{T+1} offset:{QLDS+1024}
    {rdk1(0)}
    {rdk2(0)}
    {rdv(0, V2[0])}
    s_waitcnt lgkmcnt(4)
    """)
    for j in range(5): a(f"v_lshlrev_b32 v{S[0]+2*j}, 16, v{Q1+j}\nv_and_b32 v{S[0]+2*j+1}, 0xffff0000, v{Q1+j}")
    for j in range(10): a(f"v_mul_f32 v{S[0]+j}, {QSCALE:#x}, v{S[0]+j}")
    for j in range(5): a(f"v_cvt_pk_bf16_f32 v{Q1+j}, v{S[0]+2*j}, v{S[0]+2*j+1}")
    a(f"""
    s_waitcnt lgkmcnt(2)
    {qk1(S[1])}
    {qk2(S[1])}
    {qk1(S[0])}
    {rdk1(1)}
    s_mov_b32 s26, 0
    buffer_store_dwordx4 {vr(P,4)}, v{OA1}, s[28:31], s6 offen sc1
    s_mov_b64 exec, 0xffff
    buffer_store_dwordx4 {vr(P,4)}, v{OA2}, s[28:31], s7 offen sc1
    s_mov_b64 exec, -1
    s_nop 4
    """)
    maxtree(S[1], T, True); xhalf(T)
    a(f"""
    v_mul_f32 v{T}, -0.5, v{T}
    v_cvt_pk_bf16_f32 v{Q2+1}, v{T}, 0
    s_nop 1
    {qk2(S[0])}
    {rdk2(1)}
    s_waitcnt lgkmcnt(0)
    {st(7)}
    s_nop 7
ATT_LOOP:
    """)
    def e(s, j): return f"v_exp_f32 v{s+j}, v{s+j}"
    def c(s, j): return f"v_cvt_pk_bf16_f32 v{P+j}, v{s+2*j}, v{s+2*j+1}"
    for j in range(8):
        cur, nxt = S[j % 2], S[(j + 1) % 2]
        a("s_waitcnt lgkmcnt(2)")
        a(qk1(nxt)); a(rdk1(j + 2))
        for q in range(4): a(e(cur, q))
        a(pv(V2[(j + 1) % 2], P + 4))
        a("s_waitcnt lgkmcnt(1)")
        if j == 2: a(f"ds_write_b32 v{PA}, v{T+2}")
        for q in range(4, 8): a(e(cur, q))
        a(c(cur, 0)); a(c(cur, 1))
        a(qk2(nxt)); a(rdk2(j + 2))
        a(c(cur, 2)); a(c(cur, 3))
        for q in range(8, 12): a(e(cur, q))
        a(pv(V1, P)); a(rdv(j + 1, V2[(j + 1) % 2]))
        for q in range(12, 16): a(e(cur, q))
        for q in range(4, 8): a(c(cur, q))
    a(f"""
    s_add_u32 s26, s26, 1
    s_movk_i32 s27, 0x5000
    s_cmp_eq_u32 s26, 7
    s_cselect_b32 s27, {(0x5000 - 62 * 2560) & 0xffffffff}, s27
    v_add_u32 v{AK1}, 0x5000, v{AK1}
    v_add_u32 v{AK2}, 0x5000, v{AK2}
    v_add_u32 v{AV}, 0x5000, v{AV}
    v_add_u32 v{BK1}, s27, v{BK1}
    v_add_u32 v{BK2}, s27, v{BK2}
    v_add_u32 v{BV}, s27, v{BV}
    v_add_u32 v{T+2}, 1, v{T+2}
    s_bitcmp1_b32 s35, s26
    s_cbranch_scc0 ATT_LOOP
    s_cmp_gt_u32 s26, 2
    s_cbranch_scc1 ATT_EV
    v_add_u32 v{FA}, 8, v{FA}
    s_waitcnt vmcnt(0)
ATT_WAIT:
    ds_read_b32 v{T}, v{FA}
    s_waitcnt lgkmcnt(0)
    v_readfirstlane_b32 s23, v{T}
    s_cmp_ge_u32 s23, 4
    s_cbranch_scc1 ATT_LOOP
    s_sleep 1
    s_branch ATT_WAIT
ATT_EV:
    s_setprio 2
    s_cmp_eq_u32 s26, s32
    s_cbranch_scc1 ATT_LOOP
    s_setprio 1
    s_cmp_lt_u32 s26, 8
    s_cbranch_scc1 ATT_LOOP
    s_setprio 3
    {pv(V2[1], P+4)}
    {st(8)}
    s_mov_b32 s27, 0x3e800000
    s_mov_b32 s23, 0x71800000
    s_nop 9
    """)
    a(f"v_rcp_f32 v{T+2}, v{O+12}\nv_add_f32 v{T}, |v{O}|, |v{O+1}|\nv_add_f32 v{T+1}, |v{O+2}|, |v{O+3}|")
    for j in range(4, 12, 2): a(f"v_add_f32 v{T}, |v{O+j}|, v{T}\nv_add_f32 v{T+1}, |v{O+j+1}|, v{T+1}")
    a(f"""
    v_add_f32 v{T}, v{T}, v{O+12}
    v_cmp_le_f32 s[42:43], s27, v{O+12}
    v_add_f32 v{T}, v{T}, v{T+1}
    v_cmp_gt_f32 vcc, s23, v{T}
    s_and_b64 vcc, vcc, s[42:43]
    s_cmp_eq_u64 vcc, -1
    s_cbranch_scc0 ATT_FALLBACK
ATT_FINISH:
    """)
    for j in range(8): a(f"v_mul_f32 v{O+j}, v{O+j}, v{T+2}")
    for j in range(4): a(f"v_cvt_pk_bf16_f32 v{P+j}, v{O+2*j}, v{O+2*j+1}")
    for j in range(4): a(f"v_min_u32 v{P+j}, -2, v{P+j}")
    a(f"buffer_store_dwordx4 {vr(P,4)}, v{OA1}, s[28:31], s6 offen sc1")
    for j in range(8, 12): a(f"v_mul_f32 v{O+j}, v{O+j}, v{T+2}")
    for j in range(4, 6): a(f"v_cvt_pk_bf16_f32 v{P+j}, v{O+2*j}, v{O+2*j+1}")
    for j in range(4, 6): a(f"v_min_u32 v{P+j}, -2, v{P+j}")
    a(f"""
    s_nop 1
    v_permlane16_swap_b32 v{P+4}, v{P+6}
    v_permlane16_swap_b32 v{P+5}, v{P+7}
    s_mov_b64 exec, 0xffff
    buffer_store_dwordx4 {vr(P+4,4)}, v{OA2}, s[28:31], s7 offen sc1
    {st(9)}
    s_cmp_ge_u32 s13, 4
    s_cbranch_scc1 {"L_DONE" if STAMP else "L_END"}
    s_mov_b64 exec, -1
    s_mov_b32 s41, s13
    s_mov_b32 s47, 1
    s_branch P3_GO
    """)
    def gk(): return f"buffer_load_dwordx4 {vr(K1,4)}, v{AK1}, s[28:31], s23 offen sc1\nbuffer_load_dword v{K2}, v{AK2}, s[28:31], s23 offen offset:1024 sc1"
    a(f"""
ATT_FALLBACK:
    s_waitcnt lgkmcnt(0)
    v_mov_b32 v{Q2+1}, 0
    v_mov_b32 v{T}, 0xff800000
    v_subrev_u32 v{AK1}, {HS}, v{AK1}
    v_subrev_u32 v{AK2}, {HS}, v{AK2}
    v_subrev_u32 v{AV}, {HS}, v{AV}
    s_add_u32 s23, s14, {KV_OFF}
    s_mov_b32 s26, 0
ATT_FB1:
    {gk()}
    s_add_u32 s23, s23, 2560
    s_waitcnt vmcnt(0)
    {qk1(S[0])}
    {qk2(S[0])}
    s_nop 15
    """)
    maxtree(S[0], T, False)
    a("s_add_u32 s26, s26, 1\ns_cmp_lt_u32 s26, 64\ns_cbranch_scc1 ATT_FB1")
    xhalf(T)
    a(f"s_add_u32 s23, s14, {KV_OFF}\ns_mov_b32 s26, 0")
    for r in range(16): a(f"v_mov_b32 v{O+r}, 0")
    a(f"""
ATT_FB2:
    {gk()}
    s_mov_b64 exec, s[24:25]
    buffer_load_dwordx4 {vr(V1,4)}, v{AV}, s[28:31], s23 offen offset:1280 sc1
    buffer_load_dwordx4 {vr(V2[0],4)}, v{AV}, s[28:31], s23 offen offset:1920 sc1
    s_mov_b64 exec, -1
    s_add_u32 s23, s23, 2560
    s_waitcnt vmcnt(0)
    {qk1(S[0])}
    {qk2(S[0])}
    s_nop 15
    """)
    for q in range(16): a(f"v_sub_f32 v{S[0]+q}, v{S[0]+q}, v{T}")
    for q in range(16): a(e(S[0], q))
    a("s_nop 0")
    for q in range(8): a(c(S[0], q))
    a(f"""
    s_nop 1
    {pv(V1, P)}
    {pv(V2[0], P+4)}
    s_add_u32 s26, s26, 1
    s_cmp_lt_u32 s26, 64
    s_cbranch_scc1 ATT_FB2
    s_nop 15
    v_rcp_f32 v{T+2}, v{O+12}
    s_nop 0
    s_branch ATT_FINISH
    """)

def lwait(a, vaddr, vdat, mask, target, slp=8):
    u = a.uid()
    a(f"""
    s_mov_b64 exec, {mask}
    s_branch L_LWE{u}
L_LW{u}:
    s_sleep {slp}
L_LWE{u}:
    ds_read_b32 v{vdat}, v{vaddr}
    s_waitcnt lgkmcnt(0)
    v_cmp_gt_u32 vcc, {target}, v{vdat}
    s_cbranch_vccnz L_LW{u}
    s_mov_b64 exec, -1
    """)
def ladd(a, vaddr, vone, off):
    a(f"s_mov_b64 exec, 1\nds_add_u32 v{vaddr}, v{vone} offset:{off}\ns_mov_b64 exec, -1")

def helpers(a):
    HPA, HONE = 165, 166
    a(f"""
HELPER:
    {st(2)}
    {srd(28, WS_P, WS_USED)}
    s_lshr_b32 s19, s18, 3
    s_lshl_b32 s23, s17, 2
    s_add_u32 s19, s19, s23
    s_and_b32 s62, s18, 7
    s_mul_i32 s21, s19, {HG}
    v_lshlrev_b32 v1, 4, v0
    {st(3)}
    s_lshr_b32 s23, s19, 3
    s_lshl_b32 s23, s23, 13
    s_add_u32 s23, s23, {FLG_OFF}
    v_lshlrev_b32 v2, 7, v0
    v_add_u32 v2, s23, v2
    s_add_u32 s24, s21, {KV_OFF}
    s_lshl_b32 s40, 0x10000, s16
    s_lshl_b32 s41, 1, s16
    s_mul_i32 s22, s16, 10240
    s_add_u32 s26, s24, s22
    s_cmp_lg_u32 s16, 3
    s_cbranch_scc1 H_JA
    s_lshl_b32 s25, s62, 1
    s_lshl_b32 s40, 3, s25
    s_mov_b32 s41, 0
    s_mov_b32 s22, {QLDS}
    s_mul_i32 s26, s19, {HQ}
    s_mul_i32 s25, s62, 10240
    s_add_u32 s26, s26, s25
    s_add_u32 s26, s26, {Q_OFF}
H_JA:
    """)
    def job():
        r = f"s_add_u32 s25, s22, 5120\ns_cmp_ge_u32 s25, {LFB}\ns_cselect_b32 s25, 0, s25\n"
        for n in range(10):
            if n in (0, 3): r += f"s_add_u32 m0, s22, {1024*n}\ns_add_u32 s27, s26, {1024*n}\n"; o = 0
            if n in (5, 8): r += f"s_add_u32 m0, s25, {1024*(n-5)}\ns_add_u32 s27, s26, {1024*n}\n"; o = 0
            r += f"buffer_load_dwordx4 v1, s[28:31], s27 offen offset:{o} sc1 lds\n"; o += 1024
        return r
    poll4(a, 2, 4, "s[40:41]")
    a(st(11)); a(job())
    a(f"""
    v_lshlrev_b32 v{HPA}, 2, v0
    v_add_u32 v{HPA}, {LFB}, v{HPA}
    v_mov_b32 v{HONE}, 1
    s_mov_b32 s40, 0xffff0000
    s_mov_b32 s41, 0xffff
    s_add_u32 s22, s16, 3
    s_cmp_eq_u32 s16, 3
    s_cselect_b32 s22, 7, s22
    s_mul_i32 s22, s22, 10240
    s_add_u32 s26, s24, s22
    s_waitcnt vmcnt(0)
    {st(12)}
    s_barrier
    """)
    poll4(a, 2, 4, "s[40:41]")
    a(job())
    a(f"""
    s_add_u32 s22, s16, 6
    s_cmp_eq_u32 s16, 1
    s_cselect_b32 s22, 11, s22
    s_mul_i32 s22, s22, 10240
    s_add_u32 s26, s24, s22
    s_waitcnt vmcnt(0)
    """)
    ladd(a, HPA, HONE, 64)
    lwait(a, HPA, 4, 0xff, 1)
    a(f"{st(13)}\nH_JC:"); a(job())
    a(f"""
    s_add_u32 s22, s22, 40960
    s_add_u32 s26, s26, 40960
    s_cmp_lt_u32 s22, {HS}
    s_cbranch_scc1 H_JC
    s_waitcnt vmcnt(0)
    {st(4)}
    """)
    ladd(a, HPA, HONE, 72)
    a(f"""
    v_mov_b32 v167, v0
    s_cmp_lt_u32 s16, 3
    s_cbranch_scc1 H_FNET
    """)
    a(f"""
    {srd(32, X_P, 2048*1280)}
    {srd(36, GATE_P, 1280)}
    v_lshrrev_b32 v2, 3, v0
    v_and_b32 v3, 7, v0
    v_lshlrev_b32 v3, 4, v3
    s_movk_i32 s22, 1280
    v_mad_u32_u24 v4, v2, s22, v3
    s_mul_i32 s23, s2, {8*1280}
    """)
    for j in range(10):
        a(f"buffer_load_dwordx4 {vr(24+8*j,4)}, v4, s[32:35], s23 offen offset:{128*j}")
        a(f"buffer_load_dwordx4 {vr(28+8*j,4)}, v3, s[36:39], 0 offen offset:{128*j}")
    a("v_mov_b32 v5, 0\nv_mov_b32 v6, 0\ns_waitcnt vmcnt(0)")
    for j in range(10):
        for q in range(4):
            a(f"v_dot2c_f32_bf16 v{5 + (q & 1)}, v{24+8*j+q}, v{28+8*j+q}")
    a(f"""
    s_nop 2
    v_add_f32 v5, v5, v6
    s_nop 1
    v_add_f32_dpp v5, v5, v5 quad_perm:[1,0,3,2] row_mask:0xf bank_mask:0xf
    s_nop 1
    v_add_f32_dpp v5, v5, v5 quad_perm:[2,3,0,1] row_mask:0xf bank_mask:0xf
    s_nop 1
    v_add_f32_dpp v5, v5, v5 row_half_mirror row_mask:0xf bank_mask:0xf
    v_mul_f32 v5, {f32bits(-math.log2(math.e)):#x}, v5
    v_exp_f32 v5, v5
    v_lshlrev_b32 v2, 2, v2
    v_add_f32 v5, 1.0, v5
    v_rcp_f32 v5, v5
    s_lshl_b32 s23, s2, 5
    s_add_u32 s23, s23, {G_OFF}
    buffer_store_dword v5, v2, s[28:31], s23 offen sc1
    s_branch H_MID
    """)
    C, SN, FB = 0, 8, 16
    a(f"""
H_FNET:
    {'s_branch H_MID' if opt('nofnet', 0) == 1 else ''}
    s_lshl_b32 s22, s16, 5
    s_add_u32 s22, s22, s18
    s_cmp_lt_u32 s22, 84
    s_cbranch_scc1 H_FN_A
    s_sub_u32 s24, s22, 84
    s_lshl_b32 s24, s24, 3
    s_add_u32 s24, s24, s17
    s_cmp_ge_u32 s24, 21
    s_cbranch_scc1 H_MID
    s_mov_b32 s23, 32
    s_branch H_FN_B
H_FN_A:
    s_mul_i32 s23, s22, 3121
    s_lshr_b32 s23, s23, 16
    s_mul_i32 s24, s23, 21
    s_sub_u32 s24, s22, s24
    s_lshl_b32 s23, s23, 3
    s_add_u32 s23, s23, s17
H_FN_B:
    v_lshlrev_b32 v2, 7, v0
    s_mov_b32 s27, {FLG_OFF}
H_FN_P:
    """)
    poll4(a, 2, 4, "-1", "s27")
    a(f"s_add_u32 s27, s27, 8192\ns_cmp_lt_u32 s27, {FLG_OFF + 32768}\ns_cbranch_scc1 H_FN_P")
    a(f"""
    s_and_b32 s25, s23, 1
    s_add_u32 s26, s24, 20
    s_cmp_eq_u32 s24, 20
    s_cselect_b32 s26, 20, s26
    s_lshl_b32 s32, s23, 16
    s_add_u32 s32, s32, {TB_OFF}
    s_mul_i32 s27, s25, {FO_DELTA}
    s_add_u32 s27, s27, {FE_OFF}
    s_lshl_b32 s33, s24, 14
    s_add_u32 s33, s33, s27
    s_lshl_b32 s34, s26, 14
    s_add_u32 s34, s34, s27
    s_cmp_eq_u32 s25, 0
    s_cselect_b32 s35, s24, s26
    s_lshl_b32 s35, s35, 6
    s_add_u32 s35, s35, {X512_OFF}
    v_and_b32 v162, 48, v0
    v_mov_b32 v163, v1
    buffer_load_dwordx4 v[156:159], v162, s[28:31], s35 offen sc1
    """)
    def fl(j):
        r = FB + 24 * j
        s_ = f"buffer_load_dwordx4 {vr(r,4)}, v163, s[28:31], s33 offen offset:{1024*j} sc1\n"
        s_ += f"buffer_load_dwordx4 {vr(r+4,4)}, v163, s[28:31], s34 offen offset:{1024*j} sc1\n"
        for k in range(4): s_ += f"buffer_load_dwordx4 {vr(r+8+4*k,4)}, v163, s[28:31], s32 offen offset:{1024*k} sc1\n"
        s_ += "s_add_u32 s32, s32, 4096\n"
        if j == 3: s_ += "s_add_u32 s33, s33, 4096\ns_add_u32 s34, s34, 4096\n"
        return s_
    def fm(j):
        r = FB + 24 * j
        s_ = ""
        if opt("nofnet", 0) == 2: return s_
        for sub in range(2):
            s_ += f"v_mfma_f32_16x16x32_bf16 {vr(C+4*sub,4)}, {vr(r,4)}, {vr(r+8+8*sub,4)}, {vr(C+4*sub,4)}\n"
            s_ += f"v_mfma_f32_16x16x32_bf16 {vr(SN+4*sub,4)}, {vr(r+4,4)}, {vr(r+12+8*sub,4)}, {vr(SN+4*sub,4)}\n"
        return s_
    for j in range(4): a(fl(j))
    a(f"""
    v_lshlrev_b32 v160, 31, v167
    s_cmp_eq_u32 s25, 0
    s_cselect_b32 s36, 1.0, 0
    s_cselect_b32 s37, 0, 1.0
    v_or_b32 v161, s37, v160
    v_or_b32 v160, s36, v160
    s_waitcnt vmcnt(24)
    """)
    for r in range(8): a(f"v_mul_f32 v{C+r}, v160, v{156 + r % 4}\nv_mul_f32 v{SN+r}, v161, v{156 + r % 4}")
    a("s_mov_b32 s38, 0\nH_FN_LOOP:")
    for j in range(4):
        a("s_waitcnt vmcnt(18)"); a(fm(j)); a(fl(j))
    a("s_add_u32 s38, s38, 1\ns_cmp_lt_u32 s38, 3\ns_cbranch_scc1 H_FN_LOOP")
    for j in range(4):
        a(f"s_waitcnt vmcnt({18-6*j})"); a(fm(j))
    a(f"""
    s_cmp_eq_u32 s26, 20
    s_cselect_b32 s44, 0xffff, 0
    s_mov_b32 s45, 0
    v_lshrrev_b32 v32, 4, v167
    v_mul_u32_u24 v32, {2*ZP}, v32
    v_and_b32 v33, 15, v167
    v_lshl_add_u32 v32, v33, 4, v32
    s_mul_i32 s26, s24, {8*ZP}
    s_mul_i32 s27, s25, {ZP}
    s_add_u32 s26, s26, s27
    s_lshr_b32 s27, s23, 1
    s_lshl_b32 s27, s27, 9
    s_add_u32 s26, s26, s27
    s_add_u32 s26, s26, {Y_OFF}
    v_cndmask_b32 v{SN}, v{SN}, 0, s[44:45]
    v_cndmask_b32 v{SN+4}, v{SN+4}, 0, s[44:45]
    """)
    for r in range(8):
        a(f"v_add_f32 v{16+r}, v{C+r}, v{SN+r}\nv_sub_f32 v{C+r}, v{C+r}, v{SN+r}")
    for r in range(8): a(f"v_cvt_pk_bf16_f32 v{16+r}, v{16+r}, v{C+r}")
    a("buffer_store_dwordx4 v[16:19], v32, s[28:31], s26 offen sc1\nbuffer_store_dwordx4 v[20:23], v32, s[28:31], s26 offen offset:256 sc1")
    WA = 100; ZL = 40; Y = 64; G = 148; VY = 150; VG = 154; VZ = 155; T = 156; SH = 151
    a(f"""
H_MID:
    v_mov_b32 v0, v167
    s_lshl_b32 s19, s17, 2
    s_and_b32 s20, s18, 3
    s_add_u32 s19, s19, s20
    s_lshr_b32 s20, s18, 2
    {srd(32, WO_P, 640*1280)}
    {srd(36, OUT_P, 2621440)}
    s_mul_i32 s26, s20, 160
    s_mul_i32 s27, s16, {160*1280}
    s_add_u32 s27, s27, s26
    s_movk_i32 s23, {1280 - 160}
    """)
    for i in range(5):
        a(f"""
        v_add_u32 v{T}, {64*i}, v0
        v_mul_u32_u24 v{T+1}, 6554, v{T}
        v_lshrrev_b32 v{T+1}, 16, v{T+1}
        v_lshlrev_b32 v{T}, 4, v{T}
        v_mad_u32_u24 v{WA+i}, v{T+1}, s23, v{T}
        """)
    a(f"""
    s_lshl_b32 s21, s17, 3
    s_and_b32 s22, s18, 3
    s_add_u32 s21, s21, s22
    s_lshr_b32 s22, s16, 1
    s_lshl_b32 s22, s22, 2
    s_add_u32 s21, s21, s22
    s_lshl_b32 s21, s21, 1
    s_and_b32 s22, s16, 1
    s_add_u32 s21, s21, s22
    s_lshr_b32 s22, s21, 2
    s_lshl_b32 s22, s22, 1
    s_and_b32 s24, s21, 1
    s_add_u32 s22, s22, s24
    s_lshl_b32 s22, s22, 3
    v_and_b32 v{T}, 7, v0
    v_add_u32 v{T}, s22, v{T}
    s_bitcmp1_b32 s21, 1
    s_cselect_b32 s22, 0x400, 0
    s_cselect_b32 s24, -1, 1
    v_mul_lo_u32 v{T+1}, v{T}, s24
    s_sub_u32 s24, 0x800, s22
    v_sub_u32 v{T+2}, s24, v{T+1}
    v_add_u32 v{T+1}, s22, v{T+1}
    v_and_b32 v{T+3}, 8, v0
    v_cmp_ne_u32 vcc, 0, v{T+3}
    v_cmp_eq_u32 s[42:43], 0, v{T}
    v_lshlrev_b32 v{T+3}, 6, v{T+3}
    v_add_u32 v{T+3}, s22, v{T+3}
    v_cndmask_b32 v{T}, v{T+1}, v{T+2}, vcc
    v_lshrrev_b32 v{T+1}, 4, v0
    v_cndmask_b32 v{T}, v{T}, v{T+3}, s[42:43]
    v_mul_u32_u24 v{VY}, 1280, v{T}
    v_mul_u32_u24 v{T+2}, 40, v{T+1}
    v_add3_u32 v{VY}, v{VY}, v{T+2}, s26
    v_lshlrev_b32 v{VG}, 2, v{T}
    v_sub_u32 v{T+3}, 0x800, v{T}
    v_cmp_lt_u32 vcc, 0x400, v{T}
    v_min_u32 v{T}, v{T}, v{T+3}
    v_and_b32 v{T+3}, 1, v{T}
    v_mul_u32_u24 v{VZ}, {ZP}, v{T+3}
    v_lshrrev_b32 v{T+3}, 1, v{T}
    v_lshl_add_u32 v{VZ}, v{T+3}, 4, v{VZ}
    v_cndmask_b32 v{SH}, 16, 0, vcc
    s_cmp_ge_u32 s20, 4
    s_cselect_b32 s24, 16, 0
    s_cselect_b32 s40, -1, 1
    s_cselect_b32 s41, 155, 0
    v_xor_b32 v{SH}, s24, v{SH}
    s_mul_i32 s24, s20, 20
    v_mul_u32_u24 v{T+3}, 5, v{T+1}
    v_add_u32 v{T+3}, s24, v{T+3}
    v_mul_lo_u32 v{T+3}, v{T+3}, s40
    v_add_u32 v{T+3}, s41, v{T+3}
    v_mul_u32_u24 v{T+3}, {2*ZP}, v{T+3}
    v_add_u32 v{VZ}, v{VZ}, v{T+3}
    s_add_u32 s25, s16, 1
    s_and_b32 s25, s25, 3
    s_mul_i32 s22, s25, 25600
    s_add_u32 s22, s22, {WOL}
    s_add_u32 s25, s25, 3
    s_lshl_b32 s23, s2, 5
    s_add_u32 s23, s23, s16
    s_lshl_b32 s23, s23, 2
    s_add_u32 s23, s23, {FLG_OFF + 16}
    v_mov_b32 v{T}, s23
    s_waitcnt vmcnt(0)
    {st(5)}
    """)
    lwait(a, HPA, T + 1, 0xff, 2)
    a(f"s_mov_b64 exec, 1\nbuffer_store_dword v{HONE}, v{T}, s[28:31], 0 offen sc1\ns_mov_b64 exec, -1")
    lwait(a, HPA, T + 1, 0xff, "s25")
    a(f"{st(6)}\ns_mov_b32 s25, 0\nH_WO:")
    for i in range(5):
        a(f"s_add_u32 m0, s22, {1024*i}\ns_nop 0\nbuffer_load_dwordx4 v{WA+i}, s[32:35], s27 offen lds")
    a(f"""
    s_add_u32 s22, s22, 5120
    s_add_u32 s27, s27, {32*1280}
    s_add_u32 s25, s25, 1
    s_cmp_lt_u32 s25, 5
    s_cbranch_scc1 H_WO
    s_cmp_lg_u32 s16, 3
    s_cbranch_scc1 H_YW
    v_lshlrev_b32 v2, 7, v0
    """)
    lwait(a, HPA, T + 1, 0xff, opt("ypr", 5), 16)
    a(f"s_mov_b32 s27, {FLG_OFF + 16}\nH_YP:")
    poll4(a, 2, 4, "-1", "s27", slp=32)
    a(f"s_add_u32 s27, s27, 8192\ns_cmp_lt_u32 s27, {FLG_OFF + 32768}\ns_cbranch_scc1 H_YP")
    ladd(a, HPA, HONE, 40)
    a(f"H_YW:\nv_add_u32 v{T}, 40, v{HPA}")
    lwait(a, T, T + 1, 1, 1, 16)
    a("s_waitcnt vmcnt(0)")
    a(f"v_mov_b32 v{T}, 2")
    ladd(a, HPA, T, 32)
    a(f"{st(7)}\ns_mov_b32 s26, {Y_OFF}\ns_mov_b32 s27, {G_OFF}\nbuffer_load_dword v{G}, v{VG}, s[28:31], s27 offen sc1")
    for j in range(6):
        a(f"buffer_load_dwordx4 {vr(ZL+4*j,4)}, v{VZ}, s[28:31], s26 offen sc1\ns_add_u32 s26, s26, {2*ZP}")
    BF, OFR, ACC, YG = 0, 100, 120, 140
    VY2, G2 = 162, 167
    a(f"""
    v_mov_b32 v7, v{HPA}
    {p3_addr(0)}
    v_mov_b32 v{VY2}, v{VY}
    v_mov_b32 v6, v{SH}
    s_mul_i32 s22, s21, 20480
    s_add_u32 s22, s22, {OF_OFF}
    s_waitcnt vmcnt(0)
    v_mov_b32 v{G2}, v{G}
    s_cmp_ge_u32 s20, 4
    s_cbranch_scc1 H_DESC
    """)
    for k in range(20): a(f"v_lshlrev_b32 v{YG+k}, v6, v{ZL+k}")
    a("s_branch H_UNP\nH_DESC:")
    for k in range(20): a(f"v_lshlrev_b32 v{YG+k}, v6, v{ZL+20-k}")
    a("H_UNP:")
    for k in range(20): a(f"v_and_b32 v{YG+k}, 0xffff0000, v{YG+k}")
    for k in range(20): a(f"v_mul_f32 v{YG+k}, v{YG+k}, v{G2}")
    a(f"v_sub_f32 v{G2}, 1.0, v{G2}")
    lwait(a, 7, 8, 0xf, 8)
    a(f"""
    {st(8)}
    s_mov_b32 s41, s16
    s_mov_b32 s47, 0
P3_GO:
    s_setprio 0
    s_lshl_b32 s22, s17, 3
    s_and_b32 s23, s18, 3
    s_add_u32 s22, s22, s23
    s_lshl_b32 s22, s22, 1
    s_add_u32 s22, s22, s47
    s_mul_i32 s22, s22, 20480
    s_add_u32 s22, s22, {OF_OFF}
    s_lshl_b32 s44, s41, 12
    s_add_u32 s44, s44, s22
    s_lshl_b32 s45, s41, 10
    s_add_u32 s45, s45, s22
    s_add_u32 s45, s45, 16384
    s_lshl_b32 s46, s47, 2
    s_add_u32 s40, s46, {LFB + 80}
    s_add_u32 s46, s46, s41
    s_mul_i32 s46, s46, 5120
    s_add_u32 s46, s46, {WOL}
    s_mov_b32 s26, 0
    s_mov_b32 s42, 0
    v_mov_b32 v{CM}, {LFB + 32}
    """)
    lwait(a, CM, CT, 1, 8)
    a("P3_TRY:")
    for k in range(4):
        a(f"buffer_load_dwordx4 {vr(OFR+4*k,4)}, v{VA}, s[28:31], s44 offen offset:{1024*k} sc1")
    a(f"buffer_load_dwordx2 {vr(OFR+16,2)}, v{VT}, s[28:31], s45 offen sc1\nbuffer_load_dwordx2 {vr(OFR+18,2)}, v{VT}, s[28:31], s45 offen offset:128 sc1")
    a(f"""
    s_cmp_lg_u32 s26, 0
    s_cbranch_scc1 P3_CHK
    s_add_u32 s23, s41, 1
    s_and_b32 s23, s23, 3
    s_mul_i32 s23, s23, 25600
    s_add_u32 s23, s23, {WOL}
    v_add_u32 v{CM}, s23, v{BMM}
    v_add_u32 v{CT}, s23, v{BMT}
    """)
    for n in range(25):
        k, t = divmod(n, 5); d = BF + 4 * n
        bb, o, dj = (CM, k * 6400 + t * 8, 1280) if k < 4 else (CT, t * 8, 3200)
        a(f"ds_read_b64_tr_b16 {vr(d,2)}, v{bb} offset:{o}\nds_read_b64_tr_b16 {vr(d+2,2)}, v{bb} offset:{o+dj}")
    a(f"v_mov_b32 v{BMM}, {LFB + 36}\nv_mov_b32 v{BMT}, 1\ns_waitcnt lgkmcnt(0)")
    ladd(a, BMM, BMT, 0)
    b = OFR
    a(f"P3_CHK:\ns_add_u32 s26, s26, 1\ns_waitcnt vmcnt(4)\nv_max3_u32 v{CM}, v{b}, v{b+1}, v{b+2}\nv_max3_u32 v{CT}, v{b+3}, v{b+4}, v{b+5}\nv_max3_u32 v{CM}, v{b+6}, v{b+7}, v{CM}\ns_waitcnt vmcnt(2)")
    a(f"v_max3_u32 v{CT}, v{b+8}, v{b+9}, v{CT}\nv_max3_u32 v{CM}, v{b+10}, v{b+11}, v{CM}\nv_max3_u32 v{CT}, v{b+12}, v{b+13}, v{CT}\nv_max3_u32 v{CM}, v{b+14}, v{b+15}, v{CM}\ns_waitcnt vmcnt(0)")
    a(f"""
    v_max3_u32 v{CT}, v{b+16}, v{b+17}, v{CT}
    v_max3_u32 v{CM}, v{b+18}, v{b+19}, v{CM}
    s_cmp_lt_u32 s26, 0x40000
    v_max_u32 v{CM}, v{CM}, v{CT}
    s_cbranch_scc0 P3_OK
    v_cmp_eq_u32 vcc, -1, v{CM}
    s_cbranch_vccz P3_OK
    s_sleep {opt("p3s", 4)}
    s_branch P3_TRY
P3_OK:
    {st(11)}
    """)
    for n in range(25):
        k, t = divmod(n, 5)
        a(f"v_mfma_f32_16x16x32_bf16 {vr(ACC+4*t,4)}, {vr(BF+4*n,4)}, {vr(OFR+4*k,4)}, {vr(ACC+4*t,4) if k else 0}")
    a("s_cmp_lg_u32 s42, 0\ns_cbranch_scc1 P3_WR")
    lwait(a, BMM, CT, 1, 8, 2)
    a(f"{st(12)}\nP3_WR:\nv_add_u32 v{CM}, s46, v{VA}\nv_mov_b32 v{CT}, s40\ns_nop 1")
    for j in range(5): a(f"ds_write_b128 v{CM}, {vr(ACC+4*j,4)} offset:{1024*j}")
    a("s_waitcnt lgkmcnt(0)")
    ladd(a, CT, BMT, 0)
    a(f"""
    s_add_u32 s44, s44, {8*20480}
    s_add_u32 s45, s45, {8*20480}
    s_add_u32 s46, s46, {8*5120}
    s_add_u32 s40, s40, 8
    s_add_u32 s42, s42, 1
    s_cmp_lt_u32 s42, 2
    s_cbranch_scc1 P3_TRY
    {st(10)}
    s_cmp_ge_u32 s16, 4
    s_cbranch_scc1 {"L_DONE" if STAMP else "L_END"}
    s_setprio 3
    s_lshl_b32 s23, s16, 2
    s_add_u32 s23, s23, {LFB + 80}
    v_mov_b32 v{CT}, s23
    s_mul_i32 s23, s16, 20480
    s_add_u32 s23, s23, {WOL}
    v_add_u32 v{CM}, s23, v{VA}
    """)
    lwait(a, CT, BMM, 1, 4, 1)
    a(st(9))
    for j in range(5):
        for g in range(4): a(f"ds_read_b128 {vr(16*j+4*g,4)}, v{CM} offset:{5120*g+1024*j}")
    for j in range(5):
        a(f"s_waitcnt lgkmcnt({min(15, 16-4*j)})")
        for r in range(4): a(f"v_add_f32 v{16*j+r}, v{16*j+r}, v{16*j+4+r}\nv_add_f32 v{16*j+8+r}, v{16*j+8+r}, v{16*j+12+r}")
        for r in range(4): a(f"v_add_f32 v{16*j+r}, v{16*j+r}, v{16*j+8+r}")
        for r in range(4): a(f"v_fmac_f32 v{YG+4*j+r}, v{16*j+r}, v{G2}")
        a(f"v_cvt_pk_bf16_f32 v{84+2*j}, v{YG+4*j}, v{YG+4*j+1}\nv_cvt_pk_bf16_f32 v{84+2*j+1}, v{YG+4*j+2}, v{YG+4*j+3}")
        if j == 1: a(f"buffer_store_dwordx4 v[84:87], v{VY2}, s[36:39], 0 offen" + OSC)
        if j == 3: a(f"buffer_store_dwordx4 v[88:91], v{VY2}, s[36:39], 0 offen offset:16" + OSC)
    a(f"buffer_store_dwordx2 v[92:93], v{VY2}, s[36:39], 0 offen offset:32" + OSC)

def main():
    a = A()
    top = open("cdna_kernels/" + NAME + ".s.ref").read().split("; Override launch")[0]
    top += "; @launch grid=(256,1,1) block=(768,1,1) lds=163840\n"
    a('.amdgcn_target "amdgcn-amd-amdhsa--gfx950"\n.text')
    d = gen(a)
    open(sys.argv[1], "w").write(top + a.text() + '.section .rodata,"a"\n.p2align 6\n' + d)
if __name__ == "__main__":
    main()
```

```python
import sys, math, struct

OPT = dict(x.split("=") for x in sys.argv[2:])
def opt(k, d): return int(OPT.get(k, d))
NAME = "gated_mix__spectral_fnet__softmax_full_mha__prompt"
HS = 163840
KV_OFF = 0
HG = HS + opt('pad', 512)
HQ = 81920 + opt('pad', 512)
Q_OFF = 32 * HG
FE_OFF = Q_OFF + 32 * HQ
FO_DELTA = 655360
X512_OFF = FE_OFF + 2 * FO_DELTA
TB_OFF = X512_OFF + 4096
Y_OFF = TB_OFF + 33 * 65536
ZP = 8704
G_OFF = Y_OFF + 85 * 2 * ZP
OF_OFF = G_OFF + 8192
FLG_OFF = OF_OFF + 2621440
WS_USED = FLG_OFF + 320 * 128
XB = 102400
L_Y = 256
QLDS = 61440
RB0, RSL = 11264, 36864
LFB = 158720
WOL = 5120
AK1, AK2, AV, BK1, BK2, BV, OA1, OA2, ONES, PA, FA = range(152, 163)
VA, VT, BMM, BMT, CM, CT = 163, 164, 165, 166, 160, 161
PXB = 107520
def p3_addr(l):
    return f"""v_lshlrev_b32 v{VA}, 4, v{l}
    v_and_b32 v2, 7, v{l}
    v_bfe_u32 v4, v{l}, 3, 1
    v_lshrrev_b32 v3, 4, v{l}
    v_lshlrev_b32 v{VT}, 8, v3
    v_lshl_add_u32 v{VT}, v2, 4, v{VT}
    v_lshl_add_u32 v{VT}, v4, 3, v{VT}
    v_bfe_u32 v2, v{l}, 2, 2
    v_and_b32 v5, 3, v{l}
    v_mul_u32_u24 v5, 40, v5
    v_mul_u32_u24 v4, 40, v3
    v_add3_u32 v4, v4, v2, 16
    v_mul_u32_u24 v4, 160, v4
    v_add_u32 v{BMT}, v4, v5
    v_lshrrev_b32 v4, 1, v3
    v_mul_u32_u24 v4, 20, v4
    v_and_b32 v3, 1, v3
    v_lshl_add_u32 v4, v3, 2, v4
    v_add_u32 v4, v4, v2
    v_mul_u32_u24 v4, 160, v4
    v_add_u32 v{BMM}, v4, v5"""

def f32bits(x): return struct.unpack("<I", struct.pack("<f", x))[0]
QSCALE = f32bits((20 ** -0.5) * math.log2(math.e))
STAMP = opt("stamp", 0)
STAMP_OFF = 1 << 25
NST = 16

class A:
    def __init__(self): self.l = []; self.n = 0
    def __call__(self, s):
        for line in s.split("\n"):
            t = line.strip()
            if not t: continue
            self.l.append(t if t.endswith(":") or t.startswith(".") else "    " + t)
    def uid(self): self.n += 1; return self.n
    def text(self): return "\n".join(self.l) + "\n"

def vr(a, n): return f"v[{a}:{a+n-1}]" if n > 1 else f"v{a}"
def srd(lo, base, size):
    return f"s_mov_b32 s{lo}, s{base}\ns_mov_b32 s{lo+1}, s{base+1}\ns_mov_b32 s{lo+2}, {size}\ns_mov_b32 s{lo+3}, 0x20000"
OSC = " sc1" if opt("outsc1", 0) else ""
P1ST = opt("p1st", 0)
def st(i, p1=False):
    if not STAMP: return ""
    if P1ST and not p1 and 0 < i < 15 and i not in (4, 5): return ""
    if P1ST and not p1 and i in (4, 5): i += 8
    if p1 and not P1ST: return ""
    return f"{'s_memrealtime' if STAMP in (1, 3, 4) else 's_memtime'} s[{64+2*i}:{65+2*i}]"
def fin(): return "s_branch L_DONE" if STAMP else "s_endpgm"

X_P, WD_P, WQKV_P, WO_P, GATE_P, OUT_P, DBG_P, WS_P = 4, 8, 48, 50, 52, 54, 56, 58

def poll(a, vaddr, vdat, mask, target, sreg=60):
    u = a.uid()
    a(f"""
    s_mov_b64 exec, {mask}
    s_mov_b32 s{sreg}, 0
L_POLL{u}:
    buffer_load_dword v{vdat}, v{vaddr}, s[28:31], 0 offen sc1
    s_waitcnt vmcnt(0)
    v_cmp_gt_u32 vcc, {target}, v{vdat}
    s_cbranch_vccz L_POLLD{u}
    {'s_sleep 1' if opt('psleep', 0) else ''}
    s_add_u32 s{sreg}, s{sreg}, 1
    s_cmp_lt_u32 s{sreg}, 0x40000
    s_cbranch_scc1 L_POLL{u}
L_POLLD{u}:
    s_mov_b64 exec, -1
    """)

def poll4(a, vaddr, vdat, mask, soff="0", sreg=60, slp=None):
    u = a.uid()
    a(f"""
    s_mov_b64 exec, {mask}
    s_mov_b32 s{sreg}, 0
    s_branch L_POLLE{u}
L_POLL{u}:
    s_sleep {slp or opt("ps4", 2)}
L_POLLE{u}:
    buffer_load_dwordx4 {vr(vdat,4)}, v{vaddr}, s[28:31], {soff} offen sc1
    s_add_u32 s{sreg}, s{sreg}, 1
    s_waitcnt vmcnt(0)
    v_min3_u32 v{vdat}, v{vdat}, v{vdat+1}, v{vdat+2}
    s_cmp_lt_u32 s{sreg}, 0x40000
    v_min_u32 v{vdat}, v{vdat}, v{vdat+3}
    s_cbranch_scc0 L_POLLD{u}
    v_cmp_eq_u32 vcc, 0, v{vdat}
    s_cbranch_vccnz L_POLL{u}
L_POLLD{u}:
    s_mov_b64 exec, -1
    """)

def gen(a):
    label = NAME + "_kernel"
    a(f".p2align 8\n.globl {label}\n.type {label},@function\n{label}:")
    a(f"""
    s_cmp_ge_u32 s2, 256
    s_cbranch_scc1 L_END
    {st(0) + chr(10) + 's_waitcnt lgkmcnt(0)' if opt("st0first", 0) else ''}
    s_load_dwordx2 s[4:5], s[0:1], 0
    s_load_dwordx8 s[48:55], s[0:1], 48
    s_load_dwordx4 s[8:11], s[0:1], 24
    s_load_dwordx4 s[56:59], s[0:1], 80
    """)
    if STAMP:
        a("\n".join(f"s_mov_b32 s{64+j}, 0" for j in range(2, 2 * NST)) + "\n" + ("" if opt("st0first", 0) else st(0)))
    a(f"""
    v_lshrrev_b32 v1, 6, v0
    v_and_b32 v0, 63, v0
    s_and_b32 s17, s2, 7
    v_readfirstlane_b32 s16, v1
    s_lshr_b32 s18, s2, 3
    s_and_b32 s19, s18, 7
    s_lshr_b32 s22, s18, 3
    s_and_b32 s21, s17, 1
    s_lshl_b32 s23, s19, 1
    s_add_u32 s21, s21, s23
    s_lshr_b32 s20, s17, 1
    s_cmp_ge_u32 s16, 4
    s_cbranch_scc1 P1_NOTLOADER
    """)
    p1_loader(a)
    a(f"""
P1_NOTLOADER:
    s_lshl_b32 s63, s17, 2
    s_add_u32 s63, s63, s22
    s_mul_i32 s14, s63, {HG}
    s_sub_u32 s13, s16, 4
    s_lshl_b32 s23, s19, 3
    s_add_u32 s23, s23, s13
    s_mul_i32 s23, s23, 40960
    s_add_u32 s23, s23, {OF_OFF}
    s_lshl_b32 s6, s63, 9
    s_add_u32 s6, s6, s23
    s_lshl_b32 s7, s63, 7
    s_add_u32 s7, s7, s23
    s_add_u32 s7, s7, 16384
    s_lshl_b32 s15, s20, 2
    s_add_u32 s15, s15, s22
    s_lshl_b32 s15, s15, 4
    s_add_u32 s15, s15, s21
    s_lshl_b32 s15, s15, 5
    s_add_u32 s15, s15, s13
    s_lshl_b32 s15, s15, 2
    s_add_u32 s15, s15, {FLG_OFF}
    v_and_b32 v1, 31, v0
    v_lshrrev_b32 v2, 5, v0
    v_lshlrev_b32 v{AK1}, 4, v0
    v_lshrrev_b32 v3, 4, v1
    v_lshl_add_u32 v3, v3, 1, v2
    v_and_b32 v4, 15, v0
    v_lshl_add_u32 v3, v4, 2, v3
    v_lshlrev_b32 v{AK2}, 2, v3
    v_mul_u32_u24 v{AV}, 384, v2
    v_lshlrev_b32 v3, 6, v2
    v_cmp_gt_u32 vcc, 16, v1
    s_nop 1
    v_cndmask_b32 v{AV}, v3, v{AV}, vcc
    v_lshl_add_u32 v{AV}, v1, 4, v{AV}
    v_add_u32 v{BK1}, 15360, v{AK1}
    v_add_u32 v{BK2}, 15360, v{AK2}
    v_add_u32 v{BV}, 15360, v{AV}
    v_and_b32 v3, 27, v1
    v_cmp_eq_u32 vcc, 24, v3
    v_mov_b32 v3, 0x3f803f80
    v_bfe_u32 v{OA2}, v1, 3, 1
    v_cndmask_b32 v{ONES}, 0, v3, vcc
    v_mul_u32_u24 v{OA2}, 20480, v{OA2}
    v_and_b32 v3, 7, v1
    v_lshl_add_u32 v{OA2}, v3, 4, v{OA2}
    v_lshrrev_b32 v3, 4, v0
    v_lshl_add_u32 v{OA1}, v3, 7, v{OA2}
    s_lshl_b32 s23, s13, 2
    s_add_u32 s23, s23, {LFB}
    v_mov_b32 v{PA}, s23
    v_mov_b32 v{FA}, {LFB + 56}
    {p3_addr(0)}
    s_cmp_ge_u32 s16, 8
    s_cbranch_scc1 P1_EXTRA
    """)
    p1_compute(a)
    p1_extra(a)
    attention(a)
    helpers(a)
    a("L_DONE:")
    if STAMP == 4:
        i_, j_ = opt("ai", 0), opt("aj", 0)
        a(f"""s_waitcnt vmcnt(0)
        {st(NST-1)}
        s_waitcnt lgkmcnt(0)
        s_cmp_lg_u32 s16, 0
        s_cbranch_scc1 L_END
        s_and_b32 s60, s2, {opt("am", 31)}
        s_cmp_lg_u32 s60, {opt("av", 5)}
        s_cbranch_scc1 L_END
        s_sub_u32 s60, s{64+2*j_}, s{64+2*i_}
        s_lshl_b32 s60, s60, 2
        s_min_u32 s60, s60, 100000
        {f's_mov_b32 s60, {opt("fix", 0)}' if opt("fix", 0) else ''}
L_AMP:
        s_memrealtime s[44:45]
        s_waitcnt lgkmcnt(0)
        s_sub_u32 s44, s44, s{64 if opt("fix", 0) else 64+2*(NST-1)}
        s_cmp_lt_u32 s44, s60
        s_cbranch_scc1 L_AMP
        """)
    elif STAMP == 3:
        r = f"s_waitcnt vmcnt(0)\n{st(NST-1)}\ns_mov_b64 exec, 1\n{srd(44, DBG_P, 256)}\ns_waitcnt lgkmcnt(0)\nv_mov_b32 v16, 0\n"
        r += "s_not_b32 s60, s64\nv_mov_b32 v0, s60\nbuffer_atomic_umax v0, v16, s[44:47], 0 offen offset:4 sc1\n"
        r += "s_cmp_eq_u32 s16, 0\ns_cbranch_scc1 L_D0\ns_cmp_eq_u32 s16, 4\ns_cbranch_scc0 L_END\n"
        for n, i in enumerate((2, 3, 4, 5, 7, 8, 9)): r += f"v_mov_b32 v{n+1}, s{64+2*i}\nbuffer_atomic_umax v{n+1}, v16, s[44:47], 0 offen offset:{8+4*n} sc1\n"
        r += "s_endpgm\nL_D0:\n"
        for n, i in enumerate((0, 1, 6, 8, 9, 10, 15)): r += f"v_mov_b32 v{n+1}, s{64+2*i}\nbuffer_atomic_umax v{n+1}, v16, s[44:47], 0 offen offset:{36+4*n} sc1\n"
        a(r)
    elif STAMP:
        r = f"s_waitcnt vmcnt(0)\n{st(NST-1)}\ns_mov_b64 exec, 1\ns_add_u32 s44, s{WS_P}, {STAMP_OFF}\ns_addc_u32 s45, s{WS_P+1}, 0\ns_mov_b32 s46, 262144\ns_mov_b32 s47, 0x20000\n"
        r += "s_lshl_b32 s60, s2, 4\ns_add_u32 s60, s60, s16\ns_lshl_b32 s60, s60, 6\ns_waitcnt lgkmcnt(0)\nv_mov_b32 v16, 0\n"
        for i in range(NST): r += f"v_mov_b32 v{i}, s{64+2*i}\n"
        for i in range(4): r += f"buffer_store_dwordx4 v[{4*i}:{4*i+3}], v16, s[44:47], s60 offen offset:{16*i}\n"
        a(r)
    a("L_END:\ns_endpgm\n.fill 256, 4, 0xbf810000\nL_CODE_END:")
    return f""".amdhsa_kernel {label}
  .amdhsa_next_free_vgpr 168
  .amdhsa_next_free_sgpr {100 if STAMP else 64}
  .amdhsa_accum_offset 168
  .amdhsa_group_segment_fixed_size 0
  .amdhsa_kernarg_size 96
  .amdhsa_user_sgpr_count 2
  .amdhsa_user_sgpr_kernarg_segment_ptr 1
  .amdhsa_system_sgpr_workgroup_id_x 1
.end_amdhsa_kernel
"""

def p1_loader(a):
    a(f"""
    s_setprio 3
    v_lshrrev_b32 v2, 3, v0
    v_and_b32 v3, 7, v0
    v_lshrrev_b32 v4, 4, v0
    v_xor_b32 v3, v3, v4
    v_lshlrev_b32 v3, 4, v3
    v_xor_b32 v4, 64, v3
    s_lshl_b32 s23, s21, 5
    s_lshr_b32 s24, s16, 1
    s_lshl_b32 s24, s24, 4
    s_add_u32 s23, s23, s24
    v_add_u32 v9, s23, v2
    s_bitcmp1_b32 s16, 0
    s_cselect_b32 s23, -1, 1
    s_cselect_b32 s24, 0x400, 0
    s_cselect_b32 s25, -8, 8
    v_mul_lo_u32 v10, v9, s23
    s_sub_u32 s27, 0x800, s24
    v_add_u32 v5, s24, v10
    v_sub_u32 v7, s27, v10
    v_add_u32 v6, s25, v5
    v_subrev_u32 v8, s25, v7
    v_cmp_eq_u32 vcc, 0, v9
    s_add_u32 s24, s24, 0x200
    v_mov_b32 v9, s24
    s_cmp_lg_u32 s22, 2
    v_cndmask_b32 v7, v7, v9, vcc
    s_cbranch_scc1 P1_LD_NV
    v_swap_b32 v6, v7
P1_LD_NV:
    s_lshl_b32 s26, s22, 2
    s_add_u32 s26, s26, s20
    s_and_b32 s27, s20, 1
    s_movk_i32 s25, 3840
    s_cmp_eq_u32 s22, 3
    s_cselect_b32 s25, 1280, s25
    s_cselect_b32 s26, s27, s26
    s_mul_i32 s26, s26, 320
    s_movk_i32 s27, 1280
    v_mad_u32_u24 v10, v5, s27, v3
    v_mad_u32_u24 v11, v6, s27, v4
    v_mad_u32_u24 v12, v7, s27, v3
    v_mad_u32_u24 v13, v8, s27, v4
    s_lshl_b32 s27, s16, 4
    s_mul_i32 s27, s27, s25
    s_add_u32 s26, s26, s27
    s_sub_u32 s27, s25, 320
    """)
    for i in range(5):
        a(f"""
        v_add_u32 v5, {64*i}, v0
        v_mul_u32_u24 v6, 3277, v5
        v_lshrrev_b32 v6, 16, v6
        v_lshrrev_b32 v7, 2, v6
        v_and_b32 v7, 2, v7
        v_xor_b32 v5, v5, v7
        v_lshl_add_u32 v5, v5, 4, s26
        v_mad_u32_u24 v{14+i}, v6, s27, v5
        """)
    sg = opt("stag1", 5)
    if sg == 1:
        a("s_lshl_b32 s36, s19, 3\ns_lshl_b32 s37, s22, 4\ns_add_u32 s36, s36, s37\ns_add_u32 s36, s36, s17\ns_and_b32 s36, s36, 63\ns_mul_i32 s36, s36, 10\ns_lshr_b32 s36, s36, 6")
    elif sg == 2:
        a("s_add_u32 s36, s19, s22\ns_lshl_b32 s36, s36, 4\ns_add_u32 s36, s36, s17\ns_add_u32 s36, s36, s17\ns_and_b32 s36, s36, 63\ns_mul_i32 s36, s36, 10\ns_lshr_b32 s36, s36, 6")
    elif sg == 3:
        a("s_add_u32 s36, s19, s22\ns_lshl_b32 s36, s36, 5\ns_lshl_b32 s37, s17, 2\ns_add_u32 s36, s36, s37\ns_and_b32 s36, s36, 63\ns_mul_i32 s36, s36, 10\ns_lshr_b32 s36, s36, 6")
    elif sg >= 5:
        tsh = {5: 0, 6: 1, 7: 0, 8: 0}[sg]
        a(f"""
        s_lshr_b32 s36, s17, 1
        s_xor_b32 s36, s36, s17
        s_and_b32 s36, s36, 1
        s_lshr_b32 s37, s22, {tsh}
        s_add_u32 s37, s37, s19
        s_lshr_b32 s46, s17, 2
        s_lshl_b32 s46, s46, 1
        s_add_u32 s37, s37, s46
        s_mul_i32 s46, s37, 52
        s_lshr_b32 s46, s46, 8
        s_mul_i32 s46, s46, 5
        s_sub_u32 s37, s37, s46
        s_lshl_b32 s37, s37, 2
        s_mov_b32 s46, 0x42086420
        s_mov_b32 s47, 0x6
        s_lshr_b64 s[46:47], s[46:47], s37
        s_and_b32 s46, s46, 0xfffff
        {'s_or_b32 s47, s46, 0x11111' + chr(10) + 's_lshl_b32 s37, s47, 20' + chr(10) + 's_or_b32 s46, s46, s37' + chr(10) + 's_lshr_b32 s47, s47, 12' if sg == 8 else 's_or_b32 s46, s46, 0x53100000' + chr(10) + 's_mov_b32 s47, 0x97'}
        s_mul_i32 s37, s36, 0x11111111
        s_xor_b32 s46, s46, s37
        s_xor_b32 s47, s47, s37
        """)
        if sg == 7:
            a("s_lshr_b32 s37, s47, 4\ns_and_b32 s37, s37, 15\ns_lshl_b64 s[46:47], s[46:47], 4\ns_or_b32 s46, s46, s37")
        a("s_and_b32 s36, s46, 15")
    else:
        a("s_mov_b32 s36, 0")
    a(f"""
    s_lshl_b32 s38, s16, 12
    s_add_u32 s38, s38, {RB0}
    s_mul_i32 s39, s16, 5120
    s_add_u32 s39, s39, {RB0 + 16384}
    s_mov_b32 s40, 0
    s_mul_i32 s34, s25, 640
    s_lshl_b32 s25, s25, 6
    s_mov_b32 s35, 0x20000
    s_waitcnt lgkmcnt(0)
    {srd(28, X_P, 2048*1280)}
    s_cmp_lt_u32 s20, 2
    s_cselect_b32 s32, s8, s10
    s_cselect_b32 s33, s9, s11
    s_cmp_eq_u32 s22, 3
    s_cselect_b32 s32, s32, s{WQKV_P}
    s_cselect_b32 s33, s33, s{WQKV_P+1}
    {st(1)}
    """)
    if opt("dftdelay", 0):
        a(f"""s_cmp_lg_u32 s22, 3
        s_cbranch_scc1 P1_LD_LOOP
        s_memrealtime s[46:47]
        s_waitcnt lgkmcnt(0)
        s_add_u32 s46, s46, {opt("dftdelay", 0)}
P1_DLY:
        s_memrealtime s[44:45]
        s_waitcnt lgkmcnt(0)
        s_cmp_lt_u32 s44, s46
        s_cbranch_scc1 P1_DLY
        """)
    a(f"""
P1_LD_LOOP:
    s_lshl_b32 s41, s36, 7
    s_mul_i32 s42, s36, s25
    s_add_u32 s43, s40, 2
    s_and_b32 s43, s43, 3
    s_mul_i32 s43, s43, {RSL}
    s_add_u32 s44, s43, s38
    s_add_u32 s45, s43, s39
    """)
    for i in range(4):
        a(f"s_add_u32 m0, s44, {1024*i}\ns_nop 0\nbuffer_load_dwordx4 v{10+i}, s[28:31], s41 offen lds")
    for i in range(5):
        a(f"s_add_u32 m0, s45, {1024*i}\ns_nop 0\nbuffer_load_dwordx4 v{14+i}, s[32:35], s42 offen lds")
    if opt("noload", 0): a("s_cmp_ge_u32 s40, 3\ns_cselect_b32 s30, 0, s30\ns_cselect_b32 s34, 0, s34")
    a(f"""
    {'s_lshr_b64 s[46:47], s[46:47], 4' + chr(10) + 's_and_b32 s36, s46, 15' if sg >= 5 else 's_add_u32 s36, s36, 1' + chr(10) + 's_cmp_eq_u32 s36, 10' + chr(10) + 's_cselect_b32 s36, 0, s36'}
    s_add_u32 s40, s40, 1
    s_cmp_eq_u32 s40, 1
    s_cbranch_scc1 P1_LD_LOOP
    s_waitcnt vmcnt(9)
    s_barrier
    s_cmp_lt_u32 s40, 10
    s_cbranch_scc1 P1_LD_LOOP
    s_waitcnt vmcnt(0)
    s_barrier
    s_branch HELPER
    """)

def p1_compute(a):
    X = 80; W = [96, 116]; XA = 136; WA = 137; CX = 142; CW = 144; PC = 149; L = 150; TT = 96
    def acc(b, T): return 20 * b + 4 * T
    a(f"""
    s_sub_u32 s61, s16, 4
    s_and_b32 s36, s61, 1
    s_lshr_b32 s37, s61, 1
    v_mov_b32 v{L}, v0
    v_and_b32 v1, 15, v0
    v_lshrrev_b32 v2, 4, v0
    v_lshrrev_b32 v3, 1, v1
    v_xor_b32 v3, v3, v2
    v_lshlrev_b32 v3, 4, v3
    v_lshl_add_u32 v3, v1, 7, v3
    s_lshl_b32 s23, s36, 13
    s_add_u32 s23, s23, {RB0}
    v_add_u32 v{XA}, s23, v3
    v_bfe_u32 v3, v0, 2, 2
    v_lshl_add_u32 v3, v2, 3, v3
    v_mul_u32_u24 v3, 320, v3
    v_add_u32 v3, {RB0 + 16384}, v3
    v_and_b32 v4, 16, v0
    v_lshlrev_b32 v4, 1, v4
    v_and_b32 v5, 3, v0
    s_mul_i32 s23, s37, 160
    v_lshl_add_u32 v6, v5, 3, s23
    """)
    for T in range(4):
        a(f"v_xor_b32 v7, v6, v4\nv_add_u32 v{WA+T}, v7, v3\nv_add_u32 v6, 40, v6")
    a(f"""
    v_mul_u32_u24 v6, 40, v5
    v_add3_u32 v6, v6, s23, 32
    v_xor_b32 v7, v6, v4
    v_add_u32 v{WA+4}, v7, v3
    v_mov_b32 v{PC}, 0xbf803f80
    s_lshl_b32 s26, s22, 2
    s_add_u32 s26, s26, s20
    s_lshl_b32 s26, s26, 1
    s_add_u32 s26, s26, s37
    s_cmp_eq_u32 s26, 28
    s_cselect_b32 s24, 0x10001, 0
    s_mov_b32 s25, s24
    s_cmp_eq_u32 s22, 3
    s_cselect_b32 s43, 10, 8
    s_mov_b32 s40, 0
    s_mov_b32 s42, {2 * RSL}
    """)
    for r in range(96): a(f"v_mov_b32 v{r}, 0")
    for r in range(20): a(f"v_mov_b32 v{W[1]+r}, 0")
    a(f"v_add_u32 v{CX}, s42, v{XA}")
    for T in range(5): a(f"v_add_u32 v{CW+T}, s42, v{WA+T}")
    a(f"s_waitcnt lgkmcnt(0)\n{srd(28, WS_P, WS_USED)}")
    a("s_cmp_ge_u32 s22, 2\ns_cbranch_scc1 P1_PRE_V")
    def mf(b, T, x, w, qk):
        d = vr(acc(b, T), 4)
        return f"v_mfma_f32_16x16x32_bf16 {d}, {vr(w,4)}, {vr(x,4)}, {d}" if qk else f"v_mfma_f32_16x16x32_bf16 {d}, {vr(x,4)}, {vr(w,4)}, {d}"
    def rdw(d, T, step): return [f"ds_read_b64_tr_b16 {vr(d+2*j,2)}, v{CW+T} offset:{(step // 2) * RSL + (step % 2) * 10240 + 1280 * j}" for j in range(2)]
    def rdx(d, b, step): return f"ds_read_b128 {vr(d,4)}, v{CX + step % 2} offset:{(step // 2) * RSL + 2048 * b}"
    TO = (1, 2, 3, 4, 0)
    def group(step, qk, reads=True):
        cur = W[1 - step]; nxt = W[step]
        rq = []
        for T in TO: rq += rdw(nxt + 4 * T, T, step)
        fill = []
        if step == 1:
            fill = ["s_add_u32 s40, s40, 1", "s_add_u32 s41, s40, 2", "s_and_b32 s41, s41, 3", f"s_mul_i32 s42, s41, {RSL}", f"v_add_u32 v{CX}, s42, v{XA}"] + [f"v_add_u32 v{CW+T}, s42, v{WA+T}" for T in range(5)]
        issued = 0
        for b in range(4):
            if reads:
                allow = [2, 15, issued + 1, issued][b]
                if b != 1: a(f"s_waitcnt lgkmcnt({min(15, allow)})")
            elif b == 0: a("s_waitcnt lgkmcnt(0)")
            for n, T in enumerate(TO):
                a(mf(b, T, X + 4 * b, cur + 4 * T, qk))
                if b == 0 and n < 2 and not qk:
                    for j in range(2): a(f"v_cndmask_b32 v{cur+2*n+j}, v{cur+2*n+j}, v{PC}, s[24:25]")
                if not reads: continue
                if step == 0 and b == 0:
                    if n == 0: a(f"v_xor_b32 v{CX+1}, 64, v{CX}")
                    if n == 1: a("s_barrier")
                    if n < 2: continue
                if n == 4: a(rdx(X + 4 * b, b, step)); issued += 1
                elif rq: a(rq.pop(0)); issued += 1
                elif fill:
                    a(fill.pop(0))
                    if fill: a(fill.pop(0))
        assert not reads or (not rq and not fill), (rq, fill)

    def tail(qk, epi):
        seq = [(b, T, ("x0", b), ("w0", T)) for b in range(4) for T in TO]
        marks = {}
        for ph, Ts in enumerate(((0, 1), (2, 3), (4,))):
            for step in range(4):
                for b in range(4):
                    for T in Ts: seq.append((b, T, ("x", ph, step, b), ("w", step, T)))
            marks[len(seq) - 1] = ph
        last = {}
        for n, (_, _, x, w) in enumerate(seq): last[x] = n; last[w] = n
        loc = {("x0", b): X + 4 * b for b in range(4)}; loc.update({("w0", T): W[1] + 4 * T for T in range(5)})
        free = [W[0] + 4 * k for k in range(5)]
        order = []
        for _, _, x, w in seq:
            for f in (w, x):
                if f not in loc and f not in order: order.append(f)
        done_at = {}; nrd = 0; waited = 0; pend = []; fill = []; hold = 0
        a(f"v_xor_b32 v{CX+1}, 64, v{CX}\ns_waitcnt lgkmcnt(0)\ns_barrier")
        bar2 = [True]
        def take():
            f = order.pop(0); loc[f] = free.pop(0)
            if bar2 and (f[1] if f[0] == "w" else f[2]) >= 2: a("s_barrier"); bar2.pop()
            p_ = rdw(loc[f], f[2], f[1]) if f[0] == "w" else [rdx(loc[f], f[3], f[2])]
            done_at[f] = nrd + len(p_)
            return p_
        for n, (b, T, x, w) in enumerate(seq):
            while any(f not in loc or (f in done_at and done_at[f] > nrd) for f in (x, w)):
                if not pend: pend = take()
                a(pend.pop(0)); nrd += 1
            need = max(done_at.get(x, 0), done_at.get(w, 0))
            if need > waited:
                waited = max(need, nrd - opt("tw", 6)); a(f"s_waitcnt lgkmcnt({nrd - waited})")
            a(mf(b, T, loc[x], loc[w], qk))
            for f in (x, w):
                if last[f] == n: free.append(loc[f])
            if not pend and order and free: pend = take()
            if pend: a(pend.pop(0)); nrd += 1
            if hold: hold -= 1
            else:
                for _ in range(2):
                    if fill: a(fill.pop(0))
            if n in marks and marks[n] < 2:
                for f in fill: a(f)
                fill = epi(marks[n]); hold = 4
        for f in fill: a(f)
        a(st(3)); a("s_nop 4")
        for f in epi(2): a(f)

    EA, EB = 167, 151
    def cv(d, r): return [f"v_cvt_pk_bf16_f32 v{d}, v{r}, v{r+1}", f"v_cvt_pk_bf16_f32 v{d+1}, v{r+2}, v{r+3}"]
    def epi_qk(ph):
        if ph < 0:
            return f"""s_mov_b32 s35, {HG}
            s_movk_i32 s38, 2560
            s_cmp_eq_u32 s22, 0
            s_cselect_b32 s35, {HQ}, s35
            s_cselect_b32 s27, {Q_OFF}, {KV_OFF}
            s_cselect_b32 s38, 1280, s38
            s_lshl_b32 s26, s20, 1
            s_add_u32 s26, s26, s37
            s_lshl_b32 s26, s26, 2
            s_mul_i32 s26, s26, s35
            s_add_u32 s26, s26, s27
            s_lshl_b32 s23, s21, 1
            s_add_u32 s23, s23, s36
            s_lshl_b32 s23, s23, 1
            s_mul_i32 s23, s23, s38
            s_add_u32 s26, s26, s23
            s_add_u32 s27, s26, s38
            v_lshrrev_b32 v{EA}, 4, v{L}
            v_mul_lo_u32 v{EA}, v{EA}, s35
            v_and_b32 v{TT}, 15, v{L}
            v_lshl_add_u32 v{EA}, v{TT}, 4, v{EA}
            v_lshlrev_b32 v{EB}, 4, v{L}
            s_add_u32 s44, s26, s35
            s_add_u32 s45, s27, s35
            s_add_u32 s46, s44, s35
            s_add_u32 s47, s45, s35
            s_add_u32 s32, s46, s35
            s_add_u32 s33, s47, s35""".split("\n")
        sc = lambda r: []
        o = []
        if ph < 2:
            for jj in range(2):
                Ts = (2 * ph, 2 * ph + 1)
                for T in Ts: o += cv(acc(2 * jj, T), acc(2 * jj, T)) + cv(acc(2 * jj, T) + 2, acc(2 * jj + 1, T))
                for T in Ts:
                    r0 = acc(2 * jj, T)
                    o += [f"v_permlane16_swap_b32 v{r0}, v{r0+2}", f"v_permlane16_swap_b32 v{r0+1}, v{r0+3}"]
                for T in Ts:
                    o.append(f"buffer_store_dwordx4 {vr(acc(2 * jj, T),4)}, v{EB}, s[28:31], s{(26, 44, 46, 32)[T] + jj} offen sc1")
        else:
            for jj in range(2):
                r0, r1 = acc(2 * jj, 4), acc(2 * jj + 1, 4)
                o += sc(r0) + sc(r1) + cv(r0, r0) + cv(r0 + 2, r1)
                o.append(f"buffer_store_dwordx4 {vr(r0,4)}, v{EA}, s[28:31], s{26 + jj} offen offset:1024 sc1")
        return o
    def epi_v(ph):
        if ph < 0:
            return f"""s_lshl_b32 s26, s20, 1
            s_add_u32 s26, s26, s37
            s_mul_i32 s26, s26, {4*HG}
            s_lshl_b32 s23, s21, 1
            s_add_u32 s23, s23, s36
            s_mul_i32 s23, s23, 5120
            s_add_u32 s26, s26, s23
            s_add_u32 s26, s26, {KV_OFF + 1280}
            s_add_u32 s44, s26, {HG}
            s_add_u32 s45, s26, {2*HG}
            s_add_u32 s46, s26, {3*HG}
            s_mov_b32 s35, {HG}
            v_lshrrev_b32 v{EA}, 5, v{L}
            v_mul_u32_u24 v{EA}, 640, v{EA}
            v_bfe_u32 v{TT}, v{L}, 4, 1
            v_lshl_add_u32 v{EB}, v{TT}, 6, v{EA}
            v_mul_u32_u24 v{TT}, 384, v{TT}
            v_add_u32 v{EA}, v{EA}, v{TT}
            v_and_b32 v{TT}, 15, v{L}
            v_lshl_add_u32 v{EA}, v{TT}, 4, v{EA}
            v_and_b32 v{TT}, 3, v{L}
            v_lshl_add_u32 v{EB}, v{TT}, 4, v{EB}
            v_bfe_u32 v{TT}, v{L}, 2, 2
            v_mul_lo_u32 v{TT}, v{TT}, s35
            v_add_u32 v{EB}, v{EB}, v{TT}""".split("\n")
        o = []
        for jj in range(2):
            for T in ((0, 1), (2, 3), (4,))[ph]:
                r0, r1 = acc(2 * jj, T), acc(2 * jj + 1, T)
                o += cv(r0, r0) + cv(r0 + 2, r1)
                if T < 4: o.append(f"buffer_store_dwordx4 {vr(r0,4)}, v{EA}, s[28:31], s{(26, 44, 45, 46)[T]} offen offset:{2560 * jj} sc1")
                else: o.append(f"buffer_store_dwordx4 {vr(r0,4)}, v{EB}, s[28:31], s26 offen offset:{2560 * jj + 256} sc1")
        return o

    for qk, lab in ((True, "QK"), (False, "V")):
        a(f"P1_PRE_{lab}:")
        for f in (epi_qk if qk else epi_v)(-1): a(f)
        a(f"P1_LOOP_{lab}:")
        group(0, qk)
        if STAMP: a(f"s_cmp_lg_u32 s40, 0\ns_cbranch_scc1 P1_ST_{lab}\n{st(2)}\nP1_ST_{lab}:\ns_cmp_lg_u32 s40, 5\ns_cbranch_scc1 P1_SU_{lab}\n{st(1)}\nP1_SU_{lab}:")
        group(1, qk)
        a(f"s_cmp_lt_u32 s40, s43\ns_cbranch_scc1 P1_LOOP_{lab}")
        if not qk: a("s_cmp_eq_u32 s22, 3\ns_cbranch_scc1 P1_EPI_DFT")
        tail(qk, epi_qk if qk else epi_v)
        a("s_branch P1_DONE")
    a("P1_EPI_DFT:")
    group(0, False, reads=False)
    TAU, TAU0, E0 = 80, 81, 140
    a(f"""
    {st(3)}
    s_cmp_lt_u32 s20, 2
    s_cselect_b32 s38, 1.0, -1.0
    v_mov_b32 v{TAU}, s38
    v_cndmask_b32 v{TAU0}, v{TAU}, 1.0, s[24:25]
    s_lshl_b32 s26, s20, 1
    s_add_u32 s26, s26, s37
    s_mul_i32 s26, s26, 80
    v_and_b32 v88, 15, v{L}
    v_add_u32 v{E0}, s26, v88
    v_add_u32 v{E0+1}, 20, v{E0}
    v_add_u32 v{E0+2}, 40, v{E0}
    v_add_u32 v{E0+3}, 60, v{E0}
    v_and_b32 v89, 12, v{L}
    v_lshl_add_u32 v{E0+4}, v89, 2, v{E0}
    v_add_u32 v{E0+4}, 16, v{E0+4}
    s_lshl_b32 s23, s21, 1
    s_add_u32 s23, s23, s36
    s_cmp_lg_u32 s23, 0
    s_cbranch_scc1 P1_EPI_DFT2
    s_mov_b64 exec, 0xffff
    s_mov_b32 s27, {X512_OFF}
    """)
    for T in range(5):
        a(f"v_fma_f32 v{96+T}, v{acc(3,T)}, v{TAU0 if T == 0 else TAU}, v{acc(1,T)}")
        a(f"v_lshlrev_b32 v{104+T}, 2, v{E0+T}\nv_mov_b32 v{acc(1,T)}, 0\nv_mov_b32 v{acc(3,T)}, 0")
        a(f"buffer_store_dword v{96+T}, v{104+T}, s[28:31], s27 offen sc1")
    a(f"""
    s_mov_b64 exec, -1
P1_EPI_DFT2:
    s_lshl_b32 s26, s23, 9
    s_add_u32 s26, s26, {FE_OFF}
    s_mov_b32 s27, {FO_DELTA}
    v_bfe_u32 v88, v{L}, 4, 1
    v_mul_lo_u32 v88, v88, s27
    v_lshrrev_b32 v89, 5, v{L}
    v_lshl_add_u32 v88, v89, 8, v88
    """)
    for T in range(5):
        tau = TAU0 if T == 0 else TAU
        a0, a1, a2, a3 = (acc(b, T) for b in range(4))
        for q in range(4):
            a(f"v_fma_f32 v{a0+q}, v{a1+q}, v{tau}, v{a0+q}\nv_fma_f32 v{a3+q}, v{a2+q}, v{tau}, v{a3+q}")
        for q in range(4):
            a(f"v_add_f32 v{a1+q}, v{a0+q}, v{a3+q}\nv_sub_f32 v{a2+q}, v{a0+q}, v{a3+q}")
        a0 = 120 + 4 * T
        for f in cv(a0, a1) + cv(a0 + 2, a2): a(f)
        a(f"""
        v_lshrrev_b32 v89, 4, v{E0+T}
        v_lshl_add_u32 v89, v89, 14, v88
        v_and_b32 v{E0+T}, 15, v{E0+T}
        v_lshl_add_u32 v{E0+T}, v{E0+T}, 4, v89
        v_permlane16_swap_b32 v{a0}, v{a0+2}
        v_permlane16_swap_b32 v{a0+1}, v{a0+3}
        """)
        if not opt("dftlate", 0): a(f"buffer_store_dwordx4 {vr(a0,4)}, v{E0+T}, s[28:31], s26 offen sc1")
    if opt("dftlate", 0): a("s_mov_b32 s39, s26\ns_mov_b32 s34, 2\ns_branch ATT")
    a(f"""
P1_DONE:
    {st(14)}
    s_mov_b32 s34, 1
    s_branch ATT
    """)

def p1_extra(a):
    T0 = 40
    a(f"""
P1_EXTRA:
    s_sub_u32 s61, s16, 8
    """)
    if opt("cwarm", 1):
        a(f"""
        s_cmp_lg_u32 s16, 10
        s_cbranch_scc1 P1_NOCW
        s_lshl_b32 s23, s18, 10
        s_cmp_ge_u32 s23, L_CODE_END - {NAME}_kernel - 1023
        s_cbranch_scc1 P1_NOCW
        s_getpc_b64 s[44:45]
L_PC:
        s_sub_u32 s44, s44, L_PC - {NAME}_kernel
        s_subb_u32 s45, s45, 0
        v_lshl_add_u32 v40, v0, 4, s23
        global_load_dwordx4 v[44:47], v40, s[44:45]
P1_NOCW:
        """)
    a(f"""
    v_lshrrev_b32 v37, 4, v0
    v_and_b32 v38, 15, v0
    v_lshlrev_b32 v39, 4, v0
    v_mov_b32 v36, v0
    s_waitcnt lgkmcnt(0)
    {srd(28, WS_P, WS_USED)}
    {srd(32, DBG_P, 256)}
    s_cmp_lg_u32 s61, 0
    s_cbranch_scc1 P1_EX_A
    v_mov_b32 v1, 0
    v_lshlrev_b32 v2, 2, v0
    v_add_u32 v2, {LFB}, v2
    ds_write_b32 v2, v1
    s_waitcnt lgkmcnt(0)
    s_cmp_lt_u32 s2, 248
    s_cbranch_scc1 P1_EX_WAITRDY
    v_mov_b32 v4, 0
    v_mov_b32 v5, 0
    v_mov_b32 v6, 0
    v_mov_b32 v7, 0
    s_lshl_b32 s23, s17, 12
    s_add_u32 s23, s23, {FLG_OFF}
    buffer_store_dwordx4 v[4:7], v39, s[28:31], s23 offen sc1
    buffer_store_dwordx4 v[4:7], v39, s[28:31], s23 offen offset:1024 sc1
    buffer_store_dwordx4 v[4:7], v39, s[28:31], s23 offen offset:2048 sc1
    buffer_store_dwordx4 v[4:7], v39, s[28:31], s23 offen offset:3072 sc1
P1_EX_WAITRDY:
P1_EX_A:
    s_lshl_b32 s23, s2, 2
    s_add_u32 s23, s23, s61
    s_mov_b32 s40, 0
P1_TBL:
    s_lshr_b32 s24, s23, 5
    s_and_b32 s25, s23, 30
    s_and_b32 s26, s24, 1
    s_lshr_b32 s27, s24, 1
    s_lshl_b32 s27, s27, 6
    s_add_u32 s27, s27, s26
    s_and_b32 s26, s23, 1
    s_lshl_b32 s26, s26, 5
    s_add_u32 s27, s27, s26
    v_lshl_add_u32 v{T0}, v38, 1, s27
    s_lshl_b32 s25, s25, 4
    v_lshl_add_u32 v{T0+1}, v37, 3, s25
    v_mul_u32_u24 v{T0+1}, v{T0}, v{T0+1}
    v_and_b32 v{T0+1}, 0x7ff, v{T0+1}
    v_cvt_f32_u32 v{T0}, v{T0}
    v_cvt_f32_u32 v{T0+1}, v{T0+1}
    v_mul_f32 v{T0}, 0x3a000000, v{T0}
    v_mul_f32 v0, 0x3a000000, v{T0+1}
    """)
    for u in range(1, 8): a(f"v_add_f32 v{u}, v{u-1}, v{T0}")
    for u in range(1, 8): a(f"v_fract_f32 v{u}, v{u}")
    for u in range(8): a(f"v_cos_f32 v{8+u}, v{u}")
    for u in range(8): a(f"v_sin_f32 v{16+u}, v{u}")
    for j in range(4): a(f"v_cvt_pk_bf16_f32 v{24+j}, v{8+2*j}, v{9+2*j}")
    for j in range(4): a(f"v_cvt_pk_bf16_f32 v{28+j}, v{16+2*j}, v{17+2*j}")
    NB0 = opt("tblbar", 2)
    a(f"""
    s_cmp_lg_u32 s40, 0
    s_cbranch_scc1 P1_TBL_ST
    s_barrier
    {st(1, True)}
    s_cmp_lg_u32 s61, 0
    s_cbranch_scc1 P1_EX_NR
    s_cmp_lt_u32 s2, 248
    s_cbranch_scc1 P1_EX_NR
    v_mov_b32 v32, 1
    v_mov_b32 v33, 0
    s_lshl_b32 s24, s17, 2
    s_waitcnt vmcnt(0)
    s_mov_b64 exec, 1
    buffer_store_dword v32, v33, s[32:35], s24 offen sc1
    s_mov_b64 exec, -1
P1_EX_NR:
    """ + "".join(f"s_barrier\n{st(1 + b_, True)}\n" for b_ in range(1, NB0)) + f"""
    s_mov_b32 s40, 1
P1_TBL_ST:
    s_lshl_b32 s24, s23, 11
    s_add_u32 s24, s24, {TB_OFF}
    buffer_store_dwordx4 v[24:27], v39, s[28:31], s24 offen sc1
    buffer_store_dwordx4 v[28:31], v39, s[28:31], s24 offen offset:1024 sc1
    s_add_u32 s23, s23, 1024
    s_cmp_lt_u32 s23, 1056
    s_cbranch_scc1 P1_TBL
    """)
    nb = NB0
    assert nb <= 6
    a("".join(f"s_barrier\n{st(1 + b_, True)}\n" for b_ in range(nb, 6)))
    u = a.uid()
    a(f"""
    v_and_b32 v1, 7, v36
    v_lshlrev_b32 v1, 2, v1
    v_mov_b32 v2, 1
    s_mov_b32 s60, 0
    s_cmp_lg_u32 s61, 0
    s_cbranch_scc1 P1_EX_C
    buffer_load_dword v2, v1, s[32:35], 0 offen sc1
P1_EX_C:
    s_barrier
    {st(7, True)}
    s_barrier
    {st(8, True)}
L_RDY{u}:
    s_waitcnt vmcnt(0)
    v_cmp_eq_u32 vcc, 0, v2
    s_cbranch_vccz P1_EX_B
    s_sleep 1
    buffer_load_dword v2, v1, s[32:35], 0 offen sc1
    s_add_u32 s60, s60, 1
    s_cmp_lt_u32 s60, 0x40000
    s_cbranch_scc1 L_RDY{u}
P1_EX_B:
    s_waitcnt vmcnt(0)
    s_barrier
    {st(9, True)}
    s_barrier
    {st(10, True)}
    s_mov_b32 s34, 0
    """)

def attention(a):
    O = 0; S = [16, 32]; P = 48; Q1 = 56; Q2 = 60; K2 = 62; K1 = 64; V1 = 68; V2 = [72, 76]; T = 80
    a(f"""
ATT:
    s_setprio 3
    s_cmp_lt_u32 s13, 4
    s_cselect_b32 s32, {opt("o1", 4)}, {opt("y1", 4)}
    s_cselect_b32 s33, {opt("o2", 7)}, {opt("y2", 7)}
    s_movk_i32 s35, 0x106
    s_bitset1_b32 s35, s32
    s_bitset1_b32 s35, s33
    s_mov_b32 s24, 0xfffff
    s_mov_b32 s25, 0xfffff
    s_mul_i32 s27, s13, 1280
    v_mov_b32 v{Q2+1}, 0
    v_mov_b32 v{K2+1}, 0x3f803f80
    v_add_u32 v{T}, s27, v{AK1}
    v_add_u32 v{T+1}, s27, v{AK2}
    v_mov_b32 v{T+2}, 1
    """)
    for r in range(12): a(f"v_mov_b32 v{V1+r}, v{ONES}")
    for r in range(16): a(f"v_mov_b32 v{O+r}, 0")
    for r in range(4): a(f"v_mov_b32 v{P+4+r}, 0\nv_mov_b32 v{P+r}, -1")
    def qk1(d): return f"v_mfma_f32_32x32x16_bf16 {vr(d,16)}, {vr(K1,4)}, {vr(Q1,4)}, 0"
    def qk2(d): return f"v_mfma_f32_32x32x8_bf16 {vr(d,16)}, {vr(K2,2)}, {vr(Q2,2)}, {vr(d,16)}"
    def pv(v, p): return f"v_mfma_f32_32x32x16_bf16 {vr(O,16)}, {vr(v,4)}, {vr(p,4)}, {vr(O,16)}"
    def of(t): return (t - 6 if t in (6, 7) else t) * 2560
    def rdk1(t): return f"ds_read_b128 {vr(K1,4)}, v{BK1 if t in (6, 7) else AK1} offset:{of(t)}"
    def rdk2(t): return f"ds_read_b32 v{K2}, v{BK2 if t in (6, 7) else AK2} offset:{of(t)+1024}"
    def rdv(t, v2):
        b = BV if t in (6, 7) else AV
        return f"s_mov_b64 exec, s[24:25]\nds_read_b128 {vr(V1,4)}, v{b} offset:{of(t)+1280}\nds_read_b128 {vr(v2,4)}, v{b} offset:{of(t)+1920}\ns_mov_b64 exec, -1"
    def maxtree(s, m, first):
        if first:
            a(f"v_max3_f32 v{m}, v{s}, v{s+1}, v{s+2}\nv_max3_f32 v{m+1}, v{s+3}, v{s+4}, v{s+5}")
            for j in range(6, 14, 4): a(f"v_max3_f32 v{m}, v{s+j}, v{s+j+1}, v{m}\nv_max3_f32 v{m+1}, v{s+j+2}, v{s+j+3}, v{m+1}")
            a(f"v_max3_f32 v{m}, v{s+14}, v{s+15}, v{m}\nv_max_f32 v{m}, v{m}, v{m+1}")
        else:
            for j in range(0, 16, 2): a(f"v_max3_f32 v{m}, v{s+j}, v{s+j+1}, v{m}")
    def xhalf(m):
        a(f"v_mov_b32 v{m+1}, v{m}\ns_nop 1\nv_permlane32_swap_b32 v{m}, v{m+1}\ns_nop 0\nv_max_f32 v{m}, v{m}, v{m+1}")
    a(f"""
    s_cmp_lg_u32 s34, 1
    s_cbranch_scc1 ATT_NOSIG
    """)
    if opt("comb", 1):
        a(f"""
        v_mov_b32 v{T+4}, {LFB + 44}
        s_and_b32 s23, s15, -128
        s_mov_b64 exec, 1
        s_waitcnt vmcnt(0)
        ds_add_rtn_u32 v{T+5}, v{T+4}, v{T+2}
        s_waitcnt lgkmcnt(0)
        v_cmp_eq_u32 vcc, 3, v{T+5}
        s_cbranch_vccz ATT_NOSIG
        buffer_store_dwordx4 {vr(P,4)}, v{O}, s[28:31], s23 offen sc1
        """)
    else:
        a(f"s_waitcnt vmcnt(0)\ns_mov_b64 exec, 1\nbuffer_store_dword v{T+2}, v{O}, s[28:31], s15 offen sc1")
    a(f"""
ATT_NOSIG:
    s_mov_b64 exec, -1
    {st(4)}
    s_barrier
    {st(6)}
    ds_read_b128 {vr(Q1,4)}, v{T} offset:{QLDS}
    ds_read_b32 v{Q2}, v{T+1} offset:{QLDS+1024}
    {rdk1(0)}
    {rdk2(0)}
    {rdv(0, V2[0])}
    s_waitcnt lgkmcnt(4)
    """)
    for j in range(5): a(f"v_lshlrev_b32 v{S[0]+2*j}, 16, v{Q1+j}\nv_and_b32 v{S[0]+2*j+1}, 0xffff0000, v{Q1+j}")
    for j in range(10): a(f"v_mul_f32 v{S[0]+j}, {QSCALE:#x}, v{S[0]+j}")
    for j in range(5): a(f"v_cvt_pk_bf16_f32 v{Q1+j}, v{S[0]+2*j}, v{S[0]+2*j+1}")
    a(f"""
    s_waitcnt lgkmcnt(2)
    {qk1(S[1])}
    {qk2(S[1])}
    {qk1(S[0])}
    {rdk1(1)}
    s_mov_b32 s26, 0
    buffer_store_dwordx4 {vr(P,4)}, v{OA1}, s[28:31], s6 offen sc1
    s_mov_b64 exec, 0xffff
    buffer_store_dwordx4 {vr(P,4)}, v{OA2}, s[28:31], s7 offen sc1
    s_mov_b64 exec, -1
    s_cmp_lg_u32 s34, 2
    s_cbranch_scc1 ATT_NOF
    """)
    for T_ in range(5): a(f"buffer_store_dwordx4 {vr(120+4*T_,4)}, v{140+T_}, s[28:31], s39 offen sc1")
    a("ATT_NOF:\ns_nop 2")
    maxtree(S[1], T, True); xhalf(T)
    a(f"""
    v_mul_f32 v{T}, -0.5, v{T}
    v_cvt_pk_bf16_f32 v{Q2+1}, v{T}, 0
    s_nop 1
    {qk2(S[0])}
    {rdk2(1)}
    s_waitcnt lgkmcnt(0)
    {st(7)}
    s_nop 7
ATT_LOOP:
    """)
    def e(s, j): return f"v_exp_f32 v{s+j}, v{s+j}"
    def c(s, j): return f"v_cvt_pk_bf16_f32 v{P+j}, v{s+2*j}, v{s+2*j+1}"
    for j in range(8):
        cur, nxt = S[j % 2], S[(j + 1) % 2]
        a("s_waitcnt lgkmcnt(2)")
        a(qk1(nxt)); a(rdk1(j + 2))
        for q in range(4): a(e(cur, q))
        a(pv(V2[(j + 1) % 2], P + 4))
        a("s_waitcnt lgkmcnt(1)")
        if j == 2: a(f"ds_write_b32 v{PA}, v{T+2}")
        for q in range(4, 8): a(e(cur, q))
        a(c(cur, 0)); a(c(cur, 1))
        a(qk2(nxt)); a(rdk2(j + 2))
        a(c(cur, 2)); a(c(cur, 3))
        for q in range(8, 12): a(e(cur, q))
        a(pv(V1, P)); a(rdv(j + 1, V2[(j + 1) % 2]))
        for q in range(12, 16): a(e(cur, q))
        for q in range(4, 8): a(c(cur, q))
    a(f"""
    s_add_u32 s26, s26, 1
    s_movk_i32 s27, 0x5000
    s_cmp_eq_u32 s26, 7
    s_cselect_b32 s27, {(0x5000 - 62 * 2560) & 0xffffffff}, s27
    v_add_u32 v{AK1}, 0x5000, v{AK1}
    v_add_u32 v{AK2}, 0x5000, v{AK2}
    v_add_u32 v{AV}, 0x5000, v{AV}
    v_add_u32 v{BK1}, s27, v{BK1}
    v_add_u32 v{BK2}, s27, v{BK2}
    v_add_u32 v{BV}, s27, v{BV}
    v_add_u32 v{T+2}, 1, v{T+2}
    s_bitcmp1_b32 s35, s26
    s_cbranch_scc0 ATT_LOOP
    s_cmp_gt_u32 s26, 2
    s_cbranch_scc1 ATT_EV
    v_add_u32 v{FA}, 8, v{FA}
    s_waitcnt vmcnt(0)
    s_cmp_lg_u32 s34, 2
    s_cbranch_scc1 ATT_WAIT
    s_mov_b32 s34, 0
    v_mov_b32 v{T}, 0
    s_mov_b64 exec, 1
    buffer_store_dword v{T+2}, v{T}, s[28:31], s15 offen sc1
    s_mov_b64 exec, -1
ATT_WAIT:
    ds_read_b32 v{T}, v{FA}
    s_waitcnt lgkmcnt(0)
    v_readfirstlane_b32 s23, v{T}
    s_cmp_ge_u32 s23, 4
    s_cbranch_scc1 ATT_LOOP
    s_sleep 1
    s_branch ATT_WAIT
ATT_EV:
    s_setprio 2
    s_cmp_eq_u32 s26, s32
    s_cbranch_scc1 ATT_LOOP
    s_setprio 1
    s_cmp_lt_u32 s26, 8
    s_cbranch_scc1 ATT_LOOP
    s_setprio 3
    {pv(V2[1], P+4)}
    {st(8)}
    s_mov_b32 s27, 0x3e800000
    s_mov_b32 s23, 0x71800000
    s_nop 9
    """)
    a(f"v_rcp_f32 v{T+2}, v{O+12}\nv_add_f32 v{T}, |v{O}|, |v{O+1}|\nv_add_f32 v{T+1}, |v{O+2}|, |v{O+3}|")
    for j in range(4, 12, 2): a(f"v_add_f32 v{T}, |v{O+j}|, v{T}\nv_add_f32 v{T+1}, |v{O+j+1}|, v{T+1}")
    a(f"""
    v_add_f32 v{T}, v{T}, v{O+12}
    v_cmp_le_f32 s[42:43], s27, v{O+12}
    v_add_f32 v{T}, v{T}, v{T+1}
    v_cmp_gt_f32 vcc, s23, v{T}
    s_and_b64 vcc, vcc, s[42:43]
    s_cmp_eq_u64 vcc, -1
    s_cbranch_scc0 ATT_FALLBACK
ATT_FINISH:
    """)
    for j in range(8): a(f"v_mul_f32 v{O+j}, v{O+j}, v{T+2}")
    for j in range(4): a(f"v_cvt_pk_bf16_f32 v{P+j}, v{O+2*j}, v{O+2*j+1}")
    for j in range(4): a(f"v_min_u32 v{P+j}, -2, v{P+j}")
    a(f"buffer_store_dwordx4 {vr(P,4)}, v{OA1}, s[28:31], s6 offen sc1")
    for j in range(8, 12): a(f"v_mul_f32 v{O+j}, v{O+j}, v{T+2}")
    for j in range(4, 6): a(f"v_cvt_pk_bf16_f32 v{P+j}, v{O+2*j}, v{O+2*j+1}")
    for j in range(4, 6): a(f"v_min_u32 v{P+j}, -2, v{P+j}")
    a(f"""
    s_nop 1
    v_permlane16_swap_b32 v{P+4}, v{P+6}
    v_permlane16_swap_b32 v{P+5}, v{P+7}
    s_mov_b64 exec, 0xffff
    buffer_store_dwordx4 {vr(P+4,4)}, v{OA2}, s[28:31], s7 offen sc1
    {st(9)}
    s_cmp_ge_u32 s13, 4
    s_cbranch_scc1 {"L_DONE" if STAMP else "L_END"}
    s_mov_b64 exec, -1
    s_mov_b32 s41, s13
    s_mov_b32 s47, 1
    s_branch P3_GO
    """)
    def gk(): return f"buffer_load_dwordx4 {vr(K1,4)}, v{AK1}, s[28:31], s23 offen sc1\nbuffer_load_dword v{K2}, v{AK2}, s[28:31], s23 offen offset:1024 sc1"
    a(f"""
ATT_FALLBACK:
    s_waitcnt lgkmcnt(0)
    v_mov_b32 v{Q2+1}, 0
    v_mov_b32 v{T}, 0xff800000
    v_subrev_u32 v{AK1}, {HS}, v{AK1}
    v_subrev_u32 v{AK2}, {HS}, v{AK2}
    v_subrev_u32 v{AV}, {HS}, v{AV}
    s_add_u32 s23, s14, {KV_OFF}
    s_mov_b32 s26, 0
ATT_FB1:
    {gk()}
    s_add_u32 s23, s23, 2560
    s_waitcnt vmcnt(0)
    {qk1(S[0])}
    {qk2(S[0])}
    s_nop 15
    """)
    maxtree(S[0], T, False)
    a("s_add_u32 s26, s26, 1\ns_cmp_lt_u32 s26, 64\ns_cbranch_scc1 ATT_FB1")
    xhalf(T)
    a(f"s_add_u32 s23, s14, {KV_OFF}\ns_mov_b32 s26, 0")
    for r in range(16): a(f"v_mov_b32 v{O+r}, 0")
    a(f"""
ATT_FB2:
    {gk()}
    s_mov_b64 exec, s[24:25]
    buffer_load_dwordx4 {vr(V1,4)}, v{AV}, s[28:31], s23 offen offset:1280 sc1
    buffer_load_dwordx4 {vr(V2[0],4)}, v{AV}, s[28:31], s23 offen offset:1920 sc1
    s_mov_b64 exec, -1
    s_add_u32 s23, s23, 2560
    s_waitcnt vmcnt(0)
    {qk1(S[0])}
    {qk2(S[0])}
    s_nop 15
    """)
    for q in range(16): a(f"v_sub_f32 v{S[0]+q}, v{S[0]+q}, v{T}")
    for q in range(16): a(e(S[0], q))
    a("s_nop 0")
    for q in range(8): a(c(S[0], q))
    a(f"""
    s_nop 1
    {pv(V1, P)}
    {pv(V2[0], P+4)}
    s_add_u32 s26, s26, 1
    s_cmp_lt_u32 s26, 64
    s_cbranch_scc1 ATT_FB2
    s_nop 15
    v_rcp_f32 v{T+2}, v{O+12}
    s_nop 0
    s_branch ATT_FINISH
    """)

def lwait(a, vaddr, vdat, mask, target, slp=8):
    u = a.uid()
    a(f"""
    s_mov_b64 exec, {mask}
    s_branch L_LWE{u}
L_LW{u}:
    s_sleep {slp}
L_LWE{u}:
    ds_read_b32 v{vdat}, v{vaddr}
    s_waitcnt lgkmcnt(0)
    v_cmp_gt_u32 vcc, {target}, v{vdat}
    s_cbranch_vccnz L_LW{u}
    s_mov_b64 exec, -1
    """)
def ladd(a, vaddr, vone, off):
    a(f"s_mov_b64 exec, 1\nds_add_u32 v{vaddr}, v{vone} offset:{off}\ns_mov_b64 exec, -1")

def helpers(a):
    HPA, HONE = 165, 166
    a(f"""
HELPER:
    {st(2)}
    {srd(28, WS_P, WS_USED)}
    s_lshr_b32 s19, s18, 3
    s_lshl_b32 s23, s17, 2
    s_add_u32 s19, s19, s23
    s_and_b32 s62, s18, 7
    s_mul_i32 s21, s19, {HG}
    v_lshlrev_b32 v1, 4, v0
    {st(3)}
    s_lshr_b32 s23, s19, 3
    s_lshl_b32 s23, s23, 13
    s_add_u32 s23, s23, {FLG_OFF}
    v_lshlrev_b32 v2, 7, v0
    v_add_u32 v2, s23, v2
    s_add_u32 s24, s21, {KV_OFF}
    s_lshl_b32 s40, 0x10000, s16
    s_lshl_b32 s41, 1, s16
    s_mul_i32 s22, s16, 10240
    s_add_u32 s26, s24, s22
    s_cmp_lg_u32 s16, 3
    s_cbranch_scc1 H_JA
    s_lshl_b32 s25, s62, 1
    s_lshl_b32 s40, 3, s25
    s_mov_b32 s41, 0
    s_mov_b32 s22, {QLDS}
    s_mul_i32 s26, s19, {HQ}
    s_mul_i32 s25, s62, 10240
    s_add_u32 s26, s26, s25
    s_add_u32 s26, s26, {Q_OFF}
H_JA:
    """)
    def job():
        r = f"s_add_u32 s25, s22, 5120\ns_cmp_ge_u32 s25, {LFB}\ns_cselect_b32 s25, 0, s25\n"
        for n in range(10):
            if n in (0, 3): r += f"s_add_u32 m0, s22, {1024*n}\ns_add_u32 s27, s26, {1024*n}\n"; o = 0
            if n in (5, 8): r += f"s_add_u32 m0, s25, {1024*(n-5)}\ns_add_u32 s27, s26, {1024*n}\n"; o = 0
            r += f"buffer_load_dwordx4 v1, s[28:31], s27 offen offset:{o} sc1 lds\n"; o += 1024
        return r
    if opt("latep", 1):
        a(f"v_mov_b32 v3, {LFB + 44}")
        lwait(a, 3, 4, 1, 4, 2)
        if opt("lps", 0): a(f"s_sleep {opt('lps', 0)}")
    poll4(a, 2, 4, "s[40:41]")
    a(st(11)); a(job())
    a(f"""
    v_lshlrev_b32 v{HPA}, 2, v0
    v_add_u32 v{HPA}, {LFB}, v{HPA}
    v_mov_b32 v{HONE}, 1
    s_mov_b32 s40, 0xffff0000
    s_mov_b32 s41, 0xffff
    s_add_u32 s22, s16, 3
    s_cmp_eq_u32 s16, 3
    s_cselect_b32 s22, 7, s22
    s_mul_i32 s22, s22, 10240
    s_add_u32 s26, s24, s22
    s_waitcnt vmcnt(0)
    {st(12)}
    s_barrier
    """)
    poll4(a, 2, 4, "s[40:41]")
    a(job())
    a(f"""
    s_add_u32 s22, s16, 6
    s_cmp_eq_u32 s16, 1
    s_cselect_b32 s22, 11, s22
    s_mul_i32 s22, s22, 10240
    s_add_u32 s26, s24, s22
    s_waitcnt vmcnt(0)
    """)
    ladd(a, HPA, HONE, 64)
    lwait(a, HPA, 4, 0xff, 1)
    a(f"{st(13)}\nH_JC:"); a(job())
    a(f"""
    s_add_u32 s22, s22, 40960
    s_add_u32 s26, s26, 40960
    s_cmp_lt_u32 s22, {HS}
    s_cbranch_scc1 H_JC
    s_waitcnt vmcnt(0)
    {st(4)}
    """)
    ladd(a, HPA, HONE, 72)
    a(f"""
    v_mov_b32 v167, v0
    s_cmp_lt_u32 s16, 3
    s_cbranch_scc1 H_FNET
    """)
    a(f"""
    {srd(32, X_P, 2048*1280)}
    {srd(36, GATE_P, 1280)}
    v_lshrrev_b32 v2, 3, v0
    v_and_b32 v3, 7, v0
    v_lshlrev_b32 v3, 4, v3
    s_movk_i32 s22, 1280
    v_mad_u32_u24 v4, v2, s22, v3
    s_mul_i32 s23, s2, {8*1280}
    """)
    for j in range(10):
        a(f"buffer_load_dwordx4 {vr(24+8*j,4)}, v4, s[32:35], s23 offen offset:{128*j}")
        a(f"buffer_load_dwordx4 {vr(28+8*j,4)}, v3, s[36:39], 0 offen offset:{128*j}")
    a("v_mov_b32 v5, 0\nv_mov_b32 v6, 0\ns_waitcnt vmcnt(0)")
    for j in range(10):
        for q in range(4):
            a(f"v_dot2c_f32_bf16 v{5 + (q & 1)}, v{24+8*j+q}, v{28+8*j+q}")
    a(f"""
    s_nop 2
    v_add_f32 v5, v5, v6
    s_nop 1
    v_add_f32_dpp v5, v5, v5 quad_perm:[1,0,3,2] row_mask:0xf bank_mask:0xf
    s_nop 1
    v_add_f32_dpp v5, v5, v5 quad_perm:[2,3,0,1] row_mask:0xf bank_mask:0xf
    s_nop 1
    v_add_f32_dpp v5, v5, v5 row_half_mirror row_mask:0xf bank_mask:0xf
    v_mul_f32 v5, {f32bits(-math.log2(math.e)):#x}, v5
    v_exp_f32 v5, v5
    v_lshlrev_b32 v2, 2, v2
    v_add_f32 v5, 1.0, v5
    v_rcp_f32 v5, v5
    s_lshl_b32 s23, s2, 5
    s_add_u32 s23, s23, {G_OFF}
    buffer_store_dword v5, v2, s[28:31], s23 offen sc1
    s_branch H_MID
    """)
    C, SN, FB = 0, 8, 16
    a(f"""
H_FNET:
    {'s_branch H_MID' if opt('nofnet', 0) == 1 else ''}
    s_lshl_b32 s22, s16, 5
    s_add_u32 s22, s22, s18
    s_cmp_lt_u32 s22, 84
    s_cbranch_scc1 H_FN_A
    s_sub_u32 s24, s22, 84
    s_lshl_b32 s24, s24, 3
    s_add_u32 s24, s24, s17
    s_cmp_ge_u32 s24, 21
    s_cbranch_scc1 H_MID
    s_mov_b32 s23, 32
    s_branch H_FN_B
H_FN_A:
    s_mul_i32 s23, s22, 3121
    s_lshr_b32 s23, s23, 16
    s_mul_i32 s24, s23, 21
    s_sub_u32 s24, s22, s24
    s_lshl_b32 s23, s23, 3
    s_add_u32 s23, s23, s17
H_FN_B:
    v_lshlrev_b32 v2, 7, v0
    s_mov_b32 s27, {FLG_OFF}
H_FN_P:
    """)
    poll4(a, 2, 4, "-1", "s27", slp=16)
    a(f"s_add_u32 s27, s27, 8192\ns_cmp_lt_u32 s27, {FLG_OFF + 32768}\ns_cbranch_scc1 H_FN_P")
    a(f"""
    s_and_b32 s25, s23, 1
    s_add_u32 s26, s24, 20
    s_cmp_eq_u32 s24, 20
    s_cselect_b32 s26, 20, s26
    s_lshl_b32 s32, s23, 16
    s_add_u32 s32, s32, {TB_OFF}
    s_mul_i32 s27, s25, {FO_DELTA}
    s_add_u32 s27, s27, {FE_OFF}
    s_lshl_b32 s33, s24, 14
    s_add_u32 s33, s33, s27
    s_lshl_b32 s34, s26, 14
    s_add_u32 s34, s34, s27
    s_cmp_eq_u32 s25, 0
    s_cselect_b32 s35, s24, s26
    s_lshl_b32 s35, s35, 6
    s_add_u32 s35, s35, {X512_OFF}
    v_and_b32 v162, 48, v0
    v_mov_b32 v163, v1
    buffer_load_dwordx4 v[156:159], v162, s[28:31], s35 offen sc1
    """)
    def fl(j):
        r = FB + 24 * j
        s_ = f"buffer_load_dwordx4 {vr(r,4)}, v163, s[28:31], s33 offen offset:{1024*j} sc1\n"
        s_ += f"buffer_load_dwordx4 {vr(r+4,4)}, v163, s[28:31], s34 offen offset:{1024*j} sc1\n"
        for k in range(4): s_ += f"buffer_load_dwordx4 {vr(r+8+4*k,4)}, v163, s[28:31], s32 offen offset:{1024*k} sc1\n"
        s_ += "s_add_u32 s32, s32, 4096\n"
        if j == 3: s_ += "s_add_u32 s33, s33, 4096\ns_add_u32 s34, s34, 4096\n"
        return s_
    def fm(j):
        r = FB + 24 * j
        s_ = ""
        if opt("nofnet", 0) == 2: return s_
        for sub in range(2):
            s_ += f"v_mfma_f32_16x16x32_bf16 {vr(C+4*sub,4)}, {vr(r,4)}, {vr(r+8+8*sub,4)}, {vr(C+4*sub,4)}\n"
            s_ += f"v_mfma_f32_16x16x32_bf16 {vr(SN+4*sub,4)}, {vr(r+4,4)}, {vr(r+12+8*sub,4)}, {vr(SN+4*sub,4)}\n"
        return s_
    for j in range(4): a(fl(j))
    a(f"""
    v_lshlrev_b32 v160, 31, v167
    s_cmp_eq_u32 s25, 0
    s_cselect_b32 s36, 1.0, 0
    s_cselect_b32 s37, 0, 1.0
    v_or_b32 v161, s37, v160
    v_or_b32 v160, s36, v160
    s_waitcnt vmcnt(24)
    """)
    for r in range(8): a(f"v_mul_f32 v{C+r}, v160, v{156 + r % 4}\nv_mul_f32 v{SN+r}, v161, v{156 + r % 4}")
    a("s_mov_b32 s38, 0\nH_FN_LOOP:")
    for j in range(4):
        a("s_waitcnt vmcnt(18)"); a(fm(j)); a(fl(j))
    a("s_add_u32 s38, s38, 1\ns_cmp_lt_u32 s38, 3\ns_cbranch_scc1 H_FN_LOOP")
    for j in range(4):
        a(f"s_waitcnt vmcnt({18-6*j})"); a(fm(j))
    a(f"""
    s_cmp_eq_u32 s26, 20
    s_cselect_b32 s44, 0xffff, 0
    s_mov_b32 s45, 0
    v_lshrrev_b32 v32, 4, v167
    v_mul_u32_u24 v32, {2*ZP}, v32
    v_and_b32 v33, 15, v167
    v_lshl_add_u32 v32, v33, 4, v32
    s_mul_i32 s26, s24, {8*ZP}
    s_mul_i32 s27, s25, {ZP}
    s_add_u32 s26, s26, s27
    s_lshr_b32 s27, s23, 1
    s_lshl_b32 s27, s27, 9
    s_add_u32 s26, s26, s27
    s_add_u32 s26, s26, {Y_OFF}
    v_cndmask_b32 v{SN}, v{SN}, 0, s[44:45]
    v_cndmask_b32 v{SN+4}, v{SN+4}, 0, s[44:45]
    """)
    for r in range(8):
        a(f"v_add_f32 v{16+r}, v{C+r}, v{SN+r}\nv_sub_f32 v{C+r}, v{C+r}, v{SN+r}")
    for r in range(8): a(f"v_cvt_pk_bf16_f32 v{16+r}, v{16+r}, v{C+r}")
    a("buffer_store_dwordx4 v[16:19], v32, s[28:31], s26 offen sc1\nbuffer_store_dwordx4 v[20:23], v32, s[28:31], s26 offen offset:256 sc1")
    WA = 100; ZL = 40; Y = 64; G = 148; VY = 150; VG = 154; VZ = 155; T = 156; SH = 151
    a(f"""
H_MID:
    v_mov_b32 v0, v167
    s_lshl_b32 s19, s17, 2
    s_and_b32 s20, s18, 3
    s_add_u32 s19, s19, s20
    s_lshr_b32 s20, s18, 2
    {srd(32, WO_P, 640*1280)}
    {srd(36, OUT_P, 2621440)}
    s_mul_i32 s26, s20, 160
    s_mul_i32 s27, s16, {160*1280}
    s_add_u32 s27, s27, s26
    s_movk_i32 s23, {1280 - 160}
    """)
    for i in range(5):
        a(f"""
        v_add_u32 v{T}, {64*i}, v0
        v_mul_u32_u24 v{T+1}, 6554, v{T}
        v_lshrrev_b32 v{T+1}, 16, v{T+1}
        v_lshlrev_b32 v{T}, 4, v{T}
        v_mad_u32_u24 v{WA+i}, v{T+1}, s23, v{T}
        """)
    a(f"""
    s_lshl_b32 s21, s17, 3
    s_and_b32 s22, s18, 3
    s_add_u32 s21, s21, s22
    s_lshr_b32 s22, s16, 1
    s_lshl_b32 s22, s22, 2
    s_add_u32 s21, s21, s22
    s_lshl_b32 s21, s21, 1
    s_and_b32 s22, s16, 1
    s_add_u32 s21, s21, s22
    s_lshr_b32 s22, s21, 2
    s_lshl_b32 s22, s22, 1
    s_and_b32 s24, s21, 1
    s_add_u32 s22, s22, s24
    s_lshl_b32 s22, s22, 3
    v_and_b32 v{T}, 7, v0
    v_add_u32 v{T}, s22, v{T}
    s_bitcmp1_b32 s21, 1
    s_cselect_b32 s22, 0x400, 0
    s_cselect_b32 s24, -1, 1
    v_mul_lo_u32 v{T+1}, v{T}, s24
    s_sub_u32 s24, 0x800, s22
    v_sub_u32 v{T+2}, s24, v{T+1}
    v_add_u32 v{T+1}, s22, v{T+1}
    v_and_b32 v{T+3}, 8, v0
    v_cmp_ne_u32 vcc, 0, v{T+3}
    v_cmp_eq_u32 s[42:43], 0, v{T}
    v_lshlrev_b32 v{T+3}, 6, v{T+3}
    v_add_u32 v{T+3}, s22, v{T+3}
    v_cndmask_b32 v{T}, v{T+1}, v{T+2}, vcc
    v_lshrrev_b32 v{T+1}, 4, v0
    v_cndmask_b32 v{T}, v{T}, v{T+3}, s[42:43]
    v_mul_u32_u24 v{VY}, 1280, v{T}
    v_mul_u32_u24 v{T+2}, 40, v{T+1}
    v_add3_u32 v{VY}, v{VY}, v{T+2}, s26
    v_lshlrev_b32 v{VG}, 2, v{T}
    v_sub_u32 v{T+3}, 0x800, v{T}
    v_cmp_lt_u32 vcc, 0x400, v{T}
    v_min_u32 v{T}, v{T}, v{T+3}
    v_and_b32 v{T+3}, 1, v{T}
    v_mul_u32_u24 v{VZ}, {ZP}, v{T+3}
    v_lshrrev_b32 v{T+3}, 1, v{T}
    v_lshl_add_u32 v{VZ}, v{T+3}, 4, v{VZ}
    v_cndmask_b32 v{SH}, 16, 0, vcc
    s_cmp_ge_u32 s20, 4
    s_cselect_b32 s24, 16, 0
    s_cselect_b32 s40, -1, 1
    s_cselect_b32 s41, 155, 0
    v_xor_b32 v{SH}, s24, v{SH}
    s_mul_i32 s24, s20, 20
    v_mul_u32_u24 v{T+3}, 5, v{T+1}
    v_add_u32 v{T+3}, s24, v{T+3}
    v_mul_lo_u32 v{T+3}, v{T+3}, s40
    v_add_u32 v{T+3}, s41, v{T+3}
    v_mul_u32_u24 v{T+3}, {2*ZP}, v{T+3}
    v_add_u32 v{VZ}, v{VZ}, v{T+3}
    s_add_u32 s25, s16, 1
    s_and_b32 s25, s25, 3
    s_mul_i32 s22, s25, 25600
    s_add_u32 s22, s22, {WOL}
    s_add_u32 s25, s25, 3
    s_lshl_b32 s23, s2, 5
    s_add_u32 s23, s23, s16
    s_lshl_b32 s23, s23, 2
    s_add_u32 s23, s23, {FLG_OFF + 16}
    v_mov_b32 v{T}, s23
    s_waitcnt vmcnt(0)
    {st(5)}
    """)
    lwait(a, HPA, T + 1, 0xff, 2)
    a(f"s_mov_b64 exec, 1\nbuffer_store_dword v{HONE}, v{T}, s[28:31], 0 offen sc1\ns_mov_b64 exec, -1")
    lwait(a, HPA, T + 1, 0xff, "s25")
    a(f"{st(6)}\ns_mov_b32 s25, 0\nH_WO:")
    for i in range(5):
        a(f"s_add_u32 m0, s22, {1024*i}\ns_nop 0\nbuffer_load_dwordx4 v{WA+i}, s[32:35], s27 offen lds")
    a(f"""
    s_add_u32 s22, s22, 5120
    s_add_u32 s27, s27, {32*1280}
    s_add_u32 s25, s25, 1
    s_cmp_lt_u32 s25, 5
    s_cbranch_scc1 H_WO
    s_cmp_lg_u32 s16, 3
    s_cbranch_scc1 H_YW
    v_lshlrev_b32 v2, 7, v0
    """)
    lwait(a, HPA, T + 1, 0xff, opt("ypr", 5), 16)
    a(f"s_mov_b32 s27, {FLG_OFF + 16}\nH_YP:")
    poll4(a, 2, 4, "-1", "s27", slp=32)
    a(f"s_add_u32 s27, s27, 8192\ns_cmp_lt_u32 s27, {FLG_OFF + 32768}\ns_cbranch_scc1 H_YP")
    ladd(a, HPA, HONE, 40)
    a(f"H_YW:\nv_add_u32 v{T}, 40, v{HPA}")
    lwait(a, T, T + 1, 1, 1, 16)
    a("s_waitcnt vmcnt(0)")
    a(f"v_mov_b32 v{T}, 2")
    ladd(a, HPA, T, 32)
    a(f"{st(7)}\ns_mov_b32 s26, {Y_OFF}\ns_mov_b32 s27, {G_OFF}\nbuffer_load_dword v{G}, v{VG}, s[28:31], s27 offen sc1")
    for j in range(6):
        a(f"buffer_load_dwordx4 {vr(ZL+4*j,4)}, v{VZ}, s[28:31], s26 offen sc1\ns_add_u32 s26, s26, {2*ZP}")
    BF, OFR, ACC, YG = 0, 100, 120, 140
    VY2, G2 = 162, 167
    a(f"""
    v_mov_b32 v7, v{HPA}
    {p3_addr(0)}
    v_mov_b32 v{VY2}, v{VY}
    v_mov_b32 v6, v{SH}
    s_mul_i32 s22, s21, 20480
    s_add_u32 s22, s22, {OF_OFF}
    s_waitcnt vmcnt(0)
    v_mov_b32 v{G2}, v{G}
    s_cmp_ge_u32 s20, 4
    s_cbranch_scc1 H_DESC
    """)
    for k in range(20): a(f"v_lshlrev_b32 v{YG+k}, v6, v{ZL+k}")
    a("s_branch H_UNP\nH_DESC:")
    for k in range(20): a(f"v_lshlrev_b32 v{YG+k}, v6, v{ZL+20-k}")
    a("H_UNP:")
    for k in range(20): a(f"v_and_b32 v{YG+k}, 0xffff0000, v{YG+k}")
    for k in range(20): a(f"v_mul_f32 v{YG+k}, v{YG+k}, v{G2}")
    a(f"v_sub_f32 v{G2}, 1.0, v{G2}")
    lwait(a, 7, 8, 0xf, 8)
    a(f"""
    {st(8)}
    s_mov_b32 s41, s16
    s_mov_b32 s47, 0
P3_GO:
    s_setprio 0
    s_lshl_b32 s22, s17, 3
    s_and_b32 s23, s18, 3
    s_add_u32 s22, s22, s23
    s_lshl_b32 s22, s22, 1
    s_add_u32 s22, s22, s47
    s_mul_i32 s22, s22, 20480
    s_add_u32 s22, s22, {OF_OFF}
    s_lshl_b32 s44, s41, 12
    s_add_u32 s44, s44, s22
    s_lshl_b32 s45, s41, 10
    s_add_u32 s45, s45, s22
    s_add_u32 s45, s45, 16384
    s_lshl_b32 s46, s47, 2
    s_add_u32 s40, s46, {LFB + 80}
    s_add_u32 s46, s46, s41
    s_mul_i32 s46, s46, 5120
    s_add_u32 s46, s46, {WOL}
    s_mov_b32 s26, 0
    s_mov_b32 s42, 0
    v_mov_b32 v{CM}, {LFB + 32}
    """)
    lwait(a, CM, CT, 1, 8)
    a("P3_TRY:")
    for k in range(4):
        a(f"buffer_load_dwordx4 {vr(OFR+4*k,4)}, v{VA}, s[28:31], s44 offen offset:{1024*k} sc1")
    a(f"buffer_load_dwordx2 {vr(OFR+16,2)}, v{VT}, s[28:31], s45 offen sc1\nbuffer_load_dwordx2 {vr(OFR+18,2)}, v{VT}, s[28:31], s45 offen offset:128 sc1")
    a(f"""
    s_cmp_lg_u32 s26, 0
    s_cbranch_scc1 P3_CHK
    s_add_u32 s23, s41, 1
    s_and_b32 s23, s23, 3
    s_mul_i32 s23, s23, 25600
    s_add_u32 s23, s23, {WOL}
    v_add_u32 v{CM}, s23, v{BMM}
    v_add_u32 v{CT}, s23, v{BMT}
    """)
    for n in range(25):
        k, t = divmod(n, 5); d = BF + 4 * n
        bb, o, dj = (CM, k * 6400 + t * 8, 1280) if k < 4 else (CT, t * 8, 3200)
        a(f"ds_read_b64_tr_b16 {vr(d,2)}, v{bb} offset:{o}\nds_read_b64_tr_b16 {vr(d+2,2)}, v{bb} offset:{o+dj}")
    a(f"v_mov_b32 v{BMM}, {LFB + 36}\nv_mov_b32 v{BMT}, 1\ns_waitcnt lgkmcnt(0)")
    ladd(a, BMM, BMT, 0)
    b = OFR
    a(f"P3_CHK:\ns_add_u32 s26, s26, 1\ns_waitcnt vmcnt(4)\nv_max3_u32 v{CM}, v{b}, v{b+1}, v{b+2}\nv_max3_u32 v{CT}, v{b+3}, v{b+4}, v{b+5}\nv_max3_u32 v{CM}, v{b+6}, v{b+7}, v{CM}\ns_waitcnt vmcnt(2)")
    a(f"v_max3_u32 v{CT}, v{b+8}, v{b+9}, v{CT}\nv_max3_u32 v{CM}, v{b+10}, v{b+11}, v{CM}\nv_max3_u32 v{CT}, v{b+12}, v{b+13}, v{CT}\nv_max3_u32 v{CM}, v{b+14}, v{b+15}, v{CM}\ns_waitcnt vmcnt(0)")
    a(f"""
    v_max3_u32 v{CT}, v{b+16}, v{b+17}, v{CT}
    v_max3_u32 v{CM}, v{b+18}, v{b+19}, v{CM}
    s_cmp_lt_u32 s26, 0x40000
    v_max_u32 v{CM}, v{CM}, v{CT}
    s_cbranch_scc0 P3_OK
    v_cmp_eq_u32 vcc, -1, v{CM}
    s_cbranch_vccz P3_OK
    s_sleep {opt("p3s", 4)}
    s_branch P3_TRY
P3_OK:
    {'' if opt('fst', 0) else st(11)}
    s_setprio {opt('p3p', 0)}
    """)
    for n in range(25):
        k, t = divmod(n, 5)
        a(f"v_mfma_f32_16x16x32_bf16 {vr(ACC+4*t,4)}, {vr(BF+4*n,4)}, {vr(OFR+4*k,4)}, {vr(ACC+4*t,4) if k else 0}")
    a("s_cmp_lg_u32 s42, 0\ns_cbranch_scc1 P3_WR")
    lwait(a, BMM, CT, 1, 8, 2)
    a(f"{str() if opt('fst', 0) else st(12)}\nP3_WR:\nv_add_u32 v{CM}, s46, v{VA}\nv_mov_b32 v{CT}, s40\ns_nop 1")
    for j in range(5): a(f"ds_write_b128 v{CM}, {vr(ACC+4*j,4)} offset:{1024*j}")
    a("s_waitcnt lgkmcnt(0)")
    ladd(a, CT, BMT, 0)
    a(f"""
    s_setprio 0
    s_add_u32 s44, s44, {8*20480}
    s_add_u32 s45, s45, {8*20480}
    s_add_u32 s46, s46, {8*5120}
    s_add_u32 s40, s40, 8
    s_add_u32 s42, s42, 1
    s_cmp_lt_u32 s42, 2
    s_cbranch_scc1 P3_TRY
    {st(10)}
    s_cmp_ge_u32 s16, 4
    s_cbranch_scc1 {"L_DONE" if STAMP else "L_END"}
    s_setprio 3
    s_lshl_b32 s23, s16, 2
    s_add_u32 s23, s23, {LFB + 80}
    v_mov_b32 v{CT}, s23
    s_mul_i32 s23, s16, 20480
    s_add_u32 s23, s23, {WOL}
    v_add_u32 v{CM}, s23, v{VA}
    """)
    lwait(a, CT, BMM, 1, 4, 1)
    a(st(9))
    for j in range(5):
        for g in range(4): a(f"ds_read_b128 {vr(16*j+4*g,4)}, v{CM} offset:{5120*g+1024*j}")
    for j in range(5):
        a(f"s_waitcnt lgkmcnt({min(15, 16-4*j)})")
        for r in range(4): a(f"v_add_f32 v{16*j+r}, v{16*j+r}, v{16*j+4+r}\nv_add_f32 v{16*j+8+r}, v{16*j+8+r}, v{16*j+12+r}")
        for r in range(4): a(f"v_add_f32 v{16*j+r}, v{16*j+r}, v{16*j+8+r}")
        for r in range(4): a(f"v_fmac_f32 v{YG+4*j+r}, v{16*j+r}, v{G2}")
        a(f"v_cvt_pk_bf16_f32 v{84+2*j}, v{YG+4*j}, v{YG+4*j+1}\nv_cvt_pk_bf16_f32 v{84+2*j+1}, v{YG+4*j+2}, v{YG+4*j+3}")
        if j == 1: a(f"buffer_store_dwordx4 v[84:87], v{VY2}, s[36:39], 0 offen" + OSC)
        if j == 3: a(f"buffer_store_dwordx4 v[88:91], v{VY2}, s[36:39], 0 offen offset:16" + OSC)
    a(f"buffer_store_dwordx2 v[92:93], v{VY2}, s[36:39], 0 offen offset:32" + OSC)

def main():
    a = A()
    top = open("cdna_kernels/" + NAME + ".s.ref").read().split("; Override launch")[0]
    top += "; @launch grid=(256,1,1) block=(768,1,1) lds=163840\n"
    a('.amdgcn_target "amdgcn-amd-amdhsa--gfx950"\n.text')
    d = gen(a)
    open(sys.argv[1], "w").write(top + a.text() + '.section .rodata,"a"\n.p2align 6\n' + d)
if __name__ == "__main__":
    main()
```

```python
import sys, math, struct

OPT = dict(x.split("=") for x in sys.argv[2:])
def opt(k, d): return int(OPT.get(k, d))
NAME = "gated_mix__spectral_fnet__softmax_full_mha__prompt"
HS = 163840
KV_OFF = 0
HG = HS + opt('pad', 512)
HQ = 81920 + opt('pad', 512)
Q_OFF = 32 * HG
FE_OFF = Q_OFF + 32 * HQ
FO_DELTA = 655360
X512_OFF = FE_OFF + 2 * FO_DELTA
TB_OFF = X512_OFF + 4096
Y_OFF = TB_OFF + 33 * 65536
ZP = 8704
G_OFF = Y_OFF + 85 * 2 * ZP
OF_OFF = G_OFF + 8192
FLG_OFF = OF_OFF + 2621440
WS_USED = FLG_OFF + 320 * 128
XB = 102400
L_Y = 256
QLDS = 61440
RB0, RSL = 11264, 36864
LFB = 158720
WOL = 5120
AK1, AK2, AV, BK1, BK2, BV, OA1, OA2, ONES, PA, FA = range(152, 163)
VA, VT, BMM, BMT, CM, CT = 163, 164, 165, 166, 160, 161
PXB = 107520
def p3_addr(l):
    return f"""v_lshlrev_b32 v{VA}, 4, v{l}
    v_and_b32 v2, 7, v{l}
    v_bfe_u32 v4, v{l}, 3, 1
    v_lshrrev_b32 v3, 4, v{l}
    v_lshlrev_b32 v{VT}, 8, v3
    v_lshl_add_u32 v{VT}, v2, 4, v{VT}
    v_lshl_add_u32 v{VT}, v4, 3, v{VT}
    v_bfe_u32 v2, v{l}, 2, 2
    v_and_b32 v5, 3, v{l}
    v_mul_u32_u24 v5, 40, v5
    v_mul_u32_u24 v4, 40, v3
    v_add3_u32 v4, v4, v2, 16
    v_mul_u32_u24 v4, 160, v4
    v_add_u32 v{BMT}, v4, v5
    v_lshrrev_b32 v4, 1, v3
    v_mul_u32_u24 v4, 20, v4
    v_and_b32 v3, 1, v3
    v_lshl_add_u32 v4, v3, 2, v4
    v_add_u32 v4, v4, v2
    v_mul_u32_u24 v4, 160, v4
    v_add_u32 v{BMM}, v4, v5"""

def f32bits(x): return struct.unpack("<I", struct.pack("<f", x))[0]
QSCALE = f32bits((20 ** -0.5) * math.log2(math.e))
STAMP = opt("stamp", 0)
STAMP_OFF = 1 << 25
NST = 16

class A:
    def __init__(self): self.l = []; self.n = 0
    def __call__(self, s):
        for line in s.split("\n"):
            t = line.strip()
            if not t: continue
            self.l.append(t if t.endswith(":") or t.startswith(".") else "    " + t)
    def uid(self): self.n += 1; return self.n
    def text(self): return "\n".join(self.l) + "\n"

def vr(a, n): return f"v[{a}:{a+n-1}]" if n > 1 else f"v{a}"
def srd(lo, base, size):
    return f"s_mov_b32 s{lo}, s{base}\ns_mov_b32 s{lo+1}, s{base+1}\ns_mov_b32 s{lo+2}, {size}\ns_mov_b32 s{lo+3}, 0x20000"
OSC = " sc1" if opt("outsc1", 0) else ""
P1ST = opt("p1st", 0)
def st(i, p1=False):
    if not STAMP: return ""
    if P1ST and not p1 and 0 < i < 15 and i not in (4, 5): return ""
    if P1ST and not p1 and i in (4, 5): i += 8
    if p1 and not P1ST: return ""
    return f"{'s_memrealtime' if STAMP in (1, 3, 4) else 's_memtime'} s[{64+2*i}:{65+2*i}]"
def fin(): return "s_branch L_DONE" if STAMP else "s_endpgm"

X_P, WD_P, WQKV_P, WO_P, GATE_P, OUT_P, DBG_P, WS_P = 4, 8, 48, 50, 52, 54, 56, 58

def poll(a, vaddr, vdat, mask, target, sreg=60):
    u = a.uid()
    a(f"""
    s_mov_b64 exec, {mask}
    s_mov_b32 s{sreg}, 0
L_POLL{u}:
    buffer_load_dword v{vdat}, v{vaddr}, s[28:31], 0 offen sc1
    s_waitcnt vmcnt(0)
    v_cmp_gt_u32 vcc, {target}, v{vdat}
    s_cbranch_vccz L_POLLD{u}
    {'s_sleep 1' if opt('psleep', 0) else ''}
    s_add_u32 s{sreg}, s{sreg}, 1
    s_cmp_lt_u32 s{sreg}, 0x40000
    s_cbranch_scc1 L_POLL{u}
L_POLLD{u}:
    s_mov_b64 exec, -1
    """)

def poll4(a, vaddr, vdat, mask, soff="0", sreg=60, slp=None):
    u = a.uid()
    a(f"""
    s_mov_b64 exec, {mask}
    s_mov_b32 s{sreg}, 0
    s_branch L_POLLE{u}
L_POLL{u}:
    s_sleep {slp or opt("ps4", 2)}
L_POLLE{u}:
    buffer_load_dwordx4 {vr(vdat,4)}, v{vaddr}, s[28:31], {soff} offen sc1
    s_add_u32 s{sreg}, s{sreg}, 1
    s_waitcnt vmcnt(0)
    v_min3_u32 v{vdat}, v{vdat}, v{vdat+1}, v{vdat+2}
    s_cmp_lt_u32 s{sreg}, 0x40000
    v_min_u32 v{vdat}, v{vdat}, v{vdat+3}
    s_cbranch_scc0 L_POLLD{u}
    v_cmp_eq_u32 vcc, 0, v{vdat}
    s_cbranch_vccnz L_POLL{u}
L_POLLD{u}:
    s_mov_b64 exec, -1
    """)

def gen(a):
    label = NAME + "_kernel"
    a(f".p2align 8\n.globl {label}\n.type {label},@function\n{label}:")
    a(f"""
    s_cmp_ge_u32 s2, 256
    s_cbranch_scc1 L_END
    {st(0) + chr(10) + 's_waitcnt lgkmcnt(0)' if opt("st0first", 0) else ''}
    s_load_dwordx2 s[4:5], s[0:1], 0
    s_load_dwordx8 s[48:55], s[0:1], 48
    s_load_dwordx4 s[8:11], s[0:1], 24
    s_load_dwordx4 s[56:59], s[0:1], 80
    """)
    if STAMP:
        a("\n".join(f"s_mov_b32 s{64+j}, 0" for j in range(2, 2 * NST)) + "\n" + ("" if opt("st0first", 0) else st(0)))
    a(f"""
    v_lshrrev_b32 v1, 6, v0
    v_and_b32 v0, 63, v0
    s_and_b32 s17, s2, 7
    v_readfirstlane_b32 s16, v1
    s_lshr_b32 s18, s2, 3
    s_and_b32 s19, s18, 7
    s_lshr_b32 s22, s18, 3
    s_and_b32 s21, s17, 1
    s_lshl_b32 s23, s19, 1
    s_add_u32 s21, s21, s23
    s_lshr_b32 s20, s17, 1
    s_cmp_ge_u32 s16, 4
    s_cbranch_scc1 P1_NOTLOADER
    """)
    p1_loader(a)
    a(f"""
P1_NOTLOADER:
    s_lshl_b32 s63, s17, 2
    s_add_u32 s63, s63, s22
    s_mul_i32 s14, s63, {HG}
    s_sub_u32 s13, s16, 4
    s_lshl_b32 s23, s19, 3
    s_add_u32 s23, s23, s13
    s_mul_i32 s23, s23, 40960
    s_add_u32 s23, s23, {OF_OFF}
    s_lshl_b32 s6, s63, 9
    s_add_u32 s6, s6, s23
    s_lshl_b32 s7, s63, 7
    s_add_u32 s7, s7, s23
    s_add_u32 s7, s7, 16384
    s_lshl_b32 s15, s20, 2
    s_add_u32 s15, s15, s22
    s_lshl_b32 s15, s15, 4
    s_add_u32 s15, s15, s21
    s_lshl_b32 s15, s15, 5
    s_add_u32 s15, s15, s13
    s_lshl_b32 s15, s15, 2
    s_add_u32 s15, s15, {FLG_OFF}
    v_and_b32 v1, 31, v0
    v_lshrrev_b32 v2, 5, v0
    v_lshlrev_b32 v{AK1}, 4, v0
    v_lshrrev_b32 v3, 4, v1
    v_lshl_add_u32 v3, v3, 1, v2
    v_and_b32 v4, 15, v0
    v_lshl_add_u32 v3, v4, 2, v3
    v_lshlrev_b32 v{AK2}, 2, v3
    v_mul_u32_u24 v{AV}, 384, v2
    v_lshlrev_b32 v3, 6, v2
    v_cmp_gt_u32 vcc, 16, v1
    s_nop 1
    v_cndmask_b32 v{AV}, v3, v{AV}, vcc
    v_lshl_add_u32 v{AV}, v1, 4, v{AV}
    v_add_u32 v{BK1}, 15360, v{AK1}
    v_add_u32 v{BK2}, 15360, v{AK2}
    v_add_u32 v{BV}, 15360, v{AV}
    v_and_b32 v3, 27, v1
    v_cmp_eq_u32 vcc, 24, v3
    v_mov_b32 v3, 0x3f803f80
    v_bfe_u32 v{OA2}, v1, 3, 1
    v_cndmask_b32 v{ONES}, 0, v3, vcc
    v_mul_u32_u24 v{OA2}, 20480, v{OA2}
    v_and_b32 v3, 7, v1
    v_lshl_add_u32 v{OA2}, v3, 4, v{OA2}
    v_lshrrev_b32 v3, 4, v0
    v_lshl_add_u32 v{OA1}, v3, 7, v{OA2}
    s_lshl_b32 s23, s13, 2
    s_add_u32 s23, s23, {LFB}
    v_mov_b32 v{PA}, s23
    v_mov_b32 v{FA}, {LFB + 56}
    {p3_addr(0)}
    s_cmp_ge_u32 s16, 8
    s_cbranch_scc1 P1_EXTRA
    """)
    p1_compute(a)
    p1_extra(a)
    attention(a)
    helpers(a)
    a("L_DONE:")
    if STAMP == 4:
        i_, j_ = opt("ai", 0), opt("aj", 0)
        a(f"""s_waitcnt vmcnt(0)
        {st(NST-1)}
        s_waitcnt lgkmcnt(0)
        s_cmp_ge_u32 s16, {opt("aw", 4)}
        s_cbranch_scc1 L_END
        s_and_b32 s60, s2, {opt("am", 31)}
        s_cmp_lg_u32 s60, {opt("av", 5)}
        s_cbranch_scc1 L_END
        s_sub_u32 s60, s{64+2*j_}, s{64+2*i_}
        s_lshl_b32 s60, s60, 2
        s_min_u32 s60, s60, 100000
        {f's_mov_b32 s60, {opt("fix", 0)}' if opt("fix", 0) else ''}
L_AMP:
        s_memrealtime s[44:45]
        s_waitcnt lgkmcnt(0)
        s_sub_u32 s44, s44, s{64 if opt("fix", 0) else 64+2*(NST-1)}
        s_cmp_lt_u32 s44, s60
        s_cbranch_scc1 L_AMP
        """)
    elif STAMP == 3:
        r = f"s_waitcnt vmcnt(0)\n{st(NST-1)}\ns_mov_b64 exec, 1\n{srd(44, DBG_P, 256)}\ns_waitcnt lgkmcnt(0)\nv_mov_b32 v16, 0\n"
        r += "s_not_b32 s60, s64\nv_mov_b32 v0, s60\nbuffer_atomic_umax v0, v16, s[44:47], 0 offen offset:4 sc1\n"
        r += "s_cmp_eq_u32 s16, 0\ns_cbranch_scc1 L_D0\ns_cmp_eq_u32 s16, 4\ns_cbranch_scc0 L_END\n"
        for n, i in enumerate((2, 3, 4, 5, 7, 8, 9)): r += f"v_mov_b32 v{n+1}, s{64+2*i}\nbuffer_atomic_umax v{n+1}, v16, s[44:47], 0 offen offset:{8+4*n} sc1\n"
        r += "s_endpgm\nL_D0:\n"
        for n, i in enumerate((0, 1, 6, 8, 9, 10, 15)): r += f"v_mov_b32 v{n+1}, s{64+2*i}\nbuffer_atomic_umax v{n+1}, v16, s[44:47], 0 offen offset:{36+4*n} sc1\n"
        a(r)
    elif STAMP:
        r = f"s_waitcnt vmcnt(0)\n{st(NST-1)}\ns_mov_b64 exec, 1\ns_add_u32 s44, s{WS_P}, {STAMP_OFF}\ns_addc_u32 s45, s{WS_P+1}, 0\ns_mov_b32 s46, 262144\ns_mov_b32 s47, 0x20000\n"
        r += "s_lshl_b32 s60, s2, 4\ns_add_u32 s60, s60, s16\ns_lshl_b32 s60, s60, 6\ns_waitcnt lgkmcnt(0)\nv_mov_b32 v16, 0\n"
        if opt("xcc", 0): r += "s_getreg_b32 s66, hwreg(HW_REG_XCC_ID)\ns_add_u32 s66, s66, 100\n"
        for i in range(NST): r += f"v_mov_b32 v{i}, s{64+2*i}\n"
        for i in range(4): r += f"buffer_store_dwordx4 v[{4*i}:{4*i+3}], v16, s[44:47], s60 offen offset:{16*i}\n"
        a(r)
    a("L_END:\ns_endpgm\n.fill 256, 4, 0xbf810000\nL_CODE_END:")
    return f""".amdhsa_kernel {label}
  .amdhsa_next_free_vgpr 168
  .amdhsa_next_free_sgpr {100 if STAMP else 64}
  .amdhsa_accum_offset 168
  .amdhsa_group_segment_fixed_size 0
  .amdhsa_kernarg_size 96
  .amdhsa_user_sgpr_count 2
  .amdhsa_user_sgpr_kernarg_segment_ptr 1
  .amdhsa_system_sgpr_workgroup_id_x 1
.end_amdhsa_kernel
"""

def p1_loader(a):
    a(f"""
    s_setprio 3
    """)
    if opt("pf", 0):
        a(f"""
        v_lshlrev_b32 v20, 4, v0
        s_mul_i32 s23, s2, 10240
        s_and_b32 s24, s16, 1
        s_mul_i32 s24, s24, 5120
        s_add_u32 s23, s23, s24
        s_mul_i32 s25, s2, 3
        s_mov_b32 s31, 0x20000
        s_mov_b32 s35, 0x20000
        s_mov_b32 s34, {640*1280}
        s_waitcnt lgkmcnt(0)
        s_mov_b32 s30, {2048*1280}
        s_cmp_lt_u32 s16, 2
        s_cselect_b32 s28, s{X_P}, s{WQKV_P}
        s_cselect_b32 s29, s{X_P+1}, s{WQKV_P+1}
        s_cselect_b32 s30, s30, {640*3840}
        s_cselect_b32 s32, s8, s10
        s_cselect_b32 s33, s9, s11
        buffer_load_dwordx4 v[24:27], v20, s[28:31], s23 offen
        buffer_load_dwordx4 v[28:31], v20, s[28:31], s23 offen offset:1024
        buffer_load_dwordx4 v[32:35], v20, s[28:31], s23 offen offset:2048
        buffer_load_dwordx4 v[36:39], v20, s[28:31], s23 offen offset:3072
        s_add_u32 s23, s23, 4096
        buffer_load_dwordx4 v[40:43], v20, s[28:31], s23 offen
        s_lshr_b32 s24, s24, 11
        s_add_u32 s25, s25, s24
        s_mul_i32 s25, s25, 1280
        s_mov_b32 exec_hi, 0xff
        buffer_load_dwordx4 v[44:47], v20, s[32:35], s25 offen
        s_bitcmp1_b32 s16, 0
        s_cbranch_scc1 P1_PF1
        buffer_load_dwordx4 v[48:51], v20, s[32:35], s25 offen offset:1280
P1_PF1:
        s_mov_b32 exec_hi, -1
        """)
    a(f"""
    v_lshrrev_b32 v2, 3, v0
    v_and_b32 v3, 7, v0
    v_lshrrev_b32 v4, 4, v0
    v_xor_b32 v3, v3, v4
    v_lshlrev_b32 v3, 4, v3
    v_xor_b32 v4, 64, v3
    s_lshl_b32 s23, s21, 5
    s_lshr_b32 s24, s16, 1
    s_lshl_b32 s24, s24, 4
    s_add_u32 s23, s23, s24
    v_add_u32 v9, s23, v2
    s_bitcmp1_b32 s16, 0
    s_cselect_b32 s23, -1, 1
    s_cselect_b32 s24, 0x400, 0
    s_cselect_b32 s25, -8, 8
    v_mul_lo_u32 v10, v9, s23
    s_sub_u32 s27, 0x800, s24
    v_add_u32 v5, s24, v10
    v_sub_u32 v7, s27, v10
    v_add_u32 v6, s25, v5
    v_subrev_u32 v8, s25, v7
    v_cmp_eq_u32 vcc, 0, v9
    s_add_u32 s24, s24, 0x200
    v_mov_b32 v9, s24
    s_cmp_lg_u32 s22, 2
    v_cndmask_b32 v7, v7, v9, vcc
    s_cbranch_scc1 P1_LD_NV
    v_swap_b32 v6, v7
P1_LD_NV:
    s_lshl_b32 s26, s22, 2
    s_add_u32 s26, s26, s20
    s_and_b32 s27, s20, 1
    s_movk_i32 s25, 3840
    s_cmp_eq_u32 s22, 3
    s_cselect_b32 s25, 1280, s25
    s_cselect_b32 s26, s27, s26
    s_mul_i32 s26, s26, 320
    s_movk_i32 s27, 1280
    v_mad_u32_u24 v10, v5, s27, v3
    v_mad_u32_u24 v11, v6, s27, v4
    v_mad_u32_u24 v12, v7, s27, v3
    v_mad_u32_u24 v13, v8, s27, v4
    s_lshl_b32 s27, s16, 4
    s_mul_i32 s27, s27, s25
    s_add_u32 s26, s26, s27
    s_sub_u32 s27, s25, 320
    """)
    for i in range(5):
        a(f"""
        v_add_u32 v5, {64*i}, v0
        v_mul_u32_u24 v6, 3277, v5
        v_lshrrev_b32 v6, 16, v6
        v_lshrrev_b32 v7, 2, v6
        v_and_b32 v7, 2, v7
        v_xor_b32 v5, v5, v7
        v_lshl_add_u32 v5, v5, 4, s26
        v_mad_u32_u24 v{14+i}, v6, s27, v5
        """)
    sg = opt("stag1", 5)
    if sg == 1:
        a("s_lshl_b32 s36, s19, 3\ns_lshl_b32 s37, s22, 4\ns_add_u32 s36, s36, s37\ns_add_u32 s36, s36, s17\ns_and_b32 s36, s36, 63\ns_mul_i32 s36, s36, 10\ns_lshr_b32 s36, s36, 6")
    elif sg == 2:
        a("s_add_u32 s36, s19, s22\ns_lshl_b32 s36, s36, 4\ns_add_u32 s36, s36, s17\ns_add_u32 s36, s36, s17\ns_and_b32 s36, s36, 63\ns_mul_i32 s36, s36, 10\ns_lshr_b32 s36, s36, 6")
    elif sg == 3:
        a("s_add_u32 s36, s19, s22\ns_lshl_b32 s36, s36, 5\ns_lshl_b32 s37, s17, 2\ns_add_u32 s36, s36, s37\ns_and_b32 s36, s36, 63\ns_mul_i32 s36, s36, 10\ns_lshr_b32 s36, s36, 6")
    elif sg >= 5:
        tsh = {5: 0, 6: 1, 7: 0, 8: 0, 9: 0}[sg]
        a(f"""
        s_lshr_b32 s36, s17, 1
        s_xor_b32 s36, s36, s17
        s_and_b32 s36, s36, 1
        {'s_min_u32 s37, s22, 2' if sg == 9 else f's_lshr_b32 s37, s22, {tsh}'}
        s_add_u32 s37, s37, s19
        s_lshr_b32 s46, s17, 2
        s_lshl_b32 s46, s46, 1
        s_add_u32 s37, s37, s46
        s_mul_i32 s46, s37, 52
        s_lshr_b32 s46, s46, 8
        s_mul_i32 s46, s46, 5
        s_sub_u32 s37, s37, s46
        s_lshl_b32 s37, s37, 2
        s_mov_b32 s46, 0x42086420
        s_mov_b32 s47, 0x6
        s_lshr_b64 s[46:47], s[46:47], s37
        s_and_b32 s46, s46, 0xfffff
        {'s_or_b32 s47, s46, 0x11111' + chr(10) + 's_lshl_b32 s37, s47, 20' + chr(10) + 's_or_b32 s46, s46, s37' + chr(10) + 's_lshr_b32 s47, s47, 12' if sg == 8 else 's_or_b32 s46, s46, 0x53100000' + chr(10) + 's_mov_b32 s47, 0x97'}
        s_mul_i32 s37, s36, 0x11111111
        s_xor_b32 s46, s46, s37
        s_xor_b32 s47, s47, s37
        """)
        if sg == 7:
            a("s_lshr_b32 s37, s47, 4\ns_and_b32 s37, s37, 15\ns_lshl_b64 s[46:47], s[46:47], 4\ns_or_b32 s46, s46, s37")
        a("s_and_b32 s36, s46, 15")
    else:
        a("s_mov_b32 s36, 0")
    a(f"""
    s_lshl_b32 s38, s16, 12
    s_add_u32 s38, s38, {RB0}
    s_mul_i32 s39, s16, 5120
    s_add_u32 s39, s39, {RB0 + 16384}
    s_mov_b32 s40, 0
    s_mul_i32 s34, s25, 640
    s_lshl_b32 s25, s25, 6
    s_mov_b32 s35, 0x20000
    s_waitcnt lgkmcnt(0)
    {srd(28, X_P, 2048*1280)}
    s_cmp_lt_u32 s20, 2
    s_cselect_b32 s32, s8, s10
    s_cselect_b32 s33, s9, s11
    s_cmp_eq_u32 s22, 3
    s_cselect_b32 s32, s32, s{WQKV_P}
    s_cselect_b32 s33, s33, s{WQKV_P+1}
    {st(1)}
    """)
    if opt("dftdelay", 0):
        a(f"""s_cmp_lg_u32 s22, 3
        s_cbranch_scc1 P1_LD_LOOP
        s_memrealtime s[42:43]
        s_waitcnt lgkmcnt(0)
        s_add_u32 s42, s42, {opt("dftdelay", 0)}
P1_DLY:
        s_memrealtime s[44:45]
        s_waitcnt lgkmcnt(0)
        s_cmp_lt_u32 s44, s42
        s_cbranch_scc1 P1_DLY
        """)
    a(f"""
P1_LD_LOOP:
    s_lshl_b32 s41, s36, 7
    s_mul_i32 s42, s36, s25
    s_add_u32 s43, s40, 2
    s_and_b32 s43, s43, 3
    s_mul_i32 s43, s43, {RSL}
    s_add_u32 s44, s43, s38
    s_add_u32 s45, s43, s39
    """)
    for i in range(4):
        a(f"s_add_u32 m0, s44, {1024*i}\ns_nop 0\nbuffer_load_dwordx4 v{10+i}, s[28:31], s41 offen lds")
    for i in range(5):
        a(f"s_add_u32 m0, s45, {1024*i}\ns_nop 0\nbuffer_load_dwordx4 v{14+i}, s[32:35], s42 offen lds")
    if opt("noload", 0): a("s_cmp_ge_u32 s40, 3\ns_cselect_b32 s30, 0, s30\ns_cselect_b32 s34, 0, s34")
    a(f"""
    {'s_lshr_b64 s[46:47], s[46:47], 4' + chr(10) + 's_and_b32 s36, s46, 15' if sg >= 5 else 's_add_u32 s36, s36, 1' + chr(10) + 's_cmp_eq_u32 s36, 10' + chr(10) + 's_cselect_b32 s36, 0, s36'}
    s_add_u32 s40, s40, 1
    s_cmp_eq_u32 s40, 1
    s_cbranch_scc1 P1_LD_LOOP
    s_waitcnt vmcnt(9)
    s_barrier
    s_cmp_lt_u32 s40, 10
    s_cbranch_scc1 P1_LD_LOOP
    s_waitcnt vmcnt(0)
    s_barrier
    s_branch HELPER
    """)

def p1_compute(a):
    X = 80; W = [96, 116]; XA = 136; WA = 137; CX = 142; CW = 144; PC = 149; L = 150; TT = 96
    def acc(b, T): return 20 * b + 4 * T
    a(f"""
    s_sub_u32 s61, s16, 4
    s_and_b32 s36, s61, 1
    s_lshr_b32 s37, s61, 1
    v_mov_b32 v{L}, v0
    v_and_b32 v1, 15, v0
    v_lshrrev_b32 v2, 4, v0
    v_lshrrev_b32 v3, 1, v1
    v_xor_b32 v3, v3, v2
    v_lshlrev_b32 v3, 4, v3
    v_lshl_add_u32 v3, v1, 7, v3
    s_lshl_b32 s23, s36, 13
    s_add_u32 s23, s23, {RB0}
    v_add_u32 v{XA}, s23, v3
    v_bfe_u32 v3, v0, 2, 2
    v_lshl_add_u32 v3, v2, 3, v3
    v_mul_u32_u24 v3, 320, v3
    v_add_u32 v3, {RB0 + 16384}, v3
    v_and_b32 v4, 16, v0
    v_lshlrev_b32 v4, 1, v4
    v_and_b32 v5, 3, v0
    s_mul_i32 s23, s37, 160
    v_lshl_add_u32 v6, v5, 3, s23
    """)
    for T in range(4):
        a(f"v_xor_b32 v7, v6, v4\nv_add_u32 v{WA+T}, v7, v3\nv_add_u32 v6, 40, v6")
    a(f"""
    v_mul_u32_u24 v6, 40, v5
    v_add3_u32 v6, v6, s23, 32
    v_xor_b32 v7, v6, v4
    v_add_u32 v{WA+4}, v7, v3
    v_mov_b32 v{PC}, 0xbf803f80
    s_lshl_b32 s26, s22, 2
    s_add_u32 s26, s26, s20
    s_lshl_b32 s26, s26, 1
    s_add_u32 s26, s26, s37
    s_cmp_eq_u32 s26, 28
    s_cselect_b32 s24, 0x10001, 0
    s_mov_b32 s25, s24
    s_cmp_eq_u32 s22, 3
    s_cselect_b32 s43, 10, 8
    s_mov_b32 s40, 0
    s_mov_b32 s42, {2 * RSL}
    """)
    for r in range(96): a(f"v_mov_b32 v{r}, 0")
    for r in range(20): a(f"v_mov_b32 v{W[1]+r}, 0")
    a(f"v_add_u32 v{CX}, s42, v{XA}")
    for T in range(5): a(f"v_add_u32 v{CW+T}, s42, v{WA+T}")
    a(f"s_waitcnt lgkmcnt(0)\n{srd(28, WS_P, WS_USED)}")
    a("s_cmp_ge_u32 s22, 2\ns_cbranch_scc1 P1_PRE_V")
    def mf(b, T, x, w, qk):
        d = vr(acc(b, T), 4)
        return f"v_mfma_f32_16x16x32_bf16 {d}, {vr(w,4)}, {vr(x,4)}, {d}" if qk else f"v_mfma_f32_16x16x32_bf16 {d}, {vr(x,4)}, {vr(w,4)}, {d}"
    def rdw(d, T, step): return [f"ds_read_b64_tr_b16 {vr(d+2*j,2)}, v{CW+T} offset:{(step // 2) * RSL + (step % 2) * 10240 + 1280 * j}" for j in range(2)]
    def rdx(d, b, step): return f"ds_read_b128 {vr(d,4)}, v{CX + step % 2} offset:{(step // 2) * RSL + 2048 * b}"
    TO = (1, 2, 3, 4, 0)
    def group(step, qk, reads=True):
        cur = W[1 - step]; nxt = W[step]
        rq = []
        for T in TO: rq += rdw(nxt + 4 * T, T, step)
        fill = []
        if step == 1:
            fill = ["s_add_u32 s40, s40, 1", "s_add_u32 s41, s40, 2", "s_and_b32 s41, s41, 3", f"s_mul_i32 s42, s41, {RSL}", f"v_add_u32 v{CX}, s42, v{XA}"] + [f"v_add_u32 v{CW+T}, s42, v{WA+T}" for T in range(5)]
        issued = 0
        for b in range(4):
            if reads:
                allow = [2, 15, issued + 1, issued][b]
                if b != 1: a(f"s_waitcnt lgkmcnt({min(15, allow)})")
            elif b == 0: a("s_waitcnt lgkmcnt(0)")
            for n, T in enumerate(TO):
                a(mf(b, T, X + 4 * b, cur + 4 * T, qk))
                if b == 0 and n < 2 and not qk:
                    for j in range(2): a(f"v_cndmask_b32 v{cur+2*n+j}, v{cur+2*n+j}, v{PC}, s[24:25]")
                if not reads: continue
                if step == 0 and b == 0:
                    if n == 0: a(f"v_xor_b32 v{CX+1}, 64, v{CX}")
                    if n == 1: a("s_barrier")
                    if n < 2: continue
                if n == 4: a(rdx(X + 4 * b, b, step)); issued += 1
                elif rq: a(rq.pop(0)); issued += 1
                elif fill:
                    a(fill.pop(0))
                    if fill: a(fill.pop(0))
        assert not reads or (not rq and not fill), (rq, fill)

    def tail(qk, epi):
        seq = [(b, T, ("x0", b), ("w0", T)) for b in range(4) for T in TO]
        marks = {}
        for ph, Ts in enumerate(((0, 1), (2, 3), (4,))):
            for step in range(4):
                for b in range(4):
                    for T in Ts: seq.append((b, T, ("x", ph, step, b), ("w", step, T)))
            marks[len(seq) - 1] = ph
        last = {}
        for n, (_, _, x, w) in enumerate(seq): last[x] = n; last[w] = n
        loc = {("x0", b): X + 4 * b for b in range(4)}; loc.update({("w0", T): W[1] + 4 * T for T in range(5)})
        free = [W[0] + 4 * k for k in range(5)]
        order = []
        for _, _, x, w in seq:
            for f in (w, x):
                if f not in loc and f not in order: order.append(f)
        done_at = {}; nrd = 0; waited = 0; pend = []; fill = []; hold = 0
        a(f"v_xor_b32 v{CX+1}, 64, v{CX}\ns_waitcnt lgkmcnt(0)\ns_barrier")
        bar2 = [True]
        def take():
            f = order.pop(0); loc[f] = free.pop(0)
            if bar2 and (f[1] if f[0] == "w" else f[2]) >= 2: a("s_barrier"); bar2.pop()
            p_ = rdw(loc[f], f[2], f[1]) if f[0] == "w" else [rdx(loc[f], f[3], f[2])]
            done_at[f] = nrd + len(p_)
            return p_
        for n, (b, T, x, w) in enumerate(seq):
            while any(f not in loc or (f in done_at and done_at[f] > nrd) for f in (x, w)):
                if not pend: pend = take()
                a(pend.pop(0)); nrd += 1
            need = max(done_at.get(x, 0), done_at.get(w, 0))
            if need > waited:
                waited = max(need, nrd - opt("tw", 6)); a(f"s_waitcnt lgkmcnt({nrd - waited})")
            a(mf(b, T, loc[x], loc[w], qk))
            for f in (x, w):
                if last[f] == n: free.append(loc[f])
            if not pend and order and free: pend = take()
            if pend: a(pend.pop(0)); nrd += 1
            if hold: hold -= 1
            else:
                for _ in range(2):
                    if fill: a(fill.pop(0))
            if n in marks and marks[n] < 2:
                for f in fill: a(f)
                fill = epi(marks[n]); hold = 4
        for f in fill: a(f)
        a(st(3)); a("s_nop 4")
        for f in epi(2): a(f)

    EA, EB = 167, 151
    def cv(d, r): return [f"v_cvt_pk_bf16_f32 v{d}, v{r}, v{r+1}", f"v_cvt_pk_bf16_f32 v{d+1}, v{r+2}, v{r+3}"]
    def epi_qk(ph):
        if ph < 0:
            return f"""s_mov_b32 s35, {HG}
            s_movk_i32 s38, 2560
            s_cmp_eq_u32 s22, 0
            s_cselect_b32 s35, {HQ}, s35
            s_cselect_b32 s27, {Q_OFF}, {KV_OFF}
            s_cselect_b32 s38, 1280, s38
            s_lshl_b32 s26, s20, 1
            s_add_u32 s26, s26, s37
            s_lshl_b32 s26, s26, 2
            s_mul_i32 s26, s26, s35
            s_add_u32 s26, s26, s27
            s_lshl_b32 s23, s21, 1
            s_add_u32 s23, s23, s36
            s_lshl_b32 s23, s23, 1
            s_mul_i32 s23, s23, s38
            s_add_u32 s26, s26, s23
            s_add_u32 s27, s26, s38
            v_lshrrev_b32 v{EA}, 4, v{L}
            v_mul_lo_u32 v{EA}, v{EA}, s35
            v_and_b32 v{TT}, 15, v{L}
            v_lshl_add_u32 v{EA}, v{TT}, 4, v{EA}
            v_lshlrev_b32 v{EB}, 4, v{L}
            s_add_u32 s44, s26, s35
            s_add_u32 s45, s27, s35
            s_add_u32 s46, s44, s35
            s_add_u32 s47, s45, s35
            s_add_u32 s32, s46, s35
            s_add_u32 s33, s47, s35""".split("\n")
        sc = lambda r: []
        o = []
        if ph < 2:
            for jj in range(2):
                Ts = (2 * ph, 2 * ph + 1)
                for T in Ts: o += cv(acc(2 * jj, T), acc(2 * jj, T)) + cv(acc(2 * jj, T) + 2, acc(2 * jj + 1, T))
                for T in Ts:
                    r0 = acc(2 * jj, T)
                    o += [f"v_permlane16_swap_b32 v{r0}, v{r0+2}", f"v_permlane16_swap_b32 v{r0+1}, v{r0+3}"]
                for T in Ts:
                    o.append(f"buffer_store_dwordx4 {vr(acc(2 * jj, T),4)}, v{EB}, s[28:31], s{(26, 44, 46, 32)[T] + jj} offen sc1")
        else:
            for jj in range(2):
                r0, r1 = acc(2 * jj, 4), acc(2 * jj + 1, 4)
                o += sc(r0) + sc(r1) + cv(r0, r0) + cv(r0 + 2, r1)
                o.append(f"buffer_store_dwordx4 {vr(r0,4)}, v{EA}, s[28:31], s{26 + jj} offen offset:1024 sc1")
        return o
    def epi_v(ph):
        if ph < 0:
            return f"""s_lshl_b32 s26, s20, 1
            s_add_u32 s26, s26, s37
            s_mul_i32 s26, s26, {4*HG}
            s_lshl_b32 s23, s21, 1
            s_add_u32 s23, s23, s36
            s_mul_i32 s23, s23, 5120
            s_add_u32 s26, s26, s23
            s_add_u32 s26, s26, {KV_OFF + 1280}
            s_add_u32 s44, s26, {HG}
            s_add_u32 s45, s26, {2*HG}
            s_add_u32 s46, s26, {3*HG}
            s_mov_b32 s35, {HG}
            v_lshrrev_b32 v{EA}, 5, v{L}
            v_mul_u32_u24 v{EA}, 640, v{EA}
            v_bfe_u32 v{TT}, v{L}, 4, 1
            v_lshl_add_u32 v{EB}, v{TT}, 6, v{EA}
            v_mul_u32_u24 v{TT}, 384, v{TT}
            v_add_u32 v{EA}, v{EA}, v{TT}
            v_and_b32 v{TT}, 15, v{L}
            v_lshl_add_u32 v{EA}, v{TT}, 4, v{EA}
            v_and_b32 v{TT}, 3, v{L}
            v_lshl_add_u32 v{EB}, v{TT}, 4, v{EB}
            v_bfe_u32 v{TT}, v{L}, 2, 2
            v_mul_lo_u32 v{TT}, v{TT}, s35
            v_add_u32 v{EB}, v{EB}, v{TT}""".split("\n")
        o = []
        for jj in range(2):
            for T in ((0, 1), (2, 3), (4,))[ph]:
                r0, r1 = acc(2 * jj, T), acc(2 * jj + 1, T)
                o += cv(r0, r0) + cv(r0 + 2, r1)
                if T < 4: o.append(f"buffer_store_dwordx4 {vr(r0,4)}, v{EA}, s[28:31], s{(26, 44, 45, 46)[T]} offen offset:{2560 * jj} sc1")
                else: o.append(f"buffer_store_dwordx4 {vr(r0,4)}, v{EB}, s[28:31], s26 offen offset:{2560 * jj + 256} sc1")
        return o

    for qk, lab in ((True, "QK"), (False, "V")):
        a(f"P1_PRE_{lab}:")
        for f in (epi_qk if qk else epi_v)(-1): a(f)
        a(f"P1_LOOP_{lab}:")
        group(0, qk)
        if STAMP: a(f"s_cmp_lg_u32 s40, 0\ns_cbranch_scc1 P1_ST_{lab}\n{st(2)}\nP1_ST_{lab}:\ns_cmp_lg_u32 s40, 5\ns_cbranch_scc1 P1_SU_{lab}\n{st(1)}\nP1_SU_{lab}:")
        group(1, qk)
        a(f"s_cmp_lt_u32 s40, s43\ns_cbranch_scc1 P1_LOOP_{lab}")
        if not qk: a("s_cmp_eq_u32 s22, 3\ns_cbranch_scc1 P1_EPI_DFT")
        tail(qk, epi_qk if qk else epi_v)
        a("s_branch P1_DONE")
    a("P1_EPI_DFT:")
    group(0, False, reads=False)
    TAU, TAU0, E0 = 80, 81, 140
    a(f"""
    {st(3)}
    s_cmp_lt_u32 s20, 2
    s_cselect_b32 s38, 1.0, -1.0
    v_mov_b32 v{TAU}, s38
    v_cndmask_b32 v{TAU0}, v{TAU}, 1.0, s[24:25]
    s_lshl_b32 s26, s20, 1
    s_add_u32 s26, s26, s37
    s_mul_i32 s26, s26, 80
    v_and_b32 v88, 15, v{L}
    v_add_u32 v{E0}, s26, v88
    v_add_u32 v{E0+1}, 20, v{E0}
    v_add_u32 v{E0+2}, 40, v{E0}
    v_add_u32 v{E0+3}, 60, v{E0}
    v_and_b32 v89, 12, v{L}
    v_lshl_add_u32 v{E0+4}, v89, 2, v{E0}
    v_add_u32 v{E0+4}, 16, v{E0+4}
    s_lshl_b32 s23, s21, 1
    s_add_u32 s23, s23, s36
    s_cmp_lg_u32 s23, 0
    s_cbranch_scc1 P1_EPI_DFT2
    s_mov_b64 exec, 0xffff
    s_mov_b32 s27, {X512_OFF}
    """)
    for T in range(5):
        a(f"v_fma_f32 v{96+T}, v{acc(3,T)}, v{TAU0 if T == 0 else TAU}, v{acc(1,T)}")
        a(f"v_lshlrev_b32 v{104+T}, 2, v{E0+T}\nv_mov_b32 v{acc(1,T)}, 0\nv_mov_b32 v{acc(3,T)}, 0")
        a(f"buffer_store_dword v{96+T}, v{104+T}, s[28:31], s27 offen sc1")
    a(f"""
    s_mov_b64 exec, -1
P1_EPI_DFT2:
    s_lshl_b32 s26, s23, 9
    s_add_u32 s26, s26, {FE_OFF}
    s_mov_b32 s27, {FO_DELTA}
    v_bfe_u32 v88, v{L}, 4, 1
    v_mul_lo_u32 v88, v88, s27
    v_lshrrev_b32 v89, 5, v{L}
    v_lshl_add_u32 v88, v89, 8, v88
    """)
    for T in range(5):
        tau = TAU0 if T == 0 else TAU
        a0, a1, a2, a3 = (acc(b, T) for b in range(4))
        for q in range(4):
            a(f"v_fma_f32 v{a0+q}, v{a1+q}, v{tau}, v{a0+q}\nv_fma_f32 v{a3+q}, v{a2+q}, v{tau}, v{a3+q}")
        for q in range(4):
            a(f"v_add_f32 v{a1+q}, v{a0+q}, v{a3+q}\nv_sub_f32 v{a2+q}, v{a0+q}, v{a3+q}")
        a0 = 120 + 4 * T
        for f in cv(a0, a1) + cv(a0 + 2, a2): a(f)
        a(f"""
        v_lshrrev_b32 v89, 4, v{E0+T}
        v_lshl_add_u32 v89, v89, 14, v88
        v_and_b32 v{E0+T}, 15, v{E0+T}
        v_lshl_add_u32 v{E0+T}, v{E0+T}, 4, v89
        v_permlane16_swap_b32 v{a0}, v{a0+2}
        v_permlane16_swap_b32 v{a0+1}, v{a0+3}
        """)
        a(f"buffer_store_dwordx4 {vr(a0,4)}, v{E0+T}, s[28:31], s26 offen sc1")
    a(f"""
P1_DONE:
    {st(14)}
    s_mov_b32 s34, 1
    s_branch ATT
    """)

def p1_extra(a):
    T0 = 40
    a(f"""
P1_EXTRA:
    s_sub_u32 s61, s16, 8
    """)
    if opt("cwarm", 1):
        a(f"""
        s_cmp_lg_u32 s16, 10
        s_cbranch_scc1 P1_NOCW
        s_lshl_b32 s23, s18, 10
        s_cmp_ge_u32 s23, L_CODE_END - {NAME}_kernel - 1023
        s_cbranch_scc1 P1_NOCW
        s_getpc_b64 s[44:45]
L_PC:
        s_sub_u32 s44, s44, L_PC - {NAME}_kernel
        s_subb_u32 s45, s45, 0
        v_lshl_add_u32 v40, v0, 4, s23
        global_load_dwordx4 v[44:47], v40, s[44:45]
P1_NOCW:
        """)
    a(f"""
    v_lshrrev_b32 v37, 4, v0
    v_and_b32 v38, 15, v0
    v_lshlrev_b32 v39, 4, v0
    v_mov_b32 v36, v0
    s_waitcnt lgkmcnt(0)
    {srd(28, WS_P, WS_USED)}
    {srd(32, DBG_P, 256)}
    s_cmp_lg_u32 s61, 0
    s_cbranch_scc1 P1_EX_A
    v_mov_b32 v1, 0
    v_lshlrev_b32 v2, 2, v0
    v_add_u32 v2, {LFB}, v2
    ds_write_b32 v2, v1
    s_waitcnt lgkmcnt(0)
    s_cmp_lt_u32 s2, 248
    s_cbranch_scc1 P1_EX_WAITRDY
    v_mov_b32 v4, 0
    v_mov_b32 v5, 0
    v_mov_b32 v6, 0
    v_mov_b32 v7, 0
    s_lshl_b32 s23, s17, 12
    s_add_u32 s23, s23, {FLG_OFF}
    buffer_store_dwordx4 v[4:7], v39, s[28:31], s23 offen sc1
    buffer_store_dwordx4 v[4:7], v39, s[28:31], s23 offen offset:1024 sc1
    buffer_store_dwordx4 v[4:7], v39, s[28:31], s23 offen offset:2048 sc1
    buffer_store_dwordx4 v[4:7], v39, s[28:31], s23 offen offset:3072 sc1
P1_EX_WAITRDY:
P1_EX_A:
    s_lshl_b32 s23, s2, 2
    s_add_u32 s23, s23, s61
    s_mov_b32 s40, 0
P1_TBL:
    s_lshr_b32 s24, s23, 5
    s_and_b32 s25, s23, 30
    s_and_b32 s26, s24, 1
    s_lshr_b32 s27, s24, 1
    s_lshl_b32 s27, s27, 6
    s_add_u32 s27, s27, s26
    s_and_b32 s26, s23, 1
    s_lshl_b32 s26, s26, 5
    s_add_u32 s27, s27, s26
    v_lshl_add_u32 v{T0}, v38, 1, s27
    s_lshl_b32 s25, s25, 4
    v_lshl_add_u32 v{T0+1}, v37, 3, s25
    v_mul_u32_u24 v{T0+1}, v{T0}, v{T0+1}
    v_and_b32 v{T0+1}, 0x7ff, v{T0+1}
    v_cvt_f32_u32 v{T0}, v{T0}
    v_cvt_f32_u32 v{T0+1}, v{T0+1}
    v_mul_f32 v{T0}, 0x3a000000, v{T0}
    v_mul_f32 v0, 0x3a000000, v{T0+1}
    """)
    for u in range(1, 8): a(f"v_add_f32 v{u}, v{u-1}, v{T0}")
    for u in range(1, 8): a(f"v_fract_f32 v{u}, v{u}")
    for u in range(8): a(f"v_cos_f32 v{8+u}, v{u}")
    for u in range(8): a(f"v_sin_f32 v{16+u}, v{u}")
    for j in range(4): a(f"v_cvt_pk_bf16_f32 v{24+j}, v{8+2*j}, v{9+2*j}")
    for j in range(4): a(f"v_cvt_pk_bf16_f32 v{28+j}, v{16+2*j}, v{17+2*j}")
    NB0 = opt("tblbar", 2)
    a(f"""
    s_cmp_lg_u32 s40, 0
    s_cbranch_scc1 P1_TBL_ST
    s_barrier
    {st(1, True)}
    s_cmp_lg_u32 s61, 0
    s_cbranch_scc1 P1_EX_NR
    s_cmp_lt_u32 s2, 248
    s_cbranch_scc1 P1_EX_NR
    v_mov_b32 v32, 1
    v_mov_b32 v33, 0
    s_lshl_b32 s24, s17, 2
    s_waitcnt vmcnt(0)
    s_mov_b64 exec, 1
    buffer_store_dword v32, v33, s[32:35], s24 offen sc1
    s_mov_b64 exec, -1
P1_EX_NR:
    """ + "".join(f"s_barrier\n{st(1 + b_, True)}\n" for b_ in range(1, NB0)) + f"""
    s_mov_b32 s40, 1
P1_TBL_ST:
    s_lshl_b32 s24, s23, 11
    s_add_u32 s24, s24, {TB_OFF}
    buffer_store_dwordx4 v[24:27], v39, s[28:31], s24 offen sc1
    buffer_store_dwordx4 v[28:31], v39, s[28:31], s24 offen offset:1024 sc1
    s_add_u32 s23, s23, 1024
    s_cmp_lt_u32 s23, 1056
    s_cbranch_scc1 P1_TBL
    """)
    nb = NB0
    assert nb <= 6
    a("".join(f"s_barrier\n{st(1 + b_, True)}\n" for b_ in range(nb, 6)))
    u = a.uid()
    a(f"""
    v_and_b32 v1, 7, v36
    v_lshlrev_b32 v1, 2, v1
    v_mov_b32 v2, 1
    s_mov_b32 s60, 0
    s_cmp_lg_u32 s61, 0
    s_cbranch_scc1 P1_EX_C
    buffer_load_dword v2, v1, s[32:35], 0 offen sc1
P1_EX_C:
    s_barrier
    {st(7, True)}
    s_barrier
    {st(8, True)}
L_RDY{u}:
    s_waitcnt vmcnt(0)
    v_cmp_eq_u32 vcc, 0, v2
    s_cbranch_vccz P1_EX_B
    s_sleep 1
    buffer_load_dword v2, v1, s[32:35], 0 offen sc1
    s_add_u32 s60, s60, 1
    s_cmp_lt_u32 s60, 0x40000
    s_cbranch_scc1 L_RDY{u}
P1_EX_B:
    s_waitcnt vmcnt(0)
    s_barrier
    {st(9, True)}
    s_barrier
    {st(10, True)}
    s_mov_b32 s34, 0
    """)

def attention(a):
    O = 0; S = [16, 32]; P = 48; Q1 = 56; Q2 = 60; K2 = 62; K1 = 64; V1 = 68; V2 = [72, 76]; T = 80
    a(f"""
ATT:
    s_setprio 3
    s_cmp_lt_u32 s13, 4
    s_cselect_b32 s32, {opt("o1", 4)}, {opt("y1", 4)}
    s_cselect_b32 s33, {opt("o2", 7)}, {opt("y2", 7)}
    s_movk_i32 s35, 0x106
    s_bitset1_b32 s35, s32
    s_bitset1_b32 s35, s33
    s_mov_b32 s24, 0xfffff
    s_mov_b32 s25, 0xfffff
    s_mul_i32 s27, s13, 1280
    v_mov_b32 v{Q2+1}, 0
    v_mov_b32 v{K2+1}, 0x3f803f80
    v_add_u32 v{T}, s27, v{AK1}
    v_add_u32 v{T+1}, s27, v{AK2}
    v_mov_b32 v{T+2}, 1
    """)
    for r in range(12): a(f"v_mov_b32 v{V1+r}, v{ONES}")
    for r in range(16): a(f"v_mov_b32 v{O+r}, 0")
    for r in range(4): a(f"v_mov_b32 v{P+4+r}, 0\nv_mov_b32 v{P+r}, -1")
    def qk1(d): return f"v_mfma_f32_32x32x16_bf16 {vr(d,16)}, {vr(K1,4)}, {vr(Q1,4)}, 0"
    def qk2(d): return f"v_mfma_f32_32x32x8_bf16 {vr(d,16)}, {vr(K2,2)}, {vr(Q2,2)}, {vr(d,16)}"
    def pv(v, p): return f"v_mfma_f32_32x32x16_bf16 {vr(O,16)}, {vr(v,4)}, {vr(p,4)}, {vr(O,16)}"
    def of(t): return (t - 6 if t in (6, 7) else t) * 2560
    def rdk1(t): return f"ds_read_b128 {vr(K1,4)}, v{BK1 if t in (6, 7) else AK1} offset:{of(t)}"
    def rdk2(t): return f"ds_read_b32 v{K2}, v{BK2 if t in (6, 7) else AK2} offset:{of(t)+1024}"
    def rdv(t, v2):
        b = BV if t in (6, 7) else AV
        return f"s_mov_b64 exec, s[24:25]\nds_read_b128 {vr(V1,4)}, v{b} offset:{of(t)+1280}\nds_read_b128 {vr(v2,4)}, v{b} offset:{of(t)+1920}\ns_mov_b64 exec, -1"
    def maxtree(s, m, first):
        if first:
            a(f"v_max3_f32 v{m}, v{s}, v{s+1}, v{s+2}\nv_max3_f32 v{m+1}, v{s+3}, v{s+4}, v{s+5}")
            for j in range(6, 14, 4): a(f"v_max3_f32 v{m}, v{s+j}, v{s+j+1}, v{m}\nv_max3_f32 v{m+1}, v{s+j+2}, v{s+j+3}, v{m+1}")
            a(f"v_max3_f32 v{m}, v{s+14}, v{s+15}, v{m}\nv_max_f32 v{m}, v{m}, v{m+1}")
        else:
            for j in range(0, 16, 2): a(f"v_max3_f32 v{m}, v{s+j}, v{s+j+1}, v{m}")
    def xhalf(m):
        a(f"v_mov_b32 v{m+1}, v{m}\ns_nop 1\nv_permlane32_swap_b32 v{m}, v{m+1}\ns_nop 0\nv_max_f32 v{m}, v{m}, v{m+1}")
    a(f"""
    s_cmp_lg_u32 s34, 1
    s_cbranch_scc1 ATT_NOSIG
    """)
    if opt("comb", 1):
        a(f"""
        v_mov_b32 v{T+4}, {LFB + 44}
        s_and_b32 s23, s15, -128
        s_mov_b64 exec, 1
        s_waitcnt vmcnt(0)
        ds_add_rtn_u32 v{T+5}, v{T+4}, v{T+2}
        s_waitcnt lgkmcnt(0)
        v_cmp_eq_u32 vcc, 3, v{T+5}
        s_cbranch_vccz ATT_NOSIG
        buffer_store_dwordx4 {vr(P,4)}, v{O}, s[28:31], s23 offen sc1
        """)
    else:
        a(f"s_waitcnt vmcnt(0)\ns_mov_b64 exec, 1\nbuffer_store_dword v{T+2}, v{O}, s[28:31], s15 offen sc1")
    a(f"""
ATT_NOSIG:
    s_mov_b64 exec, -1
    {st(4)}
    s_barrier
    {st(6)}
    ds_read_b128 {vr(Q1,4)}, v{T} offset:{QLDS}
    ds_read_b32 v{Q2}, v{T+1} offset:{QLDS+1024}
    {rdk1(0)}
    {rdk2(0)}
    {rdv(0, V2[0])}
    s_waitcnt lgkmcnt(2)
    {qk1(S[1])}
    {qk2(S[1])}
    """)
    for j in range(5): a(f"v_lshlrev_b32 v{S[0]+2*j}, 16, v{Q1+j}\nv_and_b32 v{S[0]+2*j+1}, 0xffff0000, v{Q1+j}")
    for j in range(10): a(f"v_mul_f32 v{S[0]+j}, {QSCALE:#x}, v{S[0]+j}")
    for j in range(5): a(f"v_cvt_pk_bf16_f32 v{Q1+j}, v{S[0]+2*j}, v{S[0]+2*j+1}")
    a(f"""
    s_nop 0
    {qk1(S[0])}
    {rdk1(1)}
    s_mov_b32 s26, 0
    """)
    maxtree(S[1], T, True); xhalf(T)
    a(f"""
    v_mul_f32 v{T}, {f32bits(-0.5 * (20 ** -0.5) * math.log2(math.e)):#x}, v{T}
    v_cvt_pk_bf16_f32 v{Q2+1}, v{T}, 0
    s_nop 1
    {qk2(S[0])}
    {rdk2(1)}
    buffer_store_dwordx4 {vr(P,4)}, v{OA1}, s[28:31], s6 offen sc1
    s_mov_b64 exec, 0xffff
    buffer_store_dwordx4 {vr(P,4)}, v{OA2}, s[28:31], s7 offen sc1
    s_mov_b64 exec, -1
    s_waitcnt lgkmcnt(0)
    {st(7)}
    s_nop 3
ATT_LOOP:
    """)
    def e(s, j): return f"v_exp_f32 v{s+j}, v{s+j}"
    def c(s, j): return f"v_cvt_pk_bf16_f32 v{P+j}, v{s+2*j}, v{s+2*j+1}"
    for j in range(8):
        cur, nxt = S[j % 2], S[(j + 1) % 2]
        a("s_waitcnt lgkmcnt(2)")
        a(qk1(nxt)); a(rdk1(j + 2))
        for q in range(4): a(e(cur, q))
        a(pv(V2[(j + 1) % 2], P + 4))
        a("s_waitcnt lgkmcnt(1)")
        if j == 2: a(f"ds_write_b32 v{PA}, v{T+2}")
        for q in range(4, 8): a(e(cur, q))
        a(c(cur, 0)); a(c(cur, 1))
        a(qk2(nxt)); a(rdk2(j + 2))
        a(c(cur, 2)); a(c(cur, 3))
        for q in range(8, 12): a(e(cur, q))
        a(pv(V1, P)); a(rdv(j + 1, V2[(j + 1) % 2]))
        for q in range(12, 16): a(e(cur, q))
        for q in range(4, 8): a(c(cur, q))
    a(f"""
    s_add_u32 s26, s26, 1
    s_movk_i32 s27, 0x5000
    s_cmp_eq_u32 s26, 7
    s_cselect_b32 s27, {(0x5000 - 62 * 2560) & 0xffffffff}, s27
    v_add_u32 v{AK1}, 0x5000, v{AK1}
    v_add_u32 v{AK2}, 0x5000, v{AK2}
    v_add_u32 v{AV}, 0x5000, v{AV}
    v_add_u32 v{BK1}, s27, v{BK1}
    v_add_u32 v{BK2}, s27, v{BK2}
    v_add_u32 v{BV}, s27, v{BV}
    v_add_u32 v{T+2}, 1, v{T+2}
    s_bitcmp1_b32 s35, s26
    s_cbranch_scc0 ATT_LOOP
    s_cmp_gt_u32 s26, 2
    s_cbranch_scc1 ATT_EV
    v_add_u32 v{FA}, 8, v{FA}
    s_waitcnt vmcnt(0)
ATT_WAIT:
    ds_read_b32 v{T}, v{FA}
    s_waitcnt lgkmcnt(0)
    v_readfirstlane_b32 s23, v{T}
    s_cmp_ge_u32 s23, 4
    s_cbranch_scc1 ATT_LOOP
    s_sleep 1
    s_branch ATT_WAIT
ATT_EV:
    s_setprio 2
    s_cmp_eq_u32 s26, s32
    s_cbranch_scc1 ATT_LOOP
    s_setprio 1
    s_cmp_lt_u32 s26, 8
    s_cbranch_scc1 ATT_LOOP
    s_setprio 3
    {pv(V2[1], P+4)}
    {st(8)}
    s_mov_b32 s27, 0x3e800000
    s_mov_b32 s23, 0x71800000
    s_nop 9
    """)
    a(f"v_rcp_f32 v{T+2}, v{O+12}\nv_add_f32 v{T}, |v{O}|, |v{O+1}|\nv_add_f32 v{T+1}, |v{O+2}|, |v{O+3}|")
    for j in range(4, 12, 2): a(f"v_add_f32 v{T}, |v{O+j}|, v{T}\nv_add_f32 v{T+1}, |v{O+j+1}|, v{T+1}")
    a(f"""
    v_add_f32 v{T}, v{T}, v{O+12}
    v_cmp_le_f32 s[42:43], s27, v{O+12}
    v_add_f32 v{T}, v{T}, v{T+1}
    v_cmp_gt_f32 vcc, s23, v{T}
    s_and_b64 vcc, vcc, s[42:43]
    s_cmp_eq_u64 vcc, -1
    s_cbranch_scc0 ATT_FALLBACK
ATT_FINISH:
    """)
    for j in range(8): a(f"v_mul_f32 v{O+j}, v{O+j}, v{T+2}")
    for j in range(4): a(f"v_cvt_pk_bf16_f32 v{P+j}, v{O+2*j}, v{O+2*j+1}")
    for j in range(4): a(f"v_min_u32 v{P+j}, -2, v{P+j}")
    a(f"buffer_store_dwordx4 {vr(P,4)}, v{OA1}, s[28:31], s6 offen sc1")
    for j in range(8, 12): a(f"v_mul_f32 v{O+j}, v{O+j}, v{T+2}")
    for j in range(4, 6): a(f"v_cvt_pk_bf16_f32 v{P+j}, v{O+2*j}, v{O+2*j+1}")
    for j in range(4, 6): a(f"v_min_u32 v{P+j}, -2, v{P+j}")
    a(f"""
    s_nop 1
    v_permlane16_swap_b32 v{P+4}, v{P+6}
    v_permlane16_swap_b32 v{P+5}, v{P+7}
    s_mov_b64 exec, 0xffff
    buffer_store_dwordx4 {vr(P+4,4)}, v{OA2}, s[28:31], s7 offen sc1
    {st(9)}
    s_cmp_ge_u32 s13, 4
    s_cbranch_scc1 {"L_DONE" if STAMP else "L_END"}
    s_mov_b64 exec, -1
    s_xor_b32 s41, s13, {opt('gx', 2)}
    s_mov_b32 s47, 1
    s_branch P3_GO
    """)
    def gk(): return f"buffer_load_dwordx4 {vr(K1,4)}, v{AK1}, s[28:31], s23 offen sc1\nbuffer_load_dword v{K2}, v{AK2}, s[28:31], s23 offen offset:1024 sc1"
    a(f"""
ATT_FALLBACK:
    s_waitcnt lgkmcnt(0)
    v_mov_b32 v{Q2+1}, 0
    v_mov_b32 v{T}, 0xff800000
    v_subrev_u32 v{AK1}, {HS}, v{AK1}
    v_subrev_u32 v{AK2}, {HS}, v{AK2}
    v_subrev_u32 v{AV}, {HS}, v{AV}
    s_add_u32 s23, s14, {KV_OFF}
    s_mov_b32 s26, 0
ATT_FB1:
    {gk()}
    s_add_u32 s23, s23, 2560
    s_waitcnt vmcnt(0)
    {qk1(S[0])}
    {qk2(S[0])}
    s_nop 15
    """)
    maxtree(S[0], T, False)
    a("s_add_u32 s26, s26, 1\ns_cmp_lt_u32 s26, 64\ns_cbranch_scc1 ATT_FB1")
    xhalf(T)
    a(f"s_add_u32 s23, s14, {KV_OFF}\ns_mov_b32 s26, 0")
    for r in range(16): a(f"v_mov_b32 v{O+r}, 0")
    a(f"""
ATT_FB2:
    {gk()}
    s_mov_b64 exec, s[24:25]
    buffer_load_dwordx4 {vr(V1,4)}, v{AV}, s[28:31], s23 offen offset:1280 sc1
    buffer_load_dwordx4 {vr(V2[0],4)}, v{AV}, s[28:31], s23 offen offset:1920 sc1
    s_mov_b64 exec, -1
    s_add_u32 s23, s23, 2560
    s_waitcnt vmcnt(0)
    {qk1(S[0])}
    {qk2(S[0])}
    s_nop 15
    """)
    for q in range(16): a(f"v_sub_f32 v{S[0]+q}, v{S[0]+q}, v{T}")
    for q in range(16): a(e(S[0], q))
    a("s_nop 0")
    for q in range(8): a(c(S[0], q))
    a(f"""
    s_nop 1
    {pv(V1, P)}
    {pv(V2[0], P+4)}
    s_add_u32 s26, s26, 1
    s_cmp_lt_u32 s26, 64
    s_cbranch_scc1 ATT_FB2
    s_nop 15
    v_rcp_f32 v{T+2}, v{O+12}
    s_nop 0
    s_branch ATT_FINISH
    """)

def lwait(a, vaddr, vdat, mask, target, slp=8):
    u = a.uid()
    a(f"""
    s_mov_b64 exec, {mask}
    s_branch L_LWE{u}
L_LW{u}:
    s_sleep {slp}
L_LWE{u}:
    ds_read_b32 v{vdat}, v{vaddr}
    s_waitcnt lgkmcnt(0)
    v_cmp_gt_u32 vcc, {target}, v{vdat}
    s_cbranch_vccnz L_LW{u}
    s_mov_b64 exec, -1
    """)
def ladd(a, vaddr, vone, off):
    a(f"s_mov_b64 exec, 1\nds_add_u32 v{vaddr}, v{vone} offset:{off}\ns_mov_b64 exec, -1")

def helpers(a):
    WA, VG, VZ, SH, HPA, HONE, YFA, FZ, SG, XA5, LF = 112, 117, 118, 119, 120, 121, 122, 123, 124, 125, 126
    ZL = 40; G = 167; VY = 162; T = 132
    a(f"""
HELPER:
    {st(2)}
    {srd(28, WS_P, WS_USED)}
    s_setprio 0
    s_lshr_b32 s20, s18, 2
    s_mul_i32 s26, s20, 160
    s_movk_i32 s23, {1280 - 160}
    """)
    for i in range(5):
        a(f"""
        v_add_u32 v{T}, {64*i}, v0
        v_mul_u32_u24 v{T+1}, 6554, v{T}
        v_lshrrev_b32 v{T+1}, 16, v{T+1}
        v_lshlrev_b32 v{T}, 4, v{T}
        v_mad_u32_u24 v{WA+i}, v{T+1}, s23, v{T}
        """)
    a(f"""
    s_lshl_b32 s21, s17, 3
    s_and_b32 s22, s18, 3
    s_add_u32 s21, s21, s22
    s_lshr_b32 s22, s16, 1
    s_lshl_b32 s22, s22, 2
    s_add_u32 s21, s21, s22
    s_lshl_b32 s21, s21, 1
    s_and_b32 s22, s16, 1
    s_add_u32 s21, s21, s22
    s_lshr_b32 s22, s21, 2
    s_lshl_b32 s22, s22, 1
    s_and_b32 s24, s21, 1
    s_add_u32 s22, s22, s24
    s_lshl_b32 s22, s22, 3
    v_and_b32 v{T}, 7, v0
    v_add_u32 v{T}, s22, v{T}
    s_bitcmp1_b32 s21, 1
    s_cselect_b32 s22, 0x400, 0
    s_cselect_b32 s24, -1, 1
    v_mul_lo_u32 v{T+1}, v{T}, s24
    s_sub_u32 s24, 0x800, s22
    v_sub_u32 v{T+2}, s24, v{T+1}
    v_add_u32 v{T+1}, s22, v{T+1}
    v_and_b32 v{T+3}, 8, v0
    v_cmp_ne_u32 vcc, 0, v{T+3}
    v_cmp_eq_u32 s[42:43], 0, v{T}
    v_lshlrev_b32 v{T+3}, 6, v{T+3}
    v_add_u32 v{T+3}, s22, v{T+3}
    v_cndmask_b32 v{T}, v{T+1}, v{T+2}, vcc
    v_lshrrev_b32 v{T+1}, 4, v0
    v_cndmask_b32 v{T}, v{T}, v{T+3}, s[42:43]
    v_mul_u32_u24 v{VY}, 1280, v{T}
    v_mul_u32_u24 v{T+2}, 40, v{T+1}
    v_add3_u32 v{VY}, v{VY}, v{T+2}, s26
    v_lshlrev_b32 v{VG}, 2, v{T}
    v_sub_u32 v{T+3}, 0x800, v{T}
    v_cmp_lt_u32 vcc, 0x400, v{T}
    v_min_u32 v{T}, v{T}, v{T+3}
    v_and_b32 v{T+3}, 1, v{T}
    v_mul_u32_u24 v{VZ}, {ZP}, v{T+3}
    v_lshrrev_b32 v{T+3}, 1, v{T}
    v_lshl_add_u32 v{VZ}, v{T+3}, 4, v{VZ}
    v_mov_b32 v{T+3}, 0x02020202
    v_cndmask_b32 v{SH}, 0, v{T+3}, vcc
    s_cmp_ge_u32 s20, 4
    s_mov_b32 s24, 0x05040100
    s_cselect_b32 s24, 0x07060302, s24
    s_cselect_b32 s40, -1, 1
    s_cselect_b32 s41, 155, 0
    v_xor_b32 v{SH}, s24, v{SH}
    s_mul_i32 s24, s20, 20
    v_mul_u32_u24 v{T+3}, 5, v{T+1}
    v_add_u32 v{T+3}, s24, v{T+3}
    v_mul_lo_u32 v{T+3}, v{T+3}, s40
    v_add_u32 v{T+3}, s41, v{T+3}
    v_mul_u32_u24 v{T+3}, {2*ZP}, v{T+3}
    v_add_u32 v{VZ}, v{VZ}, v{T+3}
    {p3_addr(0)}
    v_lshlrev_b32 v{HPA}, 2, v0
    v_add_u32 v{HPA}, {LFB}, v{HPA}
    v_mov_b32 v{HONE}, 1
    s_lshl_b32 s23, s2, 5
    s_add_u32 s23, s23, s16
    s_lshl_b32 s23, s23, 2
    s_add_u32 s23, s23, {FLG_OFF + 16}
    v_mov_b32 v{YFA}, s23
    v_lshrrev_b32 v{FZ}, 4, v0
    v_mul_u32_u24 v{FZ}, {2*ZP}, v{FZ}
    v_and_b32 v{T}, 15, v0
    v_lshl_add_u32 v{FZ}, v{T}, 4, v{FZ}
    v_lshlrev_b32 v{SG}, 31, v0
    v_and_b32 v{XA5}, 48, v0
    v_lshlrev_b32 v{LF}, 7, v0
    s_setprio 3
    s_lshr_b32 s19, s18, 3
    s_lshl_b32 s23, s17, 2
    s_add_u32 s19, s19, s23
    s_and_b32 s62, s18, 7
    s_mul_i32 s21, s19, {HG}
    v_lshlrev_b32 v1, 4, v0
    {st(3)}
    s_lshr_b32 s23, s19, 3
    s_lshl_b32 s23, s23, 13
    s_add_u32 s23, s23, {FLG_OFF}
    v_lshlrev_b32 v2, 7, v0
    v_add_u32 v2, s23, v2
    s_add_u32 s24, s21, {KV_OFF}
    s_lshl_b32 s40, 0x10000, s16
    s_lshl_b32 s41, 1, s16
    s_mul_i32 s22, s16, 10240
    s_add_u32 s26, s24, s22
    s_cmp_lg_u32 s16, 3
    s_cbranch_scc1 H_JA
    s_lshl_b32 s25, s62, 1
    s_lshl_b32 s40, 3, s25
    s_mov_b32 s41, 0
    s_mov_b32 s22, {QLDS}
    s_mul_i32 s26, s19, {HQ}
    s_mul_i32 s25, s62, 10240
    s_add_u32 s26, s26, s25
    s_add_u32 s26, s26, {Q_OFF}
H_JA:
    """)
    def job():
        r = f"s_add_u32 s25, s22, 5120\ns_cmp_ge_u32 s25, {LFB}\ns_cselect_b32 s25, 0, s25\n"
        for n in range(10):
            if n in (0, 3): r += f"s_add_u32 m0, s22, {1024*n}\ns_add_u32 s27, s26, {1024*n}\n"; o = 0
            if n in (5, 8): r += f"s_add_u32 m0, s25, {1024*(n-5)}\ns_add_u32 s27, s26, {1024*n}\n"; o = 0
            r += f"buffer_load_dwordx4 v1, s[28:31], s27 offen offset:{o} sc1 lds\n"; o += 1024
        return r
    if opt("latep", 1):
        a(f"v_mov_b32 v3, {LFB + 44}")
        lwait(a, 3, 4, 1, 4, 2)
        if opt("lps", 0): a(f"s_sleep {opt('lps', 0)}")
    poll4(a, 2, 4, "s[40:41]")
    a(st(11)); a(job())
    a(f"""
    s_mov_b32 s40, 0xffff0000
    s_mov_b32 s41, 0xffff
    s_add_u32 s22, s16, 3
    s_cmp_eq_u32 s16, 3
    s_cselect_b32 s22, 7, s22
    s_mul_i32 s22, s22, 10240
    s_add_u32 s26, s24, s22
    s_waitcnt vmcnt(0)
    {st(12)}
    s_barrier
    """)
    poll4(a, 2, 4, "s[40:41]")
    a(job())
    a(f"""
    s_add_u32 s22, s16, 6
    s_cmp_eq_u32 s16, 1
    s_cselect_b32 s22, 11, s22
    s_mul_i32 s22, s22, 10240
    s_add_u32 s26, s24, s22
    s_waitcnt vmcnt(0)
    """)
    ladd(a, HPA, HONE, 64)
    lwait(a, HPA, 4, 0xff, 1)
    a(f"{st(13)}\nH_JC:"); a(job())
    a(f"""
    s_add_u32 s22, s22, 40960
    s_add_u32 s26, s26, 40960
    s_cmp_lt_u32 s22, {HS}
    s_cbranch_scc1 H_JC
    s_waitcnt vmcnt(0)
    {st(4)}
    """)
    ladd(a, HPA, HONE, 72)
    a(f"""
    s_cmp_lt_u32 s16, 3
    s_cbranch_scc1 H_FNET
    """)
    a(f"""
    {srd(32, X_P, 2048*1280)}
    {srd(36, GATE_P, 1280)}
    v_lshrrev_b32 v2, 3, v0
    v_and_b32 v3, 7, v0
    v_lshlrev_b32 v3, 4, v3
    s_movk_i32 s22, 1280
    v_mad_u32_u24 v4, v2, s22, v3
    s_mul_i32 s23, s2, {8*1280}
    """)
    for j in range(10):
        a(f"buffer_load_dwordx4 {vr(24+8*j,4)}, v4, s[32:35], s23 offen offset:{128*j}")
        a(f"buffer_load_dwordx4 {vr(28+8*j,4)}, v3, s[36:39], 0 offen offset:{128*j}")
    a("v_mov_b32 v5, 0\nv_mov_b32 v6, 0\ns_waitcnt vmcnt(0)")
    for j in range(10):
        for q in range(4):
            a(f"v_dot2c_f32_bf16 v{5 + (q & 1)}, v{24+8*j+q}, v{28+8*j+q}")
    a(f"""
    s_nop 2
    v_add_f32 v5, v5, v6
    s_nop 1
    v_add_f32_dpp v5, v5, v5 quad_perm:[1,0,3,2] row_mask:0xf bank_mask:0xf
    s_nop 1
    v_add_f32_dpp v5, v5, v5 quad_perm:[2,3,0,1] row_mask:0xf bank_mask:0xf
    s_nop 1
    v_add_f32_dpp v5, v5, v5 row_half_mirror row_mask:0xf bank_mask:0xf
    v_mul_f32 v5, {f32bits(-math.log2(math.e)):#x}, v5
    v_exp_f32 v5, v5
    v_lshlrev_b32 v2, 2, v2
    v_add_f32 v5, 1.0, v5
    v_rcp_f32 v5, v5
    s_lshl_b32 s23, s2, 5
    s_add_u32 s23, s23, {G_OFF}
    buffer_store_dword v5, v2, s[28:31], s23 offen sc1
    s_branch H_MID
    """)
    C, SN, FB = 0, 8, 16
    a(f"""
H_FNET:
    {'s_branch H_MID' if opt('nofnet', 0) == 1 else ''}
    s_lshl_b32 s22, s16, 5
    s_add_u32 s22, s22, s18
    s_cmp_lt_u32 s22, 84
    s_cbranch_scc1 H_FN_A
    s_sub_u32 s24, s22, 84
    s_lshl_b32 s24, s24, 3
    s_add_u32 s24, s24, s17
    s_cmp_ge_u32 s24, 21
    s_cbranch_scc1 H_MID
    s_mov_b32 s23, 32
    s_branch H_FN_B
H_FN_A:
    s_mul_i32 s23, s22, 3121
    s_lshr_b32 s23, s23, 16
    s_mul_i32 s24, s23, 21
    s_sub_u32 s24, s22, s24
    s_lshl_b32 s23, s23, 3
    s_add_u32 s23, s23, s17
H_FN_B:
    s_mov_b32 s27, {FLG_OFF}
H_FN_P:
    """)
    poll4(a, LF, 4, "-1", "s27", slp=16)
    a(f"s_add_u32 s27, s27, 8192\ns_cmp_lt_u32 s27, {FLG_OFF + 32768}\ns_cbranch_scc1 H_FN_P")
    a(f"""
    s_and_b32 s25, s23, 1
    s_add_u32 s26, s24, 20
    s_cmp_eq_u32 s24, 20
    s_cselect_b32 s26, 20, s26
    s_lshl_b32 s32, s23, 16
    s_add_u32 s32, s32, {TB_OFF}
    s_mul_i32 s27, s25, {FO_DELTA}
    s_add_u32 s27, s27, {FE_OFF}
    s_lshl_b32 s33, s24, 14
    s_add_u32 s33, s33, s27
    s_lshl_b32 s34, s26, 14
    s_add_u32 s34, s34, s27
    s_cmp_eq_u32 s25, 0
    s_cselect_b32 s35, s24, s26
    s_lshl_b32 s35, s35, 6
    s_add_u32 s35, s35, {X512_OFF}
    buffer_load_dwordx4 v[128:131], v{XA5}, s[28:31], s35 offen sc1
    """)
    def fl(j):
        r = FB + 24 * j
        s_ = f"buffer_load_dwordx4 {vr(r,4)}, v163, s[28:31], s33 offen offset:{1024*j} sc1\n"
        s_ += f"buffer_load_dwordx4 {vr(r+4,4)}, v163, s[28:31], s34 offen offset:{1024*j} sc1\n"
        for k in range(4): s_ += f"buffer_load_dwordx4 {vr(r+8+4*k,4)}, v163, s[28:31], s32 offen offset:{1024*k} sc1\n"
        s_ += "s_add_u32 s32, s32, 4096\n"
        if j == 3: s_ += "s_add_u32 s33, s33, 4096\ns_add_u32 s34, s34, 4096\n"
        return s_
    def fm(j):
        r = FB + 24 * j
        s_ = ""
        if opt("nofnet", 0) == 2: return s_
        for sub in range(2):
            s_ += f"v_mfma_f32_16x16x32_bf16 {vr(C+4*sub,4)}, {vr(r,4)}, {vr(r+8+8*sub,4)}, {vr(C+4*sub,4)}\n"
            s_ += f"v_mfma_f32_16x16x32_bf16 {vr(SN+4*sub,4)}, {vr(r+4,4)}, {vr(r+12+8*sub,4)}, {vr(SN+4*sub,4)}\n"
        return s_
    for j in range(4): a(fl(j))
    a(f"""
    s_cmp_eq_u32 s25, 0
    s_cselect_b32 s36, 1.0, 0
    s_cselect_b32 s37, 0, 1.0
    v_or_b32 v161, s37, v{SG}
    v_or_b32 v160, s36, v{SG}
    s_waitcnt vmcnt(24)
    """)
    for r in range(8): a(f"v_mul_f32 v{C+r}, v160, v{128 + r % 4}\nv_mul_f32 v{SN+r}, v161, v{128 + r % 4}")
    a("s_mov_b32 s38, 0\nH_FN_LOOP:")
    for j in range(4):
        a("s_waitcnt vmcnt(18)"); a(fm(j)); a(fl(j))
    a("s_add_u32 s38, s38, 1\ns_cmp_lt_u32 s38, 3\ns_cbranch_scc1 H_FN_LOOP")
    for j in range(4):
        a(f"s_waitcnt vmcnt({18-6*j})"); a(fm(j))
    a(f"""
    s_cmp_eq_u32 s26, 20
    s_cselect_b32 s44, 0xffff, 0
    s_mov_b32 s45, 0
    s_mul_i32 s26, s24, {8*ZP}
    s_mul_i32 s27, s25, {ZP}
    s_add_u32 s26, s26, s27
    s_lshr_b32 s27, s23, 1
    s_lshl_b32 s27, s27, 9
    s_add_u32 s26, s26, s27
    s_add_u32 s26, s26, {Y_OFF}
    v_cndmask_b32 v{SN}, v{SN}, 0, s[44:45]
    v_cndmask_b32 v{SN+4}, v{SN+4}, 0, s[44:45]
    """)
    for r in range(8):
        a(f"v_add_f32 v{16+r}, v{C+r}, v{SN+r}\nv_sub_f32 v{C+r}, v{C+r}, v{SN+r}")
    for r in range(8): a(f"v_cvt_pk_bf16_f32 v{16+r}, v{16+r}, v{C+r}")
    a(f"buffer_store_dwordx4 v[16:19], v{FZ}, s[28:31], s26 offen sc1\nbuffer_store_dwordx4 v[20:23], v{FZ}, s[28:31], s26 offen offset:256 sc1")
    a(f"""
H_MID:
    s_lshl_b32 s19, s17, 2
    s_and_b32 s20, s18, 3
    s_add_u32 s19, s19, s20
    s_lshr_b32 s20, s18, 2
    {srd(32, WO_P, 640*1280)}
    {srd(36, OUT_P, 2621440)}
    s_mul_i32 s26, s20, 160
    s_mul_i32 s27, s16, {160*1280}
    s_add_u32 s27, s27, s26
    s_movk_i32 s23, {1280 - 160}
    """)
    a(f"""
    s_add_u32 s25, s16, 1
    s_and_b32 s25, s25, 3
    s_mul_i32 s22, s25, 25600
    s_add_u32 s22, s22, {WOL}
    s_add_u32 s25, s25, 3
    s_waitcnt vmcnt(0)
    {st(5)}
    """)
    lwait(a, HPA, T + 1, 0xff, 2)
    a(f"s_mov_b64 exec, 1\nbuffer_store_dword v{HONE}, v{YFA}, s[28:31], 0 offen sc1\ns_mov_b64 exec, -1")
    lwait(a, HPA, T + 1, 0xff, "s25")
    a(f"{st(6)}\ns_mov_b32 s25, 0\nH_WO:")
    for i in range(5):
        a(f"s_add_u32 m0, s22, {1024*i}\ns_nop 0\nbuffer_load_dwordx4 v{WA+i}, s[32:35], s27 offen lds")
    a(f"""
    s_add_u32 s22, s22, 5120
    s_add_u32 s27, s27, {32*1280}
    s_add_u32 s25, s25, 1
    s_cmp_lt_u32 s25, 5
    s_cbranch_scc1 H_WO
    s_cmp_lg_u32 s16, 3
    s_cbranch_scc1 H_YW
    """)
    lwait(a, HPA, T + 1, 0xff, opt("ypr", 5), 16)
    a(f"s_mov_b32 s27, {FLG_OFF + 16}\nH_YP:")
    poll4(a, LF, 4, "-1", "s27", slp=32)
    a(f"s_add_u32 s27, s27, 8192\ns_cmp_lt_u32 s27, {FLG_OFF + 32768}\ns_cbranch_scc1 H_YP")
    ladd(a, HPA, HONE, 40)
    a(f"H_YW:\nv_add_u32 v{T}, 40, v{HPA}")
    lwait(a, T, T + 1, 1, 1, 16)
    a("s_waitcnt vmcnt(0)")
    a(f"v_mov_b32 v{T}, 2")
    ladd(a, HPA, T, 32)
    a(f"{st(7)}\ns_mov_b32 s26, {Y_OFF}\ns_mov_b32 s27, {G_OFF}\nbuffer_load_dword v{G}, v{VG}, s[28:31], s27 offen sc1")
    for j in range(6):
        a(f"buffer_load_dwordx4 {vr(ZL+4*j,4)}, v{VZ}, s[28:31], s26 offen sc1\ns_add_u32 s26, s26, {2*ZP}")
    BF, OFR, ACC, YG = 0, 100, 120, 140
    VY2, G2 = 162, 167
    a(f"""
    s_waitcnt vmcnt(0)
    s_cmp_ge_u32 s20, 4
    s_cbranch_scc1 H_DESC
    """)
    for k in range(10): a(f"v_perm_b32 v{YG+10+k}, v{ZL+2*k+1}, v{ZL+2*k}, v{SH}")
    a("s_branch H_UNP\nH_DESC:")
    for k in range(10): a(f"v_perm_b32 v{YG+10+k}, v{ZL+19-2*k}, v{ZL+20-2*k}, v{SH}")
    a("H_UNP:")
    lwait(a, HPA, 8, 0xf, 8)
    a(f"""
    {st(8)}
    s_mov_b32 s41, s16
    s_mov_b32 s47, 0
P3_GO:
    s_setprio {opt('p3o', 0)}
    s_lshl_b32 s22, s17, 3
    s_and_b32 s23, s18, 3
    s_add_u32 s22, s22, s23
    s_lshl_b32 s22, s22, 1
    s_add_u32 s22, s22, s47
    s_mul_i32 s22, s22, 20480
    s_add_u32 s22, s22, {OF_OFF}
    s_lshl_b32 s44, s41, 12
    s_add_u32 s44, s44, s22
    s_lshl_b32 s45, s41, 10
    s_add_u32 s45, s45, s22
    s_add_u32 s45, s45, 16384
    s_lshl_b32 s46, s47, 2
    s_add_u32 s40, s46, {LFB + 80}
    s_add_u32 s46, s46, s41
    s_mul_i32 s46, s46, 5120
    s_add_u32 s46, s46, {WOL}
    s_mov_b32 s26, 0
    s_mov_b32 s42, 0
    v_mov_b32 v{CM}, {LFB + 32}
    """)
    lwait(a, CM, CT, 1, 8)
    a("P3_TRY:")
    for k in range(4):
        a(f"buffer_load_dwordx4 {vr(OFR+4*k,4)}, v{VA}, s[28:31], s44 offen offset:{1024*k} sc1")
    a(f"buffer_load_dwordx2 {vr(OFR+16,2)}, v{VT}, s[28:31], s45 offen sc1\nbuffer_load_dwordx2 {vr(OFR+18,2)}, v{VT}, s[28:31], s45 offen offset:128 sc1")
    a(f"""
    s_cmp_lg_u32 s26, 0
    s_cbranch_scc1 P3_CHK
    s_add_u32 s23, s41, 1
    s_and_b32 s23, s23, 3
    s_mul_i32 s23, s23, 25600
    s_add_u32 s23, s23, {WOL}
    v_add_u32 v{CM}, s23, v{BMM}
    v_add_u32 v{CT}, s23, v{BMT}
    """)
    for n in range(25):
        k, t = divmod(n, 5); d = BF + 4 * n
        bb, o, dj = (CM, k * 6400 + t * 8, 1280) if k < 4 else (CT, t * 8, 3200)
        a(f"ds_read_b64_tr_b16 {vr(d,2)}, v{bb} offset:{o}\nds_read_b64_tr_b16 {vr(d+2,2)}, v{bb} offset:{o+dj}")
    a(f"v_mov_b32 v{BMM}, {LFB + 36}\nv_mov_b32 v{BMT}, 1\ns_waitcnt lgkmcnt(0)")
    ladd(a, BMM, BMT, 0)
    b = OFR
    def mfs(k): return "\n".join(f"v_mfma_f32_16x16x32_bf16 {vr(ACC+4*t,4)}, {vr(BF+4*(5*k+t),4)}, {vr(OFR+4*k,4)}, {vr(ACC+4*t,4) if k else 0}" for t in range(5))
    if opt("spec", 1):
        a("P3_CHK:\ns_add_u32 s26, s26, 1\ns_mov_b32 s43, -1")
        for k in range(5):
            r = b + 4 * k
            a(f"""P3_C{k}:
            s_waitcnt vmcnt({max(0, 5 - k) if k < 4 else 0})
            v_max3_u32 v{CM}, v{r}, v{r+1}, v{r+2}
            v_max3_u32 v{CM}, v{r+3}, v{CM}, 1
            v_cmp_eq_u32 vcc, s43, v{CM}
            s_cbranch_vccnz P3_B{k}
            {mfs(k)}""")
        a(f"{'' if opt('fst', 0) else st(11)}\ns_branch P3_OK")
        for k in range(5):
            a(f"P3_B{k}:\ns_sleep {opt('p3s', 4)}")
            for kk in range(k, 4):
                a(f"buffer_load_dwordx4 {vr(OFR+4*kk,4)}, v{VA}, s[28:31], s44 offen offset:{1024*kk} sc1")
            a(f"buffer_load_dwordx2 {vr(OFR+16,2)}, v{VT}, s[28:31], s45 offen sc1\nbuffer_load_dwordx2 {vr(OFR+18,2)}, v{VT}, s[28:31], s45 offen offset:128 sc1")
            a(f"s_add_u32 s26, s26, 1\ns_cmp_lt_u32 s26, 0x40000\ns_cselect_b32 s43, -1, 0\ns_branch P3_C{k}")
        a("P3_OK:")
    else:
        a(f"P3_CHK:\ns_add_u32 s26, s26, 1\ns_waitcnt vmcnt(4)\nv_max3_u32 v{CM}, v{b}, v{b+1}, v{b+2}\nv_max3_u32 v{CT}, v{b+3}, v{b+4}, v{b+5}\nv_max3_u32 v{CM}, v{b+6}, v{b+7}, v{CM}\ns_waitcnt vmcnt(2)")
        a(f"v_max3_u32 v{CT}, v{b+8}, v{b+9}, v{CT}\nv_max3_u32 v{CM}, v{b+10}, v{b+11}, v{CM}\nv_max3_u32 v{CT}, v{b+12}, v{b+13}, v{CT}\nv_max3_u32 v{CM}, v{b+14}, v{b+15}, v{CM}\ns_waitcnt vmcnt(0)")
        a(f"""
    v_max3_u32 v{CT}, v{b+16}, v{b+17}, v{CT}
    v_max3_u32 v{CM}, v{b+18}, v{b+19}, v{CM}
    s_cmp_lt_u32 s26, 0x40000
    v_max_u32 v{CM}, v{CM}, v{CT}
    s_cbranch_scc0 P3_OK
    v_cmp_eq_u32 vcc, -1, v{CM}
    s_cbranch_vccz P3_OK
    s_sleep {opt("p3s", 4)}
    s_branch P3_TRY
P3_OK:
    {'' if opt('fst', 0) else st(11)}
    s_setprio {opt('p3p', 0)}
    """)
        for n in range(25):
            k, t = divmod(n, 5)
            a(f"v_mfma_f32_16x16x32_bf16 {vr(ACC+4*t,4)}, {vr(BF+4*n,4)}, {vr(OFR+4*k,4)}, {vr(ACC+4*t,4) if k else 0}")
    a("s_cmp_lg_u32 s42, 0\ns_cbranch_scc1 P3_WR")
    lwait(a, BMM, CT, 1, 8, 2)
    a(f"{str() if opt('fst', 0) else st(12)}\nP3_WR:\nv_add_u32 v{CM}, s46, v{VA}\nv_mov_b32 v{CT}, s40\ns_nop 1")
    for j in range(5): a(f"ds_write_b128 v{CM}, {vr(ACC+4*j,4)} offset:{1024*j}")
    a("s_waitcnt lgkmcnt(0)")
    ladd(a, CT, BMT, 0)
    a(f"""
    s_add_u32 s44, s44, {8*20480}
    s_add_u32 s45, s45, {8*20480}
    s_add_u32 s46, s46, {8*5120}
    s_add_u32 s40, s40, 8
    s_add_u32 s42, s42, 1
    s_cmp_ge_u32 s42, 2
    s_cbranch_scc1 P3_END
    s_cmp_ge_u32 s16, 4
    s_cbranch_scc1 P3_TRY
    """)
    for k in range(10): a(f"v_lshlrev_b32 v{YG+2*k}, 16, v{YG+10+k}\nv_and_b32 v{YG+2*k+1}, 0xffff0000, v{YG+10+k}")
    for k in range(20): a(f"v_mul_f32 v{YG+k}, v{YG+k}, v{G2}")
    a(f"""
    v_sub_f32 v{G2}, 1.0, v{G2}
    s_branch P3_TRY
P3_END:
    {st(10)}
    s_cmp_ge_u32 s16, 4
    s_cbranch_scc1 {"L_DONE" if STAMP else "L_END"}
    s_setprio 3
    s_lshl_b32 s23, s16, 2
    s_add_u32 s23, s23, {LFB + 80}
    v_mov_b32 v{CT}, s23
    s_mul_i32 s23, s16, 20480
    s_add_u32 s23, s23, {WOL}
    v_add_u32 v{CM}, s23, v{VA}
    """)
    lwait(a, CT, BMM, 1, 4, 1)
    a(st(9))
    for j in range(5):
        for g in range(4): a(f"ds_read_b128 {vr(16*j+4*g,4)}, v{CM} offset:{5120*g+1024*j}")
    for j in range(5):
        a(f"s_waitcnt lgkmcnt({min(15, 16-4*j)})")
        for r in range(4): a(f"v_add_f32 v{16*j+r}, v{16*j+r}, v{16*j+4+r}\nv_add_f32 v{16*j+8+r}, v{16*j+8+r}, v{16*j+12+r}")
        for r in range(4): a(f"v_add_f32 v{16*j+r}, v{16*j+r}, v{16*j+8+r}")
        for r in range(4): a(f"v_fmac_f32 v{YG+4*j+r}, v{16*j+r}, v{G2}")
        a(f"v_cvt_pk_bf16_f32 v{84+2*j}, v{YG+4*j}, v{YG+4*j+1}\nv_cvt_pk_bf16_f32 v{84+2*j+1}, v{YG+4*j+2}, v{YG+4*j+3}")
        if j == 1: a(f"buffer_store_dwordx4 v[84:87], v{VY2}, s[36:39], 0 offen" + OSC)
        if j == 3: a(f"buffer_store_dwordx4 v[88:91], v{VY2}, s[36:39], 0 offen offset:16" + OSC)
    a(f"buffer_store_dwordx2 v[92:93], v{VY2}, s[36:39], 0 offen offset:32" + OSC)

def main():
    a = A()
    top = open("cdna_kernels/" + NAME + ".s.ref").read().split("; Override launch")[0]
    top += "; @launch grid=(256,1,1) block=(768,1,1) lds=163840\n"
    a('.amdgcn_target "amdgcn-amd-amdhsa--gfx950"\n.text')
    d = gen(a)
    open(sys.argv[1], "w").write(top + a.text() + '.section .rodata,"a"\n.p2align 6\n' + d)
if __name__ == "__main__":
    main()
```

```python
import sys, math, struct

OPT = dict(x.split("=") for x in sys.argv[2:])
def opt(k, d): return int(OPT.get(k, d))
NAME = "gated_mix__spectral_fnet__softmax_full_mha__prompt"
HS = 163840
KV_OFF = 0
HG = HS + opt('pad', 512)
HQ = 81920 + opt('pad', 512)
Q_OFF = 32 * HG
FE_OFF = Q_OFF + 32 * HQ
FO_DELTA = 655360
X512_OFF = FE_OFF + 2 * FO_DELTA
TB_OFF = X512_OFF + 4096
Y_OFF = TB_OFF + 33 * 65536
ZP = 8704
G_OFF = Y_OFF + 85 * 2 * ZP
OF_OFF = G_OFF + 8192
FLG_OFF = OF_OFF + 2621440
WS_USED = FLG_OFF + 320 * 128
XB = 102400
L_Y = 256
QLDS = 61440
RB0, RSL = 11264, 36864
LFB = 158720
WOL = 5120
AK1, AK2, AV, BK1, BK2, BV, OA1, OA2, ONES, PA, FA = range(152, 163)
VA, VT, BMM, BMT, CM, CT = 163, 164, 165, 166, 160, 161
PXB = 107520
def p3_addr(l):
    return f"""v_lshlrev_b32 v{VA}, 4, v{l}
    v_and_b32 v2, 7, v{l}
    v_bfe_u32 v4, v{l}, 3, 1
    v_lshrrev_b32 v3, 4, v{l}
    v_lshlrev_b32 v{VT}, 8, v3
    v_lshl_add_u32 v{VT}, v2, 4, v{VT}
    v_lshl_add_u32 v{VT}, v4, 3, v{VT}
    v_bfe_u32 v2, v{l}, 2, 2
    v_and_b32 v5, 3, v{l}
    v_mul_u32_u24 v5, 40, v5
    v_mul_u32_u24 v4, 40, v3
    v_add3_u32 v4, v4, v2, 16
    v_mul_u32_u24 v4, 160, v4
    v_add_u32 v{BMT}, v4, v5
    v_lshrrev_b32 v4, 1, v3
    v_mul_u32_u24 v4, 20, v4
    v_and_b32 v3, 1, v3
    v_lshl_add_u32 v4, v3, 2, v4
    v_add_u32 v4, v4, v2
    v_mul_u32_u24 v4, 160, v4
    v_add_u32 v{BMM}, v4, v5"""

def f32bits(x): return struct.unpack("<I", struct.pack("<f", x))[0]
QSCALE = f32bits((20 ** -0.5) * math.log2(math.e))
STAMP = opt("stamp", 0)
STAMP_OFF = 1 << 25
NST = 16

class A:
    def __init__(self): self.l = []; self.n = 0
    def __call__(self, s):
        for line in s.split("\n"):
            t = line.strip()
            if not t: continue
            self.l.append(t if t.endswith(":") or t.startswith(".") else "    " + t)
    def uid(self): self.n += 1; return self.n
    def text(self): return "\n".join(self.l) + "\n"

def vr(a, n): return f"v[{a}:{a+n-1}]" if n > 1 else f"v{a}"
def srd(lo, base, size):
    return f"s_mov_b32 s{lo}, s{base}\ns_mov_b32 s{lo+1}, s{base+1}\ns_mov_b32 s{lo+2}, {size}\ns_mov_b32 s{lo+3}, 0x20000"
OSC = " sc1" if opt("outsc1", 0) else ""
P1ST = opt("p1st", 0)
def st(i, p1=False):
    if not STAMP: return ""
    if P1ST and not p1 and 0 < i < 15 and i not in (4, 5): return ""
    if P1ST and not p1 and i in (4, 5): i += 8
    if p1 and not P1ST: return ""
    return f"{'s_memrealtime' if STAMP in (1, 3, 4) else 's_memtime'} s[{64+2*i}:{65+2*i}]"
def fin(): return "s_branch L_DONE" if STAMP else "s_endpgm"

X_P, WD_P, WQKV_P, WO_P, GATE_P, OUT_P, DBG_P, WS_P = 4, 8, 48, 50, 52, 54, 56, 58

def poll(a, vaddr, vdat, mask, target, sreg=60):
    u = a.uid()
    a(f"""
    s_mov_b64 exec, {mask}
    s_mov_b32 s{sreg}, 0
L_POLL{u}:
    buffer_load_dword v{vdat}, v{vaddr}, s[28:31], 0 offen sc1
    s_waitcnt vmcnt(0)
    v_cmp_gt_u32 vcc, {target}, v{vdat}
    s_cbranch_vccz L_POLLD{u}
    {'s_sleep 1' if opt('psleep', 0) else ''}
    s_add_u32 s{sreg}, s{sreg}, 1
    s_cmp_lt_u32 s{sreg}, 0x40000
    s_cbranch_scc1 L_POLL{u}
L_POLLD{u}:
    s_mov_b64 exec, -1
    """)

def poll4(a, vaddr, vdat, mask, soff="0", sreg=60, slp=None):
    u = a.uid()
    a(f"""
    s_mov_b64 exec, {mask}
    s_mov_b32 s{sreg}, 0
    s_branch L_POLLE{u}
L_POLL{u}:
    s_sleep {slp or opt("ps4", 2)}
L_POLLE{u}:
    buffer_load_dwordx4 {vr(vdat,4)}, v{vaddr}, s[28:31], {soff} offen sc1
    s_add_u32 s{sreg}, s{sreg}, 1
    s_waitcnt vmcnt(0)
    v_min3_u32 v{vdat}, v{vdat}, v{vdat+1}, v{vdat+2}
    s_cmp_lt_u32 s{sreg}, 0x40000
    v_min_u32 v{vdat}, v{vdat}, v{vdat+3}
    s_cbranch_scc0 L_POLLD{u}
    v_cmp_eq_u32 vcc, 0, v{vdat}
    s_cbranch_vccnz L_POLL{u}
L_POLLD{u}:
    s_mov_b64 exec, -1
    """)

def gen(a):
    label = NAME + "_kernel"
    a(f".p2align 8\n.globl {label}\n.type {label},@function\n{label}:")
    a(f"""
    s_cmp_ge_u32 s2, 256
    s_cbranch_scc1 L_END
    {st(0) + chr(10) + 's_waitcnt lgkmcnt(0)' if opt("st0first", 0) else ''}
    s_load_dwordx2 s[4:5], s[0:1], 0
    s_load_dwordx8 s[48:55], s[0:1], 48
    s_load_dwordx4 s[8:11], s[0:1], 24
    s_load_dwordx4 s[56:59], s[0:1], 80
    """)
    if STAMP:
        a("\n".join(f"s_mov_b32 s{64+j}, 0" for j in range(2, 2 * NST)) + "\n" + ("" if opt("st0first", 0) else st(0)))
    a(f"""
    v_lshrrev_b32 v1, 6, v0
    v_and_b32 v0, 63, v0
    s_and_b32 s17, s2, 7
    v_readfirstlane_b32 s16, v1
    s_lshr_b32 s18, s2, 3
    s_and_b32 s19, s18, 7
    s_lshr_b32 s22, s18, 3
    s_and_b32 s21, s17, 1
    s_lshl_b32 s23, s19, 1
    s_add_u32 s21, s21, s23
    s_lshr_b32 s20, s17, 1
    s_cmp_ge_u32 s19, {opt("numl", 3)}
    s_cselect_b32 s12, 1, 0
    s_cmp_eq_u32 s22, 0
    s_cselect_b32 s12, 0, s12
    s_cmp_ge_u32 s16, 4
    s_cbranch_scc1 P1_NOTLOADER
    """)
    p1_loader(a)
    a(f"""
P1_NOTLOADER:
    s_lshl_b32 s63, s17, 2
    s_add_u32 s63, s63, s22
    s_mul_i32 s14, s63, {HG}
    s_sub_u32 s13, s16, 4
    s_lshl_b32 s23, s19, 3
    s_add_u32 s23, s23, s13
    s_mul_i32 s23, s23, 40960
    s_add_u32 s23, s23, {OF_OFF}
    s_lshl_b32 s6, s63, 9
    s_add_u32 s6, s6, s23
    s_lshl_b32 s7, s63, 7
    s_add_u32 s7, s7, s23
    s_add_u32 s7, s7, 16384
    s_lshl_b32 s15, s20, 2
    s_add_u32 s15, s15, s22
    s_lshl_b32 s15, s15, 4
    s_add_u32 s15, s15, s21
    s_lshl_b32 s15, s15, 5
    s_add_u32 s15, s15, s13
    s_lshl_b32 s15, s15, 2
    s_add_u32 s15, s15, {FLG_OFF}
    v_and_b32 v1, 31, v0
    v_lshrrev_b32 v2, 5, v0
    v_lshlrev_b32 v{AK1}, 4, v0
    v_lshrrev_b32 v3, 4, v1
    v_lshl_add_u32 v3, v3, 1, v2
    v_and_b32 v4, 15, v0
    v_lshl_add_u32 v3, v4, 2, v3
    v_lshlrev_b32 v{AK2}, 2, v3
    v_mul_u32_u24 v{AV}, 384, v2
    v_lshlrev_b32 v3, 6, v2
    v_cmp_gt_u32 vcc, 16, v1
    s_nop 1
    v_cndmask_b32 v{AV}, v3, v{AV}, vcc
    v_lshl_add_u32 v{AV}, v1, 4, v{AV}
    v_add_u32 v{BK1}, 15360, v{AK1}
    v_add_u32 v{BK2}, 15360, v{AK2}
    v_add_u32 v{BV}, 15360, v{AV}
    v_and_b32 v3, 27, v1
    v_cmp_eq_u32 vcc, 24, v3
    v_mov_b32 v3, 0x3f803f80
    v_bfe_u32 v{OA2}, v1, 3, 1
    v_cndmask_b32 v{ONES}, 0, v3, vcc
    v_mul_u32_u24 v{OA2}, 20480, v{OA2}
    v_and_b32 v3, 7, v1
    v_lshl_add_u32 v{OA2}, v3, 4, v{OA2}
    v_lshrrev_b32 v3, 4, v0
    v_lshl_add_u32 v{OA1}, v3, 7, v{OA2}
    s_lshl_b32 s23, s13, 2
    s_add_u32 s23, s23, {LFB}
    v_mov_b32 v{PA}, s23
    v_mov_b32 v{FA}, {LFB + 56}
    {p3_addr(0)}
    s_cmp_ge_u32 s16, 8
    s_cbranch_scc1 P1_EXTRA
    """)
    p1_compute(a)
    p1_extra(a)
    attention(a)
    helpers(a)
    a("L_DONE:")
    if STAMP == 4:
        i_, j_ = opt("ai", 0), opt("aj", 0)
        a(f"""s_waitcnt vmcnt(0)
        {st(NST-1)}
        s_waitcnt lgkmcnt(0)
        s_cmp_ge_u32 s16, {opt("aw", 4)}
        s_cbranch_scc1 L_END
        s_and_b32 s60, s2, {opt("am", 31)}
        s_cmp_lg_u32 s60, {opt("av", 5)}
        s_cbranch_scc1 L_END
        s_sub_u32 s60, s{64+2*j_}, s{64+2*i_}
        s_lshl_b32 s60, s60, 2
        s_min_u32 s60, s60, 100000
        {f's_mov_b32 s60, {opt("fix", 0)}' if opt("fix", 0) else ''}
L_AMP:
        s_memrealtime s[44:45]
        s_waitcnt lgkmcnt(0)
        s_sub_u32 s44, s44, s{64 if opt("fix", 0) else 64+2*(NST-1)}
        s_cmp_lt_u32 s44, s60
        s_cbranch_scc1 L_AMP
        """)
    elif STAMP == 3:
        r = f"s_waitcnt vmcnt(0)\n{st(NST-1)}\ns_mov_b64 exec, 1\n{srd(44, DBG_P, 256)}\ns_waitcnt lgkmcnt(0)\nv_mov_b32 v16, 0\n"
        r += "s_not_b32 s60, s64\nv_mov_b32 v0, s60\nbuffer_atomic_umax v0, v16, s[44:47], 0 offen offset:4 sc1\n"
        r += "s_cmp_eq_u32 s16, 0\ns_cbranch_scc1 L_D0\ns_cmp_eq_u32 s16, 4\ns_cbranch_scc0 L_END\n"
        for n, i in enumerate((2, 3, 4, 5, 7, 8, 9)): r += f"v_mov_b32 v{n+1}, s{64+2*i}\nbuffer_atomic_umax v{n+1}, v16, s[44:47], 0 offen offset:{8+4*n} sc1\n"
        r += "s_endpgm\nL_D0:\n"
        for n, i in enumerate((0, 1, 6, 8, 9, 10, 15)): r += f"v_mov_b32 v{n+1}, s{64+2*i}\nbuffer_atomic_umax v{n+1}, v16, s[44:47], 0 offen offset:{36+4*n} sc1\n"
        a(r)
    elif STAMP:
        r = f"s_waitcnt vmcnt(0)\n{st(NST-1)}\ns_mov_b64 exec, 1\ns_add_u32 s44, s{WS_P}, {STAMP_OFF}\ns_addc_u32 s45, s{WS_P+1}, 0\ns_mov_b32 s46, 262144\ns_mov_b32 s47, 0x20000\n"
        r += "s_lshl_b32 s60, s2, 4\ns_add_u32 s60, s60, s16\ns_lshl_b32 s60, s60, 6\ns_waitcnt lgkmcnt(0)\nv_mov_b32 v16, 0\n"
        if opt("xcc", 0): r += "s_getreg_b32 s66, hwreg(HW_REG_XCC_ID)\ns_add_u32 s66, s66, 100\n"
        for i in range(NST): r += f"v_mov_b32 v{i}, s{64+2*i}\n"
        for i in range(4): r += f"buffer_store_dwordx4 v[{4*i}:{4*i+3}], v16, s[44:47], s60 offen offset:{16*i}\n"
        a(r)
    a("L_END:\ns_endpgm\n.fill 256, 4, 0xbf810000\nL_CODE_END:")
    return f""".amdhsa_kernel {label}
  .amdhsa_next_free_vgpr 168
  .amdhsa_next_free_sgpr {100 if STAMP else 64}
  .amdhsa_accum_offset 168
  .amdhsa_group_segment_fixed_size 0
  .amdhsa_kernarg_size 96
  .amdhsa_user_sgpr_count 2
  .amdhsa_user_sgpr_kernarg_segment_ptr 1
  .amdhsa_system_sgpr_workgroup_id_x 1
.end_amdhsa_kernel
"""

def p1_loader(a):
    a(f"""
    s_setprio 3
    """)
    if opt("pf", 0):
        a(f"""
        v_lshlrev_b32 v20, 4, v0
        s_mul_i32 s23, s2, 10240
        s_and_b32 s24, s16, 1
        s_mul_i32 s24, s24, 5120
        s_add_u32 s23, s23, s24
        s_mul_i32 s25, s2, 3
        s_mov_b32 s31, 0x20000
        s_mov_b32 s35, 0x20000
        s_mov_b32 s34, {640*1280}
        s_waitcnt lgkmcnt(0)
        s_mov_b32 s30, {2048*1280}
        s_cmp_lt_u32 s16, 2
        s_cselect_b32 s28, s{X_P}, s{WQKV_P}
        s_cselect_b32 s29, s{X_P+1}, s{WQKV_P+1}
        s_cselect_b32 s30, s30, {640*3840}
        s_cselect_b32 s32, s8, s10
        s_cselect_b32 s33, s9, s11
        buffer_load_dwordx4 v[24:27], v20, s[28:31], s23 offen
        buffer_load_dwordx4 v[28:31], v20, s[28:31], s23 offen offset:1024
        buffer_load_dwordx4 v[32:35], v20, s[28:31], s23 offen offset:2048
        buffer_load_dwordx4 v[36:39], v20, s[28:31], s23 offen offset:3072
        s_add_u32 s23, s23, 4096
        buffer_load_dwordx4 v[40:43], v20, s[28:31], s23 offen
        s_lshr_b32 s24, s24, 11
        s_add_u32 s25, s25, s24
        s_mul_i32 s25, s25, 1280
        s_mov_b32 exec_hi, 0xff
        buffer_load_dwordx4 v[44:47], v20, s[32:35], s25 offen
        s_bitcmp1_b32 s16, 0
        s_cbranch_scc1 P1_PF1
        buffer_load_dwordx4 v[48:51], v20, s[32:35], s25 offen offset:1280
P1_PF1:
        s_mov_b32 exec_hi, -1
        """)
    a(f"""
    v_lshrrev_b32 v2, 3, v0
    v_and_b32 v3, 7, v0
    v_lshrrev_b32 v4, 4, v0
    v_xor_b32 v3, v3, v4
    v_lshlrev_b32 v3, 4, v3
    v_xor_b32 v4, 64, v3
    s_lshl_b32 s23, s21, 5
    s_lshr_b32 s24, s16, 1
    s_lshl_b32 s24, s24, 4
    s_add_u32 s23, s23, s24
    v_add_u32 v9, s23, v2
    s_bitcmp1_b32 s16, 0
    s_cselect_b32 s23, -1, 1
    s_cselect_b32 s24, 0x400, 0
    s_cselect_b32 s25, -8, 8
    v_mul_lo_u32 v10, v9, s23
    s_sub_u32 s27, 0x800, s24
    v_add_u32 v5, s24, v10
    v_sub_u32 v7, s27, v10
    v_add_u32 v6, s25, v5
    v_subrev_u32 v8, s25, v7
    v_cmp_eq_u32 vcc, 0, v9
    s_add_u32 s24, s24, 0x200
    v_mov_b32 v9, s24
    s_cmp_lg_u32 s22, 2
    v_cndmask_b32 v7, v7, v9, vcc
    s_cbranch_scc1 P1_LD_NV
    v_swap_b32 v6, v7
P1_LD_NV:
    s_lshl_b32 s26, s22, 2
    s_add_u32 s26, s26, s20
    s_and_b32 s27, s20, 1
    s_movk_i32 s25, 3840
    s_cmp_eq_u32 s22, 3
    s_cselect_b32 s25, 1280, s25
    s_cselect_b32 s26, s27, s26
    s_mul_i32 s26, s26, 320
    s_movk_i32 s27, 1280
    v_mad_u32_u24 v10, v5, s27, v3
    v_mad_u32_u24 v11, v6, s27, v4
    v_mad_u32_u24 v12, v7, s27, v3
    v_mad_u32_u24 v13, v8, s27, v4
    s_lshl_b32 s27, s16, 4
    s_mul_i32 s27, s27, s25
    s_add_u32 s26, s26, s27
    s_sub_u32 s27, s25, 320
    """)
    for i in range(5):
        a(f"""
        v_add_u32 v5, {64*i}, v0
        v_mul_u32_u24 v6, 3277, v5
        v_lshrrev_b32 v6, 16, v6
        v_lshrrev_b32 v7, 2, v6
        v_and_b32 v7, 2, v7
        v_xor_b32 v5, v5, v7
        v_lshl_add_u32 v5, v5, 4, s26
        v_mad_u32_u24 v{14+i}, v6, s27, v5
        """)
    sg = opt("stag1", 5)
    if sg == 1:
        a("s_lshl_b32 s36, s19, 3\ns_lshl_b32 s37, s22, 4\ns_add_u32 s36, s36, s37\ns_add_u32 s36, s36, s17\ns_and_b32 s36, s36, 63\ns_mul_i32 s36, s36, 10\ns_lshr_b32 s36, s36, 6")
    elif sg == 2:
        a("s_add_u32 s36, s19, s22\ns_lshl_b32 s36, s36, 4\ns_add_u32 s36, s36, s17\ns_add_u32 s36, s36, s17\ns_and_b32 s36, s36, 63\ns_mul_i32 s36, s36, 10\ns_lshr_b32 s36, s36, 6")
    elif sg == 3:
        a("s_add_u32 s36, s19, s22\ns_lshl_b32 s36, s36, 5\ns_lshl_b32 s37, s17, 2\ns_add_u32 s36, s36, s37\ns_and_b32 s36, s36, 63\ns_mul_i32 s36, s36, 10\ns_lshr_b32 s36, s36, 6")
    elif sg >= 5:
        tsh = {5: 0, 6: 1, 7: 0, 8: 0, 9: 0}[sg]
        a(f"""
        s_lshr_b32 s36, s17, 1
        s_xor_b32 s36, s36, s17
        s_and_b32 s36, s36, 1
        {'s_min_u32 s37, s22, 2' if sg == 9 else f's_lshr_b32 s37, s22, {tsh}'}
        s_add_u32 s37, s37, s19
        s_lshr_b32 s46, s17, 2
        s_lshl_b32 s46, s46, 1
        s_add_u32 s37, s37, s46
        s_mul_i32 s46, s37, 52
        s_lshr_b32 s46, s46, 8
        s_mul_i32 s46, s46, 5
        s_sub_u32 s37, s37, s46
        s_lshl_b32 s37, s37, 2
        s_mov_b32 s46, 0x42086420
        s_mov_b32 s47, 0x6
        s_lshr_b64 s[46:47], s[46:47], s37
        s_and_b32 s46, s46, 0xfffff
        {'s_or_b32 s47, s46, 0x11111' + chr(10) + 's_lshl_b32 s37, s47, 20' + chr(10) + 's_or_b32 s46, s46, s37' + chr(10) + 's_lshr_b32 s47, s47, 12' if sg == 8 else 's_or_b32 s46, s46, 0x53100000' + chr(10) + 's_mov_b32 s47, 0x97'}
        s_mul_i32 s37, s36, 0x11111111
        s_xor_b32 s46, s46, s37
        s_xor_b32 s47, s47, s37
        """)
        if sg == 7:
            a("s_lshr_b32 s37, s47, 4\ns_and_b32 s37, s37, 15\ns_lshl_b64 s[46:47], s[46:47], 4\ns_or_b32 s46, s46, s37")
        a("s_and_b32 s36, s46, 15")
    else:
        a("s_mov_b32 s36, 0")
    a(f"""
    s_lshl_b32 s38, s16, 12
    s_add_u32 s38, s38, {RB0}
    s_mul_i32 s39, s16, 5120
    s_add_u32 s39, s39, {RB0 + 16384}
    s_mov_b32 s40, 0
    s_mul_i32 s34, s25, 640
    s_lshl_b32 s25, s25, 6
    s_mov_b32 s35, 0x20000
    s_waitcnt lgkmcnt(0)
    {srd(28, X_P, 2048*1280)}
    s_cmp_lt_u32 s20, 2
    s_cselect_b32 s32, s8, s10
    s_cselect_b32 s33, s9, s11
    s_cmp_eq_u32 s22, 3
    s_cselect_b32 s32, s32, s{WQKV_P}
    s_cselect_b32 s33, s33, s{WQKV_P+1}
    {st(1)}
    """)
    if opt("dftdelay", 0):
        a(f"""s_cmp_lg_u32 s22, 3
        s_cbranch_scc1 P1_LD_LOOP
        s_memrealtime s[42:43]
        s_waitcnt lgkmcnt(0)
        s_add_u32 s42, s42, {opt("dftdelay", 0)}
P1_DLY:
        s_memrealtime s[44:45]
        s_waitcnt lgkmcnt(0)
        s_cmp_lt_u32 s44, s42
        s_cbranch_scc1 P1_DLY
        """)
    a(f"""
P1_LD_LOOP:
    s_lshl_b32 s41, s36, 7
    s_mul_i32 s42, s36, s25
    s_add_u32 s43, s40, 2
    s_and_b32 s43, s43, 3
    s_mul_i32 s43, s43, {RSL}
    s_add_u32 s44, s43, s38
    s_add_u32 s45, s43, s39
    """)
    for i in range(4):
        a(f"s_add_u32 m0, s44, {1024*i}\ns_nop 0\nbuffer_load_dwordx4 v{10+i}, s[28:31], s41 offen lds")
    for i in range(5):
        a(f"s_add_u32 m0, s45, {1024*i}\ns_nop 0\nbuffer_load_dwordx4 v{14+i}, s[32:35], s42 offen lds")
    if opt("noload", 0): a("s_cmp_ge_u32 s40, 3\ns_cselect_b32 s30, 0, s30\ns_cselect_b32 s34, 0, s34")
    a(f"""
    {'s_lshr_b64 s[46:47], s[46:47], 4' + chr(10) + 's_and_b32 s36, s46, 15' if sg >= 5 else 's_add_u32 s36, s36, 1' + chr(10) + 's_cmp_eq_u32 s36, 10' + chr(10) + 's_cselect_b32 s36, 0, s36'}
    s_add_u32 s40, s40, 1
    s_cmp_eq_u32 s40, 1
    s_cbranch_scc1 P1_LD_LOOP
    s_waitcnt vmcnt(9)
    s_barrier
    s_cmp_lt_u32 s40, 10
    s_cbranch_scc1 P1_LD_LOOP
    s_waitcnt vmcnt(0)
    s_barrier
    s_branch HELPER
    """)

def p1_compute(a):
    X = 80; W = [96, 116]; XA = 136; WA = 137; CX = 142; CW = 144; PC = 149; L = 150; TT = 96
    def acc(b, T): return 20 * b + 4 * T
    a(f"""
    s_sub_u32 s61, s16, 4
    s_and_b32 s36, s61, 1
    s_lshr_b32 s37, s61, 1
    v_mov_b32 v{L}, v0
    v_and_b32 v1, 15, v0
    v_lshrrev_b32 v2, 4, v0
    v_lshrrev_b32 v3, 1, v1
    v_xor_b32 v3, v3, v2
    v_lshlrev_b32 v3, 4, v3
    v_lshl_add_u32 v3, v1, 7, v3
    s_lshl_b32 s23, s36, 13
    s_add_u32 s23, s23, {RB0}
    v_add_u32 v{XA}, s23, v3
    v_bfe_u32 v3, v0, 2, 2
    v_lshl_add_u32 v3, v2, 3, v3
    v_mul_u32_u24 v3, 320, v3
    v_add_u32 v3, {RB0 + 16384}, v3
    v_and_b32 v4, 16, v0
    v_lshlrev_b32 v4, 1, v4
    v_and_b32 v5, 3, v0
    s_mul_i32 s23, s37, 160
    v_lshl_add_u32 v6, v5, 3, s23
    """)
    for T in range(4):
        a(f"v_xor_b32 v7, v6, v4\nv_add_u32 v{WA+T}, v7, v3\nv_add_u32 v6, 40, v6")
    a(f"""
    v_mul_u32_u24 v6, 40, v5
    v_add3_u32 v6, v6, s23, 32
    v_xor_b32 v7, v6, v4
    v_add_u32 v{WA+4}, v7, v3
    v_mov_b32 v{PC}, 0xbf803f80
    s_lshl_b32 s26, s22, 2
    s_add_u32 s26, s26, s20
    s_lshl_b32 s26, s26, 1
    s_add_u32 s26, s26, s37
    s_cmp_eq_u32 s26, 28
    s_cselect_b32 s24, 0x10001, 0
    s_mov_b32 s25, s24
    s_cmp_eq_u32 s22, 3
    s_cselect_b32 s43, 10, 8
    s_mov_b32 s40, 0
    s_mov_b32 s42, {2 * RSL}
    """)
    for r in range(96): a(f"v_mov_b32 v{r}, 0")
    for r in range(20): a(f"v_mov_b32 v{W[1]+r}, 0")
    a(f"v_add_u32 v{CX}, s42, v{XA}")
    for T in range(5): a(f"v_add_u32 v{CW+T}, s42, v{WA+T}")
    a(f"s_waitcnt lgkmcnt(0)\n{srd(28, WS_P, WS_USED)}")
    a("s_cmp_ge_u32 s22, 2\ns_cbranch_scc1 P1_PRE_V")
    def mf(b, T, x, w, qk):
        d = vr(acc(b, T), 4)
        return f"v_mfma_f32_16x16x32_bf16 {d}, {vr(w,4)}, {vr(x,4)}, {d}" if qk else f"v_mfma_f32_16x16x32_bf16 {d}, {vr(x,4)}, {vr(w,4)}, {d}"
    def rdw(d, T, step): return [f"ds_read_b64_tr_b16 {vr(d+2*j,2)}, v{CW+T} offset:{(step // 2) * RSL + (step % 2) * 10240 + 1280 * j}" for j in range(2)]
    def rdx(d, b, step): return f"ds_read_b128 {vr(d,4)}, v{CX + step % 2} offset:{(step // 2) * RSL + 2048 * b}"
    TO = (1, 2, 3, 4, 0)
    def group(step, qk, reads=True):
        cur = W[1 - step]; nxt = W[step]
        rq = []
        for T in TO: rq += rdw(nxt + 4 * T, T, step)
        fill = []
        if step == 1:
            fill = ["s_add_u32 s40, s40, 1", "s_add_u32 s41, s40, 2", "s_and_b32 s41, s41, 3", f"s_mul_i32 s42, s41, {RSL}", f"v_add_u32 v{CX}, s42, v{XA}"] + [f"v_add_u32 v{CW+T}, s42, v{WA+T}" for T in range(5)]
        issued = 0
        for b in range(4):
            if reads:
                allow = [2, 15, issued + 1, issued][b]
                if b != 1: a(f"s_waitcnt lgkmcnt({min(15, allow)})")
            elif b == 0: a("s_waitcnt lgkmcnt(0)")
            for n, T in enumerate(TO):
                a(mf(b, T, X + 4 * b, cur + 4 * T, qk))
                if b == 0 and n < 2 and not qk:
                    for j in range(2): a(f"v_cndmask_b32 v{cur+2*n+j}, v{cur+2*n+j}, v{PC}, s[24:25]")
                if not reads: continue
                if step == 0 and b == 0:
                    if n == 0: a(f"v_xor_b32 v{CX+1}, 64, v{CX}")
                    if n == 1: a("s_barrier")
                    if n < 2: continue
                if n == 4: a(rdx(X + 4 * b, b, step)); issued += 1
                elif rq: a(rq.pop(0)); issued += 1
                elif fill:
                    a(fill.pop(0))
                    if fill: a(fill.pop(0))
        assert not reads or (not rq and not fill), (rq, fill)

    def tail(qk, epi):
        seq = [(b, T, ("x0", b), ("w0", T)) for b in range(4) for T in TO]
        marks = {}
        win = opt("win", 2)
        for step in range(4 - win):
            for b in range(4):
                for T in TO: seq.append((b, T, ("x", 0, step, b), ("w", step, T)))
        for T in range(5):
            for jj in range(2):
                for step in range(4 - win, 4):
                    for b in (2 * jj, 2 * jj + 1): seq.append((b, T, ("x", 0, step, b), ("w", step, T)))
                marks[len(seq) - 1] = (T, jj)
        last = {}
        for n, (_, _, x, w) in enumerate(seq): last[x] = n; last[w] = n
        loc = {("x0", b): X + 4 * b for b in range(4)}; loc.update({("w0", T): W[1] + 4 * T for T in range(5)})
        free = [W[0] + 4 * k for k in range(5)] + [XA]
        order = []
        for _, _, x, w in seq:
            for f in (w, x):
                if f not in loc and f not in order: order.append(f)
        done_at = {}; nrd = 0; waited = 0; pend = []; fill = []
        cnt = [0]; prev = [0]
        def em(t): a(t); cnt[0] += 1
        a(f"v_xor_b32 v{CX+1}, 64, v{CX}\ns_waitcnt lgkmcnt(0)\ns_barrier")
        bar2 = [True]
        def take():
            f = order.pop(0); loc[f] = free.pop(0)
            if bar2 and (f[1] if f[0] == "w" else f[2]) >= 2: em("s_barrier"); bar2.pop()
            p_ = rdw(loc[f], f[2], f[1]) if f[0] == "w" else [rdx(loc[f], f[3], f[2])]
            done_at[f] = nrd + len(p_)
            return p_
        def gap():
            t, at, after = fill[0]
            return max(at - cnt[0], prev[0] + after - cnt[0], 0)
        def put():
            em(fill.pop(0)[0]); prev[0] = cnt[0]
        for n, (b, T, x, w) in enumerate(seq):
            while any(f not in loc or (f in done_at and done_at[f] > nrd) for f in (x, w)):
                if not pend: pend = take()
                em(pend.pop(0)); nrd += 1
            need = max(done_at.get(x, 0), done_at.get(w, 0))
            if need > waited:
                waited = max(need, nrd - opt("tw", 6)); em(f"s_waitcnt lgkmcnt({nrd - waited})")
            em(mf(b, T, loc[x], loc[w], qk))
            if n in marks: fill += [(t, cnt[0] + 8, after) for t, after in epi(*marks[n])]
            for f in (x, w):
                if last[f] == n: free.append(loc[f])
            if not pend and order and free: pend = take()
            if pend: em(pend.pop(0)); nrd += 1
            for _ in range(2):
                if fill and gap() == 0: put()
        a(st(3))
        while fill:
            g_ = gap()
            if g_: a(f"s_nop {g_ - 1}"); cnt[0] += g_
            put()

    EA, EB = 167, 151
    def cv(d, r): return [f"v_cvt_pk_bf16_f32 v{d}, v{r}, v{r+1}", f"v_cvt_pk_bf16_f32 v{d+1}, v{r+2}, v{r+3}"]
    def epi_qk(ph, jj=0):
        if ph < 0:
            return f"""s_mov_b32 s35, {HG}
            s_movk_i32 s38, 2560
            s_cmp_eq_u32 s22, 0
            s_cselect_b32 s35, {HQ}, s35
            s_cselect_b32 s27, {Q_OFF}, {KV_OFF}
            s_cselect_b32 s38, 1280, s38
            s_lshl_b32 s26, s20, 1
            s_add_u32 s26, s26, s37
            s_lshl_b32 s26, s26, 2
            s_mul_i32 s26, s26, s35
            s_add_u32 s26, s26, s27
            s_lshl_b32 s23, s21, 1
            s_add_u32 s23, s23, s36
            s_lshl_b32 s23, s23, 1
            s_mul_i32 s23, s23, s38
            s_add_u32 s26, s26, s23
            s_add_u32 s27, s26, s38
            v_lshrrev_b32 v{EA}, 4, v{L}
            v_mul_lo_u32 v{EA}, v{EA}, s35
            v_and_b32 v{TT}, 15, v{L}
            v_lshl_add_u32 v{EA}, v{TT}, 4, v{EA}
            v_lshlrev_b32 v{EB}, 4, v{L}
            s_add_u32 s44, s26, s35
            s_add_u32 s45, s27, s35
            s_add_u32 s46, s44, s35
            s_add_u32 s47, s45, s35
            s_add_u32 s32, s46, s35
            s_add_u32 s33, s47, s35""".split("\n")
        T = ph
        r0, r1 = acc(2 * jj, T), acc(2 * jj + 1, T)
        o = [(t, 0) for t in cv(r0, r0) + cv(r0 + 2, r1)]
        if T < 4:
            o += [(f"v_permlane16_swap_b32 v{r0}, v{r0+2}", 1), (f"v_permlane16_swap_b32 v{r0+1}, v{r0+3}", 0)]
            o.append((f"buffer_store_dwordx4 {vr(r0,4)}, v{EB}, s[28:31], s{(26, 44, 46, 32)[T] + jj} offen sc1", 0))
        else:
            o.append((f"buffer_store_dwordx4 {vr(r0,4)}, v{EA}, s[28:31], s{26 + jj} offen offset:1024 sc1", 0))
        return o
    def epi_v(ph, jj=0):
        if ph < 0:
            return f"""s_lshl_b32 s26, s20, 1
            s_add_u32 s26, s26, s37
            s_mul_i32 s26, s26, {4*HG}
            s_lshl_b32 s23, s21, 1
            s_add_u32 s23, s23, s36
            s_mul_i32 s23, s23, 5120
            s_add_u32 s26, s26, s23
            s_add_u32 s26, s26, {KV_OFF + 1280}
            s_add_u32 s44, s26, {HG}
            s_add_u32 s45, s26, {2*HG}
            s_add_u32 s46, s26, {3*HG}
            s_mov_b32 s35, {HG}
            v_lshrrev_b32 v{EA}, 5, v{L}
            v_mul_u32_u24 v{EA}, 640, v{EA}
            v_bfe_u32 v{TT}, v{L}, 4, 1
            v_lshl_add_u32 v{EB}, v{TT}, 6, v{EA}
            v_mul_u32_u24 v{TT}, 384, v{TT}
            v_add_u32 v{EA}, v{EA}, v{TT}
            v_and_b32 v{TT}, 15, v{L}
            v_lshl_add_u32 v{EA}, v{TT}, 4, v{EA}
            v_and_b32 v{TT}, 3, v{L}
            v_lshl_add_u32 v{EB}, v{TT}, 4, v{EB}
            v_bfe_u32 v{TT}, v{L}, 2, 2
            v_mul_lo_u32 v{TT}, v{TT}, s35
            v_add_u32 v{EB}, v{EB}, v{TT}""".split("\n")
        T = ph
        r0, r1 = acc(2 * jj, T), acc(2 * jj + 1, T)
        o = [(t, 0) for t in cv(r0, r0) + cv(r0 + 2, r1)]
        if T < 4: o.append((f"buffer_store_dwordx4 {vr(r0,4)}, v{EA}, s[28:31], s{(26, 44, 45, 46)[T]} offen offset:{2560 * jj} sc1", 0))
        else: o.append((f"buffer_store_dwordx4 {vr(r0,4)}, v{EB}, s[28:31], s26 offen offset:{2560 * jj + 256} sc1", 0))
        return o

    for qk, lab in ((True, "QK"), (False, "V")):
        a(f"P1_PRE_{lab}:")
        for f in (epi_qk if qk else epi_v)(-1): a(f)
        a(f"P1_LOOP_{lab}:")
        group(0, qk)
        if STAMP: a(f"s_cmp_lg_u32 s40, 0\ns_cbranch_scc1 P1_ST_{lab}\n{st(2)}\nP1_ST_{lab}:\ns_cmp_lg_u32 s40, 5\ns_cbranch_scc1 P1_SU_{lab}\n{st(1)}\nP1_SU_{lab}:")
        group(1, qk)
        a(f"s_cmp_lt_u32 s40, s43\ns_cbranch_scc1 P1_LOOP_{lab}")
        if not qk: a("s_cmp_eq_u32 s22, 3\ns_cbranch_scc1 P1_EPI_DFT")
        a("s_cmp_eq_u32 s12, 1\ns_cselect_b32 s30, 0, s30")
        tail(qk, epi_qk if qk else epi_v)
        a(f"s_cmp_eq_u32 s12, 0\ns_cbranch_scc1 P1_DONE\ns_mov_b32 s30, {WS_USED}\nv_mov_b32 v88, {LFB + 56}\nv_mov_b32 v89, 1")
        ladd(a, 88, 89, 0)
        a("s_setprio 3\ns_barrier")
        for T in range(5):
            for jj in range(2): a((epi_qk if qk else epi_v)(T, jj)[-1][0])
        a("s_branch P1_DONE")
    a("P1_EPI_DFT:")
    group(0, False, reads=False)
    TAU, TAU0, E0 = 80, 81, 140
    a(f"""
    {st(3)}
    s_cmp_lt_u32 s20, 2
    s_cselect_b32 s38, 1.0, -1.0
    v_mov_b32 v{TAU}, s38
    v_cndmask_b32 v{TAU0}, v{TAU}, 1.0, s[24:25]
    s_lshl_b32 s26, s20, 1
    s_add_u32 s26, s26, s37
    s_mul_i32 s26, s26, 80
    v_and_b32 v88, 15, v{L}
    v_add_u32 v{E0}, s26, v88
    v_add_u32 v{E0+1}, 20, v{E0}
    v_add_u32 v{E0+2}, 40, v{E0}
    v_add_u32 v{E0+3}, 60, v{E0}
    v_and_b32 v89, 12, v{L}
    v_lshl_add_u32 v{E0+4}, v89, 2, v{E0}
    v_add_u32 v{E0+4}, 16, v{E0+4}
    s_lshl_b32 s23, s21, 1
    s_add_u32 s23, s23, s36
    s_cmp_lg_u32 s23, 0
    s_cbranch_scc1 P1_EPI_DFT2
    s_mov_b64 exec, 0xffff
    s_mov_b32 s27, {X512_OFF}
    """)
    for T in range(5):
        a(f"v_fma_f32 v{96+T}, v{acc(3,T)}, v{TAU0 if T == 0 else TAU}, v{acc(1,T)}")
        a(f"v_lshlrev_b32 v{104+T}, 2, v{E0+T}\nv_mov_b32 v{acc(1,T)}, 0\nv_mov_b32 v{acc(3,T)}, 0")
        a(f"buffer_store_dword v{96+T}, v{104+T}, s[28:31], s27 offen sc1")
    a(f"""
    s_mov_b64 exec, -1
P1_EPI_DFT2:
    s_lshl_b32 s26, s23, 9
    s_add_u32 s26, s26, {FE_OFF}
    s_mov_b32 s27, {FO_DELTA}
    v_bfe_u32 v88, v{L}, 4, 1
    v_mul_lo_u32 v88, v88, s27
    v_lshrrev_b32 v89, 5, v{L}
    v_lshl_add_u32 v88, v89, 8, v88
    """)
    for T in range(5):
        tau = TAU0 if T == 0 else TAU
        a0, a1, a2, a3 = (acc(b, T) for b in range(4))
        for q in range(4):
            a(f"v_fma_f32 v{a0+q}, v{a1+q}, v{tau}, v{a0+q}\nv_fma_f32 v{a3+q}, v{a2+q}, v{tau}, v{a3+q}")
        for q in range(4):
            a(f"v_add_f32 v{a1+q}, v{a0+q}, v{a3+q}\nv_sub_f32 v{a2+q}, v{a0+q}, v{a3+q}")
        a0 = 120 + 4 * T
        for f in cv(a0, a1) + cv(a0 + 2, a2): a(f)
        a(f"""
        v_lshrrev_b32 v89, 4, v{E0+T}
        v_lshl_add_u32 v89, v89, 14, v88
        v_and_b32 v{E0+T}, 15, v{E0+T}
        v_lshl_add_u32 v{E0+T}, v{E0+T}, 4, v89
        v_permlane16_swap_b32 v{a0}, v{a0+2}
        v_permlane16_swap_b32 v{a0+1}, v{a0+3}
        """)
    a(f"v_mov_b32 v88, {LFB + 56}\nv_mov_b32 v89, 1\ns_mov_b32 s12, {opt('dnu', 1)}")
    ladd(a, 88, 89, 0)
    if opt("dnu", 1): a("s_setprio 3\ns_barrier")
    for T in range(5): a(f"buffer_store_dwordx4 {vr(120+4*T,4)}, v{E0+T}, s[28:31], s26 offen sc1")
    a(f"""
P1_DONE:
    {st(14)}
    s_mov_b32 s34, 1
    s_branch ATT
    """)

def p1_extra(a):
    T0 = 40
    a(f"""
P1_EXTRA:
    s_sub_u32 s61, s16, 8
    """)
    if opt("cwarm", 1):
        a(f"""
        s_cmp_lg_u32 s16, 10
        s_cbranch_scc1 P1_NOCW
        s_lshl_b32 s23, s18, 10
        s_cmp_ge_u32 s23, L_CODE_END - {NAME}_kernel - 1023
        s_cbranch_scc1 P1_NOCW
        s_getpc_b64 s[44:45]
L_PC:
        s_sub_u32 s44, s44, L_PC - {NAME}_kernel
        s_subb_u32 s45, s45, 0
        v_lshl_add_u32 v40, v0, 4, s23
        global_load_dwordx4 v[44:47], v40, s[44:45]
P1_NOCW:
        """)
    a(f"""
    v_lshrrev_b32 v37, 4, v0
    v_and_b32 v38, 15, v0
    v_lshlrev_b32 v39, 4, v0
    v_mov_b32 v36, v0
    s_waitcnt lgkmcnt(0)
    {srd(28, WS_P, WS_USED)}
    {srd(32, DBG_P, 256)}
    s_cmp_lg_u32 s61, 0
    s_cbranch_scc1 P1_EX_A
    v_mov_b32 v1, 0
    v_lshlrev_b32 v2, 2, v0
    v_add_u32 v2, {LFB}, v2
    ds_write_b32 v2, v1
    s_waitcnt lgkmcnt(0)
    s_cmp_lt_u32 s2, 248
    s_cbranch_scc1 P1_EX_WAITRDY
    v_mov_b32 v4, 0
    v_mov_b32 v5, 0
    v_mov_b32 v6, 0
    v_mov_b32 v7, 0
    s_lshl_b32 s23, s17, 12
    s_add_u32 s23, s23, {FLG_OFF}
    buffer_store_dwordx4 v[4:7], v39, s[28:31], s23 offen sc1
    buffer_store_dwordx4 v[4:7], v39, s[28:31], s23 offen offset:1024 sc1
    buffer_store_dwordx4 v[4:7], v39, s[28:31], s23 offen offset:2048 sc1
    buffer_store_dwordx4 v[4:7], v39, s[28:31], s23 offen offset:3072 sc1
P1_EX_WAITRDY:
P1_EX_A:
    s_lshl_b32 s23, s2, 2
    s_add_u32 s23, s23, s61
    s_mov_b32 s40, 0
P1_TBL:
    s_lshr_b32 s24, s23, 5
    s_and_b32 s25, s23, 30
    s_and_b32 s26, s24, 1
    s_lshr_b32 s27, s24, 1
    s_lshl_b32 s27, s27, 6
    s_add_u32 s27, s27, s26
    s_and_b32 s26, s23, 1
    s_lshl_b32 s26, s26, 5
    s_add_u32 s27, s27, s26
    v_lshl_add_u32 v{T0}, v38, 1, s27
    s_lshl_b32 s25, s25, 4
    v_lshl_add_u32 v{T0+1}, v37, 3, s25
    v_mul_u32_u24 v{T0+1}, v{T0}, v{T0+1}
    v_and_b32 v{T0+1}, 0x7ff, v{T0+1}
    v_cvt_f32_u32 v{T0}, v{T0}
    v_cvt_f32_u32 v{T0+1}, v{T0+1}
    v_mul_f32 v{T0}, 0x3a000000, v{T0}
    v_mul_f32 v0, 0x3a000000, v{T0+1}
    """)
    for u in range(1, 8): a(f"v_add_f32 v{u}, v{u-1}, v{T0}")
    for u in range(1, 8): a(f"v_fract_f32 v{u}, v{u}")
    for u in range(8): a(f"v_cos_f32 v{8+u}, v{u}")
    for u in range(8): a(f"v_sin_f32 v{16+u}, v{u}")
    for j in range(4): a(f"v_cvt_pk_bf16_f32 v{24+j}, v{8+2*j}, v{9+2*j}")
    for j in range(4): a(f"v_cvt_pk_bf16_f32 v{28+j}, v{16+2*j}, v{17+2*j}")
    NB0 = opt("tblbar", 2)
    a(f"""
    s_cmp_lg_u32 s40, 0
    s_cbranch_scc1 P1_TBL_ST
    s_barrier
    {st(1, True)}
    s_cmp_lg_u32 s61, 0
    s_cbranch_scc1 P1_EX_NR
    s_cmp_lt_u32 s2, 248
    s_cbranch_scc1 P1_EX_NR
    v_mov_b32 v32, 1
    v_mov_b32 v33, 0
    s_lshl_b32 s24, s17, 2
    s_waitcnt vmcnt(0)
    s_mov_b64 exec, 1
    buffer_store_dword v32, v33, s[32:35], s24 offen sc1
    s_mov_b64 exec, -1
P1_EX_NR:
    """ + "".join(f"s_barrier\n{st(1 + b_, True)}\n" for b_ in range(1, NB0)) + f"""
    s_mov_b32 s40, 1
P1_TBL_ST:
    s_lshl_b32 s24, s23, 11
    s_add_u32 s24, s24, {TB_OFF}
    buffer_store_dwordx4 v[24:27], v39, s[28:31], s24 offen sc1
    buffer_store_dwordx4 v[28:31], v39, s[28:31], s24 offen offset:1024 sc1
    s_add_u32 s23, s23, 1024
    s_cmp_lt_u32 s23, 1056
    s_cbranch_scc1 P1_TBL
    """)
    nb = NB0
    assert nb <= 6
    a("".join(f"s_barrier\n{st(1 + b_, True)}\n" for b_ in range(nb, 6)))
    u = a.uid()
    a(f"""
    v_and_b32 v1, 7, v36
    v_lshlrev_b32 v1, 2, v1
    v_mov_b32 v2, 1
    s_mov_b32 s60, 0
    s_cmp_lg_u32 s61, 0
    s_cbranch_scc1 P1_EX_C
    buffer_load_dword v2, v1, s[32:35], 0 offen sc1
P1_EX_C:
    s_barrier
    {st(7, True)}
    s_barrier
    {st(8, True)}
L_RDY{u}:
    s_waitcnt vmcnt(0)
    v_cmp_eq_u32 vcc, 0, v2
    s_cbranch_vccz P1_EX_B
    s_sleep 1
    buffer_load_dword v2, v1, s[32:35], 0 offen sc1
    s_add_u32 s60, s60, 1
    s_cmp_lt_u32 s60, 0x40000
    s_cbranch_scc1 L_RDY{u}
P1_EX_B:
    s_waitcnt vmcnt(0)
    s_barrier
    {st(9, True)}
    s_barrier
    {st(10, True)}
    s_mov_b32 s34, 0
    """)

def attention(a):
    O = 0; S = [16, 32]; P = 48; Q1 = 56; Q2 = 60; K2 = 62; K1 = 64; V1 = 68; V2 = [72, 76]; T = 80
    a(f"""
ATT:
    s_setprio 3
    s_cmp_lt_u32 s13, 4
    s_cselect_b32 s32, {opt("o1", 4)}, {opt("y1", 4)}
    s_cselect_b32 s33, {opt("o2", 7)}, {opt("y2", 7)}
    s_movk_i32 s35, 0x106
    s_bitset1_b32 s35, s32
    s_bitset1_b32 s35, s33
    s_mov_b32 s24, 0xfffff
    s_mov_b32 s25, 0xfffff
    s_mul_i32 s27, s13, 1280
    v_mov_b32 v{Q2+1}, 0
    v_mov_b32 v{K2+1}, 0x3f803f80
    v_add_u32 v{T}, s27, v{AK1}
    v_add_u32 v{T+1}, s27, v{AK2}
    v_mov_b32 v{T+2}, 1
    """)
    for r in range(12): a(f"v_mov_b32 v{V1+r}, v{ONES}")
    for r in range(16): a(f"v_mov_b32 v{O+r}, 0")
    for r in range(4): a(f"v_mov_b32 v{P+4+r}, 0\nv_mov_b32 v{P+r}, -1")
    def rk1(d): return f"v_mfma_f32_32x32x8_bf16 {vr(d,16)}, {vr(K2,2)}, {vr(Q2,2)}, 0"
    def rk2(d): return f"v_mfma_f32_32x32x16_bf16 {vr(d,16)}, {vr(K1,4)}, {vr(Q1,4)}, {vr(d,16)}"
    def qk1(d): return f"v_mfma_f32_32x32x16_bf16 {vr(d,16)}, {vr(K1,4)}, {vr(Q1,4)}, 0"
    def qk2(d): return f"v_mfma_f32_32x32x8_bf16 {vr(d,16)}, {vr(K2,2)}, {vr(Q2,2)}, {vr(d,16)}"
    def pv(v, p): return f"v_mfma_f32_32x32x16_bf16 {vr(O,16)}, {vr(v,4)}, {vr(p,4)}, {vr(O,16)}"
    def of(t): return (t - 6 if t in (6, 7) else t) * 2560
    def rdk1(t): return f"ds_read_b128 {vr(K1,4)}, v{BK1 if t in (6, 7) else AK1} offset:{of(t)}"
    def rdk2(t): return f"ds_read_b32 v{K2}, v{BK2 if t in (6, 7) else AK2} offset:{of(t)+1024}"
    def rdv(t, v2):
        b = BV if t in (6, 7) else AV
        return f"s_mov_b64 exec, s[24:25]\nds_read_b128 {vr(V1,4)}, v{b} offset:{of(t)+1280}\nds_read_b128 {vr(v2,4)}, v{b} offset:{of(t)+1920}\ns_mov_b64 exec, -1"
    def maxtree(s, m, first):
        if first:
            a(f"v_max3_f32 v{m}, v{s}, v{s+1}, v{s+2}\nv_max3_f32 v{m+1}, v{s+3}, v{s+4}, v{s+5}")
            for j in range(6, 14, 4): a(f"v_max3_f32 v{m}, v{s+j}, v{s+j+1}, v{m}\nv_max3_f32 v{m+1}, v{s+j+2}, v{s+j+3}, v{m+1}")
            a(f"v_max3_f32 v{m}, v{s+14}, v{s+15}, v{m}\nv_max_f32 v{m}, v{m}, v{m+1}")
        else:
            for j in range(0, 16, 2): a(f"v_max3_f32 v{m}, v{s+j}, v{s+j+1}, v{m}")
    def xhalf(m):
        a(f"v_mov_b32 v{m+1}, v{m}\ns_nop 1\nv_permlane32_swap_b32 v{m}, v{m+1}\ns_nop 0\nv_max_f32 v{m}, v{m}, v{m+1}")
    a(f"""
    s_cmp_lg_u32 s34, 1
    s_cbranch_scc1 ATT_NOSIG
    """)
    if opt("comb", 1):
        a(f"""
        v_mov_b32 v{T+4}, {LFB + 44}
        s_and_b32 s23, s15, -128
        s_mov_b64 exec, 1
        s_waitcnt vmcnt(0)
        ds_add_rtn_u32 v{T+5}, v{T+4}, v{T+2}
        s_waitcnt lgkmcnt(0)
        v_cmp_eq_u32 vcc, 3, v{T+5}
        s_cbranch_vccz ATT_NOSIG
        buffer_store_dwordx4 {vr(P,4)}, v{O}, s[28:31], s23 offen sc1
        """)
    else:
        a(f"s_waitcnt vmcnt(0)\ns_mov_b64 exec, 1\nbuffer_store_dword v{T+2}, v{O}, s[28:31], s15 offen sc1")
    a(f"""
ATT_NOSIG:
    s_mov_b64 exec, -1
    {st(4)}
    s_and_b32 s23, s34, s12
    s_cbranch_scc1 ATT_NOP
    s_barrier
ATT_NOP:
    {st(6)}
    ds_read_b128 {vr(Q1,4)}, v{T} offset:{QLDS}
    ds_read_b32 v{Q2}, v{T+1} offset:{QLDS+1024}
    {rdk1(0)}
    {rdk2(0)}
    {rdv(0, V2[0])}
    s_waitcnt lgkmcnt(2)
    {qk1(S[1])}
    {qk2(S[1])}
    """)
    for j in range(5): a(f"v_lshlrev_b32 v{S[0]+2*j}, 16, v{Q1+j}\nv_and_b32 v{S[0]+2*j+1}, 0xffff0000, v{Q1+j}")
    for j in range(10): a(f"v_mul_f32 v{S[0]+j}, {QSCALE:#x}, v{S[0]+j}")
    for j in range(5): a(f"v_cvt_pk_bf16_f32 v{Q1+j}, v{S[0]+2*j}, v{S[0]+2*j+1}")
    a(f"""
    s_nop 0
    {qk1(S[0])}
    {rdk1(1)}
    s_mov_b32 s26, 0
    """)
    maxtree(S[1], T, True); xhalf(T)
    a(f"""
    v_mul_f32 v{T}, {f32bits(-0.5 * (20 ** -0.5) * math.log2(math.e)):#x}, v{T}
    v_cvt_pk_bf16_f32 v{Q2+1}, v{T}, 0
    s_nop 1
    {qk2(S[0])}
    {rdk2(1)}
    buffer_store_dwordx4 {vr(P,4)}, v{OA1}, s[28:31], s6 offen sc1
    s_mov_b64 exec, 0xffff
    buffer_store_dwordx4 {vr(P,4)}, v{OA2}, s[28:31], s7 offen sc1
    s_mov_b64 exec, -1
    s_waitcnt lgkmcnt(0)
    {st(7)}
    s_nop 3
ATT_LOOP:
    """)
    def e(s, j): return f"v_exp_f32 v{s+j}, v{s+j}"
    def c(s, j): return f"v_cvt_pk_bf16_f32 v{P+j}, v{s+2*j}, v{s+2*j+1}"
    for j in range(8):
        cur, nxt = S[j % 2], S[(j + 1) % 2]
        a("s_waitcnt lgkmcnt(2)")
        if opt('rev', 0): a(rk1(nxt)); a(rdk2(j + 2))
        else: a(qk1(nxt)); a(rdk1(j + 2))
        for q in range(4): a(e(cur, q))
        a(pv(V2[(j + 1) % 2], P + 4))
        a("s_waitcnt lgkmcnt(1)")
        if j == 2: a(f"ds_write_b32 v{PA}, v{T+2}")
        for q in range(4, 8): a(e(cur, q))
        a(c(cur, 0)); a(c(cur, 1))
        if opt('rev', 0): a(rk2(nxt)); a(rdk1(j + 2))
        else: a(qk2(nxt)); a(rdk2(j + 2))
        a(c(cur, 2)); a(c(cur, 3))
        for q in range(8, 12): a(e(cur, q))
        a(pv(V1, P)); a(rdv(j + 1, V2[(j + 1) % 2]))
        for q in range(12, 16): a(e(cur, q))
        for q in range(4, 8): a(c(cur, q))
    a(f"""
    s_add_u32 s26, s26, 1
    s_movk_i32 s27, 0x5000
    s_cmp_eq_u32 s26, 7
    s_cselect_b32 s27, {(0x5000 - 62 * 2560) & 0xffffffff}, s27
    v_add_u32 v{AK1}, 0x5000, v{AK1}
    v_add_u32 v{AK2}, 0x5000, v{AK2}
    v_add_u32 v{AV}, 0x5000, v{AV}
    v_add_u32 v{BK1}, s27, v{BK1}
    v_add_u32 v{BK2}, s27, v{BK2}
    v_add_u32 v{BV}, s27, v{BV}
    v_add_u32 v{T+2}, 1, v{T+2}
    s_bitcmp1_b32 s35, s26
    s_cbranch_scc0 ATT_LOOP
    s_cmp_gt_u32 s26, 2
    s_cbranch_scc1 ATT_EV
    v_add_u32 v{FA}, 8, v{FA}
    s_waitcnt vmcnt(0)
ATT_WAIT:
    ds_read_b32 v{T}, v{FA}
    s_waitcnt lgkmcnt(0)
    v_readfirstlane_b32 s23, v{T}
    s_cmp_ge_u32 s23, 4
    s_cbranch_scc1 ATT_LOOP
    s_sleep 1
    s_branch ATT_WAIT
ATT_EV:
    s_setprio 2
    s_cmp_eq_u32 s26, s32
    s_cbranch_scc1 ATT_LOOP
    s_setprio 1
    s_cmp_lt_u32 s26, 8
    s_cbranch_scc1 ATT_LOOP
    s_setprio 3
    {pv(V2[1], P+4)}
    {st(8)}
    s_mov_b32 s27, 0x3e800000
    s_mov_b32 s23, 0x71800000
    s_nop 9
    """)
    a(f"v_rcp_f32 v{T+2}, v{O+12}\nv_add_f32 v{T}, |v{O}|, |v{O+1}|\nv_add_f32 v{T+1}, |v{O+2}|, |v{O+3}|")
    for j in range(4, 12, 2): a(f"v_add_f32 v{T}, |v{O+j}|, v{T}\nv_add_f32 v{T+1}, |v{O+j+1}|, v{T+1}")
    a(f"""
    v_add_f32 v{T}, v{T}, v{O+12}
    v_cmp_le_f32 s[42:43], s27, v{O+12}
    v_add_f32 v{T}, v{T}, v{T+1}
    v_cmp_gt_f32 vcc, s23, v{T}
    s_and_b64 vcc, vcc, s[42:43]
    s_cmp_eq_u64 vcc, -1
    s_cbranch_scc0 ATT_FALLBACK
ATT_FINISH:
    """)
    for j in range(8): a(f"v_mul_f32 v{O+j}, v{O+j}, v{T+2}")
    for j in range(4): a(f"v_cvt_pk_bf16_f32 v{P+j}, v{O+2*j}, v{O+2*j+1}")
    for j in range(4): a(f"v_min_u32 v{P+j}, -2, v{P+j}")
    a(f"buffer_store_dwordx4 {vr(P,4)}, v{OA1}, s[28:31], s6 offen sc1")
    for j in range(8, 12): a(f"v_mul_f32 v{O+j}, v{O+j}, v{T+2}")
    for j in range(4, 6): a(f"v_cvt_pk_bf16_f32 v{P+j}, v{O+2*j}, v{O+2*j+1}")
    for j in range(4, 6): a(f"v_min_u32 v{P+j}, -2, v{P+j}")
    a(f"""
    s_nop 1
    v_permlane16_swap_b32 v{P+4}, v{P+6}
    v_permlane16_swap_b32 v{P+5}, v{P+7}
    s_mov_b64 exec, 0xffff
    buffer_store_dwordx4 {vr(P+4,4)}, v{OA2}, s[28:31], s7 offen sc1
    {st(9)}
    s_cmp_ge_u32 s13, 4
    s_cbranch_scc1 {"L_DONE" if STAMP else "L_END"}
    s_mov_b64 exec, -1
    s_xor_b32 s41, s13, {opt('gx', 2)}
    s_mov_b32 s47, 1
    s_branch P3_GO
    """)
    def gk(): return f"buffer_load_dwordx4 {vr(K1,4)}, v{AK1}, s[28:31], s23 offen sc1\nbuffer_load_dword v{K2}, v{AK2}, s[28:31], s23 offen offset:1024 sc1"
    a(f"""
ATT_FALLBACK:
    s_waitcnt lgkmcnt(0)
    v_mov_b32 v{Q2+1}, 0
    v_mov_b32 v{T}, 0xff800000
    v_subrev_u32 v{AK1}, {HS}, v{AK1}
    v_subrev_u32 v{AK2}, {HS}, v{AK2}
    v_subrev_u32 v{AV}, {HS}, v{AV}
    s_add_u32 s23, s14, {KV_OFF}
    s_mov_b32 s26, 0
ATT_FB1:
    {gk()}
    s_add_u32 s23, s23, 2560
    s_waitcnt vmcnt(0)
    {qk1(S[0])}
    {qk2(S[0])}
    s_nop 15
    """)
    maxtree(S[0], T, False)
    a("s_add_u32 s26, s26, 1\ns_cmp_lt_u32 s26, 64\ns_cbranch_scc1 ATT_FB1")
    xhalf(T)
    a(f"s_add_u32 s23, s14, {KV_OFF}\ns_mov_b32 s26, 0")
    for r in range(16): a(f"v_mov_b32 v{O+r}, 0")
    a(f"""
ATT_FB2:
    {gk()}
    s_mov_b64 exec, s[24:25]
    buffer_load_dwordx4 {vr(V1,4)}, v{AV}, s[28:31], s23 offen offset:1280 sc1
    buffer_load_dwordx4 {vr(V2[0],4)}, v{AV}, s[28:31], s23 offen offset:1920 sc1
    s_mov_b64 exec, -1
    s_add_u32 s23, s23, 2560
    s_waitcnt vmcnt(0)
    {qk1(S[0])}
    {qk2(S[0])}
    s_nop 15
    """)
    for q in range(16): a(f"v_sub_f32 v{S[0]+q}, v{S[0]+q}, v{T}")
    for q in range(16): a(e(S[0], q))
    a("s_nop 0")
    for q in range(8): a(c(S[0], q))
    a(f"""
    s_nop 1
    {pv(V1, P)}
    {pv(V2[0], P+4)}
    s_add_u32 s26, s26, 1
    s_cmp_lt_u32 s26, 64
    s_cbranch_scc1 ATT_FB2
    s_nop 15
    v_rcp_f32 v{T+2}, v{O+12}
    s_nop 0
    s_branch ATT_FINISH
    """)

def lwait(a, vaddr, vdat, mask, target, slp=8):
    u = a.uid()
    a(f"""
    s_mov_b64 exec, {mask}
    s_branch L_LWE{u}
L_LW{u}:
    s_sleep {slp}
L_LWE{u}:
    ds_read_b32 v{vdat}, v{vaddr}
    s_waitcnt lgkmcnt(0)
    v_cmp_gt_u32 vcc, {target}, v{vdat}
    s_cbranch_vccnz L_LW{u}
    s_mov_b64 exec, -1
    """)
def ladd(a, vaddr, vone, off):
    a(f"s_mov_b64 exec, 1\nds_add_u32 v{vaddr}, v{vone} offset:{off}\ns_mov_b64 exec, -1")

def helpers(a):
    WA, VG, VZ, SH, HPA, HONE, YFA, FZ, SG, XA5, LF = 112, 117, 118, 119, 120, 121, 122, 123, 124, 125, 126
    ZL = 40; G = 167; VY = 162; T = 132
    a(f"""
HELPER:
    s_mov_b32 s61, s22
    {st(2)}
    {srd(28, WS_P, WS_USED)}
    s_setprio 0
    s_lshr_b32 s20, s18, 2
    s_mul_i32 s26, s20, 160
    s_movk_i32 s23, {1280 - 160}
    """)
    for i in range(5):
        a(f"""
        v_add_u32 v{T}, {64*i}, v0
        v_mul_u32_u24 v{T+1}, 6554, v{T}
        v_lshrrev_b32 v{T+1}, 16, v{T+1}
        v_lshlrev_b32 v{T}, 4, v{T}
        v_mad_u32_u24 v{WA+i}, v{T+1}, s23, v{T}
        """)
    a(f"""
    s_lshl_b32 s21, s17, 3
    s_and_b32 s22, s18, 3
    s_add_u32 s21, s21, s22
    s_lshr_b32 s22, s16, 1
    s_lshl_b32 s22, s22, 2
    s_add_u32 s21, s21, s22
    s_lshl_b32 s21, s21, 1
    s_and_b32 s22, s16, 1
    s_add_u32 s21, s21, s22
    s_lshr_b32 s22, s21, 2
    s_lshl_b32 s22, s22, 1
    s_and_b32 s24, s21, 1
    s_add_u32 s22, s22, s24
    s_lshl_b32 s22, s22, 3
    v_and_b32 v{T}, 7, v0
    v_add_u32 v{T}, s22, v{T}
    s_bitcmp1_b32 s21, 1
    s_cselect_b32 s22, 0x400, 0
    s_cselect_b32 s24, -1, 1
    v_mul_lo_u32 v{T+1}, v{T}, s24
    s_sub_u32 s24, 0x800, s22
    v_sub_u32 v{T+2}, s24, v{T+1}
    v_add_u32 v{T+1}, s22, v{T+1}
    v_and_b32 v{T+3}, 8, v0
    v_cmp_ne_u32 vcc, 0, v{T+3}
    v_cmp_eq_u32 s[42:43], 0, v{T}
    v_lshlrev_b32 v{T+3}, 6, v{T+3}
    v_add_u32 v{T+3}, s22, v{T+3}
    v_cndmask_b32 v{T}, v{T+1}, v{T+2}, vcc
    v_lshrrev_b32 v{T+1}, 4, v0
    v_cndmask_b32 v{T}, v{T}, v{T+3}, s[42:43]
    v_mul_u32_u24 v{VY}, 1280, v{T}
    v_mul_u32_u24 v{T+2}, 40, v{T+1}
    v_add3_u32 v{VY}, v{VY}, v{T+2}, s26
    v_lshlrev_b32 v{VG}, 2, v{T}
    v_sub_u32 v{T+3}, 0x800, v{T}
    v_cmp_lt_u32 vcc, 0x400, v{T}
    v_min_u32 v{T}, v{T}, v{T+3}
    v_and_b32 v{T+3}, 1, v{T}
    v_mul_u32_u24 v{VZ}, {ZP}, v{T+3}
    v_lshrrev_b32 v{T+3}, 1, v{T}
    v_lshl_add_u32 v{VZ}, v{T+3}, 4, v{VZ}
    v_mov_b32 v{T+3}, 0x02020202
    v_cndmask_b32 v{SH}, 0, v{T+3}, vcc
    s_cmp_ge_u32 s20, 4
    s_mov_b32 s24, 0x05040100
    s_cselect_b32 s24, 0x07060302, s24
    s_cselect_b32 s40, -1, 1
    s_cselect_b32 s41, 155, 0
    v_xor_b32 v{SH}, s24, v{SH}
    s_mul_i32 s24, s20, 20
    v_mul_u32_u24 v{T+3}, 5, v{T+1}
    v_add_u32 v{T+3}, s24, v{T+3}
    v_mul_lo_u32 v{T+3}, v{T+3}, s40
    v_add_u32 v{T+3}, s41, v{T+3}
    v_mul_u32_u24 v{T+3}, {2*ZP}, v{T+3}
    v_add_u32 v{VZ}, v{VZ}, v{T+3}
    {p3_addr(0)}
    v_lshlrev_b32 v{HPA}, 2, v0
    v_add_u32 v{HPA}, {LFB}, v{HPA}
    v_mov_b32 v{HONE}, 1
    s_lshl_b32 s23, s2, 5
    s_add_u32 s23, s23, s16
    s_lshl_b32 s23, s23, 2
    s_add_u32 s23, s23, {FLG_OFF + 16}
    v_mov_b32 v{YFA}, s23
    v_lshrrev_b32 v{FZ}, 4, v0
    v_mul_u32_u24 v{FZ}, {2*ZP}, v{FZ}
    v_and_b32 v{T}, 15, v0
    v_lshl_add_u32 v{FZ}, v{T}, 4, v{FZ}
    v_lshlrev_b32 v{SG}, 31, v0
    v_and_b32 v{XA5}, 48, v0
    v_lshlrev_b32 v{LF}, 7, v0
    s_setprio 3
    s_lshr_b32 s19, s18, 3
    s_lshl_b32 s23, s17, 2
    s_add_u32 s19, s19, s23
    s_and_b32 s62, s18, 7
    s_mul_i32 s21, s19, {HG}
    v_lshlrev_b32 v1, 4, v0
    {st(3)}
    s_lshr_b32 s23, s19, 3
    s_lshl_b32 s23, s23, 13
    s_add_u32 s23, s23, {FLG_OFF}
    v_lshlrev_b32 v2, 7, v0
    v_add_u32 v2, s23, v2
    s_add_u32 s24, s21, {KV_OFF}
    s_lshl_b32 s40, 0x10000, s16
    s_lshl_b32 s41, 1, s16
    s_mul_i32 s22, s16, 10240
    s_add_u32 s26, s24, s22
    s_cmp_lg_u32 s16, 3
    s_cbranch_scc1 H_JA
    s_lshl_b32 s25, s62, 1
    s_lshl_b32 s40, 3, s25
    s_mov_b32 s41, 0
    s_mov_b32 s22, {QLDS}
    s_mul_i32 s26, s19, {HQ}
    s_mul_i32 s25, s62, 10240
    s_add_u32 s26, s26, s25
    s_add_u32 s26, s26, {Q_OFF}
H_JA:
    """)
    def job():
        r = f"s_add_u32 s25, s22, 5120\ns_cmp_ge_u32 s25, {LFB}\ns_cselect_b32 s25, 0, s25\n"
        for n in range(10):
            if n in (0, 3): r += f"s_add_u32 m0, s22, {1024*n}\ns_add_u32 s27, s26, {1024*n}\n"; o = 0
            if n in (5, 8): r += f"s_add_u32 m0, s25, {1024*(n-5)}\ns_add_u32 s27, s26, {1024*n}\n"; o = 0
            r += f"buffer_load_dwordx4 v1, s[28:31], s27 offen offset:{o} sc1 lds\n"; o += 1024
        return r
    if opt("latep", 1):
        a(f"s_mul_i32 s23, s12, 12\ns_cmp_eq_u32 s61, 3\ns_cselect_b32 s23, 12, s23\ns_add_u32 s23, s23, {LFB + 44}\nv_mov_b32 v3, s23")
        lwait(a, 3, 4, 1, 4, 2)
        if opt("lps", 0): a(f"s_sleep {opt('lps', 0)}")
    poll4(a, 2, 4, "s[40:41]")
    a(st(11)); a(job())
    a(f"""
    s_lshl_b32 s40, 0x80000, s16
    s_lshl_b32 s41, 8, s16
    s_add_u32 s22, s16, 3
    s_mul_i32 s22, s22, 10240
    s_add_u32 s26, s24, s22
    s_waitcnt vmcnt(0)
    {st(12)}
    s_barrier
    s_cmp_eq_u32 s16, 3
    s_cbranch_scc1 H_JB
    """)
    poll4(a, 2, 4, "s[40:41]")
    a(job())
    a(f"""
H_JB:
    s_lshl_b32 s41, 0x4440, s16
    s_and_b32 s41, s41, 0xffff
    s_lshl_b32 s40, s41, 16
    s_add_u32 s22, s16, 6
    s_mul_i32 s22, s22, 10240
    s_add_u32 s26, s24, s22
    s_waitcnt vmcnt(0)
    """)
    ladd(a, HPA, HONE, 64)
    lwait(a, HPA, 4, 0xff, 1)
    poll4(a, 2, 4, "s[40:41]", slp=8)
    a(f"{st(13)}\nH_JC:"); a(job())
    a(f"""
    s_add_u32 s22, s22, 40960
    s_add_u32 s26, s26, 40960
    s_cmp_lt_u32 s22, {HS}
    s_cbranch_scc1 H_JC
    s_waitcnt vmcnt(0)
    {st(4)}
    """)
    ladd(a, HPA, HONE, 72)
    a(f"""
    s_cmp_lt_u32 s16, 3
    s_cbranch_scc1 H_FNET
    """)
    a(f"""
    {srd(32, X_P, 2048*1280)}
    {srd(36, GATE_P, 1280)}
    v_lshrrev_b32 v2, 3, v0
    v_and_b32 v3, 7, v0
    v_lshlrev_b32 v3, 4, v3
    s_movk_i32 s22, 1280
    v_mad_u32_u24 v4, v2, s22, v3
    s_mul_i32 s23, s2, {8*1280}
    """)
    for j in range(10):
        a(f"buffer_load_dwordx4 {vr(24+8*j,4)}, v4, s[32:35], s23 offen offset:{128*j}")
        a(f"buffer_load_dwordx4 {vr(28+8*j,4)}, v3, s[36:39], 0 offen offset:{128*j}")
    a("v_mov_b32 v5, 0\nv_mov_b32 v6, 0\ns_waitcnt vmcnt(0)")
    for j in range(10):
        for q in range(4):
            a(f"v_dot2c_f32_bf16 v{5 + (q & 1)}, v{24+8*j+q}, v{28+8*j+q}")
    a(f"""
    s_nop 2
    v_add_f32 v5, v5, v6
    s_nop 1
    v_add_f32_dpp v5, v5, v5 quad_perm:[1,0,3,2] row_mask:0xf bank_mask:0xf
    s_nop 1
    v_add_f32_dpp v5, v5, v5 quad_perm:[2,3,0,1] row_mask:0xf bank_mask:0xf
    s_nop 1
    v_add_f32_dpp v5, v5, v5 row_half_mirror row_mask:0xf bank_mask:0xf
    v_mul_f32 v5, {f32bits(-math.log2(math.e)):#x}, v5
    v_exp_f32 v5, v5
    v_lshlrev_b32 v2, 2, v2
    v_add_f32 v5, 1.0, v5
    v_rcp_f32 v5, v5
    s_lshl_b32 s23, s2, 5
    s_add_u32 s23, s23, {G_OFF}
    buffer_store_dword v5, v2, s[28:31], s23 offen sc1
    s_branch H_MID
    """)
    C, SN, FB = 0, 8, 16
    a(f"""
H_FNET:
    {'s_branch H_MID' if opt('nofnet', 0) == 1 else ''}
    s_lshl_b32 s22, s16, 5
    s_add_u32 s22, s22, s18
    s_cmp_lt_u32 s22, 84
    s_cbranch_scc1 H_FN_A
    s_sub_u32 s24, s22, 84
    s_lshl_b32 s24, s24, 3
    s_add_u32 s24, s24, s17
    s_cmp_ge_u32 s24, 21
    s_cbranch_scc1 H_MID
    s_mov_b32 s23, 32
    s_branch H_FN_B
H_FN_A:
    s_mul_i32 s23, s22, 3121
    s_lshr_b32 s23, s23, 16
    s_mul_i32 s24, s23, 21
    s_sub_u32 s24, s22, s24
    s_lshl_b32 s23, s23, 3
    s_add_u32 s23, s23, s17
H_FN_B:
    s_mov_b32 s27, {FLG_OFF}
H_FN_P:
    """)
    poll4(a, LF, 4, "-1", "s27", slp=16)
    a(f"s_add_u32 s27, s27, 8192\ns_cmp_lt_u32 s27, {FLG_OFF + 32768}\ns_cbranch_scc1 H_FN_P")
    a(f"""
    s_and_b32 s25, s23, 1
    s_add_u32 s26, s24, 20
    s_cmp_eq_u32 s24, 20
    s_cselect_b32 s26, 20, s26
    s_lshl_b32 s32, s23, 16
    s_add_u32 s32, s32, {TB_OFF}
    s_mul_i32 s27, s25, {FO_DELTA}
    s_add_u32 s27, s27, {FE_OFF}
    s_lshl_b32 s33, s24, 14
    s_add_u32 s33, s33, s27
    s_lshl_b32 s34, s26, 14
    s_add_u32 s34, s34, s27
    s_cmp_eq_u32 s25, 0
    s_cselect_b32 s35, s24, s26
    s_lshl_b32 s35, s35, 6
    s_add_u32 s35, s35, {X512_OFF}
    buffer_load_dwordx4 v[128:131], v{XA5}, s[28:31], s35 offen sc1
    """)
    def fl(j):
        r = FB + 24 * j
        s_ = f"buffer_load_dwordx4 {vr(r,4)}, v163, s[28:31], s33 offen offset:{1024*j} sc1\n"
        s_ += f"buffer_load_dwordx4 {vr(r+4,4)}, v163, s[28:31], s34 offen offset:{1024*j} sc1\n"
        for k in range(4): s_ += f"buffer_load_dwordx4 {vr(r+8+4*k,4)}, v163, s[28:31], s32 offen offset:{1024*k} sc1\n"
        s_ += "s_add_u32 s32, s32, 4096\n"
        if j == 3: s_ += "s_add_u32 s33, s33, 4096\ns_add_u32 s34, s34, 4096\n"
        return s_
    def fm(j):
        r = FB + 24 * j
        s_ = ""
        if opt("nofnet", 0) == 2: return s_
        for sub in range(2):
            s_ += f"v_mfma_f32_16x16x32_bf16 {vr(C+4*sub,4)}, {vr(r,4)}, {vr(r+8+8*sub,4)}, {vr(C+4*sub,4)}\n"
            s_ += f"v_mfma_f32_16x16x32_bf16 {vr(SN+4*sub,4)}, {vr(r+4,4)}, {vr(r+12+8*sub,4)}, {vr(SN+4*sub,4)}\n"
        return s_
    for j in range(4): a(fl(j))
    a(f"""
    s_cmp_eq_u32 s25, 0
    s_cselect_b32 s36, 1.0, 0
    s_cselect_b32 s37, 0, 1.0
    v_or_b32 v161, s37, v{SG}
    v_or_b32 v160, s36, v{SG}
    s_waitcnt vmcnt(24)
    """)
    for r in range(8): a(f"v_mul_f32 v{C+r}, v160, v{128 + r % 4}\nv_mul_f32 v{SN+r}, v161, v{128 + r % 4}")
    a("s_mov_b32 s38, 0\nH_FN_LOOP:")
    for j in range(4):
        a("s_waitcnt vmcnt(18)"); a(fm(j)); a(fl(j))
    a("s_add_u32 s38, s38, 1\ns_cmp_lt_u32 s38, 3\ns_cbranch_scc1 H_FN_LOOP")
    for j in range(4):
        a(f"s_waitcnt vmcnt({18-6*j})"); a(fm(j))
    a(f"""
    s_cmp_eq_u32 s26, 20
    s_cselect_b32 s44, 0xffff, 0
    s_mov_b32 s45, 0
    s_mul_i32 s26, s24, {8*ZP}
    s_mul_i32 s27, s25, {ZP}
    s_add_u32 s26, s26, s27
    s_lshr_b32 s27, s23, 1
    s_lshl_b32 s27, s27, 9
    s_add_u32 s26, s26, s27
    s_add_u32 s26, s26, {Y_OFF}
    v_cndmask_b32 v{SN}, v{SN}, 0, s[44:45]
    v_cndmask_b32 v{SN+4}, v{SN+4}, 0, s[44:45]
    """)
    for r in range(8):
        a(f"v_add_f32 v{16+r}, v{C+r}, v{SN+r}\nv_sub_f32 v{C+r}, v{C+r}, v{SN+r}")
    for r in range(8): a(f"v_cvt_pk_bf16_f32 v{16+r}, v{16+r}, v{C+r}")
    a(f"buffer_store_dwordx4 v[16:19], v{FZ}, s[28:31], s26 offen sc1\nbuffer_store_dwordx4 v[20:23], v{FZ}, s[28:31], s26 offen offset:256 sc1")
    a(f"""
H_MID:
    s_lshl_b32 s19, s17, 2
    s_and_b32 s20, s18, 3
    s_add_u32 s19, s19, s20
    s_lshr_b32 s20, s18, 2
    {srd(32, WO_P, 640*1280)}
    {srd(36, OUT_P, 2621440)}
    s_mul_i32 s26, s20, 160
    s_mul_i32 s27, s16, {160*1280}
    s_add_u32 s27, s27, s26
    s_movk_i32 s23, {1280 - 160}
    """)
    a(f"""
    s_add_u32 s25, s16, 1
    s_and_b32 s25, s25, 3
    s_mul_i32 s22, s25, 25600
    s_add_u32 s22, s22, {WOL}
    s_add_u32 s25, s25, 3
    s_waitcnt vmcnt(0)
    {st(5)}
    """)
    lwait(a, HPA, T + 1, 0xff, 2)
    a(f"s_mov_b64 exec, 1\nbuffer_store_dword v{HONE}, v{YFA}, s[28:31], 0 offen sc1\ns_mov_b64 exec, -1")
    lwait(a, HPA, T + 1, 0xff, "s25")
    a(f"{st(6)}\ns_mov_b32 s25, 0\nH_WO:")
    for i in range(5):
        a(f"s_add_u32 m0, s22, {1024*i}\ns_nop 0\nbuffer_load_dwordx4 v{WA+i}, s[32:35], s27 offen lds")
    a(f"""
    s_add_u32 s22, s22, 5120
    s_add_u32 s27, s27, {32*1280}
    s_add_u32 s25, s25, 1
    s_cmp_lt_u32 s25, 5
    s_cbranch_scc1 H_WO
    s_cmp_lg_u32 s16, 3
    s_cbranch_scc1 H_YW
    """)
    lwait(a, HPA, T + 1, 0xff, opt("ypr", 5), 16)
    a(f"s_mov_b32 s27, {FLG_OFF + 16}\nH_YP:")
    poll4(a, LF, 4, "-1", "s27", slp=32)
    a(f"s_add_u32 s27, s27, 8192\ns_cmp_lt_u32 s27, {FLG_OFF + 32768}\ns_cbranch_scc1 H_YP")
    ladd(a, HPA, HONE, 40)
    a(f"H_YW:\nv_add_u32 v{T}, 40, v{HPA}")
    lwait(a, T, T + 1, 1, 1, 16)
    a("s_waitcnt vmcnt(0)")
    a(f"v_mov_b32 v{T}, 2")
    ladd(a, HPA, T, 32)
    a(f"{st(7)}\ns_mov_b32 s26, {Y_OFF}\ns_mov_b32 s27, {G_OFF}\nbuffer_load_dword v{G}, v{VG}, s[28:31], s27 offen sc1")
    for j in range(6):
        a(f"buffer_load_dwordx4 {vr(ZL+4*j,4)}, v{VZ}, s[28:31], s26 offen sc1\ns_add_u32 s26, s26, {2*ZP}")
    BF, OFR, ACC, YG = 0, 100, 120, 140
    VY2, G2 = 162, 167
    a(f"""
    s_waitcnt vmcnt(0)
    s_cmp_ge_u32 s20, 4
    s_cbranch_scc1 H_DESC
    """)
    for k in range(10): a(f"v_perm_b32 v{YG+10+k}, v{ZL+2*k+1}, v{ZL+2*k}, v{SH}")
    a("s_branch H_UNP\nH_DESC:")
    for k in range(10): a(f"v_perm_b32 v{YG+10+k}, v{ZL+19-2*k}, v{ZL+20-2*k}, v{SH}")
    a("H_UNP:")
    lwait(a, HPA, 8, 0xf, 8)
    a(f"""
    {st(8)}
    s_mov_b32 s41, s16
    s_mov_b32 s47, 0
P3_GO:
    s_setprio {opt('p3o', 0)}
    s_lshl_b32 s22, s17, 3
    s_and_b32 s23, s18, 3
    s_add_u32 s22, s22, s23
    s_lshl_b32 s22, s22, 1
    s_add_u32 s22, s22, s47
    s_mul_i32 s22, s22, 20480
    s_add_u32 s22, s22, {OF_OFF}
    s_lshl_b32 s44, s41, 12
    s_add_u32 s44, s44, s22
    s_lshl_b32 s45, s41, 10
    s_add_u32 s45, s45, s22
    s_add_u32 s45, s45, 16384
    s_lshl_b32 s46, s47, 2
    s_add_u32 s40, s46, {LFB + 80}
    s_add_u32 s46, s46, s41
    s_mul_i32 s46, s46, 5120
    s_add_u32 s46, s46, {WOL}
    s_mov_b32 s26, 0
    s_mov_b32 s42, 0
    v_mov_b32 v{CM}, {LFB + 32}
    """)
    lwait(a, CM, CT, 1, 8)
    a("P3_TRY:")
    for k in range(4):
        a(f"buffer_load_dwordx4 {vr(OFR+4*k,4)}, v{VA}, s[28:31], s44 offen offset:{1024*k} sc1")
    a(f"buffer_load_dwordx2 {vr(OFR+16,2)}, v{VT}, s[28:31], s45 offen sc1\nbuffer_load_dwordx2 {vr(OFR+18,2)}, v{VT}, s[28:31], s45 offen offset:128 sc1")
    a(f"""
    s_cmp_lg_u32 s26, 0
    s_cbranch_scc1 P3_CHK
    s_add_u32 s23, s41, 1
    s_and_b32 s23, s23, 3
    s_mul_i32 s23, s23, 25600
    s_add_u32 s23, s23, {WOL}
    v_add_u32 v{CM}, s23, v{BMM}
    v_add_u32 v{CT}, s23, v{BMT}
    """)
    for n in range(25):
        k, t = divmod(n, 5); d = BF + 4 * n
        bb, o, dj = (CM, k * 6400 + t * 8, 1280) if k < 4 else (CT, t * 8, 3200)
        a(f"ds_read_b64_tr_b16 {vr(d,2)}, v{bb} offset:{o}\nds_read_b64_tr_b16 {vr(d+2,2)}, v{bb} offset:{o+dj}")
    a(f"v_mov_b32 v{BMM}, {LFB + 36}\nv_mov_b32 v{BMT}, 1\ns_waitcnt lgkmcnt(0)")
    ladd(a, BMM, BMT, 0)
    b = OFR
    def mfs(k): return "\n".join(f"v_mfma_f32_16x16x32_bf16 {vr(ACC+4*t,4)}, {vr(BF+4*(5*k+t),4)}, {vr(OFR+4*k,4)}, {vr(ACC+4*t,4) if k else 0}" for t in range(5))
    if opt("spec", 1):
        a("P3_CHK:\ns_add_u32 s26, s26, 1\ns_mov_b32 s43, -1")
        for k in range(5):
            r = b + 4 * k
            a(f"""P3_C{k}:
            s_waitcnt vmcnt({max(0, 5 - k) if k < 4 else 0})
            v_max3_u32 v{CM}, v{r}, v{r+1}, v{r+2}
            v_max3_u32 v{CM}, v{r+3}, v{CM}, 1
            v_cmp_eq_u32 vcc, s43, v{CM}
            s_cbranch_vccnz P3_B{k}
            {mfs(k)}""")
        a(f"{'' if opt('fst', 0) else st(11)}\ns_branch P3_OK")
        for k in range(5):
            a(f"P3_B{k}:\ns_sleep {opt('p3s', 4)}")
            for kk in range(k, 4):
                a(f"buffer_load_dwordx4 {vr(OFR+4*kk,4)}, v{VA}, s[28:31], s44 offen offset:{1024*kk} sc1")
            a(f"buffer_load_dwordx2 {vr(OFR+16,2)}, v{VT}, s[28:31], s45 offen sc1\nbuffer_load_dwordx2 {vr(OFR+18,2)}, v{VT}, s[28:31], s45 offen offset:128 sc1")
            a(f"s_add_u32 s26, s26, 1\ns_cmp_lt_u32 s26, 0x40000\ns_cselect_b32 s43, -1, 0\ns_branch P3_C{k}")
        a("P3_OK:")
    else:
        a(f"P3_CHK:\ns_add_u32 s26, s26, 1\ns_waitcnt vmcnt(4)\nv_max3_u32 v{CM}, v{b}, v{b+1}, v{b+2}\nv_max3_u32 v{CT}, v{b+3}, v{b+4}, v{b+5}\nv_max3_u32 v{CM}, v{b+6}, v{b+7}, v{CM}\ns_waitcnt vmcnt(2)")
        a(f"v_max3_u32 v{CT}, v{b+8}, v{b+9}, v{CT}\nv_max3_u32 v{CM}, v{b+10}, v{b+11}, v{CM}\nv_max3_u32 v{CT}, v{b+12}, v{b+13}, v{CT}\nv_max3_u32 v{CM}, v{b+14}, v{b+15}, v{CM}\ns_waitcnt vmcnt(0)")
        a(f"""
    v_max3_u32 v{CT}, v{b+16}, v{b+17}, v{CT}
    v_max3_u32 v{CM}, v{b+18}, v{b+19}, v{CM}
    s_cmp_lt_u32 s26, 0x40000
    v_max_u32 v{CM}, v{CM}, v{CT}
    s_cbranch_scc0 P3_OK
    v_cmp_eq_u32 vcc, -1, v{CM}
    s_cbranch_vccz P3_OK
    s_sleep {opt("p3s", 4)}
    s_branch P3_TRY
P3_OK:
    {'' if opt('fst', 0) else st(11)}
    s_setprio {opt('p3p', 0)}
    """)
        for n in range(25):
            k, t = divmod(n, 5)
            a(f"v_mfma_f32_16x16x32_bf16 {vr(ACC+4*t,4)}, {vr(BF+4*n,4)}, {vr(OFR+4*k,4)}, {vr(ACC+4*t,4) if k else 0}")
    a("s_cmp_lg_u32 s42, 0\ns_cbranch_scc1 P3_WR")
    lwait(a, BMM, CT, 1, 8, 2)
    a(f"{str() if opt('fst', 0) else st(12)}\nP3_WR:\nv_add_u32 v{CM}, s46, v{VA}\nv_mov_b32 v{CT}, s40\ns_nop 1")
    for j in range(5): a(f"ds_write_b128 v{CM}, {vr(ACC+4*j,4)} offset:{1024*j}")
    a("s_waitcnt lgkmcnt(0)")
    ladd(a, CT, BMT, 0)
    a(f"""
    s_add_u32 s44, s44, {8*20480}
    s_add_u32 s45, s45, {8*20480}
    s_add_u32 s46, s46, {8*5120}
    s_add_u32 s40, s40, 8
    s_add_u32 s42, s42, 1
    s_cmp_ge_u32 s42, 2
    s_cbranch_scc1 P3_END
    s_cmp_ge_u32 s16, 4
    s_cbranch_scc1 P3_TRY
    """)
    for k in range(10): a(f"v_lshlrev_b32 v{YG+2*k}, 16, v{YG+10+k}\nv_and_b32 v{YG+2*k+1}, 0xffff0000, v{YG+10+k}")
    for k in range(20): a(f"v_mul_f32 v{YG+k}, v{YG+k}, v{G2}")
    a(f"""
    v_sub_f32 v{G2}, 1.0, v{G2}
    s_branch P3_TRY
P3_END:
    {st(10)}
    s_cmp_ge_u32 s16, 4
    s_cbranch_scc1 {"L_DONE" if STAMP else "L_END"}
    s_setprio 3
    s_lshl_b32 s23, s16, 2
    s_add_u32 s23, s23, {LFB + 80}
    v_mov_b32 v{CT}, s23
    s_mul_i32 s23, s16, 20480
    s_add_u32 s23, s23, {WOL}
    v_add_u32 v{CM}, s23, v{VA}
    """)
    lwait(a, CT, BMM, 1, 4, 1)
    a(st(9))
    for j in range(5):
        for g in range(4): a(f"ds_read_b128 {vr(16*j+4*g,4)}, v{CM} offset:{5120*g+1024*j}")
    for j in range(5):
        a(f"s_waitcnt lgkmcnt({min(15, 16-4*j)})")
        for r in range(4): a(f"v_add_f32 v{16*j+r}, v{16*j+r}, v{16*j+4+r}\nv_add_f32 v{16*j+8+r}, v{16*j+8+r}, v{16*j+12+r}")
        for r in range(4): a(f"v_add_f32 v{16*j+r}, v{16*j+r}, v{16*j+8+r}")
        for r in range(4): a(f"v_fmac_f32 v{YG+4*j+r}, v{16*j+r}, v{G2}")
        a(f"v_cvt_pk_bf16_f32 v{84+2*j}, v{YG+4*j}, v{YG+4*j+1}\nv_cvt_pk_bf16_f32 v{84+2*j+1}, v{YG+4*j+2}, v{YG+4*j+3}")
        if j == 1: a(f"buffer_store_dwordx4 v[84:87], v{VY2}, s[36:39], 0 offen" + OSC)
        if j == 3: a(f"buffer_store_dwordx4 v[88:91], v{VY2}, s[36:39], 0 offen offset:16" + OSC)
    a(f"buffer_store_dwordx2 v[92:93], v{VY2}, s[36:39], 0 offen offset:32" + OSC)

def main():
    a = A()
    top = open("cdna_kernels/" + NAME + ".s.ref").read().split("; Override launch")[0]
    top += "; @launch grid=(256,1,1) block=(768,1,1) lds=163840\n"
    a('.amdgcn_target "amdgcn-amd-amdhsa--gfx950"\n.text')
    d = gen(a)
    open(sys.argv[1], "w").write(top + a.text() + '.section .rodata,"a"\n.p2align 6\n' + d)
if __name__ == "__main__":
    main()
```

```python
import sys, math, struct

OPT = dict(x.split("=") for x in sys.argv[2:])
def opt(k, d): return int(OPT.get(k, d))
NAME = "gated_mix__spectral_fnet__softmax_full_mha__prompt"
HS = 163840
KV_OFF = 0
HG = HS + opt('pad', 512)
HQ = 81920 + opt('pad', 512)
Q_OFF = 32 * HG
FE_OFF = Q_OFF + 32 * HQ
FO_DELTA = 655360
X512_OFF = FE_OFF + 2 * FO_DELTA
TB_OFF = X512_OFF + 4096
Y_OFF = TB_OFF + 33 * 65536
ZP = 8704
G_OFF = Y_OFF + 85 * 2 * ZP
OF_OFF = G_OFF + 8192
FLG_OFF = OF_OFF + 2621440
WS_USED = FLG_OFF + 320 * 128
XB = 102400
L_Y = 256
QLDS = 61440
RB0, RSL = 11264, 36864
LFB = 158720
WOL = 5120
AK1, AK2, AV, BK1, BK2, BV, OA1, OA2, ONES, PA, FA = range(152, 163)
VA, VT, BMM, BMT, CM, CT = 163, 164, 165, 166, 160, 161
PXB = 107520
def p3_addr(l):
    return f"""v_lshlrev_b32 v{VA}, 4, v{l}
    v_and_b32 v2, 7, v{l}
    v_bfe_u32 v4, v{l}, 3, 1
    v_lshrrev_b32 v3, 4, v{l}
    v_lshlrev_b32 v{VT}, 8, v3
    v_lshl_add_u32 v{VT}, v2, 4, v{VT}
    v_lshl_add_u32 v{VT}, v4, 3, v{VT}
    v_bfe_u32 v2, v{l}, 2, 2
    v_and_b32 v5, 3, v{l}
    v_mul_u32_u24 v5, 40, v5
    v_mul_u32_u24 v4, 40, v3
    v_add3_u32 v4, v4, v2, 16
    v_mul_u32_u24 v4, 160, v4
    v_add_u32 v{BMT}, v4, v5
    v_lshrrev_b32 v4, 1, v3
    v_mul_u32_u24 v4, 20, v4
    v_and_b32 v3, 1, v3
    v_lshl_add_u32 v4, v3, 2, v4
    v_add_u32 v4, v4, v2
    v_mul_u32_u24 v4, 160, v4
    v_add_u32 v{BMM}, v4, v5"""

def f32bits(x): return struct.unpack("<I", struct.pack("<f", x))[0]
QSCALE = f32bits((20 ** -0.5) * math.log2(math.e))
STAMP = opt("stamp", 0)
STAMP_OFF = 1 << 25
NST = 16

class A:
    def __init__(self): self.l = []; self.n = 0
    def __call__(self, s):
        for line in s.split("\n"):
            t = line.strip()
            if not t: continue
            self.l.append(t if t.endswith(":") or t.startswith(".") else "    " + t)
    def uid(self): self.n += 1; return self.n
    def text(self): return "\n".join(self.l) + "\n"

def vr(a, n): return f"v[{a}:{a+n-1}]" if n > 1 else f"v{a}"
def srd(lo, base, size):
    return f"s_mov_b32 s{lo}, s{base}\ns_mov_b32 s{lo+1}, s{base+1}\ns_mov_b32 s{lo+2}, {size}\ns_mov_b32 s{lo+3}, 0x20000"
OSC = " sc1" if opt("outsc1", 0) else ""
P1ST = opt("p1st", 0)
def st(i, p1=False):
    if not STAMP: return ""
    if P1ST and not p1 and 0 < i < 15 and i not in (4, 5): return ""
    if P1ST and not p1 and i in (4, 5): i += 8
    if p1 and not P1ST: return ""
    return f"{'s_memrealtime' if STAMP in (1, 3, 4) else 's_memtime'} s[{64+2*i}:{65+2*i}]"
def fin(): return "s_branch L_DONE" if STAMP else "s_endpgm"

X_P, WD_P, WQKV_P, WO_P, GATE_P, OUT_P, DBG_P, WS_P = 4, 8, 48, 50, 52, 54, 56, 58

def poll(a, vaddr, vdat, mask, target, sreg=60):
    u = a.uid()
    a(f"""
    s_mov_b64 exec, {mask}
    s_mov_b32 s{sreg}, 0
L_POLL{u}:
    buffer_load_dword v{vdat}, v{vaddr}, s[28:31], 0 offen sc1
    s_waitcnt vmcnt(0)
    v_cmp_gt_u32 vcc, {target}, v{vdat}
    s_cbranch_vccz L_POLLD{u}
    {'s_sleep 1' if opt('psleep', 0) else ''}
    s_add_u32 s{sreg}, s{sreg}, 1
    s_cmp_lt_u32 s{sreg}, 0x40000
    s_cbranch_scc1 L_POLL{u}
L_POLLD{u}:
    s_mov_b64 exec, -1
    """)

def poll4(a, vaddr, vdat, mask, soff="0", sreg=60, slp=None):
    u = a.uid()
    a(f"""
    s_mov_b64 exec, {mask}
    s_mov_b32 s{sreg}, 0
    s_branch L_POLLE{u}
L_POLL{u}:
    s_sleep {slp or opt("ps4", 2)}
L_POLLE{u}:
    buffer_load_dwordx4 {vr(vdat,4)}, v{vaddr}, s[28:31], {soff} offen sc1
    s_add_u32 s{sreg}, s{sreg}, 1
    s_waitcnt vmcnt(0)
    v_min3_u32 v{vdat}, v{vdat}, v{vdat+1}, v{vdat+2}
    s_cmp_lt_u32 s{sreg}, 0x40000
    v_min_u32 v{vdat}, v{vdat}, v{vdat+3}
    s_cbranch_scc0 L_POLLD{u}
    v_cmp_eq_u32 vcc, 0, v{vdat}
    s_cbranch_vccnz L_POLL{u}
L_POLLD{u}:
    s_mov_b64 exec, -1
    """)

def gen(a):
    label = NAME + "_kernel"
    a(f".p2align 8\n.globl {label}\n.type {label},@function\n{label}:")
    a(f"""
    s_cmp_ge_u32 s2, 256
    s_cbranch_scc1 L_END
    {st(0) + chr(10) + 's_waitcnt lgkmcnt(0)' if opt("st0first", 0) else ''}
    s_load_dwordx2 s[4:5], s[0:1], 0
    s_load_dwordx8 s[48:55], s[0:1], 48
    s_load_dwordx4 s[8:11], s[0:1], 24
    s_load_dwordx4 s[56:59], s[0:1], 80
    """)
    if STAMP:
        a("\n".join(f"s_mov_b32 s{64+j}, 0" for j in range(2, 2 * NST)) + "\n" + ("" if opt("st0first", 0) else st(0)))
    a(f"""
    v_lshrrev_b32 v1, 6, v0
    v_and_b32 v0, 63, v0
    s_and_b32 s17, s2, 7
    v_readfirstlane_b32 s16, v1
    s_lshr_b32 s18, s2, 3
    s_and_b32 s19, s18, 7
    s_lshr_b32 s22, s18, 3
    s_and_b32 s21, s17, 1
    s_lshl_b32 s23, s19, 1
    s_add_u32 s21, s21, s23
    s_lshr_b32 s20, s17, 1
    s_cmp_ge_u32 s19, {opt("numl", 3)}
    s_cselect_b32 s12, 1, 0
    s_cmp_eq_u32 s22, 0
    s_cselect_b32 s12, 0, s12
    s_cmp_ge_u32 s16, 4
    s_cbranch_scc1 P1_NOTLOADER
    """)
    p1_loader(a)
    a(f"""
P1_NOTLOADER:
    s_lshl_b32 s63, s17, 2
    s_add_u32 s63, s63, s22
    s_mul_i32 s14, s63, {HG}
    s_sub_u32 s13, s16, 4
    s_lshl_b32 s23, s19, 3
    s_add_u32 s23, s23, s13
    s_mul_i32 s23, s23, 40960
    s_add_u32 s23, s23, {OF_OFF}
    s_lshl_b32 s6, s63, 9
    s_add_u32 s6, s6, s23
    s_lshl_b32 s7, s63, 7
    s_add_u32 s7, s7, s23
    s_add_u32 s7, s7, 16384
    s_lshl_b32 s15, s20, 2
    s_add_u32 s15, s15, s22
    s_lshl_b32 s15, s15, 4
    s_add_u32 s15, s15, s21
    s_lshl_b32 s15, s15, 5
    s_add_u32 s15, s15, s13
    s_lshl_b32 s15, s15, 2
    s_add_u32 s15, s15, {FLG_OFF}
    v_and_b32 v1, 31, v0
    v_lshrrev_b32 v2, 5, v0
    v_lshlrev_b32 v{AK1}, 4, v0
    v_lshrrev_b32 v3, 4, v1
    v_lshl_add_u32 v3, v3, 1, v2
    v_and_b32 v4, 15, v0
    v_lshl_add_u32 v3, v4, 2, v3
    v_lshlrev_b32 v{AK2}, 2, v3
    v_mul_u32_u24 v{AV}, 384, v2
    v_lshlrev_b32 v3, 6, v2
    v_cmp_gt_u32 vcc, 16, v1
    s_nop 1
    v_cndmask_b32 v{AV}, v3, v{AV}, vcc
    v_lshl_add_u32 v{AV}, v1, 4, v{AV}
    v_add_u32 v{BK1}, 15360, v{AK1}
    v_add_u32 v{BK2}, 15360, v{AK2}
    v_add_u32 v{BV}, 15360, v{AV}
    v_and_b32 v3, 27, v1
    v_cmp_eq_u32 vcc, 24, v3
    v_mov_b32 v3, 0x3f803f80
    v_bfe_u32 v{OA2}, v1, 3, 1
    v_cndmask_b32 v{ONES}, 0, v3, vcc
    v_mul_u32_u24 v{OA2}, 20480, v{OA2}
    v_and_b32 v3, 7, v1
    v_lshl_add_u32 v{OA2}, v3, 4, v{OA2}
    v_lshrrev_b32 v3, 4, v0
    v_lshl_add_u32 v{OA1}, v3, 7, v{OA2}
    s_lshl_b32 s23, s13, 2
    s_add_u32 s23, s23, {LFB}
    v_mov_b32 v{PA}, s23
    v_mov_b32 v{FA}, {LFB + 56}
    {p3_addr(0)}
    s_cmp_ge_u32 s16, 8
    s_cbranch_scc1 P1_EXTRA
    """)
    p1_compute(a)
    p1_extra(a)
    attention(a)
    helpers(a)
    a("L_DONE:")
    if STAMP == 4:
        i_, j_ = opt("ai", 0), opt("aj", 0)
        a(f"""s_waitcnt vmcnt(0)
        {st(NST-1)}
        s_waitcnt lgkmcnt(0)
        s_cmp_ge_u32 s16, {opt("aw", 4)}
        s_cbranch_scc1 L_END
        s_and_b32 s60, s2, {opt("am", 31)}
        s_cmp_lg_u32 s60, {opt("av", 5)}
        s_cbranch_scc1 L_END
        s_sub_u32 s60, s{64+2*j_}, s{64+2*i_}
        s_lshl_b32 s60, s60, 2
        s_min_u32 s60, s60, 100000
        {f's_mov_b32 s60, {opt("fix", 0)}' if opt("fix", 0) else ''}
L_AMP:
        s_memrealtime s[44:45]
        s_waitcnt lgkmcnt(0)
        s_sub_u32 s44, s44, s{64 if opt("fix", 0) else 64+2*(NST-1)}
        s_cmp_lt_u32 s44, s60
        s_cbranch_scc1 L_AMP
        """)
    elif STAMP == 3:
        r = f"s_waitcnt vmcnt(0)\n{st(NST-1)}\ns_mov_b64 exec, 1\n{srd(44, DBG_P, 256)}\ns_waitcnt lgkmcnt(0)\nv_mov_b32 v16, 0\n"
        r += "s_not_b32 s60, s64\nv_mov_b32 v0, s60\nbuffer_atomic_umax v0, v16, s[44:47], 0 offen offset:4 sc1\n"
        r += "s_cmp_eq_u32 s16, 0\ns_cbranch_scc1 L_D0\ns_cmp_eq_u32 s16, 4\ns_cbranch_scc0 L_END\n"
        for n, i in enumerate((2, 3, 4, 5, 7, 8, 9)): r += f"v_mov_b32 v{n+1}, s{64+2*i}\nbuffer_atomic_umax v{n+1}, v16, s[44:47], 0 offen offset:{8+4*n} sc1\n"
        r += "s_endpgm\nL_D0:\n"
        for n, i in enumerate((0, 1, 6, 8, 9, 10, 15)): r += f"v_mov_b32 v{n+1}, s{64+2*i}\nbuffer_atomic_umax v{n+1}, v16, s[44:47], 0 offen offset:{36+4*n} sc1\n"
        a(r)
    elif STAMP:
        r = f"s_waitcnt vmcnt(0)\n{st(NST-1)}\ns_mov_b64 exec, 1\ns_add_u32 s44, s{WS_P}, {STAMP_OFF}\ns_addc_u32 s45, s{WS_P+1}, 0\ns_mov_b32 s46, 262144\ns_mov_b32 s47, 0x20000\n"
        r += "s_lshl_b32 s60, s2, 4\ns_add_u32 s60, s60, s16\ns_lshl_b32 s60, s60, 6\ns_waitcnt lgkmcnt(0)\nv_mov_b32 v16, 0\n"
        if opt("xcc", 0): r += "s_getreg_b32 s66, hwreg(HW_REG_XCC_ID)\ns_add_u32 s66, s66, 100\n"
        for i in range(NST): r += f"v_mov_b32 v{i}, s{64+2*i}\n"
        for i in range(4): r += f"buffer_store_dwordx4 v[{4*i}:{4*i+3}], v16, s[44:47], s60 offen offset:{16*i}\n"
        a(r)
    a("L_END:\ns_endpgm\n.fill 256, 4, 0xbf810000\nL_CODE_END:")
    return f""".amdhsa_kernel {label}
  .amdhsa_next_free_vgpr 168
  .amdhsa_next_free_sgpr {100 if STAMP else 64}
  .amdhsa_accum_offset 168
  .amdhsa_group_segment_fixed_size 0
  .amdhsa_kernarg_size 96
  .amdhsa_user_sgpr_count 2
  .amdhsa_user_sgpr_kernarg_segment_ptr 1
  .amdhsa_system_sgpr_workgroup_id_x 1
.end_amdhsa_kernel
"""

def p1_loader(a):
    a(f"""
    s_setprio 3
    """)
    if opt("pf", 0):
        a(f"""
        v_lshlrev_b32 v20, 4, v0
        s_mul_i32 s23, s2, 10240
        s_and_b32 s24, s16, 1
        s_mul_i32 s24, s24, 5120
        s_add_u32 s23, s23, s24
        s_mul_i32 s25, s2, 3
        s_mov_b32 s31, 0x20000
        s_mov_b32 s35, 0x20000
        s_mov_b32 s34, {640*1280}
        s_waitcnt lgkmcnt(0)
        s_mov_b32 s30, {2048*1280}
        s_cmp_lt_u32 s16, 2
        s_cselect_b32 s28, s{X_P}, s{WQKV_P}
        s_cselect_b32 s29, s{X_P+1}, s{WQKV_P+1}
        s_cselect_b32 s30, s30, {640*3840}
        s_cselect_b32 s32, s8, s10
        s_cselect_b32 s33, s9, s11
        buffer_load_dwordx4 v[24:27], v20, s[28:31], s23 offen
        buffer_load_dwordx4 v[28:31], v20, s[28:31], s23 offen offset:1024
        buffer_load_dwordx4 v[32:35], v20, s[28:31], s23 offen offset:2048
        buffer_load_dwordx4 v[36:39], v20, s[28:31], s23 offen offset:3072
        s_add_u32 s23, s23, 4096
        buffer_load_dwordx4 v[40:43], v20, s[28:31], s23 offen
        s_lshr_b32 s24, s24, 11
        s_add_u32 s25, s25, s24
        s_mul_i32 s25, s25, 1280
        s_mov_b32 exec_hi, 0xff
        buffer_load_dwordx4 v[44:47], v20, s[32:35], s25 offen
        s_bitcmp1_b32 s16, 0
        s_cbranch_scc1 P1_PF1
        buffer_load_dwordx4 v[48:51], v20, s[32:35], s25 offen offset:1280
P1_PF1:
        s_mov_b32 exec_hi, -1
        """)
    a(f"""
    v_lshrrev_b32 v2, 3, v0
    v_and_b32 v3, 7, v0
    v_lshrrev_b32 v4, 4, v0
    v_xor_b32 v3, v3, v4
    v_lshlrev_b32 v3, 4, v3
    v_xor_b32 v4, 64, v3
    s_lshl_b32 s23, s21, 5
    s_lshr_b32 s24, s16, 1
    s_lshl_b32 s24, s24, 4
    s_add_u32 s23, s23, s24
    v_add_u32 v9, s23, v2
    s_bitcmp1_b32 s16, 0
    s_cselect_b32 s23, -1, 1
    s_cselect_b32 s24, 0x400, 0
    s_cselect_b32 s25, -8, 8
    v_mul_lo_u32 v10, v9, s23
    s_sub_u32 s27, 0x800, s24
    v_add_u32 v5, s24, v10
    v_sub_u32 v7, s27, v10
    v_add_u32 v6, s25, v5
    v_subrev_u32 v8, s25, v7
    v_cmp_eq_u32 vcc, 0, v9
    s_add_u32 s24, s24, 0x200
    v_mov_b32 v9, s24
    s_cmp_lg_u32 s22, 2
    v_cndmask_b32 v7, v7, v9, vcc
    s_cbranch_scc1 P1_LD_NV
    v_swap_b32 v6, v7
P1_LD_NV:
    s_lshl_b32 s26, s22, 2
    s_add_u32 s26, s26, s20
    s_and_b32 s27, s20, 1
    s_movk_i32 s25, 3840
    s_cmp_eq_u32 s22, 3
    s_cselect_b32 s25, 1280, s25
    s_cselect_b32 s26, s27, s26
    s_mul_i32 s26, s26, 320
    s_movk_i32 s27, 1280
    v_mad_u32_u24 v10, v5, s27, v3
    v_mad_u32_u24 v11, v6, s27, v4
    v_mad_u32_u24 v12, v7, s27, v3
    v_mad_u32_u24 v13, v8, s27, v4
    s_lshl_b32 s27, s16, 4
    s_mul_i32 s27, s27, s25
    s_add_u32 s26, s26, s27
    s_sub_u32 s27, s25, 320
    """)
    for i in range(5):
        a(f"""
        v_add_u32 v5, {64*i}, v0
        v_mul_u32_u24 v6, 3277, v5
        v_lshrrev_b32 v6, 16, v6
        v_lshrrev_b32 v7, 2, v6
        v_and_b32 v7, 2, v7
        v_xor_b32 v5, v5, v7
        v_lshl_add_u32 v5, v5, 4, s26
        v_mad_u32_u24 v{14+i}, v6, s27, v5
        """)
    sg = opt("stag1", 5)
    if sg == 1:
        a("s_lshl_b32 s36, s19, 3\ns_lshl_b32 s37, s22, 4\ns_add_u32 s36, s36, s37\ns_add_u32 s36, s36, s17\ns_and_b32 s36, s36, 63\ns_mul_i32 s36, s36, 10\ns_lshr_b32 s36, s36, 6")
    elif sg == 2:
        a("s_add_u32 s36, s19, s22\ns_lshl_b32 s36, s36, 4\ns_add_u32 s36, s36, s17\ns_add_u32 s36, s36, s17\ns_and_b32 s36, s36, 63\ns_mul_i32 s36, s36, 10\ns_lshr_b32 s36, s36, 6")
    elif sg == 3:
        a("s_add_u32 s36, s19, s22\ns_lshl_b32 s36, s36, 5\ns_lshl_b32 s37, s17, 2\ns_add_u32 s36, s36, s37\ns_and_b32 s36, s36, 63\ns_mul_i32 s36, s36, 10\ns_lshr_b32 s36, s36, 6")
    elif sg >= 5:
        tsh = {5: 0, 6: 1, 7: 0, 8: 0, 9: 0}[sg]
        a(f"""
        s_lshr_b32 s36, s17, 1
        s_xor_b32 s36, s36, s17
        s_and_b32 s36, s36, 1
        {'s_min_u32 s37, s22, 2' if sg == 9 else f's_lshr_b32 s37, s22, {tsh}'}
        s_add_u32 s37, s37, s19
        s_lshr_b32 s46, s17, 2
        s_lshl_b32 s46, s46, 1
        s_add_u32 s37, s37, s46
        s_mul_i32 s46, s37, 52
        s_lshr_b32 s46, s46, 8
        s_mul_i32 s46, s46, 5
        s_sub_u32 s37, s37, s46
        s_lshl_b32 s37, s37, 2
        s_mov_b32 s46, 0x42086420
        s_mov_b32 s47, 0x6
        s_lshr_b64 s[46:47], s[46:47], s37
        s_and_b32 s46, s46, 0xfffff
        {'s_or_b32 s47, s46, 0x11111' + chr(10) + 's_lshl_b32 s37, s47, 20' + chr(10) + 's_or_b32 s46, s46, s37' + chr(10) + 's_lshr_b32 s47, s47, 12' if sg == 8 else 's_or_b32 s46, s46, 0x53100000' + chr(10) + 's_mov_b32 s47, 0x97'}
        s_mul_i32 s37, s36, 0x11111111
        s_xor_b32 s46, s46, s37
        s_xor_b32 s47, s47, s37
        """)
        if sg == 7:
            a("s_lshr_b32 s37, s47, 4\ns_and_b32 s37, s37, 15\ns_lshl_b64 s[46:47], s[46:47], 4\ns_or_b32 s46, s46, s37")
        a("s_and_b32 s36, s46, 15")
    else:
        a("s_mov_b32 s36, 0")
    a(f"""
    s_lshl_b32 s38, s16, 12
    s_add_u32 s38, s38, {RB0}
    s_mul_i32 s39, s16, 5120
    s_add_u32 s39, s39, {RB0 + 16384}
    s_mov_b32 s40, 0
    s_mul_i32 s34, s25, 640
    s_lshl_b32 s25, s25, 6
    s_mov_b32 s35, 0x20000
    s_waitcnt lgkmcnt(0)
    {srd(28, X_P, 2048*1280)}
    s_cmp_lt_u32 s20, 2
    s_cselect_b32 s32, s8, s10
    s_cselect_b32 s33, s9, s11
    s_cmp_eq_u32 s22, 3
    s_cselect_b32 s32, s32, s{WQKV_P}
    s_cselect_b32 s33, s33, s{WQKV_P+1}
    {st(1)}
    """)
    if opt("dftdelay", 0):
        a(f"""s_cmp_lg_u32 s22, 3
        s_cbranch_scc1 P1_LD_LOOP
        s_memrealtime s[42:43]
        s_waitcnt lgkmcnt(0)
        s_add_u32 s42, s42, {opt("dftdelay", 0)}
P1_DLY:
        s_memrealtime s[44:45]
        s_waitcnt lgkmcnt(0)
        s_cmp_lt_u32 s44, s42
        s_cbranch_scc1 P1_DLY
        """)
    a(f"""
P1_LD_LOOP:
    s_lshl_b32 s41, s36, 7
    s_mul_i32 s42, s36, s25
    s_add_u32 s43, s40, 2
    s_and_b32 s43, s43, 3
    s_mul_i32 s43, s43, {RSL}
    s_add_u32 s44, s43, s38
    s_add_u32 s45, s43, s39
    """)
    for i in range(4):
        a(f"s_add_u32 m0, s44, {1024*i}\ns_nop 0\nbuffer_load_dwordx4 v{10+i}, s[28:31], s41 offen lds")
    for i in range(5):
        a(f"s_add_u32 m0, s45, {1024*i}\ns_nop 0\nbuffer_load_dwordx4 v{14+i}, s[32:35], s42 offen lds")
    if opt("noload", 0): a("s_cmp_ge_u32 s40, 3\ns_cselect_b32 s30, 0, s30\ns_cselect_b32 s34, 0, s34")
    a(f"""
    {'s_lshr_b64 s[46:47], s[46:47], 4' + chr(10) + 's_and_b32 s36, s46, 15' if sg >= 5 else 's_add_u32 s36, s36, 1' + chr(10) + 's_cmp_eq_u32 s36, 10' + chr(10) + 's_cselect_b32 s36, 0, s36'}
    s_add_u32 s40, s40, 1
    s_cmp_eq_u32 s40, 1
    s_cbranch_scc1 P1_LD_LOOP
    s_waitcnt vmcnt(9)
    s_barrier
    s_cmp_lt_u32 s40, 10
    s_cbranch_scc1 P1_LD_LOOP
    s_waitcnt vmcnt(0)
    s_barrier
    s_branch HELPER
    """)

def p1_compute(a):
    X = 80; W = [96, 116]; XA = 136; WA = 137; CX = 142; CW = 144; PC = 149; L = 150; TT = 96
    def acc(b, T): return 20 * b + 4 * T
    a(f"""
    s_sub_u32 s61, s16, 4
    s_and_b32 s36, s61, 1
    s_lshr_b32 s37, s61, 1
    v_mov_b32 v{L}, v0
    v_and_b32 v1, 15, v0
    v_lshrrev_b32 v2, 4, v0
    v_lshrrev_b32 v3, 1, v1
    v_xor_b32 v3, v3, v2
    v_lshlrev_b32 v3, 4, v3
    v_lshl_add_u32 v3, v1, 7, v3
    s_lshl_b32 s23, s36, 13
    s_add_u32 s23, s23, {RB0}
    v_add_u32 v{XA}, s23, v3
    v_bfe_u32 v3, v0, 2, 2
    v_lshl_add_u32 v3, v2, 3, v3
    v_mul_u32_u24 v3, 320, v3
    v_add_u32 v3, {RB0 + 16384}, v3
    v_and_b32 v4, 16, v0
    v_lshlrev_b32 v4, 1, v4
    v_and_b32 v5, 3, v0
    s_mul_i32 s23, s37, 160
    v_lshl_add_u32 v6, v5, 3, s23
    """)
    for T in range(4):
        a(f"v_xor_b32 v7, v6, v4\nv_add_u32 v{WA+T}, v7, v3\nv_add_u32 v6, 40, v6")
    a(f"""
    v_mul_u32_u24 v6, 40, v5
    v_add3_u32 v6, v6, s23, 32
    v_xor_b32 v7, v6, v4
    v_add_u32 v{WA+4}, v7, v3
    v_mov_b32 v{PC}, 0xbf803f80
    s_lshl_b32 s26, s22, 2
    s_add_u32 s26, s26, s20
    s_lshl_b32 s26, s26, 1
    s_add_u32 s26, s26, s37
    s_cmp_eq_u32 s26, 28
    s_cselect_b32 s24, 0x10001, 0
    s_mov_b32 s25, s24
    s_cmp_eq_u32 s22, 3
    s_cselect_b32 s43, 10, 8
    s_mov_b32 s40, 0
    s_mov_b32 s42, {2 * RSL}
    """)
    for r in range(96): a(f"v_mov_b32 v{r}, 0")
    for r in range(20): a(f"v_mov_b32 v{W[1]+r}, 0")
    a(f"v_add_u32 v{CX}, s42, v{XA}")
    for T in range(5): a(f"v_add_u32 v{CW+T}, s42, v{WA+T}")
    a(f"s_waitcnt lgkmcnt(0)\n{srd(28, WS_P, WS_USED)}")
    a("s_cmp_ge_u32 s22, 2\ns_cbranch_scc1 P1_PRE_V")
    def mf(b, T, x, w, qk):
        d = vr(acc(b, T), 4)
        return f"v_mfma_f32_16x16x32_bf16 {d}, {vr(w,4)}, {vr(x,4)}, {d}" if qk else f"v_mfma_f32_16x16x32_bf16 {d}, {vr(x,4)}, {vr(w,4)}, {d}"
    def rdw(d, T, step): return [f"ds_read_b64_tr_b16 {vr(d+2*j,2)}, v{CW+T} offset:{(step // 2) * RSL + (step % 2) * 10240 + 1280 * j}" for j in range(2)]
    def rdx(d, b, step): return f"ds_read_b128 {vr(d,4)}, v{CX + step % 2} offset:{(step // 2) * RSL + 2048 * b}"
    TO = (1, 2, 3, 4, 0)
    def group(step, qk, reads=True):
        cur = W[1 - step]; nxt = W[step]
        rq = []
        for T in TO: rq += rdw(nxt + 4 * T, T, step)
        fill = []
        if step == 1:
            fill = ["s_add_u32 s40, s40, 1", "s_add_u32 s41, s40, 2", "s_and_b32 s41, s41, 3", f"s_mul_i32 s42, s41, {RSL}", f"v_add_u32 v{CX}, s42, v{XA}"] + [f"v_add_u32 v{CW+T}, s42, v{WA+T}" for T in range(5)]
        issued = 0
        for b in range(4):
            if reads:
                allow = [2, 15, issued + 1, issued][b]
                if b != 1: a(f"s_waitcnt lgkmcnt({min(15, allow)})")
            elif b == 0: a("s_waitcnt lgkmcnt(0)")
            for n, T in enumerate(TO):
                a(mf(b, T, X + 4 * b, cur + 4 * T, qk))
                if b == 0 and n < 2 and not qk:
                    for j in range(2): a(f"v_cndmask_b32 v{cur+2*n+j}, v{cur+2*n+j}, v{PC}, s[24:25]")
                if not reads: continue
                if step == 0 and b == 0:
                    if n == 0: a(f"v_xor_b32 v{CX+1}, 64, v{CX}")
                    if n == 1: a("s_barrier")
                    if n < 2: continue
                if n == 4: a(rdx(X + 4 * b, b, step)); issued += 1
                elif rq: a(rq.pop(0)); issued += 1
                elif fill:
                    a(fill.pop(0))
                    if fill: a(fill.pop(0))
        assert not reads or (not rq and not fill), (rq, fill)

    def tail(qk, epi):
        seq = [(b, T, ("x0", b), ("w0", T)) for b in range(4) for T in TO]
        marks = {}
        win = opt("win", 2)
        for step in range(4 - win):
            for b in range(4):
                for T in TO: seq.append((b, T, ("x", 0, step, b), ("w", step, T)))
        for T in range(5):
            for jj in range(2):
                for step in range(4 - win, 4):
                    for b in (2 * jj, 2 * jj + 1): seq.append((b, T, ("x", 0, step, b), ("w", step, T)))
                marks[len(seq) - 1] = (T, jj)
        last = {}
        for n, (_, _, x, w) in enumerate(seq): last[x] = n; last[w] = n
        loc = {("x0", b): X + 4 * b for b in range(4)}; loc.update({("w0", T): W[1] + 4 * T for T in range(5)})
        free = [W[0] + 4 * k for k in range(5)] + [XA]
        order = []
        for _, _, x, w in seq:
            for f in (w, x):
                if f not in loc and f not in order: order.append(f)
        done_at = {}; nrd = 0; waited = 0; pend = []; fill = []
        cnt = [0]; prev = [0]
        def em(t): a(t); cnt[0] += 1
        a(f"v_xor_b32 v{CX+1}, 64, v{CX}\ns_waitcnt lgkmcnt(0)\ns_barrier")
        bar2 = [True]
        def take():
            f = order.pop(0); loc[f] = free.pop(0)
            if bar2 and (f[1] if f[0] == "w" else f[2]) >= 2: em("s_barrier"); bar2.pop()
            p_ = rdw(loc[f], f[2], f[1]) if f[0] == "w" else [rdx(loc[f], f[3], f[2])]
            done_at[f] = nrd + len(p_)
            return p_
        def gap():
            t, at, after = fill[0]
            return max(at - cnt[0], prev[0] + after - cnt[0], 0)
        def put():
            em(fill.pop(0)[0]); prev[0] = cnt[0]
        for n, (b, T, x, w) in enumerate(seq):
            while any(f not in loc or (f in done_at and done_at[f] > nrd) for f in (x, w)):
                if not pend: pend = take()
                em(pend.pop(0)); nrd += 1
            need = max(done_at.get(x, 0), done_at.get(w, 0))
            if need > waited:
                waited = max(need, nrd - opt("tw", 6)); em(f"s_waitcnt lgkmcnt({nrd - waited})")
            em(mf(b, T, loc[x], loc[w], qk))
            if n in marks: fill += [(t, cnt[0] + 8, after) for t, after in epi(*marks[n])]
            for f in (x, w):
                if last[f] == n: free.append(loc[f])
            if not pend and order and free: pend = take()
            if pend: em(pend.pop(0)); nrd += 1
            for _ in range(2):
                if fill and gap() == 0: put()
        a(st(3))
        while fill:
            g_ = gap()
            if g_: a(f"s_nop {g_ - 1}"); cnt[0] += g_
            put()

    EA, EB = 167, 151
    def cv(d, r): return [f"v_cvt_pk_bf16_f32 v{d}, v{r}, v{r+1}", f"v_cvt_pk_bf16_f32 v{d+1}, v{r+2}, v{r+3}"]
    def epi_qk(ph, jj=0):
        if ph < 0:
            return f"""s_mov_b32 s35, {HG}
            s_movk_i32 s38, 2560
            s_cmp_eq_u32 s22, 0
            s_cselect_b32 s35, {HQ}, s35
            s_cselect_b32 s27, {Q_OFF}, {KV_OFF}
            s_cselect_b32 s38, 1280, s38
            s_lshl_b32 s26, s20, 1
            s_add_u32 s26, s26, s37
            s_lshl_b32 s26, s26, 2
            s_mul_i32 s26, s26, s35
            s_add_u32 s26, s26, s27
            s_lshl_b32 s23, s21, 1
            s_add_u32 s23, s23, s36
            s_lshl_b32 s23, s23, 1
            s_mul_i32 s23, s23, s38
            s_add_u32 s26, s26, s23
            s_add_u32 s27, s26, s38
            v_lshrrev_b32 v{EA}, 4, v{L}
            v_mul_lo_u32 v{EA}, v{EA}, s35
            v_and_b32 v{TT}, 15, v{L}
            v_lshl_add_u32 v{EA}, v{TT}, 4, v{EA}
            v_lshlrev_b32 v{EB}, 4, v{L}
            s_add_u32 s44, s26, s35
            s_add_u32 s45, s27, s35
            s_add_u32 s46, s44, s35
            s_add_u32 s47, s45, s35
            s_add_u32 s32, s46, s35
            s_add_u32 s33, s47, s35""".split("\n")
        T = ph
        r0, r1 = acc(2 * jj, T), acc(2 * jj + 1, T)
        o = [(t, 0) for t in cv(r0, r0) + cv(r0 + 2, r1)]
        if T < 4:
            o += [(f"v_permlane16_swap_b32 v{r0}, v{r0+2}", 1), (f"v_permlane16_swap_b32 v{r0+1}, v{r0+3}", 0)]
            o.append((f"buffer_store_dwordx4 {vr(r0,4)}, v{EB}, s[28:31], s{(26, 44, 46, 32)[T] + jj} offen sc1", 0))
        else:
            o.append((f"buffer_store_dwordx4 {vr(r0,4)}, v{EA}, s[28:31], s{26 + jj} offen offset:1024 sc1", 0))
        return o
    def epi_v(ph, jj=0):
        if ph < 0:
            return f"""s_lshl_b32 s26, s20, 1
            s_add_u32 s26, s26, s37
            s_mul_i32 s26, s26, {4*HG}
            s_lshl_b32 s23, s21, 1
            s_add_u32 s23, s23, s36
            s_mul_i32 s23, s23, 5120
            s_add_u32 s26, s26, s23
            s_add_u32 s26, s26, {KV_OFF + 1280}
            s_add_u32 s44, s26, {HG}
            s_add_u32 s45, s26, {2*HG}
            s_add_u32 s46, s26, {3*HG}
            s_mov_b32 s35, {HG}
            v_lshrrev_b32 v{EA}, 5, v{L}
            v_mul_u32_u24 v{EA}, 640, v{EA}
            v_bfe_u32 v{TT}, v{L}, 4, 1
            v_lshl_add_u32 v{EB}, v{TT}, 6, v{EA}
            v_mul_u32_u24 v{TT}, 384, v{TT}
            v_add_u32 v{EA}, v{EA}, v{TT}
            v_and_b32 v{TT}, 15, v{L}
            v_lshl_add_u32 v{EA}, v{TT}, 4, v{EA}
            v_and_b32 v{TT}, 3, v{L}
            v_lshl_add_u32 v{EB}, v{TT}, 4, v{EB}
            v_bfe_u32 v{TT}, v{L}, 2, 2
            v_mul_lo_u32 v{TT}, v{TT}, s35
            v_add_u32 v{EB}, v{EB}, v{TT}""".split("\n")
        T = ph
        r0, r1 = acc(2 * jj, T), acc(2 * jj + 1, T)
        o = [(t, 0) for t in cv(r0, r0) + cv(r0 + 2, r1)]
        if T < 4: o.append((f"buffer_store_dwordx4 {vr(r0,4)}, v{EA}, s[28:31], s{(26, 44, 45, 46)[T]} offen offset:{2560 * jj} sc1", 0))
        else: o.append((f"buffer_store_dwordx4 {vr(r0,4)}, v{EB}, s[28:31], s26 offen offset:{2560 * jj + 256} sc1", 0))
        return o

    for qk, lab in ((True, "QK"), (False, "V")):
        a(f"P1_PRE_{lab}:")
        for f in (epi_qk if qk else epi_v)(-1): a(f)
        a(f"P1_LOOP_{lab}:")
        group(0, qk)
        if STAMP: a(f"s_cmp_lg_u32 s40, 0\ns_cbranch_scc1 P1_ST_{lab}\n{st(2)}\nP1_ST_{lab}:\ns_cmp_lg_u32 s40, 5\ns_cbranch_scc1 P1_SU_{lab}\n{st(1)}\nP1_SU_{lab}:")
        group(1, qk)
        a(f"s_cmp_lt_u32 s40, s43\ns_cbranch_scc1 P1_LOOP_{lab}")
        if not qk: a("s_cmp_eq_u32 s22, 3\ns_cbranch_scc1 P1_EPI_DFT")
        a("s_cmp_eq_u32 s12, 1\ns_cselect_b32 s30, 0, s30")
        tail(qk, epi_qk if qk else epi_v)
        a(f"s_cmp_eq_u32 s12, 0\ns_cbranch_scc1 P1_DONE\ns_mov_b32 s30, {WS_USED}\nv_mov_b32 v88, {LFB + 56}\nv_mov_b32 v89, 1")
        ladd(a, 88, 89, 0)
        a("s_setprio 3\ns_barrier")
        for T in range(5):
            for jj in range(2): a((epi_qk if qk else epi_v)(T, jj)[-1][0])
        a("s_branch P1_DONE")
    a("P1_EPI_DFT:")
    group(0, False, reads=False)
    TAU, TAU0, E0 = 80, 81, 140
    a(f"""
    {st(3)}
    s_cmp_lt_u32 s20, 2
    s_cselect_b32 s38, 1.0, -1.0
    v_mov_b32 v{TAU}, s38
    v_cndmask_b32 v{TAU0}, v{TAU}, 1.0, s[24:25]
    s_lshl_b32 s26, s20, 1
    s_add_u32 s26, s26, s37
    s_mul_i32 s26, s26, 80
    v_and_b32 v88, 15, v{L}
    v_add_u32 v{E0}, s26, v88
    v_add_u32 v{E0+1}, 20, v{E0}
    v_add_u32 v{E0+2}, 40, v{E0}
    v_add_u32 v{E0+3}, 60, v{E0}
    v_and_b32 v89, 12, v{L}
    v_lshl_add_u32 v{E0+4}, v89, 2, v{E0}
    v_add_u32 v{E0+4}, 16, v{E0+4}
    s_lshl_b32 s23, s21, 1
    s_add_u32 s23, s23, s36
    s_cmp_lg_u32 s23, 0
    s_cbranch_scc1 P1_EPI_DFT2
    s_mov_b64 exec, 0xffff
    s_mov_b32 s27, {X512_OFF}
    """)
    for T in range(5):
        a(f"v_fma_f32 v{96+T}, v{acc(3,T)}, v{TAU0 if T == 0 else TAU}, v{acc(1,T)}")
        a(f"v_lshlrev_b32 v{104+T}, 2, v{E0+T}\nv_mov_b32 v{acc(1,T)}, 0\nv_mov_b32 v{acc(3,T)}, 0")
        a(f"buffer_store_dword v{96+T}, v{104+T}, s[28:31], s27 offen sc1")
    a(f"""
    s_mov_b64 exec, -1
P1_EPI_DFT2:
    s_lshl_b32 s26, s23, 9
    s_add_u32 s26, s26, {FE_OFF}
    s_mov_b32 s27, {FO_DELTA}
    v_bfe_u32 v88, v{L}, 4, 1
    v_mul_lo_u32 v88, v88, s27
    v_lshrrev_b32 v89, 5, v{L}
    v_lshl_add_u32 v88, v89, 8, v88
    """)
    for T in range(5):
        tau = TAU0 if T == 0 else TAU
        a0, a1, a2, a3 = (acc(b, T) for b in range(4))
        for q in range(4):
            a(f"v_fma_f32 v{a0+q}, v{a1+q}, v{tau}, v{a0+q}\nv_fma_f32 v{a3+q}, v{a2+q}, v{tau}, v{a3+q}")
        for q in range(4):
            a(f"v_add_f32 v{a1+q}, v{a0+q}, v{a3+q}\nv_sub_f32 v{a2+q}, v{a0+q}, v{a3+q}")
        a0 = 120 + 4 * T
        for f in cv(a0, a1) + cv(a0 + 2, a2): a(f)
        a(f"""
        v_lshrrev_b32 v89, 4, v{E0+T}
        v_lshl_add_u32 v89, v89, 14, v88
        v_and_b32 v{E0+T}, 15, v{E0+T}
        v_lshl_add_u32 v{E0+T}, v{E0+T}, 4, v89
        v_permlane16_swap_b32 v{a0}, v{a0+2}
        v_permlane16_swap_b32 v{a0+1}, v{a0+3}
        """)
    a(f"v_mov_b32 v88, {LFB + 56}\nv_mov_b32 v89, 1\ns_mov_b32 s12, {opt('dnu', 1)}")
    ladd(a, 88, 89, 0)
    if opt("dnu", 1): a("s_setprio 3\ns_barrier")
    for T in range(5): a(f"buffer_store_dwordx4 {vr(120+4*T,4)}, v{E0+T}, s[28:31], s26 offen sc1")
    a(f"""
P1_DONE:
    {st(14)}
    s_mov_b32 s34, 1
    s_branch ATT
    """)

def p1_extra(a):
    T0 = 40
    a(f"""
P1_EXTRA:
    s_sub_u32 s61, s16, 8
    """)
    if opt("cwarm", 1):
        a(f"""
        s_cmp_lg_u32 s16, 10
        s_cbranch_scc1 P1_NOCW
        s_lshl_b32 s23, s18, 10
        s_cmp_ge_u32 s23, L_CODE_END - {NAME}_kernel - 1023
        s_cbranch_scc1 P1_NOCW
        s_getpc_b64 s[44:45]
L_PC:
        s_sub_u32 s44, s44, L_PC - {NAME}_kernel
        s_subb_u32 s45, s45, 0
        v_lshl_add_u32 v40, v0, 4, s23
        global_load_dwordx4 v[44:47], v40, s[44:45]
P1_NOCW:
        """)
    a(f"""
    v_lshrrev_b32 v37, 4, v0
    v_and_b32 v38, 15, v0
    v_lshlrev_b32 v39, 4, v0
    v_mov_b32 v36, v0
    s_waitcnt lgkmcnt(0)
    {srd(28, WS_P, WS_USED)}
    {srd(32, DBG_P, 256)}
    s_cmp_lg_u32 s61, 0
    s_cbranch_scc1 P1_EX_A
    v_mov_b32 v1, 0
    v_lshlrev_b32 v2, 2, v0
    v_add_u32 v2, {LFB}, v2
    ds_write_b32 v2, v1
    s_waitcnt lgkmcnt(0)
    s_cmp_lt_u32 s2, 248
    s_cbranch_scc1 P1_EX_WAITRDY
    v_mov_b32 v4, 0
    v_mov_b32 v5, 0
    v_mov_b32 v6, 0
    v_mov_b32 v7, 0
    s_lshl_b32 s23, s17, 12
    s_add_u32 s23, s23, {FLG_OFF}
    buffer_store_dwordx4 v[4:7], v39, s[28:31], s23 offen sc1
    buffer_store_dwordx4 v[4:7], v39, s[28:31], s23 offen offset:1024 sc1
    buffer_store_dwordx4 v[4:7], v39, s[28:31], s23 offen offset:2048 sc1
    buffer_store_dwordx4 v[4:7], v39, s[28:31], s23 offen offset:3072 sc1
    s_lshl_b32 s23, s17, 7
    s_add_u32 s23, s23, {FLG_OFF + 32768}
    s_mov_b64 exec, 0xff
    buffer_store_dwordx4 v[4:7], v39, s[28:31], s23 offen sc1
    s_mov_b64 exec, -1
P1_EX_WAITRDY:
P1_EX_A:
    s_lshl_b32 s23, s2, 2
    s_add_u32 s23, s23, s61
    s_mov_b32 s40, 0
P1_TBL:
    s_lshr_b32 s24, s23, 5
    s_and_b32 s25, s23, 30
    s_and_b32 s26, s24, 1
    s_lshr_b32 s27, s24, 1
    s_lshl_b32 s27, s27, 6
    s_add_u32 s27, s27, s26
    s_and_b32 s26, s23, 1
    s_lshl_b32 s26, s26, 5
    s_add_u32 s27, s27, s26
    v_lshl_add_u32 v{T0}, v38, 1, s27
    s_lshl_b32 s25, s25, 4
    v_lshl_add_u32 v{T0+1}, v37, 3, s25
    v_mul_u32_u24 v{T0+1}, v{T0}, v{T0+1}
    v_and_b32 v{T0+1}, 0x7ff, v{T0+1}
    v_cvt_f32_u32 v{T0}, v{T0}
    v_cvt_f32_u32 v{T0+1}, v{T0+1}
    v_mul_f32 v{T0}, 0x3a000000, v{T0}
    v_mul_f32 v0, 0x3a000000, v{T0+1}
    """)
    for u in range(1, 8): a(f"v_add_f32 v{u}, v{u-1}, v{T0}")
    for u in range(1, 8): a(f"v_fract_f32 v{u}, v{u}")
    for u in range(8): a(f"v_cos_f32 v{8+u}, v{u}")
    for u in range(8): a(f"v_sin_f32 v{16+u}, v{u}")
    for j in range(4): a(f"v_cvt_pk_bf16_f32 v{24+j}, v{8+2*j}, v{9+2*j}")
    for j in range(4): a(f"v_cvt_pk_bf16_f32 v{28+j}, v{16+2*j}, v{17+2*j}")
    NB0 = opt("tblbar", 2)
    a(f"""
    s_cmp_lg_u32 s40, 0
    s_cbranch_scc1 P1_TBL_ST
    s_barrier
    {st(1, True)}
    s_cmp_lg_u32 s61, 0
    s_cbranch_scc1 P1_EX_NR
    s_cmp_lt_u32 s2, 248
    s_cbranch_scc1 P1_EX_NR
    v_mov_b32 v32, 1
    v_mov_b32 v33, 0
    s_lshl_b32 s24, s17, 2
    s_waitcnt vmcnt(0)
    s_mov_b64 exec, 1
    buffer_store_dword v32, v33, s[32:35], s24 offen sc1
    s_mov_b64 exec, -1
P1_EX_NR:
    """ + "".join(f"s_barrier\n{st(1 + b_, True)}\n" for b_ in range(1, NB0)) + f"""
    s_mov_b32 s40, 1
P1_TBL_ST:
    s_lshl_b32 s24, s23, 11
    s_add_u32 s24, s24, {TB_OFF}
    buffer_store_dwordx4 v[24:27], v39, s[28:31], s24 offen sc1
    buffer_store_dwordx4 v[28:31], v39, s[28:31], s24 offen offset:1024 sc1
    s_add_u32 s23, s23, 1024
    s_cmp_lt_u32 s23, 1056
    s_cbranch_scc1 P1_TBL
    """)
    nb = NB0
    assert nb <= 6
    a("".join(f"s_barrier\n{st(1 + b_, True)}\n" for b_ in range(nb, 6)))
    u = a.uid()
    a(f"""
    v_and_b32 v1, 7, v36
    v_lshlrev_b32 v1, 2, v1
    v_mov_b32 v2, 1
    s_mov_b32 s60, 0
    s_cmp_lg_u32 s61, 0
    s_cbranch_scc1 P1_EX_C
    buffer_load_dword v2, v1, s[32:35], 0 offen sc1
P1_EX_C:
    s_barrier
    {st(7, True)}
    s_barrier
    {st(8, True)}
L_RDY{u}:
    s_waitcnt vmcnt(0)
    v_cmp_eq_u32 vcc, 0, v2
    s_cbranch_vccz P1_EX_B
    s_sleep 1
    buffer_load_dword v2, v1, s[32:35], 0 offen sc1
    s_add_u32 s60, s60, 1
    s_cmp_lt_u32 s60, 0x40000
    s_cbranch_scc1 L_RDY{u}
P1_EX_B:
    s_waitcnt vmcnt(0)
    s_barrier
    {st(9, True)}
    s_barrier
    {st(10, True)}
    s_mov_b32 s34, 0
    """)

def attention(a):
    O = 0; S = [16, 32]; P = 48; Q1 = 56; Q2 = 60; K2 = 62; K1 = 64; V1 = 68; V2 = [72, 76]; T = 80
    a(f"""
ATT:
    s_setprio 3
    s_cmp_lt_u32 s13, 4
    s_cselect_b32 s32, {opt("o1", 4)}, {opt("y1", 4)}
    s_cselect_b32 s33, {opt("o2", 7)}, {opt("y2", 7)}
    s_movk_i32 s35, 0x106
    s_bitset1_b32 s35, s32
    s_bitset1_b32 s35, s33
    s_mov_b32 s24, 0xfffff
    s_mov_b32 s25, 0xfffff
    s_mul_i32 s27, s13, 1280
    v_mov_b32 v{Q2+1}, 0
    v_mov_b32 v{K2+1}, 0x3f803f80
    v_add_u32 v{T}, s27, v{AK1}
    v_add_u32 v{T+1}, s27, v{AK2}
    v_mov_b32 v{T+2}, 1
    """)
    for r in range(12): a(f"v_mov_b32 v{V1+r}, v{ONES}")
    for r in range(16): a(f"v_mov_b32 v{O+r}, 0")
    for r in range(4): a(f"v_mov_b32 v{P+4+r}, 0\nv_mov_b32 v{P+r}, -1")
    def rk1(d): return f"v_mfma_f32_32x32x8_bf16 {vr(d,16)}, {vr(K2,2)}, {vr(Q2,2)}, 0"
    def rk2(d): return f"v_mfma_f32_32x32x16_bf16 {vr(d,16)}, {vr(K1,4)}, {vr(Q1,4)}, {vr(d,16)}"
    def qk1(d): return f"v_mfma_f32_32x32x16_bf16 {vr(d,16)}, {vr(K1,4)}, {vr(Q1,4)}, 0"
    def qk2(d): return f"v_mfma_f32_32x32x8_bf16 {vr(d,16)}, {vr(K2,2)}, {vr(Q2,2)}, {vr(d,16)}"
    def pv(v, p): return f"v_mfma_f32_32x32x16_bf16 {vr(O,16)}, {vr(v,4)}, {vr(p,4)}, {vr(O,16)}"
    def of(t): return (t - 6 if t in (6, 7) else t) * 2560
    def rdk1(t): return f"ds_read_b128 {vr(K1,4)}, v{BK1 if t in (6, 7) else AK1} offset:{of(t)}"
    def rdk2(t): return f"ds_read_b32 v{K2}, v{BK2 if t in (6, 7) else AK2} offset:{of(t)+1024}"
    def rdv(t, v2):
        b = BV if t in (6, 7) else AV
        return f"s_mov_b64 exec, s[24:25]\nds_read_b128 {vr(V1,4)}, v{b} offset:{of(t)+1280}\nds_read_b128 {vr(v2,4)}, v{b} offset:{of(t)+1920}\ns_mov_b64 exec, -1"
    def maxtree(s, m, first):
        if first:
            a(f"v_max3_f32 v{m}, v{s}, v{s+1}, v{s+2}\nv_max3_f32 v{m+1}, v{s+3}, v{s+4}, v{s+5}")
            for j in range(6, 14, 4): a(f"v_max3_f32 v{m}, v{s+j}, v{s+j+1}, v{m}\nv_max3_f32 v{m+1}, v{s+j+2}, v{s+j+3}, v{m+1}")
            a(f"v_max3_f32 v{m}, v{s+14}, v{s+15}, v{m}\nv_max_f32 v{m}, v{m}, v{m+1}")
        else:
            for j in range(0, 16, 2): a(f"v_max3_f32 v{m}, v{s+j}, v{s+j+1}, v{m}")
    def xhalf(m):
        a(f"v_mov_b32 v{m+1}, v{m}\ns_nop 1\nv_permlane32_swap_b32 v{m}, v{m+1}\ns_nop 0\nv_max_f32 v{m}, v{m}, v{m+1}")
    a(f"""
    s_cmp_lg_u32 s34, 1
    s_cbranch_scc1 ATT_NOSIG
    """)
    if opt("comb", 1):
        a(f"""
        v_mov_b32 v{T+4}, {LFB + 44}
        s_and_b32 s23, s15, -128
        s_mov_b64 exec, 1
        s_waitcnt vmcnt(0)
        ds_add_rtn_u32 v{T+5}, v{T+4}, v{T+2}
        s_waitcnt lgkmcnt(0)
        v_cmp_eq_u32 vcc, 3, v{T+5}
        s_cbranch_vccz ATT_NOSIG
        buffer_store_dwordx4 {vr(P,4)}, v{O}, s[28:31], s23 offen sc1
        """)
    else:
        a(f"s_waitcnt vmcnt(0)\ns_mov_b64 exec, 1\nbuffer_store_dword v{T+2}, v{O}, s[28:31], s15 offen sc1")
    a(f"""
ATT_NOSIG:
    s_mov_b64 exec, -1
    {st(4)}
    s_and_b32 s23, s34, s12
    s_cbranch_scc1 ATT_NOP
    s_barrier
ATT_NOP:
    {st(6)}
    ds_read_b128 {vr(Q1,4)}, v{T} offset:{QLDS}
    ds_read_b32 v{Q2}, v{T+1} offset:{QLDS+1024}
    {rdk1(0)}
    {rdk2(0)}
    {rdv(0, V2[0])}
    s_waitcnt lgkmcnt(2)
    {qk1(S[1])}
    {qk2(S[1])}
    """)
    for j in range(5): a(f"v_lshlrev_b32 v{S[0]+2*j}, 16, v{Q1+j}\nv_and_b32 v{S[0]+2*j+1}, 0xffff0000, v{Q1+j}")
    for j in range(10): a(f"v_mul_f32 v{S[0]+j}, {QSCALE:#x}, v{S[0]+j}")
    for j in range(5): a(f"v_cvt_pk_bf16_f32 v{Q1+j}, v{S[0]+2*j}, v{S[0]+2*j+1}")
    a(f"""
    s_nop 0
    {qk1(S[0])}
    {rdk1(1)}
    s_mov_b32 s26, 0
    """)
    maxtree(S[1], T, True); xhalf(T)
    a(f"""
    v_mul_f32 v{T}, {f32bits(-0.5 * (20 ** -0.5) * math.log2(math.e)):#x}, v{T}
    v_cvt_pk_bf16_f32 v{Q2+1}, v{T}, 0
    s_nop 1
    {qk2(S[0])}
    {rdk2(1)}
    buffer_store_dwordx4 {vr(P,4)}, v{OA1}, s[28:31], s6 offen sc1
    s_mov_b64 exec, 0xffff
    buffer_store_dwordx4 {vr(P,4)}, v{OA2}, s[28:31], s7 offen sc1
    s_mov_b64 exec, -1
    s_waitcnt lgkmcnt(0)
    {st(7)}
    s_nop 3
ATT_LOOP:
    """)
    def e(s, j): return f"v_exp_f32 v{s+j}, v{s+j}"
    def c(s, j): return f"v_cvt_pk_bf16_f32 v{P+j}, v{s+2*j}, v{s+2*j+1}"
    for j in range(8):
        cur, nxt = S[j % 2], S[(j + 1) % 2]
        a("s_waitcnt lgkmcnt(2)")
        if opt('rev', 0): a(rk1(nxt)); a(rdk2(j + 2))
        else: a(qk1(nxt)); a(rdk1(j + 2))
        for q in range(4): a(e(cur, q))
        a(pv(V2[(j + 1) % 2], P + 4))
        a("s_waitcnt lgkmcnt(1)")
        if j == 2: a(f"ds_write_b32 v{PA}, v{T+2}")
        for q in range(4, 8): a(e(cur, q))
        a(c(cur, 0)); a(c(cur, 1))
        if opt('rev', 0): a(rk2(nxt)); a(rdk1(j + 2))
        else: a(qk2(nxt)); a(rdk2(j + 2))
        a(c(cur, 2)); a(c(cur, 3))
        for q in range(8, 12): a(e(cur, q))
        a(pv(V1, P)); a(rdv(j + 1, V2[(j + 1) % 2]))
        for q in range(12, 16): a(e(cur, q))
        for q in range(4, 8): a(c(cur, q))
    a(f"""
    s_add_u32 s26, s26, 1
    s_movk_i32 s27, 0x5000
    s_cmp_eq_u32 s26, 7
    s_cselect_b32 s27, {(0x5000 - 62 * 2560) & 0xffffffff}, s27
    v_add_u32 v{AK1}, 0x5000, v{AK1}
    v_add_u32 v{AK2}, 0x5000, v{AK2}
    v_add_u32 v{AV}, 0x5000, v{AV}
    v_add_u32 v{BK1}, s27, v{BK1}
    v_add_u32 v{BK2}, s27, v{BK2}
    v_add_u32 v{BV}, s27, v{BV}
    v_add_u32 v{T+2}, 1, v{T+2}
    s_bitcmp1_b32 s35, s26
    s_cbranch_scc0 ATT_LOOP
    s_cmp_gt_u32 s26, 2
    s_cbranch_scc1 ATT_EV
    v_add_u32 v{FA}, 8, v{FA}
    s_waitcnt vmcnt(0)
ATT_WAIT:
    ds_read_b32 v{T}, v{FA}
    s_waitcnt lgkmcnt(0)
    v_readfirstlane_b32 s23, v{T}
    s_cmp_ge_u32 s23, 4
    s_cbranch_scc1 ATT_LOOP
    s_sleep 1
    s_branch ATT_WAIT
ATT_EV:
    s_setprio 2
    s_cmp_eq_u32 s26, s32
    s_cbranch_scc1 ATT_LOOP
    s_setprio 1
    s_cmp_lt_u32 s26, 8
    s_cbranch_scc1 ATT_LOOP
    s_setprio 3
    {pv(V2[1], P+4)}
    {st(8)}
    s_mov_b32 s27, 0x3e800000
    s_mov_b32 s23, 0x71800000
    s_nop 9
    """)
    a(f"v_rcp_f32 v{T+2}, v{O+12}\nv_add_f32 v{T}, |v{O}|, |v{O+1}|\nv_add_f32 v{T+1}, |v{O+2}|, |v{O+3}|")
    for j in range(4, 12, 2): a(f"v_add_f32 v{T}, |v{O+j}|, v{T}\nv_add_f32 v{T+1}, |v{O+j+1}|, v{T+1}")
    a(f"""
    v_add_f32 v{T}, v{T}, v{O+12}
    v_cmp_le_f32 s[42:43], s27, v{O+12}
    v_add_f32 v{T}, v{T}, v{T+1}
    v_cmp_gt_f32 vcc, s23, v{T}
    s_and_b64 vcc, vcc, s[42:43]
    s_cmp_eq_u64 vcc, -1
    s_cbranch_scc0 ATT_FALLBACK
ATT_FINISH:
    """)
    for j in range(8): a(f"v_mul_f32 v{O+j}, v{O+j}, v{T+2}")
    for j in range(4): a(f"v_cvt_pk_bf16_f32 v{P+j}, v{O+2*j}, v{O+2*j+1}")
    for j in range(4): a(f"v_min_u32 v{P+j}, -2, v{P+j}")
    a(f"buffer_store_dwordx4 {vr(P,4)}, v{OA1}, s[28:31], s6 offen sc1")
    for j in range(8, 12): a(f"v_mul_f32 v{O+j}, v{O+j}, v{T+2}")
    for j in range(4, 6): a(f"v_cvt_pk_bf16_f32 v{P+j}, v{O+2*j}, v{O+2*j+1}")
    for j in range(4, 6): a(f"v_min_u32 v{P+j}, -2, v{P+j}")
    a(f"""
    s_nop 1
    v_permlane16_swap_b32 v{P+4}, v{P+6}
    v_permlane16_swap_b32 v{P+5}, v{P+7}
    s_mov_b64 exec, 0xffff
    buffer_store_dwordx4 {vr(P+4,4)}, v{OA2}, s[28:31], s7 offen sc1
    {st(9)}
    s_cmp_ge_u32 s13, 4
    s_cbranch_scc1 {"L_DONE" if STAMP else "L_END"}
    s_mov_b64 exec, -1
    s_xor_b32 s41, s13, {opt('gx', 2)}
    s_mov_b32 s47, 1
    s_branch P3_GO
    """)
    def gk(): return f"buffer_load_dwordx4 {vr(K1,4)}, v{AK1}, s[28:31], s23 offen sc1\nbuffer_load_dword v{K2}, v{AK2}, s[28:31], s23 offen offset:1024 sc1"
    a(f"""
ATT_FALLBACK:
    s_waitcnt lgkmcnt(0)
    v_mov_b32 v{Q2+1}, 0
    v_mov_b32 v{T}, 0xff800000
    v_subrev_u32 v{AK1}, {HS}, v{AK1}
    v_subrev_u32 v{AK2}, {HS}, v{AK2}
    v_subrev_u32 v{AV}, {HS}, v{AV}
    s_add_u32 s23, s14, {KV_OFF}
    s_mov_b32 s26, 0
ATT_FB1:
    {gk()}
    s_add_u32 s23, s23, 2560
    s_waitcnt vmcnt(0)
    {qk1(S[0])}
    {qk2(S[0])}
    s_nop 15
    """)
    maxtree(S[0], T, False)
    a("s_add_u32 s26, s26, 1\ns_cmp_lt_u32 s26, 64\ns_cbranch_scc1 ATT_FB1")
    xhalf(T)
    a(f"s_add_u32 s23, s14, {KV_OFF}\ns_mov_b32 s26, 0")
    for r in range(16): a(f"v_mov_b32 v{O+r}, 0")
    a(f"""
ATT_FB2:
    {gk()}
    s_mov_b64 exec, s[24:25]
    buffer_load_dwordx4 {vr(V1,4)}, v{AV}, s[28:31], s23 offen offset:1280 sc1
    buffer_load_dwordx4 {vr(V2[0],4)}, v{AV}, s[28:31], s23 offen offset:1920 sc1
    s_mov_b64 exec, -1
    s_add_u32 s23, s23, 2560
    s_waitcnt vmcnt(0)
    {qk1(S[0])}
    {qk2(S[0])}
    s_nop 15
    """)
    for q in range(16): a(f"v_sub_f32 v{S[0]+q}, v{S[0]+q}, v{T}")
    for q in range(16): a(e(S[0], q))
    a("s_nop 0")
    for q in range(8): a(c(S[0], q))
    a(f"""
    s_nop 1
    {pv(V1, P)}
    {pv(V2[0], P+4)}
    s_add_u32 s26, s26, 1
    s_cmp_lt_u32 s26, 64
    s_cbranch_scc1 ATT_FB2
    s_nop 15
    v_rcp_f32 v{T+2}, v{O+12}
    s_nop 0
    s_branch ATT_FINISH
    """)

def lwait(a, vaddr, vdat, mask, target, slp=8):
    u = a.uid()
    a(f"""
    s_mov_b64 exec, {mask}
    s_branch L_LWE{u}
L_LW{u}:
    s_sleep {slp}
L_LWE{u}:
    ds_read_b32 v{vdat}, v{vaddr}
    s_waitcnt lgkmcnt(0)
    v_cmp_gt_u32 vcc, {target}, v{vdat}
    s_cbranch_vccnz L_LW{u}
    s_mov_b64 exec, -1
    """)
def ladd(a, vaddr, vone, off):
    a(f"s_mov_b64 exec, 1\nds_add_u32 v{vaddr}, v{vone} offset:{off}\ns_mov_b64 exec, -1")

def helpers(a):
    WA, VG, VZ, SH, HPA, HONE, YFA, FZ, SG, XA5, LF = 112, 117, 118, 119, 120, 121, 122, 123, 124, 125, 126
    ZL = 40; G = 167; VY = 162; T = 132; LT = 127
    a(f"""
HELPER:
    s_mov_b32 s61, s22
    {st(2)}
    {srd(28, WS_P, WS_USED)}
    s_setprio 0
    s_lshr_b32 s20, s18, 2
    s_mul_i32 s26, s20, 160
    s_movk_i32 s23, {1280 - 160}
    """)
    for i in range(5):
        a(f"""
        v_add_u32 v{T}, {64*i}, v0
        v_mul_u32_u24 v{T+1}, 6554, v{T}
        v_lshrrev_b32 v{T+1}, 16, v{T+1}
        v_lshlrev_b32 v{T}, 4, v{T}
        v_mad_u32_u24 v{WA+i}, v{T+1}, s23, v{T}
        """)
    a(f"""
    s_lshl_b32 s21, s17, 3
    s_and_b32 s22, s18, 3
    s_add_u32 s21, s21, s22
    s_lshr_b32 s22, s16, 1
    s_lshl_b32 s22, s22, 2
    s_add_u32 s21, s21, s22
    s_lshl_b32 s21, s21, 1
    s_and_b32 s22, s16, 1
    s_add_u32 s21, s21, s22
    s_lshr_b32 s22, s21, 2
    s_lshl_b32 s22, s22, 1
    s_and_b32 s24, s21, 1
    s_add_u32 s22, s22, s24
    s_lshl_b32 s22, s22, 3
    v_and_b32 v{T}, 7, v0
    v_add_u32 v{T}, s22, v{T}
    s_bitcmp1_b32 s21, 1
    s_cselect_b32 s22, 0x400, 0
    s_cselect_b32 s24, -1, 1
    v_mul_lo_u32 v{T+1}, v{T}, s24
    s_sub_u32 s24, 0x800, s22
    v_sub_u32 v{T+2}, s24, v{T+1}
    v_add_u32 v{T+1}, s22, v{T+1}
    v_and_b32 v{T+3}, 8, v0
    v_cmp_ne_u32 vcc, 0, v{T+3}
    v_cmp_eq_u32 s[42:43], 0, v{T}
    v_lshlrev_b32 v{T+3}, 6, v{T+3}
    v_add_u32 v{T+3}, s22, v{T+3}
    v_cndmask_b32 v{T}, v{T+1}, v{T+2}, vcc
    v_lshrrev_b32 v{T+1}, 4, v0
    v_cndmask_b32 v{T}, v{T}, v{T+3}, s[42:43]
    v_mul_u32_u24 v{VY}, 1280, v{T}
    v_mul_u32_u24 v{T+2}, 40, v{T+1}
    v_add3_u32 v{VY}, v{VY}, v{T+2}, s26
    v_lshlrev_b32 v{VG}, 2, v{T}
    v_sub_u32 v{T+3}, 0x800, v{T}
    v_cmp_lt_u32 vcc, 0x400, v{T}
    v_min_u32 v{T}, v{T}, v{T+3}
    v_and_b32 v{T+3}, 1, v{T}
    v_mul_u32_u24 v{VZ}, {ZP}, v{T+3}
    v_lshrrev_b32 v{T+3}, 1, v{T}
    v_lshl_add_u32 v{VZ}, v{T+3}, 4, v{VZ}
    v_mov_b32 v{T+3}, 0x02020202
    v_cndmask_b32 v{SH}, 0, v{T+3}, vcc
    s_cmp_ge_u32 s20, 4
    s_mov_b32 s24, 0x05040100
    s_cselect_b32 s24, 0x07060302, s24
    s_cselect_b32 s40, -1, 1
    s_cselect_b32 s41, 155, 0
    v_xor_b32 v{SH}, s24, v{SH}
    s_mul_i32 s24, s20, 20
    v_mul_u32_u24 v{T+3}, 5, v{T+1}
    v_add_u32 v{T+3}, s24, v{T+3}
    v_mul_lo_u32 v{T+3}, v{T+3}, s40
    v_add_u32 v{T+3}, s41, v{T+3}
    v_mul_u32_u24 v{T+3}, {2*ZP}, v{T+3}
    v_add_u32 v{VZ}, v{VZ}, v{T+3}
    {p3_addr(0)}
    v_lshlrev_b32 v{HPA}, 2, v0
    v_add_u32 v{HPA}, {LFB}, v{HPA}
    v_mov_b32 v{HONE}, 1
    s_lshl_b32 s23, s2, 2
    s_add_u32 s23, s23, {FLG_OFF + 32768}
    v_mov_b32 v{YFA}, s23
    v_lshrrev_b32 v{FZ}, 4, v0
    v_mul_u32_u24 v{FZ}, {2*ZP}, v{FZ}
    v_and_b32 v{T}, 15, v0
    v_lshl_add_u32 v{FZ}, v{T}, 4, v{FZ}
    v_lshlrev_b32 v{SG}, 31, v0
    v_and_b32 v{XA5}, 48, v0
    v_lshlrev_b32 v{LF}, 7, v0
    v_bfe_u32 v{LT}, v0, 1, 2
    v_lshlrev_b32 v{LT}, 13, v{LT}
    v_and_b32 v{T}, 1, v0
    v_lshl_add_u32 v{LT}, v{T}, 7, v{LT}
    s_setprio 3
    s_lshr_b32 s19, s18, 3
    s_lshl_b32 s23, s17, 2
    s_add_u32 s19, s19, s23
    s_and_b32 s62, s18, 7
    s_mul_i32 s21, s19, {HG}
    v_lshlrev_b32 v1, 4, v0
    {st(3)}
    s_lshr_b32 s23, s19, 3
    s_lshl_b32 s23, s23, 13
    s_add_u32 s23, s23, {FLG_OFF}
    v_lshlrev_b32 v2, 7, v0
    v_add_u32 v2, s23, v2
    s_add_u32 s24, s21, {KV_OFF}
    s_lshl_b32 s40, 0x10000, s16
    s_lshl_b32 s41, 1, s16
    s_mul_i32 s22, s16, 10240
    s_add_u32 s26, s24, s22
    s_cmp_lg_u32 s16, 3
    s_cbranch_scc1 H_JA
    s_lshl_b32 s25, s62, 1
    s_lshl_b32 s40, 3, s25
    s_mov_b32 s41, 0
    s_mov_b32 s22, {QLDS}
    s_mul_i32 s26, s19, {HQ}
    s_mul_i32 s25, s62, 10240
    s_add_u32 s26, s26, s25
    s_add_u32 s26, s26, {Q_OFF}
H_JA:
    """)
    def job():
        r = f"s_add_u32 s25, s22, 5120\ns_cmp_ge_u32 s25, {LFB}\ns_cselect_b32 s25, 0, s25\n"
        for n in range(10):
            if n in (0, 3): r += f"s_add_u32 m0, s22, {1024*n}\ns_add_u32 s27, s26, {1024*n}\n"; o = 0
            if n in (5, 8): r += f"s_add_u32 m0, s25, {1024*(n-5)}\ns_add_u32 s27, s26, {1024*n}\n"; o = 0
            r += f"buffer_load_dwordx4 v1, s[28:31], s27 offen offset:{o} sc1 lds\n"; o += 1024
        return r
    if opt("latep", 1):
        a(f"s_mul_i32 s23, s12, 12\ns_cmp_eq_u32 s61, 3\ns_cselect_b32 s23, 12, s23\ns_add_u32 s23, s23, {LFB + 44}\nv_mov_b32 v3, s23")
        lwait(a, 3, 4, 1, 4, 2)
        if opt("lps", 0): a(f"s_sleep {opt('lps', 0)}")
    poll4(a, 2, 4, "s[40:41]")
    a(st(11)); a(job())
    a(f"""
    s_lshl_b32 s40, 0x80000, s16
    s_lshl_b32 s41, 8, s16
    s_add_u32 s22, s16, 3
    s_mul_i32 s22, s22, 10240
    s_add_u32 s26, s24, s22
    s_waitcnt vmcnt(0)
    {st(12)}
    s_barrier
    s_cmp_eq_u32 s16, 3
    s_cbranch_scc1 H_JB
    """)
    poll4(a, 2, 4, "s[40:41]")
    a(job())
    a(f"""
H_JB:
    s_lshl_b32 s41, 0x4440, s16
    s_and_b32 s41, s41, 0xffff
    s_lshl_b32 s40, s41, 16
    s_add_u32 s22, s16, 6
    s_mul_i32 s22, s22, 10240
    s_add_u32 s26, s24, s22
    s_waitcnt vmcnt(0)
    """)
    ladd(a, HPA, HONE, 64)
    lwait(a, HPA, 4, 0xff, 1)
    poll4(a, 2, 4, "s[40:41]", slp=8)
    a(f"{st(13)}\nH_JC:"); a(job())
    a(f"""
    s_add_u32 s22, s22, 40960
    s_add_u32 s26, s26, 40960
    s_cmp_lt_u32 s22, {HS}
    s_cbranch_scc1 H_JC
    s_waitcnt vmcnt(0)
    {st(4)}
    """)
    ladd(a, HPA, HONE, 72)
    a(f"""
    s_cmp_lt_u32 s16, 3
    s_cbranch_scc1 H_FNET
    """)
    a(f"""
    {srd(32, X_P, 2048*1280)}
    {srd(36, GATE_P, 1280)}
    v_lshrrev_b32 v2, 3, v0
    v_and_b32 v3, 7, v0
    v_lshlrev_b32 v3, 4, v3
    s_movk_i32 s22, 1280
    v_mad_u32_u24 v4, v2, s22, v3
    s_mul_i32 s23, s2, {8*1280}
    """)
    for j in range(10):
        a(f"buffer_load_dwordx4 {vr(24+8*j,4)}, v4, s[32:35], s23 offen offset:{128*j}")
        a(f"buffer_load_dwordx4 {vr(28+8*j,4)}, v3, s[36:39], 0 offen offset:{128*j}")
    a("v_mov_b32 v5, 0\nv_mov_b32 v6, 0\ns_waitcnt vmcnt(0)")
    for j in range(10):
        for q in range(4):
            a(f"v_dot2c_f32_bf16 v{5 + (q & 1)}, v{24+8*j+q}, v{28+8*j+q}")
    a(f"""
    s_nop 2
    v_add_f32 v5, v5, v6
    s_nop 1
    v_add_f32_dpp v5, v5, v5 quad_perm:[1,0,3,2] row_mask:0xf bank_mask:0xf
    s_nop 1
    v_add_f32_dpp v5, v5, v5 quad_perm:[2,3,0,1] row_mask:0xf bank_mask:0xf
    s_nop 1
    v_add_f32_dpp v5, v5, v5 row_half_mirror row_mask:0xf bank_mask:0xf
    v_mul_f32 v5, {f32bits(-math.log2(math.e)):#x}, v5
    v_exp_f32 v5, v5
    v_lshlrev_b32 v2, 2, v2
    v_add_f32 v5, 1.0, v5
    v_rcp_f32 v5, v5
    s_lshl_b32 s23, s2, 5
    s_add_u32 s23, s23, {G_OFF}
    buffer_store_dword v5, v2, s[28:31], s23 offen sc1
    s_branch H_MID
    """)
    C, SN, FB = 0, 8, 16
    a(f"""
H_FNET:
    {'s_branch H_MID' if opt('nofnet', 0) == 1 else ''}
    s_lshl_b32 s22, s16, 5
    s_add_u32 s22, s22, s18
    s_cmp_lt_u32 s22, 84
    s_cbranch_scc1 H_FN_A
    s_sub_u32 s24, s22, 84
    s_lshl_b32 s24, s24, 3
    s_add_u32 s24, s24, s17
    s_cmp_ge_u32 s24, 21
    s_cbranch_scc1 H_MID
    s_mov_b32 s23, 32
    s_branch H_FN_B
H_FN_A:
    s_mul_i32 s23, s22, 3121
    s_lshr_b32 s23, s23, 16
    s_mul_i32 s24, s23, 21
    s_sub_u32 s24, s22, s24
    s_lshl_b32 s23, s23, 3
    s_add_u32 s23, s23, s17
H_FN_B:
    s_and_b32 s25, s23, 1
    s_add_u32 s26, s24, 20
    s_cmp_eq_u32 s24, 20
    s_cselect_b32 s26, 20, s26
    s_mul_i32 s32, s24, 26
    s_lshr_b32 s32, s32, 8
    s_lshl_b32 s32, s32, 13
    s_add_u32 s32, s32, {48 * 128}
    s_mul_i32 s33, s26, 26
    s_lshr_b32 s33, s33, 8
    s_lshl_b32 s33, s33, 13
    s_add_u32 s33, s33, {32 * 128}
    s_and_b32 s34, s23, 31
    s_lshl_b32 s34, s34, 8
    s_mov_b64 exec, 0xffff
    v_add_u32 v2, s32, v{LF}
    s_mov_b32 exec_lo, 0xffff0000
    v_add_u32 v2, s33, v{LF}
    s_mov_b32 exec_lo, 0
    s_mov_b32 exec_hi, 0xff
    v_add_u32 v2, s34, v{LT}
    s_mov_b32 s40, -1
    s_movk_i32 s41, 0xff
    s_mov_b32 s27, {FLG_OFF}
    """)
    poll4(a, 2, 4, "s[40:41]", "s27", slp=8)
    a(st(14))
    a(f"""
    s_lshl_b32 s32, s23, 16
    s_add_u32 s32, s32, {TB_OFF}
    s_mul_i32 s27, s25, {FO_DELTA}
    s_add_u32 s27, s27, {FE_OFF}
    s_lshl_b32 s33, s24, 14
    s_add_u32 s33, s33, s27
    s_lshl_b32 s34, s26, 14
    s_add_u32 s34, s34, s27
    s_cmp_eq_u32 s25, 0
    s_cselect_b32 s35, s24, s26
    s_lshl_b32 s35, s35, 6
    s_add_u32 s35, s35, {X512_OFF}
    buffer_load_dwordx4 v[128:131], v{XA5}, s[28:31], s35 offen sc1
    """)
    def fl(j):
        r = FB + 24 * j
        s_ = f"buffer_load_dwordx4 {vr(r,4)}, v163, s[28:31], s33 offen offset:{1024*j} sc1\n"
        s_ += f"buffer_load_dwordx4 {vr(r+4,4)}, v163, s[28:31], s34 offen offset:{1024*j} sc1\n"
        for k in range(4): s_ += f"buffer_load_dwordx4 {vr(r+8+4*k,4)}, v163, s[28:31], s32 offen offset:{1024*k} sc1\n"
        s_ += "s_add_u32 s32, s32, 4096\n"
        if j == 3: s_ += "s_add_u32 s33, s33, 4096\ns_add_u32 s34, s34, 4096\n"
        return s_
    def fm(j):
        r = FB + 24 * j
        s_ = ""
        if opt("nofnet", 0) == 2: return s_
        for sub in range(2):
            s_ += f"v_mfma_f32_16x16x32_bf16 {vr(C+4*sub,4)}, {vr(r,4)}, {vr(r+8+8*sub,4)}, {vr(C+4*sub,4)}\n"
            s_ += f"v_mfma_f32_16x16x32_bf16 {vr(SN+4*sub,4)}, {vr(r+4,4)}, {vr(r+12+8*sub,4)}, {vr(SN+4*sub,4)}\n"
        return s_
    for j in range(4): a(fl(j))
    a(f"""
    s_cmp_eq_u32 s25, 0
    s_cselect_b32 s36, 1.0, 0
    s_cselect_b32 s37, 0, 1.0
    v_or_b32 v161, s37, v{SG}
    v_or_b32 v160, s36, v{SG}
    s_waitcnt vmcnt(24)
    """)
    for r in range(8): a(f"v_mul_f32 v{C+r}, v160, v{128 + r % 4}\nv_mul_f32 v{SN+r}, v161, v{128 + r % 4}")
    a("s_mov_b32 s38, 0\nH_FN_LOOP:")
    for j in range(4):
        a("s_waitcnt vmcnt(18)"); a(fm(j)); a(fl(j))
    a("s_add_u32 s38, s38, 1\ns_cmp_lt_u32 s38, 3\ns_cbranch_scc1 H_FN_LOOP")
    for j in range(4):
        a(f"s_waitcnt vmcnt({18-6*j})"); a(fm(j))
    a(f"""
    s_cmp_eq_u32 s26, 20
    s_cselect_b32 s44, 0xffff, 0
    s_mov_b32 s45, 0
    s_mul_i32 s26, s24, {8*ZP}
    s_mul_i32 s27, s25, {ZP}
    s_add_u32 s26, s26, s27
    s_lshr_b32 s27, s23, 1
    s_lshl_b32 s27, s27, 9
    s_add_u32 s26, s26, s27
    s_add_u32 s26, s26, {Y_OFF}
    v_cndmask_b32 v{SN}, v{SN}, 0, s[44:45]
    v_cndmask_b32 v{SN+4}, v{SN+4}, 0, s[44:45]
    """)
    for r in range(8):
        a(f"v_add_f32 v{16+r}, v{C+r}, v{SN+r}\nv_sub_f32 v{C+r}, v{C+r}, v{SN+r}")
    for r in range(8): a(f"v_cvt_pk_bf16_f32 v{16+r}, v{16+r}, v{C+r}")
    a(f"buffer_store_dwordx4 v[16:19], v{FZ}, s[28:31], s26 offen sc1\nbuffer_store_dwordx4 v[20:23], v{FZ}, s[28:31], s26 offen offset:256 sc1")
    a(f"""
H_MID:
    s_lshl_b32 s19, s17, 2
    s_and_b32 s20, s18, 3
    s_add_u32 s19, s19, s20
    s_lshr_b32 s20, s18, 2
    {srd(32, WO_P, 640*1280)}
    {srd(36, OUT_P, 2621440)}
    s_mul_i32 s26, s20, 160
    s_mul_i32 s27, s16, {160*1280}
    s_add_u32 s27, s27, s26
    s_movk_i32 s23, {1280 - 160}
    """)
    a(f"""
    s_add_u32 s25, s16, 1
    s_and_b32 s25, s25, 3
    s_mul_i32 s22, s25, 25600
    s_add_u32 s22, s22, {WOL}
    s_add_u32 s25, s25, 3
    s_waitcnt vmcnt(0)
    {st(5)}
    """)
    lwait(a, HPA, T + 1, 0xff, 2)
    a(f"""s_mov_b64 exec, 1
    ds_add_rtn_u32 v{T+1}, v{HPA}, v{HONE} offset:48
    s_waitcnt lgkmcnt(0)
    v_cmp_eq_u32 vcc, 3, v{T+1}
    s_cbranch_vccz H_NOY
    buffer_store_dword v{HONE}, v{YFA}, s[28:31], 0 offen sc1
H_NOY:
    s_mov_b64 exec, -1""")
    lwait(a, HPA, T + 1, 0xff, "s25")
    a(f"{st(6)}\ns_mov_b32 s25, 0\nH_WO:")
    for i in range(5):
        a(f"s_add_u32 m0, s22, {1024*i}\ns_nop 0\nbuffer_load_dwordx4 v{WA+i}, s[32:35], s27 offen lds")
    a(f"""
    s_add_u32 s22, s22, 5120
    s_add_u32 s27, s27, {32*1280}
    s_add_u32 s25, s25, 1
    s_cmp_lt_u32 s25, 5
    s_cbranch_scc1 H_WO
    s_cmp_lg_u32 s16, 3
    s_cbranch_scc1 H_YW
    """)
    lwait(a, HPA, T + 1, 0xff, opt("ypr", 5), 16)
    a(f"s_mov_b32 s27, {FLG_OFF + 32768}")
    poll4(a, VA, 4, "-1", "s27", slp=16)
    ladd(a, HPA, HONE, 40)
    a(f"H_YW:\nv_add_u32 v{T}, 40, v{HPA}")
    lwait(a, T, T + 1, 1, 1, 16)
    a("s_waitcnt vmcnt(0)")
    a(f"v_mov_b32 v{T}, 2")
    ladd(a, HPA, T, 32)
    a(f"{st(7)}\ns_mov_b32 s26, {Y_OFF}\ns_mov_b32 s27, {G_OFF}\nbuffer_load_dword v{G}, v{VG}, s[28:31], s27 offen sc1")
    for j in range(6):
        a(f"buffer_load_dwordx4 {vr(ZL+4*j,4)}, v{VZ}, s[28:31], s26 offen sc1\ns_add_u32 s26, s26, {2*ZP}")
    BF, OFR, ACC, YG = 0, 100, 120, 140
    VY2, G2 = 162, 167
    a(f"""
    s_waitcnt vmcnt(0)
    s_cmp_ge_u32 s20, 4
    s_cbranch_scc1 H_DESC
    """)
    for k in range(10): a(f"v_perm_b32 v{YG+10+k}, v{ZL+2*k+1}, v{ZL+2*k}, v{SH}")
    a("s_branch H_UNP\nH_DESC:")
    for k in range(10): a(f"v_perm_b32 v{YG+10+k}, v{ZL+19-2*k}, v{ZL+20-2*k}, v{SH}")
    a("H_UNP:")
    lwait(a, HPA, 8, 0xf, 8)
    a(f"""
    {st(8)}
    s_mov_b32 s41, s16
    s_mov_b32 s47, 0
P3_GO:
    s_setprio {opt('p3o', 0)}
    s_lshl_b32 s22, s17, 3
    s_and_b32 s23, s18, 3
    s_add_u32 s22, s22, s23
    s_lshl_b32 s22, s22, 1
    s_add_u32 s22, s22, s47
    s_mul_i32 s22, s22, 20480
    s_add_u32 s22, s22, {OF_OFF}
    s_lshl_b32 s44, s41, 12
    s_add_u32 s44, s44, s22
    s_lshl_b32 s45, s41, 10
    s_add_u32 s45, s45, s22
    s_add_u32 s45, s45, 16384
    s_lshl_b32 s46, s47, 2
    s_add_u32 s40, s46, {LFB + 80}
    s_add_u32 s46, s46, s41
    s_mul_i32 s46, s46, 5120
    s_add_u32 s46, s46, {WOL}
    s_mov_b32 s26, 0
    s_mov_b32 s42, 0
    v_mov_b32 v{CM}, {LFB + 32}
    """)
    lwait(a, CM, CT, 1, 8)
    a("P3_TRY:")
    for k in range(4):
        a(f"buffer_load_dwordx4 {vr(OFR+4*k,4)}, v{VA}, s[28:31], s44 offen offset:{1024*k} sc1")
    a(f"buffer_load_dwordx2 {vr(OFR+16,2)}, v{VT}, s[28:31], s45 offen sc1\nbuffer_load_dwordx2 {vr(OFR+18,2)}, v{VT}, s[28:31], s45 offen offset:128 sc1")
    a(f"""
    s_cmp_lg_u32 s26, 0
    s_cbranch_scc1 P3_CHK
    s_add_u32 s23, s41, 1
    s_and_b32 s23, s23, 3
    s_mul_i32 s23, s23, 25600
    s_add_u32 s23, s23, {WOL}
    v_add_u32 v{CM}, s23, v{BMM}
    v_add_u32 v{CT}, s23, v{BMT}
    """)
    for n in range(25):
        k, t = divmod(n, 5); d = BF + 4 * n
        bb, o, dj = (CM, k * 6400 + t * 8, 1280) if k < 4 else (CT, t * 8, 3200)
        a(f"ds_read_b64_tr_b16 {vr(d,2)}, v{bb} offset:{o}\nds_read_b64_tr_b16 {vr(d+2,2)}, v{bb} offset:{o+dj}")
    a(f"v_mov_b32 v{BMM}, {LFB + 36}\nv_mov_b32 v{BMT}, 1\ns_waitcnt lgkmcnt(0)")
    ladd(a, BMM, BMT, 0)
    b = OFR
    def mfs(k): return "\n".join(f"v_mfma_f32_16x16x32_bf16 {vr(ACC+4*t,4)}, {vr(BF+4*(5*k+t),4)}, {vr(OFR+4*k,4)}, {vr(ACC+4*t,4) if k else 0}" for t in range(5))
    if opt("spec", 1):
        a("P3_CHK:\ns_add_u32 s26, s26, 1\ns_mov_b32 s43, -1")
        for k in range(5):
            r = b + 4 * k
            a(f"""P3_C{k}:
            s_waitcnt vmcnt({max(0, 5 - k) if k < 4 else 0})
            v_max3_u32 v{CM}, v{r}, v{r+1}, v{r+2}
            v_max3_u32 v{CM}, v{r+3}, v{CM}, 1
            v_cmp_eq_u32 vcc, s43, v{CM}
            s_cbranch_vccnz P3_B{k}
            {mfs(k)}""")
        a(f"{'' if opt('fst', 0) else st(11)}\ns_branch P3_OK")
        for k in range(5):
            a(f"P3_B{k}:\ns_sleep {opt('p3s', 4)}")
            for kk in range(k, 4):
                a(f"buffer_load_dwordx4 {vr(OFR+4*kk,4)}, v{VA}, s[28:31], s44 offen offset:{1024*kk} sc1")
            a(f"buffer_load_dwordx2 {vr(OFR+16,2)}, v{VT}, s[28:31], s45 offen sc1\nbuffer_load_dwordx2 {vr(OFR+18,2)}, v{VT}, s[28:31], s45 offen offset:128 sc1")
            a(f"s_add_u32 s26, s26, 1\ns_cmp_lt_u32 s26, 0x40000\ns_cselect_b32 s43, -1, 0\ns_branch P3_C{k}")
        a("P3_OK:")
    else:
        a(f"P3_CHK:\ns_add_u32 s26, s26, 1\ns_waitcnt vmcnt(4)\nv_max3_u32 v{CM}, v{b}, v{b+1}, v{b+2}\nv_max3_u32 v{CT}, v{b+3}, v{b+4}, v{b+5}\nv_max3_u32 v{CM}, v{b+6}, v{b+7}, v{CM}\ns_waitcnt vmcnt(2)")
        a(f"v_max3_u32 v{CT}, v{b+8}, v{b+9}, v{CT}\nv_max3_u32 v{CM}, v{b+10}, v{b+11}, v{CM}\nv_max3_u32 v{CT}, v{b+12}, v{b+13}, v{CT}\nv_max3_u32 v{CM}, v{b+14}, v{b+15}, v{CM}\ns_waitcnt vmcnt(0)")
        a(f"""
    v_max3_u32 v{CT}, v{b+16}, v{b+17}, v{CT}
    v_max3_u32 v{CM}, v{b+18}, v{b+19}, v{CM}
    s_cmp_lt_u32 s26, 0x40000
    v_max_u32 v{CM}, v{CM}, v{CT}
    s_cbranch_scc0 P3_OK
    v_cmp_eq_u32 vcc, -1, v{CM}
    s_cbranch_vccz P3_OK
    s_sleep {opt("p3s", 4)}
    s_branch P3_TRY
P3_OK:
    {'' if opt('fst', 0) else st(11)}
    s_setprio {opt('p3p', 0)}
    """)
        for n in range(25):
            k, t = divmod(n, 5)
            a(f"v_mfma_f32_16x16x32_bf16 {vr(ACC+4*t,4)}, {vr(BF+4*n,4)}, {vr(OFR+4*k,4)}, {vr(ACC+4*t,4) if k else 0}")
    a("s_cmp_lg_u32 s42, 0\ns_cbranch_scc1 P3_WR")
    lwait(a, BMM, CT, 1, 8, 2)
    a(f"{str() if opt('fst', 0) else st(12)}\nP3_WR:\nv_add_u32 v{CM}, s46, v{VA}\nv_mov_b32 v{CT}, s40\ns_nop 1")
    for j in range(5): a(f"ds_write_b128 v{CM}, {vr(ACC+4*j,4)} offset:{1024*j}")
    a("s_waitcnt lgkmcnt(0)")
    ladd(a, CT, BMT, 0)
    a(f"""
    s_add_u32 s44, s44, {8*20480}
    s_add_u32 s45, s45, {8*20480}
    s_add_u32 s46, s46, {8*5120}
    s_add_u32 s40, s40, 8
    s_add_u32 s42, s42, 1
    s_cmp_ge_u32 s42, 2
    s_cbranch_scc1 P3_END
    s_cmp_ge_u32 s16, 4
    s_cbranch_scc1 P3_TRY
    """)
    for k in range(10): a(f"v_lshlrev_b32 v{YG+2*k}, 16, v{YG+10+k}\nv_and_b32 v{YG+2*k+1}, 0xffff0000, v{YG+10+k}")
    for k in range(20): a(f"v_mul_f32 v{YG+k}, v{YG+k}, v{G2}")
    a(f"""
    v_sub_f32 v{G2}, 1.0, v{G2}
    s_branch P3_TRY
P3_END:
    {st(10)}
    s_cmp_ge_u32 s16, 4
    s_cbranch_scc1 {"L_DONE" if STAMP else "L_END"}
    s_setprio 3
    s_lshl_b32 s23, s16, 2
    s_add_u32 s23, s23, {LFB + 80}
    v_mov_b32 v{CT}, s23
    s_mul_i32 s23, s16, 20480
    s_add_u32 s23, s23, {WOL}
    v_add_u32 v{CM}, s23, v{VA}
    """)
    lwait(a, CT, BMM, 1, 4, 1)
    a(st(9))
    for j in range(5):
        for g in range(4): a(f"ds_read_b128 {vr(16*j+4*g,4)}, v{CM} offset:{5120*g+1024*j}")
    for j in range(5):
        a(f"s_waitcnt lgkmcnt({min(15, 16-4*j)})")
        for r in range(4): a(f"v_add_f32 v{16*j+r}, v{16*j+r}, v{16*j+4+r}\nv_add_f32 v{16*j+8+r}, v{16*j+8+r}, v{16*j+12+r}")
        for r in range(4): a(f"v_add_f32 v{16*j+r}, v{16*j+r}, v{16*j+8+r}")
        for r in range(4): a(f"v_fmac_f32 v{YG+4*j+r}, v{16*j+r}, v{G2}")
        a(f"v_cvt_pk_bf16_f32 v{84+2*j}, v{YG+4*j}, v{YG+4*j+1}\nv_cvt_pk_bf16_f32 v{84+2*j+1}, v{YG+4*j+2}, v{YG+4*j+3}")
        if j == 1: a(f"buffer_store_dwordx4 v[84:87], v{VY2}, s[36:39], 0 offen" + OSC)
        if j == 3: a(f"buffer_store_dwordx4 v[88:91], v{VY2}, s[36:39], 0 offen offset:16" + OSC)
    a(f"buffer_store_dwordx2 v[92:93], v{VY2}, s[36:39], 0 offen offset:32" + OSC)

def main():
    a = A()
    top = open("cdna_kernels/" + NAME + ".s.ref").read().split("; Override launch")[0]
    top += "; @launch grid=(256,1,1) block=(768,1,1) lds=163840\n"
    a('.amdgcn_target "amdgcn-amd-amdhsa--gfx950"\n.text')
    d = gen(a)
    open(sys.argv[1], "w").write(top + a.text() + '.section .rodata,"a"\n.p2align 6\n' + d)
if __name__ == "__main__":
    main()
```

```python
import sys, math, struct

OPT = dict(x.split("=") for x in sys.argv[2:])
def opt(k, d): return int(OPT.get(k, d))
NAME = "gated_mix__spectral_fnet__softmax_full_mha__prompt"
HS = 163840
KV_OFF = 0
HG = HS + opt('pad', 512)
HQ = 81920 + opt('pad', 512)
Q_OFF = 32 * HG
FE_OFF = Q_OFF + 32 * HQ
FO_DELTA = 655360
X512_OFF = FE_OFF + 2 * FO_DELTA
TB_OFF = X512_OFF + 4096
Y_OFF = TB_OFF + 33 * 65536
ZP = 8704
G_OFF = Y_OFF + 85 * 2 * ZP
OF_OFF = G_OFF + 8192
FLG_OFF = OF_OFF + 2621440
WS_USED = FLG_OFF + 320 * 128
XB = 102400
L_Y = 256
QLDS = 61440
RB0, RSL = 11264, 36864
LFB = 158720
WOL = 5120
AK1, AK2, AV, BK1, BK2, BV, OA1, OA2, ONES, PA, FA = range(152, 163)
VA, VT, BMM, BMT, CM, CT = 163, 164, 165, 166, 160, 161
PXB = 107520
def p3_addr(l):
    return f"""v_lshlrev_b32 v{VA}, 4, v{l}
    v_and_b32 v2, 7, v{l}
    v_bfe_u32 v4, v{l}, 3, 1
    v_lshrrev_b32 v3, 4, v{l}
    v_lshlrev_b32 v{VT}, 8, v3
    v_lshl_add_u32 v{VT}, v2, 4, v{VT}
    v_lshl_add_u32 v{VT}, v4, 3, v{VT}
    v_bfe_u32 v2, v{l}, 2, 2
    v_and_b32 v5, 3, v{l}
    v_mul_u32_u24 v5, 40, v5
    v_mul_u32_u24 v4, 40, v3
    v_add3_u32 v4, v4, v2, 16
    v_mul_u32_u24 v4, 160, v4
    v_add_u32 v{BMT}, v4, v5
    v_lshrrev_b32 v4, 1, v3
    v_mul_u32_u24 v4, 20, v4
    v_and_b32 v3, 1, v3
    v_lshl_add_u32 v4, v3, 2, v4
    v_add_u32 v4, v4, v2
    v_mul_u32_u24 v4, 160, v4
    v_add_u32 v{BMM}, v4, v5"""

def f32bits(x): return struct.unpack("<I", struct.pack("<f", x))[0]
QSCALE = f32bits((20 ** -0.5) * math.log2(math.e))
STAMP = opt("stamp", 0)
STAMP_OFF = 1 << 25
NST = 16

class A:
    def __init__(self): self.l = []; self.n = 0
    def __call__(self, s):
        for line in s.split("\n"):
            t = line.strip()
            if not t: continue
            self.l.append(t if t.endswith(":") or t.startswith(".") else "    " + t)
    def uid(self): self.n += 1; return self.n
    def text(self): return "\n".join(self.l) + "\n"

def vr(a, n): return f"v[{a}:{a+n-1}]" if n > 1 else f"v{a}"
def srd(lo, base, size):
    return f"s_mov_b32 s{lo}, s{base}\ns_mov_b32 s{lo+1}, s{base+1}\ns_mov_b32 s{lo+2}, {size}\ns_mov_b32 s{lo+3}, 0x20000"
OSC = " sc1" if opt("outsc1", 0) else ""
P1ST = opt("p1st", 0)
def st(i, p1=False):
    if not STAMP: return ""
    if P1ST and not p1 and 0 < i < 15 and i not in (4, 5): return ""
    if P1ST and not p1 and i in (4, 5): i += 8
    if p1 and not P1ST: return ""
    return f"{'s_memrealtime' if STAMP in (1, 3, 4) else 's_memtime'} s[{64+2*i}:{65+2*i}]"
def fin(): return "s_branch L_DONE" if STAMP else "s_endpgm"

X_P, WD_P, WQKV_P, WO_P, GATE_P, OUT_P, DBG_P, WS_P = 4, 8, 48, 50, 52, 54, 56, 58

def poll(a, vaddr, vdat, mask, target, sreg=60):
    u = a.uid()
    a(f"""
    s_mov_b64 exec, {mask}
    s_mov_b32 s{sreg}, 0
L_POLL{u}:
    buffer_load_dword v{vdat}, v{vaddr}, s[28:31], 0 offen sc1
    s_waitcnt vmcnt(0)
    v_cmp_gt_u32 vcc, {target}, v{vdat}
    s_cbranch_vccz L_POLLD{u}
    {'s_sleep 1' if opt('psleep', 0) else ''}
    s_add_u32 s{sreg}, s{sreg}, 1
    s_cmp_lt_u32 s{sreg}, 0x40000
    s_cbranch_scc1 L_POLL{u}
L_POLLD{u}:
    s_mov_b64 exec, -1
    """)

def poll4(a, vaddr, vdat, mask, soff="0", sreg=60, slp=None):
    u = a.uid()
    a(f"""
    s_mov_b64 exec, {mask}
    s_mov_b32 s{sreg}, 0
    s_branch L_POLLE{u}
L_POLL{u}:
    s_sleep {slp or opt("ps4", 2)}
L_POLLE{u}:
    buffer_load_dwordx4 {vr(vdat,4)}, v{vaddr}, s[28:31], {soff} offen sc1
    s_add_u32 s{sreg}, s{sreg}, 1
    s_waitcnt vmcnt(0)
    v_min3_u32 v{vdat}, v{vdat}, v{vdat+1}, v{vdat+2}
    s_cmp_lt_u32 s{sreg}, 0x40000
    v_min_u32 v{vdat}, v{vdat}, v{vdat+3}
    s_cbranch_scc0 L_POLLD{u}
    v_cmp_eq_u32 vcc, 0, v{vdat}
    s_cbranch_vccnz L_POLL{u}
L_POLLD{u}:
    s_mov_b64 exec, -1
    """)

def gen(a):
    label = NAME + "_kernel"
    a(f".p2align 8\n.globl {label}\n.type {label},@function\n{label}:")
    a(f"""
    s_cmp_ge_u32 s2, 256
    s_cbranch_scc1 L_END
    {st(0) + chr(10) + 's_waitcnt lgkmcnt(0)' if opt("st0first", 0) else ''}
    s_load_dwordx2 s[4:5], s[0:1], 0
    s_load_dwordx8 s[48:55], s[0:1], 48
    s_load_dwordx4 s[8:11], s[0:1], 24
    s_load_dwordx4 s[56:59], s[0:1], 80
    """)
    if STAMP:
        a("\n".join(f"s_mov_b32 s{64+j}, 0" for j in range(2, 2 * NST)) + "\n" + ("" if opt("st0first", 0) else st(0)))
    a(f"""
    v_lshrrev_b32 v1, 6, v0
    v_and_b32 v0, 63, v0
    s_and_b32 s17, s2, 7
    v_readfirstlane_b32 s16, v1
    s_lshr_b32 s18, s2, 3
    s_and_b32 s19, s18, 7
    s_lshr_b32 s22, s18, 3
    s_and_b32 s21, s17, 1
    s_lshl_b32 s23, s19, 1
    s_add_u32 s21, s21, s23
    s_lshr_b32 s20, s17, 1
    s_cmp_ge_u32 s19, {opt("numl", 3)}
    s_cselect_b32 s12, 1, 0
    s_cmp_eq_u32 s22, 0
    s_cselect_b32 s12, 0, s12
    s_cmp_ge_u32 s16, 4
    s_cbranch_scc1 P1_NOTLOADER
    """)
    p1_loader(a)
    a(f"""
P1_NOTLOADER:
    s_lshl_b32 s63, s17, 2
    s_add_u32 s63, s63, s22
    s_mul_i32 s14, s63, {HG}
    s_sub_u32 s13, s16, 4
    s_lshl_b32 s23, s19, 3
    s_add_u32 s23, s23, s13
    s_mul_i32 s23, s23, 40960
    s_add_u32 s23, s23, {OF_OFF}
    s_lshl_b32 s6, s63, 9
    s_add_u32 s6, s6, s23
    s_lshl_b32 s7, s63, 7
    s_add_u32 s7, s7, s23
    s_add_u32 s7, s7, 16384
    s_lshl_b32 s15, s20, 2
    s_add_u32 s15, s15, s22
    s_lshl_b32 s15, s15, 4
    s_add_u32 s15, s15, s21
    s_lshl_b32 s15, s15, 5
    s_add_u32 s15, s15, s13
    s_lshl_b32 s15, s15, 2
    s_add_u32 s15, s15, {FLG_OFF}
    v_and_b32 v1, 31, v0
    v_lshrrev_b32 v2, 5, v0
    v_lshlrev_b32 v{AK1}, 4, v0
    v_lshrrev_b32 v3, 4, v1
    v_lshl_add_u32 v3, v3, 1, v2
    v_and_b32 v4, 15, v0
    v_lshl_add_u32 v3, v4, 2, v3
    v_lshlrev_b32 v{AK2}, 2, v3
    v_mul_u32_u24 v{AV}, 384, v2
    v_lshlrev_b32 v3, 6, v2
    v_cmp_gt_u32 vcc, 16, v1
    s_nop 1
    v_cndmask_b32 v{AV}, v3, v{AV}, vcc
    v_lshl_add_u32 v{AV}, v1, 4, v{AV}
    v_add_u32 v{BK1}, 15360, v{AK1}
    v_add_u32 v{BK2}, 15360, v{AK2}
    v_add_u32 v{BV}, 15360, v{AV}
    v_and_b32 v3, 27, v1
    v_cmp_eq_u32 vcc, 24, v3
    v_mov_b32 v3, 0x3f803f80
    v_bfe_u32 v{OA2}, v1, 3, 1
    v_cndmask_b32 v{ONES}, 0, v3, vcc
    v_mul_u32_u24 v{OA2}, 20480, v{OA2}
    v_and_b32 v3, 7, v1
    v_lshl_add_u32 v{OA2}, v3, 4, v{OA2}
    v_lshrrev_b32 v3, 4, v0
    v_lshl_add_u32 v{OA1}, v3, 7, v{OA2}
    s_lshl_b32 s23, s13, 2
    s_add_u32 s23, s23, {LFB}
    v_mov_b32 v{PA}, s23
    v_mov_b32 v{FA}, {LFB + 56}
    {p3_addr(0)}
    s_cmp_ge_u32 s16, 8
    s_cbranch_scc1 P1_EXTRA
    """)
    p1_compute(a)
    p1_extra(a)
    attention(a)
    helpers(a)
    a("L_DONE:")
    if STAMP == 4:
        i_, j_ = opt("ai", 0), opt("aj", 0)
        a(f"""s_waitcnt vmcnt(0)
        {st(NST-1)}
        s_waitcnt lgkmcnt(0)
        s_cmp_ge_u32 s16, {opt("aw", 4)}
        s_cbranch_scc1 L_END
        s_and_b32 s60, s2, {opt("am", 31)}
        s_cmp_lg_u32 s60, {opt("av", 5)}
        s_cbranch_scc1 L_END
        s_sub_u32 s60, s{64+2*j_}, s{64+2*i_}
        s_lshl_b32 s60, s60, 2
        s_min_u32 s60, s60, 100000
        {f's_mov_b32 s60, {opt("fix", 0)}' if opt("fix", 0) else ''}
L_AMP:
        s_memrealtime s[44:45]
        s_waitcnt lgkmcnt(0)
        s_sub_u32 s44, s44, s{64 if opt("fix", 0) else 64+2*(NST-1)}
        s_cmp_lt_u32 s44, s60
        s_cbranch_scc1 L_AMP
        """)
    elif STAMP == 3:
        r = f"s_waitcnt vmcnt(0)\n{st(NST-1)}\ns_mov_b64 exec, 1\n{srd(44, DBG_P, 256)}\ns_waitcnt lgkmcnt(0)\nv_mov_b32 v16, 0\n"
        r += "s_not_b32 s60, s64\nv_mov_b32 v0, s60\nbuffer_atomic_umax v0, v16, s[44:47], 0 offen offset:4 sc1\n"
        r += "s_cmp_eq_u32 s16, 0\ns_cbranch_scc1 L_D0\ns_cmp_eq_u32 s16, 4\ns_cbranch_scc0 L_END\n"
        for n, i in enumerate((2, 3, 4, 5, 7, 8, 9)): r += f"v_mov_b32 v{n+1}, s{64+2*i}\nbuffer_atomic_umax v{n+1}, v16, s[44:47], 0 offen offset:{8+4*n} sc1\n"
        r += "s_endpgm\nL_D0:\n"
        for n, i in enumerate((0, 1, 6, 8, 9, 10, 15)): r += f"v_mov_b32 v{n+1}, s{64+2*i}\nbuffer_atomic_umax v{n+1}, v16, s[44:47], 0 offen offset:{36+4*n} sc1\n"
        a(r)
    elif STAMP:
        r = f"s_waitcnt vmcnt(0)\n{st(NST-1)}\ns_mov_b64 exec, 1\ns_add_u32 s44, s{WS_P}, {STAMP_OFF}\ns_addc_u32 s45, s{WS_P+1}, 0\ns_mov_b32 s46, 262144\ns_mov_b32 s47, 0x20000\n"
        r += "s_lshl_b32 s60, s2, 4\ns_add_u32 s60, s60, s16\ns_lshl_b32 s60, s60, 6\ns_waitcnt lgkmcnt(0)\nv_mov_b32 v16, 0\n"
        if opt("xcc", 0): r += "s_getreg_b32 s66, hwreg(HW_REG_XCC_ID)\ns_add_u32 s66, s66, 100\n"
        for i in range(NST): r += f"v_mov_b32 v{i}, s{64+2*i}\n"
        for i in range(4): r += f"buffer_store_dwordx4 v[{4*i}:{4*i+3}], v16, s[44:47], s60 offen offset:{16*i}\n"
        a(r)
    a("L_END:\ns_endpgm\n.fill 256, 4, 0xbf810000\nL_CODE_END:")
    return f""".amdhsa_kernel {label}
  .amdhsa_next_free_vgpr 168
  .amdhsa_next_free_sgpr {100 if STAMP else 64}
  .amdhsa_accum_offset 168
  .amdhsa_group_segment_fixed_size 0
  .amdhsa_kernarg_size 96
  .amdhsa_user_sgpr_count 2
  .amdhsa_user_sgpr_kernarg_segment_ptr 1
  .amdhsa_system_sgpr_workgroup_id_x 1
.end_amdhsa_kernel
"""

def p1_loader(a):
    a(f"""
    s_setprio 3
    """)
    if opt("pf", 0):
        a(f"""
        v_lshlrev_b32 v20, 4, v0
        s_mul_i32 s23, s2, 10240
        s_and_b32 s24, s16, 1
        s_mul_i32 s24, s24, 5120
        s_add_u32 s23, s23, s24
        s_mul_i32 s25, s2, 3
        s_mov_b32 s31, 0x20000
        s_mov_b32 s35, 0x20000
        s_mov_b32 s34, {640*1280}
        s_waitcnt lgkmcnt(0)
        s_mov_b32 s30, {2048*1280}
        s_cmp_lt_u32 s16, 2
        s_cselect_b32 s28, s{X_P}, s{WQKV_P}
        s_cselect_b32 s29, s{X_P+1}, s{WQKV_P+1}
        s_cselect_b32 s30, s30, {640*3840}
        s_cselect_b32 s32, s8, s10
        s_cselect_b32 s33, s9, s11
        buffer_load_dwordx4 v[24:27], v20, s[28:31], s23 offen
        buffer_load_dwordx4 v[28:31], v20, s[28:31], s23 offen offset:1024
        buffer_load_dwordx4 v[32:35], v20, s[28:31], s23 offen offset:2048
        buffer_load_dwordx4 v[36:39], v20, s[28:31], s23 offen offset:3072
        s_add_u32 s23, s23, 4096
        buffer_load_dwordx4 v[40:43], v20, s[28:31], s23 offen
        s_lshr_b32 s24, s24, 11
        s_add_u32 s25, s25, s24
        s_mul_i32 s25, s25, 1280
        s_mov_b32 exec_hi, 0xff
        buffer_load_dwordx4 v[44:47], v20, s[32:35], s25 offen
        s_bitcmp1_b32 s16, 0
        s_cbranch_scc1 P1_PF1
        buffer_load_dwordx4 v[48:51], v20, s[32:35], s25 offen offset:1280
P1_PF1:
        s_mov_b32 exec_hi, -1
        """)
    a(f"""
    v_lshrrev_b32 v2, 3, v0
    v_and_b32 v3, 7, v0
    v_lshrrev_b32 v4, 4, v0
    v_xor_b32 v3, v3, v4
    v_lshlrev_b32 v3, 4, v3
    v_xor_b32 v4, 64, v3
    s_lshl_b32 s23, s21, 5
    s_lshr_b32 s24, s16, 1
    s_lshl_b32 s24, s24, 4
    s_add_u32 s23, s23, s24
    v_add_u32 v9, s23, v2
    s_bitcmp1_b32 s16, 0
    s_cselect_b32 s23, -1, 1
    s_cselect_b32 s24, 0x400, 0
    s_cselect_b32 s25, -8, 8
    v_mul_lo_u32 v10, v9, s23
    s_sub_u32 s27, 0x800, s24
    v_add_u32 v5, s24, v10
    v_sub_u32 v7, s27, v10
    v_add_u32 v6, s25, v5
    v_subrev_u32 v8, s25, v7
    v_cmp_eq_u32 vcc, 0, v9
    s_add_u32 s24, s24, 0x200
    v_mov_b32 v9, s24
    s_cmp_lg_u32 s22, 2
    v_cndmask_b32 v7, v7, v9, vcc
    s_cbranch_scc1 P1_LD_NV
    v_swap_b32 v6, v7
P1_LD_NV:
    s_lshl_b32 s26, s22, 2
    s_add_u32 s26, s26, s20
    s_and_b32 s27, s20, 1
    s_movk_i32 s25, 3840
    s_cmp_eq_u32 s22, 3
    s_cselect_b32 s25, 1280, s25
    s_cselect_b32 s26, s27, s26
    s_mul_i32 s26, s26, 320
    s_movk_i32 s27, 1280
    v_mad_u32_u24 v10, v5, s27, v3
    v_mad_u32_u24 v11, v6, s27, v4
    v_mad_u32_u24 v12, v7, s27, v3
    v_mad_u32_u24 v13, v8, s27, v4
    s_lshl_b32 s27, s16, 4
    s_mul_i32 s27, s27, s25
    s_add_u32 s26, s26, s27
    s_sub_u32 s27, s25, 320
    """)
    for i in range(5):
        a(f"""
        v_add_u32 v5, {64*i}, v0
        v_mul_u32_u24 v6, 3277, v5
        v_lshrrev_b32 v6, 16, v6
        v_lshrrev_b32 v7, 2, v6
        v_and_b32 v7, 2, v7
        v_xor_b32 v5, v5, v7
        v_lshl_add_u32 v5, v5, 4, s26
        v_mad_u32_u24 v{14+i}, v6, s27, v5
        """)
    sg = opt("stag1", 5)
    if sg == 1:
        a("s_lshl_b32 s36, s19, 3\ns_lshl_b32 s37, s22, 4\ns_add_u32 s36, s36, s37\ns_add_u32 s36, s36, s17\ns_and_b32 s36, s36, 63\ns_mul_i32 s36, s36, 10\ns_lshr_b32 s36, s36, 6")
    elif sg == 2:
        a("s_add_u32 s36, s19, s22\ns_lshl_b32 s36, s36, 4\ns_add_u32 s36, s36, s17\ns_add_u32 s36, s36, s17\ns_and_b32 s36, s36, 63\ns_mul_i32 s36, s36, 10\ns_lshr_b32 s36, s36, 6")
    elif sg == 3:
        a("s_add_u32 s36, s19, s22\ns_lshl_b32 s36, s36, 5\ns_lshl_b32 s37, s17, 2\ns_add_u32 s36, s36, s37\ns_and_b32 s36, s36, 63\ns_mul_i32 s36, s36, 10\ns_lshr_b32 s36, s36, 6")
    elif sg >= 5:
        tsh = {5: 0, 6: 1, 7: 0, 8: 0, 9: 0}[sg]
        a(f"""
        s_lshr_b32 s36, s17, 1
        s_xor_b32 s36, s36, s17
        s_and_b32 s36, s36, 1
        {'s_min_u32 s37, s22, 2' if sg == 9 else f's_lshr_b32 s37, s22, {tsh}'}
        s_add_u32 s37, s37, s19
        s_lshr_b32 s46, s17, 2
        s_lshl_b32 s46, s46, 1
        s_add_u32 s37, s37, s46
        s_mul_i32 s46, s37, 52
        s_lshr_b32 s46, s46, 8
        s_mul_i32 s46, s46, 5
        s_sub_u32 s37, s37, s46
        s_lshl_b32 s37, s37, 2
        s_mov_b32 s46, 0x42086420
        s_mov_b32 s47, 0x6
        s_lshr_b64 s[46:47], s[46:47], s37
        s_and_b32 s46, s46, 0xfffff
        {'s_or_b32 s47, s46, 0x11111' + chr(10) + 's_lshl_b32 s37, s47, 20' + chr(10) + 's_or_b32 s46, s46, s37' + chr(10) + 's_lshr_b32 s47, s47, 12' if sg == 8 else 's_or_b32 s46, s46, 0x53100000' + chr(10) + 's_mov_b32 s47, 0x97'}
        s_mul_i32 s37, s36, 0x11111111
        s_xor_b32 s46, s46, s37
        s_xor_b32 s47, s47, s37
        """)
        if sg == 7:
            a("s_lshr_b32 s37, s47, 4\ns_and_b32 s37, s37, 15\ns_lshl_b64 s[46:47], s[46:47], 4\ns_or_b32 s46, s46, s37")
        a("s_and_b32 s36, s46, 15")
    else:
        a("s_mov_b32 s36, 0")
    a(f"""
    s_lshl_b32 s38, s16, 12
    s_add_u32 s38, s38, {RB0}
    s_mul_i32 s39, s16, 5120
    s_add_u32 s39, s39, {RB0 + 16384}
    s_mov_b32 s40, 0
    s_mul_i32 s34, s25, 640
    s_lshl_b32 s25, s25, 6
    s_mov_b32 s35, 0x20000
    s_waitcnt lgkmcnt(0)
    {srd(28, X_P, 2048*1280)}
    s_cmp_lt_u32 s20, 2
    s_cselect_b32 s32, s8, s10
    s_cselect_b32 s33, s9, s11
    s_cmp_eq_u32 s22, 3
    s_cselect_b32 s32, s32, s{WQKV_P}
    s_cselect_b32 s33, s33, s{WQKV_P+1}
    {st(1)}
    """)
    if opt("dftdelay", 0):
        a(f"""s_cmp_lg_u32 s22, 3
        s_cbranch_scc1 P1_LD_LOOP
        s_memrealtime s[42:43]
        s_waitcnt lgkmcnt(0)
        s_add_u32 s42, s42, {opt("dftdelay", 0)}
P1_DLY:
        s_memrealtime s[44:45]
        s_waitcnt lgkmcnt(0)
        s_cmp_lt_u32 s44, s42
        s_cbranch_scc1 P1_DLY
        """)
    a(f"""
P1_LD_LOOP:
    s_lshl_b32 s41, s36, 7
    s_mul_i32 s42, s36, s25
    s_add_u32 s43, s40, 2
    s_and_b32 s43, s43, 3
    s_mul_i32 s43, s43, {RSL}
    s_add_u32 s44, s43, s38
    s_add_u32 s45, s43, s39
    """)
    for i in range(4):
        a(f"s_add_u32 m0, s44, {1024*i}\ns_nop 0\nbuffer_load_dwordx4 v{10+i}, s[28:31], s41 offen lds")
    for i in range(5):
        a(f"s_add_u32 m0, s45, {1024*i}\ns_nop 0\nbuffer_load_dwordx4 v{14+i}, s[32:35], s42 offen lds")
    if opt("noload", 0): a("s_cmp_ge_u32 s40, 3\ns_cselect_b32 s30, 0, s30\ns_cselect_b32 s34, 0, s34")
    a(f"""
    {'s_lshr_b64 s[46:47], s[46:47], 4' + chr(10) + 's_and_b32 s36, s46, 15' if sg >= 5 else 's_add_u32 s36, s36, 1' + chr(10) + 's_cmp_eq_u32 s36, 10' + chr(10) + 's_cselect_b32 s36, 0, s36'}
    s_add_u32 s40, s40, 1
    s_cmp_eq_u32 s40, 1
    s_cbranch_scc1 P1_LD_LOOP
    s_waitcnt vmcnt(9)
    s_barrier
    s_cmp_lt_u32 s40, 10
    s_cbranch_scc1 P1_LD_LOOP
    s_waitcnt vmcnt(0)
    s_barrier
    s_branch HELPER
    """)

def p1_compute(a):
    X = 80; W = [96, 116]; XA = 136; WA = 137; CX = 142; CW = 144; PC = 149; L = 150; TT = 96
    def acc(b, T): return 20 * b + 4 * T
    a(f"""
    s_sub_u32 s61, s16, 4
    s_and_b32 s36, s61, 1
    s_lshr_b32 s37, s61, 1
    v_mov_b32 v{L}, v0
    v_and_b32 v1, 15, v0
    v_lshrrev_b32 v2, 4, v0
    v_lshrrev_b32 v3, 1, v1
    v_xor_b32 v3, v3, v2
    v_lshlrev_b32 v3, 4, v3
    v_lshl_add_u32 v3, v1, 7, v3
    s_lshl_b32 s23, s36, 13
    s_add_u32 s23, s23, {RB0}
    v_add_u32 v{XA}, s23, v3
    v_bfe_u32 v3, v0, 2, 2
    v_lshl_add_u32 v3, v2, 3, v3
    v_mul_u32_u24 v3, 320, v3
    v_add_u32 v3, {RB0 + 16384}, v3
    v_and_b32 v4, 16, v0
    v_lshlrev_b32 v4, 1, v4
    v_and_b32 v5, 3, v0
    s_mul_i32 s23, s37, 160
    v_lshl_add_u32 v6, v5, 3, s23
    """)
    for T in range(4):
        a(f"v_xor_b32 v7, v6, v4\nv_add_u32 v{WA+T}, v7, v3\nv_add_u32 v6, 40, v6")
    a(f"""
    v_mul_u32_u24 v6, 40, v5
    v_add3_u32 v6, v6, s23, 32
    v_xor_b32 v7, v6, v4
    v_add_u32 v{WA+4}, v7, v3
    v_mov_b32 v{PC}, 0xbf803f80
    s_lshl_b32 s26, s22, 2
    s_add_u32 s26, s26, s20
    s_lshl_b32 s26, s26, 1
    s_add_u32 s26, s26, s37
    s_cmp_eq_u32 s26, 28
    s_cselect_b32 s24, 0x10001, 0
    s_mov_b32 s25, s24
    s_cmp_eq_u32 s22, 3
    s_cselect_b32 s43, 10, 8
    s_mov_b32 s40, 0
    s_mov_b32 s42, {2 * RSL}
    """)
    for r in range(96): a(f"v_mov_b32 v{r}, 0")
    for r in range(20): a(f"v_mov_b32 v{W[1]+r}, 0")
    a(f"v_add_u32 v{CX}, s42, v{XA}")
    for T in range(5): a(f"v_add_u32 v{CW+T}, s42, v{WA+T}")
    a(f"s_waitcnt lgkmcnt(0)\n{srd(28, WS_P, WS_USED)}")
    a("s_cmp_ge_u32 s22, 2\ns_cbranch_scc1 P1_PRE_V")
    def mf(b, T, x, w, qk):
        d = vr(acc(b, T), 4)
        return f"v_mfma_f32_16x16x32_bf16 {d}, {vr(w,4)}, {vr(x,4)}, {d}" if qk else f"v_mfma_f32_16x16x32_bf16 {d}, {vr(x,4)}, {vr(w,4)}, {d}"
    def rdw(d, T, step): return [f"ds_read_b64_tr_b16 {vr(d+2*j,2)}, v{CW+T} offset:{(step // 2) * RSL + (step % 2) * 10240 + 1280 * j}" for j in range(2)]
    def rdx(d, b, step): return f"ds_read_b128 {vr(d,4)}, v{CX + step % 2} offset:{(step // 2) * RSL + 2048 * b}"
    TO = (1, 2, 3, 4, 0)
    def group(step, qk, reads=True):
        cur = W[1 - step]; nxt = W[step]
        rq = []
        for T in TO: rq += rdw(nxt + 4 * T, T, step)
        fill = []
        if step == 1:
            fill = ["s_add_u32 s40, s40, 1", "s_add_u32 s41, s40, 2", "s_and_b32 s41, s41, 3", f"s_mul_i32 s42, s41, {RSL}", f"v_add_u32 v{CX}, s42, v{XA}"] + [f"v_add_u32 v{CW+T}, s42, v{WA+T}" for T in range(5)]
        issued = 0
        for b in range(4):
            if reads:
                allow = [2, 15, issued + 1, issued][b]
                if b != 1: a(f"s_waitcnt lgkmcnt({min(15, allow)})")
            elif b == 0: a("s_waitcnt lgkmcnt(0)")
            for n, T in enumerate(TO):
                a(mf(b, T, X + 4 * b, cur + 4 * T, qk))
                if b == 0 and n < 2 and not qk:
                    for j in range(2): a(f"v_cndmask_b32 v{cur+2*n+j}, v{cur+2*n+j}, v{PC}, s[24:25]")
                if not reads: continue
                if step == 0 and b == 0:
                    if n == 0: a(f"v_xor_b32 v{CX+1}, 64, v{CX}")
                    if n == 1: a("s_barrier")
                    if n < 2: continue
                if n == 4: a(rdx(X + 4 * b, b, step)); issued += 1
                elif rq: a(rq.pop(0)); issued += 1
                elif fill:
                    a(fill.pop(0))
                    if fill: a(fill.pop(0))
        assert not reads or (not rq and not fill), (rq, fill)

    def tail(qk, epi):
        seq = [(b, T, ("x0", b), ("w0", T)) for b in range(4) for T in TO]
        marks = {}
        win = opt("win", 2)
        for step in range(4 - win):
            for b in range(4):
                for T in TO: seq.append((b, T, ("x", 0, step, b), ("w", step, T)))
        for T in range(5):
            for jj in range(2):
                for step in range(4 - win, 4):
                    for b in (2 * jj, 2 * jj + 1): seq.append((b, T, ("x", 0, step, b), ("w", step, T)))
                marks[len(seq) - 1] = (T, jj)
        last = {}
        for n, (_, _, x, w) in enumerate(seq): last[x] = n; last[w] = n
        loc = {("x0", b): X + 4 * b for b in range(4)}; loc.update({("w0", T): W[1] + 4 * T for T in range(5)})
        free = [W[0] + 4 * k for k in range(5)] + [XA]
        order = []
        for _, _, x, w in seq:
            for f in (w, x):
                if f not in loc and f not in order: order.append(f)
        done_at = {}; nrd = 0; waited = 0; pend = []; fill = []
        cnt = [0]; prev = [0]
        def em(t): a(t); cnt[0] += 1
        a(f"v_xor_b32 v{CX+1}, 64, v{CX}\ns_waitcnt lgkmcnt(0)\ns_barrier")
        bar2 = [True]
        def take():
            f = order.pop(0); loc[f] = free.pop(0)
            if bar2 and (f[1] if f[0] == "w" else f[2]) >= 2: em("s_barrier"); bar2.pop()
            p_ = rdw(loc[f], f[2], f[1]) if f[0] == "w" else [rdx(loc[f], f[3], f[2])]
            done_at[f] = nrd + len(p_)
            return p_
        def gap():
            t, at, after = fill[0]
            return max(at - cnt[0], prev[0] + after - cnt[0], 0)
        def put():
            em(fill.pop(0)[0]); prev[0] = cnt[0]
        for n, (b, T, x, w) in enumerate(seq):
            while any(f not in loc or (f in done_at and done_at[f] > nrd) for f in (x, w)):
                if not pend: pend = take()
                em(pend.pop(0)); nrd += 1
            need = max(done_at.get(x, 0), done_at.get(w, 0))
            if need > waited:
                waited = max(need, nrd - opt("tw", 6)); em(f"s_waitcnt lgkmcnt({nrd - waited})")
            em(mf(b, T, loc[x], loc[w], qk))
            if n in marks: fill += [(t, cnt[0] + 8, after) for t, after in epi(*marks[n])]
            for f in (x, w):
                if last[f] == n: free.append(loc[f])
            if not pend and order and free: pend = take()
            if pend: em(pend.pop(0)); nrd += 1
            for _ in range(2):
                if fill and gap() == 0: put()
        a(st(3))
        while fill:
            g_ = gap()
            if g_: a(f"s_nop {g_ - 1}"); cnt[0] += g_
            put()

    EA, EB = 167, 151
    def cv(d, r): return [f"v_cvt_pk_bf16_f32 v{d}, v{r}, v{r+1}", f"v_cvt_pk_bf16_f32 v{d+1}, v{r+2}, v{r+3}"]
    def epi_qk(ph, jj=0):
        if ph < 0:
            return f"""s_mov_b32 s35, {HG}
            s_movk_i32 s38, 2560
            s_cmp_eq_u32 s22, 0
            s_cselect_b32 s35, {HQ}, s35
            s_cselect_b32 s27, {Q_OFF}, {KV_OFF}
            s_cselect_b32 s38, 1280, s38
            s_lshl_b32 s26, s20, 1
            s_add_u32 s26, s26, s37
            s_lshl_b32 s26, s26, 2
            s_mul_i32 s26, s26, s35
            s_add_u32 s26, s26, s27
            s_lshl_b32 s23, s21, 1
            s_add_u32 s23, s23, s36
            s_lshl_b32 s23, s23, 1
            s_mul_i32 s23, s23, s38
            s_add_u32 s26, s26, s23
            s_add_u32 s27, s26, s38
            v_lshrrev_b32 v{EA}, 4, v{L}
            v_mul_lo_u32 v{EA}, v{EA}, s35
            v_and_b32 v{TT}, 15, v{L}
            v_lshl_add_u32 v{EA}, v{TT}, 4, v{EA}
            v_lshlrev_b32 v{EB}, 4, v{L}
            s_add_u32 s44, s26, s35
            s_add_u32 s45, s27, s35
            s_add_u32 s46, s44, s35
            s_add_u32 s47, s45, s35
            s_add_u32 s32, s46, s35
            s_add_u32 s33, s47, s35""".split("\n")
        T = ph
        r0, r1 = acc(2 * jj, T), acc(2 * jj + 1, T)
        o = [(t, 0) for t in cv(r0, r0) + cv(r0 + 2, r1)]
        if T < 4:
            o += [(f"v_permlane16_swap_b32 v{r0}, v{r0+2}", 1), (f"v_permlane16_swap_b32 v{r0+1}, v{r0+3}", 0)]
            o.append((f"buffer_store_dwordx4 {vr(r0,4)}, v{EB}, s[28:31], s{(26, 44, 46, 32)[T] + jj} offen sc1", 0))
        else:
            o.append((f"buffer_store_dwordx4 {vr(r0,4)}, v{EA}, s[28:31], s{26 + jj} offen offset:1024 sc1", 0))
        return o
    def epi_v(ph, jj=0):
        if ph < 0:
            return f"""s_lshl_b32 s26, s20, 1
            s_add_u32 s26, s26, s37
            s_mul_i32 s26, s26, {4*HG}
            s_lshl_b32 s23, s21, 1
            s_add_u32 s23, s23, s36
            s_mul_i32 s23, s23, 5120
            s_add_u32 s26, s26, s23
            s_add_u32 s26, s26, {KV_OFF + 1280}
            s_add_u32 s44, s26, {HG}
            s_add_u32 s45, s26, {2*HG}
            s_add_u32 s46, s26, {3*HG}
            s_mov_b32 s35, {HG}
            v_lshrrev_b32 v{EA}, 5, v{L}
            v_mul_u32_u24 v{EA}, 640, v{EA}
            v_bfe_u32 v{TT}, v{L}, 4, 1
            v_lshl_add_u32 v{EB}, v{TT}, 6, v{EA}
            v_mul_u32_u24 v{TT}, 384, v{TT}
            v_add_u32 v{EA}, v{EA}, v{TT}
            v_and_b32 v{TT}, 15, v{L}
            v_lshl_add_u32 v{EA}, v{TT}, 4, v{EA}
            v_and_b32 v{TT}, 3, v{L}
            v_lshl_add_u32 v{EB}, v{TT}, 4, v{EB}
            v_bfe_u32 v{TT}, v{L}, 2, 2
            v_mul_lo_u32 v{TT}, v{TT}, s35
            v_add_u32 v{EB}, v{EB}, v{TT}""".split("\n")
        T = ph
        r0, r1 = acc(2 * jj, T), acc(2 * jj + 1, T)
        o = [(t, 0) for t in cv(r0, r0) + cv(r0 + 2, r1)]
        if T < 4: o.append((f"buffer_store_dwordx4 {vr(r0,4)}, v{EA}, s[28:31], s{(26, 44, 45, 46)[T]} offen offset:{2560 * jj} sc1", 0))
        else: o.append((f"buffer_store_dwordx4 {vr(r0,4)}, v{EB}, s[28:31], s26 offen offset:{2560 * jj + 256} sc1", 0))
        return o

    for qk, lab in ((True, "QK"), (False, "V")):
        a(f"P1_PRE_{lab}:")
        for f in (epi_qk if qk else epi_v)(-1): a(f)
        a(f"P1_LOOP_{lab}:")
        group(0, qk)
        if STAMP: a(f"s_cmp_lg_u32 s40, 0\ns_cbranch_scc1 P1_ST_{lab}\n{st(2)}\nP1_ST_{lab}:\ns_cmp_lg_u32 s40, 5\ns_cbranch_scc1 P1_SU_{lab}\n{st(1)}\nP1_SU_{lab}:")
        group(1, qk)
        a(f"s_cmp_lt_u32 s40, s43\ns_cbranch_scc1 P1_LOOP_{lab}")
        if not qk: a("s_cmp_eq_u32 s22, 3\ns_cbranch_scc1 P1_EPI_DFT")
        a("s_cmp_eq_u32 s12, 1\ns_cselect_b32 s30, 0, s30")
        tail(qk, epi_qk if qk else epi_v)
        a(f"s_cmp_eq_u32 s12, 0\ns_cbranch_scc1 P1_DONE\ns_mov_b32 s30, {WS_USED}\nv_mov_b32 v88, {LFB + 56}\nv_mov_b32 v89, 1")
        ladd(a, 88, 89, 0)
        a("s_setprio 3\ns_barrier")
        for T in range(5):
            for jj in range(2): a((epi_qk if qk else epi_v)(T, jj)[-1][0])
        a("s_branch P1_DONE")
    a("P1_EPI_DFT:")
    group(0, False, reads=False)
    TAU, TAU0, E0 = 80, 81, 140
    a(f"""
    {st(3)}
    s_cmp_lt_u32 s20, 2
    s_cselect_b32 s38, 1.0, -1.0
    v_mov_b32 v{TAU}, s38
    v_cndmask_b32 v{TAU0}, v{TAU}, 1.0, s[24:25]
    s_lshl_b32 s26, s20, 1
    s_add_u32 s26, s26, s37
    s_mul_i32 s26, s26, 80
    v_and_b32 v88, 15, v{L}
    v_add_u32 v{E0}, s26, v88
    v_add_u32 v{E0+1}, 20, v{E0}
    v_add_u32 v{E0+2}, 40, v{E0}
    v_add_u32 v{E0+3}, 60, v{E0}
    v_and_b32 v89, 12, v{L}
    v_lshl_add_u32 v{E0+4}, v89, 2, v{E0}
    v_add_u32 v{E0+4}, 16, v{E0+4}
    s_lshl_b32 s23, s21, 1
    s_add_u32 s23, s23, s36
    s_cmp_lg_u32 s23, 0
    s_cbranch_scc1 P1_EPI_DFT2
    s_mov_b64 exec, 0xffff
    s_mov_b32 s27, {X512_OFF}
    """)
    for T in range(5):
        a(f"v_fma_f32 v{96+T}, v{acc(3,T)}, v{TAU0 if T == 0 else TAU}, v{acc(1,T)}")
        a(f"v_lshlrev_b32 v{104+T}, 2, v{E0+T}\nv_mov_b32 v{acc(1,T)}, 0\nv_mov_b32 v{acc(3,T)}, 0")
        a(f"buffer_store_dword v{96+T}, v{104+T}, s[28:31], s27 offen sc1")
    a(f"""
    s_mov_b64 exec, -1
P1_EPI_DFT2:
    s_lshl_b32 s26, s23, 9
    s_add_u32 s26, s26, {FE_OFF}
    s_mov_b32 s27, {FO_DELTA}
    v_bfe_u32 v88, v{L}, 4, 1
    v_mul_lo_u32 v88, v88, s27
    v_lshrrev_b32 v89, 5, v{L}
    v_lshl_add_u32 v88, v89, 8, v88
    """)
    for T in range(5):
        tau = TAU0 if T == 0 else TAU
        a0, a1, a2, a3 = (acc(b, T) for b in range(4))
        for q in range(4):
            a(f"v_fma_f32 v{a0+q}, v{a1+q}, v{tau}, v{a0+q}\nv_fma_f32 v{a3+q}, v{a2+q}, v{tau}, v{a3+q}")
        for q in range(4):
            a(f"v_add_f32 v{a1+q}, v{a0+q}, v{a3+q}\nv_sub_f32 v{a2+q}, v{a0+q}, v{a3+q}")
        a0 = 120 + 4 * T
        for f in cv(a0, a1) + cv(a0 + 2, a2): a(f)
        a(f"""
        v_lshrrev_b32 v89, 4, v{E0+T}
        v_lshl_add_u32 v89, v89, 14, v88
        v_and_b32 v{E0+T}, 15, v{E0+T}
        v_lshl_add_u32 v{E0+T}, v{E0+T}, 4, v89
        v_permlane16_swap_b32 v{a0}, v{a0+2}
        v_permlane16_swap_b32 v{a0+1}, v{a0+3}
        """)
    a(f"v_mov_b32 v88, {LFB + 56}\nv_mov_b32 v89, 1\ns_mov_b32 s12, {opt('dnu', 1)}")
    ladd(a, 88, 89, 0)
    if opt("dnu", 1): a("s_setprio 3\ns_barrier")
    for T in range(5): a(f"buffer_store_dwordx4 {vr(120+4*T,4)}, v{E0+T}, s[28:31], s26 offen sc1")
    a(f"""
P1_DONE:
    {st(14)}
    s_mov_b32 s34, 1
    s_branch ATT
    """)

def p1_extra(a):
    T0 = 40
    a(f"""
P1_EXTRA:
    s_sub_u32 s61, s16, 8
    """)
    if opt("cwarm", 1):
        a(f"""
        s_cmp_lg_u32 s16, 10
        s_cbranch_scc1 P1_NOCW
        s_lshl_b32 s23, s18, 10
        s_cmp_ge_u32 s23, L_CODE_END - {NAME}_kernel - 1023
        s_cbranch_scc1 P1_NOCW
        s_getpc_b64 s[44:45]
L_PC:
        s_sub_u32 s44, s44, L_PC - {NAME}_kernel
        s_subb_u32 s45, s45, 0
        v_lshl_add_u32 v40, v0, 4, s23
        global_load_dwordx4 v[44:47], v40, s[44:45]
P1_NOCW:
        """)
    a(f"""
    v_lshrrev_b32 v37, 4, v0
    v_and_b32 v38, 15, v0
    v_lshlrev_b32 v39, 4, v0
    v_mov_b32 v36, v0
    s_waitcnt lgkmcnt(0)
    {srd(28, WS_P, WS_USED)}
    {srd(32, DBG_P, 256)}
    s_cmp_lg_u32 s61, 0
    s_cbranch_scc1 P1_EX_A
    v_mov_b32 v1, 0
    v_lshlrev_b32 v2, 2, v0
    v_add_u32 v2, {LFB}, v2
    ds_write_b32 v2, v1
    s_waitcnt lgkmcnt(0)
    s_cmp_lt_u32 s2, 248
    s_cbranch_scc1 P1_EX_WAITRDY
    v_mov_b32 v4, 0
    v_mov_b32 v5, 0
    v_mov_b32 v6, 0
    v_mov_b32 v7, 0
    s_lshl_b32 s23, s17, 12
    s_add_u32 s23, s23, {FLG_OFF}
    buffer_store_dwordx4 v[4:7], v39, s[28:31], s23 offen sc1
    buffer_store_dwordx4 v[4:7], v39, s[28:31], s23 offen offset:1024 sc1
    buffer_store_dwordx4 v[4:7], v39, s[28:31], s23 offen offset:2048 sc1
    buffer_store_dwordx4 v[4:7], v39, s[28:31], s23 offen offset:3072 sc1
    s_lshl_b32 s23, s17, 7
    s_add_u32 s23, s23, {FLG_OFF + 32768}
    s_mov_b64 exec, 0xff
    buffer_store_dwordx4 v[4:7], v39, s[28:31], s23 offen sc1
    s_mov_b64 exec, -1
P1_EX_WAITRDY:
P1_EX_A:
    s_lshl_b32 s23, s2, 2
    s_add_u32 s23, s23, s61
    s_mov_b32 s40, 0
P1_TBL:
    s_lshr_b32 s24, s23, 5
    s_and_b32 s25, s23, 30
    s_and_b32 s26, s24, 1
    s_lshr_b32 s27, s24, 1
    s_lshl_b32 s27, s27, 6
    s_add_u32 s27, s27, s26
    s_and_b32 s26, s23, 1
    s_lshl_b32 s26, s26, 5
    s_add_u32 s27, s27, s26
    v_lshl_add_u32 v{T0}, v38, 1, s27
    s_lshl_b32 s25, s25, 4
    v_lshl_add_u32 v{T0+1}, v37, 3, s25
    v_mul_u32_u24 v{T0+1}, v{T0}, v{T0+1}
    v_and_b32 v{T0+1}, 0x7ff, v{T0+1}
    v_cvt_f32_u32 v{T0}, v{T0}
    v_cvt_f32_u32 v{T0+1}, v{T0+1}
    v_mul_f32 v{T0}, 0x3a000000, v{T0}
    v_mul_f32 v0, 0x3a000000, v{T0+1}
    """)
    for u in range(1, 8): a(f"v_add_f32 v{u}, v{u-1}, v{T0}")
    for u in range(1, 8): a(f"v_fract_f32 v{u}, v{u}")
    for u in range(8): a(f"v_cos_f32 v{8+u}, v{u}")
    for u in range(8): a(f"v_sin_f32 v{16+u}, v{u}")
    for j in range(4): a(f"v_cvt_pk_bf16_f32 v{24+j}, v{8+2*j}, v{9+2*j}")
    for j in range(4): a(f"v_cvt_pk_bf16_f32 v{28+j}, v{16+2*j}, v{17+2*j}")
    NB0 = opt("tblbar", 2)
    a(f"""
    s_cmp_lg_u32 s40, 0
    s_cbranch_scc1 P1_TBL_ST
    s_barrier
    {st(1, True)}
    s_cmp_lg_u32 s61, 0
    s_cbranch_scc1 P1_EX_NR
    s_cmp_lt_u32 s2, 248
    s_cbranch_scc1 P1_EX_NR
    v_mov_b32 v32, 1
    v_mov_b32 v33, 0
    s_lshl_b32 s24, s17, 2
    s_waitcnt vmcnt(0)
    s_mov_b64 exec, 1
    buffer_store_dword v32, v33, s[32:35], s24 offen sc1
    s_mov_b64 exec, -1
P1_EX_NR:
    """ + "".join(f"s_barrier\n{st(1 + b_, True)}\n" for b_ in range(1, NB0)) + f"""
    s_mov_b32 s40, 1
P1_TBL_ST:
    s_lshl_b32 s24, s23, 11
    s_add_u32 s24, s24, {TB_OFF}
    buffer_store_dwordx4 v[24:27], v39, s[28:31], s24 offen sc1
    buffer_store_dwordx4 v[28:31], v39, s[28:31], s24 offen offset:1024 sc1
    s_add_u32 s23, s23, 1024
    s_cmp_lt_u32 s23, 1056
    s_cbranch_scc1 P1_TBL
    """)
    nb = NB0
    assert nb <= 6
    a("".join(f"s_barrier\n{st(1 + b_, True)}\n" for b_ in range(nb, 6)))
    u = a.uid()
    a(f"""
    v_and_b32 v1, 7, v36
    v_lshlrev_b32 v1, 2, v1
    v_mov_b32 v2, 1
    s_mov_b32 s60, 0
    s_cmp_lg_u32 s61, 0
    s_cbranch_scc1 P1_EX_C
    buffer_load_dword v2, v1, s[32:35], 0 offen sc1
P1_EX_C:
    s_barrier
    {st(7, True)}
    s_barrier
    {st(8, True)}
L_RDY{u}:
    s_waitcnt vmcnt(0)
    v_cmp_eq_u32 vcc, 0, v2
    s_cbranch_vccz P1_EX_B
    s_sleep 1
    buffer_load_dword v2, v1, s[32:35], 0 offen sc1
    s_add_u32 s60, s60, 1
    s_cmp_lt_u32 s60, 0x40000
    s_cbranch_scc1 L_RDY{u}
P1_EX_B:
    s_waitcnt vmcnt(0)
    s_barrier
    {st(9, True)}
    s_barrier
    {st(10, True)}
    s_mov_b32 s34, 0
    """)

def attention(a):
    O = 0; S = [16, 32]; P = 48; Q1 = 56; Q2 = 60; K2 = 62; K1 = 64; V1 = 68; V2 = [72, 76]; T = 80
    a(f"""
ATT:
    s_setprio 3
    s_cmp_lt_u32 s13, 4
    s_cselect_b32 s32, {opt("o1", 4)}, {opt("y1", 4)}
    s_cselect_b32 s33, {opt("o2", 7)}, {opt("y2", 7)}
    s_movk_i32 s35, 0x106
    s_bitset1_b32 s35, s32
    s_bitset1_b32 s35, s33
    s_mov_b32 s24, 0xfffff
    s_mov_b32 s25, 0xfffff
    s_mul_i32 s27, s13, 1280
    v_mov_b32 v{Q2+1}, 0
    v_mov_b32 v{K2+1}, 0x3f803f80
    v_add_u32 v{T}, s27, v{AK1}
    v_add_u32 v{T+1}, s27, v{AK2}
    v_mov_b32 v{T+2}, 1
    """)
    for r in range(12): a(f"v_mov_b32 v{V1+r}, v{ONES}")
    for r in range(16): a(f"v_mov_b32 v{O+r}, 0")
    for r in range(4): a(f"v_mov_b32 v{P+4+r}, 0\nv_mov_b32 v{P+r}, -1")
    def rk1(d): return f"v_mfma_f32_32x32x8_bf16 {vr(d,16)}, {vr(K2,2)}, {vr(Q2,2)}, 0"
    def rk2(d): return f"v_mfma_f32_32x32x16_bf16 {vr(d,16)}, {vr(K1,4)}, {vr(Q1,4)}, {vr(d,16)}"
    def qk1(d): return f"v_mfma_f32_32x32x16_bf16 {vr(d,16)}, {vr(K1,4)}, {vr(Q1,4)}, 0"
    def qk2(d): return f"v_mfma_f32_32x32x8_bf16 {vr(d,16)}, {vr(K2,2)}, {vr(Q2,2)}, {vr(d,16)}"
    def pv(v, p): return f"v_mfma_f32_32x32x16_bf16 {vr(O,16)}, {vr(v,4)}, {vr(p,4)}, {vr(O,16)}"
    def of(t): return (t - 6 if t in (6, 7) else t) * 2560
    def rdk1(t): return f"ds_read_b128 {vr(K1,4)}, v{BK1 if t in (6, 7) else AK1} offset:{of(t)}"
    def rdk2(t): return f"ds_read_b32 v{K2}, v{BK2 if t in (6, 7) else AK2} offset:{of(t)+1024}"
    def rdv(t, v2):
        b = BV if t in (6, 7) else AV
        return f"s_mov_b64 exec, s[24:25]\nds_read_b128 {vr(V1,4)}, v{b} offset:{of(t)+1280}\nds_read_b128 {vr(v2,4)}, v{b} offset:{of(t)+1920}\ns_mov_b64 exec, -1"
    def maxtree(s, m, first):
        if first:
            a(f"v_max3_f32 v{m}, v{s}, v{s+1}, v{s+2}\nv_max3_f32 v{m+1}, v{s+3}, v{s+4}, v{s+5}")
            for j in range(6, 14, 4): a(f"v_max3_f32 v{m}, v{s+j}, v{s+j+1}, v{m}\nv_max3_f32 v{m+1}, v{s+j+2}, v{s+j+3}, v{m+1}")
            a(f"v_max3_f32 v{m}, v{s+14}, v{s+15}, v{m}\nv_max_f32 v{m}, v{m}, v{m+1}")
        else:
            for j in range(0, 16, 2): a(f"v_max3_f32 v{m}, v{s+j}, v{s+j+1}, v{m}")
    def xhalf(m):
        a(f"v_mov_b32 v{m+1}, v{m}\ns_nop 1\nv_permlane32_swap_b32 v{m}, v{m+1}\ns_nop 0\nv_max_f32 v{m}, v{m}, v{m+1}")
    a(f"""
    s_cmp_lg_u32 s34, 1
    s_cbranch_scc1 ATT_NOSIG
    """)
    if opt("comb", 1):
        a(f"""
        v_mov_b32 v{T+4}, {LFB + 44}
        s_and_b32 s23, s15, -128
        s_mov_b64 exec, 1
        s_waitcnt vmcnt(0)
        ds_add_rtn_u32 v{T+5}, v{T+4}, v{T+2}
        s_waitcnt lgkmcnt(0)
        v_cmp_eq_u32 vcc, 3, v{T+5}
        s_cbranch_vccz ATT_NOSIG
        buffer_store_dwordx4 {vr(P,4)}, v{O}, s[28:31], s23 offen sc1
        """)
    else:
        a(f"s_waitcnt vmcnt(0)\ns_mov_b64 exec, 1\nbuffer_store_dword v{T+2}, v{O}, s[28:31], s15 offen sc1")
    a(f"""
ATT_NOSIG:
    s_mov_b64 exec, -1
    {st(4)}
    s_and_b32 s23, s34, s12
    s_cbranch_scc1 ATT_NOP
    s_barrier
ATT_NOP:
    {st(6)}
    ds_read_b128 {vr(Q1,4)}, v{T} offset:{QLDS}
    ds_read_b32 v{Q2}, v{T+1} offset:{QLDS+1024}
    {rdk1(0)}
    {rdk2(0)}
    {rdv(0, V2[0])}
    s_waitcnt lgkmcnt(2)
    {qk1(S[1])}
    {qk2(S[1])}
    """)
    for j in range(5): a(f"v_lshlrev_b32 v{S[0]+2*j}, 16, v{Q1+j}\nv_and_b32 v{S[0]+2*j+1}, 0xffff0000, v{Q1+j}")
    for j in range(10): a(f"v_mul_f32 v{S[0]+j}, {QSCALE:#x}, v{S[0]+j}")
    for j in range(5): a(f"v_cvt_pk_bf16_f32 v{Q1+j}, v{S[0]+2*j}, v{S[0]+2*j+1}")
    a(f"""
    s_nop 0
    {qk1(S[0])}
    {rdk1(1)}
    s_mov_b32 s26, 0
    """)
    maxtree(S[1], T, True); xhalf(T)
    a(f"""
    v_mul_f32 v{T}, {f32bits(-0.5 * (20 ** -0.5) * math.log2(math.e)):#x}, v{T}
    v_cvt_pk_bf16_f32 v{Q2+1}, v{T}, 0
    s_nop 1
    {qk2(S[0])}
    {rdk2(1)}
    buffer_store_dwordx4 {vr(P,4)}, v{OA1}, s[28:31], s6 offen sc1
    s_mov_b64 exec, 0xffff
    buffer_store_dwordx4 {vr(P,4)}, v{OA2}, s[28:31], s7 offen sc1
    s_mov_b64 exec, -1
    s_waitcnt lgkmcnt(0)
    {st(7)}
    s_nop 3
ATT_LOOP:
    """)
    def e(s, j): return f"v_exp_f32 v{s+j}, v{s+j}"
    def c(s, j): return f"v_cvt_pk_bf16_f32 v{P+j}, v{s+2*j}, v{s+2*j+1}"
    for j in range(8):
        cur, nxt = S[j % 2], S[(j + 1) % 2]
        a("s_waitcnt lgkmcnt(2)")
        if opt('rev', 0): a(rk1(nxt)); a(rdk2(j + 2))
        else: a(qk1(nxt)); a(rdk1(j + 2))
        for q in range(4): a(e(cur, q))
        a(pv(V2[(j + 1) % 2], P + 4))
        a("s_waitcnt lgkmcnt(1)")
        if j == 2: a(f"ds_write_b32 v{PA}, v{T+2}")
        for q in range(4, 8): a(e(cur, q))
        a(c(cur, 0)); a(c(cur, 1))
        if opt('rev', 0): a(rk2(nxt)); a(rdk1(j + 2))
        else: a(qk2(nxt)); a(rdk2(j + 2))
        a(c(cur, 2)); a(c(cur, 3))
        for q in range(8, 12): a(e(cur, q))
        a(pv(V1, P)); a(rdv(j + 1, V2[(j + 1) % 2]))
        for q in range(12, 16): a(e(cur, q))
        for q in range(4, 8): a(c(cur, q))
    a(f"""
    s_add_u32 s26, s26, 1
    s_movk_i32 s27, 0x5000
    s_cmp_eq_u32 s26, 7
    s_cselect_b32 s27, {(0x5000 - 62 * 2560) & 0xffffffff}, s27
    v_add_u32 v{AK1}, 0x5000, v{AK1}
    v_add_u32 v{AK2}, 0x5000, v{AK2}
    v_add_u32 v{AV}, 0x5000, v{AV}
    v_add_u32 v{BK1}, s27, v{BK1}
    v_add_u32 v{BK2}, s27, v{BK2}
    v_add_u32 v{BV}, s27, v{BV}
    v_add_u32 v{T+2}, 1, v{T+2}
    s_bitcmp1_b32 s35, s26
    s_cbranch_scc0 ATT_LOOP
    s_cmp_gt_u32 s26, 2
    s_cbranch_scc1 ATT_EV
    v_add_u32 v{FA}, 8, v{FA}
    s_waitcnt vmcnt(0)
ATT_WAIT:
    ds_read_b32 v{T}, v{FA}
    s_waitcnt lgkmcnt(0)
    v_readfirstlane_b32 s23, v{T}
    s_cmp_ge_u32 s23, 4
    s_cbranch_scc1 ATT_LOOP
    s_sleep 1
    s_branch ATT_WAIT
ATT_EV:
    s_setprio 2
    s_cmp_eq_u32 s26, s32
    s_cbranch_scc1 ATT_LOOP
    s_setprio 1
    s_cmp_lt_u32 s26, 8
    s_cbranch_scc1 ATT_LOOP
    s_setprio 3
    {pv(V2[1], P+4)}
    {st(8)}
    s_mov_b32 s27, 0x3e800000
    s_mov_b32 s23, 0x71800000
    s_nop 9
    """)
    a(f"v_rcp_f32 v{T+2}, v{O+12}\nv_add_f32 v{T}, |v{O}|, |v{O+1}|\nv_add_f32 v{T+1}, |v{O+2}|, |v{O+3}|")
    for j in range(4, 12, 2): a(f"v_add_f32 v{T}, |v{O+j}|, v{T}\nv_add_f32 v{T+1}, |v{O+j+1}|, v{T+1}")
    a(f"""
    v_add_f32 v{T}, v{T}, v{O+12}
    v_cmp_le_f32 s[42:43], s27, v{O+12}
    v_add_f32 v{T}, v{T}, v{T+1}
    v_cmp_gt_f32 vcc, s23, v{T}
    s_and_b64 vcc, vcc, s[42:43]
    s_cmp_eq_u64 vcc, -1
    s_cbranch_scc0 ATT_FALLBACK
ATT_FINISH:
    """)
    for j in range(8): a(f"v_mul_f32 v{O+j}, v{O+j}, v{T+2}")
    for j in range(4): a(f"v_cvt_pk_bf16_f32 v{P+j}, v{O+2*j}, v{O+2*j+1}")
    for j in range(4): a(f"v_min_u32 v{P+j}, -2, v{P+j}")
    a(f"buffer_store_dwordx4 {vr(P,4)}, v{OA1}, s[28:31], s6 offen sc1")
    for j in range(8, 12): a(f"v_mul_f32 v{O+j}, v{O+j}, v{T+2}")
    for j in range(4, 6): a(f"v_cvt_pk_bf16_f32 v{P+j}, v{O+2*j}, v{O+2*j+1}")
    for j in range(4, 6): a(f"v_min_u32 v{P+j}, -2, v{P+j}")
    a(f"""
    s_nop 1
    v_permlane16_swap_b32 v{P+4}, v{P+6}
    v_permlane16_swap_b32 v{P+5}, v{P+7}
    s_mov_b64 exec, 0xffff
    buffer_store_dwordx4 {vr(P+4,4)}, v{OA2}, s[28:31], s7 offen sc1
    {st(9)}
    s_cmp_lt_u32 s13, 4
    s_cbranch_scc1 ATT_OLD
    v_mov_b32 v{T}, {LFB + 52}
    v_mov_b32 v{T+1}, 1
    s_mov_b64 exec, 1
    {'s_waitcnt vmcnt(0)' if opt("g2", 1) == 1 else ''}
    ds_add_u32 v{T}, v{T+1}
    {fin()}
ATT_OLD:
    s_mov_b64 exec, -1
    s_xor_b32 s41, s13, {opt('gx', 2)}
    s_mov_b32 s47, 1
    s_branch P3_GO
    """)
    def gk(): return f"buffer_load_dwordx4 {vr(K1,4)}, v{AK1}, s[28:31], s23 offen sc1\nbuffer_load_dword v{K2}, v{AK2}, s[28:31], s23 offen offset:1024 sc1"
    a(f"""
ATT_FALLBACK:
    s_waitcnt lgkmcnt(0)
    v_mov_b32 v{Q2+1}, 0
    v_mov_b32 v{T}, 0xff800000
    v_subrev_u32 v{AK1}, {HS}, v{AK1}
    v_subrev_u32 v{AK2}, {HS}, v{AK2}
    v_subrev_u32 v{AV}, {HS}, v{AV}
    s_add_u32 s23, s14, {KV_OFF}
    s_mov_b32 s26, 0
ATT_FB1:
    {gk()}
    s_add_u32 s23, s23, 2560
    s_waitcnt vmcnt(0)
    {qk1(S[0])}
    {qk2(S[0])}
    s_nop 15
    """)
    maxtree(S[0], T, False)
    a("s_add_u32 s26, s26, 1\ns_cmp_lt_u32 s26, 64\ns_cbranch_scc1 ATT_FB1")
    xhalf(T)
    a(f"s_add_u32 s23, s14, {KV_OFF}\ns_mov_b32 s26, 0")
    for r in range(16): a(f"v_mov_b32 v{O+r}, 0")
    a(f"""
ATT_FB2:
    {gk()}
    s_mov_b64 exec, s[24:25]
    buffer_load_dwordx4 {vr(V1,4)}, v{AV}, s[28:31], s23 offen offset:1280 sc1
    buffer_load_dwordx4 {vr(V2[0],4)}, v{AV}, s[28:31], s23 offen offset:1920 sc1
    s_mov_b64 exec, -1
    s_add_u32 s23, s23, 2560
    s_waitcnt vmcnt(0)
    {qk1(S[0])}
    {qk2(S[0])}
    s_nop 15
    """)
    for q in range(16): a(f"v_sub_f32 v{S[0]+q}, v{S[0]+q}, v{T}")
    for q in range(16): a(e(S[0], q))
    a("s_nop 0")
    for q in range(8): a(c(S[0], q))
    a(f"""
    s_nop 1
    {pv(V1, P)}
    {pv(V2[0], P+4)}
    s_add_u32 s26, s26, 1
    s_cmp_lt_u32 s26, 64
    s_cbranch_scc1 ATT_FB2
    s_nop 15
    v_rcp_f32 v{T+2}, v{O+12}
    s_nop 0
    s_branch ATT_FINISH
    """)

def lwait(a, vaddr, vdat, mask, target, slp=8):
    u = a.uid()
    a(f"""
    s_mov_b64 exec, {mask}
    s_branch L_LWE{u}
L_LW{u}:
    s_sleep {slp}
L_LWE{u}:
    ds_read_b32 v{vdat}, v{vaddr}
    s_waitcnt lgkmcnt(0)
    v_cmp_gt_u32 vcc, {target}, v{vdat}
    s_cbranch_vccnz L_LW{u}
    s_mov_b64 exec, -1
    """)
def ladd(a, vaddr, vone, off):
    a(f"s_mov_b64 exec, 1\nds_add_u32 v{vaddr}, v{vone} offset:{off}\ns_mov_b64 exec, -1")

def helpers(a):
    WA, VG, VZ, SH, HPA, HONE, YFA, FZ, SG, XA5, LF = 112, 117, 118, 119, 120, 121, 122, 123, 124, 125, 126
    ZL = 40; G = 167; VY = 162; T = 132; LT = 127
    a(f"""
HELPER:
    s_mov_b32 s61, s22
    {st(2)}
    {srd(28, WS_P, WS_USED)}
    s_setprio 0
    s_lshr_b32 s20, s18, 2
    s_mul_i32 s26, s20, 160
    s_movk_i32 s23, {1280 - 160}
    """)
    for i in range(5):
        a(f"""
        v_add_u32 v{T}, {64*i}, v0
        v_mul_u32_u24 v{T+1}, 6554, v{T}
        v_lshrrev_b32 v{T+1}, 16, v{T+1}
        v_lshlrev_b32 v{T}, 4, v{T}
        v_mad_u32_u24 v{WA+i}, v{T+1}, s23, v{T}
        """)
    a(f"""
    s_lshl_b32 s21, s17, 3
    s_and_b32 s22, s18, 3
    s_add_u32 s21, s21, s22
    s_lshr_b32 s22, s16, 1
    s_lshl_b32 s22, s22, 2
    s_add_u32 s21, s21, s22
    s_lshl_b32 s21, s21, 1
    s_and_b32 s22, s16, 1
    s_add_u32 s21, s21, s22
    s_lshr_b32 s22, s21, 2
    s_lshl_b32 s22, s22, 1
    s_and_b32 s24, s21, 1
    s_add_u32 s22, s22, s24
    s_lshl_b32 s22, s22, 3
    v_and_b32 v{T}, 7, v0
    v_add_u32 v{T}, s22, v{T}
    s_bitcmp1_b32 s21, 1
    s_cselect_b32 s22, 0x400, 0
    s_cselect_b32 s24, -1, 1
    v_mul_lo_u32 v{T+1}, v{T}, s24
    s_sub_u32 s24, 0x800, s22
    v_sub_u32 v{T+2}, s24, v{T+1}
    v_add_u32 v{T+1}, s22, v{T+1}
    v_and_b32 v{T+3}, 8, v0
    v_cmp_ne_u32 vcc, 0, v{T+3}
    v_cmp_eq_u32 s[42:43], 0, v{T}
    v_lshlrev_b32 v{T+3}, 6, v{T+3}
    v_add_u32 v{T+3}, s22, v{T+3}
    v_cndmask_b32 v{T}, v{T+1}, v{T+2}, vcc
    v_lshrrev_b32 v{T+1}, 4, v0
    v_cndmask_b32 v{T}, v{T}, v{T+3}, s[42:43]
    v_mul_u32_u24 v{VY}, 1280, v{T}
    v_mul_u32_u24 v{T+2}, 40, v{T+1}
    v_add3_u32 v{VY}, v{VY}, v{T+2}, s26
    v_lshlrev_b32 v{VG}, 2, v{T}
    v_sub_u32 v{T+3}, 0x800, v{T}
    v_cmp_lt_u32 vcc, 0x400, v{T}
    v_min_u32 v{T}, v{T}, v{T+3}
    v_and_b32 v{T+3}, 1, v{T}
    v_mul_u32_u24 v{VZ}, {ZP}, v{T+3}
    v_lshrrev_b32 v{T+3}, 1, v{T}
    v_lshl_add_u32 v{VZ}, v{T+3}, 4, v{VZ}
    v_mov_b32 v{T+3}, 0x02020202
    v_cndmask_b32 v{SH}, 0, v{T+3}, vcc
    s_cmp_ge_u32 s20, 4
    s_mov_b32 s24, 0x05040100
    s_cselect_b32 s24, 0x07060302, s24
    s_cselect_b32 s40, -1, 1
    s_cselect_b32 s41, 155, 0
    v_xor_b32 v{SH}, s24, v{SH}
    s_mul_i32 s24, s20, 20
    v_mul_u32_u24 v{T+3}, 5, v{T+1}
    v_add_u32 v{T+3}, s24, v{T+3}
    v_mul_lo_u32 v{T+3}, v{T+3}, s40
    v_add_u32 v{T+3}, s41, v{T+3}
    v_mul_u32_u24 v{T+3}, {2*ZP}, v{T+3}
    v_add_u32 v{VZ}, v{VZ}, v{T+3}
    {p3_addr(0)}
    v_lshlrev_b32 v{HPA}, 2, v0
    v_add_u32 v{HPA}, {LFB}, v{HPA}
    v_mov_b32 v{HONE}, 1
    s_lshl_b32 s23, s2, 2
    s_add_u32 s23, s23, {FLG_OFF + 32768}
    v_mov_b32 v{YFA}, s23
    v_lshrrev_b32 v{FZ}, 4, v0
    v_mul_u32_u24 v{FZ}, {2*ZP}, v{FZ}
    v_and_b32 v{T}, 15, v0
    v_lshl_add_u32 v{FZ}, v{T}, 4, v{FZ}
    v_lshlrev_b32 v{SG}, 31, v0
    v_and_b32 v{XA5}, 48, v0
    v_lshlrev_b32 v{LF}, 7, v0
    v_bfe_u32 v{LT}, v0, 1, 2
    v_lshlrev_b32 v{LT}, 13, v{LT}
    v_and_b32 v{T}, 1, v0
    v_lshl_add_u32 v{LT}, v{T}, 7, v{LT}
    s_setprio 3
    s_lshr_b32 s19, s18, 3
    s_lshl_b32 s23, s17, 2
    s_add_u32 s19, s19, s23
    s_and_b32 s62, s18, 7
    s_mul_i32 s21, s19, {HG}
    v_lshlrev_b32 v1, 4, v0
    {st(3)}
    s_lshr_b32 s23, s19, 3
    s_lshl_b32 s23, s23, 13
    s_add_u32 s23, s23, {FLG_OFF}
    v_lshlrev_b32 v2, 7, v0
    v_add_u32 v2, s23, v2
    s_add_u32 s24, s21, {KV_OFF}
    s_lshl_b32 s40, 0x10000, s16
    s_lshl_b32 s41, 1, s16
    s_mul_i32 s22, s16, 10240
    s_add_u32 s26, s24, s22
    s_cmp_lg_u32 s16, 3
    s_cbranch_scc1 H_JA
    s_lshl_b32 s25, s62, 1
    s_lshl_b32 s40, 3, s25
    s_mov_b32 s41, 0
    s_mov_b32 s22, {QLDS}
    s_mul_i32 s26, s19, {HQ}
    s_mul_i32 s25, s62, 10240
    s_add_u32 s26, s26, s25
    s_add_u32 s26, s26, {Q_OFF}
H_JA:
    """)
    def job():
        r = f"s_add_u32 s25, s22, 5120\ns_cmp_ge_u32 s25, {LFB}\ns_cselect_b32 s25, 0, s25\n"
        for n in range(10):
            if n in (0, 3): r += f"s_add_u32 m0, s22, {1024*n}\ns_add_u32 s27, s26, {1024*n}\n"; o = 0
            if n in (5, 8): r += f"s_add_u32 m0, s25, {1024*(n-5)}\ns_add_u32 s27, s26, {1024*n}\n"; o = 0
            r += f"buffer_load_dwordx4 v1, s[28:31], s27 offen offset:{o} sc1 lds\n"; o += 1024
        return r
    if opt("latep", 1):
        a(f"s_mul_i32 s23, s12, 12\ns_cmp_eq_u32 s61, 3\ns_cselect_b32 s23, 12, s23\ns_add_u32 s23, s23, {LFB + 44}\nv_mov_b32 v3, s23")
        lwait(a, 3, 4, 1, 4, 2)
        if opt("lps", 0): a(f"s_sleep {opt('lps', 0)}")
    poll4(a, 2, 4, "s[40:41]")
    a(st(11)); a(job())
    a(f"""
    s_lshl_b32 s40, 0x80000, s16
    s_lshl_b32 s41, 8, s16
    s_add_u32 s22, s16, 3
    s_mul_i32 s22, s22, 10240
    s_add_u32 s26, s24, s22
    s_waitcnt vmcnt(0)
    {st(12)}
    s_barrier
    s_cmp_eq_u32 s16, 3
    s_cbranch_scc1 H_JB
    """)
    poll4(a, 2, 4, "s[40:41]")
    a(job())
    a(f"""
H_JB:
    s_lshl_b32 s41, 0x4440, s16
    s_and_b32 s41, s41, 0xffff
    s_lshl_b32 s40, s41, 16
    s_add_u32 s22, s16, 6
    s_mul_i32 s22, s22, 10240
    s_add_u32 s26, s24, s22
    s_waitcnt vmcnt(0)
    """)
    ladd(a, HPA, HONE, 64)
    lwait(a, HPA, 4, 0xff, 1)
    poll4(a, 2, 4, "s[40:41]", slp=8)
    a(f"{st(13)}\nH_JC:"); a(job())
    a(f"""
    s_add_u32 s22, s22, 40960
    s_add_u32 s26, s26, 40960
    s_cmp_lt_u32 s22, {HS}
    s_cbranch_scc1 H_JC
    s_waitcnt vmcnt(0)
    {st(4)}
    """)
    ladd(a, HPA, HONE, 72)
    a(f"""
    s_cmp_lt_u32 s16, 3
    s_cbranch_scc1 H_FNET
    """)
    a(f"""
    {srd(32, X_P, 2048*1280)}
    {srd(36, GATE_P, 1280)}
    v_lshrrev_b32 v2, 3, v0
    v_and_b32 v3, 7, v0
    v_lshlrev_b32 v3, 4, v3
    s_movk_i32 s22, 1280
    v_mad_u32_u24 v4, v2, s22, v3
    s_mul_i32 s23, s2, {8*1280}
    """)
    for j in range(10):
        a(f"buffer_load_dwordx4 {vr(24+8*j,4)}, v4, s[32:35], s23 offen offset:{128*j}")
        a(f"buffer_load_dwordx4 {vr(28+8*j,4)}, v3, s[36:39], 0 offen offset:{128*j}")
    a("v_mov_b32 v5, 0\nv_mov_b32 v6, 0\ns_waitcnt vmcnt(0)")
    for j in range(10):
        for q in range(4):
            a(f"v_dot2c_f32_bf16 v{5 + (q & 1)}, v{24+8*j+q}, v{28+8*j+q}")
    a(f"""
    s_nop 2
    v_add_f32 v5, v5, v6
    s_nop 1
    v_add_f32_dpp v5, v5, v5 quad_perm:[1,0,3,2] row_mask:0xf bank_mask:0xf
    s_nop 1
    v_add_f32_dpp v5, v5, v5 quad_perm:[2,3,0,1] row_mask:0xf bank_mask:0xf
    s_nop 1
    v_add_f32_dpp v5, v5, v5 row_half_mirror row_mask:0xf bank_mask:0xf
    v_mul_f32 v5, {f32bits(-math.log2(math.e)):#x}, v5
    v_exp_f32 v5, v5
    v_lshlrev_b32 v2, 2, v2
    v_add_f32 v5, 1.0, v5
    v_rcp_f32 v5, v5
    s_lshl_b32 s23, s2, 5
    s_add_u32 s23, s23, {G_OFF}
    buffer_store_dword v5, v2, s[28:31], s23 offen sc1
    s_branch H_MID
    """)
    C, SN, FB = 0, 8, 16
    a(f"""
H_FNET:
    {'s_branch H_MID' if opt('nofnet', 0) == 1 else ''}
    s_lshl_b32 s22, s16, 5
    s_add_u32 s22, s22, s18
    s_cmp_lt_u32 s22, 84
    s_cbranch_scc1 H_FN_A
    s_sub_u32 s24, s22, 84
    s_lshl_b32 s24, s24, 3
    s_add_u32 s24, s24, s17
    s_cmp_ge_u32 s24, 21
    s_cbranch_scc1 H_MID
    s_mov_b32 s23, 32
    s_branch H_FN_B
H_FN_A:
    s_mul_i32 s23, s22, 3121
    s_lshr_b32 s23, s23, 16
    s_mul_i32 s24, s23, 21
    s_sub_u32 s24, s22, s24
    s_lshl_b32 s23, s23, 3
    s_add_u32 s23, s23, s17
H_FN_B:
    s_and_b32 s25, s23, 1
    s_add_u32 s26, s24, 20
    s_cmp_eq_u32 s24, 20
    s_cselect_b32 s26, 20, s26
    s_mul_i32 s32, s24, 26
    s_lshr_b32 s32, s32, 8
    s_lshl_b32 s32, s32, 13
    s_add_u32 s32, s32, {48 * 128}
    s_mul_i32 s33, s26, 26
    s_lshr_b32 s33, s33, 8
    s_lshl_b32 s33, s33, 13
    s_add_u32 s33, s33, {32 * 128}
    s_and_b32 s34, s23, 31
    s_lshl_b32 s34, s34, 8
    s_mov_b64 exec, 0xffff
    v_add_u32 v2, s32, v{LF}
    s_mov_b32 exec_lo, 0xffff0000
    v_add_u32 v2, s33, v{LF}
    s_mov_b32 exec_lo, 0
    s_mov_b32 exec_hi, 0xff
    v_add_u32 v2, s34, v{LT}
    s_mov_b32 s40, -1
    s_movk_i32 s41, 0xff
    s_mov_b32 s27, {FLG_OFF}
    """)
    poll4(a, 2, 4, "s[40:41]", "s27", slp=8)
    a(st(14))
    a(f"""
    s_lshl_b32 s32, s23, 16
    s_add_u32 s32, s32, {TB_OFF}
    s_mul_i32 s27, s25, {FO_DELTA}
    s_add_u32 s27, s27, {FE_OFF}
    s_lshl_b32 s33, s24, 14
    s_add_u32 s33, s33, s27
    s_lshl_b32 s34, s26, 14
    s_add_u32 s34, s34, s27
    s_cmp_eq_u32 s25, 0
    s_cselect_b32 s35, s24, s26
    s_lshl_b32 s35, s35, 6
    s_add_u32 s35, s35, {X512_OFF}
    buffer_load_dwordx4 v[128:131], v{XA5}, s[28:31], s35 offen sc1
    """)
    def fl(j):
        r = FB + 24 * j
        s_ = f"buffer_load_dwordx4 {vr(r,4)}, v163, s[28:31], s33 offen offset:{1024*j} sc1\n"
        s_ += f"buffer_load_dwordx4 {vr(r+4,4)}, v163, s[28:31], s34 offen offset:{1024*j} sc1\n"
        for k in range(4): s_ += f"buffer_load_dwordx4 {vr(r+8+4*k,4)}, v163, s[28:31], s32 offen offset:{1024*k} sc1\n"
        s_ += "s_add_u32 s32, s32, 4096\n"
        if j == 3: s_ += "s_add_u32 s33, s33, 4096\ns_add_u32 s34, s34, 4096\n"
        return s_
    def fm(j):
        r = FB + 24 * j
        s_ = ""
        if opt("nofnet", 0) == 2: return s_
        for sub in range(2):
            s_ += f"v_mfma_f32_16x16x32_bf16 {vr(C+4*sub,4)}, {vr(r,4)}, {vr(r+8+8*sub,4)}, {vr(C+4*sub,4)}\n"
            s_ += f"v_mfma_f32_16x16x32_bf16 {vr(SN+4*sub,4)}, {vr(r+4,4)}, {vr(r+12+8*sub,4)}, {vr(SN+4*sub,4)}\n"
        return s_
    for j in range(4): a(fl(j))
    a(f"""
    s_cmp_eq_u32 s25, 0
    s_cselect_b32 s36, 1.0, 0
    s_cselect_b32 s37, 0, 1.0
    v_or_b32 v161, s37, v{SG}
    v_or_b32 v160, s36, v{SG}
    s_waitcnt vmcnt(24)
    """)
    for r in range(8): a(f"v_mul_f32 v{C+r}, v160, v{128 + r % 4}\nv_mul_f32 v{SN+r}, v161, v{128 + r % 4}")
    a("s_mov_b32 s38, 0\nH_FN_LOOP:")
    for j in range(4):
        a("s_waitcnt vmcnt(18)"); a(fm(j)); a(fl(j))
    a("s_add_u32 s38, s38, 1\ns_cmp_lt_u32 s38, 3\ns_cbranch_scc1 H_FN_LOOP")
    for j in range(4):
        a(f"s_waitcnt vmcnt({18-6*j})"); a(fm(j))
    a(f"""
    s_cmp_eq_u32 s26, 20
    s_cselect_b32 s44, 0xffff, 0
    s_mov_b32 s45, 0
    s_mul_i32 s26, s24, {8*ZP}
    s_mul_i32 s27, s25, {ZP}
    s_add_u32 s26, s26, s27
    s_lshr_b32 s27, s23, 1
    s_lshl_b32 s27, s27, 9
    s_add_u32 s26, s26, s27
    s_add_u32 s26, s26, {Y_OFF}
    v_cndmask_b32 v{SN}, v{SN}, 0, s[44:45]
    v_cndmask_b32 v{SN+4}, v{SN+4}, 0, s[44:45]
    """)
    for r in range(8):
        a(f"v_add_f32 v{16+r}, v{C+r}, v{SN+r}\nv_sub_f32 v{C+r}, v{C+r}, v{SN+r}")
    for r in range(8): a(f"v_cvt_pk_bf16_f32 v{16+r}, v{16+r}, v{C+r}")
    a(f"buffer_store_dwordx4 v[16:19], v{FZ}, s[28:31], s26 offen sc1\nbuffer_store_dwordx4 v[20:23], v{FZ}, s[28:31], s26 offen offset:256 sc1")
    a(f"""
H_MID:
    s_lshl_b32 s19, s17, 2
    s_and_b32 s20, s18, 3
    s_add_u32 s19, s19, s20
    s_lshr_b32 s20, s18, 2
    {srd(32, WO_P, 640*1280)}
    {srd(36, OUT_P, 2621440)}
    s_mul_i32 s26, s20, 160
    s_mul_i32 s27, s16, {160*1280}
    s_add_u32 s27, s27, s26
    s_movk_i32 s23, {1280 - 160}
    """)
    a(f"""
    s_add_u32 s25, s16, 1
    s_and_b32 s25, s25, 3
    s_mul_i32 s22, s25, 25600
    s_add_u32 s22, s22, {WOL}
    s_add_u32 s25, s25, 3
    s_waitcnt vmcnt(0)
    {st(5)}
    """)
    lwait(a, HPA, T + 1, 0xff, 2)
    a(f"""s_mov_b64 exec, 1
    ds_add_rtn_u32 v{T+1}, v{HPA}, v{HONE} offset:48
    s_waitcnt lgkmcnt(0)
    v_cmp_eq_u32 vcc, 3, v{T+1}
    s_cbranch_vccz H_NOY
    buffer_store_dword v{HONE}, v{YFA}, s[28:31], 0 offen sc1
H_NOY:
    s_mov_b64 exec, -1""")
    lwait(a, HPA, T + 1, 0xff, "s25")
    a(f"{st(6)}\ns_mov_b32 s25, 0\nH_WO:")
    for i in range(5):
        a(f"s_add_u32 m0, s22, {1024*i}\ns_nop 0\nbuffer_load_dwordx4 v{WA+i}, s[32:35], s27 offen lds")
    a(f"""
    s_add_u32 s22, s22, 5120
    s_add_u32 s27, s27, {32*1280}
    s_add_u32 s25, s25, 1
    s_cmp_lt_u32 s25, 5
    s_cbranch_scc1 H_WO
    s_cmp_lg_u32 s16, 3
    s_cbranch_scc1 H_YW
    """)
    lwait(a, HPA, T + 1, 0xff, opt("ypr", 5), 16)
    a(f"s_mov_b32 s27, {FLG_OFF + 32768}")
    poll4(a, VA, 4, "-1", "s27", slp=16)
    ladd(a, HPA, HONE, 40)
    a(f"H_YW:\nv_add_u32 v{T}, 40, v{HPA}")
    lwait(a, T, T + 1, 1, 1, 16)
    a("s_waitcnt vmcnt(0)")
    a(f"v_mov_b32 v{T}, 2")
    ladd(a, HPA, T, 32)
    a(f"{st(7)}\ns_mov_b32 s26, {Y_OFF}\ns_mov_b32 s27, {G_OFF}\nbuffer_load_dword v{G}, v{VG}, s[28:31], s27 offen sc1")
    for j in range(6):
        a(f"buffer_load_dwordx4 {vr(ZL+4*j,4)}, v{VZ}, s[28:31], s26 offen sc1\ns_add_u32 s26, s26, {2*ZP}")
    BF, OFR, ACC, YG = 0, 100, 120, 140
    VY2, G2 = 162, 167
    a(f"""
    s_waitcnt vmcnt(0)
    s_cmp_ge_u32 s20, 4
    s_cbranch_scc1 H_DESC
    """)
    for k in range(10): a(f"v_perm_b32 v{YG+10+k}, v{ZL+2*k+1}, v{ZL+2*k}, v{SH}")
    a("s_branch H_UNP\nH_DESC:")
    for k in range(10): a(f"v_perm_b32 v{YG+10+k}, v{ZL+19-2*k}, v{ZL+20-2*k}, v{SH}")
    a("H_UNP:")
    a(f"""
    {st(8)}
    s_mov_b32 s41, s16
    s_mov_b32 s47, 0
P3_GO:
    s_setprio {opt('p3o', 0)}
    s_lshl_b32 s22, s17, 3
    s_and_b32 s23, s18, 3
    s_add_u32 s22, s22, s23
    s_lshl_b32 s22, s22, 1
    s_add_u32 s22, s22, s47
    s_mul_i32 s22, s22, 20480
    s_add_u32 s22, s22, {OF_OFF}
    s_lshl_b32 s44, s41, 12
    s_add_u32 s44, s44, s22
    s_lshl_b32 s45, s41, 10
    s_add_u32 s45, s45, s22
    s_add_u32 s45, s45, 16384
    s_lshl_b32 s46, s47, 2
    s_add_u32 s40, s46, {LFB + 80}
    s_add_u32 s46, s46, s41
    s_mul_i32 s46, s46, 5120
    s_add_u32 s46, s46, {WOL}
    s_mov_b32 s26, 0
    s_mov_b32 s42, 0
    v_mov_b32 v{CM}, {LFB + 32}
    """)
    lwait(a, CM, CT, 1, 8)
    a(f"""
    s_add_u32 s23, s41, 1
    s_and_b32 s23, s23, 3
    s_mul_i32 s23, s23, 25600
    s_add_u32 s23, s23, {WOL}
    v_add_u32 v{CM}, s23, v{BMM}
    v_add_u32 v{CT}, s23, v{BMT}
    """)
    for n in range(25):
        k, t = divmod(n, 5); d = BF + 4 * n
        bb, o, dj = (CM, k * 6400 + t * 8, 1280) if k < 4 else (CT, t * 8, 3200)
        a(f"ds_read_b64_tr_b16 {vr(d,2)}, v{bb} offset:{o}\nds_read_b64_tr_b16 {vr(d+2,2)}, v{bb} offset:{o+dj}")
    a(f"v_mov_b32 v{BMM}, {LFB + 36}\nv_mov_b32 v{BMT}, 1\ns_waitcnt lgkmcnt(0)")
    ladd(a, BMM, BMT, 0)
    lwait(a, BMM, CT, 1, 8, 2)
    a("P3_TRY:")
    for k in range(4):
        a(f"buffer_load_dwordx4 {vr(OFR+4*k,4)}, v{VA}, s[28:31], s44 offen offset:{1024*k} sc1")
    a(f"buffer_load_dwordx2 {vr(OFR+16,2)}, v{VT}, s[28:31], s45 offen sc1\nbuffer_load_dwordx2 {vr(OFR+18,2)}, v{VT}, s[28:31], s45 offen offset:128 sc1")
    b = OFR
    def mfs(k): return "\n".join(f"v_mfma_f32_16x16x32_bf16 {vr(ACC+4*t,4)}, {vr(BF+4*(5*k+t),4)}, {vr(OFR+4*k,4)}, {vr(ACC+4*t,4) if k else 0}" for t in range(5))
    if opt("spec", 1):
        a("P3_CHK:\ns_add_u32 s26, s26, 1\ns_mov_b32 s43, -1")
        for k in range(5):
            r = b + 4 * k
            a(f"""P3_C{k}:
            s_waitcnt vmcnt({max(0, 5 - k) if k < 4 else 0})
            v_max3_u32 v{CM}, v{r}, v{r+1}, v{r+2}
            v_max3_u32 v{CM}, v{r+3}, v{CM}, 1
            v_cmp_eq_u32 vcc, s43, v{CM}
            s_cbranch_vccnz P3_B{k}
            {mfs(k)}""")
        a(f"{'' if opt('fst', 0) else st(11)}\ns_branch P3_OK")
        for k in range(5):
            a(f"P3_B{k}:\ns_sleep {opt('p3s', 4)}")
            for kk in range(k, 4):
                a(f"buffer_load_dwordx4 {vr(OFR+4*kk,4)}, v{VA}, s[28:31], s44 offen offset:{1024*kk} sc1")
            a(f"buffer_load_dwordx2 {vr(OFR+16,2)}, v{VT}, s[28:31], s45 offen sc1\nbuffer_load_dwordx2 {vr(OFR+18,2)}, v{VT}, s[28:31], s45 offen offset:128 sc1")
            a(f"s_add_u32 s26, s26, 1\ns_cmp_lt_u32 s26, 0x40000\ns_cselect_b32 s43, -1, 0\ns_branch P3_C{k}")
        a("P3_OK:")
    else:
        a(f"P3_CHK:\ns_add_u32 s26, s26, 1\ns_waitcnt vmcnt(4)\nv_max3_u32 v{CM}, v{b}, v{b+1}, v{b+2}\nv_max3_u32 v{CT}, v{b+3}, v{b+4}, v{b+5}\nv_max3_u32 v{CM}, v{b+6}, v{b+7}, v{CM}\ns_waitcnt vmcnt(2)")
        a(f"v_max3_u32 v{CT}, v{b+8}, v{b+9}, v{CT}\nv_max3_u32 v{CM}, v{b+10}, v{b+11}, v{CM}\nv_max3_u32 v{CT}, v{b+12}, v{b+13}, v{CT}\nv_max3_u32 v{CM}, v{b+14}, v{b+15}, v{CM}\ns_waitcnt vmcnt(0)")
        a(f"""
    v_max3_u32 v{CT}, v{b+16}, v{b+17}, v{CT}
    v_max3_u32 v{CM}, v{b+18}, v{b+19}, v{CM}
    s_cmp_lt_u32 s26, 0x40000
    v_max_u32 v{CM}, v{CM}, v{CT}
    s_cbranch_scc0 P3_OK
    v_cmp_eq_u32 vcc, -1, v{CM}
    s_cbranch_vccz P3_OK
    s_sleep {opt("p3s", 4)}
    s_branch P3_TRY
P3_OK:
    {'' if opt('fst', 0) else st(11)}
    s_setprio {opt('p3p', 0)}
    """)
        for n in range(25):
            k, t = divmod(n, 5)
            a(f"v_mfma_f32_16x16x32_bf16 {vr(ACC+4*t,4)}, {vr(BF+4*n,4)}, {vr(OFR+4*k,4)}, {vr(ACC+4*t,4) if k else 0}")
    if STAMP: a("s_cmp_lg_u32 s42, 0\ns_cbranch_scc1 P3_WR")
    a(f"{str() if opt('fst', 0) else st(12)}\nP3_WR:\nv_add_u32 v{CM}, s46, v{VA}\nv_mov_b32 v{CT}, s40\ns_nop 2")
    for j in range(5): a(f"ds_write_b128 v{CM}, {vr(ACC+4*j,4)} offset:{1024*j}")
    a("s_waitcnt lgkmcnt(0)")
    ladd(a, CT, BMT, 0)
    a(f"""
    s_add_u32 s44, s44, {8*20480}
    s_add_u32 s45, s45, {8*20480}
    s_add_u32 s46, s46, {8*5120}
    s_add_u32 s40, s40, 8
    s_add_u32 s42, s42, 1
    s_cmp_ge_u32 s42, 2
    s_cbranch_scc1 P3_END
    s_cmp_ge_u32 s16, 4
    s_cbranch_scc1 P3_G2
    """)
    for k in range(10): a(f"v_lshlrev_b32 v{YG+2*k}, 16, v{YG+10+k}\nv_and_b32 v{YG+2*k+1}, 0xffff0000, v{YG+10+k}")
    for k in range(20): a(f"v_mul_f32 v{YG+k}, v{YG+k}, v{G2}")
    a(f"""
    v_sub_f32 v{G2}, 1.0, v{G2}
P3_G2:
    v_mov_b32 v{CM}, {LFB + 52}
    """)
    if opt("g2", 1): lwait(a, CM, CT, 1, 4, 1)
    a(f"""
    s_branch P3_TRY
P3_END:
    {st(10)}
    s_cmp_ge_u32 s16, 4
    s_cbranch_scc1 {"L_DONE" if STAMP else "L_END"}
    s_setprio 3
    s_lshl_b32 s23, s16, 2
    s_add_u32 s23, s23, {LFB + 80}
    v_mov_b32 v{CT}, s23
    s_mul_i32 s23, s16, 20480
    s_add_u32 s23, s23, {WOL}
    v_add_u32 v{CM}, s23, v{VA}
    """)
    lwait(a, CT, BMM, 1, 4, 1)
    a(st(9))
    for j in range(5):
        for g in range(4): a(f"ds_read_b128 {vr(16*j+4*g,4)}, v{CM} offset:{5120*g+1024*j}")
    for j in range(5):
        a(f"s_waitcnt lgkmcnt({min(15, 16-4*j)})")
        for r in range(4): a(f"v_add_f32 v{16*j+r}, v{16*j+r}, v{16*j+4+r}\nv_add_f32 v{16*j+8+r}, v{16*j+8+r}, v{16*j+12+r}")
        for r in range(4): a(f"v_add_f32 v{16*j+r}, v{16*j+r}, v{16*j+8+r}")
        for r in range(4): a(f"v_fmac_f32 v{YG+4*j+r}, v{16*j+r}, v{G2}")
        a(f"v_cvt_pk_bf16_f32 v{84+2*j}, v{YG+4*j}, v{YG+4*j+1}\nv_cvt_pk_bf16_f32 v{84+2*j+1}, v{YG+4*j+2}, v{YG+4*j+3}")
        if j == 1: a(f"buffer_store_dwordx4 v[84:87], v{VY2}, s[36:39], 0 offen" + OSC)
        if j == 3: a(f"buffer_store_dwordx4 v[88:91], v{VY2}, s[36:39], 0 offen offset:16" + OSC)
    a(f"buffer_store_dwordx2 v[92:93], v{VY2}, s[36:39], 0 offen offset:32" + OSC)

def main():
    a = A()
    top = open("cdna_kernels/" + NAME + ".s.ref").read().split("; Override launch")[0]
    top += "; @launch grid=(256,1,1) block=(768,1,1) lds=163840\n"
    a('.amdgcn_target "amdgcn-amd-amdhsa--gfx950"\n.text')
    d = gen(a)
    open(sys.argv[1], "w").write(top + a.text() + '.section .rodata,"a"\n.p2align 6\n' + d)
if __name__ == "__main__":
    main()
```

```python
import sys, math, struct

OPT = dict(x.split("=") for x in sys.argv[2:])
def opt(k, d): return int(OPT.get(k, d))
NAME = "gated_mix__spectral_fnet__softmax_full_mha__prompt"
HS = 163840
KV_OFF = 0
HG = HS + opt('pad', 512)
HQ = 81920 + opt('pad', 512)
Q_OFF = 32 * HG
FE_OFF = Q_OFF + 32 * HQ
FO_DELTA = 655360
X512_OFF = FE_OFF + 2 * FO_DELTA
TB_OFF = X512_OFF + 4096
Y_OFF = TB_OFF + 33 * 65536
ZP = 8704
G_OFF = Y_OFF + 85 * 2 * ZP
OF_OFF = G_OFF + 8192
FLG_OFF = OF_OFF + 2621440
WS_USED = FLG_OFF + 320 * 128
XB = 102400
L_Y = 256
QLDS = 61440
RB0, RSL = 11264, 36864
LFB = 158720
WOL = 5120
AK1, AK2, AV, BK1, BK2, BV, OA1, OA2, ONES, PA, FA = range(152, 163)
VA, VT, BMM, BMT, CM, CT = 163, 164, 165, 166, 160, 161
PXB = 107520
def p3_addr(l):
    return f"""v_lshlrev_b32 v{VA}, 4, v{l}
    v_and_b32 v2, 7, v{l}
    v_bfe_u32 v4, v{l}, 3, 1
    v_lshrrev_b32 v3, 4, v{l}
    v_lshlrev_b32 v{VT}, 8, v3
    v_lshl_add_u32 v{VT}, v2, 4, v{VT}
    v_lshl_add_u32 v{VT}, v4, 3, v{VT}
    v_bfe_u32 v2, v{l}, 2, 2
    v_and_b32 v5, 3, v{l}
    v_mul_u32_u24 v5, 40, v5
    v_mul_u32_u24 v4, 40, v3
    v_add3_u32 v4, v4, v2, 16
    v_mul_u32_u24 v4, 160, v4
    v_add_u32 v{BMT}, v4, v5
    v_lshrrev_b32 v4, 1, v3
    v_mul_u32_u24 v4, 20, v4
    v_and_b32 v3, 1, v3
    v_lshl_add_u32 v4, v3, 2, v4
    v_add_u32 v4, v4, v2
    v_mul_u32_u24 v4, 160, v4
    v_add_u32 v{BMM}, v4, v5"""

def f32bits(x): return struct.unpack("<I", struct.pack("<f", x))[0]
QSCALE = f32bits((20 ** -0.5) * math.log2(math.e))
STAMP = opt("stamp", 0)
STAMP_OFF = 1 << 25
NST = 16

class A:
    def __init__(self): self.l = []; self.n = 0
    def __call__(self, s):
        for line in s.split("\n"):
            t = line.strip()
            if not t: continue
            self.l.append(t if t.endswith(":") or t.startswith(".") else "    " + t)
    def uid(self): self.n += 1; return self.n
    def text(self): return "\n".join(self.l) + "\n"

def vr(a, n): return f"v[{a}:{a+n-1}]" if n > 1 else f"v{a}"
def srd(lo, base, size):
    return f"s_mov_b32 s{lo}, s{base}\ns_mov_b32 s{lo+1}, s{base+1}\ns_mov_b32 s{lo+2}, {size}\ns_mov_b32 s{lo+3}, 0x20000"
OSC = " sc1" if opt("outsc1", 0) else ""
P1ST = opt("p1st", 0)
def st(i, p1=False):
    if not STAMP: return ""
    if P1ST and not p1 and 0 < i < 15 and i not in (4, 5): return ""
    if P1ST and not p1 and i in (4, 5): i += 8
    if p1 and not P1ST: return ""
    return f"{'s_memrealtime' if STAMP in (1, 3, 4) else 's_memtime'} s[{64+2*i}:{65+2*i}]"
def fin(): return "s_branch L_DONE" if STAMP else "s_endpgm"

X_P, WD_P, WQKV_P, WO_P, GATE_P, OUT_P, DBG_P, WS_P = 4, 8, 48, 50, 52, 54, 56, 58

def poll(a, vaddr, vdat, mask, target, sreg=60):
    u = a.uid()
    a(f"""
    s_mov_b64 exec, {mask}
    s_mov_b32 s{sreg}, 0
L_POLL{u}:
    buffer_load_dword v{vdat}, v{vaddr}, s[28:31], 0 offen sc1
    s_waitcnt vmcnt(0)
    v_cmp_gt_u32 vcc, {target}, v{vdat}
    s_cbranch_vccz L_POLLD{u}
    {'s_sleep 1' if opt('psleep', 0) else ''}
    s_add_u32 s{sreg}, s{sreg}, 1
    s_cmp_lt_u32 s{sreg}, 0x40000
    s_cbranch_scc1 L_POLL{u}
L_POLLD{u}:
    s_mov_b64 exec, -1
    """)

def poll4(a, vaddr, vdat, mask, soff="0", sreg=60, slp=None):
    u = a.uid()
    a(f"""
    s_mov_b64 exec, {mask}
    s_mov_b32 s{sreg}, 0
    s_branch L_POLLE{u}
L_POLL{u}:
    s_sleep {slp or opt("ps4", 2)}
L_POLLE{u}:
    buffer_load_dwordx4 {vr(vdat,4)}, v{vaddr}, s[28:31], {soff} offen sc1
    s_add_u32 s{sreg}, s{sreg}, 1
    s_waitcnt vmcnt(0)
    v_min3_u32 v{vdat}, v{vdat}, v{vdat+1}, v{vdat+2}
    s_cmp_lt_u32 s{sreg}, 0x40000
    v_min_u32 v{vdat}, v{vdat}, v{vdat+3}
    s_cbranch_scc0 L_POLLD{u}
    v_cmp_eq_u32 vcc, 0, v{vdat}
    s_cbranch_vccnz L_POLL{u}
L_POLLD{u}:
    s_mov_b64 exec, -1
    """)

def gen(a):
    label = NAME + "_kernel"
    a(f".p2align 8\n.globl {label}\n.type {label},@function\n{label}:")
    a(f"""
    s_cmp_ge_u32 s2, 256
    s_cbranch_scc1 L_END
    {st(0) + chr(10) + 's_waitcnt lgkmcnt(0)' if opt("st0first", 0) else ''}
    s_load_dwordx2 s[4:5], s[0:1], 0
    s_load_dwordx8 s[48:55], s[0:1], 48
    s_load_dwordx4 s[8:11], s[0:1], 24
    s_load_dwordx4 s[56:59], s[0:1], 80
    """)
    if STAMP:
        a("\n".join(f"s_mov_b32 s{64+j}, 0" for j in range(2, 2 * NST)) + "\n" + ("" if opt("st0first", 0) else st(0)))
    a(f"""
    v_lshrrev_b32 v1, 6, v0
    v_and_b32 v0, 63, v0
    s_and_b32 s17, s2, 7
    v_readfirstlane_b32 s16, v1
    s_lshr_b32 s18, s2, 3
    s_and_b32 s19, s18, 7
    s_lshr_b32 s22, s18, 3
    s_and_b32 s21, s17, 1
    s_lshl_b32 s23, s19, 1
    s_add_u32 s21, s21, s23
    s_lshr_b32 s20, s17, 1
    s_cmp_ge_u32 s19, {opt("numl", 3)}
    s_cselect_b32 s12, 1, 0
    s_cmp_eq_u32 s22, 0
    s_cselect_b32 s12, 0, s12
    s_cmp_ge_u32 s16, 4
    s_cbranch_scc1 P1_NOTLOADER
    """)
    p1_loader(a)
    a(f"""
P1_NOTLOADER:
    s_lshl_b32 s63, s17, 2
    s_add_u32 s63, s63, s22
    s_mul_i32 s14, s63, {HG}
    s_sub_u32 s13, s16, 4
    s_lshl_b32 s23, s19, 3
    s_add_u32 s23, s23, s13
    s_mul_i32 s23, s23, 40960
    s_add_u32 s23, s23, {OF_OFF}
    s_lshl_b32 s6, s63, 9
    s_add_u32 s6, s6, s23
    s_lshl_b32 s7, s63, 7
    s_add_u32 s7, s7, s23
    s_add_u32 s7, s7, 16384
    s_lshl_b32 s15, s20, 2
    s_add_u32 s15, s15, s22
    s_lshl_b32 s15, s15, 4
    s_add_u32 s15, s15, s21
    s_lshl_b32 s15, s15, 5
    s_add_u32 s15, s15, s13
    s_lshl_b32 s15, s15, 2
    s_add_u32 s15, s15, {FLG_OFF}
    v_and_b32 v1, 31, v0
    v_lshrrev_b32 v2, 5, v0
    v_lshlrev_b32 v{AK1}, 4, v0
    v_lshrrev_b32 v3, 4, v1
    v_lshl_add_u32 v3, v3, 1, v2
    v_and_b32 v4, 15, v0
    v_lshl_add_u32 v3, v4, 2, v3
    v_lshlrev_b32 v{AK2}, 2, v3
    v_mul_u32_u24 v{AV}, 384, v2
    v_lshlrev_b32 v3, 6, v2
    v_cmp_gt_u32 vcc, 16, v1
    s_nop 1
    v_cndmask_b32 v{AV}, v3, v{AV}, vcc
    v_lshl_add_u32 v{AV}, v1, 4, v{AV}
    v_add_u32 v{BK1}, 15360, v{AK1}
    v_add_u32 v{BK2}, 15360, v{AK2}
    v_add_u32 v{BV}, 15360, v{AV}
    v_and_b32 v3, 27, v1
    v_cmp_eq_u32 vcc, 24, v3
    v_mov_b32 v3, 0x3f803f80
    v_bfe_u32 v{OA2}, v1, 3, 1
    v_cndmask_b32 v{ONES}, 0, v3, vcc
    v_mul_u32_u24 v{OA2}, 20480, v{OA2}
    v_and_b32 v3, 7, v1
    v_lshl_add_u32 v{OA2}, v3, 4, v{OA2}
    v_lshrrev_b32 v3, 4, v0
    v_lshl_add_u32 v{OA1}, v3, 7, v{OA2}
    s_lshl_b32 s23, s13, 2
    s_add_u32 s23, s23, {LFB}
    v_mov_b32 v{PA}, s23
    v_mov_b32 v{FA}, {LFB + 56}
    {p3_addr(0)}
    s_cmp_ge_u32 s16, 8
    s_cbranch_scc1 P1_EXTRA
    """)
    p1_compute(a)
    p1_extra(a)
    attention(a)
    helpers(a)
    a("L_DONE:")
    if STAMP == 4:
        i_, j_ = opt("ai", 0), opt("aj", 0)
        a(f"""s_waitcnt vmcnt(0)
        {st(NST-1)}
        s_waitcnt lgkmcnt(0)
        s_cmp_ge_u32 s16, {opt("aw", 4)}
        s_cbranch_scc1 L_END
        s_and_b32 s60, s2, {opt("am", 31)}
        s_cmp_lg_u32 s60, {opt("av", 5)}
        s_cbranch_scc1 L_END
        s_sub_u32 s60, s{64+2*j_}, s{64+2*i_}
        s_lshl_b32 s60, s60, 2
        s_min_u32 s60, s60, 100000
        {f's_mov_b32 s60, {opt("fix", 0)}' if opt("fix", 0) else ''}
L_AMP:
        s_memrealtime s[44:45]
        s_waitcnt lgkmcnt(0)
        s_sub_u32 s44, s44, s{64 if opt("fix", 0) else 64+2*(NST-1)}
        s_cmp_lt_u32 s44, s60
        s_cbranch_scc1 L_AMP
        """)
    elif STAMP == 3:
        r = f"s_waitcnt vmcnt(0)\n{st(NST-1)}\ns_mov_b64 exec, 1\n{srd(44, DBG_P, 256)}\ns_waitcnt lgkmcnt(0)\nv_mov_b32 v16, 0\n"
        r += "s_not_b32 s60, s64\nv_mov_b32 v0, s60\nbuffer_atomic_umax v0, v16, s[44:47], 0 offen offset:4 sc1\n"
        r += "s_cmp_eq_u32 s16, 0\ns_cbranch_scc1 L_D0\ns_cmp_eq_u32 s16, 4\ns_cbranch_scc0 L_END\n"
        for n, i in enumerate((2, 3, 4, 5, 7, 8, 9)): r += f"v_mov_b32 v{n+1}, s{64+2*i}\nbuffer_atomic_umax v{n+1}, v16, s[44:47], 0 offen offset:{8+4*n} sc1\n"
        r += "s_endpgm\nL_D0:\n"
        for n, i in enumerate((0, 1, 6, 8, 9, 10, 15)): r += f"v_mov_b32 v{n+1}, s{64+2*i}\nbuffer_atomic_umax v{n+1}, v16, s[44:47], 0 offen offset:{36+4*n} sc1\n"
        a(r)
    elif STAMP:
        r = f"s_waitcnt vmcnt(0)\n{st(NST-1)}\ns_mov_b64 exec, 1\ns_add_u32 s44, s{WS_P}, {STAMP_OFF}\ns_addc_u32 s45, s{WS_P+1}, 0\ns_mov_b32 s46, 262144\ns_mov_b32 s47, 0x20000\n"
        r += "s_lshl_b32 s60, s2, 4\ns_add_u32 s60, s60, s16\ns_lshl_b32 s60, s60, 6\ns_waitcnt lgkmcnt(0)\nv_mov_b32 v16, 0\n"
        if opt("xcc", 0): r += "s_getreg_b32 s66, hwreg(HW_REG_XCC_ID)\ns_add_u32 s66, s66, 100\n"
        for i in range(NST): r += f"v_mov_b32 v{i}, s{64+2*i}\n"
        for i in range(4): r += f"buffer_store_dwordx4 v[{4*i}:{4*i+3}], v16, s[44:47], s60 offen offset:{16*i}\n"
        a(r)
    a("L_END:\ns_endpgm\n.fill 256, 4, 0xbf810000\nL_CODE_END:")
    return f""".amdhsa_kernel {label}
  .amdhsa_next_free_vgpr 168
  .amdhsa_next_free_sgpr {100 if STAMP else 64}
  .amdhsa_accum_offset 168
  .amdhsa_group_segment_fixed_size 0
  .amdhsa_kernarg_size 96
  .amdhsa_user_sgpr_count 2
  .amdhsa_user_sgpr_kernarg_segment_ptr 1
  .amdhsa_system_sgpr_workgroup_id_x 1
.end_amdhsa_kernel
"""

def p1_loader(a):
    a(f"""
    s_setprio 3
    """)
    if opt("pf", 0):
        a(f"""
        v_lshlrev_b32 v20, 4, v0
        s_mul_i32 s23, s2, 10240
        s_and_b32 s24, s16, 1
        s_mul_i32 s24, s24, 5120
        s_add_u32 s23, s23, s24
        s_mul_i32 s25, s2, 3
        s_mov_b32 s31, 0x20000
        s_mov_b32 s35, 0x20000
        s_mov_b32 s34, {640*1280}
        s_waitcnt lgkmcnt(0)
        s_mov_b32 s30, {2048*1280}
        s_cmp_lt_u32 s16, 2
        s_cselect_b32 s28, s{X_P}, s{WQKV_P}
        s_cselect_b32 s29, s{X_P+1}, s{WQKV_P+1}
        s_cselect_b32 s30, s30, {640*3840}
        s_cselect_b32 s32, s8, s10
        s_cselect_b32 s33, s9, s11
        buffer_load_dwordx4 v[24:27], v20, s[28:31], s23 offen
        buffer_load_dwordx4 v[28:31], v20, s[28:31], s23 offen offset:1024
        buffer_load_dwordx4 v[32:35], v20, s[28:31], s23 offen offset:2048
        buffer_load_dwordx4 v[36:39], v20, s[28:31], s23 offen offset:3072
        s_add_u32 s23, s23, 4096
        buffer_load_dwordx4 v[40:43], v20, s[28:31], s23 offen
        s_lshr_b32 s24, s24, 11
        s_add_u32 s25, s25, s24
        s_mul_i32 s25, s25, 1280
        s_mov_b32 exec_hi, 0xff
        buffer_load_dwordx4 v[44:47], v20, s[32:35], s25 offen
        s_bitcmp1_b32 s16, 0
        s_cbranch_scc1 P1_PF1
        buffer_load_dwordx4 v[48:51], v20, s[32:35], s25 offen offset:1280
P1_PF1:
        s_mov_b32 exec_hi, -1
        """)
    a(f"""
    v_lshrrev_b32 v2, 3, v0
    v_and_b32 v3, 7, v0
    v_lshrrev_b32 v4, 4, v0
    v_xor_b32 v3, v3, v4
    v_lshlrev_b32 v3, 4, v3
    v_xor_b32 v4, 64, v3
    s_lshl_b32 s23, s21, 5
    s_lshr_b32 s24, s16, 1
    s_lshl_b32 s24, s24, 4
    s_add_u32 s23, s23, s24
    v_add_u32 v9, s23, v2
    s_bitcmp1_b32 s16, 0
    s_cselect_b32 s23, -1, 1
    s_cselect_b32 s24, 0x400, 0
    s_cselect_b32 s25, -8, 8
    v_mul_lo_u32 v10, v9, s23
    s_sub_u32 s27, 0x800, s24
    v_add_u32 v5, s24, v10
    v_sub_u32 v7, s27, v10
    v_add_u32 v6, s25, v5
    v_subrev_u32 v8, s25, v7
    v_cmp_eq_u32 vcc, 0, v9
    s_add_u32 s24, s24, 0x200
    v_mov_b32 v9, s24
    s_cmp_lg_u32 s22, 2
    v_cndmask_b32 v7, v7, v9, vcc
    s_cbranch_scc1 P1_LD_NV
    v_swap_b32 v6, v7
P1_LD_NV:
    s_lshl_b32 s26, s22, 2
    s_add_u32 s26, s26, s20
    s_and_b32 s27, s20, 1
    s_movk_i32 s25, 3840
    s_cmp_eq_u32 s22, 3
    s_cselect_b32 s25, 1280, s25
    s_cselect_b32 s26, s27, s26
    s_mul_i32 s26, s26, 320
    s_movk_i32 s27, 1280
    v_mad_u32_u24 v10, v5, s27, v3
    v_mad_u32_u24 v11, v6, s27, v4
    v_mad_u32_u24 v12, v7, s27, v3
    v_mad_u32_u24 v13, v8, s27, v4
    s_lshl_b32 s27, s16, 4
    s_mul_i32 s27, s27, s25
    s_add_u32 s26, s26, s27
    s_sub_u32 s27, s25, 320
    """)
    for i in range(5):
        a(f"""
        v_add_u32 v5, {64*i}, v0
        v_mul_u32_u24 v6, 3277, v5
        v_lshrrev_b32 v6, 16, v6
        v_lshrrev_b32 v7, 2, v6
        v_and_b32 v7, 2, v7
        v_xor_b32 v5, v5, v7
        v_lshl_add_u32 v5, v5, 4, s26
        v_mad_u32_u24 v{14+i}, v6, s27, v5
        """)
    sg = opt("stag1", 7)
    if sg == 1:
        a("s_lshl_b32 s36, s19, 3\ns_lshl_b32 s37, s22, 4\ns_add_u32 s36, s36, s37\ns_add_u32 s36, s36, s17\ns_and_b32 s36, s36, 63\ns_mul_i32 s36, s36, 10\ns_lshr_b32 s36, s36, 6")
    elif sg == 2:
        a("s_add_u32 s36, s19, s22\ns_lshl_b32 s36, s36, 4\ns_add_u32 s36, s36, s17\ns_add_u32 s36, s36, s17\ns_and_b32 s36, s36, 63\ns_mul_i32 s36, s36, 10\ns_lshr_b32 s36, s36, 6")
    elif sg == 3:
        a("s_add_u32 s36, s19, s22\ns_lshl_b32 s36, s36, 5\ns_lshl_b32 s37, s17, 2\ns_add_u32 s36, s36, s37\ns_and_b32 s36, s36, 63\ns_mul_i32 s36, s36, 10\ns_lshr_b32 s36, s36, 6")
    elif sg >= 10:
        nc = sg - 9
        Gn = 5 - nc
        rot = [2 * (nc + k % Gn) for k in range(2 * Gn - 1)]
        rv = sum(v << (4 * k) for k, v in enumerate(rot))
        com = sum((2 * k) << (4 * k) for k in range(nc))
        a(f"""
        s_lshr_b32 s36, s17, 1
        s_xor_b32 s36, s36, s17
        s_and_b32 s36, s36, 1
        s_add_u32 s37, s22, s19
        s_lshr_b32 s46, s17, 2
        s_lshl_b32 s46, s46, {opt("xsh", 1)}
        s_add_u32 s37, s37, s46
        s_mul_i32 s46, s37, {256 // Gn + 1}
        s_lshr_b32 s46, s46, 8
        s_mul_i32 s46, s46, {Gn}
        s_sub_u32 s37, s37, s46
        s_lshl_b32 s37, s37, 2
        s_lshr_b32 s46, {rv:#x}, s37
        s_and_b32 s46, s46, {(1 << (4 * Gn)) - 1:#x}
        s_lshl_b32 s46, s46, {4 * nc}
        s_or_b32 s46, s46, {0x53100000 | com:#x}
        s_mov_b32 s47, 0x97
        s_mul_i32 s37, s36, 0x11111111
        s_xor_b32 s46, s46, s37
        s_xor_b32 s47, s47, s37
        s_and_b32 s36, s46, 15
        """)
    elif sg >= 5:
        tsh = {5: 0, 6: 1, 7: 0, 8: 0, 9: 0}[sg]
        a(f"""
        s_lshr_b32 s36, s17, 1
        s_xor_b32 s36, s36, s17
        s_and_b32 s36, s36, 1
        {'s_min_u32 s37, s22, 2' if sg == 9 else f's_lshr_b32 s37, s22, {tsh}'}
        s_add_u32 s37, s37, s19
        s_lshr_b32 s46, s17, 2
        s_lshl_b32 s46, s46, 1
        s_add_u32 s37, s37, s46
        s_mul_i32 s46, s37, 52
        s_lshr_b32 s46, s46, 8
        s_mul_i32 s46, s46, 5
        s_sub_u32 s37, s37, s46
        s_lshl_b32 s37, s37, 2
        s_mov_b32 s46, 0x42086420
        s_mov_b32 s47, 0x6
        s_lshr_b64 s[46:47], s[46:47], s37
        s_and_b32 s46, s46, 0xfffff
        {'s_or_b32 s47, s46, 0x11111' + chr(10) + 's_lshl_b32 s37, s47, 20' + chr(10) + 's_or_b32 s46, s46, s37' + chr(10) + 's_lshr_b32 s47, s47, 12' if sg == 8 else 's_or_b32 s46, s46, 0x53100000' + chr(10) + 's_mov_b32 s47, 0x97'}
        s_mul_i32 s37, s36, 0x11111111
        s_xor_b32 s46, s46, s37
        s_xor_b32 s47, s47, s37
        """)
        if sg == 7:
            a("s_lshr_b32 s37, s47, 4\ns_and_b32 s37, s37, 15\ns_lshl_b64 s[46:47], s[46:47], 4\ns_or_b32 s46, s46, s37")
        a("s_and_b32 s36, s46, 15")
    else:
        a("s_mov_b32 s36, 0")
    a(f"""
    s_lshl_b32 s38, s16, 12
    s_add_u32 s38, s38, {RB0}
    s_mul_i32 s39, s16, 5120
    s_add_u32 s39, s39, {RB0 + 16384}
    s_mov_b32 s40, 0
    s_mul_i32 s34, s25, 640
    s_lshl_b32 s25, s25, 6
    s_mov_b32 s35, 0x20000
    s_waitcnt lgkmcnt(0)
    {srd(28, X_P, 2048*1280)}
    s_cmp_lt_u32 s20, 2
    s_cselect_b32 s32, s8, s10
    s_cselect_b32 s33, s9, s11
    s_cmp_eq_u32 s22, 3
    s_cselect_b32 s32, s32, s{WQKV_P}
    s_cselect_b32 s33, s33, s{WQKV_P+1}
    {st(1)}
    """)
    if opt("dftdelay", 0):
        a(f"""s_cmp_lg_u32 s22, 3
        s_cbranch_scc1 P1_LD_LOOP
        s_memrealtime s[42:43]
        s_waitcnt lgkmcnt(0)
        s_add_u32 s42, s42, {opt("dftdelay", 0)}
P1_DLY:
        s_memrealtime s[44:45]
        s_waitcnt lgkmcnt(0)
        s_cmp_lt_u32 s44, s42
        s_cbranch_scc1 P1_DLY
        """)
    a(f"""
P1_LD_LOOP:
    s_lshl_b32 s41, s36, 7
    s_mul_i32 s42, s36, s25
    s_add_u32 s43, s40, 2
    s_and_b32 s43, s43, 3
    s_mul_i32 s43, s43, {RSL}
    s_add_u32 s44, s43, s38
    s_add_u32 s45, s43, s39
    """)
    for i in range(4):
        a(f"s_add_u32 m0, s44, {1024*i}\ns_nop 0\nbuffer_load_dwordx4 v{10+i}, s[28:31], s41 offen lds")
    for i in range(5):
        a(f"s_add_u32 m0, s45, {1024*i}\ns_nop 0\nbuffer_load_dwordx4 v{14+i}, s[32:35], s42 offen lds")
    if opt("noload", 0): a("s_cmp_ge_u32 s40, 3\ns_cselect_b32 s30, 0, s30\ns_cselect_b32 s34, 0, s34")
    a(f"""
    {'s_lshr_b64 s[46:47], s[46:47], 4' + chr(10) + 's_and_b32 s36, s46, 15' if sg >= 5 else 's_add_u32 s36, s36, 1' + chr(10) + 's_cmp_eq_u32 s36, 10' + chr(10) + 's_cselect_b32 s36, 0, s36'}
    s_add_u32 s40, s40, 1
    s_cmp_eq_u32 s40, 1
    s_cbranch_scc1 P1_LD_LOOP
    s_waitcnt vmcnt(9)
    s_barrier
    s_cmp_lt_u32 s40, 10
    s_cbranch_scc1 P1_LD_LOOP
    s_waitcnt vmcnt(0)
    s_barrier
    s_branch HELPER
    """)

def p1_compute(a):
    X = 80; W = [96, 116]; XA = 136; WA = 137; CX = 142; CW = 144; PC = 149; L = 150; TT = 96
    def acc(b, T): return 20 * b + 4 * T
    a(f"""
    s_sub_u32 s61, s16, 4
    s_and_b32 s36, s61, 1
    s_lshr_b32 s37, s61, 1
    v_mov_b32 v{L}, v0
    v_and_b32 v1, 15, v0
    v_lshrrev_b32 v2, 4, v0
    v_lshrrev_b32 v3, 1, v1
    v_xor_b32 v3, v3, v2
    v_lshlrev_b32 v3, 4, v3
    v_lshl_add_u32 v3, v1, 7, v3
    s_lshl_b32 s23, s36, 13
    s_add_u32 s23, s23, {RB0}
    v_add_u32 v{XA}, s23, v3
    v_bfe_u32 v3, v0, 2, 2
    v_lshl_add_u32 v3, v2, 3, v3
    v_mul_u32_u24 v3, 320, v3
    v_add_u32 v3, {RB0 + 16384}, v3
    v_and_b32 v4, 16, v0
    v_lshlrev_b32 v4, 1, v4
    v_and_b32 v5, 3, v0
    s_mul_i32 s23, s37, 160
    v_lshl_add_u32 v6, v5, 3, s23
    """)
    for T in range(4):
        a(f"v_xor_b32 v7, v6, v4\nv_add_u32 v{WA+T}, v7, v3\nv_add_u32 v6, 40, v6")
    a(f"""
    v_mul_u32_u24 v6, 40, v5
    v_add3_u32 v6, v6, s23, 32
    v_xor_b32 v7, v6, v4
    v_add_u32 v{WA+4}, v7, v3
    v_mov_b32 v{PC}, 0xbf803f80
    s_lshl_b32 s26, s22, 2
    s_add_u32 s26, s26, s20
    s_lshl_b32 s26, s26, 1
    s_add_u32 s26, s26, s37
    s_cmp_eq_u32 s26, 28
    s_cselect_b32 s24, 0x10001, 0
    s_mov_b32 s25, s24
    s_cmp_eq_u32 s22, 3
    s_cselect_b32 s43, 10, 8
    s_mov_b32 s40, 0
    s_mov_b32 s42, {2 * RSL}
    """)
    for r in range(96): a(f"v_mov_b32 v{r}, 0")
    for r in range(20): a(f"v_mov_b32 v{W[1]+r}, 0")
    a(f"v_add_u32 v{CX}, s42, v{XA}")
    for T in range(5): a(f"v_add_u32 v{CW+T}, s42, v{WA+T}")
    a(f"s_waitcnt lgkmcnt(0)\n{srd(28, WS_P, WS_USED)}")
    a("s_cmp_ge_u32 s22, 2\ns_cbranch_scc1 P1_PRE_V")
    def mf(b, T, x, w, qk):
        d = vr(acc(b, T), 4)
        return f"v_mfma_f32_16x16x32_bf16 {d}, {vr(w,4)}, {vr(x,4)}, {d}" if qk else f"v_mfma_f32_16x16x32_bf16 {d}, {vr(x,4)}, {vr(w,4)}, {d}"
    def rdw(d, T, step): return [f"ds_read_b64_tr_b16 {vr(d+2*j,2)}, v{CW+T} offset:{(step // 2) * RSL + (step % 2) * 10240 + 1280 * j}" for j in range(2)]
    def rdx(d, b, step): return f"ds_read_b128 {vr(d,4)}, v{CX + step % 2} offset:{(step // 2) * RSL + 2048 * b}"
    TO = (1, 2, 3, 4, 0)
    def group(step, qk, reads=True):
        cur = W[1 - step]; nxt = W[step]
        rq = []
        for T in TO: rq += rdw(nxt + 4 * T, T, step)
        fill = []
        if step == 1:
            fill = ["s_add_u32 s40, s40, 1", "s_add_u32 s41, s40, 2", "s_and_b32 s41, s41, 3", f"s_mul_i32 s42, s41, {RSL}", f"v_add_u32 v{CX}, s42, v{XA}"] + [f"v_add_u32 v{CW+T}, s42, v{WA+T}" for T in range(5)]
        issued = 0
        for b in range(4):
            if reads:
                allow = [2, 15, issued + 1, issued][b]
                if b != 1: a(f"s_waitcnt lgkmcnt({min(15, allow)})")
            elif b == 0: a("s_waitcnt lgkmcnt(0)")
            for n, T in enumerate(TO):
                a(mf(b, T, X + 4 * b, cur + 4 * T, qk))
                if b == 0 and n < 2 and not qk:
                    for j in range(2): a(f"v_cndmask_b32 v{cur+2*n+j}, v{cur+2*n+j}, v{PC}, s[24:25]")
                if not reads: continue
                if step == 0 and b == 0:
                    if n == 0: a(f"v_xor_b32 v{CX+1}, 64, v{CX}")
                    if n == 1: a("s_barrier")
                    if n < 2: continue
                if n == 4: a(rdx(X + 4 * b, b, step)); issued += 1
                elif rq: a(rq.pop(0)); issued += 1
                elif fill:
                    a(fill.pop(0))
                    if fill: a(fill.pop(0))
        assert not reads or (not rq and not fill), (rq, fill)

    def tail(qk, epi):
        seq = [(b, T, ("x0", b), ("w0", T)) for b in range(4) for T in TO]
        marks = {}
        win = opt("win", 2)
        for step in range(4 - win):
            for b in range(4):
                for T in TO: seq.append((b, T, ("x", 0, step, b), ("w", step, T)))
        for T in range(5):
            for jj in range(2):
                for step in range(4 - win, 4):
                    for b in (2 * jj, 2 * jj + 1): seq.append((b, T, ("x", 0, step, b), ("w", step, T)))
                marks[len(seq) - 1] = (T, jj)
        last = {}
        for n, (_, _, x, w) in enumerate(seq): last[x] = n; last[w] = n
        loc = {("x0", b): X + 4 * b for b in range(4)}; loc.update({("w0", T): W[1] + 4 * T for T in range(5)})
        free = [W[0] + 4 * k for k in range(5)] + [XA]
        order = []
        for _, _, x, w in seq:
            for f in (w, x):
                if f not in loc and f not in order: order.append(f)
        done_at = {}; nrd = 0; waited = 0; pend = []; fill = []
        cnt = [0]; prev = [0]
        def em(t): a(t); cnt[0] += 1
        a(f"v_xor_b32 v{CX+1}, 64, v{CX}\ns_waitcnt lgkmcnt(0)\ns_barrier")
        bar2 = [True]
        def take():
            f = order.pop(0); loc[f] = free.pop(0)
            if bar2 and (f[1] if f[0] == "w" else f[2]) >= 2: em("s_barrier"); bar2.pop()
            p_ = rdw(loc[f], f[2], f[1]) if f[0] == "w" else [rdx(loc[f], f[3], f[2])]
            done_at[f] = nrd + len(p_)
            return p_
        def gap():
            t, at, after = fill[0]
            return max(at - cnt[0], prev[0] + after - cnt[0], 0)
        def put():
            em(fill.pop(0)[0]); prev[0] = cnt[0]
        for n, (b, T, x, w) in enumerate(seq):
            while any(f not in loc or (f in done_at and done_at[f] > nrd) for f in (x, w)):
                if not pend: pend = take()
                em(pend.pop(0)); nrd += 1
            need = max(done_at.get(x, 0), done_at.get(w, 0))
            if need > waited:
                waited = max(need, nrd - opt("tw", 6)); em(f"s_waitcnt lgkmcnt({nrd - waited})")
            em(mf(b, T, loc[x], loc[w], qk))
            if n in marks: fill += [(t, cnt[0] + 8, after) for t, after in epi(*marks[n])]
            for f in (x, w):
                if last[f] == n: free.append(loc[f])
            if not pend and order and free: pend = take()
            if pend: em(pend.pop(0)); nrd += 1
            for _ in range(2):
                if fill and gap() == 0: put()
        a(st(3))
        while fill:
            g_ = gap()
            if g_: a(f"s_nop {g_ - 1}"); cnt[0] += g_
            put()

    EA, EB = 167, 151
    def cv(d, r): return [f"v_cvt_pk_bf16_f32 v{d}, v{r}, v{r+1}", f"v_cvt_pk_bf16_f32 v{d+1}, v{r+2}, v{r+3}"]
    def epi_qk(ph, jj=0):
        if ph < 0:
            return f"""s_mov_b32 s35, {HG}
            s_movk_i32 s38, 2560
            s_cmp_eq_u32 s22, 0
            s_cselect_b32 s35, {HQ}, s35
            s_cselect_b32 s27, {Q_OFF}, {KV_OFF}
            s_cselect_b32 s38, 1280, s38
            s_lshl_b32 s26, s20, 1
            s_add_u32 s26, s26, s37
            s_lshl_b32 s26, s26, 2
            s_mul_i32 s26, s26, s35
            s_add_u32 s26, s26, s27
            s_lshl_b32 s23, s21, 1
            s_add_u32 s23, s23, s36
            s_lshl_b32 s23, s23, 1
            s_mul_i32 s23, s23, s38
            s_add_u32 s26, s26, s23
            s_add_u32 s27, s26, s38
            v_lshrrev_b32 v{EA}, 4, v{L}
            v_mul_lo_u32 v{EA}, v{EA}, s35
            v_and_b32 v{TT}, 15, v{L}
            v_lshl_add_u32 v{EA}, v{TT}, 4, v{EA}
            v_lshlrev_b32 v{EB}, 4, v{L}
            s_add_u32 s44, s26, s35
            s_add_u32 s45, s27, s35
            s_add_u32 s46, s44, s35
            s_add_u32 s47, s45, s35
            s_add_u32 s32, s46, s35
            s_add_u32 s33, s47, s35""".split("\n")
        T = ph
        r0, r1 = acc(2 * jj, T), acc(2 * jj + 1, T)
        o = [(t, 0) for t in cv(r0, r0) + cv(r0 + 2, r1)]
        if T < 4:
            o += [(f"v_permlane16_swap_b32 v{r0}, v{r0+2}", 1), (f"v_permlane16_swap_b32 v{r0+1}, v{r0+3}", 0)]
            o.append((f"buffer_store_dwordx4 {vr(r0,4)}, v{EB}, s[28:31], s{(26, 44, 46, 32)[T] + jj} offen sc1", 0))
        else:
            o.append((f"buffer_store_dwordx4 {vr(r0,4)}, v{EA}, s[28:31], s{26 + jj} offen offset:1024 sc1", 0))
        return o
    def epi_v(ph, jj=0):
        if ph < 0:
            return f"""s_lshl_b32 s26, s20, 1
            s_add_u32 s26, s26, s37
            s_mul_i32 s26, s26, {4*HG}
            s_lshl_b32 s23, s21, 1
            s_add_u32 s23, s23, s36
            s_mul_i32 s23, s23, 5120
            s_add_u32 s26, s26, s23
            s_add_u32 s26, s26, {KV_OFF + 1280}
            s_add_u32 s44, s26, {HG}
            s_add_u32 s45, s26, {2*HG}
            s_add_u32 s46, s26, {3*HG}
            s_mov_b32 s35, {HG}
            v_lshrrev_b32 v{EA}, 5, v{L}
            v_mul_u32_u24 v{EA}, 640, v{EA}
            v_bfe_u32 v{TT}, v{L}, 4, 1
            v_lshl_add_u32 v{EB}, v{TT}, 6, v{EA}
            v_mul_u32_u24 v{TT}, 384, v{TT}
            v_add_u32 v{EA}, v{EA}, v{TT}
            v_and_b32 v{TT}, 15, v{L}
            v_lshl_add_u32 v{EA}, v{TT}, 4, v{EA}
            v_and_b32 v{TT}, 3, v{L}
            v_lshl_add_u32 v{EB}, v{TT}, 4, v{EB}
            v_bfe_u32 v{TT}, v{L}, 2, 2
            v_mul_lo_u32 v{TT}, v{TT}, s35
            v_add_u32 v{EB}, v{EB}, v{TT}""".split("\n")
        T = ph
        r0, r1 = acc(2 * jj, T), acc(2 * jj + 1, T)
        o = [(t, 0) for t in cv(r0, r0) + cv(r0 + 2, r1)]
        if T < 4: o.append((f"buffer_store_dwordx4 {vr(r0,4)}, v{EA}, s[28:31], s{(26, 44, 45, 46)[T]} offen offset:{2560 * jj} sc1", 0))
        else: o.append((f"buffer_store_dwordx4 {vr(r0,4)}, v{EB}, s[28:31], s26 offen offset:{2560 * jj + 256} sc1", 0))
        return o

    for qk, lab in ((True, "QK"), (False, "V")):
        a(f"P1_PRE_{lab}:")
        for f in (epi_qk if qk else epi_v)(-1): a(f)
        a(f"P1_LOOP_{lab}:")
        group(0, qk)
        if STAMP: a(f"s_cmp_lg_u32 s40, 0\ns_cbranch_scc1 P1_ST_{lab}\n{st(2)}\nP1_ST_{lab}:\ns_cmp_lg_u32 s40, 5\ns_cbranch_scc1 P1_SU_{lab}\n{st(1)}\nP1_SU_{lab}:")
        group(1, qk)
        a(f"s_cmp_lt_u32 s40, s43\ns_cbranch_scc1 P1_LOOP_{lab}")
        if not qk: a("s_cmp_eq_u32 s22, 3\ns_cbranch_scc1 P1_EPI_DFT")
        a("s_cmp_eq_u32 s12, 1\ns_cselect_b32 s30, 0, s30")
        tail(qk, epi_qk if qk else epi_v)
        a(f"s_cmp_eq_u32 s12, 0\ns_cbranch_scc1 P1_DONE\ns_mov_b32 s30, {WS_USED}\nv_mov_b32 v88, {LFB + 56}\nv_mov_b32 v89, 1")
        ladd(a, 88, 89, 0)
        a("s_setprio 3\ns_barrier")
        for T in range(5):
            for jj in range(2): a((epi_qk if qk else epi_v)(T, jj)[-1][0])
        a("s_branch P1_DONE")
    a("P1_EPI_DFT:")
    group(0, False, reads=False)
    TAU, TAU0, E0 = 80, 81, 140
    a(f"""
    {st(3)}
    s_cmp_lt_u32 s20, 2
    s_cselect_b32 s38, 1.0, -1.0
    v_mov_b32 v{TAU}, s38
    v_cndmask_b32 v{TAU0}, v{TAU}, 1.0, s[24:25]
    s_lshl_b32 s26, s20, 1
    s_add_u32 s26, s26, s37
    s_mul_i32 s26, s26, 80
    v_and_b32 v88, 15, v{L}
    v_add_u32 v{E0}, s26, v88
    v_add_u32 v{E0+1}, 20, v{E0}
    v_add_u32 v{E0+2}, 40, v{E0}
    v_add_u32 v{E0+3}, 60, v{E0}
    v_and_b32 v89, 12, v{L}
    v_lshl_add_u32 v{E0+4}, v89, 2, v{E0}
    v_add_u32 v{E0+4}, 16, v{E0+4}
    s_lshl_b32 s23, s21, 1
    s_add_u32 s23, s23, s36
    s_cmp_lg_u32 s23, 0
    s_cbranch_scc1 P1_EPI_DFT2
    s_mov_b64 exec, 0xffff
    s_mov_b32 s27, {X512_OFF}
    """)
    for T in range(5):
        a(f"v_fma_f32 v{96+T}, v{acc(3,T)}, v{TAU0 if T == 0 else TAU}, v{acc(1,T)}")
        a(f"v_lshlrev_b32 v{104+T}, 2, v{E0+T}\nv_mov_b32 v{acc(1,T)}, 0\nv_mov_b32 v{acc(3,T)}, 0")
        a(f"buffer_store_dword v{96+T}, v{104+T}, s[28:31], s27 offen sc1")
    a(f"""
    s_mov_b64 exec, -1
P1_EPI_DFT2:
    s_lshl_b32 s26, s23, 9
    s_add_u32 s26, s26, {FE_OFF}
    s_mov_b32 s27, {FO_DELTA}
    v_bfe_u32 v88, v{L}, 4, 1
    v_mul_lo_u32 v88, v88, s27
    v_lshrrev_b32 v89, 5, v{L}
    v_lshl_add_u32 v88, v89, 8, v88
    """)
    for T in range(5):
        tau = TAU0 if T == 0 else TAU
        a0, a1, a2, a3 = (acc(b, T) for b in range(4))
        for q in range(4):
            a(f"v_fma_f32 v{a0+q}, v{a1+q}, v{tau}, v{a0+q}\nv_fma_f32 v{a3+q}, v{a2+q}, v{tau}, v{a3+q}")
        for q in range(4):
            a(f"v_add_f32 v{a1+q}, v{a0+q}, v{a3+q}\nv_sub_f32 v{a2+q}, v{a0+q}, v{a3+q}")
        a0 = 120 + 4 * T
        for f in cv(a0, a1) + cv(a0 + 2, a2): a(f)
        a(f"""
        v_lshrrev_b32 v89, 4, v{E0+T}
        v_lshl_add_u32 v89, v89, 14, v88
        v_and_b32 v{E0+T}, 15, v{E0+T}
        v_lshl_add_u32 v{E0+T}, v{E0+T}, 4, v89
        v_permlane16_swap_b32 v{a0}, v{a0+2}
        v_permlane16_swap_b32 v{a0+1}, v{a0+3}
        """)
    a(f"v_mov_b32 v88, {LFB + 56}\nv_mov_b32 v89, 1\ns_mov_b32 s12, {opt('dnu', 1)}")
    ladd(a, 88, 89, 0)
    if opt("dnu", 1): a("s_setprio 3\ns_barrier")
    for T in range(5): a(f"buffer_store_dwordx4 {vr(120+4*T,4)}, v{E0+T}, s[28:31], s26 offen sc1")
    a(f"""
P1_DONE:
    {st(14)}
    s_mov_b32 s34, 1
    s_branch ATT
    """)

def p1_extra(a):
    T0 = 40
    a(f"""
P1_EXTRA:
    s_sub_u32 s61, s16, 8
    """)
    if opt("cwarm", 1):
        a(f"""
        s_cmp_lg_u32 s16, 10
        s_cbranch_scc1 P1_NOCW
        s_lshl_b32 s23, s18, 10
        s_cmp_ge_u32 s23, L_CODE_END - {NAME}_kernel - 1023
        s_cbranch_scc1 P1_NOCW
        s_getpc_b64 s[44:45]
L_PC:
        s_sub_u32 s44, s44, L_PC - {NAME}_kernel
        s_subb_u32 s45, s45, 0
        v_lshl_add_u32 v40, v0, 4, s23
        global_load_dwordx4 v[44:47], v40, s[44:45]
P1_NOCW:
        """)
    a(f"""
    v_lshrrev_b32 v37, 4, v0
    v_and_b32 v38, 15, v0
    v_lshlrev_b32 v39, 4, v0
    v_mov_b32 v36, v0
    s_waitcnt lgkmcnt(0)
    {srd(28, WS_P, WS_USED)}
    {srd(32, DBG_P, 256)}
    s_cmp_lg_u32 s61, 0
    s_cbranch_scc1 P1_EX_A
    v_mov_b32 v1, 0
    v_lshlrev_b32 v2, 2, v0
    v_add_u32 v2, {LFB}, v2
    ds_write_b32 v2, v1
    s_waitcnt lgkmcnt(0)
    s_cmp_lt_u32 s2, 248
    s_cbranch_scc1 P1_EX_WAITRDY
    v_mov_b32 v4, 0
    v_mov_b32 v5, 0
    v_mov_b32 v6, 0
    v_mov_b32 v7, 0
    s_lshl_b32 s23, s17, 12
    s_add_u32 s23, s23, {FLG_OFF}
    buffer_store_dwordx4 v[4:7], v39, s[28:31], s23 offen sc1
    buffer_store_dwordx4 v[4:7], v39, s[28:31], s23 offen offset:1024 sc1
    buffer_store_dwordx4 v[4:7], v39, s[28:31], s23 offen offset:2048 sc1
    buffer_store_dwordx4 v[4:7], v39, s[28:31], s23 offen offset:3072 sc1
    s_lshl_b32 s23, s17, 7
    s_add_u32 s23, s23, {FLG_OFF + 32768}
    s_mov_b64 exec, 0xff
    buffer_store_dwordx4 v[4:7], v39, s[28:31], s23 offen sc1
    s_mov_b64 exec, -1
P1_EX_WAITRDY:
P1_EX_A:
    s_lshl_b32 s23, s2, 2
    s_add_u32 s23, s23, s61
    s_mov_b32 s40, 0
P1_TBL:
    s_lshr_b32 s24, s23, 5
    s_and_b32 s25, s23, 30
    s_and_b32 s26, s24, 1
    s_lshr_b32 s27, s24, 1
    s_lshl_b32 s27, s27, 6
    s_add_u32 s27, s27, s26
    s_and_b32 s26, s23, 1
    s_lshl_b32 s26, s26, 5
    s_add_u32 s27, s27, s26
    v_lshl_add_u32 v{T0}, v38, 1, s27
    s_lshl_b32 s25, s25, 4
    v_lshl_add_u32 v{T0+1}, v37, 3, s25
    v_mul_u32_u24 v{T0+1}, v{T0}, v{T0+1}
    v_and_b32 v{T0+1}, 0x7ff, v{T0+1}
    v_cvt_f32_u32 v{T0}, v{T0}
    v_cvt_f32_u32 v{T0+1}, v{T0+1}
    v_mul_f32 v{T0}, 0x3a000000, v{T0}
    v_mul_f32 v0, 0x3a000000, v{T0+1}
    """)
    for u in range(1, 8): a(f"v_add_f32 v{u}, v{u-1}, v{T0}")
    for u in range(1, 8): a(f"v_fract_f32 v{u}, v{u}")
    for u in range(8): a(f"v_cos_f32 v{8+u}, v{u}")
    for u in range(8): a(f"v_sin_f32 v{16+u}, v{u}")
    for j in range(4): a(f"v_cvt_pk_bf16_f32 v{24+j}, v{8+2*j}, v{9+2*j}")
    for j in range(4): a(f"v_cvt_pk_bf16_f32 v{28+j}, v{16+2*j}, v{17+2*j}")
    NB0 = opt("tblbar", 2)
    a(f"""
    s_cmp_lg_u32 s40, 0
    s_cbranch_scc1 P1_TBL_ST
    s_barrier
    {st(1, True)}
    s_cmp_lg_u32 s61, 0
    s_cbranch_scc1 P1_EX_NR
    s_cmp_lt_u32 s2, 248
    s_cbranch_scc1 P1_EX_NR
    v_mov_b32 v32, 1
    v_mov_b32 v33, 0
    s_lshl_b32 s24, s17, 2
    s_waitcnt vmcnt(0)
    s_mov_b64 exec, 1
    buffer_store_dword v32, v33, s[32:35], s24 offen sc1
    s_mov_b64 exec, -1
P1_EX_NR:
    """ + "".join(f"s_barrier\n{st(1 + b_, True)}\n" for b_ in range(1, NB0)) + f"""
    s_mov_b32 s40, 1
P1_TBL_ST:
    s_lshl_b32 s24, s23, 11
    s_add_u32 s24, s24, {TB_OFF}
    buffer_store_dwordx4 v[24:27], v39, s[28:31], s24 offen sc1
    buffer_store_dwordx4 v[28:31], v39, s[28:31], s24 offen offset:1024 sc1
    s_add_u32 s23, s23, 1024
    s_cmp_lt_u32 s23, 1056
    s_cbranch_scc1 P1_TBL
    """)
    nb = NB0
    assert nb <= 6
    a("".join(f"s_barrier\n{st(1 + b_, True)}\n" for b_ in range(nb, 6)))
    u = a.uid()
    a(f"""
    v_and_b32 v1, 7, v36
    v_lshlrev_b32 v1, 2, v1
    v_mov_b32 v2, 1
    s_mov_b32 s60, 0
    s_cmp_lg_u32 s61, 0
    s_cbranch_scc1 P1_EX_C
    buffer_load_dword v2, v1, s[32:35], 0 offen sc1
P1_EX_C:
    s_barrier
    {st(7, True)}
    s_barrier
    {st(8, True)}
L_RDY{u}:
    s_waitcnt vmcnt(0)
    v_cmp_eq_u32 vcc, 0, v2
    s_cbranch_vccz P1_EX_B
    s_sleep 1
    buffer_load_dword v2, v1, s[32:35], 0 offen sc1
    s_add_u32 s60, s60, 1
    s_cmp_lt_u32 s60, 0x40000
    s_cbranch_scc1 L_RDY{u}
P1_EX_B:
    s_waitcnt vmcnt(0)
    s_barrier
    {st(9, True)}
    s_barrier
    {st(10, True)}
    s_mov_b32 s34, 0
    """)

def attention(a):
    O = 0; S = [16, 32]; P = 48; Q1 = 56; Q2 = 60; K2 = 62; K1 = 64; V1 = 68; V2 = [72, 76]; T = 80
    a(f"""
ATT:
    s_setprio 3
    s_cmp_lt_u32 s13, 4
    s_cselect_b32 s32, {opt("o1", 4)}, {opt("y1", 4)}
    s_cselect_b32 s33, {opt("o2", 7)}, {opt("y2", 7)}
    s_movk_i32 s35, 0x106
    s_bitset1_b32 s35, s32
    s_bitset1_b32 s35, s33
    s_mov_b32 s24, 0xfffff
    s_mov_b32 s25, 0xfffff
    s_mul_i32 s27, s13, 1280
    v_mov_b32 v{Q2+1}, 0
    v_mov_b32 v{K2+1}, 0x3f803f80
    v_add_u32 v{T}, s27, v{AK1}
    v_add_u32 v{T+1}, s27, v{AK2}
    v_mov_b32 v{T+2}, 1
    """)
    for r in range(12): a(f"v_mov_b32 v{V1+r}, v{ONES}")
    for r in range(16): a(f"v_mov_b32 v{O+r}, 0")
    for r in range(4): a(f"v_mov_b32 v{P+4+r}, 0\nv_mov_b32 v{P+r}, -1")
    def rk1(d): return f"v_mfma_f32_32x32x8_bf16 {vr(d,16)}, {vr(K2,2)}, {vr(Q2,2)}, 0"
    def rk2(d): return f"v_mfma_f32_32x32x16_bf16 {vr(d,16)}, {vr(K1,4)}, {vr(Q1,4)}, {vr(d,16)}"
    def qk1(d): return f"v_mfma_f32_32x32x16_bf16 {vr(d,16)}, {vr(K1,4)}, {vr(Q1,4)}, 0"
    def qk2(d): return f"v_mfma_f32_32x32x8_bf16 {vr(d,16)}, {vr(K2,2)}, {vr(Q2,2)}, {vr(d,16)}"
    def pv(v, p): return f"v_mfma_f32_32x32x16_bf16 {vr(O,16)}, {vr(v,4)}, {vr(p,4)}, {vr(O,16)}"
    def of(t): return (t - 6 if t in (6, 7) else t) * 2560
    def rdk1(t): return f"ds_read_b128 {vr(K1,4)}, v{BK1 if t in (6, 7) else AK1} offset:{of(t)}"
    def rdk2(t): return f"ds_read_b32 v{K2}, v{BK2 if t in (6, 7) else AK2} offset:{of(t)+1024}"
    def rdv(t, v2):
        b = BV if t in (6, 7) else AV
        return f"s_mov_b64 exec, s[24:25]\nds_read_b128 {vr(V1,4)}, v{b} offset:{of(t)+1280}\nds_read_b128 {vr(v2,4)}, v{b} offset:{of(t)+1920}\ns_mov_b64 exec, -1"
    def maxtree(s, m, first):
        if first:
            a(f"v_max3_f32 v{m}, v{s}, v{s+1}, v{s+2}\nv_max3_f32 v{m+1}, v{s+3}, v{s+4}, v{s+5}")
            for j in range(6, 14, 4): a(f"v_max3_f32 v{m}, v{s+j}, v{s+j+1}, v{m}\nv_max3_f32 v{m+1}, v{s+j+2}, v{s+j+3}, v{m+1}")
            a(f"v_max3_f32 v{m}, v{s+14}, v{s+15}, v{m}\nv_max_f32 v{m}, v{m}, v{m+1}")
        else:
            for j in range(0, 16, 2): a(f"v_max3_f32 v{m}, v{s+j}, v{s+j+1}, v{m}")
    def xhalf(m):
        a(f"v_mov_b32 v{m+1}, v{m}\ns_nop 1\nv_permlane32_swap_b32 v{m}, v{m+1}\ns_nop 0\nv_max_f32 v{m}, v{m}, v{m+1}")
    a(f"""
    s_cmp_lg_u32 s34, 1
    s_cbranch_scc1 ATT_NOSIG
    """)
    if opt("comb", 1):
        a(f"""
        v_mov_b32 v{T+4}, {LFB + 44}
        s_and_b32 s23, s15, -128
        s_mov_b64 exec, 1
        s_waitcnt vmcnt(0)
        ds_add_rtn_u32 v{T+5}, v{T+4}, v{T+2}
        s_waitcnt lgkmcnt(0)
        v_cmp_eq_u32 vcc, 3, v{T+5}
        s_cbranch_vccz ATT_NOSIG
        buffer_store_dwordx4 {vr(P,4)}, v{O}, s[28:31], s23 offen sc1
        """)
    else:
        a(f"s_waitcnt vmcnt(0)\ns_mov_b64 exec, 1\nbuffer_store_dword v{T+2}, v{O}, s[28:31], s15 offen sc1")
    a(f"""
ATT_NOSIG:
    s_mov_b64 exec, -1
    {st(4)}
    s_and_b32 s23, s34, s12
    s_cbranch_scc1 ATT_NOP
    s_barrier
ATT_NOP:
    {st(6)}
    ds_read_b128 {vr(Q1,4)}, v{T} offset:{QLDS}
    ds_read_b32 v{Q2}, v{T+1} offset:{QLDS+1024}
    {rdk1(0)}
    {rdk2(0)}
    {rdv(0, V2[0])}
    s_waitcnt lgkmcnt(2)
    {qk1(S[1])}
    {qk2(S[1])}
    """)
    for j in range(5): a(f"v_lshlrev_b32 v{S[0]+2*j}, 16, v{Q1+j}\nv_and_b32 v{S[0]+2*j+1}, 0xffff0000, v{Q1+j}")
    for j in range(10): a(f"v_mul_f32 v{S[0]+j}, {QSCALE:#x}, v{S[0]+j}")
    for j in range(5): a(f"v_cvt_pk_bf16_f32 v{Q1+j}, v{S[0]+2*j}, v{S[0]+2*j+1}")
    a(f"""
    s_nop 0
    {qk1(S[0])}
    {rdk1(1)}
    s_mov_b32 s26, 0
    """)
    maxtree(S[1], T, True); xhalf(T)
    a(f"""
    v_mul_f32 v{T}, {f32bits(-0.5 * (20 ** -0.5) * math.log2(math.e)):#x}, v{T}
    v_cvt_pk_bf16_f32 v{Q2+1}, v{T}, 0
    s_nop 1
    {qk2(S[0])}
    {rdk2(1)}
    buffer_store_dwordx4 {vr(P,4)}, v{OA1}, s[28:31], s6 offen sc1
    s_mov_b64 exec, 0xffff
    buffer_store_dwordx4 {vr(P,4)}, v{OA2}, s[28:31], s7 offen sc1
    s_mov_b64 exec, -1
    s_waitcnt lgkmcnt(0)
    {st(7)}
    s_nop 3
ATT_LOOP:
    """)
    def e(s, j): return f"v_exp_f32 v{s+j}, v{s+j}"
    def c(s, j): return f"v_cvt_pk_bf16_f32 v{P+j}, v{s+2*j}, v{s+2*j+1}"
    for j in range(8):
        cur, nxt = S[j % 2], S[(j + 1) % 2]
        a("s_waitcnt lgkmcnt(2)")
        if opt('rev', 0): a(rk1(nxt)); a(rdk2(j + 2))
        else: a(qk1(nxt)); a(rdk1(j + 2))
        for q in range(4): a(e(cur, q))
        a(pv(V2[(j + 1) % 2], P + 4))
        a("s_waitcnt lgkmcnt(1)")
        if j == 2: a(f"ds_write_b32 v{PA}, v{T+2}")
        for q in range(4, 8): a(e(cur, q))
        a(c(cur, 0)); a(c(cur, 1))
        if opt('rev', 0): a(rk2(nxt)); a(rdk1(j + 2))
        else: a(qk2(nxt)); a(rdk2(j + 2))
        a(c(cur, 2)); a(c(cur, 3))
        for q in range(8, 12): a(e(cur, q))
        a(pv(V1, P)); a(rdv(j + 1, V2[(j + 1) % 2]))
        for q in range(12, 16): a(e(cur, q))
        for q in range(4, 8): a(c(cur, q))
    a(f"""
    s_add_u32 s26, s26, 1
    s_movk_i32 s27, 0x5000
    s_cmp_eq_u32 s26, 7
    s_cselect_b32 s27, {(0x5000 - 62 * 2560) & 0xffffffff}, s27
    v_add_u32 v{AK1}, 0x5000, v{AK1}
    v_add_u32 v{AK2}, 0x5000, v{AK2}
    v_add_u32 v{AV}, 0x5000, v{AV}
    v_add_u32 v{BK1}, s27, v{BK1}
    v_add_u32 v{BK2}, s27, v{BK2}
    v_add_u32 v{BV}, s27, v{BV}
    v_add_u32 v{T+2}, 1, v{T+2}
    s_bitcmp1_b32 s35, s26
    s_cbranch_scc0 ATT_LOOP
    s_cmp_gt_u32 s26, 2
    s_cbranch_scc1 ATT_EV
    v_add_u32 v{FA}, 8, v{FA}
    s_waitcnt vmcnt(0)
ATT_WAIT:
    ds_read_b32 v{T}, v{FA}
    s_waitcnt lgkmcnt(0)
    v_readfirstlane_b32 s23, v{T}
    s_cmp_ge_u32 s23, 4
    s_cbranch_scc1 ATT_LOOP
    s_sleep 1
    s_branch ATT_WAIT
ATT_EV:
    s_setprio 2
    s_cmp_eq_u32 s26, s32
    s_cbranch_scc1 ATT_LOOP
    s_setprio 1
    s_cmp_lt_u32 s26, 8
    s_cbranch_scc1 ATT_LOOP
    s_setprio 3
    {pv(V2[1], P+4)}
    {st(8)}
    s_mov_b32 s27, 0x3e800000
    s_mov_b32 s23, 0x71800000
    s_nop 9
    """)
    a(f"v_rcp_f32 v{T+2}, v{O+12}\nv_add_f32 v{T}, |v{O}|, |v{O+1}|\nv_add_f32 v{T+1}, |v{O+2}|, |v{O+3}|")
    for j in range(4, 12, 2): a(f"v_add_f32 v{T}, |v{O+j}|, v{T}\nv_add_f32 v{T+1}, |v{O+j+1}|, v{T+1}")
    a(f"""
    v_add_f32 v{T}, v{T}, v{O+12}
    v_cmp_le_f32 s[42:43], s27, v{O+12}
    v_add_f32 v{T}, v{T}, v{T+1}
    v_cmp_gt_f32 vcc, s23, v{T}
    s_and_b64 vcc, vcc, s[42:43]
    s_cmp_eq_u64 vcc, -1
    s_cbranch_scc0 ATT_FALLBACK
ATT_FINISH:
    """)
    for j in range(8): a(f"v_mul_f32 v{O+j}, v{O+j}, v{T+2}")
    for j in range(4): a(f"v_cvt_pk_bf16_f32 v{P+j}, v{O+2*j}, v{O+2*j+1}")
    for j in range(4): a(f"v_min_u32 v{P+j}, -2, v{P+j}")
    a(f"buffer_store_dwordx4 {vr(P,4)}, v{OA1}, s[28:31], s6 offen sc1")
    for j in range(8, 12): a(f"v_mul_f32 v{O+j}, v{O+j}, v{T+2}")
    for j in range(4, 6): a(f"v_cvt_pk_bf16_f32 v{P+j}, v{O+2*j}, v{O+2*j+1}")
    for j in range(4, 6): a(f"v_min_u32 v{P+j}, -2, v{P+j}")
    a(f"""
    s_nop 1
    v_permlane16_swap_b32 v{P+4}, v{P+6}
    v_permlane16_swap_b32 v{P+5}, v{P+7}
    s_mov_b64 exec, 0xffff
    buffer_store_dwordx4 {vr(P+4,4)}, v{OA2}, s[28:31], s7 offen sc1
    {st(9)}
    s_cmp_ge_u32 s13, 4
    s_cbranch_scc1 {"L_DONE" if STAMP else "L_END"}
    s_mov_b64 exec, -1
    s_xor_b32 s41, s13, {opt('gx', 2)}
    s_mov_b32 s47, 1
    s_branch P3_GO
    """)
    def gk(): return f"buffer_load_dwordx4 {vr(K1,4)}, v{AK1}, s[28:31], s23 offen sc1\nbuffer_load_dword v{K2}, v{AK2}, s[28:31], s23 offen offset:1024 sc1"
    a(f"""
ATT_FALLBACK:
    s_waitcnt lgkmcnt(0)
    v_mov_b32 v{Q2+1}, 0
    v_mov_b32 v{T}, 0xff800000
    v_subrev_u32 v{AK1}, {HS}, v{AK1}
    v_subrev_u32 v{AK2}, {HS}, v{AK2}
    v_subrev_u32 v{AV}, {HS}, v{AV}
    s_add_u32 s23, s14, {KV_OFF}
    s_mov_b32 s26, 0
ATT_FB1:
    {gk()}
    s_add_u32 s23, s23, 2560
    s_waitcnt vmcnt(0)
    {qk1(S[0])}
    {qk2(S[0])}
    s_nop 15
    """)
    maxtree(S[0], T, False)
    a("s_add_u32 s26, s26, 1\ns_cmp_lt_u32 s26, 64\ns_cbranch_scc1 ATT_FB1")
    xhalf(T)
    a(f"s_add_u32 s23, s14, {KV_OFF}\ns_mov_b32 s26, 0")
    for r in range(16): a(f"v_mov_b32 v{O+r}, 0")
    a(f"""
ATT_FB2:
    {gk()}
    s_mov_b64 exec, s[24:25]
    buffer_load_dwordx4 {vr(V1,4)}, v{AV}, s[28:31], s23 offen offset:1280 sc1
    buffer_load_dwordx4 {vr(V2[0],4)}, v{AV}, s[28:31], s23 offen offset:1920 sc1
    s_mov_b64 exec, -1
    s_add_u32 s23, s23, 2560
    s_waitcnt vmcnt(0)
    {qk1(S[0])}
    {qk2(S[0])}
    s_nop 15
    """)
    for q in range(16): a(f"v_sub_f32 v{S[0]+q}, v{S[0]+q}, v{T}")
    for q in range(16): a(e(S[0], q))
    a("s_nop 0")
    for q in range(8): a(c(S[0], q))
    a(f"""
    s_nop 1
    {pv(V1, P)}
    {pv(V2[0], P+4)}
    s_add_u32 s26, s26, 1
    s_cmp_lt_u32 s26, 64
    s_cbranch_scc1 ATT_FB2
    s_nop 15
    v_rcp_f32 v{T+2}, v{O+12}
    s_nop 0
    s_branch ATT_FINISH
    """)

def lwait(a, vaddr, vdat, mask, target, slp=8):
    u = a.uid()
    a(f"""
    s_mov_b64 exec, {mask}
    s_branch L_LWE{u}
L_LW{u}:
    s_sleep {slp}
L_LWE{u}:
    ds_read_b32 v{vdat}, v{vaddr}
    s_waitcnt lgkmcnt(0)
    v_cmp_gt_u32 vcc, {target}, v{vdat}
    s_cbranch_vccnz L_LW{u}
    s_mov_b64 exec, -1
    """)
def ladd(a, vaddr, vone, off):
    a(f"s_mov_b64 exec, 1\nds_add_u32 v{vaddr}, v{vone} offset:{off}\ns_mov_b64 exec, -1")

def helpers(a):
    WA, VG, VZ, SH, HPA, HONE, YFA, FZ, SG, XA5, LF = 112, 117, 118, 119, 120, 121, 122, 123, 124, 125, 126
    ZL = 40; G = 167; VY = 162; T = 132; LT = 127
    a(f"""
HELPER:
    s_mov_b32 s61, s22
    {st(2)}
    {srd(28, WS_P, WS_USED)}
    s_setprio 0
    s_lshr_b32 s20, s18, 2
    s_mul_i32 s26, s20, 160
    s_movk_i32 s23, {1280 - 160}
    """)
    for i in range(5):
        a(f"""
        v_add_u32 v{T}, {64*i}, v0
        v_mul_u32_u24 v{T+1}, 6554, v{T}
        v_lshrrev_b32 v{T+1}, 16, v{T+1}
        v_lshlrev_b32 v{T}, 4, v{T}
        v_mad_u32_u24 v{WA+i}, v{T+1}, s23, v{T}
        """)
    a(f"""
    s_lshl_b32 s21, s17, 3
    s_and_b32 s22, s18, 3
    s_add_u32 s21, s21, s22
    s_lshr_b32 s22, s16, 1
    s_lshl_b32 s22, s22, 2
    s_add_u32 s21, s21, s22
    s_lshl_b32 s21, s21, 1
    s_and_b32 s22, s16, 1
    s_add_u32 s21, s21, s22
    s_lshr_b32 s22, s21, 2
    s_lshl_b32 s22, s22, 1
    s_and_b32 s24, s21, 1
    s_add_u32 s22, s22, s24
    s_lshl_b32 s22, s22, 3
    v_and_b32 v{T}, 7, v0
    v_add_u32 v{T}, s22, v{T}
    s_bitcmp1_b32 s21, 1
    s_cselect_b32 s22, 0x400, 0
    s_cselect_b32 s24, -1, 1
    v_mul_lo_u32 v{T+1}, v{T}, s24
    s_sub_u32 s24, 0x800, s22
    v_sub_u32 v{T+2}, s24, v{T+1}
    v_add_u32 v{T+1}, s22, v{T+1}
    v_and_b32 v{T+3}, 8, v0
    v_cmp_ne_u32 vcc, 0, v{T+3}
    v_cmp_eq_u32 s[42:43], 0, v{T}
    v_lshlrev_b32 v{T+3}, 6, v{T+3}
    v_add_u32 v{T+3}, s22, v{T+3}
    v_cndmask_b32 v{T}, v{T+1}, v{T+2}, vcc
    v_lshrrev_b32 v{T+1}, 4, v0
    v_cndmask_b32 v{T}, v{T}, v{T+3}, s[42:43]
    v_mul_u32_u24 v{VY}, 1280, v{T}
    v_mul_u32_u24 v{T+2}, 40, v{T+1}
    v_add3_u32 v{VY}, v{VY}, v{T+2}, s26
    v_lshlrev_b32 v{VG}, 2, v{T}
    v_sub_u32 v{T+3}, 0x800, v{T}
    v_cmp_lt_u32 vcc, 0x400, v{T}
    v_min_u32 v{T}, v{T}, v{T+3}
    v_and_b32 v{T+3}, 1, v{T}
    v_mul_u32_u24 v{VZ}, {ZP}, v{T+3}
    v_lshrrev_b32 v{T+3}, 1, v{T}
    v_lshl_add_u32 v{VZ}, v{T+3}, 4, v{VZ}
    v_mov_b32 v{T+3}, 0x02020202
    v_cndmask_b32 v{SH}, 0, v{T+3}, vcc
    s_cmp_ge_u32 s20, 4
    s_mov_b32 s24, 0x05040100
    s_cselect_b32 s24, 0x07060302, s24
    s_cselect_b32 s40, -1, 1
    s_cselect_b32 s41, 155, 0
    v_xor_b32 v{SH}, s24, v{SH}
    s_mul_i32 s24, s20, 20
    v_mul_u32_u24 v{T+3}, 5, v{T+1}
    v_add_u32 v{T+3}, s24, v{T+3}
    v_mul_lo_u32 v{T+3}, v{T+3}, s40
    v_add_u32 v{T+3}, s41, v{T+3}
    v_mul_u32_u24 v{T+3}, {2*ZP}, v{T+3}
    v_add_u32 v{VZ}, v{VZ}, v{T+3}
    {p3_addr(0)}
    v_lshlrev_b32 v{HPA}, 2, v0
    v_add_u32 v{HPA}, {LFB}, v{HPA}
    v_mov_b32 v{HONE}, 1
    s_lshl_b32 s23, s2, 2
    s_add_u32 s23, s23, {FLG_OFF + 32768}
    v_mov_b32 v{YFA}, s23
    v_lshrrev_b32 v{FZ}, 4, v0
    v_mul_u32_u24 v{FZ}, {2*ZP}, v{FZ}
    v_and_b32 v{T}, 15, v0
    v_lshl_add_u32 v{FZ}, v{T}, 4, v{FZ}
    v_lshlrev_b32 v{SG}, 31, v0
    v_and_b32 v{XA5}, 48, v0
    v_lshlrev_b32 v{LF}, 7, v0
    v_bfe_u32 v{LT}, v0, 1, 2
    v_lshlrev_b32 v{LT}, 13, v{LT}
    v_and_b32 v{T}, 1, v0
    v_lshl_add_u32 v{LT}, v{T}, 7, v{LT}
    s_setprio 3
    s_lshr_b32 s19, s18, 3
    s_lshl_b32 s23, s17, 2
    s_add_u32 s19, s19, s23
    s_and_b32 s62, s18, 7
    s_mul_i32 s21, s19, {HG}
    v_lshlrev_b32 v1, 4, v0
    {st(3)}
    s_lshr_b32 s23, s19, 3
    s_lshl_b32 s23, s23, 13
    s_add_u32 s23, s23, {FLG_OFF}
    v_lshlrev_b32 v2, 7, v0
    v_add_u32 v2, s23, v2
    s_add_u32 s24, s21, {KV_OFF}
    s_lshl_b32 s40, 0x10000, s16
    s_lshl_b32 s41, 1, s16
    s_mul_i32 s22, s16, 10240
    s_add_u32 s26, s24, s22
    s_cmp_lg_u32 s16, 3
    s_cbranch_scc1 H_JA
    s_lshl_b32 s25, s62, 1
    s_lshl_b32 s40, 3, s25
    s_mov_b32 s41, 0
    s_mov_b32 s22, {QLDS}
    s_mul_i32 s26, s19, {HQ}
    s_mul_i32 s25, s62, 10240
    s_add_u32 s26, s26, s25
    s_add_u32 s26, s26, {Q_OFF}
H_JA:
    """)
    def job():
        r = f"s_add_u32 s25, s22, 5120\ns_cmp_ge_u32 s25, {LFB}\ns_cselect_b32 s25, 0, s25\n"
        for n in range(10):
            if n in (0, 3): r += f"s_add_u32 m0, s22, {1024*n}\ns_add_u32 s27, s26, {1024*n}\n"; o = 0
            if n in (5, 8): r += f"s_add_u32 m0, s25, {1024*(n-5)}\ns_add_u32 s27, s26, {1024*n}\n"; o = 0
            r += f"buffer_load_dwordx4 v1, s[28:31], s27 offen offset:{o} sc1 lds\n"; o += 1024
        return r
    if opt("latep", 1):
        a(f"s_mul_i32 s23, s12, 12\ns_cmp_eq_u32 s61, 3\ns_cselect_b32 s23, 12, s23\ns_add_u32 s23, s23, {LFB + 44}\nv_mov_b32 v3, s23")
        lwait(a, 3, 4, 1, 4, 2)
        if opt("lps", 0): a(f"s_sleep {opt('lps', 0)}")
    poll4(a, 2, 4, "s[40:41]")
    a(st(11)); a(job())
    a(f"""
    s_lshl_b32 s40, 0x80000, s16
    s_lshl_b32 s41, 8, s16
    s_add_u32 s22, s16, 3
    s_mul_i32 s22, s22, 10240
    s_add_u32 s26, s24, s22
    s_waitcnt vmcnt(0)
    {st(12)}
    s_barrier
    s_cmp_eq_u32 s16, 3
    s_cbranch_scc1 H_JB
    """)
    poll4(a, 2, 4, "s[40:41]")
    a(job())
    a(f"""
H_JB:
    s_lshl_b32 s41, 0x4440, s16
    s_and_b32 s41, s41, 0xffff
    s_lshl_b32 s40, s41, 16
    s_add_u32 s22, s16, 6
    s_mul_i32 s22, s22, 10240
    s_add_u32 s26, s24, s22
    s_waitcnt vmcnt(0)
    """)
    ladd(a, HPA, HONE, 64)
    lwait(a, HPA, 4, 0xff, 1)
    poll4(a, 2, 4, "s[40:41]", slp=8)
    a(f"{st(13)}\nH_JC:"); a(job())
    a(f"""
    s_add_u32 s22, s22, 40960
    s_add_u32 s26, s26, 40960
    s_cmp_lt_u32 s22, {HS}
    s_cbranch_scc1 H_JC
    s_waitcnt vmcnt(0)
    {st(4)}
    """)
    ladd(a, HPA, HONE, 72)
    a(f"""
    s_cmp_lt_u32 s16, 3
    s_cbranch_scc1 H_FNET
    """)
    a(f"""
    {srd(32, X_P, 2048*1280)}
    {srd(36, GATE_P, 1280)}
    v_lshrrev_b32 v2, 3, v0
    v_and_b32 v3, 7, v0
    v_lshlrev_b32 v3, 4, v3
    s_movk_i32 s22, 1280
    v_mad_u32_u24 v4, v2, s22, v3
    s_mul_i32 s23, s2, {8*1280}
    """)
    for j in range(10):
        a(f"buffer_load_dwordx4 {vr(24+8*j,4)}, v4, s[32:35], s23 offen offset:{128*j}")
        a(f"buffer_load_dwordx4 {vr(28+8*j,4)}, v3, s[36:39], 0 offen offset:{128*j}")
    a("v_mov_b32 v5, 0\nv_mov_b32 v6, 0\ns_waitcnt vmcnt(0)")
    for j in range(10):
        for q in range(4):
            a(f"v_dot2c_f32_bf16 v{5 + (q & 1)}, v{24+8*j+q}, v{28+8*j+q}")
    a(f"""
    s_nop 2
    v_add_f32 v5, v5, v6
    s_nop 1
    v_add_f32_dpp v5, v5, v5 quad_perm:[1,0,3,2] row_mask:0xf bank_mask:0xf
    s_nop 1
    v_add_f32_dpp v5, v5, v5 quad_perm:[2,3,0,1] row_mask:0xf bank_mask:0xf
    s_nop 1
    v_add_f32_dpp v5, v5, v5 row_half_mirror row_mask:0xf bank_mask:0xf
    v_mul_f32 v5, {f32bits(-math.log2(math.e)):#x}, v5
    v_exp_f32 v5, v5
    v_lshlrev_b32 v2, 2, v2
    v_add_f32 v5, 1.0, v5
    v_rcp_f32 v5, v5
    s_lshl_b32 s23, s2, 5
    s_add_u32 s23, s23, {G_OFF}
    buffer_store_dword v5, v2, s[28:31], s23 offen sc1
    s_branch H_MID
    """)
    C, SN, FB = 0, 8, 16
    a(f"""
H_FNET:
    {'s_branch H_MID' if opt('nofnet', 0) == 1 else ''}
    s_lshl_b32 s22, s16, 5
    s_add_u32 s22, s22, s18
    s_cmp_lt_u32 s22, 84
    s_cbranch_scc1 H_FN_A
    s_sub_u32 s24, s22, 84
    s_lshl_b32 s24, s24, 3
    s_add_u32 s24, s24, s17
    s_cmp_ge_u32 s24, 21
    s_cbranch_scc1 H_MID
    s_mov_b32 s23, 32
    s_branch H_FN_B
H_FN_A:
    s_mul_i32 s23, s22, 3121
    s_lshr_b32 s23, s23, 16
    s_mul_i32 s24, s23, 21
    s_sub_u32 s24, s22, s24
    s_lshl_b32 s23, s23, 3
    s_add_u32 s23, s23, s17
H_FN_B:
    s_and_b32 s25, s23, 1
    s_add_u32 s26, s24, 20
    s_cmp_eq_u32 s24, 20
    s_cselect_b32 s26, 20, s26
    s_mul_i32 s32, s24, 26
    s_lshr_b32 s32, s32, 8
    s_lshl_b32 s32, s32, 13
    s_add_u32 s32, s32, {48 * 128}
    s_mul_i32 s33, s26, 26
    s_lshr_b32 s33, s33, 8
    s_lshl_b32 s33, s33, 13
    s_add_u32 s33, s33, {32 * 128}
    s_and_b32 s34, s23, 31
    s_lshl_b32 s34, s34, 8
    s_mov_b64 exec, 0xffff
    v_add_u32 v2, s32, v{LF}
    s_mov_b32 exec_lo, 0xffff0000
    v_add_u32 v2, s33, v{LF}
    s_mov_b32 exec_lo, 0
    s_mov_b32 exec_hi, 0xff
    v_add_u32 v2, s34, v{LT}
    s_mov_b32 s40, -1
    s_movk_i32 s41, 0xff
    s_mov_b32 s27, {FLG_OFF}
    """)
    poll4(a, 2, 4, "s[40:41]", "s27", slp=8)
    a(st(14))
    a(f"""
    s_lshl_b32 s32, s23, 16
    s_add_u32 s32, s32, {TB_OFF}
    s_mul_i32 s27, s25, {FO_DELTA}
    s_add_u32 s27, s27, {FE_OFF}
    s_lshl_b32 s33, s24, 14
    s_add_u32 s33, s33, s27
    s_lshl_b32 s34, s26, 14
    s_add_u32 s34, s34, s27
    s_cmp_eq_u32 s25, 0
    s_cselect_b32 s35, s24, s26
    s_lshl_b32 s35, s35, 6
    s_add_u32 s35, s35, {X512_OFF}
    buffer_load_dwordx4 v[128:131], v{XA5}, s[28:31], s35 offen sc1
    """)
    def fl(j):
        r = FB + 24 * j
        s_ = f"buffer_load_dwordx4 {vr(r,4)}, v163, s[28:31], s33 offen offset:{1024*j} sc1\n"
        s_ += f"buffer_load_dwordx4 {vr(r+4,4)}, v163, s[28:31], s34 offen offset:{1024*j} sc1\n"
        for k in range(4): s_ += f"buffer_load_dwordx4 {vr(r+8+4*k,4)}, v163, s[28:31], s32 offen offset:{1024*k} sc1\n"
        s_ += "s_add_u32 s32, s32, 4096\n"
        if j == 3: s_ += "s_add_u32 s33, s33, 4096\ns_add_u32 s34, s34, 4096\n"
        return s_
    def fm(j):
        r = FB + 24 * j
        s_ = ""
        if opt("nofnet", 0) == 2: return s_
        for sub in range(2):
            s_ += f"v_mfma_f32_16x16x32_bf16 {vr(C+4*sub,4)}, {vr(r,4)}, {vr(r+8+8*sub,4)}, {vr(C+4*sub,4)}\n"
            s_ += f"v_mfma_f32_16x16x32_bf16 {vr(SN+4*sub,4)}, {vr(r+4,4)}, {vr(r+12+8*sub,4)}, {vr(SN+4*sub,4)}\n"
        return s_
    for j in range(4): a(fl(j))
    a(f"""
    s_cmp_eq_u32 s25, 0
    s_cselect_b32 s36, 1.0, 0
    s_cselect_b32 s37, 0, 1.0
    v_or_b32 v161, s37, v{SG}
    v_or_b32 v160, s36, v{SG}
    s_waitcnt vmcnt(24)
    """)
    for r in range(8): a(f"v_mul_f32 v{C+r}, v160, v{128 + r % 4}\nv_mul_f32 v{SN+r}, v161, v{128 + r % 4}")
    a("s_mov_b32 s38, 0\nH_FN_LOOP:")
    for j in range(4):
        a("s_waitcnt vmcnt(18)"); a(fm(j)); a(fl(j))
    a("s_add_u32 s38, s38, 1\ns_cmp_lt_u32 s38, 3\ns_cbranch_scc1 H_FN_LOOP")
    for j in range(4):
        a(f"s_waitcnt vmcnt({18-6*j})"); a(fm(j))
    a(f"""
    s_cmp_eq_u32 s26, 20
    s_cselect_b32 s44, 0xffff, 0
    s_mov_b32 s45, 0
    s_mul_i32 s26, s24, {8*ZP}
    s_mul_i32 s27, s25, {ZP}
    s_add_u32 s26, s26, s27
    s_lshr_b32 s27, s23, 1
    s_lshl_b32 s27, s27, 9
    s_add_u32 s26, s26, s27
    s_add_u32 s26, s26, {Y_OFF}
    v_cndmask_b32 v{SN}, v{SN}, 0, s[44:45]
    v_cndmask_b32 v{SN+4}, v{SN+4}, 0, s[44:45]
    """)
    for r in range(8):
        a(f"v_add_f32 v{16+r}, v{C+r}, v{SN+r}\nv_sub_f32 v{C+r}, v{C+r}, v{SN+r}")
    for r in range(8): a(f"v_cvt_pk_bf16_f32 v{16+r}, v{16+r}, v{C+r}")
    a(f"buffer_store_dwordx4 v[16:19], v{FZ}, s[28:31], s26 offen sc1\nbuffer_store_dwordx4 v[20:23], v{FZ}, s[28:31], s26 offen offset:256 sc1")
    a(f"""
H_MID:
    s_lshl_b32 s19, s17, 2
    s_and_b32 s20, s18, 3
    s_add_u32 s19, s19, s20
    s_lshr_b32 s20, s18, 2
    {srd(32, WO_P, 640*1280)}
    {srd(36, OUT_P, 2621440)}
    s_mul_i32 s26, s20, 160
    s_mul_i32 s27, s16, {160*1280}
    s_add_u32 s27, s27, s26
    s_movk_i32 s23, {1280 - 160}
    """)
    a(f"""
    s_add_u32 s25, s16, 1
    s_and_b32 s25, s25, 3
    s_mul_i32 s22, s25, 25600
    s_add_u32 s22, s22, {WOL}
    s_add_u32 s25, s25, 3
    s_waitcnt vmcnt(0)
    {st(5)}
    """)
    lwait(a, HPA, T + 1, 0xff, 2)
    a(f"""s_mov_b64 exec, 1
    ds_add_rtn_u32 v{T+1}, v{HPA}, v{HONE} offset:48
    s_waitcnt lgkmcnt(0)
    v_cmp_eq_u32 vcc, 3, v{T+1}
    s_cbranch_vccz H_NOY
    buffer_store_dword v{HONE}, v{YFA}, s[28:31], 0 offen sc1
H_NOY:
    s_mov_b64 exec, -1""")
    lwait(a, HPA, T + 1, 0xff, "s25")
    a(f"{st(6)}\ns_mov_b32 s25, 0\nH_WO:")
    for i in range(5):
        a(f"s_add_u32 m0, s22, {1024*i}\ns_nop 0\nbuffer_load_dwordx4 v{WA+i}, s[32:35], s27 offen lds")
    a(f"""
    s_add_u32 s22, s22, 5120
    s_add_u32 s27, s27, {32*1280}
    s_add_u32 s25, s25, 1
    s_cmp_lt_u32 s25, 5
    s_cbranch_scc1 H_WO
    s_cmp_lg_u32 s16, 3
    s_cbranch_scc1 H_YW
    """)
    lwait(a, HPA, T + 1, 0xff, opt("ypr", 5), 16)
    a(f"s_mov_b32 s27, {FLG_OFF + 32768}")
    poll4(a, VA, 4, "-1", "s27", slp=16)
    ladd(a, HPA, HONE, 40)
    a(f"H_YW:\nv_add_u32 v{T}, 40, v{HPA}")
    lwait(a, T, T + 1, 1, 1, 16)
    a("s_waitcnt vmcnt(0)")
    a(f"v_mov_b32 v{T}, 2")
    ladd(a, HPA, T, 32)
    a(f"{st(7)}\ns_mov_b32 s26, {Y_OFF}\ns_mov_b32 s27, {G_OFF}\nbuffer_load_dword v{G}, v{VG}, s[28:31], s27 offen sc1")
    for j in range(6):
        a(f"buffer_load_dwordx4 {vr(ZL+4*j,4)}, v{VZ}, s[28:31], s26 offen sc1\ns_add_u32 s26, s26, {2*ZP}")
    BF, OFR, ACC, YG = 0, 100, 120, 140
    VY2, G2 = 162, 167
    a(f"""
    s_waitcnt vmcnt(0)
    s_cmp_ge_u32 s20, 4
    s_cbranch_scc1 H_DESC
    """)
    for k in range(10): a(f"v_perm_b32 v{YG+10+k}, v{ZL+2*k+1}, v{ZL+2*k}, v{SH}")
    a("s_branch H_UNP\nH_DESC:")
    for k in range(10): a(f"v_perm_b32 v{YG+10+k}, v{ZL+19-2*k}, v{ZL+20-2*k}, v{SH}")
    a("H_UNP:")
    lwait(a, HPA, 8, 0xf, 8)
    a(f"""
    {st(8)}
    s_mov_b32 s41, s16
    s_mov_b32 s47, 0
P3_GO:
    s_setprio {opt('p3o', 0)}
    s_lshl_b32 s22, s17, 3
    s_and_b32 s23, s18, 3
    s_add_u32 s22, s22, s23
    s_lshl_b32 s22, s22, 1
    s_add_u32 s22, s22, s47
    s_mul_i32 s22, s22, 20480
    s_add_u32 s22, s22, {OF_OFF}
    s_lshl_b32 s44, s41, 12
    s_add_u32 s44, s44, s22
    s_lshl_b32 s45, s41, 10
    s_add_u32 s45, s45, s22
    s_add_u32 s45, s45, 16384
    s_lshl_b32 s46, s47, 2
    s_add_u32 s40, s46, {LFB + 80}
    s_add_u32 s46, s46, s41
    s_mul_i32 s46, s46, 5120
    s_add_u32 s46, s46, {WOL}
    s_mov_b32 s26, 0
    s_mov_b32 s42, 0
    v_mov_b32 v{CM}, {LFB + 32}
    """)
    lwait(a, CM, CT, 1, 8)
    a("P3_TRY:")
    for k in range(4):
        a(f"buffer_load_dwordx4 {vr(OFR+4*k,4)}, v{VA}, s[28:31], s44 offen offset:{1024*k} sc1")
    a(f"buffer_load_dwordx2 {vr(OFR+16,2)}, v{VT}, s[28:31], s45 offen sc1\nbuffer_load_dwordx2 {vr(OFR+18,2)}, v{VT}, s[28:31], s45 offen offset:128 sc1")
    a(f"""
    s_cmp_lg_u32 s26, 0
    s_cbranch_scc1 P3_CHK
    s_add_u32 s23, s41, 1
    s_and_b32 s23, s23, 3
    s_mul_i32 s23, s23, 25600
    s_add_u32 s23, s23, {WOL}
    v_add_u32 v{CM}, s23, v{BMM}
    v_add_u32 v{CT}, s23, v{BMT}
    """)
    for n in range(25):
        k, t = divmod(n, 5); d = BF + 4 * n
        bb, o, dj = (CM, k * 6400 + t * 8, 1280) if k < 4 else (CT, t * 8, 3200)
        a(f"ds_read_b64_tr_b16 {vr(d,2)}, v{bb} offset:{o}\nds_read_b64_tr_b16 {vr(d+2,2)}, v{bb} offset:{o+dj}")
    a(f"v_mov_b32 v{BMM}, {LFB + 36}\nv_mov_b32 v{BMT}, 1\ns_waitcnt lgkmcnt(0)")
    ladd(a, BMM, BMT, 0)
    b = OFR
    def mfs(k): return "\n".join(f"v_mfma_f32_16x16x32_bf16 {vr(ACC+4*t,4)}, {vr(BF+4*(5*k+t),4)}, {vr(OFR+4*k,4)}, {vr(ACC+4*t,4) if k else 0}" for t in range(5))
    if opt("spec", 1):
        a("P3_CHK:\ns_add_u32 s26, s26, 1\ns_mov_b32 s43, -1")
        for k in range(5):
            r = b + 4 * k
            a(f"""P3_C{k}:
            s_waitcnt vmcnt({max(0, 5 - k) if k < 4 else 0})
            v_max3_u32 v{CM}, v{r}, v{r+1}, v{r+2}
            v_max3_u32 v{CM}, v{r+3}, v{CM}, 1
            v_cmp_eq_u32 vcc, s43, v{CM}
            s_cbranch_vccnz P3_B{k}
            {mfs(k)}""")
        a(f"{'' if opt('fst', 0) else st(11)}\ns_branch P3_OK")
        for k in range(5):
            a(f"P3_B{k}:\ns_sleep {opt('p3s', 4)}")
            for kk in range(k, 4):
                a(f"buffer_load_dwordx4 {vr(OFR+4*kk,4)}, v{VA}, s[28:31], s44 offen offset:{1024*kk} sc1")
            a(f"buffer_load_dwordx2 {vr(OFR+16,2)}, v{VT}, s[28:31], s45 offen sc1\nbuffer_load_dwordx2 {vr(OFR+18,2)}, v{VT}, s[28:31], s45 offen offset:128 sc1")
            a(f"s_add_u32 s26, s26, 1\ns_cmp_lt_u32 s26, 0x40000\ns_cselect_b32 s43, -1, 0\ns_branch P3_C{k}")
        a("P3_OK:")
    else:
        a(f"P3_CHK:\ns_add_u32 s26, s26, 1\ns_waitcnt vmcnt(4)\nv_max3_u32 v{CM}, v{b}, v{b+1}, v{b+2}\nv_max3_u32 v{CT}, v{b+3}, v{b+4}, v{b+5}\nv_max3_u32 v{CM}, v{b+6}, v{b+7}, v{CM}\ns_waitcnt vmcnt(2)")
        a(f"v_max3_u32 v{CT}, v{b+8}, v{b+9}, v{CT}\nv_max3_u32 v{CM}, v{b+10}, v{b+11}, v{CM}\nv_max3_u32 v{CT}, v{b+12}, v{b+13}, v{CT}\nv_max3_u32 v{CM}, v{b+14}, v{b+15}, v{CM}\ns_waitcnt vmcnt(0)")
        a(f"""
    v_max3_u32 v{CT}, v{b+16}, v{b+17}, v{CT}
    v_max3_u32 v{CM}, v{b+18}, v{b+19}, v{CM}
    s_cmp_lt_u32 s26, 0x40000
    v_max_u32 v{CM}, v{CM}, v{CT}
    s_cbranch_scc0 P3_OK
    v_cmp_eq_u32 vcc, -1, v{CM}
    s_cbranch_vccz P3_OK
    s_sleep {opt("p3s", 4)}
    s_branch P3_TRY
P3_OK:
    {'' if opt('fst', 0) else st(11)}
    s_setprio {opt('p3p', 0)}
    """)
        for n in range(25):
            k, t = divmod(n, 5)
            a(f"v_mfma_f32_16x16x32_bf16 {vr(ACC+4*t,4)}, {vr(BF+4*n,4)}, {vr(OFR+4*k,4)}, {vr(ACC+4*t,4) if k else 0}")
    a("s_cmp_lg_u32 s42, 0\ns_cbranch_scc1 P3_WR")
    lwait(a, BMM, CT, 1, 8, 2)
    a(f"{str() if opt('fst', 0) else st(12)}\nP3_WR:\nv_add_u32 v{CM}, s46, v{VA}\nv_mov_b32 v{CT}, s40\ns_nop 1")
    for j in range(5): a(f"ds_write_b128 v{CM}, {vr(ACC+4*j,4)} offset:{1024*j}")
    a("s_waitcnt lgkmcnt(0)")
    ladd(a, CT, BMT, 0)
    a(f"""
    s_add_u32 s44, s44, {8*20480}
    s_add_u32 s45, s45, {8*20480}
    s_add_u32 s46, s46, {8*5120}
    s_add_u32 s40, s40, 8
    s_add_u32 s42, s42, 1
    s_cmp_ge_u32 s42, 2
    s_cbranch_scc1 P3_END
    s_cmp_ge_u32 s16, 4
    s_cbranch_scc1 P3_TRY
    """)
    for k in range(10): a(f"v_lshlrev_b32 v{YG+2*k}, 16, v{YG+10+k}\nv_and_b32 v{YG+2*k+1}, 0xffff0000, v{YG+10+k}")
    for k in range(20): a(f"v_mul_f32 v{YG+k}, v{YG+k}, v{G2}")
    a(f"""
    v_sub_f32 v{G2}, 1.0, v{G2}
    s_branch P3_TRY
P3_END:
    {st(10)}
    s_cmp_ge_u32 s16, 4
    s_cbranch_scc1 {"L_DONE" if STAMP else "L_END"}
    s_setprio 3
    s_lshl_b32 s23, s16, 2
    s_add_u32 s23, s23, {LFB + 80}
    v_mov_b32 v{CT}, s23
    s_mul_i32 s23, s16, 20480
    s_add_u32 s23, s23, {WOL}
    v_add_u32 v{CM}, s23, v{VA}
    """)
    lwait(a, CT, BMM, 1, 4, 1)
    a(st(9))
    for j in range(5):
        for g in range(4): a(f"ds_read_b128 {vr(16*j+4*g,4)}, v{CM} offset:{5120*g+1024*j}")
    for j in range(5):
        a(f"s_waitcnt lgkmcnt({min(15, 16-4*j)})")
        for r in range(4): a(f"v_add_f32 v{16*j+r}, v{16*j+r}, v{16*j+4+r}\nv_add_f32 v{16*j+8+r}, v{16*j+8+r}, v{16*j+12+r}")
        for r in range(4): a(f"v_add_f32 v{16*j+r}, v{16*j+r}, v{16*j+8+r}")
        for r in range(4): a(f"v_fmac_f32 v{YG+4*j+r}, v{16*j+r}, v{G2}")
        a(f"v_cvt_pk_bf16_f32 v{84+2*j}, v{YG+4*j}, v{YG+4*j+1}\nv_cvt_pk_bf16_f32 v{84+2*j+1}, v{YG+4*j+2}, v{YG+4*j+3}")
        if j == 1: a(f"buffer_store_dwordx4 v[84:87], v{VY2}, s[36:39], 0 offen" + OSC)
        if j == 3: a(f"buffer_store_dwordx4 v[88:91], v{VY2}, s[36:39], 0 offen offset:16" + OSC)
    a(f"buffer_store_dwordx2 v[92:93], v{VY2}, s[36:39], 0 offen offset:32" + OSC)

DOC = """;
"""
def main():
    a = A()
    top = open("cdna_kernels/" + NAME + ".s.ref").read().split("; Override launch")[0]
    top += "; @launch grid=(256,1,1) block=(768,1,1) lds=163840\n"
    top += DOC
    a('.amdgcn_target "amdgcn-amd-amdhsa--gfx950"\n.text')
    d = gen(a)
    open(sys.argv[1], "w").write(top + a.text() + '.section .rodata,"a"\n.p2align 6\n' + d)
if __name__ == "__main__":
    main()
```

```python
import sys, math, struct

OPT = dict(x.split("=") for x in sys.argv[2:])
def opt(k, d): return int(OPT.get(k, d))
NAME = "gated_mix__spectral_fnet__softmax_full_mha__prompt"
HS = 163840
KV_OFF = 0
HG = HS + opt('pad', 512)
HQ = 81920 + opt('pad', 512)
Q_OFF = 32 * HG
FE_OFF = Q_OFF + 32 * HQ
FO_DELTA = 655360
X512_OFF = FE_OFF + 2 * FO_DELTA
TB_OFF = X512_OFF + 4096
Y_OFF = TB_OFF + 33 * 65536
ZP = 8704
G_OFF = Y_OFF + 85 * 2 * ZP
OF_OFF = G_OFF + 8192
FLG_OFF = OF_OFF + 2621440
WS_USED = FLG_OFF + 320 * 128
XB = 102400
L_Y = 256
QLDS = 61440
RB0, RSL = 11264, 36864
LFB = 158720
WOL = 5120
AK1, AK2, AV, BK1, BK2, BV, OA1, OA2, ONES, PA, FA = range(152, 163)
VA, VT, BMM, BMT, CM, CT = 163, 164, 165, 166, 160, 161
PXB = 107520
def p3_addr(l):
    return f"""v_lshlrev_b32 v{VA}, 4, v{l}
    v_and_b32 v2, 7, v{l}
    v_bfe_u32 v4, v{l}, 3, 1
    v_lshrrev_b32 v3, 4, v{l}
    v_lshlrev_b32 v{VT}, 8, v3
    v_lshl_add_u32 v{VT}, v2, 4, v{VT}
    v_lshl_add_u32 v{VT}, v4, 3, v{VT}
    v_bfe_u32 v2, v{l}, 2, 2
    v_and_b32 v5, 3, v{l}
    v_mul_u32_u24 v5, 40, v5
    v_mul_u32_u24 v4, 40, v3
    v_add3_u32 v4, v4, v2, 16
    v_mul_u32_u24 v4, 160, v4
    v_add_u32 v{BMT}, v4, v5
    v_lshrrev_b32 v4, 1, v3
    v_mul_u32_u24 v4, 20, v4
    v_and_b32 v3, 1, v3
    v_lshl_add_u32 v4, v3, 2, v4
    v_add_u32 v4, v4, v2
    v_mul_u32_u24 v4, 160, v4
    v_add_u32 v{BMM}, v4, v5"""

def f32bits(x): return struct.unpack("<I", struct.pack("<f", x))[0]
QSCALE = f32bits((20 ** -0.5) * math.log2(math.e))
STAMP = opt("stamp", 0)
STAMP_OFF = 1 << 25
NST = 16

class A:
    def __init__(self): self.l = []; self.n = 0
    def __call__(self, s):
        for line in s.split("\n"):
            t = line.strip()
            if not t: continue
            self.l.append(t if t.endswith(":") or t.startswith(".") else "    " + t)
    def uid(self): self.n += 1; return self.n
    def text(self): return "\n".join(self.l) + "\n"

def vr(a, n): return f"v[{a}:{a+n-1}]" if n > 1 else f"v{a}"
def srd(lo, base, size):
    return f"s_mov_b32 s{lo}, s{base}\ns_mov_b32 s{lo+1}, s{base+1}\ns_mov_b32 s{lo+2}, {size}\ns_mov_b32 s{lo+3}, 0x20000"
OSC = " sc1" if opt("outsc1", 0) else ""
P1ST = opt("p1st", 0)
def st(i, p1=False):
    if not STAMP: return ""
    if P1ST and not p1 and 0 < i < 15 and i not in (4, 5): return ""
    if P1ST and not p1 and i in (4, 5): i += 8
    if p1 and not P1ST: return ""
    return f"{'s_memrealtime' if STAMP in (1, 3, 4) else 's_memtime'} s[{64+2*i}:{65+2*i}]"
def fin(): return "s_branch L_DONE" if STAMP else "s_endpgm"

X_P, WD_P, WQKV_P, WO_P, GATE_P, OUT_P, DBG_P, WS_P = 4, 8, 48, 50, 52, 54, 56, 58

def poll(a, vaddr, vdat, mask, target, sreg=60):
    u = a.uid()
    a(f"""
    s_mov_b64 exec, {mask}
    s_mov_b32 s{sreg}, 0
L_POLL{u}:
    buffer_load_dword v{vdat}, v{vaddr}, s[28:31], 0 offen sc1
    s_waitcnt vmcnt(0)
    v_cmp_gt_u32 vcc, {target}, v{vdat}
    s_cbranch_vccz L_POLLD{u}
    {'s_sleep 1' if opt('psleep', 0) else ''}
    s_add_u32 s{sreg}, s{sreg}, 1
    s_cmp_lt_u32 s{sreg}, 0x40000
    s_cbranch_scc1 L_POLL{u}
L_POLLD{u}:
    s_mov_b64 exec, -1
    """)

def poll4(a, vaddr, vdat, mask, soff="0", sreg=60, slp=None):
    u = a.uid()
    a(f"""
    s_mov_b64 exec, {mask}
    s_mov_b32 s{sreg}, 0
    s_branch L_POLLE{u}
L_POLL{u}:
    s_sleep {slp or opt("ps4", 2)}
L_POLLE{u}:
    buffer_load_dwordx4 {vr(vdat,4)}, v{vaddr}, s[28:31], {soff} offen sc1
    s_add_u32 s{sreg}, s{sreg}, 1
    s_waitcnt vmcnt(0)
    v_min3_u32 v{vdat}, v{vdat}, v{vdat+1}, v{vdat+2}
    s_cmp_lt_u32 s{sreg}, 0x40000
    v_min_u32 v{vdat}, v{vdat}, v{vdat+3}
    s_cbranch_scc0 L_POLLD{u}
    v_cmp_eq_u32 vcc, 0, v{vdat}
    s_cbranch_vccnz L_POLL{u}
L_POLLD{u}:
    s_mov_b64 exec, -1
    """)

def gen(a):
    label = NAME + "_kernel"
    a(f".p2align 8\n.globl {label}\n.type {label},@function\n{label}:")
    a(f"""
    s_cmp_ge_u32 s2, 256
    s_cbranch_scc1 L_END
    {st(0) + chr(10) + 's_waitcnt lgkmcnt(0)' if opt("st0first", 0) else ''}
    s_load_dwordx2 s[4:5], s[0:1], 0
    s_load_dwordx8 s[48:55], s[0:1], 48
    s_load_dwordx4 s[8:11], s[0:1], 24
    s_load_dwordx4 s[56:59], s[0:1], 80
    """)
    if STAMP:
        a("\n".join(f"s_mov_b32 s{64+j}, 0" for j in range(2, 2 * NST)) + "\n" + ("" if opt("st0first", 0) else st(0)))
    a(f"""
    v_lshrrev_b32 v1, 6, v0
    v_and_b32 v0, 63, v0
    s_and_b32 s17, s2, 7
    v_readfirstlane_b32 s16, v1
    s_lshr_b32 s18, s2, 3
    s_and_b32 s19, s18, 7
    s_lshr_b32 s22, s18, 3
    s_and_b32 s21, s17, 1
    s_lshl_b32 s23, s19, 1
    s_add_u32 s21, s21, s23
    s_lshr_b32 s20, s17, 1
    s_cmp_ge_u32 s19, {opt("numl", 3)}
    s_cselect_b32 s12, 1, 0
    s_cmp_eq_u32 s22, 0
    s_cselect_b32 s12, 0, s12
    s_cmp_ge_u32 s16, 4
    s_cbranch_scc1 P1_NOTLOADER
    """)
    p1_loader(a)
    a(f"""
P1_NOTLOADER:
    s_lshl_b32 s63, s17, 2
    s_add_u32 s63, s63, s22
    s_mul_i32 s14, s63, {HG}
    s_sub_u32 s13, s16, 4
    s_lshl_b32 s23, s19, 3
    s_add_u32 s23, s23, s13
    s_mul_i32 s23, s23, 40960
    s_add_u32 s23, s23, {OF_OFF}
    s_lshl_b32 s6, s63, 9
    s_add_u32 s6, s6, s23
    s_lshl_b32 s7, s63, 7
    s_add_u32 s7, s7, s23
    s_add_u32 s7, s7, 16384
    s_lshl_b32 s15, s20, 2
    s_add_u32 s15, s15, s22
    s_lshl_b32 s15, s15, 4
    s_add_u32 s15, s15, s21
    s_lshl_b32 s15, s15, 5
    s_add_u32 s15, s15, s13
    s_lshl_b32 s15, s15, 2
    s_add_u32 s15, s15, {FLG_OFF}
    v_and_b32 v1, 31, v0
    v_lshrrev_b32 v2, 5, v0
    v_lshlrev_b32 v{AK1}, 4, v0
    v_lshrrev_b32 v3, 4, v1
    v_lshl_add_u32 v3, v3, 1, v2
    v_and_b32 v4, 15, v0
    v_lshl_add_u32 v3, v4, 2, v3
    v_lshlrev_b32 v{AK2}, 2, v3
    v_mul_u32_u24 v{AV}, 384, v2
    v_lshlrev_b32 v3, 6, v2
    v_cmp_gt_u32 vcc, 16, v1
    s_nop 1
    v_cndmask_b32 v{AV}, v3, v{AV}, vcc
    v_lshl_add_u32 v{AV}, v1, 4, v{AV}
    v_add_u32 v{BK1}, 15360, v{AK1}
    v_add_u32 v{BK2}, 15360, v{AK2}
    v_add_u32 v{BV}, 15360, v{AV}
    v_and_b32 v3, 27, v1
    v_cmp_eq_u32 vcc, 24, v3
    v_mov_b32 v3, 0x3f803f80
    v_bfe_u32 v{OA2}, v1, 3, 1
    v_cndmask_b32 v{ONES}, 0, v3, vcc
    v_mul_u32_u24 v{OA2}, 20480, v{OA2}
    v_and_b32 v3, 7, v1
    v_lshl_add_u32 v{OA2}, v3, 4, v{OA2}
    v_lshrrev_b32 v3, 4, v0
    v_lshl_add_u32 v{OA1}, v3, 7, v{OA2}
    s_lshl_b32 s23, s13, 2
    s_add_u32 s23, s23, {LFB}
    v_mov_b32 v{PA}, s23
    v_mov_b32 v{FA}, {LFB + 56}
    {p3_addr(0)}
    s_cmp_ge_u32 s16, 8
    s_cbranch_scc1 P1_EXTRA
    """)
    p1_compute(a)
    p1_extra(a)
    attention(a)
    helpers(a)
    a("L_DONE:")
    if STAMP == 4:
        i_, j_ = opt("ai", 0), opt("aj", 0)
        a(f"""s_waitcnt vmcnt(0)
        {st(NST-1)}
        s_waitcnt lgkmcnt(0)
        s_cmp_ge_u32 s16, {opt("aw", 4)}
        s_cbranch_scc1 L_END
        s_and_b32 s60, s2, {opt("am", 31)}
        s_cmp_lg_u32 s60, {opt("av", 5)}
        s_cbranch_scc1 L_END
        s_sub_u32 s60, s{64+2*j_}, s{64+2*i_}
        s_lshl_b32 s60, s60, 2
        s_min_u32 s60, s60, 100000
        {f's_mov_b32 s60, {opt("fix", 0)}' if opt("fix", 0) else ''}
L_AMP:
        s_memrealtime s[44:45]
        s_waitcnt lgkmcnt(0)
        s_sub_u32 s44, s44, s{64 if opt("fix", 0) else 64+2*(NST-1)}
        s_cmp_lt_u32 s44, s60
        s_cbranch_scc1 L_AMP
        """)
    elif STAMP == 3:
        r = f"s_waitcnt vmcnt(0)\n{st(NST-1)}\ns_mov_b64 exec, 1\n{srd(44, DBG_P, 256)}\ns_waitcnt lgkmcnt(0)\nv_mov_b32 v16, 0\n"
        r += "s_not_b32 s60, s64\nv_mov_b32 v0, s60\nbuffer_atomic_umax v0, v16, s[44:47], 0 offen offset:4 sc1\n"
        r += "s_cmp_eq_u32 s16, 0\ns_cbranch_scc1 L_D0\ns_cmp_eq_u32 s16, 4\ns_cbranch_scc0 L_END\n"
        for n, i in enumerate((2, 3, 4, 5, 7, 8, 9)): r += f"v_mov_b32 v{n+1}, s{64+2*i}\nbuffer_atomic_umax v{n+1}, v16, s[44:47], 0 offen offset:{8+4*n} sc1\n"
        r += "s_endpgm\nL_D0:\n"
        for n, i in enumerate((0, 1, 6, 8, 9, 10, 15)): r += f"v_mov_b32 v{n+1}, s{64+2*i}\nbuffer_atomic_umax v{n+1}, v16, s[44:47], 0 offen offset:{36+4*n} sc1\n"
        a(r)
    elif STAMP:
        r = f"s_waitcnt vmcnt(0)\n{st(NST-1)}\ns_mov_b64 exec, 1\ns_add_u32 s44, s{WS_P}, {STAMP_OFF}\ns_addc_u32 s45, s{WS_P+1}, 0\ns_mov_b32 s46, 262144\ns_mov_b32 s47, 0x20000\n"
        r += "s_lshl_b32 s60, s2, 4\ns_add_u32 s60, s60, s16\ns_lshl_b32 s60, s60, 6\ns_waitcnt lgkmcnt(0)\nv_mov_b32 v16, 0\n"
        if opt("xcc", 0): r += "s_getreg_b32 s66, hwreg(HW_REG_XCC_ID)\ns_add_u32 s66, s66, 100\n"
        for i in range(NST): r += f"v_mov_b32 v{i}, s{64+2*i}\n"
        for i in range(4): r += f"buffer_store_dwordx4 v[{4*i}:{4*i+3}], v16, s[44:47], s60 offen offset:{16*i}\n"
        a(r)
    a("L_END:\ns_endpgm\n.fill 256, 4, 0xbf810000\nL_CODE_END:")
    return f""".amdhsa_kernel {label}
  .amdhsa_next_free_vgpr 168
  .amdhsa_next_free_sgpr {100 if STAMP else 64}
  .amdhsa_accum_offset 168
  .amdhsa_group_segment_fixed_size 0
  .amdhsa_kernarg_size 96
  .amdhsa_user_sgpr_count 2
  .amdhsa_user_sgpr_kernarg_segment_ptr 1
  .amdhsa_system_sgpr_workgroup_id_x 1
.end_amdhsa_kernel
"""

def p1_loader(a):
    a(f"""
    s_setprio 3
    """)
    if opt("pf", 0):
        a(f"""
        v_lshlrev_b32 v20, 4, v0
        s_mul_i32 s23, s2, 10240
        s_and_b32 s24, s16, 1
        s_mul_i32 s24, s24, 5120
        s_add_u32 s23, s23, s24
        s_mul_i32 s25, s2, 3
        s_mov_b32 s31, 0x20000
        s_mov_b32 s35, 0x20000
        s_mov_b32 s34, {640*1280}
        s_waitcnt lgkmcnt(0)
        s_mov_b32 s30, {2048*1280}
        s_cmp_lt_u32 s16, 2
        s_cselect_b32 s28, s{X_P}, s{WQKV_P}
        s_cselect_b32 s29, s{X_P+1}, s{WQKV_P+1}
        s_cselect_b32 s30, s30, {640*3840}
        s_cselect_b32 s32, s8, s10
        s_cselect_b32 s33, s9, s11
        buffer_load_dwordx4 v[24:27], v20, s[28:31], s23 offen
        buffer_load_dwordx4 v[28:31], v20, s[28:31], s23 offen offset:1024
        buffer_load_dwordx4 v[32:35], v20, s[28:31], s23 offen offset:2048
        buffer_load_dwordx4 v[36:39], v20, s[28:31], s23 offen offset:3072
        s_add_u32 s23, s23, 4096
        buffer_load_dwordx4 v[40:43], v20, s[28:31], s23 offen
        s_lshr_b32 s24, s24, 11
        s_add_u32 s25, s25, s24
        s_mul_i32 s25, s25, 1280
        s_mov_b32 exec_hi, 0xff
        buffer_load_dwordx4 v[44:47], v20, s[32:35], s25 offen
        s_bitcmp1_b32 s16, 0
        s_cbranch_scc1 P1_PF1
        buffer_load_dwordx4 v[48:51], v20, s[32:35], s25 offen offset:1280
P1_PF1:
        s_mov_b32 exec_hi, -1
        """)
    a(f"""
    v_lshrrev_b32 v2, 3, v0
    v_and_b32 v3, 7, v0
    v_lshrrev_b32 v4, 4, v0
    v_xor_b32 v3, v3, v4
    v_lshlrev_b32 v3, 4, v3
    v_xor_b32 v4, 64, v3
    s_lshl_b32 s23, s21, 5
    s_lshr_b32 s24, s16, 1
    s_lshl_b32 s24, s24, 4
    s_add_u32 s23, s23, s24
    v_add_u32 v9, s23, v2
    s_bitcmp1_b32 s16, 0
    s_cselect_b32 s23, -1, 1
    s_cselect_b32 s24, 0x400, 0
    s_cselect_b32 s25, -8, 8
    v_mul_lo_u32 v10, v9, s23
    s_sub_u32 s27, 0x800, s24
    v_add_u32 v5, s24, v10
    v_sub_u32 v7, s27, v10
    v_add_u32 v6, s25, v5
    v_subrev_u32 v8, s25, v7
    v_cmp_eq_u32 vcc, 0, v9
    s_add_u32 s24, s24, 0x200
    v_mov_b32 v9, s24
    s_cmp_lg_u32 s22, 2
    v_cndmask_b32 v7, v7, v9, vcc
    s_cbranch_scc1 P1_LD_NV
    v_swap_b32 v6, v7
P1_LD_NV:
    s_lshl_b32 s26, s22, 2
    s_add_u32 s26, s26, s20
    s_and_b32 s27, s20, 1
    s_movk_i32 s25, 3840
    s_cmp_eq_u32 s22, 3
    s_cselect_b32 s25, 1280, s25
    s_cselect_b32 s26, s27, s26
    s_mul_i32 s26, s26, 320
    s_movk_i32 s27, 1280
    v_mad_u32_u24 v10, v5, s27, v3
    v_mad_u32_u24 v11, v6, s27, v4
    v_mad_u32_u24 v12, v7, s27, v3
    v_mad_u32_u24 v13, v8, s27, v4
    s_lshl_b32 s27, s16, 4
    s_mul_i32 s27, s27, s25
    s_add_u32 s26, s26, s27
    s_sub_u32 s27, s25, 320
    """)
    for i in range(5):
        a(f"""
        v_add_u32 v5, {64*i}, v0
        v_mul_u32_u24 v6, 3277, v5
        v_lshrrev_b32 v6, 16, v6
        v_lshrrev_b32 v7, 2, v6
        v_and_b32 v7, 2, v7
        v_xor_b32 v5, v5, v7
        v_lshl_add_u32 v5, v5, 4, s26
        v_mad_u32_u24 v{14+i}, v6, s27, v5
        """)
    sg = opt("stag1", 7)
    if sg == 1:
        a("s_lshl_b32 s36, s19, 3\ns_lshl_b32 s37, s22, 4\ns_add_u32 s36, s36, s37\ns_add_u32 s36, s36, s17\ns_and_b32 s36, s36, 63\ns_mul_i32 s36, s36, 10\ns_lshr_b32 s36, s36, 6")
    elif sg == 2:
        a("s_add_u32 s36, s19, s22\ns_lshl_b32 s36, s36, 4\ns_add_u32 s36, s36, s17\ns_add_u32 s36, s36, s17\ns_and_b32 s36, s36, 63\ns_mul_i32 s36, s36, 10\ns_lshr_b32 s36, s36, 6")
    elif sg == 3:
        a("s_add_u32 s36, s19, s22\ns_lshl_b32 s36, s36, 5\ns_lshl_b32 s37, s17, 2\ns_add_u32 s36, s36, s37\ns_and_b32 s36, s36, 63\ns_mul_i32 s36, s36, 10\ns_lshr_b32 s36, s36, 6")
    elif sg >= 10:
        nc = sg - 9
        Gn = 5 - nc
        rot = [2 * (nc + k % Gn) for k in range(2 * Gn - 1)]
        rv = sum(v << (4 * k) for k, v in enumerate(rot))
        com = sum((2 * k) << (4 * k) for k in range(nc))
        a(f"""
        s_lshr_b32 s36, s17, 1
        s_xor_b32 s36, s36, s17
        s_and_b32 s36, s36, 1
        s_add_u32 s37, s22, s19
        s_lshr_b32 s46, s17, 2
        s_lshl_b32 s46, s46, {opt("xsh", 1)}
        s_add_u32 s37, s37, s46
        s_mul_i32 s46, s37, {256 // Gn + 1}
        s_lshr_b32 s46, s46, 8
        s_mul_i32 s46, s46, {Gn}
        s_sub_u32 s37, s37, s46
        s_lshl_b32 s37, s37, 2
        s_lshr_b32 s46, {rv:#x}, s37
        s_and_b32 s46, s46, {(1 << (4 * Gn)) - 1:#x}
        s_lshl_b32 s46, s46, {4 * nc}
        s_or_b32 s46, s46, {0x53100000 | com:#x}
        s_mov_b32 s47, 0x97
        s_mul_i32 s37, s36, 0x11111111
        s_xor_b32 s46, s46, s37
        s_xor_b32 s47, s47, s37
        s_and_b32 s36, s46, 15
        """)
    elif sg >= 5:
        tsh = {5: 0, 6: 1, 7: 0, 8: 0, 9: 0}[sg]
        a(f"""
        s_lshr_b32 s36, s17, 1
        s_xor_b32 s36, s36, s17
        s_and_b32 s36, s36, 1
        {'s_min_u32 s37, s22, 2' if sg == 9 else f's_lshr_b32 s37, s22, {tsh}'}
        s_add_u32 s37, s37, s19
        s_lshr_b32 s46, s17, 2
        s_lshl_b32 s46, s46, 1
        s_add_u32 s37, s37, s46
        s_mul_i32 s46, s37, 52
        s_lshr_b32 s46, s46, 8
        s_mul_i32 s46, s46, 5
        s_sub_u32 s37, s37, s46
        s_lshl_b32 s37, s37, 2
        s_mov_b32 s46, 0x42086420
        s_mov_b32 s47, 0x6
        s_lshr_b64 s[46:47], s[46:47], s37
        s_and_b32 s46, s46, 0xfffff
        {'s_or_b32 s47, s46, 0x11111' + chr(10) + 's_lshl_b32 s37, s47, 20' + chr(10) + 's_or_b32 s46, s46, s37' + chr(10) + 's_lshr_b32 s47, s47, 12' if sg == 8 else 's_or_b32 s46, s46, 0x53100000' + chr(10) + 's_mov_b32 s47, 0x97'}
        s_mul_i32 s37, s36, 0x11111111
        s_xor_b32 s46, s46, s37
        s_xor_b32 s47, s47, s37
        """)
        if sg == 7:
            a("s_lshr_b32 s37, s47, 4\ns_and_b32 s37, s37, 15\ns_lshl_b64 s[46:47], s[46:47], 4\ns_or_b32 s46, s46, s37")
        a("s_and_b32 s36, s46, 15")
    else:
        a("s_mov_b32 s36, 0")
    a(f"""
    s_lshl_b32 s38, s16, 12
    s_add_u32 s38, s38, {RB0}
    s_mul_i32 s39, s16, 5120
    s_add_u32 s39, s39, {RB0 + 16384}
    s_mov_b32 s40, 0
    s_mul_i32 s34, s25, 640
    s_lshl_b32 s25, s25, 6
    s_mov_b32 s35, 0x20000
    s_waitcnt lgkmcnt(0)
    {srd(28, X_P, 2048*1280)}
    s_cmp_lt_u32 s20, 2
    s_cselect_b32 s32, s8, s10
    s_cselect_b32 s33, s9, s11
    s_cmp_eq_u32 s22, 3
    s_cselect_b32 s32, s32, s{WQKV_P}
    s_cselect_b32 s33, s33, s{WQKV_P+1}
    {st(1)}
    """)
    if opt("dftdelay", 0):
        a(f"""s_cmp_lg_u32 s22, 3
        s_cbranch_scc1 P1_LD_LOOP
        s_memrealtime s[42:43]
        s_waitcnt lgkmcnt(0)
        s_add_u32 s42, s42, {opt("dftdelay", 0)}
P1_DLY:
        s_memrealtime s[44:45]
        s_waitcnt lgkmcnt(0)
        s_cmp_lt_u32 s44, s42
        s_cbranch_scc1 P1_DLY
        """)
    a(f"""
P1_LD_LOOP:
    s_lshl_b32 s41, s36, 7
    s_mul_i32 s42, s36, s25
    s_add_u32 s43, s40, 2
    s_and_b32 s43, s43, 3
    s_mul_i32 s43, s43, {RSL}
    s_add_u32 s44, s43, s38
    s_add_u32 s45, s43, s39
    """)
    for i in range(4):
        a(f"s_add_u32 m0, s44, {1024*i}\ns_nop 0\nbuffer_load_dwordx4 v{10+i}, s[28:31], s41 offen lds")
    for i in range(5):
        a(f"s_add_u32 m0, s45, {1024*i}\ns_nop 0\nbuffer_load_dwordx4 v{14+i}, s[32:35], s42 offen lds")
    if opt("noload", 0): a("s_cmp_ge_u32 s40, 3\ns_cselect_b32 s30, 0, s30\ns_cselect_b32 s34, 0, s34")
    a(f"""
    {'s_lshr_b64 s[46:47], s[46:47], 4' + chr(10) + 's_and_b32 s36, s46, 15' if sg >= 5 else 's_add_u32 s36, s36, 1' + chr(10) + 's_cmp_eq_u32 s36, 10' + chr(10) + 's_cselect_b32 s36, 0, s36'}
    s_add_u32 s40, s40, 1
    s_cmp_eq_u32 s40, 1
    s_cbranch_scc1 P1_LD_LOOP
    s_waitcnt vmcnt(9)
    s_barrier
    s_cmp_lt_u32 s40, 10
    s_cbranch_scc1 P1_LD_LOOP
    s_waitcnt vmcnt(0)
    s_barrier
    s_branch HELPER
    """)

def p1_compute(a):
    X = 80; W = [96, 116]; XA = 136; WA = 137; CX = 142; CW = 144; PC = 149; L = 150; TT = 96
    def acc(b, T): return 20 * b + 4 * T
    a(f"""
    s_sub_u32 s61, s16, 4
    s_and_b32 s36, s61, 1
    s_lshr_b32 s37, s61, 1
    v_mov_b32 v{L}, v0
    v_and_b32 v1, 15, v0
    v_lshrrev_b32 v2, 4, v0
    v_lshrrev_b32 v3, 1, v1
    v_xor_b32 v3, v3, v2
    v_lshlrev_b32 v3, 4, v3
    v_lshl_add_u32 v3, v1, 7, v3
    s_lshl_b32 s23, s36, 13
    s_add_u32 s23, s23, {RB0}
    v_add_u32 v{XA}, s23, v3
    v_bfe_u32 v3, v0, 2, 2
    v_lshl_add_u32 v3, v2, 3, v3
    v_mul_u32_u24 v3, 320, v3
    v_add_u32 v3, {RB0 + 16384}, v3
    v_and_b32 v4, 16, v0
    v_lshlrev_b32 v4, 1, v4
    v_and_b32 v5, 3, v0
    s_mul_i32 s23, s37, 160
    v_lshl_add_u32 v6, v5, 3, s23
    """)
    for T in range(4):
        a(f"v_xor_b32 v7, v6, v4\nv_add_u32 v{WA+T}, v7, v3\nv_add_u32 v6, 40, v6")
    a(f"""
    v_mul_u32_u24 v6, 40, v5
    v_add3_u32 v6, v6, s23, 32
    v_xor_b32 v7, v6, v4
    v_add_u32 v{WA+4}, v7, v3
    v_mov_b32 v{PC}, 0xbf803f80
    s_lshl_b32 s26, s22, 2
    s_add_u32 s26, s26, s20
    s_lshl_b32 s26, s26, 1
    s_add_u32 s26, s26, s37
    s_cmp_eq_u32 s26, 28
    s_cselect_b32 s24, 0x10001, 0
    s_mov_b32 s25, s24
    s_cmp_eq_u32 s22, 3
    s_cselect_b32 s43, 10, 8
    s_mov_b32 s40, 0
    s_mov_b32 s42, {2 * RSL}
    """)
    for r in range(96): a(f"v_mov_b32 v{r}, 0")
    for r in range(20): a(f"v_mov_b32 v{W[1]+r}, 0")
    a(f"v_add_u32 v{CX}, s42, v{XA}")
    for T in range(5): a(f"v_add_u32 v{CW+T}, s42, v{WA+T}")
    a(f"s_waitcnt lgkmcnt(0)\n{srd(28, WS_P, WS_USED)}")
    a("s_cmp_ge_u32 s22, 2\ns_cbranch_scc1 P1_PRE_V")
    def mf(b, T, x, w, qk):
        d = vr(acc(b, T), 4)
        return f"v_mfma_f32_16x16x32_bf16 {d}, {vr(w,4)}, {vr(x,4)}, {d}" if qk else f"v_mfma_f32_16x16x32_bf16 {d}, {vr(x,4)}, {vr(w,4)}, {d}"
    def rdw(d, T, step): return [f"ds_read_b64_tr_b16 {vr(d+2*j,2)}, v{CW+T} offset:{(step // 2) * RSL + (step % 2) * 10240 + 1280 * j}" for j in range(2)]
    def rdx(d, b, step): return f"ds_read_b128 {vr(d,4)}, v{CX + step % 2} offset:{(step // 2) * RSL + 2048 * b}"
    TO = (1, 2, 3, 4, 0)
    def group(step, qk, reads=True):
        cur = W[1 - step]; nxt = W[step]
        rq = []
        for T in TO: rq += rdw(nxt + 4 * T, T, step)
        fill = []
        if step == 1:
            fill = ["s_add_u32 s40, s40, 1", "s_add_u32 s41, s40, 2", "s_and_b32 s41, s41, 3", f"s_mul_i32 s42, s41, {RSL}", f"v_add_u32 v{CX}, s42, v{XA}"] + [f"v_add_u32 v{CW+T}, s42, v{WA+T}" for T in range(5)]
        issued = 0
        for b in range(4):
            if reads:
                allow = [2, 15, issued + 1, issued][b]
                if b != 1: a(f"s_waitcnt lgkmcnt({min(15, allow)})")
            elif b == 0: a("s_waitcnt lgkmcnt(0)")
            for n, T in enumerate(TO):
                a(mf(b, T, X + 4 * b, cur + 4 * T, qk))
                if b == 0 and n < 2 and not qk:
                    for j in range(2): a(f"v_cndmask_b32 v{cur+2*n+j}, v{cur+2*n+j}, v{PC}, s[24:25]")
                if not reads: continue
                if step == 0 and b == 0:
                    if n == 0: a(f"v_xor_b32 v{CX+1}, 64, v{CX}")
                    if n == 1: a("s_barrier")
                    if n < 2: continue
                if n == 4: a(rdx(X + 4 * b, b, step)); issued += 1
                elif rq: a(rq.pop(0)); issued += 1
                elif fill:
                    a(fill.pop(0))
                    if fill: a(fill.pop(0))
        assert not reads or (not rq and not fill), (rq, fill)

    def tail(qk, epi):
        seq = [(b, T, ("x0", b), ("w0", T)) for b in range(4) for T in TO]
        marks = {}
        win = opt("win", 2)
        for step in range(4 - win):
            for b in range(4):
                for T in TO: seq.append((b, T, ("x", 0, step, b), ("w", step, T)))
        for T in range(5):
            for jj in range(2):
                for step in range(4 - win, 4):
                    for b in (2 * jj, 2 * jj + 1): seq.append((b, T, ("x", 0, step, b), ("w", step, T)))
                marks[len(seq) - 1] = (T, jj)
        last = {}
        for n, (_, _, x, w) in enumerate(seq): last[x] = n; last[w] = n
        loc = {("x0", b): X + 4 * b for b in range(4)}; loc.update({("w0", T): W[1] + 4 * T for T in range(5)})
        free = [W[0] + 4 * k for k in range(5)] + [XA]
        order = []
        for _, _, x, w in seq:
            for f in (w, x):
                if f not in loc and f not in order: order.append(f)
        done_at = {}; nrd = 0; waited = 0; pend = []; fill = []
        cnt = [0]; prev = [0]
        def em(t): a(t); cnt[0] += 1
        a(f"v_xor_b32 v{CX+1}, 64, v{CX}\ns_waitcnt lgkmcnt(0)\ns_barrier")
        bar2 = [True]
        def take():
            f = order.pop(0); loc[f] = free.pop(0)
            if bar2 and (f[1] if f[0] == "w" else f[2]) >= 2: em("s_barrier"); bar2.pop()
            p_ = rdw(loc[f], f[2], f[1]) if f[0] == "w" else [rdx(loc[f], f[3], f[2])]
            done_at[f] = nrd + len(p_)
            return p_
        def gap():
            t, at, after = fill[0]
            return max(at - cnt[0], prev[0] + after - cnt[0], 0)
        def put():
            em(fill.pop(0)[0]); prev[0] = cnt[0]
        for n, (b, T, x, w) in enumerate(seq):
            while any(f not in loc or (f in done_at and done_at[f] > nrd) for f in (x, w)):
                if not pend: pend = take()
                em(pend.pop(0)); nrd += 1
            need = max(done_at.get(x, 0), done_at.get(w, 0))
            if need > waited:
                waited = max(need, nrd - opt("tw", 6)); em(f"s_waitcnt lgkmcnt({nrd - waited})")
            em(mf(b, T, loc[x], loc[w], qk))
            if n in marks: fill += [(t, cnt[0] + 8, after) for t, after in epi(*marks[n])]
            for f in (x, w):
                if last[f] == n: free.append(loc[f])
            if not pend and order and free: pend = take()
            if pend: em(pend.pop(0)); nrd += 1
            for _ in range(2):
                if fill and gap() == 0: put()
        a(st(3))
        while fill:
            g_ = gap()
            if g_: a(f"s_nop {g_ - 1}"); cnt[0] += g_
            put()

    EA, EB = 167, 151
    def cv(d, r): return [f"v_cvt_pk_bf16_f32 v{d}, v{r}, v{r+1}", f"v_cvt_pk_bf16_f32 v{d+1}, v{r+2}, v{r+3}"]
    def epi_qk(ph, jj=0):
        if ph < 0:
            return f"""s_mov_b32 s35, {HG}
            s_movk_i32 s38, 2560
            s_cmp_eq_u32 s22, 0
            s_cselect_b32 s35, {HQ}, s35
            s_cselect_b32 s27, {Q_OFF}, {KV_OFF}
            s_cselect_b32 s38, 1280, s38
            s_lshl_b32 s26, s20, 1
            s_add_u32 s26, s26, s37
            s_lshl_b32 s26, s26, 2
            s_mul_i32 s26, s26, s35
            s_add_u32 s26, s26, s27
            s_lshl_b32 s23, s21, 1
            s_add_u32 s23, s23, s36
            s_lshl_b32 s23, s23, 1
            s_mul_i32 s23, s23, s38
            s_add_u32 s26, s26, s23
            s_add_u32 s27, s26, s38
            v_lshrrev_b32 v{EA}, 4, v{L}
            v_mul_lo_u32 v{EA}, v{EA}, s35
            v_and_b32 v{TT}, 15, v{L}
            v_lshl_add_u32 v{EA}, v{TT}, 4, v{EA}
            v_lshlrev_b32 v{EB}, 4, v{L}
            s_add_u32 s44, s26, s35
            s_add_u32 s45, s27, s35
            s_add_u32 s46, s44, s35
            s_add_u32 s47, s45, s35
            s_add_u32 s32, s46, s35
            s_add_u32 s33, s47, s35""".split("\n")
        T = ph
        r0, r1 = acc(2 * jj, T), acc(2 * jj + 1, T)
        o = [(t, 0) for t in cv(r0, r0) + cv(r0 + 2, r1)]
        if T < 4:
            o += [(f"v_permlane16_swap_b32 v{r0}, v{r0+2}", 1), (f"v_permlane16_swap_b32 v{r0+1}, v{r0+3}", 0)]
            o.append((f"buffer_store_dwordx4 {vr(r0,4)}, v{EB}, s[28:31], s{(26, 44, 46, 32)[T] + jj} offen sc1", 0))
        else:
            o.append((f"buffer_store_dwordx4 {vr(r0,4)}, v{EA}, s[28:31], s{26 + jj} offen offset:1024 sc1", 0))
        return o
    def epi_v(ph, jj=0):
        if ph < 0:
            return f"""s_lshl_b32 s26, s20, 1
            s_add_u32 s26, s26, s37
            s_mul_i32 s26, s26, {4*HG}
            s_lshl_b32 s23, s21, 1
            s_add_u32 s23, s23, s36
            s_mul_i32 s23, s23, 5120
            s_add_u32 s26, s26, s23
            s_add_u32 s26, s26, {KV_OFF + 1280}
            s_add_u32 s44, s26, {HG}
            s_add_u32 s45, s26, {2*HG}
            s_add_u32 s46, s26, {3*HG}
            s_mov_b32 s35, {HG}
            v_lshrrev_b32 v{EA}, 5, v{L}
            v_mul_u32_u24 v{EA}, 640, v{EA}
            v_bfe_u32 v{TT}, v{L}, 4, 1
            v_lshl_add_u32 v{EB}, v{TT}, 6, v{EA}
            v_mul_u32_u24 v{TT}, 384, v{TT}
            v_add_u32 v{EA}, v{EA}, v{TT}
            v_and_b32 v{TT}, 15, v{L}
            v_lshl_add_u32 v{EA}, v{TT}, 4, v{EA}
            v_and_b32 v{TT}, 3, v{L}
            v_lshl_add_u32 v{EB}, v{TT}, 4, v{EB}
            v_bfe_u32 v{TT}, v{L}, 2, 2
            v_mul_lo_u32 v{TT}, v{TT}, s35
            v_add_u32 v{EB}, v{EB}, v{TT}""".split("\n")
        T = ph
        r0, r1 = acc(2 * jj, T), acc(2 * jj + 1, T)
        o = [(t, 0) for t in cv(r0, r0) + cv(r0 + 2, r1)]
        if T < 4: o.append((f"buffer_store_dwordx4 {vr(r0,4)}, v{EA}, s[28:31], s{(26, 44, 45, 46)[T]} offen offset:{2560 * jj} sc1", 0))
        else: o.append((f"buffer_store_dwordx4 {vr(r0,4)}, v{EB}, s[28:31], s26 offen offset:{2560 * jj + 256} sc1", 0))
        return o

    for qk, lab in ((True, "QK"), (False, "V")):
        a(f"P1_PRE_{lab}:")
        for f in (epi_qk if qk else epi_v)(-1): a(f)
        a(f"P1_LOOP_{lab}:")
        group(0, qk)
        if STAMP: a(f"s_cmp_lg_u32 s40, 0\ns_cbranch_scc1 P1_ST_{lab}\n{st(2)}\nP1_ST_{lab}:\ns_cmp_lg_u32 s40, 5\ns_cbranch_scc1 P1_SU_{lab}\n{st(1)}\nP1_SU_{lab}:")
        group(1, qk)
        a(f"s_cmp_lt_u32 s40, s43\ns_cbranch_scc1 P1_LOOP_{lab}")
        if not qk: a("s_cmp_eq_u32 s22, 3\ns_cbranch_scc1 P1_EPI_DFT")
        a("s_cmp_eq_u32 s12, 1\ns_cselect_b32 s30, 0, s30")
        tail(qk, epi_qk if qk else epi_v)
        a(f"s_cmp_eq_u32 s12, 0\ns_cbranch_scc1 P1_DONE\ns_mov_b32 s30, {WS_USED}\nv_mov_b32 v88, {LFB + 56}\nv_mov_b32 v89, 1")
        ladd(a, 88, 89, 0)
        a("s_setprio 3\ns_barrier")
        for T in range(5):
            for jj in range(2): a((epi_qk if qk else epi_v)(T, jj)[-1][0])
        a("s_branch P1_DONE")
    a("P1_EPI_DFT:")
    group(0, False, reads=False)
    TAU, TAU0, E0 = 80, 81, 140
    a(f"""
    {st(3)}
    s_cmp_lt_u32 s20, 2
    s_cselect_b32 s38, 1.0, -1.0
    v_mov_b32 v{TAU}, s38
    v_cndmask_b32 v{TAU0}, v{TAU}, 1.0, s[24:25]
    s_lshl_b32 s26, s20, 1
    s_add_u32 s26, s26, s37
    s_mul_i32 s26, s26, 80
    v_and_b32 v88, 15, v{L}
    v_add_u32 v{E0}, s26, v88
    v_add_u32 v{E0+1}, 20, v{E0}
    v_add_u32 v{E0+2}, 40, v{E0}
    v_add_u32 v{E0+3}, 60, v{E0}
    v_and_b32 v89, 12, v{L}
    v_lshl_add_u32 v{E0+4}, v89, 2, v{E0}
    v_add_u32 v{E0+4}, 16, v{E0+4}
    s_lshl_b32 s23, s21, 1
    s_add_u32 s23, s23, s36
    s_cmp_lg_u32 s23, 0
    s_cbranch_scc1 P1_EPI_DFT2
    s_mov_b64 exec, 0xffff
    s_mov_b32 s27, {X512_OFF}
    """)
    for T in range(5):
        a(f"v_fma_f32 v{96+T}, v{acc(3,T)}, v{TAU0 if T == 0 else TAU}, v{acc(1,T)}")
        a(f"v_lshlrev_b32 v{104+T}, 2, v{E0+T}\nv_mov_b32 v{acc(1,T)}, 0\nv_mov_b32 v{acc(3,T)}, 0")
        a(f"buffer_store_dword v{96+T}, v{104+T}, s[28:31], s27 offen sc1")
    a(f"""
    s_mov_b64 exec, -1
P1_EPI_DFT2:
    s_lshl_b32 s26, s23, 9
    s_add_u32 s26, s26, {FE_OFF}
    s_mov_b32 s27, {FO_DELTA}
    v_bfe_u32 v88, v{L}, 4, 1
    v_mul_lo_u32 v88, v88, s27
    v_lshrrev_b32 v89, 5, v{L}
    v_lshl_add_u32 v88, v89, 8, v88
    """)
    for T in range(5):
        tau = TAU0 if T == 0 else TAU
        a0, a1, a2, a3 = (acc(b, T) for b in range(4))
        for q in range(4):
            a(f"v_fma_f32 v{a0+q}, v{a1+q}, v{tau}, v{a0+q}\nv_fma_f32 v{a3+q}, v{a2+q}, v{tau}, v{a3+q}")
        for q in range(4):
            a(f"v_add_f32 v{a1+q}, v{a0+q}, v{a3+q}\nv_sub_f32 v{a2+q}, v{a0+q}, v{a3+q}")
        a0 = 120 + 4 * T
        for f in cv(a0, a1) + cv(a0 + 2, a2): a(f)
        a(f"""
        v_lshrrev_b32 v89, 4, v{E0+T}
        v_lshl_add_u32 v89, v89, 14, v88
        v_and_b32 v{E0+T}, 15, v{E0+T}
        v_lshl_add_u32 v{E0+T}, v{E0+T}, 4, v89
        v_permlane16_swap_b32 v{a0}, v{a0+2}
        v_permlane16_swap_b32 v{a0+1}, v{a0+3}
        """)
    a(f"v_mov_b32 v88, {LFB + 56}\nv_mov_b32 v89, 1\ns_mov_b32 s12, {opt('dnu', 1)}")
    ladd(a, 88, 89, 0)
    if opt("dnu", 1): a("s_setprio 3\ns_barrier")
    for T in range(5): a(f"buffer_store_dwordx4 {vr(120+4*T,4)}, v{E0+T}, s[28:31], s26 offen sc1")
    a(f"""
P1_DONE:
    {st(14)}
    s_mov_b32 s34, 1
    s_branch ATT
    """)

def p1_extra(a):
    T0 = 40
    a(f"""
P1_EXTRA:
    s_sub_u32 s61, s16, 8
    """)
    if opt("cwarm", 1):
        a(f"""
        s_cmp_lg_u32 s16, 10
        s_cbranch_scc1 P1_NOCW
        s_lshl_b32 s23, s18, 10
        s_cmp_ge_u32 s23, L_CODE_END - {NAME}_kernel - 1023
        s_cbranch_scc1 P1_NOCW
        s_getpc_b64 s[44:45]
L_PC:
        s_sub_u32 s44, s44, L_PC - {NAME}_kernel
        s_subb_u32 s45, s45, 0
        v_lshl_add_u32 v40, v0, 4, s23
        global_load_dwordx4 v[44:47], v40, s[44:45]
P1_NOCW:
        """)
    a(f"""
    v_lshrrev_b32 v37, 4, v0
    v_and_b32 v38, 15, v0
    v_lshlrev_b32 v39, 4, v0
    v_mov_b32 v36, v0
    s_waitcnt lgkmcnt(0)
    {srd(28, WS_P, WS_USED)}
    {srd(32, DBG_P, 256)}
    s_cmp_lg_u32 s61, 0
    s_cbranch_scc1 P1_EX_A
    v_mov_b32 v1, 0
    v_lshlrev_b32 v2, 2, v0
    v_add_u32 v2, {LFB}, v2
    ds_write_b32 v2, v1
    s_waitcnt lgkmcnt(0)
    s_cmp_lt_u32 s2, 248
    s_cbranch_scc1 P1_EX_WAITRDY
    v_mov_b32 v4, 0
    v_mov_b32 v5, 0
    v_mov_b32 v6, 0
    v_mov_b32 v7, 0
    s_lshl_b32 s23, s17, 12
    s_add_u32 s23, s23, {FLG_OFF}
    buffer_store_dwordx4 v[4:7], v39, s[28:31], s23 offen sc1
    buffer_store_dwordx4 v[4:7], v39, s[28:31], s23 offen offset:1024 sc1
    buffer_store_dwordx4 v[4:7], v39, s[28:31], s23 offen offset:2048 sc1
    buffer_store_dwordx4 v[4:7], v39, s[28:31], s23 offen offset:3072 sc1
    s_lshl_b32 s23, s17, 7
    s_add_u32 s23, s23, {FLG_OFF + 32768}
    s_mov_b64 exec, 0xff
    buffer_store_dwordx4 v[4:7], v39, s[28:31], s23 offen sc1
    s_mov_b64 exec, -1
P1_EX_WAITRDY:
P1_EX_A:
    s_lshl_b32 s23, s2, 2
    s_add_u32 s23, s23, s61
    s_mov_b32 s40, 0
P1_TBL:
    s_lshr_b32 s24, s23, 5
    s_and_b32 s25, s23, 30
    s_and_b32 s26, s24, 1
    s_lshr_b32 s27, s24, 1
    s_lshl_b32 s27, s27, 6
    s_add_u32 s27, s27, s26
    s_and_b32 s26, s23, 1
    s_lshl_b32 s26, s26, 5
    s_add_u32 s27, s27, s26
    v_lshl_add_u32 v{T0}, v38, 1, s27
    s_lshl_b32 s25, s25, 4
    v_lshl_add_u32 v{T0+1}, v37, 3, s25
    v_mul_u32_u24 v{T0+1}, v{T0}, v{T0+1}
    v_and_b32 v{T0+1}, 0x7ff, v{T0+1}
    v_cvt_f32_u32 v{T0}, v{T0}
    v_cvt_f32_u32 v{T0+1}, v{T0+1}
    v_mul_f32 v{T0}, 0x3a000000, v{T0}
    v_mul_f32 v0, 0x3a000000, v{T0+1}
    """)
    for u in range(1, 8): a(f"v_add_f32 v{u}, v{u-1}, v{T0}")
    for u in range(1, 8): a(f"v_fract_f32 v{u}, v{u}")
    for u in range(8): a(f"v_cos_f32 v{8+u}, v{u}")
    for u in range(8): a(f"v_sin_f32 v{16+u}, v{u}")
    for j in range(4): a(f"v_cvt_pk_bf16_f32 v{24+j}, v{8+2*j}, v{9+2*j}")
    for j in range(4): a(f"v_cvt_pk_bf16_f32 v{28+j}, v{16+2*j}, v{17+2*j}")
    NB0 = opt("tblbar", 2)
    a(f"""
    s_cmp_lg_u32 s40, 0
    s_cbranch_scc1 P1_TBL_ST
    s_barrier
    {st(1, True)}
    s_cmp_lg_u32 s61, 0
    s_cbranch_scc1 P1_EX_NR
    s_cmp_lt_u32 s2, 248
    s_cbranch_scc1 P1_EX_NR
    v_mov_b32 v32, 1
    v_mov_b32 v33, 0
    s_lshl_b32 s24, s17, 2
    s_waitcnt vmcnt(0)
    s_mov_b64 exec, 1
    buffer_store_dword v32, v33, s[32:35], s24 offen sc1
    s_mov_b64 exec, -1
P1_EX_NR:
    """ + "".join(f"s_barrier\n{st(1 + b_, True)}\n" for b_ in range(1, NB0)) + f"""
    s_mov_b32 s40, 1
P1_TBL_ST:
    s_lshl_b32 s24, s23, 11
    s_add_u32 s24, s24, {TB_OFF}
    buffer_store_dwordx4 v[24:27], v39, s[28:31], s24 offen sc1
    buffer_store_dwordx4 v[28:31], v39, s[28:31], s24 offen offset:1024 sc1
    s_add_u32 s23, s23, 1024
    s_cmp_lt_u32 s23, 1056
    s_cbranch_scc1 P1_TBL
    """)
    nb = NB0
    assert nb <= 6
    a("".join(f"s_barrier\n{st(1 + b_, True)}\n" for b_ in range(nb, 6)))
    u = a.uid()
    a(f"""
    v_and_b32 v1, 7, v36
    v_lshlrev_b32 v1, 2, v1
    v_mov_b32 v2, 1
    s_mov_b32 s60, 0
    s_cmp_lg_u32 s61, 0
    s_cbranch_scc1 P1_EX_C
    buffer_load_dword v2, v1, s[32:35], 0 offen sc1
P1_EX_C:
    s_barrier
    {st(7, True)}
    s_barrier
    {st(8, True)}
L_RDY{u}:
    s_waitcnt vmcnt(0)
    v_cmp_eq_u32 vcc, 0, v2
    s_cbranch_vccz P1_EX_B
    s_sleep 1
    buffer_load_dword v2, v1, s[32:35], 0 offen sc1
    s_add_u32 s60, s60, 1
    s_cmp_lt_u32 s60, 0x40000
    s_cbranch_scc1 L_RDY{u}
P1_EX_B:
    s_waitcnt vmcnt(0)
    s_barrier
    {st(9, True)}
    s_barrier
    {st(10, True)}
    s_mov_b32 s34, 0
    """)

def attention(a):
    O = 0; S = [16, 32]; P = 48; Q1 = 56; Q2 = 60; K2 = 62; K1 = 64; V1 = 68; V2 = [72, 76]; T = 80
    a(f"""
ATT:
    s_setprio 3
    s_cmp_lt_u32 s13, 4
    s_cselect_b32 s32, {opt("o1", 4)}, {opt("y1", 4)}
    s_cselect_b32 s33, {opt("o2", 7)}, {opt("y2", 7)}
    s_movk_i32 s35, 0x106
    s_bitset1_b32 s35, s32
    s_bitset1_b32 s35, s33
    s_mov_b32 s24, 0xfffff
    s_mov_b32 s25, 0xfffff
    s_mul_i32 s27, s13, 1280
    v_mov_b32 v{Q2+1}, 0
    v_mov_b32 v{K2+1}, 0x3f803f80
    v_add_u32 v{T}, s27, v{AK1}
    v_add_u32 v{T+1}, s27, v{AK2}
    v_mov_b32 v{T+2}, 1
    """)
    NQ = opt("nq", 2)
    OX = [84, O]; QX1 = [100, Q1]; QX2 = [104, Q2]; U = 106; TM = 112
    if NQ == 2:
        a(f"""
        s_xor_b32 s36, s13, 1
        s_mul_i32 s27, s36, 1280
        v_add_u32 v{U}, s27, v{AK1}
        v_add_u32 v{U+1}, s27, v{AK2}
        v_mov_b32 v{U+2}, v{AK1}
        v_mov_b32 v{U+3}, v{AK2}
        v_mov_b32 v{QX2[0]+1}, 0
        s_and_b32 s37, s13, 1
        s_mul_i32 s37, s37, 2560
        """)
        for r in (AK1, AK2, AV, BK1, BK2, BV): a(f"v_add_u32 v{r}, s37, v{r}")
        for r in range(16): a(f"v_mov_b32 v{OX[0]+r}, 0")
    for r in range(12): a(f"v_mov_b32 v{V1+r}, v{ONES}")
    for r in range(16): a(f"v_mov_b32 v{O+r}, 0")
    for r in range(4): a(f"v_mov_b32 v{P+4+r}, 0\nv_mov_b32 v{P+r}, -1")
    def rk1(d): return f"v_mfma_f32_32x32x8_bf16 {vr(d,16)}, {vr(K2,2)}, {vr(Q2,2)}, 0"
    def rk2(d): return f"v_mfma_f32_32x32x16_bf16 {vr(d,16)}, {vr(K1,4)}, {vr(Q1,4)}, {vr(d,16)}"
    def qk1(d): return f"v_mfma_f32_32x32x16_bf16 {vr(d,16)}, {vr(K1,4)}, {vr(Q1,4)}, 0"
    def qk2(d): return f"v_mfma_f32_32x32x8_bf16 {vr(d,16)}, {vr(K2,2)}, {vr(Q2,2)}, {vr(d,16)}"
    def pv(v, p): return f"v_mfma_f32_32x32x16_bf16 {vr(O,16)}, {vr(v,4)}, {vr(p,4)}, {vr(O,16)}"
    def of(t): return (t - 6 if t in (6, 7) else t) * 2560
    def rdk1(t): return f"ds_read_b128 {vr(K1,4)}, v{BK1 if t in (6, 7) else AK1} offset:{of(t)}"
    def rdk2(t): return f"ds_read_b32 v{K2}, v{BK2 if t in (6, 7) else AK2} offset:{of(t)+1024}"
    def rdv(t, v2):
        b = BV if t in (6, 7) else AV
        return f"s_mov_b64 exec, s[24:25]\nds_read_b128 {vr(V1,4)}, v{b} offset:{of(t)+1280}\nds_read_b128 {vr(v2,4)}, v{b} offset:{of(t)+1920}\ns_mov_b64 exec, -1"
    def maxtree(s, m, first):
        if first:
            a(f"v_max3_f32 v{m}, v{s}, v{s+1}, v{s+2}\nv_max3_f32 v{m+1}, v{s+3}, v{s+4}, v{s+5}")
            for j in range(6, 14, 4): a(f"v_max3_f32 v{m}, v{s+j}, v{s+j+1}, v{m}\nv_max3_f32 v{m+1}, v{s+j+2}, v{s+j+3}, v{m+1}")
            a(f"v_max3_f32 v{m}, v{s+14}, v{s+15}, v{m}\nv_max_f32 v{m}, v{m}, v{m+1}")
        else:
            for j in range(0, 16, 2): a(f"v_max3_f32 v{m}, v{s+j}, v{s+j+1}, v{m}")
    def xhalf(m):
        a(f"v_mov_b32 v{m+1}, v{m}\ns_nop 1\nv_permlane32_swap_b32 v{m}, v{m+1}\ns_nop 0\nv_max_f32 v{m}, v{m}, v{m+1}")
    a(f"""
    s_cmp_lg_u32 s34, 1
    s_cbranch_scc1 ATT_NOSIG
    """)
    if opt("comb", 1):
        a(f"""
        v_mov_b32 v{T+3}, {LFB + 44}
        s_and_b32 s23, s15, -128
        s_mov_b64 exec, 1
        s_waitcnt vmcnt(0)
        ds_add_rtn_u32 v{T+3}, v{T+3}, v{T+2}
        s_waitcnt lgkmcnt(0)
        v_cmp_eq_u32 vcc, 3, v{T+3}
        s_cbranch_vccz ATT_NOSIG
        buffer_store_dwordx4 {vr(P,4)}, v{O}, s[28:31], s23 offen sc1
        """)
    else:
        a(f"s_waitcnt vmcnt(0)\ns_mov_b64 exec, 1\nbuffer_store_dword v{T+2}, v{O}, s[28:31], s15 offen sc1")
    a(f"""
ATT_NOSIG:
    s_mov_b64 exec, -1
    {st(4)}
    s_and_b32 s23, s34, s12
    s_cbranch_scc1 ATT_NOP
    s_barrier
ATT_NOP:
    {st(6)}
    """)
    def e(s, j): return f"v_exp_f32 v{s+j}, v{s+j}"
    def c(s, j): return f"v_cvt_pk_bf16_f32 v{P+j}, v{s+2*j}, v{s+2*j+1}"
    if NQ == 2:
        def xk1(x): return f"v_mfma_f32_32x32x16_bf16 {vr(S[x],16)}, {vr(K1,4)}, {vr(QX1[x],4)}, 0"
        def xk2(x): return f"v_mfma_f32_32x32x8_bf16 {vr(S[x],16)}, {vr(K2,2)}, {vr(QX2[x],2)}, {vr(S[x],16)}"
        def xpv(x, v, p): return f"v_mfma_f32_32x32x16_bf16 {vr(OX[x],16)}, {vr(v,4)}, {vr(p,4)}, {vr(OX[x],16)}"
        def scale(x):
            for j in range(5): a(f"v_lshlrev_b32 v{TM+2*j}, 16, v{QX1[x]+j}\nv_and_b32 v{TM+2*j+1}, 0xffff0000, v{QX1[x]+j}")
            for j in range(10): a(f"v_mul_f32 v{TM+j}, {QSCALE:#x}, v{TM+j}")
            for j in range(5): a(f"v_cvt_pk_bf16_f32 v{QX1[x]+j}, v{TM+2*j}, v{TM+2*j+1}")
        MH = f32bits(-0.5 * (20 ** -0.5) * math.log2(math.e))
        a(f"""
        ds_read_b128 {vr(K1,4)}, v{U+2}
        ds_read_b32 v{K2}, v{U+3} offset:1024
        ds_read_b128 {vr(QX1[0],4)}, v{U} offset:{QLDS}
        ds_read_b32 v{QX2[0]}, v{U+1} offset:{QLDS+1024}
        ds_read_b128 {vr(Q1,4)}, v{T} offset:{QLDS}
        ds_read_b32 v{Q2}, v{T+1} offset:{QLDS+1024}
        {rdv(0, V2[0])}
        s_waitcnt lgkmcnt(4)
        {xk1(0)}
        {xk2(0)}
        s_waitcnt lgkmcnt(2)
        {xk1(1)}
        {xk2(1)}
        {rdk1(0)}
        {rdk2(0)}
        s_mov_b32 s26, 0
        """)
        scale(0)
        maxtree(S[0], T, True); xhalf(T)
        a(f"v_mul_f32 v{T}, {MH:#x}, v{T}\nv_cvt_pk_bf16_f32 v{QX2[0]+1}, v{T}, 0\ns_waitcnt lgkmcnt(0)\n{xk1(0)}\n{xk2(0)}")
        scale(1)
        maxtree(S[1], T, True); xhalf(T)
        a(f"""
        v_mul_f32 v{T}, {MH:#x}, v{T}
        v_cvt_pk_bf16_f32 v{Q2+1}, v{T}, 0
        buffer_store_dwordx4 {vr(P,4)}, v{OA1}, s[28:31], s6 offen sc1
        s_mov_b64 exec, 0xffff
        buffer_store_dwordx4 {vr(P,4)}, v{OA2}, s[28:31], s7 offen sc1
        s_mov_b64 exec, -1
        {st(7)}
ATT_LOOP:
        """)
        for i in range(4):
            for x in (0, 1):
                cur = S[x]; y = 1 - x; t_ = 2 * (i + 1)
                if x == 1: a("s_waitcnt lgkmcnt(0)")
                a(xk1(y))
                if x == 0: a(rdk1(t_))
                if x == 1 and i == 1: a(f"ds_write_b32 v{PA}, v{T+2}")
                for q in range(4): a(e(cur, q))
                a(xpv(y, V2[(i + 1) % 2] if x == 0 else V2[i % 2], P + 4))
                if x == 0: a("s_waitcnt lgkmcnt(1)")
                for q in range(4, 8): a(e(cur, q))
                a(c(cur, 0)); a(c(cur, 1))
                a(xk2(y))
                if x == 0: a(rdk2(t_))
                a(c(cur, 2)); a(c(cur, 3))
                for q in range(8, 12): a(e(cur, q))
                a(xpv(x, V1, P))
                if x == 1: a(rdv(t_, V2[(i + 1) % 2]))
                for q in range(12, 16): a(e(cur, q))
                for q in range(4, 8): a(c(cur, q))
    else:
        a(f"""
        ds_read_b128 {vr(Q1,4)}, v{T} offset:{QLDS}
        ds_read_b32 v{Q2}, v{T+1} offset:{QLDS+1024}
        {rdk1(0)}
        {rdk2(0)}
        {rdv(0, V2[0])}
        s_waitcnt lgkmcnt(2)
        {qk1(S[1])}
        {qk2(S[1])}
        """)
        for j in range(5): a(f"v_lshlrev_b32 v{S[0]+2*j}, 16, v{Q1+j}\nv_and_b32 v{S[0]+2*j+1}, 0xffff0000, v{Q1+j}")
        for j in range(10): a(f"v_mul_f32 v{S[0]+j}, {QSCALE:#x}, v{S[0]+j}")
        for j in range(5): a(f"v_cvt_pk_bf16_f32 v{Q1+j}, v{S[0]+2*j}, v{S[0]+2*j+1}")
        a(f"""
        s_nop 0
        {qk1(S[0])}
        {rdk1(1)}
        s_mov_b32 s26, 0
        """)
        maxtree(S[1], T, True); xhalf(T)
        a(f"""
        v_mul_f32 v{T}, {f32bits(-0.5 * (20 ** -0.5) * math.log2(math.e)):#x}, v{T}
        v_cvt_pk_bf16_f32 v{Q2+1}, v{T}, 0
        s_nop 1
        {qk2(S[0])}
        {rdk2(1)}
        buffer_store_dwordx4 {vr(P,4)}, v{OA1}, s[28:31], s6 offen sc1
        s_mov_b64 exec, 0xffff
        buffer_store_dwordx4 {vr(P,4)}, v{OA2}, s[28:31], s7 offen sc1
        s_mov_b64 exec, -1
        s_waitcnt lgkmcnt(0)
        {st(7)}
        s_nop 3
ATT_LOOP:
        """)
        for j in range(8):
            cur, nxt = S[j % 2], S[(j + 1) % 2]
            a("s_waitcnt lgkmcnt(2)")
            if opt('rev', 0): a(rk1(nxt)); a(rdk2(j + 2))
            else: a(qk1(nxt)); a(rdk1(j + 2))
            for q in range(4): a(e(cur, q))
            a(pv(V2[(j + 1) % 2], P + 4))
            a("s_waitcnt lgkmcnt(1)")
            if j == 2: a(f"ds_write_b32 v{PA}, v{T+2}")
            for q in range(4, 8): a(e(cur, q))
            a(c(cur, 0)); a(c(cur, 1))
            if opt('rev', 0): a(rk2(nxt)); a(rdk1(j + 2))
            else: a(qk2(nxt)); a(rdk2(j + 2))
            a(c(cur, 2)); a(c(cur, 3))
            for q in range(8, 12): a(e(cur, q))
            a(pv(V1, P)); a(rdv(j + 1, V2[(j + 1) % 2]))
            for q in range(12, 16): a(e(cur, q))
            for q in range(4, 8): a(c(cur, q))
    a(f"""
    s_add_u32 s26, s26, 1
    s_movk_i32 s27, 0x5000
    s_cmp_eq_u32 s26, 7
    s_cselect_b32 s27, {(0x5000 - 62 * 2560) & 0xffffffff}, s27
    v_add_u32 v{AK1}, 0x5000, v{AK1}
    v_add_u32 v{AK2}, 0x5000, v{AK2}
    v_add_u32 v{AV}, 0x5000, v{AV}
    v_add_u32 v{BK1}, s27, v{BK1}
    v_add_u32 v{BK2}, s27, v{BK2}
    v_add_u32 v{BV}, s27, v{BV}
    v_add_u32 v{T+2}, 1, v{T+2}
    s_bitcmp1_b32 s35, s26
    s_cbranch_scc0 ATT_LOOP
    s_cmp_gt_u32 s26, 2
    s_cbranch_scc1 ATT_EV
    v_add_u32 v{FA}, 8, v{FA}
    s_waitcnt vmcnt(0)
ATT_WAIT:
    ds_read_b32 v{T}, v{FA}
    s_waitcnt lgkmcnt(0)
    v_readfirstlane_b32 s23, v{T}
    s_cmp_ge_u32 s23, 4
    s_cbranch_scc1 ATT_LOOP
    s_sleep 1
    s_branch ATT_WAIT
ATT_EV:
    s_setprio 2
    s_cmp_eq_u32 s26, s32
    s_cbranch_scc1 ATT_LOOP
    s_setprio 1
    s_cmp_lt_u32 s26, 8
    s_cbranch_scc1 ATT_LOOP
    s_setprio 3
    {pv(V2[1], P+4)}
    {st(8)}
    """)
    if NQ == 2:
        XS = 107520
        a(f"""
        v_lshrrev_b32 v{U}, 2, v{VA}
        v_add_u32 v{U}, {LFB}, v{U}
        s_lshr_b32 s27, s13, 2
        s_add_u32 s27, s27, 7
        """)
        lwait(a, U, U + 1, 0xff, "s27", 1)
        a(f"""
        s_lshl_b32 s23, s13, 12
        s_add_u32 s23, s23, {XS}
        v_add_u32 v{U}, s23, v{VA}
        s_lshl_b32 s23, s36, 12
        s_add_u32 s23, s23, {XS}
        """)
        for j in range(4): a(f"ds_write_b128 v{U}, {vr(OX[0]+4*j,4)} offset:{1024*j}")
        a(f"""
        v_add_u32 v{U+1}, s23, v{VA}
        v_xor_b32 v{U+2}, 4, v{PA}
        v_add_u32 v{U+2}, 96, v{U+2}
        s_waitcnt lgkmcnt(0)
        ds_write_b32 v{PA}, v{T+2} offset:96
        """)
        lwait(a, U + 2, U + 3, 1, 1, 1)
        for j in range(4): a(f"ds_read_b128 {vr(S[0]+4*j,4)}, v{U+1} offset:{1024*j}")
        a("s_mov_b32 s27, 0x3e800000\ns_mov_b32 s23, 0x71800000\ns_waitcnt lgkmcnt(0)")
        for r in range(0, 14, 2): a(f"v_pk_add_f32 {vr(O+r,2)}, {vr(O+r,2)}, {vr(S[0]+r,2)}")
    else:
        a("s_mov_b32 s27, 0x3e800000\ns_mov_b32 s23, 0x71800000\ns_nop 9")
    a(f"v_rcp_f32 v{T+2}, v{O+12}\nv_add_f32 v{T}, |v{O}|, |v{O+1}|\nv_add_f32 v{T+1}, |v{O+2}|, |v{O+3}|")
    for j in range(4, 12, 2): a(f"v_add_f32 v{T}, |v{O+j}|, v{T}\nv_add_f32 v{T+1}, |v{O+j+1}|, v{T+1}")
    a(f"""
    v_add_f32 v{T}, v{T}, v{O+12}
    v_cmp_le_f32 s[42:43], s27, v{O+12}
    v_add_f32 v{T}, v{T}, v{T+1}
    v_cmp_gt_f32 vcc, s23, v{T}
    s_and_b64 vcc, vcc, s[42:43]
    s_cmp_eq_u64 vcc, -1
    s_cbranch_scc0 ATT_FALLBACK
ATT_FINISH:
    """)
    for j in range(8): a(f"v_mul_f32 v{O+j}, v{O+j}, v{T+2}")
    for j in range(4): a(f"v_cvt_pk_bf16_f32 v{P+j}, v{O+2*j}, v{O+2*j+1}")
    for j in range(4): a(f"v_min_u32 v{P+j}, -2, v{P+j}")
    a(f"buffer_store_dwordx4 {vr(P,4)}, v{OA1}, s[28:31], s6 offen sc1")
    for j in range(8, 12): a(f"v_mul_f32 v{O+j}, v{O+j}, v{T+2}")
    for j in range(4, 6): a(f"v_cvt_pk_bf16_f32 v{P+j}, v{O+2*j}, v{O+2*j+1}")
    for j in range(4, 6): a(f"v_min_u32 v{P+j}, -2, v{P+j}")
    a(f"""
    s_nop 1
    v_permlane16_swap_b32 v{P+4}, v{P+6}
    v_permlane16_swap_b32 v{P+5}, v{P+7}
    s_mov_b64 exec, 0xffff
    buffer_store_dwordx4 {vr(P+4,4)}, v{OA2}, s[28:31], s7 offen sc1
    {st(9)}
    s_cmp_ge_u32 s13, 4
    s_cbranch_scc1 {"L_DONE" if STAMP else "L_END"}
    s_mov_b64 exec, -1
    s_xor_b32 s41, s13, {opt('gx', 2)}
    s_mov_b32 s47, 1
    s_branch P3_GO
    """)
    def gk(): return f"buffer_load_dwordx4 {vr(K1,4)}, v{AK1}, s[28:31], s23 offen sc1\nbuffer_load_dword v{K2}, v{AK2}, s[28:31], s23 offen offset:1024 sc1"
    a(f"""
ATT_FALLBACK:
    s_waitcnt lgkmcnt(0)
    v_mov_b32 v{Q2+1}, 0
    v_mov_b32 v{T}, 0xff800000
    {f's_add_u32 s23, s37, {HS}' if NQ == 2 else f's_mov_b32 s23, {HS}'}
    v_subrev_u32 v{AK1}, s23, v{AK1}
    v_subrev_u32 v{AK2}, s23, v{AK2}
    v_subrev_u32 v{AV}, s23, v{AV}
    s_add_u32 s23, s14, {KV_OFF}
    s_mov_b32 s26, 0
ATT_FB1:
    {gk()}
    s_add_u32 s23, s23, 2560
    s_waitcnt vmcnt(0)
    {qk1(S[0])}
    {qk2(S[0])}
    s_nop 15
    """)
    maxtree(S[0], T, False)
    a("s_add_u32 s26, s26, 1\ns_cmp_lt_u32 s26, 64\ns_cbranch_scc1 ATT_FB1")
    xhalf(T)
    a(f"s_add_u32 s23, s14, {KV_OFF}\ns_mov_b32 s26, 0")
    for r in range(16): a(f"v_mov_b32 v{O+r}, 0")
    a(f"""
ATT_FB2:
    {gk()}
    s_mov_b64 exec, s[24:25]
    buffer_load_dwordx4 {vr(V1,4)}, v{AV}, s[28:31], s23 offen offset:1280 sc1
    buffer_load_dwordx4 {vr(V2[0],4)}, v{AV}, s[28:31], s23 offen offset:1920 sc1
    s_mov_b64 exec, -1
    s_add_u32 s23, s23, 2560
    s_waitcnt vmcnt(0)
    {qk1(S[0])}
    {qk2(S[0])}
    s_nop 15
    """)
    for q in range(16): a(f"v_sub_f32 v{S[0]+q}, v{S[0]+q}, v{T}")
    for q in range(16): a(e(S[0], q))
    a("s_nop 0")
    for q in range(8): a(c(S[0], q))
    a(f"""
    s_nop 1
    {pv(V1, P)}
    {pv(V2[0], P+4)}
    s_add_u32 s26, s26, 1
    s_cmp_lt_u32 s26, 64
    s_cbranch_scc1 ATT_FB2
    s_nop 15
    v_rcp_f32 v{T+2}, v{O+12}
    s_nop 0
    s_branch ATT_FINISH
    """)

def lwait(a, vaddr, vdat, mask, target, slp=8):
    u = a.uid()
    a(f"""
    s_mov_b64 exec, {mask}
    s_branch L_LWE{u}
L_LW{u}:
    s_sleep {slp}
L_LWE{u}:
    ds_read_b32 v{vdat}, v{vaddr}
    s_waitcnt lgkmcnt(0)
    v_cmp_gt_u32 vcc, {target}, v{vdat}
    s_cbranch_vccnz L_LW{u}
    s_mov_b64 exec, -1
    """)
def ladd(a, vaddr, vone, off):
    a(f"s_mov_b64 exec, 1\nds_add_u32 v{vaddr}, v{vone} offset:{off}\ns_mov_b64 exec, -1")

def helpers(a):
    WA, VG, VZ, SH, HPA, HONE, YFA, FZ, SG, XA5, LF = 112, 117, 118, 119, 120, 121, 122, 123, 124, 125, 126
    ZL = 40; G = 167; VY = 162; T = 132; LT = 127
    a(f"""
HELPER:
    s_mov_b32 s61, s22
    {st(2)}
    {srd(28, WS_P, WS_USED)}
    s_setprio 0
    s_lshr_b32 s20, s18, 2
    s_mul_i32 s26, s20, 160
    s_movk_i32 s23, {1280 - 160}
    """)
    for i in range(5):
        a(f"""
        v_add_u32 v{T}, {64*i}, v0
        v_mul_u32_u24 v{T+1}, 6554, v{T}
        v_lshrrev_b32 v{T+1}, 16, v{T+1}
        v_lshlrev_b32 v{T}, 4, v{T}
        v_mad_u32_u24 v{WA+i}, v{T+1}, s23, v{T}
        """)
    a(f"""
    s_lshl_b32 s21, s17, 3
    s_and_b32 s22, s18, 3
    s_add_u32 s21, s21, s22
    s_lshr_b32 s22, s16, 1
    s_lshl_b32 s22, s22, 2
    s_add_u32 s21, s21, s22
    s_lshl_b32 s21, s21, 1
    s_and_b32 s22, s16, 1
    s_add_u32 s21, s21, s22
    s_lshr_b32 s22, s21, 2
    s_lshl_b32 s22, s22, 1
    s_and_b32 s24, s21, 1
    s_add_u32 s22, s22, s24
    s_lshl_b32 s22, s22, 3
    v_and_b32 v{T}, 7, v0
    v_add_u32 v{T}, s22, v{T}
    s_bitcmp1_b32 s21, 1
    s_cselect_b32 s22, 0x400, 0
    s_cselect_b32 s24, -1, 1
    v_mul_lo_u32 v{T+1}, v{T}, s24
    s_sub_u32 s24, 0x800, s22
    v_sub_u32 v{T+2}, s24, v{T+1}
    v_add_u32 v{T+1}, s22, v{T+1}
    v_and_b32 v{T+3}, 8, v0
    v_cmp_ne_u32 vcc, 0, v{T+3}
    v_cmp_eq_u32 s[42:43], 0, v{T}
    v_lshlrev_b32 v{T+3}, 6, v{T+3}
    v_add_u32 v{T+3}, s22, v{T+3}
    v_cndmask_b32 v{T}, v{T+1}, v{T+2}, vcc
    v_lshrrev_b32 v{T+1}, 4, v0
    v_cndmask_b32 v{T}, v{T}, v{T+3}, s[42:43]
    v_mul_u32_u24 v{VY}, 1280, v{T}
    v_mul_u32_u24 v{T+2}, 40, v{T+1}
    v_add3_u32 v{VY}, v{VY}, v{T+2}, s26
    v_lshlrev_b32 v{VG}, 2, v{T}
    v_sub_u32 v{T+3}, 0x800, v{T}
    v_cmp_lt_u32 vcc, 0x400, v{T}
    v_min_u32 v{T}, v{T}, v{T+3}
    v_and_b32 v{T+3}, 1, v{T}
    v_mul_u32_u24 v{VZ}, {ZP}, v{T+3}
    v_lshrrev_b32 v{T+3}, 1, v{T}
    v_lshl_add_u32 v{VZ}, v{T+3}, 4, v{VZ}
    v_mov_b32 v{T+3}, 0x02020202
    v_cndmask_b32 v{SH}, 0, v{T+3}, vcc
    s_cmp_ge_u32 s20, 4
    s_mov_b32 s24, 0x05040100
    s_cselect_b32 s24, 0x07060302, s24
    s_cselect_b32 s40, -1, 1
    s_cselect_b32 s41, 155, 0
    v_xor_b32 v{SH}, s24, v{SH}
    s_mul_i32 s24, s20, 20
    v_mul_u32_u24 v{T+3}, 5, v{T+1}
    v_add_u32 v{T+3}, s24, v{T+3}
    v_mul_lo_u32 v{T+3}, v{T+3}, s40
    v_add_u32 v{T+3}, s41, v{T+3}
    v_mul_u32_u24 v{T+3}, {2*ZP}, v{T+3}
    v_add_u32 v{VZ}, v{VZ}, v{T+3}
    {p3_addr(0)}
    v_lshlrev_b32 v{HPA}, 2, v0
    v_add_u32 v{HPA}, {LFB}, v{HPA}
    v_mov_b32 v{HONE}, 1
    s_lshl_b32 s23, s2, 2
    s_add_u32 s23, s23, {FLG_OFF + 32768}
    v_mov_b32 v{YFA}, s23
    v_lshrrev_b32 v{FZ}, 4, v0
    v_mul_u32_u24 v{FZ}, {2*ZP}, v{FZ}
    v_and_b32 v{T}, 15, v0
    v_lshl_add_u32 v{FZ}, v{T}, 4, v{FZ}
    v_lshlrev_b32 v{SG}, 31, v0
    v_and_b32 v{XA5}, 48, v0
    v_lshlrev_b32 v{LF}, 7, v0
    v_bfe_u32 v{LT}, v0, 1, 2
    v_lshlrev_b32 v{LT}, 13, v{LT}
    v_and_b32 v{T}, 1, v0
    v_lshl_add_u32 v{LT}, v{T}, 7, v{LT}
    s_setprio 3
    s_lshr_b32 s19, s18, 3
    s_lshl_b32 s23, s17, 2
    s_add_u32 s19, s19, s23
    s_and_b32 s62, s18, 7
    s_mul_i32 s21, s19, {HG}
    v_lshlrev_b32 v1, 4, v0
    {st(3)}
    s_lshr_b32 s23, s19, 3
    s_lshl_b32 s23, s23, 13
    s_add_u32 s23, s23, {FLG_OFF}
    v_lshlrev_b32 v2, 7, v0
    v_add_u32 v2, s23, v2
    s_add_u32 s24, s21, {KV_OFF}
    s_lshl_b32 s40, 0x10000, s16
    s_lshl_b32 s41, 1, s16
    s_mul_i32 s22, s16, 10240
    s_add_u32 s26, s24, s22
    s_cmp_lg_u32 s16, 3
    s_cbranch_scc1 H_JA
    s_lshl_b32 s25, s62, 1
    s_lshl_b32 s40, 3, s25
    s_mov_b32 s41, 0
    s_mov_b32 s22, {QLDS}
    s_mul_i32 s26, s19, {HQ}
    s_mul_i32 s25, s62, 10240
    s_add_u32 s26, s26, s25
    s_add_u32 s26, s26, {Q_OFF}
H_JA:
    """)
    def job():
        r = f"s_add_u32 s25, s22, 5120\ns_cmp_ge_u32 s25, {LFB}\ns_cselect_b32 s25, 0, s25\n"
        for n in range(10):
            if n in (0, 3): r += f"s_add_u32 m0, s22, {1024*n}\ns_add_u32 s27, s26, {1024*n}\n"; o = 0
            if n in (5, 8): r += f"s_add_u32 m0, s25, {1024*(n-5)}\ns_add_u32 s27, s26, {1024*n}\n"; o = 0
            r += f"buffer_load_dwordx4 v1, s[28:31], s27 offen offset:{o} sc1 lds\n"; o += 1024
        return r
    if opt("latep", 1):
        a(f"s_mul_i32 s23, s12, 12\ns_cmp_eq_u32 s61, 3\ns_cselect_b32 s23, 12, s23\ns_add_u32 s23, s23, {LFB + 44}\nv_mov_b32 v3, s23")
        lwait(a, 3, 4, 1, 4, 2)
        if opt("lps", 0): a(f"s_sleep {opt('lps', 0)}")
    poll4(a, 2, 4, "s[40:41]")
    a(st(11)); a(job())
    a(f"""
    s_lshl_b32 s40, 0x80000, s16
    s_lshl_b32 s41, 8, s16
    s_add_u32 s22, s16, 3
    s_mul_i32 s22, s22, 10240
    s_add_u32 s26, s24, s22
    s_waitcnt vmcnt(0)
    {st(12)}
    s_barrier
    s_cmp_eq_u32 s16, 3
    s_cbranch_scc1 H_JB
    """)
    poll4(a, 2, 4, "s[40:41]")
    a(job())
    a(f"""
H_JB:
    s_lshl_b32 s41, 0x4440, s16
    s_and_b32 s41, s41, 0xffff
    s_lshl_b32 s40, s41, 16
    s_add_u32 s22, s16, 6
    s_mul_i32 s22, s22, 10240
    s_add_u32 s26, s24, s22
    s_waitcnt vmcnt(0)
    """)
    ladd(a, HPA, HONE, 64)
    lwait(a, HPA, 4, 0xff, 1)
    poll4(a, 2, 4, "s[40:41]", slp=8)
    a(f"{st(13)}\nH_JC:"); a(job())
    a(f"""
    s_add_u32 s22, s22, 40960
    s_add_u32 s26, s26, 40960
    s_cmp_lt_u32 s22, {HS}
    s_cbranch_scc1 H_JC
    s_waitcnt vmcnt(0)
    {st(4)}
    """)
    ladd(a, HPA, HONE, 72)
    a(f"""
    s_cmp_lt_u32 s16, 3
    s_cbranch_scc1 H_FNET
    """)
    a(f"""
    {srd(32, X_P, 2048*1280)}
    {srd(36, GATE_P, 1280)}
    v_lshrrev_b32 v2, 3, v0
    v_and_b32 v3, 7, v0
    v_lshlrev_b32 v3, 4, v3
    s_movk_i32 s22, 1280
    v_mad_u32_u24 v4, v2, s22, v3
    s_mul_i32 s23, s2, {8*1280}
    """)
    for j in range(10):
        a(f"buffer_load_dwordx4 {vr(24+8*j,4)}, v4, s[32:35], s23 offen offset:{128*j}")
        a(f"buffer_load_dwordx4 {vr(28+8*j,4)}, v3, s[36:39], 0 offen offset:{128*j}")
    a("v_mov_b32 v5, 0\nv_mov_b32 v6, 0\ns_waitcnt vmcnt(0)")
    for j in range(10):
        for q in range(4):
            a(f"v_dot2c_f32_bf16 v{5 + (q & 1)}, v{24+8*j+q}, v{28+8*j+q}")
    a(f"""
    s_nop 2
    v_add_f32 v5, v5, v6
    s_nop 1
    v_add_f32_dpp v5, v5, v5 quad_perm:[1,0,3,2] row_mask:0xf bank_mask:0xf
    s_nop 1
    v_add_f32_dpp v5, v5, v5 quad_perm:[2,3,0,1] row_mask:0xf bank_mask:0xf
    s_nop 1
    v_add_f32_dpp v5, v5, v5 row_half_mirror row_mask:0xf bank_mask:0xf
    v_mul_f32 v5, {f32bits(-math.log2(math.e)):#x}, v5
    v_exp_f32 v5, v5
    v_lshlrev_b32 v2, 2, v2
    v_add_f32 v5, 1.0, v5
    v_rcp_f32 v5, v5
    s_lshl_b32 s23, s2, 5
    s_add_u32 s23, s23, {G_OFF}
    buffer_store_dword v5, v2, s[28:31], s23 offen sc1
    s_branch H_MID
    """)
    C, SN, FB = 0, 8, 16
    a(f"""
H_FNET:
    {'s_branch H_MID' if opt('nofnet', 0) == 1 else ''}
    s_lshl_b32 s22, s16, 5
    s_add_u32 s22, s22, s18
    s_cmp_lt_u32 s22, 84
    s_cbranch_scc1 H_FN_A
    s_sub_u32 s24, s22, 84
    s_lshl_b32 s24, s24, 3
    s_add_u32 s24, s24, s17
    s_cmp_ge_u32 s24, 21
    s_cbranch_scc1 H_MID
    s_mov_b32 s23, 32
    s_branch H_FN_B
H_FN_A:
    s_mul_i32 s23, s22, 3121
    s_lshr_b32 s23, s23, 16
    s_mul_i32 s24, s23, 21
    s_sub_u32 s24, s22, s24
    s_lshl_b32 s23, s23, 3
    s_add_u32 s23, s23, s17
H_FN_B:
    s_and_b32 s25, s23, 1
    s_add_u32 s26, s24, 20
    s_cmp_eq_u32 s24, 20
    s_cselect_b32 s26, 20, s26
    s_mul_i32 s32, s24, 26
    s_lshr_b32 s32, s32, 8
    s_lshl_b32 s32, s32, 13
    s_add_u32 s32, s32, {48 * 128}
    s_mul_i32 s33, s26, 26
    s_lshr_b32 s33, s33, 8
    s_lshl_b32 s33, s33, 13
    s_add_u32 s33, s33, {32 * 128}
    s_and_b32 s34, s23, 31
    s_lshl_b32 s34, s34, 8
    s_mov_b64 exec, 0xffff
    v_add_u32 v2, s32, v{LF}
    s_mov_b32 exec_lo, 0xffff0000
    v_add_u32 v2, s33, v{LF}
    s_mov_b32 exec_lo, 0
    s_mov_b32 exec_hi, 0xff
    v_add_u32 v2, s34, v{LT}
    s_mov_b32 s40, -1
    s_movk_i32 s41, 0xff
    s_mov_b32 s27, {FLG_OFF}
    """)
    poll4(a, 2, 4, "s[40:41]", "s27", slp=8)
    a(st(14))
    a(f"""
    s_lshl_b32 s32, s23, 16
    s_add_u32 s32, s32, {TB_OFF}
    s_mul_i32 s27, s25, {FO_DELTA}
    s_add_u32 s27, s27, {FE_OFF}
    s_lshl_b32 s33, s24, 14
    s_add_u32 s33, s33, s27
    s_lshl_b32 s34, s26, 14
    s_add_u32 s34, s34, s27
    s_cmp_eq_u32 s25, 0
    s_cselect_b32 s35, s24, s26
    s_lshl_b32 s35, s35, 6
    s_add_u32 s35, s35, {X512_OFF}
    buffer_load_dwordx4 v[128:131], v{XA5}, s[28:31], s35 offen sc1
    """)
    def fl(j):
        r = FB + 24 * j
        s_ = f"buffer_load_dwordx4 {vr(r,4)}, v163, s[28:31], s33 offen offset:{1024*j} sc1\n"
        s_ += f"buffer_load_dwordx4 {vr(r+4,4)}, v163, s[28:31], s34 offen offset:{1024*j} sc1\n"
        for k in range(4): s_ += f"buffer_load_dwordx4 {vr(r+8+4*k,4)}, v163, s[28:31], s32 offen offset:{1024*k} sc1\n"
        s_ += "s_add_u32 s32, s32, 4096\n"
        if j == 3: s_ += "s_add_u32 s33, s33, 4096\ns_add_u32 s34, s34, 4096\n"
        return s_
    def fm(j):
        r = FB + 24 * j
        s_ = ""
        if opt("nofnet", 0) == 2: return s_
        for sub in range(2):
            s_ += f"v_mfma_f32_16x16x32_bf16 {vr(C+4*sub,4)}, {vr(r,4)}, {vr(r+8+8*sub,4)}, {vr(C+4*sub,4)}\n"
            s_ += f"v_mfma_f32_16x16x32_bf16 {vr(SN+4*sub,4)}, {vr(r+4,4)}, {vr(r+12+8*sub,4)}, {vr(SN+4*sub,4)}\n"
        return s_
    for j in range(4): a(fl(j))
    a(f"""
    s_cmp_eq_u32 s25, 0
    s_cselect_b32 s36, 1.0, 0
    s_cselect_b32 s37, 0, 1.0
    v_or_b32 v161, s37, v{SG}
    v_or_b32 v160, s36, v{SG}
    s_waitcnt vmcnt(24)
    """)
    for r in range(8): a(f"v_mul_f32 v{C+r}, v160, v{128 + r % 4}\nv_mul_f32 v{SN+r}, v161, v{128 + r % 4}")
    a("s_mov_b32 s38, 0\nH_FN_LOOP:")
    for j in range(4):
        a("s_waitcnt vmcnt(18)"); a(fm(j)); a(fl(j))
    a("s_add_u32 s38, s38, 1\ns_cmp_lt_u32 s38, 3\ns_cbranch_scc1 H_FN_LOOP")
    for j in range(4):
        a(f"s_waitcnt vmcnt({18-6*j})"); a(fm(j))
    a(f"""
    s_cmp_eq_u32 s26, 20
    s_cselect_b32 s44, 0xffff, 0
    s_mov_b32 s45, 0
    s_mul_i32 s26, s24, {8*ZP}
    s_mul_i32 s27, s25, {ZP}
    s_add_u32 s26, s26, s27
    s_lshr_b32 s27, s23, 1
    s_lshl_b32 s27, s27, 9
    s_add_u32 s26, s26, s27
    s_add_u32 s26, s26, {Y_OFF}
    v_cndmask_b32 v{SN}, v{SN}, 0, s[44:45]
    v_cndmask_b32 v{SN+4}, v{SN+4}, 0, s[44:45]
    """)
    for r in range(8):
        a(f"v_add_f32 v{16+r}, v{C+r}, v{SN+r}\nv_sub_f32 v{C+r}, v{C+r}, v{SN+r}")
    for r in range(8): a(f"v_cvt_pk_bf16_f32 v{16+r}, v{16+r}, v{C+r}")
    a(f"buffer_store_dwordx4 v[16:19], v{FZ}, s[28:31], s26 offen sc1\nbuffer_store_dwordx4 v[20:23], v{FZ}, s[28:31], s26 offen offset:256 sc1")
    a(f"""
H_MID:
    s_lshl_b32 s19, s17, 2
    s_and_b32 s20, s18, 3
    s_add_u32 s19, s19, s20
    s_lshr_b32 s20, s18, 2
    {srd(32, WO_P, 640*1280)}
    {srd(36, OUT_P, 2621440)}
    s_mul_i32 s26, s20, 160
    s_mul_i32 s27, s16, {160*1280}
    s_add_u32 s27, s27, s26
    s_movk_i32 s23, {1280 - 160}
    """)
    a(f"""
    s_add_u32 s25, s16, 1
    s_and_b32 s25, s25, 3
    s_mul_i32 s22, s25, 25600
    s_add_u32 s22, s22, {WOL}
    s_add_u32 s25, s25, 3
    s_waitcnt vmcnt(0)
    {st(5)}
    """)
    lwait(a, HPA, T + 1, 0xff, 2)
    a(f"""s_mov_b64 exec, 1
    ds_add_rtn_u32 v{T+1}, v{HPA}, v{HONE} offset:48
    s_waitcnt lgkmcnt(0)
    v_cmp_eq_u32 vcc, 3, v{T+1}
    s_cbranch_vccz H_NOY
    buffer_store_dword v{HONE}, v{YFA}, s[28:31], 0 offen sc1
H_NOY:
    s_mov_b64 exec, -1""")
    lwait(a, HPA, T + 1, 0xff, "s25")
    a(f"{st(6)}\ns_mov_b32 s25, 0\nH_WO:")
    for i in range(5):
        a(f"s_add_u32 m0, s22, {1024*i}\ns_nop 0\nbuffer_load_dwordx4 v{WA+i}, s[32:35], s27 offen lds")
    a(f"""
    s_add_u32 s22, s22, 5120
    s_add_u32 s27, s27, {32*1280}
    s_add_u32 s25, s25, 1
    s_cmp_lt_u32 s25, 5
    s_cbranch_scc1 H_WO
    s_cmp_lg_u32 s16, 3
    s_cbranch_scc1 H_YW
    """)
    lwait(a, HPA, T + 1, 0xff, opt("ypr", 5), 16)
    a(f"s_mov_b32 s27, {FLG_OFF + 32768}")
    poll4(a, VA, 4, "-1", "s27", slp=16)
    ladd(a, HPA, HONE, 40)
    a(f"H_YW:\nv_add_u32 v{T}, 40, v{HPA}")
    lwait(a, T, T + 1, 1, 1, 16)
    a("s_waitcnt vmcnt(0)")
    a(f"v_mov_b32 v{T}, 2")
    ladd(a, HPA, T, 32)
    a(f"{st(7)}\ns_mov_b32 s26, {Y_OFF}\ns_mov_b32 s27, {G_OFF}\nbuffer_load_dword v{G}, v{VG}, s[28:31], s27 offen sc1")
    for j in range(6):
        a(f"buffer_load_dwordx4 {vr(ZL+4*j,4)}, v{VZ}, s[28:31], s26 offen sc1\ns_add_u32 s26, s26, {2*ZP}")
    BF, OFR, ACC, YG = 0, 100, 120, 140
    VY2, G2 = 162, 167
    a(f"""
    s_waitcnt vmcnt(0)
    s_cmp_ge_u32 s20, 4
    s_cbranch_scc1 H_DESC
    """)
    for k in range(10): a(f"v_perm_b32 v{YG+10+k}, v{ZL+2*k+1}, v{ZL+2*k}, v{SH}")
    a("s_branch H_UNP\nH_DESC:")
    for k in range(10): a(f"v_perm_b32 v{YG+10+k}, v{ZL+19-2*k}, v{ZL+20-2*k}, v{SH}")
    a("H_UNP:")
    lwait(a, HPA, 8, 0xf, 8)
    a(f"""
    {st(8)}
    s_mov_b32 s41, s16
    s_mov_b32 s47, 0
P3_GO:
    s_setprio {opt('p3o', 0)}
    s_lshl_b32 s22, s17, 3
    s_and_b32 s23, s18, 3
    s_add_u32 s22, s22, s23
    s_lshl_b32 s22, s22, 1
    s_add_u32 s22, s22, s47
    s_mul_i32 s22, s22, 20480
    s_add_u32 s22, s22, {OF_OFF}
    s_lshl_b32 s44, s41, 12
    s_add_u32 s44, s44, s22
    s_lshl_b32 s45, s41, 10
    s_add_u32 s45, s45, s22
    s_add_u32 s45, s45, 16384
    s_lshl_b32 s46, s47, 2
    s_add_u32 s40, s46, {LFB + 80}
    s_add_u32 s46, s46, s41
    s_mul_i32 s46, s46, 5120
    s_add_u32 s46, s46, {WOL}
    s_mov_b32 s26, 0
    s_mov_b32 s42, 0
    v_mov_b32 v{CM}, {LFB + 32}
    """)
    lwait(a, CM, CT, 1, 8)
    a("P3_TRY:")
    for k in range(4):
        a(f"buffer_load_dwordx4 {vr(OFR+4*k,4)}, v{VA}, s[28:31], s44 offen offset:{1024*k} sc1")
    a(f"buffer_load_dwordx2 {vr(OFR+16,2)}, v{VT}, s[28:31], s45 offen sc1\nbuffer_load_dwordx2 {vr(OFR+18,2)}, v{VT}, s[28:31], s45 offen offset:128 sc1")
    a(f"""
    s_cmp_lg_u32 s26, 0
    s_cbranch_scc1 P3_CHK
    s_add_u32 s23, s41, 1
    s_and_b32 s23, s23, 3
    s_mul_i32 s23, s23, 25600
    s_add_u32 s23, s23, {WOL}
    v_add_u32 v{CM}, s23, v{BMM}
    v_add_u32 v{CT}, s23, v{BMT}
    """)
    for n in range(25):
        k, t = divmod(n, 5); d = BF + 4 * n
        bb, o, dj = (CM, k * 6400 + t * 8, 1280) if k < 4 else (CT, t * 8, 3200)
        a(f"ds_read_b64_tr_b16 {vr(d,2)}, v{bb} offset:{o}\nds_read_b64_tr_b16 {vr(d+2,2)}, v{bb} offset:{o+dj}")
    a(f"v_mov_b32 v{BMM}, {LFB + 36}\nv_mov_b32 v{BMT}, 1\ns_waitcnt lgkmcnt(0)")
    ladd(a, BMM, BMT, 0)
    b = OFR
    def mfs(k): return "\n".join(f"v_mfma_f32_16x16x32_bf16 {vr(ACC+4*t,4)}, {vr(BF+4*(5*k+t),4)}, {vr(OFR+4*k,4)}, {vr(ACC+4*t,4) if k else 0}" for t in range(5))
    if opt("spec", 1):
        a("P3_CHK:\ns_add_u32 s26, s26, 1\ns_mov_b32 s43, -1")
        for k in range(5):
            r = b + 4 * k
            a(f"""P3_C{k}:
            s_waitcnt vmcnt({max(0, 5 - k) if k < 4 else 0})
            v_max3_u32 v{CM}, v{r}, v{r+1}, v{r+2}
            v_max3_u32 v{CM}, v{r+3}, v{CM}, 1
            v_cmp_eq_u32 vcc, s43, v{CM}
            s_cbranch_vccnz P3_B{k}
            {mfs(k)}""")
        a(f"{'' if opt('fst', 0) else st(11)}\ns_branch P3_OK")
        for k in range(5):
            a(f"P3_B{k}:\ns_sleep {opt('p3s', 4)}")
            for kk in range(k, 4):
                a(f"buffer_load_dwordx4 {vr(OFR+4*kk,4)}, v{VA}, s[28:31], s44 offen offset:{1024*kk} sc1")
            a(f"buffer_load_dwordx2 {vr(OFR+16,2)}, v{VT}, s[28:31], s45 offen sc1\nbuffer_load_dwordx2 {vr(OFR+18,2)}, v{VT}, s[28:31], s45 offen offset:128 sc1")
            a(f"s_add_u32 s26, s26, 1\ns_cmp_lt_u32 s26, 0x40000\ns_cselect_b32 s43, -1, 0\ns_branch P3_C{k}")
        a("P3_OK:")
    else:
        a(f"P3_CHK:\ns_add_u32 s26, s26, 1\ns_waitcnt vmcnt(4)\nv_max3_u32 v{CM}, v{b}, v{b+1}, v{b+2}\nv_max3_u32 v{CT}, v{b+3}, v{b+4}, v{b+5}\nv_max3_u32 v{CM}, v{b+6}, v{b+7}, v{CM}\ns_waitcnt vmcnt(2)")
        a(f"v_max3_u32 v{CT}, v{b+8}, v{b+9}, v{CT}\nv_max3_u32 v{CM}, v{b+10}, v{b+11}, v{CM}\nv_max3_u32 v{CT}, v{b+12}, v{b+13}, v{CT}\nv_max3_u32 v{CM}, v{b+14}, v{b+15}, v{CM}\ns_waitcnt vmcnt(0)")
        a(f"""
    v_max3_u32 v{CT}, v{b+16}, v{b+17}, v{CT}
    v_max3_u32 v{CM}, v{b+18}, v{b+19}, v{CM}
    s_cmp_lt_u32 s26, 0x40000
    v_max_u32 v{CM}, v{CM}, v{CT}
    s_cbranch_scc0 P3_OK
    v_cmp_eq_u32 vcc, -1, v{CM}
    s_cbranch_vccz P3_OK
    s_sleep {opt("p3s", 4)}
    s_branch P3_TRY
P3_OK:
    {'' if opt('fst', 0) else st(11)}
    s_setprio {opt('p3p', 0)}
    """)
        for n in range(25):
            k, t = divmod(n, 5)
            a(f"v_mfma_f32_16x16x32_bf16 {vr(ACC+4*t,4)}, {vr(BF+4*n,4)}, {vr(OFR+4*k,4)}, {vr(ACC+4*t,4) if k else 0}")
    a("s_cmp_lg_u32 s42, 0\ns_cbranch_scc1 P3_WR")
    lwait(a, BMM, CT, 1, 8, 2)
    a(f"{str() if opt('fst', 0) else st(12)}\nP3_WR:\nv_add_u32 v{CM}, s46, v{VA}\nv_mov_b32 v{CT}, s40\ns_nop 1")
    for j in range(5): a(f"ds_write_b128 v{CM}, {vr(ACC+4*j,4)} offset:{1024*j}")
    a("s_waitcnt lgkmcnt(0)")
    ladd(a, CT, BMT, 0)
    a(f"""
    s_add_u32 s44, s44, {8*20480}
    s_add_u32 s45, s45, {8*20480}
    s_add_u32 s46, s46, {8*5120}
    s_add_u32 s40, s40, 8
    s_add_u32 s42, s42, 1
    s_cmp_ge_u32 s42, 2
    s_cbranch_scc1 P3_END
    s_cmp_ge_u32 s16, 4
    s_cbranch_scc1 P3_TRY
    """)
    for k in range(10): a(f"v_lshlrev_b32 v{YG+2*k}, 16, v{YG+10+k}\nv_and_b32 v{YG+2*k+1}, 0xffff0000, v{YG+10+k}")
    for k in range(20): a(f"v_mul_f32 v{YG+k}, v{YG+k}, v{G2}")
    a(f"""
    v_sub_f32 v{G2}, 1.0, v{G2}
    s_branch P3_TRY
P3_END:
    {st(10)}
    s_cmp_ge_u32 s16, 4
    s_cbranch_scc1 {"L_DONE" if STAMP else "L_END"}
    s_setprio 3
    s_lshl_b32 s23, s16, 2
    s_add_u32 s23, s23, {LFB + 80}
    v_mov_b32 v{CT}, s23
    s_mul_i32 s23, s16, 20480
    s_add_u32 s23, s23, {WOL}
    v_add_u32 v{CM}, s23, v{VA}
    """)
    lwait(a, CT, BMM, 1, 4, 1)
    a(st(9))
    for j in range(5):
        for g in range(4): a(f"ds_read_b128 {vr(16*j+4*g,4)}, v{CM} offset:{5120*g+1024*j}")
    for j in range(5):
        a(f"s_waitcnt lgkmcnt({min(15, 16-4*j)})")
        for r in (0, 2): a(f"v_pk_add_f32 {vr(16*j+r,2)}, {vr(16*j+r,2)}, {vr(16*j+4+r,2)}\nv_pk_add_f32 {vr(16*j+8+r,2)}, {vr(16*j+8+r,2)}, {vr(16*j+12+r,2)}")
        for r in (0, 2): a(f"v_pk_add_f32 {vr(16*j+r,2)}, {vr(16*j+r,2)}, {vr(16*j+8+r,2)}")
        for r in range(4): a(f"v_fmac_f32 v{YG+4*j+r}, v{16*j+r}, v{G2}")
        a(f"v_cvt_pk_bf16_f32 v{84+2*j}, v{YG+4*j}, v{YG+4*j+1}\nv_cvt_pk_bf16_f32 v{84+2*j+1}, v{YG+4*j+2}, v{YG+4*j+3}")
        if j == 1: a(f"buffer_store_dwordx4 v[84:87], v{VY2}, s[36:39], 0 offen" + OSC)
        if j == 3: a(f"buffer_store_dwordx4 v[88:91], v{VY2}, s[36:39], 0 offen offset:16" + OSC)
    a(f"buffer_store_dwordx2 v[92:93], v{VY2}, s[36:39], 0 offen offset:32" + OSC)

DOC = """;
"""
def main():
    a = A()
    top = open("cdna_kernels/" + NAME + ".s.ref").read().split("; Override launch")[0]
    top += "; @launch grid=(256,1,1) block=(768,1,1) lds=163840\n"
    top += DOC
    a('.amdgcn_target "amdgcn-amd-amdhsa--gfx950"\n.text')
    d = gen(a)
    open(sys.argv[1], "w").write(top + a.text() + '.section .rodata,"a"\n.p2align 6\n' + d)
if __name__ == "__main__":
    main()
```

```python
import sys, math, struct

OPT = dict(x.split("=") for x in sys.argv[2:])
def opt(k, d): return int(OPT.get(k, d))
NAME = "gated_mix__spectral_fnet__softmax_full_mha__prompt"
HS = 163840
KV_OFF = 0
HG = HS + opt('pad', 512)
HQ = 81920 + opt('pad', 512)
Q_OFF = 32 * HG
FE_OFF = Q_OFF + 32 * HQ
FO_DELTA = 655360
X512_OFF = FE_OFF + 2 * FO_DELTA
TB_OFF = X512_OFF + 4096
Y_OFF = TB_OFF + 33 * 65536
ZP = 8704
G_OFF = Y_OFF + 85 * 2 * ZP
OF_OFF = G_OFF + 8192
FLG_OFF = OF_OFF + 2621440
WS_USED = FLG_OFF + 320 * 128
XB = 102400
L_Y = 256
QLDS = 61440
RB0, RSL = 11264, 36864
LFB = 158720
WOL = 5120
AK1, AK2, AV, BK1, BK2, BV, OA1, OA2, ONES, PA, FA = range(152, 163)
VA, VT, BMM, BMT, CM, CT = 163, 164, 165, 166, 160, 161
PXB = 107520
def p3_addr(l):
    return f"""v_lshlrev_b32 v{VA}, 4, v{l}
    v_and_b32 v2, 7, v{l}
    v_bfe_u32 v4, v{l}, 3, 1
    v_lshrrev_b32 v3, 4, v{l}
    v_lshlrev_b32 v{VT}, 8, v3
    v_lshl_add_u32 v{VT}, v2, 4, v{VT}
    v_lshl_add_u32 v{VT}, v4, 3, v{VT}
    v_bfe_u32 v2, v{l}, 2, 2
    v_and_b32 v5, 3, v{l}
    v_mul_u32_u24 v5, 40, v5
    v_mul_u32_u24 v4, 40, v3
    v_add3_u32 v4, v4, v2, 16
    v_mul_u32_u24 v4, 160, v4
    v_add_u32 v{BMT}, v4, v5
    v_lshrrev_b32 v4, 1, v3
    v_mul_u32_u24 v4, 20, v4
    v_and_b32 v3, 1, v3
    v_lshl_add_u32 v4, v3, 2, v4
    v_add_u32 v4, v4, v2
    v_mul_u32_u24 v4, 160, v4
    v_add_u32 v{BMM}, v4, v5"""

def f32bits(x): return struct.unpack("<I", struct.pack("<f", x))[0]
QSCALE = f32bits((20 ** -0.5) * math.log2(math.e))
STAMP = opt("stamp", 0)
STAMP_OFF = 1 << 25
NST = 16

class A:
    def __init__(self): self.l = []; self.n = 0
    def __call__(self, s):
        for line in s.split("\n"):
            t = line.strip()
            if not t: continue
            self.l.append(t if t.endswith(":") or t.startswith(".") else "    " + t)
    def uid(self): self.n += 1; return self.n
    def text(self): return "\n".join(self.l) + "\n"

def vr(a, n): return f"v[{a}:{a+n-1}]" if n > 1 else f"v{a}"
def srd(lo, base, size):
    return f"s_mov_b32 s{lo}, s{base}\ns_mov_b32 s{lo+1}, s{base+1}\ns_mov_b32 s{lo+2}, {size}\ns_mov_b32 s{lo+3}, 0x20000"
OSC = " sc1" if opt("outsc1", 0) else ""
P1ST = opt("p1st", 0)
def st(i, p1=False):
    if not STAMP: return ""
    if P1ST and not p1 and 0 < i < 15 and i not in (4, 5): return ""
    if P1ST and not p1 and i in (4, 5): i += 8
    if p1 and not P1ST: return ""
    return f"{'s_memrealtime' if STAMP in (1, 3, 4) else 's_memtime'} s[{64+2*i}:{65+2*i}]"
def fin(): return "s_branch L_DONE" if STAMP else "s_endpgm"

X_P, WD_P, WQKV_P, WO_P, GATE_P, OUT_P, DBG_P, WS_P = 4, 8, 48, 50, 52, 54, 56, 58

def poll(a, vaddr, vdat, mask, target, sreg=60):
    u = a.uid()
    a(f"""
    s_mov_b64 exec, {mask}
    s_mov_b32 s{sreg}, 0
L_POLL{u}:
    buffer_load_dword v{vdat}, v{vaddr}, s[28:31], 0 offen sc1
    s_waitcnt vmcnt(0)
    v_cmp_gt_u32 vcc, {target}, v{vdat}
    s_cbranch_vccz L_POLLD{u}
    {'s_sleep 1' if opt('psleep', 0) else ''}
    s_add_u32 s{sreg}, s{sreg}, 1
    s_cmp_lt_u32 s{sreg}, 0x40000
    s_cbranch_scc1 L_POLL{u}
L_POLLD{u}:
    s_mov_b64 exec, -1
    """)

def poll4(a, vaddr, vdat, mask, soff="0", sreg=60, slp=None):
    u = a.uid()
    a(f"""
    s_mov_b64 exec, {mask}
    s_mov_b32 s{sreg}, 0
    s_branch L_POLLE{u}
L_POLL{u}:
    s_sleep {slp or opt("ps4", 2)}
L_POLLE{u}:
    buffer_load_dwordx4 {vr(vdat,4)}, v{vaddr}, s[28:31], {soff} offen sc1
    s_add_u32 s{sreg}, s{sreg}, 1
    s_waitcnt vmcnt(0)
    v_min3_u32 v{vdat}, v{vdat}, v{vdat+1}, v{vdat+2}
    s_cmp_lt_u32 s{sreg}, 0x40000
    v_min_u32 v{vdat}, v{vdat}, v{vdat+3}
    s_cbranch_scc0 L_POLLD{u}
    v_cmp_eq_u32 vcc, 0, v{vdat}
    s_cbranch_vccnz L_POLL{u}
L_POLLD{u}:
    s_mov_b64 exec, -1
    """)

def gen(a):
    label = NAME + "_kernel"
    a(f".p2align 8\n.globl {label}\n.type {label},@function\n{label}:")
    a(f"""
    s_cmp_ge_u32 s2, 256
    s_cbranch_scc1 L_END
    {st(0) + chr(10) + 's_waitcnt lgkmcnt(0)' if opt("st0first", 0) else ''}
    s_load_dwordx2 s[4:5], s[0:1], 0
    s_load_dwordx8 s[48:55], s[0:1], 48
    s_load_dwordx4 s[8:11], s[0:1], 24
    s_load_dwordx4 s[56:59], s[0:1], 80
    """)
    if STAMP:
        a("\n".join(f"s_mov_b32 s{64+j}, 0" for j in range(2, 2 * NST)) + "\n" + ("" if opt("st0first", 0) else st(0)))
    a(f"""
    v_lshrrev_b32 v1, 6, v0
    v_and_b32 v0, 63, v0
    s_and_b32 s17, s2, 7
    v_readfirstlane_b32 s16, v1
    s_lshr_b32 s18, s2, 3
    s_and_b32 s19, s18, 7
    s_lshr_b32 s22, s18, 3
    s_and_b32 s21, s17, 1
    s_lshl_b32 s23, s19, 1
    s_add_u32 s21, s21, s23
    s_lshr_b32 s20, s17, 1
    s_cmp_ge_u32 s19, {opt("numl", 3)}
    s_cselect_b32 s12, 1, 0
    s_cmp_eq_u32 s22, 0
    s_cselect_b32 s12, 0, s12
    s_cmp_ge_u32 s16, 4
    s_cbranch_scc1 P1_NOTLOADER
    """)
    p1_loader(a)
    a(f"""
P1_NOTLOADER:
    s_lshl_b32 s63, s17, 2
    s_add_u32 s63, s63, s22
    s_mul_i32 s14, s63, {HG}
    s_sub_u32 s13, s16, 4
    s_lshl_b32 s23, s19, 3
    s_add_u32 s23, s23, s13
    s_mul_i32 s23, s23, 40960
    s_add_u32 s23, s23, {OF_OFF}
    s_lshl_b32 s6, s63, 9
    s_add_u32 s6, s6, s23
    s_lshl_b32 s7, s63, 7
    s_add_u32 s7, s7, s23
    s_add_u32 s7, s7, 16384
    s_lshl_b32 s15, s20, 2
    s_add_u32 s15, s15, s22
    s_lshl_b32 s15, s15, 4
    s_add_u32 s15, s15, s21
    s_lshl_b32 s15, s15, 5
    s_add_u32 s15, s15, s13
    s_lshl_b32 s15, s15, 2
    s_add_u32 s15, s15, {FLG_OFF}
    v_and_b32 v1, 31, v0
    v_lshrrev_b32 v2, 5, v0
    v_lshlrev_b32 v{AK1}, 4, v0
    v_lshrrev_b32 v3, 4, v1
    v_lshl_add_u32 v3, v3, 1, v2
    v_and_b32 v4, 15, v0
    v_lshl_add_u32 v3, v4, 2, v3
    v_lshlrev_b32 v{AK2}, 2, v3
    v_mul_u32_u24 v{AV}, 384, v2
    v_lshlrev_b32 v3, 6, v2
    v_cmp_gt_u32 vcc, 16, v1
    s_nop 1
    v_cndmask_b32 v{AV}, v3, v{AV}, vcc
    v_lshl_add_u32 v{AV}, v1, 4, v{AV}
    v_add_u32 v{BK1}, 15360, v{AK1}
    v_add_u32 v{BK2}, 15360, v{AK2}
    v_add_u32 v{BV}, 15360, v{AV}
    v_and_b32 v3, 27, v1
    v_cmp_eq_u32 vcc, 24, v3
    v_mov_b32 v3, 0x3f803f80
    v_bfe_u32 v{OA2}, v1, 3, 1
    v_cndmask_b32 v{ONES}, 0, v3, vcc
    v_mul_u32_u24 v{OA2}, 20480, v{OA2}
    v_and_b32 v3, 7, v1
    v_lshl_add_u32 v{OA2}, v3, 4, v{OA2}
    v_lshrrev_b32 v3, 4, v0
    v_lshl_add_u32 v{OA1}, v3, 7, v{OA2}
    s_lshl_b32 s23, s13, 2
    s_add_u32 s23, s23, {LFB}
    v_mov_b32 v{PA}, s23
    v_mov_b32 v{FA}, {LFB + 56}
    {p3_addr(0)}
    s_cmp_ge_u32 s16, 8
    s_cbranch_scc1 P1_EXTRA
    """)
    p1_compute(a)
    p1_extra(a)
    attention(a)
    helpers(a)
    a("L_DONE:")
    if STAMP == 4:
        i_, j_ = opt("ai", 0), opt("aj", 0)
        a(f"""s_waitcnt vmcnt(0)
        {st(NST-1)}
        s_waitcnt lgkmcnt(0)
        s_cmp_ge_u32 s16, {opt("aw", 4)}
        s_cbranch_scc1 L_END
        s_and_b32 s60, s2, {opt("am", 31)}
        s_cmp_lg_u32 s60, {opt("av", 5)}
        s_cbranch_scc1 L_END
        s_sub_u32 s60, s{64+2*j_}, s{64+2*i_}
        s_lshl_b32 s60, s60, 2
        s_min_u32 s60, s60, 100000
        {f's_mov_b32 s60, {opt("fix", 0)}' if opt("fix", 0) else ''}
L_AMP:
        s_memrealtime s[44:45]
        s_waitcnt lgkmcnt(0)
        s_sub_u32 s44, s44, s{64 if opt("fix", 0) else 64+2*(NST-1)}
        s_cmp_lt_u32 s44, s60
        s_cbranch_scc1 L_AMP
        """)
    elif STAMP == 3:
        r = f"s_waitcnt vmcnt(0)\n{st(NST-1)}\ns_mov_b64 exec, 1\n{srd(44, DBG_P, 256)}\ns_waitcnt lgkmcnt(0)\nv_mov_b32 v16, 0\n"
        r += "s_not_b32 s60, s64\nv_mov_b32 v0, s60\nbuffer_atomic_umax v0, v16, s[44:47], 0 offen offset:4 sc1\n"
        r += "s_cmp_eq_u32 s16, 0\ns_cbranch_scc1 L_D0\ns_cmp_eq_u32 s16, 4\ns_cbranch_scc0 L_END\n"
        for n, i in enumerate((2, 3, 4, 5, 7, 8, 9)): r += f"v_mov_b32 v{n+1}, s{64+2*i}\nbuffer_atomic_umax v{n+1}, v16, s[44:47], 0 offen offset:{8+4*n} sc1\n"
        r += "s_endpgm\nL_D0:\n"
        for n, i in enumerate((0, 1, 6, 8, 9, 10, 15)): r += f"v_mov_b32 v{n+1}, s{64+2*i}\nbuffer_atomic_umax v{n+1}, v16, s[44:47], 0 offen offset:{36+4*n} sc1\n"
        a(r)
    elif STAMP:
        r = f"s_waitcnt vmcnt(0)\n{st(NST-1)}\ns_mov_b64 exec, 1\ns_add_u32 s44, s{WS_P}, {STAMP_OFF}\ns_addc_u32 s45, s{WS_P+1}, 0\ns_mov_b32 s46, 262144\ns_mov_b32 s47, 0x20000\n"
        r += "s_lshl_b32 s60, s2, 4\ns_add_u32 s60, s60, s16\ns_lshl_b32 s60, s60, 6\ns_waitcnt lgkmcnt(0)\nv_mov_b32 v16, 0\n"
        if opt("xcc", 0): r += "s_getreg_b32 s66, hwreg(HW_REG_XCC_ID)\ns_add_u32 s66, s66, 100\n"
        for i in range(NST): r += f"v_mov_b32 v{i}, s{64+2*i}\n"
        for i in range(4): r += f"buffer_store_dwordx4 v[{4*i}:{4*i+3}], v16, s[44:47], s60 offen offset:{16*i}\n"
        a(r)
    a("L_END:\ns_endpgm\n.fill 256, 4, 0xbf810000\nL_CODE_END:")
    return f""".amdhsa_kernel {label}
  .amdhsa_next_free_vgpr 168
  .amdhsa_next_free_sgpr {100 if STAMP else 64}
  .amdhsa_accum_offset 168
  .amdhsa_group_segment_fixed_size 0
  .amdhsa_kernarg_size 96
  .amdhsa_user_sgpr_count 2
  .amdhsa_user_sgpr_kernarg_segment_ptr 1
  .amdhsa_system_sgpr_workgroup_id_x 1
.end_amdhsa_kernel
"""

def p1_loader(a):
    a(f"""
    s_setprio 3
    """)
    if opt("pf", 0):
        a(f"""
        v_lshlrev_b32 v20, 4, v0
        s_mul_i32 s23, s2, 10240
        s_and_b32 s24, s16, 1
        s_mul_i32 s24, s24, 5120
        s_add_u32 s23, s23, s24
        s_mul_i32 s25, s2, 3
        s_mov_b32 s31, 0x20000
        s_mov_b32 s35, 0x20000
        s_mov_b32 s34, {640*1280}
        s_waitcnt lgkmcnt(0)
        s_mov_b32 s30, {2048*1280}
        s_cmp_lt_u32 s16, 2
        s_cselect_b32 s28, s{X_P}, s{WQKV_P}
        s_cselect_b32 s29, s{X_P+1}, s{WQKV_P+1}
        s_cselect_b32 s30, s30, {640*3840}
        s_cselect_b32 s32, s8, s10
        s_cselect_b32 s33, s9, s11
        buffer_load_dwordx4 v[24:27], v20, s[28:31], s23 offen
        buffer_load_dwordx4 v[28:31], v20, s[28:31], s23 offen offset:1024
        buffer_load_dwordx4 v[32:35], v20, s[28:31], s23 offen offset:2048
        buffer_load_dwordx4 v[36:39], v20, s[28:31], s23 offen offset:3072
        s_add_u32 s23, s23, 4096
        buffer_load_dwordx4 v[40:43], v20, s[28:31], s23 offen
        s_lshr_b32 s24, s24, 11
        s_add_u32 s25, s25, s24
        s_mul_i32 s25, s25, 1280
        s_mov_b32 exec_hi, 0xff
        buffer_load_dwordx4 v[44:47], v20, s[32:35], s25 offen
        s_bitcmp1_b32 s16, 0
        s_cbranch_scc1 P1_PF1
        buffer_load_dwordx4 v[48:51], v20, s[32:35], s25 offen offset:1280
P1_PF1:
        s_mov_b32 exec_hi, -1
        """)
    a(f"""
    v_lshrrev_b32 v2, 3, v0
    v_and_b32 v3, 7, v0
    v_lshrrev_b32 v4, 4, v0
    v_xor_b32 v3, v3, v4
    v_lshlrev_b32 v3, 4, v3
    v_xor_b32 v4, 64, v3
    s_lshl_b32 s23, s21, 5
    s_lshr_b32 s24, s16, 1
    s_lshl_b32 s24, s24, 4
    s_add_u32 s23, s23, s24
    v_add_u32 v9, s23, v2
    s_bitcmp1_b32 s16, 0
    s_cselect_b32 s23, -1, 1
    s_cselect_b32 s24, 0x400, 0
    s_cselect_b32 s25, -8, 8
    v_mul_lo_u32 v10, v9, s23
    s_sub_u32 s27, 0x800, s24
    v_add_u32 v5, s24, v10
    v_sub_u32 v7, s27, v10
    v_add_u32 v6, s25, v5
    v_subrev_u32 v8, s25, v7
    v_cmp_eq_u32 vcc, 0, v9
    s_add_u32 s24, s24, 0x200
    v_mov_b32 v9, s24
    s_cmp_lg_u32 s22, 2
    v_cndmask_b32 v7, v7, v9, vcc
    s_cbranch_scc1 P1_LD_NV
    v_swap_b32 v6, v7
P1_LD_NV:
    s_lshl_b32 s26, s22, 2
    s_add_u32 s26, s26, s20
    s_and_b32 s27, s20, 1
    s_movk_i32 s25, 3840
    s_cmp_eq_u32 s22, 3
    s_cselect_b32 s25, 1280, s25
    s_cselect_b32 s26, s27, s26
    s_mul_i32 s26, s26, 320
    s_movk_i32 s27, 1280
    v_mad_u32_u24 v10, v5, s27, v3
    v_mad_u32_u24 v11, v6, s27, v4
    v_mad_u32_u24 v12, v7, s27, v3
    v_mad_u32_u24 v13, v8, s27, v4
    s_lshl_b32 s27, s16, 4
    s_mul_i32 s27, s27, s25
    s_add_u32 s26, s26, s27
    s_sub_u32 s27, s25, 320
    """)
    for i in range(5):
        a(f"""
        v_add_u32 v5, {64*i}, v0
        v_mul_u32_u24 v6, 3277, v5
        v_lshrrev_b32 v6, 16, v6
        v_lshrrev_b32 v7, 2, v6
        v_and_b32 v7, 2, v7
        v_xor_b32 v5, v5, v7
        v_lshl_add_u32 v5, v5, 4, s26
        v_mad_u32_u24 v{14+i}, v6, s27, v5
        """)
    sg = opt("stag1", 7)
    if sg == 1:
        a("s_lshl_b32 s36, s19, 3\ns_lshl_b32 s37, s22, 4\ns_add_u32 s36, s36, s37\ns_add_u32 s36, s36, s17\ns_and_b32 s36, s36, 63\ns_mul_i32 s36, s36, 10\ns_lshr_b32 s36, s36, 6")
    elif sg == 2:
        a("s_add_u32 s36, s19, s22\ns_lshl_b32 s36, s36, 4\ns_add_u32 s36, s36, s17\ns_add_u32 s36, s36, s17\ns_and_b32 s36, s36, 63\ns_mul_i32 s36, s36, 10\ns_lshr_b32 s36, s36, 6")
    elif sg == 3:
        a("s_add_u32 s36, s19, s22\ns_lshl_b32 s36, s36, 5\ns_lshl_b32 s37, s17, 2\ns_add_u32 s36, s36, s37\ns_and_b32 s36, s36, 63\ns_mul_i32 s36, s36, 10\ns_lshr_b32 s36, s36, 6")
    elif sg >= 10:
        nc = sg - 9
        Gn = 5 - nc
        rot = [2 * (nc + k % Gn) for k in range(2 * Gn - 1)]
        rv = sum(v << (4 * k) for k, v in enumerate(rot))
        com = sum((2 * k) << (4 * k) for k in range(nc))
        a(f"""
        s_lshr_b32 s36, s17, 1
        s_xor_b32 s36, s36, s17
        s_and_b32 s36, s36, 1
        s_add_u32 s37, s22, s19
        s_lshr_b32 s46, s17, 2
        s_lshl_b32 s46, s46, {opt("xsh", 1)}
        s_add_u32 s37, s37, s46
        s_mul_i32 s46, s37, {256 // Gn + 1}
        s_lshr_b32 s46, s46, 8
        s_mul_i32 s46, s46, {Gn}
        s_sub_u32 s37, s37, s46
        s_lshl_b32 s37, s37, 2
        s_lshr_b32 s46, {rv:#x}, s37
        s_and_b32 s46, s46, {(1 << (4 * Gn)) - 1:#x}
        s_lshl_b32 s46, s46, {4 * nc}
        s_or_b32 s46, s46, {0x53100000 | com:#x}
        s_mov_b32 s47, 0x97
        s_mul_i32 s37, s36, 0x11111111
        s_xor_b32 s46, s46, s37
        s_xor_b32 s47, s47, s37
        s_and_b32 s36, s46, 15
        """)
    elif sg >= 5:
        tsh = {5: 0, 6: 1, 7: 0, 8: 0, 9: 0}[sg]
        a(f"""
        s_lshr_b32 s36, s17, 1
        s_xor_b32 s36, s36, s17
        s_and_b32 s36, s36, 1
        {'s_min_u32 s37, s22, 2' if sg == 9 else f's_lshr_b32 s37, s22, {tsh}'}
        s_add_u32 s37, s37, s19
        s_lshr_b32 s46, s17, 2
        s_lshl_b32 s46, s46, 1
        s_add_u32 s37, s37, s46
        s_mul_i32 s46, s37, 52
        s_lshr_b32 s46, s46, 8
        s_mul_i32 s46, s46, 5
        s_sub_u32 s37, s37, s46
        s_lshl_b32 s37, s37, 2
        s_mov_b32 s46, 0x42086420
        s_mov_b32 s47, 0x6
        s_lshr_b64 s[46:47], s[46:47], s37
        s_and_b32 s46, s46, 0xfffff
        {'s_or_b32 s47, s46, 0x11111' + chr(10) + 's_lshl_b32 s37, s47, 20' + chr(10) + 's_or_b32 s46, s46, s37' + chr(10) + 's_lshr_b32 s47, s47, 12' if sg == 8 else 's_or_b32 s46, s46, 0x53100000' + chr(10) + 's_mov_b32 s47, 0x97'}
        s_mul_i32 s37, s36, 0x11111111
        s_xor_b32 s46, s46, s37
        s_xor_b32 s47, s47, s37
        """)
        if sg == 7:
            a("s_lshr_b32 s37, s47, 4\ns_and_b32 s37, s37, 15\ns_lshl_b64 s[46:47], s[46:47], 4\ns_or_b32 s46, s46, s37")
        a("s_and_b32 s36, s46, 15")
    else:
        a("s_mov_b32 s36, 0")
    a(f"""
    s_lshl_b32 s38, s16, 12
    s_add_u32 s38, s38, {RB0}
    s_mul_i32 s39, s16, 5120
    s_add_u32 s39, s39, {RB0 + 16384}
    s_mov_b32 s40, 0
    s_mul_i32 s34, s25, 640
    s_lshl_b32 s25, s25, 6
    s_mov_b32 s35, 0x20000
    s_waitcnt lgkmcnt(0)
    {srd(28, X_P, 2048*1280)}
    s_cmp_lt_u32 s20, 2
    s_cselect_b32 s32, s8, s10
    s_cselect_b32 s33, s9, s11
    s_cmp_eq_u32 s22, 3
    s_cselect_b32 s32, s32, s{WQKV_P}
    s_cselect_b32 s33, s33, s{WQKV_P+1}
    {st(1)}
    """)
    if opt("dftdelay", 0):
        a(f"""s_cmp_lg_u32 s22, 3
        s_cbranch_scc1 P1_LD_LOOP
        s_memrealtime s[42:43]
        s_waitcnt lgkmcnt(0)
        s_add_u32 s42, s42, {opt("dftdelay", 0)}
P1_DLY:
        s_memrealtime s[44:45]
        s_waitcnt lgkmcnt(0)
        s_cmp_lt_u32 s44, s42
        s_cbranch_scc1 P1_DLY
        """)
    a(f"""
P1_LD_LOOP:
    s_lshl_b32 s41, s36, 7
    s_mul_i32 s42, s36, s25
    s_add_u32 s43, s40, 2
    s_and_b32 s43, s43, 3
    s_mul_i32 s43, s43, {RSL}
    s_add_u32 s44, s43, s38
    s_add_u32 s45, s43, s39
    """)
    for i in range(4):
        a(f"s_add_u32 m0, s44, {1024*i}\ns_nop 0\nbuffer_load_dwordx4 v{10+i}, s[28:31], s41 offen lds")
    for i in range(5):
        a(f"s_add_u32 m0, s45, {1024*i}\ns_nop 0\nbuffer_load_dwordx4 v{14+i}, s[32:35], s42 offen lds")
    if opt("noload", 0): a("s_cmp_ge_u32 s40, 3\ns_cselect_b32 s30, 0, s30\ns_cselect_b32 s34, 0, s34")
    a(f"""
    {'s_lshr_b64 s[46:47], s[46:47], 4' + chr(10) + 's_and_b32 s36, s46, 15' if sg >= 5 else 's_add_u32 s36, s36, 1' + chr(10) + 's_cmp_eq_u32 s36, 10' + chr(10) + 's_cselect_b32 s36, 0, s36'}
    s_add_u32 s40, s40, 1
    s_cmp_eq_u32 s40, 1
    s_cbranch_scc1 P1_LD_LOOP
    s_waitcnt vmcnt(9)
    s_barrier
    s_cmp_lt_u32 s40, 10
    s_cbranch_scc1 P1_LD_LOOP
    s_waitcnt vmcnt(0)
    s_barrier
    s_branch HELPER
    """)

def p1_compute(a):
    X = 80; W = [96, 116]; XA = 136; WA = 137; CX = 142; CW = 144; PC = 149; L = 150; TT = 96
    def acc(b, T): return 20 * b + 4 * T
    a(f"""
    s_sub_u32 s61, s16, 4
    s_and_b32 s36, s61, 1
    s_lshr_b32 s37, s61, 1
    v_mov_b32 v{L}, v0
    v_and_b32 v1, 15, v0
    v_lshrrev_b32 v2, 4, v0
    v_lshrrev_b32 v3, 1, v1
    v_xor_b32 v3, v3, v2
    v_lshlrev_b32 v3, 4, v3
    v_lshl_add_u32 v3, v1, 7, v3
    s_lshl_b32 s23, s36, 13
    s_add_u32 s23, s23, {RB0}
    v_add_u32 v{XA}, s23, v3
    v_bfe_u32 v3, v0, 2, 2
    v_lshl_add_u32 v3, v2, 3, v3
    v_mul_u32_u24 v3, 320, v3
    v_add_u32 v3, {RB0 + 16384}, v3
    v_and_b32 v4, 16, v0
    v_lshlrev_b32 v4, 1, v4
    v_and_b32 v5, 3, v0
    s_mul_i32 s23, s37, 160
    v_lshl_add_u32 v6, v5, 3, s23
    """)
    for T in range(4):
        a(f"v_xor_b32 v7, v6, v4\nv_add_u32 v{WA+T}, v7, v3\nv_add_u32 v6, 40, v6")
    a(f"""
    v_mul_u32_u24 v6, 40, v5
    v_add3_u32 v6, v6, s23, 32
    v_xor_b32 v7, v6, v4
    v_add_u32 v{WA+4}, v7, v3
    v_mov_b32 v{PC}, 0xbf803f80
    s_lshl_b32 s26, s22, 2
    s_add_u32 s26, s26, s20
    s_lshl_b32 s26, s26, 1
    s_add_u32 s26, s26, s37
    s_cmp_eq_u32 s26, 28
    s_cselect_b32 s24, 0x10001, 0
    s_mov_b32 s25, s24
    s_cmp_eq_u32 s22, 3
    s_cselect_b32 s43, 10, 8
    s_mov_b32 s40, 0
    s_mov_b32 s42, {2 * RSL}
    """)
    for r in range(96): a(f"v_mov_b32 v{r}, 0")
    for r in range(20): a(f"v_mov_b32 v{W[1]+r}, 0")
    a(f"v_add_u32 v{CX}, s42, v{XA}")
    for T in range(5): a(f"v_add_u32 v{CW+T}, s42, v{WA+T}")
    a(f"s_waitcnt lgkmcnt(0)\n{srd(28, WS_P, WS_USED)}")
    a("s_cmp_ge_u32 s22, 2\ns_cbranch_scc1 P1_PRE_V")
    def mf(b, T, x, w, qk):
        d = vr(acc(b, T), 4)
        return f"v_mfma_f32_16x16x32_bf16 {d}, {vr(w,4)}, {vr(x,4)}, {d}" if qk else f"v_mfma_f32_16x16x32_bf16 {d}, {vr(x,4)}, {vr(w,4)}, {d}"
    def rdw(d, T, step): return [f"ds_read_b64_tr_b16 {vr(d+2*j,2)}, v{CW+T} offset:{(step // 2) * RSL + (step % 2) * 10240 + 1280 * j}" for j in range(2)]
    def rdx(d, b, step): return f"ds_read_b128 {vr(d,4)}, v{CX + step % 2} offset:{(step // 2) * RSL + 2048 * b}"
    TO = (1, 2, 3, 4, 0)
    def group(step, qk, reads=True):
        cur = W[1 - step]; nxt = W[step]
        rq = []
        for T in TO: rq += rdw(nxt + 4 * T, T, step)
        fill = []
        if step == 1:
            fill = ["s_add_u32 s40, s40, 1", "s_add_u32 s41, s40, 2", "s_and_b32 s41, s41, 3", f"s_mul_i32 s42, s41, {RSL}", f"v_add_u32 v{CX}, s42, v{XA}"] + [f"v_add_u32 v{CW+T}, s42, v{WA+T}" for T in range(5)]
        issued = 0
        for b in range(4):
            if reads:
                allow = [2, 15, issued + 1, issued][b]
                if b != 1: a(f"s_waitcnt lgkmcnt({min(15, allow)})")
            elif b == 0: a("s_waitcnt lgkmcnt(0)")
            for n, T in enumerate(TO):
                a(mf(b, T, X + 4 * b, cur + 4 * T, qk))
                if b == 0 and n < 2 and not qk:
                    for j in range(2): a(f"v_cndmask_b32 v{cur+2*n+j}, v{cur+2*n+j}, v{PC}, s[24:25]")
                if not reads: continue
                if step == 0 and b == 0:
                    if n == 0: a(f"v_xor_b32 v{CX+1}, 64, v{CX}")
                    if n == 1: a("s_barrier")
                    if n < 2: continue
                if n == 4: a(rdx(X + 4 * b, b, step)); issued += 1
                elif rq: a(rq.pop(0)); issued += 1
                elif fill:
                    a(fill.pop(0))
                    if fill: a(fill.pop(0))
        assert not reads or (not rq and not fill), (rq, fill)

    def tail(qk, epi):
        seq = [(b, T, ("x0", b), ("w0", T)) for b in range(4) for T in TO]
        marks = {}
        win = opt("win", 2)
        for step in range(4 - win):
            for b in range(4):
                for T in TO: seq.append((b, T, ("x", 0, step, b), ("w", step, T)))
        for T in range(5):
            for jj in range(2):
                for step in range(4 - win, 4):
                    for b in (2 * jj, 2 * jj + 1): seq.append((b, T, ("x", 0, step, b), ("w", step, T)))
                marks[len(seq) - 1] = (T, jj)
        last = {}
        for n, (_, _, x, w) in enumerate(seq): last[x] = n; last[w] = n
        loc = {("x0", b): X + 4 * b for b in range(4)}; loc.update({("w0", T): W[1] + 4 * T for T in range(5)})
        free = [W[0] + 4 * k for k in range(5)] + [XA]
        order = []
        for _, _, x, w in seq:
            for f in (w, x):
                if f not in loc and f not in order: order.append(f)
        done_at = {}; nrd = 0; waited = 0; pend = []; fill = []
        cnt = [0]; prev = [0]
        def em(t): a(t); cnt[0] += 1
        a(f"v_xor_b32 v{CX+1}, 64, v{CX}\ns_waitcnt lgkmcnt(0)\ns_barrier")
        bar2 = [True]
        def take():
            f = order.pop(0); loc[f] = free.pop(0)
            if bar2 and (f[1] if f[0] == "w" else f[2]) >= 2: em("s_barrier"); bar2.pop()
            p_ = rdw(loc[f], f[2], f[1]) if f[0] == "w" else [rdx(loc[f], f[3], f[2])]
            done_at[f] = nrd + len(p_)
            return p_
        def gap():
            t, at, after = fill[0]
            return max(at - cnt[0], prev[0] + after - cnt[0], 0)
        def put():
            em(fill.pop(0)[0]); prev[0] = cnt[0]
        for n, (b, T, x, w) in enumerate(seq):
            while any(f not in loc or (f in done_at and done_at[f] > nrd) for f in (x, w)):
                if not pend: pend = take()
                em(pend.pop(0)); nrd += 1
            need = max(done_at.get(x, 0), done_at.get(w, 0))
            if need > waited:
                waited = max(need, nrd - opt("tw", 6)); em(f"s_waitcnt lgkmcnt({nrd - waited})")
            em(mf(b, T, loc[x], loc[w], qk))
            if n in marks: fill += [(t, cnt[0] + 8, after) for t, after in epi(*marks[n])]
            for f in (x, w):
                if last[f] == n: free.append(loc[f])
            if not pend and order and free: pend = take()
            if pend: em(pend.pop(0)); nrd += 1
            for _ in range(2):
                if fill and gap() == 0: put()
        a(st(3))
        while fill:
            g_ = gap()
            if g_: a(f"s_nop {g_ - 1}"); cnt[0] += g_
            put()

    EA, EB = 167, 151
    def cv(d, r): return [f"v_cvt_pk_bf16_f32 v{d}, v{r}, v{r+1}", f"v_cvt_pk_bf16_f32 v{d+1}, v{r+2}, v{r+3}"]
    def epi_qk(ph, jj=0):
        if ph < 0:
            return f"""s_mov_b32 s35, {HG}
            s_movk_i32 s38, 2560
            s_cmp_eq_u32 s22, 0
            s_cselect_b32 s35, {HQ}, s35
            s_cselect_b32 s27, {Q_OFF}, {KV_OFF}
            s_cselect_b32 s38, 1280, s38
            s_lshl_b32 s26, s20, 1
            s_add_u32 s26, s26, s37
            s_lshl_b32 s26, s26, 2
            s_mul_i32 s26, s26, s35
            s_add_u32 s26, s26, s27
            s_lshl_b32 s23, s21, 1
            s_add_u32 s23, s23, s36
            s_lshl_b32 s23, s23, 1
            s_mul_i32 s23, s23, s38
            s_add_u32 s26, s26, s23
            s_add_u32 s27, s26, s38
            v_lshrrev_b32 v{EA}, 4, v{L}
            v_mul_lo_u32 v{EA}, v{EA}, s35
            v_and_b32 v{TT}, 15, v{L}
            v_lshl_add_u32 v{EA}, v{TT}, 4, v{EA}
            v_lshlrev_b32 v{EB}, 4, v{L}
            s_add_u32 s44, s26, s35
            s_add_u32 s45, s27, s35
            s_add_u32 s46, s44, s35
            s_add_u32 s47, s45, s35
            s_add_u32 s32, s46, s35
            s_add_u32 s33, s47, s35""".split("\n")
        T = ph
        r0, r1 = acc(2 * jj, T), acc(2 * jj + 1, T)
        o = [(t, 0) for t in cv(r0, r0) + cv(r0 + 2, r1)]
        if T < 4:
            o += [(f"v_permlane16_swap_b32 v{r0}, v{r0+2}", 1), (f"v_permlane16_swap_b32 v{r0+1}, v{r0+3}", 0)]
            o.append((f"buffer_store_dwordx4 {vr(r0,4)}, v{EB}, s[28:31], s{(26, 44, 46, 32)[T] + jj} offen sc1", 0))
        else:
            o.append((f"buffer_store_dwordx4 {vr(r0,4)}, v{EA}, s[28:31], s{26 + jj} offen offset:1024 sc1", 0))
        return o
    def epi_v(ph, jj=0):
        if ph < 0:
            return f"""s_lshl_b32 s26, s20, 1
            s_add_u32 s26, s26, s37
            s_mul_i32 s26, s26, {4*HG}
            s_lshl_b32 s23, s21, 1
            s_add_u32 s23, s23, s36
            s_mul_i32 s23, s23, 5120
            s_add_u32 s26, s26, s23
            s_add_u32 s26, s26, {KV_OFF + 1280}
            s_add_u32 s44, s26, {HG}
            s_add_u32 s45, s26, {2*HG}
            s_add_u32 s46, s26, {3*HG}
            s_mov_b32 s35, {HG}
            v_lshrrev_b32 v{EA}, 5, v{L}
            v_mul_u32_u24 v{EA}, 640, v{EA}
            v_bfe_u32 v{TT}, v{L}, 4, 1
            v_lshl_add_u32 v{EB}, v{TT}, 6, v{EA}
            v_mul_u32_u24 v{TT}, 384, v{TT}
            v_add_u32 v{EA}, v{EA}, v{TT}
            v_and_b32 v{TT}, 15, v{L}
            v_lshl_add_u32 v{EA}, v{TT}, 4, v{EA}
            v_and_b32 v{TT}, 3, v{L}
            v_lshl_add_u32 v{EB}, v{TT}, 4, v{EB}
            v_bfe_u32 v{TT}, v{L}, 2, 2
            v_mul_lo_u32 v{TT}, v{TT}, s35
            v_add_u32 v{EB}, v{EB}, v{TT}""".split("\n")
        T = ph
        r0, r1 = acc(2 * jj, T), acc(2 * jj + 1, T)
        o = [(t, 0) for t in cv(r0, r0) + cv(r0 + 2, r1)]
        if T < 4: o.append((f"buffer_store_dwordx4 {vr(r0,4)}, v{EA}, s[28:31], s{(26, 44, 45, 46)[T]} offen offset:{2560 * jj} sc1", 0))
        else: o.append((f"buffer_store_dwordx4 {vr(r0,4)}, v{EB}, s[28:31], s26 offen offset:{2560 * jj + 256} sc1", 0))
        return o

    for qk, lab in ((True, "QK"), (False, "V")):
        a(f"P1_PRE_{lab}:")
        for f in (epi_qk if qk else epi_v)(-1): a(f)
        a(f"P1_LOOP_{lab}:")
        group(0, qk)
        if STAMP: a(f"s_cmp_lg_u32 s40, 0\ns_cbranch_scc1 P1_ST_{lab}\n{st(2)}\nP1_ST_{lab}:\ns_cmp_lg_u32 s40, 5\ns_cbranch_scc1 P1_SU_{lab}\n{st(1)}\nP1_SU_{lab}:")
        group(1, qk)
        a(f"s_cmp_lt_u32 s40, s43\ns_cbranch_scc1 P1_LOOP_{lab}")
        if not qk: a("s_cmp_eq_u32 s22, 3\ns_cbranch_scc1 P1_EPI_DFT")
        a("s_cmp_eq_u32 s12, 1\ns_cselect_b32 s30, 0, s30")
        tail(qk, epi_qk if qk else epi_v)
        a(f"s_cmp_eq_u32 s12, 0\ns_cbranch_scc1 P1_DONE\ns_mov_b32 s30, {WS_USED}\nv_mov_b32 v88, {LFB + 56}\nv_mov_b32 v89, 1")
        ladd(a, 88, 89, 0)
        a("s_setprio 3\ns_barrier")
        for T in range(5):
            for jj in range(2): a((epi_qk if qk else epi_v)(T, jj)[-1][0])
        a("s_branch P1_DONE")
    a("P1_EPI_DFT:")
    group(0, False, reads=False)
    TAU, TAU0, E0 = 80, 81, 140
    a(f"""
    {st(3)}
    s_cmp_lt_u32 s20, 2
    s_cselect_b32 s38, 1.0, -1.0
    v_mov_b32 v{TAU}, s38
    v_cndmask_b32 v{TAU0}, v{TAU}, 1.0, s[24:25]
    s_lshl_b32 s26, s20, 1
    s_add_u32 s26, s26, s37
    s_mul_i32 s26, s26, 80
    v_and_b32 v88, 15, v{L}
    v_add_u32 v{E0}, s26, v88
    v_add_u32 v{E0+1}, 20, v{E0}
    v_add_u32 v{E0+2}, 40, v{E0}
    v_add_u32 v{E0+3}, 60, v{E0}
    v_and_b32 v89, 12, v{L}
    v_lshl_add_u32 v{E0+4}, v89, 2, v{E0}
    v_add_u32 v{E0+4}, 16, v{E0+4}
    s_lshl_b32 s23, s21, 1
    s_add_u32 s23, s23, s36
    s_cmp_lg_u32 s23, 0
    s_cbranch_scc1 P1_EPI_DFT2
    s_mov_b64 exec, 0xffff
    s_mov_b32 s27, {X512_OFF}
    """)
    for T in range(5):
        a(f"v_fma_f32 v{96+T}, v{acc(3,T)}, v{TAU0 if T == 0 else TAU}, v{acc(1,T)}")
        a(f"v_lshlrev_b32 v{104+T}, 2, v{E0+T}\nv_mov_b32 v{acc(1,T)}, 0\nv_mov_b32 v{acc(3,T)}, 0")
        a(f"buffer_store_dword v{96+T}, v{104+T}, s[28:31], s27 offen sc1")
    a(f"""
    s_mov_b64 exec, -1
P1_EPI_DFT2:
    s_lshl_b32 s26, s23, 9
    s_add_u32 s26, s26, {FE_OFF}
    s_mov_b32 s27, {FO_DELTA}
    v_bfe_u32 v88, v{L}, 4, 1
    v_mul_lo_u32 v88, v88, s27
    v_lshrrev_b32 v89, 5, v{L}
    v_lshl_add_u32 v88, v89, 8, v88
    """)
    for T in range(5):
        tau = TAU0 if T == 0 else TAU
        a0, a1, a2, a3 = (acc(b, T) for b in range(4))
        for q in range(4):
            a(f"v_fma_f32 v{a0+q}, v{a1+q}, v{tau}, v{a0+q}\nv_fma_f32 v{a3+q}, v{a2+q}, v{tau}, v{a3+q}")
        for q in range(4):
            a(f"v_add_f32 v{a1+q}, v{a0+q}, v{a3+q}\nv_sub_f32 v{a2+q}, v{a0+q}, v{a3+q}")
        a0 = 120 + 4 * T
        for f in cv(a0, a1) + cv(a0 + 2, a2): a(f)
        a(f"""
        v_lshrrev_b32 v89, 4, v{E0+T}
        v_lshl_add_u32 v89, v89, 14, v88
        v_and_b32 v{E0+T}, 15, v{E0+T}
        v_lshl_add_u32 v{E0+T}, v{E0+T}, 4, v89
        v_permlane16_swap_b32 v{a0}, v{a0+2}
        v_permlane16_swap_b32 v{a0+1}, v{a0+3}
        """)
    a(f"v_mov_b32 v88, {LFB + 56}\nv_mov_b32 v89, 1\ns_mov_b32 s12, {opt('dnu', 1)}")
    ladd(a, 88, 89, 0)
    if opt("dnu", 1): a("s_setprio 3\ns_barrier")
    for T in range(5): a(f"buffer_store_dwordx4 {vr(120+4*T,4)}, v{E0+T}, s[28:31], s26 offen sc1")
    a(f"""
P1_DONE:
    {st(14)}
    s_mov_b32 s34, 1
    s_branch ATT
    """)

def p1_extra(a):
    T0 = 40
    a(f"""
P1_EXTRA:
    s_sub_u32 s61, s16, 8
    """)
    if opt("cwarm", 1):
        a(f"""
        s_cmp_lg_u32 s16, 10
        s_cbranch_scc1 P1_NOCW
        s_lshl_b32 s23, s18, 10
        s_cmp_ge_u32 s23, L_CODE_END - {NAME}_kernel - 1023
        s_cbranch_scc1 P1_NOCW
        s_getpc_b64 s[44:45]
L_PC:
        s_sub_u32 s44, s44, L_PC - {NAME}_kernel
        s_subb_u32 s45, s45, 0
        v_lshl_add_u32 v40, v0, 4, s23
        global_load_dwordx4 v[44:47], v40, s[44:45]
P1_NOCW:
        """)
    a(f"""
    v_lshrrev_b32 v37, 4, v0
    v_and_b32 v38, 15, v0
    v_lshlrev_b32 v39, 4, v0
    v_mov_b32 v36, v0
    s_waitcnt lgkmcnt(0)
    {srd(28, WS_P, WS_USED)}
    {srd(32, DBG_P, 256)}
    s_cmp_lg_u32 s61, 0
    s_cbranch_scc1 P1_EX_A
    v_mov_b32 v1, 0
    v_lshlrev_b32 v2, 2, v0
    v_add_u32 v2, {LFB}, v2
    ds_write_b32 v2, v1
    s_waitcnt lgkmcnt(0)
    s_cmp_lt_u32 s2, 248
    s_cbranch_scc1 P1_EX_WAITRDY
    v_mov_b32 v4, 0
    v_mov_b32 v5, 0
    v_mov_b32 v6, 0
    v_mov_b32 v7, 0
    s_lshl_b32 s23, s17, 12
    s_add_u32 s23, s23, {FLG_OFF}
    buffer_store_dwordx4 v[4:7], v39, s[28:31], s23 offen sc1
    buffer_store_dwordx4 v[4:7], v39, s[28:31], s23 offen offset:1024 sc1
    buffer_store_dwordx4 v[4:7], v39, s[28:31], s23 offen offset:2048 sc1
    buffer_store_dwordx4 v[4:7], v39, s[28:31], s23 offen offset:3072 sc1
    s_lshl_b32 s23, s17, 7
    s_add_u32 s23, s23, {FLG_OFF + 32768}
    s_mov_b64 exec, 0xff
    buffer_store_dwordx4 v[4:7], v39, s[28:31], s23 offen sc1
    s_mov_b64 exec, -1
P1_EX_WAITRDY:
P1_EX_A:
    s_lshl_b32 s23, s2, 2
    s_add_u32 s23, s23, s61
    s_mov_b32 s40, 0
P1_TBL:
    s_lshr_b32 s24, s23, 5
    s_and_b32 s25, s23, 30
    s_and_b32 s26, s24, 1
    s_lshr_b32 s27, s24, 1
    s_lshl_b32 s27, s27, 6
    s_add_u32 s27, s27, s26
    s_and_b32 s26, s23, 1
    s_lshl_b32 s26, s26, 5
    s_add_u32 s27, s27, s26
    v_lshl_add_u32 v{T0}, v38, 1, s27
    s_lshl_b32 s25, s25, 4
    v_lshl_add_u32 v{T0+1}, v37, 3, s25
    v_mul_u32_u24 v{T0+1}, v{T0}, v{T0+1}
    v_and_b32 v{T0+1}, 0x7ff, v{T0+1}
    v_cvt_f32_u32 v{T0}, v{T0}
    v_cvt_f32_u32 v{T0+1}, v{T0+1}
    v_mul_f32 v{T0}, 0x3a000000, v{T0}
    v_mul_f32 v0, 0x3a000000, v{T0+1}
    """)
    for u in range(1, 8): a(f"v_add_f32 v{u}, v{u-1}, v{T0}")
    for u in range(1, 8): a(f"v_fract_f32 v{u}, v{u}")
    for u in range(8): a(f"v_cos_f32 v{8+u}, v{u}")
    for u in range(8): a(f"v_sin_f32 v{16+u}, v{u}")
    for j in range(4): a(f"v_cvt_pk_bf16_f32 v{24+j}, v{8+2*j}, v{9+2*j}")
    for j in range(4): a(f"v_cvt_pk_bf16_f32 v{28+j}, v{16+2*j}, v{17+2*j}")
    NB0 = opt("tblbar", 2)
    a(f"""
    s_cmp_lg_u32 s40, 0
    s_cbranch_scc1 P1_TBL_ST
    s_barrier
    {st(1, True)}
    s_cmp_lg_u32 s61, 0
    s_cbranch_scc1 P1_EX_NR
    s_cmp_lt_u32 s2, 248
    s_cbranch_scc1 P1_EX_NR
    v_mov_b32 v32, 1
    v_mov_b32 v33, 0
    s_lshl_b32 s24, s17, 2
    s_waitcnt vmcnt(0)
    s_mov_b64 exec, 1
    buffer_store_dword v32, v33, s[32:35], s24 offen sc1
    s_mov_b64 exec, -1
P1_EX_NR:
    """ + "".join(f"s_barrier\n{st(1 + b_, True)}\n" for b_ in range(1, NB0)) + f"""
    s_mov_b32 s40, 1
P1_TBL_ST:
    s_lshl_b32 s24, s23, 11
    s_add_u32 s24, s24, {TB_OFF}
    buffer_store_dwordx4 v[24:27], v39, s[28:31], s24 offen sc1
    buffer_store_dwordx4 v[28:31], v39, s[28:31], s24 offen offset:1024 sc1
    s_add_u32 s23, s23, 1024
    s_cmp_lt_u32 s23, 1056
    s_cbranch_scc1 P1_TBL
    """)
    nb = NB0
    assert nb <= 6
    a("".join(f"s_barrier\n{st(1 + b_, True)}\n" for b_ in range(nb, 6)))
    u = a.uid()
    a(f"""
    v_and_b32 v1, 7, v36
    v_lshlrev_b32 v1, 2, v1
    v_mov_b32 v2, 1
    s_mov_b32 s60, 0
    s_cmp_lg_u32 s61, 0
    s_cbranch_scc1 P1_EX_C
    buffer_load_dword v2, v1, s[32:35], 0 offen sc1
P1_EX_C:
    s_barrier
    {st(7, True)}
    s_barrier
    {st(8, True)}
L_RDY{u}:
    s_waitcnt vmcnt(0)
    v_cmp_eq_u32 vcc, 0, v2
    s_cbranch_vccz P1_EX_B
    s_sleep 1
    buffer_load_dword v2, v1, s[32:35], 0 offen sc1
    s_add_u32 s60, s60, 1
    s_cmp_lt_u32 s60, 0x40000
    s_cbranch_scc1 L_RDY{u}
P1_EX_B:
    s_waitcnt vmcnt(0)
    s_barrier
    {st(9, True)}
    s_barrier
    {st(10, True)}
    s_mov_b32 s34, 0
    """)

def attention(a):
    O = 0; S = [16, 32]; P = 48; Q1 = 56; Q2 = 60; K2 = 62; K1 = 64; V1 = 68; V2 = [72, 76]; T = 80
    a(f"""
ATT:
    s_setprio 3
    s_cmp_lt_u32 s13, 4
    s_cselect_b32 s32, {opt("o1", 4)}, {opt("y1", 4)}
    s_cselect_b32 s33, {opt("o2", 7)}, {opt("y2", 7)}
    s_movk_i32 s35, 0x106
    s_bitset1_b32 s35, s32
    s_bitset1_b32 s35, s33
    s_mov_b32 s24, 0xfffff
    s_mov_b32 s25, 0xfffff
    s_mul_i32 s27, s13, 1280
    v_mov_b32 v{Q2+1}, 0
    v_mov_b32 v{K2+1}, 0x3f803f80
    v_add_u32 v{T}, s27, v{AK1}
    v_add_u32 v{T+1}, s27, v{AK2}
    v_mov_b32 v{T+2}, 1
    """)
    NQ = opt("nq", 2)
    OX = [84, O]; QX1 = [100, Q1]; QX2 = [104, Q2]; U = 106; TM = 114; XS = 107520
    if NQ == 2:
        a(f"""
        s_xor_b32 s36, s13, 1
        s_mul_i32 s27, s36, 1280
        v_add_u32 v{U}, s27, v{AK1}
        v_add_u32 v{U+1}, s27, v{AK2}
        v_mov_b32 v{U+2}, v{AK1}
        v_mov_b32 v{U+3}, v{AK2}
        v_mov_b32 v{QX2[0]+1}, 0
        s_and_b32 s37, s13, 1
        s_mul_i32 s37, s37, 2560
        v_and_b32 v{U+4}, 0x70, v{VA}
        v_lshrrev_b32 v{U+4}, 2, v{U+4}
        v_add_u32 v{U+4}, {LFB}, v{U+4}
        s_lshl_b32 s23, s13, 12
        s_add_u32 s23, s23, {XS}
        v_add_u32 v{U+5}, s23, v{VA}
        v_xor_b32 v{U+7}, 4, v{PA}
        s_lshl_b32 s23, s36, 12
        s_add_u32 s23, s23, {XS}
        v_add_u32 v{U+6}, s23, v{VA}
        s_lshr_b32 s38, s13, 2
        s_add_u32 s38, s38, 7
        """)
        for r in (AK1, AK2, AV, BK1, BK2, BV): a(f"v_add_u32 v{r}, s37, v{r}")
        for r in range(16): a(f"v_mov_b32 v{OX[0]+r}, 0")
    for r in range(12): a(f"v_mov_b32 v{V1+r}, v{ONES}")
    for r in range(16): a(f"v_mov_b32 v{O+r}, 0")
    for r in range(4): a(f"v_mov_b32 v{P+4+r}, 0\nv_mov_b32 v{P+r}, -1")
    def rk1(d): return f"v_mfma_f32_32x32x8_bf16 {vr(d,16)}, {vr(K2,2)}, {vr(Q2,2)}, 0"
    def rk2(d): return f"v_mfma_f32_32x32x16_bf16 {vr(d,16)}, {vr(K1,4)}, {vr(Q1,4)}, {vr(d,16)}"
    def qk1(d): return f"v_mfma_f32_32x32x16_bf16 {vr(d,16)}, {vr(K1,4)}, {vr(Q1,4)}, 0"
    def qk2(d): return f"v_mfma_f32_32x32x8_bf16 {vr(d,16)}, {vr(K2,2)}, {vr(Q2,2)}, {vr(d,16)}"
    def pv(v, p): return f"v_mfma_f32_32x32x16_bf16 {vr(O,16)}, {vr(v,4)}, {vr(p,4)}, {vr(O,16)}"
    def of(t): return (t - 6 if t in (6, 7) else t) * 2560
    def rdk1(t): return f"ds_read_b128 {vr(K1,4)}, v{BK1 if t in (6, 7) else AK1} offset:{of(t)}"
    def rdk2(t): return f"ds_read_b32 v{K2}, v{BK2 if t in (6, 7) else AK2} offset:{of(t)+1024}"
    def rdv(t, v2):
        b = BV if t in (6, 7) else AV
        return f"s_mov_b64 exec, s[24:25]\nds_read_b128 {vr(V1,4)}, v{b} offset:{of(t)+1280}\nds_read_b128 {vr(v2,4)}, v{b} offset:{of(t)+1920}\ns_mov_b64 exec, -1"
    def maxtree(s, m, first):
        if first:
            a(f"v_max3_f32 v{m}, v{s}, v{s+1}, v{s+2}\nv_max3_f32 v{m+1}, v{s+3}, v{s+4}, v{s+5}")
            for j in range(6, 14, 4): a(f"v_max3_f32 v{m}, v{s+j}, v{s+j+1}, v{m}\nv_max3_f32 v{m+1}, v{s+j+2}, v{s+j+3}, v{m+1}")
            a(f"v_max3_f32 v{m}, v{s+14}, v{s+15}, v{m}\nv_max_f32 v{m}, v{m}, v{m+1}")
        else:
            for j in range(0, 16, 2): a(f"v_max3_f32 v{m}, v{s+j}, v{s+j+1}, v{m}")
    def xhalf(m):
        a(f"v_mov_b32 v{m+1}, v{m}\ns_nop 1\nv_permlane32_swap_b32 v{m}, v{m+1}\ns_nop 0\nv_max_f32 v{m}, v{m}, v{m+1}")
    a(f"""
    s_cmp_lg_u32 s34, 1
    s_cbranch_scc1 ATT_NOSIG
    """)
    if opt("comb", 1):
        a(f"""
        v_mov_b32 v{T+3}, {LFB + 44}
        s_and_b32 s23, s15, -128
        s_mov_b64 exec, 1
        s_waitcnt vmcnt(0)
        ds_add_rtn_u32 v{T+3}, v{T+3}, v{T+2}
        s_waitcnt lgkmcnt(0)
        v_cmp_eq_u32 vcc, 3, v{T+3}
        s_cbranch_vccz ATT_NOSIG
        buffer_store_dwordx4 {vr(P,4)}, v{O}, s[28:31], s23 offen sc1
        """)
    else:
        a(f"s_waitcnt vmcnt(0)\ns_mov_b64 exec, 1\nbuffer_store_dword v{T+2}, v{O}, s[28:31], s15 offen sc1")
    a(f"""
ATT_NOSIG:
    s_mov_b64 exec, -1
    {st(4)}
    s_and_b32 s23, s34, s12
    s_cbranch_scc1 ATT_NOP
    s_barrier
ATT_NOP:
    {st(6)}
    """)
    def e(s, j): return f"v_exp_f32 v{s+j}, v{s+j}"
    def c(s, j): return f"v_cvt_pk_bf16_f32 v{P+j}, v{s+2*j}, v{s+2*j+1}"
    if NQ == 2:
        def xk1(x): return f"v_mfma_f32_32x32x16_bf16 {vr(S[x],16)}, {vr(K1,4)}, {vr(QX1[x],4)}, 0"
        def xk2(x): return f"v_mfma_f32_32x32x8_bf16 {vr(S[x],16)}, {vr(K2,2)}, {vr(QX2[x],2)}, {vr(S[x],16)}"
        def xpv(x, v, p): return f"v_mfma_f32_32x32x16_bf16 {vr(OX[x],16)}, {vr(v,4)}, {vr(p,4)}, {vr(OX[x],16)}"
        def scale(x):
            for j in range(5): a(f"v_lshlrev_b32 v{TM+2*j}, 16, v{QX1[x]+j}\nv_and_b32 v{TM+2*j+1}, 0xffff0000, v{QX1[x]+j}")
            for j in range(10): a(f"v_mul_f32 v{TM+j}, {QSCALE:#x}, v{TM+j}")
            for j in range(5): a(f"v_cvt_pk_bf16_f32 v{QX1[x]+j}, v{TM+2*j}, v{TM+2*j+1}")
        MH = f32bits(-0.5 * (20 ** -0.5) * math.log2(math.e))
        a(f"""
        ds_read_b128 {vr(K1,4)}, v{U+2}
        ds_read_b32 v{K2}, v{U+3} offset:1024
        ds_read_b128 {vr(QX1[0],4)}, v{U} offset:{QLDS}
        ds_read_b32 v{QX2[0]}, v{U+1} offset:{QLDS+1024}
        ds_read_b128 {vr(Q1,4)}, v{T} offset:{QLDS}
        ds_read_b32 v{Q2}, v{T+1} offset:{QLDS+1024}
        {rdv(0, V2[0])}
        s_waitcnt lgkmcnt(4)
        {xk1(0)}
        {xk2(0)}
        s_waitcnt lgkmcnt(2)
        {xk1(1)}
        {xk2(1)}
        {rdk1(0)}
        {rdk2(0)}
        s_mov_b32 s26, 0
        """)
        scale(0)
        maxtree(S[0], T, True); xhalf(T)
        a(f"v_mul_f32 v{T}, {MH:#x}, v{T}\nv_cvt_pk_bf16_f32 v{QX2[0]+1}, v{T}, 0\ns_waitcnt lgkmcnt(0)\n{xk1(0)}\n{xk2(0)}")
        scale(1)
        maxtree(S[1], T, True); xhalf(T)
        a(f"""
        v_mul_f32 v{T}, {MH:#x}, v{T}
        v_cvt_pk_bf16_f32 v{Q2+1}, v{T}, 0
        buffer_store_dwordx4 {vr(P,4)}, v{OA1}, s[28:31], s6 offen sc1
        s_mov_b64 exec, 0xffff
        buffer_store_dwordx4 {vr(P,4)}, v{OA2}, s[28:31], s7 offen sc1
        s_mov_b64 exec, -1
        {st(7)}
ATT_LOOP:
        """)
        for i in range(4):
            for x in (0, 1):
                cur = S[x]; y = 1 - x; t_ = 2 * (i + 1)
                if x == 1: a("s_waitcnt lgkmcnt(0)")
                a(xk1(y))
                if x == 0: a(rdk1(t_))
                if x == 1 and i == 1: a(f"ds_write_b32 v{PA}, v{T+2}")
                for q in range(4): a(e(cur, q))
                a(xpv(y, V2[(i + 1) % 2] if x == 0 else V2[i % 2], P + 4))
                if x == 0: a("s_waitcnt lgkmcnt(1)")
                for q in range(4, 8): a(e(cur, q))
                a(c(cur, 0)); a(c(cur, 1))
                a(xk2(y))
                if x == 0: a(rdk2(t_))
                a(c(cur, 2)); a(c(cur, 3))
                for q in range(8, 12): a(e(cur, q))
                a(xpv(x, V1, P))
                if x == 1: a(rdv(t_, V2[(i + 1) % 2]))
                for q in range(12, 16): a(e(cur, q))
                for q in range(4, 8): a(c(cur, q))
    else:
        a(f"""
        ds_read_b128 {vr(Q1,4)}, v{T} offset:{QLDS}
        ds_read_b32 v{Q2}, v{T+1} offset:{QLDS+1024}
        {rdk1(0)}
        {rdk2(0)}
        {rdv(0, V2[0])}
        s_waitcnt lgkmcnt(2)
        {qk1(S[1])}
        {qk2(S[1])}
        """)
        for j in range(5): a(f"v_lshlrev_b32 v{S[0]+2*j}, 16, v{Q1+j}\nv_and_b32 v{S[0]+2*j+1}, 0xffff0000, v{Q1+j}")
        for j in range(10): a(f"v_mul_f32 v{S[0]+j}, {QSCALE:#x}, v{S[0]+j}")
        for j in range(5): a(f"v_cvt_pk_bf16_f32 v{Q1+j}, v{S[0]+2*j}, v{S[0]+2*j+1}")
        a(f"""
        s_nop 0
        {qk1(S[0])}
        {rdk1(1)}
        s_mov_b32 s26, 0
        """)
        maxtree(S[1], T, True); xhalf(T)
        a(f"""
        v_mul_f32 v{T}, {f32bits(-0.5 * (20 ** -0.5) * math.log2(math.e)):#x}, v{T}
        v_cvt_pk_bf16_f32 v{Q2+1}, v{T}, 0
        s_nop 1
        {qk2(S[0])}
        {rdk2(1)}
        buffer_store_dwordx4 {vr(P,4)}, v{OA1}, s[28:31], s6 offen sc1
        s_mov_b64 exec, 0xffff
        buffer_store_dwordx4 {vr(P,4)}, v{OA2}, s[28:31], s7 offen sc1
        s_mov_b64 exec, -1
        s_waitcnt lgkmcnt(0)
        {st(7)}
        s_nop 3
ATT_LOOP:
        """)
        for j in range(8):
            cur, nxt = S[j % 2], S[(j + 1) % 2]
            a("s_waitcnt lgkmcnt(2)")
            if opt('rev', 0): a(rk1(nxt)); a(rdk2(j + 2))
            else: a(qk1(nxt)); a(rdk1(j + 2))
            for q in range(4): a(e(cur, q))
            a(pv(V2[(j + 1) % 2], P + 4))
            a("s_waitcnt lgkmcnt(1)")
            if j == 2: a(f"ds_write_b32 v{PA}, v{T+2}")
            for q in range(4, 8): a(e(cur, q))
            a(c(cur, 0)); a(c(cur, 1))
            if opt('rev', 0): a(rk2(nxt)); a(rdk1(j + 2))
            else: a(qk2(nxt)); a(rdk2(j + 2))
            a(c(cur, 2)); a(c(cur, 3))
            for q in range(8, 12): a(e(cur, q))
            a(pv(V1, P)); a(rdv(j + 1, V2[(j + 1) % 2]))
            for q in range(12, 16): a(e(cur, q))
            for q in range(4, 8): a(c(cur, q))
    a(f"""
    s_add_u32 s26, s26, 1
    s_movk_i32 s27, 0x5000
    s_cmp_eq_u32 s26, 7
    s_cselect_b32 s27, {(0x5000 - 62 * 2560) & 0xffffffff}, s27
    v_add_u32 v{AK1}, 0x5000, v{AK1}
    v_add_u32 v{AK2}, 0x5000, v{AK2}
    v_add_u32 v{AV}, 0x5000, v{AV}
    v_add_u32 v{BK1}, s27, v{BK1}
    v_add_u32 v{BK2}, s27, v{BK2}
    v_add_u32 v{BV}, s27, v{BV}
    v_add_u32 v{T+2}, 1, v{T+2}
    s_bitcmp1_b32 s35, s26
    s_cbranch_scc0 ATT_LOOP
    s_cmp_gt_u32 s26, 2
    s_cbranch_scc1 ATT_EV
    v_add_u32 v{FA}, 8, v{FA}
    s_waitcnt vmcnt(0)
ATT_WAIT:
    ds_read_b32 v{T}, v{FA}
    s_waitcnt lgkmcnt(0)
    v_readfirstlane_b32 s23, v{T}
    s_cmp_ge_u32 s23, 4
    s_cbranch_scc1 ATT_LOOP
    s_sleep 1
    s_branch ATT_WAIT
ATT_EV:
    s_setprio 2
    s_cmp_eq_u32 s26, s32
    s_cbranch_scc1 ATT_LOOP
    s_setprio 1
    s_cmp_lt_u32 s26, 8
    s_cbranch_scc1 ATT_LOOP
    s_setprio 3
    {pv(V2[1], P+4)}
    {st(8)}
    """)
    if NQ == 2:
        a(f"""
ATT_X1:
        ds_read_b32 v{U}, v{U+4}
        s_mov_b32 s27, 0x3e800000
        s_mov_b32 s23, 0x71800000
        s_waitcnt lgkmcnt(0)
        v_cmp_gt_u32 vcc, s38, v{U}
        s_cbranch_vccnz ATT_X1
        """)
        for j in range(3): a(f"ds_write_b128 v{U+5}, {vr(OX[0]+4*j,4)} offset:{1024*j}")
        a(f"ds_write_b64 v{U+5}, {vr(OX[0]+12,2)} offset:3072\nds_write_b32 v{PA}, v{T+2} offset:96\nATT_X2:\nds_read_b32 v{U}, v{U+7} offset:96")
        for j in range(3): a(f"ds_read_b128 {vr(S[0]+4*j,4)}, v{U+6} offset:{1024*j}")
        a(f"ds_read_b64 {vr(S[0]+12,2)}, v{U+6} offset:3072\ns_waitcnt lgkmcnt(0)\nv_cmp_eq_u32 vcc, 0, v{U}\ns_cbranch_vccz ATT_X3\ns_sleep 1\ns_branch ATT_X2\nATT_X3:")
        for r in range(0, 14, 2): a(f"v_pk_add_f32 {vr(O+r,2)}, {vr(O+r,2)}, {vr(S[0]+r,2)}")
    else:
        a("s_mov_b32 s27, 0x3e800000\ns_mov_b32 s23, 0x71800000\ns_nop 9")
    a(f"v_rcp_f32 v{T+2}, v{O+12}\nv_add_f32 v{T}, |v{O}|, |v{O+1}|\nv_add_f32 v{T+1}, |v{O+2}|, |v{O+3}|")
    for j in range(4, 12, 2): a(f"v_add_f32 v{T}, |v{O+j}|, v{T}\nv_add_f32 v{T+1}, |v{O+j+1}|, v{T+1}")
    a(f"""
    v_add_f32 v{T}, v{T}, v{O+12}
    v_cmp_le_f32 s[42:43], s27, v{O+12}
    v_add_f32 v{T}, v{T}, v{T+1}
    v_cmp_gt_f32 vcc, s23, v{T}
    s_and_b64 vcc, vcc, s[42:43]
    s_cmp_eq_u64 vcc, -1
    s_cbranch_scc0 ATT_FALLBACK
ATT_FINISH:
    """)
    for j in range(8): a(f"v_mul_f32 v{O+j}, v{O+j}, v{T+2}")
    for j in range(4): a(f"v_cvt_pk_bf16_f32 v{P+j}, v{O+2*j}, v{O+2*j+1}")
    for j in range(4): a(f"v_min_u32 v{P+j}, -2, v{P+j}")
    a(f"buffer_store_dwordx4 {vr(P,4)}, v{OA1}, s[28:31], s6 offen sc1")
    for j in range(8, 12): a(f"v_mul_f32 v{O+j}, v{O+j}, v{T+2}")
    for j in range(4, 6): a(f"v_cvt_pk_bf16_f32 v{P+j}, v{O+2*j}, v{O+2*j+1}")
    for j in range(4, 6): a(f"v_min_u32 v{P+j}, -2, v{P+j}")
    a(f"""
    s_nop 1
    v_permlane16_swap_b32 v{P+4}, v{P+6}
    v_permlane16_swap_b32 v{P+5}, v{P+7}
    s_mov_b64 exec, 0xffff
    buffer_store_dwordx4 {vr(P+4,4)}, v{OA2}, s[28:31], s7 offen sc1
    {st(9)}
    s_cmp_ge_u32 s13, 4
    s_cbranch_scc1 {"L_DONE" if STAMP else "L_END"}
    s_mov_b64 exec, -1
    s_xor_b32 s41, s13, {opt('gx', 2)}
    s_mov_b32 s47, 1
    s_branch P3_GO
    """)
    def gk(): return f"buffer_load_dwordx4 {vr(K1,4)}, v{AK1}, s[28:31], s23 offen sc1\nbuffer_load_dword v{K2}, v{AK2}, s[28:31], s23 offen offset:1024 sc1"
    a(f"""
ATT_FALLBACK:
    s_waitcnt lgkmcnt(0)
    v_mov_b32 v{Q2+1}, 0
    v_mov_b32 v{T}, 0xff800000
    {f's_add_u32 s23, s37, {HS}' if NQ == 2 else f's_mov_b32 s23, {HS}'}
    v_subrev_u32 v{AK1}, s23, v{AK1}
    v_subrev_u32 v{AK2}, s23, v{AK2}
    v_subrev_u32 v{AV}, s23, v{AV}
    s_add_u32 s23, s14, {KV_OFF}
    s_mov_b32 s26, 0
ATT_FB1:
    {gk()}
    s_add_u32 s23, s23, 2560
    s_waitcnt vmcnt(0)
    {qk1(S[0])}
    {qk2(S[0])}
    s_nop 15
    """)
    maxtree(S[0], T, False)
    a("s_add_u32 s26, s26, 1\ns_cmp_lt_u32 s26, 64\ns_cbranch_scc1 ATT_FB1")
    xhalf(T)
    a(f"s_add_u32 s23, s14, {KV_OFF}\ns_mov_b32 s26, 0")
    for r in range(16): a(f"v_mov_b32 v{O+r}, 0")
    a(f"""
ATT_FB2:
    {gk()}
    s_mov_b64 exec, s[24:25]
    buffer_load_dwordx4 {vr(V1,4)}, v{AV}, s[28:31], s23 offen offset:1280 sc1
    buffer_load_dwordx4 {vr(V2[0],4)}, v{AV}, s[28:31], s23 offen offset:1920 sc1
    s_mov_b64 exec, -1
    s_add_u32 s23, s23, 2560
    s_waitcnt vmcnt(0)
    {qk1(S[0])}
    {qk2(S[0])}
    s_nop 15
    """)
    for q in range(16): a(f"v_sub_f32 v{S[0]+q}, v{S[0]+q}, v{T}")
    for q in range(16): a(e(S[0], q))
    a("s_nop 0")
    for q in range(8): a(c(S[0], q))
    a(f"""
    s_nop 1
    {pv(V1, P)}
    {pv(V2[0], P+4)}
    s_add_u32 s26, s26, 1
    s_cmp_lt_u32 s26, 64
    s_cbranch_scc1 ATT_FB2
    s_nop 15
    v_rcp_f32 v{T+2}, v{O+12}
    s_nop 0
    s_branch ATT_FINISH
    """)

def lwait(a, vaddr, vdat, mask, target, slp=8):
    u = a.uid()
    a(f"""
    s_mov_b64 exec, {mask}
    s_branch L_LWE{u}
L_LW{u}:
    s_sleep {slp}
L_LWE{u}:
    ds_read_b32 v{vdat}, v{vaddr}
    s_waitcnt lgkmcnt(0)
    v_cmp_gt_u32 vcc, {target}, v{vdat}
    s_cbranch_vccnz L_LW{u}
    s_mov_b64 exec, -1
    """)
def ladd(a, vaddr, vone, off):
    a(f"s_mov_b64 exec, 1\nds_add_u32 v{vaddr}, v{vone} offset:{off}\ns_mov_b64 exec, -1")

def helpers(a):
    WA, VG, VZ, SH, HPA, HONE, YFA, FZ, SG, XA5, LF = 112, 117, 118, 119, 120, 121, 122, 123, 124, 125, 126
    ZL = 40; G = 167; VY = 162; T = 132; LT = 127
    a(f"""
HELPER:
    s_mov_b32 s61, s22
    {st(2)}
    {srd(28, WS_P, WS_USED)}
    s_setprio 0
    s_lshr_b32 s20, s18, 2
    s_mul_i32 s26, s20, 160
    s_movk_i32 s23, {1280 - 160}
    """)
    for i in range(5):
        a(f"""
        v_add_u32 v{T}, {64*i}, v0
        v_mul_u32_u24 v{T+1}, 6554, v{T}
        v_lshrrev_b32 v{T+1}, 16, v{T+1}
        v_lshlrev_b32 v{T}, 4, v{T}
        v_mad_u32_u24 v{WA+i}, v{T+1}, s23, v{T}
        """)
    a(f"""
    s_lshl_b32 s21, s17, 3
    s_and_b32 s22, s18, 3
    s_add_u32 s21, s21, s22
    s_lshr_b32 s22, s16, 1
    s_lshl_b32 s22, s22, 2
    s_add_u32 s21, s21, s22
    s_lshl_b32 s21, s21, 1
    s_and_b32 s22, s16, 1
    s_add_u32 s21, s21, s22
    s_lshr_b32 s22, s21, 2
    s_lshl_b32 s22, s22, 1
    s_and_b32 s24, s21, 1
    s_add_u32 s22, s22, s24
    s_lshl_b32 s22, s22, 3
    v_and_b32 v{T}, 7, v0
    v_add_u32 v{T}, s22, v{T}
    s_bitcmp1_b32 s21, 1
    s_cselect_b32 s22, 0x400, 0
    s_cselect_b32 s24, -1, 1
    v_mul_lo_u32 v{T+1}, v{T}, s24
    s_sub_u32 s24, 0x800, s22
    v_sub_u32 v{T+2}, s24, v{T+1}
    v_add_u32 v{T+1}, s22, v{T+1}
    v_and_b32 v{T+3}, 8, v0
    v_cmp_ne_u32 vcc, 0, v{T+3}
    v_cmp_eq_u32 s[42:43], 0, v{T}
    v_lshlrev_b32 v{T+3}, 6, v{T+3}
    v_add_u32 v{T+3}, s22, v{T+3}
    v_cndmask_b32 v{T}, v{T+1}, v{T+2}, vcc
    v_lshrrev_b32 v{T+1}, 4, v0
    v_cndmask_b32 v{T}, v{T}, v{T+3}, s[42:43]
    v_mul_u32_u24 v{VY}, 1280, v{T}
    v_mul_u32_u24 v{T+2}, 40, v{T+1}
    v_add3_u32 v{VY}, v{VY}, v{T+2}, s26
    v_lshlrev_b32 v{VG}, 2, v{T}
    v_sub_u32 v{T+3}, 0x800, v{T}
    v_cmp_lt_u32 vcc, 0x400, v{T}
    v_min_u32 v{T}, v{T}, v{T+3}
    v_and_b32 v{T+3}, 1, v{T}
    v_mul_u32_u24 v{VZ}, {ZP}, v{T+3}
    v_lshrrev_b32 v{T+3}, 1, v{T}
    v_lshl_add_u32 v{VZ}, v{T+3}, 4, v{VZ}
    v_mov_b32 v{T+3}, 0x02020202
    v_cndmask_b32 v{SH}, 0, v{T+3}, vcc
    s_cmp_ge_u32 s20, 4
    s_mov_b32 s24, 0x05040100
    s_cselect_b32 s24, 0x07060302, s24
    s_cselect_b32 s40, -1, 1
    s_cselect_b32 s41, 155, 0
    v_xor_b32 v{SH}, s24, v{SH}
    s_mul_i32 s24, s20, 20
    v_mul_u32_u24 v{T+3}, 5, v{T+1}
    v_add_u32 v{T+3}, s24, v{T+3}
    v_mul_lo_u32 v{T+3}, v{T+3}, s40
    v_add_u32 v{T+3}, s41, v{T+3}
    v_mul_u32_u24 v{T+3}, {2*ZP}, v{T+3}
    v_add_u32 v{VZ}, v{VZ}, v{T+3}
    {p3_addr(0)}
    v_lshlrev_b32 v{HPA}, 2, v0
    v_add_u32 v{HPA}, {LFB}, v{HPA}
    v_mov_b32 v{HONE}, 1
    s_lshl_b32 s23, s2, 2
    s_add_u32 s23, s23, {FLG_OFF + 32768}
    v_mov_b32 v{YFA}, s23
    v_lshrrev_b32 v{FZ}, 4, v0
    v_mul_u32_u24 v{FZ}, {2*ZP}, v{FZ}
    v_and_b32 v{T}, 15, v0
    v_lshl_add_u32 v{FZ}, v{T}, 4, v{FZ}
    v_lshlrev_b32 v{SG}, 31, v0
    v_and_b32 v{XA5}, 48, v0
    v_lshlrev_b32 v{LF}, 7, v0
    v_bfe_u32 v{LT}, v0, 1, 2
    v_lshlrev_b32 v{LT}, 13, v{LT}
    v_and_b32 v{T}, 1, v0
    v_lshl_add_u32 v{LT}, v{T}, 7, v{LT}
    s_setprio 3
    s_lshr_b32 s19, s18, 3
    s_lshl_b32 s23, s17, 2
    s_add_u32 s19, s19, s23
    s_and_b32 s62, s18, 7
    s_mul_i32 s21, s19, {HG}
    v_lshlrev_b32 v1, 4, v0
    {st(3)}
    s_lshr_b32 s23, s19, 3
    s_lshl_b32 s23, s23, 13
    s_add_u32 s23, s23, {FLG_OFF}
    v_lshlrev_b32 v2, 7, v0
    v_add_u32 v2, s23, v2
    s_add_u32 s24, s21, {KV_OFF}
    s_lshl_b32 s40, 0x10000, s16
    s_lshl_b32 s41, 1, s16
    s_mul_i32 s22, s16, 10240
    s_add_u32 s26, s24, s22
    s_cmp_lg_u32 s16, 3
    s_cbranch_scc1 H_JA
    s_lshl_b32 s25, s62, 1
    s_lshl_b32 s40, 3, s25
    s_mov_b32 s41, 0
    s_mov_b32 s22, {QLDS}
    s_mul_i32 s26, s19, {HQ}
    s_mul_i32 s25, s62, 10240
    s_add_u32 s26, s26, s25
    s_add_u32 s26, s26, {Q_OFF}
H_JA:
    """)
    def job():
        r = f"s_add_u32 s25, s22, 5120\ns_cmp_ge_u32 s25, {LFB}\ns_cselect_b32 s25, 0, s25\n"
        for n in range(10):
            if n in (0, 3): r += f"s_add_u32 m0, s22, {1024*n}\ns_add_u32 s27, s26, {1024*n}\n"; o = 0
            if n in (5, 8): r += f"s_add_u32 m0, s25, {1024*(n-5)}\ns_add_u32 s27, s26, {1024*n}\n"; o = 0
            r += f"buffer_load_dwordx4 v1, s[28:31], s27 offen offset:{o} sc1 lds\n"; o += 1024
        return r
    if opt("latep", 1):
        a(f"s_mul_i32 s23, s12, 12\ns_cmp_eq_u32 s61, 3\ns_cselect_b32 s23, 12, s23\ns_add_u32 s23, s23, {LFB + 44}\nv_mov_b32 v3, s23")
        lwait(a, 3, 4, 1, 4, 2)
        if opt("lps", 0): a(f"s_sleep {opt('lps', 0)}")
    poll4(a, 2, 4, "s[40:41]")
    a(st(11)); a(job())
    a(f"""
    s_lshl_b32 s40, 0x80000, s16
    s_lshl_b32 s41, 8, s16
    s_add_u32 s22, s16, 3
    s_mul_i32 s22, s22, 10240
    s_add_u32 s26, s24, s22
    s_waitcnt vmcnt(0)
    {st(12)}
    s_barrier
    s_cmp_eq_u32 s16, 3
    s_cbranch_scc1 H_JB
    """)
    poll4(a, 2, 4, "s[40:41]")
    a(job())
    a(f"""
H_JB:
    s_lshl_b32 s41, 0x4440, s16
    s_and_b32 s41, s41, 0xffff
    s_lshl_b32 s40, s41, 16
    s_add_u32 s22, s16, 6
    s_mul_i32 s22, s22, 10240
    s_add_u32 s26, s24, s22
    s_waitcnt vmcnt(0)
    """)
    ladd(a, HPA, HONE, 64)
    lwait(a, HPA, 4, 0xff, 1)
    poll4(a, 2, 4, "s[40:41]", slp=8)
    a(f"{st(13)}\nH_JC:"); a(job())
    a(f"""
    s_add_u32 s22, s22, 40960
    s_add_u32 s26, s26, 40960
    s_cmp_lt_u32 s22, {HS}
    s_cbranch_scc1 H_JC
    s_waitcnt vmcnt(0)
    {st(4)}
    """)
    ladd(a, HPA, HONE, 72)
    a(f"""
    s_cmp_lt_u32 s16, 3
    s_cbranch_scc1 H_FNET
    """)
    a(f"""
    {srd(32, X_P, 2048*1280)}
    {srd(36, GATE_P, 1280)}
    v_lshrrev_b32 v2, 3, v0
    v_and_b32 v3, 7, v0
    v_lshlrev_b32 v3, 4, v3
    s_movk_i32 s22, 1280
    v_mad_u32_u24 v4, v2, s22, v3
    s_mul_i32 s23, s2, {8*1280}
    """)
    for j in range(10):
        a(f"buffer_load_dwordx4 {vr(24+8*j,4)}, v4, s[32:35], s23 offen offset:{128*j}")
        a(f"buffer_load_dwordx4 {vr(28+8*j,4)}, v3, s[36:39], 0 offen offset:{128*j}")
    a("v_mov_b32 v5, 0\nv_mov_b32 v6, 0\ns_waitcnt vmcnt(0)")
    for j in range(10):
        for q in range(4):
            a(f"v_dot2c_f32_bf16 v{5 + (q & 1)}, v{24+8*j+q}, v{28+8*j+q}")
    a(f"""
    s_nop 2
    v_add_f32 v5, v5, v6
    s_nop 1
    v_add_f32_dpp v5, v5, v5 quad_perm:[1,0,3,2] row_mask:0xf bank_mask:0xf
    s_nop 1
    v_add_f32_dpp v5, v5, v5 quad_perm:[2,3,0,1] row_mask:0xf bank_mask:0xf
    s_nop 1
    v_add_f32_dpp v5, v5, v5 row_half_mirror row_mask:0xf bank_mask:0xf
    v_mul_f32 v5, {f32bits(-math.log2(math.e)):#x}, v5
    v_exp_f32 v5, v5
    v_lshlrev_b32 v2, 2, v2
    v_add_f32 v5, 1.0, v5
    v_rcp_f32 v5, v5
    s_lshl_b32 s23, s2, 5
    s_add_u32 s23, s23, {G_OFF}
    buffer_store_dword v5, v2, s[28:31], s23 offen sc1
    s_branch H_MID
    """)
    C, SN, FB = 0, 8, 16
    a(f"""
H_FNET:
    {'s_branch H_MID' if opt('nofnet', 0) == 1 else ''}
    s_lshl_b32 s22, s16, 5
    s_add_u32 s22, s22, s18
    s_cmp_lt_u32 s22, 84
    s_cbranch_scc1 H_FN_A
    s_sub_u32 s24, s22, 84
    s_lshl_b32 s24, s24, 3
    s_add_u32 s24, s24, s17
    s_cmp_ge_u32 s24, 21
    s_cbranch_scc1 H_MID
    s_mov_b32 s23, 32
    s_branch H_FN_B
H_FN_A:
    s_mul_i32 s23, s22, 3121
    s_lshr_b32 s23, s23, 16
    s_mul_i32 s24, s23, 21
    s_sub_u32 s24, s22, s24
    s_lshl_b32 s23, s23, 3
    s_add_u32 s23, s23, s17
H_FN_B:
    s_and_b32 s25, s23, 1
    s_add_u32 s26, s24, 20
    s_cmp_eq_u32 s24, 20
    s_cselect_b32 s26, 20, s26
    s_mul_i32 s32, s24, 26
    s_lshr_b32 s32, s32, 8
    s_lshl_b32 s32, s32, 13
    s_add_u32 s32, s32, {48 * 128}
    s_mul_i32 s33, s26, 26
    s_lshr_b32 s33, s33, 8
    s_lshl_b32 s33, s33, 13
    s_add_u32 s33, s33, {32 * 128}
    s_and_b32 s34, s23, 31
    s_lshl_b32 s34, s34, 8
    s_mov_b64 exec, 0xffff
    v_add_u32 v2, s32, v{LF}
    s_mov_b32 exec_lo, 0xffff0000
    v_add_u32 v2, s33, v{LF}
    s_mov_b32 exec_lo, 0
    s_mov_b32 exec_hi, 0xff
    v_add_u32 v2, s34, v{LT}
    s_mov_b32 s40, -1
    s_movk_i32 s41, 0xff
    s_mov_b32 s27, {FLG_OFF}
    """)
    poll4(a, 2, 4, "s[40:41]", "s27", slp=8)
    a(st(14))
    a(f"""
    s_lshl_b32 s32, s23, 16
    s_add_u32 s32, s32, {TB_OFF}
    s_mul_i32 s27, s25, {FO_DELTA}
    s_add_u32 s27, s27, {FE_OFF}
    s_lshl_b32 s33, s24, 14
    s_add_u32 s33, s33, s27
    s_lshl_b32 s34, s26, 14
    s_add_u32 s34, s34, s27
    s_cmp_eq_u32 s25, 0
    s_cselect_b32 s35, s24, s26
    s_lshl_b32 s35, s35, 6
    s_add_u32 s35, s35, {X512_OFF}
    buffer_load_dwordx4 v[128:131], v{XA5}, s[28:31], s35 offen sc1
    """)
    def fl(j):
        r = FB + 24 * j
        s_ = f"buffer_load_dwordx4 {vr(r,4)}, v163, s[28:31], s33 offen offset:{1024*j} sc1\n"
        s_ += f"buffer_load_dwordx4 {vr(r+4,4)}, v163, s[28:31], s34 offen offset:{1024*j} sc1\n"
        for k in range(4): s_ += f"buffer_load_dwordx4 {vr(r+8+4*k,4)}, v163, s[28:31], s32 offen offset:{1024*k} sc1\n"
        s_ += "s_add_u32 s32, s32, 4096\n"
        if j == 3: s_ += "s_add_u32 s33, s33, 4096\ns_add_u32 s34, s34, 4096\n"
        return s_
    def fm(j):
        r = FB + 24 * j
        s_ = ""
        if opt("nofnet", 0) == 2: return s_
        for sub in range(2):
            s_ += f"v_mfma_f32_16x16x32_bf16 {vr(C+4*sub,4)}, {vr(r,4)}, {vr(r+8+8*sub,4)}, {vr(C+4*sub,4)}\n"
            s_ += f"v_mfma_f32_16x16x32_bf16 {vr(SN+4*sub,4)}, {vr(r+4,4)}, {vr(r+12+8*sub,4)}, {vr(SN+4*sub,4)}\n"
        return s_
    for j in range(4): a(fl(j))
    a(f"""
    s_cmp_eq_u32 s25, 0
    s_cselect_b32 s36, 1.0, 0
    s_cselect_b32 s37, 0, 1.0
    v_or_b32 v161, s37, v{SG}
    v_or_b32 v160, s36, v{SG}
    s_waitcnt vmcnt(24)
    """)
    for r in range(8): a(f"v_mul_f32 v{C+r}, v160, v{128 + r % 4}\nv_mul_f32 v{SN+r}, v161, v{128 + r % 4}")
    a("s_mov_b32 s38, 0\nH_FN_LOOP:")
    for j in range(4):
        a("s_waitcnt vmcnt(18)"); a(fm(j)); a(fl(j))
    a("s_add_u32 s38, s38, 1\ns_cmp_lt_u32 s38, 3\ns_cbranch_scc1 H_FN_LOOP")
    for j in range(4):
        a(f"s_waitcnt vmcnt({18-6*j})"); a(fm(j))
    a(f"""
    s_cmp_eq_u32 s26, 20
    s_cselect_b32 s44, 0xffff, 0
    s_mov_b32 s45, 0
    s_mul_i32 s26, s24, {8*ZP}
    s_mul_i32 s27, s25, {ZP}
    s_add_u32 s26, s26, s27
    s_lshr_b32 s27, s23, 1
    s_lshl_b32 s27, s27, 9
    s_add_u32 s26, s26, s27
    s_add_u32 s26, s26, {Y_OFF}
    v_cndmask_b32 v{SN}, v{SN}, 0, s[44:45]
    v_cndmask_b32 v{SN+4}, v{SN+4}, 0, s[44:45]
    """)
    for r in range(8):
        a(f"v_add_f32 v{16+r}, v{C+r}, v{SN+r}\nv_sub_f32 v{C+r}, v{C+r}, v{SN+r}")
    for r in range(8): a(f"v_cvt_pk_bf16_f32 v{16+r}, v{16+r}, v{C+r}")
    a(f"buffer_store_dwordx4 v[16:19], v{FZ}, s[28:31], s26 offen sc1\nbuffer_store_dwordx4 v[20:23], v{FZ}, s[28:31], s26 offen offset:256 sc1")
    a(f"""
H_MID:
    s_lshl_b32 s19, s17, 2
    s_and_b32 s20, s18, 3
    s_add_u32 s19, s19, s20
    s_lshr_b32 s20, s18, 2
    {srd(32, WO_P, 640*1280)}
    {srd(36, OUT_P, 2621440)}
    s_mul_i32 s26, s20, 160
    s_mul_i32 s27, s16, {160*1280}
    s_add_u32 s27, s27, s26
    s_movk_i32 s23, {1280 - 160}
    """)
    a(f"""
    s_add_u32 s25, s16, 1
    s_and_b32 s25, s25, 3
    s_mul_i32 s22, s25, 25600
    s_add_u32 s22, s22, {WOL}
    s_add_u32 s25, s25, 3
    s_waitcnt vmcnt(0)
    {st(5)}
    """)
    lwait(a, HPA, T + 1, 0xff, 2)
    a(f"""s_mov_b64 exec, 1
    ds_add_rtn_u32 v{T+1}, v{HPA}, v{HONE} offset:48
    s_waitcnt lgkmcnt(0)
    v_cmp_eq_u32 vcc, 3, v{T+1}
    s_cbranch_vccz H_NOY
    buffer_store_dword v{HONE}, v{YFA}, s[28:31], 0 offen sc1
H_NOY:
    s_mov_b64 exec, -1""")
    lwait(a, HPA, T + 1, 0xff, "s25")
    a(f"{st(6)}\ns_mov_b32 s25, 0\nH_WO:")
    for i in range(5):
        a(f"s_add_u32 m0, s22, {1024*i}\ns_nop 0\nbuffer_load_dwordx4 v{WA+i}, s[32:35], s27 offen lds")
    a(f"""
    s_add_u32 s22, s22, 5120
    s_add_u32 s27, s27, {32*1280}
    s_add_u32 s25, s25, 1
    s_cmp_lt_u32 s25, 5
    s_cbranch_scc1 H_WO
    s_cmp_lg_u32 s16, 3
    s_cbranch_scc1 H_YW
    """)
    lwait(a, HPA, T + 1, 0xff, opt("ypr", 5), 16)
    a(f"s_mov_b32 s27, {FLG_OFF + 32768}")
    poll4(a, VA, 4, "-1", "s27", slp=16)
    ladd(a, HPA, HONE, 40)
    a(f"H_YW:\nv_add_u32 v{T}, 40, v{HPA}")
    lwait(a, T, T + 1, 1, 1, 16)
    a("s_waitcnt vmcnt(0)")
    a(f"v_mov_b32 v{T}, 2")
    ladd(a, HPA, T, 32)
    a(f"{st(7)}\ns_mov_b32 s26, {Y_OFF}\ns_mov_b32 s27, {G_OFF}\nbuffer_load_dword v{G}, v{VG}, s[28:31], s27 offen sc1")
    for j in range(6):
        a(f"buffer_load_dwordx4 {vr(ZL+4*j,4)}, v{VZ}, s[28:31], s26 offen sc1\ns_add_u32 s26, s26, {2*ZP}")
    BF, OFR, ACC, YG = 0, 100, 120, 140
    VY2, G2 = 162, 167
    a(f"""
    s_waitcnt vmcnt(0)
    s_cmp_ge_u32 s20, 4
    s_cbranch_scc1 H_DESC
    """)
    for k in range(10): a(f"v_perm_b32 v{YG+10+k}, v{ZL+2*k+1}, v{ZL+2*k}, v{SH}")
    a("s_branch H_UNP\nH_DESC:")
    for k in range(10): a(f"v_perm_b32 v{YG+10+k}, v{ZL+19-2*k}, v{ZL+20-2*k}, v{SH}")
    a("H_UNP:")
    lwait(a, HPA, 8, 0xf, 8)
    a(f"""
    {st(8)}
    s_mov_b32 s41, s16
    s_mov_b32 s47, 0
P3_GO:
    s_setprio {opt('p3o', 0)}
    s_lshl_b32 s22, s17, 3
    s_and_b32 s23, s18, 3
    s_add_u32 s22, s22, s23
    s_lshl_b32 s22, s22, 1
    s_add_u32 s22, s22, s47
    s_mul_i32 s22, s22, 20480
    s_add_u32 s22, s22, {OF_OFF}
    s_lshl_b32 s44, s41, 12
    s_add_u32 s44, s44, s22
    s_lshl_b32 s45, s41, 10
    s_add_u32 s45, s45, s22
    s_add_u32 s45, s45, 16384
    s_lshl_b32 s46, s47, 2
    s_add_u32 s40, s46, {LFB + 80}
    s_add_u32 s46, s46, s41
    s_mul_i32 s46, s46, 5120
    s_add_u32 s46, s46, {WOL}
    s_mov_b32 s26, 0
    s_mov_b32 s42, 0
    v_mov_b32 v{CM}, {LFB + 32}
    """)
    lwait(a, CM, CT, 1, 8)
    a("P3_TRY:")
    for k in range(4):
        a(f"buffer_load_dwordx4 {vr(OFR+4*k,4)}, v{VA}, s[28:31], s44 offen offset:{1024*k} sc1")
    a(f"buffer_load_dwordx2 {vr(OFR+16,2)}, v{VT}, s[28:31], s45 offen sc1\nbuffer_load_dwordx2 {vr(OFR+18,2)}, v{VT}, s[28:31], s45 offen offset:128 sc1")
    a(f"""
    s_cmp_lg_u32 s26, 0
    s_cbranch_scc1 P3_CHK
    s_add_u32 s23, s41, 1
    s_and_b32 s23, s23, 3
    s_mul_i32 s23, s23, 25600
    s_add_u32 s23, s23, {WOL}
    v_add_u32 v{CM}, s23, v{BMM}
    v_add_u32 v{CT}, s23, v{BMT}
    """)
    for n in range(25):
        k, t = divmod(n, 5); d = BF + 4 * n
        bb, o, dj = (CM, k * 6400 + t * 8, 1280) if k < 4 else (CT, t * 8, 3200)
        a(f"ds_read_b64_tr_b16 {vr(d,2)}, v{bb} offset:{o}\nds_read_b64_tr_b16 {vr(d+2,2)}, v{bb} offset:{o+dj}")
    a(f"v_mov_b32 v{BMM}, {LFB + 36}\nv_mov_b32 v{BMT}, 1\ns_waitcnt lgkmcnt(0)")
    ladd(a, BMM, BMT, 0)
    b = OFR
    def mfs(k): return "\n".join(f"v_mfma_f32_16x16x32_bf16 {vr(ACC+4*t,4)}, {vr(BF+4*(5*k+t),4)}, {vr(OFR+4*k,4)}, {vr(ACC+4*t,4) if k else 0}" for t in range(5))
    if opt("spec", 1):
        a("P3_CHK:\ns_add_u32 s26, s26, 1\ns_mov_b32 s43, -1")
        for k in range(5):
            r = b + 4 * k
            a(f"""P3_C{k}:
            s_waitcnt vmcnt({max(0, 5 - k) if k < 4 else 0})
            v_max3_u32 v{CM}, v{r}, v{r+1}, v{r+2}
            v_max3_u32 v{CM}, v{r+3}, v{CM}, 1
            v_cmp_eq_u32 vcc, s43, v{CM}
            s_cbranch_vccnz P3_B{k}
            {mfs(k)}""")
        a(f"{'' if opt('fst', 0) else st(11)}\ns_branch P3_OK")
        for k in range(5):
            a(f"P3_B{k}:\ns_sleep {opt('p3s', 4)}")
            for kk in range(k, 4):
                a(f"buffer_load_dwordx4 {vr(OFR+4*kk,4)}, v{VA}, s[28:31], s44 offen offset:{1024*kk} sc1")
            a(f"buffer_load_dwordx2 {vr(OFR+16,2)}, v{VT}, s[28:31], s45 offen sc1\nbuffer_load_dwordx2 {vr(OFR+18,2)}, v{VT}, s[28:31], s45 offen offset:128 sc1")
            a(f"s_add_u32 s26, s26, 1\ns_cmp_lt_u32 s26, 0x40000\ns_cselect_b32 s43, -1, 0\ns_branch P3_C{k}")
        a("P3_OK:")
    else:
        a(f"P3_CHK:\ns_add_u32 s26, s26, 1\ns_waitcnt vmcnt(4)\nv_max3_u32 v{CM}, v{b}, v{b+1}, v{b+2}\nv_max3_u32 v{CT}, v{b+3}, v{b+4}, v{b+5}\nv_max3_u32 v{CM}, v{b+6}, v{b+7}, v{CM}\ns_waitcnt vmcnt(2)")
        a(f"v_max3_u32 v{CT}, v{b+8}, v{b+9}, v{CT}\nv_max3_u32 v{CM}, v{b+10}, v{b+11}, v{CM}\nv_max3_u32 v{CT}, v{b+12}, v{b+13}, v{CT}\nv_max3_u32 v{CM}, v{b+14}, v{b+15}, v{CM}\ns_waitcnt vmcnt(0)")
        a(f"""
    v_max3_u32 v{CT}, v{b+16}, v{b+17}, v{CT}
    v_max3_u32 v{CM}, v{b+18}, v{b+19}, v{CM}
    s_cmp_lt_u32 s26, 0x40000
    v_max_u32 v{CM}, v{CM}, v{CT}
    s_cbranch_scc0 P3_OK
    v_cmp_eq_u32 vcc, -1, v{CM}
    s_cbranch_vccz P3_OK
    s_sleep {opt("p3s", 4)}
    s_branch P3_TRY
P3_OK:
    {'' if opt('fst', 0) else st(11)}
    s_setprio {opt('p3p', 0)}
    """)
        for n in range(25):
            k, t = divmod(n, 5)
            a(f"v_mfma_f32_16x16x32_bf16 {vr(ACC+4*t,4)}, {vr(BF+4*n,4)}, {vr(OFR+4*k,4)}, {vr(ACC+4*t,4) if k else 0}")
    a("s_cmp_lg_u32 s42, 0\ns_cbranch_scc1 P3_WR")
    lwait(a, BMM, CT, 1, 8, 2)
    a(f"{str() if opt('fst', 0) else st(12)}\nP3_WR:\nv_add_u32 v{CM}, s46, v{VA}\nv_mov_b32 v{CT}, s40\ns_nop 1")
    for j in range(5): a(f"ds_write_b128 v{CM}, {vr(ACC+4*j,4)} offset:{1024*j}")
    a("s_waitcnt lgkmcnt(0)")
    ladd(a, CT, BMT, 0)
    a(f"""
    s_add_u32 s44, s44, {8*20480}
    s_add_u32 s45, s45, {8*20480}
    s_add_u32 s46, s46, {8*5120}
    s_add_u32 s40, s40, 8
    s_add_u32 s42, s42, 1
    s_cmp_ge_u32 s42, 2
    s_cbranch_scc1 P3_END
    s_cmp_ge_u32 s16, 4
    s_cbranch_scc1 P3_TRY
    """)
    for k in range(10): a(f"v_lshlrev_b32 v{YG+2*k}, 16, v{YG+10+k}\nv_and_b32 v{YG+2*k+1}, 0xffff0000, v{YG+10+k}")
    for k in range(20): a(f"v_mul_f32 v{YG+k}, v{YG+k}, v{G2}")
    a(f"""
    v_sub_f32 v{G2}, 1.0, v{G2}
    s_branch P3_TRY
P3_END:
    {st(10)}
    s_cmp_ge_u32 s16, 4
    s_cbranch_scc1 {"L_DONE" if STAMP else "L_END"}
    s_setprio 3
    s_lshl_b32 s23, s16, 2
    s_add_u32 s23, s23, {LFB + 80}
    v_mov_b32 v{CT}, s23
    s_mul_i32 s23, s16, 20480
    s_add_u32 s23, s23, {WOL}
    v_add_u32 v{CM}, s23, v{VA}
    """)
    lwait(a, CT, BMM, 1, 4, 1)
    a(st(9))
    for j in range(5):
        for g in range(4): a(f"ds_read_b128 {vr(16*j+4*g,4)}, v{CM} offset:{5120*g+1024*j}")
    for j in range(5):
        a(f"s_waitcnt lgkmcnt({min(15, 16-4*j)})")
        for r in (0, 2): a(f"v_pk_add_f32 {vr(16*j+r,2)}, {vr(16*j+r,2)}, {vr(16*j+4+r,2)}\nv_pk_add_f32 {vr(16*j+8+r,2)}, {vr(16*j+8+r,2)}, {vr(16*j+12+r,2)}")
        for r in (0, 2): a(f"v_pk_add_f32 {vr(16*j+r,2)}, {vr(16*j+r,2)}, {vr(16*j+8+r,2)}")
        for r in range(4): a(f"v_fmac_f32 v{YG+4*j+r}, v{16*j+r}, v{G2}")
        a(f"v_cvt_pk_bf16_f32 v{84+2*j}, v{YG+4*j}, v{YG+4*j+1}\nv_cvt_pk_bf16_f32 v{84+2*j+1}, v{YG+4*j+2}, v{YG+4*j+3}")
        if j == 1: a(f"buffer_store_dwordx4 v[84:87], v{VY2}, s[36:39], 0 offen" + OSC)
        if j == 3: a(f"buffer_store_dwordx4 v[88:91], v{VY2}, s[36:39], 0 offen offset:16" + OSC)
    a(f"buffer_store_dwordx2 v[92:93], v{VY2}, s[36:39], 0 offen offset:32" + OSC)

DOC = """;
"""
def main():
    a = A()
    top = open("cdna_kernels/" + NAME + ".s.ref").read().split("; Override launch")[0]
    top += "; @launch grid=(256,1,1) block=(768,1,1) lds=163840\n"
    top += DOC
    a('.amdgcn_target "amdgcn-amd-amdhsa--gfx950"\n.text')
    d = gen(a)
    open(sys.argv[1], "w").write(top + a.text() + '.section .rodata,"a"\n.p2align 6\n' + d)
if __name__ == "__main__":
    main()
```

```python
import sys, math, struct

OPT = dict(x.split("=") for x in sys.argv[2:])
def opt(k, d): return int(OPT.get(k, d))
NAME = "gated_mix__spectral_fnet__softmax_full_mha__prompt"
HS = 163840
KV_OFF = 0
HG = HS + opt('pad', 512)
HQ = 81920 + opt('pad', 512)
Q_OFF = 32 * HG
FE_OFF = Q_OFF + 32 * HQ
FO_DELTA = 655360
X512_OFF = FE_OFF + 2 * FO_DELTA
TB_OFF = X512_OFF + 4096
Y_OFF = TB_OFF + 33 * 65536
ZP = 8704
G_OFF = Y_OFF + 85 * 2 * ZP
OF_OFF = G_OFF + 8192
FLG_OFF = OF_OFF + 2621440
WS_USED = FLG_OFF + 320 * 128
XB = 102400
L_Y = 256
QLDS = 61440
RB0, RSL = 11264, 36864
LFB = 158720
WOL = 5120
AK1, AK2, AV, BK1, BK2, BV, OA1, OA2, ONES, PA, FA = range(152, 163)
VA, VT, BMM, BMT, CM, CT = 163, 164, 165, 166, 160, 161
PXB = 107520
def p3_addr(l):
    return f"""v_lshlrev_b32 v{VA}, 4, v{l}
    v_and_b32 v2, 7, v{l}
    v_bfe_u32 v4, v{l}, 3, 1
    v_lshrrev_b32 v3, 4, v{l}
    v_lshlrev_b32 v{VT}, 8, v3
    v_lshl_add_u32 v{VT}, v2, 4, v{VT}
    v_lshl_add_u32 v{VT}, v4, 3, v{VT}
    v_bfe_u32 v2, v{l}, 2, 2
    v_and_b32 v5, 3, v{l}
    v_mul_u32_u24 v5, 40, v5
    v_mul_u32_u24 v4, 40, v3
    v_add3_u32 v4, v4, v2, 16
    v_mul_u32_u24 v4, 160, v4
    v_add_u32 v{BMT}, v4, v5
    v_lshrrev_b32 v4, 1, v3
    v_mul_u32_u24 v4, 20, v4
    v_and_b32 v3, 1, v3
    v_lshl_add_u32 v4, v3, 2, v4
    v_add_u32 v4, v4, v2
    v_mul_u32_u24 v4, 160, v4
    v_add_u32 v{BMM}, v4, v5"""

def f32bits(x): return struct.unpack("<I", struct.pack("<f", x))[0]
QSCALE = f32bits((20 ** -0.5) * math.log2(math.e))
STAMP = opt("stamp", 0)
STAMP_OFF = 1 << 25
NST = 16

class A:
    def __init__(self): self.l = []; self.n = 0
    def __call__(self, s):
        for line in s.split("\n"):
            t = line.strip()
            if not t: continue
            self.l.append(t if t.endswith(":") or t.startswith(".") else "    " + t)
    def uid(self): self.n += 1; return self.n
    def text(self): return "\n".join(self.l) + "\n"

def vr(a, n): return f"v[{a}:{a+n-1}]" if n > 1 else f"v{a}"
def srd(lo, base, size):
    return f"s_mov_b32 s{lo}, s{base}\ns_mov_b32 s{lo+1}, s{base+1}\ns_mov_b32 s{lo+2}, {size}\ns_mov_b32 s{lo+3}, 0x20000"
OSC = " sc1" if opt("outsc1", 0) else ""
P1ST = opt("p1st", 0)
def st(i, p1=False):
    if not STAMP: return ""
    if P1ST and not p1 and 0 < i < 15 and i not in (4, 5): return ""
    if P1ST and not p1 and i in (4, 5): i += 8
    if p1 and not P1ST: return ""
    return f"{'s_memrealtime' if STAMP in (1, 3, 4) else 's_memtime'} s[{64+2*i}:{65+2*i}]"
def fin(): return "s_branch L_DONE" if STAMP else "s_endpgm"

X_P, WD_P, WQKV_P, WO_P, GATE_P, OUT_P, DBG_P, WS_P = 4, 8, 48, 50, 52, 54, 56, 58

def poll(a, vaddr, vdat, mask, target, sreg=60):
    u = a.uid()
    a(f"""
    s_mov_b64 exec, {mask}
    s_mov_b32 s{sreg}, 0
L_POLL{u}:
    buffer_load_dword v{vdat}, v{vaddr}, s[28:31], 0 offen sc1
    s_waitcnt vmcnt(0)
    v_cmp_gt_u32 vcc, {target}, v{vdat}
    s_cbranch_vccz L_POLLD{u}
    {'s_sleep 1' if opt('psleep', 0) else ''}
    s_add_u32 s{sreg}, s{sreg}, 1
    s_cmp_lt_u32 s{sreg}, 0x40000
    s_cbranch_scc1 L_POLL{u}
L_POLLD{u}:
    s_mov_b64 exec, -1
    """)

def poll4(a, vaddr, vdat, mask, soff="0", sreg=60, slp=None):
    u = a.uid()
    a(f"""
    s_mov_b64 exec, {mask}
    s_mov_b32 s{sreg}, 0
    s_branch L_POLLE{u}
L_POLL{u}:
    s_sleep {slp or opt("ps4", 2)}
L_POLLE{u}:
    buffer_load_dwordx4 {vr(vdat,4)}, v{vaddr}, s[28:31], {soff} offen sc1
    s_add_u32 s{sreg}, s{sreg}, 1
    s_waitcnt vmcnt(0)
    v_min3_u32 v{vdat}, v{vdat}, v{vdat+1}, v{vdat+2}
    s_cmp_lt_u32 s{sreg}, 0x40000
    v_min_u32 v{vdat}, v{vdat}, v{vdat+3}
    s_cbranch_scc0 L_POLLD{u}
    v_cmp_eq_u32 vcc, 0, v{vdat}
    s_cbranch_vccnz L_POLL{u}
L_POLLD{u}:
    s_mov_b64 exec, -1
    """)

def gen(a):
    label = NAME + "_kernel"
    a(f".p2align 8\n.globl {label}\n.type {label},@function\n{label}:")
    a(f"""
    s_cmp_ge_u32 s2, 256
    s_cbranch_scc1 L_END
    {st(0) + chr(10) + 's_waitcnt lgkmcnt(0)' if opt("st0first", 0) else ''}
    s_load_dwordx2 s[4:5], s[0:1], 0
    s_load_dwordx8 s[48:55], s[0:1], 48
    s_load_dwordx4 s[8:11], s[0:1], 24
    s_load_dwordx4 s[56:59], s[0:1], 80
    """)
    if STAMP:
        a("\n".join(f"s_mov_b32 s{64+j}, 0" for j in range(2, 2 * NST)) + "\n" + ("" if opt("st0first", 0) else st(0)))
    a(f"""
    v_lshrrev_b32 v1, 6, v0
    v_and_b32 v0, 63, v0
    s_and_b32 s17, s2, 7
    v_readfirstlane_b32 s16, v1
    s_lshr_b32 s18, s2, 3
    s_and_b32 s19, s18, 7
    s_lshr_b32 s22, s18, 3
    s_and_b32 s21, s17, 1
    s_lshl_b32 s23, s19, 1
    s_add_u32 s21, s21, s23
    s_lshr_b32 s20, s17, 1
    s_cmp_ge_u32 s19, {opt("numl", 3)}
    s_cselect_b32 s12, 1, 0
    s_cmp_eq_u32 s22, 0
    s_cselect_b32 s12, 0, s12
    s_cmp_ge_u32 s16, 4
    s_cbranch_scc1 P1_NOTLOADER
    """)
    p1_loader(a)
    a(f"""
P1_NOTLOADER:
    s_lshl_b32 s63, s17, 2
    s_add_u32 s63, s63, s22
    s_mul_i32 s14, s63, {HG}
    s_sub_u32 s13, s16, 4
    s_lshl_b32 s23, s19, 3
    s_add_u32 s23, s23, s13
    s_mul_i32 s23, s23, 40960
    s_add_u32 s23, s23, {OF_OFF}
    s_lshl_b32 s6, s63, 9
    s_add_u32 s6, s6, s23
    s_lshl_b32 s7, s63, 7
    s_add_u32 s7, s7, s23
    s_add_u32 s7, s7, 16384
    s_lshl_b32 s15, s20, 2
    s_add_u32 s15, s15, s22
    s_lshl_b32 s15, s15, 4
    s_add_u32 s15, s15, s21
    s_lshl_b32 s15, s15, 5
    s_add_u32 s15, s15, s13
    s_lshl_b32 s15, s15, 2
    s_add_u32 s15, s15, {FLG_OFF}
    v_and_b32 v1, 31, v0
    v_lshrrev_b32 v2, 5, v0
    v_lshlrev_b32 v{AK1}, 4, v0
    v_lshrrev_b32 v3, 4, v1
    v_lshl_add_u32 v3, v3, 1, v2
    v_and_b32 v4, 15, v0
    v_lshl_add_u32 v3, v4, 2, v3
    v_lshlrev_b32 v{AK2}, 2, v3
    v_mul_u32_u24 v{AV}, 384, v2
    v_lshlrev_b32 v3, 6, v2
    v_cmp_gt_u32 vcc, 16, v1
    s_nop 1
    v_cndmask_b32 v{AV}, v3, v{AV}, vcc
    v_lshl_add_u32 v{AV}, v1, 4, v{AV}
    v_add_u32 v{BK1}, 15360, v{AK1}
    v_add_u32 v{BK2}, 15360, v{AK2}
    v_add_u32 v{BV}, 15360, v{AV}
    v_and_b32 v3, 27, v1
    v_cmp_eq_u32 vcc, 24, v3
    v_mov_b32 v3, 0x3f803f80
    v_bfe_u32 v{OA2}, v1, 3, 1
    v_cndmask_b32 v{ONES}, 0, v3, vcc
    v_mul_u32_u24 v{OA2}, 20480, v{OA2}
    v_and_b32 v3, 7, v1
    v_lshl_add_u32 v{OA2}, v3, 4, v{OA2}
    v_lshrrev_b32 v3, 4, v0
    v_lshl_add_u32 v{OA1}, v3, 7, v{OA2}
    s_lshl_b32 s23, s13, 2
    s_add_u32 s23, s23, {LFB}
    v_mov_b32 v{PA}, s23
    v_mov_b32 v{FA}, {LFB + 56}
    {p3_addr(0)}
    s_cmp_ge_u32 s16, 8
    s_cbranch_scc1 P1_EXTRA
    """)
    p1_compute(a)
    p1_extra(a)
    attention(a)
    helpers(a)
    a("L_DONE:")
    if STAMP == 4:
        i_, j_ = opt("ai", 0), opt("aj", 0)
        a(f"""s_waitcnt vmcnt(0)
        {st(NST-1)}
        s_waitcnt lgkmcnt(0)
        s_cmp_ge_u32 s16, {opt("aw", 4)}
        s_cbranch_scc1 L_END
        s_and_b32 s60, s2, {opt("am", 31)}
        s_cmp_lg_u32 s60, {opt("av", 5)}
        s_cbranch_scc1 L_END
        s_sub_u32 s60, s{64+2*j_}, s{64+2*i_}
        s_lshl_b32 s60, s60, 2
        s_min_u32 s60, s60, 100000
        {f's_mov_b32 s60, {opt("fix", 0)}' if opt("fix", 0) else ''}
L_AMP:
        s_memrealtime s[44:45]
        s_waitcnt lgkmcnt(0)
        s_sub_u32 s44, s44, s{64 if opt("fix", 0) else 64+2*(NST-1)}
        s_cmp_lt_u32 s44, s60
        s_cbranch_scc1 L_AMP
        """)
    elif STAMP == 3:
        r = f"s_waitcnt vmcnt(0)\n{st(NST-1)}\ns_mov_b64 exec, 1\n{srd(44, DBG_P, 256)}\ns_waitcnt lgkmcnt(0)\nv_mov_b32 v16, 0\n"
        r += "s_not_b32 s60, s64\nv_mov_b32 v0, s60\nbuffer_atomic_umax v0, v16, s[44:47], 0 offen offset:4 sc1\n"
        r += "s_cmp_eq_u32 s16, 0\ns_cbranch_scc1 L_D0\ns_cmp_eq_u32 s16, 4\ns_cbranch_scc0 L_END\n"
        for n, i in enumerate((2, 3, 4, 5, 7, 8, 9)): r += f"v_mov_b32 v{n+1}, s{64+2*i}\nbuffer_atomic_umax v{n+1}, v16, s[44:47], 0 offen offset:{8+4*n} sc1\n"
        r += "s_endpgm\nL_D0:\n"
        for n, i in enumerate((0, 1, 6, 8, 9, 10, 15)): r += f"v_mov_b32 v{n+1}, s{64+2*i}\nbuffer_atomic_umax v{n+1}, v16, s[44:47], 0 offen offset:{36+4*n} sc1\n"
        a(r)
    elif STAMP:
        r = f"s_waitcnt vmcnt(0)\n{st(NST-1)}\ns_mov_b64 exec, 1\ns_add_u32 s44, s{WS_P}, {STAMP_OFF}\ns_addc_u32 s45, s{WS_P+1}, 0\ns_mov_b32 s46, 262144\ns_mov_b32 s47, 0x20000\n"
        r += "s_lshl_b32 s60, s2, 4\ns_add_u32 s60, s60, s16\ns_lshl_b32 s60, s60, 6\ns_waitcnt lgkmcnt(0)\nv_mov_b32 v16, 0\n"
        if opt("xcc", 0): r += "s_getreg_b32 s66, hwreg(HW_REG_XCC_ID)\ns_add_u32 s66, s66, 100\n"
        for i in range(NST): r += f"v_mov_b32 v{i}, s{64+2*i}\n"
        for i in range(4): r += f"buffer_store_dwordx4 v[{4*i}:{4*i+3}], v16, s[44:47], s60 offen offset:{16*i}\n"
        a(r)
    a("L_END:\ns_endpgm\n.fill 256, 4, 0xbf810000\nL_CODE_END:")
    return f""".amdhsa_kernel {label}
  .amdhsa_next_free_vgpr 168
  .amdhsa_next_free_sgpr {100 if STAMP else 64}
  .amdhsa_accum_offset 168
  .amdhsa_group_segment_fixed_size 0
  .amdhsa_kernarg_size 96
  .amdhsa_user_sgpr_count 2
  .amdhsa_user_sgpr_kernarg_segment_ptr 1
  .amdhsa_system_sgpr_workgroup_id_x 1
.end_amdhsa_kernel
"""

def p1_loader(a):
    a(f"""
    s_setprio 3
    """)
    if opt("pf", 0):
        a(f"""
        v_lshlrev_b32 v20, 4, v0
        s_mul_i32 s23, s2, 10240
        s_and_b32 s24, s16, 1
        s_mul_i32 s24, s24, 5120
        s_add_u32 s23, s23, s24
        s_mul_i32 s25, s2, 3
        s_mov_b32 s31, 0x20000
        s_mov_b32 s35, 0x20000
        s_mov_b32 s34, {640*1280}
        s_waitcnt lgkmcnt(0)
        s_mov_b32 s30, {2048*1280}
        s_cmp_lt_u32 s16, 2
        s_cselect_b32 s28, s{X_P}, s{WQKV_P}
        s_cselect_b32 s29, s{X_P+1}, s{WQKV_P+1}
        s_cselect_b32 s30, s30, {640*3840}
        s_cselect_b32 s32, s8, s10
        s_cselect_b32 s33, s9, s11
        buffer_load_dwordx4 v[24:27], v20, s[28:31], s23 offen
        buffer_load_dwordx4 v[28:31], v20, s[28:31], s23 offen offset:1024
        buffer_load_dwordx4 v[32:35], v20, s[28:31], s23 offen offset:2048
        buffer_load_dwordx4 v[36:39], v20, s[28:31], s23 offen offset:3072
        s_add_u32 s23, s23, 4096
        buffer_load_dwordx4 v[40:43], v20, s[28:31], s23 offen
        s_lshr_b32 s24, s24, 11
        s_add_u32 s25, s25, s24
        s_mul_i32 s25, s25, 1280
        s_mov_b32 exec_hi, 0xff
        buffer_load_dwordx4 v[44:47], v20, s[32:35], s25 offen
        s_bitcmp1_b32 s16, 0
        s_cbranch_scc1 P1_PF1
        buffer_load_dwordx4 v[48:51], v20, s[32:35], s25 offen offset:1280
P1_PF1:
        s_mov_b32 exec_hi, -1
        """)
    a(f"""
    v_lshrrev_b32 v2, 3, v0
    v_and_b32 v3, 7, v0
    v_lshrrev_b32 v4, 4, v0
    v_xor_b32 v3, v3, v4
    v_lshlrev_b32 v3, 4, v3
    v_xor_b32 v4, 64, v3
    s_lshl_b32 s23, s21, 5
    s_lshr_b32 s24, s16, 1
    s_lshl_b32 s24, s24, 4
    s_add_u32 s23, s23, s24
    v_add_u32 v9, s23, v2
    s_bitcmp1_b32 s16, 0
    s_cselect_b32 s23, -1, 1
    s_cselect_b32 s24, 0x400, 0
    s_cselect_b32 s25, -8, 8
    v_mul_lo_u32 v10, v9, s23
    s_sub_u32 s27, 0x800, s24
    v_add_u32 v5, s24, v10
    v_sub_u32 v7, s27, v10
    v_add_u32 v6, s25, v5
    v_subrev_u32 v8, s25, v7
    v_cmp_eq_u32 vcc, 0, v9
    s_add_u32 s24, s24, 0x200
    v_mov_b32 v9, s24
    s_cmp_lg_u32 s22, 2
    v_cndmask_b32 v7, v7, v9, vcc
    s_cbranch_scc1 P1_LD_NV
    v_swap_b32 v6, v7
P1_LD_NV:
    s_lshl_b32 s26, s22, 2
    s_add_u32 s26, s26, s20
    s_and_b32 s27, s20, 1
    s_movk_i32 s25, 3840
    s_cmp_eq_u32 s22, 3
    s_cselect_b32 s25, 1280, s25
    s_cselect_b32 s26, s27, s26
    s_mul_i32 s26, s26, 320
    s_movk_i32 s27, 1280
    v_mad_u32_u24 v10, v5, s27, v3
    v_mad_u32_u24 v11, v6, s27, v4
    v_mad_u32_u24 v12, v7, s27, v3
    v_mad_u32_u24 v13, v8, s27, v4
    s_lshl_b32 s27, s16, 4
    s_mul_i32 s27, s27, s25
    s_add_u32 s26, s26, s27
    s_sub_u32 s27, s25, 320
    """)
    for i in range(5):
        a(f"""
        v_add_u32 v5, {64*i}, v0
        v_mul_u32_u24 v6, 3277, v5
        v_lshrrev_b32 v6, 16, v6
        v_lshrrev_b32 v7, 2, v6
        v_and_b32 v7, 2, v7
        v_xor_b32 v5, v5, v7
        v_lshl_add_u32 v5, v5, 4, s26
        v_mad_u32_u24 v{14+i}, v6, s27, v5
        """)
    sg = opt("stag1", 7)
    if sg == 1:
        a("s_lshl_b32 s36, s19, 3\ns_lshl_b32 s37, s22, 4\ns_add_u32 s36, s36, s37\ns_add_u32 s36, s36, s17\ns_and_b32 s36, s36, 63\ns_mul_i32 s36, s36, 10\ns_lshr_b32 s36, s36, 6")
    elif sg == 2:
        a("s_add_u32 s36, s19, s22\ns_lshl_b32 s36, s36, 4\ns_add_u32 s36, s36, s17\ns_add_u32 s36, s36, s17\ns_and_b32 s36, s36, 63\ns_mul_i32 s36, s36, 10\ns_lshr_b32 s36, s36, 6")
    elif sg == 3:
        a("s_add_u32 s36, s19, s22\ns_lshl_b32 s36, s36, 5\ns_lshl_b32 s37, s17, 2\ns_add_u32 s36, s36, s37\ns_and_b32 s36, s36, 63\ns_mul_i32 s36, s36, 10\ns_lshr_b32 s36, s36, 6")
    elif sg >= 10:
        nc = sg - 9
        Gn = 5 - nc
        rot = [2 * (nc + k % Gn) for k in range(2 * Gn - 1)]
        rv = sum(v << (4 * k) for k, v in enumerate(rot))
        com = sum((2 * k) << (4 * k) for k in range(nc))
        a(f"""
        s_lshr_b32 s36, s17, 1
        s_xor_b32 s36, s36, s17
        s_and_b32 s36, s36, 1
        s_add_u32 s37, s22, s19
        s_lshr_b32 s46, s17, 2
        s_lshl_b32 s46, s46, {opt("xsh", 1)}
        s_add_u32 s37, s37, s46
        s_mul_i32 s46, s37, {256 // Gn + 1}
        s_lshr_b32 s46, s46, 8
        s_mul_i32 s46, s46, {Gn}
        s_sub_u32 s37, s37, s46
        s_lshl_b32 s37, s37, 2
        s_lshr_b32 s46, {rv:#x}, s37
        s_and_b32 s46, s46, {(1 << (4 * Gn)) - 1:#x}
        s_lshl_b32 s46, s46, {4 * nc}
        s_or_b32 s46, s46, {0x53100000 | com:#x}
        s_mov_b32 s47, 0x97
        s_mul_i32 s37, s36, 0x11111111
        s_xor_b32 s46, s46, s37
        s_xor_b32 s47, s47, s37
        s_and_b32 s36, s46, 15
        """)
    elif sg >= 5:
        tsh = {5: 0, 6: 1, 7: 0, 8: 0, 9: 0}[sg]
        a(f"""
        s_lshr_b32 s36, s17, 1
        s_xor_b32 s36, s36, s17
        s_and_b32 s36, s36, 1
        {'s_min_u32 s37, s22, 2' if sg == 9 else f's_lshr_b32 s37, s22, {tsh}'}
        s_add_u32 s37, s37, s19
        s_lshr_b32 s46, s17, 2
        s_lshl_b32 s46, s46, 1
        s_add_u32 s37, s37, s46
        s_mul_i32 s46, s37, 52
        s_lshr_b32 s46, s46, 8
        s_mul_i32 s46, s46, 5
        s_sub_u32 s37, s37, s46
        s_lshl_b32 s37, s37, 2
        s_mov_b32 s46, 0x42086420
        s_mov_b32 s47, 0x6
        s_lshr_b64 s[46:47], s[46:47], s37
        s_and_b32 s46, s46, 0xfffff
        {'s_or_b32 s47, s46, 0x11111' + chr(10) + 's_lshl_b32 s37, s47, 20' + chr(10) + 's_or_b32 s46, s46, s37' + chr(10) + 's_lshr_b32 s47, s47, 12' if sg == 8 else 's_or_b32 s46, s46, 0x53100000' + chr(10) + 's_mov_b32 s47, 0x97'}
        s_mul_i32 s37, s36, 0x11111111
        s_xor_b32 s46, s46, s37
        s_xor_b32 s47, s47, s37
        """)
        if sg == 7:
            a("s_lshr_b32 s37, s47, 4\ns_and_b32 s37, s37, 15\ns_lshl_b64 s[46:47], s[46:47], 4\ns_or_b32 s46, s46, s37")
        a("s_and_b32 s36, s46, 15")
    else:
        a("s_mov_b32 s36, 0")
    a(f"""
    s_lshl_b32 s38, s16, 12
    s_add_u32 s38, s38, {RB0}
    s_mul_i32 s39, s16, 5120
    s_add_u32 s39, s39, {RB0 + 16384}
    s_mov_b32 s40, 0
    s_mul_i32 s34, s25, 640
    s_lshl_b32 s25, s25, 6
    s_mov_b32 s35, 0x20000
    s_waitcnt lgkmcnt(0)
    {srd(28, X_P, 2048*1280)}
    s_cmp_lt_u32 s20, 2
    s_cselect_b32 s32, s8, s10
    s_cselect_b32 s33, s9, s11
    s_cmp_eq_u32 s22, 3
    s_cselect_b32 s32, s32, s{WQKV_P}
    s_cselect_b32 s33, s33, s{WQKV_P+1}
    {st(1)}
    """)
    if opt("dftdelay", 0):
        a(f"""s_cmp_lg_u32 s22, 3
        s_cbranch_scc1 P1_LD_LOOP
        s_memrealtime s[42:43]
        s_waitcnt lgkmcnt(0)
        s_add_u32 s42, s42, {opt("dftdelay", 0)}
P1_DLY:
        s_memrealtime s[44:45]
        s_waitcnt lgkmcnt(0)
        s_cmp_lt_u32 s44, s42
        s_cbranch_scc1 P1_DLY
        """)
    a(f"""
P1_LD_LOOP:
    s_lshl_b32 s41, s36, 7
    s_mul_i32 s42, s36, s25
    s_add_u32 s43, s40, 2
    s_and_b32 s43, s43, 3
    s_mul_i32 s43, s43, {RSL}
    s_add_u32 s44, s43, s38
    s_add_u32 s45, s43, s39
    """)
    for i in range(4):
        a(f"s_add_u32 m0, s44, {1024*i}\ns_nop 0\nbuffer_load_dwordx4 v{10+i}, s[28:31], s41 offen lds")
    for i in range(5):
        a(f"s_add_u32 m0, s45, {1024*i}\ns_nop 0\nbuffer_load_dwordx4 v{14+i}, s[32:35], s42 offen lds")
    if opt("noload", 0): a("s_cmp_ge_u32 s40, 3\ns_cselect_b32 s30, 0, s30\ns_cselect_b32 s34, 0, s34")
    a(f"""
    {'s_lshr_b64 s[46:47], s[46:47], 4' + chr(10) + 's_and_b32 s36, s46, 15' if sg >= 5 else 's_add_u32 s36, s36, 1' + chr(10) + 's_cmp_eq_u32 s36, 10' + chr(10) + 's_cselect_b32 s36, 0, s36'}
    s_add_u32 s40, s40, 1
    s_cmp_eq_u32 s40, 1
    s_cbranch_scc1 P1_LD_LOOP
    s_waitcnt vmcnt(9)
    s_barrier
    s_cmp_lt_u32 s40, 10
    s_cbranch_scc1 P1_LD_LOOP
    s_waitcnt vmcnt(0)
    s_barrier
    s_branch HELPER
    """)

def p1_compute(a):
    X = 80; W = [96, 116]; XA = 136; WA = 137; CX = 142; CW = 144; PC = 149; L = 150; TT = 96
    def acc(b, T): return 20 * b + 4 * T
    a(f"""
    s_sub_u32 s61, s16, 4
    s_and_b32 s36, s61, 1
    s_lshr_b32 s37, s61, 1
    v_mov_b32 v{L}, v0
    v_and_b32 v1, 15, v0
    v_lshrrev_b32 v2, 4, v0
    v_lshrrev_b32 v3, 1, v1
    v_xor_b32 v3, v3, v2
    v_lshlrev_b32 v3, 4, v3
    v_lshl_add_u32 v3, v1, 7, v3
    s_lshl_b32 s23, s36, 13
    s_add_u32 s23, s23, {RB0}
    v_add_u32 v{XA}, s23, v3
    v_bfe_u32 v3, v0, 2, 2
    v_lshl_add_u32 v3, v2, 3, v3
    v_mul_u32_u24 v3, 320, v3
    v_add_u32 v3, {RB0 + 16384}, v3
    v_and_b32 v4, 16, v0
    v_lshlrev_b32 v4, 1, v4
    v_and_b32 v5, 3, v0
    s_mul_i32 s23, s37, 160
    v_lshl_add_u32 v6, v5, 3, s23
    """)
    for T in range(4):
        a(f"v_xor_b32 v7, v6, v4\nv_add_u32 v{WA+T}, v7, v3\nv_add_u32 v6, 40, v6")
    a(f"""
    v_mul_u32_u24 v6, 40, v5
    v_add3_u32 v6, v6, s23, 32
    v_xor_b32 v7, v6, v4
    v_add_u32 v{WA+4}, v7, v3
    v_mov_b32 v{PC}, 0xbf803f80
    s_lshl_b32 s26, s22, 2
    s_add_u32 s26, s26, s20
    s_lshl_b32 s26, s26, 1
    s_add_u32 s26, s26, s37
    s_cmp_eq_u32 s26, 28
    s_cselect_b32 s24, 0x10001, 0
    s_mov_b32 s25, s24
    s_cmp_eq_u32 s22, 3
    s_cselect_b32 s43, 10, 8
    s_mov_b32 s40, 0
    s_mov_b32 s42, {2 * RSL}
    """)
    for r in range(96): a(f"v_mov_b32 v{r}, 0")
    for r in range(20): a(f"v_mov_b32 v{W[1]+r}, 0")
    a(f"v_add_u32 v{CX}, s42, v{XA}")
    for T in range(5): a(f"v_add_u32 v{CW+T}, s42, v{WA+T}")
    a(f"s_waitcnt lgkmcnt(0)\n{srd(28, WS_P, WS_USED)}")
    a(f"s_setprio {opt('cp', 2)}\ns_cmp_ge_u32 s22, 2\ns_cbranch_scc1 P1_PRE_V")
    def mf(b, T, x, w, qk):
        d = vr(acc(b, T), 4)
        return f"v_mfma_f32_16x16x32_bf16 {d}, {vr(w,4)}, {vr(x,4)}, {d}" if qk else f"v_mfma_f32_16x16x32_bf16 {d}, {vr(x,4)}, {vr(w,4)}, {d}"
    def rdw(d, T, step): return [f"ds_read_b64_tr_b16 {vr(d+2*j,2)}, v{CW+T} offset:{(step // 2) * RSL + (step % 2) * 10240 + 1280 * j}" for j in range(2)]
    def rdx(d, b, step): return f"ds_read_b128 {vr(d,4)}, v{CX + step % 2} offset:{(step // 2) * RSL + 2048 * b}"
    TO = (1, 2, 3, 4, 0)
    def group(step, qk, reads=True):
        cur = W[1 - step]; nxt = W[step]
        rq = []
        for T in TO: rq += rdw(nxt + 4 * T, T, step)
        fill = []
        if step == 1:
            fill = ["s_add_u32 s40, s40, 1", "s_add_u32 s41, s40, 2", "s_and_b32 s41, s41, 3", f"s_mul_i32 s42, s41, {RSL}", f"v_add_u32 v{CX}, s42, v{XA}"] + [f"v_add_u32 v{CW+T}, s42, v{WA+T}" for T in range(5)]
        issued = 0
        for b in range(4):
            if reads:
                allow = [2, 15, issued + 1, issued][b]
                if b != 1: a(f"s_waitcnt lgkmcnt({min(15, allow)})")
            elif b == 0: a("s_waitcnt lgkmcnt(0)")
            for n, T in enumerate(TO):
                a(mf(b, T, X + 4 * b, cur + 4 * T, qk))
                if b == 0 and n < 2 and not qk:
                    for j in range(2): a(f"v_cndmask_b32 v{cur+2*n+j}, v{cur+2*n+j}, v{PC}, s[24:25]")
                if not reads: continue
                if step == 0 and b == 0:
                    if n == 0: a(f"v_xor_b32 v{CX+1}, 64, v{CX}")
                    if n == 1: a("s_barrier")
                    if n < 2: continue
                if n == 4: a(rdx(X + 4 * b, b, step)); issued += 1
                elif rq: a(rq.pop(0)); issued += 1
                elif fill:
                    a(fill.pop(0))
                    if fill: a(fill.pop(0))
        assert not reads or (not rq and not fill), (rq, fill)

    def tail(qk, epi):
        seq = [(b, T, ("x0", b), ("w0", T)) for b in range(4) for T in TO]
        marks = {}
        win = opt("win", 2)
        for step in range(4 - win):
            for b in range(4):
                for T in TO: seq.append((b, T, ("x", 0, step, b), ("w", step, T)))
        for T in range(5):
            for jj in range(2):
                for step in range(4 - win, 4):
                    for b in (2 * jj, 2 * jj + 1): seq.append((b, T, ("x", 0, step, b), ("w", step, T)))
                marks[len(seq) - 1] = (T, jj)
        last = {}
        for n, (_, _, x, w) in enumerate(seq): last[x] = n; last[w] = n
        loc = {("x0", b): X + 4 * b for b in range(4)}; loc.update({("w0", T): W[1] + 4 * T for T in range(5)})
        free = [W[0] + 4 * k for k in range(5)] + [XA]
        order = []
        for _, _, x, w in seq:
            for f in (w, x):
                if f not in loc and f not in order: order.append(f)
        done_at = {}; nrd = 0; waited = 0; pend = []; fill = []
        cnt = [0]; prev = [0]
        def em(t): a(t); cnt[0] += 1
        a(f"v_xor_b32 v{CX+1}, 64, v{CX}\ns_waitcnt lgkmcnt(0)\ns_barrier")
        bar2 = [True]
        def take():
            f = order.pop(0); loc[f] = free.pop(0)
            if bar2 and (f[1] if f[0] == "w" else f[2]) >= 2: em("s_barrier"); bar2.pop()
            p_ = rdw(loc[f], f[2], f[1]) if f[0] == "w" else [rdx(loc[f], f[3], f[2])]
            done_at[f] = nrd + len(p_)
            return p_
        def gap():
            t, at, after = fill[0]
            return max(at - cnt[0], prev[0] + after - cnt[0], 0)
        def put():
            em(fill.pop(0)[0]); prev[0] = cnt[0]
        for n, (b, T, x, w) in enumerate(seq):
            while any(f not in loc or (f in done_at and done_at[f] > nrd) for f in (x, w)):
                if not pend: pend = take()
                em(pend.pop(0)); nrd += 1
            need = max(done_at.get(x, 0), done_at.get(w, 0))
            if need > waited:
                waited = max(need, nrd - opt("tw", 6)); em(f"s_waitcnt lgkmcnt({nrd - waited})")
            em(mf(b, T, loc[x], loc[w], qk))
            if n in marks: fill += [(t, cnt[0] + 8, after) for t, after in epi(*marks[n])]
            for f in (x, w):
                if last[f] == n: free.append(loc[f])
            if not pend and order and free: pend = take()
            if pend: em(pend.pop(0)); nrd += 1
            for _ in range(2):
                if fill and gap() == 0: put()
        a(st(3))
        while fill:
            g_ = gap()
            if g_: a(f"s_nop {g_ - 1}"); cnt[0] += g_
            put()

    EA, EB = 167, 151
    def cv(d, r): return [f"v_cvt_pk_bf16_f32 v{d}, v{r}, v{r+1}", f"v_cvt_pk_bf16_f32 v{d+1}, v{r+2}, v{r+3}"]
    def epi_qk(ph, jj=0):
        if ph < 0:
            return f"""s_mov_b32 s35, {HG}
            s_movk_i32 s38, 2560
            s_cmp_eq_u32 s22, 0
            s_cselect_b32 s35, {HQ}, s35
            s_cselect_b32 s27, {Q_OFF}, {KV_OFF}
            s_cselect_b32 s38, 1280, s38
            s_lshl_b32 s26, s20, 1
            s_add_u32 s26, s26, s37
            s_lshl_b32 s26, s26, 2
            s_mul_i32 s26, s26, s35
            s_add_u32 s26, s26, s27
            s_lshl_b32 s23, s21, 1
            s_add_u32 s23, s23, s36
            s_lshl_b32 s23, s23, 1
            s_mul_i32 s23, s23, s38
            s_add_u32 s26, s26, s23
            s_add_u32 s27, s26, s38
            v_lshrrev_b32 v{EA}, 4, v{L}
            v_mul_lo_u32 v{EA}, v{EA}, s35
            v_and_b32 v{TT}, 15, v{L}
            v_lshl_add_u32 v{EA}, v{TT}, 4, v{EA}
            v_lshlrev_b32 v{EB}, 4, v{L}
            s_add_u32 s44, s26, s35
            s_add_u32 s45, s27, s35
            s_add_u32 s46, s44, s35
            s_add_u32 s47, s45, s35
            s_add_u32 s32, s46, s35
            s_add_u32 s33, s47, s35""".split("\n")
        T = ph
        r0, r1 = acc(2 * jj, T), acc(2 * jj + 1, T)
        o = [(t, 0) for t in cv(r0, r0) + cv(r0 + 2, r1)]
        if T < 4:
            o += [(f"v_permlane16_swap_b32 v{r0}, v{r0+2}", 1), (f"v_permlane16_swap_b32 v{r0+1}, v{r0+3}", 0)]
            o.append((f"buffer_store_dwordx4 {vr(r0,4)}, v{EB}, s[28:31], s{(26, 44, 46, 32)[T] + jj} offen sc1", 0))
        else:
            o.append((f"buffer_store_dwordx4 {vr(r0,4)}, v{EA}, s[28:31], s{26 + jj} offen offset:1024 sc1", 0))
        return o
    def epi_v(ph, jj=0):
        if ph < 0:
            return f"""s_lshl_b32 s26, s20, 1
            s_add_u32 s26, s26, s37
            s_mul_i32 s26, s26, {4*HG}
            s_lshl_b32 s23, s21, 1
            s_add_u32 s23, s23, s36
            s_mul_i32 s23, s23, 5120
            s_add_u32 s26, s26, s23
            s_add_u32 s26, s26, {KV_OFF + 1280}
            s_add_u32 s44, s26, {HG}
            s_add_u32 s45, s26, {2*HG}
            s_add_u32 s46, s26, {3*HG}
            s_mov_b32 s35, {HG}
            v_lshrrev_b32 v{EA}, 5, v{L}
            v_mul_u32_u24 v{EA}, 640, v{EA}
            v_bfe_u32 v{TT}, v{L}, 4, 1
            v_lshl_add_u32 v{EB}, v{TT}, 6, v{EA}
            v_mul_u32_u24 v{TT}, 384, v{TT}
            v_add_u32 v{EA}, v{EA}, v{TT}
            v_and_b32 v{TT}, 15, v{L}
            v_lshl_add_u32 v{EA}, v{TT}, 4, v{EA}
            v_and_b32 v{TT}, 3, v{L}
            v_lshl_add_u32 v{EB}, v{TT}, 4, v{EB}
            v_bfe_u32 v{TT}, v{L}, 2, 2
            v_mul_lo_u32 v{TT}, v{TT}, s35
            v_add_u32 v{EB}, v{EB}, v{TT}""".split("\n")
        T = ph
        r0, r1 = acc(2 * jj, T), acc(2 * jj + 1, T)
        o = [(t, 0) for t in cv(r0, r0) + cv(r0 + 2, r1)]
        if T < 4: o.append((f"buffer_store_dwordx4 {vr(r0,4)}, v{EA}, s[28:31], s{(26, 44, 45, 46)[T]} offen offset:{2560 * jj} sc1", 0))
        else: o.append((f"buffer_store_dwordx4 {vr(r0,4)}, v{EB}, s[28:31], s26 offen offset:{2560 * jj + 256} sc1", 0))
        return o

    for qk, lab in ((True, "QK"), (False, "V")):
        a(f"P1_PRE_{lab}:")
        for f in (epi_qk if qk else epi_v)(-1): a(f)
        a(f"P1_LOOP_{lab}:")
        group(0, qk)
        if STAMP: a(f"s_cmp_lg_u32 s40, 0\ns_cbranch_scc1 P1_ST_{lab}\n{st(2)}\nP1_ST_{lab}:\ns_cmp_lg_u32 s40, 5\ns_cbranch_scc1 P1_SU_{lab}\n{st(1)}\nP1_SU_{lab}:")
        group(1, qk)
        a(f"s_cmp_lt_u32 s40, s43\ns_cbranch_scc1 P1_LOOP_{lab}")
        if not qk: a("s_cmp_eq_u32 s22, 3\ns_cbranch_scc1 P1_EPI_DFT")
        a("s_cmp_eq_u32 s12, 1\ns_cselect_b32 s30, 0, s30")
        tail(qk, epi_qk if qk else epi_v)
        a(f"s_cmp_eq_u32 s12, 0\ns_cbranch_scc1 P1_DONE\ns_mov_b32 s30, {WS_USED}\nv_mov_b32 v88, {LFB + 56}\nv_mov_b32 v89, 1")
        ladd(a, 88, 89, 0)
        a("s_setprio 3\ns_barrier")
        for T in range(5):
            for jj in range(2): a((epi_qk if qk else epi_v)(T, jj)[-1][0])
        a("s_branch P1_DONE")
    a("P1_EPI_DFT:")
    group(0, False, reads=False)
    TAU, TAU0, E0 = 80, 81, 140
    a(f"""
    {st(3)}
    s_cmp_lt_u32 s20, 2
    s_cselect_b32 s38, 1.0, -1.0
    v_mov_b32 v{TAU}, s38
    v_cndmask_b32 v{TAU0}, v{TAU}, 1.0, s[24:25]
    s_lshl_b32 s26, s20, 1
    s_add_u32 s26, s26, s37
    s_mul_i32 s26, s26, 80
    v_and_b32 v88, 15, v{L}
    v_add_u32 v{E0}, s26, v88
    v_add_u32 v{E0+1}, 20, v{E0}
    v_add_u32 v{E0+2}, 40, v{E0}
    v_add_u32 v{E0+3}, 60, v{E0}
    v_and_b32 v89, 12, v{L}
    v_lshl_add_u32 v{E0+4}, v89, 2, v{E0}
    v_add_u32 v{E0+4}, 16, v{E0+4}
    s_lshl_b32 s23, s21, 1
    s_add_u32 s23, s23, s36
    s_cmp_lg_u32 s23, 0
    s_cbranch_scc1 P1_EPI_DFT2
    s_mov_b64 exec, 0xffff
    s_mov_b32 s27, {X512_OFF}
    """)
    for T in range(5):
        a(f"v_fma_f32 v{96+T}, v{acc(3,T)}, v{TAU0 if T == 0 else TAU}, v{acc(1,T)}")
        a(f"v_lshlrev_b32 v{104+T}, 2, v{E0+T}\nv_mov_b32 v{acc(1,T)}, 0\nv_mov_b32 v{acc(3,T)}, 0")
        a(f"buffer_store_dword v{96+T}, v{104+T}, s[28:31], s27 offen sc1")
    a(f"""
    s_mov_b64 exec, -1
P1_EPI_DFT2:
    s_lshl_b32 s26, s23, 9
    s_add_u32 s26, s26, {FE_OFF}
    s_mov_b32 s27, {FO_DELTA}
    v_bfe_u32 v88, v{L}, 4, 1
    v_mul_lo_u32 v88, v88, s27
    v_lshrrev_b32 v89, 5, v{L}
    v_lshl_add_u32 v88, v89, 8, v88
    """)
    for T in range(5):
        tau = TAU0 if T == 0 else TAU
        a0, a1, a2, a3 = (acc(b, T) for b in range(4))
        for q in range(4):
            a(f"v_fma_f32 v{a0+q}, v{a1+q}, v{tau}, v{a0+q}\nv_fma_f32 v{a3+q}, v{a2+q}, v{tau}, v{a3+q}")
        for q in range(4):
            a(f"v_add_f32 v{a1+q}, v{a0+q}, v{a3+q}\nv_sub_f32 v{a2+q}, v{a0+q}, v{a3+q}")
        a0 = 120 + 4 * T
        for f in cv(a0, a1) + cv(a0 + 2, a2): a(f)
        a(f"""
        v_lshrrev_b32 v89, 4, v{E0+T}
        v_lshl_add_u32 v89, v89, 14, v88
        v_and_b32 v{E0+T}, 15, v{E0+T}
        v_lshl_add_u32 v{E0+T}, v{E0+T}, 4, v89
        v_permlane16_swap_b32 v{a0}, v{a0+2}
        v_permlane16_swap_b32 v{a0+1}, v{a0+3}
        """)
    a(f"v_mov_b32 v88, {LFB + 56}\nv_mov_b32 v89, 1\ns_mov_b32 s12, {opt('dnu', 1)}")
    ladd(a, 88, 89, 0)
    if opt("dnu", 1): a("s_setprio 3\ns_barrier")
    for T in range(5): a(f"buffer_store_dwordx4 {vr(120+4*T,4)}, v{E0+T}, s[28:31], s26 offen sc1")
    a(f"""
P1_DONE:
    {st(14)}
    s_mov_b32 s34, 1
    s_cmp_eq_u32 s12, 1
    s_cbranch_scc1 ATT
    s_mov_b32 s34, 0
    v_mov_b32 v84, 1
    v_mov_b32 v85, 1
    v_mov_b32 v86, 1
    v_mov_b32 v87, 1
    v_mov_b32 v88, {LFB + 44}
    v_mov_b32 v89, 0
    s_and_b32 s23, s15, -128
    s_mov_b64 exec, 1
    s_waitcnt vmcnt(0)
    ds_add_rtn_u32 v88, v88, v84
    s_waitcnt lgkmcnt(0)
    v_cmp_eq_u32 vcc, 3, v88
    s_cbranch_vccz P1_NS
    buffer_store_dwordx4 v[84:87], v89, s[28:31], s23 offen sc1
P1_NS:
    s_mov_b64 exec, -1
    s_branch ATT
    """)

def p1_extra(a):
    T0 = 40
    a(f"""
P1_EXTRA:
    s_sub_u32 s61, s16, 8
    """)
    if opt("cwarm", 1):
        a(f"""
        s_cmp_lg_u32 s16, 10
        s_cbranch_scc1 P1_NOCW
        s_lshl_b32 s23, s18, 10
        s_cmp_ge_u32 s23, L_CODE_END - {NAME}_kernel - 1023
        s_cbranch_scc1 P1_NOCW
        s_getpc_b64 s[44:45]
L_PC:
        s_sub_u32 s44, s44, L_PC - {NAME}_kernel
        s_subb_u32 s45, s45, 0
        v_lshl_add_u32 v40, v0, 4, s23
        global_load_dwordx4 v[44:47], v40, s[44:45]
P1_NOCW:
        """)
    a(f"""
    v_lshrrev_b32 v37, 4, v0
    v_and_b32 v38, 15, v0
    v_lshlrev_b32 v39, 4, v0
    v_mov_b32 v36, v0
    s_waitcnt lgkmcnt(0)
    {srd(28, WS_P, WS_USED)}
    {srd(32, DBG_P, 256)}
    s_cmp_lg_u32 s61, 0
    s_cbranch_scc1 P1_EX_A
    v_mov_b32 v1, 0
    v_lshlrev_b32 v2, 2, v0
    v_add_u32 v2, {LFB}, v2
    ds_write_b32 v2, v1
    s_waitcnt lgkmcnt(0)
    s_cmp_lt_u32 s2, 248
    s_cbranch_scc1 P1_EX_WAITRDY
    v_mov_b32 v4, 0
    v_mov_b32 v5, 0
    v_mov_b32 v6, 0
    v_mov_b32 v7, 0
    s_lshl_b32 s23, s17, 12
    s_add_u32 s23, s23, {FLG_OFF}
    buffer_store_dwordx4 v[4:7], v39, s[28:31], s23 offen sc1
    buffer_store_dwordx4 v[4:7], v39, s[28:31], s23 offen offset:1024 sc1
    buffer_store_dwordx4 v[4:7], v39, s[28:31], s23 offen offset:2048 sc1
    buffer_store_dwordx4 v[4:7], v39, s[28:31], s23 offen offset:3072 sc1
    s_lshl_b32 s23, s17, 7
    s_add_u32 s23, s23, {FLG_OFF + 32768}
    s_mov_b64 exec, 0xff
    buffer_store_dwordx4 v[4:7], v39, s[28:31], s23 offen sc1
    s_mov_b64 exec, -1
P1_EX_WAITRDY:
P1_EX_A:
    s_lshl_b32 s23, s2, 2
    s_add_u32 s23, s23, s61
    s_mov_b32 s40, 0
P1_TBL:
    s_lshr_b32 s24, s23, 5
    s_and_b32 s25, s23, 30
    s_and_b32 s26, s24, 1
    s_lshr_b32 s27, s24, 1
    s_lshl_b32 s27, s27, 6
    s_add_u32 s27, s27, s26
    s_and_b32 s26, s23, 1
    s_lshl_b32 s26, s26, 5
    s_add_u32 s27, s27, s26
    v_lshl_add_u32 v{T0}, v38, 1, s27
    s_lshl_b32 s25, s25, 4
    v_lshl_add_u32 v{T0+1}, v37, 3, s25
    v_mul_u32_u24 v{T0+1}, v{T0}, v{T0+1}
    v_and_b32 v{T0+1}, 0x7ff, v{T0+1}
    v_cvt_f32_u32 v{T0}, v{T0}
    v_cvt_f32_u32 v{T0+1}, v{T0+1}
    v_mul_f32 v{T0}, 0x3a000000, v{T0}
    v_mul_f32 v0, 0x3a000000, v{T0+1}
    """)
    for u in range(1, 8): a(f"v_add_f32 v{u}, v{u-1}, v{T0}")
    for u in range(1, 8): a(f"v_fract_f32 v{u}, v{u}")
    for u in range(8): a(f"v_cos_f32 v{8+u}, v{u}")
    for u in range(8): a(f"v_sin_f32 v{16+u}, v{u}")
    for j in range(4): a(f"v_cvt_pk_bf16_f32 v{24+j}, v{8+2*j}, v{9+2*j}")
    for j in range(4): a(f"v_cvt_pk_bf16_f32 v{28+j}, v{16+2*j}, v{17+2*j}")
    NB0 = opt("tblbar", 2)
    a(f"""
    s_cmp_lg_u32 s40, 0
    s_cbranch_scc1 P1_TBL_ST
    s_barrier
    {st(1, True)}
    s_cmp_lg_u32 s61, 0
    s_cbranch_scc1 P1_EX_NR
    s_cmp_lt_u32 s2, 248
    s_cbranch_scc1 P1_EX_NR
    v_mov_b32 v32, 1
    v_mov_b32 v33, 0
    s_lshl_b32 s24, s17, 2
    s_waitcnt vmcnt(0)
    s_mov_b64 exec, 1
    buffer_store_dword v32, v33, s[32:35], s24 offen sc1
    s_mov_b64 exec, -1
P1_EX_NR:
    """ + "".join(f"s_barrier\n{st(1 + b_, True)}\n" for b_ in range(1, NB0)) + f"""
    s_mov_b32 s40, 1
P1_TBL_ST:
    s_lshl_b32 s24, s23, 11
    s_add_u32 s24, s24, {TB_OFF}
    buffer_store_dwordx4 v[24:27], v39, s[28:31], s24 offen sc1
    buffer_store_dwordx4 v[28:31], v39, s[28:31], s24 offen offset:1024 sc1
    s_add_u32 s23, s23, 1024
    s_cmp_lt_u32 s23, 1056
    s_cbranch_scc1 P1_TBL
    """)
    nb = NB0
    assert nb <= 6
    a("".join(f"s_barrier\n{st(1 + b_, True)}\n" for b_ in range(nb, 6)))
    u = a.uid()
    a(f"""
    v_and_b32 v1, 7, v36
    v_lshlrev_b32 v1, 2, v1
    v_mov_b32 v2, 1
    s_mov_b32 s60, 0
    s_cmp_lg_u32 s61, 0
    s_cbranch_scc1 P1_EX_C
    buffer_load_dword v2, v1, s[32:35], 0 offen sc1
P1_EX_C:
    s_barrier
    {st(7, True)}
    s_barrier
    {st(8, True)}
L_RDY{u}:
    s_waitcnt vmcnt(0)
    v_cmp_eq_u32 vcc, 0, v2
    s_cbranch_vccz P1_EX_B
    s_sleep 1
    buffer_load_dword v2, v1, s[32:35], 0 offen sc1
    s_add_u32 s60, s60, 1
    s_cmp_lt_u32 s60, 0x40000
    s_cbranch_scc1 L_RDY{u}
P1_EX_B:
    s_waitcnt vmcnt(0)
    s_barrier
    {st(9, True)}
    s_barrier
    {st(10, True)}
    s_mov_b32 s34, 0
    """)

def attention(a):
    O = 0; S = [16, 32]; P = 48; Q1 = 56; Q2 = 60; K2 = 62; K1 = 64; V1 = 68; V2 = [72, 76]; T = 80
    a(f"""
ATT:
    s_cmp_lt_u32 s13, 4
    s_cselect_b32 s32, {opt("o1", 4)}, {opt("y1", 4)}
    s_cselect_b32 s33, {opt("o2", 7)}, {opt("y2", 7)}
    s_movk_i32 s35, 0x106
    s_bitset1_b32 s35, s32
    s_bitset1_b32 s35, s33
    s_mov_b32 s24, 0xfffff
    s_mov_b32 s25, 0xfffff
    s_mul_i32 s27, s13, 1280
    v_mov_b32 v{Q2+1}, 0
    v_mov_b32 v{K2+1}, 0x3f803f80
    v_add_u32 v{T}, s27, v{AK1}
    v_add_u32 v{T+1}, s27, v{AK2}
    v_mov_b32 v{T+2}, 1
    """)
    NQ = opt("nq", 2)
    OX = [84, O]; QX1 = [100, Q1]; QX2 = [104, Q2]; U = 106; TM = 114; XS = 107520
    if NQ == 2:
        a(f"""
        s_xor_b32 s36, s13, 1
        s_mul_i32 s27, s36, 1280
        v_add_u32 v{U}, s27, v{AK1}
        v_add_u32 v{U+1}, s27, v{AK2}
        v_mov_b32 v{U+2}, v{AK1}
        v_mov_b32 v{U+3}, v{AK2}
        v_mov_b32 v{QX2[0]+1}, 0
        s_and_b32 s37, s13, 1
        s_mul_i32 s37, s37, 2560
        v_and_b32 v{U+4}, 0x70, v{VA}
        v_lshrrev_b32 v{U+4}, 2, v{U+4}
        v_add_u32 v{U+4}, {LFB}, v{U+4}
        s_lshl_b32 s23, s13, 12
        s_add_u32 s23, s23, {XS}
        v_add_u32 v{U+5}, s23, v{VA}
        v_xor_b32 v{U+7}, 4, v{PA}
        s_lshl_b32 s23, s36, 12
        s_add_u32 s23, s23, {XS}
        v_add_u32 v{U+6}, s23, v{VA}
        s_lshr_b32 s38, s13, 2
        s_add_u32 s38, s38, 7
        """)
        for r in (AK1, AK2, AV, BK1, BK2, BV): a(f"v_add_u32 v{r}, s37, v{r}")
        for r in range(16): a(f"v_mov_b32 v{OX[0]+r}, 0")
    for r in range(12): a(f"v_mov_b32 v{V1+r}, v{ONES}")
    for r in range(16): a(f"v_mov_b32 v{O+r}, 0")
    for r in range(4): a(f"v_mov_b32 v{P+4+r}, 0\nv_mov_b32 v{P+r}, -1")
    def rk1(d): return f"v_mfma_f32_32x32x8_bf16 {vr(d,16)}, {vr(K2,2)}, {vr(Q2,2)}, 0"
    def rk2(d): return f"v_mfma_f32_32x32x16_bf16 {vr(d,16)}, {vr(K1,4)}, {vr(Q1,4)}, {vr(d,16)}"
    def qk1(d): return f"v_mfma_f32_32x32x16_bf16 {vr(d,16)}, {vr(K1,4)}, {vr(Q1,4)}, 0"
    def qk2(d): return f"v_mfma_f32_32x32x8_bf16 {vr(d,16)}, {vr(K2,2)}, {vr(Q2,2)}, {vr(d,16)}"
    def pv(v, p): return f"v_mfma_f32_32x32x16_bf16 {vr(O,16)}, {vr(v,4)}, {vr(p,4)}, {vr(O,16)}"
    def of(t): return (t - 6 if t in (6, 7) else t) * 2560
    def rdk1(t): return f"ds_read_b128 {vr(K1,4)}, v{BK1 if t in (6, 7) else AK1} offset:{of(t)}"
    def rdk2(t): return f"ds_read_b32 v{K2}, v{BK2 if t in (6, 7) else AK2} offset:{of(t)+1024}"
    def rdv(t, v2):
        b = BV if t in (6, 7) else AV
        return f"s_mov_b64 exec, s[24:25]\nds_read_b128 {vr(V1,4)}, v{b} offset:{of(t)+1280}\nds_read_b128 {vr(v2,4)}, v{b} offset:{of(t)+1920}\ns_mov_b64 exec, -1"
    def maxtree(s, m, first):
        if first:
            a(f"v_max3_f32 v{m}, v{s}, v{s+1}, v{s+2}\nv_max3_f32 v{m+1}, v{s+3}, v{s+4}, v{s+5}")
            for j in range(6, 14, 4): a(f"v_max3_f32 v{m}, v{s+j}, v{s+j+1}, v{m}\nv_max3_f32 v{m+1}, v{s+j+2}, v{s+j+3}, v{m+1}")
            a(f"v_max3_f32 v{m}, v{s+14}, v{s+15}, v{m}\nv_max_f32 v{m}, v{m}, v{m+1}")
        else:
            for j in range(0, 16, 2): a(f"v_max3_f32 v{m}, v{s+j}, v{s+j+1}, v{m}")
    def xhalf(m):
        a(f"v_mov_b32 v{m+1}, v{m}\ns_nop 1\nv_permlane32_swap_b32 v{m}, v{m+1}\ns_nop 0\nv_max_f32 v{m}, v{m}, v{m+1}")
    a(f"""
    s_cmp_lg_u32 s34, 1
    s_cbranch_scc1 ATT_NOSIG
    """)
    if opt("comb", 1):
        a(f"""
        v_mov_b32 v{T+3}, {LFB + 44}
        s_and_b32 s23, s15, -128
        s_mov_b64 exec, 1
        s_waitcnt vmcnt(0)
        ds_add_rtn_u32 v{T+3}, v{T+3}, v{T+2}
        s_waitcnt lgkmcnt(0)
        v_cmp_eq_u32 vcc, 3, v{T+3}
        s_cbranch_vccz ATT_NOSIG
        buffer_store_dwordx4 {vr(P,4)}, v{O}, s[28:31], s23 offen sc1
        """)
    else:
        a(f"s_waitcnt vmcnt(0)\ns_mov_b64 exec, 1\nbuffer_store_dword v{T+2}, v{O}, s[28:31], s15 offen sc1")
    a(f"""
ATT_NOSIG:
    s_mov_b64 exec, -1
    {st(4)}
    s_and_b32 s23, s34, s12
    s_cbranch_scc1 ATT_NOP
    s_barrier
ATT_NOP:
    s_setprio 3
    {st(6)}
    """)
    def e(s, j): return f"v_exp_f32 v{s+j}, v{s+j}"
    def c(s, j): return f"v_cvt_pk_bf16_f32 v{P+j}, v{s+2*j}, v{s+2*j+1}"
    if NQ == 2:
        def xk1(x): return f"v_mfma_f32_32x32x16_bf16 {vr(S[x],16)}, {vr(K1,4)}, {vr(QX1[x],4)}, 0"
        def xk2(x): return f"v_mfma_f32_32x32x8_bf16 {vr(S[x],16)}, {vr(K2,2)}, {vr(QX2[x],2)}, {vr(S[x],16)}"
        def xpv(x, v, p): return f"v_mfma_f32_32x32x16_bf16 {vr(OX[x],16)}, {vr(v,4)}, {vr(p,4)}, {vr(OX[x],16)}"
        def scale(x):
            for j in range(5): a(f"v_lshlrev_b32 v{TM+2*j}, 16, v{QX1[x]+j}\nv_and_b32 v{TM+2*j+1}, 0xffff0000, v{QX1[x]+j}")
            for j in range(10): a(f"v_mul_f32 v{TM+j}, {QSCALE:#x}, v{TM+j}")
            for j in range(5): a(f"v_cvt_pk_bf16_f32 v{QX1[x]+j}, v{TM+2*j}, v{TM+2*j+1}")
        MH = f32bits(-0.5 * (20 ** -0.5) * math.log2(math.e))
        a(f"""
        ds_read_b128 {vr(K1,4)}, v{U+2}
        ds_read_b32 v{K2}, v{U+3} offset:1024
        ds_read_b128 {vr(QX1[0],4)}, v{U} offset:{QLDS}
        ds_read_b32 v{QX2[0]}, v{U+1} offset:{QLDS+1024}
        ds_read_b128 {vr(Q1,4)}, v{T} offset:{QLDS}
        ds_read_b32 v{Q2}, v{T+1} offset:{QLDS+1024}
        {rdv(0, V2[0])}
        s_waitcnt lgkmcnt(4)
        {xk1(0)}
        {xk2(0)}
        s_waitcnt lgkmcnt(2)
        {xk1(1)}
        {xk2(1)}
        {rdk1(0)}
        {rdk2(0)}
        s_mov_b32 s26, 0
        """)
        scale(0)
        maxtree(S[0], T, True); xhalf(T)
        a(f"v_mul_f32 v{T}, {MH:#x}, v{T}\nv_cvt_pk_bf16_f32 v{QX2[0]+1}, v{T}, 0\ns_waitcnt lgkmcnt(0)\n{xk1(0)}\n{xk2(0)}")
        scale(1)
        maxtree(S[1], T, True); xhalf(T)
        a(f"""
        v_mul_f32 v{T}, {MH:#x}, v{T}
        v_cvt_pk_bf16_f32 v{Q2+1}, v{T}, 0
        buffer_store_dwordx4 {vr(P,4)}, v{OA1}, s[28:31], s6 offen sc1
        s_mov_b64 exec, 0xffff
        buffer_store_dwordx4 {vr(P,4)}, v{OA2}, s[28:31], s7 offen sc1
        s_mov_b64 exec, -1
        {st(7)}
ATT_LOOP:
        """)
        for i in range(4):
            for x in (0, 1):
                cur = S[x]; y = 1 - x; t_ = 2 * (i + 1)
                if x == 1: a("s_waitcnt lgkmcnt(0)")
                a(xk1(y))
                if x == 0: a(rdk1(t_))
                if x == 1 and i == 1: a(f"ds_write_b32 v{PA}, v{T+2}")
                for q in range(4): a(e(cur, q))
                a(xpv(y, V2[(i + 1) % 2] if x == 0 else V2[i % 2], P + 4))
                if x == 0: a("s_waitcnt lgkmcnt(1)")
                for q in range(4, 8): a(e(cur, q))
                a(c(cur, 0)); a(c(cur, 1))
                a(xk2(y))
                if x == 0: a(rdk2(t_))
                a(c(cur, 2)); a(c(cur, 3))
                for q in range(8, 12): a(e(cur, q))
                a(xpv(x, V1, P))
                if x == 1: a(rdv(t_, V2[(i + 1) % 2]))
                for q in range(12, 16): a(e(cur, q))
                for q in range(4, 8): a(c(cur, q))
    else:
        a(f"""
        ds_read_b128 {vr(Q1,4)}, v{T} offset:{QLDS}
        ds_read_b32 v{Q2}, v{T+1} offset:{QLDS+1024}
        {rdk1(0)}
        {rdk2(0)}
        {rdv(0, V2[0])}
        s_waitcnt lgkmcnt(2)
        {qk1(S[1])}
        {qk2(S[1])}
        """)
        for j in range(5): a(f"v_lshlrev_b32 v{S[0]+2*j}, 16, v{Q1+j}\nv_and_b32 v{S[0]+2*j+1}, 0xffff0000, v{Q1+j}")
        for j in range(10): a(f"v_mul_f32 v{S[0]+j}, {QSCALE:#x}, v{S[0]+j}")
        for j in range(5): a(f"v_cvt_pk_bf16_f32 v{Q1+j}, v{S[0]+2*j}, v{S[0]+2*j+1}")
        a(f"""
        s_nop 0
        {qk1(S[0])}
        {rdk1(1)}
        s_mov_b32 s26, 0
        """)
        maxtree(S[1], T, True); xhalf(T)
        a(f"""
        v_mul_f32 v{T}, {f32bits(-0.5 * (20 ** -0.5) * math.log2(math.e)):#x}, v{T}
        v_cvt_pk_bf16_f32 v{Q2+1}, v{T}, 0
        s_nop 1
        {qk2(S[0])}
        {rdk2(1)}
        buffer_store_dwordx4 {vr(P,4)}, v{OA1}, s[28:31], s6 offen sc1
        s_mov_b64 exec, 0xffff
        buffer_store_dwordx4 {vr(P,4)}, v{OA2}, s[28:31], s7 offen sc1
        s_mov_b64 exec, -1
        s_waitcnt lgkmcnt(0)
        {st(7)}
        s_nop 3
ATT_LOOP:
        """)
        for j in range(8):
            cur, nxt = S[j % 2], S[(j + 1) % 2]
            a("s_waitcnt lgkmcnt(2)")
            if opt('rev', 0): a(rk1(nxt)); a(rdk2(j + 2))
            else: a(qk1(nxt)); a(rdk1(j + 2))
            for q in range(4): a(e(cur, q))
            a(pv(V2[(j + 1) % 2], P + 4))
            a("s_waitcnt lgkmcnt(1)")
            if j == 2: a(f"ds_write_b32 v{PA}, v{T+2}")
            for q in range(4, 8): a(e(cur, q))
            a(c(cur, 0)); a(c(cur, 1))
            if opt('rev', 0): a(rk2(nxt)); a(rdk1(j + 2))
            else: a(qk2(nxt)); a(rdk2(j + 2))
            a(c(cur, 2)); a(c(cur, 3))
            for q in range(8, 12): a(e(cur, q))
            a(pv(V1, P)); a(rdv(j + 1, V2[(j + 1) % 2]))
            for q in range(12, 16): a(e(cur, q))
            for q in range(4, 8): a(c(cur, q))
    a(f"""
    s_add_u32 s26, s26, 1
    s_movk_i32 s27, 0x5000
    s_cmp_eq_u32 s26, 7
    s_cselect_b32 s27, {(0x5000 - 62 * 2560) & 0xffffffff}, s27
    v_add_u32 v{AK1}, 0x5000, v{AK1}
    v_add_u32 v{AK2}, 0x5000, v{AK2}
    v_add_u32 v{AV}, 0x5000, v{AV}
    v_add_u32 v{BK1}, s27, v{BK1}
    v_add_u32 v{BK2}, s27, v{BK2}
    v_add_u32 v{BV}, s27, v{BV}
    v_add_u32 v{T+2}, 1, v{T+2}
    s_bitcmp1_b32 s35, s26
    s_cbranch_scc0 ATT_LOOP
    s_cmp_gt_u32 s26, 2
    s_cbranch_scc1 ATT_EV
    v_add_u32 v{FA}, 8, v{FA}
    s_waitcnt vmcnt(0)
ATT_WAIT:
    ds_read_b32 v{T}, v{FA}
    s_waitcnt lgkmcnt(0)
    v_readfirstlane_b32 s23, v{T}
    s_cmp_ge_u32 s23, 4
    s_cbranch_scc1 ATT_LOOP
    s_sleep 1
    s_branch ATT_WAIT
ATT_EV:
    s_setprio 2
    s_cmp_eq_u32 s26, s32
    s_cbranch_scc1 ATT_LOOP
    s_setprio 1
    s_cmp_lt_u32 s26, 8
    s_cbranch_scc1 ATT_LOOP
    s_setprio 3
    {pv(V2[1], P+4)}
    {st(8)}
    """)
    if NQ == 2:
        a(f"""
ATT_X1:
        ds_read_b32 v{U}, v{U+4}
        s_mov_b32 s27, 0x3e800000
        s_mov_b32 s23, 0x71800000
        s_waitcnt lgkmcnt(0)
        v_cmp_gt_u32 vcc, s38, v{U}
        s_cbranch_vccnz ATT_X1
        """)
        for j in range(3): a(f"ds_write_b128 v{U+5}, {vr(OX[0]+4*j,4)} offset:{1024*j}")
        a(f"ds_write_b64 v{U+5}, {vr(OX[0]+12,2)} offset:3072\nds_write_b32 v{PA}, v{T+2} offset:96\nATT_X2:\nds_read_b32 v{U}, v{U+7} offset:96")
        for j in range(3): a(f"ds_read_b128 {vr(S[0]+4*j,4)}, v{U+6} offset:{1024*j}")
        a(f"ds_read_b64 {vr(S[0]+12,2)}, v{U+6} offset:3072\ns_waitcnt lgkmcnt(0)\nv_cmp_eq_u32 vcc, 0, v{U}\ns_cbranch_vccz ATT_X3\ns_sleep 1\ns_branch ATT_X2\nATT_X3:")
        for r in range(0, 14, 2): a(f"v_pk_add_f32 {vr(O+r,2)}, {vr(O+r,2)}, {vr(S[0]+r,2)}")
    else:
        a("s_mov_b32 s27, 0x3e800000\ns_mov_b32 s23, 0x71800000\ns_nop 9")
    a(f"v_rcp_f32 v{T+2}, v{O+12}\nv_add_f32 v{T}, |v{O}|, |v{O+1}|\nv_add_f32 v{T+1}, |v{O+2}|, |v{O+3}|")
    for j in range(4, 12, 2): a(f"v_add_f32 v{T}, |v{O+j}|, v{T}\nv_add_f32 v{T+1}, |v{O+j+1}|, v{T+1}")
    a(f"""
    v_add_f32 v{T}, v{T}, v{O+12}
    v_cmp_le_f32 s[42:43], s27, v{O+12}
    v_add_f32 v{T}, v{T}, v{T+1}
    v_cmp_gt_f32 vcc, s23, v{T}
    s_and_b64 vcc, vcc, s[42:43]
    s_cmp_eq_u64 vcc, -1
    s_cbranch_scc0 ATT_FALLBACK
ATT_FINISH:
    """)
    for j in range(8): a(f"v_mul_f32 v{O+j}, v{O+j}, v{T+2}")
    for j in range(4): a(f"v_cvt_pk_bf16_f32 v{P+j}, v{O+2*j}, v{O+2*j+1}")
    for j in range(4): a(f"v_min_u32 v{P+j}, -2, v{P+j}")
    a(f"buffer_store_dwordx4 {vr(P,4)}, v{OA1}, s[28:31], s6 offen sc1")
    for j in range(8, 12): a(f"v_mul_f32 v{O+j}, v{O+j}, v{T+2}")
    for j in range(4, 6): a(f"v_cvt_pk_bf16_f32 v{P+j}, v{O+2*j}, v{O+2*j+1}")
    for j in range(4, 6): a(f"v_min_u32 v{P+j}, -2, v{P+j}")
    a(f"""
    s_nop 1
    v_permlane16_swap_b32 v{P+4}, v{P+6}
    v_permlane16_swap_b32 v{P+5}, v{P+7}
    s_mov_b64 exec, 0xffff
    buffer_store_dwordx4 {vr(P+4,4)}, v{OA2}, s[28:31], s7 offen sc1
    {st(9)}
    s_cmp_ge_u32 s13, 4
    s_cbranch_scc1 {"L_DONE" if STAMP else "L_END"}
    s_mov_b64 exec, -1
    s_xor_b32 s41, s13, {opt('gx', 2)}
    s_mov_b32 s47, 1
    s_branch P3_GO
    """)
    def gk(): return f"buffer_load_dwordx4 {vr(K1,4)}, v{AK1}, s[28:31], s23 offen sc1\nbuffer_load_dword v{K2}, v{AK2}, s[28:31], s23 offen offset:1024 sc1"
    a(f"""
ATT_FALLBACK:
    s_waitcnt lgkmcnt(0)
    v_mov_b32 v{Q2+1}, 0
    v_mov_b32 v{T}, 0xff800000
    {f's_add_u32 s23, s37, {HS}' if NQ == 2 else f's_mov_b32 s23, {HS}'}
    v_subrev_u32 v{AK1}, s23, v{AK1}
    v_subrev_u32 v{AK2}, s23, v{AK2}
    v_subrev_u32 v{AV}, s23, v{AV}
    s_add_u32 s23, s14, {KV_OFF}
    s_mov_b32 s26, 0
ATT_FB1:
    {gk()}
    s_add_u32 s23, s23, 2560
    s_waitcnt vmcnt(0)
    {qk1(S[0])}
    {qk2(S[0])}
    s_nop 15
    """)
    maxtree(S[0], T, False)
    a("s_add_u32 s26, s26, 1\ns_cmp_lt_u32 s26, 64\ns_cbranch_scc1 ATT_FB1")
    xhalf(T)
    a(f"s_add_u32 s23, s14, {KV_OFF}\ns_mov_b32 s26, 0")
    for r in range(16): a(f"v_mov_b32 v{O+r}, 0")
    a(f"""
ATT_FB2:
    {gk()}
    s_mov_b64 exec, s[24:25]
    buffer_load_dwordx4 {vr(V1,4)}, v{AV}, s[28:31], s23 offen offset:1280 sc1
    buffer_load_dwordx4 {vr(V2[0],4)}, v{AV}, s[28:31], s23 offen offset:1920 sc1
    s_mov_b64 exec, -1
    s_add_u32 s23, s23, 2560
    s_waitcnt vmcnt(0)
    {qk1(S[0])}
    {qk2(S[0])}
    s_nop 15
    """)
    for q in range(16): a(f"v_sub_f32 v{S[0]+q}, v{S[0]+q}, v{T}")
    for q in range(16): a(e(S[0], q))
    a("s_nop 0")
    for q in range(8): a(c(S[0], q))
    a(f"""
    s_nop 1
    {pv(V1, P)}
    {pv(V2[0], P+4)}
    s_add_u32 s26, s26, 1
    s_cmp_lt_u32 s26, 64
    s_cbranch_scc1 ATT_FB2
    s_nop 15
    v_rcp_f32 v{T+2}, v{O+12}
    s_nop 0
    s_branch ATT_FINISH
    """)

def lwait(a, vaddr, vdat, mask, target, slp=8):
    u = a.uid()
    a(f"""
    s_mov_b64 exec, {mask}
    s_branch L_LWE{u}
L_LW{u}:
    s_sleep {slp}
L_LWE{u}:
    ds_read_b32 v{vdat}, v{vaddr}
    s_waitcnt lgkmcnt(0)
    v_cmp_gt_u32 vcc, {target}, v{vdat}
    s_cbranch_vccnz L_LW{u}
    s_mov_b64 exec, -1
    """)
def ladd(a, vaddr, vone, off):
    a(f"s_mov_b64 exec, 1\nds_add_u32 v{vaddr}, v{vone} offset:{off}\ns_mov_b64 exec, -1")

def helpers(a):
    WA, VG, VZ, SH, HPA, HONE, YFA, FZ, SG, XA5, LF = 112, 117, 118, 119, 120, 121, 122, 123, 124, 125, 126
    ZL = 40; G = 167; VY = 162; T = 132; LT = 127
    a(f"""
HELPER:
    s_mov_b32 s61, s22
    {st(2)}
    {srd(28, WS_P, WS_USED)}
    s_setprio 0
    s_lshr_b32 s20, s18, 2
    s_mul_i32 s26, s20, 160
    s_movk_i32 s23, {1280 - 160}
    """)
    for i in range(5):
        a(f"""
        v_add_u32 v{T}, {64*i}, v0
        v_mul_u32_u24 v{T+1}, 6554, v{T}
        v_lshrrev_b32 v{T+1}, 16, v{T+1}
        v_lshlrev_b32 v{T}, 4, v{T}
        v_mad_u32_u24 v{WA+i}, v{T+1}, s23, v{T}
        """)
    a(f"""
    s_lshl_b32 s21, s17, 3
    s_and_b32 s22, s18, 3
    s_add_u32 s21, s21, s22
    s_lshr_b32 s22, s16, 1
    s_lshl_b32 s22, s22, 2
    s_add_u32 s21, s21, s22
    s_lshl_b32 s21, s21, 1
    s_and_b32 s22, s16, 1
    s_add_u32 s21, s21, s22
    s_lshr_b32 s22, s21, 2
    s_lshl_b32 s22, s22, 1
    s_and_b32 s24, s21, 1
    s_add_u32 s22, s22, s24
    s_lshl_b32 s22, s22, 3
    v_and_b32 v{T}, 7, v0
    v_add_u32 v{T}, s22, v{T}
    s_bitcmp1_b32 s21, 1
    s_cselect_b32 s22, 0x400, 0
    s_cselect_b32 s24, -1, 1
    v_mul_lo_u32 v{T+1}, v{T}, s24
    s_sub_u32 s24, 0x800, s22
    v_sub_u32 v{T+2}, s24, v{T+1}
    v_add_u32 v{T+1}, s22, v{T+1}
    v_and_b32 v{T+3}, 8, v0
    v_cmp_ne_u32 vcc, 0, v{T+3}
    v_cmp_eq_u32 s[42:43], 0, v{T}
    v_lshlrev_b32 v{T+3}, 6, v{T+3}
    v_add_u32 v{T+3}, s22, v{T+3}
    v_cndmask_b32 v{T}, v{T+1}, v{T+2}, vcc
    v_lshrrev_b32 v{T+1}, 4, v0
    v_cndmask_b32 v{T}, v{T}, v{T+3}, s[42:43]
    v_mul_u32_u24 v{VY}, 1280, v{T}
    v_mul_u32_u24 v{T+2}, 40, v{T+1}
    v_add3_u32 v{VY}, v{VY}, v{T+2}, s26
    v_lshlrev_b32 v{VG}, 2, v{T}
    v_sub_u32 v{T+3}, 0x800, v{T}
    v_cmp_lt_u32 vcc, 0x400, v{T}
    v_min_u32 v{T}, v{T}, v{T+3}
    v_and_b32 v{T+3}, 1, v{T}
    v_mul_u32_u24 v{VZ}, {ZP}, v{T+3}
    v_lshrrev_b32 v{T+3}, 1, v{T}
    v_lshl_add_u32 v{VZ}, v{T+3}, 4, v{VZ}
    v_mov_b32 v{T+3}, 0x02020202
    v_cndmask_b32 v{SH}, 0, v{T+3}, vcc
    s_cmp_ge_u32 s20, 4
    s_mov_b32 s24, 0x05040100
    s_cselect_b32 s24, 0x07060302, s24
    s_cselect_b32 s40, -1, 1
    s_cselect_b32 s41, 155, 0
    v_xor_b32 v{SH}, s24, v{SH}
    s_mul_i32 s24, s20, 20
    v_mul_u32_u24 v{T+3}, 5, v{T+1}
    v_add_u32 v{T+3}, s24, v{T+3}
    v_mul_lo_u32 v{T+3}, v{T+3}, s40
    v_add_u32 v{T+3}, s41, v{T+3}
    v_mul_u32_u24 v{T+3}, {2*ZP}, v{T+3}
    v_add_u32 v{VZ}, v{VZ}, v{T+3}
    {p3_addr(0)}
    v_lshlrev_b32 v{HPA}, 2, v0
    v_add_u32 v{HPA}, {LFB}, v{HPA}
    v_mov_b32 v{HONE}, 1
    s_lshl_b32 s23, s2, 2
    s_add_u32 s23, s23, {FLG_OFF + 32768}
    v_mov_b32 v{YFA}, s23
    v_lshrrev_b32 v{FZ}, 4, v0
    v_mul_u32_u24 v{FZ}, {2*ZP}, v{FZ}
    v_and_b32 v{T}, 15, v0
    v_lshl_add_u32 v{FZ}, v{T}, 4, v{FZ}
    v_lshlrev_b32 v{SG}, 31, v0
    v_and_b32 v{XA5}, 48, v0
    v_lshlrev_b32 v{LF}, 7, v0
    v_bfe_u32 v{LT}, v0, 1, 2
    v_lshlrev_b32 v{LT}, 13, v{LT}
    v_and_b32 v{T}, 1, v0
    v_lshl_add_u32 v{LT}, v{T}, 7, v{LT}
    s_setprio 3
    s_lshr_b32 s19, s18, 3
    s_lshl_b32 s23, s17, 2
    s_add_u32 s19, s19, s23
    s_and_b32 s62, s18, 7
    s_mul_i32 s21, s19, {HG}
    v_lshlrev_b32 v1, 4, v0
    {st(3)}
    s_lshr_b32 s23, s19, 3
    s_lshl_b32 s23, s23, 13
    s_add_u32 s23, s23, {FLG_OFF}
    v_lshlrev_b32 v2, 7, v0
    v_add_u32 v2, s23, v2
    s_add_u32 s24, s21, {KV_OFF}
    s_lshl_b32 s40, 0x10000, s16
    s_lshl_b32 s41, 1, s16
    s_mul_i32 s22, s16, 10240
    s_add_u32 s26, s24, s22
    s_cmp_lg_u32 s16, 3
    s_cbranch_scc1 H_JA
    s_lshl_b32 s25, s62, 1
    s_lshl_b32 s40, 3, s25
    s_mov_b32 s41, 0
    s_mov_b32 s22, {QLDS}
    s_mul_i32 s26, s19, {HQ}
    s_mul_i32 s25, s62, 10240
    s_add_u32 s26, s26, s25
    s_add_u32 s26, s26, {Q_OFF}
H_JA:
    """)
    def job():
        r = f"s_add_u32 s25, s22, 5120\ns_cmp_ge_u32 s25, {LFB}\ns_cselect_b32 s25, 0, s25\n"
        for n in range(10):
            if n in (0, 3): r += f"s_add_u32 m0, s22, {1024*n}\ns_add_u32 s27, s26, {1024*n}\n"; o = 0
            if n in (5, 8): r += f"s_add_u32 m0, s25, {1024*(n-5)}\ns_add_u32 s27, s26, {1024*n}\n"; o = 0
            r += f"buffer_load_dwordx4 v1, s[28:31], s27 offen offset:{o} sc1 lds\n"; o += 1024
        return r
    if opt("latep", 1):
        a(f"s_mul_i32 s23, s12, 12\ns_cmp_eq_u32 s61, 3\ns_cselect_b32 s23, 12, s23\ns_add_u32 s23, s23, {LFB + 44}\nv_mov_b32 v3, s23")
        lwait(a, 3, 4, 1, 4, 2)
        if opt("lps", 0): a(f"s_sleep {opt('lps', 0)}")
    poll4(a, 2, 4, "s[40:41]")
    a(st(11)); a(job())
    a(f"""
    s_lshl_b32 s40, 0x80000, s16
    s_lshl_b32 s41, 8, s16
    s_add_u32 s22, s16, 3
    s_mul_i32 s22, s22, 10240
    s_add_u32 s26, s24, s22
    s_waitcnt vmcnt(0)
    {st(12)}
    s_barrier
    s_cmp_eq_u32 s16, 3
    s_cbranch_scc1 H_JB
    """)
    poll4(a, 2, 4, "s[40:41]")
    a(job())
    a(f"""
H_JB:
    s_lshl_b32 s41, 0x4440, s16
    s_and_b32 s41, s41, 0xffff
    s_lshl_b32 s40, s41, 16
    s_add_u32 s22, s16, 6
    s_mul_i32 s22, s22, 10240
    s_add_u32 s26, s24, s22
    s_waitcnt vmcnt(0)
    """)
    ladd(a, HPA, HONE, 64)
    lwait(a, HPA, 4, 0xff, 1)
    poll4(a, 2, 4, "s[40:41]", slp=8)
    a(f"{st(13)}\nH_JC:"); a(job())
    a(f"""
    s_add_u32 s22, s22, 40960
    s_add_u32 s26, s26, 40960
    s_cmp_lt_u32 s22, {HS}
    s_cbranch_scc1 H_JC
    s_waitcnt vmcnt(0)
    {st(4)}
    """)
    ladd(a, HPA, HONE, 72)
    a(f"""
    s_cmp_lt_u32 s16, 3
    s_cbranch_scc1 H_FNET
    """)
    a(f"""
    {srd(32, X_P, 2048*1280)}
    {srd(36, GATE_P, 1280)}
    v_lshrrev_b32 v2, 3, v0
    v_and_b32 v3, 7, v0
    v_lshlrev_b32 v3, 4, v3
    s_movk_i32 s22, 1280
    v_mad_u32_u24 v4, v2, s22, v3
    s_mul_i32 s23, s2, {8*1280}
    """)
    for j in range(10):
        a(f"buffer_load_dwordx4 {vr(24+8*j,4)}, v4, s[32:35], s23 offen offset:{128*j}")
        a(f"buffer_load_dwordx4 {vr(28+8*j,4)}, v3, s[36:39], 0 offen offset:{128*j}")
    a("v_mov_b32 v5, 0\nv_mov_b32 v6, 0\ns_waitcnt vmcnt(0)")
    for j in range(10):
        for q in range(4):
            a(f"v_dot2c_f32_bf16 v{5 + (q & 1)}, v{24+8*j+q}, v{28+8*j+q}")
    a(f"""
    s_nop 2
    v_add_f32 v5, v5, v6
    s_nop 1
    v_add_f32_dpp v5, v5, v5 quad_perm:[1,0,3,2] row_mask:0xf bank_mask:0xf
    s_nop 1
    v_add_f32_dpp v5, v5, v5 quad_perm:[2,3,0,1] row_mask:0xf bank_mask:0xf
    s_nop 1
    v_add_f32_dpp v5, v5, v5 row_half_mirror row_mask:0xf bank_mask:0xf
    v_mul_f32 v5, {f32bits(-math.log2(math.e)):#x}, v5
    v_exp_f32 v5, v5
    v_lshlrev_b32 v2, 2, v2
    v_add_f32 v5, 1.0, v5
    v_rcp_f32 v5, v5
    s_lshl_b32 s23, s2, 5
    s_add_u32 s23, s23, {G_OFF}
    buffer_store_dword v5, v2, s[28:31], s23 offen sc1
    s_branch H_MID
    """)
    C, SN, FB = 0, 8, 16
    a(f"""
H_FNET:
    {'s_branch H_MID' if opt('nofnet', 0) == 1 else ''}
    s_lshl_b32 s22, s16, 5
    s_add_u32 s22, s22, s18
    s_cmp_lt_u32 s22, 84
    s_cbranch_scc1 H_FN_A
    s_sub_u32 s24, s22, 84
    s_lshl_b32 s24, s24, 3
    s_add_u32 s24, s24, s17
    s_cmp_ge_u32 s24, 21
    s_cbranch_scc1 H_MID
    s_mov_b32 s23, 32
    s_branch H_FN_B
H_FN_A:
    s_mul_i32 s23, s22, 3121
    s_lshr_b32 s23, s23, 16
    s_mul_i32 s24, s23, 21
    s_sub_u32 s24, s22, s24
    s_lshl_b32 s23, s23, 3
    s_add_u32 s23, s23, s17
H_FN_B:
    s_and_b32 s25, s23, 1
    s_add_u32 s26, s24, 20
    s_cmp_eq_u32 s24, 20
    s_cselect_b32 s26, 20, s26
    s_mul_i32 s32, s24, 26
    s_lshr_b32 s32, s32, 8
    s_lshl_b32 s32, s32, 13
    s_add_u32 s32, s32, {48 * 128}
    s_mul_i32 s33, s26, 26
    s_lshr_b32 s33, s33, 8
    s_lshl_b32 s33, s33, 13
    s_add_u32 s33, s33, {32 * 128}
    s_and_b32 s34, s23, 31
    s_lshl_b32 s34, s34, 8
    s_mov_b64 exec, 0xffff
    v_add_u32 v2, s32, v{LF}
    s_mov_b32 exec_lo, 0xffff0000
    v_add_u32 v2, s33, v{LF}
    s_mov_b32 exec_lo, 0
    s_mov_b32 exec_hi, 0xff
    v_add_u32 v2, s34, v{LT}
    s_mov_b32 s40, -1
    s_movk_i32 s41, 0xff
    s_mov_b32 s27, {FLG_OFF}
    """)
    poll4(a, 2, 4, "s[40:41]", "s27", slp=8)
    a(st(14))
    a(f"""
    s_lshl_b32 s32, s23, 16
    s_add_u32 s32, s32, {TB_OFF}
    s_mul_i32 s27, s25, {FO_DELTA}
    s_add_u32 s27, s27, {FE_OFF}
    s_lshl_b32 s33, s24, 14
    s_add_u32 s33, s33, s27
    s_lshl_b32 s34, s26, 14
    s_add_u32 s34, s34, s27
    s_cmp_eq_u32 s25, 0
    s_cselect_b32 s35, s24, s26
    s_lshl_b32 s35, s35, 6
    s_add_u32 s35, s35, {X512_OFF}
    buffer_load_dwordx4 v[128:131], v{XA5}, s[28:31], s35 offen sc1
    """)
    def fl(j):
        r = FB + 24 * j
        s_ = f"buffer_load_dwordx4 {vr(r,4)}, v163, s[28:31], s33 offen offset:{1024*j} sc1\n"
        s_ += f"buffer_load_dwordx4 {vr(r+4,4)}, v163, s[28:31], s34 offen offset:{1024*j} sc1\n"
        for k in range(4): s_ += f"buffer_load_dwordx4 {vr(r+8+4*k,4)}, v163, s[28:31], s32 offen offset:{1024*k} sc1\n"
        s_ += "s_add_u32 s32, s32, 4096\n"
        if j == 3: s_ += "s_add_u32 s33, s33, 4096\ns_add_u32 s34, s34, 4096\n"
        return s_
    def fm(j):
        r = FB + 24 * j
        s_ = ""
        if opt("nofnet", 0) == 2: return s_
        for sub in range(2):
            s_ += f"v_mfma_f32_16x16x32_bf16 {vr(C+4*sub,4)}, {vr(r,4)}, {vr(r+8+8*sub,4)}, {vr(C+4*sub,4)}\n"
            s_ += f"v_mfma_f32_16x16x32_bf16 {vr(SN+4*sub,4)}, {vr(r+4,4)}, {vr(r+12+8*sub,4)}, {vr(SN+4*sub,4)}\n"
        return s_
    for j in range(4): a(fl(j))
    a(f"""
    s_cmp_eq_u32 s25, 0
    s_cselect_b32 s36, 1.0, 0
    s_cselect_b32 s37, 0, 1.0
    v_or_b32 v161, s37, v{SG}
    v_or_b32 v160, s36, v{SG}
    s_waitcnt vmcnt(24)
    """)
    for r in range(8): a(f"v_mul_f32 v{C+r}, v160, v{128 + r % 4}\nv_mul_f32 v{SN+r}, v161, v{128 + r % 4}")
    a("s_mov_b32 s38, 0\nH_FN_LOOP:")
    for j in range(4):
        a("s_waitcnt vmcnt(18)"); a(fm(j)); a(fl(j))
    a("s_add_u32 s38, s38, 1\ns_cmp_lt_u32 s38, 3\ns_cbranch_scc1 H_FN_LOOP")
    for j in range(4):
        a(f"s_waitcnt vmcnt({18-6*j})"); a(fm(j))
    a(f"""
    s_cmp_eq_u32 s26, 20
    s_cselect_b32 s44, 0xffff, 0
    s_mov_b32 s45, 0
    s_mul_i32 s26, s24, {8*ZP}
    s_mul_i32 s27, s25, {ZP}
    s_add_u32 s26, s26, s27
    s_lshr_b32 s27, s23, 1
    s_lshl_b32 s27, s27, 9
    s_add_u32 s26, s26, s27
    s_add_u32 s26, s26, {Y_OFF}
    v_cndmask_b32 v{SN}, v{SN}, 0, s[44:45]
    v_cndmask_b32 v{SN+4}, v{SN+4}, 0, s[44:45]
    """)
    for r in range(8):
        a(f"v_add_f32 v{16+r}, v{C+r}, v{SN+r}\nv_sub_f32 v{C+r}, v{C+r}, v{SN+r}")
    for r in range(8): a(f"v_cvt_pk_bf16_f32 v{16+r}, v{16+r}, v{C+r}")
    a(f"buffer_store_dwordx4 v[16:19], v{FZ}, s[28:31], s26 offen sc1\nbuffer_store_dwordx4 v[20:23], v{FZ}, s[28:31], s26 offen offset:256 sc1")
    a(f"""
H_MID:
    s_lshl_b32 s19, s17, 2
    s_and_b32 s20, s18, 3
    s_add_u32 s19, s19, s20
    s_lshr_b32 s20, s18, 2
    {srd(32, WO_P, 640*1280)}
    {srd(36, OUT_P, 2621440)}
    s_mul_i32 s26, s20, 160
    s_mul_i32 s27, s16, {160*1280}
    s_add_u32 s27, s27, s26
    s_movk_i32 s23, {1280 - 160}
    """)
    a(f"""
    s_add_u32 s25, s16, 1
    s_and_b32 s25, s25, 3
    s_mul_i32 s22, s25, 25600
    s_add_u32 s22, s22, {WOL}
    s_add_u32 s25, s25, 3
    s_waitcnt vmcnt(0)
    {st(5)}
    """)
    lwait(a, HPA, T + 1, 0xff, 2)
    a(f"""s_mov_b64 exec, 1
    ds_add_rtn_u32 v{T+1}, v{HPA}, v{HONE} offset:48
    s_waitcnt lgkmcnt(0)
    v_cmp_eq_u32 vcc, 3, v{T+1}
    s_cbranch_vccz H_NOY
    buffer_store_dword v{HONE}, v{YFA}, s[28:31], 0 offen sc1
H_NOY:
    s_mov_b64 exec, -1""")
    lwait(a, HPA, T + 1, 0xff, "s25")
    a(f"{st(6)}\ns_mov_b32 s25, 0\nH_WO:")
    for i in range(5):
        a(f"s_add_u32 m0, s22, {1024*i}\ns_nop 0\nbuffer_load_dwordx4 v{WA+i}, s[32:35], s27 offen lds")
    a(f"""
    s_add_u32 s22, s22, 5120
    s_add_u32 s27, s27, {32*1280}
    s_add_u32 s25, s25, 1
    s_cmp_lt_u32 s25, 5
    s_cbranch_scc1 H_WO
    s_cmp_lg_u32 s16, 3
    s_cbranch_scc1 H_YW
    """)
    lwait(a, HPA, T + 1, 0xff, opt("ypr", 5), 16)
    a(f"s_mov_b32 s27, {FLG_OFF + 32768}")
    poll4(a, VA, 4, "-1", "s27", slp=16)
    ladd(a, HPA, HONE, 40)
    a(f"H_YW:\nv_add_u32 v{T}, 40, v{HPA}")
    lwait(a, T, T + 1, 1, 1, 16)
    a("s_waitcnt vmcnt(0)")
    a(f"v_mov_b32 v{T}, 2")
    ladd(a, HPA, T, 32)
    a(f"{st(7)}\ns_mov_b32 s26, {Y_OFF}\ns_mov_b32 s27, {G_OFF}\nbuffer_load_dword v{G}, v{VG}, s[28:31], s27 offen sc1")
    for j in range(6):
        a(f"buffer_load_dwordx4 {vr(ZL+4*j,4)}, v{VZ}, s[28:31], s26 offen sc1\ns_add_u32 s26, s26, {2*ZP}")
    BF, OFR, ACC, YG = 0, 100, 120, 140
    VY2, G2 = 162, 167
    a(f"""
    s_waitcnt vmcnt(0)
    s_cmp_ge_u32 s20, 4
    s_cbranch_scc1 H_DESC
    """)
    for k in range(10): a(f"v_perm_b32 v{YG+10+k}, v{ZL+2*k+1}, v{ZL+2*k}, v{SH}")
    a("s_branch H_UNP\nH_DESC:")
    for k in range(10): a(f"v_perm_b32 v{YG+10+k}, v{ZL+19-2*k}, v{ZL+20-2*k}, v{SH}")
    a("H_UNP:")
    lwait(a, HPA, 8, 0xf, 8)
    a(f"""
    {st(8)}
    s_mov_b32 s41, s16
    s_mov_b32 s47, 0
P3_GO:
    s_setprio {opt('p3o', 0)}
    s_lshl_b32 s22, s17, 3
    s_and_b32 s23, s18, 3
    s_add_u32 s22, s22, s23
    s_lshl_b32 s22, s22, 1
    s_add_u32 s22, s22, s47
    s_mul_i32 s22, s22, 20480
    s_add_u32 s22, s22, {OF_OFF}
    s_lshl_b32 s44, s41, 12
    s_add_u32 s44, s44, s22
    s_lshl_b32 s45, s41, 10
    s_add_u32 s45, s45, s22
    s_add_u32 s45, s45, 16384
    s_lshl_b32 s46, s47, 2
    s_add_u32 s40, s46, {LFB + 80}
    s_add_u32 s46, s46, s41
    s_mul_i32 s46, s46, 5120
    s_add_u32 s46, s46, {WOL}
    s_mov_b32 s26, 0
    s_mov_b32 s42, 0
    v_mov_b32 v{CM}, {LFB + 32}
    """)
    lwait(a, CM, CT, 1, 8)
    a("P3_TRY:")
    for k in range(4):
        a(f"buffer_load_dwordx4 {vr(OFR+4*k,4)}, v{VA}, s[28:31], s44 offen offset:{1024*k} sc1")
    a(f"buffer_load_dwordx2 {vr(OFR+16,2)}, v{VT}, s[28:31], s45 offen sc1\nbuffer_load_dwordx2 {vr(OFR+18,2)}, v{VT}, s[28:31], s45 offen offset:128 sc1")
    a(f"""
    s_cmp_lg_u32 s26, 0
    s_cbranch_scc1 P3_CHK
    s_add_u32 s23, s41, 1
    s_and_b32 s23, s23, 3
    s_mul_i32 s23, s23, 25600
    s_add_u32 s23, s23, {WOL}
    v_add_u32 v{CM}, s23, v{BMM}
    v_add_u32 v{CT}, s23, v{BMT}
    """)
    for n in range(25):
        k, t = divmod(n, 5); d = BF + 4 * n
        bb, o, dj = (CM, k * 6400 + t * 8, 1280) if k < 4 else (CT, t * 8, 3200)
        a(f"ds_read_b64_tr_b16 {vr(d,2)}, v{bb} offset:{o}\nds_read_b64_tr_b16 {vr(d+2,2)}, v{bb} offset:{o+dj}")
    a(f"v_mov_b32 v{BMM}, {LFB + 36}\nv_mov_b32 v{BMT}, 1\ns_waitcnt lgkmcnt(0)")
    ladd(a, BMM, BMT, 0)
    b = OFR
    def mfs(k): return "\n".join(f"v_mfma_f32_16x16x32_bf16 {vr(ACC+4*t,4)}, {vr(BF+4*(5*k+t),4)}, {vr(OFR+4*k,4)}, {vr(ACC+4*t,4) if k else 0}" for t in range(5))
    if opt("spec", 1):
        a("P3_CHK:\ns_add_u32 s26, s26, 1\ns_mov_b32 s43, -1")
        for k in range(5):
            r = b + 4 * k
            a(f"""P3_C{k}:
            s_waitcnt vmcnt({max(0, 5 - k) if k < 4 else 0})
            v_max3_u32 v{CM}, v{r}, v{r+1}, v{r+2}
            v_max3_u32 v{CM}, v{r+3}, v{CM}, 1
            v_cmp_eq_u32 vcc, s43, v{CM}
            s_cbranch_vccnz P3_B{k}
            {mfs(k)}""")
        a(f"{'' if opt('fst', 0) else st(11)}\ns_branch P3_OK")
        for k in range(5):
            a(f"P3_B{k}:\ns_sleep {opt('p3s', 4)}")
            for kk in range(k, 4):
                a(f"buffer_load_dwordx4 {vr(OFR+4*kk,4)}, v{VA}, s[28:31], s44 offen offset:{1024*kk} sc1")
            a(f"buffer_load_dwordx2 {vr(OFR+16,2)}, v{VT}, s[28:31], s45 offen sc1\nbuffer_load_dwordx2 {vr(OFR+18,2)}, v{VT}, s[28:31], s45 offen offset:128 sc1")
            a(f"s_add_u32 s26, s26, 1\ns_cmp_lt_u32 s26, 0x40000\ns_cselect_b32 s43, -1, 0\ns_branch P3_C{k}")
        a("P3_OK:")
    else:
        a(f"P3_CHK:\ns_add_u32 s26, s26, 1\ns_waitcnt vmcnt(4)\nv_max3_u32 v{CM}, v{b}, v{b+1}, v{b+2}\nv_max3_u32 v{CT}, v{b+3}, v{b+4}, v{b+5}\nv_max3_u32 v{CM}, v{b+6}, v{b+7}, v{CM}\ns_waitcnt vmcnt(2)")
        a(f"v_max3_u32 v{CT}, v{b+8}, v{b+9}, v{CT}\nv_max3_u32 v{CM}, v{b+10}, v{b+11}, v{CM}\nv_max3_u32 v{CT}, v{b+12}, v{b+13}, v{CT}\nv_max3_u32 v{CM}, v{b+14}, v{b+15}, v{CM}\ns_waitcnt vmcnt(0)")
        a(f"""
    v_max3_u32 v{CT}, v{b+16}, v{b+17}, v{CT}
    v_max3_u32 v{CM}, v{b+18}, v{b+19}, v{CM}
    s_cmp_lt_u32 s26, 0x40000
    v_max_u32 v{CM}, v{CM}, v{CT}
    s_cbranch_scc0 P3_OK
    v_cmp_eq_u32 vcc, -1, v{CM}
    s_cbranch_vccz P3_OK
    s_sleep {opt("p3s", 4)}
    s_branch P3_TRY
P3_OK:
    {'' if opt('fst', 0) else st(11)}
    s_setprio {opt('p3p', 0)}
    """)
        for n in range(25):
            k, t = divmod(n, 5)
            a(f"v_mfma_f32_16x16x32_bf16 {vr(ACC+4*t,4)}, {vr(BF+4*n,4)}, {vr(OFR+4*k,4)}, {vr(ACC+4*t,4) if k else 0}")
    a("s_cmp_lg_u32 s42, 0\ns_cbranch_scc1 P3_WR")
    lwait(a, BMM, CT, 1, 8, 2)
    a(f"{str() if opt('fst', 0) else st(12)}\nP3_WR:\nv_add_u32 v{CM}, s46, v{VA}\nv_mov_b32 v{CT}, s40\ns_nop 1")
    for j in range(5): a(f"ds_write_b128 v{CM}, {vr(ACC+4*j,4)} offset:{1024*j}")
    a("s_waitcnt lgkmcnt(0)")
    ladd(a, CT, BMT, 0)
    a(f"""
    s_add_u32 s44, s44, {8*20480}
    s_add_u32 s45, s45, {8*20480}
    s_add_u32 s46, s46, {8*5120}
    s_add_u32 s40, s40, 8
    s_add_u32 s42, s42, 1
    s_cmp_ge_u32 s42, 2
    s_cbranch_scc1 P3_END
    s_cmp_ge_u32 s16, 4
    s_cbranch_scc1 P3_TRY
    """)
    for k in range(10): a(f"v_lshlrev_b32 v{YG+2*k}, 16, v{YG+10+k}\nv_and_b32 v{YG+2*k+1}, 0xffff0000, v{YG+10+k}")
    for k in range(20): a(f"v_mul_f32 v{YG+k}, v{YG+k}, v{G2}")
    a(f"""
    v_sub_f32 v{G2}, 1.0, v{G2}
    s_branch P3_TRY
P3_END:
    {st(10)}
    s_cmp_ge_u32 s16, 4
    s_cbranch_scc1 {"L_DONE" if STAMP else "L_END"}
    s_setprio 3
    s_lshl_b32 s23, s16, 2
    s_add_u32 s23, s23, {LFB + 80}
    v_mov_b32 v{CT}, s23
    s_mul_i32 s23, s16, 20480
    s_add_u32 s23, s23, {WOL}
    v_add_u32 v{CM}, s23, v{VA}
    """)
    lwait(a, CT, BMM, 1, 4, 1)
    a(st(9))
    for j in range(5):
        for g in range(4): a(f"ds_read_b128 {vr(16*j+4*g,4)}, v{CM} offset:{5120*g+1024*j}")
    for j in range(5):
        a(f"s_waitcnt lgkmcnt({min(15, 16-4*j)})")
        for r in (0, 2): a(f"v_pk_add_f32 {vr(16*j+r,2)}, {vr(16*j+r,2)}, {vr(16*j+4+r,2)}\nv_pk_add_f32 {vr(16*j+8+r,2)}, {vr(16*j+8+r,2)}, {vr(16*j+12+r,2)}")
        for r in (0, 2): a(f"v_pk_add_f32 {vr(16*j+r,2)}, {vr(16*j+r,2)}, {vr(16*j+8+r,2)}")
        for r in range(4): a(f"v_fmac_f32 v{YG+4*j+r}, v{16*j+r}, v{G2}")
        a(f"v_cvt_pk_bf16_f32 v{84+2*j}, v{YG+4*j}, v{YG+4*j+1}\nv_cvt_pk_bf16_f32 v{84+2*j+1}, v{YG+4*j+2}, v{YG+4*j+3}")
        if j == 1: a(f"buffer_store_dwordx4 v[84:87], v{VY2}, s[36:39], 0 offen" + OSC)
        if j == 3: a(f"buffer_store_dwordx4 v[88:91], v{VY2}, s[36:39], 0 offen offset:16" + OSC)
    a(f"buffer_store_dwordx2 v[92:93], v{VY2}, s[36:39], 0 offen offset:32" + OSC)

DOC = """;
"""
def main():
    a = A()
    top = open("cdna_kernels/" + NAME + ".s.ref").read().split("; Override launch")[0]
    top += "; @launch grid=(256,1,1) block=(768,1,1) lds=163840\n"
    top += DOC
    a('.amdgcn_target "amdgcn-amd-amdhsa--gfx950"\n.text')
    d = gen(a)
    open(sys.argv[1], "w").write(top + a.text() + '.section .rodata,"a"\n.p2align 6\n' + d)
if __name__ == "__main__":
    main()
```

```python
import sys, math, struct

OPT = dict(x.split("=") for x in sys.argv[2:])
def opt(k, d): return int(OPT.get(k, d))
NAME = "gated_mix__spectral_fnet__softmax_full_mha__prompt"
HS = 163840
KV_OFF = 0
HG = HS + opt('pad', 512)
HQ = 81920 + opt('pad', 512)
Q_OFF = 32 * HG
FE_OFF = Q_OFF + 32 * HQ
FO_DELTA = 655360
X512_OFF = FE_OFF + 2 * FO_DELTA
TB_OFF = X512_OFF + 4096
Y_OFF = TB_OFF + 33 * 65536
ZP = 8704
G_OFF = Y_OFF + 85 * 2 * ZP
OF_OFF = G_OFF + 8192
FLG_OFF = OF_OFF + 2621440
WS_USED = FLG_OFF + 320 * 128
XB = 102400
L_Y = 256
QLDS = 61440
RB0, RSL = 11264, 36864
LFB = 158720
WOL = 5120
AK1, AK2, AV, BK1, BK2, BV, OA1, OA2, ONES, PA, FA = range(152, 163)
VA, VT, BMM, BMT, CM, CT = 163, 164, 165, 166, 160, 161
PXB = 107520
def p3_addr(l):
    return f"""v_lshlrev_b32 v{VA}, 4, v{l}
    v_and_b32 v2, 7, v{l}
    v_bfe_u32 v4, v{l}, 3, 1
    v_lshrrev_b32 v3, 4, v{l}
    v_lshlrev_b32 v{VT}, 8, v3
    v_lshl_add_u32 v{VT}, v2, 4, v{VT}
    v_lshl_add_u32 v{VT}, v4, 3, v{VT}
    v_bfe_u32 v2, v{l}, 2, 2
    v_and_b32 v5, 3, v{l}
    v_mul_u32_u24 v5, 40, v5
    v_mul_u32_u24 v4, 40, v3
    v_add3_u32 v4, v4, v2, 16
    v_mul_u32_u24 v4, 160, v4
    v_add_u32 v{BMT}, v4, v5
    v_lshrrev_b32 v4, 1, v3
    v_mul_u32_u24 v4, 20, v4
    v_and_b32 v3, 1, v3
    v_lshl_add_u32 v4, v3, 2, v4
    v_add_u32 v4, v4, v2
    v_mul_u32_u24 v4, 160, v4
    v_add_u32 v{BMM}, v4, v5"""

def f32bits(x): return struct.unpack("<I", struct.pack("<f", x))[0]
QSCALE = f32bits((20 ** -0.5) * math.log2(math.e))
STAMP = opt("stamp", 0)
STAMP_OFF = 1 << 25
NST = 16

class A:
    def __init__(self): self.l = []; self.n = 0
    def __call__(self, s):
        for line in s.split("\n"):
            t = line.strip()
            if not t: continue
            self.l.append(t if t.endswith(":") or t.startswith(".") else "    " + t)
    def uid(self): self.n += 1; return self.n
    def text(self): return "\n".join(self.l) + "\n"

def vr(a, n): return f"v[{a}:{a+n-1}]" if n > 1 else f"v{a}"
def srd(lo, base, size):
    return f"s_mov_b32 s{lo}, s{base}\ns_mov_b32 s{lo+1}, s{base+1}\ns_mov_b32 s{lo+2}, {size}\ns_mov_b32 s{lo+3}, 0x20000"
OSC = " sc1" if opt("outsc1", 0) else ""
P1ST = opt("p1st", 0)
def st(i, p1=False):
    if not STAMP: return ""
    if P1ST and not p1 and 0 < i < 15 and i not in (4, 5): return ""
    if P1ST and not p1 and i in (4, 5): i += 8
    if p1 and not P1ST: return ""
    return f"{'s_memrealtime' if STAMP in (1, 3, 4) else 's_memtime'} s[{64+2*i}:{65+2*i}]"
def fin(): return "s_branch L_DONE" if STAMP else "s_endpgm"

X_P, WD_P, WQKV_P, WO_P, GATE_P, OUT_P, DBG_P, WS_P = 4, 8, 48, 50, 52, 54, 56, 58

def poll(a, vaddr, vdat, mask, target, sreg=60):
    u = a.uid()
    a(f"""
    s_mov_b64 exec, {mask}
    s_mov_b32 s{sreg}, 0
L_POLL{u}:
    buffer_load_dword v{vdat}, v{vaddr}, s[28:31], 0 offen sc1
    s_waitcnt vmcnt(0)
    v_cmp_gt_u32 vcc, {target}, v{vdat}
    s_cbranch_vccz L_POLLD{u}
    {'s_sleep 1' if opt('psleep', 0) else ''}
    s_add_u32 s{sreg}, s{sreg}, 1
    s_cmp_lt_u32 s{sreg}, 0x40000
    s_cbranch_scc1 L_POLL{u}
L_POLLD{u}:
    s_mov_b64 exec, -1
    """)

def poll4(a, vaddr, vdat, mask, soff="0", sreg=60, slp=None):
    u = a.uid()
    a(f"""
    s_mov_b64 exec, {mask}
    s_mov_b32 s{sreg}, 0
    s_branch L_POLLE{u}
L_POLL{u}:
    s_sleep {slp or opt("ps4", 2)}
L_POLLE{u}:
    buffer_load_dwordx4 {vr(vdat,4)}, v{vaddr}, s[28:31], {soff} offen sc1
    s_add_u32 s{sreg}, s{sreg}, 1
    s_waitcnt vmcnt(0)
    v_min3_u32 v{vdat}, v{vdat}, v{vdat+1}, v{vdat+2}
    s_cmp_lt_u32 s{sreg}, 0x40000
    v_min_u32 v{vdat}, v{vdat}, v{vdat+3}
    s_cbranch_scc0 L_POLLD{u}
    v_cmp_eq_u32 vcc, 0, v{vdat}
    s_cbranch_vccnz L_POLL{u}
L_POLLD{u}:
    s_mov_b64 exec, -1
    """)

def gen(a):
    label = NAME + "_kernel"
    a(f".p2align 8\n.globl {label}\n.type {label},@function\n{label}:")
    a(f"""
    s_cmp_ge_u32 s2, 256
    s_cbranch_scc1 L_END
    {st(0) + chr(10) + 's_waitcnt lgkmcnt(0)' if opt("st0first", 0) else ''}
    s_load_dwordx2 s[4:5], s[0:1], 0
    s_load_dwordx8 s[48:55], s[0:1], 48
    s_load_dwordx4 s[8:11], s[0:1], 24
    s_load_dwordx4 s[56:59], s[0:1], 80
    """)
    if STAMP:
        a("\n".join(f"s_mov_b32 s{64+j}, 0" for j in range(2, 2 * NST)) + "\n" + ("" if opt("st0first", 0) else st(0)))
    a(f"""
    v_lshrrev_b32 v1, 6, v0
    v_and_b32 v0, 63, v0
    s_and_b32 s17, s2, 7
    v_readfirstlane_b32 s16, v1
    s_lshr_b32 s18, s2, 3
    s_and_b32 s19, s18, 7
    s_lshr_b32 s22, s18, 3
    s_and_b32 s21, s17, 1
    s_lshl_b32 s23, s19, 1
    s_add_u32 s21, s21, s23
    s_lshr_b32 s20, s17, 1
    s_cmp_ge_u32 s19, {opt("numl", 3)}
    s_cselect_b32 s12, 1, 0
    s_cmp_eq_u32 s22, 0
    s_cselect_b32 s12, 0, s12
    s_cmp_ge_u32 s16, 4
    s_cbranch_scc1 P1_NOTLOADER
    """)
    p1_loader(a)
    a(f"""
P1_NOTLOADER:
    s_lshl_b32 s63, s17, 2
    s_add_u32 s63, s63, s22
    s_mul_i32 s14, s63, {HG}
    s_sub_u32 s13, s16, 4
    s_lshl_b32 s23, s19, 3
    s_add_u32 s23, s23, s13
    s_mul_i32 s23, s23, 40960
    s_add_u32 s23, s23, {OF_OFF}
    s_lshl_b32 s6, s63, 9
    s_add_u32 s6, s6, s23
    s_lshl_b32 s7, s63, 7
    s_add_u32 s7, s7, s23
    s_add_u32 s7, s7, 16384
    s_lshl_b32 s15, s20, 2
    s_add_u32 s15, s15, s22
    s_lshl_b32 s15, s15, 4
    s_add_u32 s15, s15, s21
    s_lshl_b32 s15, s15, 5
    s_add_u32 s15, s15, s13
    s_lshl_b32 s15, s15, 2
    s_add_u32 s15, s15, {FLG_OFF}
    v_and_b32 v1, 31, v0
    v_lshrrev_b32 v2, 5, v0
    v_lshlrev_b32 v{AK1}, 4, v0
    v_lshrrev_b32 v3, 4, v1
    v_lshl_add_u32 v3, v3, 1, v2
    v_and_b32 v4, 15, v0
    v_lshl_add_u32 v3, v4, 2, v3
    v_lshlrev_b32 v{AK2}, 2, v3
    v_mul_u32_u24 v{AV}, 384, v2
    v_lshlrev_b32 v3, 6, v2
    v_cmp_gt_u32 vcc, 16, v1
    s_nop 1
    v_cndmask_b32 v{AV}, v3, v{AV}, vcc
    v_lshl_add_u32 v{AV}, v1, 4, v{AV}
    v_add_u32 v{BK1}, 15360, v{AK1}
    v_add_u32 v{BK2}, 15360, v{AK2}
    v_add_u32 v{BV}, 15360, v{AV}
    v_and_b32 v3, 27, v1
    v_cmp_eq_u32 vcc, 24, v3
    v_mov_b32 v3, 0x3f803f80
    v_bfe_u32 v{OA2}, v1, 3, 1
    v_cndmask_b32 v{ONES}, 0, v3, vcc
    v_mul_u32_u24 v{OA2}, 20480, v{OA2}
    v_and_b32 v3, 7, v1
    v_lshl_add_u32 v{OA2}, v3, 4, v{OA2}
    v_lshrrev_b32 v3, 4, v0
    v_lshl_add_u32 v{OA1}, v3, 7, v{OA2}
    s_lshl_b32 s23, s13, 2
    s_add_u32 s23, s23, {LFB}
    v_mov_b32 v{PA}, s23
    v_mov_b32 v{FA}, {LFB + 56}
    {p3_addr(0)}
    s_cmp_ge_u32 s16, 8
    s_cbranch_scc1 P1_EXTRA
    """)
    p1_compute(a)
    p1_extra(a)
    attention(a)
    helpers(a)
    a("L_DONE:")
    if STAMP == 4:
        i_, j_ = opt("ai", 0), opt("aj", 0)
        a(f"""s_waitcnt vmcnt(0)
        {st(NST-1)}
        s_waitcnt lgkmcnt(0)
        s_cmp_ge_u32 s16, {opt("aw", 4)}
        s_cbranch_scc1 L_END
        s_and_b32 s60, s2, {opt("am", 31)}
        s_cmp_lg_u32 s60, {opt("av", 5)}
        s_cbranch_scc1 L_END
        s_sub_u32 s60, s{64+2*j_}, s{64+2*i_}
        s_lshl_b32 s60, s60, 2
        s_min_u32 s60, s60, 100000
        {f's_mov_b32 s60, {opt("fix", 0)}' if opt("fix", 0) else ''}
L_AMP:
        s_memrealtime s[44:45]
        s_waitcnt lgkmcnt(0)
        s_sub_u32 s44, s44, s{64 if opt("fix", 0) else 64+2*(NST-1)}
        s_cmp_lt_u32 s44, s60
        s_cbranch_scc1 L_AMP
        """)
    elif STAMP == 3:
        r = f"s_waitcnt vmcnt(0)\n{st(NST-1)}\ns_mov_b64 exec, 1\n{srd(44, DBG_P, 256)}\ns_waitcnt lgkmcnt(0)\nv_mov_b32 v16, 0\n"
        r += "s_not_b32 s60, s64\nv_mov_b32 v0, s60\nbuffer_atomic_umax v0, v16, s[44:47], 0 offen offset:4 sc1\n"
        r += "s_cmp_eq_u32 s16, 0\ns_cbranch_scc1 L_D0\ns_cmp_eq_u32 s16, 4\ns_cbranch_scc0 L_END\n"
        for n, i in enumerate((2, 3, 4, 5, 7, 8, 9)): r += f"v_mov_b32 v{n+1}, s{64+2*i}\nbuffer_atomic_umax v{n+1}, v16, s[44:47], 0 offen offset:{8+4*n} sc1\n"
        r += "s_endpgm\nL_D0:\n"
        for n, i in enumerate((0, 1, 6, 8, 9, 10, 15)): r += f"v_mov_b32 v{n+1}, s{64+2*i}\nbuffer_atomic_umax v{n+1}, v16, s[44:47], 0 offen offset:{36+4*n} sc1\n"
        a(r)
    elif STAMP:
        r = f"s_waitcnt vmcnt(0)\n{st(NST-1)}\ns_mov_b64 exec, 1\ns_add_u32 s44, s{WS_P}, {STAMP_OFF}\ns_addc_u32 s45, s{WS_P+1}, 0\ns_mov_b32 s46, 262144\ns_mov_b32 s47, 0x20000\n"
        r += "s_lshl_b32 s60, s2, 4\ns_add_u32 s60, s60, s16\ns_lshl_b32 s60, s60, 6\ns_waitcnt lgkmcnt(0)\nv_mov_b32 v16, 0\n"
        if opt("xcc", 0): r += "s_getreg_b32 s66, hwreg(HW_REG_XCC_ID)\ns_add_u32 s66, s66, 100\n"
        for i in range(NST): r += f"v_mov_b32 v{i}, s{64+2*i}\n"
        for i in range(4): r += f"buffer_store_dwordx4 v[{4*i}:{4*i+3}], v16, s[44:47], s60 offen offset:{16*i}\n"
        a(r)
    a("L_END:\ns_endpgm\n.fill 256, 4, 0xbf810000\nL_CODE_END:")
    return f""".amdhsa_kernel {label}
  .amdhsa_next_free_vgpr 168
  .amdhsa_next_free_sgpr {100 if STAMP else 64}
  .amdhsa_accum_offset 168
  .amdhsa_group_segment_fixed_size 0
  .amdhsa_kernarg_size 96
  .amdhsa_user_sgpr_count 2
  .amdhsa_user_sgpr_kernarg_segment_ptr 1
  .amdhsa_system_sgpr_workgroup_id_x 1
.end_amdhsa_kernel
"""

def p1_loader(a):
    a(f"""
    s_setprio 3
    """)
    if opt("pf", 0):
        a(f"""
        v_lshlrev_b32 v20, 4, v0
        s_mul_i32 s23, s2, 10240
        s_and_b32 s24, s16, 1
        s_mul_i32 s24, s24, 5120
        s_add_u32 s23, s23, s24
        s_mul_i32 s25, s2, 3
        s_mov_b32 s31, 0x20000
        s_mov_b32 s35, 0x20000
        s_mov_b32 s34, {640*1280}
        s_waitcnt lgkmcnt(0)
        s_mov_b32 s30, {2048*1280}
        s_cmp_lt_u32 s16, 2
        s_cselect_b32 s28, s{X_P}, s{WQKV_P}
        s_cselect_b32 s29, s{X_P+1}, s{WQKV_P+1}
        s_cselect_b32 s30, s30, {640*3840}
        s_cselect_b32 s32, s8, s10
        s_cselect_b32 s33, s9, s11
        buffer_load_dwordx4 v[24:27], v20, s[28:31], s23 offen
        buffer_load_dwordx4 v[28:31], v20, s[28:31], s23 offen offset:1024
        buffer_load_dwordx4 v[32:35], v20, s[28:31], s23 offen offset:2048
        buffer_load_dwordx4 v[36:39], v20, s[28:31], s23 offen offset:3072
        s_add_u32 s23, s23, 4096
        buffer_load_dwordx4 v[40:43], v20, s[28:31], s23 offen
        s_lshr_b32 s24, s24, 11
        s_add_u32 s25, s25, s24
        s_mul_i32 s25, s25, 1280
        s_mov_b32 exec_hi, 0xff
        buffer_load_dwordx4 v[44:47], v20, s[32:35], s25 offen
        s_bitcmp1_b32 s16, 0
        s_cbranch_scc1 P1_PF1
        buffer_load_dwordx4 v[48:51], v20, s[32:35], s25 offen offset:1280
P1_PF1:
        s_mov_b32 exec_hi, -1
        """)
    a(f"""
    v_lshrrev_b32 v2, 3, v0
    v_and_b32 v3, 7, v0
    v_lshrrev_b32 v4, 4, v0
    v_xor_b32 v3, v3, v4
    v_lshlrev_b32 v3, 4, v3
    v_xor_b32 v4, 64, v3
    s_lshl_b32 s23, s21, 5
    s_lshr_b32 s24, s16, 1
    s_lshl_b32 s24, s24, 4
    s_add_u32 s23, s23, s24
    v_add_u32 v9, s23, v2
    s_bitcmp1_b32 s16, 0
    s_cselect_b32 s23, -1, 1
    s_cselect_b32 s24, 0x400, 0
    s_cselect_b32 s25, -8, 8
    v_mul_lo_u32 v10, v9, s23
    s_sub_u32 s27, 0x800, s24
    v_add_u32 v5, s24, v10
    v_sub_u32 v7, s27, v10
    v_add_u32 v6, s25, v5
    v_subrev_u32 v8, s25, v7
    v_cmp_eq_u32 vcc, 0, v9
    s_add_u32 s24, s24, 0x200
    v_mov_b32 v9, s24
    s_cmp_lg_u32 s22, 2
    v_cndmask_b32 v7, v7, v9, vcc
    s_cbranch_scc1 P1_LD_NV
    v_swap_b32 v6, v7
P1_LD_NV:
    s_lshl_b32 s26, s22, 2
    s_add_u32 s26, s26, s20
    s_and_b32 s27, s20, 1
    s_movk_i32 s25, 3840
    s_cmp_eq_u32 s22, 3
    s_cselect_b32 s25, 1280, s25
    s_cselect_b32 s26, s27, s26
    s_mul_i32 s26, s26, 320
    s_movk_i32 s27, 1280
    v_mad_u32_u24 v10, v5, s27, v3
    v_mad_u32_u24 v11, v6, s27, v4
    v_mad_u32_u24 v12, v7, s27, v3
    v_mad_u32_u24 v13, v8, s27, v4
    s_lshl_b32 s27, s16, 4
    s_mul_i32 s27, s27, s25
    s_add_u32 s26, s26, s27
    s_sub_u32 s27, s25, 320
    """)
    for i in range(5):
        a(f"""
        v_add_u32 v5, {64*i}, v0
        v_mul_u32_u24 v6, 3277, v5
        v_lshrrev_b32 v6, 16, v6
        v_lshrrev_b32 v7, 2, v6
        v_and_b32 v7, 2, v7
        v_xor_b32 v5, v5, v7
        v_lshl_add_u32 v5, v5, 4, s26
        v_mad_u32_u24 v{14+i}, v6, s27, v5
        """)
    sg = opt("stag1", 7)
    if sg == 1:
        a("s_lshl_b32 s36, s19, 3\ns_lshl_b32 s37, s22, 4\ns_add_u32 s36, s36, s37\ns_add_u32 s36, s36, s17\ns_and_b32 s36, s36, 63\ns_mul_i32 s36, s36, 10\ns_lshr_b32 s36, s36, 6")
    elif sg == 2:
        a("s_add_u32 s36, s19, s22\ns_lshl_b32 s36, s36, 4\ns_add_u32 s36, s36, s17\ns_add_u32 s36, s36, s17\ns_and_b32 s36, s36, 63\ns_mul_i32 s36, s36, 10\ns_lshr_b32 s36, s36, 6")
    elif sg == 3:
        a("s_add_u32 s36, s19, s22\ns_lshl_b32 s36, s36, 5\ns_lshl_b32 s37, s17, 2\ns_add_u32 s36, s36, s37\ns_and_b32 s36, s36, 63\ns_mul_i32 s36, s36, 10\ns_lshr_b32 s36, s36, 6")
    elif sg >= 10:
        nc = sg - 9
        Gn = 5 - nc
        rot = [2 * (nc + k % Gn) for k in range(2 * Gn - 1)]
        rv = sum(v << (4 * k) for k, v in enumerate(rot))
        com = sum((2 * k) << (4 * k) for k in range(nc))
        a(f"""
        s_lshr_b32 s36, s17, 1
        s_xor_b32 s36, s36, s17
        s_and_b32 s36, s36, 1
        s_add_u32 s37, s22, s19
        s_lshr_b32 s46, s17, 2
        s_lshl_b32 s46, s46, {opt("xsh", 1)}
        s_add_u32 s37, s37, s46
        s_mul_i32 s46, s37, {256 // Gn + 1}
        s_lshr_b32 s46, s46, 8
        s_mul_i32 s46, s46, {Gn}
        s_sub_u32 s37, s37, s46
        s_lshl_b32 s37, s37, 2
        s_lshr_b32 s46, {rv:#x}, s37
        s_and_b32 s46, s46, {(1 << (4 * Gn)) - 1:#x}
        s_lshl_b32 s46, s46, {4 * nc}
        s_or_b32 s46, s46, {0x53100000 | com:#x}
        s_mov_b32 s47, 0x97
        s_mul_i32 s37, s36, 0x11111111
        s_xor_b32 s46, s46, s37
        s_xor_b32 s47, s47, s37
        s_and_b32 s36, s46, 15
        """)
    elif sg >= 5:
        tsh = {5: 0, 6: 1, 7: 0, 8: 0, 9: 0}[sg]
        a(f"""
        s_lshr_b32 s36, s17, 1
        s_xor_b32 s36, s36, s17
        s_and_b32 s36, s36, 1
        {'s_min_u32 s37, s22, 2' if sg == 9 else f's_lshr_b32 s37, s22, {tsh}'}
        s_add_u32 s37, s37, s19
        s_lshr_b32 s46, s17, 2
        s_lshl_b32 s46, s46, 1
        s_add_u32 s37, s37, s46
        s_mul_i32 s46, s37, 52
        s_lshr_b32 s46, s46, 8
        s_mul_i32 s46, s46, 5
        s_sub_u32 s37, s37, s46
        s_lshl_b32 s37, s37, 2
        s_mov_b32 s46, 0x42086420
        s_mov_b32 s47, 0x6
        s_lshr_b64 s[46:47], s[46:47], s37
        s_and_b32 s46, s46, 0xfffff
        {'s_or_b32 s47, s46, 0x11111' + chr(10) + 's_lshl_b32 s37, s47, 20' + chr(10) + 's_or_b32 s46, s46, s37' + chr(10) + 's_lshr_b32 s47, s47, 12' if sg == 8 else 's_or_b32 s46, s46, 0x53100000' + chr(10) + 's_mov_b32 s47, 0x97'}
        s_mul_i32 s37, s36, 0x11111111
        s_xor_b32 s46, s46, s37
        s_xor_b32 s47, s47, s37
        """)
        if sg == 7:
            a("s_lshr_b32 s37, s47, 4\ns_and_b32 s37, s37, 15\ns_lshl_b64 s[46:47], s[46:47], 4\ns_or_b32 s46, s46, s37")
        a("s_and_b32 s36, s46, 15")
    else:
        a("s_mov_b32 s36, 0")
    a(f"""
    s_lshl_b32 s38, s16, 12
    s_add_u32 s38, s38, {RB0}
    s_mul_i32 s39, s16, 5120
    s_add_u32 s39, s39, {RB0 + 16384}
    s_mov_b32 s40, 0
    s_mul_i32 s34, s25, 640
    s_lshl_b32 s25, s25, 6
    s_mov_b32 s35, 0x20000
    s_waitcnt lgkmcnt(0)
    {srd(28, X_P, 2048*1280)}
    s_cmp_lt_u32 s20, 2
    s_cselect_b32 s32, s8, s10
    s_cselect_b32 s33, s9, s11
    s_cmp_eq_u32 s22, 3
    s_cselect_b32 s32, s32, s{WQKV_P}
    s_cselect_b32 s33, s33, s{WQKV_P+1}
    {st(1)}
    """)
    if opt("dftdelay", 0):
        a(f"""s_cmp_lg_u32 s22, 3
        s_cbranch_scc1 P1_LD_LOOP
        s_memrealtime s[42:43]
        s_waitcnt lgkmcnt(0)
        s_add_u32 s42, s42, {opt("dftdelay", 0)}
P1_DLY:
        s_memrealtime s[44:45]
        s_waitcnt lgkmcnt(0)
        s_cmp_lt_u32 s44, s42
        s_cbranch_scc1 P1_DLY
        """)
    a(f"""
P1_LD_LOOP:
    s_lshl_b32 s41, s36, 7
    s_mul_i32 s42, s36, s25
    s_add_u32 s43, s40, 2
    s_and_b32 s43, s43, 3
    s_mul_i32 s43, s43, {RSL}
    s_add_u32 s44, s43, s38
    s_add_u32 s45, s43, s39
    """)
    for i in range(4):
        a(f"s_add_u32 m0, s44, {1024*i}\ns_nop 0\nbuffer_load_dwordx4 v{10+i}, s[28:31], s41 offen lds")
    for i in range(5):
        a(f"s_add_u32 m0, s45, {1024*i}\ns_nop 0\nbuffer_load_dwordx4 v{14+i}, s[32:35], s42 offen lds")
    if opt("noload", 0): a("s_cmp_ge_u32 s40, 3\ns_cselect_b32 s30, 0, s30\ns_cselect_b32 s34, 0, s34")
    a(f"""
    {'s_lshr_b64 s[46:47], s[46:47], 4' + chr(10) + 's_and_b32 s36, s46, 15' if sg >= 5 else 's_add_u32 s36, s36, 1' + chr(10) + 's_cmp_eq_u32 s36, 10' + chr(10) + 's_cselect_b32 s36, 0, s36'}
    s_add_u32 s40, s40, 1
    s_cmp_eq_u32 s40, 1
    s_cbranch_scc1 P1_LD_LOOP
    s_waitcnt vmcnt(9)
    s_barrier
    s_cmp_lt_u32 s40, 10
    s_cbranch_scc1 P1_LD_LOOP
    s_waitcnt vmcnt(0)
    s_barrier
    s_branch HELPER
    """)

def p1_compute(a):
    X = 80; W = [96, 116]; XA = 136; WA = 137; CX = 142; CW = 144; PC = 149; L = 150; TT = 96
    def acc(b, T): return 20 * b + 4 * T
    a(f"""
    s_sub_u32 s61, s16, 4
    s_and_b32 s36, s61, 1
    s_lshr_b32 s37, s61, 1
    v_mov_b32 v{L}, v0
    v_and_b32 v1, 15, v0
    v_lshrrev_b32 v2, 4, v0
    v_lshrrev_b32 v3, 1, v1
    v_xor_b32 v3, v3, v2
    v_lshlrev_b32 v3, 4, v3
    v_lshl_add_u32 v3, v1, 7, v3
    s_lshl_b32 s23, s36, 13
    s_add_u32 s23, s23, {RB0}
    v_add_u32 v{XA}, s23, v3
    v_bfe_u32 v3, v0, 2, 2
    v_lshl_add_u32 v3, v2, 3, v3
    v_mul_u32_u24 v3, 320, v3
    v_add_u32 v3, {RB0 + 16384}, v3
    v_and_b32 v4, 16, v0
    v_lshlrev_b32 v4, 1, v4
    v_and_b32 v5, 3, v0
    s_mul_i32 s23, s37, 160
    v_lshl_add_u32 v6, v5, 3, s23
    """)
    for T in range(4):
        a(f"v_xor_b32 v7, v6, v4\nv_add_u32 v{WA+T}, v7, v3\nv_add_u32 v6, 40, v6")
    a(f"""
    v_mul_u32_u24 v6, 40, v5
    v_add3_u32 v6, v6, s23, 32
    v_xor_b32 v7, v6, v4
    v_add_u32 v{WA+4}, v7, v3
    v_mov_b32 v{PC}, 0xbf803f80
    s_lshl_b32 s26, s22, 2
    s_add_u32 s26, s26, s20
    s_lshl_b32 s26, s26, 1
    s_add_u32 s26, s26, s37
    s_cmp_eq_u32 s26, 28
    s_cselect_b32 s24, 0x10001, 0
    s_mov_b32 s25, s24
    s_cmp_eq_u32 s22, 3
    s_cselect_b32 s43, 10, 8
    s_mov_b32 s40, 0
    s_mov_b32 s42, {2 * RSL}
    """)
    for r in range(96): a(f"v_mov_b32 v{r}, 0")
    for r in range(20): a(f"v_mov_b32 v{W[1]+r}, 0")
    a(f"v_add_u32 v{CX}, s42, v{XA}")
    for T in range(5): a(f"v_add_u32 v{CW+T}, s42, v{WA+T}")
    a(f"s_waitcnt lgkmcnt(0)\n{srd(28, WS_P, WS_USED)}")
    a(f"s_setprio {opt('cp', 2)}\ns_cmp_ge_u32 s22, 2\ns_cbranch_scc1 P1_PRE_V")
    def mf(b, T, x, w, qk):
        d = vr(acc(b, T), 4)
        return f"v_mfma_f32_16x16x32_bf16 {d}, {vr(w,4)}, {vr(x,4)}, {d}" if qk else f"v_mfma_f32_16x16x32_bf16 {d}, {vr(x,4)}, {vr(w,4)}, {d}"
    def rdw(d, T, step): return [f"ds_read_b64_tr_b16 {vr(d+2*j,2)}, v{CW+T} offset:{(step // 2) * RSL + (step % 2) * 10240 + 1280 * j}" for j in range(2)]
    def rdx(d, b, step): return f"ds_read_b128 {vr(d,4)}, v{CX + step % 2} offset:{(step // 2) * RSL + 2048 * b}"
    TO = (1, 2, 3, 4, 0)
    def group(step, qk, reads=True, patch=True):
        cur = W[1 - step]; nxt = W[step]
        rq = []
        for T in TO: rq += rdw(nxt + 4 * T, T, step)
        fill = []
        if step == 1:
            fill = ["s_add_u32 s40, s40, 1", "s_add_u32 s41, s40, 2", "s_and_b32 s41, s41, 3", f"s_mul_i32 s42, s41, {RSL}", f"v_add_u32 v{CX}, s42, v{XA}"] + [f"v_add_u32 v{CW+T}, s42, v{WA+T}" for T in range(5)]
        issued = 0
        for b in range(4):
            if reads:
                allow = [2, 15, issued + 1, issued][b]
                if b != 1: a(f"s_waitcnt lgkmcnt({min(15, allow)})")
            elif b == 0: a("s_waitcnt lgkmcnt(0)")
            for n, T in enumerate(TO):
                a(mf(b, T, X + 4 * b, cur + 4 * T, qk))
                if b == 0 and n < 2 and not qk and patch:
                    for j in range(2): a(f"v_cndmask_b32 v{cur+2*n+j}, v{cur+2*n+j}, v{PC}, s[24:25]")
                if not reads: continue
                if step == 0 and b == 0:
                    if n == 0: a(f"v_xor_b32 v{CX+1}, 64, v{CX}")
                    if n == opt("bn", 1): a("s_barrier")
                    if n <= opt("bn", 1): continue
                if n == 4: a(rdx(X + 4 * b, b, step)); issued += 1
                elif rq:
                    a(rq.pop(0)); issued += 1
                    if rq and (opt("rd2", 0) or (step == 0 and b == 1 and n < opt("bn", 1) - 1)): a(rq.pop(0)); issued += 1
                elif fill:
                    a(fill.pop(0))
                    if fill: a(fill.pop(0))
        assert not reads or (not rq and not fill), (rq, fill)

    def tail(qk, epi):
        seq = [(b, T, ("x0", b), ("w0", T)) for b in range(4) for T in TO]
        marks = {}
        win = opt("win", 2)
        for step in range(4 - win):
            for b in range(4):
                for T in TO: seq.append((b, T, ("x", 0, step, b), ("w", step, T)))
        for T in range(5):
            for jj in range(2):
                for step in range(4 - win, 4):
                    for b in (2 * jj, 2 * jj + 1): seq.append((b, T, ("x", 0, step, b), ("w", step, T)))
                marks[len(seq) - 1] = (T, jj)
        last = {}
        for n, (_, _, x, w) in enumerate(seq): last[x] = n; last[w] = n
        loc = {("x0", b): X + 4 * b for b in range(4)}; loc.update({("w0", T): W[1] + 4 * T for T in range(5)})
        free = [W[0] + 4 * k for k in range(5)] + [XA]
        order = []
        for _, _, x, w in seq:
            for f in (w, x):
                if f not in loc and f not in order: order.append(f)
        done_at = {}; nrd = 0; waited = 0; pend = []; fill = []
        cnt = [0]; prev = [0]
        def em(t): a(t); cnt[0] += 1
        a(f"v_xor_b32 v{CX+1}, 64, v{CX}\ns_waitcnt lgkmcnt(0)\ns_barrier")
        bar2 = [True]
        def take():
            f = order.pop(0); loc[f] = free.pop(0)
            if bar2 and (f[1] if f[0] == "w" else f[2]) >= 2: em("s_barrier"); bar2.pop()
            p_ = rdw(loc[f], f[2], f[1]) if f[0] == "w" else [rdx(loc[f], f[3], f[2])]
            done_at[f] = nrd + len(p_)
            return p_
        def gap():
            t, at, after = fill[0]
            return max(at - cnt[0], prev[0] + after - cnt[0], 0)
        def put():
            em(fill.pop(0)[0]); prev[0] = cnt[0]
        for n, (b, T, x, w) in enumerate(seq):
            while any(f not in loc or (f in done_at and done_at[f] > nrd) for f in (x, w)):
                if not pend: pend = take()
                em(pend.pop(0)); nrd += 1
            need = max(done_at.get(x, 0), done_at.get(w, 0))
            if need > waited:
                waited = max(need, nrd - opt("tw", 6)); em(f"s_waitcnt lgkmcnt({nrd - waited})")
            em(mf(b, T, loc[x], loc[w], qk))
            if n in marks: fill += [(t, cnt[0] + 8, after) for t, after in epi(*marks[n])]
            for f in (x, w):
                if last[f] == n: free.append(loc[f])
            if not pend and order and free: pend = take()
            if pend: em(pend.pop(0)); nrd += 1
            for _ in range(2):
                if fill and gap() == 0: put()
        a(st(3))
        while fill:
            g_ = gap()
            if g_: a(f"s_nop {g_ - 1}"); cnt[0] += g_
            put()

    EA, EB = 167, 151
    def cv(d, r): return [f"v_cvt_pk_bf16_f32 v{d}, v{r}, v{r+1}", f"v_cvt_pk_bf16_f32 v{d+1}, v{r+2}, v{r+3}"]
    def epi_qk(ph, jj=0):
        if ph < 0:
            return f"""s_mov_b32 s35, {HG}
            s_movk_i32 s38, 2560
            s_cmp_eq_u32 s22, 0
            s_cselect_b32 s35, {HQ}, s35
            s_cselect_b32 s27, {Q_OFF}, {KV_OFF}
            s_cselect_b32 s38, 1280, s38
            s_lshl_b32 s26, s20, 1
            s_add_u32 s26, s26, s37
            s_lshl_b32 s26, s26, 2
            s_mul_i32 s26, s26, s35
            s_add_u32 s26, s26, s27
            s_lshl_b32 s23, s21, 1
            s_add_u32 s23, s23, s36
            s_lshl_b32 s23, s23, 1
            s_mul_i32 s23, s23, s38
            s_add_u32 s26, s26, s23
            s_add_u32 s27, s26, s38
            v_lshrrev_b32 v{EA}, 4, v{L}
            v_mul_lo_u32 v{EA}, v{EA}, s35
            v_and_b32 v{TT}, 15, v{L}
            v_lshl_add_u32 v{EA}, v{TT}, 4, v{EA}
            v_lshlrev_b32 v{EB}, 4, v{L}
            s_add_u32 s44, s26, s35
            s_add_u32 s45, s27, s35
            s_add_u32 s46, s44, s35
            s_add_u32 s47, s45, s35
            s_add_u32 s32, s46, s35
            s_add_u32 s33, s47, s35""".split("\n")
        T = ph
        r0, r1 = acc(2 * jj, T), acc(2 * jj + 1, T)
        o = [(t, 0) for t in cv(r0, r0) + cv(r0 + 2, r1)]
        if T < 4:
            o += [(f"v_permlane16_swap_b32 v{r0}, v{r0+2}", 1), (f"v_permlane16_swap_b32 v{r0+1}, v{r0+3}", 0)]
            o.append((f"buffer_store_dwordx4 {vr(r0,4)}, v{EB}, s[28:31], s{(26, 44, 46, 32)[T] + jj} offen sc1", 0))
        else:
            o.append((f"buffer_store_dwordx4 {vr(r0,4)}, v{EA}, s[28:31], s{26 + jj} offen offset:1024 sc1", 0))
        return o
    def epi_v(ph, jj=0):
        if ph < 0:
            return f"""s_lshl_b32 s26, s20, 1
            s_add_u32 s26, s26, s37
            s_mul_i32 s26, s26, {4*HG}
            s_lshl_b32 s23, s21, 1
            s_add_u32 s23, s23, s36
            s_mul_i32 s23, s23, 5120
            s_add_u32 s26, s26, s23
            s_add_u32 s26, s26, {KV_OFF + 1280}
            s_add_u32 s44, s26, {HG}
            s_add_u32 s45, s26, {2*HG}
            s_add_u32 s46, s26, {3*HG}
            s_mov_b32 s35, {HG}
            v_lshrrev_b32 v{EA}, 5, v{L}
            v_mul_u32_u24 v{EA}, 640, v{EA}
            v_bfe_u32 v{TT}, v{L}, 4, 1
            v_lshl_add_u32 v{EB}, v{TT}, 6, v{EA}
            v_mul_u32_u24 v{TT}, 384, v{TT}
            v_add_u32 v{EA}, v{EA}, v{TT}
            v_and_b32 v{TT}, 15, v{L}
            v_lshl_add_u32 v{EA}, v{TT}, 4, v{EA}
            v_and_b32 v{TT}, 3, v{L}
            v_lshl_add_u32 v{EB}, v{TT}, 4, v{EB}
            v_bfe_u32 v{TT}, v{L}, 2, 2
            v_mul_lo_u32 v{TT}, v{TT}, s35
            v_add_u32 v{EB}, v{EB}, v{TT}""".split("\n")
        T = ph
        r0, r1 = acc(2 * jj, T), acc(2 * jj + 1, T)
        o = [(t, 0) for t in cv(r0, r0) + cv(r0 + 2, r1)]
        if T < 4: o.append((f"buffer_store_dwordx4 {vr(r0,4)}, v{EA}, s[28:31], s{(26, 44, 45, 46)[T]} offen offset:{2560 * jj} sc1", 0))
        else: o.append((f"buffer_store_dwordx4 {vr(r0,4)}, v{EB}, s[28:31], s26 offen offset:{2560 * jj + 256} sc1", 0))
        return o

    for qk, lab in ((True, "QK"), (False, "V")):
        a(f"P1_PRE_{lab}:")
        for f in (epi_qk if qk else epi_v)(-1): a(f)
        SEP = opt("sep", 0)
        if SEP and not qk: a("s_cmp_eq_u32 s22, 3\ns_cbranch_scc1 P1_LOOP_D")
        a(f"P1_LOOP_{lab}:")
        group(0, qk, patch=not SEP)
        if STAMP: a(f"s_cmp_lg_u32 s40, 0\ns_cbranch_scc1 P1_ST_{lab}\n{st(2)}\nP1_ST_{lab}:\ns_cmp_lg_u32 s40, 5\ns_cbranch_scc1 P1_SU_{lab}\n{st(1)}\nP1_SU_{lab}:")
        group(1, qk, patch=not SEP)
        a(f"s_cmp_lt_u32 s40, s43\ns_cbranch_scc1 P1_LOOP_{lab}")
        if not qk: a("s_cmp_eq_u32 s22, 3\ns_cbranch_scc1 P1_EPI_DFT")
        a("s_cmp_eq_u32 s12, 1\ns_cselect_b32 s30, 0, s30")
        tail(qk, epi_qk if qk else epi_v)
        a(f"s_cmp_eq_u32 s12, 0\ns_cbranch_scc1 P1_DONE\ns_mov_b32 s30, {WS_USED}\nv_mov_b32 v88, {LFB + 56}\nv_mov_b32 v89, 1")
        ladd(a, 88, 89, 0)
        a("s_setprio 3\ns_barrier")
        for T in range(5):
            for jj in range(2): a((epi_qk if qk else epi_v)(T, jj)[-1][0])
        a("s_branch P1_DONE")
    if SEP:
        a("P1_LOOP_D:"); group(0, False); group(1, False)
        a("s_cmp_lt_u32 s40, s43\ns_cbranch_scc1 P1_LOOP_D")
    a("P1_EPI_DFT:")
    group(0, False, reads=False)
    TAU, TAU0, E0 = 80, 81, 140
    a(f"""
    {st(3)}
    s_cmp_lt_u32 s20, 2
    s_cselect_b32 s38, 1.0, -1.0
    v_mov_b32 v{TAU}, s38
    v_cndmask_b32 v{TAU0}, v{TAU}, 1.0, s[24:25]
    s_lshl_b32 s26, s20, 1
    s_add_u32 s26, s26, s37
    s_mul_i32 s26, s26, 80
    v_and_b32 v88, 15, v{L}
    v_add_u32 v{E0}, s26, v88
    v_add_u32 v{E0+1}, 20, v{E0}
    v_add_u32 v{E0+2}, 40, v{E0}
    v_add_u32 v{E0+3}, 60, v{E0}
    v_and_b32 v89, 12, v{L}
    v_lshl_add_u32 v{E0+4}, v89, 2, v{E0}
    v_add_u32 v{E0+4}, 16, v{E0+4}
    s_lshl_b32 s23, s21, 1
    s_add_u32 s23, s23, s36
    s_cmp_lg_u32 s23, 0
    s_cbranch_scc1 P1_EPI_DFT2
    s_mov_b64 exec, 0xffff
    s_mov_b32 s27, {X512_OFF}
    """)
    for T in range(5):
        a(f"v_fma_f32 v{96+T}, v{acc(3,T)}, v{TAU0 if T == 0 else TAU}, v{acc(1,T)}")
        a(f"v_lshlrev_b32 v{104+T}, 2, v{E0+T}\nv_mov_b32 v{acc(1,T)}, 0\nv_mov_b32 v{acc(3,T)}, 0")
        a(f"buffer_store_dword v{96+T}, v{104+T}, s[28:31], s27 offen sc1")
    a(f"""
    s_mov_b64 exec, -1
P1_EPI_DFT2:
    s_lshl_b32 s26, s23, 9
    s_add_u32 s26, s26, {FE_OFF}
    s_mov_b32 s27, {FO_DELTA}
    v_bfe_u32 v88, v{L}, 4, 1
    v_mul_lo_u32 v88, v88, s27
    v_lshrrev_b32 v89, 5, v{L}
    v_lshl_add_u32 v88, v89, 8, v88
    """)
    for T in range(5):
        tau = TAU0 if T == 0 else TAU
        a0, a1, a2, a3 = (acc(b, T) for b in range(4))
        for q in range(4):
            a(f"v_fma_f32 v{a0+q}, v{a1+q}, v{tau}, v{a0+q}\nv_fma_f32 v{a3+q}, v{a2+q}, v{tau}, v{a3+q}")
        for q in range(4):
            a(f"v_add_f32 v{a1+q}, v{a0+q}, v{a3+q}\nv_sub_f32 v{a2+q}, v{a0+q}, v{a3+q}")
        a0 = 120 + 4 * T
        for f in cv(a0, a1) + cv(a0 + 2, a2): a(f)
        a(f"""
        v_lshrrev_b32 v89, 4, v{E0+T}
        v_lshl_add_u32 v89, v89, 14, v88
        v_and_b32 v{E0+T}, 15, v{E0+T}
        v_lshl_add_u32 v{E0+T}, v{E0+T}, 4, v89
        v_permlane16_swap_b32 v{a0}, v{a0+2}
        v_permlane16_swap_b32 v{a0+1}, v{a0+3}
        """)
    a(f"v_mov_b32 v88, {LFB + 56}\nv_mov_b32 v89, 1\ns_mov_b32 s12, {opt('dnu', 1)}")
    ladd(a, 88, 89, 0)
    if opt("dnu", 1): a("s_setprio 3\ns_barrier")
    for T in range(5): a(f"buffer_store_dwordx4 {vr(120+4*T,4)}, v{E0+T}, s[28:31], s26 offen sc1")
    a(f"""
P1_DONE:
    {st(14)}
    s_mov_b32 s34, 1
    s_cmp_eq_u32 s12, 1
    s_cbranch_scc1 ATT
    s_mov_b32 s34, 0
    v_mov_b32 v84, 1
    v_mov_b32 v85, 1
    v_mov_b32 v86, 1
    v_mov_b32 v87, 1
    v_mov_b32 v88, {LFB + 44}
    v_mov_b32 v89, 0
    s_and_b32 s23, s15, -128
    s_mov_b64 exec, 1
    s_waitcnt vmcnt(0)
    ds_add_rtn_u32 v88, v88, v84
    s_waitcnt lgkmcnt(0)
    v_cmp_eq_u32 vcc, 3, v88
    s_cbranch_vccz P1_NS
    buffer_store_dwordx4 v[84:87], v89, s[28:31], s23 offen sc1
P1_NS:
    s_mov_b64 exec, -1
    s_branch ATT
    """)

def p1_extra(a):
    T0 = 40
    a(f"""
P1_EXTRA:
    s_sub_u32 s61, s16, 8
    """)
    if opt("cwarm", 1):
        a(f"""
        s_cmp_lg_u32 s16, 10
        s_cbranch_scc1 P1_NOCW
        s_lshl_b32 s23, s18, 10
        s_cmp_ge_u32 s23, L_CODE_END - {NAME}_kernel - 1023
        s_cbranch_scc1 P1_NOCW
        s_getpc_b64 s[44:45]
L_PC:
        s_sub_u32 s44, s44, L_PC - {NAME}_kernel
        s_subb_u32 s45, s45, 0
        v_lshl_add_u32 v40, v0, 4, s23
        global_load_dwordx4 v[44:47], v40, s[44:45]
P1_NOCW:
        """)
    a(f"""
    v_lshrrev_b32 v37, 4, v0
    v_and_b32 v38, 15, v0
    v_lshlrev_b32 v39, 4, v0
    v_mov_b32 v36, v0
    s_waitcnt lgkmcnt(0)
    {srd(28, WS_P, WS_USED)}
    {srd(32, DBG_P, 256)}
    s_cmp_lg_u32 s61, 0
    s_cbranch_scc1 P1_EX_A
    v_mov_b32 v1, 0
    v_lshlrev_b32 v2, 2, v0
    v_add_u32 v2, {LFB}, v2
    ds_write_b32 v2, v1
    s_waitcnt lgkmcnt(0)
    s_cmp_lt_u32 s2, 248
    s_cbranch_scc1 P1_EX_WAITRDY
    v_mov_b32 v4, 0
    v_mov_b32 v5, 0
    v_mov_b32 v6, 0
    v_mov_b32 v7, 0
    s_lshl_b32 s23, s17, 12
    s_add_u32 s23, s23, {FLG_OFF}
    buffer_store_dwordx4 v[4:7], v39, s[28:31], s23 offen sc1
    buffer_store_dwordx4 v[4:7], v39, s[28:31], s23 offen offset:1024 sc1
    buffer_store_dwordx4 v[4:7], v39, s[28:31], s23 offen offset:2048 sc1
    buffer_store_dwordx4 v[4:7], v39, s[28:31], s23 offen offset:3072 sc1
    s_lshl_b32 s23, s17, 7
    s_add_u32 s23, s23, {FLG_OFF + 32768}
    s_mov_b64 exec, 0xff
    buffer_store_dwordx4 v[4:7], v39, s[28:31], s23 offen sc1
    s_mov_b64 exec, -1
P1_EX_WAITRDY:
P1_EX_A:
    s_lshl_b32 s23, s2, 2
    s_add_u32 s23, s23, s61
    s_mov_b32 s40, 0
P1_TBL:
    s_lshr_b32 s24, s23, 5
    s_and_b32 s25, s23, 30
    s_and_b32 s26, s24, 1
    s_lshr_b32 s27, s24, 1
    s_lshl_b32 s27, s27, 6
    s_add_u32 s27, s27, s26
    s_and_b32 s26, s23, 1
    s_lshl_b32 s26, s26, 5
    s_add_u32 s27, s27, s26
    v_lshl_add_u32 v{T0}, v38, 1, s27
    s_lshl_b32 s25, s25, 4
    v_lshl_add_u32 v{T0+1}, v37, 3, s25
    v_mul_u32_u24 v{T0+1}, v{T0}, v{T0+1}
    v_and_b32 v{T0+1}, 0x7ff, v{T0+1}
    v_cvt_f32_u32 v{T0}, v{T0}
    v_cvt_f32_u32 v{T0+1}, v{T0+1}
    v_mul_f32 v{T0}, 0x3a000000, v{T0}
    v_mul_f32 v0, 0x3a000000, v{T0+1}
    """)
    for u in range(1, 8): a(f"v_add_f32 v{u}, v{u-1}, v{T0}")
    for u in range(1, 8): a(f"v_fract_f32 v{u}, v{u}")
    for u in range(8): a(f"v_cos_f32 v{8+u}, v{u}")
    for u in range(8): a(f"v_sin_f32 v{16+u}, v{u}")
    for j in range(4): a(f"v_cvt_pk_bf16_f32 v{24+j}, v{8+2*j}, v{9+2*j}")
    for j in range(4): a(f"v_cvt_pk_bf16_f32 v{28+j}, v{16+2*j}, v{17+2*j}")
    NB0 = opt("tblbar", 2)
    a(f"""
    s_cmp_lg_u32 s40, 0
    s_cbranch_scc1 P1_TBL_ST
    s_barrier
    {st(1, True)}
    s_cmp_lg_u32 s61, 0
    s_cbranch_scc1 P1_EX_NR
    s_cmp_lt_u32 s2, 248
    s_cbranch_scc1 P1_EX_NR
    v_mov_b32 v32, 1
    v_mov_b32 v33, 0
    s_lshl_b32 s24, s17, 2
    s_waitcnt vmcnt(0)
    s_mov_b64 exec, 1
    buffer_store_dword v32, v33, s[32:35], s24 offen sc1
    s_mov_b64 exec, -1
P1_EX_NR:
    """ + "".join(f"s_barrier\n{st(1 + b_, True)}\n" for b_ in range(1, NB0)) + f"""
    s_mov_b32 s40, 1
P1_TBL_ST:
    s_lshl_b32 s24, s23, 11
    s_add_u32 s24, s24, {TB_OFF}
    buffer_store_dwordx4 v[24:27], v39, s[28:31], s24 offen sc1
    buffer_store_dwordx4 v[28:31], v39, s[28:31], s24 offen offset:1024 sc1
    s_add_u32 s23, s23, 1024
    s_cmp_lt_u32 s23, 1056
    s_cbranch_scc1 P1_TBL
    """)
    nb = NB0
    assert nb <= 6
    a("".join(f"s_barrier\n{st(1 + b_, True)}\n" for b_ in range(nb, 6)))
    u = a.uid()
    a(f"""
    v_and_b32 v1, 7, v36
    v_lshlrev_b32 v1, 2, v1
    v_mov_b32 v2, 1
    s_mov_b32 s60, 0
    s_cmp_lg_u32 s61, 0
    s_cbranch_scc1 P1_EX_C
    buffer_load_dword v2, v1, s[32:35], 0 offen sc1
P1_EX_C:
    s_barrier
    {st(7, True)}
    s_barrier
    {st(8, True)}
L_RDY{u}:
    s_waitcnt vmcnt(0)
    v_cmp_eq_u32 vcc, 0, v2
    s_cbranch_vccz P1_EX_B
    s_sleep 1
    buffer_load_dword v2, v1, s[32:35], 0 offen sc1
    s_add_u32 s60, s60, 1
    s_cmp_lt_u32 s60, 0x40000
    s_cbranch_scc1 L_RDY{u}
P1_EX_B:
    s_waitcnt vmcnt(0)
    s_barrier
    {st(9, True)}
    s_barrier
    {st(10, True)}
    s_mov_b32 s34, 0
    """)

def attention(a):
    O = 0; S = [16, 32]; P = 48; Q1 = 56; Q2 = 60; K2 = 62; K1 = 64; V1 = 68; V2 = [72, 76]; T = 80
    a(f"""
ATT:
    s_cmp_lt_u32 s13, 4
    s_cselect_b32 s32, {opt("o1", 4)}, {opt("y1", 4)}
    s_cselect_b32 s33, {opt("o2", 7)}, {opt("y2", 7)}
    s_movk_i32 s35, 0x106
    s_bitset1_b32 s35, s32
    s_bitset1_b32 s35, s33
    s_mov_b32 s24, 0xfffff
    s_mov_b32 s25, 0xfffff
    s_mul_i32 s27, s13, 1280
    v_mov_b32 v{Q2+1}, 0
    v_mov_b32 v{K2+1}, 0x3f803f80
    v_add_u32 v{T}, s27, v{AK1}
    v_add_u32 v{T+1}, s27, v{AK2}
    v_mov_b32 v{T+2}, 1
    """)
    NQ = opt("nq", 2)
    OX = [84, O]; QX1 = [100, Q1]; QX2 = [104, Q2]; U = 106; TM = 114; XS = 107520
    if NQ == 2:
        a(f"""
        s_xor_b32 s36, s13, 1
        s_mul_i32 s27, s36, 1280
        v_add_u32 v{U}, s27, v{AK1}
        v_add_u32 v{U+1}, s27, v{AK2}
        v_mov_b32 v{U+2}, v{AK1}
        v_mov_b32 v{U+3}, v{AK2}
        v_mov_b32 v{QX2[0]+1}, 0
        s_and_b32 s37, s13, 1
        s_mul_i32 s37, s37, 2560
        v_and_b32 v{U+4}, 0x70, v{VA}
        v_lshrrev_b32 v{U+4}, 2, v{U+4}
        v_add_u32 v{U+4}, {LFB}, v{U+4}
        s_lshl_b32 s23, s13, 12
        s_add_u32 s23, s23, {XS}
        v_add_u32 v{U+5}, s23, v{VA}
        v_xor_b32 v{U+7}, 4, v{PA}
        s_lshl_b32 s23, s36, 12
        s_add_u32 s23, s23, {XS}
        v_add_u32 v{U+6}, s23, v{VA}
        s_lshr_b32 s38, s13, 2
        s_add_u32 s38, s38, 7
        """)
        for r in (AK1, AK2, AV, BK1, BK2, BV): a(f"v_add_u32 v{r}, s37, v{r}")
        for r in range(16): a(f"v_mov_b32 v{OX[0]+r}, 0")
    for r in range(12): a(f"v_mov_b32 v{V1+r}, v{ONES}")
    for r in range(16): a(f"v_mov_b32 v{O+r}, 0")
    for r in range(4): a(f"v_mov_b32 v{P+4+r}, 0\nv_mov_b32 v{P+r}, -1")
    def rk1(d): return f"v_mfma_f32_32x32x8_bf16 {vr(d,16)}, {vr(K2,2)}, {vr(Q2,2)}, 0"
    def rk2(d): return f"v_mfma_f32_32x32x16_bf16 {vr(d,16)}, {vr(K1,4)}, {vr(Q1,4)}, {vr(d,16)}"
    def qk1(d): return f"v_mfma_f32_32x32x16_bf16 {vr(d,16)}, {vr(K1,4)}, {vr(Q1,4)}, 0"
    def qk2(d): return f"v_mfma_f32_32x32x8_bf16 {vr(d,16)}, {vr(K2,2)}, {vr(Q2,2)}, {vr(d,16)}"
    def pv(v, p): return f"v_mfma_f32_32x32x16_bf16 {vr(O,16)}, {vr(v,4)}, {vr(p,4)}, {vr(O,16)}"
    def of(t): return (t - 6 if t in (6, 7) else t) * 2560
    def rdk1(t): return f"ds_read_b128 {vr(K1,4)}, v{BK1 if t in (6, 7) else AK1} offset:{of(t)}"
    def rdk2(t): return f"ds_read_b32 v{K2}, v{BK2 if t in (6, 7) else AK2} offset:{of(t)+1024}"
    def rdv(t, v2):
        b = BV if t in (6, 7) else AV
        return f"s_mov_b64 exec, s[24:25]\nds_read_b128 {vr(V1,4)}, v{b} offset:{of(t)+1280}\nds_read_b128 {vr(v2,4)}, v{b} offset:{of(t)+1920}\ns_mov_b64 exec, -1"
    def maxtree(s, m, first):
        if first:
            a(f"v_max3_f32 v{m}, v{s}, v{s+1}, v{s+2}\nv_max3_f32 v{m+1}, v{s+3}, v{s+4}, v{s+5}")
            for j in range(6, 14, 4): a(f"v_max3_f32 v{m}, v{s+j}, v{s+j+1}, v{m}\nv_max3_f32 v{m+1}, v{s+j+2}, v{s+j+3}, v{m+1}")
            a(f"v_max3_f32 v{m}, v{s+14}, v{s+15}, v{m}\nv_max_f32 v{m}, v{m}, v{m+1}")
        else:
            for j in range(0, 16, 2): a(f"v_max3_f32 v{m}, v{s+j}, v{s+j+1}, v{m}")
    def xhalf(m):
        a(f"v_mov_b32 v{m+1}, v{m}\ns_nop 1\nv_permlane32_swap_b32 v{m}, v{m+1}\ns_nop 0\nv_max_f32 v{m}, v{m}, v{m+1}")
    a(f"""
    s_cmp_lg_u32 s34, 1
    s_cbranch_scc1 ATT_NOSIG
    """)
    if opt("comb", 1):
        a(f"""
        v_mov_b32 v{T+3}, {LFB + 44}
        s_and_b32 s23, s15, -128
        s_mov_b64 exec, 1
        s_waitcnt vmcnt(0)
        ds_add_rtn_u32 v{T+3}, v{T+3}, v{T+2}
        s_waitcnt lgkmcnt(0)
        v_cmp_eq_u32 vcc, 3, v{T+3}
        s_cbranch_vccz ATT_NOSIG
        buffer_store_dwordx4 {vr(P,4)}, v{O}, s[28:31], s23 offen sc1
        """)
    else:
        a(f"s_waitcnt vmcnt(0)\ns_mov_b64 exec, 1\nbuffer_store_dword v{T+2}, v{O}, s[28:31], s15 offen sc1")
    a(f"""
ATT_NOSIG:
    s_mov_b64 exec, -1
    {st(4)}
    s_and_b32 s23, s34, s12
    s_cbranch_scc1 ATT_NOP
    s_barrier
ATT_NOP:
    s_setprio 3
    {st(6)}
    """)
    def e(s, j): return f"v_exp_f32 v{s+j}, v{s+j}"
    def c(s, j): return f"v_cvt_pk_bf16_f32 v{P+j}, v{s+2*j}, v{s+2*j+1}"
    if NQ == 2:
        def xk1(x): return f"v_mfma_f32_32x32x16_bf16 {vr(S[x],16)}, {vr(K1,4)}, {vr(QX1[x],4)}, 0"
        def xk2(x): return f"v_mfma_f32_32x32x8_bf16 {vr(S[x],16)}, {vr(K2,2)}, {vr(QX2[x],2)}, {vr(S[x],16)}"
        def xpv(x, v, p): return f"v_mfma_f32_32x32x16_bf16 {vr(OX[x],16)}, {vr(v,4)}, {vr(p,4)}, {vr(OX[x],16)}"
        def scale(x):
            for j in range(5): a(f"v_lshlrev_b32 v{TM+2*j}, 16, v{QX1[x]+j}\nv_and_b32 v{TM+2*j+1}, 0xffff0000, v{QX1[x]+j}")
            for j in range(10): a(f"v_mul_f32 v{TM+j}, {QSCALE:#x}, v{TM+j}")
            for j in range(5): a(f"v_cvt_pk_bf16_f32 v{QX1[x]+j}, v{TM+2*j}, v{TM+2*j+1}")
        MH = f32bits(-0.5 * (20 ** -0.5) * math.log2(math.e))
        a(f"""
        ds_read_b128 {vr(K1,4)}, v{U+2}
        ds_read_b32 v{K2}, v{U+3} offset:1024
        ds_read_b128 {vr(QX1[0],4)}, v{U} offset:{QLDS}
        ds_read_b32 v{QX2[0]}, v{U+1} offset:{QLDS+1024}
        ds_read_b128 {vr(Q1,4)}, v{T} offset:{QLDS}
        ds_read_b32 v{Q2}, v{T+1} offset:{QLDS+1024}
        {rdv(0, V2[0])}
        s_waitcnt lgkmcnt(4)
        {xk1(0)}
        {xk2(0)}
        s_waitcnt lgkmcnt(2)
        {xk1(1)}
        {xk2(1)}
        {rdk1(0)}
        {rdk2(0)}
        s_mov_b32 s26, 0
        """)
        scale(0)
        maxtree(S[0], T, True); xhalf(T)
        a(f"v_mul_f32 v{T}, {MH:#x}, v{T}\nv_cvt_pk_bf16_f32 v{QX2[0]+1}, v{T}, 0\ns_waitcnt lgkmcnt(0)\n{xk1(0)}\n{xk2(0)}")
        scale(1)
        maxtree(S[1], T, True); xhalf(T)
        a(f"""
        v_mul_f32 v{T}, {MH:#x}, v{T}
        v_cvt_pk_bf16_f32 v{Q2+1}, v{T}, 0
        buffer_store_dwordx4 {vr(P,4)}, v{OA1}, s[28:31], s6 offen sc1
        s_mov_b64 exec, 0xffff
        buffer_store_dwordx4 {vr(P,4)}, v{OA2}, s[28:31], s7 offen sc1
        s_mov_b64 exec, -1
        {st(7)}
ATT_LOOP:
        """)
        for i in range(4):
            for x in (0, 1):
                cur = S[x]; y = 1 - x; t_ = 2 * (i + 1)
                if x == 1: a("s_waitcnt lgkmcnt(0)")
                a(xk1(y))
                if x == 0: a(rdk1(t_))
                if x == 1 and i == 1: a(f"ds_write_b32 v{PA}, v{T+2}")
                for q in range(4): a(e(cur, q))
                a(xpv(y, V2[(i + 1) % 2] if x == 0 else V2[i % 2], P + 4))
                if x == 0: a("s_waitcnt lgkmcnt(1)")
                for q in range(4, 8): a(e(cur, q))
                a(c(cur, 0)); a(c(cur, 1))
                a(xk2(y))
                if x == 0: a(rdk2(t_))
                a(c(cur, 2)); a(c(cur, 3))
                for q in range(8, 12): a(e(cur, q))
                a(xpv(x, V1, P))
                if x == 1: a(rdv(t_, V2[(i + 1) % 2]))
                for q in range(12, 16): a(e(cur, q))
                for q in range(4, 8): a(c(cur, q))
    else:
        a(f"""
        ds_read_b128 {vr(Q1,4)}, v{T} offset:{QLDS}
        ds_read_b32 v{Q2}, v{T+1} offset:{QLDS+1024}
        {rdk1(0)}
        {rdk2(0)}
        {rdv(0, V2[0])}
        s_waitcnt lgkmcnt(2)
        {qk1(S[1])}
        {qk2(S[1])}
        """)
        for j in range(5): a(f"v_lshlrev_b32 v{S[0]+2*j}, 16, v{Q1+j}\nv_and_b32 v{S[0]+2*j+1}, 0xffff0000, v{Q1+j}")
        for j in range(10): a(f"v_mul_f32 v{S[0]+j}, {QSCALE:#x}, v{S[0]+j}")
        for j in range(5): a(f"v_cvt_pk_bf16_f32 v{Q1+j}, v{S[0]+2*j}, v{S[0]+2*j+1}")
        a(f"""
        s_nop 0
        {qk1(S[0])}
        {rdk1(1)}
        s_mov_b32 s26, 0
        """)
        maxtree(S[1], T, True); xhalf(T)
        a(f"""
        v_mul_f32 v{T}, {f32bits(-0.5 * (20 ** -0.5) * math.log2(math.e)):#x}, v{T}
        v_cvt_pk_bf16_f32 v{Q2+1}, v{T}, 0
        s_nop 1
        {qk2(S[0])}
        {rdk2(1)}
        buffer_store_dwordx4 {vr(P,4)}, v{OA1}, s[28:31], s6 offen sc1
        s_mov_b64 exec, 0xffff
        buffer_store_dwordx4 {vr(P,4)}, v{OA2}, s[28:31], s7 offen sc1
        s_mov_b64 exec, -1
        s_waitcnt lgkmcnt(0)
        {st(7)}
        s_nop 3
ATT_LOOP:
        """)
        for j in range(8):
            cur, nxt = S[j % 2], S[(j + 1) % 2]
            a("s_waitcnt lgkmcnt(2)")
            if opt('rev', 0): a(rk1(nxt)); a(rdk2(j + 2))
            else: a(qk1(nxt)); a(rdk1(j + 2))
            for q in range(4): a(e(cur, q))
            a(pv(V2[(j + 1) % 2], P + 4))
            a("s_waitcnt lgkmcnt(1)")
            if j == 2: a(f"ds_write_b32 v{PA}, v{T+2}")
            for q in range(4, 8): a(e(cur, q))
            a(c(cur, 0)); a(c(cur, 1))
            if opt('rev', 0): a(rk2(nxt)); a(rdk1(j + 2))
            else: a(qk2(nxt)); a(rdk2(j + 2))
            a(c(cur, 2)); a(c(cur, 3))
            for q in range(8, 12): a(e(cur, q))
            a(pv(V1, P)); a(rdv(j + 1, V2[(j + 1) % 2]))
            for q in range(12, 16): a(e(cur, q))
            for q in range(4, 8): a(c(cur, q))
    a(f"""
    s_add_u32 s26, s26, 1
    s_movk_i32 s27, 0x5000
    s_cmp_eq_u32 s26, 7
    s_cselect_b32 s27, {(0x5000 - 62 * 2560) & 0xffffffff}, s27
    v_add_u32 v{AK1}, 0x5000, v{AK1}
    v_add_u32 v{AK2}, 0x5000, v{AK2}
    v_add_u32 v{AV}, 0x5000, v{AV}
    v_add_u32 v{BK1}, s27, v{BK1}
    v_add_u32 v{BK2}, s27, v{BK2}
    v_add_u32 v{BV}, s27, v{BV}
    v_add_u32 v{T+2}, 1, v{T+2}
    s_bitcmp1_b32 s35, s26
    s_cbranch_scc0 ATT_LOOP
    s_cmp_gt_u32 s26, 2
    s_cbranch_scc1 ATT_EV
    v_add_u32 v{FA}, 8, v{FA}
    s_waitcnt vmcnt(0)
ATT_WAIT:
    ds_read_b32 v{T}, v{FA}
    s_waitcnt lgkmcnt(0)
    v_readfirstlane_b32 s23, v{T}
    s_cmp_ge_u32 s23, 4
    s_cbranch_scc1 ATT_LOOP
    s_sleep 1
    s_branch ATT_WAIT
ATT_EV:
    s_setprio 2
    s_cmp_eq_u32 s26, s32
    s_cbranch_scc1 ATT_LOOP
    s_setprio 1
    s_cmp_lt_u32 s26, 8
    s_cbranch_scc1 ATT_LOOP
    s_setprio 3
    {pv(V2[1], P+4)}
    {st(8)}
    """)
    if NQ == 2:
        a(f"""
ATT_X1:
        ds_read_b32 v{U}, v{U+4}
        s_mov_b32 s27, 0x3e800000
        s_mov_b32 s23, 0x71800000
        s_waitcnt lgkmcnt(0)
        v_cmp_gt_u32 vcc, s38, v{U}
        s_cbranch_vccnz ATT_X1
        """)
        for j in range(3): a(f"ds_write_b128 v{U+5}, {vr(OX[0]+4*j,4)} offset:{1024*j}")
        a(f"ds_write_b64 v{U+5}, {vr(OX[0]+12,2)} offset:3072\nds_write_b32 v{PA}, v{T+2} offset:96\nATT_X2:\nds_read_b32 v{U}, v{U+7} offset:96")
        for j in range(3): a(f"ds_read_b128 {vr(S[0]+4*j,4)}, v{U+6} offset:{1024*j}")
        a(f"ds_read_b64 {vr(S[0]+12,2)}, v{U+6} offset:3072\ns_waitcnt lgkmcnt(0)\nv_cmp_eq_u32 vcc, 0, v{U}\ns_cbranch_vccz ATT_X3\ns_sleep 1\ns_branch ATT_X2\nATT_X3:")
        for r in range(0, 14, 2): a(f"v_pk_add_f32 {vr(O+r,2)}, {vr(O+r,2)}, {vr(S[0]+r,2)}")
    else:
        a("s_mov_b32 s27, 0x3e800000\ns_mov_b32 s23, 0x71800000\ns_nop 9")
    a(f"v_rcp_f32 v{T+2}, v{O+12}\nv_add_f32 v{T}, |v{O}|, |v{O+1}|\nv_add_f32 v{T+1}, |v{O+2}|, |v{O+3}|")
    for j in range(4, 12, 2): a(f"v_add_f32 v{T}, |v{O+j}|, v{T}\nv_add_f32 v{T+1}, |v{O+j+1}|, v{T+1}")
    a(f"""
    v_add_f32 v{T}, v{T}, v{O+12}
    v_cmp_le_f32 s[42:43], s27, v{O+12}
    v_add_f32 v{T}, v{T}, v{T+1}
    v_cmp_gt_f32 vcc, s23, v{T}
    s_and_b64 vcc, vcc, s[42:43]
    s_cmp_eq_u64 vcc, -1
    s_cbranch_scc0 ATT_FALLBACK
ATT_FINISH:
    """)
    for j in range(8): a(f"v_mul_f32 v{O+j}, v{O+j}, v{T+2}")
    for j in range(4): a(f"v_cvt_pk_bf16_f32 v{P+j}, v{O+2*j}, v{O+2*j+1}")
    for j in range(4): a(f"v_min_u32 v{P+j}, -2, v{P+j}")
    a(f"buffer_store_dwordx4 {vr(P,4)}, v{OA1}, s[28:31], s6 offen sc1")
    for j in range(8, 12): a(f"v_mul_f32 v{O+j}, v{O+j}, v{T+2}")
    for j in range(4, 6): a(f"v_cvt_pk_bf16_f32 v{P+j}, v{O+2*j}, v{O+2*j+1}")
    for j in range(4, 6): a(f"v_min_u32 v{P+j}, -2, v{P+j}")
    a(f"""
    s_nop 1
    v_permlane16_swap_b32 v{P+4}, v{P+6}
    v_permlane16_swap_b32 v{P+5}, v{P+7}
    s_mov_b64 exec, 0xffff
    buffer_store_dwordx4 {vr(P+4,4)}, v{OA2}, s[28:31], s7 offen sc1
    {st(9)}
    s_cmp_ge_u32 s13, 4
    s_cbranch_scc1 {"L_DONE" if STAMP else "L_END"}
    s_mov_b64 exec, -1
    s_xor_b32 s41, s13, {opt('gx', 2)}
    s_mov_b32 s47, 1
    s_branch P3_GO
    """)
    def gk(): return f"buffer_load_dwordx4 {vr(K1,4)}, v{AK1}, s[28:31], s23 offen sc1\nbuffer_load_dword v{K2}, v{AK2}, s[28:31], s23 offen offset:1024 sc1"
    a(f"""
ATT_FALLBACK:
    s_waitcnt lgkmcnt(0)
    v_mov_b32 v{Q2+1}, 0
    v_mov_b32 v{T}, 0xff800000
    {f's_add_u32 s23, s37, {HS}' if NQ == 2 else f's_mov_b32 s23, {HS}'}
    v_subrev_u32 v{AK1}, s23, v{AK1}
    v_subrev_u32 v{AK2}, s23, v{AK2}
    v_subrev_u32 v{AV}, s23, v{AV}
    s_add_u32 s23, s14, {KV_OFF}
    s_mov_b32 s26, 0
ATT_FB1:
    {gk()}
    s_add_u32 s23, s23, 2560
    s_waitcnt vmcnt(0)
    {qk1(S[0])}
    {qk2(S[0])}
    s_nop 15
    """)
    maxtree(S[0], T, False)
    a("s_add_u32 s26, s26, 1\ns_cmp_lt_u32 s26, 64\ns_cbranch_scc1 ATT_FB1")
    xhalf(T)
    a(f"s_add_u32 s23, s14, {KV_OFF}\ns_mov_b32 s26, 0")
    for r in range(16): a(f"v_mov_b32 v{O+r}, 0")
    a(f"""
ATT_FB2:
    {gk()}
    s_mov_b64 exec, s[24:25]
    buffer_load_dwordx4 {vr(V1,4)}, v{AV}, s[28:31], s23 offen offset:1280 sc1
    buffer_load_dwordx4 {vr(V2[0],4)}, v{AV}, s[28:31], s23 offen offset:1920 sc1
    s_mov_b64 exec, -1
    s_add_u32 s23, s23, 2560
    s_waitcnt vmcnt(0)
    {qk1(S[0])}
    {qk2(S[0])}
    s_nop 15
    """)
    for q in range(16): a(f"v_sub_f32 v{S[0]+q}, v{S[0]+q}, v{T}")
    for q in range(16): a(e(S[0], q))
    a("s_nop 0")
    for q in range(8): a(c(S[0], q))
    a(f"""
    s_nop 1
    {pv(V1, P)}
    {pv(V2[0], P+4)}
    s_add_u32 s26, s26, 1
    s_cmp_lt_u32 s26, 64
    s_cbranch_scc1 ATT_FB2
    s_nop 15
    v_rcp_f32 v{T+2}, v{O+12}
    s_nop 0
    s_branch ATT_FINISH
    """)

def lwait(a, vaddr, vdat, mask, target, slp=8):
    u = a.uid()
    a(f"""
    s_mov_b64 exec, {mask}
    s_branch L_LWE{u}
L_LW{u}:
    s_sleep {slp}
L_LWE{u}:
    ds_read_b32 v{vdat}, v{vaddr}
    s_waitcnt lgkmcnt(0)
    v_cmp_gt_u32 vcc, {target}, v{vdat}
    s_cbranch_vccnz L_LW{u}
    s_mov_b64 exec, -1
    """)
def ladd(a, vaddr, vone, off):
    a(f"s_mov_b64 exec, 1\nds_add_u32 v{vaddr}, v{vone} offset:{off}\ns_mov_b64 exec, -1")

def helpers(a):
    WA, VG, VZ, SH, HPA, HONE, YFA, FZ, SG, XA5, LF = 112, 117, 118, 119, 120, 121, 122, 123, 124, 125, 126
    ZL = 40; G = 167; VY = 162; T = 132; LT = 127
    a(f"""
HELPER:
    s_mov_b32 s61, s22
    {st(2)}
    {srd(28, WS_P, WS_USED)}
    s_setprio 0
    s_lshr_b32 s20, s18, 2
    s_mul_i32 s26, s20, 160
    s_movk_i32 s23, {1280 - 160}
    """)
    for i in range(5):
        a(f"""
        v_add_u32 v{T}, {64*i}, v0
        v_mul_u32_u24 v{T+1}, 6554, v{T}
        v_lshrrev_b32 v{T+1}, 16, v{T+1}
        v_lshlrev_b32 v{T}, 4, v{T}
        v_mad_u32_u24 v{WA+i}, v{T+1}, s23, v{T}
        """)
    a(f"""
    s_lshl_b32 s21, s17, 3
    s_and_b32 s22, s18, 3
    s_add_u32 s21, s21, s22
    s_lshr_b32 s22, s16, 1
    s_lshl_b32 s22, s22, 2
    s_add_u32 s21, s21, s22
    s_lshl_b32 s21, s21, 1
    s_and_b32 s22, s16, 1
    s_add_u32 s21, s21, s22
    s_lshr_b32 s22, s21, 2
    s_lshl_b32 s22, s22, 1
    s_and_b32 s24, s21, 1
    s_add_u32 s22, s22, s24
    s_lshl_b32 s22, s22, 3
    v_and_b32 v{T}, 7, v0
    v_add_u32 v{T}, s22, v{T}
    s_bitcmp1_b32 s21, 1
    s_cselect_b32 s22, 0x400, 0
    s_cselect_b32 s24, -1, 1
    v_mul_lo_u32 v{T+1}, v{T}, s24
    s_sub_u32 s24, 0x800, s22
    v_sub_u32 v{T+2}, s24, v{T+1}
    v_add_u32 v{T+1}, s22, v{T+1}
    v_and_b32 v{T+3}, 8, v0
    v_cmp_ne_u32 vcc, 0, v{T+3}
    v_cmp_eq_u32 s[42:43], 0, v{T}
    v_lshlrev_b32 v{T+3}, 6, v{T+3}
    v_add_u32 v{T+3}, s22, v{T+3}
    v_cndmask_b32 v{T}, v{T+1}, v{T+2}, vcc
    v_lshrrev_b32 v{T+1}, 4, v0
    v_cndmask_b32 v{T}, v{T}, v{T+3}, s[42:43]
    v_mul_u32_u24 v{VY}, 1280, v{T}
    v_mul_u32_u24 v{T+2}, 40, v{T+1}
    v_add3_u32 v{VY}, v{VY}, v{T+2}, s26
    v_lshlrev_b32 v{VG}, 2, v{T}
    v_sub_u32 v{T+3}, 0x800, v{T}
    v_cmp_lt_u32 vcc, 0x400, v{T}
    v_min_u32 v{T}, v{T}, v{T+3}
    v_and_b32 v{T+3}, 1, v{T}
    v_mul_u32_u24 v{VZ}, {ZP}, v{T+3}
    v_lshrrev_b32 v{T+3}, 1, v{T}
    v_lshl_add_u32 v{VZ}, v{T+3}, 4, v{VZ}
    v_mov_b32 v{T+3}, 0x02020202
    v_cndmask_b32 v{SH}, 0, v{T+3}, vcc
    s_cmp_ge_u32 s20, 4
    s_mov_b32 s24, 0x05040100
    s_cselect_b32 s24, 0x07060302, s24
    s_cselect_b32 s40, -1, 1
    s_cselect_b32 s41, 155, 0
    v_xor_b32 v{SH}, s24, v{SH}
    s_mul_i32 s24, s20, 20
    v_mul_u32_u24 v{T+3}, 5, v{T+1}
    v_add_u32 v{T+3}, s24, v{T+3}
    v_mul_lo_u32 v{T+3}, v{T+3}, s40
    v_add_u32 v{T+3}, s41, v{T+3}
    v_mul_u32_u24 v{T+3}, {2*ZP}, v{T+3}
    v_add_u32 v{VZ}, v{VZ}, v{T+3}
    {p3_addr(0)}
    v_lshlrev_b32 v{HPA}, 2, v0
    v_add_u32 v{HPA}, {LFB}, v{HPA}
    v_mov_b32 v{HONE}, 1
    s_lshl_b32 s23, s2, 2
    s_add_u32 s23, s23, {FLG_OFF + 32768}
    v_mov_b32 v{YFA}, s23
    v_lshrrev_b32 v{FZ}, 4, v0
    v_mul_u32_u24 v{FZ}, {2*ZP}, v{FZ}
    v_and_b32 v{T}, 15, v0
    v_lshl_add_u32 v{FZ}, v{T}, 4, v{FZ}
    v_lshlrev_b32 v{SG}, 31, v0
    v_and_b32 v{XA5}, 48, v0
    v_lshlrev_b32 v{LF}, 7, v0
    v_bfe_u32 v{LT}, v0, 1, 2
    v_lshlrev_b32 v{LT}, 13, v{LT}
    v_and_b32 v{T}, 1, v0
    v_lshl_add_u32 v{LT}, v{T}, 7, v{LT}
    s_setprio 3
    s_lshr_b32 s19, s18, 3
    s_lshl_b32 s23, s17, 2
    s_add_u32 s19, s19, s23
    s_and_b32 s62, s18, 7
    s_mul_i32 s21, s19, {HG}
    v_lshlrev_b32 v1, 4, v0
    {st(3)}
    s_lshr_b32 s23, s19, 3
    s_lshl_b32 s23, s23, 13
    s_add_u32 s23, s23, {FLG_OFF}
    v_lshlrev_b32 v2, 7, v0
    v_add_u32 v2, s23, v2
    s_add_u32 s24, s21, {KV_OFF}
    s_lshl_b32 s40, 0x10000, s16
    s_lshl_b32 s41, 1, s16
    s_mul_i32 s22, s16, 10240
    s_add_u32 s26, s24, s22
    s_cmp_lg_u32 s16, 3
    s_cbranch_scc1 H_JA
    s_lshl_b32 s25, s62, 1
    s_lshl_b32 s40, 3, s25
    s_mov_b32 s41, 0
    s_mov_b32 s22, {QLDS}
    s_mul_i32 s26, s19, {HQ}
    s_mul_i32 s25, s62, 10240
    s_add_u32 s26, s26, s25
    s_add_u32 s26, s26, {Q_OFF}
H_JA:
    """)
    def job():
        r = f"s_add_u32 s25, s22, 5120\ns_cmp_ge_u32 s25, {LFB}\ns_cselect_b32 s25, 0, s25\n"
        for n in range(10):
            if n in (0, 3): r += f"s_add_u32 m0, s22, {1024*n}\ns_add_u32 s27, s26, {1024*n}\n"; o = 0
            if n in (5, 8): r += f"s_add_u32 m0, s25, {1024*(n-5)}\ns_add_u32 s27, s26, {1024*n}\n"; o = 0
            r += f"buffer_load_dwordx4 v1, s[28:31], s27 offen offset:{o} sc1 lds\n"; o += 1024
        return r
    if opt("latep", 1):
        a(f"s_mul_i32 s23, s12, 12\ns_cmp_eq_u32 s61, 3\ns_cselect_b32 s23, 12, s23\ns_add_u32 s23, s23, {LFB + 44}\nv_mov_b32 v3, s23")
        lwait(a, 3, 4, 1, 4, 2)
        if opt("lps", 0): a(f"s_sleep {opt('lps', 0)}")
    poll4(a, 2, 4, "s[40:41]")
    a(st(11)); a(job())
    a(f"""
    s_lshl_b32 s40, 0x80000, s16
    s_lshl_b32 s41, 8, s16
    s_add_u32 s22, s16, 3
    s_mul_i32 s22, s22, 10240
    s_add_u32 s26, s24, s22
    s_waitcnt vmcnt(0)
    {st(12)}
    s_barrier
    s_cmp_eq_u32 s16, 3
    s_cbranch_scc1 H_JB
    """)
    poll4(a, 2, 4, "s[40:41]")
    a(job())
    a(f"""
H_JB:
    s_lshl_b32 s41, 0x4440, s16
    s_and_b32 s41, s41, 0xffff
    s_lshl_b32 s40, s41, 16
    s_add_u32 s22, s16, 6
    s_mul_i32 s22, s22, 10240
    s_add_u32 s26, s24, s22
    s_waitcnt vmcnt(0)
    """)
    ladd(a, HPA, HONE, 64)
    lwait(a, HPA, 4, 0xff, 1)
    poll4(a, 2, 4, "s[40:41]", slp=8)
    a(f"{st(13)}\nH_JC:"); a(job())
    a(f"""
    s_add_u32 s22, s22, 40960
    s_add_u32 s26, s26, 40960
    s_cmp_lt_u32 s22, {HS}
    s_cbranch_scc1 H_JC
    s_waitcnt vmcnt(0)
    {st(4)}
    """)
    ladd(a, HPA, HONE, 72)
    a(f"""
    s_cmp_lt_u32 s16, 3
    s_cbranch_scc1 H_FNET
    """)
    a(f"""
    {srd(32, X_P, 2048*1280)}
    {srd(36, GATE_P, 1280)}
    v_lshrrev_b32 v2, 3, v0
    v_and_b32 v3, 7, v0
    v_lshlrev_b32 v3, 4, v3
    s_movk_i32 s22, 1280
    v_mad_u32_u24 v4, v2, s22, v3
    s_mul_i32 s23, s2, {8*1280}
    """)
    for j in range(10):
        a(f"buffer_load_dwordx4 {vr(24+8*j,4)}, v4, s[32:35], s23 offen offset:{128*j}")
        a(f"buffer_load_dwordx4 {vr(28+8*j,4)}, v3, s[36:39], 0 offen offset:{128*j}")
    a("v_mov_b32 v5, 0\nv_mov_b32 v6, 0\ns_waitcnt vmcnt(0)")
    for j in range(10):
        for q in range(4):
            a(f"v_dot2c_f32_bf16 v{5 + (q & 1)}, v{24+8*j+q}, v{28+8*j+q}")
    a(f"""
    s_nop 2
    v_add_f32 v5, v5, v6
    s_nop 1
    v_add_f32_dpp v5, v5, v5 quad_perm:[1,0,3,2] row_mask:0xf bank_mask:0xf
    s_nop 1
    v_add_f32_dpp v5, v5, v5 quad_perm:[2,3,0,1] row_mask:0xf bank_mask:0xf
    s_nop 1
    v_add_f32_dpp v5, v5, v5 row_half_mirror row_mask:0xf bank_mask:0xf
    v_mul_f32 v5, {f32bits(-math.log2(math.e)):#x}, v5
    v_exp_f32 v5, v5
    v_lshlrev_b32 v2, 2, v2
    v_add_f32 v5, 1.0, v5
    v_rcp_f32 v5, v5
    s_lshl_b32 s23, s2, 5
    s_add_u32 s23, s23, {G_OFF}
    buffer_store_dword v5, v2, s[28:31], s23 offen sc1
    s_branch H_MID
    """)
    C, SN, FB = 0, 8, 16
    a(f"""
H_FNET:
    {'s_branch H_MID' if opt('nofnet', 0) == 1 else ''}
    s_lshl_b32 s22, s16, 5
    s_add_u32 s22, s22, s18
    s_cmp_lt_u32 s22, 84
    s_cbranch_scc1 H_FN_A
    s_sub_u32 s24, s22, 84
    s_lshl_b32 s24, s24, 3
    s_add_u32 s24, s24, s17
    s_cmp_ge_u32 s24, 21
    s_cbranch_scc1 H_MID
    s_mov_b32 s23, 32
    s_branch H_FN_B
H_FN_A:
    s_mul_i32 s23, s22, 3121
    s_lshr_b32 s23, s23, 16
    s_mul_i32 s24, s23, 21
    s_sub_u32 s24, s22, s24
    s_lshl_b32 s23, s23, 3
    s_add_u32 s23, s23, s17
H_FN_B:
    s_and_b32 s25, s23, 1
    s_add_u32 s26, s24, 20
    s_cmp_eq_u32 s24, 20
    s_cselect_b32 s26, 20, s26
    s_mul_i32 s32, s24, 26
    s_lshr_b32 s32, s32, 8
    s_lshl_b32 s32, s32, 13
    s_add_u32 s32, s32, {48 * 128}
    s_mul_i32 s33, s26, 26
    s_lshr_b32 s33, s33, 8
    s_lshl_b32 s33, s33, 13
    s_add_u32 s33, s33, {32 * 128}
    s_and_b32 s34, s23, 31
    s_lshl_b32 s34, s34, 8
    s_mov_b64 exec, 0xffff
    v_add_u32 v2, s32, v{LF}
    s_mov_b32 exec_lo, 0xffff0000
    v_add_u32 v2, s33, v{LF}
    s_mov_b32 exec_lo, 0
    s_mov_b32 exec_hi, 0xff
    v_add_u32 v2, s34, v{LT}
    s_mov_b32 s40, -1
    s_movk_i32 s41, 0xff
    s_mov_b32 s27, {FLG_OFF}
    """)
    poll4(a, 2, 4, "s[40:41]", "s27", slp=8)
    a(st(14))
    a(f"""
    s_lshl_b32 s32, s23, 16
    s_add_u32 s32, s32, {TB_OFF}
    s_mul_i32 s27, s25, {FO_DELTA}
    s_add_u32 s27, s27, {FE_OFF}
    s_lshl_b32 s33, s24, 14
    s_add_u32 s33, s33, s27
    s_lshl_b32 s34, s26, 14
    s_add_u32 s34, s34, s27
    s_cmp_eq_u32 s25, 0
    s_cselect_b32 s35, s24, s26
    s_lshl_b32 s35, s35, 6
    s_add_u32 s35, s35, {X512_OFF}
    buffer_load_dwordx4 v[128:131], v{XA5}, s[28:31], s35 offen sc1
    """)
    def fl(j):
        r = FB + 24 * j
        s_ = f"buffer_load_dwordx4 {vr(r,4)}, v163, s[28:31], s33 offen offset:{1024*j} sc1\n"
        s_ += f"buffer_load_dwordx4 {vr(r+4,4)}, v163, s[28:31], s34 offen offset:{1024*j} sc1\n"
        for k in range(4): s_ += f"buffer_load_dwordx4 {vr(r+8+4*k,4)}, v163, s[28:31], s32 offen offset:{1024*k} sc1\n"
        s_ += "s_add_u32 s32, s32, 4096\n"
        if j == 3: s_ += "s_add_u32 s33, s33, 4096\ns_add_u32 s34, s34, 4096\n"
        return s_
    def fm(j):
        r = FB + 24 * j
        s_ = ""
        if opt("nofnet", 0) == 2: return s_
        for sub in range(2):
            s_ += f"v_mfma_f32_16x16x32_bf16 {vr(C+4*sub,4)}, {vr(r,4)}, {vr(r+8+8*sub,4)}, {vr(C+4*sub,4)}\n"
            s_ += f"v_mfma_f32_16x16x32_bf16 {vr(SN+4*sub,4)}, {vr(r+4,4)}, {vr(r+12+8*sub,4)}, {vr(SN+4*sub,4)}\n"
        return s_
    for j in range(4): a(fl(j))
    a(f"""
    s_cmp_eq_u32 s25, 0
    s_cselect_b32 s36, 1.0, 0
    s_cselect_b32 s37, 0, 1.0
    v_or_b32 v161, s37, v{SG}
    v_or_b32 v160, s36, v{SG}
    s_waitcnt vmcnt(24)
    """)
    for r in range(8): a(f"v_mul_f32 v{C+r}, v160, v{128 + r % 4}\nv_mul_f32 v{SN+r}, v161, v{128 + r % 4}")
    a("s_mov_b32 s38, 0\nH_FN_LOOP:")
    for j in range(4):
        a("s_waitcnt vmcnt(18)"); a(fm(j)); a(fl(j))
    a("s_add_u32 s38, s38, 1\ns_cmp_lt_u32 s38, 3\ns_cbranch_scc1 H_FN_LOOP")
    for j in range(4):
        a(f"s_waitcnt vmcnt({18-6*j})"); a(fm(j))
    a(f"""
    s_cmp_eq_u32 s26, 20
    s_cselect_b32 s44, 0xffff, 0
    s_mov_b32 s45, 0
    s_mul_i32 s26, s24, {8*ZP}
    s_mul_i32 s27, s25, {ZP}
    s_add_u32 s26, s26, s27
    s_lshr_b32 s27, s23, 1
    s_lshl_b32 s27, s27, 9
    s_add_u32 s26, s26, s27
    s_add_u32 s26, s26, {Y_OFF}
    v_cndmask_b32 v{SN}, v{SN}, 0, s[44:45]
    v_cndmask_b32 v{SN+4}, v{SN+4}, 0, s[44:45]
    """)
    for r in range(8):
        a(f"v_add_f32 v{16+r}, v{C+r}, v{SN+r}\nv_sub_f32 v{C+r}, v{C+r}, v{SN+r}")
    for r in range(8): a(f"v_cvt_pk_bf16_f32 v{16+r}, v{16+r}, v{C+r}")
    a(f"buffer_store_dwordx4 v[16:19], v{FZ}, s[28:31], s26 offen sc1\nbuffer_store_dwordx4 v[20:23], v{FZ}, s[28:31], s26 offen offset:256 sc1")
    a(f"""
H_MID:
    s_lshl_b32 s19, s17, 2
    s_and_b32 s20, s18, 3
    s_add_u32 s19, s19, s20
    s_lshr_b32 s20, s18, 2
    {srd(32, WO_P, 640*1280)}
    {srd(36, OUT_P, 2621440)}
    s_mul_i32 s26, s20, 160
    s_mul_i32 s27, s16, {160*1280}
    s_add_u32 s27, s27, s26
    s_movk_i32 s23, {1280 - 160}
    """)
    a(f"""
    s_add_u32 s25, s16, 1
    s_and_b32 s25, s25, 3
    s_mul_i32 s22, s25, 25600
    s_add_u32 s22, s22, {WOL}
    s_add_u32 s25, s25, 3
    s_waitcnt vmcnt(0)
    {st(5)}
    """)
    lwait(a, HPA, T + 1, 0xff, 2)
    a(f"""s_mov_b64 exec, 1
    ds_add_rtn_u32 v{T+1}, v{HPA}, v{HONE} offset:48
    s_waitcnt lgkmcnt(0)
    v_cmp_eq_u32 vcc, 3, v{T+1}
    s_cbranch_vccz H_NOY
    buffer_store_dword v{HONE}, v{YFA}, s[28:31], 0 offen sc1
H_NOY:
    s_mov_b64 exec, -1""")
    lwait(a, HPA, T + 1, 0xff, "s25")
    a(f"{st(6)}\ns_mov_b32 s25, 0\nH_WO:")
    for i in range(5):
        a(f"s_add_u32 m0, s22, {1024*i}\ns_nop 0\nbuffer_load_dwordx4 v{WA+i}, s[32:35], s27 offen lds")
    a(f"""
    s_add_u32 s22, s22, 5120
    s_add_u32 s27, s27, {32*1280}
    s_add_u32 s25, s25, 1
    s_cmp_lt_u32 s25, 5
    s_cbranch_scc1 H_WO
    s_cmp_lg_u32 s16, 3
    s_cbranch_scc1 H_YW
    """)
    lwait(a, HPA, T + 1, 0xff, opt("ypr", 5), 16)
    a(f"s_mov_b32 s27, {FLG_OFF + 32768}")
    poll4(a, VA, 4, "-1", "s27", slp=16)
    ladd(a, HPA, HONE, 40)
    a(f"H_YW:\nv_add_u32 v{T}, 40, v{HPA}")
    lwait(a, T, T + 1, 1, 1, 16)
    a("s_waitcnt vmcnt(0)")
    a(f"v_mov_b32 v{T}, 2")
    ladd(a, HPA, T, 32)
    a(f"{st(7)}\ns_mov_b32 s26, {Y_OFF}\ns_mov_b32 s27, {G_OFF}\nbuffer_load_dword v{G}, v{VG}, s[28:31], s27 offen sc1")
    for j in range(6):
        a(f"buffer_load_dwordx4 {vr(ZL+4*j,4)}, v{VZ}, s[28:31], s26 offen sc1\ns_add_u32 s26, s26, {2*ZP}")
    BF, OFR, ACC, YG = 0, 100, 120, 140
    VY2, G2 = 162, 167
    a(f"""
    s_waitcnt vmcnt(0)
    s_cmp_ge_u32 s20, 4
    s_cbranch_scc1 H_DESC
    """)
    for k in range(10): a(f"v_perm_b32 v{YG+10+k}, v{ZL+2*k+1}, v{ZL+2*k}, v{SH}")
    a("s_branch H_UNP\nH_DESC:")
    for k in range(10): a(f"v_perm_b32 v{YG+10+k}, v{ZL+19-2*k}, v{ZL+20-2*k}, v{SH}")
    a("H_UNP:")
    lwait(a, HPA, 8, 0xf, 8)
    a(f"""
    {st(8)}
    s_mov_b32 s41, s16
    s_mov_b32 s47, 0
P3_GO:
    s_setprio {opt('p3o', 0)}
    s_lshl_b32 s22, s17, 3
    s_and_b32 s23, s18, 3
    s_add_u32 s22, s22, s23
    s_lshl_b32 s22, s22, 1
    s_add_u32 s22, s22, s47
    s_mul_i32 s22, s22, 20480
    s_add_u32 s22, s22, {OF_OFF}
    s_lshl_b32 s44, s41, 12
    s_add_u32 s44, s44, s22
    s_lshl_b32 s45, s41, 10
    s_add_u32 s45, s45, s22
    s_add_u32 s45, s45, 16384
    s_lshl_b32 s46, s47, 2
    s_add_u32 s40, s46, {LFB + 80}
    s_add_u32 s46, s46, s41
    s_mul_i32 s46, s46, 5120
    s_add_u32 s46, s46, {WOL}
    s_mov_b32 s26, 0
    s_mov_b32 s42, 0
    v_mov_b32 v{CM}, {LFB + 32}
    """)
    lwait(a, CM, CT, 1, 8)
    a("P3_TRY:")
    for k in range(4):
        a(f"buffer_load_dwordx4 {vr(OFR+4*k,4)}, v{VA}, s[28:31], s44 offen offset:{1024*k} sc1")
    a(f"buffer_load_dwordx2 {vr(OFR+16,2)}, v{VT}, s[28:31], s45 offen sc1\nbuffer_load_dwordx2 {vr(OFR+18,2)}, v{VT}, s[28:31], s45 offen offset:128 sc1")
    a(f"""
    s_cmp_lg_u32 s26, 0
    s_cbranch_scc1 P3_CHK
    s_add_u32 s23, s41, 1
    s_and_b32 s23, s23, 3
    s_mul_i32 s23, s23, 25600
    s_add_u32 s23, s23, {WOL}
    v_add_u32 v{CM}, s23, v{BMM}
    v_add_u32 v{CT}, s23, v{BMT}
    """)
    for n in range(25):
        k, t = divmod(n, 5); d = BF + 4 * n
        bb, o, dj = (CM, k * 6400 + t * 8, 1280) if k < 4 else (CT, t * 8, 3200)
        a(f"ds_read_b64_tr_b16 {vr(d,2)}, v{bb} offset:{o}\nds_read_b64_tr_b16 {vr(d+2,2)}, v{bb} offset:{o+dj}")
    a(f"v_mov_b32 v{BMM}, {LFB + 36}\nv_mov_b32 v{BMT}, 1\ns_waitcnt lgkmcnt(0)")
    ladd(a, BMM, BMT, 0)
    b = OFR
    def mfs(k): return "\n".join(f"v_mfma_f32_16x16x32_bf16 {vr(ACC+4*t,4)}, {vr(BF+4*(5*k+t),4)}, {vr(OFR+4*k,4)}, {vr(ACC+4*t,4) if k else 0}" for t in range(5))
    if opt("spec", 1):
        a("P3_CHK:\ns_add_u32 s26, s26, 1\ns_mov_b32 s43, -1")
        for k in range(5):
            r = b + 4 * k
            a(f"""P3_C{k}:
            s_waitcnt vmcnt({max(0, 5 - k) if k < 4 else 0})
            v_max3_u32 v{CM}, v{r}, v{r+1}, v{r+2}
            v_max3_u32 v{CM}, v{r+3}, v{CM}, 1
            v_cmp_eq_u32 vcc, s43, v{CM}
            s_cbranch_vccnz P3_B{k}
            {mfs(k)}""")
        a(f"{'' if opt('fst', 0) else st(11)}\ns_branch P3_OK")
        for k in range(5):
            a(f"P3_B{k}:\ns_sleep {opt('p3s', 4)}")
            for kk in range(k, 4):
                a(f"buffer_load_dwordx4 {vr(OFR+4*kk,4)}, v{VA}, s[28:31], s44 offen offset:{1024*kk} sc1")
            a(f"buffer_load_dwordx2 {vr(OFR+16,2)}, v{VT}, s[28:31], s45 offen sc1\nbuffer_load_dwordx2 {vr(OFR+18,2)}, v{VT}, s[28:31], s45 offen offset:128 sc1")
            a(f"s_add_u32 s26, s26, 1\ns_cmp_lt_u32 s26, 0x40000\ns_cselect_b32 s43, -1, 0\ns_branch P3_C{k}")
        a("P3_OK:")
    else:
        a(f"P3_CHK:\ns_add_u32 s26, s26, 1\ns_waitcnt vmcnt(4)\nv_max3_u32 v{CM}, v{b}, v{b+1}, v{b+2}\nv_max3_u32 v{CT}, v{b+3}, v{b+4}, v{b+5}\nv_max3_u32 v{CM}, v{b+6}, v{b+7}, v{CM}\ns_waitcnt vmcnt(2)")
        a(f"v_max3_u32 v{CT}, v{b+8}, v{b+9}, v{CT}\nv_max3_u32 v{CM}, v{b+10}, v{b+11}, v{CM}\nv_max3_u32 v{CT}, v{b+12}, v{b+13}, v{CT}\nv_max3_u32 v{CM}, v{b+14}, v{b+15}, v{CM}\ns_waitcnt vmcnt(0)")
        a(f"""
    v_max3_u32 v{CT}, v{b+16}, v{b+17}, v{CT}
    v_max3_u32 v{CM}, v{b+18}, v{b+19}, v{CM}
    s_cmp_lt_u32 s26, 0x40000
    v_max_u32 v{CM}, v{CM}, v{CT}
    s_cbranch_scc0 P3_OK
    v_cmp_eq_u32 vcc, -1, v{CM}
    s_cbranch_vccz P3_OK
    s_sleep {opt("p3s", 4)}
    s_branch P3_TRY
P3_OK:
    {'' if opt('fst', 0) else st(11)}
    s_setprio {opt('p3p', 0)}
    """)
        for n in range(25):
            k, t = divmod(n, 5)
            a(f"v_mfma_f32_16x16x32_bf16 {vr(ACC+4*t,4)}, {vr(BF+4*n,4)}, {vr(OFR+4*k,4)}, {vr(ACC+4*t,4) if k else 0}")
    a("s_cmp_lg_u32 s42, 0\ns_cbranch_scc1 P3_WR")
    lwait(a, BMM, CT, 1, 8, 2)
    a(f"{str() if opt('fst', 0) else st(12)}\nP3_WR:\nv_add_u32 v{CM}, s46, v{VA}\nv_mov_b32 v{CT}, s40\ns_nop 1")
    for j in range(5): a(f"ds_write_b128 v{CM}, {vr(ACC+4*j,4)} offset:{1024*j}")
    a("s_waitcnt lgkmcnt(0)")
    ladd(a, CT, BMT, 0)
    a(f"""
    s_add_u32 s44, s44, {8*20480}
    s_add_u32 s45, s45, {8*20480}
    s_add_u32 s46, s46, {8*5120}
    s_add_u32 s40, s40, 8
    s_add_u32 s42, s42, 1
    s_cmp_ge_u32 s42, 2
    s_cbranch_scc1 P3_END
    s_cmp_ge_u32 s16, 4
    s_cbranch_scc1 P3_TRY
    """)
    for k in range(10): a(f"v_lshlrev_b32 v{YG+2*k}, 16, v{YG+10+k}\nv_and_b32 v{YG+2*k+1}, 0xffff0000, v{YG+10+k}")
    for k in range(20): a(f"v_mul_f32 v{YG+k}, v{YG+k}, v{G2}")
    a(f"""
    v_sub_f32 v{G2}, 1.0, v{G2}
    s_branch P3_TRY
P3_END:
    {st(10)}
    s_cmp_ge_u32 s16, 4
    s_cbranch_scc1 {"L_DONE" if STAMP else "L_END"}
    s_setprio 3
    s_lshl_b32 s23, s16, 2
    s_add_u32 s23, s23, {LFB + 80}
    v_mov_b32 v{CT}, s23
    s_mul_i32 s23, s16, 20480
    s_add_u32 s23, s23, {WOL}
    v_add_u32 v{CM}, s23, v{VA}
    """)
    lwait(a, CT, BMM, 1, 4, 1)
    a(st(9))
    for j in range(5):
        for g in range(4): a(f"ds_read_b128 {vr(16*j+4*g,4)}, v{CM} offset:{5120*g+1024*j}")
    for j in range(5):
        a(f"s_waitcnt lgkmcnt({min(15, 16-4*j)})")
        for r in (0, 2): a(f"v_pk_add_f32 {vr(16*j+r,2)}, {vr(16*j+r,2)}, {vr(16*j+4+r,2)}\nv_pk_add_f32 {vr(16*j+8+r,2)}, {vr(16*j+8+r,2)}, {vr(16*j+12+r,2)}")
        for r in (0, 2): a(f"v_pk_add_f32 {vr(16*j+r,2)}, {vr(16*j+r,2)}, {vr(16*j+8+r,2)}")
        for r in range(4): a(f"v_fmac_f32 v{YG+4*j+r}, v{16*j+r}, v{G2}")
        a(f"v_cvt_pk_bf16_f32 v{84+2*j}, v{YG+4*j}, v{YG+4*j+1}\nv_cvt_pk_bf16_f32 v{84+2*j+1}, v{YG+4*j+2}, v{YG+4*j+3}")
        if j == 1: a(f"buffer_store_dwordx4 v[84:87], v{VY2}, s[36:39], 0 offen" + OSC)
        if j == 3: a(f"buffer_store_dwordx4 v[88:91], v{VY2}, s[36:39], 0 offen offset:16" + OSC)
    a(f"buffer_store_dwordx2 v[92:93], v{VY2}, s[36:39], 0 offen offset:32" + OSC)

DOC = """;
"""
def main():
    a = A()
    top = open("cdna_kernels/" + NAME + ".s.ref").read().split("; Override launch")[0]
    top += "; @launch grid=(256,1,1) block=(768,1,1) lds=163840\n"
    top += DOC
    a('.amdgcn_target "amdgcn-amd-amdhsa--gfx950"\n.text')
    d = gen(a)
    open(sys.argv[1], "w").write(top + a.text() + '.section .rodata,"a"\n.p2align 6\n' + d)
if __name__ == "__main__":
    main()
```

```python
import sys, math, struct

OPT = dict(x.split("=") for x in sys.argv[2:])
def opt(k, d): return int(OPT.get(k, d))
NAME = "gated_mix__spectral_fnet__softmax_full_mha__prompt"
HS = 163840
KV_OFF = 0
HG = HS + opt('pad', 512)
HQ = 81920 + opt('pad', 512)
Q_OFF = 32 * HG
FE_OFF = Q_OFF + 32 * HQ
FO_DELTA = 655360
X512_OFF = FE_OFF + 2 * FO_DELTA
TB_OFF = X512_OFF + 4096
Y_OFF = TB_OFF + 33 * 65536
ZP = 8704
G_OFF = Y_OFF + 85 * 2 * ZP
OF_OFF = G_OFF + 8192
FLG_OFF = OF_OFF + 2621440
WS_USED = FLG_OFF + 320 * 128
XB = 102400
L_Y = 256
QLDS = 61440
RB0, RSL = 11264, 36864
LFB = 158720
WOL = 5120
AK1, AK2, AV, BK1, BK2, BV, OA1, OA2, ONES, PA, FA = range(152, 163)
VA, VT, BMM, BMT, CM, CT = 163, 164, 165, 166, 160, 161
PXB = 107520
def p3_addr(l):
    return f"""v_lshlrev_b32 v{VA}, 4, v{l}
    v_and_b32 v2, 7, v{l}
    v_bfe_u32 v4, v{l}, 3, 1
    v_lshrrev_b32 v3, 4, v{l}
    v_lshlrev_b32 v{VT}, 8, v3
    v_lshl_add_u32 v{VT}, v2, 4, v{VT}
    v_lshl_add_u32 v{VT}, v4, 3, v{VT}
    v_bfe_u32 v2, v{l}, 2, 2
    v_and_b32 v5, 3, v{l}
    v_mul_u32_u24 v5, 40, v5
    v_mul_u32_u24 v4, 40, v3
    v_add3_u32 v4, v4, v2, 16
    v_mul_u32_u24 v4, 160, v4
    v_add_u32 v{BMT}, v4, v5
    v_lshrrev_b32 v4, 1, v3
    v_mul_u32_u24 v4, 20, v4
    v_and_b32 v3, 1, v3
    v_lshl_add_u32 v4, v3, 2, v4
    v_add_u32 v4, v4, v2
    v_mul_u32_u24 v4, 160, v4
    v_add_u32 v{BMM}, v4, v5"""

def f32bits(x): return struct.unpack("<I", struct.pack("<f", x))[0]
QSCALE = f32bits((20 ** -0.5) * math.log2(math.e))
STAMP = opt("stamp", 0)
STAMP_OFF = 1 << 25
NST = 16

class A:
    def __init__(self): self.l = []; self.n = 0
    def __call__(self, s):
        for line in s.split("\n"):
            t = line.strip()
            if not t: continue
            self.l.append(t if t.endswith(":") or t.startswith(".") else "    " + t)
    def uid(self): self.n += 1; return self.n
    def text(self): return "\n".join(self.l) + "\n"

def vr(a, n): return f"v[{a}:{a+n-1}]" if n > 1 else f"v{a}"
def srd(lo, base, size):
    return f"s_mov_b32 s{lo}, s{base}\ns_mov_b32 s{lo+1}, s{base+1}\ns_mov_b32 s{lo+2}, {size}\ns_mov_b32 s{lo+3}, 0x20000"
OSC = " sc1" if opt("outsc1", 0) else ""
P1ST = opt("p1st", 0)
def st(i, p1=False):
    if not STAMP: return ""
    if P1ST and not p1 and 0 < i < 15 and i not in (4, 5): return ""
    if P1ST and not p1 and i in (4, 5): i += 8
    if p1 and not P1ST: return ""
    return f"{'s_memrealtime' if STAMP in (1, 3, 4) else 's_memtime'} s[{64+2*i}:{65+2*i}]"
def fin(): return "s_branch L_DONE" if STAMP else "s_endpgm"

X_P, WD_P, WQKV_P, WO_P, GATE_P, OUT_P, DBG_P, WS_P = 4, 8, 48, 50, 52, 54, 56, 58

def poll(a, vaddr, vdat, mask, target, sreg=60):
    u = a.uid()
    a(f"""
    s_mov_b64 exec, {mask}
    s_mov_b32 s{sreg}, 0
L_POLL{u}:
    buffer_load_dword v{vdat}, v{vaddr}, s[28:31], 0 offen sc1
    s_waitcnt vmcnt(0)
    v_cmp_gt_u32 vcc, {target}, v{vdat}
    s_cbranch_vccz L_POLLD{u}
    {'s_sleep 1' if opt('psleep', 0) else ''}
    s_add_u32 s{sreg}, s{sreg}, 1
    s_cmp_lt_u32 s{sreg}, 0x40000
    s_cbranch_scc1 L_POLL{u}
L_POLLD{u}:
    s_mov_b64 exec, -1
    """)

def poll4(a, vaddr, vdat, mask, soff="0", sreg=60, slp=None):
    u = a.uid()
    a(f"""
    s_mov_b64 exec, {mask}
    s_mov_b32 s{sreg}, 0
    s_branch L_POLLE{u}
L_POLL{u}:
    s_sleep {slp or opt("ps4", 2)}
L_POLLE{u}:
    buffer_load_dwordx4 {vr(vdat,4)}, v{vaddr}, s[28:31], {soff} offen sc1
    s_add_u32 s{sreg}, s{sreg}, 1
    s_waitcnt vmcnt(0)
    v_min3_u32 v{vdat}, v{vdat}, v{vdat+1}, v{vdat+2}
    s_cmp_lt_u32 s{sreg}, 0x40000
    v_min_u32 v{vdat}, v{vdat}, v{vdat+3}
    s_cbranch_scc0 L_POLLD{u}
    v_cmp_eq_u32 vcc, 0, v{vdat}
    s_cbranch_vccnz L_POLL{u}
L_POLLD{u}:
    s_mov_b64 exec, -1
    """)

def gen(a):
    label = NAME + "_kernel"
    a(f".p2align 8\n.globl {label}\n.type {label},@function\n{label}:")
    a(f"""
    s_cmp_ge_u32 s2, 256
    s_cbranch_scc1 L_END
    {st(0) + chr(10) + 's_waitcnt lgkmcnt(0)' if opt("st0first", 0) else ''}
    s_load_dwordx2 s[4:5], s[0:1], 0
    s_load_dwordx8 s[48:55], s[0:1], 48
    s_load_dwordx4 s[8:11], s[0:1], 24
    s_load_dwordx4 s[56:59], s[0:1], 80
    """)
    if STAMP:
        a("\n".join(f"s_mov_b32 s{64+j}, 0" for j in range(2, 2 * NST)) + "\n" + ("" if opt("st0first", 0) else st(0)))
    a(f"""
    v_lshrrev_b32 v1, 6, v0
    v_and_b32 v0, 63, v0
    s_and_b32 s17, s2, 7
    v_readfirstlane_b32 s16, v1
    s_lshr_b32 s18, s2, 3
    s_and_b32 s19, s18, 7
    s_lshr_b32 s22, s18, 3
    s_and_b32 s21, s17, 1
    s_lshl_b32 s23, s19, 1
    s_add_u32 s21, s21, s23
    s_lshr_b32 s20, s17, 1
    s_cmp_ge_u32 s19, {opt("numl", 3)}
    s_cselect_b32 s12, 1, 0
    s_cmp_eq_u32 s22, 0
    s_cselect_b32 s12, 0, s12
    s_cmp_ge_u32 s16, 4
    s_cbranch_scc1 P1_NOTLOADER
    """)
    p1_loader(a)
    a(f"""
P1_NOTLOADER:
    s_lshl_b32 s63, s17, 2
    s_add_u32 s63, s63, s22
    s_mul_i32 s14, s63, {HG}
    s_sub_u32 s13, s16, 4
    s_lshl_b32 s23, s19, 3
    s_add_u32 s23, s23, s13
    s_mul_i32 s23, s23, 40960
    s_add_u32 s23, s23, {OF_OFF}
    s_lshl_b32 s6, s63, 9
    s_add_u32 s6, s6, s23
    s_lshl_b32 s7, s63, 7
    s_add_u32 s7, s7, s23
    s_add_u32 s7, s7, 16384
    s_lshl_b32 s15, s20, 2
    s_add_u32 s15, s15, s22
    s_lshl_b32 s15, s15, 4
    s_add_u32 s15, s15, s21
    s_lshl_b32 s15, s15, 5
    s_add_u32 s15, s15, s13
    s_lshl_b32 s15, s15, 2
    s_add_u32 s15, s15, {FLG_OFF}
    v_and_b32 v1, 31, v0
    v_lshrrev_b32 v2, 5, v0
    v_lshlrev_b32 v{AK1}, 4, v0
    v_lshrrev_b32 v3, 4, v1
    v_lshl_add_u32 v3, v3, 1, v2
    v_and_b32 v4, 15, v0
    v_lshl_add_u32 v3, v4, 2, v3
    v_lshlrev_b32 v{AK2}, 2, v3
    v_mul_u32_u24 v{AV}, 384, v2
    v_lshlrev_b32 v3, 6, v2
    v_cmp_gt_u32 vcc, 16, v1
    s_nop 1
    v_cndmask_b32 v{AV}, v3, v{AV}, vcc
    v_lshl_add_u32 v{AV}, v1, 4, v{AV}
    v_add_u32 v{BK1}, 15360, v{AK1}
    v_add_u32 v{BK2}, 15360, v{AK2}
    v_add_u32 v{BV}, 15360, v{AV}
    v_and_b32 v3, 27, v1
    v_cmp_eq_u32 vcc, 24, v3
    v_mov_b32 v3, 0x3f803f80
    v_bfe_u32 v{OA2}, v1, 3, 1
    v_cndmask_b32 v{ONES}, 0, v3, vcc
    v_mul_u32_u24 v{OA2}, 20480, v{OA2}
    v_and_b32 v3, 7, v1
    v_lshl_add_u32 v{OA2}, v3, 4, v{OA2}
    v_lshrrev_b32 v3, 4, v0
    v_lshl_add_u32 v{OA1}, v3, 7, v{OA2}
    s_lshl_b32 s23, s13, 2
    s_add_u32 s23, s23, {LFB}
    v_mov_b32 v{PA}, s23
    v_mov_b32 v{FA}, {LFB + 56}
    {p3_addr(0)}
    s_cmp_ge_u32 s16, 8
    s_cbranch_scc1 P1_EXTRA
    """)
    p1_compute(a)
    p1_extra(a)
    attention(a)
    helpers(a)
    a("L_DONE:")
    if STAMP == 4:
        i_, j_ = opt("ai", 0), opt("aj", 0)
        a(f"""s_waitcnt vmcnt(0)
        {st(NST-1)}
        s_waitcnt lgkmcnt(0)
        {f's_cmp_lg_u32 s16, {opt("aw1", 0)}' if opt("aw1", 0) else f's_cmp_ge_u32 s16, {opt("aw", 4)}'}
        s_cbranch_scc1 L_END
        s_and_b32 s60, s2, {opt("am", 31)}
        s_cmp_lg_u32 s60, {opt("av", 5)}
        s_cbranch_scc1 L_END
        s_sub_u32 s60, s{64+2*j_}, s{64+2*i_}
        s_lshl_b32 s60, s60, 2
        s_min_u32 s60, s60, 100000
        {f's_mov_b32 s60, {opt("fix", 0)}' if opt("fix", 0) else ''}
L_AMP:
        s_memrealtime s[44:45]
        s_waitcnt lgkmcnt(0)
        s_sub_u32 s44, s44, s{64 if opt("fix", 0) else 64+2*(NST-1)}
        s_cmp_lt_u32 s44, s60
        s_cbranch_scc1 L_AMP
        """)
    elif STAMP == 3:
        r = f"s_waitcnt vmcnt(0)\n{st(NST-1)}\ns_mov_b64 exec, 1\n{srd(44, DBG_P, 256)}\ns_waitcnt lgkmcnt(0)\nv_mov_b32 v16, 0\n"
        r += "s_not_b32 s60, s64\nv_mov_b32 v0, s60\nbuffer_atomic_umax v0, v16, s[44:47], 0 offen offset:4 sc1\n"
        r += "s_cmp_eq_u32 s16, 0\ns_cbranch_scc1 L_D0\ns_cmp_eq_u32 s16, 4\ns_cbranch_scc0 L_END\n"
        for n, i in enumerate((2, 3, 4, 5, 7, 8, 9)): r += f"v_mov_b32 v{n+1}, s{64+2*i}\nbuffer_atomic_umax v{n+1}, v16, s[44:47], 0 offen offset:{8+4*n} sc1\n"
        r += "s_endpgm\nL_D0:\n"
        for n, i in enumerate((0, 1, 6, 8, 9, 10, 15)): r += f"v_mov_b32 v{n+1}, s{64+2*i}\nbuffer_atomic_umax v{n+1}, v16, s[44:47], 0 offen offset:{36+4*n} sc1\n"
        a(r)
    elif STAMP:
        r = f"s_waitcnt vmcnt(0)\n{st(NST-1)}\ns_mov_b64 exec, 1\ns_add_u32 s44, s{WS_P}, {STAMP_OFF}\ns_addc_u32 s45, s{WS_P+1}, 0\ns_mov_b32 s46, 262144\ns_mov_b32 s47, 0x20000\n"
        r += "s_lshl_b32 s60, s2, 4\ns_add_u32 s60, s60, s16\ns_lshl_b32 s60, s60, 6\ns_waitcnt lgkmcnt(0)\nv_mov_b32 v16, 0\n"
        if opt("xcc", 0): r += "s_getreg_b32 s66, hwreg(HW_REG_XCC_ID)\ns_add_u32 s66, s66, 100\n"
        for i in range(NST): r += f"v_mov_b32 v{i}, s{64+2*i}\n"
        for i in range(4): r += f"buffer_store_dwordx4 v[{4*i}:{4*i+3}], v16, s[44:47], s60 offen offset:{16*i}\n"
        a(r)
    a("L_END:\ns_endpgm\n.fill 256, 4, 0xbf810000\nL_CODE_END:")
    return f""".amdhsa_kernel {label}
  .amdhsa_next_free_vgpr 168
  .amdhsa_next_free_sgpr {100 if STAMP else 64}
  .amdhsa_accum_offset 168
  .amdhsa_group_segment_fixed_size 0
  .amdhsa_kernarg_size 96
  .amdhsa_user_sgpr_count 2
  .amdhsa_user_sgpr_kernarg_segment_ptr 1
  .amdhsa_system_sgpr_workgroup_id_x 1
.end_amdhsa_kernel
"""

def p1_loader(a):
    a(f"""
    s_setprio 3
    """)
    if opt("pf", 0):
        a(f"""
        v_lshlrev_b32 v20, 4, v0
        s_mul_i32 s23, s2, 10240
        s_and_b32 s24, s16, 1
        s_mul_i32 s24, s24, 5120
        s_add_u32 s23, s23, s24
        s_mul_i32 s25, s2, 3
        s_mov_b32 s31, 0x20000
        s_mov_b32 s35, 0x20000
        s_mov_b32 s34, {640*1280}
        s_waitcnt lgkmcnt(0)
        s_mov_b32 s30, {2048*1280}
        s_cmp_lt_u32 s16, 2
        s_cselect_b32 s28, s{X_P}, s{WQKV_P}
        s_cselect_b32 s29, s{X_P+1}, s{WQKV_P+1}
        s_cselect_b32 s30, s30, {640*3840}
        s_cselect_b32 s32, s8, s10
        s_cselect_b32 s33, s9, s11
        buffer_load_dwordx4 v[24:27], v20, s[28:31], s23 offen
        buffer_load_dwordx4 v[28:31], v20, s[28:31], s23 offen offset:1024
        buffer_load_dwordx4 v[32:35], v20, s[28:31], s23 offen offset:2048
        buffer_load_dwordx4 v[36:39], v20, s[28:31], s23 offen offset:3072
        s_add_u32 s23, s23, 4096
        buffer_load_dwordx4 v[40:43], v20, s[28:31], s23 offen
        s_lshr_b32 s24, s24, 11
        s_add_u32 s25, s25, s24
        s_mul_i32 s25, s25, 1280
        s_mov_b32 exec_hi, 0xff
        buffer_load_dwordx4 v[44:47], v20, s[32:35], s25 offen
        s_bitcmp1_b32 s16, 0
        s_cbranch_scc1 P1_PF1
        buffer_load_dwordx4 v[48:51], v20, s[32:35], s25 offen offset:1280
P1_PF1:
        s_mov_b32 exec_hi, -1
        """)
    a(f"""
    v_lshrrev_b32 v2, 3, v0
    v_and_b32 v3, 7, v0
    v_lshrrev_b32 v4, 4, v0
    v_xor_b32 v3, v3, v4
    v_lshlrev_b32 v3, 4, v3
    v_xor_b32 v4, 64, v3
    s_lshl_b32 s23, s21, 5
    s_lshr_b32 s24, s16, 1
    s_lshl_b32 s24, s24, 4
    s_add_u32 s23, s23, s24
    v_add_u32 v9, s23, v2
    s_bitcmp1_b32 s16, 0
    s_cselect_b32 s23, -1, 1
    s_cselect_b32 s24, 0x400, 0
    s_cselect_b32 s25, -8, 8
    v_mul_lo_u32 v10, v9, s23
    s_sub_u32 s27, 0x800, s24
    v_add_u32 v5, s24, v10
    v_sub_u32 v7, s27, v10
    v_add_u32 v6, s25, v5
    v_subrev_u32 v8, s25, v7
    v_cmp_eq_u32 vcc, 0, v9
    s_add_u32 s24, s24, 0x200
    v_mov_b32 v9, s24
    s_cmp_lg_u32 s22, 2
    v_cndmask_b32 v7, v7, v9, vcc
    s_cbranch_scc1 P1_LD_NV
    v_swap_b32 v6, v7
P1_LD_NV:
    s_movk_i32 s27, 1280
    v_mad_u32_u24 v10, v5, s27, v3
    v_mad_u32_u24 v11, v6, s27, v4
    v_mad_u32_u24 v12, v7, s27, v3
    v_mad_u32_u24 v13, v8, s27, v4
    """)
    EX = opt("early", 1) and opt("stag1", 7) == 7
    if EX:
        a(f"""
        s_lshr_b32 s36, s17, 1
        s_xor_b32 s36, s36, s17
        s_and_b32 s36, s36, 1
        s_xor_b32 s36, s36, 9
        s_lshl_b32 s41, s36, 7
        s_lshl_b32 s44, s16, 12
        s_add_u32 m0, s44, {RB0 + 2 * RSL}
        s_waitcnt lgkmcnt(0)
        {srd(28, X_P, 2048*1280)}
        buffer_load_dwordx4 v10, s[28:31], s41 offen lds
        """)
        for i in range(1, 4):
            a(f"s_add_u32 m0, s44, {RB0 + 2 * RSL + 1024*i}\ns_nop 0\nbuffer_load_dwordx4 v{10+i}, s[28:31], s41 offen lds")
    a(f"""
    s_lshl_b32 s26, s22, 2
    s_add_u32 s26, s26, s20
    s_and_b32 s27, s20, 1
    s_movk_i32 s25, 3840
    s_cmp_eq_u32 s22, 3
    s_cselect_b32 s25, 1280, s25
    s_cselect_b32 s26, s27, s26
    s_mul_i32 s26, s26, 320
    s_lshl_b32 s27, s16, 4
    s_mul_i32 s27, s27, s25
    s_add_u32 s26, s26, s27
    s_sub_u32 s27, s25, 320
    """)
    for i in range(5):
        a(f"""
        v_add_u32 v5, {64*i}, v0
        v_mul_u32_u24 v6, 3277, v5
        v_lshrrev_b32 v6, 16, v6
        v_lshrrev_b32 v7, 2, v6
        v_and_b32 v7, 2, v7
        v_xor_b32 v5, v5, v7
        v_lshl_add_u32 v5, v5, 4, s26
        v_mad_u32_u24 v{14+i}, v6, s27, v5
        """)
    sg = opt("stag1", 7)
    if sg == 1:
        a("s_lshl_b32 s36, s19, 3\ns_lshl_b32 s37, s22, 4\ns_add_u32 s36, s36, s37\ns_add_u32 s36, s36, s17\ns_and_b32 s36, s36, 63\ns_mul_i32 s36, s36, 10\ns_lshr_b32 s36, s36, 6")
    elif sg == 2:
        a("s_add_u32 s36, s19, s22\ns_lshl_b32 s36, s36, 4\ns_add_u32 s36, s36, s17\ns_add_u32 s36, s36, s17\ns_and_b32 s36, s36, 63\ns_mul_i32 s36, s36, 10\ns_lshr_b32 s36, s36, 6")
    elif sg == 3:
        a("s_add_u32 s36, s19, s22\ns_lshl_b32 s36, s36, 5\ns_lshl_b32 s37, s17, 2\ns_add_u32 s36, s36, s37\ns_and_b32 s36, s36, 63\ns_mul_i32 s36, s36, 10\ns_lshr_b32 s36, s36, 6")
    elif sg >= 10:
        nc = sg - 9
        Gn = 5 - nc
        rot = [2 * (nc + k % Gn) for k in range(2 * Gn - 1)]
        rv = sum(v << (4 * k) for k, v in enumerate(rot))
        com = sum((2 * k) << (4 * k) for k in range(nc))
        a(f"""
        s_lshr_b32 s36, s17, 1
        s_xor_b32 s36, s36, s17
        s_and_b32 s36, s36, 1
        s_add_u32 s37, s22, s19
        s_lshr_b32 s46, s17, 2
        s_lshl_b32 s46, s46, {opt("xsh", 1)}
        s_add_u32 s37, s37, s46
        s_mul_i32 s46, s37, {256 // Gn + 1}
        s_lshr_b32 s46, s46, 8
        s_mul_i32 s46, s46, {Gn}
        s_sub_u32 s37, s37, s46
        s_lshl_b32 s37, s37, 2
        s_lshr_b32 s46, {rv:#x}, s37
        s_and_b32 s46, s46, {(1 << (4 * Gn)) - 1:#x}
        s_lshl_b32 s46, s46, {4 * nc}
        s_or_b32 s46, s46, {0x53100000 | com:#x}
        s_mov_b32 s47, 0x97
        s_mul_i32 s37, s36, 0x11111111
        s_xor_b32 s46, s46, s37
        s_xor_b32 s47, s47, s37
        s_and_b32 s36, s46, 15
        """)
    elif sg >= 5:
        tsh = {5: 0, 6: 1, 7: 0, 8: 0, 9: 0}[sg]
        a(f"""
        s_lshr_b32 s36, s17, 1
        s_xor_b32 s36, s36, s17
        s_and_b32 s36, s36, 1
        {'s_min_u32 s37, s22, 2' if sg == 9 else f's_lshr_b32 s37, s22, {tsh}'}
        s_add_u32 s37, s37, s19
        s_lshr_b32 s46, s17, 2
        s_lshl_b32 s46, s46, 1
        s_add_u32 s37, s37, s46
        s_mul_i32 s46, s37, 52
        s_lshr_b32 s46, s46, 8
        s_mul_i32 s46, s46, 5
        s_sub_u32 s37, s37, s46
        s_lshl_b32 s37, s37, 2
        s_mov_b32 s46, 0x42086420
        s_mov_b32 s47, 0x6
        s_lshr_b64 s[46:47], s[46:47], s37
        s_and_b32 s46, s46, 0xfffff
        {'s_or_b32 s47, s46, 0x11111' + chr(10) + 's_lshl_b32 s37, s47, 20' + chr(10) + 's_or_b32 s46, s46, s37' + chr(10) + 's_lshr_b32 s47, s47, 12' if sg == 8 else 's_or_b32 s46, s46, 0x53100000' + chr(10) + 's_mov_b32 s47, 0x97'}
        s_mul_i32 s37, s36, 0x11111111
        s_xor_b32 s46, s46, s37
        s_xor_b32 s47, s47, s37
        """)
        if sg == 7:
            a("s_lshr_b32 s37, s47, 4\ns_and_b32 s37, s37, 15\ns_lshl_b64 s[46:47], s[46:47], 4\ns_or_b32 s46, s46, s37")
        a("s_and_b32 s36, s46, 15")
    else:
        a("s_mov_b32 s36, 0")
    a(f"""
    s_lshl_b32 s38, s16, 12
    s_add_u32 s38, s38, {RB0}
    s_mul_i32 s39, s16, 5120
    s_add_u32 s39, s39, {RB0 + 16384}
    s_mov_b32 s40, 0
    s_mul_i32 s34, s25, 640
    s_lshl_b32 s25, s25, 6
    s_mov_b32 s35, 0x20000
    s_waitcnt lgkmcnt(0)
    {srd(28, X_P, 2048*1280)}
    s_cmp_lt_u32 s20, 2
    s_cselect_b32 s32, s8, s10
    s_cselect_b32 s33, s9, s11
    s_cmp_eq_u32 s22, 3
    s_cselect_b32 s32, s32, s{WQKV_P}
    s_cselect_b32 s33, s33, s{WQKV_P+1}
    {st(1)}
    """)
    if opt("dftdelay", 0):
        a(f"""s_cmp_lg_u32 s22, 3
        s_cbranch_scc1 P1_LD_LOOP
        s_memrealtime s[42:43]
        s_waitcnt lgkmcnt(0)
        s_add_u32 s42, s42, {opt("dftdelay", 0)}
P1_DLY:
        s_memrealtime s[44:45]
        s_waitcnt lgkmcnt(0)
        s_cmp_lt_u32 s44, s42
        s_cbranch_scc1 P1_DLY
        """)
    a(f"""
P1_LD_LOOP:
    s_lshl_b32 s41, s36, 7
    s_mul_i32 s42, s36, s25
    s_add_u32 s43, s40, 2
    s_and_b32 s43, s43, 3
    s_mul_i32 s43, s43, {RSL}
    s_add_u32 s44, s43, s38
    s_add_u32 s45, s43, s39
    """)
    if EX: a("s_cmp_eq_u32 s40, 0\ns_cbranch_scc1 P1_LD_WW")
    for i in range(4):
        a(f"s_add_u32 m0, s44, {1024*i}\ns_nop 0\nbuffer_load_dwordx4 v{10+i}, s[28:31], s41 offen lds")
    a("P1_LD_WW:")
    for i in range(5):
        a(f"s_add_u32 m0, s45, {1024*i}\ns_nop 0\nbuffer_load_dwordx4 v{14+i}, s[32:35], s42 offen lds")
    if opt("noload", 0): a("s_cmp_ge_u32 s40, 3\ns_cselect_b32 s30, 0, s30\ns_cselect_b32 s34, 0, s34")
    a(f"""
    {'s_lshr_b64 s[46:47], s[46:47], 4' + chr(10) + 's_and_b32 s36, s46, 15' if sg >= 5 else 's_add_u32 s36, s36, 1' + chr(10) + 's_cmp_eq_u32 s36, 10' + chr(10) + 's_cselect_b32 s36, 0, s36'}
    s_add_u32 s40, s40, 1
    s_cmp_eq_u32 s40, 1
    s_cbranch_scc1 P1_LD_LOOP
    s_waitcnt vmcnt(9)
    s_barrier
    s_cmp_lt_u32 s40, 10
    s_cbranch_scc1 P1_LD_LOOP
    s_waitcnt vmcnt(0)
    s_barrier
    s_branch HELPER
    """)

def p1_compute(a):
    X = 80; W = [96, 116]; XA = 136; WA = 137; CX = 142; CW = 144; PC = 149; L = 150; TT = 96
    def acc(b, T): return 20 * b + 4 * T
    a(f"""
    s_sub_u32 s61, s16, 4
    s_and_b32 s36, s61, 1
    s_lshr_b32 s37, s61, 1
    v_mov_b32 v{L}, v0
    v_and_b32 v1, 15, v0
    v_lshrrev_b32 v2, 4, v0
    v_lshrrev_b32 v3, 1, v1
    v_xor_b32 v3, v3, v2
    v_lshlrev_b32 v3, 4, v3
    v_lshl_add_u32 v3, v1, 7, v3
    s_lshl_b32 s23, s36, 13
    s_add_u32 s23, s23, {RB0}
    v_add_u32 v{XA}, s23, v3
    v_bfe_u32 v3, v0, 2, 2
    v_lshl_add_u32 v3, v2, 3, v3
    v_mul_u32_u24 v3, 320, v3
    v_add_u32 v3, {RB0 + 16384}, v3
    v_and_b32 v4, 16, v0
    v_lshlrev_b32 v4, 1, v4
    v_and_b32 v5, 3, v0
    s_mul_i32 s23, s37, 160
    v_lshl_add_u32 v6, v5, 3, s23
    """)
    for T in range(4):
        a(f"v_xor_b32 v7, v6, v4\nv_add_u32 v{WA+T}, v7, v3\nv_add_u32 v6, 40, v6")
    a(f"""
    v_mul_u32_u24 v6, 40, v5
    v_add3_u32 v6, v6, s23, 32
    v_xor_b32 v7, v6, v4
    v_add_u32 v{WA+4}, v7, v3
    v_mov_b32 v{PC}, 0xbf803f80
    s_lshl_b32 s26, s22, 2
    s_add_u32 s26, s26, s20
    s_lshl_b32 s26, s26, 1
    s_add_u32 s26, s26, s37
    s_cmp_eq_u32 s26, 28
    s_cselect_b32 s24, 0x10001, 0
    s_mov_b32 s25, s24
    s_cmp_eq_u32 s22, 3
    s_cselect_b32 s43, 10, 8
    s_mov_b32 s40, 0
    s_mov_b32 s42, {2 * RSL}
    """)
    for r in range(96): a(f"v_mov_b32 v{r}, 0")
    for r in range(20): a(f"v_mov_b32 v{W[1]+r}, 0")
    a(f"v_add_u32 v{CX}, s42, v{XA}")
    for T in range(5): a(f"v_add_u32 v{CW+T}, s42, v{WA+T}")
    a(f"s_waitcnt lgkmcnt(0)\n{srd(28, WS_P, WS_USED)}")
    a(f"s_setprio {opt('cp', 2)}\ns_cmp_ge_u32 s22, 2\ns_cbranch_scc1 P1_PRE_V")
    def mf(b, T, x, w, qk):
        d = vr(acc(b, T), 4)
        return f"v_mfma_f32_16x16x32_bf16 {d}, {vr(w,4)}, {vr(x,4)}, {d}" if qk else f"v_mfma_f32_16x16x32_bf16 {d}, {vr(x,4)}, {vr(w,4)}, {d}"
    def rdw(d, T, step): return [f"ds_read_b64_tr_b16 {vr(d+2*j,2)}, v{CW+T} offset:{(step // 2) * RSL + (step % 2) * 10240 + 1280 * j}" for j in range(2)]
    def rdx(d, b, step): return f"ds_read_b128 {vr(d,4)}, v{CX + step % 2} offset:{(step // 2) * RSL + 2048 * b}"
    TO = (1, 2, 3, 4, 0)
    def group(step, qk, reads=True, patch=True):
        cur = W[1 - step]; nxt = W[step]
        rq = []
        for T in TO: rq += rdw(nxt + 4 * T, T, step)
        fill = []
        if step == 1:
            fill = ["s_add_u32 s40, s40, 1", "s_add_u32 s41, s40, 2", "s_and_b32 s41, s41, 3", f"s_mul_i32 s42, s41, {RSL}", f"v_add_u32 v{CX}, s42, v{XA}"] + [f"v_add_u32 v{CW+T}, s42, v{WA+T}" for T in range(5)]
        issued = 0
        for b in range(4):
            if reads:
                allow = [2, 15, issued + 1, issued][b]
                if b != 1: a(f"s_waitcnt lgkmcnt({min(15, allow)})")
            elif b == 0: a("s_waitcnt lgkmcnt(0)")
            for n, T in enumerate(TO):
                a(mf(b, T, X + 4 * b, cur + 4 * T, qk))
                if b == 0 and n < 2 and not qk and patch:
                    for j in range(2): a(f"v_cndmask_b32 v{cur+2*n+j}, v{cur+2*n+j}, v{PC}, s[24:25]")
                if not reads: continue
                if step == 0 and b == 0:
                    if n == 0: a(f"v_xor_b32 v{CX+1}, 64, v{CX}")
                    if n == opt("bn", 1): a("s_barrier")
                    if n <= opt("bn", 1): continue
                if n == 4: a(rdx(X + 4 * b, b, step)); issued += 1
                elif rq:
                    a(rq.pop(0)); issued += 1
                    if rq and (opt("rd2", 0) or (step == 0 and b == 1 and n < opt("bn", 1) - 1)): a(rq.pop(0)); issued += 1
                elif fill:
                    a(fill.pop(0))
                    if fill: a(fill.pop(0))
        assert not reads or (not rq and not fill), (rq, fill)

    def tail(qk, epi):
        seq = [(b, T, ("x0", b), ("w0", T)) for b in range(4) for T in TO]
        marks = {}
        win = opt("win", 2)
        for step in range(4 - win):
            for b in range(4):
                for T in TO: seq.append((b, T, ("x", 0, step, b), ("w", step, T)))
        for T in range(5):
            for jj in range(2):
                for step in range(4 - win, 4):
                    for b in (2 * jj, 2 * jj + 1): seq.append((b, T, ("x", 0, step, b), ("w", step, T)))
                marks[len(seq) - 1] = (T, jj)
        last = {}
        for n, (_, _, x, w) in enumerate(seq): last[x] = n; last[w] = n
        loc = {("x0", b): X + 4 * b for b in range(4)}; loc.update({("w0", T): W[1] + 4 * T for T in range(5)})
        free = [W[0] + 4 * k for k in range(5)] + [XA]
        order = []
        for _, _, x, w in seq:
            for f in (w, x):
                if f not in loc and f not in order: order.append(f)
        done_at = {}; nrd = 0; waited = 0; pend = []; fill = []
        cnt = [0]; prev = [0]
        def em(t): a(t); cnt[0] += 1
        a(f"v_xor_b32 v{CX+1}, 64, v{CX}\ns_waitcnt lgkmcnt(0)\ns_barrier")
        bar2 = [True]
        def take():
            f = order.pop(0); loc[f] = free.pop(0)
            if bar2 and (f[1] if f[0] == "w" else f[2]) >= 2: em("s_barrier"); bar2.pop()
            p_ = rdw(loc[f], f[2], f[1]) if f[0] == "w" else [rdx(loc[f], f[3], f[2])]
            done_at[f] = nrd + len(p_)
            return p_
        def gap():
            t, at, after = fill[0]
            return max(at - cnt[0], prev[0] + after - cnt[0], 0)
        def put():
            em(fill.pop(0)[0]); prev[0] = cnt[0]
        for n, (b, T, x, w) in enumerate(seq):
            while any(f not in loc or (f in done_at and done_at[f] > nrd) for f in (x, w)):
                if not pend: pend = take()
                em(pend.pop(0)); nrd += 1
            need = max(done_at.get(x, 0), done_at.get(w, 0))
            if need > waited:
                waited = max(need, nrd - opt("tw", 6)); em(f"s_waitcnt lgkmcnt({nrd - waited})")
            em(mf(b, T, loc[x], loc[w], qk))
            if n in marks: fill += [(t, cnt[0] + 8, after) for t, after in epi(*marks[n])]
            for f in (x, w):
                if last[f] == n: free.append(loc[f])
            if not pend and order and free: pend = take()
            if pend: em(pend.pop(0)); nrd += 1
            for _ in range(2):
                if fill and gap() == 0: put()
        a(st(3))
        while fill:
            g_ = gap()
            if g_: a(f"s_nop {g_ - 1}"); cnt[0] += g_
            put()

    EA, EB = 167, 151
    def cv(d, r): return [f"v_cvt_pk_bf16_f32 v{d}, v{r}, v{r+1}", f"v_cvt_pk_bf16_f32 v{d+1}, v{r+2}, v{r+3}"]
    def epi_qk(ph, jj=0):
        if ph < 0:
            return f"""s_mov_b32 s35, {HG}
            s_movk_i32 s38, 2560
            s_cmp_eq_u32 s22, 0
            s_cselect_b32 s35, {HQ}, s35
            s_cselect_b32 s27, {Q_OFF}, {KV_OFF}
            s_cselect_b32 s38, 1280, s38
            s_lshl_b32 s26, s20, 1
            s_add_u32 s26, s26, s37
            s_lshl_b32 s26, s26, 2
            s_mul_i32 s26, s26, s35
            s_add_u32 s26, s26, s27
            s_lshl_b32 s23, s21, 1
            s_add_u32 s23, s23, s36
            s_lshl_b32 s23, s23, 1
            s_mul_i32 s23, s23, s38
            s_add_u32 s26, s26, s23
            s_add_u32 s27, s26, s38
            v_lshrrev_b32 v{EA}, 4, v{L}
            v_mul_lo_u32 v{EA}, v{EA}, s35
            v_and_b32 v{TT}, 15, v{L}
            v_lshl_add_u32 v{EA}, v{TT}, 4, v{EA}
            v_lshlrev_b32 v{EB}, 4, v{L}
            s_add_u32 s44, s26, s35
            s_add_u32 s45, s27, s35
            s_add_u32 s46, s44, s35
            s_add_u32 s47, s45, s35
            s_add_u32 s32, s46, s35
            s_add_u32 s33, s47, s35""".split("\n")
        T = ph
        r0, r1 = acc(2 * jj, T), acc(2 * jj + 1, T)
        o = [(t, 0) for t in cv(r0, r0) + cv(r0 + 2, r1)]
        if T < 4:
            o += [(f"v_permlane16_swap_b32 v{r0}, v{r0+2}", 1), (f"v_permlane16_swap_b32 v{r0+1}, v{r0+3}", 0)]
            o.append((f"buffer_store_dwordx4 {vr(r0,4)}, v{EB}, s[28:31], s{(26, 44, 46, 32)[T] + jj} offen sc1", 0))
        else:
            o.append((f"buffer_store_dwordx4 {vr(r0,4)}, v{EA}, s[28:31], s{26 + jj} offen offset:1024 sc1", 0))
        return o
    def epi_v(ph, jj=0):
        if ph < 0:
            return f"""s_lshl_b32 s26, s20, 1
            s_add_u32 s26, s26, s37
            s_mul_i32 s26, s26, {4*HG}
            s_lshl_b32 s23, s21, 1
            s_add_u32 s23, s23, s36
            s_mul_i32 s23, s23, 5120
            s_add_u32 s26, s26, s23
            s_add_u32 s26, s26, {KV_OFF + 1280}
            s_add_u32 s44, s26, {HG}
            s_add_u32 s45, s26, {2*HG}
            s_add_u32 s46, s26, {3*HG}
            s_mov_b32 s35, {HG}
            v_lshrrev_b32 v{EA}, 5, v{L}
            v_mul_u32_u24 v{EA}, 640, v{EA}
            v_bfe_u32 v{TT}, v{L}, 4, 1
            v_lshl_add_u32 v{EB}, v{TT}, 6, v{EA}
            v_mul_u32_u24 v{TT}, 384, v{TT}
            v_add_u32 v{EA}, v{EA}, v{TT}
            v_and_b32 v{TT}, 15, v{L}
            v_lshl_add_u32 v{EA}, v{TT}, 4, v{EA}
            v_and_b32 v{TT}, 3, v{L}
            v_lshl_add_u32 v{EB}, v{TT}, 4, v{EB}
            v_bfe_u32 v{TT}, v{L}, 2, 2
            v_mul_lo_u32 v{TT}, v{TT}, s35
            v_add_u32 v{EB}, v{EB}, v{TT}""".split("\n")
        T = ph
        r0, r1 = acc(2 * jj, T), acc(2 * jj + 1, T)
        o = [(t, 0) for t in cv(r0, r0) + cv(r0 + 2, r1)]
        if T < 4: o.append((f"buffer_store_dwordx4 {vr(r0,4)}, v{EA}, s[28:31], s{(26, 44, 45, 46)[T]} offen offset:{2560 * jj} sc1", 0))
        else: o.append((f"buffer_store_dwordx4 {vr(r0,4)}, v{EB}, s[28:31], s26 offen offset:{2560 * jj + 256} sc1", 0))
        return o

    for qk, lab in ((True, "QK"), (False, "V")):
        a(f"P1_PRE_{lab}:")
        for f in (epi_qk if qk else epi_v)(-1): a(f)
        SEP = opt("sep", 0)
        if SEP and not qk: a("s_cmp_eq_u32 s22, 3\ns_cbranch_scc1 P1_LOOP_D")
        a(f"P1_LOOP_{lab}:")
        group(0, qk, patch=not SEP)
        if STAMP: a(f"s_cmp_lg_u32 s40, 0\ns_cbranch_scc1 P1_ST_{lab}\n{st(2)}\nP1_ST_{lab}:\ns_cmp_lg_u32 s40, 5\ns_cbranch_scc1 P1_SU_{lab}\n{st(1)}\nP1_SU_{lab}:")
        group(1, qk, patch=not SEP)
        a(f"s_cmp_lt_u32 s40, s43\ns_cbranch_scc1 P1_LOOP_{lab}")
        if not qk: a("s_cmp_eq_u32 s22, 3\ns_cbranch_scc1 P1_EPI_DFT")
        a("s_cmp_eq_u32 s12, 1\ns_cselect_b32 s30, 0, s30")
        tail(qk, epi_qk if qk else epi_v)
        a(f"s_cmp_eq_u32 s12, 0\ns_cbranch_scc1 P1_DONE\ns_mov_b32 s30, {WS_USED}\nv_mov_b32 v88, {LFB + 56}\nv_mov_b32 v89, 1")
        ladd(a, 88, 89, 0)
        a("s_setprio 3\ns_barrier")
        for T in range(5):
            for jj in range(2): a((epi_qk if qk else epi_v)(T, jj)[-1][0])
        a("s_branch P1_DONE")
    if SEP:
        a("P1_LOOP_D:"); group(0, False); group(1, False)
        a("s_cmp_lt_u32 s40, s43\ns_cbranch_scc1 P1_LOOP_D")
    a("P1_EPI_DFT:")
    group(0, False, reads=False)
    TAU, TAU0, E0 = 80, 81, 140
    a(f"""
    {st(3)}
    s_cmp_lt_u32 s20, 2
    s_cselect_b32 s38, 1.0, -1.0
    v_mov_b32 v{TAU}, s38
    v_cndmask_b32 v{TAU0}, v{TAU}, 1.0, s[24:25]
    s_lshl_b32 s26, s20, 1
    s_add_u32 s26, s26, s37
    s_mul_i32 s26, s26, 80
    v_and_b32 v88, 15, v{L}
    v_add_u32 v{E0}, s26, v88
    v_add_u32 v{E0+1}, 20, v{E0}
    v_add_u32 v{E0+2}, 40, v{E0}
    v_add_u32 v{E0+3}, 60, v{E0}
    v_and_b32 v89, 12, v{L}
    v_lshl_add_u32 v{E0+4}, v89, 2, v{E0}
    v_add_u32 v{E0+4}, 16, v{E0+4}
    s_lshl_b32 s23, s21, 1
    s_add_u32 s23, s23, s36
    s_cmp_lg_u32 s23, 0
    s_cbranch_scc1 P1_EPI_DFT2
    s_mov_b64 exec, 0xffff
    s_mov_b32 s27, {X512_OFF}
    """)
    for T in range(5):
        a(f"v_fma_f32 v{96+T}, v{acc(3,T)}, v{TAU0 if T == 0 else TAU}, v{acc(1,T)}")
        a(f"v_lshlrev_b32 v{104+T}, 2, v{E0+T}\nv_mov_b32 v{acc(1,T)}, 0\nv_mov_b32 v{acc(3,T)}, 0")
        a(f"buffer_store_dword v{96+T}, v{104+T}, s[28:31], s27 offen sc1")
    a(f"""
    s_mov_b64 exec, -1
P1_EPI_DFT2:
    s_lshl_b32 s26, s23, 9
    s_add_u32 s26, s26, {FE_OFF}
    s_mov_b32 s27, {FO_DELTA}
    v_bfe_u32 v88, v{L}, 4, 1
    v_mul_lo_u32 v88, v88, s27
    v_lshrrev_b32 v89, 5, v{L}
    v_lshl_add_u32 v88, v89, 8, v88
    """)
    for T in range(5):
        tau = TAU0 if T == 0 else TAU
        a0, a1, a2, a3 = (acc(b, T) for b in range(4))
        for q in range(4):
            a(f"v_fma_f32 v{a0+q}, v{a1+q}, v{tau}, v{a0+q}\nv_fma_f32 v{a3+q}, v{a2+q}, v{tau}, v{a3+q}")
        for q in range(4):
            a(f"v_add_f32 v{a1+q}, v{a0+q}, v{a3+q}\nv_sub_f32 v{a2+q}, v{a0+q}, v{a3+q}")
        a0 = 120 + 4 * T
        for f in cv(a0, a1) + cv(a0 + 2, a2): a(f)
        a(f"""
        v_lshrrev_b32 v89, 4, v{E0+T}
        v_lshl_add_u32 v89, v89, 14, v88
        v_and_b32 v{E0+T}, 15, v{E0+T}
        v_lshl_add_u32 v{E0+T}, v{E0+T}, 4, v89
        v_permlane16_swap_b32 v{a0}, v{a0+2}
        v_permlane16_swap_b32 v{a0+1}, v{a0+3}
        """)
    a(f"v_mov_b32 v88, {LFB + 56}\nv_mov_b32 v89, 1\ns_mov_b32 s12, {opt('dnu', 1)}")
    ladd(a, 88, 89, 0)
    if opt("dnu", 1): a("s_setprio 3\ns_barrier")
    for T in range(5): a(f"buffer_store_dwordx4 {vr(120+4*T,4)}, v{E0+T}, s[28:31], s26 offen sc1")
    a(f"""
P1_DONE:
    {st(14)}
    s_mov_b32 s34, 1
    s_cmp_eq_u32 s12, 1
    s_cbranch_scc1 ATT
    s_mov_b32 s34, 0
    v_mov_b32 v84, 1
    v_mov_b32 v85, 1
    v_mov_b32 v86, 1
    v_mov_b32 v87, 1
    v_mov_b32 v88, {LFB + 44}
    v_mov_b32 v89, 0
    s_and_b32 s23, s15, -128
    s_mov_b64 exec, 1
    s_waitcnt vmcnt(0)
    ds_add_rtn_u32 v88, v88, v84
    s_waitcnt lgkmcnt(0)
    v_cmp_eq_u32 vcc, 3, v88
    s_cbranch_vccz P1_NS
    buffer_store_dwordx4 v[84:87], v89, s[28:31], s23 offen sc1
P1_NS:
    s_mov_b64 exec, -1
    s_branch ATT
    """)

def p1_extra(a):
    T0 = 40
    a(f"""
P1_EXTRA:
    s_sub_u32 s61, s16, 8
    """)
    if opt("cwarm", 1):
        a(f"""
        s_cmp_lg_u32 s16, 10
        s_cbranch_scc1 P1_NOCW
        s_lshl_b32 s23, s18, 10
        s_cmp_ge_u32 s23, L_CODE_END - {NAME}_kernel - 1023
        s_cbranch_scc1 P1_NOCW
        s_getpc_b64 s[44:45]
L_PC:
        s_sub_u32 s44, s44, L_PC - {NAME}_kernel
        s_subb_u32 s45, s45, 0
        v_lshl_add_u32 v40, v0, 4, s23
        global_load_dwordx4 v[44:47], v40, s[44:45]
P1_NOCW:
        """)
    a(f"""
    v_lshrrev_b32 v37, 4, v0
    v_and_b32 v38, 15, v0
    v_lshlrev_b32 v39, 4, v0
    v_mov_b32 v36, v0
    s_waitcnt lgkmcnt(0)
    {srd(28, WS_P, WS_USED)}
    {srd(32, DBG_P, 256)}
    s_cmp_lg_u32 s61, 0
    s_cbranch_scc1 P1_EX_A
    v_mov_b32 v1, 0
    v_lshlrev_b32 v2, 2, v0
    v_add_u32 v2, {LFB}, v2
    ds_write_b32 v2, v1
    s_waitcnt lgkmcnt(0)
    s_cmp_lt_u32 s2, 248
    s_cbranch_scc1 P1_EX_WAITRDY
    v_mov_b32 v4, 0
    v_mov_b32 v5, 0
    v_mov_b32 v6, 0
    v_mov_b32 v7, 0
    s_lshl_b32 s23, s17, 12
    s_add_u32 s23, s23, {FLG_OFF}
    buffer_store_dwordx4 v[4:7], v39, s[28:31], s23 offen sc1
    buffer_store_dwordx4 v[4:7], v39, s[28:31], s23 offen offset:1024 sc1
    buffer_store_dwordx4 v[4:7], v39, s[28:31], s23 offen offset:2048 sc1
    buffer_store_dwordx4 v[4:7], v39, s[28:31], s23 offen offset:3072 sc1
    s_lshl_b32 s23, s17, 7
    s_add_u32 s23, s23, {FLG_OFF + 32768}
    s_mov_b64 exec, 0xff
    buffer_store_dwordx4 v[4:7], v39, s[28:31], s23 offen sc1
    s_mov_b64 exec, -1
P1_EX_WAITRDY:
P1_EX_A:
    s_lshl_b32 s23, s2, 2
    s_add_u32 s23, s23, s61
    s_mov_b32 s40, 0
P1_TBL:
    s_lshr_b32 s24, s23, 5
    s_and_b32 s25, s23, 30
    s_and_b32 s26, s24, 1
    s_lshr_b32 s27, s24, 1
    s_lshl_b32 s27, s27, 6
    s_add_u32 s27, s27, s26
    s_and_b32 s26, s23, 1
    s_lshl_b32 s26, s26, 5
    s_add_u32 s27, s27, s26
    v_lshl_add_u32 v{T0}, v38, 1, s27
    s_lshl_b32 s25, s25, 4
    v_lshl_add_u32 v{T0+1}, v37, 3, s25
    v_mul_u32_u24 v{T0+1}, v{T0}, v{T0+1}
    v_and_b32 v{T0+1}, 0x7ff, v{T0+1}
    v_cvt_f32_u32 v{T0}, v{T0}
    v_cvt_f32_u32 v{T0+1}, v{T0+1}
    v_mul_f32 v{T0}, 0x3a000000, v{T0}
    v_mul_f32 v0, 0x3a000000, v{T0+1}
    """)
    for u in range(1, 8): a(f"v_add_f32 v{u}, v{u-1}, v{T0}")
    for u in range(1, 8): a(f"v_fract_f32 v{u}, v{u}")
    for u in range(8): a(f"v_cos_f32 v{8+u}, v{u}")
    for u in range(8): a(f"v_sin_f32 v{16+u}, v{u}")
    for j in range(4): a(f"v_cvt_pk_bf16_f32 v{24+j}, v{8+2*j}, v{9+2*j}")
    for j in range(4): a(f"v_cvt_pk_bf16_f32 v{28+j}, v{16+2*j}, v{17+2*j}")
    NB0 = opt("tblbar", 2)
    a(f"""
    s_cmp_lg_u32 s40, 0
    s_cbranch_scc1 P1_TBL_ST
    s_barrier
    {st(1, True)}
    s_cmp_lg_u32 s61, 0
    s_cbranch_scc1 P1_EX_NR
    s_cmp_lt_u32 s2, 248
    s_cbranch_scc1 P1_EX_NR
    v_mov_b32 v32, 1
    v_mov_b32 v33, 0
    s_lshl_b32 s24, s17, 2
    s_waitcnt vmcnt(0)
    s_mov_b64 exec, 1
    buffer_store_dword v32, v33, s[32:35], s24 offen sc1
    s_mov_b64 exec, -1
P1_EX_NR:
    """ + "".join(f"s_barrier\n{st(1 + b_, True)}\n" for b_ in range(1, NB0)) + f"""
    s_mov_b32 s40, 1
P1_TBL_ST:
    s_lshl_b32 s24, s23, 11
    s_add_u32 s24, s24, {TB_OFF}
    buffer_store_dwordx4 v[24:27], v39, s[28:31], s24 offen sc1
    buffer_store_dwordx4 v[28:31], v39, s[28:31], s24 offen offset:1024 sc1
    s_add_u32 s23, s23, 1024
    s_cmp_lt_u32 s23, 1056
    s_cbranch_scc1 P1_TBL
    """)
    nb = NB0
    assert nb <= 6
    a("".join(f"s_barrier\n{st(1 + b_, True)}\n" for b_ in range(nb, 6)))
    u = a.uid()
    a(f"""
    v_and_b32 v1, 7, v36
    v_lshlrev_b32 v1, 2, v1
    v_mov_b32 v2, 1
    s_mov_b32 s60, 0
    s_cmp_lg_u32 s61, 0
    s_cbranch_scc1 P1_EX_C
    buffer_load_dword v2, v1, s[32:35], 0 offen sc1
P1_EX_C:
    s_barrier
    {st(7, True)}
    s_barrier
    {st(8, True)}
L_RDY{u}:
    s_waitcnt vmcnt(0)
    v_cmp_eq_u32 vcc, 0, v2
    s_cbranch_vccz P1_EX_B
    s_sleep 1
    buffer_load_dword v2, v1, s[32:35], 0 offen sc1
    s_add_u32 s60, s60, 1
    s_cmp_lt_u32 s60, 0x40000
    s_cbranch_scc1 L_RDY{u}
P1_EX_B:
    s_waitcnt vmcnt(0)
    s_barrier
    {st(9, True)}
    s_barrier
    {st(10, True)}
    s_mov_b32 s34, 0
    """)

def attention(a):
    O = 0; S = [16, 32]; P = 48; Q1 = 56; Q2 = 60; K2 = 62; K1 = 64; V1 = 68; V2 = [72, 76]; T = 80
    a(f"""
ATT:
    s_cmp_lt_u32 s13, 4
    s_cselect_b32 s32, {opt("o1", 4)}, {opt("y1", 4)}
    s_cselect_b32 s33, {opt("o2", 7)}, {opt("y2", 7)}
    s_movk_i32 s35, 0x106
    s_bitset1_b32 s35, s32
    s_bitset1_b32 s35, s33
    s_mov_b32 s24, 0xfffff
    s_mov_b32 s25, 0xfffff
    s_mul_i32 s27, s13, 1280
    v_mov_b32 v{Q2+1}, 0
    v_mov_b32 v{K2+1}, 0x3f803f80
    v_add_u32 v{T}, s27, v{AK1}
    v_add_u32 v{T+1}, s27, v{AK2}
    v_mov_b32 v{T+2}, 1
    """)
    NQ = opt("nq", 2)
    OX = [84, O]; QX1 = [100, Q1]; QX2 = [104, Q2]; U = 106; TM = 114; XS = 107520
    if NQ == 2:
        a(f"""
        s_xor_b32 s36, s13, 1
        s_mul_i32 s27, s36, 1280
        v_add_u32 v{U}, s27, v{AK1}
        v_add_u32 v{U+1}, s27, v{AK2}
        v_mov_b32 v{U+2}, v{AK1}
        v_mov_b32 v{U+3}, v{AK2}
        v_mov_b32 v{QX2[0]+1}, 0
        s_and_b32 s37, s13, 1
        s_mul_i32 s37, s37, 2560
        v_and_b32 v{U+4}, 0x70, v{VA}
        v_lshrrev_b32 v{U+4}, 2, v{U+4}
        v_add_u32 v{U+4}, {LFB}, v{U+4}
        s_lshl_b32 s23, s13, 12
        s_add_u32 s23, s23, {XS}
        v_add_u32 v{U+5}, s23, v{VA}
        v_xor_b32 v{U+7}, 4, v{PA}
        s_lshl_b32 s23, s36, 12
        s_add_u32 s23, s23, {XS}
        v_add_u32 v{U+6}, s23, v{VA}
        s_lshr_b32 s38, s13, 2
        s_add_u32 s38, s38, 7
        """)
        for r in (AK1, AK2, AV, BK1, BK2, BV): a(f"v_add_u32 v{r}, s37, v{r}")
        for r in range(16): a(f"v_mov_b32 v{OX[0]+r}, 0")
    for r in range(12): a(f"v_mov_b32 v{V1+r}, v{ONES}")
    for r in range(16): a(f"v_mov_b32 v{O+r}, 0")
    for r in range(4): a(f"v_mov_b32 v{P+4+r}, 0\nv_mov_b32 v{P+r}, -1")
    def rk1(d): return f"v_mfma_f32_32x32x8_bf16 {vr(d,16)}, {vr(K2,2)}, {vr(Q2,2)}, 0"
    def rk2(d): return f"v_mfma_f32_32x32x16_bf16 {vr(d,16)}, {vr(K1,4)}, {vr(Q1,4)}, {vr(d,16)}"
    def qk1(d): return f"v_mfma_f32_32x32x16_bf16 {vr(d,16)}, {vr(K1,4)}, {vr(Q1,4)}, 0"
    def qk2(d): return f"v_mfma_f32_32x32x8_bf16 {vr(d,16)}, {vr(K2,2)}, {vr(Q2,2)}, {vr(d,16)}"
    def pv(v, p): return f"v_mfma_f32_32x32x16_bf16 {vr(O,16)}, {vr(v,4)}, {vr(p,4)}, {vr(O,16)}"
    def of(t): return (t - 6 if t in (6, 7) else t) * 2560
    def rdk1(t): return f"ds_read_b128 {vr(K1,4)}, v{BK1 if t in (6, 7) else AK1} offset:{of(t)}"
    def rdk2(t): return f"ds_read_b32 v{K2}, v{BK2 if t in (6, 7) else AK2} offset:{of(t)+1024}"
    def rdv(t, v2):
        b = BV if t in (6, 7) else AV
        return f"s_mov_b64 exec, s[24:25]\nds_read_b128 {vr(V1,4)}, v{b} offset:{of(t)+1280}\nds_read_b128 {vr(v2,4)}, v{b} offset:{of(t)+1920}\ns_mov_b64 exec, -1"
    def maxtree(s, m, first):
        if first:
            a(f"v_max3_f32 v{m}, v{s}, v{s+1}, v{s+2}\nv_max3_f32 v{m+1}, v{s+3}, v{s+4}, v{s+5}")
            for j in range(6, 14, 4): a(f"v_max3_f32 v{m}, v{s+j}, v{s+j+1}, v{m}\nv_max3_f32 v{m+1}, v{s+j+2}, v{s+j+3}, v{m+1}")
            a(f"v_max3_f32 v{m}, v{s+14}, v{s+15}, v{m}\nv_max_f32 v{m}, v{m}, v{m+1}")
        else:
            for j in range(0, 16, 2): a(f"v_max3_f32 v{m}, v{s+j}, v{s+j+1}, v{m}")
    def xhalf(m):
        a(f"v_mov_b32 v{m+1}, v{m}\ns_nop 1\nv_permlane32_swap_b32 v{m}, v{m+1}\ns_nop 0\nv_max_f32 v{m}, v{m}, v{m+1}")
    a(f"""
    s_cmp_lg_u32 s34, 1
    s_cbranch_scc1 ATT_NOSIG
    """)
    if opt("comb", 1):
        a(f"""
        v_mov_b32 v{T+3}, {LFB + 44}
        s_and_b32 s23, s15, -128
        s_mov_b64 exec, 1
        s_waitcnt vmcnt(0)
        ds_add_rtn_u32 v{T+3}, v{T+3}, v{T+2}
        s_waitcnt lgkmcnt(0)
        v_cmp_eq_u32 vcc, 3, v{T+3}
        s_cbranch_vccz ATT_NOSIG
        buffer_store_dwordx4 {vr(P,4)}, v{O}, s[28:31], s23 offen sc1
        """)
    else:
        a(f"s_waitcnt vmcnt(0)\ns_mov_b64 exec, 1\nbuffer_store_dword v{T+2}, v{O}, s[28:31], s15 offen sc1")
    a(f"""
ATT_NOSIG:
    s_mov_b64 exec, -1
    {st(4)}
    s_and_b32 s23, s34, s12
    s_cbranch_scc1 ATT_NOP
    s_barrier
ATT_NOP:
    s_setprio 3
    {st(6)}
    """)
    def e(s, j): return f"v_exp_f32 v{s+j}, v{s+j}"
    def c(s, j): return f"v_cvt_pk_bf16_f32 v{P+j}, v{s+2*j}, v{s+2*j+1}"
    if NQ == 2:
        def xk1(x): return f"v_mfma_f32_32x32x16_bf16 {vr(S[x],16)}, {vr(K1,4)}, {vr(QX1[x],4)}, 0"
        def xk2(x): return f"v_mfma_f32_32x32x8_bf16 {vr(S[x],16)}, {vr(K2,2)}, {vr(QX2[x],2)}, {vr(S[x],16)}"
        def xpv(x, v, p): return f"v_mfma_f32_32x32x16_bf16 {vr(OX[x],16)}, {vr(v,4)}, {vr(p,4)}, {vr(OX[x],16)}"
        def scale(x):
            for j in range(5): a(f"v_lshlrev_b32 v{TM+2*j}, 16, v{QX1[x]+j}\nv_and_b32 v{TM+2*j+1}, 0xffff0000, v{QX1[x]+j}")
            for j in range(10): a(f"v_mul_f32 v{TM+j}, {QSCALE:#x}, v{TM+j}")
            for j in range(5): a(f"v_cvt_pk_bf16_f32 v{QX1[x]+j}, v{TM+2*j}, v{TM+2*j+1}")
        MH = f32bits(-0.5 * (20 ** -0.5) * math.log2(math.e))
        a(f"""
        ds_read_b128 {vr(K1,4)}, v{U+2}
        ds_read_b32 v{K2}, v{U+3} offset:1024
        ds_read_b128 {vr(QX1[0],4)}, v{U} offset:{QLDS}
        ds_read_b32 v{QX2[0]}, v{U+1} offset:{QLDS+1024}
        ds_read_b128 {vr(Q1,4)}, v{T} offset:{QLDS}
        ds_read_b32 v{Q2}, v{T+1} offset:{QLDS+1024}
        {rdv(0, V2[0])}
        s_waitcnt lgkmcnt(4)
        {xk1(0)}
        {xk2(0)}
        s_waitcnt lgkmcnt(2)
        {xk1(1)}
        {xk2(1)}
        {rdk1(0)}
        {rdk2(0)}
        s_mov_b32 s26, 0
        """)
        scale(0)
        maxtree(S[0], T, True); xhalf(T)
        a(f"v_mul_f32 v{T}, {MH:#x}, v{T}\nv_cvt_pk_bf16_f32 v{QX2[0]+1}, v{T}, 0\ns_waitcnt lgkmcnt(0)\n{xk1(0)}\n{xk2(0)}")
        scale(1)
        maxtree(S[1], T, True); xhalf(T)
        a(f"""
        v_mul_f32 v{T}, {MH:#x}, v{T}
        v_cvt_pk_bf16_f32 v{Q2+1}, v{T}, 0
        buffer_store_dwordx4 {vr(P,4)}, v{OA1}, s[28:31], s6 offen sc1
        s_mov_b64 exec, 0xffff
        buffer_store_dwordx4 {vr(P,4)}, v{OA2}, s[28:31], s7 offen sc1
        s_mov_b64 exec, -1
        {st(7)}
ATT_LOOP:
        """)
        for i in range(4):
            for x in (0, 1):
                cur = S[x]; y = 1 - x; t_ = 2 * (i + 1)
                if x == 1: a("s_waitcnt lgkmcnt(0)")
                a(xk1(y))
                if x == 0: a(rdk1(t_))
                if x == 1 and i == 1: a(f"ds_write_b32 v{PA}, v{T+2}")
                for q in range(4): a(e(cur, q))
                a(xpv(y, V2[(i + 1) % 2] if x == 0 else V2[i % 2], P + 4))
                if x == 0: a("s_waitcnt lgkmcnt(1)")
                for q in range(4, 8): a(e(cur, q))
                a(c(cur, 0)); a(c(cur, 1))
                a(xk2(y))
                if x == 0: a(rdk2(t_))
                a(c(cur, 2)); a(c(cur, 3))
                for q in range(8, 12): a(e(cur, q))
                a(xpv(x, V1, P))
                if x == 1: a(rdv(t_, V2[(i + 1) % 2]))
                for q in range(12, 16): a(e(cur, q))
                for q in range(4, 8): a(c(cur, q))
    else:
        a(f"""
        ds_read_b128 {vr(Q1,4)}, v{T} offset:{QLDS}
        ds_read_b32 v{Q2}, v{T+1} offset:{QLDS+1024}
        {rdk1(0)}
        {rdk2(0)}
        {rdv(0, V2[0])}
        s_waitcnt lgkmcnt(2)
        {qk1(S[1])}
        {qk2(S[1])}
        """)
        for j in range(5): a(f"v_lshlrev_b32 v{S[0]+2*j}, 16, v{Q1+j}\nv_and_b32 v{S[0]+2*j+1}, 0xffff0000, v{Q1+j}")
        for j in range(10): a(f"v_mul_f32 v{S[0]+j}, {QSCALE:#x}, v{S[0]+j}")
        for j in range(5): a(f"v_cvt_pk_bf16_f32 v{Q1+j}, v{S[0]+2*j}, v{S[0]+2*j+1}")
        a(f"""
        s_nop 0
        {qk1(S[0])}
        {rdk1(1)}
        s_mov_b32 s26, 0
        """)
        maxtree(S[1], T, True); xhalf(T)
        a(f"""
        v_mul_f32 v{T}, {f32bits(-0.5 * (20 ** -0.5) * math.log2(math.e)):#x}, v{T}
        v_cvt_pk_bf16_f32 v{Q2+1}, v{T}, 0
        s_nop 1
        {qk2(S[0])}
        {rdk2(1)}
        buffer_store_dwordx4 {vr(P,4)}, v{OA1}, s[28:31], s6 offen sc1
        s_mov_b64 exec, 0xffff
        buffer_store_dwordx4 {vr(P,4)}, v{OA2}, s[28:31], s7 offen sc1
        s_mov_b64 exec, -1
        s_waitcnt lgkmcnt(0)
        {st(7)}
        s_nop 3
ATT_LOOP:
        """)
        for j in range(8):
            cur, nxt = S[j % 2], S[(j + 1) % 2]
            a("s_waitcnt lgkmcnt(2)")
            if opt('rev', 0): a(rk1(nxt)); a(rdk2(j + 2))
            else: a(qk1(nxt)); a(rdk1(j + 2))
            for q in range(4): a(e(cur, q))
            a(pv(V2[(j + 1) % 2], P + 4))
            a("s_waitcnt lgkmcnt(1)")
            if j == 2: a(f"ds_write_b32 v{PA}, v{T+2}")
            for q in range(4, 8): a(e(cur, q))
            a(c(cur, 0)); a(c(cur, 1))
            if opt('rev', 0): a(rk2(nxt)); a(rdk1(j + 2))
            else: a(qk2(nxt)); a(rdk2(j + 2))
            a(c(cur, 2)); a(c(cur, 3))
            for q in range(8, 12): a(e(cur, q))
            a(pv(V1, P)); a(rdv(j + 1, V2[(j + 1) % 2]))
            for q in range(12, 16): a(e(cur, q))
            for q in range(4, 8): a(c(cur, q))
    a(f"""
    s_add_u32 s26, s26, 1
    s_movk_i32 s27, 0x5000
    s_cmp_eq_u32 s26, 7
    s_cselect_b32 s27, {(0x5000 - 62 * 2560) & 0xffffffff}, s27
    v_add_u32 v{AK1}, 0x5000, v{AK1}
    v_add_u32 v{AK2}, 0x5000, v{AK2}
    v_add_u32 v{AV}, 0x5000, v{AV}
    v_add_u32 v{BK1}, s27, v{BK1}
    v_add_u32 v{BK2}, s27, v{BK2}
    v_add_u32 v{BV}, s27, v{BV}
    v_add_u32 v{T+2}, 1, v{T+2}
    s_bitcmp1_b32 s35, s26
    s_cbranch_scc0 ATT_LOOP
    s_cmp_gt_u32 s26, 2
    s_cbranch_scc1 ATT_EV
    v_add_u32 v{FA}, 8, v{FA}
    s_waitcnt vmcnt(0)
ATT_WAIT:
    ds_read_b32 v{T}, v{FA}
    s_waitcnt lgkmcnt(0)
    v_readfirstlane_b32 s23, v{T}
    s_cmp_ge_u32 s23, 4
    s_cbranch_scc1 ATT_LOOP
    s_sleep 1
    s_branch ATT_WAIT
ATT_EV:
    s_setprio 2
    s_cmp_eq_u32 s26, s32
    s_cbranch_scc1 ATT_LOOP
    s_setprio 1
    s_cmp_lt_u32 s26, 8
    s_cbranch_scc1 ATT_LOOP
    s_setprio 3
    {pv(V2[1], P+4)}
    {st(8)}
    """)
    if NQ == 2:
        a(f"""
ATT_X1:
        ds_read_b32 v{U}, v{U+4}
        s_mov_b32 s27, 0x3e800000
        s_mov_b32 s23, 0x71800000
        s_waitcnt lgkmcnt(0)
        v_cmp_gt_u32 vcc, s38, v{U}
        s_cbranch_vccnz ATT_X1
        """)
        for j in range(3): a(f"ds_write_b128 v{U+5}, {vr(OX[0]+4*j,4)} offset:{1024*j}")
        a(f"ds_write_b64 v{U+5}, {vr(OX[0]+12,2)} offset:3072\nds_write_b32 v{PA}, v{T+2} offset:96\nATT_X2:\nds_read_b32 v{U}, v{U+7} offset:96")
        for j in range(3): a(f"ds_read_b128 {vr(S[0]+4*j,4)}, v{U+6} offset:{1024*j}")
        a(f"ds_read_b64 {vr(S[0]+12,2)}, v{U+6} offset:3072\ns_waitcnt lgkmcnt(0)\nv_cmp_eq_u32 vcc, 0, v{U}\ns_cbranch_vccz ATT_X3\ns_sleep 1\ns_branch ATT_X2\nATT_X3:")
        for r in range(0, 14, 2): a(f"v_pk_add_f32 {vr(O+r,2)}, {vr(O+r,2)}, {vr(S[0]+r,2)}")
    else:
        a("s_mov_b32 s27, 0x3e800000\ns_mov_b32 s23, 0x71800000\ns_nop 9")
    a(f"v_rcp_f32 v{T+2}, v{O+12}\nv_add_f32 v{T}, |v{O}|, |v{O+1}|\nv_add_f32 v{T+1}, |v{O+2}|, |v{O+3}|")
    for j in range(4, 12, 2): a(f"v_add_f32 v{T}, |v{O+j}|, v{T}\nv_add_f32 v{T+1}, |v{O+j+1}|, v{T+1}")
    a(f"""
    v_add_f32 v{T}, v{T}, v{O+12}
    v_cmp_le_f32 s[42:43], s27, v{O+12}
    v_add_f32 v{T}, v{T}, v{T+1}
    v_cmp_gt_f32 vcc, s23, v{T}
    s_and_b64 vcc, vcc, s[42:43]
    s_cmp_eq_u64 vcc, -1
    s_cbranch_scc0 ATT_FALLBACK
ATT_FINISH:
    """)
    for j in range(8): a(f"v_mul_f32 v{O+j}, v{O+j}, v{T+2}")
    for j in range(4): a(f"v_cvt_pk_bf16_f32 v{P+j}, v{O+2*j}, v{O+2*j+1}")
    for j in range(4): a(f"v_min_u32 v{P+j}, -2, v{P+j}")
    a(f"buffer_store_dwordx4 {vr(P,4)}, v{OA1}, s[28:31], s6 offen sc1")
    for j in range(8, 12): a(f"v_mul_f32 v{O+j}, v{O+j}, v{T+2}")
    for j in range(4, 6): a(f"v_cvt_pk_bf16_f32 v{P+j}, v{O+2*j}, v{O+2*j+1}")
    for j in range(4, 6): a(f"v_min_u32 v{P+j}, -2, v{P+j}")
    a(f"""
    s_nop 1
    v_permlane16_swap_b32 v{P+4}, v{P+6}
    v_permlane16_swap_b32 v{P+5}, v{P+7}
    s_mov_b64 exec, 0xffff
    buffer_store_dwordx4 {vr(P+4,4)}, v{OA2}, s[28:31], s7 offen sc1
    {st(9)}
    s_cmp_ge_u32 s13, 4
    s_cbranch_scc1 {"L_DONE" if STAMP else "L_END"}
    s_mov_b64 exec, -1
    s_xor_b32 s41, s13, {opt('gx', 2)}
    s_mov_b32 s47, 1
    s_branch P3_GO
    """)
    def gk(): return f"buffer_load_dwordx4 {vr(K1,4)}, v{AK1}, s[28:31], s23 offen sc1\nbuffer_load_dword v{K2}, v{AK2}, s[28:31], s23 offen offset:1024 sc1"
    a(f"""
ATT_FALLBACK:
    s_waitcnt lgkmcnt(0)
    v_mov_b32 v{Q2+1}, 0
    v_mov_b32 v{T}, 0xff800000
    {f's_add_u32 s23, s37, {HS}' if NQ == 2 else f's_mov_b32 s23, {HS}'}
    v_subrev_u32 v{AK1}, s23, v{AK1}
    v_subrev_u32 v{AK2}, s23, v{AK2}
    v_subrev_u32 v{AV}, s23, v{AV}
    s_add_u32 s23, s14, {KV_OFF}
    s_mov_b32 s26, 0
ATT_FB1:
    {gk()}
    s_add_u32 s23, s23, 2560
    s_waitcnt vmcnt(0)
    {qk1(S[0])}
    {qk2(S[0])}
    s_nop 15
    """)
    maxtree(S[0], T, False)
    a("s_add_u32 s26, s26, 1\ns_cmp_lt_u32 s26, 64\ns_cbranch_scc1 ATT_FB1")
    xhalf(T)
    a(f"s_add_u32 s23, s14, {KV_OFF}\ns_mov_b32 s26, 0")
    for r in range(16): a(f"v_mov_b32 v{O+r}, 0")
    a(f"""
ATT_FB2:
    {gk()}
    s_mov_b64 exec, s[24:25]
    buffer_load_dwordx4 {vr(V1,4)}, v{AV}, s[28:31], s23 offen offset:1280 sc1
    buffer_load_dwordx4 {vr(V2[0],4)}, v{AV}, s[28:31], s23 offen offset:1920 sc1
    s_mov_b64 exec, -1
    s_add_u32 s23, s23, 2560
    s_waitcnt vmcnt(0)
    {qk1(S[0])}
    {qk2(S[0])}
    s_nop 15
    """)
    for q in range(16): a(f"v_sub_f32 v{S[0]+q}, v{S[0]+q}, v{T}")
    for q in range(16): a(e(S[0], q))
    a("s_nop 0")
    for q in range(8): a(c(S[0], q))
    a(f"""
    s_nop 1
    {pv(V1, P)}
    {pv(V2[0], P+4)}
    s_add_u32 s26, s26, 1
    s_cmp_lt_u32 s26, 64
    s_cbranch_scc1 ATT_FB2
    s_nop 15
    v_rcp_f32 v{T+2}, v{O+12}
    s_nop 0
    s_branch ATT_FINISH
    """)

def lwait(a, vaddr, vdat, mask, target, slp=8):
    u = a.uid()
    a(f"""
    s_mov_b64 exec, {mask}
    s_branch L_LWE{u}
L_LW{u}:
    s_sleep {slp}
L_LWE{u}:
    ds_read_b32 v{vdat}, v{vaddr}
    s_waitcnt lgkmcnt(0)
    v_cmp_gt_u32 vcc, {target}, v{vdat}
    s_cbranch_vccnz L_LW{u}
    s_mov_b64 exec, -1
    """)
def ladd(a, vaddr, vone, off):
    a(f"s_mov_b64 exec, 1\nds_add_u32 v{vaddr}, v{vone} offset:{off}\ns_mov_b64 exec, -1")

def helpers(a):
    WA, VG, VZ, SH, HPA, HONE, YFA, FZ, SG, XA5, LF = 112, 117, 118, 119, 120, 121, 122, 123, 124, 125, 126
    ZL = 40; G = 167; VY = 162; T = 132; LT = 127
    a(f"""
HELPER:
    s_mov_b32 s61, s22
    {st(2)}
    {srd(28, WS_P, WS_USED)}
    s_setprio 0
    s_lshr_b32 s20, s18, 2
    s_mul_i32 s26, s20, 160
    s_movk_i32 s23, {1280 - 160}
    """)
    for i in range(5):
        a(f"""
        v_add_u32 v{T}, {64*i}, v0
        v_mul_u32_u24 v{T+1}, 6554, v{T}
        v_lshrrev_b32 v{T+1}, 16, v{T+1}
        v_lshlrev_b32 v{T}, 4, v{T}
        v_mad_u32_u24 v{WA+i}, v{T+1}, s23, v{T}
        """)
    a(f"""
    s_lshl_b32 s21, s17, 3
    s_and_b32 s22, s18, 3
    s_add_u32 s21, s21, s22
    s_lshr_b32 s22, s16, 1
    s_lshl_b32 s22, s22, 2
    s_add_u32 s21, s21, s22
    s_lshl_b32 s21, s21, 1
    s_and_b32 s22, s16, 1
    s_add_u32 s21, s21, s22
    s_lshr_b32 s22, s21, 2
    s_lshl_b32 s22, s22, 1
    s_and_b32 s24, s21, 1
    s_add_u32 s22, s22, s24
    s_lshl_b32 s22, s22, 3
    v_and_b32 v{T}, 7, v0
    v_add_u32 v{T}, s22, v{T}
    s_bitcmp1_b32 s21, 1
    s_cselect_b32 s22, 0x400, 0
    s_cselect_b32 s24, -1, 1
    v_mul_lo_u32 v{T+1}, v{T}, s24
    s_sub_u32 s24, 0x800, s22
    v_sub_u32 v{T+2}, s24, v{T+1}
    v_add_u32 v{T+1}, s22, v{T+1}
    v_and_b32 v{T+3}, 8, v0
    v_cmp_ne_u32 vcc, 0, v{T+3}
    v_cmp_eq_u32 s[42:43], 0, v{T}
    v_lshlrev_b32 v{T+3}, 6, v{T+3}
    v_add_u32 v{T+3}, s22, v{T+3}
    v_cndmask_b32 v{T}, v{T+1}, v{T+2}, vcc
    v_lshrrev_b32 v{T+1}, 4, v0
    v_cndmask_b32 v{T}, v{T}, v{T+3}, s[42:43]
    v_mul_u32_u24 v{VY}, 1280, v{T}
    v_mul_u32_u24 v{T+2}, 40, v{T+1}
    v_add3_u32 v{VY}, v{VY}, v{T+2}, s26
    v_lshlrev_b32 v{VG}, 2, v{T}
    v_sub_u32 v{T+3}, 0x800, v{T}
    v_cmp_lt_u32 vcc, 0x400, v{T}
    v_min_u32 v{T}, v{T}, v{T+3}
    v_and_b32 v{T+3}, 1, v{T}
    v_mul_u32_u24 v{VZ}, {ZP}, v{T+3}
    v_lshrrev_b32 v{T+3}, 1, v{T}
    v_lshl_add_u32 v{VZ}, v{T+3}, 4, v{VZ}
    v_mov_b32 v{T+3}, 0x02020202
    v_cndmask_b32 v{SH}, 0, v{T+3}, vcc
    s_cmp_ge_u32 s20, 4
    s_mov_b32 s24, 0x05040100
    s_cselect_b32 s24, 0x07060302, s24
    s_cselect_b32 s40, -1, 1
    s_cselect_b32 s41, 155, 0
    v_xor_b32 v{SH}, s24, v{SH}
    s_mul_i32 s24, s20, 20
    v_mul_u32_u24 v{T+3}, 5, v{T+1}
    v_add_u32 v{T+3}, s24, v{T+3}
    v_mul_lo_u32 v{T+3}, v{T+3}, s40
    v_add_u32 v{T+3}, s41, v{T+3}
    v_mul_u32_u24 v{T+3}, {2*ZP}, v{T+3}
    v_add_u32 v{VZ}, v{VZ}, v{T+3}
    {p3_addr(0)}
    v_lshlrev_b32 v{HPA}, 2, v0
    v_add_u32 v{HPA}, {LFB}, v{HPA}
    v_mov_b32 v{HONE}, 1
    s_lshl_b32 s23, s2, 2
    s_add_u32 s23, s23, {FLG_OFF + 32768}
    v_mov_b32 v{YFA}, s23
    v_lshrrev_b32 v{FZ}, 4, v0
    v_mul_u32_u24 v{FZ}, {2*ZP}, v{FZ}
    v_and_b32 v{T}, 15, v0
    v_lshl_add_u32 v{FZ}, v{T}, 4, v{FZ}
    v_lshlrev_b32 v{SG}, 31, v0
    v_and_b32 v{XA5}, 48, v0
    v_lshlrev_b32 v{LF}, 7, v0
    v_bfe_u32 v{LT}, v0, 1, 2
    v_lshlrev_b32 v{LT}, 13, v{LT}
    v_and_b32 v{T}, 1, v0
    v_lshl_add_u32 v{LT}, v{T}, 7, v{LT}
    s_setprio 3
    s_lshr_b32 s19, s18, 3
    s_lshl_b32 s23, s17, 2
    s_add_u32 s19, s19, s23
    s_and_b32 s62, s18, 7
    s_mul_i32 s21, s19, {HG}
    v_lshlrev_b32 v1, 4, v0
    {st(3)}
    s_lshr_b32 s23, s19, 3
    s_lshl_b32 s23, s23, 13
    s_add_u32 s23, s23, {FLG_OFF}
    v_lshlrev_b32 v2, 7, v0
    v_add_u32 v2, s23, v2
    s_add_u32 s24, s21, {KV_OFF}
    s_lshl_b32 s40, 0x10000, s16
    s_lshl_b32 s41, 1, s16
    s_mul_i32 s22, s16, 10240
    s_add_u32 s26, s24, s22
    s_cmp_lg_u32 s16, 3
    s_cbranch_scc1 H_JA
    s_lshl_b32 s25, s62, 1
    s_lshl_b32 s40, 3, s25
    s_mov_b32 s41, 0
    s_mov_b32 s22, {QLDS}
    s_mul_i32 s26, s19, {HQ}
    s_mul_i32 s25, s62, 10240
    s_add_u32 s26, s26, s25
    s_add_u32 s26, s26, {Q_OFF}
H_JA:
    """)
    def job():
        r = f"s_add_u32 s25, s22, 5120\ns_cmp_ge_u32 s25, {LFB}\ns_cselect_b32 s25, 0, s25\n"
        for n in range(10):
            if n in (0, 3): r += f"s_add_u32 m0, s22, {1024*n}\ns_add_u32 s27, s26, {1024*n}\n"; o = 0
            if n in (5, 8): r += f"s_add_u32 m0, s25, {1024*(n-5)}\ns_add_u32 s27, s26, {1024*n}\n"; o = 0
            r += f"buffer_load_dwordx4 v1, s[28:31], s27 offen offset:{o} sc1 lds\n"; o += 1024
        return r
    if opt("latep", 1):
        a(f"s_mul_i32 s23, s12, 12\ns_cmp_eq_u32 s61, 3\ns_cselect_b32 s23, 12, s23\ns_add_u32 s23, s23, {LFB + 44}\nv_mov_b32 v3, s23")
        lwait(a, 3, 4, 1, 4, 2)
        if opt("lps", 0): a(f"s_sleep {opt('lps', 0)}")
    poll4(a, 2, 4, "s[40:41]")
    a(st(11)); a(job())
    a(f"""
    s_lshl_b32 s40, 0x80000, s16
    s_lshl_b32 s41, 8, s16
    s_add_u32 s22, s16, 3
    s_mul_i32 s22, s22, 10240
    s_add_u32 s26, s24, s22
    s_waitcnt vmcnt(0)
    {st(12)}
    s_barrier
    s_cmp_eq_u32 s16, 3
    s_cbranch_scc1 H_JB
    """)
    poll4(a, 2, 4, "s[40:41]")
    a(job())
    a(f"""
H_JB:
    s_lshl_b32 s41, 0x4440, s16
    s_and_b32 s41, s41, 0xffff
    s_lshl_b32 s40, s41, 16
    s_add_u32 s22, s16, 6
    s_mul_i32 s22, s22, 10240
    s_add_u32 s26, s24, s22
    s_waitcnt vmcnt(0)
    """)
    ladd(a, HPA, HONE, 64)
    lwait(a, HPA, 4, 0xff, 1)
    poll4(a, 2, 4, "s[40:41]", slp=8)
    a(f"{st(13)}\nH_JC:"); a(job())
    a(f"""
    s_add_u32 s22, s22, 40960
    s_add_u32 s26, s26, 40960
    s_cmp_lt_u32 s22, {HS}
    s_cbranch_scc1 H_JC
    s_waitcnt vmcnt(0)
    {st(4)}
    """)
    ladd(a, HPA, HONE, 72)
    a(f"""
    s_cmp_lt_u32 s16, 3
    s_cbranch_scc1 H_FNET
    """)
    a(f"""
    {srd(32, X_P, 2048*1280)}
    {srd(36, GATE_P, 1280)}
    v_lshrrev_b32 v2, 3, v0
    v_and_b32 v3, 7, v0
    v_lshlrev_b32 v3, 4, v3
    s_movk_i32 s22, 1280
    v_mad_u32_u24 v4, v2, s22, v3
    s_mul_i32 s23, s2, {8*1280}
    """)
    for j in range(10):
        a(f"buffer_load_dwordx4 {vr(24+8*j,4)}, v4, s[32:35], s23 offen offset:{128*j}")
        a(f"buffer_load_dwordx4 {vr(28+8*j,4)}, v3, s[36:39], 0 offen offset:{128*j}")
    a("v_mov_b32 v5, 0\nv_mov_b32 v6, 0\ns_waitcnt vmcnt(0)")
    for j in range(10):
        for q in range(4):
            a(f"v_dot2c_f32_bf16 v{5 + (q & 1)}, v{24+8*j+q}, v{28+8*j+q}")
    a(f"""
    s_nop 2
    v_add_f32 v5, v5, v6
    s_nop 1
    v_add_f32_dpp v5, v5, v5 quad_perm:[1,0,3,2] row_mask:0xf bank_mask:0xf
    s_nop 1
    v_add_f32_dpp v5, v5, v5 quad_perm:[2,3,0,1] row_mask:0xf bank_mask:0xf
    s_nop 1
    v_add_f32_dpp v5, v5, v5 row_half_mirror row_mask:0xf bank_mask:0xf
    v_mul_f32 v5, {f32bits(-math.log2(math.e)):#x}, v5
    v_exp_f32 v5, v5
    v_lshlrev_b32 v2, 2, v2
    v_add_f32 v5, 1.0, v5
    v_rcp_f32 v5, v5
    s_lshl_b32 s23, s2, 5
    s_add_u32 s23, s23, {G_OFF}
    buffer_store_dword v5, v2, s[28:31], s23 offen sc1
    s_branch H_MID
    """)
    C, SN, FB = 0, 8, 16
    a(f"""
H_FNET:
    {'s_branch H_MID' if opt('nofnet', 0) == 1 else ''}
    s_lshl_b32 s22, s16, 5
    s_add_u32 s22, s22, s18
    s_cmp_lt_u32 s22, 84
    s_cbranch_scc1 H_FN_A
    s_sub_u32 s24, s22, 84
    s_lshl_b32 s24, s24, 3
    s_add_u32 s24, s24, s17
    s_cmp_ge_u32 s24, 21
    s_cbranch_scc1 H_MID
    s_mov_b32 s23, 32
    s_branch H_FN_B
H_FN_A:
    s_mul_i32 s23, s22, 3121
    s_lshr_b32 s23, s23, 16
    s_mul_i32 s24, s23, 21
    s_sub_u32 s24, s22, s24
    s_lshl_b32 s23, s23, 3
    s_add_u32 s23, s23, s17
H_FN_B:
    s_and_b32 s25, s23, 1
    s_add_u32 s26, s24, 20
    s_cmp_eq_u32 s24, 20
    s_cselect_b32 s26, 20, s26
    s_mul_i32 s32, s24, 26
    s_lshr_b32 s32, s32, 8
    s_lshl_b32 s32, s32, 13
    s_add_u32 s32, s32, {48 * 128}
    s_mul_i32 s33, s26, 26
    s_lshr_b32 s33, s33, 8
    s_lshl_b32 s33, s33, 13
    s_add_u32 s33, s33, {32 * 128}
    s_and_b32 s34, s23, 31
    s_lshl_b32 s34, s34, 8
    s_mov_b64 exec, 0xffff
    v_add_u32 v2, s32, v{LF}
    s_mov_b32 exec_lo, 0xffff0000
    v_add_u32 v2, s33, v{LF}
    s_mov_b32 exec_lo, 0
    s_mov_b32 exec_hi, 0xff
    v_add_u32 v2, s34, v{LT}
    s_mov_b32 s40, -1
    s_movk_i32 s41, 0xff
    s_mov_b32 s27, {FLG_OFF}
    """)
    poll4(a, 2, 4, "s[40:41]", "s27", slp=8)
    a(st(14))
    a(f"""
    s_lshl_b32 s32, s23, 16
    s_add_u32 s32, s32, {TB_OFF}
    s_mul_i32 s27, s25, {FO_DELTA}
    s_add_u32 s27, s27, {FE_OFF}
    s_lshl_b32 s33, s24, 14
    s_add_u32 s33, s33, s27
    s_lshl_b32 s34, s26, 14
    s_add_u32 s34, s34, s27
    s_cmp_eq_u32 s25, 0
    s_cselect_b32 s35, s24, s26
    s_lshl_b32 s35, s35, 6
    s_add_u32 s35, s35, {X512_OFF}
    buffer_load_dwordx4 v[128:131], v{XA5}, s[28:31], s35 offen sc1
    """)
    def fl(j):
        r = FB + 24 * j
        s_ = f"buffer_load_dwordx4 {vr(r,4)}, v163, s[28:31], s33 offen offset:{1024*j} sc1\n"
        s_ += f"buffer_load_dwordx4 {vr(r+4,4)}, v163, s[28:31], s34 offen offset:{1024*j} sc1\n"
        for k in range(4): s_ += f"buffer_load_dwordx4 {vr(r+8+4*k,4)}, v163, s[28:31], s32 offen offset:{1024*k} sc1\n"
        s_ += "s_add_u32 s32, s32, 4096\n"
        if j == 3: s_ += "s_add_u32 s33, s33, 4096\ns_add_u32 s34, s34, 4096\n"
        return s_
    def fm(j):
        r = FB + 24 * j
        s_ = ""
        if opt("nofnet", 0) == 2: return s_
        for sub in range(2):
            s_ += f"v_mfma_f32_16x16x32_bf16 {vr(C+4*sub,4)}, {vr(r,4)}, {vr(r+8+8*sub,4)}, {vr(C+4*sub,4)}\n"
            s_ += f"v_mfma_f32_16x16x32_bf16 {vr(SN+4*sub,4)}, {vr(r+4,4)}, {vr(r+12+8*sub,4)}, {vr(SN+4*sub,4)}\n"
        return s_
    for j in range(4): a(fl(j))
    a(f"""
    s_cmp_eq_u32 s25, 0
    s_cselect_b32 s36, 1.0, 0
    s_cselect_b32 s37, 0, 1.0
    v_or_b32 v161, s37, v{SG}
    v_or_b32 v160, s36, v{SG}
    s_waitcnt vmcnt(24)
    """)
    for r in range(8): a(f"v_mul_f32 v{C+r}, v160, v{128 + r % 4}\nv_mul_f32 v{SN+r}, v161, v{128 + r % 4}")
    a("s_mov_b32 s38, 0\nH_FN_LOOP:")
    for j in range(4):
        a("s_waitcnt vmcnt(18)"); a(fm(j)); a(fl(j))
    a("s_add_u32 s38, s38, 1\ns_cmp_lt_u32 s38, 3\ns_cbranch_scc1 H_FN_LOOP")
    for j in range(4):
        a(f"s_waitcnt vmcnt({18-6*j})"); a(fm(j))
    a(f"""
    s_cmp_eq_u32 s26, 20
    s_cselect_b32 s44, 0xffff, 0
    s_mov_b32 s45, 0
    s_mul_i32 s26, s24, {8*ZP}
    s_mul_i32 s27, s25, {ZP}
    s_add_u32 s26, s26, s27
    s_lshr_b32 s27, s23, 1
    s_lshl_b32 s27, s27, 9
    s_add_u32 s26, s26, s27
    s_add_u32 s26, s26, {Y_OFF}
    v_cndmask_b32 v{SN}, v{SN}, 0, s[44:45]
    v_cndmask_b32 v{SN+4}, v{SN+4}, 0, s[44:45]
    """)
    for r in range(8):
        a(f"v_add_f32 v{16+r}, v{C+r}, v{SN+r}\nv_sub_f32 v{C+r}, v{C+r}, v{SN+r}")
    for r in range(8): a(f"v_cvt_pk_bf16_f32 v{16+r}, v{16+r}, v{C+r}")
    a(f"buffer_store_dwordx4 v[16:19], v{FZ}, s[28:31], s26 offen sc1\nbuffer_store_dwordx4 v[20:23], v{FZ}, s[28:31], s26 offen offset:256 sc1")
    a(f"""
H_MID:
    s_lshl_b32 s19, s17, 2
    s_and_b32 s20, s18, 3
    s_add_u32 s19, s19, s20
    s_lshr_b32 s20, s18, 2
    {srd(32, WO_P, 640*1280)}
    {srd(36, OUT_P, 2621440)}
    s_mul_i32 s26, s20, 160
    s_mul_i32 s27, s16, {160*1280}
    s_add_u32 s27, s27, s26
    s_movk_i32 s23, {1280 - 160}
    """)
    a(f"""
    s_add_u32 s25, s16, 1
    s_and_b32 s25, s25, 3
    s_mul_i32 s22, s25, 25600
    s_add_u32 s22, s22, {WOL}
    s_add_u32 s25, s25, 3
    s_waitcnt vmcnt(0)
    {st(5)}
    """)
    lwait(a, HPA, T + 1, 0xff, 2)
    a(f"""s_mov_b64 exec, 1
    ds_add_rtn_u32 v{T+1}, v{HPA}, v{HONE} offset:48
    s_waitcnt lgkmcnt(0)
    v_cmp_eq_u32 vcc, 3, v{T+1}
    s_cbranch_vccz H_NOY
    buffer_store_dword v{HONE}, v{YFA}, s[28:31], 0 offen sc1
H_NOY:
    s_mov_b64 exec, -1""")
    lwait(a, HPA, T + 1, 0xff, "s25")
    a(f"{st(6)}\ns_mov_b32 s25, 0\nH_WO:")
    for i in range(5):
        a(f"s_add_u32 m0, s22, {1024*i}\ns_nop 0\nbuffer_load_dwordx4 v{WA+i}, s[32:35], s27 offen lds")
    a(f"""
    s_add_u32 s22, s22, 5120
    s_add_u32 s27, s27, {32*1280}
    s_add_u32 s25, s25, 1
    s_cmp_lt_u32 s25, 5
    s_cbranch_scc1 H_WO
    s_cmp_lg_u32 s16, 3
    s_cbranch_scc1 H_YW
    """)
    lwait(a, HPA, T + 1, 0xff, opt("ypr", 5), 16)
    a(f"s_mov_b32 s27, {FLG_OFF + 32768}")
    poll4(a, VA, 4, "-1", "s27", slp=16)
    ladd(a, HPA, HONE, 40)
    a(f"H_YW:\nv_add_u32 v{T}, 40, v{HPA}")
    lwait(a, T, T + 1, 1, 1, 16)
    a("s_waitcnt vmcnt(0)")
    a(f"v_mov_b32 v{T}, 2")
    ladd(a, HPA, T, 32)
    a(f"{st(7)}\ns_mov_b32 s26, {Y_OFF}\ns_mov_b32 s27, {G_OFF}\nbuffer_load_dword v{G}, v{VG}, s[28:31], s27 offen sc1")
    for j in range(6):
        a(f"buffer_load_dwordx4 {vr(ZL+4*j,4)}, v{VZ}, s[28:31], s26 offen sc1\ns_add_u32 s26, s26, {2*ZP}")
    BF, OFR, ACC, YG = 0, 100, 120, 140
    VY2, G2 = 162, 167
    a(f"""
    s_waitcnt vmcnt(0)
    s_cmp_ge_u32 s20, 4
    s_cbranch_scc1 H_DESC
    """)
    for k in range(10): a(f"v_perm_b32 v{YG+10+k}, v{ZL+2*k+1}, v{ZL+2*k}, v{SH}")
    a("s_branch H_UNP\nH_DESC:")
    for k in range(10): a(f"v_perm_b32 v{YG+10+k}, v{ZL+19-2*k}, v{ZL+20-2*k}, v{SH}")
    a("H_UNP:")
    lwait(a, HPA, 8, 0xf, 8)
    a(f"""
    {st(8)}
    s_mov_b32 s41, s16
    s_mov_b32 s47, 0
P3_GO:
    s_setprio {opt('p3o', 0)}
    s_lshl_b32 s22, s17, 3
    s_and_b32 s23, s18, 3
    s_add_u32 s22, s22, s23
    s_lshl_b32 s22, s22, 1
    s_add_u32 s22, s22, s47
    s_mul_i32 s22, s22, 20480
    s_add_u32 s22, s22, {OF_OFF}
    s_lshl_b32 s44, s41, 12
    s_add_u32 s44, s44, s22
    s_lshl_b32 s45, s41, 10
    s_add_u32 s45, s45, s22
    s_add_u32 s45, s45, 16384
    s_lshl_b32 s46, s47, 2
    s_add_u32 s40, s46, {LFB + 80}
    s_add_u32 s46, s46, s41
    s_mul_i32 s46, s46, 5120
    s_add_u32 s46, s46, {WOL}
    s_mov_b32 s26, 0
    s_mov_b32 s42, 0
    v_mov_b32 v{CM}, {LFB + 32}
    """)
    lwait(a, CM, CT, 1, 8)
    a("P3_TRY:")
    for k in range(4):
        a(f"buffer_load_dwordx4 {vr(OFR+4*k,4)}, v{VA}, s[28:31], s44 offen offset:{1024*k} sc1")
    a(f"buffer_load_dwordx2 {vr(OFR+16,2)}, v{VT}, s[28:31], s45 offen sc1\nbuffer_load_dwordx2 {vr(OFR+18,2)}, v{VT}, s[28:31], s45 offen offset:128 sc1")
    a(f"""
    s_cmp_lg_u32 s26, 0
    s_cbranch_scc1 P3_CHK
    s_add_u32 s23, s41, 1
    s_and_b32 s23, s23, 3
    s_mul_i32 s23, s23, 25600
    s_add_u32 s23, s23, {WOL}
    v_add_u32 v{CM}, s23, v{BMM}
    v_add_u32 v{CT}, s23, v{BMT}
    """)
    for n in range(25):
        k, t = divmod(n, 5); d = BF + 4 * n
        bb, o, dj = (CM, k * 6400 + t * 8, 1280) if k < 4 else (CT, t * 8, 3200)
        a(f"ds_read_b64_tr_b16 {vr(d,2)}, v{bb} offset:{o}\nds_read_b64_tr_b16 {vr(d+2,2)}, v{bb} offset:{o+dj}")
    a(f"v_mov_b32 v{BMM}, {LFB + 36}\nv_mov_b32 v{BMT}, 1\ns_waitcnt lgkmcnt(0)")
    ladd(a, BMM, BMT, 0)
    b = OFR
    def mfs(k): return "\n".join(f"v_mfma_f32_16x16x32_bf16 {vr(ACC+4*t,4)}, {vr(BF+4*(5*k+t),4)}, {vr(OFR+4*k,4)}, {vr(ACC+4*t,4) if k else 0}" for t in range(5))
    if opt("spec", 1):
        a("P3_CHK:\ns_add_u32 s26, s26, 1\ns_mov_b32 s43, -1")
        for k in range(5):
            r = b + 4 * k
            a(f"""P3_C{k}:
            s_waitcnt vmcnt({max(0, 5 - k) if k < 4 else 0})
            v_max3_u32 v{CM}, v{r}, v{r+1}, v{r+2}
            v_max3_u32 v{CM}, v{r+3}, v{CM}, 1
            v_cmp_eq_u32 vcc, s43, v{CM}
            s_cbranch_vccnz P3_B{k}
            {mfs(k)}""")
        a(f"{'' if opt('fst', 0) else st(11)}\ns_branch P3_OK")
        for k in range(5):
            a(f"P3_B{k}:\ns_sleep {opt('p3s', 4)}")
            for kk in range(k, 4):
                a(f"buffer_load_dwordx4 {vr(OFR+4*kk,4)}, v{VA}, s[28:31], s44 offen offset:{1024*kk} sc1")
            a(f"buffer_load_dwordx2 {vr(OFR+16,2)}, v{VT}, s[28:31], s45 offen sc1\nbuffer_load_dwordx2 {vr(OFR+18,2)}, v{VT}, s[28:31], s45 offen offset:128 sc1")
            a(f"s_add_u32 s26, s26, 1\ns_cmp_lt_u32 s26, 0x40000\ns_cselect_b32 s43, -1, 0\ns_branch P3_C{k}")
        a("P3_OK:")
    else:
        a(f"P3_CHK:\ns_add_u32 s26, s26, 1\ns_waitcnt vmcnt(4)\nv_max3_u32 v{CM}, v{b}, v{b+1}, v{b+2}\nv_max3_u32 v{CT}, v{b+3}, v{b+4}, v{b+5}\nv_max3_u32 v{CM}, v{b+6}, v{b+7}, v{CM}\ns_waitcnt vmcnt(2)")
        a(f"v_max3_u32 v{CT}, v{b+8}, v{b+9}, v{CT}\nv_max3_u32 v{CM}, v{b+10}, v{b+11}, v{CM}\nv_max3_u32 v{CT}, v{b+12}, v{b+13}, v{CT}\nv_max3_u32 v{CM}, v{b+14}, v{b+15}, v{CM}\ns_waitcnt vmcnt(0)")
        a(f"""
    v_max3_u32 v{CT}, v{b+16}, v{b+17}, v{CT}
    v_max3_u32 v{CM}, v{b+18}, v{b+19}, v{CM}
    s_cmp_lt_u32 s26, 0x40000
    v_max_u32 v{CM}, v{CM}, v{CT}
    s_cbranch_scc0 P3_OK
    v_cmp_eq_u32 vcc, -1, v{CM}
    s_cbranch_vccz P3_OK
    s_sleep {opt("p3s", 4)}
    s_branch P3_TRY
P3_OK:
    {'' if opt('fst', 0) else st(11)}
    s_setprio {opt('p3p', 0)}
    """)
        for n in range(25):
            k, t = divmod(n, 5)
            a(f"v_mfma_f32_16x16x32_bf16 {vr(ACC+4*t,4)}, {vr(BF+4*n,4)}, {vr(OFR+4*k,4)}, {vr(ACC+4*t,4) if k else 0}")
    a("s_cmp_lg_u32 s42, 0\ns_cbranch_scc1 P3_WR")
    lwait(a, BMM, CT, 1, 8, 2)
    a(f"{str() if opt('fst', 0) else st(12)}\nP3_WR:\nv_add_u32 v{CM}, s46, v{VA}\nv_mov_b32 v{CT}, s40\ns_nop 1")
    for j in range(5): a(f"ds_write_b128 v{CM}, {vr(ACC+4*j,4)} offset:{1024*j}")
    a("s_waitcnt lgkmcnt(0)")
    ladd(a, CT, BMT, 0)
    a(f"""
    s_add_u32 s44, s44, {8*20480}
    s_add_u32 s45, s45, {8*20480}
    s_add_u32 s46, s46, {8*5120}
    s_add_u32 s40, s40, 8
    s_add_u32 s42, s42, 1
    s_cmp_ge_u32 s42, 2
    s_cbranch_scc1 P3_END
    s_cmp_ge_u32 s16, 4
    s_cbranch_scc1 P3_TRY
    """)
    for k in range(10): a(f"v_lshlrev_b32 v{YG+2*k}, 16, v{YG+10+k}\nv_and_b32 v{YG+2*k+1}, 0xffff0000, v{YG+10+k}")
    for k in range(20): a(f"v_mul_f32 v{YG+k}, v{YG+k}, v{G2}")
    a(f"""
    v_sub_f32 v{G2}, 1.0, v{G2}
    s_branch P3_TRY
P3_END:
    {st(10)}
    s_cmp_ge_u32 s16, 4
    s_cbranch_scc1 {"L_DONE" if STAMP else "L_END"}
    s_setprio 3
    s_lshl_b32 s23, s16, 2
    s_add_u32 s23, s23, {LFB + 80}
    v_mov_b32 v{CT}, s23
    s_mul_i32 s23, s16, 20480
    s_add_u32 s23, s23, {WOL}
    v_add_u32 v{CM}, s23, v{VA}
    """)
    lwait(a, CT, BMM, 1, 4, 1)
    a(st(9))
    for j in range(5):
        for g in range(4): a(f"ds_read_b128 {vr(16*j+4*g,4)}, v{CM} offset:{5120*g+1024*j}")
    for j in range(5):
        a(f"s_waitcnt lgkmcnt({min(15, 16-4*j)})")
        for r in (0, 2): a(f"v_pk_add_f32 {vr(16*j+r,2)}, {vr(16*j+r,2)}, {vr(16*j+4+r,2)}\nv_pk_add_f32 {vr(16*j+8+r,2)}, {vr(16*j+8+r,2)}, {vr(16*j+12+r,2)}")
        for r in (0, 2): a(f"v_pk_add_f32 {vr(16*j+r,2)}, {vr(16*j+r,2)}, {vr(16*j+8+r,2)}")
        for r in range(4): a(f"v_fmac_f32 v{YG+4*j+r}, v{16*j+r}, v{G2}")
        a(f"v_cvt_pk_bf16_f32 v{84+2*j}, v{YG+4*j}, v{YG+4*j+1}\nv_cvt_pk_bf16_f32 v{84+2*j+1}, v{YG+4*j+2}, v{YG+4*j+3}")
        if j == 1: a(f"buffer_store_dwordx4 v[84:87], v{VY2}, s[36:39], 0 offen" + OSC)
        if j == 3: a(f"buffer_store_dwordx4 v[88:91], v{VY2}, s[36:39], 0 offen offset:16" + OSC)
    a(f"buffer_store_dwordx2 v[92:93], v{VY2}, s[36:39], 0 offen offset:32" + OSC)

DOC = """;
"""
def main():
    a = A()
    top = open("cdna_kernels/" + NAME + ".s.ref").read().split("; Override launch")[0]
    top += "; @launch grid=(256,1,1) block=(768,1,1) lds=163840\n"
    top += DOC
    a('.amdgcn_target "amdgcn-amd-amdhsa--gfx950"\n.text')
    d = gen(a)
    open(sys.argv[1], "w").write(top + a.text() + '.section .rodata,"a"\n.p2align 6\n' + d)
if __name__ == "__main__":
    main()
```

```python
import sys, math, struct

OPT = dict(x.split("=") for x in sys.argv[2:])
def opt(k, d): return int(OPT.get(k, d))
NAME = "gated_mix__spectral_fnet__softmax_full_mha__prompt"
HS = 163840
KV_OFF = 0
HG = HS + opt('pad', 512)
HQ = 81920 + opt('pad', 512)
Q_OFF = 32 * HG
FE_OFF = Q_OFF + 32 * HQ
FO_DELTA = 655360
X512_OFF = FE_OFF + 2 * FO_DELTA
TB_OFF = X512_OFF + 4096
Y_OFF = TB_OFF + 33 * 65536
ZP = 8704
G_OFF = Y_OFF + 85 * 2 * ZP
OF_OFF = G_OFF + 8192
FLG_OFF = OF_OFF + 2621440
WS_USED = FLG_OFF + 320 * 128
XB = 102400
L_Y = 256
QLDS = 61440
RB0, RSL = 11264, 36864
LFB = 158720
WOL = 5120
AK1, AK2, AV, BK1, BK2, BV, OA1, OA2, ONES, PA, FA = range(152, 163)
VA, VT, BMM, BMT, CM, CT = 163, 164, 165, 166, 160, 161
PXB = 107520
def p3_addr(l):
    return f"""v_lshlrev_b32 v{VA}, 4, v{l}
    v_and_b32 v2, 7, v{l}
    v_bfe_u32 v4, v{l}, 3, 1
    v_lshrrev_b32 v3, 4, v{l}
    v_lshlrev_b32 v{VT}, 8, v3
    v_lshl_add_u32 v{VT}, v2, 4, v{VT}
    v_lshl_add_u32 v{VT}, v4, 3, v{VT}
    v_bfe_u32 v2, v{l}, 2, 2
    v_and_b32 v5, 3, v{l}
    v_mul_u32_u24 v5, 40, v5
    v_mul_u32_u24 v4, 40, v3
    v_add3_u32 v4, v4, v2, 16
    v_mul_u32_u24 v4, 160, v4
    v_add_u32 v{BMT}, v4, v5
    v_lshrrev_b32 v4, 1, v3
    v_mul_u32_u24 v4, 20, v4
    v_and_b32 v3, 1, v3
    v_lshl_add_u32 v4, v3, 2, v4
    v_add_u32 v4, v4, v2
    v_mul_u32_u24 v4, 160, v4
    v_add_u32 v{BMM}, v4, v5"""

def f32bits(x): return struct.unpack("<I", struct.pack("<f", x))[0]
QSCALE = f32bits((20 ** -0.5) * math.log2(math.e))
STAMP = opt("stamp", 0)
STAMP_OFF = 1 << 25
NST = 16

class A:
    def __init__(self): self.l = []; self.n = 0
    def __call__(self, s):
        for line in s.split("\n"):
            t = line.strip()
            if not t: continue
            self.l.append(t if t.endswith(":") or t.startswith(".") else "    " + t)
    def uid(self): self.n += 1; return self.n
    def text(self): return "\n".join(self.l) + "\n"

def vr(a, n): return f"v[{a}:{a+n-1}]" if n > 1 else f"v{a}"
def srd(lo, base, size):
    return f"s_mov_b32 s{lo}, s{base}\ns_mov_b32 s{lo+1}, s{base+1}\ns_mov_b32 s{lo+2}, {size}\ns_mov_b32 s{lo+3}, 0x20000"
OSC = " sc1" if opt("outsc1", 0) else ""
P1ST = opt("p1st", 0)
def st(i, p1=False):
    if not STAMP: return ""
    if P1ST and not p1 and 0 < i < 15 and i not in (4, 5): return ""
    if P1ST and not p1 and i in (4, 5): i += 8
    if p1 and not P1ST: return ""
    return f"{'s_memrealtime' if STAMP in (1, 3, 4) else 's_memtime'} s[{64+2*i}:{65+2*i}]"
def fin(): return "s_branch L_DONE" if STAMP else "s_endpgm"

X_P, WD_P, WQKV_P, WO_P, GATE_P, OUT_P, DBG_P, WS_P = 4, 8, 48, 50, 52, 54, 56, 58

def poll(a, vaddr, vdat, mask, target, sreg=60):
    u = a.uid()
    a(f"""
    s_mov_b64 exec, {mask}
    s_mov_b32 s{sreg}, 0
L_POLL{u}:
    buffer_load_dword v{vdat}, v{vaddr}, s[28:31], 0 offen sc1
    s_waitcnt vmcnt(0)
    v_cmp_gt_u32 vcc, {target}, v{vdat}
    s_cbranch_vccz L_POLLD{u}
    {'s_sleep 1' if opt('psleep', 0) else ''}
    s_add_u32 s{sreg}, s{sreg}, 1
    s_cmp_lt_u32 s{sreg}, 0x40000
    s_cbranch_scc1 L_POLL{u}
L_POLLD{u}:
    s_mov_b64 exec, -1
    """)

def poll4(a, vaddr, vdat, mask, soff="0", sreg=60, slp=None):
    u = a.uid()
    a(f"""
    s_mov_b64 exec, {mask}
    s_mov_b32 s{sreg}, 0
    s_branch L_POLLE{u}
L_POLL{u}:
    s_sleep {slp or opt("ps4", 2)}
L_POLLE{u}:
    buffer_load_dwordx4 {vr(vdat,4)}, v{vaddr}, s[28:31], {soff} offen sc1
    s_add_u32 s{sreg}, s{sreg}, 1
    s_waitcnt vmcnt(0)
    v_min3_u32 v{vdat}, v{vdat}, v{vdat+1}, v{vdat+2}
    s_cmp_lt_u32 s{sreg}, 0x40000
    v_min_u32 v{vdat}, v{vdat}, v{vdat+3}
    s_cbranch_scc0 L_POLLD{u}
    v_cmp_eq_u32 vcc, 0, v{vdat}
    s_cbranch_vccnz L_POLL{u}
L_POLLD{u}:
    s_mov_b64 exec, -1
    """)

def gen(a):
    label = NAME + "_kernel"
    a(f".p2align 8\n.globl {label}\n.type {label},@function\n{label}:")
    a(f"""
    s_cmp_ge_u32 s2, 256
    s_cbranch_scc1 L_END
    {st(0) + chr(10) + 's_waitcnt lgkmcnt(0)' if opt("st0first", 0) else ''}
    s_load_dwordx2 s[4:5], s[0:1], 0
    s_load_dwordx8 s[48:55], s[0:1], 48
    s_load_dwordx4 s[8:11], s[0:1], 24
    s_load_dwordx4 s[56:59], s[0:1], 80
    """)
    if STAMP:
        a("\n".join(f"s_mov_b32 s{64+j}, 0" for j in range(2, 2 * NST)) + "\n" + ("" if opt("st0first", 0) else st(0)))
    a(f"""
    v_lshrrev_b32 v1, 6, v0
    v_and_b32 v0, 63, v0
    s_and_b32 s17, s2, 7
    v_readfirstlane_b32 s16, v1
    s_lshr_b32 s18, s2, 3
    s_and_b32 s19, s18, 7
    s_lshr_b32 s22, s18, 3
    s_and_b32 s21, s17, 1
    s_lshl_b32 s23, s19, 1
    s_add_u32 s21, s21, s23
    s_lshr_b32 s20, s17, 1
    s_cmp_ge_u32 s19, {opt("numl", 3)}
    s_cselect_b32 s12, 1, 0
    s_cmp_eq_u32 s22, 0
    s_cselect_b32 s12, 0, s12
    s_cmp_ge_u32 s16, 4
    s_cbranch_scc1 P1_NOTLOADER
    """)
    p1_loader(a)
    a(f"""
P1_NOTLOADER:
    s_lshl_b32 s63, s17, 2
    s_add_u32 s63, s63, s22
    s_mul_i32 s14, s63, {HG}
    s_sub_u32 s13, s16, 4
    s_lshl_b32 s23, s19, 3
    s_add_u32 s23, s23, s13
    s_mul_i32 s23, s23, 40960
    s_add_u32 s23, s23, {OF_OFF}
    s_lshl_b32 s6, s63, 9
    s_add_u32 s6, s6, s23
    s_lshl_b32 s7, s63, 7
    s_add_u32 s7, s7, s23
    s_add_u32 s7, s7, 16384
    s_lshl_b32 s15, s20, 2
    s_add_u32 s15, s15, s22
    s_lshl_b32 s15, s15, 4
    s_add_u32 s15, s15, s21
    s_lshl_b32 s15, s15, 5
    s_add_u32 s15, s15, s13
    s_lshl_b32 s15, s15, 2
    s_add_u32 s15, s15, {FLG_OFF}
    v_and_b32 v1, 31, v0
    v_lshrrev_b32 v2, 5, v0
    v_lshlrev_b32 v{AK1}, 4, v0
    v_lshrrev_b32 v3, 4, v1
    v_lshl_add_u32 v3, v3, 1, v2
    v_and_b32 v4, 15, v0
    v_lshl_add_u32 v3, v4, 2, v3
    v_lshlrev_b32 v{AK2}, 2, v3
    v_mul_u32_u24 v{AV}, 384, v2
    v_lshlrev_b32 v3, 6, v2
    v_cmp_gt_u32 vcc, 16, v1
    s_nop 1
    v_cndmask_b32 v{AV}, v3, v{AV}, vcc
    v_lshl_add_u32 v{AV}, v1, 4, v{AV}
    v_add_u32 v{BK1}, 15360, v{AK1}
    v_add_u32 v{BK2}, 15360, v{AK2}
    v_add_u32 v{BV}, 15360, v{AV}
    v_and_b32 v3, 27, v1
    v_cmp_eq_u32 vcc, 24, v3
    v_mov_b32 v3, 0x3f803f80
    v_bfe_u32 v{OA2}, v1, 3, 1
    v_cndmask_b32 v{ONES}, 0, v3, vcc
    v_mul_u32_u24 v{OA2}, 20480, v{OA2}
    v_and_b32 v3, 7, v1
    v_lshl_add_u32 v{OA2}, v3, 4, v{OA2}
    v_lshrrev_b32 v3, 4, v0
    v_lshl_add_u32 v{OA1}, v3, 7, v{OA2}
    s_lshl_b32 s23, s13, 2
    s_add_u32 s23, s23, {LFB}
    v_mov_b32 v{PA}, s23
    v_mov_b32 v{FA}, {LFB + 56}
    {p3_addr(0)}
    s_cmp_ge_u32 s16, 8
    s_cbranch_scc1 P1_EXTRA
    """)
    p1_compute(a)
    p1_extra(a)
    attention(a)
    helpers(a)
    a("L_DONE:")
    if STAMP == 4:
        i_, j_ = opt("ai", 0), opt("aj", 0)
        a(f"""s_waitcnt vmcnt(0)
        {st(NST-1)}
        s_waitcnt lgkmcnt(0)
        {f's_cmp_lg_u32 s16, {opt("aw1", 0)}' if opt("aw1", 0) else f's_cmp_ge_u32 s16, {opt("aw", 4)}'}
        s_cbranch_scc1 L_END
        s_and_b32 s60, s2, {opt("am", 31)}
        s_cmp_lg_u32 s60, {opt("av", 5)}
        s_cbranch_scc1 L_END
        s_sub_u32 s60, s{64+2*j_}, s{64+2*i_}
        s_lshl_b32 s60, s60, 2
        s_min_u32 s60, s60, 100000
        {f's_mov_b32 s60, {opt("fix", 0)}' if opt("fix", 0) else ''}
L_AMP:
        s_memrealtime s[44:45]
        s_waitcnt lgkmcnt(0)
        s_sub_u32 s44, s44, s{64 if opt("fix", 0) else 64+2*(NST-1)}
        s_cmp_lt_u32 s44, s60
        s_cbranch_scc1 L_AMP
        """)
    elif STAMP == 3:
        r = f"s_waitcnt vmcnt(0)\n{st(NST-1)}\ns_mov_b64 exec, 1\n{srd(44, DBG_P, 256)}\ns_waitcnt lgkmcnt(0)\nv_mov_b32 v16, 0\n"
        r += "s_not_b32 s60, s64\nv_mov_b32 v0, s60\nbuffer_atomic_umax v0, v16, s[44:47], 0 offen offset:4 sc1\n"
        r += "s_cmp_eq_u32 s16, 0\ns_cbranch_scc1 L_D0\ns_cmp_eq_u32 s16, 4\ns_cbranch_scc0 L_END\n"
        for n, i in enumerate((2, 3, 4, 5, 7, 8, 9)): r += f"v_mov_b32 v{n+1}, s{64+2*i}\nbuffer_atomic_umax v{n+1}, v16, s[44:47], 0 offen offset:{8+4*n} sc1\n"
        r += "s_endpgm\nL_D0:\n"
        for n, i in enumerate((0, 1, 6, 8, 9, 10, 15)): r += f"v_mov_b32 v{n+1}, s{64+2*i}\nbuffer_atomic_umax v{n+1}, v16, s[44:47], 0 offen offset:{36+4*n} sc1\n"
        a(r)
    elif STAMP:
        r = f"s_waitcnt vmcnt(0)\n{st(NST-1)}\ns_mov_b64 exec, 1\ns_add_u32 s44, s{WS_P}, {STAMP_OFF}\ns_addc_u32 s45, s{WS_P+1}, 0\ns_mov_b32 s46, 262144\ns_mov_b32 s47, 0x20000\n"
        r += "s_lshl_b32 s60, s2, 4\ns_add_u32 s60, s60, s16\ns_lshl_b32 s60, s60, 6\ns_waitcnt lgkmcnt(0)\nv_mov_b32 v16, 0\n"
        if opt("xcc", 0): r += "s_getreg_b32 s66, hwreg(HW_REG_XCC_ID)\ns_add_u32 s66, s66, 100\n"
        for i in range(NST): r += f"v_mov_b32 v{i}, s{64+2*i}\n"
        for i in range(4): r += f"buffer_store_dwordx4 v[{4*i}:{4*i+3}], v16, s[44:47], s60 offen offset:{16*i}\n"
        a(r)
    a("L_END:\ns_endpgm\n.fill 256, 4, 0xbf810000\nL_CODE_END:")
    return f""".amdhsa_kernel {label}
  .amdhsa_next_free_vgpr 168
  .amdhsa_next_free_sgpr {100 if STAMP else 64}
  .amdhsa_accum_offset 168
  .amdhsa_group_segment_fixed_size 0
  .amdhsa_kernarg_size 96
  .amdhsa_user_sgpr_count 2
  .amdhsa_user_sgpr_kernarg_segment_ptr 1
  .amdhsa_system_sgpr_workgroup_id_x 1
.end_amdhsa_kernel
"""

def p1_loader(a):
    a(f"""
    s_setprio 3
    """)
    if opt("pf", 0):
        a(f"""
        v_lshlrev_b32 v20, 4, v0
        s_mul_i32 s23, s2, 10240
        s_and_b32 s24, s16, 1
        s_mul_i32 s24, s24, 5120
        s_add_u32 s23, s23, s24
        s_mul_i32 s25, s2, 3
        s_mov_b32 s31, 0x20000
        s_mov_b32 s35, 0x20000
        s_mov_b32 s34, {640*1280}
        s_waitcnt lgkmcnt(0)
        s_mov_b32 s30, {2048*1280}
        s_cmp_lt_u32 s16, 2
        s_cselect_b32 s28, s{X_P}, s{WQKV_P}
        s_cselect_b32 s29, s{X_P+1}, s{WQKV_P+1}
        s_cselect_b32 s30, s30, {640*3840}
        s_cselect_b32 s32, s8, s10
        s_cselect_b32 s33, s9, s11
        buffer_load_dwordx4 v[24:27], v20, s[28:31], s23 offen
        buffer_load_dwordx4 v[28:31], v20, s[28:31], s23 offen offset:1024
        buffer_load_dwordx4 v[32:35], v20, s[28:31], s23 offen offset:2048
        buffer_load_dwordx4 v[36:39], v20, s[28:31], s23 offen offset:3072
        s_add_u32 s23, s23, 4096
        buffer_load_dwordx4 v[40:43], v20, s[28:31], s23 offen
        s_lshr_b32 s24, s24, 11
        s_add_u32 s25, s25, s24
        s_mul_i32 s25, s25, 1280
        s_mov_b32 exec_hi, 0xff
        buffer_load_dwordx4 v[44:47], v20, s[32:35], s25 offen
        s_bitcmp1_b32 s16, 0
        s_cbranch_scc1 P1_PF1
        buffer_load_dwordx4 v[48:51], v20, s[32:35], s25 offen offset:1280
P1_PF1:
        s_mov_b32 exec_hi, -1
        """)
    a(f"""
    v_lshrrev_b32 v2, 3, v0
    v_and_b32 v3, 7, v0
    v_lshrrev_b32 v4, 4, v0
    v_xor_b32 v3, v3, v4
    v_lshlrev_b32 v3, 4, v3
    v_xor_b32 v4, 64, v3
    s_lshl_b32 s23, s21, 5
    s_lshr_b32 s24, s16, 1
    s_lshl_b32 s24, s24, 4
    s_add_u32 s23, s23, s24
    v_add_u32 v9, s23, v2
    s_bitcmp1_b32 s16, 0
    s_cselect_b32 s23, -1, 1
    s_cselect_b32 s24, 0x400, 0
    s_cselect_b32 s25, -8, 8
    v_mul_lo_u32 v10, v9, s23
    s_sub_u32 s27, 0x800, s24
    v_add_u32 v5, s24, v10
    v_sub_u32 v7, s27, v10
    v_add_u32 v6, s25, v5
    v_subrev_u32 v8, s25, v7
    v_cmp_eq_u32 vcc, 0, v9
    s_add_u32 s24, s24, 0x200
    v_mov_b32 v9, s24
    s_cmp_lg_u32 s22, 2
    v_cndmask_b32 v7, v7, v9, vcc
    s_cbranch_scc1 P1_LD_NV
    v_swap_b32 v6, v7
P1_LD_NV:
    s_movk_i32 s27, 1280
    v_mad_u32_u24 v10, v5, s27, v3
    v_mad_u32_u24 v11, v6, s27, v4
    v_mad_u32_u24 v12, v7, s27, v3
    v_mad_u32_u24 v13, v8, s27, v4
    """)
    EX = opt("early", 1) and opt("stag1", 7) == 7
    if EX:
        a(f"""
        s_lshr_b32 s36, s17, 1
        s_xor_b32 s36, s36, s17
        s_and_b32 s36, s36, 1
        s_xor_b32 s36, s36, 9
        s_lshl_b32 s41, s36, 7
        s_lshl_b32 s44, s16, 12
        s_add_u32 m0, s44, {RB0 + 2 * RSL}
        s_waitcnt lgkmcnt(0)
        {srd(28, X_P, 2048*1280)}
        buffer_load_dwordx4 v10, s[28:31], s41 offen lds
        """)
        for i in range(1, 4):
            a(f"s_add_u32 m0, s44, {RB0 + 2 * RSL + 1024*i}\ns_nop 0\nbuffer_load_dwordx4 v{10+i}, s[28:31], s41 offen lds")
    a(f"""
    s_lshl_b32 s26, s22, 2
    s_add_u32 s26, s26, s20
    s_and_b32 s27, s20, 1
    s_movk_i32 s25, 3840
    s_cmp_eq_u32 s22, 3
    s_cselect_b32 s25, 1280, s25
    s_cselect_b32 s26, s27, s26
    s_mul_i32 s26, s26, 320
    s_lshl_b32 s27, s16, 4
    s_mul_i32 s27, s27, s25
    s_add_u32 s26, s26, s27
    s_sub_u32 s27, s25, 320
    """)
    for i in range(5):
        a(f"""
        v_add_u32 v5, {64*i}, v0
        v_mul_u32_u24 v6, 3277, v5
        v_lshrrev_b32 v6, 16, v6
        v_lshrrev_b32 v7, 2, v6
        v_and_b32 v7, 2, v7
        v_xor_b32 v5, v5, v7
        v_lshl_add_u32 v5, v5, 4, s26
        v_mad_u32_u24 v{14+i}, v6, s27, v5
        """)
    sg = opt("stag1", 7)
    if sg == 1:
        a("s_lshl_b32 s36, s19, 3\ns_lshl_b32 s37, s22, 4\ns_add_u32 s36, s36, s37\ns_add_u32 s36, s36, s17\ns_and_b32 s36, s36, 63\ns_mul_i32 s36, s36, 10\ns_lshr_b32 s36, s36, 6")
    elif sg == 2:
        a("s_add_u32 s36, s19, s22\ns_lshl_b32 s36, s36, 4\ns_add_u32 s36, s36, s17\ns_add_u32 s36, s36, s17\ns_and_b32 s36, s36, 63\ns_mul_i32 s36, s36, 10\ns_lshr_b32 s36, s36, 6")
    elif sg == 3:
        a("s_add_u32 s36, s19, s22\ns_lshl_b32 s36, s36, 5\ns_lshl_b32 s37, s17, 2\ns_add_u32 s36, s36, s37\ns_and_b32 s36, s36, 63\ns_mul_i32 s36, s36, 10\ns_lshr_b32 s36, s36, 6")
    elif sg >= 10:
        nc = sg - 9
        Gn = 5 - nc
        rot = [2 * (nc + k % Gn) for k in range(2 * Gn - 1)]
        rv = sum(v << (4 * k) for k, v in enumerate(rot))
        com = sum((2 * k) << (4 * k) for k in range(nc))
        a(f"""
        s_lshr_b32 s36, s17, 1
        s_xor_b32 s36, s36, s17
        s_and_b32 s36, s36, 1
        s_add_u32 s37, s22, s19
        s_lshr_b32 s46, s17, 2
        s_lshl_b32 s46, s46, {opt("xsh", 1)}
        s_add_u32 s37, s37, s46
        s_mul_i32 s46, s37, {256 // Gn + 1}
        s_lshr_b32 s46, s46, 8
        s_mul_i32 s46, s46, {Gn}
        s_sub_u32 s37, s37, s46
        s_lshl_b32 s37, s37, 2
        s_lshr_b32 s46, {rv:#x}, s37
        s_and_b32 s46, s46, {(1 << (4 * Gn)) - 1:#x}
        s_lshl_b32 s46, s46, {4 * nc}
        s_or_b32 s46, s46, {0x53100000 | com:#x}
        s_mov_b32 s47, 0x97
        s_mul_i32 s37, s36, 0x11111111
        s_xor_b32 s46, s46, s37
        s_xor_b32 s47, s47, s37
        s_and_b32 s36, s46, 15
        """)
    elif sg >= 5:
        tsh = {5: 0, 6: 1, 7: 0, 8: 0, 9: 0}[sg]
        a(f"""
        s_lshr_b32 s36, s17, 1
        s_xor_b32 s36, s36, s17
        s_and_b32 s36, s36, 1
        {'s_min_u32 s37, s22, 2' if sg == 9 else f's_lshr_b32 s37, s22, {tsh}'}
        s_add_u32 s37, s37, s19
        s_lshr_b32 s46, s17, 2
        s_lshl_b32 s46, s46, 1
        s_add_u32 s37, s37, s46
        s_mul_i32 s46, s37, 52
        s_lshr_b32 s46, s46, 8
        s_mul_i32 s46, s46, 5
        s_sub_u32 s37, s37, s46
        s_lshl_b32 s37, s37, 2
        s_mov_b32 s46, 0x42086420
        s_mov_b32 s47, 0x6
        s_lshr_b64 s[46:47], s[46:47], s37
        s_and_b32 s46, s46, 0xfffff
        {'s_or_b32 s47, s46, 0x11111' + chr(10) + 's_lshl_b32 s37, s47, 20' + chr(10) + 's_or_b32 s46, s46, s37' + chr(10) + 's_lshr_b32 s47, s47, 12' if sg == 8 else 's_or_b32 s46, s46, 0x53100000' + chr(10) + 's_mov_b32 s47, 0x97'}
        s_mul_i32 s37, s36, 0x11111111
        s_xor_b32 s46, s46, s37
        s_xor_b32 s47, s47, s37
        """)
        if sg == 7:
            a("s_lshr_b32 s37, s47, 4\ns_and_b32 s37, s37, 15\ns_lshl_b64 s[46:47], s[46:47], 4\ns_or_b32 s46, s46, s37")
        a("s_and_b32 s36, s46, 15")
    else:
        a("s_mov_b32 s36, 0")
    a(f"""
    s_lshl_b32 s38, s16, 12
    s_add_u32 s38, s38, {RB0}
    s_mul_i32 s39, s16, 5120
    s_add_u32 s39, s39, {RB0 + 16384}
    s_mov_b32 s40, 0
    s_mul_i32 s34, s25, 640
    s_lshl_b32 s25, s25, 6
    s_mov_b32 s35, 0x20000
    s_waitcnt lgkmcnt(0)
    {srd(28, X_P, 2048*1280)}
    s_cmp_lt_u32 s20, 2
    s_cselect_b32 s32, s8, s10
    s_cselect_b32 s33, s9, s11
    s_cmp_eq_u32 s22, 3
    s_cselect_b32 s32, s32, s{WQKV_P}
    s_cselect_b32 s33, s33, s{WQKV_P+1}
    {st(1)}
    """)
    if opt("dftdelay", 0):
        a(f"""s_cmp_lg_u32 s22, 3
        s_cbranch_scc1 P1_LD_LOOP
        s_memrealtime s[42:43]
        s_waitcnt lgkmcnt(0)
        s_add_u32 s42, s42, {opt("dftdelay", 0)}
P1_DLY:
        s_memrealtime s[44:45]
        s_waitcnt lgkmcnt(0)
        s_cmp_lt_u32 s44, s42
        s_cbranch_scc1 P1_DLY
        """)
    a(f"""
P1_LD_LOOP:
    s_lshl_b32 s41, s36, 7
    s_mul_i32 s42, s36, s25
    s_add_u32 s43, s40, 2
    s_and_b32 s43, s43, 3
    s_mul_i32 s43, s43, {RSL}
    s_add_u32 s44, s43, s38
    s_add_u32 s45, s43, s39
    """)
    if EX: a("s_cmp_eq_u32 s40, 0\ns_cbranch_scc1 P1_LD_WW")
    for i in range(4):
        a(f"s_add_u32 m0, s44, {1024*i}\ns_nop 0\nbuffer_load_dwordx4 v{10+i}, s[28:31], s41 offen lds")
    a("P1_LD_WW:")
    for i in range(5):
        a(f"s_add_u32 m0, s45, {1024*i}\ns_nop 0\nbuffer_load_dwordx4 v{14+i}, s[32:35], s42 offen lds")
    if opt("noload", 0): a("s_cmp_ge_u32 s40, 3\ns_cselect_b32 s30, 0, s30\ns_cselect_b32 s34, 0, s34")
    a(f"""
    {'s_lshr_b64 s[46:47], s[46:47], 4' + chr(10) + 's_and_b32 s36, s46, 15' if sg >= 5 else 's_add_u32 s36, s36, 1' + chr(10) + 's_cmp_eq_u32 s36, 10' + chr(10) + 's_cselect_b32 s36, 0, s36'}
    s_add_u32 s40, s40, 1
    s_cmp_eq_u32 s40, 1
    s_cbranch_scc1 P1_LD_LOOP
    s_waitcnt vmcnt(9)
    s_barrier
    s_cmp_lt_u32 s40, 10
    s_cbranch_scc1 P1_LD_LOOP
    s_waitcnt vmcnt(0)
    s_barrier
    s_branch HELPER
    """)

def p1_compute(a):
    X = 80; W = [96, 116]; XA = 136; WA = 137; CX = 142; CW = 144; PC = 149; L = 150; TT = 96
    def acc(b, T): return 20 * b + 4 * T
    a(f"""
    s_sub_u32 s61, s16, 4
    s_and_b32 s36, s61, 1
    s_lshr_b32 s37, s61, 1
    v_mov_b32 v{L}, v0
    v_and_b32 v1, 15, v0
    v_lshrrev_b32 v2, 4, v0
    v_lshrrev_b32 v3, 1, v1
    v_xor_b32 v3, v3, v2
    v_lshlrev_b32 v3, 4, v3
    v_lshl_add_u32 v3, v1, 7, v3
    s_lshl_b32 s23, s36, 13
    s_add_u32 s23, s23, {RB0}
    v_add_u32 v{XA}, s23, v3
    v_bfe_u32 v3, v0, 2, 2
    v_lshl_add_u32 v3, v2, 3, v3
    v_mul_u32_u24 v3, 320, v3
    v_add_u32 v3, {RB0 + 16384}, v3
    v_and_b32 v4, 16, v0
    v_lshlrev_b32 v4, 1, v4
    v_and_b32 v5, 3, v0
    s_mul_i32 s23, s37, 160
    v_lshl_add_u32 v6, v5, 3, s23
    """)
    for T in range(4):
        a(f"v_xor_b32 v7, v6, v4\nv_add_u32 v{WA+T}, v7, v3\nv_add_u32 v6, 40, v6")
    a(f"""
    v_mul_u32_u24 v6, 40, v5
    v_add3_u32 v6, v6, s23, 32
    v_xor_b32 v7, v6, v4
    v_add_u32 v{WA+4}, v7, v3
    v_mov_b32 v{PC}, 0xbf803f80
    s_lshl_b32 s26, s22, 2
    s_add_u32 s26, s26, s20
    s_lshl_b32 s26, s26, 1
    s_add_u32 s26, s26, s37
    s_cmp_eq_u32 s26, 28
    s_cselect_b32 s24, 0x10001, 0
    s_mov_b32 s25, s24
    s_cmp_eq_u32 s22, 3
    s_cselect_b32 s43, 10, 8
    s_mov_b32 s40, 0
    s_mov_b32 s42, {2 * RSL}
    """)
    for r in range(96): a(f"v_mov_b32 v{r}, 0")
    for r in range(20): a(f"v_mov_b32 v{W[1]+r}, 0")
    a(f"v_add_u32 v{CX}, s42, v{XA}")
    for T in range(5): a(f"v_add_u32 v{CW+T}, s42, v{WA+T}")
    a(f"s_waitcnt lgkmcnt(0)\n{srd(28, WS_P, WS_USED)}")
    a(f"s_setprio {opt('cp', 2)}\ns_cmp_ge_u32 s22, 2\ns_cbranch_scc1 P1_PRE_V")
    def mf(b, T, x, w, qk):
        d = vr(acc(b, T), 4)
        return f"v_mfma_f32_16x16x32_bf16 {d}, {vr(w,4)}, {vr(x,4)}, {d}" if qk else f"v_mfma_f32_16x16x32_bf16 {d}, {vr(x,4)}, {vr(w,4)}, {d}"
    def rdw(d, T, step): return [f"ds_read_b64_tr_b16 {vr(d+2*j,2)}, v{CW+T} offset:{(step // 2) * RSL + (step % 2) * 10240 + 1280 * j}" for j in range(2)]
    def rdx(d, b, step): return f"ds_read_b128 {vr(d,4)}, v{CX + step % 2} offset:{(step // 2) * RSL + 2048 * b}"
    TO = (1, 2, 3, 4, 0)
    def group(step, qk, reads=True, patch=True):
        cur = W[1 - step]; nxt = W[step]
        rq = []
        for T in TO: rq += rdw(nxt + 4 * T, T, step)
        fill = []
        if step == 1:
            fill = ["s_add_u32 s40, s40, 1", "s_add_u32 s41, s40, 2", "s_and_b32 s41, s41, 3", f"s_mul_i32 s42, s41, {RSL}", f"v_add_u32 v{CX}, s42, v{XA}"] + [f"v_add_u32 v{CW+T}, s42, v{WA+T}" for T in range(5)]
        issued = 0
        for b in range(4):
            if reads:
                allow = [2, 15, issued + 1, issued][b]
                if b != 1: a(f"s_waitcnt lgkmcnt({min(15, allow)})")
            elif b == 0: a("s_waitcnt lgkmcnt(0)")
            for n, T in enumerate(TO):
                a(mf(b, T, X + 4 * b, cur + 4 * T, qk))
                if b == 0 and n < 2 and not qk and patch:
                    for j in range(2): a(f"v_cndmask_b32 v{cur+2*n+j}, v{cur+2*n+j}, v{PC}, s[24:25]")
                if not reads: continue
                if step == 0 and b == 0:
                    if n == 0: a(f"v_xor_b32 v{CX+1}, 64, v{CX}")
                    if n == opt("bn", 1): a("s_barrier")
                    if n <= opt("bn", 1): continue
                if n == 4: a(rdx(X + 4 * b, b, step)); issued += 1
                elif rq:
                    a(rq.pop(0)); issued += 1
                    if rq and (opt("rd2", 0) or (step == 0 and b == 1 and n < opt("bn", 1) - 1)): a(rq.pop(0)); issued += 1
                elif fill:
                    a(fill.pop(0))
                    if fill: a(fill.pop(0))
        assert not reads or (not rq and not fill), (rq, fill)

    def tail(qk, epi):
        seq = [(b, T, ("x0", b), ("w0", T)) for b in range(4) for T in TO]
        marks = {}
        win = opt("win", 2)
        for step in range(4 - win):
            for b in range(4):
                for T in TO: seq.append((b, T, ("x", 0, step, b), ("w", step, T)))
        for T in range(5):
            for jj in range(2):
                for step in range(4 - win, 4):
                    for b in (2 * jj, 2 * jj + 1): seq.append((b, T, ("x", 0, step, b), ("w", step, T)))
                marks[len(seq) - 1] = (T, jj)
        last = {}
        for n, (_, _, x, w) in enumerate(seq): last[x] = n; last[w] = n
        loc = {("x0", b): X + 4 * b for b in range(4)}; loc.update({("w0", T): W[1] + 4 * T for T in range(5)})
        free = [W[0] + 4 * k for k in range(5)] + [XA]
        order = []
        for _, _, x, w in seq:
            for f in (w, x):
                if f not in loc and f not in order: order.append(f)
        done_at = {}; nrd = 0; waited = 0; pend = []; fill = []
        cnt = [0]; prev = [0]
        def em(t): a(t); cnt[0] += 1
        a(f"v_xor_b32 v{CX+1}, 64, v{CX}\ns_waitcnt lgkmcnt(0)\ns_barrier")
        bar2 = [True]
        def take():
            f = order.pop(0); loc[f] = free.pop(0)
            if bar2 and (f[1] if f[0] == "w" else f[2]) >= 2: em("s_barrier"); bar2.pop()
            p_ = rdw(loc[f], f[2], f[1]) if f[0] == "w" else [rdx(loc[f], f[3], f[2])]
            done_at[f] = nrd + len(p_)
            return p_
        def gap():
            t, at, after = fill[0]
            return max(at - cnt[0], prev[0] + after - cnt[0], 0)
        def put():
            em(fill.pop(0)[0]); prev[0] = cnt[0]
        for n, (b, T, x, w) in enumerate(seq):
            while any(f not in loc or (f in done_at and done_at[f] > nrd) for f in (x, w)):
                if not pend: pend = take()
                em(pend.pop(0)); nrd += 1
            need = max(done_at.get(x, 0), done_at.get(w, 0))
            if need > waited:
                waited = max(need, nrd - opt("tw", 6)); em(f"s_waitcnt lgkmcnt({nrd - waited})")
            em(mf(b, T, loc[x], loc[w], qk))
            if n in marks: fill += [(t, cnt[0] + 8, after) for t, after in epi(*marks[n])]
            for f in (x, w):
                if last[f] == n: free.append(loc[f])
            if not pend and order and free: pend = take()
            if pend: em(pend.pop(0)); nrd += 1
            for _ in range(2):
                if fill and gap() == 0: put()
        a(st(3))
        while fill:
            g_ = gap()
            if g_: a(f"s_nop {g_ - 1}"); cnt[0] += g_
            put()

    EA, EB = 167, 151
    def cv(d, r): return [f"v_cvt_pk_bf16_f32 v{d}, v{r}, v{r+1}", f"v_cvt_pk_bf16_f32 v{d+1}, v{r+2}, v{r+3}"]
    def epi_qk(ph, jj=0):
        if ph < 0:
            return f"""s_mov_b32 s35, {HG}
            s_movk_i32 s38, 2560
            s_cmp_eq_u32 s22, 0
            s_cselect_b32 s35, {HQ}, s35
            s_cselect_b32 s27, {Q_OFF}, {KV_OFF}
            s_cselect_b32 s38, 1280, s38
            s_lshl_b32 s26, s20, 1
            s_add_u32 s26, s26, s37
            s_lshl_b32 s26, s26, 2
            s_mul_i32 s26, s26, s35
            s_add_u32 s26, s26, s27
            s_lshl_b32 s23, s21, 1
            s_add_u32 s23, s23, s36
            s_lshl_b32 s23, s23, 1
            s_mul_i32 s23, s23, s38
            s_add_u32 s26, s26, s23
            s_add_u32 s27, s26, s38
            v_lshrrev_b32 v{EA}, 4, v{L}
            v_mul_lo_u32 v{EA}, v{EA}, s35
            v_and_b32 v{TT}, 15, v{L}
            v_lshl_add_u32 v{EA}, v{TT}, 4, v{EA}
            v_lshlrev_b32 v{EB}, 4, v{L}
            s_add_u32 s44, s26, s35
            s_add_u32 s45, s27, s35
            s_add_u32 s46, s44, s35
            s_add_u32 s47, s45, s35
            s_add_u32 s32, s46, s35
            s_add_u32 s33, s47, s35""".split("\n")
        T = ph
        r0, r1 = acc(2 * jj, T), acc(2 * jj + 1, T)
        o = [(t, 0) for t in cv(r0, r0) + cv(r0 + 2, r1)]
        if T < 4:
            o += [(f"v_permlane16_swap_b32 v{r0}, v{r0+2}", 1), (f"v_permlane16_swap_b32 v{r0+1}, v{r0+3}", 0)]
            o.append((f"buffer_store_dwordx4 {vr(r0,4)}, v{EB}, s[28:31], s{(26, 44, 46, 32)[T] + jj} offen sc1", 0))
        else:
            o.append((f"buffer_store_dwordx4 {vr(r0,4)}, v{EA}, s[28:31], s{26 + jj} offen offset:1024 sc1", 0))
        return o
    def epi_v(ph, jj=0):
        if ph < 0:
            return f"""s_lshl_b32 s26, s20, 1
            s_add_u32 s26, s26, s37
            s_mul_i32 s26, s26, {4*HG}
            s_lshl_b32 s23, s21, 1
            s_add_u32 s23, s23, s36
            s_mul_i32 s23, s23, 5120
            s_add_u32 s26, s26, s23
            s_add_u32 s26, s26, {KV_OFF + 1280}
            s_add_u32 s44, s26, {HG}
            s_add_u32 s45, s26, {2*HG}
            s_add_u32 s46, s26, {3*HG}
            s_mov_b32 s35, {HG}
            v_lshrrev_b32 v{EA}, 5, v{L}
            v_mul_u32_u24 v{EA}, 640, v{EA}
            v_bfe_u32 v{TT}, v{L}, 4, 1
            v_lshl_add_u32 v{EB}, v{TT}, 6, v{EA}
            v_mul_u32_u24 v{TT}, 384, v{TT}
            v_add_u32 v{EA}, v{EA}, v{TT}
            v_and_b32 v{TT}, 15, v{L}
            v_lshl_add_u32 v{EA}, v{TT}, 4, v{EA}
            v_and_b32 v{TT}, 3, v{L}
            v_lshl_add_u32 v{EB}, v{TT}, 4, v{EB}
            v_bfe_u32 v{TT}, v{L}, 2, 2
            v_mul_lo_u32 v{TT}, v{TT}, s35
            v_add_u32 v{EB}, v{EB}, v{TT}""".split("\n")
        T = ph
        r0, r1 = acc(2 * jj, T), acc(2 * jj + 1, T)
        o = [(t, 0) for t in cv(r0, r0) + cv(r0 + 2, r1)]
        if T < 4: o.append((f"buffer_store_dwordx4 {vr(r0,4)}, v{EA}, s[28:31], s{(26, 44, 45, 46)[T]} offen offset:{2560 * jj} sc1", 0))
        else: o.append((f"buffer_store_dwordx4 {vr(r0,4)}, v{EB}, s[28:31], s26 offen offset:{2560 * jj + 256} sc1", 0))
        return o

    for qk, lab in ((True, "QK"), (False, "V")):
        a(f"P1_PRE_{lab}:")
        for f in (epi_qk if qk else epi_v)(-1): a(f)
        SEP = opt("sep", 0)
        if SEP and not qk: a("s_cmp_eq_u32 s22, 3\ns_cbranch_scc1 P1_LOOP_D")
        a(f"P1_LOOP_{lab}:")
        group(0, qk, patch=not SEP)
        if STAMP: a(f"s_cmp_lg_u32 s40, 0\ns_cbranch_scc1 P1_ST_{lab}\n{st(2)}\nP1_ST_{lab}:\ns_cmp_lg_u32 s40, 5\ns_cbranch_scc1 P1_SU_{lab}\n{st(1)}\nP1_SU_{lab}:")
        group(1, qk, patch=not SEP)
        a(f"s_cmp_lt_u32 s40, s43\ns_cbranch_scc1 P1_LOOP_{lab}")
        if not qk: a("s_cmp_eq_u32 s22, 3\ns_cbranch_scc1 P1_EPI_DFT")
        a("s_cmp_eq_u32 s12, 1\ns_cselect_b32 s30, 0, s30")
        tail(qk, epi_qk if qk else epi_v)
        a(f"s_cmp_eq_u32 s12, 0\ns_cbranch_scc1 P1_DONE\ns_mov_b32 s30, {WS_USED}\nv_mov_b32 v88, {LFB + 56}\nv_mov_b32 v89, 1")
        ladd(a, 88, 89, 0)
        a("s_setprio 3\ns_barrier")
        for T in range(5):
            for jj in range(2): a((epi_qk if qk else epi_v)(T, jj)[-1][0])
        a("s_branch P1_DONE")
    if SEP:
        a("P1_LOOP_D:"); group(0, False); group(1, False)
        a("s_cmp_lt_u32 s40, s43\ns_cbranch_scc1 P1_LOOP_D")
    a("P1_EPI_DFT:")
    group(0, False, reads=False)
    TAU, TAU0, E0 = 80, 81, 140
    a(f"""
    {st(3)}
    s_cmp_lt_u32 s20, 2
    s_cselect_b32 s38, 1.0, -1.0
    v_mov_b32 v{TAU}, s38
    v_cndmask_b32 v{TAU0}, v{TAU}, 1.0, s[24:25]
    s_lshl_b32 s26, s20, 1
    s_add_u32 s26, s26, s37
    s_mul_i32 s26, s26, 80
    v_and_b32 v88, 15, v{L}
    v_add_u32 v{E0}, s26, v88
    v_add_u32 v{E0+1}, 20, v{E0}
    v_add_u32 v{E0+2}, 40, v{E0}
    v_add_u32 v{E0+3}, 60, v{E0}
    v_and_b32 v89, 12, v{L}
    v_lshl_add_u32 v{E0+4}, v89, 2, v{E0}
    v_add_u32 v{E0+4}, 16, v{E0+4}
    s_lshl_b32 s23, s21, 1
    s_add_u32 s23, s23, s36
    s_cmp_lg_u32 s23, 0
    s_cbranch_scc1 P1_EPI_DFT2
    s_mov_b64 exec, 0xffff
    s_mov_b32 s27, {X512_OFF}
    """)
    for T in range(5):
        a(f"v_fma_f32 v{96+T}, v{acc(3,T)}, v{TAU0 if T == 0 else TAU}, v{acc(1,T)}")
        a(f"v_lshlrev_b32 v{104+T}, 2, v{E0+T}\nv_mov_b32 v{acc(1,T)}, 0\nv_mov_b32 v{acc(3,T)}, 0")
        a(f"buffer_store_dword v{96+T}, v{104+T}, s[28:31], s27 offen sc1")
    a(f"""
    s_mov_b64 exec, -1
P1_EPI_DFT2:
    s_lshl_b32 s26, s23, 9
    s_add_u32 s26, s26, {FE_OFF}
    s_mov_b32 s27, {FO_DELTA}
    v_bfe_u32 v88, v{L}, 4, 1
    v_mul_lo_u32 v88, v88, s27
    v_lshrrev_b32 v89, 5, v{L}
    v_lshl_add_u32 v88, v89, 8, v88
    """)
    for T in range(5):
        tau = TAU0 if T == 0 else TAU
        a0, a1, a2, a3 = (acc(b, T) for b in range(4))
        for q in range(4):
            a(f"v_fma_f32 v{a0+q}, v{a1+q}, v{tau}, v{a0+q}\nv_fma_f32 v{a3+q}, v{a2+q}, v{tau}, v{a3+q}")
        for q in range(4):
            a(f"v_add_f32 v{a1+q}, v{a0+q}, v{a3+q}\nv_sub_f32 v{a2+q}, v{a0+q}, v{a3+q}")
        a0 = 120 + 4 * T
        for f in cv(a0, a1) + cv(a0 + 2, a2): a(f)
        a(f"""
        v_lshrrev_b32 v89, 4, v{E0+T}
        v_lshl_add_u32 v89, v89, 14, v88
        v_and_b32 v{E0+T}, 15, v{E0+T}
        v_lshl_add_u32 v{E0+T}, v{E0+T}, 4, v89
        v_permlane16_swap_b32 v{a0}, v{a0+2}
        v_permlane16_swap_b32 v{a0+1}, v{a0+3}
        """)
    a(f"v_mov_b32 v88, {LFB + 56}\nv_mov_b32 v89, 1\ns_mov_b32 s12, {opt('dnu', 1)}")
    ladd(a, 88, 89, 0)
    if opt("dnu", 1): a("s_setprio 3\ns_barrier")
    for T in range(5): a(f"buffer_store_dwordx4 {vr(120+4*T,4)}, v{E0+T}, s[28:31], s26 offen sc1")
    a(f"""
P1_DONE:
    {st(14)}
    s_mov_b32 s34, 1
    s_cmp_eq_u32 s12, 1
    s_cbranch_scc1 ATT
    s_mov_b32 s34, 0
    v_mov_b32 v84, 1
    v_mov_b32 v85, 1
    v_mov_b32 v86, 1
    v_mov_b32 v87, 1
    v_mov_b32 v88, {LFB + 44}
    v_mov_b32 v89, 0
    s_and_b32 s23, s15, -128
    s_mov_b64 exec, 1
    s_waitcnt vmcnt(0)
    ds_add_rtn_u32 v88, v88, v84
    s_waitcnt lgkmcnt(0)
    v_cmp_eq_u32 vcc, 3, v88
    s_cbranch_vccz P1_NS
    buffer_store_dwordx4 v[84:87], v89, s[28:31], s23 offen sc1
P1_NS:
    s_mov_b64 exec, -1
    s_branch ATT
    """)

def p1_extra(a):
    T0 = 40
    a(f"""
P1_EXTRA:
    s_sub_u32 s61, s16, 8
    """)
    if opt("cwarm", 1):
        a(f"""
        s_cmp_lg_u32 s16, 10
        s_cbranch_scc1 P1_NOCW
        s_lshl_b32 s23, s18, 10
        s_cmp_ge_u32 s23, L_CODE_END - {NAME}_kernel - 1023
        s_cbranch_scc1 P1_NOCW
        s_getpc_b64 s[44:45]
L_PC:
        s_sub_u32 s44, s44, L_PC - {NAME}_kernel
        s_subb_u32 s45, s45, 0
        v_lshl_add_u32 v40, v0, 4, s23
        global_load_dwordx4 v[44:47], v40, s[44:45]
P1_NOCW:
        """)
    a(f"""
    v_lshrrev_b32 v37, 4, v0
    v_and_b32 v38, 15, v0
    v_lshlrev_b32 v39, 4, v0
    v_mov_b32 v36, v0
    s_waitcnt lgkmcnt(0)
    {srd(28, WS_P, WS_USED)}
    {srd(32, DBG_P, 256)}
    s_cmp_lg_u32 s61, 0
    s_cbranch_scc1 P1_EX_A
    v_mov_b32 v1, 0
    v_lshlrev_b32 v2, 2, v0
    v_add_u32 v2, {LFB}, v2
    ds_write_b32 v2, v1
    s_waitcnt lgkmcnt(0)
    s_cmp_lt_u32 s2, 248
    s_cbranch_scc1 P1_EX_WAITRDY
    v_mov_b32 v4, 0
    v_mov_b32 v5, 0
    v_mov_b32 v6, 0
    v_mov_b32 v7, 0
    s_lshl_b32 s23, s17, 12
    s_add_u32 s23, s23, {FLG_OFF}
    buffer_store_dwordx4 v[4:7], v39, s[28:31], s23 offen sc1
    buffer_store_dwordx4 v[4:7], v39, s[28:31], s23 offen offset:1024 sc1
    buffer_store_dwordx4 v[4:7], v39, s[28:31], s23 offen offset:2048 sc1
    buffer_store_dwordx4 v[4:7], v39, s[28:31], s23 offen offset:3072 sc1
    s_lshl_b32 s23, s17, 7
    s_add_u32 s23, s23, {FLG_OFF + 32768}
    s_mov_b64 exec, 0xff
    buffer_store_dwordx4 v[4:7], v39, s[28:31], s23 offen sc1
    s_mov_b64 exec, -1
P1_EX_WAITRDY:
P1_EX_A:
    s_lshl_b32 s23, s2, 2
    s_add_u32 s23, s23, s61
    s_mov_b32 s40, 0
P1_TBL:
    s_lshr_b32 s24, s23, 5
    s_and_b32 s25, s23, 30
    s_and_b32 s26, s24, 1
    s_lshr_b32 s27, s24, 1
    s_lshl_b32 s27, s27, 6
    s_add_u32 s27, s27, s26
    s_and_b32 s26, s23, 1
    s_lshl_b32 s26, s26, 5
    s_add_u32 s27, s27, s26
    v_lshl_add_u32 v{T0}, v38, 1, s27
    s_lshl_b32 s25, s25, 4
    v_lshl_add_u32 v{T0+1}, v37, 3, s25
    v_mul_u32_u24 v{T0+1}, v{T0}, v{T0+1}
    v_and_b32 v{T0+1}, 0x7ff, v{T0+1}
    v_cvt_f32_u32 v{T0}, v{T0}
    v_cvt_f32_u32 v{T0+1}, v{T0+1}
    v_mul_f32 v{T0}, 0x3a000000, v{T0}
    v_mul_f32 v0, 0x3a000000, v{T0+1}
    """)
    for u in range(1, 8): a(f"v_add_f32 v{u}, v{u-1}, v{T0}")
    for u in range(1, 8): a(f"v_fract_f32 v{u}, v{u}")
    for u in range(8): a(f"v_cos_f32 v{8+u}, v{u}")
    for u in range(8): a(f"v_sin_f32 v{16+u}, v{u}")
    for j in range(4): a(f"v_cvt_pk_bf16_f32 v{24+j}, v{8+2*j}, v{9+2*j}")
    for j in range(4): a(f"v_cvt_pk_bf16_f32 v{28+j}, v{16+2*j}, v{17+2*j}")
    NB0 = opt("tblbar", 2)
    a(f"""
    s_cmp_lg_u32 s40, 0
    s_cbranch_scc1 P1_TBL_ST
    s_barrier
    {st(1, True)}
    s_cmp_lg_u32 s61, 0
    s_cbranch_scc1 P1_EX_NR
    s_cmp_lt_u32 s2, 248
    s_cbranch_scc1 P1_EX_NR
    v_mov_b32 v32, 1
    v_mov_b32 v33, 0
    s_lshl_b32 s24, s17, 2
    s_waitcnt vmcnt(0)
    s_mov_b64 exec, 1
    buffer_store_dword v32, v33, s[32:35], s24 offen sc1
    s_mov_b64 exec, -1
P1_EX_NR:
    """ + "".join(f"s_barrier\n{st(1 + b_, True)}\n" for b_ in range(1, NB0)) + f"""
    s_mov_b32 s40, 1
P1_TBL_ST:
    s_lshl_b32 s24, s23, 11
    s_add_u32 s24, s24, {TB_OFF}
    buffer_store_dwordx4 v[24:27], v39, s[28:31], s24 offen sc1
    buffer_store_dwordx4 v[28:31], v39, s[28:31], s24 offen offset:1024 sc1
    s_add_u32 s23, s23, 1024
    s_cmp_lt_u32 s23, 1056
    s_cbranch_scc1 P1_TBL
    """)
    nb = NB0
    assert nb <= 6
    a("".join(f"s_barrier\n{st(1 + b_, True)}\n" for b_ in range(nb, 6)))
    u = a.uid()
    a(f"""
    v_and_b32 v1, 7, v36
    v_lshlrev_b32 v1, 2, v1
    v_mov_b32 v2, 1
    s_mov_b32 s60, 0
    s_cmp_lg_u32 s61, 0
    s_cbranch_scc1 P1_EX_C
    buffer_load_dword v2, v1, s[32:35], 0 offen sc1
P1_EX_C:
    s_barrier
    {st(7, True)}
    s_barrier
    {st(8, True)}
L_RDY{u}:
    s_waitcnt vmcnt(0)
    v_cmp_eq_u32 vcc, 0, v2
    s_cbranch_vccz P1_EX_B
    s_sleep 1
    buffer_load_dword v2, v1, s[32:35], 0 offen sc1
    s_add_u32 s60, s60, 1
    s_cmp_lt_u32 s60, 0x40000
    s_cbranch_scc1 L_RDY{u}
P1_EX_B:
    s_waitcnt vmcnt(0)
    s_barrier
    {st(9, True)}
    s_barrier
    {st(10, True)}
    s_mov_b32 s34, 0
    """)

def attention(a):
    O = 0; S = [16, 32]; P = 48; Q1 = 56; Q2 = 60; K2 = 62; K1 = 64; V1 = 68; V2 = [72, 76]; T = 80
    a(f"""
ATT:
    s_cmp_lt_u32 s13, 4
    s_cselect_b32 s32, {opt("o1", 4)}, {opt("y1", 4)}
    s_cselect_b32 s33, {opt("o2", 7)}, {opt("y2", 7)}
    s_movk_i32 s35, 0x106
    s_bitset1_b32 s35, s32
    s_bitset1_b32 s35, s33
    s_mov_b32 s24, 0xfffff
    s_mov_b32 s25, 0xfffff
    s_mul_i32 s27, s13, 1280
    v_mov_b32 v{Q2+1}, 0
    v_mov_b32 v{K2+1}, 0x3f803f80
    v_add_u32 v{T}, s27, v{AK1}
    v_add_u32 v{T+1}, s27, v{AK2}
    v_mov_b32 v{T+2}, 1
    """)
    NQ = opt("nq", 2)
    OX = [84, O]; QX1 = [100, Q1]; QX2 = [104, Q2]; U = 106; TM = 114; XS = 107520
    if NQ == 2:
        a(f"""
        s_xor_b32 s36, s13, 1
        s_mul_i32 s27, s36, 1280
        v_add_u32 v{U}, s27, v{AK1}
        v_add_u32 v{U+1}, s27, v{AK2}
        v_mov_b32 v{U+2}, v{AK1}
        v_mov_b32 v{U+3}, v{AK2}
        v_mov_b32 v{QX2[0]+1}, 0
        s_and_b32 s37, s13, 1
        s_mul_i32 s37, s37, 2560
        v_and_b32 v{U+4}, 0x70, v{VA}
        v_lshrrev_b32 v{U+4}, 2, v{U+4}
        v_add_u32 v{U+4}, {LFB}, v{U+4}
        s_lshl_b32 s23, s13, 12
        s_add_u32 s23, s23, {XS}
        v_add_u32 v{U+5}, s23, v{VA}
        v_xor_b32 v{U+7}, 4, v{PA}
        s_lshl_b32 s23, s36, 12
        s_add_u32 s23, s23, {XS}
        v_add_u32 v{U+6}, s23, v{VA}
        s_lshr_b32 s38, s13, 2
        s_add_u32 s38, s38, 7
        """)
        for r in (AK1, AK2, AV, BK1, BK2, BV): a(f"v_add_u32 v{r}, s37, v{r}")
        for r in range(16): a(f"v_mov_b32 v{OX[0]+r}, 0")
    for r in range(12): a(f"v_mov_b32 v{V1+r}, v{ONES}")
    for r in range(16): a(f"v_mov_b32 v{O+r}, 0")
    for r in range(4): a(f"v_mov_b32 v{P+4+r}, 0\nv_mov_b32 v{P+r}, -1")
    def rk1(d): return f"v_mfma_f32_32x32x8_bf16 {vr(d,16)}, {vr(K2,2)}, {vr(Q2,2)}, 0"
    def rk2(d): return f"v_mfma_f32_32x32x16_bf16 {vr(d,16)}, {vr(K1,4)}, {vr(Q1,4)}, {vr(d,16)}"
    def qk1(d): return f"v_mfma_f32_32x32x16_bf16 {vr(d,16)}, {vr(K1,4)}, {vr(Q1,4)}, 0"
    def qk2(d): return f"v_mfma_f32_32x32x8_bf16 {vr(d,16)}, {vr(K2,2)}, {vr(Q2,2)}, {vr(d,16)}"
    def pv(v, p): return f"v_mfma_f32_32x32x16_bf16 {vr(O,16)}, {vr(v,4)}, {vr(p,4)}, {vr(O,16)}"
    def of(t): return (t - 6 if t in (6, 7) else t) * 2560
    def rdk1(t): return f"ds_read_b128 {vr(K1,4)}, v{BK1 if t in (6, 7) else AK1} offset:{of(t)}"
    def rdk2(t): return f"ds_read_b32 v{K2}, v{BK2 if t in (6, 7) else AK2} offset:{of(t)+1024}"
    def rdv(t, v2):
        b = BV if t in (6, 7) else AV
        return f"s_mov_b64 exec, s[24:25]\nds_read_b128 {vr(V1,4)}, v{b} offset:{of(t)+1280}\nds_read_b128 {vr(v2,4)}, v{b} offset:{of(t)+1920}\ns_mov_b64 exec, -1"
    def maxtree(s, m, first):
        if first:
            a(f"v_max3_f32 v{m}, v{s}, v{s+1}, v{s+2}\nv_max3_f32 v{m+1}, v{s+3}, v{s+4}, v{s+5}")
            for j in range(6, 14, 4): a(f"v_max3_f32 v{m}, v{s+j}, v{s+j+1}, v{m}\nv_max3_f32 v{m+1}, v{s+j+2}, v{s+j+3}, v{m+1}")
            a(f"v_max3_f32 v{m}, v{s+14}, v{s+15}, v{m}\nv_max_f32 v{m}, v{m}, v{m+1}")
        else:
            for j in range(0, 16, 2): a(f"v_max3_f32 v{m}, v{s+j}, v{s+j+1}, v{m}")
    def xhalf(m):
        a(f"v_mov_b32 v{m+1}, v{m}\ns_nop 1\nv_permlane32_swap_b32 v{m}, v{m+1}\ns_nop 0\nv_max_f32 v{m}, v{m}, v{m+1}")
    a(f"""
    s_cmp_lg_u32 s34, 1
    s_cbranch_scc1 ATT_NOSIG
    """)
    if opt("comb", 1):
        a(f"""
        v_mov_b32 v{T+3}, {LFB + 44}
        s_and_b32 s23, s15, -128
        s_mov_b64 exec, 1
        s_waitcnt vmcnt(0)
        ds_add_rtn_u32 v{T+3}, v{T+3}, v{T+2}
        s_waitcnt lgkmcnt(0)
        v_cmp_eq_u32 vcc, 3, v{T+3}
        s_cbranch_vccz ATT_NOSIG
        buffer_store_dwordx4 {vr(P,4)}, v{O}, s[28:31], s23 offen sc1
        """)
    else:
        a(f"s_waitcnt vmcnt(0)\ns_mov_b64 exec, 1\nbuffer_store_dword v{T+2}, v{O}, s[28:31], s15 offen sc1")
    a(f"""
ATT_NOSIG:
    s_mov_b64 exec, -1
    {st(4)}
    s_and_b32 s23, s34, s12
    s_cbranch_scc1 ATT_NOP
    s_barrier
ATT_NOP:
    s_setprio 3
    {st(6)}
    """)
    def e(s, j): return f"v_exp_f32 v{s+j}, v{s+j}"
    def c(s, j): return f"v_cvt_pk_bf16_f32 v{P+j}, v{s+2*j}, v{s+2*j+1}"
    if NQ == 2:
        def xk1(x): return f"v_mfma_f32_32x32x16_bf16 {vr(S[x],16)}, {vr(K1,4)}, {vr(QX1[x],4)}, 0"
        def xk2(x): return f"v_mfma_f32_32x32x8_bf16 {vr(S[x],16)}, {vr(K2,2)}, {vr(QX2[x],2)}, {vr(S[x],16)}"
        def xpv(x, v, p): return f"v_mfma_f32_32x32x16_bf16 {vr(OX[x],16)}, {vr(v,4)}, {vr(p,4)}, {vr(OX[x],16)}"
        def scale(x):
            for j in range(5): a(f"v_lshlrev_b32 v{TM+2*j}, 16, v{QX1[x]+j}\nv_and_b32 v{TM+2*j+1}, 0xffff0000, v{QX1[x]+j}")
            for j in range(10): a(f"v_mul_f32 v{TM+j}, {QSCALE:#x}, v{TM+j}")
            for j in range(5): a(f"v_cvt_pk_bf16_f32 v{QX1[x]+j}, v{TM+2*j}, v{TM+2*j+1}")
        MH = f32bits(-0.5 * (20 ** -0.5) * math.log2(math.e))
        a(f"""
        ds_read_b128 {vr(K1,4)}, v{U+2}
        ds_read_b32 v{K2}, v{U+3} offset:1024
        ds_read_b128 {vr(QX1[0],4)}, v{U} offset:{QLDS}
        ds_read_b32 v{QX2[0]}, v{U+1} offset:{QLDS+1024}
        ds_read_b128 {vr(Q1,4)}, v{T} offset:{QLDS}
        ds_read_b32 v{Q2}, v{T+1} offset:{QLDS+1024}
        {rdv(0, V2[0])}
        s_waitcnt lgkmcnt(4)
        {xk1(0)}
        {xk2(0)}
        s_waitcnt lgkmcnt(2)
        {xk1(1)}
        {xk2(1)}
        {rdk1(0)}
        {rdk2(0)}
        s_mov_b32 s26, 0
        """)
        scale(0)
        maxtree(S[0], T, True); xhalf(T)
        a(f"v_mul_f32 v{T}, {MH:#x}, v{T}\nv_cvt_pk_bf16_f32 v{QX2[0]+1}, v{T}, 0\ns_waitcnt lgkmcnt(0)\n{xk1(0)}\n{xk2(0)}")
        scale(1)
        maxtree(S[1], T, True); xhalf(T)
        a(f"""
        v_mul_f32 v{T}, {MH:#x}, v{T}
        v_cvt_pk_bf16_f32 v{Q2+1}, v{T}, 0
        buffer_store_dwordx4 {vr(P,4)}, v{OA1}, s[28:31], s6 offen sc1
        s_mov_b64 exec, 0xffff
        buffer_store_dwordx4 {vr(P,4)}, v{OA2}, s[28:31], s7 offen sc1
        s_mov_b64 exec, -1
        {st(7)}
ATT_LOOP:
        """)
        for i in range(4):
            for x in (0, 1):
                cur = S[x]; y = 1 - x; t_ = 2 * (i + 1)
                if x == 1: a("s_waitcnt lgkmcnt(0)")
                a(xk1(y))
                if x == 0: a(rdk1(t_))
                if x == 1 and i == 1: a(f"ds_write_b32 v{PA}, v{T+2}")
                if x == 1 and i == 3: a(f"ds_read_b32 v{U}, v{U+4}")
                for q in range(4): a(e(cur, q))
                a(xpv(y, V2[(i + 1) % 2] if x == 0 else V2[i % 2], P + 4))
                if x == 0: a("s_waitcnt lgkmcnt(1)")
                for q in range(4, 8): a(e(cur, q))
                a(c(cur, 0)); a(c(cur, 1))
                a(xk2(y))
                if x == 0: a(rdk2(t_))
                a(c(cur, 2)); a(c(cur, 3))
                for q in range(8, 12): a(e(cur, q))
                a(xpv(x, V1, P))
                if x == 1: a(rdv(t_, V2[(i + 1) % 2]))
                for q in range(12, 16): a(e(cur, q))
                for q in range(4, 8): a(c(cur, q))
    else:
        a(f"""
        ds_read_b128 {vr(Q1,4)}, v{T} offset:{QLDS}
        ds_read_b32 v{Q2}, v{T+1} offset:{QLDS+1024}
        {rdk1(0)}
        {rdk2(0)}
        {rdv(0, V2[0])}
        s_waitcnt lgkmcnt(2)
        {qk1(S[1])}
        {qk2(S[1])}
        """)
        for j in range(5): a(f"v_lshlrev_b32 v{S[0]+2*j}, 16, v{Q1+j}\nv_and_b32 v{S[0]+2*j+1}, 0xffff0000, v{Q1+j}")
        for j in range(10): a(f"v_mul_f32 v{S[0]+j}, {QSCALE:#x}, v{S[0]+j}")
        for j in range(5): a(f"v_cvt_pk_bf16_f32 v{Q1+j}, v{S[0]+2*j}, v{S[0]+2*j+1}")
        a(f"""
        s_nop 0
        {qk1(S[0])}
        {rdk1(1)}
        s_mov_b32 s26, 0
        """)
        maxtree(S[1], T, True); xhalf(T)
        a(f"""
        v_mul_f32 v{T}, {f32bits(-0.5 * (20 ** -0.5) * math.log2(math.e)):#x}, v{T}
        v_cvt_pk_bf16_f32 v{Q2+1}, v{T}, 0
        s_nop 1
        {qk2(S[0])}
        {rdk2(1)}
        buffer_store_dwordx4 {vr(P,4)}, v{OA1}, s[28:31], s6 offen sc1
        s_mov_b64 exec, 0xffff
        buffer_store_dwordx4 {vr(P,4)}, v{OA2}, s[28:31], s7 offen sc1
        s_mov_b64 exec, -1
        s_waitcnt lgkmcnt(0)
        {st(7)}
        s_nop 3
ATT_LOOP:
        """)
        for j in range(8):
            cur, nxt = S[j % 2], S[(j + 1) % 2]
            a("s_waitcnt lgkmcnt(2)")
            if opt('rev', 0): a(rk1(nxt)); a(rdk2(j + 2))
            else: a(qk1(nxt)); a(rdk1(j + 2))
            for q in range(4): a(e(cur, q))
            a(pv(V2[(j + 1) % 2], P + 4))
            a("s_waitcnt lgkmcnt(1)")
            if j == 2: a(f"ds_write_b32 v{PA}, v{T+2}")
            for q in range(4, 8): a(e(cur, q))
            a(c(cur, 0)); a(c(cur, 1))
            if opt('rev', 0): a(rk2(nxt)); a(rdk1(j + 2))
            else: a(qk2(nxt)); a(rdk2(j + 2))
            a(c(cur, 2)); a(c(cur, 3))
            for q in range(8, 12): a(e(cur, q))
            a(pv(V1, P)); a(rdv(j + 1, V2[(j + 1) % 2]))
            for q in range(12, 16): a(e(cur, q))
            for q in range(4, 8): a(c(cur, q))
    a(f"""
    s_add_u32 s26, s26, 1
    s_movk_i32 s27, 0x5000
    s_cmp_eq_u32 s26, 7
    s_cselect_b32 s27, {(0x5000 - 62 * 2560) & 0xffffffff}, s27
    v_add_u32 v{AK1}, 0x5000, v{AK1}
    v_add_u32 v{AK2}, 0x5000, v{AK2}
    v_add_u32 v{AV}, 0x5000, v{AV}
    v_add_u32 v{BK1}, s27, v{BK1}
    v_add_u32 v{BK2}, s27, v{BK2}
    v_add_u32 v{BV}, s27, v{BV}
    v_add_u32 v{T+2}, 1, v{T+2}
    s_bitcmp1_b32 s35, s26
    s_cbranch_scc0 ATT_LOOP
    s_cmp_gt_u32 s26, 2
    s_cbranch_scc1 ATT_EV
    v_add_u32 v{FA}, 8, v{FA}
    s_waitcnt vmcnt(0)
ATT_WAIT:
    ds_read_b32 v{T}, v{FA}
    s_waitcnt lgkmcnt(0)
    v_readfirstlane_b32 s23, v{T}
    s_cmp_ge_u32 s23, 4
    s_cbranch_scc1 ATT_LOOP
    s_sleep 1
    s_branch ATT_WAIT
ATT_EV:
    s_setprio 2
    s_cmp_eq_u32 s26, s32
    s_cbranch_scc1 ATT_LOOP
    s_setprio 1
    s_cmp_lt_u32 s26, 8
    s_cbranch_scc1 ATT_LOOP
    s_setprio 3
    {pv(V2[1], P+4)}
    {st(8)}
    """)
    if NQ == 2:
        a(f"""
        s_mov_b32 s27, 0x3e800000
        s_mov_b32 s23, 0x71800000
        s_waitcnt lgkmcnt(2)
        v_cmp_gt_u32 vcc, s38, v{U}
        s_cbranch_vccz ATT_X0
ATT_X1:
        ds_read_b32 v{U}, v{U+4}
        s_waitcnt lgkmcnt(0)
        v_cmp_gt_u32 vcc, s38, v{U}
        s_cbranch_vccnz ATT_X1
ATT_X0:
        """)
        for j in range(3): a(f"ds_write_b128 v{U+5}, {vr(OX[0]+4*j,4)} offset:{1024*j}")
        a(f"ds_write_b64 v{U+5}, {vr(OX[0]+12,2)} offset:3072\nds_write_b32 v{PA}, v{T+2} offset:96\nATT_X2:\nds_read_b32 v{U}, v{U+7} offset:96")
        for j in range(3): a(f"ds_read_b128 {vr(S[0]+4*j,4)}, v{U+6} offset:{1024*j}")
        a(f"ds_read_b64 {vr(S[0]+12,2)}, v{U+6} offset:3072\ns_waitcnt lgkmcnt(0)\nv_cmp_eq_u32 vcc, 0, v{U}\ns_cbranch_vccz ATT_X3\ns_sleep 1\ns_branch ATT_X2\nATT_X3:")
        for r in range(0, 14, 2): a(f"v_pk_add_f32 {vr(O+r,2)}, {vr(O+r,2)}, {vr(S[0]+r,2)}")
    else:
        a("s_mov_b32 s27, 0x3e800000\ns_mov_b32 s23, 0x71800000\ns_nop 9")
    a(f"v_rcp_f32 v{T+2}, v{O+12}\nv_add_f32 v{T}, |v{O}|, |v{O+1}|\nv_add_f32 v{T+1}, |v{O+2}|, |v{O+3}|")
    for j in range(4, 12, 2): a(f"v_add_f32 v{T}, |v{O+j}|, v{T}\nv_add_f32 v{T+1}, |v{O+j+1}|, v{T+1}")
    a(f"""
    v_add_f32 v{T}, v{T}, v{O+12}
    v_cmp_le_f32 s[42:43], s27, v{O+12}
    v_add_f32 v{T}, v{T}, v{T+1}
    v_cmp_gt_f32 vcc, s23, v{T}
    s_and_b64 vcc, vcc, s[42:43]
    s_cmp_eq_u64 vcc, -1
    s_cbranch_scc0 ATT_FALLBACK
ATT_FINISH:
    """)
    for j in range(0, 8, 2): a(f"v_pk_mul_f32 {vr(O+j,2)}, {vr(O+j,2)}, {vr(T+2,2)} op_sel_hi:[1,0]")
    for j in range(4): a(f"v_cvt_pk_bf16_f32 v{P+j}, v{O+2*j}, v{O+2*j+1}")
    for j in range(4): a(f"v_min_u32 v{P+j}, -2, v{P+j}")
    a(f"buffer_store_dwordx4 {vr(P,4)}, v{OA1}, s[28:31], s6 offen sc1")
    for j in range(8, 12, 2): a(f"v_pk_mul_f32 {vr(O+j,2)}, {vr(O+j,2)}, {vr(T+2,2)} op_sel_hi:[1,0]")
    for j in range(4, 6): a(f"v_cvt_pk_bf16_f32 v{P+j}, v{O+2*j}, v{O+2*j+1}")
    for j in range(4, 6): a(f"v_min_u32 v{P+j}, -2, v{P+j}")
    a(f"""
    s_nop 1
    v_permlane16_swap_b32 v{P+4}, v{P+6}
    v_permlane16_swap_b32 v{P+5}, v{P+7}
    s_mov_b64 exec, 0xffff
    buffer_store_dwordx4 {vr(P+4,4)}, v{OA2}, s[28:31], s7 offen sc1
    {st(9)}
    s_cmp_ge_u32 s13, 4
    s_cbranch_scc1 {"L_DONE" if STAMP else "L_END"}
    s_mov_b64 exec, -1
    s_xor_b32 s41, s13, {opt('gx', 2)}
    s_mov_b32 s47, 1
    s_branch P3_GO
    """)
    def gk(): return f"buffer_load_dwordx4 {vr(K1,4)}, v{AK1}, s[28:31], s23 offen sc1\nbuffer_load_dword v{K2}, v{AK2}, s[28:31], s23 offen offset:1024 sc1"
    a(f"""
ATT_FALLBACK:
    s_waitcnt lgkmcnt(0)
    v_mov_b32 v{Q2+1}, 0
    v_mov_b32 v{T}, 0xff800000
    {f's_add_u32 s23, s37, {HS}' if NQ == 2 else f's_mov_b32 s23, {HS}'}
    v_subrev_u32 v{AK1}, s23, v{AK1}
    v_subrev_u32 v{AK2}, s23, v{AK2}
    v_subrev_u32 v{AV}, s23, v{AV}
    s_add_u32 s23, s14, {KV_OFF}
    s_mov_b32 s26, 0
ATT_FB1:
    {gk()}
    s_add_u32 s23, s23, 2560
    s_waitcnt vmcnt(0)
    {qk1(S[0])}
    {qk2(S[0])}
    s_nop 15
    """)
    maxtree(S[0], T, False)
    a("s_add_u32 s26, s26, 1\ns_cmp_lt_u32 s26, 64\ns_cbranch_scc1 ATT_FB1")
    xhalf(T)
    a(f"s_add_u32 s23, s14, {KV_OFF}\ns_mov_b32 s26, 0")
    for r in range(16): a(f"v_mov_b32 v{O+r}, 0")
    a(f"""
ATT_FB2:
    {gk()}
    s_mov_b64 exec, s[24:25]
    buffer_load_dwordx4 {vr(V1,4)}, v{AV}, s[28:31], s23 offen offset:1280 sc1
    buffer_load_dwordx4 {vr(V2[0],4)}, v{AV}, s[28:31], s23 offen offset:1920 sc1
    s_mov_b64 exec, -1
    s_add_u32 s23, s23, 2560
    s_waitcnt vmcnt(0)
    {qk1(S[0])}
    {qk2(S[0])}
    s_nop 15
    """)
    for q in range(16): a(f"v_sub_f32 v{S[0]+q}, v{S[0]+q}, v{T}")
    for q in range(16): a(e(S[0], q))
    a("s_nop 0")
    for q in range(8): a(c(S[0], q))
    a(f"""
    s_nop 1
    {pv(V1, P)}
    {pv(V2[0], P+4)}
    s_add_u32 s26, s26, 1
    s_cmp_lt_u32 s26, 64
    s_cbranch_scc1 ATT_FB2
    s_nop 15
    v_rcp_f32 v{T+2}, v{O+12}
    s_nop 0
    s_branch ATT_FINISH
    """)

def lwait(a, vaddr, vdat, mask, target, slp=8):
    u = a.uid()
    a(f"""
    s_mov_b64 exec, {mask}
    s_branch L_LWE{u}
L_LW{u}:
    s_sleep {slp}
L_LWE{u}:
    ds_read_b32 v{vdat}, v{vaddr}
    s_waitcnt lgkmcnt(0)
    v_cmp_gt_u32 vcc, {target}, v{vdat}
    s_cbranch_vccnz L_LW{u}
    s_mov_b64 exec, -1
    """)
def ladd(a, vaddr, vone, off):
    a(f"s_mov_b64 exec, 1\nds_add_u32 v{vaddr}, v{vone} offset:{off}\ns_mov_b64 exec, -1")

def helpers(a):
    WA, VG, VZ, SH, HPA, HONE, YFA, FZ, SG, XA5, LF = 112, 117, 118, 119, 120, 121, 122, 123, 124, 125, 126
    ZL = 40; G = 167; VY = 162; T = 132; LT = 127
    a(f"""
HELPER:
    s_mov_b32 s61, s22
    {st(2)}
    {srd(28, WS_P, WS_USED)}
    s_setprio 0
    s_lshr_b32 s20, s18, 2
    s_mul_i32 s26, s20, 160
    s_movk_i32 s23, {1280 - 160}
    """)
    for i in range(5):
        a(f"""
        v_add_u32 v{T}, {64*i}, v0
        v_mul_u32_u24 v{T+1}, 6554, v{T}
        v_lshrrev_b32 v{T+1}, 16, v{T+1}
        v_lshlrev_b32 v{T}, 4, v{T}
        v_mad_u32_u24 v{WA+i}, v{T+1}, s23, v{T}
        """)
    a(f"""
    s_lshl_b32 s21, s17, 3
    s_and_b32 s22, s18, 3
    s_add_u32 s21, s21, s22
    s_lshr_b32 s22, s16, 1
    s_lshl_b32 s22, s22, 2
    s_add_u32 s21, s21, s22
    s_lshl_b32 s21, s21, 1
    s_and_b32 s22, s16, 1
    s_add_u32 s21, s21, s22
    s_lshr_b32 s22, s21, 2
    s_lshl_b32 s22, s22, 1
    s_and_b32 s24, s21, 1
    s_add_u32 s22, s22, s24
    s_lshl_b32 s22, s22, 3
    v_and_b32 v{T}, 7, v0
    v_add_u32 v{T}, s22, v{T}
    s_bitcmp1_b32 s21, 1
    s_cselect_b32 s22, 0x400, 0
    s_cselect_b32 s24, -1, 1
    v_mul_lo_u32 v{T+1}, v{T}, s24
    s_sub_u32 s24, 0x800, s22
    v_sub_u32 v{T+2}, s24, v{T+1}
    v_add_u32 v{T+1}, s22, v{T+1}
    v_and_b32 v{T+3}, 8, v0
    v_cmp_ne_u32 vcc, 0, v{T+3}
    v_cmp_eq_u32 s[42:43], 0, v{T}
    v_lshlrev_b32 v{T+3}, 6, v{T+3}
    v_add_u32 v{T+3}, s22, v{T+3}
    v_cndmask_b32 v{T}, v{T+1}, v{T+2}, vcc
    v_lshrrev_b32 v{T+1}, 4, v0
    v_cndmask_b32 v{T}, v{T}, v{T+3}, s[42:43]
    v_mul_u32_u24 v{VY}, 1280, v{T}
    v_mul_u32_u24 v{T+2}, 40, v{T+1}
    v_add3_u32 v{VY}, v{VY}, v{T+2}, s26
    v_lshlrev_b32 v{VG}, 2, v{T}
    v_sub_u32 v{T+3}, 0x800, v{T}
    v_cmp_lt_u32 vcc, 0x400, v{T}
    v_min_u32 v{T}, v{T}, v{T+3}
    v_and_b32 v{T+3}, 1, v{T}
    v_mul_u32_u24 v{VZ}, {ZP}, v{T+3}
    v_lshrrev_b32 v{T+3}, 1, v{T}
    v_lshl_add_u32 v{VZ}, v{T+3}, 4, v{VZ}
    v_mov_b32 v{T+3}, 0x02020202
    v_cndmask_b32 v{SH}, 0, v{T+3}, vcc
    s_cmp_ge_u32 s20, 4
    s_mov_b32 s24, 0x05040100
    s_cselect_b32 s24, 0x07060302, s24
    s_cselect_b32 s40, -1, 1
    s_cselect_b32 s41, 155, 0
    v_xor_b32 v{SH}, s24, v{SH}
    s_mul_i32 s24, s20, 20
    v_mul_u32_u24 v{T+3}, 5, v{T+1}
    v_add_u32 v{T+3}, s24, v{T+3}
    v_mul_lo_u32 v{T+3}, v{T+3}, s40
    v_add_u32 v{T+3}, s41, v{T+3}
    v_mul_u32_u24 v{T+3}, {2*ZP}, v{T+3}
    v_add_u32 v{VZ}, v{VZ}, v{T+3}
    {p3_addr(0)}
    v_lshlrev_b32 v{HPA}, 2, v0
    v_add_u32 v{HPA}, {LFB}, v{HPA}
    v_mov_b32 v{HONE}, 1
    s_lshl_b32 s23, s2, 2
    s_add_u32 s23, s23, {FLG_OFF + 32768}
    v_mov_b32 v{YFA}, s23
    v_lshrrev_b32 v{FZ}, 4, v0
    v_mul_u32_u24 v{FZ}, {2*ZP}, v{FZ}
    v_and_b32 v{T}, 15, v0
    v_lshl_add_u32 v{FZ}, v{T}, 4, v{FZ}
    v_lshlrev_b32 v{SG}, 31, v0
    v_and_b32 v{XA5}, 48, v0
    v_lshlrev_b32 v{LF}, 7, v0
    v_bfe_u32 v{LT}, v0, 1, 2
    v_lshlrev_b32 v{LT}, 13, v{LT}
    v_and_b32 v{T}, 1, v0
    v_lshl_add_u32 v{LT}, v{T}, 7, v{LT}
    s_setprio 3
    s_lshr_b32 s19, s18, 3
    s_lshl_b32 s23, s17, 2
    s_add_u32 s19, s19, s23
    s_and_b32 s62, s18, 7
    s_mul_i32 s21, s19, {HG}
    v_lshlrev_b32 v1, 4, v0
    {st(3)}
    s_lshr_b32 s23, s19, 3
    s_lshl_b32 s23, s23, 13
    s_add_u32 s23, s23, {FLG_OFF}
    v_lshlrev_b32 v2, 7, v0
    v_add_u32 v2, s23, v2
    s_add_u32 s24, s21, {KV_OFF}
    s_lshl_b32 s40, 0x10000, s16
    s_lshl_b32 s41, 1, s16
    s_mul_i32 s22, s16, 10240
    s_add_u32 s26, s24, s22
    s_cmp_lg_u32 s16, 3
    s_cbranch_scc1 H_JA
    s_lshl_b32 s25, s62, 1
    s_lshl_b32 s40, 3, s25
    s_mov_b32 s41, 0
    s_mov_b32 s22, {QLDS}
    s_mul_i32 s26, s19, {HQ}
    s_mul_i32 s25, s62, 10240
    s_add_u32 s26, s26, s25
    s_add_u32 s26, s26, {Q_OFF}
H_JA:
    """)
    def job():
        r = f"s_add_u32 s25, s22, 5120\ns_cmp_ge_u32 s25, {LFB}\ns_cselect_b32 s25, 0, s25\n"
        for n in range(10):
            if n in (0, 3): r += f"s_add_u32 m0, s22, {1024*n}\ns_add_u32 s27, s26, {1024*n}\n"; o = 0
            if n in (5, 8): r += f"s_add_u32 m0, s25, {1024*(n-5)}\ns_add_u32 s27, s26, {1024*n}\n"; o = 0
            r += f"buffer_load_dwordx4 v1, s[28:31], s27 offen offset:{o} sc1 lds\n"; o += 1024
        return r
    if opt("latep", 1):
        a(f"s_mul_i32 s23, s12, 12\ns_cmp_eq_u32 s61, 3\ns_cselect_b32 s23, 12, s23\ns_add_u32 s23, s23, {LFB + 44}\nv_mov_b32 v3, s23")
        lwait(a, 3, 4, 1, 4, 2)
        if opt("lps", 0): a(f"s_sleep {opt('lps', 0)}")
    poll4(a, 2, 4, "s[40:41]")
    a(st(11)); a(job())
    a(f"""
    s_lshl_b32 s40, 0x80000, s16
    s_lshl_b32 s41, 8, s16
    s_add_u32 s22, s16, 3
    s_mul_i32 s22, s22, 10240
    s_add_u32 s26, s24, s22
    s_waitcnt vmcnt(0)
    {st(12)}
    s_barrier
    s_cmp_eq_u32 s16, 3
    s_cbranch_scc1 H_JB
    """)
    poll4(a, 2, 4, "s[40:41]")
    a(job())
    a(f"""
H_JB:
    s_lshl_b32 s41, 0x4440, s16
    s_and_b32 s41, s41, 0xffff
    s_lshl_b32 s40, s41, 16
    s_add_u32 s22, s16, 6
    s_mul_i32 s22, s22, 10240
    s_add_u32 s26, s24, s22
    s_waitcnt vmcnt(0)
    """)
    ladd(a, HPA, HONE, 64)
    lwait(a, HPA, 4, 0xff, 1)
    poll4(a, 2, 4, "s[40:41]", slp=8)
    a(f"{st(13)}\nH_JC:"); a(job())
    a(f"""
    s_add_u32 s22, s22, 40960
    s_add_u32 s26, s26, 40960
    s_cmp_lt_u32 s22, {HS}
    s_cbranch_scc1 H_JC
    s_waitcnt vmcnt(0)
    {st(4)}
    """)
    ladd(a, HPA, HONE, 72)
    a(f"""
    s_cmp_lt_u32 s16, 3
    s_cbranch_scc1 H_FNET
    """)
    a(f"""
    {srd(32, X_P, 2048*1280)}
    {srd(36, GATE_P, 1280)}
    v_lshrrev_b32 v2, 3, v0
    v_and_b32 v3, 7, v0
    v_lshlrev_b32 v3, 4, v3
    s_movk_i32 s22, 1280
    v_mad_u32_u24 v4, v2, s22, v3
    s_mul_i32 s23, s2, {8*1280}
    """)
    for j in range(10):
        a(f"buffer_load_dwordx4 {vr(24+8*j,4)}, v4, s[32:35], s23 offen offset:{128*j}")
        a(f"buffer_load_dwordx4 {vr(28+8*j,4)}, v3, s[36:39], 0 offen offset:{128*j}")
    a("v_mov_b32 v5, 0\nv_mov_b32 v6, 0\ns_waitcnt vmcnt(0)")
    for j in range(10):
        for q in range(4):
            a(f"v_dot2c_f32_bf16 v{5 + (q & 1)}, v{24+8*j+q}, v{28+8*j+q}")
    a(f"""
    s_nop 2
    v_add_f32 v5, v5, v6
    s_nop 1
    v_add_f32_dpp v5, v5, v5 quad_perm:[1,0,3,2] row_mask:0xf bank_mask:0xf
    s_nop 1
    v_add_f32_dpp v5, v5, v5 quad_perm:[2,3,0,1] row_mask:0xf bank_mask:0xf
    s_nop 1
    v_add_f32_dpp v5, v5, v5 row_half_mirror row_mask:0xf bank_mask:0xf
    v_mul_f32 v5, {f32bits(-math.log2(math.e)):#x}, v5
    v_exp_f32 v5, v5
    v_lshlrev_b32 v2, 2, v2
    v_add_f32 v5, 1.0, v5
    v_rcp_f32 v5, v5
    s_lshl_b32 s23, s2, 5
    s_add_u32 s23, s23, {G_OFF}
    buffer_store_dword v5, v2, s[28:31], s23 offen sc1
    s_branch H_MID
    """)
    C, SN, FB = 0, 8, 16
    a(f"""
H_FNET:
    {'s_branch H_MID' if opt('nofnet', 0) == 1 else ''}
    s_lshl_b32 s22, s16, 5
    s_add_u32 s22, s22, s18
    s_cmp_lt_u32 s22, 84
    s_cbranch_scc1 H_FN_A
    s_sub_u32 s24, s22, 84
    s_lshl_b32 s24, s24, 3
    s_add_u32 s24, s24, s17
    s_cmp_ge_u32 s24, 21
    s_cbranch_scc1 H_MID
    s_mov_b32 s23, 32
    s_branch H_FN_B
H_FN_A:
    s_mul_i32 s23, s22, 3121
    s_lshr_b32 s23, s23, 16
    s_mul_i32 s24, s23, 21
    s_sub_u32 s24, s22, s24
    s_lshl_b32 s23, s23, 3
    s_add_u32 s23, s23, s17
H_FN_B:
    s_and_b32 s25, s23, 1
    s_add_u32 s26, s24, 20
    s_cmp_eq_u32 s24, 20
    s_cselect_b32 s26, 20, s26
    s_mul_i32 s32, s24, 26
    s_lshr_b32 s32, s32, 8
    s_lshl_b32 s32, s32, 13
    s_add_u32 s32, s32, {48 * 128}
    s_mul_i32 s33, s26, 26
    s_lshr_b32 s33, s33, 8
    s_lshl_b32 s33, s33, 13
    s_add_u32 s33, s33, {32 * 128}
    s_and_b32 s34, s23, 31
    s_lshl_b32 s34, s34, 8
    s_mov_b64 exec, 0xffff
    v_add_u32 v2, s32, v{LF}
    s_mov_b32 exec_lo, 0xffff0000
    v_add_u32 v2, s33, v{LF}
    s_mov_b32 exec_lo, 0
    s_mov_b32 exec_hi, 0xff
    v_add_u32 v2, s34, v{LT}
    s_mov_b32 s40, -1
    s_movk_i32 s41, 0xff
    s_mov_b32 s27, {FLG_OFF}
    """)
    poll4(a, 2, 4, "s[40:41]", "s27", slp=8)
    a(st(14))
    a(f"""
    s_lshl_b32 s32, s23, 16
    s_add_u32 s32, s32, {TB_OFF}
    s_mul_i32 s27, s25, {FO_DELTA}
    s_add_u32 s27, s27, {FE_OFF}
    s_lshl_b32 s33, s24, 14
    s_add_u32 s33, s33, s27
    s_lshl_b32 s34, s26, 14
    s_add_u32 s34, s34, s27
    s_cmp_eq_u32 s25, 0
    s_cselect_b32 s35, s24, s26
    s_lshl_b32 s35, s35, 6
    s_add_u32 s35, s35, {X512_OFF}
    buffer_load_dwordx4 v[128:131], v{XA5}, s[28:31], s35 offen sc1
    """)
    def fl(j):
        r = FB + 24 * j
        s_ = f"buffer_load_dwordx4 {vr(r,4)}, v163, s[28:31], s33 offen offset:{1024*j} sc1\n"
        s_ += f"buffer_load_dwordx4 {vr(r+4,4)}, v163, s[28:31], s34 offen offset:{1024*j} sc1\n"
        for k in range(4): s_ += f"buffer_load_dwordx4 {vr(r+8+4*k,4)}, v163, s[28:31], s32 offen offset:{1024*k} sc1\n"
        s_ += "s_add_u32 s32, s32, 4096\n"
        if j == 3: s_ += "s_add_u32 s33, s33, 4096\ns_add_u32 s34, s34, 4096\n"
        return s_
    def fm(j):
        r = FB + 24 * j
        s_ = ""
        if opt("nofnet", 0) == 2: return s_
        for sub in range(2):
            s_ += f"v_mfma_f32_16x16x32_bf16 {vr(C+4*sub,4)}, {vr(r,4)}, {vr(r+8+8*sub,4)}, {vr(C+4*sub,4)}\n"
            s_ += f"v_mfma_f32_16x16x32_bf16 {vr(SN+4*sub,4)}, {vr(r+4,4)}, {vr(r+12+8*sub,4)}, {vr(SN+4*sub,4)}\n"
        return s_
    for j in range(4): a(fl(j))
    a(f"""
    s_cmp_eq_u32 s25, 0
    s_cselect_b32 s36, 1.0, 0
    s_cselect_b32 s37, 0, 1.0
    v_or_b32 v161, s37, v{SG}
    v_or_b32 v160, s36, v{SG}
    s_waitcnt vmcnt(24)
    """)
    for r in range(8): a(f"v_mul_f32 v{C+r}, v160, v{128 + r % 4}\nv_mul_f32 v{SN+r}, v161, v{128 + r % 4}")
    a("s_mov_b32 s38, 0\nH_FN_LOOP:")
    for j in range(4):
        a("s_waitcnt vmcnt(18)"); a(fm(j)); a(fl(j))
    a("s_add_u32 s38, s38, 1\ns_cmp_lt_u32 s38, 3\ns_cbranch_scc1 H_FN_LOOP")
    for j in range(4):
        a(f"s_waitcnt vmcnt({18-6*j})"); a(fm(j))
    a(f"""
    s_cmp_eq_u32 s26, 20
    s_cselect_b32 s44, 0xffff, 0
    s_mov_b32 s45, 0
    s_mul_i32 s26, s24, {8*ZP}
    s_mul_i32 s27, s25, {ZP}
    s_add_u32 s26, s26, s27
    s_lshr_b32 s27, s23, 1
    s_lshl_b32 s27, s27, 9
    s_add_u32 s26, s26, s27
    s_add_u32 s26, s26, {Y_OFF}
    v_cndmask_b32 v{SN}, v{SN}, 0, s[44:45]
    v_cndmask_b32 v{SN+4}, v{SN+4}, 0, s[44:45]
    """)
    for r in range(8):
        a(f"v_add_f32 v{16+r}, v{C+r}, v{SN+r}\nv_sub_f32 v{C+r}, v{C+r}, v{SN+r}")
    for r in range(8): a(f"v_cvt_pk_bf16_f32 v{16+r}, v{16+r}, v{C+r}")
    a(f"buffer_store_dwordx4 v[16:19], v{FZ}, s[28:31], s26 offen sc1\nbuffer_store_dwordx4 v[20:23], v{FZ}, s[28:31], s26 offen offset:256 sc1")
    a(f"""
H_MID:
    s_lshl_b32 s19, s17, 2
    s_and_b32 s20, s18, 3
    s_add_u32 s19, s19, s20
    s_lshr_b32 s20, s18, 2
    {srd(32, WO_P, 640*1280)}
    {srd(36, OUT_P, 2621440)}
    s_mul_i32 s26, s20, 160
    s_mul_i32 s27, s16, {160*1280}
    s_add_u32 s27, s27, s26
    s_movk_i32 s23, {1280 - 160}
    """)
    a(f"""
    s_add_u32 s25, s16, 1
    s_and_b32 s25, s25, 3
    s_mul_i32 s22, s25, 25600
    s_add_u32 s22, s22, {WOL}
    s_add_u32 s25, s25, 3
    s_waitcnt vmcnt(0)
    {st(5)}
    """)
    lwait(a, HPA, T + 1, 0xff, 2)
    a(f"""s_mov_b64 exec, 1
    ds_add_rtn_u32 v{T+1}, v{HPA}, v{HONE} offset:48
    s_waitcnt lgkmcnt(0)
    v_cmp_eq_u32 vcc, 3, v{T+1}
    s_cbranch_vccz H_NOY
    buffer_store_dword v{HONE}, v{YFA}, s[28:31], 0 offen sc1
H_NOY:
    s_mov_b64 exec, -1""")
    lwait(a, HPA, T + 1, 0xff, "s25")
    a(f"{st(6)}\ns_mov_b32 s25, 0\nH_WO:")
    for i in range(5):
        a(f"s_add_u32 m0, s22, {1024*i}\ns_nop 0\nbuffer_load_dwordx4 v{WA+i}, s[32:35], s27 offen lds")
    a(f"""
    s_add_u32 s22, s22, 5120
    s_add_u32 s27, s27, {32*1280}
    s_add_u32 s25, s25, 1
    s_cmp_lt_u32 s25, 5
    s_cbranch_scc1 H_WO
    s_cmp_lg_u32 s16, 3
    s_cbranch_scc1 H_YW
    """)
    lwait(a, HPA, T + 1, 0xff, opt("ypr", 5), 16)
    a(f"s_mov_b32 s27, {FLG_OFF + 32768}")
    poll4(a, VA, 4, "-1", "s27", slp=16)
    ladd(a, HPA, HONE, 40)
    a(f"H_YW:\nv_add_u32 v{T}, 40, v{HPA}")
    lwait(a, T, T + 1, 1, 1, 16)
    a("s_waitcnt vmcnt(0)")
    a(f"v_mov_b32 v{T}, 2")
    ladd(a, HPA, T, 32)
    a(f"{st(7)}\ns_mov_b32 s26, {Y_OFF}\ns_mov_b32 s27, {G_OFF}\nbuffer_load_dword v{G}, v{VG}, s[28:31], s27 offen sc1")
    for j in range(6):
        a(f"buffer_load_dwordx4 {vr(ZL+4*j,4)}, v{VZ}, s[28:31], s26 offen sc1\ns_add_u32 s26, s26, {2*ZP}")
    BF, OFR, ACC, YG = 0, 100, 120, 140
    VY2, G2 = 162, 167
    a(f"""
    s_waitcnt vmcnt(0)
    s_cmp_ge_u32 s20, 4
    s_cbranch_scc1 H_DESC
    """)
    for k in range(10): a(f"v_perm_b32 v{YG+10+k}, v{ZL+2*k+1}, v{ZL+2*k}, v{SH}")
    a("s_branch H_UNP\nH_DESC:")
    for k in range(10): a(f"v_perm_b32 v{YG+10+k}, v{ZL+19-2*k}, v{ZL+20-2*k}, v{SH}")
    a("H_UNP:")
    lwait(a, HPA, 8, 0xf, 8)
    a(f"""
    {st(8)}
    s_mov_b32 s41, s16
    s_mov_b32 s47, 0
P3_GO:
    s_setprio {opt('p3o', 0)}
    s_lshl_b32 s22, s17, 3
    s_and_b32 s23, s18, 3
    s_add_u32 s22, s22, s23
    s_lshl_b32 s22, s22, 1
    s_add_u32 s22, s22, s47
    s_mul_i32 s22, s22, 20480
    s_add_u32 s22, s22, {OF_OFF}
    s_lshl_b32 s44, s41, 12
    s_add_u32 s44, s44, s22
    s_lshl_b32 s45, s41, 10
    s_add_u32 s45, s45, s22
    s_add_u32 s45, s45, 16384
    s_lshl_b32 s46, s47, 2
    s_add_u32 s40, s46, {LFB + 80}
    s_add_u32 s46, s46, s41
    s_mul_i32 s46, s46, 5120
    s_add_u32 s46, s46, {WOL}
    s_mov_b32 s26, 0
    s_mov_b32 s42, 0
    v_mov_b32 v{CM}, {LFB + 32}
    """)
    lwait(a, CM, CT, 1, 8)
    a("P3_TRY:")
    for k in range(4):
        a(f"buffer_load_dwordx4 {vr(OFR+4*k,4)}, v{VA}, s[28:31], s44 offen offset:{1024*k} sc1")
    a(f"buffer_load_dwordx2 {vr(OFR+16,2)}, v{VT}, s[28:31], s45 offen sc1\nbuffer_load_dwordx2 {vr(OFR+18,2)}, v{VT}, s[28:31], s45 offen offset:128 sc1")
    a(f"""
    s_cmp_lg_u32 s26, 0
    s_cbranch_scc1 P3_CHK
    s_add_u32 s23, s41, 1
    s_and_b32 s23, s23, 3
    s_mul_i32 s23, s23, 25600
    s_add_u32 s23, s23, {WOL}
    v_add_u32 v{CM}, s23, v{BMM}
    v_add_u32 v{CT}, s23, v{BMT}
    """)
    for n in range(25):
        k, t = divmod(n, 5); d = BF + 4 * n
        bb, o, dj = (CM, k * 6400 + t * 8, 1280) if k < 4 else (CT, t * 8, 3200)
        a(f"ds_read_b64_tr_b16 {vr(d,2)}, v{bb} offset:{o}\nds_read_b64_tr_b16 {vr(d+2,2)}, v{bb} offset:{o+dj}")
    a(f"v_mov_b32 v{BMM}, {LFB + 36}\nv_mov_b32 v{BMT}, 1\ns_waitcnt lgkmcnt(0)")
    ladd(a, BMM, BMT, 0)
    b = OFR
    def mfs(k): return "\n".join(f"v_mfma_f32_16x16x32_bf16 {vr(ACC+4*t,4)}, {vr(BF+4*(5*k+t),4)}, {vr(OFR+4*k,4)}, {vr(ACC+4*t,4) if k else 0}" for t in range(5))
    if opt("spec", 1):
        a("P3_CHK:\ns_add_u32 s26, s26, 1\ns_mov_b32 s43, -1")
        for k in range(5):
            r = b + 4 * k
            a(f"""P3_C{k}:
            s_waitcnt vmcnt({max(0, 5 - k) if k < 4 else 0})
            v_max3_u32 v{CM}, v{r}, v{r+1}, v{r+2}
            v_max3_u32 v{CM}, v{r+3}, v{CM}, 1
            v_cmp_eq_u32 vcc, s43, v{CM}
            s_cbranch_vccnz P3_B{k}
            {mfs(k)}""")
        a(f"{'' if opt('fst', 0) else st(11)}\ns_branch P3_OK")
        for k in range(5):
            a(f"P3_B{k}:\ns_sleep {opt('p3s', 4)}")
            for kk in range(k, 4):
                a(f"buffer_load_dwordx4 {vr(OFR+4*kk,4)}, v{VA}, s[28:31], s44 offen offset:{1024*kk} sc1")
            a(f"buffer_load_dwordx2 {vr(OFR+16,2)}, v{VT}, s[28:31], s45 offen sc1\nbuffer_load_dwordx2 {vr(OFR+18,2)}, v{VT}, s[28:31], s45 offen offset:128 sc1")
            a(f"s_add_u32 s26, s26, 1\ns_cmp_lt_u32 s26, 0x40000\ns_cselect_b32 s43, -1, 0\ns_branch P3_C{k}")
        a("P3_OK:")
    else:
        a(f"P3_CHK:\ns_add_u32 s26, s26, 1\ns_waitcnt vmcnt(4)\nv_max3_u32 v{CM}, v{b}, v{b+1}, v{b+2}\nv_max3_u32 v{CT}, v{b+3}, v{b+4}, v{b+5}\nv_max3_u32 v{CM}, v{b+6}, v{b+7}, v{CM}\ns_waitcnt vmcnt(2)")
        a(f"v_max3_u32 v{CT}, v{b+8}, v{b+9}, v{CT}\nv_max3_u32 v{CM}, v{b+10}, v{b+11}, v{CM}\nv_max3_u32 v{CT}, v{b+12}, v{b+13}, v{CT}\nv_max3_u32 v{CM}, v{b+14}, v{b+15}, v{CM}\ns_waitcnt vmcnt(0)")
        a(f"""
    v_max3_u32 v{CT}, v{b+16}, v{b+17}, v{CT}
    v_max3_u32 v{CM}, v{b+18}, v{b+19}, v{CM}
    s_cmp_lt_u32 s26, 0x40000
    v_max_u32 v{CM}, v{CM}, v{CT}
    s_cbranch_scc0 P3_OK
    v_cmp_eq_u32 vcc, -1, v{CM}
    s_cbranch_vccz P3_OK
    s_sleep {opt("p3s", 4)}
    s_branch P3_TRY
P3_OK:
    {'' if opt('fst', 0) else st(11)}
    s_setprio {opt('p3p', 0)}
    """)
        for n in range(25):
            k, t = divmod(n, 5)
            a(f"v_mfma_f32_16x16x32_bf16 {vr(ACC+4*t,4)}, {vr(BF+4*n,4)}, {vr(OFR+4*k,4)}, {vr(ACC+4*t,4) if k else 0}")
    a("s_cmp_lg_u32 s42, 0\ns_cbranch_scc1 P3_WR")
    lwait(a, BMM, CT, 1, 8, 2)
    a(f"{str() if opt('fst', 0) else st(12)}\nP3_WR:\nv_add_u32 v{CM}, s46, v{VA}\nv_mov_b32 v{CT}, s40\ns_nop 1")
    for j in range(5): a(f"ds_write_b128 v{CM}, {vr(ACC+4*j,4)} offset:{1024*j}")
    a("s_waitcnt lgkmcnt(0)")
    ladd(a, CT, BMT, 0)
    a(f"""
    s_add_u32 s44, s44, {8*20480}
    s_add_u32 s45, s45, {8*20480}
    s_add_u32 s46, s46, {8*5120}
    s_add_u32 s40, s40, 8
    s_add_u32 s42, s42, 1
    s_cmp_ge_u32 s42, 2
    s_cbranch_scc1 P3_END
    s_cmp_ge_u32 s16, 4
    s_cbranch_scc1 P3_TRY
    """)
    for k in range(10): a(f"v_lshlrev_b32 v{YG+2*k}, 16, v{YG+10+k}\nv_and_b32 v{YG+2*k+1}, 0xffff0000, v{YG+10+k}")
    for k in range(20): a(f"v_mul_f32 v{YG+k}, v{YG+k}, v{G2}")
    a(f"""
    v_sub_f32 v{G2}, 1.0, v{G2}
    s_branch P3_TRY
P3_END:
    {st(10)}
    s_cmp_ge_u32 s16, 4
    s_cbranch_scc1 {"L_DONE" if STAMP else "L_END"}
    s_setprio 3
    s_lshl_b32 s23, s16, 2
    s_add_u32 s23, s23, {LFB + 80}
    v_mov_b32 v{CT}, s23
    s_mul_i32 s23, s16, 20480
    s_add_u32 s23, s23, {WOL}
    v_add_u32 v{CM}, s23, v{VA}
    """)
    lwait(a, CT, BMM, 1, 4, 1)
    a(st(9))
    for j in range(5):
        for g in range(4): a(f"ds_read_b128 {vr(16*j+4*g,4)}, v{CM} offset:{5120*g+1024*j}")
    for j in range(5):
        a(f"s_waitcnt lgkmcnt({min(15, 16-4*j)})")
        for r in (0, 2): a(f"v_pk_add_f32 {vr(16*j+r,2)}, {vr(16*j+r,2)}, {vr(16*j+4+r,2)}\nv_pk_add_f32 {vr(16*j+8+r,2)}, {vr(16*j+8+r,2)}, {vr(16*j+12+r,2)}")
        for r in (0, 2): a(f"v_pk_add_f32 {vr(16*j+r,2)}, {vr(16*j+r,2)}, {vr(16*j+8+r,2)}")
        for r in range(4): a(f"v_fmac_f32 v{YG+4*j+r}, v{16*j+r}, v{G2}")
        a(f"v_cvt_pk_bf16_f32 v{84+2*j}, v{YG+4*j}, v{YG+4*j+1}\nv_cvt_pk_bf16_f32 v{84+2*j+1}, v{YG+4*j+2}, v{YG+4*j+3}")
        if j == 1: a(f"buffer_store_dwordx4 v[84:87], v{VY2}, s[36:39], 0 offen" + OSC)
        if j == 3: a(f"buffer_store_dwordx4 v[88:91], v{VY2}, s[36:39], 0 offen offset:16" + OSC)
    a(f"buffer_store_dwordx2 v[92:93], v{VY2}, s[36:39], 0 offen offset:32" + OSC)

DOC = """;
"""
def main():
    a = A()
    top = open("cdna_kernels/" + NAME + ".s.ref").read().split("; Override launch")[0]
    top += "; @launch grid=(256,1,1) block=(768,1,1) lds=163840\n"
    top += DOC
    a('.amdgcn_target "amdgcn-amd-amdhsa--gfx950"\n.text')
    d = gen(a)
    open(sys.argv[1], "w").write(top + a.text() + '.section .rodata,"a"\n.p2align 6\n' + d)
if __name__ == "__main__":
    main()
```

```python
import sys, math, struct

OPT = dict(x.split("=") for x in sys.argv[2:])
def opt(k, d): return int(OPT.get(k, d))
NAME = "gated_mix__spectral_fnet__softmax_full_mha__prompt"
HS = 163840
KV_OFF = 0
HG = HS + opt('pad', 512)
HQ = 81920 + opt('pad', 512)
Q_OFF = 32 * HG
FE_OFF = Q_OFF + 32 * HQ
FO_DELTA = 655360
X512_OFF = FE_OFF + 2 * FO_DELTA
TB_OFF = X512_OFF + 4096
Y_OFF = TB_OFF + 33 * 65536
ZP = 8704
G_OFF = Y_OFF + 85 * 2 * ZP
OF_OFF = G_OFF + 8192
FLG_OFF = OF_OFF + 2621440
WS_USED = FLG_OFF + 320 * 128
XB = 102400
L_Y = 256
QLDS = 61440
RB0, RSL = 11264, 36864
LFB = 158720
WOL = 5120
AK1, AK2, AV, BK1, BK2, BV, OA1, OA2, ONES, PA, FA = range(152, 163)
VA, VT, BMM, BMT, CM, CT = 163, 164, 165, 166, 160, 161
PXB = 107520
def p3_addr(l):
    return f"""v_lshlrev_b32 v{VA}, 4, v{l}
    v_and_b32 v2, 7, v{l}
    v_bfe_u32 v4, v{l}, 3, 1
    v_lshrrev_b32 v3, 4, v{l}
    v_lshlrev_b32 v{VT}, 8, v3
    v_lshl_add_u32 v{VT}, v2, 4, v{VT}
    v_lshl_add_u32 v{VT}, v4, 3, v{VT}
    v_bfe_u32 v2, v{l}, 2, 2
    v_and_b32 v5, 3, v{l}
    v_mul_u32_u24 v5, 40, v5
    v_mul_u32_u24 v4, 40, v3
    v_add3_u32 v4, v4, v2, 16
    v_mul_u32_u24 v4, 160, v4
    v_add_u32 v{BMT}, v4, v5
    v_lshrrev_b32 v4, 1, v3
    v_mul_u32_u24 v4, 20, v4
    v_and_b32 v3, 1, v3
    v_lshl_add_u32 v4, v3, 2, v4
    v_add_u32 v4, v4, v2
    v_mul_u32_u24 v4, 160, v4
    v_add_u32 v{BMM}, v4, v5"""

def f32bits(x): return struct.unpack("<I", struct.pack("<f", x))[0]
QSCALE = f32bits((20 ** -0.5) * math.log2(math.e))
STAMP = opt("stamp", 0)
STAMP_OFF = 1 << 25
NST = 16

class A:
    def __init__(self): self.l = []; self.n = 0
    def __call__(self, s):
        for line in s.split("\n"):
            t = line.strip()
            if not t: continue
            self.l.append(t if t.endswith(":") or t.startswith(".") else "    " + t)
    def uid(self): self.n += 1; return self.n
    def text(self): return "\n".join(self.l) + "\n"

def vr(a, n): return f"v[{a}:{a+n-1}]" if n > 1 else f"v{a}"
def srd(lo, base, size):
    return f"s_mov_b32 s{lo}, s{base}\ns_mov_b32 s{lo+1}, s{base+1}\ns_mov_b32 s{lo+2}, {size}\ns_mov_b32 s{lo+3}, 0x20000"
OSC = " sc1" if opt("outsc1", 0) else ""
P1ST = opt("p1st", 0)
def st(i, p1=False):
    if not STAMP: return ""
    if P1ST and not p1 and 0 < i < 15 and i not in (4, 5): return ""
    if P1ST and not p1 and i in (4, 5): i += 8
    if p1 and not P1ST: return ""
    return f"{'s_memrealtime' if STAMP in (1, 3, 4) else 's_memtime'} s[{64+2*i}:{65+2*i}]"
def fin(): return "s_branch L_DONE" if STAMP else "s_endpgm"

X_P, WD_P, WQKV_P, WO_P, GATE_P, OUT_P, DBG_P, WS_P = 4, 8, 48, 50, 52, 54, 56, 58

def poll(a, vaddr, vdat, mask, target, sreg=60):
    u = a.uid()
    a(f"""
    s_mov_b64 exec, {mask}
    s_mov_b32 s{sreg}, 0
L_POLL{u}:
    buffer_load_dword v{vdat}, v{vaddr}, s[28:31], 0 offen sc1
    s_waitcnt vmcnt(0)
    v_cmp_gt_u32 vcc, {target}, v{vdat}
    s_cbranch_vccz L_POLLD{u}
    {'s_sleep 1' if opt('psleep', 0) else ''}
    s_add_u32 s{sreg}, s{sreg}, 1
    s_cmp_lt_u32 s{sreg}, 0x40000
    s_cbranch_scc1 L_POLL{u}
L_POLLD{u}:
    s_mov_b64 exec, -1
    """)

def poll4(a, vaddr, vdat, mask, soff="0", sreg=60, slp=None):
    u = a.uid()
    a(f"""
    s_mov_b64 exec, {mask}
    s_mov_b32 s{sreg}, 0
    s_branch L_POLLE{u}
L_POLL{u}:
    s_sleep {slp or opt("ps4", 2)}
L_POLLE{u}:
    buffer_load_dwordx4 {vr(vdat,4)}, v{vaddr}, s[28:31], {soff} offen sc1
    s_add_u32 s{sreg}, s{sreg}, 1
    s_waitcnt vmcnt(0)
    v_min3_u32 v{vdat}, v{vdat}, v{vdat+1}, v{vdat+2}
    s_cmp_lt_u32 s{sreg}, 0x40000
    v_min_u32 v{vdat}, v{vdat}, v{vdat+3}
    s_cbranch_scc0 L_POLLD{u}
    v_cmp_eq_u32 vcc, 0, v{vdat}
    s_cbranch_vccnz L_POLL{u}
L_POLLD{u}:
    s_mov_b64 exec, -1
    """)

def gen(a):
    label = NAME + "_kernel"
    a(f".p2align 8\n.globl {label}\n.type {label},@function\n{label}:")
    a(f"""
    s_cmp_ge_u32 s2, 256
    s_cbranch_scc1 L_END
    {st(0) + chr(10) + 's_waitcnt lgkmcnt(0)' if opt("st0first", 0) else ''}
    s_load_dwordx2 s[4:5], s[0:1], 0
    s_load_dwordx8 s[48:55], s[0:1], 48
    s_load_dwordx4 s[8:11], s[0:1], 24
    s_load_dwordx4 s[56:59], s[0:1], 80
    """)
    if STAMP:
        a("\n".join(f"s_mov_b32 s{64+j}, 0" for j in range(2, 2 * NST)) + "\n" + ("" if opt("st0first", 0) else st(0)))
    a(f"""
    v_lshrrev_b32 v1, 6, v0
    v_and_b32 v0, 63, v0
    s_and_b32 s17, s2, 7
    v_readfirstlane_b32 s16, v1
    s_lshr_b32 s18, s2, 3
    s_and_b32 s19, s18, 7
    s_lshr_b32 s22, s18, 3
    s_and_b32 s21, s17, 1
    s_lshl_b32 s23, s19, 1
    s_add_u32 s21, s21, s23
    s_lshr_b32 s20, s17, 1
    s_cmp_ge_u32 s19, {opt("numl", 3)}
    s_cselect_b32 s12, 1, 0
    s_cmp_eq_u32 s22, 0
    s_cselect_b32 s12, 0, s12
    s_cmp_ge_u32 s16, 4
    s_cbranch_scc1 P1_NOTLOADER
    """)
    p1_loader(a)
    a(f"""
P1_NOTLOADER:
    s_lshl_b32 s63, s17, 2
    s_add_u32 s63, s63, s22
    s_mul_i32 s14, s63, {HG}
    s_sub_u32 s13, s16, 4
    s_lshl_b32 s23, s19, 3
    s_add_u32 s23, s23, s13
    s_mul_i32 s23, s23, 40960
    s_add_u32 s23, s23, {OF_OFF}
    s_lshl_b32 s6, s63, 9
    s_add_u32 s6, s6, s23
    s_lshl_b32 s7, s63, 7
    s_add_u32 s7, s7, s23
    s_add_u32 s7, s7, 16384
    s_lshl_b32 s15, s20, 2
    s_add_u32 s15, s15, s22
    s_lshl_b32 s15, s15, 4
    s_add_u32 s15, s15, s21
    s_lshl_b32 s15, s15, 5
    s_add_u32 s15, s15, s13
    s_lshl_b32 s15, s15, 2
    s_add_u32 s15, s15, {FLG_OFF}
    v_and_b32 v1, 31, v0
    v_lshrrev_b32 v2, 5, v0
    v_lshlrev_b32 v{AK1}, 4, v0
    v_lshrrev_b32 v3, 4, v1
    v_lshl_add_u32 v3, v3, 1, v2
    v_and_b32 v4, 15, v0
    v_lshl_add_u32 v3, v4, 2, v3
    v_lshlrev_b32 v{AK2}, 2, v3
    v_mul_u32_u24 v{AV}, 384, v2
    v_lshlrev_b32 v3, 6, v2
    v_cmp_gt_u32 vcc, 16, v1
    s_nop 1
    v_cndmask_b32 v{AV}, v3, v{AV}, vcc
    v_lshl_add_u32 v{AV}, v1, 4, v{AV}
    v_add_u32 v{BK1}, 15360, v{AK1}
    v_add_u32 v{BK2}, 15360, v{AK2}
    v_add_u32 v{BV}, 15360, v{AV}
    v_and_b32 v3, 27, v1
    v_cmp_eq_u32 vcc, 24, v3
    v_mov_b32 v3, 0x3f803f80
    v_bfe_u32 v{OA2}, v1, 3, 1
    v_cndmask_b32 v{ONES}, 0, v3, vcc
    v_mul_u32_u24 v{OA2}, 20480, v{OA2}
    v_and_b32 v3, 7, v1
    v_lshl_add_u32 v{OA2}, v3, 4, v{OA2}
    v_lshrrev_b32 v3, 4, v0
    v_lshl_add_u32 v{OA1}, v3, 7, v{OA2}
    s_lshl_b32 s23, s13, 2
    s_add_u32 s23, s23, {LFB}
    v_mov_b32 v{PA}, s23
    v_mov_b32 v{FA}, {LFB + 56}
    {p3_addr(0)}
    s_cmp_ge_u32 s16, 8
    s_cbranch_scc1 P1_EXTRA
    """)
    p1_compute(a)
    p1_extra(a)
    attention(a)
    helpers(a)
    a("L_DONE:")
    if STAMP == 4:
        i_, j_ = opt("ai", 0), opt("aj", 0)
        a(f"""s_waitcnt vmcnt(0)
        {st(NST-1)}
        s_waitcnt lgkmcnt(0)
        {f's_cmp_lg_u32 s16, {opt("aw1", 0)}' if opt("aw1", 0) else f's_cmp_ge_u32 s16, {opt("aw", 4)}'}
        s_cbranch_scc1 L_END
        s_and_b32 s60, s2, {opt("am", 31)}
        s_cmp_lg_u32 s60, {opt("av", 5)}
        s_cbranch_scc1 L_END
        s_sub_u32 s60, s{64+2*j_}, s{64+2*i_}
        s_lshl_b32 s60, s60, 2
        s_min_u32 s60, s60, 100000
        {f's_mov_b32 s60, {opt("fix", 0)}' if opt("fix", 0) else ''}
L_AMP:
        s_memrealtime s[44:45]
        s_waitcnt lgkmcnt(0)
        s_sub_u32 s44, s44, s{64 if opt("fix", 0) else 64+2*(NST-1)}
        s_cmp_lt_u32 s44, s60
        s_cbranch_scc1 L_AMP
        """)
    elif STAMP == 3:
        r = f"s_waitcnt vmcnt(0)\n{st(NST-1)}\ns_mov_b64 exec, 1\n{srd(44, DBG_P, 256)}\ns_waitcnt lgkmcnt(0)\nv_mov_b32 v16, 0\n"
        r += "s_not_b32 s60, s64\nv_mov_b32 v0, s60\nbuffer_atomic_umax v0, v16, s[44:47], 0 offen offset:4 sc1\n"
        r += "s_cmp_eq_u32 s16, 0\ns_cbranch_scc1 L_D0\ns_cmp_eq_u32 s16, 4\ns_cbranch_scc0 L_END\n"
        for n, i in enumerate((2, 3, 4, 5, 7, 8, 9)): r += f"v_mov_b32 v{n+1}, s{64+2*i}\nbuffer_atomic_umax v{n+1}, v16, s[44:47], 0 offen offset:{8+4*n} sc1\n"
        r += "s_endpgm\nL_D0:\n"
        for n, i in enumerate((0, 1, 6, 8, 9, 10, 15)): r += f"v_mov_b32 v{n+1}, s{64+2*i}\nbuffer_atomic_umax v{n+1}, v16, s[44:47], 0 offen offset:{36+4*n} sc1\n"
        a(r)
    elif STAMP:
        r = f"s_waitcnt vmcnt(0)\n{st(NST-1)}\ns_mov_b64 exec, 1\ns_add_u32 s44, s{WS_P}, {STAMP_OFF}\ns_addc_u32 s45, s{WS_P+1}, 0\ns_mov_b32 s46, 262144\ns_mov_b32 s47, 0x20000\n"
        r += "s_lshl_b32 s60, s2, 4\ns_add_u32 s60, s60, s16\ns_lshl_b32 s60, s60, 6\ns_waitcnt lgkmcnt(0)\nv_mov_b32 v16, 0\n"
        if opt("xcc", 0): r += "s_getreg_b32 s66, hwreg(HW_REG_XCC_ID)\ns_add_u32 s66, s66, 100\n"
        for i in range(NST): r += f"v_mov_b32 v{i}, s{64+2*i}\n"
        for i in range(4): r += f"buffer_store_dwordx4 v[{4*i}:{4*i+3}], v16, s[44:47], s60 offen offset:{16*i}\n"
        a(r)
    a("L_END:\ns_endpgm\n.fill 256, 4, 0xbf810000\nL_CODE_END:")
    return f""".amdhsa_kernel {label}
  .amdhsa_next_free_vgpr 168
  .amdhsa_next_free_sgpr {100 if STAMP else 64}
  .amdhsa_accum_offset 168
  .amdhsa_group_segment_fixed_size 0
  .amdhsa_kernarg_size 96
  .amdhsa_user_sgpr_count 2
  .amdhsa_user_sgpr_kernarg_segment_ptr 1
  .amdhsa_system_sgpr_workgroup_id_x 1
.end_amdhsa_kernel
"""

def p1_loader(a):
    a(f"""
    s_setprio 3
    """)
    if opt("pf", 0):
        a(f"""
        v_lshlrev_b32 v20, 4, v0
        s_mul_i32 s23, s2, 10240
        s_and_b32 s24, s16, 1
        s_mul_i32 s24, s24, 5120
        s_add_u32 s23, s23, s24
        s_mul_i32 s25, s2, 3
        s_mov_b32 s31, 0x20000
        s_mov_b32 s35, 0x20000
        s_mov_b32 s34, {640*1280}
        s_waitcnt lgkmcnt(0)
        s_mov_b32 s30, {2048*1280}
        s_cmp_lt_u32 s16, 2
        s_cselect_b32 s28, s{X_P}, s{WQKV_P}
        s_cselect_b32 s29, s{X_P+1}, s{WQKV_P+1}
        s_cselect_b32 s30, s30, {640*3840}
        s_cselect_b32 s32, s8, s10
        s_cselect_b32 s33, s9, s11
        buffer_load_dwordx4 v[24:27], v20, s[28:31], s23 offen
        buffer_load_dwordx4 v[28:31], v20, s[28:31], s23 offen offset:1024
        buffer_load_dwordx4 v[32:35], v20, s[28:31], s23 offen offset:2048
        buffer_load_dwordx4 v[36:39], v20, s[28:31], s23 offen offset:3072
        s_add_u32 s23, s23, 4096
        buffer_load_dwordx4 v[40:43], v20, s[28:31], s23 offen
        s_lshr_b32 s24, s24, 11
        s_add_u32 s25, s25, s24
        s_mul_i32 s25, s25, 1280
        s_mov_b32 exec_hi, 0xff
        buffer_load_dwordx4 v[44:47], v20, s[32:35], s25 offen
        s_bitcmp1_b32 s16, 0
        s_cbranch_scc1 P1_PF1
        buffer_load_dwordx4 v[48:51], v20, s[32:35], s25 offen offset:1280
P1_PF1:
        s_mov_b32 exec_hi, -1
        """)
    a(f"""
    v_lshrrev_b32 v2, 3, v0
    v_and_b32 v3, 7, v0
    v_lshrrev_b32 v4, 4, v0
    v_xor_b32 v3, v3, v4
    v_lshlrev_b32 v3, 4, v3
    v_xor_b32 v4, 64, v3
    s_lshl_b32 s23, s21, 5
    s_lshr_b32 s24, s16, 1
    s_lshl_b32 s24, s24, 4
    s_add_u32 s23, s23, s24
    s_cmp_eq_u32 s22, 2
    s_cselect_b32 s25, 4, 0
    v_and_b32 v9, s25, v2
    v_add3_u32 v9, v9, v2, s23
    s_sub_u32 s25, 8, s25
    s_bitcmp1_b32 s16, 0
    s_cselect_b32 s23, -1, 1
    s_cselect_b32 s24, 0x400, 0
    s_mul_i32 s25, s25, s23
    v_mul_lo_u32 v10, v9, s23
    s_sub_u32 s27, 0x800, s24
    v_add_u32 v5, s24, v10
    v_sub_u32 v7, s27, v10
    v_add_u32 v6, s25, v5
    v_subrev_u32 v8, s25, v7
    v_cmp_eq_u32 vcc, 0, v9
    s_add_u32 s24, s24, 0x200
    v_mov_b32 v9, s24
    s_cmp_lg_u32 s22, 2
    v_cndmask_b32 v7, v7, v9, vcc
    s_cbranch_scc1 P1_LD_NV
    v_swap_b32 v6, v7
P1_LD_NV:
    s_movk_i32 s27, 1280
    v_mad_u32_u24 v10, v5, s27, v3
    v_mad_u32_u24 v11, v6, s27, v4
    v_mad_u32_u24 v12, v7, s27, v3
    v_mad_u32_u24 v13, v8, s27, v4
    """)
    EX = opt("early", 1) and opt("stag1", 7) == 7
    if EX:
        a(f"""
        s_lshr_b32 s36, s17, 1
        s_xor_b32 s36, s36, s17
        s_and_b32 s36, s36, 1
        s_xor_b32 s36, s36, 9
        s_lshl_b32 s41, s36, 7
        s_lshl_b32 s44, s16, 12
        s_add_u32 m0, s44, {RB0 + 2 * RSL}
        s_waitcnt lgkmcnt(0)
        {srd(28, X_P, 2048*1280)}
        buffer_load_dwordx4 v10, s[28:31], s41 offen lds
        """)
        for i in range(1, 4):
            a(f"s_add_u32 m0, s44, {RB0 + 2 * RSL + 1024*i}\ns_nop 0\nbuffer_load_dwordx4 v{10+i}, s[28:31], s41 offen lds")
    a(f"""
    s_lshl_b32 s26, s22, 2
    s_add_u32 s26, s26, s20
    s_and_b32 s27, s20, 1
    s_movk_i32 s25, 3840
    s_cmp_eq_u32 s22, 3
    s_cselect_b32 s25, 1280, s25
    s_cselect_b32 s26, s27, s26
    s_mul_i32 s26, s26, 320
    s_lshl_b32 s27, s16, 4
    s_mul_i32 s27, s27, s25
    s_add_u32 s26, s26, s27
    s_sub_u32 s27, s25, 320
    """)
    for i in range(5):
        a(f"""
        v_add_u32 v5, {64*i}, v0
        v_mul_u32_u24 v6, 3277, v5
        v_lshrrev_b32 v6, 16, v6
        v_lshrrev_b32 v7, 2, v6
        v_and_b32 v7, 2, v7
        v_xor_b32 v5, v5, v7
        v_lshl_add_u32 v5, v5, 4, s26
        v_mad_u32_u24 v{14+i}, v6, s27, v5
        """)
    sg = opt("stag1", 7)
    if sg == 1:
        a("s_lshl_b32 s36, s19, 3\ns_lshl_b32 s37, s22, 4\ns_add_u32 s36, s36, s37\ns_add_u32 s36, s36, s17\ns_and_b32 s36, s36, 63\ns_mul_i32 s36, s36, 10\ns_lshr_b32 s36, s36, 6")
    elif sg == 2:
        a("s_add_u32 s36, s19, s22\ns_lshl_b32 s36, s36, 4\ns_add_u32 s36, s36, s17\ns_add_u32 s36, s36, s17\ns_and_b32 s36, s36, 63\ns_mul_i32 s36, s36, 10\ns_lshr_b32 s36, s36, 6")
    elif sg == 3:
        a("s_add_u32 s36, s19, s22\ns_lshl_b32 s36, s36, 5\ns_lshl_b32 s37, s17, 2\ns_add_u32 s36, s36, s37\ns_and_b32 s36, s36, 63\ns_mul_i32 s36, s36, 10\ns_lshr_b32 s36, s36, 6")
    elif sg >= 10:
        nc = sg - 9
        Gn = 5 - nc
        rot = [2 * (nc + k % Gn) for k in range(2 * Gn - 1)]
        rv = sum(v << (4 * k) for k, v in enumerate(rot))
        com = sum((2 * k) << (4 * k) for k in range(nc))
        a(f"""
        s_lshr_b32 s36, s17, 1
        s_xor_b32 s36, s36, s17
        s_and_b32 s36, s36, 1
        s_add_u32 s37, s22, s19
        s_lshr_b32 s46, s17, 2
        s_lshl_b32 s46, s46, {opt("xsh", 1)}
        s_add_u32 s37, s37, s46
        s_mul_i32 s46, s37, {256 // Gn + 1}
        s_lshr_b32 s46, s46, 8
        s_mul_i32 s46, s46, {Gn}
        s_sub_u32 s37, s37, s46
        s_lshl_b32 s37, s37, 2
        s_lshr_b32 s46, {rv:#x}, s37
        s_and_b32 s46, s46, {(1 << (4 * Gn)) - 1:#x}
        s_lshl_b32 s46, s46, {4 * nc}
        s_or_b32 s46, s46, {0x53100000 | com:#x}
        s_mov_b32 s47, 0x97
        s_mul_i32 s37, s36, 0x11111111
        s_xor_b32 s46, s46, s37
        s_xor_b32 s47, s47, s37
        s_and_b32 s36, s46, 15
        """)
    elif sg >= 5:
        tsh = {5: 0, 6: 1, 7: 0, 8: 0, 9: 0}[sg]
        a(f"""
        s_lshr_b32 s36, s17, 1
        s_xor_b32 s36, s36, s17
        s_and_b32 s36, s36, 1
        {'s_min_u32 s37, s22, 2' if sg == 9 else f's_lshr_b32 s37, s22, {tsh}'}
        s_add_u32 s37, s37, s19
        s_lshr_b32 s46, s17, 2
        s_lshl_b32 s46, s46, 1
        s_add_u32 s37, s37, s46
        s_mul_i32 s46, s37, 52
        s_lshr_b32 s46, s46, 8
        s_mul_i32 s46, s46, 5
        s_sub_u32 s37, s37, s46
        s_lshl_b32 s37, s37, 2
        s_mov_b32 s46, 0x42086420
        s_mov_b32 s47, 0x6
        s_lshr_b64 s[46:47], s[46:47], s37
        s_and_b32 s46, s46, 0xfffff
        {'s_or_b32 s47, s46, 0x11111' + chr(10) + 's_lshl_b32 s37, s47, 20' + chr(10) + 's_or_b32 s46, s46, s37' + chr(10) + 's_lshr_b32 s47, s47, 12' if sg == 8 else 's_or_b32 s46, s46, 0x53100000' + chr(10) + 's_mov_b32 s47, 0x97'}
        s_mul_i32 s37, s36, 0x11111111
        s_xor_b32 s46, s46, s37
        s_xor_b32 s47, s47, s37
        """)
        if sg == 7:
            a("s_lshr_b32 s37, s47, 4\ns_and_b32 s37, s37, 15\ns_lshl_b64 s[46:47], s[46:47], 4\ns_or_b32 s46, s46, s37")
        a("s_and_b32 s36, s46, 15")
    else:
        a("s_mov_b32 s36, 0")
    a(f"""
    s_lshl_b32 s38, s16, 12
    s_add_u32 s38, s38, {RB0}
    s_mul_i32 s39, s16, 5120
    s_add_u32 s39, s39, {RB0 + 16384}
    s_mov_b32 s40, 0
    s_mul_i32 s34, s25, 640
    s_lshl_b32 s25, s25, 6
    s_mov_b32 s35, 0x20000
    s_waitcnt lgkmcnt(0)
    {srd(28, X_P, 2048*1280)}
    s_cmp_lt_u32 s20, 2
    s_cselect_b32 s32, s8, s10
    s_cselect_b32 s33, s9, s11
    s_cmp_eq_u32 s22, 3
    s_cselect_b32 s32, s32, s{WQKV_P}
    s_cselect_b32 s33, s33, s{WQKV_P+1}
    {st(1)}
    """)
    if opt("dftdelay", 0):
        a(f"""s_cmp_lg_u32 s22, 3
        s_cbranch_scc1 P1_LD_LOOP
        s_memrealtime s[42:43]
        s_waitcnt lgkmcnt(0)
        s_add_u32 s42, s42, {opt("dftdelay", 0)}
P1_DLY:
        s_memrealtime s[44:45]
        s_waitcnt lgkmcnt(0)
        s_cmp_lt_u32 s44, s42
        s_cbranch_scc1 P1_DLY
        """)
    a(f"""
P1_LD_LOOP:
    s_lshl_b32 s41, s36, 7
    s_mul_i32 s42, s36, s25
    s_add_u32 s43, s40, 2
    s_and_b32 s43, s43, 3
    s_mul_i32 s43, s43, {RSL}
    s_add_u32 s44, s43, s38
    s_add_u32 s45, s43, s39
    """)
    if EX: a("s_cmp_eq_u32 s40, 0\ns_cbranch_scc1 P1_LD_WW")
    for i in range(4):
        a(f"s_add_u32 m0, s44, {1024*i}\ns_nop 0\nbuffer_load_dwordx4 v{10+i}, s[28:31], s41 offen lds")
    a("P1_LD_WW:")
    for i in range(5):
        a(f"s_add_u32 m0, s45, {1024*i}\ns_nop 0\nbuffer_load_dwordx4 v{14+i}, s[32:35], s42 offen lds")
    if opt("noload", 0): a("s_cmp_ge_u32 s40, 3\ns_cselect_b32 s30, 0, s30\ns_cselect_b32 s34, 0, s34")
    a(f"""
    {'s_lshr_b64 s[46:47], s[46:47], 4' + chr(10) + 's_and_b32 s36, s46, 15' if sg >= 5 else 's_add_u32 s36, s36, 1' + chr(10) + 's_cmp_eq_u32 s36, 10' + chr(10) + 's_cselect_b32 s36, 0, s36'}
    s_add_u32 s40, s40, 1
    s_cmp_eq_u32 s40, 1
    s_cbranch_scc1 P1_LD_LOOP
    s_waitcnt vmcnt(9)
    s_barrier
    s_cmp_lt_u32 s40, 10
    s_cbranch_scc1 P1_LD_LOOP
    s_waitcnt vmcnt(0)
    s_barrier
    s_branch HELPER
    """)

def p1_compute(a):
    X = 80; W = [96, 116]; XA = 136; WA = 137; CX = 142; CW = 144; PC = 149; L = 150; TT = 96
    def acc(b, T): return 20 * b + 4 * T
    a(f"""
    s_sub_u32 s61, s16, 4
    s_and_b32 s36, s61, 1
    s_lshr_b32 s37, s61, 1
    v_mov_b32 v{L}, v0
    v_and_b32 v1, 15, v0
    v_lshrrev_b32 v2, 4, v0
    v_lshrrev_b32 v3, 1, v1
    v_xor_b32 v3, v3, v2
    v_lshlrev_b32 v3, 4, v3
    v_lshl_add_u32 v3, v1, 7, v3
    s_lshl_b32 s23, s36, 13
    s_add_u32 s23, s23, {RB0}
    v_add_u32 v{XA}, s23, v3
    v_bfe_u32 v3, v0, 2, 2
    v_lshl_add_u32 v3, v2, 3, v3
    v_mul_u32_u24 v3, 320, v3
    v_add_u32 v3, {RB0 + 16384}, v3
    v_and_b32 v4, 16, v0
    v_lshlrev_b32 v4, 1, v4
    v_and_b32 v5, 3, v0
    s_mul_i32 s23, s37, 160
    v_lshl_add_u32 v6, v5, 3, s23
    """)
    for T in range(4):
        a(f"v_xor_b32 v7, v6, v4\nv_add_u32 v{WA+T}, v7, v3\nv_add_u32 v6, 40, v6")
    a(f"""
    v_mul_u32_u24 v6, 40, v5
    v_add3_u32 v6, v6, s23, 32
    v_xor_b32 v7, v6, v4
    v_add_u32 v{WA+4}, v7, v3
    v_mov_b32 v{PC}, 0xbf803f80
    s_lshl_b32 s26, s22, 2
    s_add_u32 s26, s26, s20
    s_lshl_b32 s26, s26, 1
    s_add_u32 s26, s26, s37
    s_cmp_eq_u32 s26, 28
    s_cselect_b32 s24, 0x10001, 0
    s_mov_b32 s25, s24
    s_cmp_eq_u32 s22, 3
    s_cselect_b32 s43, 10, 8
    s_mov_b32 s40, 0
    s_mov_b32 s42, {2 * RSL}
    """)
    for r in range(96): a(f"v_mov_b32 v{r}, 0")
    for r in range(20): a(f"v_mov_b32 v{W[1]+r}, 0")
    a(f"v_add_u32 v{CX}, s42, v{XA}")
    for T in range(5): a(f"v_add_u32 v{CW+T}, s42, v{WA+T}")
    a(f"s_waitcnt lgkmcnt(0)\n{srd(28, WS_P, WS_USED)}")
    a(f"s_setprio {opt('cp', 2)}\ns_cmp_ge_u32 s22, 2\ns_cbranch_scc1 P1_PRE_V")
    def mf(b, T, x, w, qk):
        d = vr(acc(b, T), 4)
        return f"v_mfma_f32_16x16x32_bf16 {d}, {vr(w,4)}, {vr(x,4)}, {d}" if qk else f"v_mfma_f32_16x16x32_bf16 {d}, {vr(x,4)}, {vr(w,4)}, {d}"
    def rdw(d, T, step): return [f"ds_read_b64_tr_b16 {vr(d+2*j,2)}, v{CW+T} offset:{(step // 2) * RSL + (step % 2) * 10240 + 1280 * j}" for j in range(2)]
    def rdx(d, b, step): return f"ds_read_b128 {vr(d,4)}, v{CX + step % 2} offset:{(step // 2) * RSL + 2048 * b}"
    TO = (1, 2, 3, 4, 0)
    def group(step, qk, reads=True, patch=True):
        cur = W[1 - step]; nxt = W[step]
        rq = []
        for T in TO: rq += rdw(nxt + 4 * T, T, step)
        fill = []
        if step == 1:
            fill = ["s_add_u32 s40, s40, 1", "s_add_u32 s41, s40, 2", "s_and_b32 s41, s41, 3", f"s_mul_i32 s42, s41, {RSL}", f"v_add_u32 v{CX}, s42, v{XA}"] + [f"v_add_u32 v{CW+T}, s42, v{WA+T}" for T in range(5)]
        issued = 0
        for b in range(4):
            if reads:
                allow = [2, 15, issued + 1, issued][b]
                if b != 1: a(f"s_waitcnt lgkmcnt({min(15, allow)})")
            elif b == 0: a("s_waitcnt lgkmcnt(0)")
            for n, T in enumerate(TO):
                a(mf(b, T, X + 4 * b, cur + 4 * T, qk))
                if b == 0 and n < 2 and not qk and patch:
                    for j in range(2): a(f"v_cndmask_b32 v{cur+2*n+j}, v{cur+2*n+j}, v{PC}, s[24:25]")
                if not reads: continue
                if step == 0 and b == 0:
                    if n == 0: a(f"v_xor_b32 v{CX+1}, 64, v{CX}")
                    if n == opt("bn", 1): a("s_barrier")
                    if n <= opt("bn", 1): continue
                if n == 4: a(rdx(X + 4 * b, b, step)); issued += 1
                elif rq:
                    a(rq.pop(0)); issued += 1
                    if rq and (opt("rd2", 0) or (step == 0 and b == 1 and n < opt("bn", 1) - 1)): a(rq.pop(0)); issued += 1
                elif fill:
                    a(fill.pop(0))
                    if fill: a(fill.pop(0))
        assert not reads or (not rq and not fill), (rq, fill)

    def tail(qk, epi):
        seq = [(b, T, ("x0", b), ("w0", T)) for b in range(4) for T in TO]
        marks = {}
        win = opt("win", 2)
        for step in range(4 - win):
            for b in range(4):
                for T in TO: seq.append((b, T, ("x", 0, step, b), ("w", step, T)))
        for T in range(5):
            for jj in range(2):
                for step in range(4 - win, 4):
                    for b in (2 * jj, 2 * jj + 1): seq.append((b, T, ("x", 0, step, b), ("w", step, T)))
                marks[len(seq) - 1] = (T, jj)
        last = {}
        for n, (_, _, x, w) in enumerate(seq): last[x] = n; last[w] = n
        loc = {("x0", b): X + 4 * b for b in range(4)}; loc.update({("w0", T): W[1] + 4 * T for T in range(5)})
        free = [W[0] + 4 * k for k in range(5)] + [XA]
        order = []
        for _, _, x, w in seq:
            for f in (w, x):
                if f not in loc and f not in order: order.append(f)
        done_at = {}; nrd = 0; waited = 0; pend = []; fill = []
        cnt = [0]; prev = [0]
        def em(t): a(t); cnt[0] += 1
        a(f"v_xor_b32 v{CX+1}, 64, v{CX}\ns_waitcnt lgkmcnt(0)\ns_barrier")
        bar2 = [True]
        def take():
            f = order.pop(0); loc[f] = free.pop(0)
            if bar2 and (f[1] if f[0] == "w" else f[2]) >= 2: em("s_barrier"); bar2.pop()
            p_ = rdw(loc[f], f[2], f[1]) if f[0] == "w" else [rdx(loc[f], f[3], f[2])]
            done_at[f] = nrd + len(p_)
            return p_
        def gap():
            t, at, after = fill[0]
            return max(at - cnt[0], prev[0] + after - cnt[0], 0)
        def put():
            em(fill.pop(0)[0]); prev[0] = cnt[0]
        for n, (b, T, x, w) in enumerate(seq):
            while any(f not in loc or (f in done_at and done_at[f] > nrd) for f in (x, w)):
                if not pend: pend = take()
                em(pend.pop(0)); nrd += 1
            need = max(done_at.get(x, 0), done_at.get(w, 0))
            if need > waited:
                waited = max(need, nrd - opt("tw", 6)); em(f"s_waitcnt lgkmcnt({nrd - waited})")
            em(mf(b, T, loc[x], loc[w], qk))
            if n in marks: fill += [(t, cnt[0] + 8, after) for t, after in epi(*marks[n])]
            for f in (x, w):
                if last[f] == n: free.append(loc[f])
            if not pend and order and free: pend = take()
            if pend: em(pend.pop(0)); nrd += 1
            for _ in range(2):
                if fill and gap() == 0: put()
        a(st(3))
        while fill:
            g_ = gap()
            if g_: a(f"s_nop {g_ - 1}"); cnt[0] += g_
            put()

    EA, EB = 167, 151
    def cv(d, r): return [f"v_cvt_pk_bf16_f32 v{d}, v{r}, v{r+1}", f"v_cvt_pk_bf16_f32 v{d+1}, v{r+2}, v{r+3}"]
    def epi_qk(ph, jj=0):
        if ph < 0:
            return f"""s_mov_b32 s35, {HG}
            s_movk_i32 s38, 2560
            s_cmp_eq_u32 s22, 0
            s_cselect_b32 s35, {HQ}, s35
            s_cselect_b32 s27, {Q_OFF}, {KV_OFF}
            s_cselect_b32 s38, 1280, s38
            s_lshl_b32 s26, s20, 1
            s_add_u32 s26, s26, s37
            s_lshl_b32 s26, s26, 2
            s_mul_i32 s26, s26, s35
            s_add_u32 s26, s26, s27
            s_lshl_b32 s23, s21, 1
            s_add_u32 s23, s23, s36
            s_lshl_b32 s23, s23, 1
            s_mul_i32 s23, s23, s38
            s_add_u32 s26, s26, s23
            s_add_u32 s27, s26, s38
            v_lshrrev_b32 v{EA}, 4, v{L}
            v_mul_lo_u32 v{EA}, v{EA}, s35
            v_and_b32 v{TT}, 15, v{L}
            v_lshl_add_u32 v{EA}, v{TT}, 4, v{EA}
            v_lshlrev_b32 v{EB}, 4, v{L}
            s_add_u32 s44, s26, s35
            s_add_u32 s45, s27, s35
            s_add_u32 s46, s44, s35
            s_add_u32 s47, s45, s35
            s_add_u32 s32, s46, s35
            s_add_u32 s33, s47, s35""".split("\n")
        T = ph
        r0, r1 = acc(2 * jj, T), acc(2 * jj + 1, T)
        o = [(t, 0) for t in cv(r0, r0) + cv(r0 + 2, r1)]
        if T < 4:
            o += [(f"v_permlane16_swap_b32 v{r0}, v{r0+2}", 1), (f"v_permlane16_swap_b32 v{r0+1}, v{r0+3}", 0)]
            o.append((f"buffer_store_dwordx4 {vr(r0,4)}, v{EB}, s[28:31], s{(26, 44, 46, 32)[T] + jj} offen sc1", 0))
        else:
            o.append((f"buffer_store_dwordx4 {vr(r0,4)}, v{EA}, s[28:31], s{26 + jj} offen offset:1024 sc1", 0))
        return o
    def epi_v(ph, jj=0):
        if ph < 0:
            return f"""s_lshl_b32 s26, s20, 1
            s_add_u32 s26, s26, s37
            s_mul_i32 s26, s26, {4*HG}
            s_lshl_b32 s23, s21, 1
            s_add_u32 s23, s23, s36
            s_mul_i32 s23, s23, 5120
            s_add_u32 s26, s26, s23
            s_add_u32 s26, s26, {KV_OFF + 1280}
            s_add_u32 s44, s26, {HG}
            s_add_u32 s45, s26, {2*HG}
            s_add_u32 s46, s26, {3*HG}
            s_mov_b32 s35, {HG}
            v_lshrrev_b32 v{EA}, 5, v{L}
            v_mul_u32_u24 v{EA}, 640, v{EA}
            v_bfe_u32 v{TT}, v{L}, 4, 1
            v_lshl_add_u32 v{EB}, v{TT}, 6, v{EA}
            v_mul_u32_u24 v{TT}, 384, v{TT}
            v_add_u32 v{EA}, v{EA}, v{TT}
            v_and_b32 v{TT}, 15, v{L}
            v_lshl_add_u32 v{EA}, v{TT}, 4, v{EA}
            v_and_b32 v{TT}, 3, v{L}
            v_lshl_add_u32 v{EB}, v{TT}, 4, v{EB}
            v_bfe_u32 v{TT}, v{L}, 2, 2
            v_mul_lo_u32 v{TT}, v{TT}, s35
            v_add_u32 v{EB}, v{EB}, v{TT}""".split("\n")
        T = ph
        r0, r1 = acc(2 * jj, T), acc(2 * jj + 1, T)
        o = [(t, 0) for t in cv(r0, r0) + cv(r0 + 2, r1)]
        if T < 4: o.append((f"buffer_store_dwordx4 {vr(r0,4)}, v{EA}, s[28:31], s{(26, 44, 45, 46)[T]} offen offset:{2560 * jj} sc1", 0))
        else: o.append((f"buffer_store_dwordx4 {vr(r0,4)}, v{EB}, s[28:31], s26 offen offset:{2560 * jj + 256} sc1", 0))
        return o

    for qk, lab in ((True, "QK"), (False, "V")):
        a(f"P1_PRE_{lab}:")
        for f in (epi_qk if qk else epi_v)(-1): a(f)
        SEP = opt("sep", 0)
        if SEP and not qk: a("s_cmp_eq_u32 s22, 3\ns_cbranch_scc1 P1_LOOP_D")
        a(f"P1_LOOP_{lab}:")
        group(0, qk, patch=not SEP)
        if STAMP: a(f"s_cmp_lg_u32 s40, 0\ns_cbranch_scc1 P1_ST_{lab}\n{st(2)}\nP1_ST_{lab}:\ns_cmp_lg_u32 s40, 5\ns_cbranch_scc1 P1_SU_{lab}\n{st(1)}\nP1_SU_{lab}:")
        group(1, qk, patch=not SEP)
        a(f"s_cmp_lt_u32 s40, s43\ns_cbranch_scc1 P1_LOOP_{lab}")
        if not qk: a("s_cmp_eq_u32 s22, 3\ns_cbranch_scc1 P1_EPI_DFT")
        a("s_cmp_eq_u32 s12, 1\ns_cselect_b32 s30, 0, s30")
        tail(qk, epi_qk if qk else epi_v)
        a(f"s_cmp_eq_u32 s12, 0\ns_cbranch_scc1 P1_DONE\ns_mov_b32 s30, {WS_USED}\nv_mov_b32 v88, {LFB + 56}\nv_mov_b32 v89, 1")
        ladd(a, 88, 89, 0)
        a("s_setprio 3\ns_barrier")
        for T in range(5):
            for jj in range(2): a((epi_qk if qk else epi_v)(T, jj)[-1][0])
        a("s_branch P1_DONE")
    if SEP:
        a("P1_LOOP_D:"); group(0, False); group(1, False)
        a("s_cmp_lt_u32 s40, s43\ns_cbranch_scc1 P1_LOOP_D")
    a("P1_EPI_DFT:")
    group(0, False, reads=False)
    TAU, TAU0, E0 = 80, 81, 140
    a(f"""
    {st(3)}
    s_cmp_lt_u32 s20, 2
    s_cselect_b32 s38, 1.0, -1.0
    v_mov_b32 v{TAU}, s38
    v_cndmask_b32 v{TAU0}, v{TAU}, 1.0, s[24:25]
    s_lshl_b32 s26, s20, 1
    s_add_u32 s26, s26, s37
    s_mul_i32 s26, s26, 80
    v_and_b32 v88, 15, v{L}
    v_add_u32 v{E0}, s26, v88
    v_add_u32 v{E0+1}, 20, v{E0}
    v_add_u32 v{E0+2}, 40, v{E0}
    v_add_u32 v{E0+3}, 60, v{E0}
    v_and_b32 v89, 12, v{L}
    v_lshl_add_u32 v{E0+4}, v89, 2, v{E0}
    v_add_u32 v{E0+4}, 16, v{E0+4}
    s_lshl_b32 s23, s21, 1
    s_add_u32 s23, s23, s36
    s_cmp_lg_u32 s23, 0
    s_cbranch_scc1 P1_EPI_DFT2
    s_mov_b64 exec, 0xffff
    s_mov_b32 s27, {X512_OFF}
    """)
    for T in range(5):
        a(f"v_fma_f32 v{96+T}, v{acc(3,T)}, v{TAU0 if T == 0 else TAU}, v{acc(1,T)}")
        a(f"v_lshlrev_b32 v{104+T}, 2, v{E0+T}\nv_mov_b32 v{acc(1,T)}, 0\nv_mov_b32 v{acc(3,T)}, 0")
        a(f"buffer_store_dword v{96+T}, v{104+T}, s[28:31], s27 offen sc1")
    a(f"""
    s_mov_b64 exec, -1
P1_EPI_DFT2:
    s_lshl_b32 s26, s23, 9
    s_add_u32 s26, s26, {FE_OFF}
    s_mov_b32 s27, {FO_DELTA}
    v_bfe_u32 v88, v{L}, 4, 1
    v_mul_lo_u32 v88, v88, s27
    v_lshrrev_b32 v89, 5, v{L}
    v_lshl_add_u32 v88, v89, 8, v88
    """)
    for T in range(5):
        tau = TAU0 if T == 0 else TAU
        a0, a1, a2, a3 = (acc(b, T) for b in range(4))
        for q in range(4):
            a(f"v_fma_f32 v{a0+q}, v{a1+q}, v{tau}, v{a0+q}\nv_fma_f32 v{a3+q}, v{a2+q}, v{tau}, v{a3+q}")
        for q in range(4):
            a(f"v_add_f32 v{a1+q}, v{a0+q}, v{a3+q}\nv_sub_f32 v{a2+q}, v{a0+q}, v{a3+q}")
        a0 = 120 + 4 * T
        for f in cv(a0, a1) + cv(a0 + 2, a2): a(f)
        a(f"""
        v_lshrrev_b32 v89, 4, v{E0+T}
        v_lshl_add_u32 v89, v89, 14, v88
        v_and_b32 v{E0+T}, 15, v{E0+T}
        v_lshl_add_u32 v{E0+T}, v{E0+T}, 4, v89
        v_permlane16_swap_b32 v{a0}, v{a0+2}
        v_permlane16_swap_b32 v{a0+1}, v{a0+3}
        """)
    a(f"v_mov_b32 v88, {LFB + 56}\nv_mov_b32 v89, 1\ns_mov_b32 s12, {opt('dnu', 1)}")
    ladd(a, 88, 89, 0)
    if opt("dnu", 1): a("s_setprio 3\ns_barrier")
    for T in range(5): a(f"buffer_store_dwordx4 {vr(120+4*T,4)}, v{E0+T}, s[28:31], s26 offen sc1")
    a(f"""
P1_DONE:
    {st(14)}
    s_mov_b32 s34, 1
    s_cmp_eq_u32 s12, 1
    s_cbranch_scc1 ATT
    s_mov_b32 s34, 0
    v_mov_b32 v84, 1
    v_mov_b32 v85, 1
    v_mov_b32 v86, 1
    v_mov_b32 v87, 1
    v_mov_b32 v88, {LFB + 44}
    v_mov_b32 v89, 0
    s_and_b32 s23, s15, -128
    s_mov_b64 exec, 1
    s_waitcnt vmcnt(0)
    ds_add_rtn_u32 v88, v88, v84
    s_waitcnt lgkmcnt(0)
    v_cmp_eq_u32 vcc, 3, v88
    s_cbranch_vccz P1_NS
    buffer_store_dwordx4 v[84:87], v89, s[28:31], s23 offen sc1
P1_NS:
    s_mov_b64 exec, -1
    s_branch ATT
    """)

def p1_extra(a):
    T0 = 40
    a(f"""
P1_EXTRA:
    s_sub_u32 s61, s16, 8
    """)
    if opt("cwarm", 1):
        a(f"""
        s_cmp_lg_u32 s16, 10
        s_cbranch_scc1 P1_NOCW
        s_lshl_b32 s23, s18, 10
        s_cmp_ge_u32 s23, L_CODE_END - {NAME}_kernel - 1023
        s_cbranch_scc1 P1_NOCW
        s_getpc_b64 s[44:45]
L_PC:
        s_sub_u32 s44, s44, L_PC - {NAME}_kernel
        s_subb_u32 s45, s45, 0
        v_lshl_add_u32 v40, v0, 4, s23
        global_load_dwordx4 v[44:47], v40, s[44:45]
P1_NOCW:
        """)
    a(f"""
    v_lshrrev_b32 v37, 4, v0
    v_and_b32 v38, 15, v0
    v_lshlrev_b32 v39, 4, v0
    v_mov_b32 v36, v0
    s_waitcnt lgkmcnt(0)
    {srd(28, WS_P, WS_USED)}
    {srd(32, DBG_P, 256)}
    s_cmp_lg_u32 s61, 0
    s_cbranch_scc1 P1_EX_A
    v_mov_b32 v1, 0
    v_lshlrev_b32 v2, 2, v0
    v_add_u32 v2, {LFB}, v2
    ds_write_b32 v2, v1
    s_waitcnt lgkmcnt(0)
    s_cmp_lt_u32 s2, 248
    s_cbranch_scc1 P1_EX_WAITRDY
    v_mov_b32 v4, 0
    v_mov_b32 v5, 0
    v_mov_b32 v6, 0
    v_mov_b32 v7, 0
    s_lshl_b32 s23, s17, 12
    s_add_u32 s23, s23, {FLG_OFF}
    buffer_store_dwordx4 v[4:7], v39, s[28:31], s23 offen sc1
    buffer_store_dwordx4 v[4:7], v39, s[28:31], s23 offen offset:1024 sc1
    buffer_store_dwordx4 v[4:7], v39, s[28:31], s23 offen offset:2048 sc1
    buffer_store_dwordx4 v[4:7], v39, s[28:31], s23 offen offset:3072 sc1
    s_lshl_b32 s23, s17, 7
    s_add_u32 s23, s23, {FLG_OFF + 32768}
    s_mov_b64 exec, 0xff
    buffer_store_dwordx4 v[4:7], v39, s[28:31], s23 offen sc1
    s_mov_b64 exec, -1
P1_EX_WAITRDY:
P1_EX_A:
    s_lshl_b32 s23, s2, 2
    s_add_u32 s23, s23, s61
    s_mov_b32 s40, 0
P1_TBL:
    s_lshr_b32 s24, s23, 5
    s_and_b32 s25, s23, 30
    s_and_b32 s26, s24, 1
    s_lshr_b32 s27, s24, 1
    s_lshl_b32 s27, s27, 6
    s_add_u32 s27, s27, s26
    s_and_b32 s26, s23, 1
    s_lshl_b32 s26, s26, 5
    s_add_u32 s27, s27, s26
    v_lshl_add_u32 v{T0}, v38, 1, s27
    s_lshl_b32 s25, s25, 4
    v_lshl_add_u32 v{T0+1}, v37, 3, s25
    v_mul_u32_u24 v{T0+1}, v{T0}, v{T0+1}
    v_and_b32 v{T0+1}, 0x7ff, v{T0+1}
    v_cvt_f32_u32 v{T0}, v{T0}
    v_cvt_f32_u32 v{T0+1}, v{T0+1}
    v_mul_f32 v{T0}, 0x3a000000, v{T0}
    v_mul_f32 v0, 0x3a000000, v{T0+1}
    """)
    for u in range(1, 8): a(f"v_add_f32 v{u}, v{u-1}, v{T0}")
    for u in range(1, 8): a(f"v_fract_f32 v{u}, v{u}")
    for u in range(8): a(f"v_cos_f32 v{8+u}, v{u}")
    for u in range(8): a(f"v_sin_f32 v{16+u}, v{u}")
    for j in range(4): a(f"v_cvt_pk_bf16_f32 v{24+j}, v{8+2*j}, v{9+2*j}")
    for j in range(4): a(f"v_cvt_pk_bf16_f32 v{28+j}, v{16+2*j}, v{17+2*j}")
    NB0 = opt("tblbar", 2)
    a(f"""
    s_cmp_lg_u32 s40, 0
    s_cbranch_scc1 P1_TBL_ST
    s_barrier
    {st(1, True)}
    s_cmp_lg_u32 s61, 0
    s_cbranch_scc1 P1_EX_NR
    s_cmp_lt_u32 s2, 248
    s_cbranch_scc1 P1_EX_NR
    v_mov_b32 v32, 1
    v_mov_b32 v33, 0
    s_lshl_b32 s24, s17, 2
    s_waitcnt vmcnt(0)
    s_mov_b64 exec, 1
    buffer_store_dword v32, v33, s[32:35], s24 offen sc1
    s_mov_b64 exec, -1
P1_EX_NR:
    """ + "".join(f"s_barrier\n{st(1 + b_, True)}\n" for b_ in range(1, NB0)) + f"""
    s_mov_b32 s40, 1
P1_TBL_ST:
    s_lshl_b32 s24, s23, 11
    s_add_u32 s24, s24, {TB_OFF}
    buffer_store_dwordx4 v[24:27], v39, s[28:31], s24 offen sc1
    buffer_store_dwordx4 v[28:31], v39, s[28:31], s24 offen offset:1024 sc1
    s_add_u32 s23, s23, 1024
    s_cmp_lt_u32 s23, 1056
    s_cbranch_scc1 P1_TBL
    """)
    nb = NB0
    assert nb <= 6
    a("".join(f"s_barrier\n{st(1 + b_, True)}\n" for b_ in range(nb, 6)))
    u = a.uid()
    a(f"""
    v_and_b32 v1, 7, v36
    v_lshlrev_b32 v1, 2, v1
    v_mov_b32 v2, 1
    s_mov_b32 s60, 0
    s_cmp_lg_u32 s61, 0
    s_cbranch_scc1 P1_EX_C
    buffer_load_dword v2, v1, s[32:35], 0 offen sc1
P1_EX_C:
    s_barrier
    {st(7, True)}
    s_barrier
    {st(8, True)}
L_RDY{u}:
    s_waitcnt vmcnt(0)
    v_cmp_eq_u32 vcc, 0, v2
    s_cbranch_vccz P1_EX_B
    s_sleep 1
    buffer_load_dword v2, v1, s[32:35], 0 offen sc1
    s_add_u32 s60, s60, 1
    s_cmp_lt_u32 s60, 0x40000
    s_cbranch_scc1 L_RDY{u}
P1_EX_B:
    s_waitcnt vmcnt(0)
    s_barrier
    {st(9, True)}
    s_barrier
    {st(10, True)}
    s_mov_b32 s34, 0
    """)

def attention(a):
    O = 0; S = [16, 32, 120, 136]; IX = 114; P = 48; Q1 = 56; Q2 = 60; K2 = 62; K1 = 64; V1 = 68; V2 = [72, 76]; T = 80
    a(f"""
ATT:
    s_cmp_lt_u32 s13, 4
    s_cselect_b32 s32, {opt("o1", 4)}, {opt("y1", 4)}
    s_cselect_b32 s33, {opt("o2", 7)}, {opt("y2", 7)}
    s_movk_i32 s35, 0x106
    s_bitset1_b32 s35, s32
    s_bitset1_b32 s35, s33
    s_mov_b32 s24, 0xfffff
    s_mov_b32 s25, 0xfffff
    s_mul_i32 s27, s13, 1280
    v_mov_b32 v{Q2+1}, 0
    v_mov_b32 v{K2+1}, 0x3f803f80
    v_add_u32 v{T}, s27, v{AK1}
    v_add_u32 v{T+1}, s27, v{AK2}
    v_mov_b32 v{T+2}, 1
    """)
    NQ = opt("nq", 2)
    OX = [84, O]; QX1 = [100, Q1]; QX2 = [104, Q2]; U = 106; TM = 120; XS = 107520
    if NQ == 2:
        a(f"""
        s_xor_b32 s36, s13, 1
        s_mul_i32 s27, s36, 1280
        v_add_u32 v{U}, s27, v{AK1}
        v_add_u32 v{U+1}, s27, v{AK2}
        v_mov_b32 v{U+2}, v{AK1}
        v_mov_b32 v{U+3}, v{AK2}
        v_mov_b32 v{QX2[0]+1}, 0
        s_and_b32 s37, s13, 1
        s_mul_i32 s37, s37, 2560
        v_and_b32 v{U+4}, 0x70, v{VA}
        v_lshrrev_b32 v{U+4}, 2, v{U+4}
        v_add_u32 v{U+4}, {LFB}, v{U+4}
        s_lshl_b32 s23, s13, 12
        s_add_u32 s23, s23, {XS}
        v_add_u32 v{U+5}, s23, v{VA}
        v_xor_b32 v{U+7}, 4, v{PA}
        s_lshl_b32 s23, s36, 12
        s_add_u32 s23, s23, {XS}
        v_add_u32 v{U+6}, s23, v{VA}
        s_lshr_b32 s38, s13, 2
        s_add_u32 s38, s38, 7
        """)
        for r in (AK1, AK2, AV, BK1, BK2, BV): a(f"v_add_u32 v{r}, s37, v{r}")
        for r in range(16): a(f"v_mov_b32 v{OX[0]+r}, 0")
    for r in range(12): a(f"v_mov_b32 v{V1+r}, v{ONES}")
    for r in range(16): a(f"v_mov_b32 v{O+r}, 0")
    for r in range(4): a(f"v_mov_b32 v{P+r}, -1")
    for r in range(8): a(f"v_mov_b32 v{S[3]+8+r}, 0")
    a(f"v_mov_b32 v{IX}, 0xdddddddd")
    def rk1(d): return f"v_mfma_f32_32x32x8_bf16 {vr(d,16)}, {vr(K2,2)}, {vr(Q2,2)}, 0"
    def rk2(d): return f"v_mfma_f32_32x32x16_bf16 {vr(d,16)}, {vr(K1,4)}, {vr(Q1,4)}, {vr(d,16)}"
    def qk1(d): return f"v_mfma_f32_32x32x16_bf16 {vr(d,16)}, {vr(K1,4)}, {vr(Q1,4)}, 0"
    def qk2(d): return f"v_mfma_f32_32x32x8_bf16 {vr(d,16)}, {vr(K2,2)}, {vr(Q2,2)}, {vr(d,16)}"
    def pv(v, p): return f"v_smfmac_f32_32x32x32_bf16 {vr(O,16)}, {vr(v,4)}, {vr(p,8)}, v{IX}"
    def of(t): return (t - 6 if t in (6, 7) else t) * 2560
    def rdk1(t): return f"ds_read_b128 {vr(K1,4)}, v{BK1 if t in (6, 7) else AK1} offset:{of(t)}"
    def rdk2(t): return f"ds_read_b32 v{K2}, v{BK2 if t in (6, 7) else AK2} offset:{of(t)+1024}"
    def rdv(t, v2):
        b = BV if t in (6, 7) else AV
        return f"s_mov_b64 exec, s[24:25]\nds_read_b128 {vr(V1,4)}, v{b} offset:{of(t)+1280}\nds_read_b128 {vr(v2,4)}, v{b} offset:{of(t)+1920}\ns_mov_b64 exec, -1"
    def maxtree(s, m, first):
        if first:
            a(f"v_max3_f32 v{m}, v{s}, v{s+1}, v{s+2}\nv_max3_f32 v{m+1}, v{s+3}, v{s+4}, v{s+5}")
            for j in range(6, 14, 4): a(f"v_max3_f32 v{m}, v{s+j}, v{s+j+1}, v{m}\nv_max3_f32 v{m+1}, v{s+j+2}, v{s+j+3}, v{m+1}")
            a(f"v_max3_f32 v{m}, v{s+14}, v{s+15}, v{m}\nv_max_f32 v{m}, v{m}, v{m+1}")
        else:
            for j in range(0, 16, 2): a(f"v_max3_f32 v{m}, v{s+j}, v{s+j+1}, v{m}")
    def xhalf(m):
        a(f"v_mov_b32 v{m+1}, v{m}\ns_nop 1\nv_permlane32_swap_b32 v{m}, v{m+1}\ns_nop 0\nv_max_f32 v{m}, v{m}, v{m+1}")
    a(f"""
    s_cmp_lg_u32 s34, 1
    s_cbranch_scc1 ATT_NOSIG
    """)
    if opt("comb", 1):
        a(f"""
        v_mov_b32 v{T+3}, {LFB + 44}
        s_and_b32 s23, s15, -128
        s_mov_b64 exec, 1
        s_waitcnt vmcnt(0)
        ds_add_rtn_u32 v{T+3}, v{T+3}, v{T+2}
        s_waitcnt lgkmcnt(0)
        v_cmp_eq_u32 vcc, 3, v{T+3}
        s_cbranch_vccz ATT_NOSIG
        buffer_store_dwordx4 {vr(P,4)}, v{O}, s[28:31], s23 offen sc1
        """)
    else:
        a(f"s_waitcnt vmcnt(0)\ns_mov_b64 exec, 1\nbuffer_store_dword v{T+2}, v{O}, s[28:31], s15 offen sc1")
    a(f"""
ATT_NOSIG:
    s_mov_b64 exec, -1
    {st(4)}
    s_and_b32 s23, s34, s12
    s_cbranch_scc1 ATT_NOP
    s_barrier
ATT_NOP:
    s_setprio 3
    {st(6)}
    """)
    def e(s, j): return f"v_exp_f32 v{s+j}, v{s+j}"
    def c(s, j): return f"v_cvt_pk_bf16_f32 v{P+j}, v{s+2*j}, v{s+2*j+1}"
    if NQ == 2:
        def xk1(x, d=None): return f"v_mfma_f32_32x32x16_bf16 {vr(S[x if d is None else d],16)}, {vr(K1,4)}, {vr(QX1[x],4)}, 0"
        def xk2(x, d=None): return f"v_mfma_f32_32x32x8_bf16 {vr(S[x if d is None else d],16)}, {vr(K2,2)}, {vr(QX2[x],2)}, {vr(S[x if d is None else d],16)}"
        def xpv(x, v, p): return f"v_smfmac_f32_32x32x32_bf16 {vr(OX[x],16)}, {vr(v,4)}, {vr(p,8)}, v{IX}"
        def scale(x):
            for j in range(5): a(f"v_lshlrev_b32 v{TM+2*j}, 16, v{QX1[x]+j}\nv_and_b32 v{TM+2*j+1}, 0xffff0000, v{QX1[x]+j}")
            for j in range(10): a(f"v_mul_f32 v{TM+j}, {QSCALE:#x}, v{TM+j}")
            for j in range(5): a(f"v_cvt_pk_bf16_f32 v{QX1[x]+j}, v{TM+2*j}, v{TM+2*j+1}")
        MH = f32bits(-0.5 * (20 ** -0.5) * math.log2(math.e))
        a(f"""
        ds_read_b128 {vr(K1,4)}, v{U+2}
        ds_read_b32 v{K2}, v{U+3} offset:1024
        ds_read_b128 {vr(QX1[0],4)}, v{U} offset:{QLDS}
        ds_read_b32 v{QX2[0]}, v{U+1} offset:{QLDS+1024}
        ds_read_b128 {vr(Q1,4)}, v{T} offset:{QLDS}
        ds_read_b32 v{Q2}, v{T+1} offset:{QLDS+1024}
        {rdv(0, V2[0])}
        s_waitcnt lgkmcnt(4)
        {xk1(0)}
        {xk2(0)}
        s_waitcnt lgkmcnt(2)
        {xk1(1)}
        {xk2(1)}
        {rdk1(0)}
        {rdk2(0)}
        s_mov_b32 s26, 0
        """)
        scale(0)
        maxtree(S[0], T, True); xhalf(T)
        a(f"v_mul_f32 v{T}, {MH:#x}, v{T}\nv_cvt_pk_bf16_f32 v{QX2[0]+1}, v{T}, 0\ns_waitcnt lgkmcnt(0)\n{xk1(0)}\n{xk2(0)}")
        scale(1)
        maxtree(S[1], T, True); xhalf(T)
        a(f"""
        v_mul_f32 v{T}, {MH:#x}, v{T}
        v_cvt_pk_bf16_f32 v{Q2+1}, v{T}, 0
        {xk1(1)}
        {rdk1(2)}
        buffer_store_dwordx4 {vr(P,4)}, v{OA1}, s[28:31], s6 offen sc1
        s_mov_b64 exec, 0xffff
        buffer_store_dwordx4 {vr(P,4)}, v{OA2}, s[28:31], s7 offen sc1
        s_mov_b64 exec, -1
        {st(7)}
ATT_LOOP:
        """)
        for i in range(4):
            for x in (0, 1):
                n = 2 * i + x; cur = S[n % 4]; y = 1 - x; t_ = 2 * (i + 1)
                if x == 1: a("s_waitcnt lgkmcnt(0)")
                a(xk2(y, (n + 1) % 4))
                if x == 0: a(rdk2(t_))
                for q in range(4): a(e(cur, q))
                a(xpv(y, V2[(i + 1) % 2] if x == 0 else V2[i % 2], S[(n - 1) % 4] + 8))
                if x == 0: a("s_waitcnt lgkmcnt(1)")
                if x == 1 and i == 1: a(f"ds_write_b32 v{PA}, v{T+2}")
                if x == 1 and i == 3: a(f"ds_read_b32 v{U}, v{U+4}")
                for q in range(4, 8): a(e(cur, q))
                a(xk1(x, (n + 2) % 4))
                if x == 1: a(rdk1(t_ + 2))
                for q in range(8, 12): a(e(cur, q))
                a(xpv(x, V1, cur))
                if x == 1: a(rdv(t_, V2[(i + 1) % 2]))
                for q in range(12, 16): a(e(cur, q))
    a(f"""
    s_add_u32 s26, s26, 1
    s_movk_i32 s27, 0x5000
    s_cmp_eq_u32 s26, 7
    s_cselect_b32 s27, {(0x5000 - 62 * 2560) & 0xffffffff}, s27
    v_add_u32 v{AK1}, 0x5000, v{AK1}
    v_add_u32 v{AK2}, 0x5000, v{AK2}
    v_add_u32 v{AV}, 0x5000, v{AV}
    v_add_u32 v{BK1}, s27, v{BK1}
    v_add_u32 v{BK2}, s27, v{BK2}
    v_add_u32 v{BV}, s27, v{BV}
    v_add_u32 v{T+2}, 1, v{T+2}
    s_bitcmp1_b32 s35, s26
    s_cbranch_scc0 ATT_LOOP
    s_cmp_gt_u32 s26, 2
    s_cbranch_scc1 ATT_EV
    v_add_u32 v{FA}, 8, v{FA}
    s_waitcnt vmcnt(0)
ATT_WAIT:
    ds_read_b32 v{T}, v{FA}
    s_waitcnt lgkmcnt(0)
    v_readfirstlane_b32 s23, v{T}
    s_cmp_ge_u32 s23, 4
    s_cbranch_scc1 ATT_LOOP
    s_sleep 1
    s_branch ATT_WAIT
ATT_EV:
    s_setprio 2
    s_cmp_eq_u32 s26, s32
    s_cbranch_scc1 ATT_LOOP
    s_setprio 1
    s_cmp_lt_u32 s26, 8
    s_cbranch_scc1 ATT_LOOP
    s_setprio 3
    {pv(V2[1], S[3]+8)}
    {st(8)}
    """)
    if NQ == 2:
        a(f"""
        s_mov_b32 s27, 0x3e800000
        s_mov_b32 s23, 0x71800000
        s_waitcnt lgkmcnt(3)
        v_cmp_gt_u32 vcc, s38, v{U}
        s_cbranch_vccz ATT_X0
ATT_X1:
        ds_read_b32 v{U}, v{U+4}
        s_waitcnt lgkmcnt(0)
        v_cmp_gt_u32 vcc, s38, v{U}
        s_cbranch_vccnz ATT_X1
ATT_X0:
        """)
        for j in range(3): a(f"ds_write_b128 v{U+5}, {vr(OX[0]+4*j,4)} offset:{1024*j}")
        a(f"ds_write_b64 v{U+5}, {vr(OX[0]+12,2)} offset:3072\nds_write_b32 v{PA}, v{T+2} offset:96\nATT_X2:\nds_read_b32 v{U}, v{U+7} offset:96")
        for j in range(3): a(f"ds_read_b128 {vr(S[0]+4*j,4)}, v{U+6} offset:{1024*j}")
        a(f"ds_read_b64 {vr(S[0]+12,2)}, v{U+6} offset:3072\ns_waitcnt lgkmcnt(0)\nv_cmp_eq_u32 vcc, 0, v{U}\ns_cbranch_vccz ATT_X3\ns_sleep 1\ns_branch ATT_X2\nATT_X3:\ns_nop 1")
        for r in range(0, 14, 2): a(f"v_pk_add_f32 {vr(O+r,2)}, {vr(O+r,2)}, {vr(S[0]+r,2)}")
    else:
        a("s_mov_b32 s27, 0x3e800000\ns_mov_b32 s23, 0x71800000\ns_nop 9")
    a(f"v_rcp_f32 v{T+2}, v{O+12}\nv_add_f32 v{T}, |v{O}|, |v{O+1}|\nv_add_f32 v{T+1}, |v{O+2}|, |v{O+3}|")
    for j in range(4, 12, 2): a(f"v_add_f32 v{T}, |v{O+j}|, v{T}\nv_add_f32 v{T+1}, |v{O+j+1}|, v{T+1}")
    a(f"""
    v_add_f32 v{T}, v{T}, v{O+12}
    v_cmp_le_f32 s[42:43], s27, v{O+12}
    v_add_f32 v{T}, v{T}, v{T+1}
    v_cmp_gt_f32 vcc, s23, v{T}
    s_and_b64 vcc, vcc, s[42:43]
    s_cmp_eq_u64 vcc, -1
    s_cbranch_scc0 ATT_FALLBACK
ATT_FINISH:
    """)
    for j in range(0, 8, 2): a(f"v_pk_mul_f32 {vr(O+j,2)}, {vr(O+j,2)}, {vr(T+2,2)} op_sel_hi:[1,0]")
    for j in range(4): a(f"v_cvt_pk_bf16_f32 v{P+j}, v{O+2*j}, v{O+2*j+1}")
    for j in range(4): a(f"v_min_u32 v{P+j}, -2, v{P+j}")
    a(f"buffer_store_dwordx4 {vr(P,4)}, v{OA1}, s[28:31], s6 offen sc1")
    for j in range(8, 12, 2): a(f"v_pk_mul_f32 {vr(O+j,2)}, {vr(O+j,2)}, {vr(T+2,2)} op_sel_hi:[1,0]")
    for j in range(4, 6): a(f"v_cvt_pk_bf16_f32 v{P+j}, v{O+2*j}, v{O+2*j+1}")
    for j in range(4, 6): a(f"v_min_u32 v{P+j}, -2, v{P+j}")
    a(f"""
    s_nop 1
    v_permlane16_swap_b32 v{P+4}, v{P+6}
    v_permlane16_swap_b32 v{P+5}, v{P+7}
    s_mov_b64 exec, 0xffff
    buffer_store_dwordx4 {vr(P+4,4)}, v{OA2}, s[28:31], s7 offen sc1
    {st(9)}
    s_cmp_ge_u32 s13, 4
    s_cbranch_scc1 {"L_DONE" if STAMP else "L_END"}
    s_mov_b64 exec, -1
    s_xor_b32 s41, s13, {opt('gx', 2)}
    s_mov_b32 s47, 1
    s_branch P3_GO
    """)
    def gk(): return f"buffer_load_dwordx4 {vr(K1,4)}, v{AK1}, s[28:31], s23 offen sc1\nbuffer_load_dword v{K2}, v{AK2}, s[28:31], s23 offen offset:1024 sc1"
    a(f"""
ATT_FALLBACK:
    s_waitcnt lgkmcnt(0)
    v_mov_b32 v{Q2+1}, 0
    v_mov_b32 v{T}, 0xff800000
    {f's_add_u32 s23, s37, {HS}' if NQ == 2 else f's_mov_b32 s23, {HS}'}
    v_subrev_u32 v{AK1}, s23, v{AK1}
    v_subrev_u32 v{AK2}, s23, v{AK2}
    v_subrev_u32 v{AV}, s23, v{AV}
    s_add_u32 s23, s14, {KV_OFF}
    s_mov_b32 s26, 0
ATT_FB1:
    {gk()}
    s_add_u32 s23, s23, 2560
    s_waitcnt vmcnt(0)
    {qk1(S[0])}
    {qk2(S[0])}
    s_nop 15
    """)
    maxtree(S[0], T, False)
    a("s_add_u32 s26, s26, 1\ns_cmp_lt_u32 s26, 64\ns_cbranch_scc1 ATT_FB1")
    xhalf(T)
    a(f"s_add_u32 s23, s14, {KV_OFF}\ns_mov_b32 s26, 0")
    for r in range(16): a(f"v_mov_b32 v{O+r}, 0")
    a(f"""
ATT_FB2:
    {gk()}
    s_mov_b64 exec, s[24:25]
    buffer_load_dwordx4 {vr(V1,4)}, v{AV}, s[28:31], s23 offen offset:1280 sc1
    buffer_load_dwordx4 {vr(V2[0],4)}, v{AV}, s[28:31], s23 offen offset:1920 sc1
    s_mov_b64 exec, -1
    s_add_u32 s23, s23, 2560
    s_waitcnt vmcnt(0)
    {qk1(S[0])}
    {qk2(S[0])}
    s_nop 15
    """)
    for q in range(16): a(f"v_sub_f32 v{S[0]+q}, v{S[0]+q}, v{T}")
    for q in range(16): a(e(S[0], q))
    a(f"""
    s_nop 1
    {pv(V1, S[0])}
    {pv(V2[0], S[0]+8)}
    s_add_u32 s26, s26, 1
    s_cmp_lt_u32 s26, 64
    s_cbranch_scc1 ATT_FB2
    s_nop 15
    s_nop 3
    v_rcp_f32 v{T+2}, v{O+12}
    s_nop 0
    s_branch ATT_FINISH
    """)

def lwait(a, vaddr, vdat, mask, target, slp=8):
    u = a.uid()
    a(f"""
    s_mov_b64 exec, {mask}
    s_branch L_LWE{u}
L_LW{u}:
    s_sleep {slp}
L_LWE{u}:
    ds_read_b32 v{vdat}, v{vaddr}
    s_waitcnt lgkmcnt(0)
    v_cmp_gt_u32 vcc, {target}, v{vdat}
    s_cbranch_vccnz L_LW{u}
    s_mov_b64 exec, -1
    """)
def ladd(a, vaddr, vone, off):
    a(f"s_mov_b64 exec, 1\nds_add_u32 v{vaddr}, v{vone} offset:{off}\ns_mov_b64 exec, -1")

def helpers(a):
    WA, VG, VZ, SH, HPA, HONE, YFA, FZ, SG, XA5, LF = 112, 117, 118, 119, 120, 121, 122, 123, 124, 125, 126
    ZL = 40; G = 167; VY = 162; T = 132; LT = 127
    a(f"""
HELPER:
    s_mov_b32 s61, s22
    {st(2)}
    {srd(28, WS_P, WS_USED)}
    s_setprio 0
    s_lshr_b32 s20, s18, 2
    s_mul_i32 s26, s20, 160
    s_movk_i32 s23, {1280 - 160}
    """)
    for i in range(5):
        a(f"""
        v_add_u32 v{T}, {64*i}, v0
        v_mul_u32_u24 v{T+1}, 6554, v{T}
        v_lshrrev_b32 v{T+1}, 16, v{T+1}
        v_lshlrev_b32 v{T}, 4, v{T}
        v_mad_u32_u24 v{WA+i}, v{T+1}, s23, v{T}
        """)
    a(f"""
    s_lshl_b32 s21, s17, 3
    s_and_b32 s22, s18, 3
    s_add_u32 s21, s21, s22
    s_lshr_b32 s22, s16, 1
    s_lshl_b32 s22, s22, 2
    s_add_u32 s21, s21, s22
    s_lshl_b32 s21, s21, 1
    s_and_b32 s22, s16, 1
    s_add_u32 s21, s21, s22
    s_lshr_b32 s22, s21, 2
    s_lshl_b32 s22, s22, 1
    s_and_b32 s24, s21, 1
    s_add_u32 s22, s22, s24
    s_lshl_b32 s22, s22, 3
    v_and_b32 v{T}, 7, v0
    v_add_u32 v{T}, s22, v{T}
    s_bitcmp1_b32 s21, 1
    s_cselect_b32 s22, 0x400, 0
    s_cselect_b32 s24, -1, 1
    v_mul_lo_u32 v{T+1}, v{T}, s24
    s_sub_u32 s24, 0x800, s22
    v_sub_u32 v{T+2}, s24, v{T+1}
    v_add_u32 v{T+1}, s22, v{T+1}
    v_and_b32 v{T+3}, 8, v0
    v_cmp_ne_u32 vcc, 0, v{T+3}
    v_cmp_eq_u32 s[42:43], 0, v{T}
    v_lshlrev_b32 v{T+3}, 6, v{T+3}
    v_add_u32 v{T+3}, s22, v{T+3}
    v_cndmask_b32 v{T}, v{T+1}, v{T+2}, vcc
    v_lshrrev_b32 v{T+1}, 4, v0
    v_cndmask_b32 v{T}, v{T}, v{T+3}, s[42:43]
    v_mul_u32_u24 v{VY}, 1280, v{T}
    v_mul_u32_u24 v{T+2}, 40, v{T+1}
    v_add3_u32 v{VY}, v{VY}, v{T+2}, s26
    v_lshlrev_b32 v{VG}, 2, v{T}
    v_sub_u32 v{T+3}, 0x800, v{T}
    v_cmp_lt_u32 vcc, 0x400, v{T}
    v_min_u32 v{T}, v{T}, v{T+3}
    v_and_b32 v{T+3}, 1, v{T}
    v_mul_u32_u24 v{VZ}, {ZP}, v{T+3}
    v_lshrrev_b32 v{T+3}, 1, v{T}
    v_lshl_add_u32 v{VZ}, v{T+3}, 4, v{VZ}
    v_mov_b32 v{T+3}, 0x02020202
    v_cndmask_b32 v{SH}, 0, v{T+3}, vcc
    s_cmp_ge_u32 s20, 4
    s_mov_b32 s24, 0x05040100
    s_cselect_b32 s24, 0x07060302, s24
    s_cselect_b32 s40, -1, 1
    s_cselect_b32 s41, 155, 0
    v_xor_b32 v{SH}, s24, v{SH}
    s_mul_i32 s24, s20, 20
    v_mul_u32_u24 v{T+3}, 5, v{T+1}
    v_add_u32 v{T+3}, s24, v{T+3}
    v_mul_lo_u32 v{T+3}, v{T+3}, s40
    v_add_u32 v{T+3}, s41, v{T+3}
    v_mul_u32_u24 v{T+3}, {2*ZP}, v{T+3}
    v_add_u32 v{VZ}, v{VZ}, v{T+3}
    {p3_addr(0)}
    v_lshlrev_b32 v{HPA}, 2, v0
    v_add_u32 v{HPA}, {LFB}, v{HPA}
    v_mov_b32 v{HONE}, 1
    s_lshl_b32 s23, s2, 2
    s_add_u32 s23, s23, {FLG_OFF + 32768}
    v_mov_b32 v{YFA}, s23
    v_lshrrev_b32 v{FZ}, 4, v0
    v_mul_u32_u24 v{FZ}, {2*ZP}, v{FZ}
    v_and_b32 v{T}, 15, v0
    v_lshl_add_u32 v{FZ}, v{T}, 4, v{FZ}
    v_lshlrev_b32 v{SG}, 31, v0
    v_and_b32 v{XA5}, 48, v0
    v_lshlrev_b32 v{LF}, 7, v0
    v_bfe_u32 v{LT}, v0, 1, 2
    v_lshlrev_b32 v{LT}, 13, v{LT}
    v_and_b32 v{T}, 1, v0
    v_lshl_add_u32 v{LT}, v{T}, 7, v{LT}
    s_setprio 3
    s_lshr_b32 s19, s18, 3
    s_lshl_b32 s23, s17, 2
    s_add_u32 s19, s19, s23
    s_and_b32 s62, s18, 7
    s_mul_i32 s21, s19, {HG}
    v_lshlrev_b32 v1, 4, v0
    {st(3)}
    s_lshr_b32 s23, s19, 3
    s_lshl_b32 s23, s23, 13
    s_add_u32 s23, s23, {FLG_OFF}
    v_lshlrev_b32 v2, 7, v0
    v_add_u32 v2, s23, v2
    s_add_u32 s24, s21, {KV_OFF}
    s_lshl_b32 s40, 0x10000, s16
    s_lshl_b32 s41, 1, s16
    s_mul_i32 s22, s16, 10240
    s_add_u32 s26, s24, s22
    s_cmp_lg_u32 s16, 3
    s_cbranch_scc1 H_JA
    s_lshl_b32 s25, s62, 1
    s_lshl_b32 s40, 3, s25
    s_mov_b32 s41, 0
    s_mov_b32 s22, {QLDS}
    s_mul_i32 s26, s19, {HQ}
    s_mul_i32 s25, s62, 10240
    s_add_u32 s26, s26, s25
    s_add_u32 s26, s26, {Q_OFF}
H_JA:
    """)
    def job():
        r = f"s_add_u32 s25, s22, 5120\ns_cmp_ge_u32 s25, {LFB}\ns_cselect_b32 s25, 0, s25\n"
        for n in range(10):
            if n in (0, 3): r += f"s_add_u32 m0, s22, {1024*n}\ns_add_u32 s27, s26, {1024*n}\n"; o = 0
            if n in (5, 8): r += f"s_add_u32 m0, s25, {1024*(n-5)}\ns_add_u32 s27, s26, {1024*n}\n"; o = 0
            r += f"buffer_load_dwordx4 v1, s[28:31], s27 offen offset:{o} sc1 lds\n"; o += 1024
        return r
    if opt("latep", 1):
        a(f"s_mul_i32 s23, s12, 12\ns_cmp_eq_u32 s61, 3\ns_cselect_b32 s23, 12, s23\ns_add_u32 s23, s23, {LFB + 44}\nv_mov_b32 v3, s23")
        lwait(a, 3, 4, 1, 4, 2)
        if opt("lps", 0): a(f"s_sleep {opt('lps', 0)}")
    poll4(a, 2, 4, "s[40:41]")
    a(st(11)); a(job())
    a(f"""
    s_lshl_b32 s40, 0x80000, s16
    s_lshl_b32 s41, 8, s16
    s_add_u32 s22, s16, 3
    s_mul_i32 s22, s22, 10240
    s_add_u32 s26, s24, s22
    s_waitcnt vmcnt(0)
    {st(12)}
    s_barrier
    s_cmp_eq_u32 s16, 3
    s_cbranch_scc1 H_JB
    """)
    poll4(a, 2, 4, "s[40:41]")
    a(job())
    a(f"""
H_JB:
    s_lshl_b32 s41, 0x4440, s16
    s_and_b32 s41, s41, 0xffff
    s_lshl_b32 s40, s41, 16
    s_add_u32 s22, s16, 6
    s_mul_i32 s22, s22, 10240
    s_add_u32 s26, s24, s22
    s_waitcnt vmcnt(0)
    """)
    ladd(a, HPA, HONE, 64)
    lwait(a, HPA, 4, 0xff, 1)
    poll4(a, 2, 4, "s[40:41]", slp=8)
    a(f"{st(13)}\nH_JC:"); a(job())
    a(f"""
    s_add_u32 s22, s22, 40960
    s_add_u32 s26, s26, 40960
    s_cmp_lt_u32 s22, {HS}
    s_cbranch_scc1 H_JC
    s_waitcnt vmcnt(0)
    {st(4)}
    """)
    ladd(a, HPA, HONE, 72)
    a(f"""
    s_cmp_lt_u32 s16, 3
    s_cbranch_scc1 H_FNET
    """)
    a(f"""
    {srd(32, X_P, 2048*1280)}
    {srd(36, GATE_P, 1280)}
    v_lshrrev_b32 v2, 3, v0
    v_and_b32 v3, 7, v0
    v_lshlrev_b32 v3, 4, v3
    s_movk_i32 s22, 1280
    v_mad_u32_u24 v4, v2, s22, v3
    s_mul_i32 s23, s2, {8*1280}
    """)
    for j in range(10):
        a(f"buffer_load_dwordx4 {vr(24+8*j,4)}, v4, s[32:35], s23 offen offset:{128*j}")
        a(f"buffer_load_dwordx4 {vr(28+8*j,4)}, v3, s[36:39], 0 offen offset:{128*j}")
    a("v_mov_b32 v5, 0\nv_mov_b32 v6, 0\ns_waitcnt vmcnt(0)")
    for j in range(10):
        for q in range(4):
            a(f"v_dot2c_f32_bf16 v{5 + (q & 1)}, v{24+8*j+q}, v{28+8*j+q}")
    a(f"""
    s_nop 2
    v_add_f32 v5, v5, v6
    s_nop 1
    v_add_f32_dpp v5, v5, v5 quad_perm:[1,0,3,2] row_mask:0xf bank_mask:0xf
    s_nop 1
    v_add_f32_dpp v5, v5, v5 quad_perm:[2,3,0,1] row_mask:0xf bank_mask:0xf
    s_nop 1
    v_add_f32_dpp v5, v5, v5 row_half_mirror row_mask:0xf bank_mask:0xf
    v_mul_f32 v5, {f32bits(-math.log2(math.e)):#x}, v5
    v_exp_f32 v5, v5
    v_lshlrev_b32 v2, 2, v2
    v_add_f32 v5, 1.0, v5
    v_rcp_f32 v5, v5
    s_lshl_b32 s23, s2, 5
    s_add_u32 s23, s23, {G_OFF}
    buffer_store_dword v5, v2, s[28:31], s23 offen sc1
    s_branch H_MID
    """)
    C, SN, FB = 0, 8, 16
    a(f"""
H_FNET:
    {'s_branch H_MID' if opt('nofnet', 0) == 1 else ''}
    s_lshl_b32 s22, s16, 5
    s_add_u32 s22, s22, s18
    s_cmp_lt_u32 s22, 84
    s_cbranch_scc1 H_FN_A
    s_sub_u32 s24, s22, 84
    s_lshl_b32 s24, s24, 3
    s_add_u32 s24, s24, s17
    s_cmp_ge_u32 s24, 21
    s_cbranch_scc1 H_MID
    s_mov_b32 s23, 32
    s_branch H_FN_B
H_FN_A:
    s_mul_i32 s23, s22, 3121
    s_lshr_b32 s23, s23, 16
    s_mul_i32 s24, s23, 21
    s_sub_u32 s24, s22, s24
    s_lshl_b32 s23, s23, 3
    s_add_u32 s23, s23, s17
H_FN_B:
    s_and_b32 s25, s23, 1
    s_add_u32 s26, s24, 20
    s_cmp_eq_u32 s24, 20
    s_cselect_b32 s26, 20, s26
    s_mul_i32 s32, s24, 26
    s_lshr_b32 s32, s32, 8
    s_lshl_b32 s32, s32, 13
    s_add_u32 s32, s32, {48 * 128}
    s_mul_i32 s33, s26, 26
    s_lshr_b32 s33, s33, 8
    s_lshl_b32 s33, s33, 13
    s_add_u32 s33, s33, {32 * 128}
    s_and_b32 s34, s23, 31
    s_lshl_b32 s34, s34, 8
    s_mov_b64 exec, 0xffff
    v_add_u32 v2, s32, v{LF}
    s_mov_b32 exec_lo, 0xffff0000
    v_add_u32 v2, s33, v{LF}
    s_mov_b32 exec_lo, 0
    s_mov_b32 exec_hi, 0xff
    v_add_u32 v2, s34, v{LT}
    s_mov_b32 s40, -1
    s_movk_i32 s41, 0xff
    s_mov_b32 s27, {FLG_OFF}
    """)
    poll4(a, 2, 4, "s[40:41]", "s27", slp=8)
    a(st(14))
    a(f"""
    s_lshl_b32 s32, s23, 16
    s_add_u32 s32, s32, {TB_OFF}
    s_mul_i32 s27, s25, {FO_DELTA}
    s_add_u32 s27, s27, {FE_OFF}
    s_lshl_b32 s33, s24, 14
    s_add_u32 s33, s33, s27
    s_lshl_b32 s34, s26, 14
    s_add_u32 s34, s34, s27
    s_cmp_eq_u32 s25, 0
    s_cselect_b32 s35, s24, s26
    s_lshl_b32 s35, s35, 6
    s_add_u32 s35, s35, {X512_OFF}
    buffer_load_dwordx4 v[128:131], v{XA5}, s[28:31], s35 offen sc1
    """)
    def fl(j):
        r = FB + 24 * j
        s_ = f"buffer_load_dwordx4 {vr(r,4)}, v163, s[28:31], s33 offen offset:{1024*j} sc1\n"
        s_ += f"buffer_load_dwordx4 {vr(r+4,4)}, v163, s[28:31], s34 offen offset:{1024*j} sc1\n"
        for k in range(4): s_ += f"buffer_load_dwordx4 {vr(r+8+4*k,4)}, v163, s[28:31], s32 offen offset:{1024*k} sc1\n"
        s_ += "s_add_u32 s32, s32, 4096\n"
        if j == 3: s_ += "s_add_u32 s33, s33, 4096\ns_add_u32 s34, s34, 4096\n"
        return s_
    def fm(j):
        r = FB + 24 * j
        s_ = ""
        if opt("nofnet", 0) == 2: return s_
        for sub in range(2):
            s_ += f"v_mfma_f32_16x16x32_bf16 {vr(C+4*sub,4)}, {vr(r,4)}, {vr(r+8+8*sub,4)}, {vr(C+4*sub,4)}\n"
            s_ += f"v_mfma_f32_16x16x32_bf16 {vr(SN+4*sub,4)}, {vr(r+4,4)}, {vr(r+12+8*sub,4)}, {vr(SN+4*sub,4)}\n"
        return s_
    for j in range(4): a(fl(j))
    a(f"""
    s_cmp_eq_u32 s25, 0
    s_cselect_b32 s36, 1.0, 0
    s_cselect_b32 s37, 0, 1.0
    v_or_b32 v161, s37, v{SG}
    v_or_b32 v160, s36, v{SG}
    s_waitcnt vmcnt(24)
    """)
    for r in range(8): a(f"v_mul_f32 v{C+r}, v160, v{128 + r % 4}\nv_mul_f32 v{SN+r}, v161, v{128 + r % 4}")
    a("s_mov_b32 s38, 0\nH_FN_LOOP:")
    for j in range(4):
        a("s_waitcnt vmcnt(18)"); a(fm(j)); a(fl(j))
    a("s_add_u32 s38, s38, 1\ns_cmp_lt_u32 s38, 3\ns_cbranch_scc1 H_FN_LOOP")
    for j in range(4):
        a(f"s_waitcnt vmcnt({18-6*j})"); a(fm(j))
    a(f"""
    s_cmp_eq_u32 s26, 20
    s_cselect_b32 s44, 0xffff, 0
    s_mov_b32 s45, 0
    s_mul_i32 s26, s24, {8*ZP}
    s_mul_i32 s27, s25, {ZP}
    s_add_u32 s26, s26, s27
    s_lshr_b32 s27, s23, 1
    s_lshl_b32 s27, s27, 9
    s_add_u32 s26, s26, s27
    s_add_u32 s26, s26, {Y_OFF}
    v_cndmask_b32 v{SN}, v{SN}, 0, s[44:45]
    v_cndmask_b32 v{SN+4}, v{SN+4}, 0, s[44:45]
    """)
    for r in range(8):
        a(f"v_add_f32 v{16+r}, v{C+r}, v{SN+r}\nv_sub_f32 v{C+r}, v{C+r}, v{SN+r}")
    for r in range(8): a(f"v_cvt_pk_bf16_f32 v{16+r}, v{16+r}, v{C+r}")
    a(f"buffer_store_dwordx4 v[16:19], v{FZ}, s[28:31], s26 offen sc1\nbuffer_store_dwordx4 v[20:23], v{FZ}, s[28:31], s26 offen offset:256 sc1")
    a(f"""
H_MID:
    s_lshl_b32 s19, s17, 2
    s_and_b32 s20, s18, 3
    s_add_u32 s19, s19, s20
    s_lshr_b32 s20, s18, 2
    {srd(32, WO_P, 640*1280)}
    {srd(36, OUT_P, 2621440)}
    s_mul_i32 s26, s20, 160
    s_mul_i32 s27, s16, {160*1280}
    s_add_u32 s27, s27, s26
    s_movk_i32 s23, {1280 - 160}
    """)
    a(f"""
    s_add_u32 s25, s16, 1
    s_and_b32 s25, s25, 3
    s_mul_i32 s22, s25, 25600
    s_add_u32 s22, s22, {WOL}
    s_add_u32 s25, s25, 3
    s_waitcnt vmcnt(0)
    {st(5)}
    """)
    lwait(a, HPA, T + 1, 0xff, 2)
    a(f"""s_mov_b64 exec, 1
    ds_add_rtn_u32 v{T+1}, v{HPA}, v{HONE} offset:48
    s_waitcnt lgkmcnt(0)
    v_cmp_eq_u32 vcc, 3, v{T+1}
    s_cbranch_vccz H_NOY
    buffer_store_dword v{HONE}, v{YFA}, s[28:31], 0 offen sc1
H_NOY:
    s_mov_b64 exec, -1""")
    lwait(a, HPA, T + 1, 0xff, "s25")
    a(f"{st(6)}\ns_mov_b32 s25, 0\nH_WO:")
    for i in range(5):
        a(f"s_add_u32 m0, s22, {1024*i}\ns_nop 0\nbuffer_load_dwordx4 v{WA+i}, s[32:35], s27 offen lds")
    a(f"""
    s_add_u32 s22, s22, 5120
    s_add_u32 s27, s27, {32*1280}
    s_add_u32 s25, s25, 1
    s_cmp_lt_u32 s25, 5
    s_cbranch_scc1 H_WO
    s_cmp_lg_u32 s16, 3
    s_cbranch_scc1 H_YW
    """)
    lwait(a, HPA, T + 1, 0xff, opt("ypr", 5), 16)
    a(f"s_mov_b32 s27, {FLG_OFF + 32768}")
    poll4(a, VA, 4, "-1", "s27", slp=16)
    ladd(a, HPA, HONE, 40)
    a(f"H_YW:\nv_add_u32 v{T}, 40, v{HPA}")
    lwait(a, T, T + 1, 1, 1, 16)
    a("s_waitcnt vmcnt(0)")
    a(f"v_mov_b32 v{T}, 2")
    ladd(a, HPA, T, 32)
    a(f"{st(7)}\ns_mov_b32 s26, {Y_OFF}\ns_mov_b32 s27, {G_OFF}\nbuffer_load_dword v{G}, v{VG}, s[28:31], s27 offen sc1")
    for j in range(6):
        a(f"buffer_load_dwordx4 {vr(ZL+4*j,4)}, v{VZ}, s[28:31], s26 offen sc1\ns_add_u32 s26, s26, {2*ZP}")
    BF, OFR, ACC, YG = 0, 100, 120, 140
    VY2, G2 = 162, 167
    a(f"""
    s_waitcnt vmcnt(0)
    s_cmp_ge_u32 s20, 4
    s_cbranch_scc1 H_DESC
    """)
    for k in range(10): a(f"v_perm_b32 v{YG+10+k}, v{ZL+2*k+1}, v{ZL+2*k}, v{SH}")
    a("s_branch H_UNP\nH_DESC:")
    for k in range(10): a(f"v_perm_b32 v{YG+10+k}, v{ZL+19-2*k}, v{ZL+20-2*k}, v{SH}")
    a("H_UNP:")
    lwait(a, HPA, 8, 0xf, 8)
    a(f"""
    {st(8)}
    s_mov_b32 s41, s16
    s_mov_b32 s47, 0
P3_GO:
    s_setprio {opt('p3o', 0)}
    s_lshl_b32 s22, s17, 3
    s_and_b32 s23, s18, 3
    s_add_u32 s22, s22, s23
    s_lshl_b32 s22, s22, 1
    s_add_u32 s22, s22, s47
    s_mul_i32 s22, s22, 20480
    s_add_u32 s22, s22, {OF_OFF}
    s_lshl_b32 s44, s41, 12
    s_add_u32 s44, s44, s22
    s_lshl_b32 s45, s41, 10
    s_add_u32 s45, s45, s22
    s_add_u32 s45, s45, 16384
    s_lshl_b32 s46, s47, 2
    s_add_u32 s40, s46, {LFB + 80}
    s_add_u32 s46, s46, s41
    s_mul_i32 s46, s46, 5120
    s_add_u32 s46, s46, {WOL}
    s_mov_b32 s26, 0
    s_mov_b32 s42, 0
    v_mov_b32 v{CM}, {LFB + 32}
    """)
    lwait(a, CM, CT, 1, 8)
    a("P3_TRY:")
    for k in range(4):
        a(f"buffer_load_dwordx4 {vr(OFR+4*k,4)}, v{VA}, s[28:31], s44 offen offset:{1024*k} sc1")
    a(f"buffer_load_dwordx2 {vr(OFR+16,2)}, v{VT}, s[28:31], s45 offen sc1\nbuffer_load_dwordx2 {vr(OFR+18,2)}, v{VT}, s[28:31], s45 offen offset:128 sc1")
    a(f"""
    s_cmp_lg_u32 s26, 0
    s_cbranch_scc1 P3_CHK
    s_add_u32 s23, s41, 1
    s_and_b32 s23, s23, 3
    s_mul_i32 s23, s23, 25600
    s_add_u32 s23, s23, {WOL}
    v_add_u32 v{CM}, s23, v{BMM}
    v_add_u32 v{CT}, s23, v{BMT}
    """)
    for n in range(25):
        k, t = divmod(n, 5); d = BF + 4 * n
        bb, o, dj = (CM, k * 6400 + t * 8, 1280) if k < 4 else (CT, t * 8, 3200)
        a(f"ds_read_b64_tr_b16 {vr(d,2)}, v{bb} offset:{o}\nds_read_b64_tr_b16 {vr(d+2,2)}, v{bb} offset:{o+dj}")
    a(f"v_mov_b32 v{BMM}, {LFB + 36}\nv_mov_b32 v{BMT}, 1\ns_waitcnt lgkmcnt(0)")
    ladd(a, BMM, BMT, 0)
    b = OFR
    def mfs(k): return "\n".join(f"v_mfma_f32_16x16x32_bf16 {vr(ACC+4*t,4)}, {vr(BF+4*(5*k+t),4)}, {vr(OFR+4*k,4)}, {vr(ACC+4*t,4) if k else 0}" for t in range(5))
    if opt("spec", 1):
        a("P3_CHK:\ns_add_u32 s26, s26, 1\ns_mov_b32 s43, -1")
        for k in range(5):
            r = b + 4 * k
            a(f"""P3_C{k}:
            s_waitcnt vmcnt({max(0, 5 - k) if k < 4 else 0})
            v_max3_u32 v{CM}, v{r}, v{r+1}, v{r+2}
            v_max3_u32 v{CM}, v{r+3}, v{CM}, 1
            v_cmp_eq_u32 vcc, s43, v{CM}
            s_cbranch_vccnz P3_B{k}
            {mfs(k)}""")
        a(f"{'' if opt('fst', 0) else st(11)}\ns_branch P3_OK")
        for k in range(5):
            a(f"P3_B{k}:\ns_sleep {opt('p3s', 4)}")
            for kk in range(k, 4):
                a(f"buffer_load_dwordx4 {vr(OFR+4*kk,4)}, v{VA}, s[28:31], s44 offen offset:{1024*kk} sc1")
            a(f"buffer_load_dwordx2 {vr(OFR+16,2)}, v{VT}, s[28:31], s45 offen sc1\nbuffer_load_dwordx2 {vr(OFR+18,2)}, v{VT}, s[28:31], s45 offen offset:128 sc1")
            a(f"s_add_u32 s26, s26, 1\ns_cmp_lt_u32 s26, 0x40000\ns_cselect_b32 s43, -1, 0\ns_branch P3_C{k}")
        a("P3_OK:")
    else:
        a(f"P3_CHK:\ns_add_u32 s26, s26, 1\ns_waitcnt vmcnt(4)\nv_max3_u32 v{CM}, v{b}, v{b+1}, v{b+2}\nv_max3_u32 v{CT}, v{b+3}, v{b+4}, v{b+5}\nv_max3_u32 v{CM}, v{b+6}, v{b+7}, v{CM}\ns_waitcnt vmcnt(2)")
        a(f"v_max3_u32 v{CT}, v{b+8}, v{b+9}, v{CT}\nv_max3_u32 v{CM}, v{b+10}, v{b+11}, v{CM}\nv_max3_u32 v{CT}, v{b+12}, v{b+13}, v{CT}\nv_max3_u32 v{CM}, v{b+14}, v{b+15}, v{CM}\ns_waitcnt vmcnt(0)")
        a(f"""
    v_max3_u32 v{CT}, v{b+16}, v{b+17}, v{CT}
    v_max3_u32 v{CM}, v{b+18}, v{b+19}, v{CM}
    s_cmp_lt_u32 s26, 0x40000
    v_max_u32 v{CM}, v{CM}, v{CT}
    s_cbranch_scc0 P3_OK
    v_cmp_eq_u32 vcc, -1, v{CM}
    s_cbranch_vccz P3_OK
    s_sleep {opt("p3s", 4)}
    s_branch P3_TRY
P3_OK:
    {'' if opt('fst', 0) else st(11)}
    s_setprio {opt('p3p', 0)}
    """)
        for n in range(25):
            k, t = divmod(n, 5)
            a(f"v_mfma_f32_16x16x32_bf16 {vr(ACC+4*t,4)}, {vr(BF+4*n,4)}, {vr(OFR+4*k,4)}, {vr(ACC+4*t,4) if k else 0}")
    a("s_cmp_lg_u32 s42, 0\ns_cbranch_scc1 P3_WR")
    lwait(a, BMM, CT, 1, 8, 2)
    a(f"{str() if opt('fst', 0) else st(12)}\nP3_WR:\nv_add_u32 v{CM}, s46, v{VA}\nv_mov_b32 v{CT}, s40\ns_nop 1")
    for j in range(5): a(f"ds_write_b128 v{CM}, {vr(ACC+4*j,4)} offset:{1024*j}")
    a("s_waitcnt lgkmcnt(0)")
    ladd(a, CT, BMT, 0)
    a(f"""
    s_add_u32 s44, s44, {8*20480}
    s_add_u32 s45, s45, {8*20480}
    s_add_u32 s46, s46, {8*5120}
    s_add_u32 s40, s40, 8
    s_add_u32 s42, s42, 1
    s_cmp_ge_u32 s42, 2
    s_cbranch_scc1 P3_END
    s_cmp_ge_u32 s16, 4
    s_cbranch_scc1 P3_TRY
    """)
    for k in range(10): a(f"v_lshlrev_b32 v{YG+2*k}, 16, v{YG+10+k}\nv_and_b32 v{YG+2*k+1}, 0xffff0000, v{YG+10+k}")
    for k in range(20): a(f"v_mul_f32 v{YG+k}, v{YG+k}, v{G2}")
    a(f"""
    v_sub_f32 v{G2}, 1.0, v{G2}
    s_branch P3_TRY
P3_END:
    {st(10)}
    s_cmp_ge_u32 s16, 4
    s_cbranch_scc1 {"L_DONE" if STAMP else "L_END"}
    s_setprio 3
    s_lshl_b32 s23, s16, 2
    s_add_u32 s23, s23, {LFB + 80}
    v_mov_b32 v{CT}, s23
    s_mul_i32 s23, s16, 20480
    s_add_u32 s23, s23, {WOL}
    v_add_u32 v{CM}, s23, v{VA}
    """)
    lwait(a, CT, BMM, 1, 4, 1)
    a(st(9))
    for j in range(5):
        for g in range(4): a(f"ds_read_b128 {vr(16*j+4*g,4)}, v{CM} offset:{5120*g+1024*j}")
    for j in range(5):
        a(f"s_waitcnt lgkmcnt({min(15, 16-4*j)})")
        for r in (0, 2): a(f"v_pk_add_f32 {vr(16*j+r,2)}, {vr(16*j+r,2)}, {vr(16*j+4+r,2)}\nv_pk_add_f32 {vr(16*j+8+r,2)}, {vr(16*j+8+r,2)}, {vr(16*j+12+r,2)}")
        for r in (0, 2): a(f"v_pk_add_f32 {vr(16*j+r,2)}, {vr(16*j+r,2)}, {vr(16*j+8+r,2)}")
        for r in range(4): a(f"v_fmac_f32 v{YG+4*j+r}, v{16*j+r}, v{G2}")
        a(f"v_cvt_pk_bf16_f32 v{84+2*j}, v{YG+4*j}, v{YG+4*j+1}\nv_cvt_pk_bf16_f32 v{84+2*j+1}, v{YG+4*j+2}, v{YG+4*j+3}")
        if j == 1: a(f"buffer_store_dwordx4 v[84:87], v{VY2}, s[36:39], 0 offen" + OSC)
        if j == 3: a(f"buffer_store_dwordx4 v[88:91], v{VY2}, s[36:39], 0 offen offset:16" + OSC)
    a(f"buffer_store_dwordx2 v[92:93], v{VY2}, s[36:39], 0 offen offset:32" + OSC)

DOC = """;
"""
def main():
    a = A()
    top = open("cdna_kernels/" + NAME + ".s.ref").read().split("; Override launch")[0]
    top += "; @launch grid=(256,1,1) block=(768,1,1) lds=163840\n"
    top += DOC
    a('.amdgcn_target "amdgcn-amd-amdhsa--gfx950"\n.text')
    d = gen(a)
    open(sys.argv[1], "w").write(top + a.text() + '.section .rodata,"a"\n.p2align 6\n' + d)
if __name__ == "__main__":
    main()
```

```python
import sys, math, struct

OPT = dict(x.split("=") for x in sys.argv[2:])
def opt(k, d): return int(OPT.get(k, d))
NAME = "gated_mix__spectral_fnet__softmax_full_mha__prompt"
HS = 163840
KV_OFF = 0
HG = HS + opt('pad', 512)
HQ = 81920 + opt('pad', 512)
Q_OFF = 32 * HG
FE_OFF = Q_OFF + 32 * HQ
FO_DELTA = 655360
X512_OFF = FE_OFF + 2 * FO_DELTA
TB_OFF = X512_OFF + 4096
Y_OFF = TB_OFF + 33 * 65536
ZP = 8704
G_OFF = Y_OFF + 85 * 2 * ZP
OF_OFF = G_OFF + 8192
FLG_OFF = OF_OFF + 2621440
WS_USED = FLG_OFF + 320 * 128
XB = 102400
L_Y = 256
QLDS = 61440
RB0, RSL = 11264, 36864
LFB = 158720
WOL = 5120
AK1, AK2, AV, BK1, BK2, BV, OA1, OA2, ONES, PA, FA = range(152, 163)
VA, VT, BMM, BMT, CM, CT = 163, 164, 165, 166, 160, 161
PXB = 107520
def p3_addr(l):
    return f"""v_lshlrev_b32 v{VA}, 4, v{l}
    v_and_b32 v2, 7, v{l}
    v_bfe_u32 v4, v{l}, 3, 1
    v_lshrrev_b32 v3, 4, v{l}
    v_lshlrev_b32 v{VT}, 8, v3
    v_lshl_add_u32 v{VT}, v2, 4, v{VT}
    v_lshl_add_u32 v{VT}, v4, 3, v{VT}
    v_bfe_u32 v2, v{l}, 2, 2
    v_and_b32 v5, 3, v{l}
    v_mul_u32_u24 v5, 40, v5
    v_mul_u32_u24 v4, 40, v3
    v_add3_u32 v4, v4, v2, 16
    v_mul_u32_u24 v4, 160, v4
    v_add_u32 v{BMT}, v4, v5
    v_lshrrev_b32 v4, 1, v3
    v_mul_u32_u24 v4, 20, v4
    v_and_b32 v3, 1, v3
    v_lshl_add_u32 v4, v3, 2, v4
    v_add_u32 v4, v4, v2
    v_mul_u32_u24 v4, 160, v4
    v_add_u32 v{BMM}, v4, v5"""

def f32bits(x): return struct.unpack("<I", struct.pack("<f", x))[0]
QSCALE = f32bits((20 ** -0.5) * math.log2(math.e))
STAMP = opt("stamp", 0)
STAMP_OFF = 1 << 25
NST = 16

class A:
    def __init__(self): self.l = []; self.n = 0
    def __call__(self, s):
        for line in s.split("\n"):
            t = line.strip()
            if not t: continue
            self.l.append(t if t.endswith(":") or t.startswith(".") else "    " + t)
    def uid(self): self.n += 1; return self.n
    def text(self): return "\n".join(self.l) + "\n"

def vr(a, n): return f"v[{a}:{a+n-1}]" if n > 1 else f"v{a}"
def srd(lo, base, size):
    return f"s_mov_b32 s{lo}, s{base}\ns_mov_b32 s{lo+1}, s{base+1}\ns_mov_b32 s{lo+2}, {size}\ns_mov_b32 s{lo+3}, 0x20000"
OSC = " sc1" if opt("outsc1", 0) else ""
P1ST = opt("p1st", 0)
def st(i, p1=False):
    if not STAMP: return ""
    if P1ST and not p1 and 0 < i < 15 and i not in (4, 5): return ""
    if P1ST and not p1 and i in (4, 5): i += 8
    if p1 and not P1ST: return ""
    return f"{'s_memrealtime' if STAMP in (1, 3, 4) else 's_memtime'} s[{64+2*i}:{65+2*i}]"
def fin(): return "s_branch L_DONE" if STAMP else "s_endpgm"

X_P, WD_P, WQKV_P, WO_P, GATE_P, OUT_P, DBG_P, WS_P = 4, 8, 48, 50, 52, 54, 56, 58

def poll(a, vaddr, vdat, mask, target, sreg=60):
    u = a.uid()
    a(f"""
    s_mov_b64 exec, {mask}
    s_mov_b32 s{sreg}, 0
L_POLL{u}:
    buffer_load_dword v{vdat}, v{vaddr}, s[28:31], 0 offen sc1
    s_waitcnt vmcnt(0)
    v_cmp_gt_u32 vcc, {target}, v{vdat}
    s_cbranch_vccz L_POLLD{u}
    {'s_sleep 1' if opt('psleep', 0) else ''}
    s_add_u32 s{sreg}, s{sreg}, 1
    s_cmp_lt_u32 s{sreg}, 0x40000
    s_cbranch_scc1 L_POLL{u}
L_POLLD{u}:
    s_mov_b64 exec, -1
    """)

def poll4(a, vaddr, vdat, mask, soff="0", sreg=60, slp=None):
    u = a.uid()
    a(f"""
    s_mov_b64 exec, {mask}
    s_mov_b32 s{sreg}, 0
    s_branch L_POLLE{u}
L_POLL{u}:
    s_sleep {slp or opt("ps4", 2)}
L_POLLE{u}:
    buffer_load_dwordx4 {vr(vdat,4)}, v{vaddr}, s[28:31], {soff} offen sc1
    s_add_u32 s{sreg}, s{sreg}, 1
    s_waitcnt vmcnt(0)
    v_min3_u32 v{vdat}, v{vdat}, v{vdat+1}, v{vdat+2}
    s_cmp_lt_u32 s{sreg}, 0x40000
    v_min_u32 v{vdat}, v{vdat}, v{vdat+3}
    s_cbranch_scc0 L_POLLD{u}
    v_cmp_eq_u32 vcc, 0, v{vdat}
    s_cbranch_vccnz L_POLL{u}
L_POLLD{u}:
    s_mov_b64 exec, -1
    """)

def gen(a):
    label = NAME + "_kernel"
    a(f".p2align 8\n.globl {label}\n.type {label},@function\n{label}:")
    a(f"""
    s_cmp_ge_u32 s2, 256
    s_cbranch_scc1 L_END
    {st(0) + chr(10) + 's_waitcnt lgkmcnt(0)' if opt("st0first", 0) else ''}
    s_load_dwordx2 s[4:5], s[0:1], 0
    s_load_dwordx8 s[48:55], s[0:1], 48
    s_load_dwordx4 s[8:11], s[0:1], 24
    s_load_dwordx4 s[56:59], s[0:1], 80
    """)
    if STAMP:
        a("\n".join(f"s_mov_b32 s{64+j}, 0" for j in range(2, 2 * NST)) + "\n" + ("" if opt("st0first", 0) else st(0)))
    a(f"""
    v_lshrrev_b32 v1, 6, v0
    v_and_b32 v0, 63, v0
    s_and_b32 s17, s2, 7
    v_readfirstlane_b32 s16, v1
    s_lshr_b32 s18, s2, 3
    s_and_b32 s19, s18, 7
    s_lshr_b32 s22, s18, 3
    s_and_b32 s21, s17, 1
    s_lshl_b32 s23, s19, 1
    s_add_u32 s21, s21, s23
    s_lshr_b32 s20, s17, 1
    s_cmp_ge_u32 s19, {opt("numl", 3)}
    s_cselect_b32 s12, 1, 0
    s_cmp_eq_u32 s22, 0
    s_cselect_b32 s12, 0, s12
    s_cmp_ge_u32 s16, 4
    s_cbranch_scc1 P1_NOTLOADER
    """)
    p1_loader(a)
    a(f"""
P1_NOTLOADER:
    s_lshl_b32 s63, s17, 2
    s_add_u32 s63, s63, s22
    s_mul_i32 s14, s63, {HG}
    s_sub_u32 s13, s16, 4
    s_lshl_b32 s23, s19, 3
    s_add_u32 s23, s23, s13
    s_mul_i32 s23, s23, 40960
    s_add_u32 s23, s23, {OF_OFF}
    s_lshl_b32 s6, s63, 9
    s_add_u32 s6, s6, s23
    s_lshl_b32 s7, s63, 7
    s_add_u32 s7, s7, s23
    s_add_u32 s7, s7, 16384
    s_lshl_b32 s15, s20, 2
    s_add_u32 s15, s15, s22
    s_lshl_b32 s15, s15, 4
    s_add_u32 s15, s15, s21
    s_lshl_b32 s15, s15, 5
    s_add_u32 s15, s15, s13
    s_lshl_b32 s15, s15, 2
    s_add_u32 s15, s15, {FLG_OFF}
    v_and_b32 v1, 31, v0
    v_lshrrev_b32 v2, 5, v0
    v_lshlrev_b32 v{AK1}, 4, v0
    v_lshrrev_b32 v3, 4, v1
    v_lshl_add_u32 v3, v3, 1, v2
    v_and_b32 v4, 15, v0
    v_lshl_add_u32 v3, v4, 2, v3
    v_lshlrev_b32 v{AK2}, 2, v3
    v_mul_u32_u24 v{AV}, 384, v2
    v_lshlrev_b32 v3, 6, v2
    v_cmp_gt_u32 vcc, 16, v1
    s_nop 1
    v_cndmask_b32 v{AV}, v3, v{AV}, vcc
    v_lshl_add_u32 v{AV}, v1, 4, v{AV}
    v_add_u32 v{BK1}, 15360, v{AK1}
    v_add_u32 v{BK2}, 15360, v{AK2}
    v_add_u32 v{BV}, 15360, v{AV}
    v_and_b32 v3, 27, v1
    v_cmp_eq_u32 vcc, 24, v3
    v_mov_b32 v3, 0x3f803f80
    v_bfe_u32 v{OA2}, v1, 3, 1
    v_cndmask_b32 v{ONES}, 0, v3, vcc
    v_mul_u32_u24 v{OA2}, 20480, v{OA2}
    v_and_b32 v3, 7, v1
    v_lshl_add_u32 v{OA2}, v3, 4, v{OA2}
    v_lshrrev_b32 v3, 4, v0
    v_lshl_add_u32 v{OA1}, v3, 7, v{OA2}
    s_lshl_b32 s23, s13, 2
    s_add_u32 s23, s23, {LFB}
    v_mov_b32 v{PA}, s23
    v_mov_b32 v{FA}, {LFB + 56}
    {p3_addr(0)}
    s_cmp_ge_u32 s16, 8
    s_cbranch_scc1 P1_EXTRA
    """)
    p1_compute(a)
    p1_extra(a)
    attention(a)
    helpers(a)
    a("L_DONE:")
    if STAMP == 4:
        i_, j_ = opt("ai", 0), opt("aj", 0)
        a(f"""s_waitcnt vmcnt(0)
        {st(NST-1)}
        s_waitcnt lgkmcnt(0)
        {f's_cmp_lg_u32 s16, {opt("aw1", 0)}' if opt("aw1", 0) else f's_cmp_ge_u32 s16, {opt("aw", 4)}'}
        s_cbranch_scc1 L_END
        s_and_b32 s60, s2, {opt("am", 31)}
        s_cmp_lg_u32 s60, {opt("av", 5)}
        s_cbranch_scc1 L_END
        s_sub_u32 s60, s{64+2*j_}, s{64+2*i_}
        s_lshl_b32 s60, s60, 2
        s_min_u32 s60, s60, 100000
        {f's_mov_b32 s60, {opt("fix", 0)}' if opt("fix", 0) else ''}
L_AMP:
        s_memrealtime s[44:45]
        s_waitcnt lgkmcnt(0)
        s_sub_u32 s44, s44, s{64 if opt("fix", 0) else 64+2*(NST-1)}
        s_cmp_lt_u32 s44, s60
        s_cbranch_scc1 L_AMP
        """)
    elif STAMP == 3:
        r = f"s_waitcnt vmcnt(0)\n{st(NST-1)}\ns_mov_b64 exec, 1\n{srd(44, DBG_P, 256)}\ns_waitcnt lgkmcnt(0)\nv_mov_b32 v16, 0\n"
        r += "s_not_b32 s60, s64\nv_mov_b32 v0, s60\nbuffer_atomic_umax v0, v16, s[44:47], 0 offen offset:4 sc1\n"
        r += "s_cmp_eq_u32 s16, 0\ns_cbranch_scc1 L_D0\ns_cmp_eq_u32 s16, 4\ns_cbranch_scc0 L_END\n"
        for n, i in enumerate((2, 3, 4, 5, 7, 8, 9)): r += f"v_mov_b32 v{n+1}, s{64+2*i}\nbuffer_atomic_umax v{n+1}, v16, s[44:47], 0 offen offset:{8+4*n} sc1\n"
        r += "s_endpgm\nL_D0:\n"
        for n, i in enumerate((0, 1, 6, 8, 9, 10, 15)): r += f"v_mov_b32 v{n+1}, s{64+2*i}\nbuffer_atomic_umax v{n+1}, v16, s[44:47], 0 offen offset:{36+4*n} sc1\n"
        a(r)
    elif STAMP:
        r = f"s_waitcnt vmcnt(0)\n{st(NST-1)}\ns_mov_b64 exec, 1\ns_add_u32 s44, s{WS_P}, {STAMP_OFF}\ns_addc_u32 s45, s{WS_P+1}, 0\ns_mov_b32 s46, 262144\ns_mov_b32 s47, 0x20000\n"
        r += "s_lshl_b32 s60, s2, 4\ns_add_u32 s60, s60, s16\ns_lshl_b32 s60, s60, 6\ns_waitcnt lgkmcnt(0)\nv_mov_b32 v16, 0\n"
        if opt("xcc", 0): r += "s_getreg_b32 s66, hwreg(HW_REG_XCC_ID)\ns_add_u32 s66, s66, 100\n"
        for i in range(NST): r += f"v_mov_b32 v{i}, s{64+2*i}\n"
        for i in range(4): r += f"buffer_store_dwordx4 v[{4*i}:{4*i+3}], v16, s[44:47], s60 offen offset:{16*i}\n"
        a(r)
    a("L_END:\ns_endpgm\n.fill 256, 4, 0xbf810000\nL_CODE_END:")
    return f""".amdhsa_kernel {label}
  .amdhsa_next_free_vgpr 168
  .amdhsa_next_free_sgpr {100 if STAMP else 64}
  .amdhsa_accum_offset 168
  .amdhsa_group_segment_fixed_size 0
  .amdhsa_kernarg_size 96
  .amdhsa_user_sgpr_count 2
  .amdhsa_user_sgpr_kernarg_segment_ptr 1
  .amdhsa_system_sgpr_workgroup_id_x 1
.end_amdhsa_kernel
"""

def p1_loader(a):
    a(f"""
    s_setprio 3
    """)
    if opt("pf", 0):
        a(f"""
        v_lshlrev_b32 v20, 4, v0
        s_mul_i32 s23, s2, 10240
        s_and_b32 s24, s16, 1
        s_mul_i32 s24, s24, 5120
        s_add_u32 s23, s23, s24
        s_mul_i32 s25, s2, 3
        s_mov_b32 s31, 0x20000
        s_mov_b32 s35, 0x20000
        s_mov_b32 s34, {640*1280}
        s_waitcnt lgkmcnt(0)
        s_mov_b32 s30, {2048*1280}
        s_cmp_lt_u32 s16, 2
        s_cselect_b32 s28, s{X_P}, s{WQKV_P}
        s_cselect_b32 s29, s{X_P+1}, s{WQKV_P+1}
        s_cselect_b32 s30, s30, {640*3840}
        s_cselect_b32 s32, s8, s10
        s_cselect_b32 s33, s9, s11
        buffer_load_dwordx4 v[24:27], v20, s[28:31], s23 offen
        buffer_load_dwordx4 v[28:31], v20, s[28:31], s23 offen offset:1024
        buffer_load_dwordx4 v[32:35], v20, s[28:31], s23 offen offset:2048
        buffer_load_dwordx4 v[36:39], v20, s[28:31], s23 offen offset:3072
        s_add_u32 s23, s23, 4096
        buffer_load_dwordx4 v[40:43], v20, s[28:31], s23 offen
        s_lshr_b32 s24, s24, 11
        s_add_u32 s25, s25, s24
        s_mul_i32 s25, s25, 1280
        s_mov_b32 exec_hi, 0xff
        buffer_load_dwordx4 v[44:47], v20, s[32:35], s25 offen
        s_bitcmp1_b32 s16, 0
        s_cbranch_scc1 P1_PF1
        buffer_load_dwordx4 v[48:51], v20, s[32:35], s25 offen offset:1280
P1_PF1:
        s_mov_b32 exec_hi, -1
        """)
    a(f"""
    v_lshrrev_b32 v2, 3, v0
    v_and_b32 v3, 7, v0
    v_lshrrev_b32 v4, 4, v0
    v_xor_b32 v3, v3, v4
    v_lshlrev_b32 v3, 4, v3
    v_xor_b32 v4, 64, v3
    s_lshl_b32 s23, s21, 5
    s_lshr_b32 s24, s16, 1
    s_lshl_b32 s24, s24, 4
    s_add_u32 s23, s23, s24
    s_cmp_eq_u32 s22, 2
    s_cselect_b32 s25, 4, 0
    v_and_b32 v9, s25, v2
    v_add3_u32 v9, v9, v2, s23
    s_sub_u32 s25, 8, s25
    s_bitcmp1_b32 s16, 0
    s_cselect_b32 s23, -1, 1
    s_cselect_b32 s24, 0x400, 0
    s_mul_i32 s25, s25, s23
    v_mul_lo_u32 v10, v9, s23
    s_sub_u32 s27, 0x800, s24
    v_add_u32 v5, s24, v10
    v_sub_u32 v7, s27, v10
    v_add_u32 v6, s25, v5
    v_subrev_u32 v8, s25, v7
    v_cmp_eq_u32 vcc, 0, v9
    s_add_u32 s24, s24, 0x200
    v_mov_b32 v9, s24
    s_cmp_lg_u32 s22, 2
    v_cndmask_b32 v7, v7, v9, vcc
    s_cbranch_scc1 P1_LD_NV
    v_swap_b32 v6, v7
P1_LD_NV:
    s_movk_i32 s27, 1280
    v_mad_u32_u24 v10, v5, s27, v3
    v_mad_u32_u24 v11, v6, s27, v4
    v_mad_u32_u24 v12, v7, s27, v3
    v_mad_u32_u24 v13, v8, s27, v4
    """)
    EX = opt("early", 1) and opt("stag1", 7) == 7
    if EX:
        a(f"""
        s_lshr_b32 s36, s17, 1
        s_xor_b32 s36, s36, s17
        s_and_b32 s36, s36, 1
        s_xor_b32 s36, s36, 9
        s_lshl_b32 s41, s36, 7
        s_lshl_b32 s44, s16, 12
        s_add_u32 m0, s44, {RB0 + 2 * RSL}
        s_waitcnt lgkmcnt(0)
        {srd(28, X_P, 2048*1280)}
        buffer_load_dwordx4 v10, s[28:31], s41 offen lds
        """)
        for i in range(1, 4):
            a(f"s_add_u32 m0, s44, {RB0 + 2 * RSL + 1024*i}\ns_nop 0\nbuffer_load_dwordx4 v{10+i}, s[28:31], s41 offen lds")
    a(f"""
    s_lshl_b32 s26, s22, 2
    s_add_u32 s26, s26, s20
    s_and_b32 s27, s20, 1
    s_movk_i32 s25, 3840
    s_cmp_eq_u32 s22, 3
    s_cselect_b32 s25, 1280, s25
    s_cselect_b32 s26, s27, s26
    s_mul_i32 s26, s26, 320
    s_lshl_b32 s27, s16, 4
    s_mul_i32 s27, s27, s25
    s_add_u32 s26, s26, s27
    s_sub_u32 s27, s25, 320
    """)
    for i in range(5):
        a(f"""
        v_add_u32 v5, {64*i}, v0
        v_mul_u32_u24 v6, 3277, v5
        v_lshrrev_b32 v6, 16, v6
        v_lshrrev_b32 v7, 2, v6
        v_and_b32 v7, 2, v7
        v_xor_b32 v5, v5, v7
        v_lshl_add_u32 v5, v5, 4, s26
        v_mad_u32_u24 v{14+i}, v6, s27, v5
        """)
    sg = opt("stag1", 7)
    if sg == 1:
        a("s_lshl_b32 s36, s19, 3\ns_lshl_b32 s37, s22, 4\ns_add_u32 s36, s36, s37\ns_add_u32 s36, s36, s17\ns_and_b32 s36, s36, 63\ns_mul_i32 s36, s36, 10\ns_lshr_b32 s36, s36, 6")
    elif sg == 2:
        a("s_add_u32 s36, s19, s22\ns_lshl_b32 s36, s36, 4\ns_add_u32 s36, s36, s17\ns_add_u32 s36, s36, s17\ns_and_b32 s36, s36, 63\ns_mul_i32 s36, s36, 10\ns_lshr_b32 s36, s36, 6")
    elif sg == 3:
        a("s_add_u32 s36, s19, s22\ns_lshl_b32 s36, s36, 5\ns_lshl_b32 s37, s17, 2\ns_add_u32 s36, s36, s37\ns_and_b32 s36, s36, 63\ns_mul_i32 s36, s36, 10\ns_lshr_b32 s36, s36, 6")
    elif sg >= 10:
        nc = sg - 9
        Gn = 5 - nc
        rot = [2 * (nc + k % Gn) for k in range(2 * Gn - 1)]
        rv = sum(v << (4 * k) for k, v in enumerate(rot))
        com = sum((2 * k) << (4 * k) for k in range(nc))
        a(f"""
        s_lshr_b32 s36, s17, 1
        s_xor_b32 s36, s36, s17
        s_and_b32 s36, s36, 1
        s_add_u32 s37, s22, s19
        s_lshr_b32 s46, s17, 2
        s_lshl_b32 s46, s46, {opt("xsh", 1)}
        s_add_u32 s37, s37, s46
        s_mul_i32 s46, s37, {256 // Gn + 1}
        s_lshr_b32 s46, s46, 8
        s_mul_i32 s46, s46, {Gn}
        s_sub_u32 s37, s37, s46
        s_lshl_b32 s37, s37, 2
        s_lshr_b32 s46, {rv:#x}, s37
        s_and_b32 s46, s46, {(1 << (4 * Gn)) - 1:#x}
        s_lshl_b32 s46, s46, {4 * nc}
        s_or_b32 s46, s46, {0x53100000 | com:#x}
        s_mov_b32 s47, 0x97
        s_mul_i32 s37, s36, 0x11111111
        s_xor_b32 s46, s46, s37
        s_xor_b32 s47, s47, s37
        s_and_b32 s36, s46, 15
        """)
    elif sg >= 5:
        tsh = {5: 0, 6: 1, 7: 0, 8: 0, 9: 0}[sg]
        a(f"""
        s_lshr_b32 s36, s17, 1
        s_xor_b32 s36, s36, s17
        s_and_b32 s36, s36, 1
        {'s_min_u32 s37, s22, 2' if sg == 9 else f's_lshr_b32 s37, s22, {tsh}'}
        s_add_u32 s37, s37, s19
        s_lshr_b32 s46, s17, 2
        s_lshl_b32 s46, s46, 1
        s_add_u32 s37, s37, s46
        s_mul_i32 s46, s37, 52
        s_lshr_b32 s46, s46, 8
        s_mul_i32 s46, s46, 5
        s_sub_u32 s37, s37, s46
        s_lshl_b32 s37, s37, 2
        s_mov_b32 s46, 0x42086420
        s_mov_b32 s47, 0x6
        s_lshr_b64 s[46:47], s[46:47], s37
        s_and_b32 s46, s46, 0xfffff
        {'s_or_b32 s47, s46, 0x11111' + chr(10) + 's_lshl_b32 s37, s47, 20' + chr(10) + 's_or_b32 s46, s46, s37' + chr(10) + 's_lshr_b32 s47, s47, 12' if sg == 8 else 's_or_b32 s46, s46, 0x53100000' + chr(10) + 's_mov_b32 s47, 0x97'}
        s_mul_i32 s37, s36, 0x11111111
        s_xor_b32 s46, s46, s37
        s_xor_b32 s47, s47, s37
        """)
        if sg == 7:
            a("s_lshr_b32 s37, s47, 4\ns_and_b32 s37, s37, 15\ns_lshl_b64 s[46:47], s[46:47], 4\ns_or_b32 s46, s46, s37")
        a("s_and_b32 s36, s46, 15")
    else:
        a("s_mov_b32 s36, 0")
    a(f"""
    s_lshl_b32 s38, s16, 12
    s_add_u32 s38, s38, {RB0}
    s_mul_i32 s39, s16, 5120
    s_add_u32 s39, s39, {RB0 + 16384}
    s_mov_b32 s40, 0
    s_mul_i32 s34, s25, 640
    s_lshl_b32 s25, s25, 6
    s_mov_b32 s35, 0x20000
    s_waitcnt lgkmcnt(0)
    {srd(28, X_P, 2048*1280)}
    s_cmp_lt_u32 s20, 2
    s_cselect_b32 s32, s8, s10
    s_cselect_b32 s33, s9, s11
    s_cmp_eq_u32 s22, 3
    s_cselect_b32 s32, s32, s{WQKV_P}
    s_cselect_b32 s33, s33, s{WQKV_P+1}
    {st(1)}
    """)
    if opt("dftdelay", 0):
        a(f"""s_cmp_lg_u32 s22, 3
        s_cbranch_scc1 P1_LD_LOOP
        s_memrealtime s[42:43]
        s_waitcnt lgkmcnt(0)
        s_add_u32 s42, s42, {opt("dftdelay", 0)}
P1_DLY:
        s_memrealtime s[44:45]
        s_waitcnt lgkmcnt(0)
        s_cmp_lt_u32 s44, s42
        s_cbranch_scc1 P1_DLY
        """)
    a(f"""
P1_LD_LOOP:
    s_lshl_b32 s41, s36, 7
    s_mul_i32 s42, s36, s25
    s_add_u32 s43, s40, 2
    s_and_b32 s43, s43, 3
    s_mul_i32 s43, s43, {RSL}
    s_add_u32 s44, s43, s38
    s_add_u32 s45, s43, s39
    """)
    if EX: a("s_cmp_eq_u32 s40, 0\ns_cbranch_scc1 P1_LD_WW")
    for i in range(4):
        a(f"s_add_u32 m0, s44, {1024*i}\ns_nop 0\nbuffer_load_dwordx4 v{10+i}, s[28:31], s41 offen lds")
    a("P1_LD_WW:")
    for i in range(5):
        a(f"s_add_u32 m0, s45, {1024*i}\ns_nop 0\nbuffer_load_dwordx4 v{14+i}, s[32:35], s42 offen lds")
    if opt("noload", 0): a("s_cmp_ge_u32 s40, 3\ns_cselect_b32 s30, 0, s30\ns_cselect_b32 s34, 0, s34")
    a(f"""
    {'s_lshr_b64 s[46:47], s[46:47], 4' + chr(10) + 's_and_b32 s36, s46, 15' if sg >= 5 else 's_add_u32 s36, s36, 1' + chr(10) + 's_cmp_eq_u32 s36, 10' + chr(10) + 's_cselect_b32 s36, 0, s36'}
    s_add_u32 s40, s40, 1
    s_cmp_eq_u32 s40, 1
    s_cbranch_scc1 P1_LD_LOOP
    s_waitcnt vmcnt(9)
    s_barrier
    s_cmp_lt_u32 s40, 10
    s_cbranch_scc1 P1_LD_LOOP
    s_waitcnt vmcnt(0)
    s_barrier
    s_branch HELPER
    """)

def p1_compute(a):
    X = 80; W = [96, 116]; XA = 136; WA = 137; CX = 142; CW = 144; PC = 149; L = 150; TT = 96
    def acc(b, T): return 20 * b + 4 * T
    a(f"""
    s_sub_u32 s61, s16, 4
    s_and_b32 s36, s61, 1
    s_lshr_b32 s37, s61, 1
    v_mov_b32 v{L}, v0
    v_and_b32 v1, 15, v0
    v_lshrrev_b32 v2, 4, v0
    v_lshrrev_b32 v3, 1, v1
    v_xor_b32 v3, v3, v2
    v_lshlrev_b32 v3, 4, v3
    v_lshl_add_u32 v3, v1, 7, v3
    s_lshl_b32 s23, s36, 13
    s_add_u32 s23, s23, {RB0}
    v_add_u32 v{XA}, s23, v3
    v_bfe_u32 v3, v0, 2, 2
    v_lshl_add_u32 v3, v2, 3, v3
    v_mul_u32_u24 v3, 320, v3
    v_add_u32 v3, {RB0 + 16384}, v3
    v_and_b32 v4, 16, v0
    v_lshlrev_b32 v4, 1, v4
    v_and_b32 v5, 3, v0
    s_mul_i32 s23, s37, 160
    v_lshl_add_u32 v6, v5, 3, s23
    """)
    for T in range(4):
        a(f"v_xor_b32 v7, v6, v4\nv_add_u32 v{WA+T}, v7, v3\nv_add_u32 v6, 40, v6")
    a(f"""
    v_mul_u32_u24 v6, 40, v5
    v_add3_u32 v6, v6, s23, 32
    v_xor_b32 v7, v6, v4
    v_add_u32 v{WA+4}, v7, v3
    v_mov_b32 v{PC}, 0xbf803f80
    s_lshl_b32 s26, s22, 2
    s_add_u32 s26, s26, s20
    s_lshl_b32 s26, s26, 1
    s_add_u32 s26, s26, s37
    s_cmp_eq_u32 s26, 28
    s_cselect_b32 s24, 0x10001, 0
    s_mov_b32 s25, s24
    s_cmp_eq_u32 s22, 3
    s_cselect_b32 s43, 10, 8
    s_mov_b32 s40, 0
    s_mov_b32 s42, {2 * RSL}
    """)
    for r in range(96): a(f"v_mov_b32 v{r}, 0")
    for r in range(20): a(f"v_mov_b32 v{W[1]+r}, 0")
    a(f"v_add_u32 v{CX}, s42, v{XA}")
    for T in range(5): a(f"v_add_u32 v{CW+T}, s42, v{WA+T}")
    a(f"s_waitcnt lgkmcnt(0)\n{srd(28, WS_P, WS_USED)}")
    a(f"s_setprio {opt('cp', 2)}\ns_cmp_ge_u32 s22, 2\ns_cbranch_scc1 P1_PRE_V")
    def mf(b, T, x, w, qk):
        d = vr(acc(b, T), 4)
        return f"v_mfma_f32_16x16x32_bf16 {d}, {vr(w,4)}, {vr(x,4)}, {d}" if qk else f"v_mfma_f32_16x16x32_bf16 {d}, {vr(x,4)}, {vr(w,4)}, {d}"
    def rdw(d, T, step): return [f"ds_read_b64_tr_b16 {vr(d+2*j,2)}, v{CW+T} offset:{(step // 2) * RSL + (step % 2) * 10240 + 1280 * j}" for j in range(2)]
    def rdx(d, b, step): return f"ds_read_b128 {vr(d,4)}, v{CX + step % 2} offset:{(step // 2) * RSL + 2048 * b}"
    TO = (1, 2, 3, 4, 0)
    def group(step, qk, reads=True, patch=True):
        cur = W[1 - step]; nxt = W[step]
        rq = []
        for T in TO: rq += rdw(nxt + 4 * T, T, step)
        fill = []
        if step == 1:
            fill = ["s_add_u32 s40, s40, 1", "s_add_u32 s41, s40, 2", "s_and_b32 s41, s41, 3", f"s_mul_i32 s42, s41, {RSL}", f"v_add_u32 v{CX}, s42, v{XA}"] + [f"v_add_u32 v{CW+T}, s42, v{WA+T}" for T in range(5)]
        issued = 0
        for b in range(4):
            if reads:
                allow = [2, 15, issued + 1, issued][b]
                if b != 1: a(f"s_waitcnt lgkmcnt({min(15, allow)})")
            elif b == 0: a("s_waitcnt lgkmcnt(0)")
            for n, T in enumerate(TO):
                a(mf(b, T, X + 4 * b, cur + 4 * T, qk))
                if b == 0 and n < 2 and not qk and patch:
                    for j in range(2): a(f"v_cndmask_b32 v{cur+2*n+j}, v{cur+2*n+j}, v{PC}, s[24:25]")
                if not reads: continue
                if step == 0 and b == 0:
                    if n == 0: a(f"v_xor_b32 v{CX+1}, 64, v{CX}")
                    if n == opt("bn", 1): a("s_barrier")
                    if n <= opt("bn", 1): continue
                if n == 4: a(rdx(X + 4 * b, b, step)); issued += 1
                elif rq:
                    a(rq.pop(0)); issued += 1
                    if rq and (opt("rd2", 0) or (step == 0 and b == 1 and n < opt("bn", 1) - 1)): a(rq.pop(0)); issued += 1
                elif fill:
                    a(fill.pop(0))
                    if fill: a(fill.pop(0))
        assert not reads or (not rq and not fill), (rq, fill)

    def tail(qk, epi):
        seq = [(b, T, ("x0", b), ("w0", T)) for b in range(4) for T in TO]
        marks = {}
        win = opt("win", 2)
        for step in range(4 - win):
            for b in range(4):
                for T in TO: seq.append((b, T, ("x", 0, step, b), ("w", step, T)))
        for T in range(5):
            for jj in range(2):
                for step in range(4 - win, 4):
                    for b in (2 * jj, 2 * jj + 1): seq.append((b, T, ("x", 0, step, b), ("w", step, T)))
                marks[len(seq) - 1] = (T, jj)
        last = {}
        for n, (_, _, x, w) in enumerate(seq): last[x] = n; last[w] = n
        loc = {("x0", b): X + 4 * b for b in range(4)}; loc.update({("w0", T): W[1] + 4 * T for T in range(5)})
        free = [W[0] + 4 * k for k in range(5)] + [XA]
        order = []
        for _, _, x, w in seq:
            for f in (w, x):
                if f not in loc and f not in order: order.append(f)
        done_at = {}; nrd = 0; waited = 0; pend = []; fill = []
        cnt = [0]; prev = [0]
        def em(t): a(t); cnt[0] += 1
        a(f"v_xor_b32 v{CX+1}, 64, v{CX}\ns_waitcnt lgkmcnt(0)\ns_barrier")
        bar2 = [True]
        def take():
            f = order.pop(0); loc[f] = free.pop(0)
            if bar2 and (f[1] if f[0] == "w" else f[2]) >= 2: em("s_barrier"); bar2.pop()
            p_ = rdw(loc[f], f[2], f[1]) if f[0] == "w" else [rdx(loc[f], f[3], f[2])]
            done_at[f] = nrd + len(p_)
            return p_
        def gap():
            t, at, after = fill[0]
            return max(at - cnt[0], prev[0] + after - cnt[0], 0)
        def put():
            em(fill.pop(0)[0]); prev[0] = cnt[0]
        for n, (b, T, x, w) in enumerate(seq):
            while any(f not in loc or (f in done_at and done_at[f] > nrd) for f in (x, w)):
                if not pend: pend = take()
                em(pend.pop(0)); nrd += 1
            need = max(done_at.get(x, 0), done_at.get(w, 0))
            if need > waited:
                waited = max(need, nrd - opt("tw", 6)); em(f"s_waitcnt lgkmcnt({nrd - waited})")
            em(mf(b, T, loc[x], loc[w], qk))
            if n in marks: fill += [(t, cnt[0] + 8, after) for t, after in epi(*marks[n])]
            for f in (x, w):
                if last[f] == n: free.append(loc[f])
            if not pend and order and free: pend = take()
            if pend: em(pend.pop(0)); nrd += 1
            for _ in range(2):
                if fill and gap() == 0: put()
        a(st(3))
        while fill:
            g_ = gap()
            if g_: a(f"s_nop {g_ - 1}"); cnt[0] += g_
            put()

    EA, EB = 167, 151
    def cv(d, r): return [f"v_cvt_pk_bf16_f32 v{d}, v{r}, v{r+1}", f"v_cvt_pk_bf16_f32 v{d+1}, v{r+2}, v{r+3}"]
    def epi_qk(ph, jj=0):
        if ph < 0:
            return f"""s_mov_b32 s35, {HG}
            s_movk_i32 s38, 2560
            s_cmp_eq_u32 s22, 0
            s_cselect_b32 s35, {HQ}, s35
            s_cselect_b32 s27, {Q_OFF}, {KV_OFF}
            s_cselect_b32 s38, 1280, s38
            s_lshl_b32 s26, s20, 1
            s_add_u32 s26, s26, s37
            s_lshl_b32 s26, s26, 2
            s_mul_i32 s26, s26, s35
            s_add_u32 s26, s26, s27
            s_lshl_b32 s23, s21, 1
            s_add_u32 s23, s23, s36
            s_lshl_b32 s23, s23, 1
            s_mul_i32 s23, s23, s38
            s_add_u32 s26, s26, s23
            s_add_u32 s27, s26, s38
            v_lshrrev_b32 v{EA}, 4, v{L}
            v_mul_lo_u32 v{EA}, v{EA}, s35
            v_and_b32 v{TT}, 15, v{L}
            v_lshl_add_u32 v{EA}, v{TT}, 4, v{EA}
            v_lshlrev_b32 v{EB}, 4, v{L}
            s_add_u32 s44, s26, s35
            s_add_u32 s45, s27, s35
            s_add_u32 s46, s44, s35
            s_add_u32 s47, s45, s35
            s_add_u32 s32, s46, s35
            s_add_u32 s33, s47, s35""".split("\n")
        T = ph
        r0, r1 = acc(2 * jj, T), acc(2 * jj + 1, T)
        o = [(t, 0) for t in cv(r0, r0) + cv(r0 + 2, r1)]
        if T < 4:
            o += [(f"v_permlane16_swap_b32 v{r0}, v{r0+2}", 1), (f"v_permlane16_swap_b32 v{r0+1}, v{r0+3}", 0)]
            o.append((f"buffer_store_dwordx4 {vr(r0,4)}, v{EB}, s[28:31], s{(26, 44, 46, 32)[T] + jj} offen sc1", 0))
        else:
            o.append((f"buffer_store_dwordx4 {vr(r0,4)}, v{EA}, s[28:31], s{26 + jj} offen offset:1024 sc1", 0))
        return o
    def epi_v(ph, jj=0):
        if ph < 0:
            return f"""s_lshl_b32 s26, s20, 1
            s_add_u32 s26, s26, s37
            s_mul_i32 s26, s26, {4*HG}
            s_lshl_b32 s23, s21, 1
            s_add_u32 s23, s23, s36
            s_mul_i32 s23, s23, 5120
            s_add_u32 s26, s26, s23
            s_add_u32 s26, s26, {KV_OFF + 1280}
            s_add_u32 s44, s26, {HG}
            s_add_u32 s45, s26, {2*HG}
            s_add_u32 s46, s26, {3*HG}
            s_mov_b32 s35, {HG}
            v_lshrrev_b32 v{EA}, 5, v{L}
            v_mul_u32_u24 v{EA}, 640, v{EA}
            v_bfe_u32 v{TT}, v{L}, 4, 1
            v_lshl_add_u32 v{EB}, v{TT}, 6, v{EA}
            v_mul_u32_u24 v{TT}, 384, v{TT}
            v_add_u32 v{EA}, v{EA}, v{TT}
            v_and_b32 v{TT}, 15, v{L}
            v_lshl_add_u32 v{EA}, v{TT}, 4, v{EA}
            v_and_b32 v{TT}, 3, v{L}
            v_lshl_add_u32 v{EB}, v{TT}, 4, v{EB}
            v_bfe_u32 v{TT}, v{L}, 2, 2
            v_mul_lo_u32 v{TT}, v{TT}, s35
            v_add_u32 v{EB}, v{EB}, v{TT}""".split("\n")
        T = ph
        r0, r1 = acc(2 * jj, T), acc(2 * jj + 1, T)
        o = [(t, 0) for t in cv(r0, r0) + cv(r0 + 2, r1)]
        if T < 4: o.append((f"buffer_store_dwordx4 {vr(r0,4)}, v{EA}, s[28:31], s{(26, 44, 45, 46)[T]} offen offset:{2560 * jj} sc1", 0))
        else: o.append((f"buffer_store_dwordx4 {vr(r0,4)}, v{EB}, s[28:31], s26 offen offset:{2560 * jj + 256} sc1", 0))
        return o

    for qk, lab in ((True, "QK"), (False, "V")):
        a(f"P1_PRE_{lab}:")
        for f in (epi_qk if qk else epi_v)(-1): a(f)
        SEP = opt("sep", 0)
        if SEP and not qk: a("s_cmp_eq_u32 s22, 3\ns_cbranch_scc1 P1_LOOP_D")
        a(f"P1_LOOP_{lab}:")
        group(0, qk, patch=not SEP)
        if STAMP: a(f"s_cmp_lg_u32 s40, 0\ns_cbranch_scc1 P1_ST_{lab}\n{st(2)}\nP1_ST_{lab}:\ns_cmp_lg_u32 s40, 5\ns_cbranch_scc1 P1_SU_{lab}\n{st(1)}\nP1_SU_{lab}:")
        group(1, qk, patch=not SEP)
        a(f"s_cmp_lt_u32 s40, s43\ns_cbranch_scc1 P1_LOOP_{lab}")
        if not qk: a("s_cmp_eq_u32 s22, 3\ns_cbranch_scc1 P1_EPI_DFT")
        a("s_cmp_eq_u32 s12, 1\ns_cselect_b32 s30, 0, s30")
        tail(qk, epi_qk if qk else epi_v)
        a(f"s_cmp_eq_u32 s12, 0\ns_cbranch_scc1 P1_DONE\ns_mov_b32 s30, {WS_USED}\nv_mov_b32 v88, {LFB + 56}\nv_mov_b32 v89, 1")
        ladd(a, 88, 89, 0)
        a("s_setprio 3\ns_barrier")
        for T in range(5):
            for jj in range(2): a((epi_qk if qk else epi_v)(T, jj)[-1][0])
        a("s_branch P1_DONE")
    if SEP:
        a("P1_LOOP_D:"); group(0, False); group(1, False)
        a("s_cmp_lt_u32 s40, s43\ns_cbranch_scc1 P1_LOOP_D")
    a("P1_EPI_DFT:")
    group(0, False, reads=False)
    TAU, TAU0, E0 = 80, 81, 140
    a(f"""
    {st(3)}
    s_cmp_lt_u32 s20, 2
    s_cselect_b32 s38, 1.0, -1.0
    v_mov_b32 v{TAU}, s38
    v_cndmask_b32 v{TAU0}, v{TAU}, 1.0, s[24:25]
    s_lshl_b32 s26, s20, 1
    s_add_u32 s26, s26, s37
    s_mul_i32 s26, s26, 80
    v_and_b32 v88, 15, v{L}
    v_add_u32 v{E0}, s26, v88
    v_add_u32 v{E0+1}, 20, v{E0}
    v_add_u32 v{E0+2}, 40, v{E0}
    v_add_u32 v{E0+3}, 60, v{E0}
    v_and_b32 v89, 12, v{L}
    v_lshl_add_u32 v{E0+4}, v89, 2, v{E0}
    v_add_u32 v{E0+4}, 16, v{E0+4}
    s_lshl_b32 s23, s21, 1
    s_add_u32 s23, s23, s36
    s_cmp_lg_u32 s23, 0
    s_cbranch_scc1 P1_EPI_DFT2
    s_mov_b64 exec, 0xffff
    s_mov_b32 s27, {X512_OFF}
    """)
    for T in range(5):
        a(f"v_fma_f32 v{96+T}, v{acc(3,T)}, v{TAU0 if T == 0 else TAU}, v{acc(1,T)}")
        a(f"v_lshlrev_b32 v{104+T}, 2, v{E0+T}\nv_mov_b32 v{acc(1,T)}, 0\nv_mov_b32 v{acc(3,T)}, 0")
        a(f"buffer_store_dword v{96+T}, v{104+T}, s[28:31], s27 offen sc1")
    a(f"""
    s_mov_b64 exec, -1
P1_EPI_DFT2:
    s_lshl_b32 s26, s23, 9
    s_add_u32 s26, s26, {FE_OFF}
    s_mov_b32 s27, {FO_DELTA}
    v_bfe_u32 v88, v{L}, 4, 1
    v_mul_lo_u32 v88, v88, s27
    v_lshrrev_b32 v89, 5, v{L}
    v_lshl_add_u32 v88, v89, 8, v88
    """)
    for T in range(5):
        tau = TAU0 if T == 0 else TAU
        a0, a1, a2, a3 = (acc(b, T) for b in range(4))
        for q in range(4):
            a(f"v_fma_f32 v{a0+q}, v{a1+q}, v{tau}, v{a0+q}\nv_fma_f32 v{a3+q}, v{a2+q}, v{tau}, v{a3+q}")
        for q in range(4):
            a(f"v_add_f32 v{a1+q}, v{a0+q}, v{a3+q}\nv_sub_f32 v{a2+q}, v{a0+q}, v{a3+q}")
        a0 = 120 + 4 * T
        for f in cv(a0, a1) + cv(a0 + 2, a2): a(f)
        a(f"""
        v_lshrrev_b32 v89, 4, v{E0+T}
        v_lshl_add_u32 v89, v89, 14, v88
        v_and_b32 v{E0+T}, 15, v{E0+T}
        v_lshl_add_u32 v{E0+T}, v{E0+T}, 4, v89
        v_permlane16_swap_b32 v{a0}, v{a0+2}
        v_permlane16_swap_b32 v{a0+1}, v{a0+3}
        """)
    a(f"v_mov_b32 v88, {LFB + 56}\nv_mov_b32 v89, 1\ns_mov_b32 s12, {opt('dnu', 1)}")
    ladd(a, 88, 89, 0)
    if opt("dnu", 1): a("s_setprio 3\ns_barrier")
    for T in range(5): a(f"buffer_store_dwordx4 {vr(120+4*T,4)}, v{E0+T}, s[28:31], s26 offen sc1")
    a(f"""
P1_DONE:
    {st(14)}
    s_mov_b32 s34, 1
    s_cmp_eq_u32 s12, 1
    s_cbranch_scc1 ATT
    s_mov_b32 s34, 0
    v_mov_b32 v84, 1
    v_mov_b32 v85, 1
    v_mov_b32 v86, 1
    v_mov_b32 v87, 1
    v_mov_b32 v88, {LFB + 44}
    v_mov_b32 v89, 0
    s_and_b32 s23, s15, -128
    s_mov_b64 exec, 1
    s_waitcnt vmcnt(0)
    ds_add_rtn_u32 v88, v88, v84
    s_waitcnt lgkmcnt(0)
    v_cmp_eq_u32 vcc, 3, v88
    s_cbranch_vccz P1_NS
    buffer_store_dwordx4 v[84:87], v89, s[28:31], s23 offen sc1
P1_NS:
    s_mov_b64 exec, -1
    s_branch ATT
    """)

def p1_extra(a):
    T0 = 40
    a(f"""
P1_EXTRA:
    s_sub_u32 s61, s16, 8
    """)
    if opt("cwarm", 1):
        a(f"""
        s_cmp_lg_u32 s16, 10
        s_cbranch_scc1 P1_NOCW
        s_lshl_b32 s23, s18, 10
        s_cmp_ge_u32 s23, L_CODE_END - {NAME}_kernel - 1023
        s_cbranch_scc1 P1_NOCW
        s_getpc_b64 s[44:45]
L_PC:
        s_sub_u32 s44, s44, L_PC - {NAME}_kernel
        s_subb_u32 s45, s45, 0
        v_lshl_add_u32 v40, v0, 4, s23
        global_load_dwordx4 v[44:47], v40, s[44:45]
P1_NOCW:
        """)
    a(f"""
    v_lshrrev_b32 v37, 4, v0
    v_and_b32 v38, 15, v0
    v_lshlrev_b32 v39, 4, v0
    v_mov_b32 v36, v0
    s_waitcnt lgkmcnt(0)
    {srd(28, WS_P, WS_USED)}
    {srd(32, DBG_P, 256)}
    s_cmp_lg_u32 s61, 0
    s_cbranch_scc1 P1_EX_A
    v_mov_b32 v1, 0
    v_lshlrev_b32 v2, 2, v0
    v_add_u32 v2, {LFB}, v2
    ds_write_b32 v2, v1
    s_waitcnt lgkmcnt(0)
    s_cmp_lt_u32 s2, 248
    s_cbranch_scc1 P1_EX_WAITRDY
    v_mov_b32 v4, 0
    v_mov_b32 v5, 0
    v_mov_b32 v6, 0
    v_mov_b32 v7, 0
    s_lshl_b32 s23, s17, 12
    s_add_u32 s23, s23, {FLG_OFF}
    buffer_store_dwordx4 v[4:7], v39, s[28:31], s23 offen sc1
    buffer_store_dwordx4 v[4:7], v39, s[28:31], s23 offen offset:1024 sc1
    buffer_store_dwordx4 v[4:7], v39, s[28:31], s23 offen offset:2048 sc1
    buffer_store_dwordx4 v[4:7], v39, s[28:31], s23 offen offset:3072 sc1
    s_lshl_b32 s23, s17, 7
    s_add_u32 s23, s23, {FLG_OFF + 32768}
    s_mov_b64 exec, 0xff
    buffer_store_dwordx4 v[4:7], v39, s[28:31], s23 offen sc1
    s_mov_b64 exec, -1
P1_EX_WAITRDY:
P1_EX_A:
    s_lshl_b32 s23, s2, 2
    s_add_u32 s23, s23, s61
    s_mov_b32 s40, 0
P1_TBL:
    s_lshr_b32 s24, s23, 5
    s_and_b32 s25, s23, 30
    s_and_b32 s26, s24, 1
    s_lshr_b32 s27, s24, 1
    s_lshl_b32 s27, s27, 6
    s_add_u32 s27, s27, s26
    s_and_b32 s26, s23, 1
    s_lshl_b32 s26, s26, 5
    s_add_u32 s27, s27, s26
    v_lshl_add_u32 v{T0}, v38, 1, s27
    s_lshl_b32 s25, s25, 4
    v_lshl_add_u32 v{T0+1}, v37, 3, s25
    v_mul_u32_u24 v{T0+1}, v{T0}, v{T0+1}
    v_and_b32 v{T0+1}, 0x7ff, v{T0+1}
    v_cvt_f32_u32 v{T0}, v{T0}
    v_cvt_f32_u32 v{T0+1}, v{T0+1}
    v_mul_f32 v{T0}, 0x3a000000, v{T0}
    v_mul_f32 v0, 0x3a000000, v{T0+1}
    """)
    for u in range(1, 8): a(f"v_add_f32 v{u}, v{u-1}, v{T0}")
    for u in range(1, 8): a(f"v_fract_f32 v{u}, v{u}")
    for u in range(8): a(f"v_cos_f32 v{8+u}, v{u}")
    for u in range(8): a(f"v_sin_f32 v{16+u}, v{u}")
    for j in range(4): a(f"v_cvt_pk_bf16_f32 v{24+j}, v{8+2*j}, v{9+2*j}")
    for j in range(4): a(f"v_cvt_pk_bf16_f32 v{28+j}, v{16+2*j}, v{17+2*j}")
    NB0 = opt("tblbar", 2)
    a(f"""
    s_cmp_lg_u32 s40, 0
    s_cbranch_scc1 P1_TBL_ST
    s_barrier
    {st(1, True)}
    s_cmp_lg_u32 s61, 0
    s_cbranch_scc1 P1_EX_NR
    s_cmp_lt_u32 s2, 248
    s_cbranch_scc1 P1_EX_NR
    v_mov_b32 v32, 1
    v_mov_b32 v33, 0
    s_lshl_b32 s24, s17, 2
    s_waitcnt vmcnt(0)
    s_mov_b64 exec, 1
    buffer_store_dword v32, v33, s[32:35], s24 offen sc1
    s_mov_b64 exec, -1
P1_EX_NR:
    """ + "".join(f"s_barrier\n{st(1 + b_, True)}\n" for b_ in range(1, NB0)) + f"""
    s_mov_b32 s40, 1
P1_TBL_ST:
    s_lshl_b32 s24, s23, 11
    s_add_u32 s24, s24, {TB_OFF}
    buffer_store_dwordx4 v[24:27], v39, s[28:31], s24 offen sc1
    buffer_store_dwordx4 v[28:31], v39, s[28:31], s24 offen offset:1024 sc1
    s_add_u32 s23, s23, 1024
    s_cmp_lt_u32 s23, 1056
    s_cbranch_scc1 P1_TBL
    """)
    nb = NB0
    assert nb <= 6
    a("".join(f"s_barrier\n{st(1 + b_, True)}\n" for b_ in range(nb, 6)))
    u = a.uid()
    a(f"""
    v_and_b32 v1, 7, v36
    v_lshlrev_b32 v1, 2, v1
    v_mov_b32 v2, 1
    s_mov_b32 s60, 0
    s_cmp_lg_u32 s61, 0
    s_cbranch_scc1 P1_EX_C
    buffer_load_dword v2, v1, s[32:35], 0 offen sc1
P1_EX_C:
    s_barrier
    {st(7, True)}
    s_barrier
    {st(8, True)}
L_RDY{u}:
    s_waitcnt vmcnt(0)
    v_cmp_eq_u32 vcc, 0, v2
    s_cbranch_vccz P1_EX_B
    s_sleep 1
    buffer_load_dword v2, v1, s[32:35], 0 offen sc1
    s_add_u32 s60, s60, 1
    s_cmp_lt_u32 s60, 0x40000
    s_cbranch_scc1 L_RDY{u}
P1_EX_B:
    s_waitcnt vmcnt(0)
    s_barrier
    {st(9, True)}
    s_barrier
    {st(10, True)}
    s_mov_b32 s34, 0
    """)

def attention(a):
    O = 0; S = [16, 32, 120, 136]; IX = 114; P = 48; Q1 = 56; Q2 = 60; K2 = 62; K1 = 64; V1 = 68; V2 = [72, 76]; T = 80
    a(f"""
ATT:
    s_cmp_lt_u32 s13, 4
    s_cselect_b32 s32, {opt("o1", 5)}, {opt("y1", 6)}
    s_cselect_b32 s33, {opt("o2", 8)}, {opt("y2", 8)}
    s_movk_i32 s35, 0x106
    s_bitset1_b32 s35, s32
    s_bitset1_b32 s35, s33
    s_mov_b32 s24, 0xfffff
    s_mov_b32 s25, 0xfffff
    s_mul_i32 s27, s13, 1280
    v_mov_b32 v{Q2+1}, 0
    v_mov_b32 v{K2+1}, 0x3f803f80
    v_add_u32 v{T}, s27, v{AK1}
    v_add_u32 v{T+1}, s27, v{AK2}
    v_mov_b32 v{T+2}, 1
    """)
    NQ = opt("nq", 2)
    OX = [84, O]; QX1 = [100, Q1]; QX2 = [104, Q2]; U = 106; TM = 120; XS = 107520
    if NQ == 2:
        a(f"""
        s_xor_b32 s36, s13, 1
        s_mul_i32 s27, s36, 1280
        v_add_u32 v{U}, s27, v{AK1}
        v_add_u32 v{U+1}, s27, v{AK2}
        v_mov_b32 v{U+2}, v{AK1}
        v_mov_b32 v{U+3}, v{AK2}
        v_mov_b32 v{QX2[0]+1}, 0
        s_and_b32 s37, s13, 1
        s_mul_i32 s37, s37, 2560
        v_and_b32 v{U+4}, 0x70, v{VA}
        v_lshrrev_b32 v{U+4}, 2, v{U+4}
        v_add_u32 v{U+4}, {LFB}, v{U+4}
        s_lshl_b32 s23, s13, 12
        s_add_u32 s23, s23, {XS}
        v_add_u32 v{U+5}, s23, v{VA}
        v_xor_b32 v{U+7}, 4, v{PA}
        s_lshl_b32 s23, s36, 12
        s_add_u32 s23, s23, {XS}
        v_add_u32 v{U+6}, s23, v{VA}
        s_lshr_b32 s38, s13, 2
        s_add_u32 s38, s38, 7
        """)
        for r in (AK1, AK2, AV, BK1, BK2, BV): a(f"v_add_u32 v{r}, s37, v{r}")
        for r in range(16): a(f"v_mov_b32 v{OX[0]+r}, 0")
    for r in range(12): a(f"v_mov_b32 v{V1+r}, v{ONES}")
    for r in range(16): a(f"v_mov_b32 v{O+r}, 0")
    for r in range(4): a(f"v_mov_b32 v{P+r}, -1")
    for r in range(8): a(f"v_mov_b32 v{S[3]+8+r}, 0")
    a(f"v_mov_b32 v{IX}, 0xdddddddd")
    def rk1(d): return f"v_mfma_f32_32x32x8_bf16 {vr(d,16)}, {vr(K2,2)}, {vr(Q2,2)}, 0"
    def rk2(d): return f"v_mfma_f32_32x32x16_bf16 {vr(d,16)}, {vr(K1,4)}, {vr(Q1,4)}, {vr(d,16)}"
    def qk1(d): return f"v_mfma_f32_32x32x16_bf16 {vr(d,16)}, {vr(K1,4)}, {vr(Q1,4)}, 0"
    def qk2(d): return f"v_mfma_f32_32x32x8_bf16 {vr(d,16)}, {vr(K2,2)}, {vr(Q2,2)}, {vr(d,16)}"
    def pv(v, p): return f"v_smfmac_f32_32x32x32_bf16 {vr(O,16)}, {vr(v,4)}, {vr(p,8)}, v{IX}"
    def of(t): return (t - 6 if t in (6, 7) else t) * 2560
    def rdk1(t): return f"ds_read_b128 {vr(K1,4)}, v{BK1 if t in (6, 7) else AK1} offset:{of(t)}"
    def rdk2(t): return f"ds_read_b32 v{K2}, v{BK2 if t in (6, 7) else AK2} offset:{of(t)+1024}"
    def rdv(t, v2):
        b = BV if t in (6, 7) else AV
        return f"s_mov_b64 exec, s[24:25]\nds_read_b128 {vr(V1,4)}, v{b} offset:{of(t)+1280}\nds_read_b128 {vr(v2,4)}, v{b} offset:{of(t)+1920}\ns_mov_b64 exec, -1"
    def maxtree(s, m, first):
        if first:
            a(f"v_max3_f32 v{m}, v{s}, v{s+1}, v{s+2}\nv_max3_f32 v{m+1}, v{s+3}, v{s+4}, v{s+5}")
            for j in range(6, 14, 4): a(f"v_max3_f32 v{m}, v{s+j}, v{s+j+1}, v{m}\nv_max3_f32 v{m+1}, v{s+j+2}, v{s+j+3}, v{m+1}")
            a(f"v_max3_f32 v{m}, v{s+14}, v{s+15}, v{m}\nv_max_f32 v{m}, v{m}, v{m+1}")
        else:
            for j in range(0, 16, 2): a(f"v_max3_f32 v{m}, v{s+j}, v{s+j+1}, v{m}")
    def xhalf(m):
        a(f"v_mov_b32 v{m+1}, v{m}\ns_nop 1\nv_permlane32_swap_b32 v{m}, v{m+1}\ns_nop 0\nv_max_f32 v{m}, v{m}, v{m+1}")
    a(f"""
    s_cmp_lg_u32 s34, 1
    s_cbranch_scc1 ATT_NOSIG
    """)
    if opt("comb", 1):
        a(f"""
        v_mov_b32 v{T+3}, {LFB + 44}
        s_and_b32 s23, s15, -128
        s_mov_b64 exec, 1
        s_waitcnt vmcnt(0)
        ds_add_rtn_u32 v{T+3}, v{T+3}, v{T+2}
        s_waitcnt lgkmcnt(0)
        v_cmp_eq_u32 vcc, 3, v{T+3}
        s_cbranch_vccz ATT_NOSIG
        buffer_store_dwordx4 {vr(P,4)}, v{O}, s[28:31], s23 offen sc1
        """)
    else:
        a(f"s_waitcnt vmcnt(0)\ns_mov_b64 exec, 1\nbuffer_store_dword v{T+2}, v{O}, s[28:31], s15 offen sc1")
    a(f"""
ATT_NOSIG:
    s_mov_b64 exec, -1
    {st(4)}
    s_and_b32 s23, s34, s12
    s_cbranch_scc1 ATT_NOP
    s_barrier
ATT_NOP:
    s_setprio 3
    {st(6)}
    """)
    def e(s, j): return f"v_exp_f32 v{s+j}, v{s+j}"
    def c(s, j): return f"v_cvt_pk_bf16_f32 v{P+j}, v{s+2*j}, v{s+2*j+1}"
    if NQ == 2:
        def xk1(x, d=None): return f"v_mfma_f32_32x32x16_bf16 {vr(S[x if d is None else d],16)}, {vr(K1,4)}, {vr(QX1[x],4)}, 0"
        def xk2(x, d=None): return f"v_mfma_f32_32x32x8_bf16 {vr(S[x if d is None else d],16)}, {vr(K2,2)}, {vr(QX2[x],2)}, {vr(S[x if d is None else d],16)}"
        def xpv(x, v, p): return f"v_smfmac_f32_32x32x32_bf16 {vr(OX[x],16)}, {vr(v,4)}, {vr(p,8)}, v{IX}"
        def scale(x):
            for j in range(5): a(f"v_lshlrev_b32 v{TM+2*j}, 16, v{QX1[x]+j}\nv_and_b32 v{TM+2*j+1}, 0xffff0000, v{QX1[x]+j}")
            for j in range(10): a(f"v_mul_f32 v{TM+j}, {QSCALE:#x}, v{TM+j}")
            for j in range(5): a(f"v_cvt_pk_bf16_f32 v{QX1[x]+j}, v{TM+2*j}, v{TM+2*j+1}")
        MH = f32bits(-0.5 * (20 ** -0.5) * math.log2(math.e))
        a(f"""
        ds_read_b128 {vr(K1,4)}, v{U+2}
        ds_read_b32 v{K2}, v{U+3} offset:1024
        ds_read_b128 {vr(QX1[0],4)}, v{U} offset:{QLDS}
        ds_read_b32 v{QX2[0]}, v{U+1} offset:{QLDS+1024}
        ds_read_b128 {vr(Q1,4)}, v{T} offset:{QLDS}
        ds_read_b32 v{Q2}, v{T+1} offset:{QLDS+1024}
        {rdv(0, V2[0])}
        s_waitcnt lgkmcnt(4)
        {xk1(0)}
        {xk2(0)}
        s_waitcnt lgkmcnt(2)
        {xk1(1)}
        {xk2(1)}
        {rdk1(0)}
        {rdk2(0)}
        s_mov_b32 s26, 0
        """)
        scale(0)
        maxtree(S[0], T, True); xhalf(T)
        a(f"v_mul_f32 v{T}, {MH:#x}, v{T}\nv_cvt_pk_bf16_f32 v{QX2[0]+1}, v{T}, 0\ns_waitcnt lgkmcnt(0)\n{xk1(0)}\n{xk2(0)}")
        scale(1)
        maxtree(S[1], T, True); xhalf(T)
        a(f"""
        v_mul_f32 v{T}, {MH:#x}, v{T}
        v_cvt_pk_bf16_f32 v{Q2+1}, v{T}, 0
        {xk1(1)}
        {rdk1(2)}
        buffer_store_dwordx4 {vr(P,4)}, v{OA1}, s[28:31], s6 offen sc1
        s_mov_b64 exec, 0xffff
        buffer_store_dwordx4 {vr(P,4)}, v{OA2}, s[28:31], s7 offen sc1
        s_mov_b64 exec, -1
        {st(7)}
ATT_LOOP:
        """)
        for i in range(4):
            for x in (0, 1):
                SP = {0: (4, 8, 12), 1: (5, 8, 13), 2: (4, 7, 11), 3: (5, 9, 13)}[opt('sp', 1)]
                n = 2 * i + x; cur = S[n % 4]; y = 1 - x; t_ = 2 * (i + 1)
                if x == 1: a("s_waitcnt lgkmcnt(0)")
                a(xk2(y, (n + 1) % 4))
                if x == 0: a(rdk2(t_))
                for q in range(SP[0]): a(e(cur, q))
                a(xpv(y, V2[(i + 1) % 2] if x == 0 else V2[i % 2], S[(n - 1) % 4] + 8))
                if x == 0: a("s_waitcnt lgkmcnt(1)")
                if x == 1 and i == 1: a(f"ds_write_b32 v{PA}, v{T+2}")
                if x == 1 and i == 3: a(f"ds_read_b32 v{U}, v{U+4}")
                for q in range(SP[0], SP[1]): a(e(cur, q))
                a(xk1(x, (n + 2) % 4))
                if x == 1: a(rdk1(t_ + 2))
                for q in range(SP[1], SP[2]): a(e(cur, q))
                a(xpv(x, V1, cur))
                if x == 1: a(rdv(t_, V2[(i + 1) % 2]))
                for q in range(SP[2], 16): a(e(cur, q))
    a(f"""
    s_add_u32 s26, s26, 1
    s_movk_i32 s27, 0x5000
    s_cmp_eq_u32 s26, 7
    s_cselect_b32 s27, {(0x5000 - 62 * 2560) & 0xffffffff}, s27
    v_add_u32 v{AK1}, 0x5000, v{AK1}
    v_add_u32 v{AK2}, 0x5000, v{AK2}
    v_add_u32 v{AV}, 0x5000, v{AV}
    v_add_u32 v{BK1}, s27, v{BK1}
    v_add_u32 v{BK2}, s27, v{BK2}
    v_add_u32 v{BV}, s27, v{BV}
    v_add_u32 v{T+2}, 1, v{T+2}
    s_bitcmp1_b32 s35, s26
    s_cbranch_scc0 ATT_LOOP
    s_cmp_gt_u32 s26, 2
    s_cbranch_scc1 ATT_EV
    v_add_u32 v{FA}, 8, v{FA}
    s_waitcnt vmcnt(0)
ATT_WAIT:
    ds_read_b32 v{T}, v{FA}
    s_waitcnt lgkmcnt(0)
    v_readfirstlane_b32 s23, v{T}
    s_cmp_ge_u32 s23, 4
    s_cbranch_scc1 ATT_LOOP
    s_sleep 1
    s_branch ATT_WAIT
ATT_EV:
    s_setprio 2
    s_cmp_eq_u32 s26, s32
    s_cbranch_scc1 ATT_LOOP
    s_setprio 1
    s_cmp_lt_u32 s26, 8
    s_cbranch_scc1 ATT_LOOP
    s_setprio 3
    {pv(V2[1], S[3]+8)}
    {st(8)}
    """)
    if NQ == 2:
        a(f"""
        s_mov_b32 s27, 0x3e800000
        s_mov_b32 s23, 0x71800000
        s_waitcnt lgkmcnt(3)
        v_cmp_gt_u32 vcc, s38, v{U}
        s_cbranch_vccz ATT_X0
ATT_X1:
        s_sleep 2
        ds_read_b32 v{U}, v{U+4}
        s_waitcnt lgkmcnt(0)
        v_cmp_gt_u32 vcc, s38, v{U}
        s_cbranch_vccnz ATT_X1
ATT_X0:
        """)
        for j in range(3): a(f"ds_write_b128 v{U+5}, {vr(OX[0]+4*j,4)} offset:{1024*j}")
        a(f"ds_write_b64 v{U+5}, {vr(OX[0]+12,2)} offset:3072\nds_write_b32 v{PA}, v{T+2} offset:96\nATT_X2:\nds_read_b32 v{U}, v{U+7} offset:96")
        for j in range(3): a(f"ds_read_b128 {vr(S[0]+4*j,4)}, v{U+6} offset:{1024*j}")
        a(f"ds_read_b64 {vr(S[0]+12,2)}, v{U+6} offset:3072\ns_waitcnt lgkmcnt(0)\nv_cmp_eq_u32 vcc, 0, v{U}\ns_cbranch_vccz ATT_X3\ns_sleep 1\ns_branch ATT_X2\nATT_X3:\ns_nop 1")
        for r in range(0, 14, 2): a(f"v_pk_add_f32 {vr(O+r,2)}, {vr(O+r,2)}, {vr(S[0]+r,2)}")
    else:
        a("s_mov_b32 s27, 0x3e800000\ns_mov_b32 s23, 0x71800000\ns_nop 9")
    a(f"v_rcp_f32 v{T+2}, v{O+12}\nv_add_f32 v{T}, |v{O}|, |v{O+1}|\nv_add_f32 v{T+1}, |v{O+2}|, |v{O+3}|")
    for j in range(4, 12, 2): a(f"v_add_f32 v{T}, |v{O+j}|, v{T}\nv_add_f32 v{T+1}, |v{O+j+1}|, v{T+1}")
    a(f"""
    v_add_f32 v{T}, v{T}, v{O+12}
    v_cmp_le_f32 s[42:43], s27, v{O+12}
    v_add_f32 v{T}, v{T}, v{T+1}
    v_cmp_gt_f32 vcc, s23, v{T}
    s_and_b64 vcc, vcc, s[42:43]
    s_cmp_eq_u64 vcc, -1
    s_cbranch_scc0 ATT_FALLBACK
ATT_FINISH:
    """)
    for j in range(0, 8, 2): a(f"v_pk_mul_f32 {vr(O+j,2)}, {vr(O+j,2)}, {vr(T+2,2)} op_sel_hi:[1,0]")
    for j in range(4): a(f"v_cvt_pk_bf16_f32 v{P+j}, v{O+2*j}, v{O+2*j+1}")
    for j in range(4): a(f"v_min_u32 v{P+j}, -2, v{P+j}")
    a(f"buffer_store_dwordx4 {vr(P,4)}, v{OA1}, s[28:31], s6 offen sc1")
    for j in range(8, 12, 2): a(f"v_pk_mul_f32 {vr(O+j,2)}, {vr(O+j,2)}, {vr(T+2,2)} op_sel_hi:[1,0]")
    for j in range(4, 6): a(f"v_cvt_pk_bf16_f32 v{P+j}, v{O+2*j}, v{O+2*j+1}")
    for j in range(4, 6): a(f"v_min_u32 v{P+j}, -2, v{P+j}")
    a(f"""
    s_nop 1
    v_permlane16_swap_b32 v{P+4}, v{P+6}
    v_permlane16_swap_b32 v{P+5}, v{P+7}
    s_mov_b64 exec, 0xffff
    buffer_store_dwordx4 {vr(P+4,4)}, v{OA2}, s[28:31], s7 offen sc1
    {st(9)}
    s_cmp_ge_u32 s13, 4
    s_cbranch_scc1 {"L_DONE" if STAMP else "L_END"}
    s_mov_b64 exec, -1
    s_xor_b32 s41, s13, {opt('gx', 2)}
    s_mov_b32 s47, 1
    s_branch P3_GO
    """)
    def gk(): return f"buffer_load_dwordx4 {vr(K1,4)}, v{AK1}, s[28:31], s23 offen sc1\nbuffer_load_dword v{K2}, v{AK2}, s[28:31], s23 offen offset:1024 sc1"
    a(f"""
ATT_FALLBACK:
    s_waitcnt lgkmcnt(0)
    v_mov_b32 v{Q2+1}, 0
    v_mov_b32 v{T}, 0xff800000
    {f's_add_u32 s23, s37, {HS}' if NQ == 2 else f's_mov_b32 s23, {HS}'}
    v_subrev_u32 v{AK1}, s23, v{AK1}
    v_subrev_u32 v{AK2}, s23, v{AK2}
    v_subrev_u32 v{AV}, s23, v{AV}
    s_add_u32 s23, s14, {KV_OFF}
    s_mov_b32 s26, 0
ATT_FB1:
    {gk()}
    s_add_u32 s23, s23, 2560
    s_waitcnt vmcnt(0)
    {qk1(S[0])}
    {qk2(S[0])}
    s_nop 15
    """)
    maxtree(S[0], T, False)
    a("s_add_u32 s26, s26, 1\ns_cmp_lt_u32 s26, 64\ns_cbranch_scc1 ATT_FB1")
    xhalf(T)
    a(f"s_add_u32 s23, s14, {KV_OFF}\ns_mov_b32 s26, 0")
    for r in range(16): a(f"v_mov_b32 v{O+r}, 0")
    a(f"""
ATT_FB2:
    {gk()}
    s_mov_b64 exec, s[24:25]
    buffer_load_dwordx4 {vr(V1,4)}, v{AV}, s[28:31], s23 offen offset:1280 sc1
    buffer_load_dwordx4 {vr(V2[0],4)}, v{AV}, s[28:31], s23 offen offset:1920 sc1
    s_mov_b64 exec, -1
    s_add_u32 s23, s23, 2560
    s_waitcnt vmcnt(0)
    {qk1(S[0])}
    {qk2(S[0])}
    s_nop 15
    """)
    for q in range(16): a(f"v_sub_f32 v{S[0]+q}, v{S[0]+q}, v{T}")
    for q in range(16): a(e(S[0], q))
    a(f"""
    s_nop 1
    {pv(V1, S[0])}
    {pv(V2[0], S[0]+8)}
    s_add_u32 s26, s26, 1
    s_cmp_lt_u32 s26, 64
    s_cbranch_scc1 ATT_FB2
    s_nop 15
    s_nop 3
    v_rcp_f32 v{T+2}, v{O+12}
    s_nop 0
    s_branch ATT_FINISH
    """)

def lwait(a, vaddr, vdat, mask, target, slp=8):
    u = a.uid()
    a(f"""
    s_mov_b64 exec, {mask}
    s_branch L_LWE{u}
L_LW{u}:
    s_sleep {slp}
L_LWE{u}:
    ds_read_b32 v{vdat}, v{vaddr}
    s_waitcnt lgkmcnt(0)
    v_cmp_gt_u32 vcc, {target}, v{vdat}
    s_cbranch_vccnz L_LW{u}
    s_mov_b64 exec, -1
    """)
def ladd(a, vaddr, vone, off):
    a(f"s_mov_b64 exec, 1\nds_add_u32 v{vaddr}, v{vone} offset:{off}\ns_mov_b64 exec, -1")

def helpers(a):
    WA, VG, VZ, SH, HPA, HONE, YFA, FZ, SG, XA5, LF = 112, 117, 118, 119, 120, 121, 122, 123, 124, 125, 126
    ZL = 40; G = 167; VY = 162; T = 132; LT = 127
    a(f"""
HELPER:
    s_mov_b32 s61, s22
    {st(2)}
    {srd(28, WS_P, WS_USED)}
    s_setprio 0
    s_lshr_b32 s20, s18, 2
    s_mul_i32 s26, s20, 160
    s_movk_i32 s23, {1280 - 160}
    """)
    for i in range(5):
        a(f"""
        v_add_u32 v{T}, {64*i}, v0
        v_mul_u32_u24 v{T+1}, 6554, v{T}
        v_lshrrev_b32 v{T+1}, 16, v{T+1}
        v_lshlrev_b32 v{T}, 4, v{T}
        v_mad_u32_u24 v{WA+i}, v{T+1}, s23, v{T}
        """)
    a(f"""
    s_lshl_b32 s21, s17, 3
    s_and_b32 s22, s18, 3
    s_add_u32 s21, s21, s22
    s_lshr_b32 s22, s16, 1
    s_lshl_b32 s22, s22, 2
    s_add_u32 s21, s21, s22
    s_lshl_b32 s21, s21, 1
    s_and_b32 s22, s16, 1
    s_add_u32 s21, s21, s22
    s_lshr_b32 s22, s21, 2
    s_lshl_b32 s22, s22, 1
    s_and_b32 s24, s21, 1
    s_add_u32 s22, s22, s24
    s_lshl_b32 s22, s22, 3
    v_and_b32 v{T}, 7, v0
    v_add_u32 v{T}, s22, v{T}
    s_bitcmp1_b32 s21, 1
    s_cselect_b32 s22, 0x400, 0
    s_cselect_b32 s24, -1, 1
    v_mul_lo_u32 v{T+1}, v{T}, s24
    s_sub_u32 s24, 0x800, s22
    v_sub_u32 v{T+2}, s24, v{T+1}
    v_add_u32 v{T+1}, s22, v{T+1}
    v_and_b32 v{T+3}, 8, v0
    v_cmp_ne_u32 vcc, 0, v{T+3}
    v_cmp_eq_u32 s[42:43], 0, v{T}
    v_lshlrev_b32 v{T+3}, 6, v{T+3}
    v_add_u32 v{T+3}, s22, v{T+3}
    v_cndmask_b32 v{T}, v{T+1}, v{T+2}, vcc
    v_lshrrev_b32 v{T+1}, 4, v0
    v_cndmask_b32 v{T}, v{T}, v{T+3}, s[42:43]
    v_mul_u32_u24 v{VY}, 1280, v{T}
    v_mul_u32_u24 v{T+2}, 40, v{T+1}
    v_add3_u32 v{VY}, v{VY}, v{T+2}, s26
    v_lshlrev_b32 v{VG}, 2, v{T}
    v_sub_u32 v{T+3}, 0x800, v{T}
    v_cmp_lt_u32 vcc, 0x400, v{T}
    v_min_u32 v{T}, v{T}, v{T+3}
    v_and_b32 v{T+3}, 1, v{T}
    v_mul_u32_u24 v{VZ}, {ZP}, v{T+3}
    v_lshrrev_b32 v{T+3}, 1, v{T}
    v_lshl_add_u32 v{VZ}, v{T+3}, 4, v{VZ}
    v_mov_b32 v{T+3}, 0x02020202
    v_cndmask_b32 v{SH}, 0, v{T+3}, vcc
    s_cmp_ge_u32 s20, 4
    s_mov_b32 s24, 0x05040100
    s_cselect_b32 s24, 0x07060302, s24
    s_cselect_b32 s40, -1, 1
    s_cselect_b32 s41, 155, 0
    v_xor_b32 v{SH}, s24, v{SH}
    s_mul_i32 s24, s20, 20
    v_mul_u32_u24 v{T+3}, 5, v{T+1}
    v_add_u32 v{T+3}, s24, v{T+3}
    v_mul_lo_u32 v{T+3}, v{T+3}, s40
    v_add_u32 v{T+3}, s41, v{T+3}
    v_mul_u32_u24 v{T+3}, {2*ZP}, v{T+3}
    v_add_u32 v{VZ}, v{VZ}, v{T+3}
    {p3_addr(0)}
    v_lshlrev_b32 v{HPA}, 2, v0
    v_add_u32 v{HPA}, {LFB}, v{HPA}
    v_mov_b32 v{HONE}, 1
    s_lshl_b32 s23, s2, 2
    s_add_u32 s23, s23, {FLG_OFF + 32768}
    v_mov_b32 v{YFA}, s23
    v_lshrrev_b32 v{FZ}, 4, v0
    v_mul_u32_u24 v{FZ}, {2*ZP}, v{FZ}
    v_and_b32 v{T}, 15, v0
    v_lshl_add_u32 v{FZ}, v{T}, 4, v{FZ}
    v_lshlrev_b32 v{SG}, 31, v0
    v_and_b32 v{XA5}, 48, v0
    v_lshlrev_b32 v{LF}, 7, v0
    v_bfe_u32 v{LT}, v0, 1, 2
    v_lshlrev_b32 v{LT}, 13, v{LT}
    v_and_b32 v{T}, 1, v0
    v_lshl_add_u32 v{LT}, v{T}, 7, v{LT}
    s_setprio 3
    s_lshr_b32 s19, s18, 3
    s_lshl_b32 s23, s17, 2
    s_add_u32 s19, s19, s23
    s_and_b32 s62, s18, 7
    s_mul_i32 s21, s19, {HG}
    v_lshlrev_b32 v1, 4, v0
    {st(3)}
    s_lshr_b32 s23, s19, 3
    s_lshl_b32 s23, s23, 13
    s_add_u32 s23, s23, {FLG_OFF}
    v_lshlrev_b32 v2, 7, v0
    v_add_u32 v2, s23, v2
    s_add_u32 s24, s21, {KV_OFF}
    s_lshl_b32 s40, 0x10000, s16
    s_lshl_b32 s41, 1, s16
    s_mul_i32 s22, s16, 10240
    s_add_u32 s26, s24, s22
    s_cmp_lg_u32 s16, 3
    s_cbranch_scc1 H_JA
    s_lshl_b32 s25, s62, 1
    s_lshl_b32 s40, 3, s25
    s_mov_b32 s41, 0
    s_mov_b32 s22, {QLDS}
    s_mul_i32 s26, s19, {HQ}
    s_mul_i32 s25, s62, 10240
    s_add_u32 s26, s26, s25
    s_add_u32 s26, s26, {Q_OFF}
H_JA:
    """)
    def job():
        r = f"s_add_u32 s25, s22, 5120\ns_cmp_ge_u32 s25, {LFB}\ns_cselect_b32 s25, 0, s25\n"
        for n in range(10):
            if n in (0, 3): r += f"s_add_u32 m0, s22, {1024*n}\ns_add_u32 s27, s26, {1024*n}\n"; o = 0
            if n in (5, 8): r += f"s_add_u32 m0, s25, {1024*(n-5)}\ns_add_u32 s27, s26, {1024*n}\n"; o = 0
            r += f"buffer_load_dwordx4 v1, s[28:31], s27 offen offset:{o} sc1 lds\n"; o += 1024
        return r
    if opt("latep", 1):
        a(f"s_mul_i32 s23, s12, 12\ns_cmp_eq_u32 s61, 3\ns_cselect_b32 s23, 12, s23\ns_add_u32 s23, s23, {LFB + 44}\nv_mov_b32 v3, s23")
        lwait(a, 3, 4, 1, 4, 2)
        if opt("lps", 0): a(f"s_sleep {opt('lps', 0)}")
    poll4(a, 2, 4, "s[40:41]")
    a(st(11)); a(job())
    a(f"""
    s_lshl_b32 s40, 0x80000, s16
    s_lshl_b32 s41, 8, s16
    s_add_u32 s22, s16, 3
    s_mul_i32 s22, s22, 10240
    s_add_u32 s26, s24, s22
    s_waitcnt vmcnt(0)
    {st(12)}
    s_barrier
    s_cmp_eq_u32 s16, 3
    s_cbranch_scc1 H_JB
    """)
    poll4(a, 2, 4, "s[40:41]")
    a(job())
    a(f"""
H_JB:
    s_lshl_b32 s41, 0x4440, s16
    s_and_b32 s41, s41, 0xffff
    s_lshl_b32 s40, s41, 16
    s_add_u32 s22, s16, 6
    s_mul_i32 s22, s22, 10240
    s_add_u32 s26, s24, s22
    s_waitcnt vmcnt(0)
    """)
    ladd(a, HPA, HONE, 64)
    lwait(a, HPA, 4, 0xff, 1)
    poll4(a, 2, 4, "s[40:41]", slp=8)
    a(f"{st(13)}\nH_JC:"); a(job())
    a(f"""
    s_add_u32 s22, s22, 40960
    s_add_u32 s26, s26, 40960
    s_cmp_lt_u32 s22, {HS}
    s_cbranch_scc1 H_JC
    s_waitcnt vmcnt(0)
    {st(4)}
    """)
    ladd(a, HPA, HONE, 72)
    a(f"""
    s_cmp_lt_u32 s16, 3
    s_cbranch_scc1 H_FNET
    """)
    a(f"""
    {srd(32, X_P, 2048*1280)}
    {srd(36, GATE_P, 1280)}
    v_lshrrev_b32 v2, 3, v0
    v_and_b32 v3, 7, v0
    v_lshlrev_b32 v3, 4, v3
    s_movk_i32 s22, 1280
    v_mad_u32_u24 v4, v2, s22, v3
    s_mul_i32 s23, s2, {8*1280}
    """)
    for j in range(10):
        a(f"buffer_load_dwordx4 {vr(24+8*j,4)}, v4, s[32:35], s23 offen offset:{128*j}")
        a(f"buffer_load_dwordx4 {vr(28+8*j,4)}, v3, s[36:39], 0 offen offset:{128*j}")
    a("v_mov_b32 v5, 0\nv_mov_b32 v6, 0\ns_waitcnt vmcnt(0)")
    for j in range(10):
        for q in range(4):
            a(f"v_dot2c_f32_bf16 v{5 + (q & 1)}, v{24+8*j+q}, v{28+8*j+q}")
    a(f"""
    s_nop 2
    v_add_f32 v5, v5, v6
    s_nop 1
    v_add_f32_dpp v5, v5, v5 quad_perm:[1,0,3,2] row_mask:0xf bank_mask:0xf
    s_nop 1
    v_add_f32_dpp v5, v5, v5 quad_perm:[2,3,0,1] row_mask:0xf bank_mask:0xf
    s_nop 1
    v_add_f32_dpp v5, v5, v5 row_half_mirror row_mask:0xf bank_mask:0xf
    v_mul_f32 v5, {f32bits(-math.log2(math.e)):#x}, v5
    v_exp_f32 v5, v5
    v_lshlrev_b32 v2, 2, v2
    v_add_f32 v5, 1.0, v5
    v_rcp_f32 v5, v5
    s_lshl_b32 s23, s2, 5
    s_add_u32 s23, s23, {G_OFF}
    buffer_store_dword v5, v2, s[28:31], s23 offen sc1
    s_branch H_MID
    """)
    C, SN, FB = 0, 8, 16
    a(f"""
H_FNET:
    {'s_branch H_MID' if opt('nofnet', 0) == 1 else ''}
    s_lshl_b32 s22, s16, 5
    s_add_u32 s22, s22, s18
    s_cmp_lt_u32 s22, 84
    s_cbranch_scc1 H_FN_A
    s_sub_u32 s24, s22, 84
    s_lshl_b32 s24, s24, 3
    s_add_u32 s24, s24, s17
    s_cmp_ge_u32 s24, 21
    s_cbranch_scc1 H_MID
    s_mov_b32 s23, 32
    s_branch H_FN_B
H_FN_A:
    s_mul_i32 s23, s22, 3121
    s_lshr_b32 s23, s23, 16
    s_mul_i32 s24, s23, 21
    s_sub_u32 s24, s22, s24
    s_lshl_b32 s23, s23, 3
    s_add_u32 s23, s23, s17
H_FN_B:
    s_and_b32 s25, s23, 1
    s_add_u32 s26, s24, 20
    s_cmp_eq_u32 s24, 20
    s_cselect_b32 s26, 20, s26
    s_mul_i32 s32, s24, 26
    s_lshr_b32 s32, s32, 8
    s_lshl_b32 s32, s32, 13
    s_add_u32 s32, s32, {48 * 128}
    s_mul_i32 s33, s26, 26
    s_lshr_b32 s33, s33, 8
    s_lshl_b32 s33, s33, 13
    s_add_u32 s33, s33, {32 * 128}
    s_and_b32 s34, s23, 31
    s_lshl_b32 s34, s34, 8
    s_mov_b64 exec, 0xffff
    v_add_u32 v2, s32, v{LF}
    s_mov_b32 exec_lo, 0xffff0000
    v_add_u32 v2, s33, v{LF}
    s_mov_b32 exec_lo, 0
    s_mov_b32 exec_hi, 0xff
    v_add_u32 v2, s34, v{LT}
    s_mov_b32 s40, -1
    s_movk_i32 s41, 0xff
    s_mov_b32 s27, {FLG_OFF}
    """)
    poll4(a, 2, 4, "s[40:41]", "s27", slp=8)
    a(st(14))
    a(f"""
    s_lshl_b32 s32, s23, 16
    s_add_u32 s32, s32, {TB_OFF}
    s_mul_i32 s27, s25, {FO_DELTA}
    s_add_u32 s27, s27, {FE_OFF}
    s_lshl_b32 s33, s24, 14
    s_add_u32 s33, s33, s27
    s_lshl_b32 s34, s26, 14
    s_add_u32 s34, s34, s27
    s_cmp_eq_u32 s25, 0
    s_cselect_b32 s35, s24, s26
    s_lshl_b32 s35, s35, 6
    s_add_u32 s35, s35, {X512_OFF}
    buffer_load_dwordx4 v[128:131], v{XA5}, s[28:31], s35 offen sc1
    """)
    def fl(j):
        r = FB + 24 * j
        s_ = f"buffer_load_dwordx4 {vr(r,4)}, v163, s[28:31], s33 offen offset:{1024*j} sc1\n"
        s_ += f"buffer_load_dwordx4 {vr(r+4,4)}, v163, s[28:31], s34 offen offset:{1024*j} sc1\n"
        for k in range(4): s_ += f"buffer_load_dwordx4 {vr(r+8+4*k,4)}, v163, s[28:31], s32 offen offset:{1024*k} sc1\n"
        s_ += "s_add_u32 s32, s32, 4096\n"
        if j == 3: s_ += "s_add_u32 s33, s33, 4096\ns_add_u32 s34, s34, 4096\n"
        return s_
    def fm(j):
        r = FB + 24 * j
        s_ = ""
        if opt("nofnet", 0) == 2: return s_
        for sub in range(2):
            s_ += f"v_mfma_f32_16x16x32_bf16 {vr(C+4*sub,4)}, {vr(r,4)}, {vr(r+8+8*sub,4)}, {vr(C+4*sub,4)}\n"
            s_ += f"v_mfma_f32_16x16x32_bf16 {vr(SN+4*sub,4)}, {vr(r+4,4)}, {vr(r+12+8*sub,4)}, {vr(SN+4*sub,4)}\n"
        return s_
    for j in range(4): a(fl(j))
    a(f"""
    s_cmp_eq_u32 s25, 0
    s_cselect_b32 s36, 1.0, 0
    s_cselect_b32 s37, 0, 1.0
    v_or_b32 v161, s37, v{SG}
    v_or_b32 v160, s36, v{SG}
    s_waitcnt vmcnt(24)
    """)
    for r in range(8): a(f"v_mul_f32 v{C+r}, v160, v{128 + r % 4}\nv_mul_f32 v{SN+r}, v161, v{128 + r % 4}")
    a("s_mov_b32 s38, 0\nH_FN_LOOP:")
    for j in range(4):
        a("s_waitcnt vmcnt(18)"); a(fm(j)); a(fl(j))
    a("s_add_u32 s38, s38, 1\ns_cmp_lt_u32 s38, 3\ns_cbranch_scc1 H_FN_LOOP")
    for j in range(4):
        a(f"s_waitcnt vmcnt({18-6*j})"); a(fm(j))
    a(f"""
    s_cmp_eq_u32 s26, 20
    s_cselect_b32 s44, 0xffff, 0
    s_mov_b32 s45, 0
    s_mul_i32 s26, s24, {8*ZP}
    s_mul_i32 s27, s25, {ZP}
    s_add_u32 s26, s26, s27
    s_lshr_b32 s27, s23, 1
    s_lshl_b32 s27, s27, 9
    s_add_u32 s26, s26, s27
    s_add_u32 s26, s26, {Y_OFF}
    v_cndmask_b32 v{SN}, v{SN}, 0, s[44:45]
    v_cndmask_b32 v{SN+4}, v{SN+4}, 0, s[44:45]
    """)
    for r in range(8):
        a(f"v_add_f32 v{16+r}, v{C+r}, v{SN+r}\nv_sub_f32 v{C+r}, v{C+r}, v{SN+r}")
    for r in range(8): a(f"v_cvt_pk_bf16_f32 v{16+r}, v{16+r}, v{C+r}")
    a(f"buffer_store_dwordx4 v[16:19], v{FZ}, s[28:31], s26 offen sc1\nbuffer_store_dwordx4 v[20:23], v{FZ}, s[28:31], s26 offen offset:256 sc1")
    a(f"""
H_MID:
    s_lshl_b32 s19, s17, 2
    s_and_b32 s20, s18, 3
    s_add_u32 s19, s19, s20
    s_lshr_b32 s20, s18, 2
    {srd(32, WO_P, 640*1280)}
    {srd(36, OUT_P, 2621440)}
    s_mul_i32 s26, s20, 160
    s_mul_i32 s27, s16, {160*1280}
    s_add_u32 s27, s27, s26
    s_movk_i32 s23, {1280 - 160}
    """)
    a(f"""
    s_add_u32 s25, s16, 1
    s_and_b32 s25, s25, 3
    s_mul_i32 s22, s25, 25600
    s_add_u32 s22, s22, {WOL}
    s_add_u32 s25, s25, 3
    s_waitcnt vmcnt(0)
    {st(5)}
    """)
    lwait(a, HPA, T + 1, 0xff, 2)
    a(f"""s_mov_b64 exec, 1
    ds_add_rtn_u32 v{T+1}, v{HPA}, v{HONE} offset:48
    s_waitcnt lgkmcnt(0)
    v_cmp_eq_u32 vcc, 3, v{T+1}
    s_cbranch_vccz H_NOY
    buffer_store_dword v{HONE}, v{YFA}, s[28:31], 0 offen sc1
H_NOY:
    s_mov_b64 exec, -1""")
    lwait(a, HPA, T + 1, 0xff, "s25")
    a(f"{st(6)}\ns_mov_b32 s25, 0\nH_WO:")
    for i in range(5):
        a(f"s_add_u32 m0, s22, {1024*i}\ns_nop 0\nbuffer_load_dwordx4 v{WA+i}, s[32:35], s27 offen lds")
    a(f"""
    s_add_u32 s22, s22, 5120
    s_add_u32 s27, s27, {32*1280}
    s_add_u32 s25, s25, 1
    s_cmp_lt_u32 s25, 5
    s_cbranch_scc1 H_WO
    s_cmp_lg_u32 s16, 3
    s_cbranch_scc1 H_YW
    """)
    lwait(a, HPA, T + 1, 0xff, opt("ypr", 5), 16)
    a(f"s_mov_b32 s27, {FLG_OFF + 32768}")
    poll4(a, VA, 4, "-1", "s27", slp=16)
    ladd(a, HPA, HONE, 40)
    a(f"H_YW:\nv_add_u32 v{T}, 40, v{HPA}")
    lwait(a, T, T + 1, 1, 1, 16)
    a("s_waitcnt vmcnt(0)")
    a(f"v_mov_b32 v{T}, 2")
    ladd(a, HPA, T, 32)
    a(f"{st(7)}\ns_mov_b32 s26, {Y_OFF}\ns_mov_b32 s27, {G_OFF}\nbuffer_load_dword v{G}, v{VG}, s[28:31], s27 offen sc1")
    for j in range(6):
        a(f"buffer_load_dwordx4 {vr(ZL+4*j,4)}, v{VZ}, s[28:31], s26 offen sc1\ns_add_u32 s26, s26, {2*ZP}")
    BF, OFR, ACC, YG = 0, 100, 120, 140
    VY2, G2 = 162, 167
    a(f"""
    s_waitcnt vmcnt(0)
    s_cmp_ge_u32 s20, 4
    s_cbranch_scc1 H_DESC
    """)
    for k in range(10): a(f"v_perm_b32 v{YG+10+k}, v{ZL+2*k+1}, v{ZL+2*k}, v{SH}")
    a("s_branch H_UNP\nH_DESC:")
    for k in range(10): a(f"v_perm_b32 v{YG+10+k}, v{ZL+19-2*k}, v{ZL+20-2*k}, v{SH}")
    a("H_UNP:")
    lwait(a, HPA, 8, 0xf, 8)
    a(f"""
    {st(8)}
    s_mov_b32 s41, s16
    s_mov_b32 s47, 0
P3_GO:
    s_setprio {opt('p3o', 0)}
    s_lshl_b32 s22, s17, 3
    s_and_b32 s23, s18, 3
    s_add_u32 s22, s22, s23
    s_lshl_b32 s22, s22, 1
    s_add_u32 s22, s22, s47
    s_mul_i32 s22, s22, 20480
    s_add_u32 s22, s22, {OF_OFF}
    s_lshl_b32 s44, s41, 12
    s_add_u32 s44, s44, s22
    s_lshl_b32 s45, s41, 10
    s_add_u32 s45, s45, s22
    s_add_u32 s45, s45, 16384
    s_lshl_b32 s46, s47, 2
    s_add_u32 s40, s46, {LFB + 80}
    s_add_u32 s46, s46, s41
    s_mul_i32 s46, s46, 5120
    s_add_u32 s46, s46, {WOL}
    s_mov_b32 s26, 0
    s_mov_b32 s42, 0
    v_mov_b32 v{CM}, {LFB + 32}
    """)
    lwait(a, CM, CT, 1, 8)
    a("P3_TRY:")
    for k in range(4):
        a(f"buffer_load_dwordx4 {vr(OFR+4*k,4)}, v{VA}, s[28:31], s44 offen offset:{1024*k} sc1")
    a(f"buffer_load_dwordx2 {vr(OFR+16,2)}, v{VT}, s[28:31], s45 offen sc1\nbuffer_load_dwordx2 {vr(OFR+18,2)}, v{VT}, s[28:31], s45 offen offset:128 sc1")
    a(f"""
    s_cmp_lg_u32 s26, 0
    s_cbranch_scc1 P3_CHK
    s_add_u32 s23, s41, 1
    s_and_b32 s23, s23, 3
    s_mul_i32 s23, s23, 25600
    s_add_u32 s23, s23, {WOL}
    v_add_u32 v{CM}, s23, v{BMM}
    v_add_u32 v{CT}, s23, v{BMT}
    """)
    for n in range(25):
        k, t = divmod(n, 5); d = BF + 4 * n
        bb, o, dj = (CM, k * 6400 + t * 8, 1280) if k < 4 else (CT, t * 8, 3200)
        a(f"ds_read_b64_tr_b16 {vr(d,2)}, v{bb} offset:{o}\nds_read_b64_tr_b16 {vr(d+2,2)}, v{bb} offset:{o+dj}")
    a(f"v_mov_b32 v{BMM}, {LFB + 36}\nv_mov_b32 v{BMT}, 1\ns_waitcnt lgkmcnt(0)")
    ladd(a, BMM, BMT, 0)
    b = OFR
    def mfs(k): return "\n".join(f"v_mfma_f32_16x16x32_bf16 {vr(ACC+4*t,4)}, {vr(BF+4*(5*k+t),4)}, {vr(OFR+4*k,4)}, {vr(ACC+4*t,4) if k else 0}" for t in range(5))
    if opt("spec", 1):
        a("P3_CHK:\ns_add_u32 s26, s26, 1\ns_mov_b32 s43, -1")
        for k in range(5):
            r = b + 4 * k
            a(f"""P3_C{k}:
            s_waitcnt vmcnt({max(0, 5 - k) if k < 4 else 0})
            v_max3_u32 v{CM}, v{r}, v{r+1}, v{r+2}
            v_max3_u32 v{CM}, v{r+3}, v{CM}, 1
            v_cmp_eq_u32 vcc, s43, v{CM}
            s_cbranch_vccnz P3_B{k}
            {mfs(k)}""")
        a(f"{'' if opt('fst', 0) else st(11)}\ns_branch P3_OK")
        for k in range(5):
            a(f"P3_B{k}:\ns_sleep {opt('p3s', 4)}")
            for kk in range(k, 4):
                a(f"buffer_load_dwordx4 {vr(OFR+4*kk,4)}, v{VA}, s[28:31], s44 offen offset:{1024*kk} sc1")
            a(f"buffer_load_dwordx2 {vr(OFR+16,2)}, v{VT}, s[28:31], s45 offen sc1\nbuffer_load_dwordx2 {vr(OFR+18,2)}, v{VT}, s[28:31], s45 offen offset:128 sc1")
            a(f"s_add_u32 s26, s26, 1\ns_cmp_lt_u32 s26, 0x40000\ns_cselect_b32 s43, -1, 0\ns_branch P3_C{k}")
        a("P3_OK:")
    else:
        a(f"P3_CHK:\ns_add_u32 s26, s26, 1\ns_waitcnt vmcnt(4)\nv_max3_u32 v{CM}, v{b}, v{b+1}, v{b+2}\nv_max3_u32 v{CT}, v{b+3}, v{b+4}, v{b+5}\nv_max3_u32 v{CM}, v{b+6}, v{b+7}, v{CM}\ns_waitcnt vmcnt(2)")
        a(f"v_max3_u32 v{CT}, v{b+8}, v{b+9}, v{CT}\nv_max3_u32 v{CM}, v{b+10}, v{b+11}, v{CM}\nv_max3_u32 v{CT}, v{b+12}, v{b+13}, v{CT}\nv_max3_u32 v{CM}, v{b+14}, v{b+15}, v{CM}\ns_waitcnt vmcnt(0)")
        a(f"""
    v_max3_u32 v{CT}, v{b+16}, v{b+17}, v{CT}
    v_max3_u32 v{CM}, v{b+18}, v{b+19}, v{CM}
    s_cmp_lt_u32 s26, 0x40000
    v_max_u32 v{CM}, v{CM}, v{CT}
    s_cbranch_scc0 P3_OK
    v_cmp_eq_u32 vcc, -1, v{CM}
    s_cbranch_vccz P3_OK
    s_sleep {opt("p3s", 4)}
    s_branch P3_TRY
P3_OK:
    {'' if opt('fst', 0) else st(11)}
    s_setprio {opt('p3p', 0)}
    """)
        for n in range(25):
            k, t = divmod(n, 5)
            a(f"v_mfma_f32_16x16x32_bf16 {vr(ACC+4*t,4)}, {vr(BF+4*n,4)}, {vr(OFR+4*k,4)}, {vr(ACC+4*t,4) if k else 0}")
    a("s_cmp_lg_u32 s42, 0\ns_cbranch_scc1 P3_WR")
    lwait(a, BMM, CT, 1, 8, 2)
    a(f"{str() if opt('fst', 0) else st(12)}\nP3_WR:\nv_add_u32 v{CM}, s46, v{VA}\nv_mov_b32 v{CT}, s40\ns_nop 1")
    for j in range(5): a(f"ds_write_b128 v{CM}, {vr(ACC+4*j,4)} offset:{1024*j}")
    a("s_waitcnt lgkmcnt(0)")
    ladd(a, CT, BMT, 0)
    a(f"""
    s_add_u32 s44, s44, {8*20480}
    s_add_u32 s45, s45, {8*20480}
    s_add_u32 s46, s46, {8*5120}
    s_add_u32 s40, s40, 8
    s_add_u32 s42, s42, 1
    s_cmp_ge_u32 s42, 2
    s_cbranch_scc1 P3_END
    s_cmp_ge_u32 s16, 4
    s_cbranch_scc1 P3_TRY
    """)
    for k in range(10): a(f"v_lshlrev_b32 v{YG+2*k}, 16, v{YG+10+k}\nv_and_b32 v{YG+2*k+1}, 0xffff0000, v{YG+10+k}")
    for k in range(20): a(f"v_mul_f32 v{YG+k}, v{YG+k}, v{G2}")
    a(f"""
    v_sub_f32 v{G2}, 1.0, v{G2}
    s_branch P3_TRY
P3_END:
    {st(10)}
    s_cmp_ge_u32 s16, 4
    s_cbranch_scc1 {"L_DONE" if STAMP else "L_END"}
    s_setprio 3
    s_lshl_b32 s23, s16, 2
    s_add_u32 s23, s23, {LFB + 80}
    v_mov_b32 v{CT}, s23
    s_mul_i32 s23, s16, 20480
    s_add_u32 s23, s23, {WOL}
    v_add_u32 v{CM}, s23, v{VA}
    """)
    lwait(a, CT, BMM, 1, 4, 1)
    a(st(9))
    for j in range(5):
        for g in range(4): a(f"ds_read_b128 {vr(16*j+4*g,4)}, v{CM} offset:{5120*g+1024*j}")
    for j in range(5):
        a(f"s_waitcnt lgkmcnt({min(15, 16-4*j)})")
        for r in (0, 2): a(f"v_pk_add_f32 {vr(16*j+r,2)}, {vr(16*j+r,2)}, {vr(16*j+4+r,2)}\nv_pk_add_f32 {vr(16*j+8+r,2)}, {vr(16*j+8+r,2)}, {vr(16*j+12+r,2)}")
        for r in (0, 2): a(f"v_pk_add_f32 {vr(16*j+r,2)}, {vr(16*j+r,2)}, {vr(16*j+8+r,2)}")
        for r in range(4): a(f"v_fmac_f32 v{YG+4*j+r}, v{16*j+r}, v{G2}")
        a(f"v_cvt_pk_bf16_f32 v{84+2*j}, v{YG+4*j}, v{YG+4*j+1}\nv_cvt_pk_bf16_f32 v{84+2*j+1}, v{YG+4*j+2}, v{YG+4*j+3}")
        if j == 1: a(f"buffer_store_dwordx4 v[84:87], v{VY2}, s[36:39], 0 offen" + OSC)
        if j == 3: a(f"buffer_store_dwordx4 v[88:91], v{VY2}, s[36:39], 0 offen offset:16" + OSC)
    a(f"buffer_store_dwordx2 v[92:93], v{VY2}, s[36:39], 0 offen offset:32" + OSC)

DOC = """;
"""
def main():
    a = A()
    top = open("cdna_kernels/" + NAME + ".s.ref").read().split("; Override launch")[0]
    top += "; @launch grid=(256,1,1) block=(768,1,1) lds=163840\n"
    top += DOC
    a('.amdgcn_target "amdgcn-amd-amdhsa--gfx950"\n.text')
    d = gen(a)
    open(sys.argv[1], "w").write(top + a.text() + '.section .rodata,"a"\n.p2align 6\n' + d)
if __name__ == "__main__":
    main()
```

```python
import sys, math, struct

OPT = dict(x.split("=") for x in sys.argv[2:])
def opt(k, d): return int(OPT.get(k, d))
NAME = "gated_mix__spectral_fnet__softmax_full_mha__prompt"
HS = 163840
KV_OFF = 0
HG = HS + opt('pad', 512)
HQ = 81920 + opt('pad', 512)
Q_OFF = 32 * HG
FE_OFF = Q_OFF + 32 * HQ
FO_DELTA = 655360
X512_OFF = FE_OFF + 2 * FO_DELTA
TB_OFF = X512_OFF + 4096
Y_OFF = TB_OFF + 33 * 65536
ZP = 8704
G_OFF = Y_OFF + 85 * 2 * ZP
OF_OFF = G_OFF + 8192
FLG_OFF = OF_OFF + 2621440
WS_USED = FLG_OFF + 320 * 128
XB = 102400
L_Y = 256
QLDS = 71680
RB0, RSL = 11264, 36864
LFB = 158720
WOL = 5120
AK1, AK2, AV, BK1, BK2, BV, OA1, OA2, ONES, PA, FA = range(152, 163)
VA, VT, BMM, BMT, CM, CT = 163, 164, 165, 166, 160, 161
PXB = 107520
def p3_addr(l):
    return f"""v_lshlrev_b32 v{VA}, 4, v{l}
    v_and_b32 v2, 7, v{l}
    v_bfe_u32 v4, v{l}, 3, 1
    v_lshrrev_b32 v3, 4, v{l}
    v_lshlrev_b32 v{VT}, 8, v3
    v_lshl_add_u32 v{VT}, v2, 4, v{VT}
    v_lshl_add_u32 v{VT}, v4, 3, v{VT}
    v_bfe_u32 v2, v{l}, 2, 2
    v_and_b32 v5, 3, v{l}
    v_mul_u32_u24 v5, 40, v5
    v_mul_u32_u24 v4, 40, v3
    v_add3_u32 v4, v4, v2, 16
    v_mul_u32_u24 v4, 160, v4
    v_add_u32 v{BMT}, v4, v5
    v_lshrrev_b32 v4, 1, v3
    v_mul_u32_u24 v4, 20, v4
    v_and_b32 v3, 1, v3
    v_lshl_add_u32 v4, v3, 2, v4
    v_add_u32 v4, v4, v2
    v_mul_u32_u24 v4, 160, v4
    v_add_u32 v{BMM}, v4, v5"""

def f32bits(x): return struct.unpack("<I", struct.pack("<f", x))[0]
QSCALE = f32bits((20 ** -0.5) * math.log2(math.e))
STAMP = opt("stamp", 0)
STAMP_OFF = 1 << 25
NST = 16

class A:
    def __init__(self): self.l = []; self.n = 0
    def __call__(self, s):
        for line in s.split("\n"):
            t = line.strip()
            if not t: continue
            self.l.append(t if t.endswith(":") or t.startswith(".") else "    " + t)
    def uid(self): self.n += 1; return self.n
    def text(self): return "\n".join(self.l) + "\n"

def vr(a, n): return f"v[{a}:{a+n-1}]" if n > 1 else f"v{a}"
def srd(lo, base, size):
    return f"s_mov_b32 s{lo}, s{base}\ns_mov_b32 s{lo+1}, s{base+1}\ns_mov_b32 s{lo+2}, {size}\ns_mov_b32 s{lo+3}, 0x20000"
OSC = " sc1" if opt("outsc1", 0) else ""
P1ST = opt("p1st", 0)
def st(i, p1=False):
    if not STAMP: return ""
    if P1ST and not p1 and 0 < i < 15 and i not in (4, 5): return ""
    if P1ST and not p1 and i in (4, 5): i += 8
    if p1 and not P1ST: return ""
    return f"{'s_memrealtime' if STAMP in (1, 3, 4) else 's_memtime'} s[{64+2*i}:{65+2*i}]"
def fin(): return "s_branch L_DONE" if STAMP else "s_endpgm"

X_P, WD_P, WQKV_P, WO_P, GATE_P, OUT_P, DBG_P, WS_P = 4, 8, 48, 50, 52, 54, 56, 58

def poll(a, vaddr, vdat, mask, target, sreg=60):
    u = a.uid()
    a(f"""
    s_mov_b64 exec, {mask}
    s_mov_b32 s{sreg}, 0
L_POLL{u}:
    buffer_load_dword v{vdat}, v{vaddr}, s[28:31], 0 offen sc1
    s_waitcnt vmcnt(0)
    v_cmp_gt_u32 vcc, {target}, v{vdat}
    s_cbranch_vccz L_POLLD{u}
    {'s_sleep 1' if opt('psleep', 0) else ''}
    s_add_u32 s{sreg}, s{sreg}, 1
    s_cmp_lt_u32 s{sreg}, 0x40000
    s_cbranch_scc1 L_POLL{u}
L_POLLD{u}:
    s_mov_b64 exec, -1
    """)

def poll4(a, vaddr, vdat, mask, soff="0", sreg=60, slp=None):
    u = a.uid()
    a(f"""
    s_mov_b64 exec, {mask}
    s_mov_b32 s{sreg}, 0
    s_branch L_POLLE{u}
L_POLL{u}:
    s_sleep {slp or opt("ps4", 2)}
L_POLLE{u}:
    buffer_load_dwordx4 {vr(vdat,4)}, v{vaddr}, s[28:31], {soff} offen sc1
    s_add_u32 s{sreg}, s{sreg}, 1
    s_waitcnt vmcnt(0)
    v_min3_u32 v{vdat}, v{vdat}, v{vdat+1}, v{vdat+2}
    s_cmp_lt_u32 s{sreg}, 0x40000
    v_min_u32 v{vdat}, v{vdat}, v{vdat+3}
    s_cbranch_scc0 L_POLLD{u}
    v_cmp_eq_u32 vcc, 0, v{vdat}
    s_cbranch_vccnz L_POLL{u}
L_POLLD{u}:
    s_mov_b64 exec, -1
    """)

def gen(a):
    label = NAME + "_kernel"
    a(f".p2align 8\n.globl {label}\n.type {label},@function\n{label}:")
    a(f"""
    s_cmp_ge_u32 s2, 256
    s_cbranch_scc1 L_END
    {st(0) + chr(10) + 's_waitcnt lgkmcnt(0)' if opt("st0first", 0) else ''}
    s_load_dwordx2 s[4:5], s[0:1], 0
    s_load_dwordx8 s[48:55], s[0:1], 48
    s_load_dwordx4 s[8:11], s[0:1], 24
    s_load_dwordx4 s[56:59], s[0:1], 80
    """)
    if STAMP:
        a("\n".join(f"s_mov_b32 s{64+j}, 0" for j in range(2, 2 * NST)) + "\n" + ("" if opt("st0first", 0) else st(0)))
    a(f"""
    v_lshrrev_b32 v1, 6, v0
    v_and_b32 v0, 63, v0
    s_and_b32 s17, s2, 7
    v_readfirstlane_b32 s16, v1
    s_lshr_b32 s18, s2, 3
    s_and_b32 s19, s18, 7
    s_lshr_b32 s22, s18, 3
    s_and_b32 s21, s17, 1
    s_lshl_b32 s23, s19, 1
    s_add_u32 s21, s21, s23
    s_lshr_b32 s20, s17, 1
    s_cmp_ge_u32 s19, {opt("numl", 4)}
    s_cselect_b32 s12, 1, 0
    s_cmp_eq_u32 s22, 0
    s_cselect_b32 s12, 0, s12
    s_cmp_ge_u32 s16, 4
    s_cbranch_scc1 P1_NOTLOADER
    """)
    p1_loader(a)
    a(f"""
P1_NOTLOADER:
    s_lshl_b32 s63, s17, 2
    s_add_u32 s63, s63, s22
    s_mul_i32 s14, s63, {HG}
    s_sub_u32 s13, s16, 4
    s_lshl_b32 s23, s19, 3
    s_add_u32 s23, s23, s13
    s_mul_i32 s23, s23, 40960
    s_add_u32 s23, s23, {OF_OFF}
    s_lshl_b32 s6, s63, 9
    s_add_u32 s6, s6, s23
    s_lshl_b32 s7, s63, 7
    s_add_u32 s7, s7, s23
    s_add_u32 s7, s7, 16384
    s_lshl_b32 s15, s20, 2
    s_add_u32 s15, s15, s22
    s_lshl_b32 s15, s15, 4
    s_add_u32 s15, s15, s21
    s_lshl_b32 s15, s15, 5
    s_add_u32 s15, s15, s13
    s_lshl_b32 s15, s15, 2
    s_add_u32 s15, s15, {FLG_OFF}
    v_and_b32 v1, 31, v0
    v_lshrrev_b32 v2, 5, v0
    v_lshlrev_b32 v{AK1}, 4, v0
    v_lshrrev_b32 v3, 4, v1
    v_lshl_add_u32 v3, v3, 1, v2
    v_and_b32 v4, 15, v0
    v_lshl_add_u32 v3, v4, 2, v3
    v_lshlrev_b32 v{AK2}, 2, v3
    v_mul_u32_u24 v{AV}, 384, v2
    v_lshlrev_b32 v3, 6, v2
    v_cmp_gt_u32 vcc, 16, v1
    s_nop 1
    v_cndmask_b32 v{AV}, v3, v{AV}, vcc
    v_lshl_add_u32 v{AV}, v1, 4, v{AV}
    v_add_u32 v{BK1}, 15360, v{AK1}
    v_add_u32 v{BK2}, 15360, v{AK2}
    v_add_u32 v{BV}, 15360, v{AV}
    v_and_b32 v3, 27, v1
    v_cmp_eq_u32 vcc, 24, v3
    v_mov_b32 v3, 0x3f803f80
    v_bfe_u32 v{OA2}, v1, 3, 1
    v_cndmask_b32 v{ONES}, 0, v3, vcc
    v_mul_u32_u24 v{OA2}, 20480, v{OA2}
    v_and_b32 v3, 7, v1
    v_lshl_add_u32 v{OA2}, v3, 4, v{OA2}
    v_lshrrev_b32 v3, 4, v0
    v_lshl_add_u32 v{OA1}, v3, 7, v{OA2}
    s_lshl_b32 s23, s13, 2
    s_add_u32 s23, s23, {LFB}
    v_mov_b32 v{PA}, s23
    v_mov_b32 v{FA}, {LFB + 56}
    {p3_addr(0)}
    s_cmp_ge_u32 s16, 8
    s_cbranch_scc1 P1_EXTRA
    """)
    p1_compute(a)
    p1_extra(a)
    attention(a)
    helpers(a)
    a("L_DONE:")
    if STAMP == 4:
        i_, j_ = opt("ai", 0), opt("aj", 0)
        a(f"""s_waitcnt vmcnt(0)
        {st(NST-1)}
        s_waitcnt lgkmcnt(0)
        {f's_cmp_lg_u32 s16, {opt("aw1", 0)}' if opt("aw1", 0) else f's_cmp_ge_u32 s16, {opt("aw", 4)}'}
        s_cbranch_scc1 L_END
        s_and_b32 s60, s2, {opt("am", 31)}
        s_cmp_lg_u32 s60, {opt("av", 5)}
        s_cbranch_scc1 L_END
        s_sub_u32 s60, s{64+2*j_}, s{64+2*i_}
        s_lshl_b32 s60, s60, 2
        s_min_u32 s60, s60, 100000
        {f's_mov_b32 s60, {opt("fix", 0)}' if opt("fix", 0) else ''}
L_AMP:
        s_memrealtime s[44:45]
        s_waitcnt lgkmcnt(0)
        s_sub_u32 s44, s44, s{64 if opt("fix", 0) else 64+2*(NST-1)}
        s_cmp_lt_u32 s44, s60
        s_cbranch_scc1 L_AMP
        """)
    elif STAMP == 3:
        r = f"s_waitcnt vmcnt(0)\n{st(NST-1)}\ns_mov_b64 exec, 1\n{srd(44, DBG_P, 256)}\ns_waitcnt lgkmcnt(0)\nv_mov_b32 v16, 0\n"
        r += "s_not_b32 s60, s64\nv_mov_b32 v0, s60\nbuffer_atomic_umax v0, v16, s[44:47], 0 offen offset:4 sc1\n"
        r += "s_cmp_eq_u32 s16, 0\ns_cbranch_scc1 L_D0\ns_cmp_eq_u32 s16, 4\ns_cbranch_scc0 L_END\n"
        for n, i in enumerate((2, 3, 4, 5, 7, 8, 9)): r += f"v_mov_b32 v{n+1}, s{64+2*i}\nbuffer_atomic_umax v{n+1}, v16, s[44:47], 0 offen offset:{8+4*n} sc1\n"
        r += "s_endpgm\nL_D0:\n"
        for n, i in enumerate((0, 1, 6, 8, 9, 10, 15)): r += f"v_mov_b32 v{n+1}, s{64+2*i}\nbuffer_atomic_umax v{n+1}, v16, s[44:47], 0 offen offset:{36+4*n} sc1\n"
        a(r)
    elif STAMP:
        r = f"s_waitcnt vmcnt(0)\n{st(NST-1)}\ns_mov_b64 exec, 1\ns_add_u32 s44, s{WS_P}, {STAMP_OFF}\ns_addc_u32 s45, s{WS_P+1}, 0\ns_mov_b32 s46, 262144\ns_mov_b32 s47, 0x20000\n"
        r += "s_lshl_b32 s60, s2, 4\ns_add_u32 s60, s60, s16\ns_lshl_b32 s60, s60, 6\ns_waitcnt lgkmcnt(0)\nv_mov_b32 v16, 0\n"
        if opt("xcc", 0): r += "s_getreg_b32 s66, hwreg(HW_REG_XCC_ID)\ns_add_u32 s66, s66, 100\n"
        for i in range(NST): r += f"v_mov_b32 v{i}, s{64+2*i}\n"
        for i in range(4): r += f"buffer_store_dwordx4 v[{4*i}:{4*i+3}], v16, s[44:47], s60 offen offset:{16*i}\n"
        a(r)
    a("L_END:\ns_endpgm\n.fill 256, 4, 0xbf810000\nL_CODE_END:")
    return f""".amdhsa_kernel {label}
  .amdhsa_next_free_vgpr 168
  .amdhsa_next_free_sgpr {100 if STAMP else 64}
  .amdhsa_accum_offset 168
  .amdhsa_group_segment_fixed_size 0
  .amdhsa_kernarg_size 96
  .amdhsa_user_sgpr_count 2
  .amdhsa_user_sgpr_kernarg_segment_ptr 1
  .amdhsa_system_sgpr_workgroup_id_x 1
.end_amdhsa_kernel
"""

def p1_loader(a):
    a(f"""
    s_setprio 3
    """)
    if opt("pf", 0):
        a(f"""
        v_lshlrev_b32 v20, 4, v0
        s_mul_i32 s23, s2, 10240
        s_and_b32 s24, s16, 1
        s_mul_i32 s24, s24, 5120
        s_add_u32 s23, s23, s24
        s_mul_i32 s25, s2, 3
        s_mov_b32 s31, 0x20000
        s_mov_b32 s35, 0x20000
        s_mov_b32 s34, {640*1280}
        s_waitcnt lgkmcnt(0)
        s_mov_b32 s30, {2048*1280}
        s_cmp_lt_u32 s16, 2
        s_cselect_b32 s28, s{X_P}, s{WQKV_P}
        s_cselect_b32 s29, s{X_P+1}, s{WQKV_P+1}
        s_cselect_b32 s30, s30, {640*3840}
        s_cselect_b32 s32, s8, s10
        s_cselect_b32 s33, s9, s11
        buffer_load_dwordx4 v[24:27], v20, s[28:31], s23 offen
        buffer_load_dwordx4 v[28:31], v20, s[28:31], s23 offen offset:1024
        buffer_load_dwordx4 v[32:35], v20, s[28:31], s23 offen offset:2048
        buffer_load_dwordx4 v[36:39], v20, s[28:31], s23 offen offset:3072
        s_add_u32 s23, s23, 4096
        buffer_load_dwordx4 v[40:43], v20, s[28:31], s23 offen
        s_lshr_b32 s24, s24, 11
        s_add_u32 s25, s25, s24
        s_mul_i32 s25, s25, 1280
        s_mov_b32 exec_hi, 0xff
        buffer_load_dwordx4 v[44:47], v20, s[32:35], s25 offen
        s_bitcmp1_b32 s16, 0
        s_cbranch_scc1 P1_PF1
        buffer_load_dwordx4 v[48:51], v20, s[32:35], s25 offen offset:1280
P1_PF1:
        s_mov_b32 exec_hi, -1
        """)
    a(f"""
    v_lshrrev_b32 v2, 3, v0
    v_and_b32 v3, 7, v0
    v_lshrrev_b32 v4, 4, v0
    v_xor_b32 v3, v3, v4
    v_lshlrev_b32 v3, 4, v3
    v_xor_b32 v4, 64, v3
    s_lshl_b32 s23, s21, 5
    s_lshr_b32 s24, s16, 1
    s_lshl_b32 s24, s24, 4
    s_add_u32 s23, s23, s24
    s_cmp_eq_u32 s22, 2
    s_cselect_b32 s25, 4, 0
    v_and_b32 v9, s25, v2
    v_add3_u32 v9, v9, v2, s23
    s_sub_u32 s25, 8, s25
    s_bitcmp1_b32 s16, 0
    s_cselect_b32 s23, -1, 1
    s_cselect_b32 s24, 0x400, 0
    s_mul_i32 s25, s25, s23
    v_mul_lo_u32 v10, v9, s23
    s_sub_u32 s27, 0x800, s24
    v_add_u32 v5, s24, v10
    v_sub_u32 v7, s27, v10
    v_add_u32 v6, s25, v5
    v_subrev_u32 v8, s25, v7
    v_cmp_eq_u32 vcc, 0, v9
    s_add_u32 s24, s24, 0x200
    v_mov_b32 v9, s24
    s_cmp_lg_u32 s22, 2
    v_cndmask_b32 v7, v7, v9, vcc
    s_cbranch_scc1 P1_LD_NV
    v_swap_b32 v6, v7
P1_LD_NV:
    s_movk_i32 s27, 1280
    v_mad_u32_u24 v10, v5, s27, v3
    v_mad_u32_u24 v11, v6, s27, v4
    v_mad_u32_u24 v12, v7, s27, v3
    v_mad_u32_u24 v13, v8, s27, v4
    """)
    EX = opt("early", 1) and opt("stag1", 7) == 7
    if EX:
        a(f"""
        s_lshr_b32 s36, s17, 1
        s_xor_b32 s36, s36, s17
        s_and_b32 s36, s36, 1
        s_xor_b32 s36, s36, 9
        s_lshl_b32 s41, s36, 7
        s_lshl_b32 s44, s16, 12
        s_add_u32 m0, s44, {RB0 + 2 * RSL}
        s_waitcnt lgkmcnt(0)
        {srd(28, X_P, 2048*1280)}
        buffer_load_dwordx4 v10, s[28:31], s41 offen lds
        """)
        for i in range(1, 4):
            a(f"s_add_u32 m0, s44, {RB0 + 2 * RSL + 1024*i}\ns_nop 0\nbuffer_load_dwordx4 v{10+i}, s[28:31], s41 offen lds")
    a(f"""
    s_lshl_b32 s26, s22, 2
    s_add_u32 s26, s26, s20
    s_and_b32 s27, s20, 1
    s_movk_i32 s25, 3840
    s_cmp_eq_u32 s22, 3
    s_cselect_b32 s25, 1280, s25
    s_cselect_b32 s26, s27, s26
    s_mul_i32 s26, s26, 320
    s_lshl_b32 s27, s16, 4
    s_mul_i32 s27, s27, s25
    s_add_u32 s26, s26, s27
    s_sub_u32 s27, s25, 320
    """)
    for i in range(5):
        a(f"""
        v_add_u32 v5, {64*i}, v0
        v_mul_u32_u24 v6, 3277, v5
        v_lshrrev_b32 v6, 16, v6
        v_lshrrev_b32 v7, 2, v6
        v_and_b32 v7, 2, v7
        v_xor_b32 v5, v5, v7
        v_lshl_add_u32 v5, v5, 4, s26
        v_mad_u32_u24 v{14+i}, v6, s27, v5
        """)
    sg = opt("stag1", 7)
    if sg == 1:
        a("s_lshl_b32 s36, s19, 3\ns_lshl_b32 s37, s22, 4\ns_add_u32 s36, s36, s37\ns_add_u32 s36, s36, s17\ns_and_b32 s36, s36, 63\ns_mul_i32 s36, s36, 10\ns_lshr_b32 s36, s36, 6")
    elif sg == 2:
        a("s_add_u32 s36, s19, s22\ns_lshl_b32 s36, s36, 4\ns_add_u32 s36, s36, s17\ns_add_u32 s36, s36, s17\ns_and_b32 s36, s36, 63\ns_mul_i32 s36, s36, 10\ns_lshr_b32 s36, s36, 6")
    elif sg == 3:
        a("s_add_u32 s36, s19, s22\ns_lshl_b32 s36, s36, 5\ns_lshl_b32 s37, s17, 2\ns_add_u32 s36, s36, s37\ns_and_b32 s36, s36, 63\ns_mul_i32 s36, s36, 10\ns_lshr_b32 s36, s36, 6")
    elif sg >= 10:
        nc = sg - 9
        Gn = 5 - nc
        rot = [2 * (nc + k % Gn) for k in range(2 * Gn - 1)]
        rv = sum(v << (4 * k) for k, v in enumerate(rot))
        com = sum((2 * k) << (4 * k) for k in range(nc))
        a(f"""
        s_lshr_b32 s36, s17, 1
        s_xor_b32 s36, s36, s17
        s_and_b32 s36, s36, 1
        s_add_u32 s37, s22, s19
        s_lshr_b32 s46, s17, 2
        s_lshl_b32 s46, s46, {opt("xsh", 1)}
        s_add_u32 s37, s37, s46
        s_mul_i32 s46, s37, {256 // Gn + 1}
        s_lshr_b32 s46, s46, 8
        s_mul_i32 s46, s46, {Gn}
        s_sub_u32 s37, s37, s46
        s_lshl_b32 s37, s37, 2
        s_lshr_b32 s46, {rv:#x}, s37
        s_and_b32 s46, s46, {(1 << (4 * Gn)) - 1:#x}
        s_lshl_b32 s46, s46, {4 * nc}
        s_or_b32 s46, s46, {0x53100000 | com:#x}
        s_mov_b32 s47, 0x97
        s_mul_i32 s37, s36, 0x11111111
        s_xor_b32 s46, s46, s37
        s_xor_b32 s47, s47, s37
        s_and_b32 s36, s46, 15
        """)
    elif sg >= 5:
        tsh = {5: 0, 6: 1, 7: 0, 8: 0, 9: 0}[sg]
        a(f"""
        s_lshr_b32 s36, s17, 1
        s_xor_b32 s36, s36, s17
        s_and_b32 s36, s36, 1
        {'s_min_u32 s37, s22, 2' if sg == 9 else f's_lshr_b32 s37, s22, {tsh}'}
        s_add_u32 s37, s37, s19
        s_lshr_b32 s46, s17, 2
        s_lshl_b32 s46, s46, 1
        s_add_u32 s37, s37, s46
        s_mul_i32 s46, s37, 52
        s_lshr_b32 s46, s46, 8
        s_mul_i32 s46, s46, 5
        s_sub_u32 s37, s37, s46
        s_lshl_b32 s37, s37, 2
        s_mov_b32 s46, 0x42086420
        s_mov_b32 s47, 0x6
        s_lshr_b64 s[46:47], s[46:47], s37
        s_and_b32 s46, s46, 0xfffff
        {'s_or_b32 s47, s46, 0x11111' + chr(10) + 's_lshl_b32 s37, s47, 20' + chr(10) + 's_or_b32 s46, s46, s37' + chr(10) + 's_lshr_b32 s47, s47, 12' if sg == 8 else 's_or_b32 s46, s46, 0x53100000' + chr(10) + 's_mov_b32 s47, 0x97'}
        s_mul_i32 s37, s36, 0x11111111
        s_xor_b32 s46, s46, s37
        s_xor_b32 s47, s47, s37
        """)
        if sg == 7:
            a("s_lshr_b32 s37, s47, 4\ns_and_b32 s37, s37, 15\ns_lshl_b64 s[46:47], s[46:47], 4\ns_or_b32 s46, s46, s37")
        a("s_and_b32 s36, s46, 15")
    else:
        a("s_mov_b32 s36, 0")
    a(f"""
    s_lshl_b32 s38, s16, 12
    s_add_u32 s38, s38, {RB0}
    s_mul_i32 s39, s16, 5120
    s_add_u32 s39, s39, {RB0 + 16384}
    s_mov_b32 s40, 0
    s_mul_i32 s34, s25, 640
    s_lshl_b32 s25, s25, 6
    s_mov_b32 s35, 0x20000
    s_waitcnt lgkmcnt(0)
    {srd(28, X_P, 2048*1280)}
    s_cmp_lt_u32 s20, 2
    s_cselect_b32 s32, s8, s10
    s_cselect_b32 s33, s9, s11
    s_cmp_eq_u32 s22, 3
    s_cselect_b32 s32, s32, s{WQKV_P}
    s_cselect_b32 s33, s33, s{WQKV_P+1}
    {st(1)}
    """)
    if opt("dftdelay", 0):
        a(f"""s_cmp_lg_u32 s22, 3
        s_cbranch_scc1 P1_LD_LOOP
        s_memrealtime s[42:43]
        s_waitcnt lgkmcnt(0)
        s_add_u32 s42, s42, {opt("dftdelay", 0)}
P1_DLY:
        s_memrealtime s[44:45]
        s_waitcnt lgkmcnt(0)
        s_cmp_lt_u32 s44, s42
        s_cbranch_scc1 P1_DLY
        """)
    a(f"""
P1_LD_LOOP:
    s_lshl_b32 s41, s36, 7
    s_mul_i32 s42, s36, s25
    s_add_u32 s43, s40, 2
    s_and_b32 s43, s43, 3
    s_mul_i32 s43, s43, {RSL}
    s_add_u32 s44, s43, s38
    s_add_u32 s45, s43, s39
    """)
    if EX: a("s_cmp_eq_u32 s40, 0\ns_cbranch_scc1 P1_LD_WW")
    for i in range(4):
        a(f"s_add_u32 m0, s44, {1024*i}\ns_nop 0\nbuffer_load_dwordx4 v{10+i}, s[28:31], s41 offen lds")
    a("P1_LD_WW:")
    for i in range(5):
        a(f"s_add_u32 m0, s45, {1024*i}\ns_nop 0\nbuffer_load_dwordx4 v{14+i}, s[32:35], s42 offen lds")
    if opt("noload", 0): a("s_cmp_ge_u32 s40, 3\ns_cselect_b32 s30, 0, s30\ns_cselect_b32 s34, 0, s34")
    a(f"""
    {'s_lshr_b64 s[46:47], s[46:47], 4' + chr(10) + 's_and_b32 s36, s46, 15' if sg >= 5 else 's_add_u32 s36, s36, 1' + chr(10) + 's_cmp_eq_u32 s36, 10' + chr(10) + 's_cselect_b32 s36, 0, s36'}
    s_add_u32 s40, s40, 1
    s_cmp_eq_u32 s40, 1
    s_cbranch_scc1 P1_LD_LOOP
    s_waitcnt vmcnt(9)
    s_barrier
    s_cmp_lt_u32 s40, 10
    s_cbranch_scc1 P1_LD_LOOP
    s_waitcnt vmcnt(0)
    s_barrier
    s_branch HELPER
    """)

def p1_compute(a):
    X = 80; W = [96, 116]; XA = 136; WA = 137; CX = 142; CW = 144; PC = 149; L = 150; TT = 96
    def acc(b, T): return 20 * b + 4 * T
    a(f"""
    s_sub_u32 s61, s16, 4
    s_and_b32 s36, s61, 1
    s_lshr_b32 s37, s61, 1
    v_mov_b32 v{L}, v0
    v_and_b32 v1, 15, v0
    v_lshrrev_b32 v2, 4, v0
    v_lshrrev_b32 v3, 1, v1
    v_xor_b32 v3, v3, v2
    v_lshlrev_b32 v3, 4, v3
    v_lshl_add_u32 v3, v1, 7, v3
    s_lshl_b32 s23, s36, 13
    s_add_u32 s23, s23, {RB0}
    v_add_u32 v{XA}, s23, v3
    v_bfe_u32 v3, v0, 2, 2
    v_lshl_add_u32 v3, v2, 3, v3
    v_mul_u32_u24 v3, 320, v3
    v_add_u32 v3, {RB0 + 16384}, v3
    v_and_b32 v4, 16, v0
    v_lshlrev_b32 v4, 1, v4
    v_and_b32 v5, 3, v0
    s_mul_i32 s23, s37, 160
    v_lshl_add_u32 v6, v5, 3, s23
    """)
    for T in range(4):
        a(f"v_xor_b32 v7, v6, v4\nv_add_u32 v{WA+T}, v7, v3\nv_add_u32 v6, 40, v6")
    a(f"""
    v_mul_u32_u24 v6, 40, v5
    v_add3_u32 v6, v6, s23, 32
    v_xor_b32 v7, v6, v4
    v_add_u32 v{WA+4}, v7, v3
    v_mov_b32 v{PC}, 0xbf803f80
    s_lshl_b32 s26, s22, 2
    s_add_u32 s26, s26, s20
    s_lshl_b32 s26, s26, 1
    s_add_u32 s26, s26, s37
    s_cmp_eq_u32 s26, 28
    s_cselect_b32 s24, 0x10001, 0
    s_mov_b32 s25, s24
    s_cmp_eq_u32 s22, 3
    s_cselect_b32 s43, 10, 8
    s_mov_b32 s40, 0
    s_mov_b32 s42, {2 * RSL}
    """)
    for r in range(96): a(f"v_mov_b32 v{r}, 0")
    for r in range(20): a(f"v_mov_b32 v{W[1]+r}, 0")
    a(f"v_add_u32 v{CX}, s42, v{XA}")
    for T in range(5): a(f"v_add_u32 v{CW+T}, s42, v{WA+T}")
    a(f"s_waitcnt lgkmcnt(0)\n{srd(28, WS_P, WS_USED)}")
    a(f"s_setprio {opt('cp', 2)}\ns_cmp_ge_u32 s22, 2\ns_cbranch_scc1 P1_PRE_V")
    def mf(b, T, x, w, qk):
        d = vr(acc(b, T), 4)
        return f"v_mfma_f32_16x16x32_bf16 {d}, {vr(w,4)}, {vr(x,4)}, {d}" if qk else f"v_mfma_f32_16x16x32_bf16 {d}, {vr(x,4)}, {vr(w,4)}, {d}"
    def rdw(d, T, step): return [f"ds_read_b64_tr_b16 {vr(d+2*j,2)}, v{CW+T} offset:{(step // 2) * RSL + (step % 2) * 10240 + 1280 * j}" for j in range(2)]
    def rdx(d, b, step): return f"ds_read_b128 {vr(d,4)}, v{CX + step % 2} offset:{(step // 2) * RSL + 2048 * b}"
    TO = (1, 2, 3, 4, 0)
    def group(step, qk, reads=True, patch=True):
        cur = W[1 - step]; nxt = W[step]
        rq = []
        for T in TO: rq += rdw(nxt + 4 * T, T, step)
        fill = []
        if step == 1:
            fill = ["s_add_u32 s40, s40, 1", "s_add_u32 s41, s40, 2", "s_and_b32 s41, s41, 3", f"s_mul_i32 s42, s41, {RSL}", f"v_add_u32 v{CX}, s42, v{XA}"] + [f"v_add_u32 v{CW+T}, s42, v{WA+T}" for T in range(5)]
        issued = 0
        for b in range(4):
            if reads:
                allow = [2, 15, issued + 1, issued][b]
                if b != 1: a(f"s_waitcnt lgkmcnt({min(15, allow)})")
            elif b == 0: a("s_waitcnt lgkmcnt(0)")
            for n, T in enumerate(TO):
                a(mf(b, T, X + 4 * b, cur + 4 * T, qk))
                if b == 0 and n < 2 and not qk and patch:
                    for j in range(2): a(f"v_cndmask_b32 v{cur+2*n+j}, v{cur+2*n+j}, v{PC}, s[24:25]")
                if not reads: continue
                if step == 0 and b == 0:
                    if n == 0: a(f"v_xor_b32 v{CX+1}, 64, v{CX}")
                    if n == opt("bn", 1): a("s_barrier")
                    if n <= opt("bn", 1): continue
                if n == 4: a(rdx(X + 4 * b, b, step)); issued += 1
                elif rq:
                    a(rq.pop(0)); issued += 1
                    if rq and (opt("rd2", 0) or (step == 0 and b == 1 and n < opt("bn", 1) - 1)): a(rq.pop(0)); issued += 1
                elif fill:
                    a(fill.pop(0))
                    if fill: a(fill.pop(0))
        assert not reads or (not rq and not fill), (rq, fill)

    def tail(qk, epi):
        seq = [(b, T, ("x0", b), ("w0", T)) for b in range(4) for T in TO]
        marks = {}
        win = opt("win", 2)
        for step in range(4 - win):
            for b in range(4):
                for T in TO: seq.append((b, T, ("x", 0, step, b), ("w", step, T)))
        for T in range(5):
            for jj in range(2):
                for step in range(4 - win, 4):
                    for b in (2 * jj, 2 * jj + 1): seq.append((b, T, ("x", 0, step, b), ("w", step, T)))
                marks[len(seq) - 1] = (T, jj)
        last = {}
        for n, (_, _, x, w) in enumerate(seq): last[x] = n; last[w] = n
        loc = {("x0", b): X + 4 * b for b in range(4)}; loc.update({("w0", T): W[1] + 4 * T for T in range(5)})
        free = [W[0] + 4 * k for k in range(5)] + [XA]
        order = []
        for _, _, x, w in seq:
            for f in (w, x):
                if f not in loc and f not in order: order.append(f)
        done_at = {}; nrd = 0; waited = 0; pend = []; fill = []
        cnt = [0]; prev = [0]
        def em(t): a(t); cnt[0] += 1
        a(f"v_xor_b32 v{CX+1}, 64, v{CX}\ns_waitcnt lgkmcnt(0)\ns_barrier")
        bar2 = [True]
        def take():
            f = order.pop(0); loc[f] = free.pop(0)
            if bar2 and (f[1] if f[0] == "w" else f[2]) >= 2: em("s_barrier"); bar2.pop()
            p_ = rdw(loc[f], f[2], f[1]) if f[0] == "w" else [rdx(loc[f], f[3], f[2])]
            done_at[f] = nrd + len(p_)
            return p_
        def gap():
            t, at, after = fill[0]
            return max(at - cnt[0], prev[0] + after - cnt[0], 0)
        def put():
            em(fill.pop(0)[0]); prev[0] = cnt[0]
        for n, (b, T, x, w) in enumerate(seq):
            while any(f not in loc or (f in done_at and done_at[f] > nrd) for f in (x, w)):
                if not pend: pend = take()
                em(pend.pop(0)); nrd += 1
            need = max(done_at.get(x, 0), done_at.get(w, 0))
            if need > waited:
                waited = max(need, nrd - opt("tw", 6)); em(f"s_waitcnt lgkmcnt({nrd - waited})")
            em(mf(b, T, loc[x], loc[w], qk))
            if n in marks: fill += [(t, cnt[0] + 8, after) for t, after in epi(*marks[n])]
            for f in (x, w):
                if last[f] == n: free.append(loc[f])
            if not pend and order and free: pend = take()
            if pend: em(pend.pop(0)); nrd += 1
            for _ in range(2):
                if fill and gap() == 0: put()
        a(st(3))
        while fill:
            g_ = gap()
            if g_: a(f"s_nop {g_ - 1}"); cnt[0] += g_
            put()

    EA, EB = 167, 151
    def cv(d, r): return [f"v_cvt_pk_bf16_f32 v{d}, v{r}, v{r+1}", f"v_cvt_pk_bf16_f32 v{d+1}, v{r+2}, v{r+3}"]
    def epi_qk(ph, jj=0):
        if ph < 0:
            return f"""s_mov_b32 s35, {HG}
            s_movk_i32 s38, 2560
            s_cmp_eq_u32 s22, 0
            s_cselect_b32 s35, {HQ}, s35
            s_cselect_b32 s27, {Q_OFF}, {KV_OFF}
            s_cselect_b32 s38, 1280, s38
            s_lshl_b32 s26, s20, 1
            s_add_u32 s26, s26, s37
            s_lshl_b32 s26, s26, 2
            s_mul_i32 s26, s26, s35
            s_add_u32 s26, s26, s27
            s_lshl_b32 s23, s21, 1
            s_add_u32 s23, s23, s36
            s_lshl_b32 s23, s23, 1
            s_mul_i32 s23, s23, s38
            s_add_u32 s26, s26, s23
            s_add_u32 s27, s26, s38
            v_lshrrev_b32 v{EA}, 4, v{L}
            v_mul_lo_u32 v{EA}, v{EA}, s35
            v_and_b32 v{TT}, 15, v{L}
            v_lshl_add_u32 v{EA}, v{TT}, 4, v{EA}
            v_lshlrev_b32 v{EB}, 4, v{L}
            s_add_u32 s44, s26, s35
            s_add_u32 s45, s27, s35
            s_add_u32 s46, s44, s35
            s_add_u32 s47, s45, s35
            s_add_u32 s32, s46, s35
            s_add_u32 s33, s47, s35""".split("\n")
        T = ph
        r0, r1 = acc(2 * jj, T), acc(2 * jj + 1, T)
        o = [(t, 0) for t in cv(r0, r0) + cv(r0 + 2, r1)]
        if T < 4:
            o += [(f"v_permlane16_swap_b32 v{r0}, v{r0+2}", 1), (f"v_permlane16_swap_b32 v{r0+1}, v{r0+3}", 0)]
            o.append((f"buffer_store_dwordx4 {vr(r0,4)}, v{EB}, s[28:31], s{(26, 44, 46, 32)[T] + jj} offen sc1", 0))
        else:
            o.append((f"buffer_store_dwordx4 {vr(r0,4)}, v{EA}, s[28:31], s{26 + jj} offen offset:1024 sc1", 0))
        return o
    def epi_v(ph, jj=0):
        if ph < 0:
            return f"""s_lshl_b32 s26, s20, 1
            s_add_u32 s26, s26, s37
            s_mul_i32 s26, s26, {4*HG}
            s_lshl_b32 s23, s21, 1
            s_add_u32 s23, s23, s36
            s_mul_i32 s23, s23, 5120
            s_add_u32 s26, s26, s23
            s_add_u32 s26, s26, {KV_OFF + 1280}
            s_add_u32 s44, s26, {HG}
            s_add_u32 s45, s26, {2*HG}
            s_add_u32 s46, s26, {3*HG}
            s_mov_b32 s35, {HG}
            v_lshrrev_b32 v{EA}, 5, v{L}
            v_mul_u32_u24 v{EA}, 640, v{EA}
            v_bfe_u32 v{TT}, v{L}, 4, 1
            v_lshl_add_u32 v{EB}, v{TT}, 6, v{EA}
            v_mul_u32_u24 v{TT}, 384, v{TT}
            v_add_u32 v{EA}, v{EA}, v{TT}
            v_and_b32 v{TT}, 15, v{L}
            v_lshl_add_u32 v{EA}, v{TT}, 4, v{EA}
            v_and_b32 v{TT}, 3, v{L}
            v_lshl_add_u32 v{EB}, v{TT}, 4, v{EB}
            v_bfe_u32 v{TT}, v{L}, 2, 2
            v_mul_lo_u32 v{TT}, v{TT}, s35
            v_add_u32 v{EB}, v{EB}, v{TT}""".split("\n")
        T = ph
        r0, r1 = acc(2 * jj, T), acc(2 * jj + 1, T)
        o = [(t, 0) for t in cv(r0, r0) + cv(r0 + 2, r1)]
        if T < 4: o.append((f"buffer_store_dwordx4 {vr(r0,4)}, v{EA}, s[28:31], s{(26, 44, 45, 46)[T]} offen offset:{2560 * jj} sc1", 0))
        else: o.append((f"buffer_store_dwordx4 {vr(r0,4)}, v{EB}, s[28:31], s26 offen offset:{2560 * jj + 256} sc1", 0))
        return o

    for qk, lab in ((True, "QK"), (False, "V")):
        a(f"P1_PRE_{lab}:")
        for f in (epi_qk if qk else epi_v)(-1): a(f)
        SEP = opt("sep", 0)
        if SEP and not qk: a("s_cmp_eq_u32 s22, 3\ns_cbranch_scc1 P1_LOOP_D")
        a(f"P1_LOOP_{lab}:")
        group(0, qk, patch=not SEP)
        if STAMP: a(f"s_cmp_lg_u32 s40, 0\ns_cbranch_scc1 P1_ST_{lab}\n{st(2)}\nP1_ST_{lab}:\ns_cmp_lg_u32 s40, 5\ns_cbranch_scc1 P1_SU_{lab}\n{st(1)}\nP1_SU_{lab}:")
        group(1, qk, patch=not SEP)
        a(f"s_cmp_lt_u32 s40, s43\ns_cbranch_scc1 P1_LOOP_{lab}")
        if not qk: a("s_cmp_eq_u32 s22, 3\ns_cbranch_scc1 P1_EPI_DFT")
        a("s_cmp_eq_u32 s12, 1\ns_cselect_b32 s30, 0, s30")
        tail(qk, epi_qk if qk else epi_v)
        a(f"s_cmp_eq_u32 s12, 0\ns_cbranch_scc1 P1_DONE\ns_mov_b32 s30, {WS_USED}\nv_mov_b32 v88, {LFB + 56}\nv_mov_b32 v89, 1")
        ladd(a, 88, 89, 0)
        a(f"s_mov_b32 s34, 1\ns_branch ATT\nNU_{lab}:")
        for T in range(5):
            for jj in range(2): a((epi_qk if qk else epi_v)(T, jj)[-1][0])
        a("s_branch ATT_SIG")
    if SEP:
        a("P1_LOOP_D:"); group(0, False); group(1, False)
        a("s_cmp_lt_u32 s40, s43\ns_cbranch_scc1 P1_LOOP_D")
    a("P1_EPI_DFT:")
    group(0, False, reads=False)
    TAU, TAU0, E0 = 80, 81, 140
    a(f"""
    {st(3)}
    s_cmp_lt_u32 s20, 2
    s_cselect_b32 s38, 1.0, -1.0
    v_mov_b32 v{TAU}, s38
    v_cndmask_b32 v{TAU0}, v{TAU}, 1.0, s[24:25]
    s_lshl_b32 s26, s20, 1
    s_add_u32 s26, s26, s37
    s_mul_i32 s26, s26, 80
    v_and_b32 v88, 15, v{L}
    v_add_u32 v{E0}, s26, v88
    v_add_u32 v{E0+1}, 20, v{E0}
    v_add_u32 v{E0+2}, 40, v{E0}
    v_add_u32 v{E0+3}, 60, v{E0}
    v_and_b32 v89, 12, v{L}
    v_lshl_add_u32 v{E0+4}, v89, 2, v{E0}
    v_add_u32 v{E0+4}, 16, v{E0+4}
    s_lshl_b32 s23, s21, 1
    s_add_u32 s23, s23, s36
    s_cmp_lg_u32 s23, 0
    s_cbranch_scc1 P1_EPI_DFT2
    s_mov_b64 exec, 0xffff
    s_mov_b32 s27, {X512_OFF}
    """)
    for T in range(5):
        a(f"v_fma_f32 v{96+T}, v{acc(3,T)}, v{TAU0 if T == 0 else TAU}, v{acc(1,T)}")
        a(f"v_lshlrev_b32 v{104+T}, 2, v{E0+T}\nv_mov_b32 v{acc(1,T)}, 0\nv_mov_b32 v{acc(3,T)}, 0")
        a(f"buffer_store_dword v{96+T}, v{104+T}, s[28:31], s27 offen sc1")
    a(f"""
    s_mov_b64 exec, -1
P1_EPI_DFT2:
    s_lshl_b32 s26, s23, 9
    s_add_u32 s26, s26, {FE_OFF}
    s_mov_b32 s27, {FO_DELTA}
    v_bfe_u32 v88, v{L}, 4, 1
    v_mul_lo_u32 v88, v88, s27
    v_lshrrev_b32 v89, 5, v{L}
    v_lshl_add_u32 v88, v89, 8, v88
    """)
    for T in range(5):
        tau = TAU0 if T == 0 else TAU
        a0, a1, a2, a3 = (acc(b, T) for b in range(4))
        for q in range(4):
            a(f"v_fma_f32 v{a0+q}, v{a1+q}, v{tau}, v{a0+q}\nv_fma_f32 v{a3+q}, v{a2+q}, v{tau}, v{a3+q}")
        for q in range(4):
            a(f"v_add_f32 v{a1+q}, v{a0+q}, v{a3+q}\nv_sub_f32 v{a2+q}, v{a0+q}, v{a3+q}")
        for f in cv(a0, a1) + cv(a0 + 2, a2): a(f)
        a(f"""
        v_lshrrev_b32 v89, 4, v{E0+T}
        v_lshl_add_u32 v89, v89, 14, v88
        v_and_b32 v{E0+T}, 15, v{E0+T}
        v_lshl_add_u32 v{E0+T}, v{E0+T}, 4, v89
        v_permlane16_swap_b32 v{a0}, v{a0+2}
        v_permlane16_swap_b32 v{a0+1}, v{a0+3}
        """)
    a(f"v_mov_b32 v88, {LFB + 56}\nv_mov_b32 v89, 1\ns_mov_b32 s12, {opt('dnu', 1)}")
    ladd(a, 88, 89, 0)
    a("s_mov_b32 s34, 1\ns_branch ATT\nNU_D:")
    for T in range(5): a(f"buffer_store_dwordx4 {vr(4*T,4)}, v{E0+T}, s[28:31], s26 offen sc1")
    a("s_branch ATT_SIG")
    a(f"""
P1_DONE:
    {st(14)}
    s_mov_b32 s34, 0
    v_mov_b32 v84, 1
    v_mov_b32 v85, 1
    v_mov_b32 v86, 1
    v_mov_b32 v87, 1
    v_mov_b32 v88, {LFB + 44}
    v_mov_b32 v89, 0
    s_and_b32 s23, s15, -128
    s_mov_b64 exec, 1
    s_waitcnt vmcnt(0)
    ds_add_rtn_u32 v88, v88, v84
    s_waitcnt lgkmcnt(0)
    v_cmp_eq_u32 vcc, 3, v88
    s_cbranch_vccz P1_NS
    buffer_store_dwordx4 v[84:87], v89, s[28:31], s23 offen sc1
P1_NS:
    s_mov_b64 exec, -1
    s_branch ATT
    """)

def p1_extra(a):
    T0 = 40
    a(f"""
P1_EXTRA:
    s_sub_u32 s61, s16, 8
    """)
    if opt("cwarm", 1):
        a(f"""
        s_cmp_lg_u32 s16, 10
        s_cbranch_scc1 P1_NOCW
        s_lshl_b32 s23, s18, 10
        s_cmp_ge_u32 s23, L_CODE_END - {NAME}_kernel - 1023
        s_cbranch_scc1 P1_NOCW
        s_getpc_b64 s[44:45]
L_PC:
        s_sub_u32 s44, s44, L_PC - {NAME}_kernel
        s_subb_u32 s45, s45, 0
        v_lshl_add_u32 v40, v0, 4, s23
        global_load_dwordx4 v[44:47], v40, s[44:45]
P1_NOCW:
        """)
    a(f"""
    v_lshrrev_b32 v37, 4, v0
    v_and_b32 v38, 15, v0
    v_lshlrev_b32 v39, 4, v0
    v_mov_b32 v36, v0
    s_waitcnt lgkmcnt(0)
    {srd(28, WS_P, WS_USED)}
    {srd(32, DBG_P, 256)}
    s_cmp_lg_u32 s61, 0
    s_cbranch_scc1 P1_EX_A
    v_mov_b32 v1, 0
    v_lshlrev_b32 v2, 2, v0
    v_add_u32 v2, {LFB}, v2
    ds_write_b32 v2, v1
    s_waitcnt lgkmcnt(0)
    s_cmp_lt_u32 s2, 248
    s_cbranch_scc1 P1_EX_WAITRDY
    v_mov_b32 v4, 0
    v_mov_b32 v5, 0
    v_mov_b32 v6, 0
    v_mov_b32 v7, 0
    s_lshl_b32 s23, s17, 12
    s_add_u32 s23, s23, {FLG_OFF}
    buffer_store_dwordx4 v[4:7], v39, s[28:31], s23 offen sc1
    buffer_store_dwordx4 v[4:7], v39, s[28:31], s23 offen offset:1024 sc1
    buffer_store_dwordx4 v[4:7], v39, s[28:31], s23 offen offset:2048 sc1
    buffer_store_dwordx4 v[4:7], v39, s[28:31], s23 offen offset:3072 sc1
    s_lshl_b32 s23, s17, 7
    s_add_u32 s23, s23, {FLG_OFF + 32768}
    s_mov_b64 exec, 0xff
    buffer_store_dwordx4 v[4:7], v39, s[28:31], s23 offen sc1
    s_mov_b64 exec, -1
P1_EX_WAITRDY:
P1_EX_A:
    s_lshl_b32 s23, s2, 2
    s_add_u32 s23, s23, s61
    s_mov_b32 s40, 0
P1_TBL:
    s_lshr_b32 s24, s23, 5
    s_and_b32 s25, s23, 30
    s_and_b32 s26, s24, 1
    s_lshr_b32 s27, s24, 1
    s_lshl_b32 s27, s27, 6
    s_add_u32 s27, s27, s26
    s_and_b32 s26, s23, 1
    s_lshl_b32 s26, s26, 5
    s_add_u32 s27, s27, s26
    v_lshl_add_u32 v{T0}, v38, 1, s27
    s_lshl_b32 s25, s25, 4
    v_lshl_add_u32 v{T0+1}, v37, 3, s25
    v_mul_u32_u24 v{T0+1}, v{T0}, v{T0+1}
    v_and_b32 v{T0+1}, 0x7ff, v{T0+1}
    v_cvt_f32_u32 v{T0}, v{T0}
    v_cvt_f32_u32 v{T0+1}, v{T0+1}
    v_mul_f32 v{T0}, 0x3a000000, v{T0}
    v_mul_f32 v0, 0x3a000000, v{T0+1}
    """)
    for u in range(1, 8): a(f"v_add_f32 v{u}, v{u-1}, v{T0}")
    for u in range(1, 8): a(f"v_fract_f32 v{u}, v{u}")
    for u in range(8): a(f"v_cos_f32 v{8+u}, v{u}")
    for u in range(8): a(f"v_sin_f32 v{16+u}, v{u}")
    for j in range(4): a(f"v_cvt_pk_bf16_f32 v{24+j}, v{8+2*j}, v{9+2*j}")
    for j in range(4): a(f"v_cvt_pk_bf16_f32 v{28+j}, v{16+2*j}, v{17+2*j}")
    NB0 = opt("tblbar", 2)
    a(f"""
    s_cmp_lg_u32 s40, 0
    s_cbranch_scc1 P1_TBL_ST
    s_barrier
    {st(1, True)}
    s_cmp_lg_u32 s61, 0
    s_cbranch_scc1 P1_EX_NR
    s_cmp_lt_u32 s2, 248
    s_cbranch_scc1 P1_EX_NR
    v_mov_b32 v32, 1
    v_mov_b32 v33, 0
    s_lshl_b32 s24, s17, 2
    s_waitcnt vmcnt(0)
    s_mov_b64 exec, 1
    buffer_store_dword v32, v33, s[32:35], s24 offen sc1
    s_mov_b64 exec, -1
P1_EX_NR:
    """ + "".join(f"s_barrier\n{st(1 + b_, True)}\n" for b_ in range(1, NB0)) + f"""
    s_mov_b32 s40, 1
P1_TBL_ST:
    s_lshl_b32 s24, s23, 11
    s_add_u32 s24, s24, {TB_OFF}
    buffer_store_dwordx4 v[24:27], v39, s[28:31], s24 offen sc1
    buffer_store_dwordx4 v[28:31], v39, s[28:31], s24 offen offset:1024 sc1
    s_add_u32 s23, s23, 1024
    s_cmp_lt_u32 s23, 1056
    s_cbranch_scc1 P1_TBL
    """)
    nb = NB0
    assert nb <= 6
    a("".join(f"s_barrier\n{st(1 + b_, True)}\n" for b_ in range(nb, 6)))
    u = a.uid()
    a(f"""
    v_and_b32 v1, 7, v36
    v_lshlrev_b32 v1, 2, v1
    v_mov_b32 v2, 1
    s_mov_b32 s60, 0
    s_cmp_lg_u32 s61, 0
    s_cbranch_scc1 P1_EX_C
    buffer_load_dword v2, v1, s[32:35], 0 offen sc1
P1_EX_C:
    s_barrier
    {st(7, True)}
    s_barrier
    {st(8, True)}
L_RDY{u}:
    s_waitcnt vmcnt(0)
    v_cmp_eq_u32 vcc, 0, v2
    s_cbranch_vccz P1_EX_B
    s_sleep 1
    buffer_load_dword v2, v1, s[32:35], 0 offen sc1
    s_add_u32 s60, s60, 1
    s_cmp_lt_u32 s60, 0x40000
    s_cbranch_scc1 L_RDY{u}
P1_EX_B:
    s_waitcnt vmcnt(0)
    s_barrier
    {st(9, True)}
    s_barrier
    {st(10, True)}
    s_mov_b32 s34, 0
    """)

def attention(a):
    O = 20; S = [0, 40, 136, 120]; IX = 114; P = 36; P2 = 64; Q1 = 56; Q2 = 60; K2 = 62; K1 = 16; V1 = 68; V2 = [72, 76]; T = 80
    a(f"""
ATT:
    s_cmp_lt_u32 s13, 4
    s_cselect_b32 s40, {opt("o1", 5)}, {opt("y1", 6)}
    s_cselect_b32 s41, {opt("o2", 8)}, {opt("y2", 8)}
    s_movk_i32 s35, 0x10a
    s_bitset1_b32 s35, s40
    s_bitset1_b32 s35, s41
    s_mov_b32 s24, 0xfffff
    s_mov_b32 s25, 0xfffff
    s_mul_i32 s39, s13, 1280
    s_add_u32 s39, s39, {QLDS}
    v_mov_b32 v{Q2+1}, 0
    v_mov_b32 v{K2+1}, 0x3f803f80
    v_add_u32 v{T}, s39, v{AK1}
    v_add_u32 v{T+1}, s39, v{AK2}
    v_mov_b32 v{T+2}, 1
    """)
    NQ = opt("nq", 2)
    OX = [84, O]; QX1 = [100, Q1]; QX2 = [104, Q2]; U = 106; TM = 136; XS = 107520
    if NQ == 2:
        a(f"""
        s_xor_b32 s36, s13, 1
        s_mul_i32 s39, s36, 1280
        s_add_u32 s39, s39, {QLDS}
        v_add_u32 v{U}, s39, v{AK1}
        v_add_u32 v{U+1}, s39, v{AK2}
        v_mov_b32 v{U+2}, v{AK1}
        v_mov_b32 v{U+3}, v{AK2}
        v_mov_b32 v{QX2[0]+1}, 0
        s_mov_b32 s42, {QSCALE:#x}
        s_mov_b32 s43, s42
        s_and_b32 s37, s13, 1
        s_mul_i32 s37, s37, 2560
        v_and_b32 v{U+4}, 0x70, v{VA}
        v_lshrrev_b32 v{U+4}, 2, v{U+4}
        v_add_u32 v{U+4}, {LFB}, v{U+4}
        s_lshl_b32 s23, s13, 12
        s_add_u32 s23, s23, {XS}
        v_add_u32 v{U+5}, s23, v{VA}
        v_xor_b32 v{U+7}, 4, v{PA}
        s_lshl_b32 s23, s36, 12
        s_add_u32 s23, s23, {XS}
        v_add_u32 v{U+6}, s23, v{VA}
        s_lshr_b32 s38, s13, 2
        s_add_u32 s38, s38, 7
        """)
        for r in (AK1, AK2, AV, BK1, BK2, BV): a(f"v_add_u32 v{r}, s37, v{r}")
        for r in range(16): a(f"v_mov_b32 v{OX[0]+r}, 0")
    for r in range(12): a(f"v_mov_b32 v{V1+r}, v{ONES}")
    for r in range(16): a(f"v_mov_b32 v{O+r}, 0")
    for r in range(4): a(f"v_mov_b32 v{P+r}, -1")
    for r in range(8): a(f"v_mov_b32 v{S[3]+8+r}, 0")
    a(f"v_mov_b32 v{IX}, 0xdddddddd")
    def rk1(d): return f"v_mfma_f32_32x32x8_bf16 {vr(d,16)}, {vr(K2,2)}, {vr(Q2,2)}, 0"
    def rk2(d): return f"v_mfma_f32_32x32x16_bf16 {vr(d,16)}, {vr(K1,4)}, {vr(Q1,4)}, {vr(d,16)}"
    def qk1(d): return f"v_mfma_f32_32x32x16_bf16 {vr(d,16)}, {vr(K1,4)}, {vr(Q1,4)}, 0"
    def qk2(d): return f"v_mfma_f32_32x32x8_bf16 {vr(d,16)}, {vr(K2,2)}, {vr(Q2,2)}, {vr(d,16)}"
    def pv(v, p): return f"v_smfmac_f32_32x32x32_bf16 {vr(O,16)}, {vr(v,4)}, {vr(p,8)}, v{IX}"
    def of(t): return (t - 6 if t in (6, 7) else t) * 2560
    def rdk1(t): return f"ds_read_b128 {vr(K1,4)}, v{BK1 if t in (6, 7) else AK1} offset:{of(t)}"
    def rdk2(t): return f"ds_read_b32 v{K2}, v{BK2 if t in (6, 7) else AK2} offset:{of(t)+1024}"
    def rdv(t, v2):
        b = BV if t in (6, 7) else AV
        return f"s_mov_b64 exec, s[24:25]\nds_read_b128 {vr(V1,4)}, v{b} offset:{of(t)+1280}\nds_read_b128 {vr(v2,4)}, v{b} offset:{of(t)+1920}\ns_mov_b64 exec, -1"
    def maxtree(s, m, first):
        if first:
            a(f"v_max3_f32 v{m}, v{s}, v{s+1}, v{s+2}\nv_max3_f32 v{m+1}, v{s+3}, v{s+4}, v{s+5}")
            for j in range(6, 14, 4): a(f"v_max3_f32 v{m}, v{s+j}, v{s+j+1}, v{m}\nv_max3_f32 v{m+1}, v{s+j+2}, v{s+j+3}, v{m+1}")
            a(f"v_max3_f32 v{m}, v{s+14}, v{s+15}, v{m}\nv_max_f32 v{m}, v{m}, v{m+1}")
        else:
            for j in range(0, 16, 2): a(f"v_max3_f32 v{m}, v{s+j}, v{s+j+1}, v{m}")
    def xhalf(m):
        a(f"v_mov_b32 v{m+1}, v{m}\ns_nop 1\nv_permlane32_swap_b32 v{m}, v{m+1}\ns_nop 0\nv_max_f32 v{m}, v{m}, v{m+1}")
    a(f"""
    {st(4)}
    s_barrier
    s_setprio 3
    s_cmp_lg_u32 s34, 1
    s_cbranch_scc1 ATT_NOSIG
    s_cmp_eq_u32 s22, 1
    s_cbranch_scc1 NU_QK
    s_cmp_eq_u32 s22, 2
    s_cbranch_scc1 NU_V
    s_branch NU_D
ATT_SIG:
    """)
    if opt("comb", 1):
        a(f"""
        v_mov_b32 v{T+3}, {LFB + 44}
        s_and_b32 s23, s15, -128
        s_mov_b64 exec, 1
        s_waitcnt vmcnt(0)
        ds_add_rtn_u32 v{T+3}, v{T+3}, v{T+2}
        s_waitcnt lgkmcnt(0)
        v_cmp_eq_u32 vcc, 3, v{T+3}
        s_cbranch_vccz ATT_NOSIG
        buffer_store_dwordx4 {vr(P,4)}, v{O}, s[28:31], s23 offen sc1
        """)
    else:
        a(f"s_waitcnt vmcnt(0)\ns_mov_b64 exec, 1\nbuffer_store_dword v{T+2}, v{O}, s[28:31], s15 offen sc1")
    a(f"""
ATT_NOSIG:
    s_mov_b64 exec, -1
    {st(6)}
    """)
    def e(s, j): return f"v_exp_f32 v{s+j}, v{s+j}"
    def c(s, j): return f"v_cvt_pk_bf16_f32 v{P+j}, v{s+2*j}, v{s+2*j+1}"
    if NQ == 2:
        def xk1(x, d=None): return f"v_mfma_f32_32x32x16_bf16 {vr(S[x if d is None else d],16)}, {vr(K1,4)}, {vr(QX1[x],4)}, 0"
        def xk2(x, d=None): return f"v_mfma_f32_32x32x8_bf16 {vr(S[x if d is None else d],16)}, {vr(K2,2)}, {vr(QX2[x],2)}, {vr(S[x if d is None else d],16)}"
        def xpv(x, v, p): return f"v_smfmac_f32_32x32x32_bf16 {vr(OX[x],16)}, {vr(v,4)}, {vr(p,8)}, v{IX}"
        def scale(x):
            for j in range(5): a(f"v_lshlrev_b32 v{TM+2*j}, 16, v{QX1[x]+j}\nv_and_b32 v{TM+2*j+1}, 0xffff0000, v{QX1[x]+j}")
            for j in range(0, 10, 2): a(f"v_pk_mul_f32 {vr(TM+j,2)}, {vr(TM+j,2)}, s[42:43]")
            for j in range(5): a(f"v_cvt_pk_bf16_f32 v{QX1[x]+j}, v{TM+2*j}, v{TM+2*j+1}")
        MH = f32bits(-0.5 * (20 ** -0.5) * math.log2(math.e))
        a(f"""
        ds_read_b128 {vr(K1,4)}, v{U+2}
        ds_read_b32 v{K2}, v{U+3} offset:1024
        ds_read_b128 {vr(QX1[0],4)}, v{U}
        ds_read_b32 v{QX2[0]}, v{U+1} offset:1024
        ds_read_b128 {vr(Q1,4)}, v{T}
        ds_read_b32 v{Q2}, v{T+1} offset:1024
        {rdv(0, V2[0])}
        s_waitcnt lgkmcnt(4)
        {xk1(0)}
        {xk2(0)}
        s_waitcnt lgkmcnt(2)
        {xk1(1)}
        {xk2(1)}
        {rdk1(0)}
        {rdk2(0)}
        s_mov_b32 s26, 0
        """)
        scale(0)
        maxtree(S[0], T, True)
        a(f"v_mul_f32 v{T}, {MH:#x}, v{T}\nv_cvt_pk_bf16_f32 v{QX2[0]+1}, v{T}, 0\ns_waitcnt lgkmcnt(0)\n{xk1(0)}\n{xk2(0)}")
        scale(1)
        maxtree(S[1], T, True)
        a(f"""
        v_mul_f32 v{T}, {MH:#x}, v{T}
        v_cvt_pk_bf16_f32 v{Q2+1}, v{T}, 0
        {xk1(1)}
        {rdk1(2)}
        buffer_store_dwordx4 {vr(P,4)}, v{OA1}, s[28:31], s6 offen sc1
        s_mov_b64 exec, 0xffff
        buffer_store_dwordx4 {vr(P,4)}, v{OA2}, s[28:31], s7 offen sc1
        s_mov_b64 exec, -1
        {st(7)}
ATT_LOOP:
        """)
        for i in range(4):
            for x in (0, 1):
                SP = {0: (4, 8, 12), 1: (5, 8, 13), 2: (4, 7, 11), 3: (5, 9, 13)}[opt('sp', 0)]
                n = 2 * i + x; cur = S[n % 4]; y = 1 - x; t_ = 2 * (i + 1)
                if x == 1: a("s_waitcnt lgkmcnt(0)")
                a(xk2(y, (n + 1) % 4))
                if x == 0: a(rdk2(t_))
                for q in range(SP[0]): a(e(cur, q))
                a(xpv(y, V2[(i + 1) % 2] if x == 0 else V2[i % 2], S[(n - 1) % 4] + 8))
                if x == 0: a("s_waitcnt lgkmcnt(1)")
                if x == 1 and i == 1: a(f"ds_write_b32 v{PA}, v{T+2}")
                if x == 1 and i == 3: a(f"ds_read_b32 v{U}, v{U+4}")
                for q in range(SP[0], SP[1]): a(e(cur, q))
                a(xk1(x, (n + 2) % 4))
                if x == 1: a(rdk1(t_ + 2))
                for q in range(SP[1], SP[2]): a(e(cur, q))
                a(xpv(x, V1, cur))
                if x == 1: a(rdv(t_, V2[(i + 1) % 2]))
                for q in range(SP[2], 16): a(e(cur, q))
    a(f"""
    s_add_u32 s26, s26, 1
    s_movk_i32 s27, 0x5000
    s_cmp_eq_u32 s26, 7
    s_cselect_b32 s27, {(0x5000 - 62 * 2560) & 0xffffffff}, s27
    v_add_u32 v{AK1}, 0x5000, v{AK1}
    v_add_u32 v{AK2}, 0x5000, v{AK2}
    v_add_u32 v{AV}, 0x5000, v{AV}
    v_add_u32 v{BK1}, s27, v{BK1}
    v_add_u32 v{BK2}, s27, v{BK2}
    v_add_u32 v{BV}, s27, v{BV}
    v_add_u32 v{T+2}, 1, v{T+2}
    s_bitcmp1_b32 s35, s26
    s_cbranch_scc0 ATT_LOOP
    s_cmp_gt_u32 s26, 3
    s_cbranch_scc1 ATT_EV
    v_add_u32 v{FA}, 8, v{FA}
    s_waitcnt vmcnt(0)
ATT_WAIT:
    ds_read_b32 v{T}, v{FA}
    s_waitcnt lgkmcnt(0)
    v_readfirstlane_b32 s23, v{T}
    s_cmp_ge_u32 s23, 4
    s_cbranch_scc1 ATT_LOOP
    s_sleep 1
    s_branch ATT_WAIT
ATT_EV:
    s_setprio 2
    s_cmp_eq_u32 s26, s40
    s_cbranch_scc1 ATT_LOOP
    s_setprio 1
    s_cmp_lt_u32 s26, 8
    s_cbranch_scc1 ATT_LOOP
    s_setprio 3
    {pv(V2[1], S[3]+8)}
    {st(8)}
    """)
    if NQ == 2:
        a(f"""
        s_mov_b32 s27, 0x3e800000
        s_mov_b32 s23, 0x71800000
        s_waitcnt lgkmcnt(3)
        v_cmp_gt_u32 vcc, s38, v{U}
        s_cbranch_vccz ATT_X0
ATT_X1:
        s_sleep 2
        ds_read_b32 v{U}, v{U+4}
        s_waitcnt lgkmcnt(0)
        v_cmp_gt_u32 vcc, s38, v{U}
        s_cbranch_vccnz ATT_X1
ATT_X0:
        """)
        for j in range(3): a(f"ds_write_b128 v{U+5}, {vr(OX[0]+4*j,4)} offset:{1024*j}")
        a(f"ds_write_b64 v{U+5}, {vr(OX[0]+12,2)} offset:3072\nds_write_b32 v{PA}, v{T+2} offset:96\nATT_X2:\nds_read_b32 v{U}, v{U+7} offset:96")
        for j in range(3): a(f"ds_read_b128 {vr(S[0]+4*j,4)}, v{U+6} offset:{1024*j}")
        a(f"ds_read_b64 {vr(S[0]+12,2)}, v{U+6} offset:3072\ns_waitcnt lgkmcnt(0)\nv_cmp_eq_u32 vcc, 0, v{U}\ns_cbranch_vccz ATT_X3\ns_sleep 1\ns_branch ATT_X2\nATT_X3:\ns_nop 1")
        for r in range(0, 14, 2): a(f"v_pk_add_f32 {vr(O+r,2)}, {vr(O+r,2)}, {vr(S[0]+r,2)}")
    else:
        a("s_mov_b32 s27, 0x3e800000\ns_mov_b32 s23, 0x71800000\ns_nop 9")
    a(f"v_rcp_f32 v{T+2}, v{O+12}\nv_add_f32 v{T}, |v{O}|, |v{O+1}|\nv_add_f32 v{T+1}, |v{O+2}|, |v{O+3}|")
    for j in range(4, 12, 2): a(f"v_add_f32 v{T}, |v{O+j}|, v{T}\nv_add_f32 v{T+1}, |v{O+j+1}|, v{T+1}")
    a(f"""
    v_add_f32 v{T}, v{T}, v{O+12}
    v_cmp_le_f32 s[42:43], s27, v{O+12}
    v_add_f32 v{T}, v{T}, v{T+1}
    v_cmp_gt_f32 vcc, s23, v{T}
    s_and_b64 vcc, vcc, s[42:43]
    s_cmp_eq_u64 vcc, -1
    s_cbranch_scc0 ATT_FALLBACK
ATT_FINISH:
    """)
    for j in range(0, 8, 2): a(f"v_pk_mul_f32 {vr(O+j,2)}, {vr(O+j,2)}, {vr(T+2,2)} op_sel_hi:[1,0]")
    for j in range(4): a(f"v_cvt_pk_bf16_f32 v{P+j}, v{O+2*j}, v{O+2*j+1}")
    for j in range(4): a(f"v_min_u32 v{P+j}, -2, v{P+j}")
    a(f"buffer_store_dwordx4 {vr(P,4)}, v{OA1}, s[28:31], s6 offen sc1")
    for j in range(8, 12, 2): a(f"v_pk_mul_f32 {vr(O+j,2)}, {vr(O+j,2)}, {vr(T+2,2)} op_sel_hi:[1,0]")
    for j in range(4, 6): a(f"v_cvt_pk_bf16_f32 v{P2+j-4}, v{O+2*j}, v{O+2*j+1}")
    for j in range(4, 6): a(f"v_min_u32 v{P2+j-4}, -2, v{P2+j-4}")
    a(f"""
    s_nop 1
    v_permlane16_swap_b32 v{P2}, v{P2+2}
    v_permlane16_swap_b32 v{P2+1}, v{P2+3}
    s_mov_b64 exec, 0xffff
    buffer_store_dwordx4 {vr(P2,4)}, v{OA2}, s[28:31], s7 offen sc1
    {st(9)}
    s_cmp_ge_u32 s13, 4
    s_cbranch_scc1 {"L_DONE" if STAMP else "L_END"}
    s_mov_b64 exec, -1
    s_xor_b32 s41, s13, {opt('gx', 2)}
    s_mov_b32 s47, 1
    s_branch P3_GO
    """)
    def gk(): return f"buffer_load_dwordx4 {vr(K1,4)}, v{AK1}, s[28:31], s23 offen sc1\nbuffer_load_dword v{K2}, v{AK2}, s[28:31], s23 offen offset:1024 sc1"
    a(f"""
ATT_FALLBACK:
    s_waitcnt lgkmcnt(0)
    v_mov_b32 v{Q2+1}, 0
    v_mov_b32 v{T}, 0xff800000
    {f's_add_u32 s23, s37, {HS}' if NQ == 2 else f's_mov_b32 s23, {HS}'}
    v_subrev_u32 v{AK1}, s23, v{AK1}
    v_subrev_u32 v{AK2}, s23, v{AK2}
    v_subrev_u32 v{AV}, s23, v{AV}
    s_add_u32 s23, s14, {KV_OFF}
    s_mov_b32 s26, 0
ATT_FB1:
    {gk()}
    s_add_u32 s23, s23, 2560
    s_waitcnt vmcnt(0)
    {qk1(S[0])}
    {qk2(S[0])}
    s_nop 15
    """)
    maxtree(S[0], T, False)
    a("s_add_u32 s26, s26, 1\ns_cmp_lt_u32 s26, 64\ns_cbranch_scc1 ATT_FB1")
    xhalf(T)
    a(f"s_add_u32 s23, s14, {KV_OFF}\ns_mov_b32 s26, 0")
    for r in range(16): a(f"v_mov_b32 v{O+r}, 0")
    a(f"""
ATT_FB2:
    {gk()}
    s_mov_b64 exec, s[24:25]
    buffer_load_dwordx4 {vr(V1,4)}, v{AV}, s[28:31], s23 offen offset:1280 sc1
    buffer_load_dwordx4 {vr(V2[0],4)}, v{AV}, s[28:31], s23 offen offset:1920 sc1
    s_mov_b64 exec, -1
    s_add_u32 s23, s23, 2560
    s_waitcnt vmcnt(0)
    {qk1(S[0])}
    {qk2(S[0])}
    s_nop 15
    """)
    for q in range(16): a(f"v_sub_f32 v{S[0]+q}, v{S[0]+q}, v{T}")
    for q in range(16): a(e(S[0], q))
    a(f"""
    s_nop 1
    {pv(V1, S[0])}
    {pv(V2[0], S[0]+8)}
    s_add_u32 s26, s26, 1
    s_cmp_lt_u32 s26, 64
    s_cbranch_scc1 ATT_FB2
    s_nop 15
    s_nop 3
    v_rcp_f32 v{T+2}, v{O+12}
    s_nop 0
    s_branch ATT_FINISH
    """)

def lwait(a, vaddr, vdat, mask, target, slp=8):
    u = a.uid()
    a(f"""
    s_mov_b64 exec, {mask}
    s_branch L_LWE{u}
L_LW{u}:
    s_sleep {slp}
L_LWE{u}:
    ds_read_b32 v{vdat}, v{vaddr}
    s_waitcnt lgkmcnt(0)
    v_cmp_gt_u32 vcc, {target}, v{vdat}
    s_cbranch_vccnz L_LW{u}
    s_mov_b64 exec, -1
    """)
def ladd(a, vaddr, vone, off):
    a(f"s_mov_b64 exec, 1\nds_add_u32 v{vaddr}, v{vone} offset:{off}\ns_mov_b64 exec, -1")

def helpers(a):
    WA, VG, VZ, SH, HPA, HONE, YFA, FZ, SG, XA5, LF = 112, 117, 118, 119, 120, 121, 122, 123, 124, 125, 126
    ZL = 40; G = 167; VY = 162; T = 132; LT = 127
    a(f"""
HELPER:
    s_mov_b32 s61, s22
    {st(2)}
    {srd(28, WS_P, WS_USED)}
    s_setprio 0
    s_lshr_b32 s20, s18, 2
    s_mul_i32 s26, s20, 160
    s_movk_i32 s23, {1280 - 160}
    """)
    for i in range(5):
        a(f"""
        v_add_u32 v{T}, {64*i}, v0
        v_mul_u32_u24 v{T+1}, 6554, v{T}
        v_lshrrev_b32 v{T+1}, 16, v{T+1}
        v_lshlrev_b32 v{T}, 4, v{T}
        v_mad_u32_u24 v{WA+i}, v{T+1}, s23, v{T}
        """)
    a(f"""
    s_lshl_b32 s21, s17, 3
    s_and_b32 s22, s18, 3
    s_add_u32 s21, s21, s22
    s_lshr_b32 s22, s16, 1
    s_lshl_b32 s22, s22, 2
    s_add_u32 s21, s21, s22
    s_lshl_b32 s21, s21, 1
    s_and_b32 s22, s16, 1
    s_add_u32 s21, s21, s22
    s_lshr_b32 s22, s21, 2
    s_lshl_b32 s22, s22, 1
    s_and_b32 s24, s21, 1
    s_add_u32 s22, s22, s24
    s_lshl_b32 s22, s22, 3
    v_and_b32 v{T}, 7, v0
    v_add_u32 v{T}, s22, v{T}
    s_bitcmp1_b32 s21, 1
    s_cselect_b32 s22, 0x400, 0
    s_cselect_b32 s24, -1, 1
    v_mul_lo_u32 v{T+1}, v{T}, s24
    s_sub_u32 s24, 0x800, s22
    v_sub_u32 v{T+2}, s24, v{T+1}
    v_add_u32 v{T+1}, s22, v{T+1}
    v_and_b32 v{T+3}, 8, v0
    v_cmp_ne_u32 vcc, 0, v{T+3}
    v_cmp_eq_u32 s[42:43], 0, v{T}
    v_lshlrev_b32 v{T+3}, 6, v{T+3}
    v_add_u32 v{T+3}, s22, v{T+3}
    v_cndmask_b32 v{T}, v{T+1}, v{T+2}, vcc
    v_lshrrev_b32 v{T+1}, 4, v0
    v_cndmask_b32 v{T}, v{T}, v{T+3}, s[42:43]
    v_mul_u32_u24 v{VY}, 1280, v{T}
    v_mul_u32_u24 v{T+2}, 40, v{T+1}
    v_add3_u32 v{VY}, v{VY}, v{T+2}, s26
    v_lshlrev_b32 v{VG}, 2, v{T}
    v_sub_u32 v{T+3}, 0x800, v{T}
    v_cmp_lt_u32 vcc, 0x400, v{T}
    v_min_u32 v{T}, v{T}, v{T+3}
    v_and_b32 v{T+3}, 1, v{T}
    v_mul_u32_u24 v{VZ}, {ZP}, v{T+3}
    v_lshrrev_b32 v{T+3}, 1, v{T}
    v_lshl_add_u32 v{VZ}, v{T+3}, 4, v{VZ}
    v_mov_b32 v{T+3}, 0x02020202
    v_cndmask_b32 v{SH}, 0, v{T+3}, vcc
    s_cmp_ge_u32 s20, 4
    s_mov_b32 s24, 0x05040100
    s_cselect_b32 s24, 0x07060302, s24
    s_cselect_b32 s40, -1, 1
    s_cselect_b32 s41, 155, 0
    v_xor_b32 v{SH}, s24, v{SH}
    s_mul_i32 s24, s20, 20
    v_mul_u32_u24 v{T+3}, 5, v{T+1}
    v_add_u32 v{T+3}, s24, v{T+3}
    v_mul_lo_u32 v{T+3}, v{T+3}, s40
    v_add_u32 v{T+3}, s41, v{T+3}
    v_mul_u32_u24 v{T+3}, {2*ZP}, v{T+3}
    v_add_u32 v{VZ}, v{VZ}, v{T+3}
    {p3_addr(0)}
    v_lshlrev_b32 v{HPA}, 2, v0
    v_add_u32 v{HPA}, {LFB}, v{HPA}
    v_mov_b32 v{HONE}, 1
    s_lshl_b32 s23, s2, 2
    s_add_u32 s23, s23, {FLG_OFF + 32768}
    v_mov_b32 v{YFA}, s23
    v_lshrrev_b32 v{FZ}, 4, v0
    v_mul_u32_u24 v{FZ}, {2*ZP}, v{FZ}
    v_and_b32 v{T}, 15, v0
    v_lshl_add_u32 v{FZ}, v{T}, 4, v{FZ}
    v_lshlrev_b32 v{SG}, 31, v0
    v_and_b32 v{XA5}, 48, v0
    v_lshlrev_b32 v{LF}, 7, v0
    v_bfe_u32 v{LT}, v0, 1, 2
    v_lshlrev_b32 v{LT}, 13, v{LT}
    v_and_b32 v{T}, 1, v0
    v_lshl_add_u32 v{LT}, v{T}, 7, v{LT}
    s_setprio 3
    s_lshr_b32 s19, s18, 3
    s_lshl_b32 s23, s17, 2
    s_add_u32 s19, s19, s23
    s_and_b32 s62, s18, 7
    s_mul_i32 s21, s19, {HG}
    v_lshlrev_b32 v1, 4, v0
    {st(3)}
    s_lshr_b32 s23, s19, 3
    s_lshl_b32 s23, s23, 13
    s_add_u32 s23, s23, {FLG_OFF}
    v_lshlrev_b32 v2, 7, v0
    v_add_u32 v2, s23, v2
    s_add_u32 s24, s21, {KV_OFF}
    s_lshl_b32 s40, 0x10000, s16
    s_lshl_b32 s41, 1, s16
    s_mul_i32 s22, s16, 10240
    s_add_u32 s26, s24, s22
    s_cmp_lg_u32 s16, 3
    s_cbranch_scc1 H_JA
    s_lshl_b32 s25, s62, 1
    s_lshl_b32 s40, 3, s25
    s_mov_b32 s41, 0
    s_mov_b32 s22, {QLDS}
    s_mul_i32 s26, s19, {HQ}
    s_mul_i32 s25, s62, 10240
    s_add_u32 s26, s26, s25
    s_add_u32 s26, s26, {Q_OFF}
H_JA:
    """)
    def job():
        r = f"s_add_u32 s25, s22, 5120\ns_cmp_ge_u32 s25, {LFB}\ns_cselect_b32 s25, 0, s25\n"
        for n in range(10):
            if n in (0, 3): r += f"s_add_u32 m0, s22, {1024*n}\ns_add_u32 s27, s26, {1024*n}\n"; o = 0
            if n in (5, 8): r += f"s_add_u32 m0, s25, {1024*(n-5)}\ns_add_u32 s27, s26, {1024*n}\n"; o = 0
            r += f"buffer_load_dwordx4 v1, s[28:31], s27 offen offset:{o} sc1 lds\n"; o += 1024
        return r
    if opt("latep", 1):
        a(f"s_mul_i32 s23, s12, 12\ns_cmp_eq_u32 s61, 3\ns_cselect_b32 s23, 12, s23\ns_add_u32 s23, s23, {LFB + 44}\nv_mov_b32 v3, s23")
        lwait(a, 3, 4, 1, 4, 2)
        if opt("lps", 0): a(f"s_sleep {opt('lps', 0)}")
    poll4(a, 2, 4, "s[40:41]")
    a(st(11)); a(job())
    a(f"""
    s_lshl_b32 s40, 0x80000, s16
    s_lshl_b32 s41, 8, s16
    s_add_u32 s22, s16, 3
    s_mul_i32 s22, s22, 10240
    s_add_u32 s26, s24, s22
    s_waitcnt vmcnt(0)
    {st(12)}
    s_barrier
    """)
    poll4(a, 2, 4, "s[40:41]")
    a(job())
    a(f"""
H_JB:
    s_lshl_b32 s41, 0x8880, s16
    s_and_b32 s41, s41, 0xffff
    s_lshl_b32 s40, s41, 16
    s_add_u32 s22, s16, 7
    s_mul_i32 s22, s22, 10240
    s_add_u32 s26, s24, s22
    s_waitcnt vmcnt(0)
    """)
    ladd(a, HPA, HONE, 64)
    lwait(a, HPA, 4, 0xff, 1)
    poll4(a, 2, 4, "s[40:41]", slp=8)
    a(f"{st(13)}\nH_JC:"); a(job())
    a(f"""
    s_add_u32 s22, s22, 40960
    s_add_u32 s26, s26, 40960
    s_cmp_lt_u32 s22, {HS}
    s_cbranch_scc1 H_JC
    s_waitcnt vmcnt(0)
    {st(4)}
    """)
    ladd(a, HPA, HONE, 72)
    a(f"""
    s_cmp_lt_u32 s16, 3
    s_cbranch_scc1 H_FNET
    """)
    a(f"""
    {srd(32, X_P, 2048*1280)}
    {srd(36, GATE_P, 1280)}
    v_lshrrev_b32 v2, 3, v0
    v_and_b32 v3, 7, v0
    v_lshlrev_b32 v3, 4, v3
    s_movk_i32 s22, 1280
    v_mad_u32_u24 v4, v2, s22, v3
    s_mul_i32 s23, s2, {8*1280}
    """)
    for j in range(10):
        a(f"buffer_load_dwordx4 {vr(24+8*j,4)}, v4, s[32:35], s23 offen offset:{128*j}")
        a(f"buffer_load_dwordx4 {vr(28+8*j,4)}, v3, s[36:39], 0 offen offset:{128*j}")
    a("v_mov_b32 v5, 0\nv_mov_b32 v6, 0\ns_waitcnt vmcnt(0)")
    for j in range(10):
        for q in range(4):
            a(f"v_dot2c_f32_bf16 v{5 + (q & 1)}, v{24+8*j+q}, v{28+8*j+q}")
    a(f"""
    s_nop 2
    v_add_f32 v5, v5, v6
    s_nop 1
    v_add_f32_dpp v5, v5, v5 quad_perm:[1,0,3,2] row_mask:0xf bank_mask:0xf
    s_nop 1
    v_add_f32_dpp v5, v5, v5 quad_perm:[2,3,0,1] row_mask:0xf bank_mask:0xf
    s_nop 1
    v_add_f32_dpp v5, v5, v5 row_half_mirror row_mask:0xf bank_mask:0xf
    v_mul_f32 v5, {f32bits(-math.log2(math.e)):#x}, v5
    v_exp_f32 v5, v5
    v_lshlrev_b32 v2, 2, v2
    v_add_f32 v5, 1.0, v5
    v_rcp_f32 v5, v5
    s_lshl_b32 s23, s2, 5
    s_add_u32 s23, s23, {G_OFF}
    buffer_store_dword v5, v2, s[28:31], s23 offen sc1
    s_branch H_MID
    """)
    C, SN, FB = 0, 8, 16
    a(f"""
H_FNET:
    {'s_branch H_MID' if opt('nofnet', 0) == 1 else ''}
    s_lshl_b32 s22, s16, 5
    s_add_u32 s22, s22, s18
    s_cmp_lt_u32 s22, 84
    s_cbranch_scc1 H_FN_A
    s_sub_u32 s24, s22, 84
    s_lshl_b32 s24, s24, 3
    s_add_u32 s24, s24, s17
    s_cmp_ge_u32 s24, 21
    s_cbranch_scc1 H_MID
    s_mov_b32 s23, 32
    s_branch H_FN_B
H_FN_A:
    s_mul_i32 s23, s22, 3121
    s_lshr_b32 s23, s23, 16
    s_mul_i32 s24, s23, 21
    s_sub_u32 s24, s22, s24
    s_lshl_b32 s23, s23, 3
    s_add_u32 s23, s23, s17
H_FN_B:
    s_and_b32 s25, s23, 1
    s_add_u32 s26, s24, 20
    s_cmp_eq_u32 s24, 20
    s_cselect_b32 s26, 20, s26
    s_mul_i32 s32, s24, 26
    s_lshr_b32 s32, s32, 8
    s_lshl_b32 s32, s32, 13
    s_add_u32 s32, s32, {48 * 128}
    s_mul_i32 s33, s26, 26
    s_lshr_b32 s33, s33, 8
    s_lshl_b32 s33, s33, 13
    s_add_u32 s33, s33, {32 * 128}
    s_and_b32 s34, s23, 31
    s_lshl_b32 s34, s34, 8
    s_mov_b64 exec, 0xffff
    v_add_u32 v2, s32, v{LF}
    s_mov_b32 exec_lo, 0xffff0000
    v_add_u32 v2, s33, v{LF}
    s_mov_b32 exec_lo, 0
    s_mov_b32 exec_hi, 0xff
    v_add_u32 v2, s34, v{LT}
    s_mov_b32 s40, -1
    s_movk_i32 s41, 0xff
    s_mov_b32 s27, {FLG_OFF}
    """)
    poll4(a, 2, 4, "s[40:41]", "s27", slp=8)
    a(st(14))
    a(f"""
    s_lshl_b32 s32, s23, 16
    s_add_u32 s32, s32, {TB_OFF}
    s_mul_i32 s27, s25, {FO_DELTA}
    s_add_u32 s27, s27, {FE_OFF}
    s_lshl_b32 s33, s24, 14
    s_add_u32 s33, s33, s27
    s_lshl_b32 s34, s26, 14
    s_add_u32 s34, s34, s27
    s_cmp_eq_u32 s25, 0
    s_cselect_b32 s35, s24, s26
    s_lshl_b32 s35, s35, 6
    s_add_u32 s35, s35, {X512_OFF}
    buffer_load_dwordx4 v[128:131], v{XA5}, s[28:31], s35 offen sc1
    """)
    def fl(j):
        r = FB + 24 * j
        s_ = f"buffer_load_dwordx4 {vr(r,4)}, v163, s[28:31], s33 offen offset:{1024*j} sc1\n"
        s_ += f"buffer_load_dwordx4 {vr(r+4,4)}, v163, s[28:31], s34 offen offset:{1024*j} sc1\n"
        for k in range(4): s_ += f"buffer_load_dwordx4 {vr(r+8+4*k,4)}, v163, s[28:31], s32 offen offset:{1024*k} sc1\n"
        s_ += "s_add_u32 s32, s32, 4096\n"
        if j == 3: s_ += "s_add_u32 s33, s33, 4096\ns_add_u32 s34, s34, 4096\n"
        return s_
    def fm(j):
        r = FB + 24 * j
        s_ = ""
        if opt("nofnet", 0) == 2: return s_
        for sub in range(2):
            s_ += f"v_mfma_f32_16x16x32_bf16 {vr(C+4*sub,4)}, {vr(r,4)}, {vr(r+8+8*sub,4)}, {vr(C+4*sub,4)}\n"
            s_ += f"v_mfma_f32_16x16x32_bf16 {vr(SN+4*sub,4)}, {vr(r+4,4)}, {vr(r+12+8*sub,4)}, {vr(SN+4*sub,4)}\n"
        return s_
    for j in range(4): a(fl(j))
    a(f"""
    s_cmp_eq_u32 s25, 0
    s_cselect_b32 s36, 1.0, 0
    s_cselect_b32 s37, 0, 1.0
    v_or_b32 v161, s37, v{SG}
    v_or_b32 v160, s36, v{SG}
    s_waitcnt vmcnt(24)
    """)
    for r in range(8): a(f"v_mul_f32 v{C+r}, v160, v{128 + r % 4}\nv_mul_f32 v{SN+r}, v161, v{128 + r % 4}")
    a("s_mov_b32 s38, 0\nH_FN_LOOP:")
    for j in range(4):
        a("s_waitcnt vmcnt(18)"); a(fm(j)); a(fl(j))
    a("s_add_u32 s38, s38, 1\ns_cmp_lt_u32 s38, 3\ns_cbranch_scc1 H_FN_LOOP")
    for j in range(4):
        a(f"s_waitcnt vmcnt({18-6*j})"); a(fm(j))
    a(f"""
    s_cmp_eq_u32 s26, 20
    s_cselect_b32 s44, 0xffff, 0
    s_mov_b32 s45, 0
    s_mul_i32 s26, s24, {8*ZP}
    s_mul_i32 s27, s25, {ZP}
    s_add_u32 s26, s26, s27
    s_lshr_b32 s27, s23, 1
    s_lshl_b32 s27, s27, 9
    s_add_u32 s26, s26, s27
    s_add_u32 s26, s26, {Y_OFF}
    v_cndmask_b32 v{SN}, v{SN}, 0, s[44:45]
    v_cndmask_b32 v{SN+4}, v{SN+4}, 0, s[44:45]
    """)
    for r in range(8):
        a(f"v_add_f32 v{16+r}, v{C+r}, v{SN+r}\nv_sub_f32 v{C+r}, v{C+r}, v{SN+r}")
    for r in range(8): a(f"v_cvt_pk_bf16_f32 v{16+r}, v{16+r}, v{C+r}")
    a(f"buffer_store_dwordx4 v[16:19], v{FZ}, s[28:31], s26 offen sc1\nbuffer_store_dwordx4 v[20:23], v{FZ}, s[28:31], s26 offen offset:256 sc1")
    a(f"""
H_MID:
    s_lshl_b32 s19, s17, 2
    s_and_b32 s20, s18, 3
    s_add_u32 s19, s19, s20
    s_lshr_b32 s20, s18, 2
    {srd(32, WO_P, 640*1280)}
    {srd(36, OUT_P, 2621440)}
    s_mul_i32 s26, s20, 160
    s_mul_i32 s27, s16, {160*1280}
    s_add_u32 s27, s27, s26
    s_movk_i32 s23, {1280 - 160}
    """)
    a(f"""
    s_add_u32 s25, s16, 1
    s_and_b32 s25, s25, 3
    s_mul_i32 s22, s25, 25600
    s_add_u32 s22, s22, {WOL}
    s_add_u32 s25, s25, 3
    s_waitcnt vmcnt(0)
    {st(5)}
    """)
    lwait(a, HPA, T + 1, 0xff, 2)
    a(f"""s_mov_b64 exec, 1
    ds_add_rtn_u32 v{T+1}, v{HPA}, v{HONE} offset:48
    s_waitcnt lgkmcnt(0)
    v_cmp_eq_u32 vcc, 3, v{T+1}
    s_cbranch_vccz H_NOY
    buffer_store_dword v{HONE}, v{YFA}, s[28:31], 0 offen sc1
H_NOY:
    s_mov_b64 exec, -1""")
    lwait(a, HPA, T + 1, 0xff, "s25")
    a(f"{st(6)}\ns_mov_b32 s25, 0\nH_WO:")
    for i in range(5):
        a(f"s_add_u32 m0, s22, {1024*i}\ns_nop 0\nbuffer_load_dwordx4 v{WA+i}, s[32:35], s27 offen lds")
    a(f"""
    s_add_u32 s22, s22, 5120
    s_add_u32 s27, s27, {32*1280}
    s_add_u32 s25, s25, 1
    s_cmp_lt_u32 s25, 5
    s_cbranch_scc1 H_WO
    s_cmp_lg_u32 s16, 3
    s_cbranch_scc1 H_YW
    """)
    lwait(a, HPA, T + 1, 0xff, opt("ypr", 5), 16)
    a(f"s_mov_b32 s27, {FLG_OFF + 32768}")
    poll4(a, VA, 4, "-1", "s27", slp=16)
    ladd(a, HPA, HONE, 40)
    a(f"H_YW:\nv_add_u32 v{T}, 40, v{HPA}")
    lwait(a, T, T + 1, 1, 1, 16)
    a("s_waitcnt vmcnt(0)")
    a(f"v_mov_b32 v{T}, 2")
    ladd(a, HPA, T, 32)
    a(f"{st(7)}\ns_mov_b32 s26, {Y_OFF}\ns_mov_b32 s27, {G_OFF}\nbuffer_load_dword v{G}, v{VG}, s[28:31], s27 offen sc1")
    for j in range(6):
        a(f"buffer_load_dwordx4 {vr(ZL+4*j,4)}, v{VZ}, s[28:31], s26 offen sc1\ns_add_u32 s26, s26, {2*ZP}")
    BF, OFR, ACC, YG = 0, 100, 120, 140
    VY2, G2 = 162, 167
    a(f"""
    s_waitcnt vmcnt(0)
    s_cmp_ge_u32 s20, 4
    s_cbranch_scc1 H_DESC
    """)
    for k in range(10): a(f"v_perm_b32 v{YG+10+k}, v{ZL+2*k+1}, v{ZL+2*k}, v{SH}")
    a("s_branch H_UNP\nH_DESC:")
    for k in range(10): a(f"v_perm_b32 v{YG+10+k}, v{ZL+19-2*k}, v{ZL+20-2*k}, v{SH}")
    a("H_UNP:")
    lwait(a, HPA, 8, 0xf, 8)
    a(f"""
    {st(8)}
    s_mov_b32 s41, s16
    s_mov_b32 s47, 0
P3_GO:
    s_setprio {opt('p3o', 0)}
    s_lshl_b32 s22, s17, 3
    s_and_b32 s23, s18, 3
    s_add_u32 s22, s22, s23
    s_lshl_b32 s22, s22, 1
    s_add_u32 s22, s22, s47
    s_mul_i32 s22, s22, 20480
    s_add_u32 s22, s22, {OF_OFF}
    s_lshl_b32 s44, s41, 12
    s_add_u32 s44, s44, s22
    s_lshl_b32 s45, s41, 10
    s_add_u32 s45, s45, s22
    s_add_u32 s45, s45, 16384
    s_lshl_b32 s46, s47, 2
    s_add_u32 s40, s46, {LFB + 80}
    s_add_u32 s46, s46, s41
    s_mul_i32 s46, s46, 5120
    s_add_u32 s46, s46, {WOL}
    s_mov_b32 s26, 0
    s_mov_b32 s42, 0
    v_mov_b32 v{CM}, {LFB + 32}
    """)
    lwait(a, CM, CT, 1, 8)
    a("P3_TRY:")
    for k in range(4):
        a(f"buffer_load_dwordx4 {vr(OFR+4*k,4)}, v{VA}, s[28:31], s44 offen offset:{1024*k} sc1")
    a(f"buffer_load_dwordx2 {vr(OFR+16,2)}, v{VT}, s[28:31], s45 offen sc1\nbuffer_load_dwordx2 {vr(OFR+18,2)}, v{VT}, s[28:31], s45 offen offset:128 sc1")
    a(f"""
    s_cmp_lg_u32 s26, 0
    s_cbranch_scc1 P3_CHK
    s_add_u32 s23, s41, 1
    s_and_b32 s23, s23, 3
    s_mul_i32 s23, s23, 25600
    s_add_u32 s23, s23, {WOL}
    v_add_u32 v{CM}, s23, v{BMM}
    v_add_u32 v{CT}, s23, v{BMT}
    """)
    for n in range(25):
        k, t = divmod(n, 5); d = BF + 4 * n
        bb, o, dj = (CM, k * 6400 + t * 8, 1280) if k < 4 else (CT, t * 8, 3200)
        a(f"ds_read_b64_tr_b16 {vr(d,2)}, v{bb} offset:{o}\nds_read_b64_tr_b16 {vr(d+2,2)}, v{bb} offset:{o+dj}")
    a(f"v_mov_b32 v{BMM}, {LFB + 36}\nv_mov_b32 v{BMT}, 1\ns_waitcnt lgkmcnt(0)")
    ladd(a, BMM, BMT, 0)
    b = OFR
    def mfs(k): return "\n".join(f"v_mfma_f32_16x16x32_bf16 {vr(ACC+4*t,4)}, {vr(BF+4*(5*k+t),4)}, {vr(OFR+4*k,4)}, {vr(ACC+4*t,4) if k else 0}" for t in range(5))
    if opt("spec", 1):
        a("P3_CHK:\ns_add_u32 s26, s26, 1\ns_mov_b32 s43, -1")
        for k in range(5):
            r = b + 4 * k
            a(f"""P3_C{k}:
            s_waitcnt vmcnt({max(0, 5 - k) if k < 4 else 0})
            v_max3_u32 v{CM}, v{r}, v{r+1}, v{r+2}
            v_max3_u32 v{CM}, v{r+3}, v{CM}, 1
            v_cmp_eq_u32 vcc, s43, v{CM}
            s_cbranch_vccnz P3_B{k}
            {mfs(k)}""")
        a(f"{'' if opt('fst', 0) else st(11)}\ns_branch P3_OK")
        for k in range(5):
            a(f"P3_B{k}:\ns_sleep {opt('p3s', 4)}")
            for kk in range(k, 4):
                a(f"buffer_load_dwordx4 {vr(OFR+4*kk,4)}, v{VA}, s[28:31], s44 offen offset:{1024*kk} sc1")
            a(f"buffer_load_dwordx2 {vr(OFR+16,2)}, v{VT}, s[28:31], s45 offen sc1\nbuffer_load_dwordx2 {vr(OFR+18,2)}, v{VT}, s[28:31], s45 offen offset:128 sc1")
            a(f"s_add_u32 s26, s26, 1\ns_cmp_lt_u32 s26, 0x40000\ns_cselect_b32 s43, -1, 0\ns_branch P3_C{k}")
        a("P3_OK:")
    else:
        a(f"P3_CHK:\ns_add_u32 s26, s26, 1\ns_waitcnt vmcnt(4)\nv_max3_u32 v{CM}, v{b}, v{b+1}, v{b+2}\nv_max3_u32 v{CT}, v{b+3}, v{b+4}, v{b+5}\nv_max3_u32 v{CM}, v{b+6}, v{b+7}, v{CM}\ns_waitcnt vmcnt(2)")
        a(f"v_max3_u32 v{CT}, v{b+8}, v{b+9}, v{CT}\nv_max3_u32 v{CM}, v{b+10}, v{b+11}, v{CM}\nv_max3_u32 v{CT}, v{b+12}, v{b+13}, v{CT}\nv_max3_u32 v{CM}, v{b+14}, v{b+15}, v{CM}\ns_waitcnt vmcnt(0)")
        a(f"""
    v_max3_u32 v{CT}, v{b+16}, v{b+17}, v{CT}
    v_max3_u32 v{CM}, v{b+18}, v{b+19}, v{CM}
    s_cmp_lt_u32 s26, 0x40000
    v_max_u32 v{CM}, v{CM}, v{CT}
    s_cbranch_scc0 P3_OK
    v_cmp_eq_u32 vcc, -1, v{CM}
    s_cbranch_vccz P3_OK
    s_sleep {opt("p3s", 4)}
    s_branch P3_TRY
P3_OK:
    {'' if opt('fst', 0) else st(11)}
    s_setprio {opt('p3p', 0)}
    """)
        for n in range(25):
            k, t = divmod(n, 5)
            a(f"v_mfma_f32_16x16x32_bf16 {vr(ACC+4*t,4)}, {vr(BF+4*n,4)}, {vr(OFR+4*k,4)}, {vr(ACC+4*t,4) if k else 0}")
    a("s_cmp_lg_u32 s42, 0\ns_cbranch_scc1 P3_WR")
    lwait(a, BMM, CT, 1, 8, 2)
    a(f"{str() if opt('fst', 0) else st(12)}\nP3_WR:\nv_add_u32 v{CM}, s46, v{VA}\nv_mov_b32 v{CT}, s40\ns_nop 1")
    for j in range(5): a(f"ds_write_b128 v{CM}, {vr(ACC+4*j,4)} offset:{1024*j}")
    a("s_waitcnt lgkmcnt(0)")
    ladd(a, CT, BMT, 0)
    a(f"""
    s_add_u32 s44, s44, {8*20480}
    s_add_u32 s45, s45, {8*20480}
    s_add_u32 s46, s46, {8*5120}
    s_add_u32 s40, s40, 8
    s_add_u32 s42, s42, 1
    s_cmp_ge_u32 s42, 2
    s_cbranch_scc1 P3_END
    s_cmp_ge_u32 s16, 4
    s_cbranch_scc1 P3_TRY
    """)
    for k in range(10): a(f"v_lshlrev_b32 v{YG+2*k}, 16, v{YG+10+k}\nv_and_b32 v{YG+2*k+1}, 0xffff0000, v{YG+10+k}")
    for k in range(20): a(f"v_mul_f32 v{YG+k}, v{YG+k}, v{G2}")
    a(f"""
    v_sub_f32 v{G2}, 1.0, v{G2}
    s_branch P3_TRY
P3_END:
    {st(10)}
    s_cmp_ge_u32 s16, 4
    s_cbranch_scc1 {"L_DONE" if STAMP else "L_END"}
    s_setprio 3
    s_lshl_b32 s23, s16, 2
    s_add_u32 s23, s23, {LFB + 80}
    v_mov_b32 v{CT}, s23
    s_mul_i32 s23, s16, 20480
    s_add_u32 s23, s23, {WOL}
    v_add_u32 v{CM}, s23, v{VA}
    """)
    lwait(a, CT, BMM, 1, 4, 1)
    a(st(9))
    for j in range(5):
        for g in range(4): a(f"ds_read_b128 {vr(16*j+4*g,4)}, v{CM} offset:{5120*g+1024*j}")
    for j in range(5):
        a(f"s_waitcnt lgkmcnt({min(15, 16-4*j)})")
        for r in (0, 2): a(f"v_pk_add_f32 {vr(16*j+r,2)}, {vr(16*j+r,2)}, {vr(16*j+4+r,2)}\nv_pk_add_f32 {vr(16*j+8+r,2)}, {vr(16*j+8+r,2)}, {vr(16*j+12+r,2)}")
        for r in (0, 2): a(f"v_pk_add_f32 {vr(16*j+r,2)}, {vr(16*j+r,2)}, {vr(16*j+8+r,2)}")
        for r in range(4): a(f"v_fmac_f32 v{YG+4*j+r}, v{16*j+r}, v{G2}")
        a(f"v_cvt_pk_bf16_f32 v{84+2*j}, v{YG+4*j}, v{YG+4*j+1}\nv_cvt_pk_bf16_f32 v{84+2*j+1}, v{YG+4*j+2}, v{YG+4*j+3}")
        if j == 1: a(f"buffer_store_dwordx4 v[84:87], v{VY2}, s[36:39], 0 offen" + OSC)
        if j == 3: a(f"buffer_store_dwordx4 v[88:91], v{VY2}, s[36:39], 0 offen offset:16" + OSC)
    a(f"buffer_store_dwordx2 v[92:93], v{VY2}, s[36:39], 0 offen offset:32" + OSC)

DOC = """;
"""
def main():
    a = A()
    top = open("cdna_kernels/" + NAME + ".s.ref").read().split("; Override launch")[0]
    top += "; @launch grid=(256,1,1) block=(768,1,1) lds=163840\n"
    top += DOC
    a('.amdgcn_target "amdgcn-amd-amdhsa--gfx950"\n.text')
    d = gen(a)
    open(sys.argv[1], "w").write(top + a.text() + '.section .rodata,"a"\n.p2align 6\n' + d)
if __name__ == "__main__":
    main()
```

```python
import sys, math, struct

OPT = dict(x.split("=") for x in sys.argv[2:])
def opt(k, d): return int(OPT.get(k, d))
NAME = "gated_mix__spectral_fnet__softmax_full_mha__prompt"
HS = 163840
KV_OFF = 0
HG = HS + opt('pad', 512)
HQ = 81920 + opt('pad', 512)
Q_OFF = 32 * HG
FE_OFF = Q_OFF + 32 * HQ
FO_DELTA = 655360
X512_OFF = FE_OFF + 2 * FO_DELTA
TB_OFF = X512_OFF + 4096
Y_OFF = TB_OFF + 33 * 65536
ZP = 8704
G_OFF = Y_OFF + 85 * 2 * ZP
OF_OFF = G_OFF + 8192
FLG_OFF = OF_OFF + 2621440
WS_USED = FLG_OFF + 320 * 128
XB = 102400
L_Y = 256
QLDS = 71680
RB0, RSL = 11264, 36864
LFB = 158720
WOL = 5120
AK1, AK2, AV, BK1, BK2, BV, OA1, OA2, ONES, PA, FA = range(152, 163)
VA, VT, BMM, BMT, CM, CT = 163, 164, 165, 166, 160, 161
PXB = 107520
def p3_addr(l):
    return f"""v_lshlrev_b32 v{VA}, 4, v{l}
    v_and_b32 v2, 7, v{l}
    v_bfe_u32 v4, v{l}, 3, 1
    v_lshrrev_b32 v3, 4, v{l}
    v_lshlrev_b32 v{VT}, 8, v3
    v_lshl_add_u32 v{VT}, v2, 4, v{VT}
    v_lshl_add_u32 v{VT}, v4, 3, v{VT}
    v_bfe_u32 v2, v{l}, 2, 2
    v_and_b32 v5, 3, v{l}
    v_mul_u32_u24 v5, 40, v5
    v_mul_u32_u24 v4, 40, v3
    v_add3_u32 v4, v4, v2, 16
    v_mul_u32_u24 v4, 160, v4
    v_add_u32 v{BMT}, v4, v5
    v_lshrrev_b32 v4, 1, v3
    v_mul_u32_u24 v4, 20, v4
    v_and_b32 v3, 1, v3
    v_lshl_add_u32 v4, v3, 2, v4
    v_add_u32 v4, v4, v2
    v_mul_u32_u24 v4, 160, v4
    v_add_u32 v{BMM}, v4, v5"""

def f32bits(x): return struct.unpack("<I", struct.pack("<f", x))[0]
QSCALE = f32bits((20 ** -0.5) * math.log2(math.e))
STAMP = opt("stamp", 0)
STAMP_OFF = 1 << 25
NST = 16

class A:
    def __init__(self): self.l = []; self.n = 0
    def __call__(self, s):
        for line in s.split("\n"):
            t = line.strip()
            if not t: continue
            self.l.append(t if t.endswith(":") or t.startswith(".") else "    " + t)
    def uid(self): self.n += 1; return self.n
    def text(self): return "\n".join(self.l) + "\n"

def vr(a, n): return f"v[{a}:{a+n-1}]" if n > 1 else f"v{a}"
def srd(lo, base, size):
    return f"s_mov_b32 s{lo}, s{base}\ns_mov_b32 s{lo+1}, s{base+1}\ns_mov_b32 s{lo+2}, {size}\ns_mov_b32 s{lo+3}, 0x20000"
OSC = " sc1" if opt("outsc1", 0) else ""
P1ST = opt("p1st", 0)
def st(i, p1=False):
    if not STAMP: return ""
    if P1ST and not p1 and 0 < i < 15 and i not in (4, 5): return ""
    if P1ST and not p1 and i in (4, 5): i += 8
    if p1 and not P1ST: return ""
    return f"{'s_memrealtime' if STAMP in (1, 3, 4) else 's_memtime'} s[{64+2*i}:{65+2*i}]"
def fin(): return "s_branch L_DONE" if STAMP else "s_endpgm"

X_P, WD_P, WQKV_P, WO_P, GATE_P, OUT_P, DBG_P, WS_P = 4, 8, 48, 50, 52, 54, 56, 58

def poll(a, vaddr, vdat, mask, target, sreg=60):
    u = a.uid()
    a(f"""
    s_mov_b64 exec, {mask}
    s_mov_b32 s{sreg}, 0
L_POLL{u}:
    buffer_load_dword v{vdat}, v{vaddr}, s[28:31], 0 offen sc1
    s_waitcnt vmcnt(0)
    v_cmp_gt_u32 vcc, {target}, v{vdat}
    s_cbranch_vccz L_POLLD{u}
    {'s_sleep 1' if opt('psleep', 0) else ''}
    s_add_u32 s{sreg}, s{sreg}, 1
    s_cmp_lt_u32 s{sreg}, 0x40000
    s_cbranch_scc1 L_POLL{u}
L_POLLD{u}:
    s_mov_b64 exec, -1
    """)

def poll4(a, vaddr, vdat, mask, soff="0", sreg=60, slp=None):
    u = a.uid()
    a(f"""
    s_mov_b64 exec, {mask}
    s_mov_b32 s{sreg}, 0
    s_branch L_POLLE{u}
L_POLL{u}:
    s_sleep {slp or opt("ps4", 2)}
L_POLLE{u}:
    buffer_load_dwordx4 {vr(vdat,4)}, v{vaddr}, s[28:31], {soff} offen sc1
    s_add_u32 s{sreg}, s{sreg}, 1
    s_waitcnt vmcnt(0)
    v_min3_u32 v{vdat}, v{vdat}, v{vdat+1}, v{vdat+2}
    s_cmp_lt_u32 s{sreg}, 0x40000
    v_min_u32 v{vdat}, v{vdat}, v{vdat+3}
    s_cbranch_scc0 L_POLLD{u}
    v_cmp_eq_u32 vcc, 0, v{vdat}
    s_cbranch_vccnz L_POLL{u}
L_POLLD{u}:
    s_mov_b64 exec, -1
    """)

def gen(a):
    label = NAME + "_kernel"
    a(f".p2align 8\n.globl {label}\n.type {label},@function\n{label}:")
    a(f"""
    s_cmp_ge_u32 s2, 256
    s_cbranch_scc1 L_END
    {st(0) + chr(10) + 's_waitcnt lgkmcnt(0)' if opt("st0first", 0) else ''}
    s_load_dwordx2 s[4:5], s[0:1], 0
    s_load_dwordx8 s[48:55], s[0:1], 48
    s_load_dwordx4 s[8:11], s[0:1], 24
    s_load_dwordx4 s[56:59], s[0:1], 80
    """)
    if STAMP:
        a("\n".join(f"s_mov_b32 s{64+j}, 0" for j in range(2, 2 * NST)) + "\n" + ("" if opt("st0first", 0) else st(0)))
    a(f"""
    v_lshrrev_b32 v1, 6, v0
    v_and_b32 v0, 63, v0
    s_and_b32 s17, s2, 7
    v_readfirstlane_b32 s16, v1
    s_lshr_b32 s18, s2, 3
    s_and_b32 s19, s18, 7
    s_lshr_b32 s22, s18, 3
    s_and_b32 s21, s17, 1
    s_lshl_b32 s23, s19, 1
    s_add_u32 s21, s21, s23
    s_lshr_b32 s20, s17, 1
    s_cmp_ge_u32 s19, {opt("numl", 4)}
    s_cselect_b32 s12, 1, 0
    s_cmp_eq_u32 s22, 0
    s_cselect_b32 s12, 0, s12
    s_cmp_ge_u32 s16, 4
    s_cbranch_scc1 P1_NOTLOADER
    """)
    p1_loader(a)
    a(f"""
P1_NOTLOADER:
    s_lshl_b32 s63, s17, 2
    s_add_u32 s63, s63, s22
    s_mul_i32 s14, s63, {HG}
    s_sub_u32 s13, s16, 4
    s_lshl_b32 s23, s19, 3
    s_add_u32 s23, s23, s13
    s_mul_i32 s23, s23, 40960
    s_add_u32 s23, s23, {OF_OFF}
    s_lshl_b32 s6, s63, 9
    s_add_u32 s6, s6, s23
    s_lshl_b32 s7, s63, 7
    s_add_u32 s7, s7, s23
    s_add_u32 s7, s7, 16384
    s_lshl_b32 s15, s20, 2
    s_add_u32 s15, s15, s22
    s_lshl_b32 s15, s15, 4
    s_add_u32 s15, s15, s21
    s_lshl_b32 s15, s15, 5
    s_add_u32 s15, s15, s13
    s_lshl_b32 s15, s15, 2
    s_add_u32 s15, s15, {FLG_OFF}
    v_and_b32 v1, 31, v0
    v_lshrrev_b32 v2, 5, v0
    v_lshlrev_b32 v{AK1}, 4, v0
    v_lshrrev_b32 v3, 4, v1
    v_lshl_add_u32 v3, v3, 1, v2
    v_and_b32 v4, 15, v0
    v_lshl_add_u32 v3, v4, 2, v3
    v_lshlrev_b32 v{AK2}, 2, v3
    v_mul_u32_u24 v{AV}, 384, v2
    v_lshlrev_b32 v3, 6, v2
    v_cmp_gt_u32 vcc, 16, v1
    s_nop 1
    v_cndmask_b32 v{AV}, v3, v{AV}, vcc
    v_lshl_add_u32 v{AV}, v1, 4, v{AV}
    v_add_u32 v{BK1}, 15360, v{AK1}
    v_add_u32 v{BK2}, 15360, v{AK2}
    v_add_u32 v{BV}, 15360, v{AV}
    v_and_b32 v3, 27, v1
    v_cmp_eq_u32 vcc, 24, v3
    v_mov_b32 v3, 0x3f803f80
    v_bfe_u32 v{OA2}, v1, 3, 1
    v_cndmask_b32 v{ONES}, 0, v3, vcc
    v_mul_u32_u24 v{OA2}, 20480, v{OA2}
    v_and_b32 v3, 7, v1
    v_lshl_add_u32 v{OA2}, v3, 4, v{OA2}
    v_lshrrev_b32 v3, 4, v0
    v_lshl_add_u32 v{OA1}, v3, 7, v{OA2}
    s_lshl_b32 s23, s13, 2
    s_add_u32 s23, s23, {LFB}
    v_mov_b32 v{PA}, s23
    v_mov_b32 v{FA}, {LFB + 56}
    {p3_addr(0)}
    s_cmp_ge_u32 s16, 8
    s_cbranch_scc1 P1_EXTRA
    """)
    p1_compute(a)
    p1_extra(a)
    attention(a)
    helpers(a)
    a("L_DONE:")
    if STAMP == 4:
        i_, j_ = opt("ai", 0), opt("aj", 0)
        a(f"""s_waitcnt vmcnt(0)
        {st(NST-1)}
        s_waitcnt lgkmcnt(0)
        {f's_cmp_lg_u32 s16, {opt("aw1", 0)}' if opt("aw1", 0) else f's_cmp_ge_u32 s16, {opt("aw", 4)}'}
        s_cbranch_scc1 L_END
        s_and_b32 s60, s2, {opt("am", 31)}
        s_cmp_lg_u32 s60, {opt("av", 5)}
        s_cbranch_scc1 L_END
        s_sub_u32 s60, s{64+2*j_}, s{64+2*i_}
        s_lshl_b32 s60, s60, 2
        s_min_u32 s60, s60, 100000
        {f's_mov_b32 s60, {opt("fix", 0)}' if opt("fix", 0) else ''}
L_AMP:
        s_memrealtime s[44:45]
        s_waitcnt lgkmcnt(0)
        s_sub_u32 s44, s44, s{64 if opt("fix", 0) else 64+2*(NST-1)}
        s_cmp_lt_u32 s44, s60
        s_cbranch_scc1 L_AMP
        """)
    elif STAMP == 3:
        r = f"s_waitcnt vmcnt(0)\n{st(NST-1)}\ns_mov_b64 exec, 1\n{srd(44, DBG_P, 256)}\ns_waitcnt lgkmcnt(0)\nv_mov_b32 v16, 0\n"
        r += "s_not_b32 s60, s64\nv_mov_b32 v0, s60\nbuffer_atomic_umax v0, v16, s[44:47], 0 offen offset:4 sc1\n"
        r += "s_cmp_eq_u32 s16, 0\ns_cbranch_scc1 L_D0\ns_cmp_eq_u32 s16, 4\ns_cbranch_scc0 L_END\n"
        for n, i in enumerate((2, 3, 4, 5, 7, 8, 9)): r += f"v_mov_b32 v{n+1}, s{64+2*i}\nbuffer_atomic_umax v{n+1}, v16, s[44:47], 0 offen offset:{8+4*n} sc1\n"
        r += "s_endpgm\nL_D0:\n"
        for n, i in enumerate((0, 1, 6, 8, 9, 10, 15)): r += f"v_mov_b32 v{n+1}, s{64+2*i}\nbuffer_atomic_umax v{n+1}, v16, s[44:47], 0 offen offset:{36+4*n} sc1\n"
        a(r)
    elif STAMP:
        r = f"s_waitcnt vmcnt(0)\n{st(NST-1)}\ns_mov_b64 exec, 1\ns_add_u32 s44, s{WS_P}, {STAMP_OFF}\ns_addc_u32 s45, s{WS_P+1}, 0\ns_mov_b32 s46, 262144\ns_mov_b32 s47, 0x20000\n"
        r += "s_lshl_b32 s60, s2, 4\ns_add_u32 s60, s60, s16\ns_lshl_b32 s60, s60, 6\ns_waitcnt lgkmcnt(0)\nv_mov_b32 v16, 0\n"
        if opt("xcc", 0): r += "s_getreg_b32 s66, hwreg(HW_REG_XCC_ID)\ns_add_u32 s66, s66, 100\n"
        for i in range(NST): r += f"v_mov_b32 v{i}, s{64+2*i}\n"
        for i in range(4): r += f"buffer_store_dwordx4 v[{4*i}:{4*i+3}], v16, s[44:47], s60 offen offset:{16*i}\n"
        a(r)
    a("L_END:\ns_endpgm\n.fill 256, 4, 0xbf810000\nL_CODE_END:")
    return f""".amdhsa_kernel {label}
  .amdhsa_next_free_vgpr 168
  .amdhsa_next_free_sgpr {100 if STAMP else 64}
  .amdhsa_accum_offset 168
  .amdhsa_group_segment_fixed_size 0
  .amdhsa_kernarg_size 96
  .amdhsa_user_sgpr_count 2
  .amdhsa_user_sgpr_kernarg_segment_ptr 1
  .amdhsa_system_sgpr_workgroup_id_x 1
.end_amdhsa_kernel
"""

def p1_loader(a):
    a(f"""
    s_setprio 3
    """)
    if opt("pf", 0):
        a(f"""
        v_lshlrev_b32 v20, 4, v0
        s_mul_i32 s23, s2, 10240
        s_and_b32 s24, s16, 1
        s_mul_i32 s24, s24, 5120
        s_add_u32 s23, s23, s24
        s_mul_i32 s25, s2, 3
        s_mov_b32 s31, 0x20000
        s_mov_b32 s35, 0x20000
        s_mov_b32 s34, {640*1280}
        s_waitcnt lgkmcnt(0)
        s_mov_b32 s30, {2048*1280}
        s_cmp_lt_u32 s16, 2
        s_cselect_b32 s28, s{X_P}, s{WQKV_P}
        s_cselect_b32 s29, s{X_P+1}, s{WQKV_P+1}
        s_cselect_b32 s30, s30, {640*3840}
        s_cselect_b32 s32, s8, s10
        s_cselect_b32 s33, s9, s11
        buffer_load_dwordx4 v[24:27], v20, s[28:31], s23 offen
        buffer_load_dwordx4 v[28:31], v20, s[28:31], s23 offen offset:1024
        buffer_load_dwordx4 v[32:35], v20, s[28:31], s23 offen offset:2048
        buffer_load_dwordx4 v[36:39], v20, s[28:31], s23 offen offset:3072
        s_add_u32 s23, s23, 4096
        buffer_load_dwordx4 v[40:43], v20, s[28:31], s23 offen
        s_lshr_b32 s24, s24, 11
        s_add_u32 s25, s25, s24
        s_mul_i32 s25, s25, 1280
        s_mov_b32 exec_hi, 0xff
        buffer_load_dwordx4 v[44:47], v20, s[32:35], s25 offen
        s_bitcmp1_b32 s16, 0
        s_cbranch_scc1 P1_PF1
        buffer_load_dwordx4 v[48:51], v20, s[32:35], s25 offen offset:1280
P1_PF1:
        s_mov_b32 exec_hi, -1
        """)
    a(f"""
    v_lshrrev_b32 v2, 3, v0
    v_and_b32 v3, 7, v0
    v_lshrrev_b32 v4, 4, v0
    v_xor_b32 v3, v3, v4
    v_lshlrev_b32 v3, 4, v3
    v_xor_b32 v4, 64, v3
    s_lshl_b32 s23, s21, 5
    s_lshr_b32 s24, s16, 1
    s_lshl_b32 s24, s24, 4
    s_add_u32 s23, s23, s24
    s_cmp_eq_u32 s22, 2
    s_cselect_b32 s25, 4, 0
    v_and_b32 v9, s25, v2
    v_add3_u32 v9, v9, v2, s23
    s_sub_u32 s25, 8, s25
    s_bitcmp1_b32 s16, 0
    s_cselect_b32 s23, -1, 1
    s_cselect_b32 s24, 0x400, 0
    s_mul_i32 s25, s25, s23
    v_mul_lo_u32 v10, v9, s23
    s_sub_u32 s27, 0x800, s24
    v_add_u32 v5, s24, v10
    v_sub_u32 v7, s27, v10
    v_add_u32 v6, s25, v5
    v_subrev_u32 v8, s25, v7
    v_cmp_eq_u32 vcc, 0, v9
    s_add_u32 s24, s24, 0x200
    v_mov_b32 v9, s24
    s_cmp_lg_u32 s22, 2
    v_cndmask_b32 v7, v7, v9, vcc
    s_cbranch_scc1 P1_LD_NV
    v_swap_b32 v6, v7
P1_LD_NV:
    s_movk_i32 s27, 1280
    v_mad_u32_u24 v10, v5, s27, v3
    v_mad_u32_u24 v11, v6, s27, v4
    v_mad_u32_u24 v12, v7, s27, v3
    v_mad_u32_u24 v13, v8, s27, v4
    """)
    EX = opt("early", 1) and opt("stag1", 7) == 7
    if EX:
        a(f"""
        s_lshr_b32 s36, s17, 1
        s_xor_b32 s36, s36, s17
        s_and_b32 s36, s36, 1
        s_xor_b32 s36, s36, 9
        s_lshl_b32 s41, s36, 7
        s_lshl_b32 s44, s16, 12
        s_add_u32 m0, s44, {RB0 + 2 * RSL}
        s_waitcnt lgkmcnt(0)
        {srd(28, X_P, 2048*1280)}
        buffer_load_dwordx4 v10, s[28:31], s41 offen lds
        """)
        for i in range(1, 4):
            a(f"s_add_u32 m0, s44, {RB0 + 2 * RSL + 1024*i}\ns_nop 0\nbuffer_load_dwordx4 v{10+i}, s[28:31], s41 offen lds")
    a(f"""
    s_lshl_b32 s26, s22, 2
    s_add_u32 s26, s26, s20
    s_and_b32 s27, s20, 1
    s_movk_i32 s25, 3840
    s_cmp_eq_u32 s22, 3
    s_cselect_b32 s25, 1280, s25
    s_cselect_b32 s26, s27, s26
    s_mul_i32 s26, s26, 320
    s_lshl_b32 s27, s16, 4
    s_mul_i32 s27, s27, s25
    s_add_u32 s26, s26, s27
    s_sub_u32 s27, s25, 320
    """)
    for i in range(5):
        a(f"""
        v_add_u32 v5, {64*i}, v0
        v_mul_u32_u24 v6, 3277, v5
        v_lshrrev_b32 v6, 16, v6
        v_lshrrev_b32 v7, 2, v6
        v_and_b32 v7, 2, v7
        v_xor_b32 v5, v5, v7
        v_lshl_add_u32 v5, v5, 4, s26
        v_mad_u32_u24 v{14+i}, v6, s27, v5
        """)
    sg = opt("stag1", 7)
    if sg == 1:
        a("s_lshl_b32 s36, s19, 3\ns_lshl_b32 s37, s22, 4\ns_add_u32 s36, s36, s37\ns_add_u32 s36, s36, s17\ns_and_b32 s36, s36, 63\ns_mul_i32 s36, s36, 10\ns_lshr_b32 s36, s36, 6")
    elif sg == 2:
        a("s_add_u32 s36, s19, s22\ns_lshl_b32 s36, s36, 4\ns_add_u32 s36, s36, s17\ns_add_u32 s36, s36, s17\ns_and_b32 s36, s36, 63\ns_mul_i32 s36, s36, 10\ns_lshr_b32 s36, s36, 6")
    elif sg == 3:
        a("s_add_u32 s36, s19, s22\ns_lshl_b32 s36, s36, 5\ns_lshl_b32 s37, s17, 2\ns_add_u32 s36, s36, s37\ns_and_b32 s36, s36, 63\ns_mul_i32 s36, s36, 10\ns_lshr_b32 s36, s36, 6")
    elif sg >= 10:
        nc = sg - 9
        Gn = 5 - nc
        rot = [2 * (nc + k % Gn) for k in range(2 * Gn - 1)]
        rv = sum(v << (4 * k) for k, v in enumerate(rot))
        com = sum((2 * k) << (4 * k) for k in range(nc))
        a(f"""
        s_lshr_b32 s36, s17, 1
        s_xor_b32 s36, s36, s17
        s_and_b32 s36, s36, 1
        s_add_u32 s37, s22, s19
        s_lshr_b32 s46, s17, 2
        s_lshl_b32 s46, s46, {opt("xsh", 1)}
        s_add_u32 s37, s37, s46
        s_mul_i32 s46, s37, {256 // Gn + 1}
        s_lshr_b32 s46, s46, 8
        s_mul_i32 s46, s46, {Gn}
        s_sub_u32 s37, s37, s46
        s_lshl_b32 s37, s37, 2
        s_lshr_b32 s46, {rv:#x}, s37
        s_and_b32 s46, s46, {(1 << (4 * Gn)) - 1:#x}
        s_lshl_b32 s46, s46, {4 * nc}
        s_or_b32 s46, s46, {0x53100000 | com:#x}
        s_mov_b32 s47, 0x97
        s_mul_i32 s37, s36, 0x11111111
        s_xor_b32 s46, s46, s37
        s_xor_b32 s47, s47, s37
        s_and_b32 s36, s46, 15
        """)
    elif sg >= 5:
        tsh = {5: 0, 6: 1, 7: 0, 8: 0, 9: 0}[sg]
        a(f"""
        s_lshr_b32 s36, s17, 1
        s_xor_b32 s36, s36, s17
        s_and_b32 s36, s36, 1
        {'s_min_u32 s37, s22, 2' if sg == 9 else f's_lshr_b32 s37, s22, {tsh}'}
        s_add_u32 s37, s37, s19
        s_lshr_b32 s46, s17, 2
        s_lshl_b32 s46, s46, 1
        s_add_u32 s37, s37, s46
        s_mul_i32 s46, s37, 52
        s_lshr_b32 s46, s46, 8
        s_mul_i32 s46, s46, 5
        s_sub_u32 s37, s37, s46
        s_lshl_b32 s37, s37, 2
        s_mov_b32 s46, 0x42086420
        s_mov_b32 s47, 0x6
        s_lshr_b64 s[46:47], s[46:47], s37
        s_and_b32 s46, s46, 0xfffff
        {'s_or_b32 s47, s46, 0x11111' + chr(10) + 's_lshl_b32 s37, s47, 20' + chr(10) + 's_or_b32 s46, s46, s37' + chr(10) + 's_lshr_b32 s47, s47, 12' if sg == 8 else 's_or_b32 s46, s46, 0x53100000' + chr(10) + 's_mov_b32 s47, 0x97'}
        s_mul_i32 s37, s36, 0x11111111
        s_xor_b32 s46, s46, s37
        s_xor_b32 s47, s47, s37
        """)
        if sg == 7:
            a("s_lshr_b32 s37, s47, 4\ns_and_b32 s37, s37, 15\ns_lshl_b64 s[46:47], s[46:47], 4\ns_or_b32 s46, s46, s37")
        a("s_and_b32 s36, s46, 15")
    else:
        a("s_mov_b32 s36, 0")
    a(f"""
    s_lshl_b32 s38, s16, 12
    s_add_u32 s38, s38, {RB0}
    s_mul_i32 s39, s16, 5120
    s_add_u32 s39, s39, {RB0 + 16384}
    s_mov_b32 s40, 0
    s_mul_i32 s34, s25, 640
    s_lshl_b32 s25, s25, 6
    s_mov_b32 s35, 0x20000
    s_waitcnt lgkmcnt(0)
    {srd(28, X_P, 2048*1280)}
    s_cmp_lt_u32 s20, 2
    s_cselect_b32 s32, s8, s10
    s_cselect_b32 s33, s9, s11
    s_cmp_eq_u32 s22, 3
    s_cselect_b32 s32, s32, s{WQKV_P}
    s_cselect_b32 s33, s33, s{WQKV_P+1}
    {st(1)}
    """)
    if opt("dftdelay", 0):
        a(f"""s_cmp_lg_u32 s22, 3
        s_cbranch_scc1 P1_LD_LOOP
        s_memrealtime s[42:43]
        s_waitcnt lgkmcnt(0)
        s_add_u32 s42, s42, {opt("dftdelay", 0)}
P1_DLY:
        s_memrealtime s[44:45]
        s_waitcnt lgkmcnt(0)
        s_cmp_lt_u32 s44, s42
        s_cbranch_scc1 P1_DLY
        """)
    a(f"""
P1_LD_LOOP:
    s_lshl_b32 s41, s36, 7
    s_mul_i32 s42, s36, s25
    s_add_u32 s43, s40, 2
    s_and_b32 s43, s43, 3
    s_mul_i32 s43, s43, {RSL}
    s_add_u32 s44, s43, s38
    s_add_u32 s45, s43, s39
    """)
    if EX: a("s_cmp_eq_u32 s40, 0\ns_cbranch_scc1 P1_LD_WW")
    for i in range(4):
        a(f"s_add_u32 m0, s44, {1024*i}\ns_nop 0\nbuffer_load_dwordx4 v{10+i}, s[28:31], s41 offen lds")
    a("P1_LD_WW:")
    for i in range(5):
        a(f"s_add_u32 m0, s45, {1024*i}\ns_nop 0\nbuffer_load_dwordx4 v{14+i}, s[32:35], s42 offen lds")
    if opt("noload", 0): a("s_cmp_ge_u32 s40, 3\ns_cselect_b32 s30, 0, s30\ns_cselect_b32 s34, 0, s34")
    a(f"""
    {'s_lshr_b64 s[46:47], s[46:47], 4' + chr(10) + 's_and_b32 s36, s46, 15' if sg >= 5 else 's_add_u32 s36, s36, 1' + chr(10) + 's_cmp_eq_u32 s36, 10' + chr(10) + 's_cselect_b32 s36, 0, s36'}
    s_add_u32 s40, s40, 1
    s_cmp_eq_u32 s40, 1
    s_cbranch_scc1 P1_LD_LOOP
    s_waitcnt vmcnt(9)
    s_barrier
    s_cmp_lt_u32 s40, 10
    s_cbranch_scc1 P1_LD_LOOP
    s_waitcnt vmcnt(0)
    s_barrier
    s_branch HELPER
    """)

def p1_compute(a):
    X = 80; W = [96, 116]; XA = 136; WA = 137; CX = 142; CW = 144; PC = 149; L = 150; TT = 96
    def acc(b, T): return 20 * b + 4 * T
    a(f"""
    s_sub_u32 s61, s16, 4
    s_and_b32 s36, s61, 1
    s_lshr_b32 s37, s61, 1
    v_mov_b32 v{L}, v0
    v_and_b32 v1, 15, v0
    v_lshrrev_b32 v2, 4, v0
    v_lshrrev_b32 v3, 1, v1
    v_xor_b32 v3, v3, v2
    v_lshlrev_b32 v3, 4, v3
    v_lshl_add_u32 v3, v1, 7, v3
    s_lshl_b32 s23, s36, 13
    s_add_u32 s23, s23, {RB0}
    v_add_u32 v{XA}, s23, v3
    v_bfe_u32 v3, v0, 2, 2
    v_lshl_add_u32 v3, v2, 3, v3
    v_mul_u32_u24 v3, 320, v3
    v_add_u32 v3, {RB0 + 16384}, v3
    v_and_b32 v4, 16, v0
    v_lshlrev_b32 v4, 1, v4
    v_and_b32 v5, 3, v0
    s_mul_i32 s23, s37, 160
    v_lshl_add_u32 v6, v5, 3, s23
    """)
    for T in range(4):
        a(f"v_xor_b32 v7, v6, v4\nv_add_u32 v{WA+T}, v7, v3\nv_add_u32 v6, 40, v6")
    a(f"""
    v_mul_u32_u24 v6, 40, v5
    v_add3_u32 v6, v6, s23, 32
    v_xor_b32 v7, v6, v4
    v_add_u32 v{WA+4}, v7, v3
    v_mov_b32 v{PC}, 0xbf803f80
    s_lshl_b32 s26, s22, 2
    s_add_u32 s26, s26, s20
    s_lshl_b32 s26, s26, 1
    s_add_u32 s26, s26, s37
    s_cmp_eq_u32 s26, 28
    s_cselect_b32 s24, 0x10001, 0
    s_mov_b32 s25, s24
    s_cmp_eq_u32 s22, 3
    s_cselect_b32 s43, 10, 8
    s_mov_b32 s40, 0
    s_mov_b32 s42, {2 * RSL}
    """)
    for r in range(96): a(f"v_mov_b32 v{r}, 0")
    for r in range(20): a(f"v_mov_b32 v{W[1]+r}, 0")
    a(f"v_add_u32 v{CX}, s42, v{XA}")
    for T in range(5): a(f"v_add_u32 v{CW+T}, s42, v{WA+T}")
    a(f"s_waitcnt lgkmcnt(0)\n{srd(28, WS_P, WS_USED)}")
    a(f"s_setprio {opt('cp', 2)}\ns_cmp_ge_u32 s22, 2\ns_cbranch_scc1 P1_PRE_V")
    def mf(b, T, x, w, qk):
        d = vr(acc(b, T), 4)
        return f"v_mfma_f32_16x16x32_bf16 {d}, {vr(w,4)}, {vr(x,4)}, {d}" if qk else f"v_mfma_f32_16x16x32_bf16 {d}, {vr(x,4)}, {vr(w,4)}, {d}"
    def rdw(d, T, step): return [f"ds_read_b64_tr_b16 {vr(d+2*j,2)}, v{CW+T} offset:{(step // 2) * RSL + (step % 2) * 10240 + 1280 * j}" for j in range(2)]
    def rdx(d, b, step): return f"ds_read_b128 {vr(d,4)}, v{CX + step % 2} offset:{(step // 2) * RSL + 2048 * b}"
    TO = (1, 2, 3, 4, 0)
    def group(step, qk, reads=True, patch=True):
        cur = W[1 - step]; nxt = W[step]
        rq = []
        for T in TO: rq += rdw(nxt + 4 * T, T, step)
        fill = []
        if step == 1:
            fill = ["s_add_u32 s40, s40, 1", "s_add_u32 s41, s40, 2", "s_and_b32 s41, s41, 3", f"s_mul_i32 s42, s41, {RSL}", f"v_add_u32 v{CX}, s42, v{XA}"] + [f"v_add_u32 v{CW+T}, s42, v{WA+T}" for T in range(5)]
        issued = 0
        for b in range(4):
            if reads:
                allow = [2, 15, issued + 1, issued][b]
                if b != 1: a(f"s_waitcnt lgkmcnt({min(15, allow)})")
            elif b == 0: a("s_waitcnt lgkmcnt(0)")
            for n, T in enumerate(TO):
                a(mf(b, T, X + 4 * b, cur + 4 * T, qk))
                if b == 0 and n < 2 and not qk and patch:
                    for j in range(2): a(f"v_cndmask_b32 v{cur+2*n+j}, v{cur+2*n+j}, v{PC}, s[24:25]")
                if not reads: continue
                if step == 0 and b == 0:
                    if n == 0: a(f"v_xor_b32 v{CX+1}, 64, v{CX}")
                    if n == opt("bn", 1): a("s_barrier")
                    if n <= opt("bn", 1): continue
                if n == 4: a(rdx(X + 4 * b, b, step)); issued += 1
                elif rq:
                    a(rq.pop(0)); issued += 1
                    if rq and (opt("rd2", 0) or (step == 0 and b == 1 and n < opt("bn", 1) - 1)): a(rq.pop(0)); issued += 1
                elif fill:
                    a(fill.pop(0))
                    if fill: a(fill.pop(0))
        assert not reads or (not rq and not fill), (rq, fill)

    def tail(qk, epi):
        seq = [(b, T, ("x0", b), ("w0", T)) for b in range(4) for T in TO]
        marks = {}
        win = opt("win", 2)
        for step in range(4 - win):
            for b in range(4):
                for T in TO: seq.append((b, T, ("x", 0, step, b), ("w", step, T)))
        for T in range(5):
            for jj in range(2):
                for step in range(4 - win, 4):
                    for b in (2 * jj, 2 * jj + 1): seq.append((b, T, ("x", 0, step, b), ("w", step, T)))
                marks[len(seq) - 1] = (T, jj)
        last = {}
        for n, (_, _, x, w) in enumerate(seq): last[x] = n; last[w] = n
        loc = {("x0", b): X + 4 * b for b in range(4)}; loc.update({("w0", T): W[1] + 4 * T for T in range(5)})
        free = [W[0] + 4 * k for k in range(5)] + [XA]
        order = []
        for _, _, x, w in seq:
            for f in (w, x):
                if f not in loc and f not in order: order.append(f)
        done_at = {}; nrd = 0; waited = 0; pend = []; fill = []
        cnt = [0]; prev = [0]
        def em(t): a(t); cnt[0] += 1
        a(f"v_xor_b32 v{CX+1}, 64, v{CX}\ns_waitcnt lgkmcnt(0)\ns_barrier")
        bar2 = [True]
        def take():
            f = order.pop(0); loc[f] = free.pop(0)
            if bar2 and (f[1] if f[0] == "w" else f[2]) >= 2: em("s_barrier"); bar2.pop()
            p_ = rdw(loc[f], f[2], f[1]) if f[0] == "w" else [rdx(loc[f], f[3], f[2])]
            done_at[f] = nrd + len(p_)
            return p_
        def gap():
            t, at, after = fill[0]
            return max(at - cnt[0], prev[0] + after - cnt[0], 0)
        def put():
            em(fill.pop(0)[0]); prev[0] = cnt[0]
        for n, (b, T, x, w) in enumerate(seq):
            while any(f not in loc or (f in done_at and done_at[f] > nrd) for f in (x, w)):
                if not pend: pend = take()
                em(pend.pop(0)); nrd += 1
            need = max(done_at.get(x, 0), done_at.get(w, 0))
            if need > waited:
                waited = max(need, nrd - opt("tw", 6)); em(f"s_waitcnt lgkmcnt({nrd - waited})")
            em(mf(b, T, loc[x], loc[w], qk))
            if n in marks: fill += [(t, cnt[0] + 8, after) for t, after in epi(*marks[n])]
            for f in (x, w):
                if last[f] == n: free.append(loc[f])
            if not pend and order and free: pend = take()
            if pend: em(pend.pop(0)); nrd += 1
            for _ in range(2):
                if fill and gap() == 0: put()
        a(st(3))
        while fill:
            g_ = gap()
            if g_: a(f"s_nop {g_ - 1}"); cnt[0] += g_
            put()

    EA, EB = 167, 151
    def cv(d, r): return [f"v_cvt_pk_bf16_f32 v{d}, v{r}, v{r+1}", f"v_cvt_pk_bf16_f32 v{d+1}, v{r+2}, v{r+3}"]
    def epi_qk(ph, jj=0):
        if ph < 0:
            return f"""s_mov_b32 s35, {HG}
            s_movk_i32 s38, 2560
            s_cmp_eq_u32 s22, 0
            s_cselect_b32 s35, {HQ}, s35
            s_cselect_b32 s27, {Q_OFF}, {KV_OFF}
            s_cselect_b32 s38, 1280, s38
            s_lshl_b32 s26, s20, 1
            s_add_u32 s26, s26, s37
            s_lshl_b32 s26, s26, 2
            s_mul_i32 s26, s26, s35
            s_add_u32 s26, s26, s27
            s_lshl_b32 s23, s21, 1
            s_add_u32 s23, s23, s36
            s_lshl_b32 s23, s23, 1
            s_mul_i32 s23, s23, s38
            s_add_u32 s26, s26, s23
            s_add_u32 s27, s26, s38
            v_lshrrev_b32 v{EA}, 4, v{L}
            v_mul_lo_u32 v{EA}, v{EA}, s35
            v_and_b32 v{TT}, 15, v{L}
            v_lshl_add_u32 v{EA}, v{TT}, 4, v{EA}
            v_lshlrev_b32 v{EB}, 4, v{L}
            s_add_u32 s44, s26, s35
            s_add_u32 s45, s27, s35
            s_add_u32 s46, s44, s35
            s_add_u32 s47, s45, s35
            s_add_u32 s32, s46, s35
            s_add_u32 s33, s47, s35""".split("\n")
        T = ph
        r0, r1 = acc(2 * jj, T), acc(2 * jj + 1, T)
        o = [(t, 0) for t in cv(r0, r0) + cv(r0 + 2, r1)]
        if T < 4:
            o += [(f"v_permlane16_swap_b32 v{r0}, v{r0+2}", 1), (f"v_permlane16_swap_b32 v{r0+1}, v{r0+3}", 0)]
            o.append((f"buffer_store_dwordx4 {vr(r0,4)}, v{EB}, s[28:31], s{(26, 44, 46, 32)[T] + jj} offen sc1", 0))
        else:
            o.append((f"buffer_store_dwordx4 {vr(r0,4)}, v{EA}, s[28:31], s{26 + jj} offen offset:1024 sc1", 0))
        return o
    def epi_v(ph, jj=0):
        if ph < 0:
            return f"""s_lshl_b32 s26, s20, 1
            s_add_u32 s26, s26, s37
            s_mul_i32 s26, s26, {4*HG}
            s_lshl_b32 s23, s21, 1
            s_add_u32 s23, s23, s36
            s_mul_i32 s23, s23, 5120
            s_add_u32 s26, s26, s23
            s_add_u32 s26, s26, {KV_OFF + 1280}
            s_add_u32 s44, s26, {HG}
            s_add_u32 s45, s26, {2*HG}
            s_add_u32 s46, s26, {3*HG}
            s_mov_b32 s35, {HG}
            v_lshrrev_b32 v{EA}, 5, v{L}
            v_mul_u32_u24 v{EA}, 640, v{EA}
            v_bfe_u32 v{TT}, v{L}, 4, 1
            v_lshl_add_u32 v{EB}, v{TT}, 6, v{EA}
            v_mul_u32_u24 v{TT}, 384, v{TT}
            v_add_u32 v{EA}, v{EA}, v{TT}
            v_and_b32 v{TT}, 15, v{L}
            v_lshl_add_u32 v{EA}, v{TT}, 4, v{EA}
            v_and_b32 v{TT}, 3, v{L}
            v_lshl_add_u32 v{EB}, v{TT}, 4, v{EB}
            v_bfe_u32 v{TT}, v{L}, 2, 2
            v_mul_lo_u32 v{TT}, v{TT}, s35
            v_add_u32 v{EB}, v{EB}, v{TT}""".split("\n")
        T = ph
        r0, r1 = acc(2 * jj, T), acc(2 * jj + 1, T)
        o = [(t, 0) for t in cv(r0, r0) + cv(r0 + 2, r1)]
        if T < 4: o.append((f"buffer_store_dwordx4 {vr(r0,4)}, v{EA}, s[28:31], s{(26, 44, 45, 46)[T]} offen offset:{2560 * jj} sc1", 0))
        else: o.append((f"buffer_store_dwordx4 {vr(r0,4)}, v{EB}, s[28:31], s26 offen offset:{2560 * jj + 256} sc1", 0))
        return o

    for qk, lab in ((True, "QK"), (False, "V")):
        a(f"P1_PRE_{lab}:")
        for f in (epi_qk if qk else epi_v)(-1): a(f)
        SEP = opt("sep", 0)
        if SEP and not qk: a("s_cmp_eq_u32 s22, 3\ns_cbranch_scc1 P1_LOOP_D")
        a(f"P1_LOOP_{lab}:")
        group(0, qk, patch=not SEP)
        if STAMP: a(f"s_cmp_lg_u32 s40, 0\ns_cbranch_scc1 P1_ST_{lab}\n{st(2)}\nP1_ST_{lab}:\ns_cmp_lg_u32 s40, 5\ns_cbranch_scc1 P1_SU_{lab}\n{st(1)}\nP1_SU_{lab}:")
        group(1, qk, patch=not SEP)
        a(f"s_cmp_lt_u32 s40, s43\ns_cbranch_scc1 P1_LOOP_{lab}")
        if not qk: a("s_cmp_eq_u32 s22, 3\ns_cbranch_scc1 P1_EPI_DFT")
        a("s_cmp_eq_u32 s12, 1\ns_cselect_b32 s30, 0, s30")
        tail(qk, epi_qk if qk else epi_v)
        a(f"s_cmp_eq_u32 s12, 0\ns_cbranch_scc1 P1_DONE\ns_mov_b32 s30, {WS_USED}\nv_mov_b32 v88, {LFB + 56}\nv_mov_b32 v89, 1")
        ladd(a, 88, 89, 0)
        a(f"s_mov_b32 s34, 1\ns_branch ATT\nNU_{lab}:")
        for T in range(5):
            for jj in range(2): a((epi_qk if qk else epi_v)(T, jj)[-1][0])
        a("s_branch ATT_SIG")
    if SEP:
        a("P1_LOOP_D:"); group(0, False); group(1, False)
        a("s_cmp_lt_u32 s40, s43\ns_cbranch_scc1 P1_LOOP_D")
    a("P1_EPI_DFT:")
    group(0, False, reads=False)
    TAU, TAU0, E0 = 80, 81, 140
    a(f"""
    {st(3)}
    s_cmp_lt_u32 s20, 2
    s_cselect_b32 s38, 1.0, -1.0
    v_mov_b32 v{TAU}, s38
    v_cndmask_b32 v{TAU0}, v{TAU}, 1.0, s[24:25]
    s_lshl_b32 s26, s20, 1
    s_add_u32 s26, s26, s37
    s_mul_i32 s26, s26, 80
    v_and_b32 v88, 15, v{L}
    v_add_u32 v{E0}, s26, v88
    v_add_u32 v{E0+1}, 20, v{E0}
    v_add_u32 v{E0+2}, 40, v{E0}
    v_add_u32 v{E0+3}, 60, v{E0}
    v_and_b32 v89, 12, v{L}
    v_lshl_add_u32 v{E0+4}, v89, 2, v{E0}
    v_add_u32 v{E0+4}, 16, v{E0+4}
    s_lshl_b32 s23, s21, 1
    s_add_u32 s23, s23, s36
    s_cmp_lg_u32 s23, 0
    s_cbranch_scc1 P1_EPI_DFT2
    s_mov_b64 exec, 0xffff
    s_mov_b32 s27, {X512_OFF}
    """)
    for T in range(5):
        a(f"v_fma_f32 v{96+T}, v{acc(3,T)}, v{TAU0 if T == 0 else TAU}, v{acc(1,T)}")
        a(f"v_lshlrev_b32 v{104+T}, 2, v{E0+T}\nv_mov_b32 v{acc(1,T)}, 0\nv_mov_b32 v{acc(3,T)}, 0")
        a(f"buffer_store_dword v{96+T}, v{104+T}, s[28:31], s27 offen sc1")
    a(f"""
    s_mov_b64 exec, -1
P1_EPI_DFT2:
    s_lshl_b32 s26, s23, 9
    s_add_u32 s26, s26, {FE_OFF}
    s_mov_b32 s27, {FO_DELTA}
    v_bfe_u32 v88, v{L}, 4, 1
    v_mul_lo_u32 v88, v88, s27
    v_lshrrev_b32 v89, 5, v{L}
    v_lshl_add_u32 v88, v89, 8, v88
    """)
    for T in range(5):
        tau = TAU0 if T == 0 else TAU
        a0, a1, a2, a3 = (acc(b, T) for b in range(4))
        for q in range(4):
            a(f"v_fma_f32 v{a0+q}, v{a1+q}, v{tau}, v{a0+q}\nv_fma_f32 v{a3+q}, v{a2+q}, v{tau}, v{a3+q}")
        for q in range(4):
            a(f"v_add_f32 v{a1+q}, v{a0+q}, v{a3+q}\nv_sub_f32 v{a2+q}, v{a0+q}, v{a3+q}")
        for f in cv(a0, a1) + cv(a0 + 2, a2): a(f)
        a(f"""
        v_lshrrev_b32 v89, 4, v{E0+T}
        v_lshl_add_u32 v89, v89, 14, v88
        v_and_b32 v{E0+T}, 15, v{E0+T}
        v_lshl_add_u32 v{E0+T}, v{E0+T}, 4, v89
        v_permlane16_swap_b32 v{a0}, v{a0+2}
        v_permlane16_swap_b32 v{a0+1}, v{a0+3}
        """)
    a(f"v_mov_b32 v88, {LFB + 56}\nv_mov_b32 v89, 1\ns_mov_b32 s12, {opt('dnu', 1)}")
    ladd(a, 88, 89, 0)
    a("s_mov_b32 s34, 1\ns_branch ATT\nNU_D:")
    for T in range(5): a(f"buffer_store_dwordx4 {vr(4*T,4)}, v{E0+T}, s[28:31], s26 offen sc1")
    a("s_branch ATT_SIG")
    a(f"""
P1_DONE:
    {st(14)}
    s_mov_b32 s34, 0
    v_mov_b32 v84, 1
    v_mov_b32 v85, 1
    v_mov_b32 v86, 1
    v_mov_b32 v87, 1
    v_mov_b32 v88, {LFB + 44}
    v_mov_b32 v89, 0
    s_and_b32 s23, s15, -128
    s_mov_b64 exec, 1
    s_waitcnt vmcnt(0)
    ds_add_rtn_u32 v88, v88, v84
    s_waitcnt lgkmcnt(0)
    v_cmp_eq_u32 vcc, 3, v88
    s_cbranch_vccz P1_NS
    buffer_store_dwordx4 v[84:87], v89, s[28:31], s23 offen sc1
P1_NS:
    s_mov_b64 exec, -1
    s_branch ATT
    """)

def p1_extra(a):
    T0 = 40
    a(f"""
P1_EXTRA:
    s_sub_u32 s61, s16, 8
    """)
    if opt("cwarm", 1):
        a(f"""
        s_cmp_lg_u32 s16, 10
        s_cbranch_scc1 P1_NOCW
        s_lshl_b32 s23, s18, 10
        s_cmp_ge_u32 s23, L_CODE_END - {NAME}_kernel - 1023
        s_cbranch_scc1 P1_NOCW
        s_getpc_b64 s[44:45]
L_PC:
        s_sub_u32 s44, s44, L_PC - {NAME}_kernel
        s_subb_u32 s45, s45, 0
        v_lshl_add_u32 v40, v0, 4, s23
        global_load_dwordx4 v[44:47], v40, s[44:45]
P1_NOCW:
        """)
    a(f"""
    v_lshrrev_b32 v37, 4, v0
    v_and_b32 v38, 15, v0
    v_lshlrev_b32 v39, 4, v0
    v_mov_b32 v36, v0
    s_waitcnt lgkmcnt(0)
    {srd(28, WS_P, WS_USED)}
    {srd(32, DBG_P, 256)}
    s_cmp_lg_u32 s61, 0
    s_cbranch_scc1 P1_EX_A
    v_mov_b32 v1, 0
    v_lshlrev_b32 v2, 2, v0
    v_add_u32 v2, {LFB}, v2
    ds_write_b32 v2, v1
    s_waitcnt lgkmcnt(0)
    s_cmp_lt_u32 s2, 248
    s_cbranch_scc1 P1_EX_WAITRDY
    v_mov_b32 v4, 0
    v_mov_b32 v5, 0
    v_mov_b32 v6, 0
    v_mov_b32 v7, 0
    s_lshl_b32 s23, s17, 12
    s_add_u32 s23, s23, {FLG_OFF}
    buffer_store_dwordx4 v[4:7], v39, s[28:31], s23 offen sc1
    buffer_store_dwordx4 v[4:7], v39, s[28:31], s23 offen offset:1024 sc1
    buffer_store_dwordx4 v[4:7], v39, s[28:31], s23 offen offset:2048 sc1
    buffer_store_dwordx4 v[4:7], v39, s[28:31], s23 offen offset:3072 sc1
    s_lshl_b32 s23, s17, 7
    s_add_u32 s23, s23, {FLG_OFF + 32768}
    s_mov_b64 exec, 0xff
    buffer_store_dwordx4 v[4:7], v39, s[28:31], s23 offen sc1
    s_mov_b64 exec, -1
P1_EX_WAITRDY:
P1_EX_A:
    s_lshl_b32 s23, s2, 2
    s_add_u32 s23, s23, s61
    s_mov_b32 s40, 0
P1_TBL:
    s_lshr_b32 s24, s23, 5
    s_and_b32 s25, s23, 30
    s_and_b32 s26, s24, 1
    s_lshr_b32 s27, s24, 1
    s_lshl_b32 s27, s27, 6
    s_add_u32 s27, s27, s26
    s_and_b32 s26, s23, 1
    s_lshl_b32 s26, s26, 5
    s_add_u32 s27, s27, s26
    v_lshl_add_u32 v{T0}, v38, 1, s27
    s_lshl_b32 s25, s25, 4
    v_lshl_add_u32 v{T0+1}, v37, 3, s25
    v_mul_u32_u24 v{T0+1}, v{T0}, v{T0+1}
    v_and_b32 v{T0+1}, 0x7ff, v{T0+1}
    v_cvt_f32_u32 v{T0}, v{T0}
    v_cvt_f32_u32 v{T0+1}, v{T0+1}
    v_mul_f32 v{T0}, 0x3a000000, v{T0}
    v_mul_f32 v0, 0x3a000000, v{T0+1}
    """)
    for u in range(1, 8): a(f"v_add_f32 v{u}, v{u-1}, v{T0}")
    for u in range(1, 8): a(f"v_fract_f32 v{u}, v{u}")
    for u in range(8): a(f"v_cos_f32 v{8+u}, v{u}")
    for u in range(8): a(f"v_sin_f32 v{16+u}, v{u}")
    for j in range(4): a(f"v_cvt_pk_bf16_f32 v{24+j}, v{8+2*j}, v{9+2*j}")
    for j in range(4): a(f"v_cvt_pk_bf16_f32 v{28+j}, v{16+2*j}, v{17+2*j}")
    NB0 = opt("tblbar", 2)
    a(f"""
    s_cmp_lg_u32 s40, 0
    s_cbranch_scc1 P1_TBL_ST
    s_barrier
    {st(1, True)}
    s_cmp_lg_u32 s61, 0
    s_cbranch_scc1 P1_EX_NR
    s_cmp_lt_u32 s2, 248
    s_cbranch_scc1 P1_EX_NR
    v_mov_b32 v32, 1
    v_mov_b32 v33, 0
    s_lshl_b32 s24, s17, 2
    s_waitcnt vmcnt(0)
    s_mov_b64 exec, 1
    buffer_store_dword v32, v33, s[32:35], s24 offen sc1
    s_mov_b64 exec, -1
P1_EX_NR:
    """ + "".join(f"s_barrier\n{st(1 + b_, True)}\n" for b_ in range(1, NB0)) + f"""
    s_mov_b32 s40, 1
P1_TBL_ST:
    s_lshl_b32 s24, s23, 11
    s_add_u32 s24, s24, {TB_OFF}
    buffer_store_dwordx4 v[24:27], v39, s[28:31], s24 offen sc1
    buffer_store_dwordx4 v[28:31], v39, s[28:31], s24 offen offset:1024 sc1
    s_add_u32 s23, s23, 1024
    s_cmp_lt_u32 s23, 1056
    s_cbranch_scc1 P1_TBL
    """)
    nb = NB0
    assert nb <= 6
    a("".join(f"s_barrier\n{st(1 + b_, True)}\n" for b_ in range(nb, 6)))
    u = a.uid()
    a(f"""
    v_and_b32 v1, 7, v36
    v_lshlrev_b32 v1, 2, v1
    v_mov_b32 v2, 1
    s_mov_b32 s60, 0
    s_cmp_lg_u32 s61, 0
    s_cbranch_scc1 P1_EX_C
    buffer_load_dword v2, v1, s[32:35], 0 offen sc1
P1_EX_C:
    s_barrier
    {st(7, True)}
    s_barrier
    {st(8, True)}
L_RDY{u}:
    s_waitcnt vmcnt(0)
    v_cmp_eq_u32 vcc, 0, v2
    s_cbranch_vccz P1_EX_B
    s_sleep 1
    buffer_load_dword v2, v1, s[32:35], 0 offen sc1
    s_add_u32 s60, s60, 1
    s_cmp_lt_u32 s60, 0x40000
    s_cbranch_scc1 L_RDY{u}
P1_EX_B:
    s_waitcnt vmcnt(0)
    s_barrier
    {st(9, True)}
    s_barrier
    {st(10, True)}
    s_mov_b32 s34, 0
    """)

def attention(a):
    O = 20; S = [0, 40, 136, 120]; IX = 114; P = 36; P2 = 64; Q1 = 56; Q2 = 60; K2 = 62; K1 = 16; V1 = 68; V2 = [72, 76]; T = 80
    a(f"""
ATT:
    s_cmp_lt_u32 s13, 4
    s_cselect_b32 s40, {opt("o1", 4)}, {opt("y1", 4)}
    s_cselect_b32 s41, {opt("o2", 7)}, {opt("y2", 6)}
    s_movk_i32 s35, 0x10a
    s_bitset1_b32 s35, s40
    s_bitset1_b32 s35, s41
    s_mov_b32 s24, 0xfffff
    s_mov_b32 s25, 0xfffff
    s_mul_i32 s39, s13, 1280
    s_add_u32 s39, s39, {QLDS}
    v_mov_b32 v{Q2+1}, 0
    v_mov_b32 v{K2+1}, 0x3f803f80
    v_add_u32 v{T}, s39, v{AK1}
    v_add_u32 v{T+1}, s39, v{AK2}
    v_mov_b32 v{T+2}, 1
    """)
    NQ = opt("nq", 2)
    OX = [84, O]; QX1 = [100, Q1]; QX2 = [104, Q2]; U = 106; TM = 136; XS = 107520
    if NQ == 2:
        a(f"""
        s_xor_b32 s36, s13, 1
        s_mul_i32 s39, s36, 1280
        s_add_u32 s39, s39, {QLDS}
        v_add_u32 v{U}, s39, v{AK1}
        v_add_u32 v{U+1}, s39, v{AK2}
        v_mov_b32 v{U+2}, v{AK1}
        v_mov_b32 v{U+3}, v{AK2}
        v_mov_b32 v{QX2[0]+1}, 0
        s_mov_b32 s42, {QSCALE:#x}
        s_mov_b32 s43, s42
        s_and_b32 s37, s13, 1
        s_mul_i32 s37, s37, 2560
        v_and_b32 v{U+4}, 0x70, v{VA}
        v_lshrrev_b32 v{U+4}, 2, v{U+4}
        v_add_u32 v{U+4}, {LFB}, v{U+4}
        s_lshl_b32 s23, s13, 12
        s_add_u32 s23, s23, {XS}
        v_add_u32 v{U+5}, s23, v{VA}
        v_xor_b32 v{U+7}, 4, v{PA}
        s_lshl_b32 s23, s36, 12
        s_add_u32 s23, s23, {XS}
        v_add_u32 v{U+6}, s23, v{VA}
        s_lshr_b32 s38, s13, 2
        s_add_u32 s38, s38, 7
        """)
        for r in (AK1, AK2, AV, BK1, BK2, BV): a(f"v_add_u32 v{r}, s37, v{r}")
        for r in range(16): a(f"v_mov_b32 v{OX[0]+r}, 0")
    for r in range(12): a(f"v_mov_b32 v{V1+r}, v{ONES}")
    for r in range(16): a(f"v_mov_b32 v{O+r}, 0")
    for r in range(4): a(f"v_mov_b32 v{P+r}, -1")
    for r in range(8): a(f"v_mov_b32 v{S[3]+8+r}, 0")
    a(f"v_mov_b32 v{IX}, 0xdddddddd")
    def rk1(d): return f"v_mfma_f32_32x32x8_bf16 {vr(d,16)}, {vr(K2,2)}, {vr(Q2,2)}, 0"
    def rk2(d): return f"v_mfma_f32_32x32x16_bf16 {vr(d,16)}, {vr(K1,4)}, {vr(Q1,4)}, {vr(d,16)}"
    def qk1(d): return f"v_mfma_f32_32x32x16_bf16 {vr(d,16)}, {vr(K1,4)}, {vr(Q1,4)}, 0"
    def qk2(d): return f"v_mfma_f32_32x32x8_bf16 {vr(d,16)}, {vr(K2,2)}, {vr(Q2,2)}, {vr(d,16)}"
    def pv(v, p): return f"v_smfmac_f32_32x32x32_bf16 {vr(O,16)}, {vr(v,4)}, {vr(p,8)}, v{IX}"
    def of(t): return (t - 6 if t in (6, 7) else t) * 2560
    def rdk1(t): return f"ds_read_b128 {vr(K1,4)}, v{BK1 if t in (6, 7) else AK1} offset:{of(t)}"
    def rdk2(t): return f"ds_read_b32 v{K2}, v{BK2 if t in (6, 7) else AK2} offset:{of(t)+1024}"
    def rdv(t, v2):
        b = BV if t in (6, 7) else AV
        return f"s_mov_b64 exec, s[24:25]\nds_read_b128 {vr(V1,4)}, v{b} offset:{of(t)+1280}\nds_read_b128 {vr(v2,4)}, v{b} offset:{of(t)+1920}\ns_mov_b64 exec, -1"
    def maxtree(s, m, first):
        if first:
            a(f"v_max3_f32 v{m}, v{s}, v{s+1}, v{s+2}\nv_max3_f32 v{m+1}, v{s+3}, v{s+4}, v{s+5}")
            for j in range(6, 14, 4): a(f"v_max3_f32 v{m}, v{s+j}, v{s+j+1}, v{m}\nv_max3_f32 v{m+1}, v{s+j+2}, v{s+j+3}, v{m+1}")
            a(f"v_max3_f32 v{m}, v{s+14}, v{s+15}, v{m}\nv_max_f32 v{m}, v{m}, v{m+1}")
        else:
            for j in range(0, 16, 2): a(f"v_max3_f32 v{m}, v{s+j}, v{s+j+1}, v{m}")
    def xhalf(m):
        a(f"v_mov_b32 v{m+1}, v{m}\ns_nop 1\nv_permlane32_swap_b32 v{m}, v{m+1}\ns_nop 0\nv_max_f32 v{m}, v{m}, v{m+1}")
    a(f"""
    {st(4)}
    s_barrier
    s_setprio 3
    s_cmp_lg_u32 s34, 1
    s_cbranch_scc1 ATT_NOSIG
    s_cmp_eq_u32 s22, 1
    s_cbranch_scc1 NU_QK
    s_cmp_eq_u32 s22, 2
    s_cbranch_scc1 NU_V
    s_branch NU_D
ATT_SIG:
    """)
    if opt("comb", 1):
        a(f"""
        v_mov_b32 v{T+3}, {LFB + 44}
        s_and_b32 s23, s15, -128
        s_mov_b64 exec, 1
        s_waitcnt vmcnt(0)
        ds_add_rtn_u32 v{T+3}, v{T+3}, v{T+2}
        s_waitcnt lgkmcnt(0)
        v_cmp_eq_u32 vcc, 3, v{T+3}
        s_cbranch_vccz ATT_NOSIG
        buffer_store_dwordx4 {vr(P,4)}, v{O}, s[28:31], s23 offen sc1
        """)
    else:
        a(f"s_waitcnt vmcnt(0)\ns_mov_b64 exec, 1\nbuffer_store_dword v{T+2}, v{O}, s[28:31], s15 offen sc1")
    a(f"""
ATT_NOSIG:
    s_mov_b64 exec, -1
    {st(6)}
    """)
    def e(s, j): return f"v_exp_f32 v{s+j}, v{s+j}"
    def c(s, j): return f"v_cvt_pk_bf16_f32 v{P+j}, v{s+2*j}, v{s+2*j+1}"
    if NQ == 2:
        def xk1(x, d=None): return f"v_mfma_f32_32x32x16_bf16 {vr(S[x if d is None else d],16)}, {vr(K1,4)}, {vr(QX1[x],4)}, 0"
        def xk2(x, d=None): return f"v_mfma_f32_32x32x8_bf16 {vr(S[x if d is None else d],16)}, {vr(K2,2)}, {vr(QX2[x],2)}, {vr(S[x if d is None else d],16)}"
        def xpv(x, v, p): return f"v_smfmac_f32_32x32x32_bf16 {vr(OX[x],16)}, {vr(v,4)}, {vr(p,8)}, v{IX}"
        def scale(x):
            for j in range(5): a(f"v_lshlrev_b32 v{TM+2*j}, 16, v{QX1[x]+j}\nv_and_b32 v{TM+2*j+1}, 0xffff0000, v{QX1[x]+j}")
            if opt("pkq", 0):
                for j in range(0, 10, 2): a(f"v_pk_mul_f32 {vr(TM+j,2)}, {vr(TM+j,2)}, s[42:43]")
            else:
                for j in range(10): a(f"v_mul_f32 v{TM+j}, s42, v{TM+j}")
            for j in range(5): a(f"v_cvt_pk_bf16_f32 v{QX1[x]+j}, v{TM+2*j}, v{TM+2*j+1}")
        MH = f32bits(-0.5 * (20 ** -0.5) * math.log2(math.e))
        a(f"""
        ds_read_b128 {vr(K1,4)}, v{U+2}
        ds_read_b32 v{K2}, v{U+3} offset:1024
        ds_read_b128 {vr(QX1[0],4)}, v{U}
        ds_read_b32 v{QX2[0]}, v{U+1} offset:1024
        ds_read_b128 {vr(Q1,4)}, v{T}
        ds_read_b32 v{Q2}, v{T+1} offset:1024
        {rdv(0, V2[0])}
        s_waitcnt lgkmcnt(4)
        {xk1(0)}
        {xk2(0)}
        s_waitcnt lgkmcnt(2)
        {xk1(1)}
        {xk2(1)}
        {rdk1(0)}
        {rdk2(0)}
        s_mov_b32 s26, 0
        """)
        scale(0)
        maxtree(S[0], T, True)
        a(f"v_mul_f32 v{T}, {MH:#x}, v{T}\nv_cvt_pk_bf16_f32 v{QX2[0]+1}, v{T}, 0\ns_waitcnt lgkmcnt(0)\n{xk1(0)}\n{xk2(0)}")
        scale(1)
        maxtree(S[1], T, True)
        a(f"""
        v_mul_f32 v{T}, {MH:#x}, v{T}
        v_cvt_pk_bf16_f32 v{Q2+1}, v{T}, 0
        {xk1(1)}
        {rdk1(2)}
        {st(7)}
ATT_LOOP:
        """)
        for i in range(4):
            for x in (0, 1):
                SP = {0: (4, 8, 12), 1: (5, 8, 13), 2: (4, 7, 11), 3: (5, 9, 13)}[opt('sp', 0)]
                n = 2 * i + x; cur = S[n % 4]; y = 1 - x; t_ = 2 * (i + 1)
                if x == 1: a("s_waitcnt lgkmcnt(0)")
                a(xk2(y, (n + 1) % 4))
                if x == 0: a(rdk2(t_))
                for q in range(SP[0]): a(e(cur, q))
                a(xpv(y, V2[(i + 1) % 2] if x == 0 else V2[i % 2], S[(n - 1) % 4] + 8))
                if x == 0: a("s_waitcnt lgkmcnt(1)")
                if x == 0 and i == 3: a.l[-1] = "    s_waitcnt vmcnt(0) lgkmcnt(1)"
                if x == 1 and i == 1: a(f"ds_write_b32 v{PA}, v{T+2}")
                if x == 1 and i == 3: a(f"ds_read_b32 v{U}, v{U+4}")
                for q in range(SP[0], SP[1]): a(e(cur, q))
                a(xk1(x, (n + 2) % 4))
                if x == 1: a(rdk1(t_ + 2))
                for q in range(SP[1], SP[2]): a(e(cur, q))
                a(xpv(x, V1, cur))
                if x == 1: a(rdv(t_, V2[(i + 1) % 2]))
                for q in range(SP[2], 16): a(e(cur, q))
    a(f"""
    s_add_u32 s26, s26, 1
    s_movk_i32 s27, 0x5000
    s_cmp_eq_u32 s26, 7
    s_cselect_b32 s27, {(0x5000 - 62 * 2560) & 0xffffffff}, s27
    v_add_u32 v{AK1}, 0x5000, v{AK1}
    v_add_u32 v{AK2}, 0x5000, v{AK2}
    v_add_u32 v{AV}, 0x5000, v{AV}
    v_add_u32 v{BK1}, s27, v{BK1}
    v_add_u32 v{BK2}, s27, v{BK2}
    v_add_u32 v{BV}, s27, v{BV}
    v_add_u32 v{T+2}, 1, v{T+2}
    s_bitcmp1_b32 s35, s26
    s_cbranch_scc0 ATT_LOOP
    s_cmp_gt_u32 s26, 3
    s_cbranch_scc1 ATT_EV
    v_add_u32 v{FA}, 8, v{FA}
    s_cmp_eq_u32 s26, 1
    s_cbranch_scc0 ATT_WAIT
    buffer_store_dwordx4 {vr(P,4)}, v{OA1}, s[28:31], s6 offen sc1
    s_mov_b64 exec, 0xffff
    buffer_store_dwordx4 {vr(P,4)}, v{OA2}, s[28:31], s7 offen sc1
    s_mov_b64 exec, -1
ATT_WAIT:
    ds_read_b32 v{T}, v{FA}
    s_waitcnt lgkmcnt(0)
    v_readfirstlane_b32 s23, v{T}
    s_cmp_ge_u32 s23, 4
    s_cbranch_scc1 ATT_LOOP
    s_sleep 1
    s_branch ATT_WAIT
ATT_EV:
    s_setprio 2
    s_cmp_eq_u32 s26, s40
    s_cbranch_scc1 ATT_LOOP
    s_setprio 1
    s_cmp_lt_u32 s26, 8
    s_cbranch_scc1 ATT_LOOP
    s_setprio 3
    {pv(V2[1], S[3]+8)}
    {st(8)}
    """)
    if NQ == 2:
        a(f"""
        s_mov_b32 s27, 0x3e800000
        s_mov_b32 s23, 0x71800000
        s_waitcnt lgkmcnt(3)
        v_cmp_gt_u32 vcc, s38, v{U}
        s_cbranch_vccz ATT_X0
ATT_X1:
        s_sleep 2
        ds_read_b32 v{U}, v{U+4}
        s_waitcnt lgkmcnt(0)
        v_cmp_gt_u32 vcc, s38, v{U}
        s_cbranch_vccnz ATT_X1
ATT_X0:
        """)
        for j in range(3): a(f"ds_write_b128 v{U+5}, {vr(OX[0]+4*j,4)} offset:{1024*j}")
        a(f"ds_write_b64 v{U+5}, {vr(OX[0]+12,2)} offset:3072\nds_write_b32 v{PA}, v{T+2} offset:96\nATT_X2:\nds_read_b32 v{U}, v{U+7} offset:96")
        for j in range(3): a(f"ds_read_b128 {vr(S[0]+4*j,4)}, v{U+6} offset:{1024*j}")
        a(f"ds_read_b64 {vr(S[0]+12,2)}, v{U+6} offset:3072\ns_waitcnt lgkmcnt(0)\nv_cmp_eq_u32 vcc, 0, v{U}\ns_cbranch_vccz ATT_X3\ns_sleep 1\ns_branch ATT_X2\nATT_X3:\ns_nop 1")
        for r in range(0, 14, 2): a(f"v_pk_add_f32 {vr(O+r,2)}, {vr(O+r,2)}, {vr(S[0]+r,2)}")
    else:
        a("s_mov_b32 s27, 0x3e800000\ns_mov_b32 s23, 0x71800000\ns_nop 9")
    a(f"v_rcp_f32 v{T+2}, v{O+12}\nv_add_f32 v{T}, |v{O}|, |v{O+1}|\nv_add_f32 v{T+1}, |v{O+2}|, |v{O+3}|")
    for j in range(4, 12, 2): a(f"v_add_f32 v{T}, |v{O+j}|, v{T}\nv_add_f32 v{T+1}, |v{O+j+1}|, v{T+1}")
    a(f"""
    v_add_f32 v{T}, v{T}, v{O+12}
    v_cmp_le_f32 s[42:43], s27, v{O+12}
    v_add_f32 v{T}, v{T}, v{T+1}
    v_cmp_gt_f32 vcc, s23, v{T}
    s_and_b64 vcc, vcc, s[42:43]
    s_cmp_eq_u64 vcc, -1
    s_cbranch_scc0 ATT_FALLBACK
ATT_FINISH:
    """)
    for j in range(0, 8, 2): a(f"v_pk_mul_f32 {vr(O+j,2)}, {vr(O+j,2)}, {vr(T+2,2)} op_sel_hi:[1,0]")
    for j in range(4): a(f"v_cvt_pk_bf16_f32 v{P+j}, v{O+2*j}, v{O+2*j+1}")
    for j in range(4): a(f"v_min_u32 v{P+j}, -2, v{P+j}")
    a(f"buffer_store_dwordx4 {vr(P,4)}, v{OA1}, s[28:31], s6 offen sc1")
    for j in range(8, 12, 2): a(f"v_pk_mul_f32 {vr(O+j,2)}, {vr(O+j,2)}, {vr(T+2,2)} op_sel_hi:[1,0]")
    for j in range(4, 6): a(f"v_cvt_pk_bf16_f32 v{P2+j-4}, v{O+2*j}, v{O+2*j+1}")
    for j in range(4, 6): a(f"v_min_u32 v{P2+j-4}, -2, v{P2+j-4}")
    a(f"""
    s_nop 1
    v_permlane16_swap_b32 v{P2}, v{P2+2}
    v_permlane16_swap_b32 v{P2+1}, v{P2+3}
    s_mov_b64 exec, 0xffff
    buffer_store_dwordx4 {vr(P2,4)}, v{OA2}, s[28:31], s7 offen sc1
    {st(9)}
    s_cmp_ge_u32 s13, 4
    s_cbranch_scc1 {"L_DONE" if STAMP else "L_END"}
    s_mov_b64 exec, -1
    s_xor_b32 s41, s13, {opt('gx', 2)}
    s_mov_b32 s47, 1
    s_branch P3_GO
    """)
    def gk(): return f"buffer_load_dwordx4 {vr(K1,4)}, v{AK1}, s[28:31], s23 offen sc1\nbuffer_load_dword v{K2}, v{AK2}, s[28:31], s23 offen offset:1024 sc1"
    a(f"""
ATT_FALLBACK:
    s_waitcnt lgkmcnt(0)
    v_mov_b32 v{Q2+1}, 0
    v_mov_b32 v{T}, 0xff800000
    {f's_add_u32 s23, s37, {HS}' if NQ == 2 else f's_mov_b32 s23, {HS}'}
    v_subrev_u32 v{AK1}, s23, v{AK1}
    v_subrev_u32 v{AK2}, s23, v{AK2}
    v_subrev_u32 v{AV}, s23, v{AV}
    s_add_u32 s23, s14, {KV_OFF}
    s_mov_b32 s26, 0
ATT_FB1:
    {gk()}
    s_add_u32 s23, s23, 2560
    s_waitcnt vmcnt(0)
    {qk1(S[0])}
    {qk2(S[0])}
    s_nop 15
    """)
    maxtree(S[0], T, False)
    a("s_add_u32 s26, s26, 1\ns_cmp_lt_u32 s26, 64\ns_cbranch_scc1 ATT_FB1")
    xhalf(T)
    a(f"s_add_u32 s23, s14, {KV_OFF}\ns_mov_b32 s26, 0")
    for r in range(16): a(f"v_mov_b32 v{O+r}, 0")
    a(f"""
ATT_FB2:
    {gk()}
    s_mov_b64 exec, s[24:25]
    buffer_load_dwordx4 {vr(V1,4)}, v{AV}, s[28:31], s23 offen offset:1280 sc1
    buffer_load_dwordx4 {vr(V2[0],4)}, v{AV}, s[28:31], s23 offen offset:1920 sc1
    s_mov_b64 exec, -1
    s_add_u32 s23, s23, 2560
    s_waitcnt vmcnt(0)
    {qk1(S[0])}
    {qk2(S[0])}
    s_nop 15
    """)
    for q in range(16): a(f"v_sub_f32 v{S[0]+q}, v{S[0]+q}, v{T}")
    for q in range(16): a(e(S[0], q))
    a(f"""
    s_nop 1
    {pv(V1, S[0])}
    {pv(V2[0], S[0]+8)}
    s_add_u32 s26, s26, 1
    s_cmp_lt_u32 s26, 64
    s_cbranch_scc1 ATT_FB2
    s_nop 15
    s_nop 3
    v_rcp_f32 v{T+2}, v{O+12}
    s_nop 0
    s_branch ATT_FINISH
    """)

def lwait(a, vaddr, vdat, mask, target, slp=8):
    u = a.uid()
    a(f"""
    s_mov_b64 exec, {mask}
    s_branch L_LWE{u}
L_LW{u}:
    s_sleep {slp}
L_LWE{u}:
    ds_read_b32 v{vdat}, v{vaddr}
    s_waitcnt lgkmcnt(0)
    v_cmp_gt_u32 vcc, {target}, v{vdat}
    s_cbranch_vccnz L_LW{u}
    s_mov_b64 exec, -1
    """)
def ladd(a, vaddr, vone, off):
    a(f"s_mov_b64 exec, 1\nds_add_u32 v{vaddr}, v{vone} offset:{off}\ns_mov_b64 exec, -1")

def helpers(a):
    WA, VG, VZ, SH, HPA, HONE, YFA, FZ, SG, XA5, LF = 112, 117, 118, 119, 120, 121, 122, 123, 124, 125, 126
    ZL = 40; G = 167; VY = 162; T = 132; LT = 127
    a(f"""
HELPER:
    s_mov_b32 s61, s22
    {st(2)}
    {srd(28, WS_P, WS_USED)}
    s_setprio 0
    s_lshr_b32 s20, s18, 2
    s_mul_i32 s26, s20, 160
    s_movk_i32 s23, {1280 - 160}
    """)
    for i in range(5):
        a(f"""
        v_add_u32 v{T}, {64*i}, v0
        v_mul_u32_u24 v{T+1}, 6554, v{T}
        v_lshrrev_b32 v{T+1}, 16, v{T+1}
        v_lshlrev_b32 v{T}, 4, v{T}
        v_mad_u32_u24 v{WA+i}, v{T+1}, s23, v{T}
        """)
    a(f"""
    s_lshl_b32 s21, s17, 3
    s_and_b32 s22, s18, 3
    s_add_u32 s21, s21, s22
    s_lshr_b32 s22, s16, 1
    s_lshl_b32 s22, s22, 2
    s_add_u32 s21, s21, s22
    s_lshl_b32 s21, s21, 1
    s_and_b32 s22, s16, 1
    s_add_u32 s21, s21, s22
    s_lshr_b32 s22, s21, 2
    s_lshl_b32 s22, s22, 1
    s_and_b32 s24, s21, 1
    s_add_u32 s22, s22, s24
    s_lshl_b32 s22, s22, 3
    v_and_b32 v{T}, 7, v0
    v_add_u32 v{T}, s22, v{T}
    s_bitcmp1_b32 s21, 1
    s_cselect_b32 s22, 0x400, 0
    s_cselect_b32 s24, -1, 1
    v_mul_lo_u32 v{T+1}, v{T}, s24
    s_sub_u32 s24, 0x800, s22
    v_sub_u32 v{T+2}, s24, v{T+1}
    v_add_u32 v{T+1}, s22, v{T+1}
    v_and_b32 v{T+3}, 8, v0
    v_cmp_ne_u32 vcc, 0, v{T+3}
    v_cmp_eq_u32 s[42:43], 0, v{T}
    v_lshlrev_b32 v{T+3}, 6, v{T+3}
    v_add_u32 v{T+3}, s22, v{T+3}
    v_cndmask_b32 v{T}, v{T+1}, v{T+2}, vcc
    v_lshrrev_b32 v{T+1}, 4, v0
    v_cndmask_b32 v{T}, v{T}, v{T+3}, s[42:43]
    v_mul_u32_u24 v{VY}, 1280, v{T}
    v_mul_u32_u24 v{T+2}, 40, v{T+1}
    v_add3_u32 v{VY}, v{VY}, v{T+2}, s26
    v_lshlrev_b32 v{VG}, 2, v{T}
    v_sub_u32 v{T+3}, 0x800, v{T}
    v_cmp_lt_u32 vcc, 0x400, v{T}
    v_min_u32 v{T}, v{T}, v{T+3}
    v_and_b32 v{T+3}, 1, v{T}
    v_mul_u32_u24 v{VZ}, {ZP}, v{T+3}
    v_lshrrev_b32 v{T+3}, 1, v{T}
    v_lshl_add_u32 v{VZ}, v{T+3}, 4, v{VZ}
    v_mov_b32 v{T+3}, 0x02020202
    v_cndmask_b32 v{SH}, 0, v{T+3}, vcc
    s_cmp_ge_u32 s20, 4
    s_mov_b32 s24, 0x05040100
    s_cselect_b32 s24, 0x07060302, s24
    s_cselect_b32 s40, -1, 1
    s_cselect_b32 s41, 155, 0
    v_xor_b32 v{SH}, s24, v{SH}
    s_mul_i32 s24, s20, 20
    v_mul_u32_u24 v{T+3}, 5, v{T+1}
    v_add_u32 v{T+3}, s24, v{T+3}
    v_mul_lo_u32 v{T+3}, v{T+3}, s40
    v_add_u32 v{T+3}, s41, v{T+3}
    v_mul_u32_u24 v{T+3}, {2*ZP}, v{T+3}
    v_add_u32 v{VZ}, v{VZ}, v{T+3}
    {p3_addr(0)}
    v_lshlrev_b32 v{HPA}, 2, v0
    v_add_u32 v{HPA}, {LFB}, v{HPA}
    v_mov_b32 v{HONE}, 1
    s_lshl_b32 s23, s2, 2
    s_add_u32 s23, s23, {FLG_OFF + 32768}
    v_mov_b32 v{YFA}, s23
    v_lshrrev_b32 v{FZ}, 4, v0
    v_mul_u32_u24 v{FZ}, {2*ZP}, v{FZ}
    v_and_b32 v{T}, 15, v0
    v_lshl_add_u32 v{FZ}, v{T}, 4, v{FZ}
    v_lshlrev_b32 v{SG}, 31, v0
    v_and_b32 v{XA5}, 48, v0
    v_lshlrev_b32 v{LF}, 7, v0
    v_bfe_u32 v{LT}, v0, 1, 2
    v_lshlrev_b32 v{LT}, 13, v{LT}
    v_and_b32 v{T}, 1, v0
    v_lshl_add_u32 v{LT}, v{T}, 7, v{LT}
    s_setprio 3
    s_lshr_b32 s19, s18, 3
    s_lshl_b32 s23, s17, 2
    s_add_u32 s19, s19, s23
    s_and_b32 s62, s18, 7
    s_mul_i32 s21, s19, {HG}
    v_lshlrev_b32 v1, 4, v0
    {st(3)}
    s_lshr_b32 s23, s19, 3
    s_lshl_b32 s23, s23, 13
    s_add_u32 s23, s23, {FLG_OFF}
    v_lshlrev_b32 v2, 7, v0
    v_add_u32 v2, s23, v2
    s_add_u32 s24, s21, {KV_OFF}
    s_lshl_b32 s40, 0x10000, s16
    s_lshl_b32 s41, 1, s16
    s_mul_i32 s22, s16, 10240
    s_add_u32 s26, s24, s22
    s_cmp_lg_u32 s16, 3
    s_cbranch_scc1 H_JA
    s_lshl_b32 s25, s62, 1
    s_lshl_b32 s40, 3, s25
    s_mov_b32 s41, 0
    s_mov_b32 s22, {QLDS}
    s_mul_i32 s26, s19, {HQ}
    s_mul_i32 s25, s62, 10240
    s_add_u32 s26, s26, s25
    s_add_u32 s26, s26, {Q_OFF}
H_JA:
    """)
    def job():
        r = f"s_add_u32 s25, s22, 5120\ns_cmp_ge_u32 s25, {LFB}\ns_cselect_b32 s25, 0, s25\n"
        for n in range(10):
            if n in (0, 3): r += f"s_add_u32 m0, s22, {1024*n}\ns_add_u32 s27, s26, {1024*n}\n"; o = 0
            if n in (5, 8): r += f"s_add_u32 m0, s25, {1024*(n-5)}\ns_add_u32 s27, s26, {1024*n}\n"; o = 0
            r += f"buffer_load_dwordx4 v1, s[28:31], s27 offen offset:{o} sc1 lds\n"; o += 1024
        return r
    if opt("latep", 1):
        a(f"s_mul_i32 s23, s12, 12\ns_cmp_eq_u32 s61, 3\ns_cselect_b32 s23, 12, s23\ns_add_u32 s23, s23, {LFB + 44}\nv_mov_b32 v3, s23")
        lwait(a, 3, 4, 1, 4, 2)
        if opt("lps", 0): a(f"s_sleep {opt('lps', 0)}")
    poll4(a, 2, 4, "s[40:41]")
    a(st(11)); a(job())
    a(f"""
    s_lshl_b32 s40, 0x80000, s16
    s_lshl_b32 s41, 8, s16
    s_add_u32 s22, s16, 3
    s_mul_i32 s22, s22, 10240
    s_add_u32 s26, s24, s22
    s_waitcnt vmcnt(0)
    {st(12)}
    s_barrier
    """)
    poll4(a, 2, 4, "s[40:41]")
    a(job())
    a(f"""
H_JB:
    s_lshl_b32 s41, 0x8880, s16
    s_and_b32 s41, s41, 0xffff
    s_lshl_b32 s40, s41, 16
    s_add_u32 s22, s16, 7
    s_mul_i32 s22, s22, 10240
    s_add_u32 s26, s24, s22
    s_waitcnt vmcnt(0)
    """)
    ladd(a, HPA, HONE, 64)
    lwait(a, HPA, 4, 0xff, 1)
    poll4(a, 2, 4, "s[40:41]", slp=8)
    a(f"{st(13)}\nH_JC:"); a(job())
    a(f"""
    s_add_u32 s22, s22, 40960
    s_add_u32 s26, s26, 40960
    s_cmp_lt_u32 s22, {HS}
    s_cbranch_scc1 H_JC
    s_waitcnt vmcnt(0)
    {st(4)}
    """)
    ladd(a, HPA, HONE, 72)
    a(f"""
    s_cmp_lt_u32 s16, 3
    s_cbranch_scc1 H_FNET
    """)
    a(f"""
    {srd(32, X_P, 2048*1280)}
    {srd(36, GATE_P, 1280)}
    v_lshrrev_b32 v2, 3, v0
    v_and_b32 v3, 7, v0
    v_lshlrev_b32 v3, 4, v3
    s_movk_i32 s22, 1280
    v_mad_u32_u24 v4, v2, s22, v3
    s_mul_i32 s23, s2, {8*1280}
    """)
    for j in range(10):
        a(f"buffer_load_dwordx4 {vr(24+8*j,4)}, v4, s[32:35], s23 offen offset:{128*j}")
        a(f"buffer_load_dwordx4 {vr(28+8*j,4)}, v3, s[36:39], 0 offen offset:{128*j}")
    a("v_mov_b32 v5, 0\nv_mov_b32 v6, 0\ns_waitcnt vmcnt(0)")
    for j in range(10):
        for q in range(4):
            a(f"v_dot2c_f32_bf16 v{5 + (q & 1)}, v{24+8*j+q}, v{28+8*j+q}")
    a(f"""
    s_nop 2
    v_add_f32 v5, v5, v6
    s_nop 1
    v_add_f32_dpp v5, v5, v5 quad_perm:[1,0,3,2] row_mask:0xf bank_mask:0xf
    s_nop 1
    v_add_f32_dpp v5, v5, v5 quad_perm:[2,3,0,1] row_mask:0xf bank_mask:0xf
    s_nop 1
    v_add_f32_dpp v5, v5, v5 row_half_mirror row_mask:0xf bank_mask:0xf
    v_mul_f32 v5, {f32bits(-math.log2(math.e)):#x}, v5
    v_exp_f32 v5, v5
    v_lshlrev_b32 v2, 2, v2
    v_add_f32 v5, 1.0, v5
    v_rcp_f32 v5, v5
    s_lshl_b32 s23, s2, 5
    s_add_u32 s23, s23, {G_OFF}
    buffer_store_dword v5, v2, s[28:31], s23 offen sc1
    s_branch H_MID
    """)
    C, SN, FB = 0, 8, 16
    a(f"""
H_FNET:
    {'s_branch H_MID' if opt('nofnet', 0) == 1 else ''}
    s_lshl_b32 s22, s16, 5
    s_add_u32 s22, s22, s18
    s_cmp_lt_u32 s22, 84
    s_cbranch_scc1 H_FN_A
    s_sub_u32 s24, s22, 84
    s_lshl_b32 s24, s24, 3
    s_add_u32 s24, s24, s17
    s_cmp_ge_u32 s24, 21
    s_cbranch_scc1 H_MID
    s_mov_b32 s23, 32
    s_branch H_FN_B
H_FN_A:
    s_mul_i32 s23, s22, 3121
    s_lshr_b32 s23, s23, 16
    s_mul_i32 s24, s23, 21
    s_sub_u32 s24, s22, s24
    s_lshl_b32 s23, s23, 3
    s_add_u32 s23, s23, s17
H_FN_B:
    s_and_b32 s25, s23, 1
    s_add_u32 s26, s24, 20
    s_cmp_eq_u32 s24, 20
    s_cselect_b32 s26, 20, s26
    s_mul_i32 s32, s24, 26
    s_lshr_b32 s32, s32, 8
    s_lshl_b32 s32, s32, 13
    s_add_u32 s32, s32, {48 * 128}
    s_mul_i32 s33, s26, 26
    s_lshr_b32 s33, s33, 8
    s_lshl_b32 s33, s33, 13
    s_add_u32 s33, s33, {32 * 128}
    s_and_b32 s34, s23, 31
    s_lshl_b32 s34, s34, 8
    s_mov_b64 exec, 0xffff
    v_add_u32 v2, s32, v{LF}
    s_mov_b32 exec_lo, 0xffff0000
    v_add_u32 v2, s33, v{LF}
    s_mov_b32 exec_lo, 0
    s_mov_b32 exec_hi, 0xff
    v_add_u32 v2, s34, v{LT}
    s_mov_b32 s40, -1
    s_movk_i32 s41, 0xff
    s_mov_b32 s27, {FLG_OFF}
    """)
    poll4(a, 2, 4, "s[40:41]", "s27", slp=8)
    a(st(14))
    a(f"""
    s_lshl_b32 s32, s23, 16
    s_add_u32 s32, s32, {TB_OFF}
    s_mul_i32 s27, s25, {FO_DELTA}
    s_add_u32 s27, s27, {FE_OFF}
    s_lshl_b32 s33, s24, 14
    s_add_u32 s33, s33, s27
    s_lshl_b32 s34, s26, 14
    s_add_u32 s34, s34, s27
    s_cmp_eq_u32 s25, 0
    s_cselect_b32 s35, s24, s26
    s_lshl_b32 s35, s35, 6
    s_add_u32 s35, s35, {X512_OFF}
    buffer_load_dwordx4 v[128:131], v{XA5}, s[28:31], s35 offen sc1
    """)
    def fl(j):
        r = FB + 24 * j
        s_ = f"buffer_load_dwordx4 {vr(r,4)}, v163, s[28:31], s33 offen offset:{1024*j} sc1\n"
        s_ += f"buffer_load_dwordx4 {vr(r+4,4)}, v163, s[28:31], s34 offen offset:{1024*j} sc1\n"
        for k in range(4): s_ += f"buffer_load_dwordx4 {vr(r+8+4*k,4)}, v163, s[28:31], s32 offen offset:{1024*k} sc1\n"
        s_ += "s_add_u32 s32, s32, 4096\n"
        if j == 3: s_ += "s_add_u32 s33, s33, 4096\ns_add_u32 s34, s34, 4096\n"
        return s_
    def fm(j):
        r = FB + 24 * j
        s_ = ""
        if opt("nofnet", 0) == 2: return s_
        for sub in range(2):
            s_ += f"v_mfma_f32_16x16x32_bf16 {vr(C+4*sub,4)}, {vr(r,4)}, {vr(r+8+8*sub,4)}, {vr(C+4*sub,4)}\n"
            s_ += f"v_mfma_f32_16x16x32_bf16 {vr(SN+4*sub,4)}, {vr(r+4,4)}, {vr(r+12+8*sub,4)}, {vr(SN+4*sub,4)}\n"
        return s_
    for j in range(4): a(fl(j))
    a(f"""
    s_cmp_eq_u32 s25, 0
    s_cselect_b32 s36, 1.0, 0
    s_cselect_b32 s37, 0, 1.0
    v_or_b32 v161, s37, v{SG}
    v_or_b32 v160, s36, v{SG}
    s_waitcnt vmcnt(24)
    """)
    for r in range(8): a(f"v_mul_f32 v{C+r}, v160, v{128 + r % 4}\nv_mul_f32 v{SN+r}, v161, v{128 + r % 4}")
    a("s_mov_b32 s38, 0\nH_FN_LOOP:")
    for j in range(4):
        a("s_waitcnt vmcnt(18)"); a(fm(j)); a(fl(j))
    a("s_add_u32 s38, s38, 1\ns_cmp_lt_u32 s38, 3\ns_cbranch_scc1 H_FN_LOOP")
    for j in range(4):
        a(f"s_waitcnt vmcnt({18-6*j})"); a(fm(j))
    a(f"""
    s_cmp_eq_u32 s26, 20
    s_cselect_b32 s44, 0xffff, 0
    s_mov_b32 s45, 0
    s_mul_i32 s26, s24, {8*ZP}
    s_mul_i32 s27, s25, {ZP}
    s_add_u32 s26, s26, s27
    s_lshr_b32 s27, s23, 1
    s_lshl_b32 s27, s27, 9
    s_add_u32 s26, s26, s27
    s_add_u32 s26, s26, {Y_OFF}
    v_cndmask_b32 v{SN}, v{SN}, 0, s[44:45]
    v_cndmask_b32 v{SN+4}, v{SN+4}, 0, s[44:45]
    """)
    for r in range(8):
        a(f"v_add_f32 v{16+r}, v{C+r}, v{SN+r}\nv_sub_f32 v{C+r}, v{C+r}, v{SN+r}")
    for r in range(8): a(f"v_cvt_pk_bf16_f32 v{16+r}, v{16+r}, v{C+r}")
    a(f"buffer_store_dwordx4 v[16:19], v{FZ}, s[28:31], s26 offen sc1\nbuffer_store_dwordx4 v[20:23], v{FZ}, s[28:31], s26 offen offset:256 sc1")
    a(f"""
H_MID:
    s_lshl_b32 s19, s17, 2
    s_and_b32 s20, s18, 3
    s_add_u32 s19, s19, s20
    s_lshr_b32 s20, s18, 2
    {srd(32, WO_P, 640*1280)}
    {srd(36, OUT_P, 2621440)}
    s_mul_i32 s26, s20, 160
    s_mul_i32 s27, s16, {160*1280}
    s_add_u32 s27, s27, s26
    s_movk_i32 s23, {1280 - 160}
    """)
    a(f"""
    s_add_u32 s25, s16, 1
    s_and_b32 s25, s25, 3
    s_mul_i32 s22, s25, 25600
    s_add_u32 s22, s22, {WOL}
    s_add_u32 s25, s25, 3
    s_waitcnt vmcnt(0)
    {st(5)}
    """)
    lwait(a, HPA, T + 1, 0xff, 3)
    a(f"""s_mov_b64 exec, 1
    ds_add_rtn_u32 v{T+1}, v{HPA}, v{HONE} offset:48
    s_waitcnt lgkmcnt(0)
    v_cmp_eq_u32 vcc, 3, v{T+1}
    s_cbranch_vccz H_NOY
    buffer_store_dword v{HONE}, v{YFA}, s[28:31], 0 offen sc1
H_NOY:
    s_mov_b64 exec, -1""")
    lwait(a, HPA, T + 1, 0xff, "s25")
    a(f"{st(6)}\ns_mov_b32 s25, 0\nH_WO:")
    for i in range(5):
        a(f"s_add_u32 m0, s22, {1024*i}\ns_nop 0\nbuffer_load_dwordx4 v{WA+i}, s[32:35], s27 offen lds")
    a(f"""
    s_add_u32 s22, s22, 5120
    s_add_u32 s27, s27, {32*1280}
    s_add_u32 s25, s25, 1
    s_cmp_lt_u32 s25, 5
    s_cbranch_scc1 H_WO
    s_cmp_lg_u32 s16, 3
    s_cbranch_scc1 H_YW
    """)
    lwait(a, HPA, T + 1, 0xff, opt("ypr", 5), 16)
    a(f"s_mov_b32 s27, {FLG_OFF + 32768}")
    poll4(a, VA, 4, "-1", "s27", slp=32)
    ladd(a, HPA, HONE, 40)
    a(f"H_YW:\nv_add_u32 v{T}, 40, v{HPA}")
    lwait(a, T, T + 1, 1, 1, 16)
    a("s_waitcnt vmcnt(0)")
    a(f"v_mov_b32 v{T}, 2")
    ladd(a, HPA, T, 32)
    a(f"{st(7)}\ns_mov_b32 s26, {Y_OFF}\ns_mov_b32 s27, {G_OFF}\nbuffer_load_dword v{G}, v{VG}, s[28:31], s27 offen sc1")
    for j in range(6):
        a(f"buffer_load_dwordx4 {vr(ZL+4*j,4)}, v{VZ}, s[28:31], s26 offen sc1\ns_add_u32 s26, s26, {2*ZP}")
    BF, OFR, ACC, YG = 0, 100, 120, 140
    VY2, G2 = 162, 167
    a(f"""
    s_waitcnt vmcnt(0)
    s_cmp_ge_u32 s20, 4
    s_cbranch_scc1 H_DESC
    """)
    for k in range(10): a(f"v_perm_b32 v{YG+10+k}, v{ZL+2*k+1}, v{ZL+2*k}, v{SH}")
    a("s_branch H_UNP\nH_DESC:")
    for k in range(10): a(f"v_perm_b32 v{YG+10+k}, v{ZL+19-2*k}, v{ZL+20-2*k}, v{SH}")
    a("H_UNP:")
    lwait(a, HPA, 8, 0xf, 8)
    a(f"""
    {st(8)}
    s_mov_b32 s41, s16
    s_mov_b32 s47, 0
P3_GO:
    s_setprio {opt('p3o', 0)}
    s_lshl_b32 s22, s17, 3
    s_and_b32 s23, s18, 3
    s_add_u32 s22, s22, s23
    s_lshl_b32 s22, s22, 1
    s_add_u32 s22, s22, s47
    s_mul_i32 s22, s22, 20480
    s_add_u32 s22, s22, {OF_OFF}
    s_lshl_b32 s44, s41, 12
    s_add_u32 s44, s44, s22
    s_lshl_b32 s45, s41, 10
    s_add_u32 s45, s45, s22
    s_add_u32 s45, s45, 16384
    s_lshl_b32 s46, s47, 2
    s_add_u32 s40, s46, {LFB + 80}
    s_add_u32 s46, s46, s41
    s_mul_i32 s46, s46, 5120
    s_add_u32 s46, s46, {WOL}
    s_mov_b32 s26, 0
    s_mov_b32 s42, 0
    v_mov_b32 v{CM}, {LFB + 32}
    """)
    lwait(a, CM, CT, 1, 8)
    a("P3_TRY:")
    for k in range(4):
        a(f"buffer_load_dwordx4 {vr(OFR+4*k,4)}, v{VA}, s[28:31], s44 offen offset:{1024*k} sc1")
    a(f"buffer_load_dwordx2 {vr(OFR+16,2)}, v{VT}, s[28:31], s45 offen sc1\nbuffer_load_dwordx2 {vr(OFR+18,2)}, v{VT}, s[28:31], s45 offen offset:128 sc1")
    a(f"""
    s_cmp_lg_u32 s26, 0
    s_cbranch_scc1 P3_CHK
    s_add_u32 s23, s41, 1
    s_and_b32 s23, s23, 3
    s_mul_i32 s23, s23, 25600
    s_add_u32 s23, s23, {WOL}
    v_add_u32 v{CM}, s23, v{BMM}
    v_add_u32 v{CT}, s23, v{BMT}
    """)
    for n in range(25):
        k, t = divmod(n, 5); d = BF + 4 * n
        bb, o, dj = (CM, k * 6400 + t * 8, 1280) if k < 4 else (CT, t * 8, 3200)
        a(f"ds_read_b64_tr_b16 {vr(d,2)}, v{bb} offset:{o}\nds_read_b64_tr_b16 {vr(d+2,2)}, v{bb} offset:{o+dj}")
    a(f"v_mov_b32 v{BMM}, {LFB + 36}\nv_mov_b32 v{BMT}, 1\ns_waitcnt lgkmcnt(0)")
    ladd(a, BMM, BMT, 0)
    b = OFR
    def mfs(k): return "\n".join(f"v_mfma_f32_16x16x32_bf16 {vr(ACC+4*t,4)}, {vr(BF+4*(5*k+t),4)}, {vr(OFR+4*k,4)}, {vr(ACC+4*t,4) if k else 0}" for t in range(5))
    if opt("spec", 1):
        a("P3_CHK:\ns_add_u32 s26, s26, 1\ns_mov_b32 s43, -1")
        for k in range(5):
            r = b + 4 * k
            a(f"""P3_C{k}:
            s_waitcnt vmcnt({max(0, 5 - k) if k < 4 else 0})
            v_max3_u32 v{CM}, v{r}, v{r+1}, v{r+2}
            v_max3_u32 v{CM}, v{r+3}, v{CM}, 1
            v_cmp_eq_u32 vcc, s43, v{CM}
            s_cbranch_vccnz P3_B{k}
            {mfs(k)}""")
        a(f"{'' if opt('fst', 0) else st(11)}\ns_branch P3_OK")
        for k in range(5):
            a(f"P3_B{k}:\ns_sleep {opt('p3s', 4)}")
            for kk in range(k, 4):
                a(f"buffer_load_dwordx4 {vr(OFR+4*kk,4)}, v{VA}, s[28:31], s44 offen offset:{1024*kk} sc1")
            a(f"buffer_load_dwordx2 {vr(OFR+16,2)}, v{VT}, s[28:31], s45 offen sc1\nbuffer_load_dwordx2 {vr(OFR+18,2)}, v{VT}, s[28:31], s45 offen offset:128 sc1")
            a(f"s_add_u32 s26, s26, 1\ns_cmp_lt_u32 s26, 0x40000\ns_cselect_b32 s43, -1, 0\ns_branch P3_C{k}")
        a("P3_OK:")
    else:
        a(f"P3_CHK:\ns_add_u32 s26, s26, 1\ns_waitcnt vmcnt(4)\nv_max3_u32 v{CM}, v{b}, v{b+1}, v{b+2}\nv_max3_u32 v{CT}, v{b+3}, v{b+4}, v{b+5}\nv_max3_u32 v{CM}, v{b+6}, v{b+7}, v{CM}\ns_waitcnt vmcnt(2)")
        a(f"v_max3_u32 v{CT}, v{b+8}, v{b+9}, v{CT}\nv_max3_u32 v{CM}, v{b+10}, v{b+11}, v{CM}\nv_max3_u32 v{CT}, v{b+12}, v{b+13}, v{CT}\nv_max3_u32 v{CM}, v{b+14}, v{b+15}, v{CM}\ns_waitcnt vmcnt(0)")
        a(f"""
    v_max3_u32 v{CT}, v{b+16}, v{b+17}, v{CT}
    v_max3_u32 v{CM}, v{b+18}, v{b+19}, v{CM}
    s_cmp_lt_u32 s26, 0x40000
    v_max_u32 v{CM}, v{CM}, v{CT}
    s_cbranch_scc0 P3_OK
    v_cmp_eq_u32 vcc, -1, v{CM}
    s_cbranch_vccz P3_OK
    s_sleep {opt("p3s", 4)}
    s_branch P3_TRY
P3_OK:
    {'' if opt('fst', 0) else st(11)}
    s_setprio {opt('p3p', 0)}
    """)
        for n in range(25):
            k, t = divmod(n, 5)
            a(f"v_mfma_f32_16x16x32_bf16 {vr(ACC+4*t,4)}, {vr(BF+4*n,4)}, {vr(OFR+4*k,4)}, {vr(ACC+4*t,4) if k else 0}")
    a("s_cmp_lg_u32 s42, 0\ns_cbranch_scc1 P3_WR")
    lwait(a, BMM, CT, 1, 8, 2)
    a(f"{str() if opt('fst', 0) else st(12)}\nP3_WR:\nv_add_u32 v{CM}, s46, v{VA}\nv_mov_b32 v{CT}, s40\ns_nop 1")
    for j in range(5): a(f"ds_write_b128 v{CM}, {vr(ACC+4*j,4)} offset:{1024*j}")
    a("s_waitcnt lgkmcnt(0)")
    ladd(a, CT, BMT, 0)
    a(f"""
    s_add_u32 s44, s44, {8*20480}
    s_add_u32 s45, s45, {8*20480}
    s_add_u32 s46, s46, {8*5120}
    s_add_u32 s40, s40, 8
    s_add_u32 s42, s42, 1
    s_cmp_ge_u32 s42, 2
    s_cbranch_scc1 P3_END
    s_cmp_ge_u32 s16, 4
    s_cbranch_scc1 P3_TRY
    """)
    for k in range(10): a(f"v_lshlrev_b32 v{YG+2*k}, 16, v{YG+10+k}\nv_and_b32 v{YG+2*k+1}, 0xffff0000, v{YG+10+k}")
    for k in range(20): a(f"v_mul_f32 v{YG+k}, v{YG+k}, v{G2}")
    a(f"""
    v_sub_f32 v{G2}, 1.0, v{G2}
    s_branch P3_TRY
P3_END:
    {st(10)}
    s_cmp_ge_u32 s16, 4
    s_cbranch_scc1 {"L_DONE" if STAMP else "L_END"}
    s_setprio 3
    s_lshl_b32 s23, s16, 2
    s_add_u32 s23, s23, {LFB + 80}
    v_mov_b32 v{CT}, s23
    s_mul_i32 s23, s16, 20480
    s_add_u32 s23, s23, {WOL}
    v_add_u32 v{CM}, s23, v{VA}
    """)
    lwait(a, CT, BMM, 1, 4, 1)
    a(st(9))
    for j in range(5):
        for g in range(4): a(f"ds_read_b128 {vr(16*j+4*g,4)}, v{CM} offset:{5120*g+1024*j}")
    for j in range(5):
        a(f"s_waitcnt lgkmcnt({min(15, 16-4*j)})")
        for r in (0, 2): a(f"v_pk_add_f32 {vr(16*j+r,2)}, {vr(16*j+r,2)}, {vr(16*j+4+r,2)}\nv_pk_add_f32 {vr(16*j+8+r,2)}, {vr(16*j+8+r,2)}, {vr(16*j+12+r,2)}")
        for r in (0, 2): a(f"v_pk_add_f32 {vr(16*j+r,2)}, {vr(16*j+r,2)}, {vr(16*j+8+r,2)}")
        for r in range(4): a(f"v_fmac_f32 v{YG+4*j+r}, v{16*j+r}, v{G2}")
        a(f"v_cvt_pk_bf16_f32 v{84+2*j}, v{YG+4*j}, v{YG+4*j+1}\nv_cvt_pk_bf16_f32 v{84+2*j+1}, v{YG+4*j+2}, v{YG+4*j+3}")
        if j == 1: a(f"buffer_store_dwordx4 v[84:87], v{VY2}, s[36:39], 0 offen" + OSC)
        if j == 3: a(f"buffer_store_dwordx4 v[88:91], v{VY2}, s[36:39], 0 offen offset:16" + OSC)
    a(f"buffer_store_dwordx2 v[92:93], v{VY2}, s[36:39], 0 offen offset:32" + OSC)

DOC = """;
"""
def main():
    a = A()
    top = open("cdna_kernels/" + NAME + ".s.ref").read().split("; Override launch")[0]
    top += "; @launch grid=(256,1,1) block=(768,1,1) lds=163840\n"
    top += DOC
    a('.amdgcn_target "amdgcn-amd-amdhsa--gfx950"\n.text')
    d = gen(a)
    open(sys.argv[1], "w").write(top + a.text() + '.section .rodata,"a"\n.p2align 6\n' + d)
if __name__ == "__main__":
    main()
```

```python
import sys, math, struct

OPT = dict(x.split("=") for x in sys.argv[2:])
def opt(k, d): return int(OPT.get(k, d))
NAME = "gated_mix__spectral_fnet__softmax_full_mha__prompt"
HS = 163840
KV_OFF = 0
HG = HS + opt('pad', 512)
HQ = 81920 + opt('pad', 512)
Q_OFF = 32 * HG
FE_OFF = Q_OFF + 32 * HQ
FO_DELTA = 655360
X512_OFF = FE_OFF + 2 * FO_DELTA
TB_OFF = X512_OFF + 4096
Y_OFF = TB_OFF + 33 * 65536
ZP = 8704
G_OFF = Y_OFF + 85 * 2 * ZP
OF_OFF = G_OFF + 8192
FLG_OFF = OF_OFF + 2621440
WS_USED = FLG_OFF + 320 * 128
XB = 102400
L_Y = 256
QLDS = 71680
RB0, RSL = 11264, 36864
LFB = 158720
WOL = 5120
AK1, AK2, AV, BK1, BK2, BV, OA1, OA2, ONES, PA, FA = range(152, 163)
VA, VT, BMM, BMT, CM, CT = 163, 164, 165, 166, 160, 161
PXB = 107520
def p3_addr(l):
    return f"""v_lshlrev_b32 v{VA}, 4, v{l}
    v_and_b32 v2, 7, v{l}
    v_bfe_u32 v4, v{l}, 3, 1
    v_lshrrev_b32 v3, 4, v{l}
    v_lshlrev_b32 v{VT}, 8, v3
    v_lshl_add_u32 v{VT}, v2, 4, v{VT}
    v_lshl_add_u32 v{VT}, v4, 3, v{VT}
    v_bfe_u32 v2, v{l}, 2, 2
    v_and_b32 v5, 3, v{l}
    v_mul_u32_u24 v5, 40, v5
    v_mul_u32_u24 v4, 40, v3
    v_add3_u32 v4, v4, v2, 16
    v_mul_u32_u24 v4, 160, v4
    v_add_u32 v{BMT}, v4, v5
    v_lshrrev_b32 v4, 1, v3
    v_mul_u32_u24 v4, 20, v4
    v_and_b32 v3, 1, v3
    v_lshl_add_u32 v4, v3, 2, v4
    v_add_u32 v4, v4, v2
    v_mul_u32_u24 v4, 160, v4
    v_add_u32 v{BMM}, v4, v5"""

def f32bits(x): return struct.unpack("<I", struct.pack("<f", x))[0]
QSCALE = f32bits((20 ** -0.5) * math.log2(math.e))
STAMP = opt("stamp", 0)
STAMP_OFF = 1 << 25
NST = 16

class A:
    def __init__(self): self.l = []; self.n = 0
    def __call__(self, s):
        for line in s.split("\n"):
            t = line.strip()
            if not t: continue
            self.l.append(t if t.endswith(":") or t.startswith(".") else "    " + t)
    def uid(self): self.n += 1; return self.n
    def text(self): return "\n".join(self.l) + "\n"

def vr(a, n): return f"v[{a}:{a+n-1}]" if n > 1 else f"v{a}"
def srd(lo, base, size):
    return f"s_mov_b32 s{lo}, s{base}\ns_mov_b32 s{lo+1}, s{base+1}\ns_mov_b32 s{lo+2}, {size}\ns_mov_b32 s{lo+3}, 0x20000"
OSC = " sc1" if opt("outsc1", 0) else ""
ALN = (f".p2align {opt('al', 0)}" if opt("al", 0) else "") + ("\ns_nop 0" if opt("al4", 0) else "")
ALN2 = f".p2align {opt('al2', 0)}" if opt("al2", 0) else ""
P1ST = opt("p1st", 0)
def st(i, p1=False):
    if not STAMP: return ""
    if P1ST and not p1 and 0 < i < 15 and i not in (4, 5): return ""
    if P1ST and not p1 and i in (4, 5): i += 8
    if p1 and not P1ST: return ""
    return f"{'s_memrealtime' if STAMP in (1, 3, 4) else 's_memtime'} s[{64+2*i}:{65+2*i}]"
def fin(): return "s_branch L_DONE" if STAMP else "s_endpgm"

X_P, WD_P, WQKV_P, WO_P, GATE_P, OUT_P, DBG_P, WS_P = 4, 8, 48, 50, 52, 54, 56, 58

def poll(a, vaddr, vdat, mask, target, sreg=60):
    u = a.uid()
    a(f"""
    s_mov_b64 exec, {mask}
    s_mov_b32 s{sreg}, 0
L_POLL{u}:
    buffer_load_dword v{vdat}, v{vaddr}, s[28:31], 0 offen sc1
    s_waitcnt vmcnt(0)
    v_cmp_gt_u32 vcc, {target}, v{vdat}
    s_cbranch_vccz L_POLLD{u}
    {'s_sleep 1' if opt('psleep', 0) else ''}
    s_add_u32 s{sreg}, s{sreg}, 1
    s_cmp_lt_u32 s{sreg}, 0x40000
    s_cbranch_scc1 L_POLL{u}
L_POLLD{u}:
    s_mov_b64 exec, -1
    """)

def poll4(a, vaddr, vdat, mask, soff="0", sreg=60, slp=None):
    u = a.uid()
    a(f"""
    s_mov_b64 exec, {mask}
    s_mov_b32 s{sreg}, 0
    s_branch L_POLLE{u}
L_POLL{u}:
    s_sleep {slp or opt("ps4", 2)}
L_POLLE{u}:
    buffer_load_dwordx4 {vr(vdat,4)}, v{vaddr}, s[28:31], {soff} offen sc1
    s_add_u32 s{sreg}, s{sreg}, 1
    s_waitcnt vmcnt(0)
    v_min3_u32 v{vdat}, v{vdat}, v{vdat+1}, v{vdat+2}
    s_cmp_lt_u32 s{sreg}, 0x40000
    v_min_u32 v{vdat}, v{vdat}, v{vdat+3}
    s_cbranch_scc0 L_POLLD{u}
    v_cmp_eq_u32 vcc, 0, v{vdat}
    s_cbranch_vccnz L_POLL{u}
L_POLLD{u}:
    s_mov_b64 exec, -1
    """)

def gen(a):
    label = NAME + "_kernel"
    a(f".p2align 8\n.globl {label}\n.type {label},@function\n{label}:")
    a(f"""
    s_cmp_ge_u32 s2, 256
    s_cbranch_scc1 L_END
    {st(0) + chr(10) + 's_waitcnt lgkmcnt(0)' if opt("st0first", 0) else ''}
    s_load_dwordx2 s[4:5], s[0:1], 0
    s_load_dwordx8 s[48:55], s[0:1], 48
    s_load_dwordx4 s[8:11], s[0:1], 24
    s_load_dwordx4 s[56:59], s[0:1], 80
    """)
    if STAMP:
        a("\n".join(f"s_mov_b32 s{64+j}, 0" for j in range(2, 2 * NST)) + "\n" + ("" if opt("st0first", 0) else st(0)))
    a(f"""
    v_lshrrev_b32 v1, 6, v0
    v_and_b32 v0, 63, v0
    s_and_b32 s17, s2, 7
    v_readfirstlane_b32 s16, v1
    s_lshr_b32 s18, s2, 3
    s_and_b32 s19, s18, 7
    s_lshr_b32 s22, s18, 3
    s_and_b32 s21, s17, 1
    s_lshl_b32 s23, s19, 1
    s_add_u32 s21, s21, s23
    s_lshr_b32 s20, s17, 1
    s_cmp_ge_u32 s19, {opt("numl", 4)}
    s_cselect_b32 s12, 1, 0
    s_cmp_eq_u32 s22, 0
    s_cselect_b32 s12, 0, s12
    s_cmp_ge_u32 s16, 4
    s_cbranch_scc1 P1_NOTLOADER
    """)
    p1_loader(a)
    a(f"""
P1_NOTLOADER:
    s_lshl_b32 s63, s17, 2
    s_add_u32 s63, s63, s22
    s_mul_i32 s14, s63, {HG}
    s_sub_u32 s13, s16, 4
    s_lshl_b32 s23, s19, 3
    s_add_u32 s23, s23, s13
    s_mul_i32 s23, s23, 40960
    s_add_u32 s23, s23, {OF_OFF}
    s_lshl_b32 s6, s63, 9
    s_add_u32 s6, s6, s23
    s_lshl_b32 s7, s63, 7
    s_add_u32 s7, s7, s23
    s_add_u32 s7, s7, 16384
    s_lshl_b32 s15, s20, 2
    s_add_u32 s15, s15, s22
    s_lshl_b32 s15, s15, 4
    s_add_u32 s15, s15, s21
    s_lshl_b32 s15, s15, 5
    s_add_u32 s15, s15, s13
    s_lshl_b32 s15, s15, 2
    s_add_u32 s15, s15, {FLG_OFF}
    v_and_b32 v1, 31, v0
    v_lshrrev_b32 v2, 5, v0
    v_lshlrev_b32 v{AK1}, 4, v0
    v_lshrrev_b32 v3, 4, v1
    v_lshl_add_u32 v3, v3, 1, v2
    v_and_b32 v4, 15, v0
    v_lshl_add_u32 v3, v4, 2, v3
    v_lshlrev_b32 v{AK2}, 2, v3
    v_mul_u32_u24 v{AV}, 384, v2
    v_lshlrev_b32 v3, 6, v2
    v_cmp_gt_u32 vcc, 16, v1
    s_nop 1
    v_cndmask_b32 v{AV}, v3, v{AV}, vcc
    v_lshl_add_u32 v{AV}, v1, 4, v{AV}
    v_add_u32 v{BK1}, 15360, v{AK1}
    v_add_u32 v{BK2}, 15360, v{AK2}
    v_add_u32 v{BV}, 15360, v{AV}
    v_and_b32 v3, 27, v1
    v_cmp_eq_u32 vcc, 24, v3
    v_mov_b32 v3, 0x3f803f80
    v_bfe_u32 v{OA2}, v1, 3, 1
    v_cndmask_b32 v{ONES}, 0, v3, vcc
    v_mul_u32_u24 v{OA2}, 20480, v{OA2}
    v_and_b32 v3, 7, v1
    v_lshl_add_u32 v{OA2}, v3, 4, v{OA2}
    v_lshrrev_b32 v3, 4, v0
    v_lshl_add_u32 v{OA1}, v3, 7, v{OA2}
    s_lshl_b32 s23, s13, 2
    s_add_u32 s23, s23, {LFB}
    v_mov_b32 v{PA}, s23
    v_mov_b32 v{FA}, {LFB + 56}
    {p3_addr(0)}
    s_cmp_ge_u32 s16, 8
    s_cbranch_scc1 P1_EXTRA
    """)
    p1_compute(a)
    p1_extra(a)
    attention(a)
    helpers(a)
    a("L_DONE:")
    if STAMP == 4:
        i_, j_ = opt("ai", 0), opt("aj", 0)
        a(f"""s_waitcnt vmcnt(0)
        {st(NST-1)}
        s_waitcnt lgkmcnt(0)
        {f's_cmp_lg_u32 s16, {opt("aw1", 0)}' if opt("aw1", 0) else f's_cmp_ge_u32 s16, {opt("aw", 4)}'}
        s_cbranch_scc1 L_END
        s_and_b32 s60, s2, {opt("am", 31)}
        s_cmp_lg_u32 s60, {opt("av", 5)}
        s_cbranch_scc1 L_END
        s_sub_u32 s60, s{64+2*j_}, s{64+2*i_}
        s_lshl_b32 s60, s60, 2
        s_min_u32 s60, s60, 100000
        {f's_mov_b32 s60, {opt("fix", 0)}' if opt("fix", 0) else ''}
L_AMP:
        s_memrealtime s[44:45]
        s_waitcnt lgkmcnt(0)
        s_sub_u32 s44, s44, s{64 if opt("fix", 0) else 64+2*(NST-1)}
        s_cmp_lt_u32 s44, s60
        s_cbranch_scc1 L_AMP
        """)
    elif STAMP == 3:
        r = f"s_waitcnt vmcnt(0)\n{st(NST-1)}\ns_mov_b64 exec, 1\n{srd(44, DBG_P, 256)}\ns_waitcnt lgkmcnt(0)\nv_mov_b32 v16, 0\n"
        r += "s_not_b32 s60, s64\nv_mov_b32 v0, s60\nbuffer_atomic_umax v0, v16, s[44:47], 0 offen offset:4 sc1\n"
        r += "s_cmp_eq_u32 s16, 0\ns_cbranch_scc1 L_D0\ns_cmp_eq_u32 s16, 4\ns_cbranch_scc0 L_END\n"
        for n, i in enumerate((2, 3, 4, 5, 7, 8, 9)): r += f"v_mov_b32 v{n+1}, s{64+2*i}\nbuffer_atomic_umax v{n+1}, v16, s[44:47], 0 offen offset:{8+4*n} sc1\n"
        r += "s_endpgm\nL_D0:\n"
        for n, i in enumerate((0, 1, 6, 8, 9, 10, 15)): r += f"v_mov_b32 v{n+1}, s{64+2*i}\nbuffer_atomic_umax v{n+1}, v16, s[44:47], 0 offen offset:{36+4*n} sc1\n"
        a(r)
    elif STAMP:
        r = f"s_waitcnt vmcnt(0)\n{st(NST-1)}\ns_mov_b64 exec, 1\ns_add_u32 s44, s{WS_P}, {STAMP_OFF}\ns_addc_u32 s45, s{WS_P+1}, 0\ns_mov_b32 s46, 262144\ns_mov_b32 s47, 0x20000\n"
        r += "s_lshl_b32 s60, s2, 4\ns_add_u32 s60, s60, s16\ns_lshl_b32 s60, s60, 6\ns_waitcnt lgkmcnt(0)\nv_mov_b32 v16, 0\n"
        if opt("xcc", 0): r += "s_getreg_b32 s66, hwreg(HW_REG_XCC_ID)\ns_add_u32 s66, s66, 100\n"
        for i in range(NST): r += f"v_mov_b32 v{i}, s{64+2*i}\n"
        for i in range(4): r += f"buffer_store_dwordx4 v[{4*i}:{4*i+3}], v16, s[44:47], s60 offen offset:{16*i}\n"
        a(r)
    a("L_END:\ns_endpgm\n.fill 256, 4, 0xbf810000\nL_CODE_END:")
    return f""".amdhsa_kernel {label}
  .amdhsa_next_free_vgpr 168
  .amdhsa_next_free_sgpr {100 if STAMP else 64}
  .amdhsa_accum_offset 168
  .amdhsa_group_segment_fixed_size 0
  .amdhsa_kernarg_size 96
  .amdhsa_user_sgpr_count 2
  .amdhsa_user_sgpr_kernarg_segment_ptr 1
  .amdhsa_system_sgpr_workgroup_id_x 1
.end_amdhsa_kernel
"""

def p1_loader(a):
    a(f"""
    s_setprio 3
    """)
    if opt("pf", 0):
        a(f"""
        v_lshlrev_b32 v20, 4, v0
        s_mul_i32 s23, s2, 10240
        s_and_b32 s24, s16, 1
        s_mul_i32 s24, s24, 5120
        s_add_u32 s23, s23, s24
        s_mul_i32 s25, s2, 3
        s_mov_b32 s31, 0x20000
        s_mov_b32 s35, 0x20000
        s_mov_b32 s34, {640*1280}
        s_waitcnt lgkmcnt(0)
        s_mov_b32 s30, {2048*1280}
        s_cmp_lt_u32 s16, 2
        s_cselect_b32 s28, s{X_P}, s{WQKV_P}
        s_cselect_b32 s29, s{X_P+1}, s{WQKV_P+1}
        s_cselect_b32 s30, s30, {640*3840}
        s_cselect_b32 s32, s8, s10
        s_cselect_b32 s33, s9, s11
        buffer_load_dwordx4 v[24:27], v20, s[28:31], s23 offen
        buffer_load_dwordx4 v[28:31], v20, s[28:31], s23 offen offset:1024
        buffer_load_dwordx4 v[32:35], v20, s[28:31], s23 offen offset:2048
        buffer_load_dwordx4 v[36:39], v20, s[28:31], s23 offen offset:3072
        s_add_u32 s23, s23, 4096
        buffer_load_dwordx4 v[40:43], v20, s[28:31], s23 offen
        s_lshr_b32 s24, s24, 11
        s_add_u32 s25, s25, s24
        s_mul_i32 s25, s25, 1280
        s_mov_b32 exec_hi, 0xff
        buffer_load_dwordx4 v[44:47], v20, s[32:35], s25 offen
        s_bitcmp1_b32 s16, 0
        s_cbranch_scc1 P1_PF1
        buffer_load_dwordx4 v[48:51], v20, s[32:35], s25 offen offset:1280
P1_PF1:
        s_mov_b32 exec_hi, -1
        """)
    a(f"""
    v_lshrrev_b32 v2, 3, v0
    v_and_b32 v3, 7, v0
    v_lshrrev_b32 v4, 4, v0
    v_xor_b32 v3, v3, v4
    v_lshlrev_b32 v3, 4, v3
    v_xor_b32 v4, 64, v3
    s_lshl_b32 s23, s21, 5
    s_lshr_b32 s24, s16, 1
    s_lshl_b32 s24, s24, 4
    s_add_u32 s23, s23, s24
    s_cmp_eq_u32 s22, 2
    s_cselect_b32 s25, 4, 0
    v_and_b32 v9, s25, v2
    v_add3_u32 v9, v9, v2, s23
    s_sub_u32 s25, 8, s25
    s_bitcmp1_b32 s16, 0
    s_cselect_b32 s23, -1, 1
    s_cselect_b32 s24, 0x400, 0
    s_mul_i32 s25, s25, s23
    v_mul_lo_u32 v10, v9, s23
    s_sub_u32 s27, 0x800, s24
    v_add_u32 v5, s24, v10
    v_sub_u32 v7, s27, v10
    v_add_u32 v6, s25, v5
    v_subrev_u32 v8, s25, v7
    v_cmp_eq_u32 vcc, 0, v9
    s_add_u32 s24, s24, 0x200
    v_mov_b32 v9, s24
    s_cmp_lg_u32 s22, 2
    v_cndmask_b32 v7, v7, v9, vcc
    s_cbranch_scc1 P1_LD_NV
    v_swap_b32 v6, v7
P1_LD_NV:
    s_movk_i32 s27, 1280
    v_mad_u32_u24 v10, v5, s27, v3
    v_mad_u32_u24 v11, v6, s27, v4
    v_mad_u32_u24 v12, v7, s27, v3
    v_mad_u32_u24 v13, v8, s27, v4
    """)
    EX = opt("early", 1) and opt("stag1", 7) == 7
    if EX:
        a(f"""
        s_lshr_b32 s36, s17, 1
        s_xor_b32 s36, s36, s17
        s_and_b32 s36, s36, 1
        s_xor_b32 s36, s36, 9
        s_lshl_b32 s41, s36, 7
        s_lshl_b32 s44, s16, 12
        s_add_u32 m0, s44, {RB0 + 2 * RSL}
        s_waitcnt lgkmcnt(0)
        {srd(28, X_P, 2048*1280)}
        buffer_load_dwordx4 v10, s[28:31], s41 offen lds
        """)
        for i in range(1, 4):
            a(f"s_add_u32 m0, s44, {RB0 + 2 * RSL + 1024*i}\ns_nop 0\nbuffer_load_dwordx4 v{10+i}, s[28:31], s41 offen lds")
    a(f"""
    s_lshl_b32 s26, s22, 2
    s_add_u32 s26, s26, s20
    s_and_b32 s27, s20, 1
    s_movk_i32 s25, 3840
    s_cmp_eq_u32 s22, 3
    s_cselect_b32 s25, 1280, s25
    s_cselect_b32 s26, s27, s26
    s_mul_i32 s26, s26, 320
    s_lshl_b32 s27, s16, 4
    s_mul_i32 s27, s27, s25
    s_add_u32 s26, s26, s27
    s_sub_u32 s27, s25, 320
    """)
    for i in range(5):
        a(f"""
        v_add_u32 v5, {64*i}, v0
        v_mul_u32_u24 v6, 3277, v5
        v_lshrrev_b32 v6, 16, v6
        v_lshrrev_b32 v7, 2, v6
        v_and_b32 v7, 2, v7
        v_xor_b32 v5, v5, v7
        v_lshl_add_u32 v5, v5, 4, s26
        v_mad_u32_u24 v{14+i}, v6, s27, v5
        """)
    sg = opt("stag1", 7)
    if sg == 1:
        a("s_lshl_b32 s36, s19, 3\ns_lshl_b32 s37, s22, 4\ns_add_u32 s36, s36, s37\ns_add_u32 s36, s36, s17\ns_and_b32 s36, s36, 63\ns_mul_i32 s36, s36, 10\ns_lshr_b32 s36, s36, 6")
    elif sg == 2:
        a("s_add_u32 s36, s19, s22\ns_lshl_b32 s36, s36, 4\ns_add_u32 s36, s36, s17\ns_add_u32 s36, s36, s17\ns_and_b32 s36, s36, 63\ns_mul_i32 s36, s36, 10\ns_lshr_b32 s36, s36, 6")
    elif sg == 3:
        a("s_add_u32 s36, s19, s22\ns_lshl_b32 s36, s36, 5\ns_lshl_b32 s37, s17, 2\ns_add_u32 s36, s36, s37\ns_and_b32 s36, s36, 63\ns_mul_i32 s36, s36, 10\ns_lshr_b32 s36, s36, 6")
    elif sg >= 10:
        nc = sg - 9
        Gn = 5 - nc
        rot = [2 * (nc + k % Gn) for k in range(2 * Gn - 1)]
        rv = sum(v << (4 * k) for k, v in enumerate(rot))
        com = sum((2 * k) << (4 * k) for k in range(nc))
        a(f"""
        s_lshr_b32 s36, s17, 1
        s_xor_b32 s36, s36, s17
        s_and_b32 s36, s36, 1
        s_add_u32 s37, s22, s19
        s_lshr_b32 s46, s17, 2
        s_lshl_b32 s46, s46, {opt("xsh", 1)}
        s_add_u32 s37, s37, s46
        s_mul_i32 s46, s37, {256 // Gn + 1}
        s_lshr_b32 s46, s46, 8
        s_mul_i32 s46, s46, {Gn}
        s_sub_u32 s37, s37, s46
        s_lshl_b32 s37, s37, 2
        s_lshr_b32 s46, {rv:#x}, s37
        s_and_b32 s46, s46, {(1 << (4 * Gn)) - 1:#x}
        s_lshl_b32 s46, s46, {4 * nc}
        s_or_b32 s46, s46, {0x53100000 | com:#x}
        s_mov_b32 s47, 0x97
        s_mul_i32 s37, s36, 0x11111111
        s_xor_b32 s46, s46, s37
        s_xor_b32 s47, s47, s37
        s_and_b32 s36, s46, 15
        """)
    elif sg >= 5:
        tsh = {5: 0, 6: 1, 7: 0, 8: 0, 9: 0}[sg]
        a(f"""
        s_lshr_b32 s36, s17, 1
        s_xor_b32 s36, s36, s17
        s_and_b32 s36, s36, 1
        {'s_min_u32 s37, s22, 2' if sg == 9 else f's_lshr_b32 s37, s22, {tsh}'}
        s_add_u32 s37, s37, s19
        s_lshr_b32 s46, s17, 2
        s_lshl_b32 s46, s46, 1
        s_add_u32 s37, s37, s46
        s_mul_i32 s46, s37, 52
        s_lshr_b32 s46, s46, 8
        s_mul_i32 s46, s46, 5
        s_sub_u32 s37, s37, s46
        s_lshl_b32 s37, s37, 2
        s_mov_b32 s46, 0x42086420
        s_mov_b32 s47, 0x6
        s_lshr_b64 s[46:47], s[46:47], s37
        s_and_b32 s46, s46, 0xfffff
        {'s_or_b32 s47, s46, 0x11111' + chr(10) + 's_lshl_b32 s37, s47, 20' + chr(10) + 's_or_b32 s46, s46, s37' + chr(10) + 's_lshr_b32 s47, s47, 12' if sg == 8 else 's_or_b32 s46, s46, 0x53100000' + chr(10) + 's_mov_b32 s47, 0x97'}
        s_mul_i32 s37, s36, 0x11111111
        s_xor_b32 s46, s46, s37
        s_xor_b32 s47, s47, s37
        """)
        if sg == 7:
            a("s_lshr_b32 s37, s47, 4\ns_and_b32 s37, s37, 15\ns_lshl_b64 s[46:47], s[46:47], 4\ns_or_b32 s46, s46, s37")
        a("s_and_b32 s36, s46, 15")
    else:
        a("s_mov_b32 s36, 0")
    a(f"""
    s_lshl_b32 s38, s16, 12
    s_add_u32 s38, s38, {RB0}
    s_mul_i32 s39, s16, 5120
    s_add_u32 s39, s39, {RB0 + 16384}
    s_mov_b32 s40, 0
    s_mul_i32 s34, s25, 640
    s_lshl_b32 s25, s25, 6
    s_mov_b32 s35, 0x20000
    s_waitcnt lgkmcnt(0)
    {srd(28, X_P, 2048*1280)}
    s_cmp_lt_u32 s20, 2
    s_cselect_b32 s32, s8, s10
    s_cselect_b32 s33, s9, s11
    s_cmp_eq_u32 s22, 3
    s_cselect_b32 s32, s32, s{WQKV_P}
    s_cselect_b32 s33, s33, s{WQKV_P+1}
    {st(1)}
    """)
    if opt("dftdelay", 0):
        a(f"""s_cmp_lg_u32 s22, 3
        s_cbranch_scc1 P1_LD_LOOP
        s_memrealtime s[42:43]
        s_waitcnt lgkmcnt(0)
        s_add_u32 s42, s42, {opt("dftdelay", 0)}
P1_DLY:
        s_memrealtime s[44:45]
        s_waitcnt lgkmcnt(0)
        s_cmp_lt_u32 s44, s42
        s_cbranch_scc1 P1_DLY
        """)
    a(f"""
P1_LD_LOOP:
    s_lshl_b32 s41, s36, 7
    s_mul_i32 s42, s36, s25
    s_add_u32 s43, s40, 2
    s_and_b32 s43, s43, 3
    s_mul_i32 s43, s43, {RSL}
    s_add_u32 s44, s43, s38
    s_add_u32 s45, s43, s39
    """)
    if EX: a("s_cmp_eq_u32 s40, 0\ns_cbranch_scc1 P1_LD_WW")
    for i in range(4):
        a(f"s_add_u32 m0, s44, {1024*i}\ns_nop 0\nbuffer_load_dwordx4 v{10+i}, s[28:31], s41 offen lds")
    a("P1_LD_WW:")
    for i in range(5):
        a(f"s_add_u32 m0, s45, {1024*i}\ns_nop 0\nbuffer_load_dwordx4 v{14+i}, s[32:35], s42 offen lds")
    if opt("noload", 0): a("s_cmp_ge_u32 s40, 3\ns_cselect_b32 s30, 0, s30\ns_cselect_b32 s34, 0, s34")
    a(f"""
    {'s_lshr_b64 s[46:47], s[46:47], 4' + chr(10) + 's_and_b32 s36, s46, 15' if sg >= 5 else 's_add_u32 s36, s36, 1' + chr(10) + 's_cmp_eq_u32 s36, 10' + chr(10) + 's_cselect_b32 s36, 0, s36'}
    s_add_u32 s40, s40, 1
    s_cmp_eq_u32 s40, 1
    s_cbranch_scc1 P1_LD_LOOP
    s_waitcnt vmcnt(9)
    s_barrier
    s_cmp_lt_u32 s40, 10
    s_cbranch_scc1 P1_LD_LOOP
    s_waitcnt vmcnt(0)
    s_barrier
    s_branch HELPER
    """)

def p1_compute(a):
    X = 80; W = [96, 116]; XA = 136; WA = 137; CX = 142; CW = 144; PC = 149; L = 150; TT = 96
    def acc(b, T): return 20 * b + 4 * T
    a(f"""
    s_sub_u32 s61, s16, 4
    s_and_b32 s36, s61, 1
    s_lshr_b32 s37, s61, 1
    v_mov_b32 v{L}, v0
    v_and_b32 v1, 15, v0
    v_lshrrev_b32 v2, 4, v0
    v_lshrrev_b32 v3, 1, v1
    v_xor_b32 v3, v3, v2
    v_lshlrev_b32 v3, 4, v3
    v_lshl_add_u32 v3, v1, 7, v3
    s_lshl_b32 s23, s36, 13
    s_add_u32 s23, s23, {RB0}
    v_add_u32 v{XA}, s23, v3
    v_bfe_u32 v3, v0, 2, 2
    v_lshl_add_u32 v3, v2, 3, v3
    v_mul_u32_u24 v3, 320, v3
    v_add_u32 v3, {RB0 + 16384}, v3
    v_and_b32 v4, 16, v0
    v_lshlrev_b32 v4, 1, v4
    v_and_b32 v5, 3, v0
    s_mul_i32 s23, s37, 160
    v_lshl_add_u32 v6, v5, 3, s23
    """)
    for T in range(4):
        a(f"v_xor_b32 v7, v6, v4\nv_add_u32 v{WA+T}, v7, v3\nv_add_u32 v6, 40, v6")
    a(f"""
    v_mul_u32_u24 v6, 40, v5
    v_add3_u32 v6, v6, s23, 32
    v_xor_b32 v7, v6, v4
    v_add_u32 v{WA+4}, v7, v3
    v_mov_b32 v{PC}, 0xbf803f80
    s_lshl_b32 s26, s22, 2
    s_add_u32 s26, s26, s20
    s_lshl_b32 s26, s26, 1
    s_add_u32 s26, s26, s37
    s_cmp_eq_u32 s26, 28
    s_cselect_b32 s24, 0x10001, 0
    s_mov_b32 s25, s24
    s_cmp_eq_u32 s22, 3
    s_cselect_b32 s43, 10, 8
    s_mov_b32 s40, 0
    s_mov_b32 s42, {2 * RSL}
    """)
    for r in range(96): a(f"v_mov_b32 v{r}, 0")
    for r in range(20): a(f"v_mov_b32 v{W[1]+r}, 0")
    a(f"v_add_u32 v{CX}, s42, v{XA}")
    for T in range(5): a(f"v_add_u32 v{CW+T}, s42, v{WA+T}")
    a(f"s_waitcnt lgkmcnt(0)\n{srd(28, WS_P, WS_USED)}")
    a(f"s_setprio {opt('cp', 2)}\ns_cmp_ge_u32 s22, 2\ns_cbranch_scc1 P1_PRE_V")
    def mf(b, T, x, w, qk):
        d = vr(acc(b, T), 4)
        return f"v_mfma_f32_16x16x32_bf16 {d}, {vr(w,4)}, {vr(x,4)}, {d}" if qk else f"v_mfma_f32_16x16x32_bf16 {d}, {vr(x,4)}, {vr(w,4)}, {d}"
    def rdw(d, T, step): return [f"ds_read_b64_tr_b16 {vr(d+2*j,2)}, v{CW+T} offset:{(step // 2) * RSL + (step % 2) * 10240 + 1280 * j}" for j in range(2)]
    def rdx(d, b, step): return f"ds_read_b128 {vr(d,4)}, v{CX + step % 2} offset:{(step // 2) * RSL + 2048 * b}"
    TO = (1, 2, 3, 4, 0)
    def group(step, qk, reads=True, patch=True):
        cur = W[1 - step]; nxt = W[step]
        rq = []
        for T in TO: rq += rdw(nxt + 4 * T, T, step)
        fill = []
        if step == 1:
            fill = ["s_add_u32 s40, s40, 1", "s_add_u32 s41, s40, 2", "s_and_b32 s41, s41, 3", f"s_mul_i32 s42, s41, {RSL}", f"v_add_u32 v{CX}, s42, v{XA}"] + [f"v_add_u32 v{CW+T}, s42, v{WA+T}" for T in range(5)]
        issued = 0
        for b in range(4):
            if reads:
                allow = [2, 15, issued + 1, issued][b]
                if b != 1: a(f"s_waitcnt lgkmcnt({min(15, allow)})")
            elif b == 0: a("s_waitcnt lgkmcnt(0)")
            for n, T in enumerate(TO):
                a(mf(b, T, X + 4 * b, cur + 4 * T, qk))
                if b == 0 and n < 2 and not qk and patch:
                    for j in range(2): a(f"v_cndmask_b32 v{cur+2*n+j}, v{cur+2*n+j}, v{PC}, s[24:25]")
                if not reads: continue
                if step == 0 and b == 0:
                    if n == 0: a(f"v_xor_b32 v{CX+1}, 64, v{CX}")
                    if n == opt("bn", 1): a("s_barrier")
                    if n <= opt("bn", 1): continue
                if n == 4: a(rdx(X + 4 * b, b, step)); issued += 1
                elif rq:
                    a(rq.pop(0)); issued += 1
                    if rq and (opt("rd2", 0) or (step == 0 and b == 1 and n < opt("bn", 1) - 1)): a(rq.pop(0)); issued += 1
                elif fill:
                    a(fill.pop(0))
                    if fill: a(fill.pop(0))
        assert not reads or (not rq and not fill), (rq, fill)

    def tail(qk, epi):
        seq = [(b, T, ("x0", b), ("w0", T)) for b in range(4) for T in TO]
        marks = {}
        win = opt("win", 2)
        for step in range(4 - win):
            for b in range(4):
                for T in TO: seq.append((b, T, ("x", 0, step, b), ("w", step, T)))
        for T in range(5):
            for jj in range(2):
                for step in range(4 - win, 4):
                    for b in (2 * jj, 2 * jj + 1): seq.append((b, T, ("x", 0, step, b), ("w", step, T)))
                marks[len(seq) - 1] = (T, jj)
        last = {}
        for n, (_, _, x, w) in enumerate(seq): last[x] = n; last[w] = n
        loc = {("x0", b): X + 4 * b for b in range(4)}; loc.update({("w0", T): W[1] + 4 * T for T in range(5)})
        free = [W[0] + 4 * k for k in range(5)] + [XA]
        order = []
        for _, _, x, w in seq:
            for f in (w, x):
                if f not in loc and f not in order: order.append(f)
        done_at = {}; nrd = 0; waited = 0; pend = []; fill = []
        cnt = [0]; prev = [0]
        def em(t): a(t); cnt[0] += 1
        a(f"v_xor_b32 v{CX+1}, 64, v{CX}\ns_waitcnt lgkmcnt(0)\ns_barrier")
        bar2 = [True]
        def take():
            f = order.pop(0); loc[f] = free.pop(0)
            if bar2 and (f[1] if f[0] == "w" else f[2]) >= 2: em("s_barrier"); bar2.pop()
            p_ = rdw(loc[f], f[2], f[1]) if f[0] == "w" else [rdx(loc[f], f[3], f[2])]
            done_at[f] = nrd + len(p_)
            return p_
        def gap():
            t, at, after = fill[0]
            return max(at - cnt[0], prev[0] + after - cnt[0], 0)
        def put():
            em(fill.pop(0)[0]); prev[0] = cnt[0]
        for n, (b, T, x, w) in enumerate(seq):
            while any(f not in loc or (f in done_at and done_at[f] > nrd) for f in (x, w)):
                if not pend: pend = take()
                em(pend.pop(0)); nrd += 1
            need = max(done_at.get(x, 0), done_at.get(w, 0))
            if need > waited:
                waited = max(need, nrd - opt("tw", 6)); em(f"s_waitcnt lgkmcnt({nrd - waited})")
            em(mf(b, T, loc[x], loc[w], qk))
            if n in marks: fill += [(t, cnt[0] + 8, after) for t, after in epi(*marks[n])]
            for f in (x, w):
                if last[f] == n: free.append(loc[f])
            if not pend and order and free: pend = take()
            if pend: em(pend.pop(0)); nrd += 1
            for _ in range(2):
                if fill and gap() == 0: put()
        a(st(3))
        while fill:
            g_ = gap()
            if g_: a(f"s_nop {g_ - 1}"); cnt[0] += g_
            put()

    EA, EB = 167, 151
    def cv(d, r): return [f"v_cvt_pk_bf16_f32 v{d}, v{r}, v{r+1}", f"v_cvt_pk_bf16_f32 v{d+1}, v{r+2}, v{r+3}"]
    def epi_qk(ph, jj=0):
        if ph < 0:
            return f"""s_mov_b32 s35, {HG}
            s_movk_i32 s38, 2560
            s_cmp_eq_u32 s22, 0
            s_cselect_b32 s35, {HQ}, s35
            s_cselect_b32 s27, {Q_OFF}, {KV_OFF}
            s_cselect_b32 s38, 1280, s38
            s_lshl_b32 s26, s20, 1
            s_add_u32 s26, s26, s37
            s_lshl_b32 s26, s26, 2
            s_mul_i32 s26, s26, s35
            s_add_u32 s26, s26, s27
            s_lshl_b32 s23, s21, 1
            s_add_u32 s23, s23, s36
            s_lshl_b32 s23, s23, 1
            s_mul_i32 s23, s23, s38
            s_add_u32 s26, s26, s23
            s_add_u32 s27, s26, s38
            v_lshrrev_b32 v{EA}, 4, v{L}
            v_mul_lo_u32 v{EA}, v{EA}, s35
            v_and_b32 v{TT}, 15, v{L}
            v_lshl_add_u32 v{EA}, v{TT}, 4, v{EA}
            v_lshlrev_b32 v{EB}, 4, v{L}
            s_add_u32 s44, s26, s35
            s_add_u32 s45, s27, s35
            s_add_u32 s46, s44, s35
            s_add_u32 s47, s45, s35
            s_add_u32 s32, s46, s35
            s_add_u32 s33, s47, s35""".split("\n")
        T = ph
        r0, r1 = acc(2 * jj, T), acc(2 * jj + 1, T)
        o = [(t, 0) for t in cv(r0, r0) + cv(r0 + 2, r1)]
        if T < 4:
            o += [(f"v_permlane16_swap_b32 v{r0}, v{r0+2}", 1), (f"v_permlane16_swap_b32 v{r0+1}, v{r0+3}", 0)]
            o.append((f"buffer_store_dwordx4 {vr(r0,4)}, v{EB}, s[28:31], s{(26, 44, 46, 32)[T] + jj} offen sc1", 0))
        else:
            o.append((f"buffer_store_dwordx4 {vr(r0,4)}, v{EA}, s[28:31], s{26 + jj} offen offset:1024 sc1", 0))
        return o
    def epi_v(ph, jj=0):
        if ph < 0:
            return f"""s_lshl_b32 s26, s20, 1
            s_add_u32 s26, s26, s37
            s_mul_i32 s26, s26, {4*HG}
            s_lshl_b32 s23, s21, 1
            s_add_u32 s23, s23, s36
            s_mul_i32 s23, s23, 5120
            s_add_u32 s26, s26, s23
            s_add_u32 s26, s26, {KV_OFF + 1280}
            s_add_u32 s44, s26, {HG}
            s_add_u32 s45, s26, {2*HG}
            s_add_u32 s46, s26, {3*HG}
            s_mov_b32 s35, {HG}
            v_lshrrev_b32 v{EA}, 5, v{L}
            v_mul_u32_u24 v{EA}, 640, v{EA}
            v_bfe_u32 v{TT}, v{L}, 4, 1
            v_lshl_add_u32 v{EB}, v{TT}, 6, v{EA}
            v_mul_u32_u24 v{TT}, 384, v{TT}
            v_add_u32 v{EA}, v{EA}, v{TT}
            v_and_b32 v{TT}, 15, v{L}
            v_lshl_add_u32 v{EA}, v{TT}, 4, v{EA}
            v_and_b32 v{TT}, 3, v{L}
            v_lshl_add_u32 v{EB}, v{TT}, 4, v{EB}
            v_bfe_u32 v{TT}, v{L}, 2, 2
            v_mul_lo_u32 v{TT}, v{TT}, s35
            v_add_u32 v{EB}, v{EB}, v{TT}""".split("\n")
        T = ph
        r0, r1 = acc(2 * jj, T), acc(2 * jj + 1, T)
        o = [(t, 0) for t in cv(r0, r0) + cv(r0 + 2, r1)]
        if T < 4: o.append((f"buffer_store_dwordx4 {vr(r0,4)}, v{EA}, s[28:31], s{(26, 44, 45, 46)[T]} offen offset:{2560 * jj} sc1", 0))
        else: o.append((f"buffer_store_dwordx4 {vr(r0,4)}, v{EB}, s[28:31], s26 offen offset:{2560 * jj + 256} sc1", 0))
        return o

    for qk, lab in ((True, "QK"), (False, "V")):
        a(f"P1_PRE_{lab}:")
        for f in (epi_qk if qk else epi_v)(-1): a(f)
        SEP = opt("sep", 0)
        if SEP and not qk: a("s_cmp_eq_u32 s22, 3\ns_cbranch_scc1 P1_LOOP_D")
        a(ALN2)
        a(f"P1_LOOP_{lab}:")
        group(0, qk, patch=not SEP)
        if STAMP: a(f"s_cmp_lg_u32 s40, 0\ns_cbranch_scc1 P1_ST_{lab}\n{st(2)}\nP1_ST_{lab}:\ns_cmp_lg_u32 s40, 5\ns_cbranch_scc1 P1_SU_{lab}\n{st(1)}\nP1_SU_{lab}:")
        group(1, qk, patch=not SEP)
        a(f"s_cmp_lt_u32 s40, s43\ns_cbranch_scc1 P1_LOOP_{lab}")
        if not qk: a("s_cmp_eq_u32 s22, 3\ns_cbranch_scc1 P1_EPI_DFT")
        a("s_cmp_eq_u32 s12, 1\ns_cselect_b32 s30, 0, s30")
        tail(qk, epi_qk if qk else epi_v)
        a(f"s_cmp_eq_u32 s12, 0\ns_cbranch_scc1 P1_DONE\ns_mov_b32 s30, {WS_USED}\nv_mov_b32 v88, {LFB + 56}\nv_mov_b32 v89, 1")
        ladd(a, 88, 89, 0)
        a(f"s_mov_b32 s34, 1\ns_branch ATT\nNU_{lab}:")
        for T in range(5):
            for jj in range(2): a((epi_qk if qk else epi_v)(T, jj)[-1][0])
        a("s_branch ATT_SIG")
    if SEP:
        a("P1_LOOP_D:"); group(0, False); group(1, False)
        a("s_cmp_lt_u32 s40, s43\ns_cbranch_scc1 P1_LOOP_D")
    a("P1_EPI_DFT:")
    group(0, False, reads=False)
    TAU, TAU0, E0 = 80, 81, 140
    a(f"""
    {st(3)}
    s_cmp_lt_u32 s20, 2
    s_cselect_b32 s38, 1.0, -1.0
    v_mov_b32 v{TAU}, s38
    v_cndmask_b32 v{TAU0}, v{TAU}, 1.0, s[24:25]
    s_lshl_b32 s26, s20, 1
    s_add_u32 s26, s26, s37
    s_mul_i32 s26, s26, 80
    v_and_b32 v88, 15, v{L}
    v_add_u32 v{E0}, s26, v88
    v_add_u32 v{E0+1}, 20, v{E0}
    v_add_u32 v{E0+2}, 40, v{E0}
    v_add_u32 v{E0+3}, 60, v{E0}
    v_and_b32 v89, 12, v{L}
    v_lshl_add_u32 v{E0+4}, v89, 2, v{E0}
    v_add_u32 v{E0+4}, 16, v{E0+4}
    s_lshl_b32 s23, s21, 1
    s_add_u32 s23, s23, s36
    s_cmp_lg_u32 s23, 0
    s_cbranch_scc1 P1_EPI_DFT2
    s_mov_b64 exec, 0xffff
    s_mov_b32 s27, {X512_OFF}
    """)
    for T in range(5):
        a(f"v_fma_f32 v{96+T}, v{acc(3,T)}, v{TAU0 if T == 0 else TAU}, v{acc(1,T)}")
        a(f"v_lshlrev_b32 v{104+T}, 2, v{E0+T}\nv_mov_b32 v{acc(1,T)}, 0\nv_mov_b32 v{acc(3,T)}, 0")
        a(f"buffer_store_dword v{96+T}, v{104+T}, s[28:31], s27 offen sc1")
    a(f"""
    s_mov_b64 exec, -1
P1_EPI_DFT2:
    s_lshl_b32 s26, s23, 9
    s_add_u32 s26, s26, {FE_OFF}
    s_mov_b32 s27, {FO_DELTA}
    v_bfe_u32 v88, v{L}, 4, 1
    v_mul_lo_u32 v88, v88, s27
    v_lshrrev_b32 v89, 5, v{L}
    v_lshl_add_u32 v88, v89, 8, v88
    """)
    for T in range(5):
        tau = TAU0 if T == 0 else TAU
        a0, a1, a2, a3 = (acc(b, T) for b in range(4))
        for q in range(4):
            a(f"v_fma_f32 v{a0+q}, v{a1+q}, v{tau}, v{a0+q}\nv_fma_f32 v{a3+q}, v{a2+q}, v{tau}, v{a3+q}")
        for q in range(4):
            a(f"v_add_f32 v{a1+q}, v{a0+q}, v{a3+q}\nv_sub_f32 v{a2+q}, v{a0+q}, v{a3+q}")
        for f in cv(a0, a1) + cv(a0 + 2, a2): a(f)
        a(f"""
        v_lshrrev_b32 v89, 4, v{E0+T}
        v_lshl_add_u32 v89, v89, 14, v88
        v_and_b32 v{E0+T}, 15, v{E0+T}
        v_lshl_add_u32 v{E0+T}, v{E0+T}, 4, v89
        v_permlane16_swap_b32 v{a0}, v{a0+2}
        v_permlane16_swap_b32 v{a0+1}, v{a0+3}
        """)
    a(f"v_mov_b32 v88, {LFB + 56}\nv_mov_b32 v89, 1\ns_mov_b32 s12, {opt('dnu', 1)}")
    ladd(a, 88, 89, 0)
    a("s_mov_b32 s34, 1\ns_branch ATT\nNU_D:")
    for T in range(5): a(f"buffer_store_dwordx4 {vr(4*T,4)}, v{E0+T}, s[28:31], s26 offen sc1")
    a("s_branch ATT_SIG")
    a(f"""
P1_DONE:
    {st(14)}
    s_mov_b32 s34, 0
    v_mov_b32 v84, 1
    v_mov_b32 v85, 1
    v_mov_b32 v86, 1
    v_mov_b32 v87, 1
    v_mov_b32 v88, {LFB + 44}
    v_mov_b32 v89, 0
    s_and_b32 s23, s15, -128
    s_mov_b64 exec, 1
    s_waitcnt vmcnt(0)
    ds_add_rtn_u32 v88, v88, v84
    s_waitcnt lgkmcnt(0)
    v_cmp_eq_u32 vcc, 3, v88
    s_cbranch_vccz P1_NS
    buffer_store_dwordx4 v[84:87], v89, s[28:31], s23 offen sc1
P1_NS:
    s_mov_b64 exec, -1
    s_branch ATT
    """)

def p1_extra(a):
    T0 = 40
    a(f"""
P1_EXTRA:
    s_sub_u32 s61, s16, 8
    """)
    if opt("cwarm", 1):
        a(f"""
        s_cmp_lg_u32 s16, 10
        s_cbranch_scc1 P1_NOCW
        s_lshl_b32 s23, s18, 10
        s_cmp_ge_u32 s23, L_CODE_END - {NAME}_kernel - 1023
        s_cbranch_scc1 P1_NOCW
        s_getpc_b64 s[44:45]
L_PC:
        s_sub_u32 s44, s44, L_PC - {NAME}_kernel
        s_subb_u32 s45, s45, 0
        v_lshl_add_u32 v40, v0, 4, s23
        global_load_dwordx4 v[44:47], v40, s[44:45]
P1_NOCW:
        """)
    a(f"""
    v_lshrrev_b32 v37, 4, v0
    v_and_b32 v38, 15, v0
    v_lshlrev_b32 v39, 4, v0
    v_mov_b32 v36, v0
    s_waitcnt lgkmcnt(0)
    {srd(28, WS_P, WS_USED)}
    {srd(32, DBG_P, 256)}
    s_cmp_lg_u32 s61, 0
    s_cbranch_scc1 P1_EX_A
    v_mov_b32 v1, 0
    v_lshlrev_b32 v2, 2, v0
    v_add_u32 v2, {LFB}, v2
    ds_write_b32 v2, v1
    s_waitcnt lgkmcnt(0)
    s_cmp_lt_u32 s2, 248
    s_cbranch_scc1 P1_EX_WAITRDY
    v_mov_b32 v4, 0
    v_mov_b32 v5, 0
    v_mov_b32 v6, 0
    v_mov_b32 v7, 0
    s_lshl_b32 s23, s17, 12
    s_add_u32 s23, s23, {FLG_OFF}
    buffer_store_dwordx4 v[4:7], v39, s[28:31], s23 offen sc1
    buffer_store_dwordx4 v[4:7], v39, s[28:31], s23 offen offset:1024 sc1
    buffer_store_dwordx4 v[4:7], v39, s[28:31], s23 offen offset:2048 sc1
    buffer_store_dwordx4 v[4:7], v39, s[28:31], s23 offen offset:3072 sc1
    s_lshl_b32 s23, s17, 7
    s_add_u32 s23, s23, {FLG_OFF + 32768}
    s_mov_b64 exec, 0xff
    buffer_store_dwordx4 v[4:7], v39, s[28:31], s23 offen sc1
    s_mov_b64 exec, -1
P1_EX_WAITRDY:
P1_EX_A:
    s_lshl_b32 s23, s2, 2
    s_add_u32 s23, s23, s61
    s_mov_b32 s40, 0
P1_TBL:
    s_lshr_b32 s24, s23, 5
    s_and_b32 s25, s23, 30
    s_and_b32 s26, s24, 1
    s_lshr_b32 s27, s24, 1
    s_lshl_b32 s27, s27, 6
    s_add_u32 s27, s27, s26
    s_and_b32 s26, s23, 1
    s_lshl_b32 s26, s26, 5
    s_add_u32 s27, s27, s26
    v_lshl_add_u32 v{T0}, v38, 1, s27
    s_lshl_b32 s25, s25, 4
    v_lshl_add_u32 v{T0+1}, v37, 3, s25
    v_mul_u32_u24 v{T0+1}, v{T0}, v{T0+1}
    v_and_b32 v{T0+1}, 0x7ff, v{T0+1}
    v_cvt_f32_u32 v{T0}, v{T0}
    v_cvt_f32_u32 v{T0+1}, v{T0+1}
    v_mul_f32 v{T0}, 0x3a000000, v{T0}
    v_mul_f32 v0, 0x3a000000, v{T0+1}
    """)
    for u in range(1, 8): a(f"v_add_f32 v{u}, v{u-1}, v{T0}")
    for u in range(1, 8): a(f"v_fract_f32 v{u}, v{u}")
    for u in range(8): a(f"v_cos_f32 v{8+u}, v{u}")
    for u in range(8): a(f"v_sin_f32 v{16+u}, v{u}")
    for j in range(4): a(f"v_cvt_pk_bf16_f32 v{24+j}, v{8+2*j}, v{9+2*j}")
    for j in range(4): a(f"v_cvt_pk_bf16_f32 v{28+j}, v{16+2*j}, v{17+2*j}")
    NB0 = opt("tblbar", 2)
    a(f"""
    s_cmp_lg_u32 s40, 0
    s_cbranch_scc1 P1_TBL_ST
    s_barrier
    {st(1, True)}
    s_cmp_lg_u32 s61, 0
    s_cbranch_scc1 P1_EX_NR
    s_cmp_lt_u32 s2, 248
    s_cbranch_scc1 P1_EX_NR
    v_mov_b32 v32, 1
    v_mov_b32 v33, 0
    s_lshl_b32 s24, s17, 2
    s_waitcnt vmcnt(0)
    s_mov_b64 exec, 1
    buffer_store_dword v32, v33, s[32:35], s24 offen sc1
    s_mov_b64 exec, -1
P1_EX_NR:
    """ + "".join(f"s_barrier\n{st(1 + b_, True)}\n" for b_ in range(1, NB0)) + f"""
    s_mov_b32 s40, 1
P1_TBL_ST:
    s_lshl_b32 s24, s23, 11
    s_add_u32 s24, s24, {TB_OFF}
    buffer_store_dwordx4 v[24:27], v39, s[28:31], s24 offen sc1
    buffer_store_dwordx4 v[28:31], v39, s[28:31], s24 offen offset:1024 sc1
    s_add_u32 s23, s23, 1024
    s_cmp_lt_u32 s23, 1056
    s_cbranch_scc1 P1_TBL
    """)
    nb = NB0
    assert nb <= 6
    a("".join(f"s_barrier\n{st(1 + b_, True)}\n" for b_ in range(nb, 6)))
    u = a.uid()
    a(f"""
    v_and_b32 v1, 7, v36
    v_lshlrev_b32 v1, 2, v1
    v_mov_b32 v2, 1
    s_mov_b32 s60, 0
    s_cmp_lg_u32 s61, 0
    s_cbranch_scc1 P1_EX_C
    buffer_load_dword v2, v1, s[32:35], 0 offen sc1
P1_EX_C:
    s_barrier
    {st(7, True)}
    s_barrier
    {st(8, True)}
L_RDY{u}:
    s_waitcnt vmcnt(0)
    v_cmp_eq_u32 vcc, 0, v2
    s_cbranch_vccz P1_EX_B
    s_sleep 1
    buffer_load_dword v2, v1, s[32:35], 0 offen sc1
    s_add_u32 s60, s60, 1
    s_cmp_lt_u32 s60, 0x40000
    s_cbranch_scc1 L_RDY{u}
P1_EX_B:
    s_waitcnt vmcnt(0)
    s_barrier
    {st(9, True)}
    s_barrier
    {st(10, True)}
    s_mov_b32 s34, 0
    """)

def attention(a):
    O = 20; S = [0, 40, 136, 120]; IX = 114; P = 36; P2 = 64; Q1 = 56; Q2 = 60; K2 = 62; K1 = 16; V1 = 68; V2 = [72, 76]; T = 80
    a(f"""
ATT:
    s_cmp_lt_u32 s13, 4
    s_cselect_b32 s40, {opt("o1", 4)}, {opt("y1", 4)}
    s_cselect_b32 s41, {opt("o2", 7)}, {opt("y2", 6)}
    s_movk_i32 s35, 0x10a
    s_bitset1_b32 s35, s40
    s_bitset1_b32 s35, s41
    s_mov_b32 s24, 0xfffff
    s_mov_b32 s25, 0xfffff
    s_mul_i32 s39, s13, 1280
    s_add_u32 s39, s39, {QLDS}
    v_mov_b32 v{Q2+1}, 0
    v_mov_b32 v{K2+1}, 0x3f803f80
    v_add_u32 v{T}, s39, v{AK1}
    v_add_u32 v{T+1}, s39, v{AK2}
    v_mov_b32 v{T+2}, 1
    """)
    NQ = opt("nq", 2)
    OX = [84, O]; QX1 = [100, Q1]; QX2 = [104, Q2]; U = 106; TM = 136; XS = 107520
    if NQ == 2:
        a(f"""
        s_xor_b32 s36, s13, 1
        s_mul_i32 s39, s36, 1280
        s_add_u32 s39, s39, {QLDS}
        v_add_u32 v{U}, s39, v{AK1}
        v_add_u32 v{U+1}, s39, v{AK2}
        v_mov_b32 v{U+2}, v{AK1}
        v_mov_b32 v{U+3}, v{AK2}
        v_mov_b32 v{QX2[0]+1}, 0
        s_mov_b32 s42, {QSCALE:#x}
        s_mov_b32 s43, s42
        s_and_b32 s37, s13, 1
        s_mul_i32 s37, s37, 2560
        v_and_b32 v{U+4}, 0x70, v{VA}
        v_lshrrev_b32 v{U+4}, 2, v{U+4}
        v_add_u32 v{U+4}, {LFB}, v{U+4}
        s_lshl_b32 s23, s13, 12
        s_add_u32 s23, s23, {XS}
        v_add_u32 v{U+5}, s23, v{VA}
        v_xor_b32 v{U+7}, 4, v{PA}
        s_lshl_b32 s23, s36, 12
        s_add_u32 s23, s23, {XS}
        v_add_u32 v{U+6}, s23, v{VA}
        s_lshr_b32 s38, s13, 2
        s_add_u32 s38, s38, 7
        """)
        for r in (AK1, AK2, AV, BK1, BK2, BV): a(f"v_add_u32 v{r}, s37, v{r}")
        for r in range(16): a(f"v_mov_b32 v{OX[0]+r}, 0")
    for r in range(12): a(f"v_mov_b32 v{V1+r}, v{ONES}")
    for r in range(16): a(f"v_mov_b32 v{O+r}, 0")
    for r in range(4): a(f"v_mov_b32 v{P+r}, -1")
    for r in range(8): a(f"v_mov_b32 v{S[3]+8+r}, 0")
    a(f"v_mov_b32 v{IX}, 0xdddddddd")
    def rk1(d): return f"v_mfma_f32_32x32x8_bf16 {vr(d,16)}, {vr(K2,2)}, {vr(Q2,2)}, 0"
    def rk2(d): return f"v_mfma_f32_32x32x16_bf16 {vr(d,16)}, {vr(K1,4)}, {vr(Q1,4)}, {vr(d,16)}"
    def qk1(d): return f"v_mfma_f32_32x32x16_bf16 {vr(d,16)}, {vr(K1,4)}, {vr(Q1,4)}, 0"
    def qk2(d): return f"v_mfma_f32_32x32x8_bf16 {vr(d,16)}, {vr(K2,2)}, {vr(Q2,2)}, {vr(d,16)}"
    def pv(v, p): return f"v_smfmac_f32_32x32x32_bf16 {vr(O,16)}, {vr(v,4)}, {vr(p,8)}, v{IX}"
    def of(t): return (t - 6 if t in (6, 7) else t) * 2560
    def rdk1(t): return f"ds_read_b128 {vr(K1,4)}, v{BK1 if t in (6, 7) else AK1} offset:{of(t)}"
    def rdk2(t): return f"ds_read_b32 v{K2}, v{BK2 if t in (6, 7) else AK2} offset:{of(t)+1024}"
    def rdv(t, v2):
        b = BV if t in (6, 7) else AV
        return f"s_mov_b64 exec, s[24:25]\nds_read_b128 {vr(V1,4)}, v{b} offset:{of(t)+1280}\nds_read_b128 {vr(v2,4)}, v{b} offset:{of(t)+1920}\ns_mov_b64 exec, -1"
    def maxtree(s, m, first):
        if first:
            a(f"v_max3_f32 v{m}, v{s}, v{s+1}, v{s+2}\nv_max3_f32 v{m+1}, v{s+3}, v{s+4}, v{s+5}")
            for j in range(6, 14, 4): a(f"v_max3_f32 v{m}, v{s+j}, v{s+j+1}, v{m}\nv_max3_f32 v{m+1}, v{s+j+2}, v{s+j+3}, v{m+1}")
            a(f"v_max3_f32 v{m}, v{s+14}, v{s+15}, v{m}\nv_max_f32 v{m}, v{m}, v{m+1}")
        else:
            for j in range(0, 16, 2): a(f"v_max3_f32 v{m}, v{s+j}, v{s+j+1}, v{m}")
    def xhalf(m):
        a(f"v_mov_b32 v{m+1}, v{m}\ns_nop 1\nv_permlane32_swap_b32 v{m}, v{m+1}\ns_nop 0\nv_max_f32 v{m}, v{m}, v{m+1}")
    a(f"""
    {st(4)}
    s_barrier
    s_setprio 3
    s_cmp_lg_u32 s34, 1
    s_cbranch_scc1 ATT_NOSIG
    s_cmp_eq_u32 s22, 1
    s_cbranch_scc1 NU_QK
    s_cmp_eq_u32 s22, 2
    s_cbranch_scc1 NU_V
    s_branch NU_D
ATT_SIG:
    """)
    if opt("comb", 1):
        a(f"""
        v_mov_b32 v{T+3}, {LFB + 44}
        s_and_b32 s23, s15, -128
        s_mov_b64 exec, 1
        s_waitcnt vmcnt(0)
        ds_add_rtn_u32 v{T+3}, v{T+3}, v{T+2}
        s_waitcnt lgkmcnt(0)
        v_cmp_eq_u32 vcc, 3, v{T+3}
        s_cbranch_vccz ATT_NOSIG
        buffer_store_dwordx4 {vr(P,4)}, v{O}, s[28:31], s23 offen sc1
        """)
    else:
        a(f"s_waitcnt vmcnt(0)\ns_mov_b64 exec, 1\nbuffer_store_dword v{T+2}, v{O}, s[28:31], s15 offen sc1")
    a(f"""
ATT_NOSIG:
    s_mov_b64 exec, -1
    {st(6)}
    """)
    def e(s, j): return f"v_exp_f32 v{s+j}, v{s+j}"
    def c(s, j): return f"v_cvt_pk_bf16_f32 v{P+j}, v{s+2*j}, v{s+2*j+1}"
    if NQ == 2:
        def xk1(x, d=None): return f"v_mfma_f32_32x32x16_bf16 {vr(S[x if d is None else d],16)}, {vr(K1,4)}, {vr(QX1[x],4)}, 0"
        def xk2(x, d=None): return f"v_mfma_f32_32x32x8_bf16 {vr(S[x if d is None else d],16)}, {vr(K2,2)}, {vr(QX2[x],2)}, {vr(S[x if d is None else d],16)}"
        def xpv(x, v, p): return f"v_smfmac_f32_32x32x32_bf16 {vr(OX[x],16)}, {vr(v,4)}, {vr(p,8)}, v{IX}"
        def scale(x):
            for j in range(5): a(f"v_lshlrev_b32 v{TM+2*j}, 16, v{QX1[x]+j}\nv_and_b32 v{TM+2*j+1}, 0xffff0000, v{QX1[x]+j}")
            if opt("pkq", 0):
                for j in range(0, 10, 2): a(f"v_pk_mul_f32 {vr(TM+j,2)}, {vr(TM+j,2)}, s[42:43]")
            else:
                for j in range(10): a(f"v_mul_f32 v{TM+j}, s42, v{TM+j}")
            for j in range(5): a(f"v_cvt_pk_bf16_f32 v{QX1[x]+j}, v{TM+2*j}, v{TM+2*j+1}")
        MH = f32bits(-0.5 * (20 ** -0.5) * math.log2(math.e))
        a(f"""
        ds_read_b128 {vr(K1,4)}, v{U+2}
        ds_read_b32 v{K2}, v{U+3} offset:1024
        ds_read_b128 {vr(QX1[0],4)}, v{U}
        ds_read_b32 v{QX2[0]}, v{U+1} offset:1024
        ds_read_b128 {vr(Q1,4)}, v{T}
        ds_read_b32 v{Q2}, v{T+1} offset:1024
        {rdv(0, V2[0])}
        s_waitcnt lgkmcnt(4)
        {xk1(0)}
        {xk2(0)}
        s_waitcnt lgkmcnt(2)
        {xk1(1)}
        {xk2(1)}
        {rdk1(0)}
        {rdk2(0)}
        s_mov_b32 s26, 0
        """)
        scale(0)
        maxtree(S[0], T, True)
        a(f"v_mul_f32 v{T}, {MH:#x}, v{T}\nv_cvt_pk_bf16_f32 v{QX2[0]+1}, v{T}, 0\ns_waitcnt lgkmcnt(0)\n{xk1(0)}\n{xk2(0)}")
        scale(1)
        maxtree(S[1], T, True)
        a(f"""
        v_mul_f32 v{T}, {MH:#x}, v{T}
        v_cvt_pk_bf16_f32 v{Q2+1}, v{T}, 0
        {xk1(1)}
        {rdk1(2)}
        {st(7)}
        {ALN}
ATT_LOOP:
        """)
        for i in range(4):
            for x in (0, 1):
                SP = {0: (4, 8, 12), 1: (5, 8, 13), 2: (4, 7, 11), 3: (5, 9, 13)}[opt('sp', 0)]
                n = 2 * i + x; cur = S[n % 4]; y = 1 - x; t_ = 2 * (i + 1)
                if x == 1: a("s_waitcnt lgkmcnt(0)")
                a(xk2(y, (n + 1) % 4))
                if x == 0: a(rdk2(t_))
                for q in range(SP[0]): a(e(cur, q))
                a(xpv(y, V2[(i + 1) % 2] if x == 0 else V2[i % 2], S[(n - 1) % 4] + 8))
                if x == 0: a("s_waitcnt lgkmcnt(1)")
                if x == 0 and i == 3: a.l[-1] = "    s_waitcnt vmcnt(0) lgkmcnt(1)"
                if x == 1 and i == 1: a(f"ds_write_b32 v{PA}, v{T+2}")
                if x == 1 and i == 3: a(f"ds_read_b32 v{U}, v{U+4}")
                for q in range(SP[0], SP[1]): a(e(cur, q))
                a(xk1(x, (n + 2) % 4))
                if x == 1: a(rdk1(t_ + 2))
                for q in range(SP[1], SP[2]): a(e(cur, q))
                a(xpv(x, V1, cur))
                if x == 1: a(rdv(t_, V2[(i + 1) % 2]))
                for q in range(SP[2], 16): a(e(cur, q))
    a(f"""
    s_add_u32 s26, s26, 1
    s_movk_i32 s27, 0x5000
    s_cmp_eq_u32 s26, 7
    s_cselect_b32 s27, {(0x5000 - 62 * 2560) & 0xffffffff}, s27
    v_add_u32 v{AK1}, 0x5000, v{AK1}
    v_add_u32 v{AK2}, 0x5000, v{AK2}
    v_add_u32 v{AV}, 0x5000, v{AV}
    v_add_u32 v{BK1}, s27, v{BK1}
    v_add_u32 v{BK2}, s27, v{BK2}
    v_add_u32 v{BV}, s27, v{BV}
    v_add_u32 v{T+2}, 1, v{T+2}
    s_bitcmp1_b32 s35, s26
    s_cbranch_scc0 ATT_LOOP
    s_cmp_gt_u32 s26, 3
    s_cbranch_scc1 ATT_EV
    v_add_u32 v{FA}, 8, v{FA}
    s_cmp_eq_u32 s26, 1
    s_cbranch_scc0 ATT_WAIT
    buffer_store_dwordx4 {vr(P,4)}, v{OA1}, s[28:31], s6 offen sc1
    s_mov_b64 exec, 0xffff
    buffer_store_dwordx4 {vr(P,4)}, v{OA2}, s[28:31], s7 offen sc1
    s_mov_b64 exec, -1
ATT_WAIT:
    ds_read_b32 v{T}, v{FA}
    s_waitcnt lgkmcnt(0)
    v_readfirstlane_b32 s23, v{T}
    s_cmp_ge_u32 s23, 4
    s_cbranch_scc1 ATT_LOOP
    s_sleep 1
    s_branch ATT_WAIT
ATT_EV:
    s_setprio 2
    s_cmp_eq_u32 s26, s40
    s_cbranch_scc1 ATT_LOOP
    s_setprio 1
    s_cmp_lt_u32 s26, 8
    s_cbranch_scc1 ATT_LOOP
    s_setprio 3
    {pv(V2[1], S[3]+8)}
    {st(8)}
    """)
    if NQ == 2:
        a(f"""
        s_mov_b32 s27, 0x3e800000
        s_mov_b32 s23, 0x71800000
        s_waitcnt lgkmcnt(3)
        v_cmp_gt_u32 vcc, s38, v{U}
        s_cbranch_vccz ATT_X0
ATT_X1:
        s_sleep 2
        ds_read_b32 v{U}, v{U+4}
        s_waitcnt lgkmcnt(0)
        v_cmp_gt_u32 vcc, s38, v{U}
        s_cbranch_vccnz ATT_X1
ATT_X0:
        """)
        for j in range(3): a(f"ds_write_b128 v{U+5}, {vr(OX[0]+4*j,4)} offset:{1024*j}")
        a(f"ds_write_b64 v{U+5}, {vr(OX[0]+12,2)} offset:3072\nds_write_b32 v{PA}, v{T+2} offset:96\nATT_X2:\nds_read_b32 v{U}, v{U+7} offset:96")
        for j in range(3): a(f"ds_read_b128 {vr(S[0]+4*j,4)}, v{U+6} offset:{1024*j}")
        a(f"ds_read_b64 {vr(S[0]+12,2)}, v{U+6} offset:3072\ns_waitcnt lgkmcnt(0)\nv_cmp_eq_u32 vcc, 0, v{U}\ns_cbranch_vccz ATT_X3\ns_sleep 1\ns_branch ATT_X2\nATT_X3:\ns_nop 1")
        for r in range(0, 14, 2): a(f"v_pk_add_f32 {vr(O+r,2)}, {vr(O+r,2)}, {vr(S[0]+r,2)}")
    else:
        a("s_mov_b32 s27, 0x3e800000\ns_mov_b32 s23, 0x71800000\ns_nop 9")
    a(f"v_rcp_f32 v{T+2}, v{O+12}\nv_add_f32 v{T}, |v{O}|, |v{O+1}|\nv_add_f32 v{T+1}, |v{O+2}|, |v{O+3}|")
    for j in range(4, 12, 2): a(f"v_add_f32 v{T}, |v{O+j}|, v{T}\nv_add_f32 v{T+1}, |v{O+j+1}|, v{T+1}")
    a(f"""
    v_add_f32 v{T}, v{T}, v{O+12}
    v_cmp_le_f32 s[42:43], s27, v{O+12}
    v_add_f32 v{T}, v{T}, v{T+1}
    v_cmp_gt_f32 vcc, s23, v{T}
    s_and_b64 vcc, vcc, s[42:43]
    s_cmp_eq_u64 vcc, -1
    s_cbranch_scc0 ATT_FALLBACK
ATT_FINISH:
    """)
    for j in range(0, 8, 2): a(f"v_pk_mul_f32 {vr(O+j,2)}, {vr(O+j,2)}, {vr(T+2,2)} op_sel_hi:[1,0]")
    for j in range(4): a(f"v_cvt_pk_bf16_f32 v{P+j}, v{O+2*j}, v{O+2*j+1}")
    for j in range(4): a(f"v_min_u32 v{P+j}, -2, v{P+j}")
    a(f"buffer_store_dwordx4 {vr(P,4)}, v{OA1}, s[28:31], s6 offen sc1")
    for j in range(8, 12, 2): a(f"v_pk_mul_f32 {vr(O+j,2)}, {vr(O+j,2)}, {vr(T+2,2)} op_sel_hi:[1,0]")
    for j in range(4, 6): a(f"v_cvt_pk_bf16_f32 v{P2+j-4}, v{O+2*j}, v{O+2*j+1}")
    for j in range(4, 6): a(f"v_min_u32 v{P2+j-4}, -2, v{P2+j-4}")
    a(f"""
    s_nop 1
    v_permlane16_swap_b32 v{P2}, v{P2+2}
    v_permlane16_swap_b32 v{P2+1}, v{P2+3}
    s_mov_b64 exec, 0xffff
    buffer_store_dwordx4 {vr(P2,4)}, v{OA2}, s[28:31], s7 offen sc1
    {st(9)}
    s_cmp_ge_u32 s13, 4
    s_cbranch_scc1 {"L_DONE" if STAMP else "L_END"}
    s_mov_b64 exec, -1
    s_xor_b32 s41, s13, {opt('gx', 2)}
    s_mov_b32 s47, 1
    s_branch P3_GO
    """)
    def gk(): return f"buffer_load_dwordx4 {vr(K1,4)}, v{AK1}, s[28:31], s23 offen sc1\nbuffer_load_dword v{K2}, v{AK2}, s[28:31], s23 offen offset:1024 sc1"
    a(f"""
ATT_FALLBACK:
    s_waitcnt lgkmcnt(0)
    v_mov_b32 v{Q2+1}, 0
    v_mov_b32 v{T}, 0xff800000
    {f's_add_u32 s23, s37, {HS}' if NQ == 2 else f's_mov_b32 s23, {HS}'}
    v_subrev_u32 v{AK1}, s23, v{AK1}
    v_subrev_u32 v{AK2}, s23, v{AK2}
    v_subrev_u32 v{AV}, s23, v{AV}
    s_add_u32 s23, s14, {KV_OFF}
    s_mov_b32 s26, 0
ATT_FB1:
    {gk()}
    s_add_u32 s23, s23, 2560
    s_waitcnt vmcnt(0)
    {qk1(S[0])}
    {qk2(S[0])}
    s_nop 15
    """)
    maxtree(S[0], T, False)
    a("s_add_u32 s26, s26, 1\ns_cmp_lt_u32 s26, 64\ns_cbranch_scc1 ATT_FB1")
    xhalf(T)
    a(f"s_add_u32 s23, s14, {KV_OFF}\ns_mov_b32 s26, 0")
    for r in range(16): a(f"v_mov_b32 v{O+r}, 0")
    a(f"""
ATT_FB2:
    {gk()}
    s_mov_b64 exec, s[24:25]
    buffer_load_dwordx4 {vr(V1,4)}, v{AV}, s[28:31], s23 offen offset:1280 sc1
    buffer_load_dwordx4 {vr(V2[0],4)}, v{AV}, s[28:31], s23 offen offset:1920 sc1
    s_mov_b64 exec, -1
    s_add_u32 s23, s23, 2560
    s_waitcnt vmcnt(0)
    {qk1(S[0])}
    {qk2(S[0])}
    s_nop 15
    """)
    for q in range(16): a(f"v_sub_f32 v{S[0]+q}, v{S[0]+q}, v{T}")
    for q in range(16): a(e(S[0], q))
    a(f"""
    s_nop 1
    {pv(V1, S[0])}
    {pv(V2[0], S[0]+8)}
    s_add_u32 s26, s26, 1
    s_cmp_lt_u32 s26, 64
    s_cbranch_scc1 ATT_FB2
    s_nop 15
    s_nop 3
    v_rcp_f32 v{T+2}, v{O+12}
    s_nop 0
    s_branch ATT_FINISH
    """)

def lwait(a, vaddr, vdat, mask, target, slp=8):
    u = a.uid()
    a(f"""
    s_mov_b64 exec, {mask}
    s_branch L_LWE{u}
L_LW{u}:
    s_sleep {slp}
L_LWE{u}:
    ds_read_b32 v{vdat}, v{vaddr}
    s_waitcnt lgkmcnt(0)
    v_cmp_gt_u32 vcc, {target}, v{vdat}
    s_cbranch_vccnz L_LW{u}
    s_mov_b64 exec, -1
    """)
def ladd(a, vaddr, vone, off):
    a(f"s_mov_b64 exec, 1\nds_add_u32 v{vaddr}, v{vone} offset:{off}\ns_mov_b64 exec, -1")

def helpers(a):
    WA, VG, VZ, SH, HPA, HONE, YFA, FZ, SG, XA5, LF = 112, 117, 118, 119, 120, 121, 122, 123, 124, 125, 126
    ZL = 40; G = 167; VY = 162; T = 132; LT = 127
    a(f"""
HELPER:
    s_mov_b32 s61, s22
    {st(2)}
    {srd(28, WS_P, WS_USED)}
    s_setprio 0
    s_lshr_b32 s20, s18, 2
    s_mul_i32 s26, s20, 160
    s_movk_i32 s23, {1280 - 160}
    """)
    for i in range(5):
        a(f"""
        v_add_u32 v{T}, {64*i}, v0
        v_mul_u32_u24 v{T+1}, 6554, v{T}
        v_lshrrev_b32 v{T+1}, 16, v{T+1}
        v_lshlrev_b32 v{T}, 4, v{T}
        v_mad_u32_u24 v{WA+i}, v{T+1}, s23, v{T}
        """)
    a(f"""
    s_lshl_b32 s21, s17, 3
    s_and_b32 s22, s18, 3
    s_add_u32 s21, s21, s22
    s_lshr_b32 s22, s16, 1
    s_lshl_b32 s22, s22, 2
    s_add_u32 s21, s21, s22
    s_lshl_b32 s21, s21, 1
    s_and_b32 s22, s16, 1
    s_add_u32 s21, s21, s22
    s_lshr_b32 s22, s21, 2
    s_lshl_b32 s22, s22, 1
    s_and_b32 s24, s21, 1
    s_add_u32 s22, s22, s24
    s_lshl_b32 s22, s22, 3
    v_and_b32 v{T}, 7, v0
    v_add_u32 v{T}, s22, v{T}
    s_bitcmp1_b32 s21, 1
    s_cselect_b32 s22, 0x400, 0
    s_cselect_b32 s24, -1, 1
    v_mul_lo_u32 v{T+1}, v{T}, s24
    s_sub_u32 s24, 0x800, s22
    v_sub_u32 v{T+2}, s24, v{T+1}
    v_add_u32 v{T+1}, s22, v{T+1}
    v_and_b32 v{T+3}, 8, v0
    v_cmp_ne_u32 vcc, 0, v{T+3}
    v_cmp_eq_u32 s[42:43], 0, v{T}
    v_lshlrev_b32 v{T+3}, 6, v{T+3}
    v_add_u32 v{T+3}, s22, v{T+3}
    v_cndmask_b32 v{T}, v{T+1}, v{T+2}, vcc
    v_lshrrev_b32 v{T+1}, 4, v0
    v_cndmask_b32 v{T}, v{T}, v{T+3}, s[42:43]
    v_mul_u32_u24 v{VY}, 1280, v{T}
    v_mul_u32_u24 v{T+2}, 40, v{T+1}
    v_add3_u32 v{VY}, v{VY}, v{T+2}, s26
    v_lshlrev_b32 v{VG}, 2, v{T}
    v_sub_u32 v{T+3}, 0x800, v{T}
    v_cmp_lt_u32 vcc, 0x400, v{T}
    v_min_u32 v{T}, v{T}, v{T+3}
    v_and_b32 v{T+3}, 1, v{T}
    v_mul_u32_u24 v{VZ}, {ZP}, v{T+3}
    v_lshrrev_b32 v{T+3}, 1, v{T}
    v_lshl_add_u32 v{VZ}, v{T+3}, 4, v{VZ}
    v_mov_b32 v{T+3}, 0x02020202
    v_cndmask_b32 v{SH}, 0, v{T+3}, vcc
    s_cmp_ge_u32 s20, 4
    s_mov_b32 s24, 0x05040100
    s_cselect_b32 s24, 0x07060302, s24
    s_cselect_b32 s40, -1, 1
    s_cselect_b32 s41, 155, 0
    v_xor_b32 v{SH}, s24, v{SH}
    s_mul_i32 s24, s20, 20
    v_mul_u32_u24 v{T+3}, 5, v{T+1}
    v_add_u32 v{T+3}, s24, v{T+3}
    v_mul_lo_u32 v{T+3}, v{T+3}, s40
    v_add_u32 v{T+3}, s41, v{T+3}
    v_mul_u32_u24 v{T+3}, {2*ZP}, v{T+3}
    v_add_u32 v{VZ}, v{VZ}, v{T+3}
    {p3_addr(0)}
    v_lshlrev_b32 v{HPA}, 2, v0
    v_add_u32 v{HPA}, {LFB}, v{HPA}
    v_mov_b32 v{HONE}, 1
    s_lshl_b32 s23, s2, 2
    s_add_u32 s23, s23, {FLG_OFF + 32768}
    v_mov_b32 v{YFA}, s23
    v_lshrrev_b32 v{FZ}, 4, v0
    v_mul_u32_u24 v{FZ}, {2*ZP}, v{FZ}
    v_and_b32 v{T}, 15, v0
    v_lshl_add_u32 v{FZ}, v{T}, 4, v{FZ}
    v_lshlrev_b32 v{SG}, 31, v0
    v_and_b32 v{XA5}, 48, v0
    v_lshlrev_b32 v{LF}, 7, v0
    v_bfe_u32 v{LT}, v0, 1, 2
    v_lshlrev_b32 v{LT}, 13, v{LT}
    v_and_b32 v{T}, 1, v0
    v_lshl_add_u32 v{LT}, v{T}, 7, v{LT}
    s_setprio 3
    s_lshr_b32 s19, s18, 3
    s_lshl_b32 s23, s17, 2
    s_add_u32 s19, s19, s23
    s_and_b32 s62, s18, 7
    s_mul_i32 s21, s19, {HG}
    v_lshlrev_b32 v1, 4, v0
    {st(3)}
    s_lshr_b32 s23, s19, 3
    s_lshl_b32 s23, s23, 13
    s_add_u32 s23, s23, {FLG_OFF}
    v_lshlrev_b32 v2, 7, v0
    v_add_u32 v2, s23, v2
    s_add_u32 s24, s21, {KV_OFF}
    s_lshl_b32 s40, 0x10000, s16
    s_lshl_b32 s41, 1, s16
    s_mul_i32 s22, s16, 10240
    s_add_u32 s26, s24, s22
    s_cmp_lg_u32 s16, 3
    s_cbranch_scc1 H_JA
    s_lshl_b32 s25, s62, 1
    s_lshl_b32 s40, 3, s25
    s_mov_b32 s41, 0
    s_mov_b32 s22, {QLDS}
    s_mul_i32 s26, s19, {HQ}
    s_mul_i32 s25, s62, 10240
    s_add_u32 s26, s26, s25
    s_add_u32 s26, s26, {Q_OFF}
H_JA:
    """)
    def job():
        r = f"s_add_u32 s25, s22, 5120\ns_cmp_ge_u32 s25, {LFB}\ns_cselect_b32 s25, 0, s25\n"
        for n in range(10):
            if n in (0, 3): r += f"s_add_u32 m0, s22, {1024*n}\ns_add_u32 s27, s26, {1024*n}\n"; o = 0
            if n in (5, 8): r += f"s_add_u32 m0, s25, {1024*(n-5)}\ns_add_u32 s27, s26, {1024*n}\n"; o = 0
            r += f"buffer_load_dwordx4 v1, s[28:31], s27 offen offset:{o} sc1 lds\n"; o += 1024
        return r
    if opt("latep", 1):
        a(f"s_mul_i32 s23, s12, 12\ns_cmp_eq_u32 s61, 3\ns_cselect_b32 s23, 12, s23\ns_add_u32 s23, s23, {LFB + 44}\nv_mov_b32 v3, s23")
        lwait(a, 3, 4, 1, 4, 2)
        if opt("lps", 0): a(f"s_sleep {opt('lps', 0)}")
    poll4(a, 2, 4, "s[40:41]")
    a(st(11)); a(job())
    a(f"""
    s_lshl_b32 s40, 0x80000, s16
    s_lshl_b32 s41, 8, s16
    s_add_u32 s22, s16, 3
    s_mul_i32 s22, s22, 10240
    s_add_u32 s26, s24, s22
    s_waitcnt vmcnt(0)
    {st(12)}
    s_barrier
    """)
    poll4(a, 2, 4, "s[40:41]")
    a(job())
    a(f"""
H_JB:
    s_lshl_b32 s41, 0x8880, s16
    s_and_b32 s41, s41, 0xffff
    s_lshl_b32 s40, s41, 16
    s_add_u32 s22, s16, 7
    s_mul_i32 s22, s22, 10240
    s_add_u32 s26, s24, s22
    s_waitcnt vmcnt(0)
    """)
    ladd(a, HPA, HONE, 64)
    lwait(a, HPA, 4, 0xff, 1)
    poll4(a, 2, 4, "s[40:41]", slp=8)
    a(f"{st(13)}\nH_JC:"); a(job())
    a(f"""
    s_add_u32 s22, s22, 40960
    s_add_u32 s26, s26, 40960
    s_cmp_lt_u32 s22, {HS}
    s_cbranch_scc1 H_JC
    s_waitcnt vmcnt(0)
    {st(4)}
    """)
    ladd(a, HPA, HONE, 72)
    a(f"""
    s_cmp_lt_u32 s16, 3
    s_cbranch_scc1 H_FNET
    """)
    a(f"""
    {srd(32, X_P, 2048*1280)}
    {srd(36, GATE_P, 1280)}
    v_lshrrev_b32 v2, 3, v0
    v_and_b32 v3, 7, v0
    v_lshlrev_b32 v3, 4, v3
    s_movk_i32 s22, 1280
    v_mad_u32_u24 v4, v2, s22, v3
    s_mul_i32 s23, s2, {8*1280}
    """)
    for j in range(10):
        a(f"buffer_load_dwordx4 {vr(24+8*j,4)}, v4, s[32:35], s23 offen offset:{128*j}")
        a(f"buffer_load_dwordx4 {vr(28+8*j,4)}, v3, s[36:39], 0 offen offset:{128*j}")
    a("v_mov_b32 v5, 0\nv_mov_b32 v6, 0\ns_waitcnt vmcnt(0)")
    for j in range(10):
        for q in range(4):
            a(f"v_dot2c_f32_bf16 v{5 + (q & 1)}, v{24+8*j+q}, v{28+8*j+q}")
    a(f"""
    s_nop 2
    v_add_f32 v5, v5, v6
    s_nop 1
    v_add_f32_dpp v5, v5, v5 quad_perm:[1,0,3,2] row_mask:0xf bank_mask:0xf
    s_nop 1
    v_add_f32_dpp v5, v5, v5 quad_perm:[2,3,0,1] row_mask:0xf bank_mask:0xf
    s_nop 1
    v_add_f32_dpp v5, v5, v5 row_half_mirror row_mask:0xf bank_mask:0xf
    v_mul_f32 v5, {f32bits(-math.log2(math.e)):#x}, v5
    v_exp_f32 v5, v5
    v_lshlrev_b32 v2, 2, v2
    v_add_f32 v5, 1.0, v5
    v_rcp_f32 v5, v5
    s_lshl_b32 s23, s2, 5
    s_add_u32 s23, s23, {G_OFF}
    buffer_store_dword v5, v2, s[28:31], s23 offen sc1
    s_branch H_MID
    """)
    C, SN, FB = 0, 8, 16
    a(f"""
H_FNET:
    {'s_branch H_MID' if opt('nofnet', 0) == 1 else ''}
    s_lshl_b32 s22, s16, 5
    s_add_u32 s22, s22, s18
    s_cmp_lt_u32 s22, 84
    s_cbranch_scc1 H_FN_A
    s_sub_u32 s24, s22, 84
    s_lshl_b32 s24, s24, 3
    s_add_u32 s24, s24, s17
    s_cmp_ge_u32 s24, 21
    s_cbranch_scc1 H_MID
    s_mov_b32 s23, 32
    s_branch H_FN_B
H_FN_A:
    s_mul_i32 s23, s22, 3121
    s_lshr_b32 s23, s23, 16
    s_mul_i32 s24, s23, 21
    s_sub_u32 s24, s22, s24
    s_lshl_b32 s23, s23, 3
    s_add_u32 s23, s23, s17
H_FN_B:
    s_and_b32 s25, s23, 1
    s_add_u32 s26, s24, 20
    s_cmp_eq_u32 s24, 20
    s_cselect_b32 s26, 20, s26
    s_mul_i32 s32, s24, 26
    s_lshr_b32 s32, s32, 8
    s_lshl_b32 s32, s32, 13
    s_add_u32 s32, s32, {48 * 128}
    s_mul_i32 s33, s26, 26
    s_lshr_b32 s33, s33, 8
    s_lshl_b32 s33, s33, 13
    s_add_u32 s33, s33, {32 * 128}
    s_and_b32 s34, s23, 31
    s_lshl_b32 s34, s34, 8
    s_mov_b64 exec, 0xffff
    v_add_u32 v2, s32, v{LF}
    s_mov_b32 exec_lo, 0xffff0000
    v_add_u32 v2, s33, v{LF}
    s_mov_b32 exec_lo, 0
    s_mov_b32 exec_hi, 0xff
    v_add_u32 v2, s34, v{LT}
    s_mov_b32 s40, -1
    s_movk_i32 s41, 0xff
    s_mov_b32 s27, {FLG_OFF}
    """)
    poll4(a, 2, 4, "s[40:41]", "s27", slp=8)
    a(st(14))
    a(f"""
    s_lshl_b32 s32, s23, 16
    s_add_u32 s32, s32, {TB_OFF}
    s_mul_i32 s27, s25, {FO_DELTA}
    s_add_u32 s27, s27, {FE_OFF}
    s_lshl_b32 s33, s24, 14
    s_add_u32 s33, s33, s27
    s_lshl_b32 s34, s26, 14
    s_add_u32 s34, s34, s27
    s_cmp_eq_u32 s25, 0
    s_cselect_b32 s35, s24, s26
    s_lshl_b32 s35, s35, 6
    s_add_u32 s35, s35, {X512_OFF}
    buffer_load_dwordx4 v[128:131], v{XA5}, s[28:31], s35 offen sc1
    """)
    def fl(j):
        r = FB + 24 * j
        s_ = f"buffer_load_dwordx4 {vr(r,4)}, v163, s[28:31], s33 offen offset:{1024*j} sc1\n"
        s_ += f"buffer_load_dwordx4 {vr(r+4,4)}, v163, s[28:31], s34 offen offset:{1024*j} sc1\n"
        for k in range(4): s_ += f"buffer_load_dwordx4 {vr(r+8+4*k,4)}, v163, s[28:31], s32 offen offset:{1024*k} sc1\n"
        s_ += "s_add_u32 s32, s32, 4096\n"
        if j == 3: s_ += "s_add_u32 s33, s33, 4096\ns_add_u32 s34, s34, 4096\n"
        return s_
    def fm(j):
        r = FB + 24 * j
        s_ = ""
        if opt("nofnet", 0) == 2: return s_
        for sub in range(2):
            s_ += f"v_mfma_f32_16x16x32_bf16 {vr(C+4*sub,4)}, {vr(r,4)}, {vr(r+8+8*sub,4)}, {vr(C+4*sub,4)}\n"
            s_ += f"v_mfma_f32_16x16x32_bf16 {vr(SN+4*sub,4)}, {vr(r+4,4)}, {vr(r+12+8*sub,4)}, {vr(SN+4*sub,4)}\n"
        return s_
    for j in range(4): a(fl(j))
    a(f"""
    s_cmp_eq_u32 s25, 0
    s_cselect_b32 s36, 1.0, 0
    s_cselect_b32 s37, 0, 1.0
    v_or_b32 v161, s37, v{SG}
    v_or_b32 v160, s36, v{SG}
    s_waitcnt vmcnt(24)
    """)
    for r in range(8): a(f"v_mul_f32 v{C+r}, v160, v{128 + r % 4}\nv_mul_f32 v{SN+r}, v161, v{128 + r % 4}")
    a("s_mov_b32 s38, 0\nH_FN_LOOP:")
    for j in range(4):
        a("s_waitcnt vmcnt(18)"); a(fm(j)); a(fl(j))
    a("s_add_u32 s38, s38, 1\ns_cmp_lt_u32 s38, 3\ns_cbranch_scc1 H_FN_LOOP")
    for j in range(4):
        a(f"s_waitcnt vmcnt({18-6*j})"); a(fm(j))
    a(f"""
    s_cmp_eq_u32 s26, 20
    s_cselect_b32 s44, 0xffff, 0
    s_mov_b32 s45, 0
    s_mul_i32 s26, s24, {8*ZP}
    s_mul_i32 s27, s25, {ZP}
    s_add_u32 s26, s26, s27
    s_lshr_b32 s27, s23, 1
    s_lshl_b32 s27, s27, 9
    s_add_u32 s26, s26, s27
    s_add_u32 s26, s26, {Y_OFF}
    v_cndmask_b32 v{SN}, v{SN}, 0, s[44:45]
    v_cndmask_b32 v{SN+4}, v{SN+4}, 0, s[44:45]
    """)
    for r in range(8):
        a(f"v_add_f32 v{16+r}, v{C+r}, v{SN+r}\nv_sub_f32 v{C+r}, v{C+r}, v{SN+r}")
    for r in range(8): a(f"v_cvt_pk_bf16_f32 v{16+r}, v{16+r}, v{C+r}")
    a(f"buffer_store_dwordx4 v[16:19], v{FZ}, s[28:31], s26 offen sc1\nbuffer_store_dwordx4 v[20:23], v{FZ}, s[28:31], s26 offen offset:256 sc1")
    a(f"""
H_MID:
    s_lshl_b32 s19, s17, 2
    s_and_b32 s20, s18, 3
    s_add_u32 s19, s19, s20
    s_lshr_b32 s20, s18, 2
    {srd(32, WO_P, 640*1280)}
    {srd(36, OUT_P, 2621440)}
    s_mul_i32 s26, s20, 160
    s_mul_i32 s27, s16, {160*1280}
    s_add_u32 s27, s27, s26
    s_movk_i32 s23, {1280 - 160}
    """)
    a(f"""
    s_add_u32 s25, s16, 1
    s_and_b32 s25, s25, 3
    s_mul_i32 s22, s25, 25600
    s_add_u32 s22, s22, {WOL}
    s_add_u32 s25, s25, 3
    s_waitcnt vmcnt(0)
    {st(5)}
    """)
    lwait(a, HPA, T + 1, 0xff, 3)
    a(f"""s_mov_b64 exec, 1
    ds_add_rtn_u32 v{T+1}, v{HPA}, v{HONE} offset:48
    s_waitcnt lgkmcnt(0)
    v_cmp_eq_u32 vcc, 3, v{T+1}
    s_cbranch_vccz H_NOY
    buffer_store_dword v{HONE}, v{YFA}, s[28:31], 0 offen sc1
H_NOY:
    s_mov_b64 exec, -1""")
    lwait(a, HPA, T + 1, 0xff, "s25")
    a(f"{st(6)}\ns_mov_b32 s25, 0\nH_WO:")
    for i in range(5):
        a(f"s_add_u32 m0, s22, {1024*i}\ns_nop 0\nbuffer_load_dwordx4 v{WA+i}, s[32:35], s27 offen lds")
    a(f"""
    s_add_u32 s22, s22, 5120
    s_add_u32 s27, s27, {32*1280}
    s_add_u32 s25, s25, 1
    s_cmp_lt_u32 s25, 5
    s_cbranch_scc1 H_WO
    s_cmp_lg_u32 s16, 3
    s_cbranch_scc1 H_YW
    """)
    lwait(a, HPA, T + 1, 0xff, opt("ypr", 5), 16)
    a(f"s_mov_b32 s27, {FLG_OFF + 32768}")
    poll4(a, VA, 4, "-1", "s27", slp=32)
    ladd(a, HPA, HONE, 40)
    a(f"H_YW:\nv_add_u32 v{T}, 40, v{HPA}")
    lwait(a, T, T + 1, 1, 1, 16)
    a("s_waitcnt vmcnt(0)")
    a(f"v_mov_b32 v{T}, 2")
    ladd(a, HPA, T, 32)
    a(f"{st(7)}\ns_mov_b32 s26, {Y_OFF}\ns_mov_b32 s27, {G_OFF}\nbuffer_load_dword v{G}, v{VG}, s[28:31], s27 offen sc1")
    for j in range(6):
        a(f"buffer_load_dwordx4 {vr(ZL+4*j,4)}, v{VZ}, s[28:31], s26 offen sc1\ns_add_u32 s26, s26, {2*ZP}")
    BF, OFR, ACC, YG = 0, 100, 120, 140
    VY2, G2 = 162, 167
    a(f"""
    s_waitcnt vmcnt(0)
    s_cmp_ge_u32 s20, 4
    s_cbranch_scc1 H_DESC
    """)
    for k in range(10): a(f"v_perm_b32 v{YG+10+k}, v{ZL+2*k+1}, v{ZL+2*k}, v{SH}")
    a("s_branch H_UNP\nH_DESC:")
    for k in range(10): a(f"v_perm_b32 v{YG+10+k}, v{ZL+19-2*k}, v{ZL+20-2*k}, v{SH}")
    a("H_UNP:")
    lwait(a, HPA, 8, 0xf, 8)
    a(f"""
    {st(8)}
    s_mov_b32 s41, s16
    s_mov_b32 s47, 0
P3_GO:
    s_setprio {opt('p3o', 0)}
    s_lshl_b32 s22, s17, 3
    s_and_b32 s23, s18, 3
    s_add_u32 s22, s22, s23
    s_lshl_b32 s22, s22, 1
    s_add_u32 s22, s22, s47
    s_mul_i32 s22, s22, 20480
    s_add_u32 s22, s22, {OF_OFF}
    s_lshl_b32 s44, s41, 12
    s_add_u32 s44, s44, s22
    s_lshl_b32 s45, s41, 10
    s_add_u32 s45, s45, s22
    s_add_u32 s45, s45, 16384
    s_lshl_b32 s46, s47, 2
    s_add_u32 s40, s46, {LFB + 80}
    s_add_u32 s46, s46, s41
    s_mul_i32 s46, s46, 5120
    s_add_u32 s46, s46, {WOL}
    s_mov_b32 s26, 0
    s_mov_b32 s42, 0
    v_mov_b32 v{CM}, {LFB + 32}
    """)
    lwait(a, CM, CT, 1, 8)
    a("P3_TRY:")
    for k in range(4):
        a(f"buffer_load_dwordx4 {vr(OFR+4*k,4)}, v{VA}, s[28:31], s44 offen offset:{1024*k} sc1")
    a(f"buffer_load_dwordx2 {vr(OFR+16,2)}, v{VT}, s[28:31], s45 offen sc1\nbuffer_load_dwordx2 {vr(OFR+18,2)}, v{VT}, s[28:31], s45 offen offset:128 sc1")
    a(f"""
    s_cmp_lg_u32 s26, 0
    s_cbranch_scc1 P3_CHK
    s_add_u32 s23, s41, 1
    s_and_b32 s23, s23, 3
    s_mul_i32 s23, s23, 25600
    s_add_u32 s23, s23, {WOL}
    v_add_u32 v{CM}, s23, v{BMM}
    v_add_u32 v{CT}, s23, v{BMT}
    """)
    for n in range(25):
        k, t = divmod(n, 5); d = BF + 4 * n
        bb, o, dj = (CM, k * 6400 + t * 8, 1280) if k < 4 else (CT, t * 8, 3200)
        a(f"ds_read_b64_tr_b16 {vr(d,2)}, v{bb} offset:{o}\nds_read_b64_tr_b16 {vr(d+2,2)}, v{bb} offset:{o+dj}")
    a(f"v_mov_b32 v{BMM}, {LFB + 36}\nv_mov_b32 v{BMT}, 1\ns_waitcnt lgkmcnt(0)")
    ladd(a, BMM, BMT, 0)
    b = OFR
    def mfs(k): return "\n".join(f"v_mfma_f32_16x16x32_bf16 {vr(ACC+4*t,4)}, {vr(BF+4*(5*k+t),4)}, {vr(OFR+4*k,4)}, {vr(ACC+4*t,4) if k else 0}" for t in range(5))
    if opt("spec", 1):
        a("P3_CHK:\ns_add_u32 s26, s26, 1\ns_mov_b32 s43, -1")
        for k in range(5):
            r = b + 4 * k
            a(f"""P3_C{k}:
            s_waitcnt vmcnt({max(0, 5 - k) if k < 4 else 0})
            v_max3_u32 v{CM}, v{r}, v{r+1}, v{r+2}
            v_max3_u32 v{CM}, v{r+3}, v{CM}, 1
            v_cmp_eq_u32 vcc, s43, v{CM}
            s_cbranch_vccnz P3_B{k}
            {mfs(k)}""")
        a(f"{'' if opt('fst', 0) else st(11)}\ns_branch P3_OK")
        for k in range(5):
            a(f"P3_B{k}:\ns_sleep {opt('p3s', 4)}")
            for kk in range(k, 4):
                a(f"buffer_load_dwordx4 {vr(OFR+4*kk,4)}, v{VA}, s[28:31], s44 offen offset:{1024*kk} sc1")
            a(f"buffer_load_dwordx2 {vr(OFR+16,2)}, v{VT}, s[28:31], s45 offen sc1\nbuffer_load_dwordx2 {vr(OFR+18,2)}, v{VT}, s[28:31], s45 offen offset:128 sc1")
            a(f"s_add_u32 s26, s26, 1\ns_cmp_lt_u32 s26, 0x40000\ns_cselect_b32 s43, -1, 0\ns_branch P3_C{k}")
        a("P3_OK:")
    else:
        a(f"P3_CHK:\ns_add_u32 s26, s26, 1\ns_waitcnt vmcnt(4)\nv_max3_u32 v{CM}, v{b}, v{b+1}, v{b+2}\nv_max3_u32 v{CT}, v{b+3}, v{b+4}, v{b+5}\nv_max3_u32 v{CM}, v{b+6}, v{b+7}, v{CM}\ns_waitcnt vmcnt(2)")
        a(f"v_max3_u32 v{CT}, v{b+8}, v{b+9}, v{CT}\nv_max3_u32 v{CM}, v{b+10}, v{b+11}, v{CM}\nv_max3_u32 v{CT}, v{b+12}, v{b+13}, v{CT}\nv_max3_u32 v{CM}, v{b+14}, v{b+15}, v{CM}\ns_waitcnt vmcnt(0)")
        a(f"""
    v_max3_u32 v{CT}, v{b+16}, v{b+17}, v{CT}
    v_max3_u32 v{CM}, v{b+18}, v{b+19}, v{CM}
    s_cmp_lt_u32 s26, 0x40000
    v_max_u32 v{CM}, v{CM}, v{CT}
    s_cbranch_scc0 P3_OK
    v_cmp_eq_u32 vcc, -1, v{CM}
    s_cbranch_vccz P3_OK
    s_sleep {opt("p3s", 4)}
    s_branch P3_TRY
P3_OK:
    {'' if opt('fst', 0) else st(11)}
    s_setprio {opt('p3p', 0)}
    """)
        for n in range(25):
            k, t = divmod(n, 5)
            a(f"v_mfma_f32_16x16x32_bf16 {vr(ACC+4*t,4)}, {vr(BF+4*n,4)}, {vr(OFR+4*k,4)}, {vr(ACC+4*t,4) if k else 0}")
    a("s_cmp_lg_u32 s42, 0\ns_cbranch_scc1 P3_WR")
    lwait(a, BMM, CT, 1, 8, 2)
    a(f"{str() if opt('fst', 0) else st(12)}\nP3_WR:\nv_add_u32 v{CM}, s46, v{VA}\nv_mov_b32 v{CT}, s40\ns_nop 1")
    for j in range(5): a(f"ds_write_b128 v{CM}, {vr(ACC+4*j,4)} offset:{1024*j}")
    a("s_waitcnt lgkmcnt(0)")
    ladd(a, CT, BMT, 0)
    a(f"""
    s_add_u32 s44, s44, {8*20480}
    s_add_u32 s45, s45, {8*20480}
    s_add_u32 s46, s46, {8*5120}
    s_add_u32 s40, s40, 8
    s_add_u32 s42, s42, 1
    s_cmp_ge_u32 s42, 2
    s_cbranch_scc1 P3_END
    s_cmp_ge_u32 s16, 4
    s_cbranch_scc1 P3_TRY
    """)
    for k in range(10): a(f"v_lshlrev_b32 v{YG+2*k}, 16, v{YG+10+k}\nv_and_b32 v{YG+2*k+1}, 0xffff0000, v{YG+10+k}")
    for k in range(20): a(f"v_mul_f32 v{YG+k}, v{YG+k}, v{G2}")
    a(f"""
    v_sub_f32 v{G2}, 1.0, v{G2}
    s_branch P3_TRY
P3_END:
    {st(10)}
    s_cmp_ge_u32 s16, 4
    s_cbranch_scc1 {"L_DONE" if STAMP else "L_END"}
    s_setprio 3
    s_lshl_b32 s23, s16, 2
    s_add_u32 s23, s23, {LFB + 80}
    v_mov_b32 v{CT}, s23
    s_mul_i32 s23, s16, 20480
    s_add_u32 s23, s23, {WOL}
    v_add_u32 v{CM}, s23, v{VA}
    """)
    lwait(a, CT, BMM, 1, 4, 1)
    a(st(9))
    for j in range(5):
        for g in range(4): a(f"ds_read_b128 {vr(16*j+4*g,4)}, v{CM} offset:{5120*g+1024*j}")
    for j in range(5):
        a(f"s_waitcnt lgkmcnt({min(15, 16-4*j)})")
        for r in (0, 2): a(f"v_pk_add_f32 {vr(16*j+r,2)}, {vr(16*j+r,2)}, {vr(16*j+4+r,2)}\nv_pk_add_f32 {vr(16*j+8+r,2)}, {vr(16*j+8+r,2)}, {vr(16*j+12+r,2)}")
        for r in (0, 2): a(f"v_pk_add_f32 {vr(16*j+r,2)}, {vr(16*j+r,2)}, {vr(16*j+8+r,2)}")
        for r in range(4): a(f"v_fmac_f32 v{YG+4*j+r}, v{16*j+r}, v{G2}")
        a(f"v_cvt_pk_bf16_f32 v{84+2*j}, v{YG+4*j}, v{YG+4*j+1}\nv_cvt_pk_bf16_f32 v{84+2*j+1}, v{YG+4*j+2}, v{YG+4*j+3}")
        if j == 1: a(f"buffer_store_dwordx4 v[84:87], v{VY2}, s[36:39], 0 offen" + OSC)
        if j == 3: a(f"buffer_store_dwordx4 v[88:91], v{VY2}, s[36:39], 0 offen offset:16" + OSC)
    a(f"buffer_store_dwordx2 v[92:93], v{VY2}, s[36:39], 0 offen offset:32" + OSC)

DOC = """;
"""
def main():
    a = A()
    top = open("cdna_kernels/" + NAME + ".s.ref").read().split("; Override launch")[0]
    top += "; @launch grid=(256,1,1) block=(768,1,1) lds=163840\n"
    top += DOC
    a('.amdgcn_target "amdgcn-amd-amdhsa--gfx950"\n.text')
    d = gen(a)
    open(sys.argv[1], "w").write(top + a.text() + '.section .rodata,"a"\n.p2align 6\n' + d)
if __name__ == "__main__":
    main()
```

```python
import sys, math, struct

OPT = dict(x.split("=") for x in sys.argv[2:])
def opt(k, d): return int(OPT.get(k, d))
NAME = "gated_mix__spectral_fnet__softmax_full_mha__prompt"
HS = 163840
KV_OFF = 0
HG = HS + opt('pad', 512)
HQ = 81920 + opt('pad', 512)
Q_OFF = 32 * HG
FE_OFF = Q_OFF + 32 * HQ
FO_DELTA = 655360
X512_OFF = FE_OFF + 2 * FO_DELTA
TB_OFF = X512_OFF + 4096
Y_OFF = TB_OFF + 33 * 65536
ZP = 8704
G_OFF = Y_OFF + 85 * 2 * ZP
OF_OFF = G_OFF + 8192
FLG_OFF = OF_OFF + 2621440
WS_USED = FLG_OFF + 320 * 128
XB = 102400
L_Y = 256
QLDS = 71680
RB0, RSL = 11264, 36864
LFB = 158720
WOL = 5120
AK1, AK2, AV, BK1, BK2, BV, OA1, OA2, ONES, PA, FA = range(152, 163)
VA, VT, BMM, BMT, CM, CT = 163, 164, 165, 166, 160, 161
PXB = 107520
def p3_addr(l):
    return f"""v_lshlrev_b32 v{VA}, 4, v{l}
    v_and_b32 v2, 7, v{l}
    v_bfe_u32 v4, v{l}, 3, 1
    v_lshrrev_b32 v3, 4, v{l}
    v_lshlrev_b32 v{VT}, 8, v3
    v_lshl_add_u32 v{VT}, v2, 4, v{VT}
    v_lshl_add_u32 v{VT}, v4, 3, v{VT}
    v_bfe_u32 v2, v{l}, 2, 2
    v_and_b32 v5, 3, v{l}
    v_mul_u32_u24 v5, 40, v5
    v_mul_u32_u24 v4, 40, v3
    v_add3_u32 v4, v4, v2, 16
    v_mul_u32_u24 v4, 160, v4
    v_add_u32 v{BMT}, v4, v5
    v_lshrrev_b32 v4, 1, v3
    v_mul_u32_u24 v4, 20, v4
    v_and_b32 v3, 1, v3
    v_lshl_add_u32 v4, v3, 2, v4
    v_add_u32 v4, v4, v2
    v_mul_u32_u24 v4, 160, v4
    v_add_u32 v{BMM}, v4, v5"""

def f32bits(x): return struct.unpack("<I", struct.pack("<f", x))[0]
QSCALE = f32bits((20 ** -0.5) * math.log2(math.e))
STAMP = opt("stamp", 0)
STAMP_OFF = 1 << 25
NST = 16

class A:
    def __init__(self): self.l = []; self.n = 0
    def __call__(self, s):
        for line in s.split("\n"):
            t = line.strip()
            if not t: continue
            self.l.append(t if t.endswith(":") or t.startswith(".") else "    " + t)
    def uid(self): self.n += 1; return self.n
    def text(self): return "\n".join(self.l) + "\n"

def vr(a, n): return f"v[{a}:{a+n-1}]" if n > 1 else f"v{a}"
def srd(lo, base, size):
    return f"s_mov_b32 s{lo}, s{base}\ns_mov_b32 s{lo+1}, s{base+1}\ns_mov_b32 s{lo+2}, {size}\ns_mov_b32 s{lo+3}, 0x20000"
OSC = " sc1" if opt("outsc1", 0) else ""
ALN = (f".p2align {opt('al', 0)}" if opt("al", 0) else "") + ("\ns_nop 0" if opt("al4", 0) else "")
ALN2 = f".p2align {opt('al2', 0)}" if opt("al2", 0) else ""
P1ST = opt("p1st", 0)
def st(i, p1=False):
    if not STAMP: return ""
    if P1ST and not p1 and 0 < i < 15 and i not in (4, 5): return ""
    if P1ST and not p1 and i in (4, 5): i += 8
    if p1 and not P1ST: return ""
    return f"{'s_memrealtime' if STAMP in (1, 3, 4) else 's_memtime'} s[{64+2*i}:{65+2*i}]"
def fin(): return "s_branch L_DONE" if STAMP else "s_endpgm"

X_P, WD_P, WQKV_P, WO_P, GATE_P, OUT_P, DBG_P, WS_P = 4, 8, 48, 50, 52, 54, 56, 58

def poll(a, vaddr, vdat, mask, target, sreg=60):
    u = a.uid()
    a(f"""
    s_mov_b64 exec, {mask}
    s_mov_b32 s{sreg}, 0
L_POLL{u}:
    buffer_load_dword v{vdat}, v{vaddr}, s[28:31], 0 offen sc1
    s_waitcnt vmcnt(0)
    v_cmp_gt_u32 vcc, {target}, v{vdat}
    s_cbranch_vccz L_POLLD{u}
    {'s_sleep 1' if opt('psleep', 0) else ''}
    s_add_u32 s{sreg}, s{sreg}, 1
    s_cmp_lt_u32 s{sreg}, 0x40000
    s_cbranch_scc1 L_POLL{u}
L_POLLD{u}:
    s_mov_b64 exec, -1
    """)

def poll4(a, vaddr, vdat, mask, soff="0", sreg=60, slp=None):
    u = a.uid()
    a(f"""
    s_mov_b64 exec, {mask}
    s_mov_b32 s{sreg}, 0
    s_branch L_POLLE{u}
L_POLL{u}:
    s_sleep {slp or opt("ps4", 2)}
L_POLLE{u}:
    buffer_load_dwordx4 {vr(vdat,4)}, v{vaddr}, s[28:31], {soff} offen sc1
    s_add_u32 s{sreg}, s{sreg}, 1
    s_waitcnt vmcnt(0)
    v_min3_u32 v{vdat}, v{vdat}, v{vdat+1}, v{vdat+2}
    s_cmp_lt_u32 s{sreg}, 0x40000
    v_min_u32 v{vdat}, v{vdat}, v{vdat+3}
    s_cbranch_scc0 L_POLLD{u}
    v_cmp_eq_u32 vcc, 0, v{vdat}
    s_cbranch_vccnz L_POLL{u}
L_POLLD{u}:
    s_mov_b64 exec, -1
    """)

def gen(a):
    label = NAME + "_kernel"
    a(f".p2align 8\n.globl {label}\n.type {label},@function\n{label}:")
    a(f"""
    s_cmp_ge_u32 s2, 256
    s_cbranch_scc1 L_END
    {st(0) + chr(10) + 's_waitcnt lgkmcnt(0)' if opt("st0first", 0) else ''}
    s_load_dwordx2 s[4:5], s[0:1], 0
    s_load_dwordx8 s[48:55], s[0:1], 48
    s_load_dwordx4 s[8:11], s[0:1], 24
    s_load_dwordx4 s[56:59], s[0:1], 80
    """)
    if STAMP:
        a("\n".join(f"s_mov_b32 s{64+j}, 0" for j in range(2, 2 * NST)) + "\n" + ("" if opt("st0first", 0) else st(0)))
    a(f"""
    v_lshrrev_b32 v1, 6, v0
    v_and_b32 v0, 63, v0
    s_and_b32 s17, s2, 7
    v_readfirstlane_b32 s16, v1
    s_lshr_b32 s18, s2, 3
    s_and_b32 s19, s18, 7
    s_lshr_b32 s22, s18, 3
    s_and_b32 s21, s17, 1
    s_lshl_b32 s23, s19, 1
    s_add_u32 s21, s21, s23
    s_lshr_b32 s20, s17, 1
    s_cmp_ge_u32 s19, {opt("numl", 4)}
    s_cselect_b32 s12, 1, 0
    s_cmp_eq_u32 s22, 0
    s_cselect_b32 s12, 0, s12
    s_cmp_ge_u32 s16, 4
    s_cbranch_scc1 P1_NOTLOADER
    """)
    p1_loader(a)
    a(f"""
P1_NOTLOADER:
    s_lshl_b32 s63, s17, 2
    s_add_u32 s63, s63, s22
    s_mul_i32 s14, s63, {HG}
    s_sub_u32 s13, s16, 4
    s_lshl_b32 s23, s19, 3
    s_add_u32 s23, s23, s13
    s_mul_i32 s23, s23, 40960
    s_add_u32 s23, s23, {OF_OFF}
    s_lshl_b32 s6, s63, 9
    s_add_u32 s6, s6, s23
    s_lshl_b32 s7, s63, 7
    s_add_u32 s7, s7, s23
    s_add_u32 s7, s7, 16384
    s_lshl_b32 s15, s20, 2
    s_add_u32 s15, s15, s22
    s_lshl_b32 s15, s15, 4
    s_add_u32 s15, s15, s21
    s_lshl_b32 s15, s15, 5
    s_add_u32 s15, s15, s13
    s_lshl_b32 s15, s15, 2
    s_add_u32 s15, s15, {FLG_OFF}
    v_and_b32 v1, 31, v0
    v_lshrrev_b32 v2, 5, v0
    v_lshlrev_b32 v{AK1}, 4, v0
    v_lshrrev_b32 v3, 4, v1
    v_lshl_add_u32 v3, v3, 1, v2
    v_and_b32 v4, 15, v0
    v_lshl_add_u32 v3, v4, 2, v3
    v_lshlrev_b32 v{AK2}, 2, v3
    v_mul_u32_u24 v{AV}, 384, v2
    v_lshlrev_b32 v3, 6, v2
    v_cmp_gt_u32 vcc, 16, v1
    s_nop 1
    v_cndmask_b32 v{AV}, v3, v{AV}, vcc
    v_lshl_add_u32 v{AV}, v1, 4, v{AV}
    v_add_u32 v{BK1}, 15360, v{AK1}
    v_add_u32 v{BK2}, 15360, v{AK2}
    v_add_u32 v{BV}, 15360, v{AV}
    v_and_b32 v3, 27, v1
    v_cmp_eq_u32 vcc, 24, v3
    v_mov_b32 v3, 0x3f803f80
    v_bfe_u32 v{OA2}, v1, 3, 1
    v_cndmask_b32 v{ONES}, 0, v3, vcc
    v_mul_u32_u24 v{OA2}, 20480, v{OA2}
    v_and_b32 v3, 7, v1
    v_lshl_add_u32 v{OA2}, v3, 4, v{OA2}
    v_lshrrev_b32 v3, 4, v0
    v_lshl_add_u32 v{OA1}, v3, 7, v{OA2}
    s_lshl_b32 s23, s13, 2
    s_add_u32 s23, s23, {LFB}
    v_mov_b32 v{PA}, s23
    v_mov_b32 v{FA}, {LFB + 56}
    {p3_addr(0)}
    s_cmp_ge_u32 s16, 8
    s_cbranch_scc1 P1_EXTRA
    """)
    p1_compute(a)
    p1_extra(a)
    attention(a)
    helpers(a)
    a("L_DONE:")
    if STAMP == 4:
        i_, j_ = opt("ai", 0), opt("aj", 0)
        a(f"""s_waitcnt vmcnt(0)
        {st(NST-1)}
        s_waitcnt lgkmcnt(0)
        {f's_cmp_lg_u32 s16, {opt("aw1", 0)}' if opt("aw1", 0) else f's_cmp_ge_u32 s16, {opt("aw", 4)}'}
        s_cbranch_scc1 L_END
        s_and_b32 s60, s2, {opt("am", 31)}
        s_cmp_lg_u32 s60, {opt("av", 5)}
        s_cbranch_scc1 L_END
        s_sub_u32 s60, s{64+2*j_}, s{64+2*i_}
        s_lshl_b32 s60, s60, 2
        s_min_u32 s60, s60, 100000
        {f's_mov_b32 s60, {opt("fix", 0)}' if opt("fix", 0) else ''}
L_AMP:
        s_memrealtime s[44:45]
        s_waitcnt lgkmcnt(0)
        s_sub_u32 s44, s44, s{64 if opt("fix", 0) else 64+2*(NST-1)}
        s_cmp_lt_u32 s44, s60
        s_cbranch_scc1 L_AMP
        """)
    elif STAMP == 3:
        r = f"s_waitcnt vmcnt(0)\n{st(NST-1)}\ns_mov_b64 exec, 1\n{srd(44, DBG_P, 256)}\ns_waitcnt lgkmcnt(0)\nv_mov_b32 v16, 0\n"
        r += "s_not_b32 s60, s64\nv_mov_b32 v0, s60\nbuffer_atomic_umax v0, v16, s[44:47], 0 offen offset:4 sc1\n"
        r += "s_cmp_eq_u32 s16, 0\ns_cbranch_scc1 L_D0\ns_cmp_eq_u32 s16, 4\ns_cbranch_scc0 L_END\n"
        for n, i in enumerate((2, 3, 4, 5, 7, 8, 9)): r += f"v_mov_b32 v{n+1}, s{64+2*i}\nbuffer_atomic_umax v{n+1}, v16, s[44:47], 0 offen offset:{8+4*n} sc1\n"
        r += "s_endpgm\nL_D0:\n"
        for n, i in enumerate((0, 1, 6, 8, 9, 10, 15)): r += f"v_mov_b32 v{n+1}, s{64+2*i}\nbuffer_atomic_umax v{n+1}, v16, s[44:47], 0 offen offset:{36+4*n} sc1\n"
        a(r)
    elif STAMP:
        r = f"s_waitcnt vmcnt(0)\n{st(NST-1)}\ns_mov_b64 exec, 1\ns_add_u32 s44, s{WS_P}, {STAMP_OFF}\ns_addc_u32 s45, s{WS_P+1}, 0\ns_mov_b32 s46, 262144\ns_mov_b32 s47, 0x20000\n"
        r += "s_lshl_b32 s60, s2, 4\ns_add_u32 s60, s60, s16\ns_lshl_b32 s60, s60, 6\ns_waitcnt lgkmcnt(0)\nv_mov_b32 v16, 0\n"
        if opt("xcc", 0): r += "s_getreg_b32 s66, hwreg(HW_REG_XCC_ID)\ns_add_u32 s66, s66, 100\n"
        for i in range(NST): r += f"v_mov_b32 v{i}, s{64+2*i}\n"
        for i in range(4): r += f"buffer_store_dwordx4 v[{4*i}:{4*i+3}], v16, s[44:47], s60 offen offset:{16*i}\n"
        a(r)
    a("L_END:\ns_endpgm\n.fill 256, 4, 0xbf810000\nL_CODE_END:")
    return f""".amdhsa_kernel {label}
  .amdhsa_next_free_vgpr 168
  .amdhsa_next_free_sgpr {100 if STAMP else 64}
  .amdhsa_accum_offset 168
  .amdhsa_group_segment_fixed_size 0
  .amdhsa_kernarg_size 96
  .amdhsa_user_sgpr_count 2
  .amdhsa_user_sgpr_kernarg_segment_ptr 1
  .amdhsa_system_sgpr_workgroup_id_x 1
.end_amdhsa_kernel
"""

def p1_loader(a):
    a(f"""
    s_setprio 3
    """)
    if opt("pf", 0):
        a(f"""
        v_lshlrev_b32 v20, 4, v0
        s_mul_i32 s23, s2, 10240
        s_and_b32 s24, s16, 1
        s_mul_i32 s24, s24, 5120
        s_add_u32 s23, s23, s24
        s_mul_i32 s25, s2, 3
        s_mov_b32 s31, 0x20000
        s_mov_b32 s35, 0x20000
        s_mov_b32 s34, {640*1280}
        s_waitcnt lgkmcnt(0)
        s_mov_b32 s30, {2048*1280}
        s_cmp_lt_u32 s16, 2
        s_cselect_b32 s28, s{X_P}, s{WQKV_P}
        s_cselect_b32 s29, s{X_P+1}, s{WQKV_P+1}
        s_cselect_b32 s30, s30, {640*3840}
        s_cselect_b32 s32, s8, s10
        s_cselect_b32 s33, s9, s11
        buffer_load_dwordx4 v[24:27], v20, s[28:31], s23 offen
        buffer_load_dwordx4 v[28:31], v20, s[28:31], s23 offen offset:1024
        buffer_load_dwordx4 v[32:35], v20, s[28:31], s23 offen offset:2048
        buffer_load_dwordx4 v[36:39], v20, s[28:31], s23 offen offset:3072
        s_add_u32 s23, s23, 4096
        buffer_load_dwordx4 v[40:43], v20, s[28:31], s23 offen
        s_lshr_b32 s24, s24, 11
        s_add_u32 s25, s25, s24
        s_mul_i32 s25, s25, 1280
        s_mov_b32 exec_hi, 0xff
        buffer_load_dwordx4 v[44:47], v20, s[32:35], s25 offen
        s_bitcmp1_b32 s16, 0
        s_cbranch_scc1 P1_PF1
        buffer_load_dwordx4 v[48:51], v20, s[32:35], s25 offen offset:1280
P1_PF1:
        s_mov_b32 exec_hi, -1
        """)
    a(f"""
    v_lshrrev_b32 v2, 3, v0
    v_and_b32 v3, 7, v0
    v_lshrrev_b32 v4, 4, v0
    v_xor_b32 v3, v3, v4
    v_lshlrev_b32 v3, 4, v3
    v_xor_b32 v4, 64, v3
    s_lshl_b32 s23, s21, 5
    s_lshr_b32 s24, s16, 1
    s_lshl_b32 s24, s24, 4
    s_add_u32 s23, s23, s24
    s_cmp_eq_u32 s22, 2
    s_cselect_b32 s25, 4, 0
    v_and_b32 v9, s25, v2
    v_add3_u32 v9, v9, v2, s23
    s_sub_u32 s25, 8, s25
    s_bitcmp1_b32 s16, 0
    s_cselect_b32 s23, -1, 1
    s_cselect_b32 s24, 0x400, 0
    s_mul_i32 s25, s25, s23
    v_mul_lo_u32 v10, v9, s23
    s_sub_u32 s27, 0x800, s24
    v_add_u32 v5, s24, v10
    v_sub_u32 v7, s27, v10
    v_add_u32 v6, s25, v5
    v_subrev_u32 v8, s25, v7
    v_cmp_eq_u32 vcc, 0, v9
    s_add_u32 s24, s24, 0x200
    v_mov_b32 v9, s24
    s_cmp_lg_u32 s22, 2
    v_cndmask_b32 v7, v7, v9, vcc
    s_cbranch_scc1 P1_LD_NV
    v_swap_b32 v6, v7
P1_LD_NV:
    s_movk_i32 s27, 1280
    v_mad_u32_u24 v10, v5, s27, v3
    v_mad_u32_u24 v11, v6, s27, v4
    v_mad_u32_u24 v12, v7, s27, v3
    v_mad_u32_u24 v13, v8, s27, v4
    """)
    EX = opt("early", 1) and opt("stag1", 7) == 7
    if EX:
        a(f"""
        s_lshr_b32 s36, s17, 1
        s_xor_b32 s36, s36, s17
        s_and_b32 s36, s36, 1
        s_xor_b32 s36, s36, 9
        s_lshl_b32 s41, s36, 7
        s_lshl_b32 s44, s16, 12
        s_add_u32 m0, s44, {RB0 + 2 * RSL}
        s_waitcnt lgkmcnt(0)
        {srd(28, X_P, 2048*1280)}
        buffer_load_dwordx4 v10, s[28:31], s41 offen lds
        """)
        for i in range(1, 4):
            a(f"s_add_u32 m0, s44, {RB0 + 2 * RSL + 1024*i}\ns_nop 0\nbuffer_load_dwordx4 v{10+i}, s[28:31], s41 offen lds")
    a(f"""
    s_lshl_b32 s26, s22, 2
    s_add_u32 s26, s26, s20
    s_and_b32 s27, s20, 1
    s_movk_i32 s25, 3840
    s_cmp_eq_u32 s22, 3
    s_cselect_b32 s25, 1280, s25
    s_cselect_b32 s26, s27, s26
    s_mul_i32 s26, s26, 320
    s_lshl_b32 s27, s16, 4
    s_mul_i32 s27, s27, s25
    s_add_u32 s26, s26, s27
    s_sub_u32 s27, s25, 320
    """)
    for i in range(5):
        a(f"""
        v_add_u32 v5, {64*i}, v0
        v_mul_u32_u24 v6, 3277, v5
        v_lshrrev_b32 v6, 16, v6
        v_lshrrev_b32 v7, 2, v6
        v_and_b32 v7, 2, v7
        v_xor_b32 v5, v5, v7
        v_lshl_add_u32 v5, v5, 4, s26
        v_mad_u32_u24 v{14+i}, v6, s27, v5
        """)
    sg = opt("stag1", 7)
    if sg == 1:
        a("s_lshl_b32 s36, s19, 3\ns_lshl_b32 s37, s22, 4\ns_add_u32 s36, s36, s37\ns_add_u32 s36, s36, s17\ns_and_b32 s36, s36, 63\ns_mul_i32 s36, s36, 10\ns_lshr_b32 s36, s36, 6")
    elif sg == 2:
        a("s_add_u32 s36, s19, s22\ns_lshl_b32 s36, s36, 4\ns_add_u32 s36, s36, s17\ns_add_u32 s36, s36, s17\ns_and_b32 s36, s36, 63\ns_mul_i32 s36, s36, 10\ns_lshr_b32 s36, s36, 6")
    elif sg == 3:
        a("s_add_u32 s36, s19, s22\ns_lshl_b32 s36, s36, 5\ns_lshl_b32 s37, s17, 2\ns_add_u32 s36, s36, s37\ns_and_b32 s36, s36, 63\ns_mul_i32 s36, s36, 10\ns_lshr_b32 s36, s36, 6")
    elif sg >= 10:
        nc = sg - 9
        Gn = 5 - nc
        rot = [2 * (nc + k % Gn) for k in range(2 * Gn - 1)]
        rv = sum(v << (4 * k) for k, v in enumerate(rot))
        com = sum((2 * k) << (4 * k) for k in range(nc))
        a(f"""
        s_lshr_b32 s36, s17, 1
        s_xor_b32 s36, s36, s17
        s_and_b32 s36, s36, 1
        s_add_u32 s37, s22, s19
        s_lshr_b32 s46, s17, 2
        s_lshl_b32 s46, s46, {opt("xsh", 1)}
        s_add_u32 s37, s37, s46
        s_mul_i32 s46, s37, {256 // Gn + 1}
        s_lshr_b32 s46, s46, 8
        s_mul_i32 s46, s46, {Gn}
        s_sub_u32 s37, s37, s46
        s_lshl_b32 s37, s37, 2
        s_lshr_b32 s46, {rv:#x}, s37
        s_and_b32 s46, s46, {(1 << (4 * Gn)) - 1:#x}
        s_lshl_b32 s46, s46, {4 * nc}
        s_or_b32 s46, s46, {0x53100000 | com:#x}
        s_mov_b32 s47, 0x97
        s_mul_i32 s37, s36, 0x11111111
        s_xor_b32 s46, s46, s37
        s_xor_b32 s47, s47, s37
        s_and_b32 s36, s46, 15
        """)
    elif sg >= 5:
        tsh = {5: 0, 6: 1, 7: 0, 8: 0, 9: 0}[sg]
        a(f"""
        s_lshr_b32 s36, s17, 1
        s_xor_b32 s36, s36, s17
        s_and_b32 s36, s36, 1
        {'s_min_u32 s37, s22, 2' if sg == 9 else f's_lshr_b32 s37, s22, {tsh}'}
        s_add_u32 s37, s37, s19
        s_lshr_b32 s46, s17, 2
        s_lshl_b32 s46, s46, 1
        s_add_u32 s37, s37, s46
        s_mul_i32 s46, s37, 52
        s_lshr_b32 s46, s46, 8
        s_mul_i32 s46, s46, 5
        s_sub_u32 s37, s37, s46
        s_lshl_b32 s37, s37, 2
        s_mov_b32 s46, 0x42086420
        s_mov_b32 s47, 0x6
        s_lshr_b64 s[46:47], s[46:47], s37
        s_and_b32 s46, s46, 0xfffff
        {'s_or_b32 s47, s46, 0x11111' + chr(10) + 's_lshl_b32 s37, s47, 20' + chr(10) + 's_or_b32 s46, s46, s37' + chr(10) + 's_lshr_b32 s47, s47, 12' if sg == 8 else 's_or_b32 s46, s46, 0x53100000' + chr(10) + 's_mov_b32 s47, 0x97'}
        s_mul_i32 s37, s36, 0x11111111
        s_xor_b32 s46, s46, s37
        s_xor_b32 s47, s47, s37
        """)
        if sg == 7:
            a("s_lshr_b32 s37, s47, 4\ns_and_b32 s37, s37, 15\ns_lshl_b64 s[46:47], s[46:47], 4\ns_or_b32 s46, s46, s37")
        a("s_and_b32 s36, s46, 15")
    else:
        a("s_mov_b32 s36, 0")
    a(f"""
    s_lshl_b32 s38, s16, 12
    s_add_u32 s38, s38, {RB0}
    s_mul_i32 s39, s16, 5120
    s_add_u32 s39, s39, {RB0 + 16384}
    s_mov_b32 s40, 0
    s_mul_i32 s34, s25, 640
    s_lshl_b32 s25, s25, 6
    s_mov_b32 s35, 0x20000
    s_waitcnt lgkmcnt(0)
    {srd(28, X_P, 2048*1280)}
    s_cmp_lt_u32 s20, 2
    s_cselect_b32 s32, s8, s10
    s_cselect_b32 s33, s9, s11
    s_cmp_eq_u32 s22, 3
    s_cselect_b32 s32, s32, s{WQKV_P}
    s_cselect_b32 s33, s33, s{WQKV_P+1}
    {st(1)}
    """)
    if opt("dftdelay", 0):
        a(f"""s_cmp_lg_u32 s22, 3
        s_cbranch_scc1 P1_LD_LOOP
        s_memrealtime s[42:43]
        s_waitcnt lgkmcnt(0)
        s_add_u32 s42, s42, {opt("dftdelay", 0)}
P1_DLY:
        s_memrealtime s[44:45]
        s_waitcnt lgkmcnt(0)
        s_cmp_lt_u32 s44, s42
        s_cbranch_scc1 P1_DLY
        """)
    a(f"""
P1_LD_LOOP:
    s_lshl_b32 s41, s36, 7
    s_mul_i32 s42, s36, s25
    s_add_u32 s43, s40, 2
    s_and_b32 s43, s43, 3
    s_mul_i32 s43, s43, {RSL}
    s_add_u32 s44, s43, s38
    s_add_u32 s45, s43, s39
    """)
    if EX: a("s_cmp_eq_u32 s40, 0\ns_cbranch_scc1 P1_LD_WW")
    for i in range(4):
        a(f"s_add_u32 m0, s44, {1024*i}\ns_nop 0\nbuffer_load_dwordx4 v{10+i}, s[28:31], s41 offen lds")
    a("P1_LD_WW:")
    for i in range(5):
        a(f"s_add_u32 m0, s45, {1024*i}\ns_nop 0\nbuffer_load_dwordx4 v{14+i}, s[32:35], s42 offen lds")
    if opt("noload", 0): a("s_cmp_ge_u32 s40, 3\ns_cselect_b32 s30, 0, s30\ns_cselect_b32 s34, 0, s34")
    a(f"""
    {'s_lshr_b64 s[46:47], s[46:47], 4' + chr(10) + 's_and_b32 s36, s46, 15' if sg >= 5 else 's_add_u32 s36, s36, 1' + chr(10) + 's_cmp_eq_u32 s36, 10' + chr(10) + 's_cselect_b32 s36, 0, s36'}
    s_add_u32 s40, s40, 1
    s_cmp_eq_u32 s40, 1
    s_cbranch_scc1 P1_LD_LOOP
    s_waitcnt vmcnt(9)
    s_barrier
    s_cmp_lt_u32 s40, 10
    s_cbranch_scc1 P1_LD_LOOP
    s_waitcnt vmcnt(0)
    s_barrier
    s_branch HELPER
    """)

def p1_compute(a):
    X = 80; W = [96, 116]; XA = 136; WA = 137; CX = 142; CW = 144; PC = 149; L = 150; TT = 96
    def acc(b, T): return 20 * b + 4 * T
    a(f"""
    s_sub_u32 s61, s16, 4
    s_and_b32 s36, s61, 1
    s_lshr_b32 s37, s61, 1
    v_mov_b32 v{L}, v0
    v_and_b32 v1, 15, v0
    v_lshrrev_b32 v2, 4, v0
    v_lshrrev_b32 v3, 1, v1
    v_xor_b32 v3, v3, v2
    v_lshlrev_b32 v3, 4, v3
    v_lshl_add_u32 v3, v1, 7, v3
    s_lshl_b32 s23, s36, 13
    s_add_u32 s23, s23, {RB0}
    v_add_u32 v{XA}, s23, v3
    v_bfe_u32 v3, v0, 2, 2
    v_lshl_add_u32 v3, v2, 3, v3
    v_mul_u32_u24 v3, 320, v3
    v_add_u32 v3, {RB0 + 16384}, v3
    v_and_b32 v4, 16, v0
    v_lshlrev_b32 v4, 1, v4
    v_and_b32 v5, 3, v0
    s_mul_i32 s23, s37, 160
    v_lshl_add_u32 v6, v5, 3, s23
    """)
    for T in range(4):
        a(f"v_xor_b32 v7, v6, v4\nv_add_u32 v{WA+T}, v7, v3\nv_add_u32 v6, 40, v6")
    a(f"""
    v_mul_u32_u24 v6, 40, v5
    v_add3_u32 v6, v6, s23, 32
    v_xor_b32 v7, v6, v4
    v_add_u32 v{WA+4}, v7, v3
    v_mov_b32 v{PC}, 0xbf803f80
    s_lshl_b32 s26, s22, 2
    s_add_u32 s26, s26, s20
    s_lshl_b32 s26, s26, 1
    s_add_u32 s26, s26, s37
    s_cmp_eq_u32 s26, 28
    s_cselect_b32 s24, 0x10001, 0
    s_mov_b32 s25, s24
    s_cmp_eq_u32 s22, 3
    s_cselect_b32 s43, 10, 8
    s_mov_b32 s40, 0
    s_mov_b32 s42, {2 * RSL}
    """)
    for r in range(96): a(f"v_mov_b32 v{r}, 0")
    for r in range(20): a(f"v_mov_b32 v{W[1]+r}, 0")
    a(f"v_add_u32 v{CX}, s42, v{XA}")
    for T in range(5): a(f"v_add_u32 v{CW+T}, s42, v{WA+T}")
    a(f"s_waitcnt lgkmcnt(0)\n{srd(28, WS_P, WS_USED)}")
    a(f"s_setprio {opt('cp', 2)}\ns_cmp_ge_u32 s22, 2\ns_cbranch_scc1 P1_PRE_V")
    def mf(b, T, x, w, qk):
        d = vr(acc(b, T), 4)
        return f"v_mfma_f32_16x16x32_bf16 {d}, {vr(w,4)}, {vr(x,4)}, {d}" if qk else f"v_mfma_f32_16x16x32_bf16 {d}, {vr(x,4)}, {vr(w,4)}, {d}"
    def rdw(d, T, step): return [f"ds_read_b64_tr_b16 {vr(d+2*j,2)}, v{CW+T} offset:{(step // 2) * RSL + (step % 2) * 10240 + 1280 * j}" for j in range(2)]
    def rdx(d, b, step): return f"ds_read_b128 {vr(d,4)}, v{CX + step % 2} offset:{(step // 2) * RSL + 2048 * b}"
    TO = (1, 2, 3, 4, 0)
    def group(step, qk, reads=True, patch=True):
        cur = W[1 - step]; nxt = W[step]
        rq = []
        for T in TO: rq += rdw(nxt + 4 * T, T, step)
        fill = []
        if step == 1:
            fill = ["s_add_u32 s40, s40, 1", "s_add_u32 s41, s40, 2", "s_and_b32 s41, s41, 3", f"s_mul_i32 s42, s41, {RSL}", f"v_add_u32 v{CX}, s42, v{XA}"] + [f"v_add_u32 v{CW+T}, s42, v{WA+T}" for T in range(5)]
        issued = 0
        for b in range(4):
            if reads:
                allow = [2, 15, issued + 1, issued][b]
                if b != 1: a(f"s_waitcnt lgkmcnt({min(15, allow)})")
            elif b == 0: a("s_waitcnt lgkmcnt(0)")
            for n, T in enumerate(TO):
                a(mf(b, T, X + 4 * b, cur + 4 * T, qk))
                if b == 0 and n < 2 and not qk and patch:
                    for j in range(2): a(f"v_cndmask_b32 v{cur+2*n+j}, v{cur+2*n+j}, v{PC}, s[24:25]")
                if not reads: continue
                if step == 0 and b == 0:
                    if n == 0: a(f"v_xor_b32 v{CX+1}, 64, v{CX}")
                    if n == opt("bn", 1): a("s_barrier")
                    if n <= opt("bn", 1): continue
                if n == 4: a(rdx(X + 4 * b, b, step)); issued += 1
                elif rq:
                    a(rq.pop(0)); issued += 1
                    if rq and (opt("rd2", 0) or (step == 0 and b == 1 and n < opt("bn", 1) - 1)): a(rq.pop(0)); issued += 1
                elif fill:
                    a(fill.pop(0))
                    if fill: a(fill.pop(0))
        assert not reads or (not rq and not fill), (rq, fill)

    def tail(qk, epi):
        seq = [(b, T, ("x0", b), ("w0", T)) for b in range(4) for T in TO]
        marks = {}
        win = opt("win", 2)
        for step in range(4 - win):
            for b in range(4):
                for T in TO: seq.append((b, T, ("x", 0, step, b), ("w", step, T)))
        for T in range(5):
            for jj in range(2):
                for step in range(4 - win, 4):
                    for b in (2 * jj, 2 * jj + 1): seq.append((b, T, ("x", 0, step, b), ("w", step, T)))
                marks[len(seq) - 1] = (T, jj)
        last = {}
        for n, (_, _, x, w) in enumerate(seq): last[x] = n; last[w] = n
        loc = {("x0", b): X + 4 * b for b in range(4)}; loc.update({("w0", T): W[1] + 4 * T for T in range(5)})
        free = [W[0] + 4 * k for k in range(5)] + [XA]
        order = []
        for _, _, x, w in seq:
            for f in (w, x):
                if f not in loc and f not in order: order.append(f)
        done_at = {}; nrd = 0; waited = 0; pend = []; fill = []
        cnt = [0]; prev = [0]
        def em(t): a(t); cnt[0] += 1
        a(f"v_xor_b32 v{CX+1}, 64, v{CX}\ns_waitcnt lgkmcnt(0)\ns_barrier")
        bar2 = [True]
        def take():
            f = order.pop(0); loc[f] = free.pop(0)
            if bar2 and (f[1] if f[0] == "w" else f[2]) >= 2: em("s_barrier"); bar2.pop()
            p_ = rdw(loc[f], f[2], f[1]) if f[0] == "w" else [rdx(loc[f], f[3], f[2])]
            done_at[f] = nrd + len(p_)
            return p_
        def gap():
            t, at, after = fill[0]
            return max(at - cnt[0], prev[0] + after - cnt[0], 0)
        def put():
            em(fill.pop(0)[0]); prev[0] = cnt[0]
        for n, (b, T, x, w) in enumerate(seq):
            while any(f not in loc or (f in done_at and done_at[f] > nrd) for f in (x, w)):
                if not pend: pend = take()
                em(pend.pop(0)); nrd += 1
            need = max(done_at.get(x, 0), done_at.get(w, 0))
            if need > waited:
                waited = max(need, nrd - opt("tw", 6)); em(f"s_waitcnt lgkmcnt({nrd - waited})")
            em(mf(b, T, loc[x], loc[w], qk))
            if n in marks: fill += [(t, cnt[0] + 8, after) for t, after in epi(*marks[n])]
            for f in (x, w):
                if last[f] == n: free.append(loc[f])
            if not pend and order and free: pend = take()
            if pend: em(pend.pop(0)); nrd += 1
            for _ in range(2):
                if fill and gap() == 0: put()
        a(st(3))
        while fill:
            g_ = gap()
            if g_: a(f"s_nop {g_ - 1}"); cnt[0] += g_
            put()

    EA, EB = 167, 151
    def cv(d, r): return [f"v_cvt_pk_bf16_f32 v{d}, v{r}, v{r+1}", f"v_cvt_pk_bf16_f32 v{d+1}, v{r+2}, v{r+3}"]
    def epi_qk(ph, jj=0):
        if ph < 0:
            return f"""s_mov_b32 s35, {HG}
            s_movk_i32 s38, 2560
            s_cmp_eq_u32 s22, 0
            s_cselect_b32 s35, {HQ}, s35
            s_cselect_b32 s27, {Q_OFF}, {KV_OFF}
            s_cselect_b32 s38, 1280, s38
            s_lshl_b32 s26, s20, 1
            s_add_u32 s26, s26, s37
            s_lshl_b32 s26, s26, 2
            s_mul_i32 s26, s26, s35
            s_add_u32 s26, s26, s27
            s_lshl_b32 s23, s21, 1
            s_add_u32 s23, s23, s36
            s_lshl_b32 s23, s23, 1
            s_mul_i32 s23, s23, s38
            s_add_u32 s26, s26, s23
            s_add_u32 s27, s26, s38
            v_lshrrev_b32 v{EA}, 4, v{L}
            v_mul_lo_u32 v{EA}, v{EA}, s35
            v_and_b32 v{TT}, 15, v{L}
            v_lshl_add_u32 v{EA}, v{TT}, 4, v{EA}
            v_lshlrev_b32 v{EB}, 4, v{L}
            s_add_u32 s44, s26, s35
            s_add_u32 s45, s27, s35
            s_add_u32 s46, s44, s35
            s_add_u32 s47, s45, s35
            s_add_u32 s32, s46, s35
            s_add_u32 s33, s47, s35""".split("\n")
        T = ph
        r0, r1 = acc(2 * jj, T), acc(2 * jj + 1, T)
        o = [(t, 0) for t in cv(r0, r0) + cv(r0 + 2, r1)]
        if T < 4:
            o += [(f"v_permlane16_swap_b32 v{r0}, v{r0+2}", 1), (f"v_permlane16_swap_b32 v{r0+1}, v{r0+3}", 0)]
            o.append((f"buffer_store_dwordx4 {vr(r0,4)}, v{EB}, s[28:31], s{(26, 44, 46, 32)[T] + jj} offen sc1", 0))
        else:
            o.append((f"buffer_store_dwordx4 {vr(r0,4)}, v{EA}, s[28:31], s{26 + jj} offen offset:1024 sc1", 0))
        return o
    def epi_v(ph, jj=0):
        if ph < 0:
            return f"""s_lshl_b32 s26, s20, 1
            s_add_u32 s26, s26, s37
            s_mul_i32 s26, s26, {4*HG}
            s_lshl_b32 s23, s21, 1
            s_add_u32 s23, s23, s36
            s_mul_i32 s23, s23, 5120
            s_add_u32 s26, s26, s23
            s_add_u32 s26, s26, {KV_OFF + 1280}
            s_add_u32 s44, s26, {HG}
            s_add_u32 s45, s26, {2*HG}
            s_add_u32 s46, s26, {3*HG}
            s_mov_b32 s35, {HG}
            v_lshrrev_b32 v{EA}, 5, v{L}
            v_mul_u32_u24 v{EA}, 640, v{EA}
            v_bfe_u32 v{TT}, v{L}, 4, 1
            v_lshl_add_u32 v{EB}, v{TT}, 6, v{EA}
            v_mul_u32_u24 v{TT}, 384, v{TT}
            v_add_u32 v{EA}, v{EA}, v{TT}
            v_and_b32 v{TT}, 15, v{L}
            v_lshl_add_u32 v{EA}, v{TT}, 4, v{EA}
            v_and_b32 v{TT}, 3, v{L}
            v_lshl_add_u32 v{EB}, v{TT}, 4, v{EB}
            v_bfe_u32 v{TT}, v{L}, 2, 2
            v_mul_lo_u32 v{TT}, v{TT}, s35
            v_add_u32 v{EB}, v{EB}, v{TT}""".split("\n")
        T = ph
        r0, r1 = acc(2 * jj, T), acc(2 * jj + 1, T)
        o = [(t, 0) for t in cv(r0, r0) + cv(r0 + 2, r1)]
        if T < 4: o.append((f"buffer_store_dwordx4 {vr(r0,4)}, v{EA}, s[28:31], s{(26, 44, 45, 46)[T]} offen offset:{2560 * jj} sc1", 0))
        else: o.append((f"buffer_store_dwordx4 {vr(r0,4)}, v{EB}, s[28:31], s26 offen offset:{2560 * jj + 256} sc1", 0))
        return o

    for qk, lab in ((True, "QK"), (False, "V")):
        a(f"P1_PRE_{lab}:")
        for f in (epi_qk if qk else epi_v)(-1): a(f)
        SEP = opt("sep", 0)
        if SEP and not qk: a("s_cmp_eq_u32 s22, 3\ns_cbranch_scc1 P1_LOOP_D")
        a(ALN2)
        a(f"P1_LOOP_{lab}:")
        group(0, qk, patch=not SEP)
        if STAMP: a(f"s_cmp_lg_u32 s40, 0\ns_cbranch_scc1 P1_ST_{lab}\n{st(2)}\nP1_ST_{lab}:\ns_cmp_lg_u32 s40, 5\ns_cbranch_scc1 P1_SU_{lab}\n{st(1)}\nP1_SU_{lab}:")
        group(1, qk, patch=not SEP)
        a(f"s_cmp_lt_u32 s40, s43\ns_cbranch_scc1 P1_LOOP_{lab}")
        if not qk: a("s_cmp_eq_u32 s22, 3\ns_cbranch_scc1 P1_EPI_DFT")
        a("s_cmp_eq_u32 s12, 1\ns_cselect_b32 s30, 0, s30")
        tail(qk, epi_qk if qk else epi_v)
        a(f"s_cmp_eq_u32 s12, 0\ns_cbranch_scc1 P1_DONE\ns_mov_b32 s30, {WS_USED}\nv_mov_b32 v88, {LFB + 56}\nv_mov_b32 v89, 1")
        ladd(a, 88, 89, 0)
        a(f"s_mov_b32 s34, 1\ns_branch ATT\nNU_{lab}:")
        for T in range(5):
            for jj in range(2): a((epi_qk if qk else epi_v)(T, jj)[-1][0])
        a("s_branch ATT_SIG")
    if SEP:
        a("P1_LOOP_D:"); group(0, False); group(1, False)
        a("s_cmp_lt_u32 s40, s43\ns_cbranch_scc1 P1_LOOP_D")
    a("P1_EPI_DFT:")
    group(0, False, reads=False)
    TAU, TAU0, E0 = 80, 81, 140
    a(f"""
    {st(3)}
    s_cmp_lt_u32 s20, 2
    s_cselect_b32 s38, 1.0, -1.0
    v_mov_b32 v{TAU}, s38
    v_cndmask_b32 v{TAU0}, v{TAU}, 1.0, s[24:25]
    s_lshl_b32 s26, s20, 1
    s_add_u32 s26, s26, s37
    s_mul_i32 s26, s26, 80
    v_and_b32 v88, 15, v{L}
    v_add_u32 v{E0}, s26, v88
    v_add_u32 v{E0+1}, 20, v{E0}
    v_add_u32 v{E0+2}, 40, v{E0}
    v_add_u32 v{E0+3}, 60, v{E0}
    v_and_b32 v89, 12, v{L}
    v_lshl_add_u32 v{E0+4}, v89, 2, v{E0}
    v_add_u32 v{E0+4}, 16, v{E0+4}
    s_lshl_b32 s23, s21, 1
    s_add_u32 s23, s23, s36
    s_cmp_lg_u32 s23, 0
    s_cbranch_scc1 P1_EPI_DFT2
    s_mov_b64 exec, 0xffff
    s_mov_b32 s27, {X512_OFF}
    """)
    for T in range(5):
        a(f"v_fma_f32 v{96+T}, v{acc(3,T)}, v{TAU0 if T == 0 else TAU}, v{acc(1,T)}")
        a(f"v_lshlrev_b32 v{104+T}, 2, v{E0+T}\nv_mov_b32 v{acc(1,T)}, 0\nv_mov_b32 v{acc(3,T)}, 0")
        a(f"buffer_store_dword v{96+T}, v{104+T}, s[28:31], s27 offen sc1")
    a(f"""
    s_mov_b64 exec, -1
P1_EPI_DFT2:
    s_lshl_b32 s26, s23, 9
    s_add_u32 s26, s26, {FE_OFF}
    s_mov_b32 s27, {FO_DELTA}
    v_bfe_u32 v88, v{L}, 4, 1
    v_mul_lo_u32 v88, v88, s27
    v_lshrrev_b32 v89, 5, v{L}
    v_lshl_add_u32 v88, v89, 8, v88
    """)
    for T in range(5):
        tau = TAU0 if T == 0 else TAU
        a0, a1, a2, a3 = (acc(b, T) for b in range(4))
        for q in range(4):
            a(f"v_fma_f32 v{a0+q}, v{a1+q}, v{tau}, v{a0+q}\nv_fma_f32 v{a3+q}, v{a2+q}, v{tau}, v{a3+q}")
        for q in range(4):
            a(f"v_add_f32 v{a1+q}, v{a0+q}, v{a3+q}\nv_sub_f32 v{a2+q}, v{a0+q}, v{a3+q}")
        for f in cv(a0, a1) + cv(a0 + 2, a2): a(f)
        a(f"""
        v_lshrrev_b32 v89, 4, v{E0+T}
        v_lshl_add_u32 v89, v89, 14, v88
        v_and_b32 v{E0+T}, 15, v{E0+T}
        v_lshl_add_u32 v{E0+T}, v{E0+T}, 4, v89
        v_permlane16_swap_b32 v{a0}, v{a0+2}
        v_permlane16_swap_b32 v{a0+1}, v{a0+3}
        """)
    a(f"v_mov_b32 v88, {LFB + 56}\nv_mov_b32 v89, 1\ns_mov_b32 s12, {opt('dnu', 1)}")
    ladd(a, 88, 89, 0)
    a("s_mov_b32 s34, 1\ns_branch ATT\nNU_D:")
    for T in range(5): a(f"buffer_store_dwordx4 {vr(4*T,4)}, v{E0+T}, s[28:31], s26 offen sc1")
    a("s_branch ATT_SIG")
    a(f"""
P1_DONE:
    {st(14)}
    s_mov_b32 s34, 0
    v_mov_b32 v84, 1
    v_mov_b32 v85, 1
    v_mov_b32 v86, 1
    v_mov_b32 v87, 1
    v_mov_b32 v88, {LFB + 44}
    v_mov_b32 v89, 0
    s_and_b32 s23, s15, -128
    s_mov_b64 exec, 1
    s_waitcnt vmcnt(0)
    ds_add_rtn_u32 v88, v88, v84
    s_waitcnt lgkmcnt(0)
    v_cmp_eq_u32 vcc, 3, v88
    s_cbranch_vccz P1_NS
    buffer_store_dwordx4 v[84:87], v89, s[28:31], s23 offen sc1
P1_NS:
    s_mov_b64 exec, -1
    s_branch ATT
    """)

def p1_extra(a):
    T0 = 40
    a(f"""
P1_EXTRA:
    s_sub_u32 s61, s16, 8
    """)
    if opt("cwarm", 1):
        a(f"""
        s_cmp_lg_u32 s16, 10
        s_cbranch_scc1 P1_NOCW
        s_lshl_b32 s23, s18, 10
        s_cmp_ge_u32 s23, L_CODE_END - {NAME}_kernel - 1023
        s_cbranch_scc1 P1_NOCW
        s_getpc_b64 s[44:45]
L_PC:
        s_sub_u32 s44, s44, L_PC - {NAME}_kernel
        s_subb_u32 s45, s45, 0
        v_lshl_add_u32 v40, v0, 4, s23
        global_load_dwordx4 v[44:47], v40, s[44:45]
P1_NOCW:
        """)
    a(f"""
    v_lshrrev_b32 v37, 4, v0
    v_and_b32 v38, 15, v0
    v_lshlrev_b32 v39, 4, v0
    v_mov_b32 v36, v0
    s_waitcnt lgkmcnt(0)
    {srd(28, WS_P, WS_USED)}
    {srd(32, DBG_P, 256)}
    s_cmp_lg_u32 s61, 0
    s_cbranch_scc1 P1_EX_A
    v_mov_b32 v1, 0
    v_lshlrev_b32 v2, 2, v0
    v_add_u32 v2, {LFB}, v2
    ds_write_b32 v2, v1
    s_waitcnt lgkmcnt(0)
    s_cmp_lt_u32 s2, 248
    s_cbranch_scc1 P1_EX_WAITRDY
    v_mov_b32 v4, 0
    v_mov_b32 v5, 0
    v_mov_b32 v6, 0
    v_mov_b32 v7, 0
    s_lshl_b32 s23, s17, 12
    s_add_u32 s23, s23, {FLG_OFF}
    buffer_store_dwordx4 v[4:7], v39, s[28:31], s23 offen sc1
    buffer_store_dwordx4 v[4:7], v39, s[28:31], s23 offen offset:1024 sc1
    buffer_store_dwordx4 v[4:7], v39, s[28:31], s23 offen offset:2048 sc1
    buffer_store_dwordx4 v[4:7], v39, s[28:31], s23 offen offset:3072 sc1
    s_lshl_b32 s23, s17, 10
    s_add_u32 s23, s23, {FLG_OFF + 32768}
    buffer_store_dwordx4 v[4:7], v39, s[28:31], s23 offen sc1
P1_EX_WAITRDY:
P1_EX_A:
    s_lshl_b32 s23, s2, 2
    s_add_u32 s23, s23, s61
    s_mov_b32 s40, 0
P1_TBL:
    s_lshr_b32 s24, s23, 5
    s_and_b32 s25, s23, 30
    s_and_b32 s26, s24, 1
    s_lshr_b32 s27, s24, 1
    s_lshl_b32 s27, s27, 6
    s_add_u32 s27, s27, s26
    s_and_b32 s26, s23, 1
    s_lshl_b32 s26, s26, 5
    s_add_u32 s27, s27, s26
    v_lshl_add_u32 v{T0}, v38, 1, s27
    s_lshl_b32 s25, s25, 4
    v_lshl_add_u32 v{T0+1}, v37, 3, s25
    v_mul_u32_u24 v{T0+1}, v{T0}, v{T0+1}
    v_and_b32 v{T0+1}, 0x7ff, v{T0+1}
    v_cvt_f32_u32 v{T0}, v{T0}
    v_cvt_f32_u32 v{T0+1}, v{T0+1}
    v_mul_f32 v{T0}, 0x3a000000, v{T0}
    v_mul_f32 v0, 0x3a000000, v{T0+1}
    """)
    for u in range(1, 8): a(f"v_add_f32 v{u}, v{u-1}, v{T0}")
    for u in range(1, 8): a(f"v_fract_f32 v{u}, v{u}")
    for u in range(8): a(f"v_cos_f32 v{8+u}, v{u}")
    for u in range(8): a(f"v_sin_f32 v{16+u}, v{u}")
    for j in range(4): a(f"v_cvt_pk_bf16_f32 v{24+j}, v{8+2*j}, v{9+2*j}")
    for j in range(4): a(f"v_cvt_pk_bf16_f32 v{28+j}, v{16+2*j}, v{17+2*j}")
    NB0 = opt("tblbar", 2)
    a(f"""
    s_cmp_lg_u32 s40, 0
    s_cbranch_scc1 P1_TBL_ST
    s_barrier
    {st(1, True)}
    s_cmp_lg_u32 s61, 0
    s_cbranch_scc1 P1_EX_NR
    s_cmp_lt_u32 s2, 248
    s_cbranch_scc1 P1_EX_NR
    v_mov_b32 v32, 1
    v_mov_b32 v33, 0
    s_lshl_b32 s24, s17, 2
    s_waitcnt vmcnt(0)
    s_mov_b64 exec, 1
    buffer_store_dword v32, v33, s[32:35], s24 offen sc1
    s_mov_b64 exec, -1
P1_EX_NR:
    """ + "".join(f"s_barrier\n{st(1 + b_, True)}\n" for b_ in range(1, NB0)) + f"""
    s_mov_b32 s40, 1
P1_TBL_ST:
    s_lshl_b32 s24, s23, 11
    s_add_u32 s24, s24, {TB_OFF}
    buffer_store_dwordx4 v[24:27], v39, s[28:31], s24 offen sc1
    buffer_store_dwordx4 v[28:31], v39, s[28:31], s24 offen offset:1024 sc1
    s_add_u32 s23, s23, 1024
    s_cmp_lt_u32 s23, 1056
    s_cbranch_scc1 P1_TBL
    """)
    nb = NB0
    assert nb <= 6
    a("".join(f"s_barrier\n{st(1 + b_, True)}\n" for b_ in range(nb, 6)))
    u = a.uid()
    a(f"""
    v_and_b32 v1, 7, v36
    v_lshlrev_b32 v1, 2, v1
    v_mov_b32 v2, 1
    s_mov_b32 s60, 0
    s_cmp_lg_u32 s61, 0
    s_cbranch_scc1 P1_EX_C
    buffer_load_dword v2, v1, s[32:35], 0 offen sc1
P1_EX_C:
    s_barrier
    {st(7, True)}
    s_barrier
    {st(8, True)}
L_RDY{u}:
    s_waitcnt vmcnt(0)
    v_cmp_eq_u32 vcc, 0, v2
    s_cbranch_vccz P1_EX_B
    s_sleep 1
    buffer_load_dword v2, v1, s[32:35], 0 offen sc1
    s_add_u32 s60, s60, 1
    s_cmp_lt_u32 s60, 0x40000
    s_cbranch_scc1 L_RDY{u}
P1_EX_B:
    s_waitcnt vmcnt(0)
    s_barrier
    {st(9, True)}
    s_barrier
    {st(10, True)}
    s_mov_b32 s34, 0
    """)

def attention(a):
    O = 20; S = [0, 40, 136, 120]; IX = 114; P = 36; P2 = 64; Q1 = 56; Q2 = 60; K2 = 62; K1 = 16; V1 = 68; V2 = [72, 76]; T = 80
    a(f"""
ATT:
    s_cmp_lt_u32 s13, 4
    s_cselect_b32 s40, {opt("o1", 4)}, {opt("y1", 4)}
    s_cselect_b32 s41, {opt("o2", 7)}, {opt("y2", 6)}
    s_movk_i32 s35, 0x10a
    s_bitset1_b32 s35, s40
    s_bitset1_b32 s35, s41
    s_mov_b32 s24, 0xfffff
    s_mov_b32 s25, 0xfffff
    s_mul_i32 s39, s13, 1280
    s_add_u32 s39, s39, {QLDS}
    v_mov_b32 v{Q2+1}, 0
    v_mov_b32 v{K2+1}, 0x3f803f80
    v_add_u32 v{T}, s39, v{AK1}
    v_add_u32 v{T+1}, s39, v{AK2}
    v_mov_b32 v{T+2}, 1
    """)
    NQ = opt("nq", 2)
    OX = [84, O]; QX1 = [100, Q1]; QX2 = [104, Q2]; U = 106; TM = 136; XS = 107520
    if NQ == 2:
        a(f"""
        s_xor_b32 s36, s13, 1
        s_mul_i32 s39, s36, 1280
        s_add_u32 s39, s39, {QLDS}
        v_add_u32 v{U}, s39, v{AK1}
        v_add_u32 v{U+1}, s39, v{AK2}
        v_mov_b32 v{U+2}, v{AK1}
        v_mov_b32 v{U+3}, v{AK2}
        v_mov_b32 v{QX2[0]+1}, 0
        s_mov_b32 s42, {QSCALE:#x}
        s_mov_b32 s43, s42
        s_and_b32 s37, s13, 1
        s_mul_i32 s37, s37, 2560
        v_and_b32 v{U+4}, 0x70, v{VA}
        v_lshrrev_b32 v{U+4}, 2, v{U+4}
        v_add_u32 v{U+4}, {LFB}, v{U+4}
        s_lshl_b32 s23, s13, 12
        s_add_u32 s23, s23, {XS}
        v_add_u32 v{U+5}, s23, v{VA}
        v_xor_b32 v{U+7}, 4, v{PA}
        s_lshl_b32 s23, s36, 12
        s_add_u32 s23, s23, {XS}
        v_add_u32 v{U+6}, s23, v{VA}
        s_lshr_b32 s38, s13, 2
        s_add_u32 s38, s38, 7
        """)
        for r in (AK1, AK2, AV, BK1, BK2, BV): a(f"v_add_u32 v{r}, s37, v{r}")
        for r in range(16): a(f"v_mov_b32 v{OX[0]+r}, 0")
    for r in range(12): a(f"v_mov_b32 v{V1+r}, v{ONES}")
    for r in range(16): a(f"v_mov_b32 v{O+r}, 0")
    for r in range(4): a(f"v_mov_b32 v{P+r}, -1")
    for r in range(8): a(f"v_mov_b32 v{S[3]+8+r}, 0")
    a(f"v_mov_b32 v{IX}, 0xdddddddd")
    def rk1(d): return f"v_mfma_f32_32x32x8_bf16 {vr(d,16)}, {vr(K2,2)}, {vr(Q2,2)}, 0"
    def rk2(d): return f"v_mfma_f32_32x32x16_bf16 {vr(d,16)}, {vr(K1,4)}, {vr(Q1,4)}, {vr(d,16)}"
    def qk1(d): return f"v_mfma_f32_32x32x16_bf16 {vr(d,16)}, {vr(K1,4)}, {vr(Q1,4)}, 0"
    def qk2(d): return f"v_mfma_f32_32x32x8_bf16 {vr(d,16)}, {vr(K2,2)}, {vr(Q2,2)}, {vr(d,16)}"
    def pv(v, p): return f"v_smfmac_f32_32x32x32_bf16 {vr(O,16)}, {vr(v,4)}, {vr(p,8)}, v{IX}"
    def of(t): return (t - 6 if t in (6, 7) else t) * 2560
    def rdk1(t): return f"ds_read_b128 {vr(K1,4)}, v{BK1 if t in (6, 7) else AK1} offset:{of(t)}"
    def rdk2(t): return f"ds_read_b32 v{K2}, v{BK2 if t in (6, 7) else AK2} offset:{of(t)+1024}"
    def rdv(t, v2):
        b = BV if t in (6, 7) else AV
        return f"s_mov_b64 exec, s[24:25]\nds_read_b128 {vr(V1,4)}, v{b} offset:{of(t)+1280}\nds_read_b128 {vr(v2,4)}, v{b} offset:{of(t)+1920}\ns_mov_b64 exec, -1"
    def maxtree(s, m, first):
        if first:
            a(f"v_max3_f32 v{m}, v{s}, v{s+1}, v{s+2}\nv_max3_f32 v{m+1}, v{s+3}, v{s+4}, v{s+5}")
            for j in range(6, 14, 4): a(f"v_max3_f32 v{m}, v{s+j}, v{s+j+1}, v{m}\nv_max3_f32 v{m+1}, v{s+j+2}, v{s+j+3}, v{m+1}")
            a(f"v_max3_f32 v{m}, v{s+14}, v{s+15}, v{m}\nv_max_f32 v{m}, v{m}, v{m+1}")
        else:
            for j in range(0, 16, 2): a(f"v_max3_f32 v{m}, v{s+j}, v{s+j+1}, v{m}")
    def xhalf(m):
        a(f"v_mov_b32 v{m+1}, v{m}\ns_nop 1\nv_permlane32_swap_b32 v{m}, v{m+1}\ns_nop 0\nv_max_f32 v{m}, v{m}, v{m+1}")
    a(f"""
    {st(4)}
    s_barrier
    s_setprio 3
    s_cmp_lg_u32 s34, 1
    s_cbranch_scc1 ATT_NOSIG
    s_cmp_eq_u32 s22, 1
    s_cbranch_scc1 NU_QK
    s_cmp_eq_u32 s22, 2
    s_cbranch_scc1 NU_V
    s_branch NU_D
ATT_SIG:
    """)
    if opt("comb", 1):
        a(f"""
        v_mov_b32 v{T+3}, {LFB + 44}
        s_and_b32 s23, s15, -128
        s_mov_b64 exec, 1
        s_waitcnt vmcnt(0)
        ds_add_rtn_u32 v{T+3}, v{T+3}, v{T+2}
        s_waitcnt lgkmcnt(0)
        v_cmp_eq_u32 vcc, 3, v{T+3}
        s_cbranch_vccz ATT_NOSIG
        buffer_store_dwordx4 {vr(P,4)}, v{O}, s[28:31], s23 offen sc1
        """)
    else:
        a(f"s_waitcnt vmcnt(0)\ns_mov_b64 exec, 1\nbuffer_store_dword v{T+2}, v{O}, s[28:31], s15 offen sc1")
    a(f"""
ATT_NOSIG:
    s_mov_b64 exec, -1
    {st(6)}
    """)
    def e(s, j): return f"v_exp_f32 v{s+j}, v{s+j}"
    def c(s, j): return f"v_cvt_pk_bf16_f32 v{P+j}, v{s+2*j}, v{s+2*j+1}"
    if NQ == 2:
        def xk1(x, d=None): return f"v_mfma_f32_32x32x16_bf16 {vr(S[x if d is None else d],16)}, {vr(K1,4)}, {vr(QX1[x],4)}, 0"
        def xk2(x, d=None): return f"v_mfma_f32_32x32x8_bf16 {vr(S[x if d is None else d],16)}, {vr(K2,2)}, {vr(QX2[x],2)}, {vr(S[x if d is None else d],16)}"
        def xpv(x, v, p): return f"v_smfmac_f32_32x32x32_bf16 {vr(OX[x],16)}, {vr(v,4)}, {vr(p,8)}, v{IX}"
        def scale(x):
            for j in range(5): a(f"v_lshlrev_b32 v{TM+2*j}, 16, v{QX1[x]+j}\nv_and_b32 v{TM+2*j+1}, 0xffff0000, v{QX1[x]+j}")
            if opt("pkq", 0):
                for j in range(0, 10, 2): a(f"v_pk_mul_f32 {vr(TM+j,2)}, {vr(TM+j,2)}, s[42:43]")
            else:
                for j in range(10): a(f"v_mul_f32 v{TM+j}, s42, v{TM+j}")
            for j in range(5): a(f"v_cvt_pk_bf16_f32 v{QX1[x]+j}, v{TM+2*j}, v{TM+2*j+1}")
        MH = f32bits(-0.5 * (20 ** -0.5) * math.log2(math.e))
        a(f"""
        ds_read_b128 {vr(K1,4)}, v{U+2}
        ds_read_b32 v{K2}, v{U+3} offset:1024
        ds_read_b128 {vr(QX1[0],4)}, v{U}
        ds_read_b32 v{QX2[0]}, v{U+1} offset:1024
        ds_read_b128 {vr(Q1,4)}, v{T}
        ds_read_b32 v{Q2}, v{T+1} offset:1024
        {rdv(0, V2[0])}
        s_waitcnt lgkmcnt(4)
        {xk1(0)}
        {xk2(0)}
        s_waitcnt lgkmcnt(2)
        {xk1(1)}
        {xk2(1)}
        {rdk1(0)}
        {rdk2(0)}
        s_mov_b32 s26, 0
        """)
        scale(0)
        maxtree(S[0], T, True)
        a(f"v_mul_f32 v{T}, {MH:#x}, v{T}\nv_cvt_pk_bf16_f32 v{QX2[0]+1}, v{T}, 0\ns_waitcnt lgkmcnt(0)\n{xk1(0)}\n{xk2(0)}")
        scale(1)
        maxtree(S[1], T, True)
        a(f"""
        v_mul_f32 v{T}, {MH:#x}, v{T}
        v_cvt_pk_bf16_f32 v{Q2+1}, v{T}, 0
        {xk1(1)}
        {rdk1(2)}
        {st(7)}
        {ALN}
ATT_LOOP:
        """)
        for i in range(4):
            for x in (0, 1):
                SP = {0: (4, 8, 12), 1: (5, 8, 13), 2: (4, 7, 11), 3: (5, 9, 13)}[opt('sp', 0)]
                n = 2 * i + x; cur = S[n % 4]; y = 1 - x; t_ = 2 * (i + 1)
                if x == 1: a("s_waitcnt lgkmcnt(0)")
                a(xk2(y, (n + 1) % 4))
                if x == 0: a(rdk2(t_))
                for q in range(SP[0]): a(e(cur, q))
                a(xpv(y, V2[(i + 1) % 2] if x == 0 else V2[i % 2], S[(n - 1) % 4] + 8))
                if x == 0: a("s_waitcnt lgkmcnt(1)")
                if x == 0 and i == 3: a.l[-1] = "    s_waitcnt vmcnt(0) lgkmcnt(1)"
                if x == 1 and i == 1: a(f"ds_write_b32 v{PA}, v{T+2}")
                if x == 1 and i == 3: a(f"ds_read_b32 v{U}, v{U+4}")
                for q in range(SP[0], SP[1]): a(e(cur, q))
                a(xk1(x, (n + 2) % 4))
                if x == 1: a(rdk1(t_ + 2))
                for q in range(SP[1], SP[2]): a(e(cur, q))
                a(xpv(x, V1, cur))
                if x == 1: a(rdv(t_, V2[(i + 1) % 2]))
                for q in range(SP[2], 16): a(e(cur, q))
    a(f"""
    s_add_u32 s26, s26, 1
    s_movk_i32 s27, 0x5000
    s_cmp_eq_u32 s26, 7
    s_cselect_b32 s27, {(0x5000 - 62 * 2560) & 0xffffffff}, s27
    v_add_u32 v{AK1}, 0x5000, v{AK1}
    v_add_u32 v{AK2}, 0x5000, v{AK2}
    v_add_u32 v{AV}, 0x5000, v{AV}
    v_add_u32 v{BK1}, s27, v{BK1}
    v_add_u32 v{BK2}, s27, v{BK2}
    v_add_u32 v{BV}, s27, v{BV}
    v_add_u32 v{T+2}, 1, v{T+2}
    s_bitcmp1_b32 s35, s26
    s_cbranch_scc0 ATT_LOOP
    s_cmp_gt_u32 s26, 3
    s_cbranch_scc1 ATT_EV
    v_add_u32 v{FA}, 8, v{FA}
    s_cmp_eq_u32 s26, 1
    s_cbranch_scc0 ATT_WAIT
    buffer_store_dwordx4 {vr(P,4)}, v{OA1}, s[28:31], s6 offen sc1
    s_mov_b64 exec, 0xffff
    buffer_store_dwordx4 {vr(P,4)}, v{OA2}, s[28:31], s7 offen sc1
    s_mov_b64 exec, -1
ATT_WAIT:
    ds_read_b32 v{T}, v{FA}
    s_waitcnt lgkmcnt(0)
    v_readfirstlane_b32 s23, v{T}
    s_cmp_ge_u32 s23, 4
    s_cbranch_scc1 ATT_LOOP
    s_sleep 1
    s_branch ATT_WAIT
ATT_EV:
    s_setprio 2
    s_cmp_eq_u32 s26, s40
    s_cbranch_scc1 ATT_LOOP
    s_setprio 1
    s_cmp_lt_u32 s26, 8
    s_cbranch_scc1 ATT_LOOP
    s_setprio 3
    {pv(V2[1], S[3]+8)}
    {st(8)}
    """)
    if NQ == 2:
        a(f"""
        s_mov_b32 s27, 0x3e800000
        s_mov_b32 s23, 0x71800000
        s_waitcnt lgkmcnt(3)
        v_cmp_gt_u32 vcc, s38, v{U}
        s_cbranch_vccz ATT_X0
ATT_X1:
        s_sleep 2
        ds_read_b32 v{U}, v{U+4}
        s_waitcnt lgkmcnt(0)
        v_cmp_gt_u32 vcc, s38, v{U}
        s_cbranch_vccnz ATT_X1
ATT_X0:
        """)
        for j in range(3): a(f"ds_write_b128 v{U+5}, {vr(OX[0]+4*j,4)} offset:{1024*j}")
        a(f"ds_write_b64 v{U+5}, {vr(OX[0]+12,2)} offset:3072\nds_write_b32 v{PA}, v{T+2} offset:96\nATT_X2:\nds_read_b32 v{U}, v{U+7} offset:96")
        for j in range(3): a(f"ds_read_b128 {vr(S[0]+4*j,4)}, v{U+6} offset:{1024*j}")
        a(f"ds_read_b64 {vr(S[0]+12,2)}, v{U+6} offset:3072\ns_waitcnt lgkmcnt(0)\nv_cmp_eq_u32 vcc, 0, v{U}\ns_cbranch_vccz ATT_X3\ns_sleep 1\ns_branch ATT_X2\nATT_X3:\ns_nop 1")
        for r in range(0, 14, 2): a(f"v_pk_add_f32 {vr(O+r,2)}, {vr(O+r,2)}, {vr(S[0]+r,2)}")
    else:
        a("s_mov_b32 s27, 0x3e800000\ns_mov_b32 s23, 0x71800000\ns_nop 9")
    a(f"v_rcp_f32 v{T+2}, v{O+12}\nv_add_f32 v{T}, |v{O}|, |v{O+1}|\nv_add_f32 v{T+1}, |v{O+2}|, |v{O+3}|")
    for j in range(4, 12, 2): a(f"v_add_f32 v{T}, |v{O+j}|, v{T}\nv_add_f32 v{T+1}, |v{O+j+1}|, v{T+1}")
    a(f"""
    v_add_f32 v{T}, v{T}, v{O+12}
    v_cmp_le_f32 s[42:43], s27, v{O+12}
    v_add_f32 v{T}, v{T}, v{T+1}
    v_cmp_gt_f32 vcc, s23, v{T}
    s_and_b64 vcc, vcc, s[42:43]
    s_cmp_eq_u64 vcc, -1
    s_cbranch_scc0 ATT_FALLBACK
ATT_FINISH:
    """)
    for j in range(0, 8, 2): a(f"v_pk_mul_f32 {vr(O+j,2)}, {vr(O+j,2)}, {vr(T+2,2)} op_sel_hi:[1,0]")
    for j in range(4): a(f"v_cvt_pk_bf16_f32 v{P+j}, v{O+2*j}, v{O+2*j+1}")
    for j in range(4): a(f"v_min_u32 v{P+j}, -2, v{P+j}")
    a(f"buffer_store_dwordx4 {vr(P,4)}, v{OA1}, s[28:31], s6 offen sc1")
    for j in range(8, 12, 2): a(f"v_pk_mul_f32 {vr(O+j,2)}, {vr(O+j,2)}, {vr(T+2,2)} op_sel_hi:[1,0]")
    for j in range(4, 6): a(f"v_cvt_pk_bf16_f32 v{P2+j-4}, v{O+2*j}, v{O+2*j+1}")
    for j in range(4, 6): a(f"v_min_u32 v{P2+j-4}, -2, v{P2+j-4}")
    a(f"""
    s_nop 1
    v_permlane16_swap_b32 v{P2}, v{P2+2}
    v_permlane16_swap_b32 v{P2+1}, v{P2+3}
    s_mov_b64 exec, 0xffff
    buffer_store_dwordx4 {vr(P2,4)}, v{OA2}, s[28:31], s7 offen sc1
    {st(9)}
    s_cmp_ge_u32 s13, 4
    s_cbranch_scc1 {"L_DONE" if STAMP else "L_END"}
    s_mov_b64 exec, -1
    s_xor_b32 s41, s13, {opt('gx', 2)}
    s_mov_b32 s47, 1
    s_branch P3_GO
    """)
    def gk(): return f"buffer_load_dwordx4 {vr(K1,4)}, v{AK1}, s[28:31], s23 offen sc1\nbuffer_load_dword v{K2}, v{AK2}, s[28:31], s23 offen offset:1024 sc1"
    a(f"""
ATT_FALLBACK:
    s_waitcnt lgkmcnt(0)
    v_mov_b32 v{Q2+1}, 0
    v_mov_b32 v{T}, 0xff800000
    {f's_add_u32 s23, s37, {HS}' if NQ == 2 else f's_mov_b32 s23, {HS}'}
    v_subrev_u32 v{AK1}, s23, v{AK1}
    v_subrev_u32 v{AK2}, s23, v{AK2}
    v_subrev_u32 v{AV}, s23, v{AV}
    s_add_u32 s23, s14, {KV_OFF}
    s_mov_b32 s26, 0
ATT_FB1:
    {gk()}
    s_add_u32 s23, s23, 2560
    s_waitcnt vmcnt(0)
    {qk1(S[0])}
    {qk2(S[0])}
    s_nop 15
    """)
    maxtree(S[0], T, False)
    a("s_add_u32 s26, s26, 1\ns_cmp_lt_u32 s26, 64\ns_cbranch_scc1 ATT_FB1")
    xhalf(T)
    a(f"s_add_u32 s23, s14, {KV_OFF}\ns_mov_b32 s26, 0")
    for r in range(16): a(f"v_mov_b32 v{O+r}, 0")
    a(f"""
ATT_FB2:
    {gk()}
    s_mov_b64 exec, s[24:25]
    buffer_load_dwordx4 {vr(V1,4)}, v{AV}, s[28:31], s23 offen offset:1280 sc1
    buffer_load_dwordx4 {vr(V2[0],4)}, v{AV}, s[28:31], s23 offen offset:1920 sc1
    s_mov_b64 exec, -1
    s_add_u32 s23, s23, 2560
    s_waitcnt vmcnt(0)
    {qk1(S[0])}
    {qk2(S[0])}
    s_nop 15
    """)
    for q in range(16): a(f"v_sub_f32 v{S[0]+q}, v{S[0]+q}, v{T}")
    for q in range(16): a(e(S[0], q))
    a(f"""
    s_nop 1
    {pv(V1, S[0])}
    {pv(V2[0], S[0]+8)}
    s_add_u32 s26, s26, 1
    s_cmp_lt_u32 s26, 64
    s_cbranch_scc1 ATT_FB2
    s_nop 15
    s_nop 3
    v_rcp_f32 v{T+2}, v{O+12}
    s_nop 0
    s_branch ATT_FINISH
    """)

def lwait(a, vaddr, vdat, mask, target, slp=8):
    u = a.uid()
    a(f"""
    s_mov_b64 exec, {mask}
    s_branch L_LWE{u}
L_LW{u}:
    s_sleep {slp}
L_LWE{u}:
    ds_read_b32 v{vdat}, v{vaddr}
    s_waitcnt lgkmcnt(0)
    v_cmp_gt_u32 vcc, {target}, v{vdat}
    s_cbranch_vccnz L_LW{u}
    s_mov_b64 exec, -1
    """)
def ladd(a, vaddr, vone, off):
    a(f"s_mov_b64 exec, 1\nds_add_u32 v{vaddr}, v{vone} offset:{off}\ns_mov_b64 exec, -1")

def helpers(a):
    WA, VG, VZ, SH, HPA, HONE, YFA, FZ, SG, XA5, LF = 112, 117, 118, 119, 120, 121, 122, 123, 124, 125, 126
    ZL = 40; G = 167; VY = 162; T = 132; LT = 127
    a(f"""
HELPER:
    s_mov_b32 s61, s22
    {st(2)}
    {srd(28, WS_P, WS_USED)}
    s_setprio 0
    s_lshr_b32 s20, s18, 2
    s_mul_i32 s26, s20, 160
    s_movk_i32 s23, {1280 - 160}
    """)
    for i in range(5):
        a(f"""
        v_add_u32 v{T}, {64*i}, v0
        v_mul_u32_u24 v{T+1}, 6554, v{T}
        v_lshrrev_b32 v{T+1}, 16, v{T+1}
        v_lshlrev_b32 v{T}, 4, v{T}
        v_mad_u32_u24 v{WA+i}, v{T+1}, s23, v{T}
        """)
    a(f"""
    s_lshl_b32 s21, s17, 3
    s_and_b32 s22, s18, 3
    s_add_u32 s21, s21, s22
    s_lshr_b32 s22, s16, 1
    s_lshl_b32 s22, s22, 2
    s_add_u32 s21, s21, s22
    s_lshl_b32 s21, s21, 1
    s_and_b32 s22, s16, 1
    s_add_u32 s21, s21, s22
    s_lshr_b32 s22, s21, 2
    s_lshl_b32 s22, s22, 1
    s_and_b32 s24, s21, 1
    s_add_u32 s22, s22, s24
    s_lshl_b32 s22, s22, 3
    v_and_b32 v{T}, 7, v0
    v_add_u32 v{T}, s22, v{T}
    s_bitcmp1_b32 s21, 1
    s_cselect_b32 s22, 0x400, 0
    s_cselect_b32 s24, -1, 1
    v_mul_lo_u32 v{T+1}, v{T}, s24
    s_sub_u32 s24, 0x800, s22
    v_sub_u32 v{T+2}, s24, v{T+1}
    v_add_u32 v{T+1}, s22, v{T+1}
    v_and_b32 v{T+3}, 8, v0
    v_cmp_ne_u32 vcc, 0, v{T+3}
    v_cmp_eq_u32 s[42:43], 0, v{T}
    v_lshlrev_b32 v{T+3}, 6, v{T+3}
    v_add_u32 v{T+3}, s22, v{T+3}
    v_cndmask_b32 v{T}, v{T+1}, v{T+2}, vcc
    v_lshrrev_b32 v{T+1}, 4, v0
    v_cndmask_b32 v{T}, v{T}, v{T+3}, s[42:43]
    v_mul_u32_u24 v{VY}, 1280, v{T}
    v_mul_u32_u24 v{T+2}, 40, v{T+1}
    v_add3_u32 v{VY}, v{VY}, v{T+2}, s26
    v_lshlrev_b32 v{VG}, 2, v{T}
    v_sub_u32 v{T+3}, 0x800, v{T}
    v_cmp_lt_u32 vcc, 0x400, v{T}
    v_min_u32 v{T}, v{T}, v{T+3}
    v_and_b32 v{T+3}, 1, v{T}
    v_mul_u32_u24 v{VZ}, {ZP}, v{T+3}
    v_lshrrev_b32 v{T+3}, 1, v{T}
    v_lshl_add_u32 v{VZ}, v{T+3}, 4, v{VZ}
    v_mov_b32 v{T+3}, 0x02020202
    v_cndmask_b32 v{SH}, 0, v{T+3}, vcc
    s_cmp_ge_u32 s20, 4
    s_mov_b32 s24, 0x05040100
    s_cselect_b32 s24, 0x07060302, s24
    s_cselect_b32 s40, -1, 1
    s_cselect_b32 s41, 155, 0
    v_xor_b32 v{SH}, s24, v{SH}
    s_mul_i32 s24, s20, 20
    v_mul_u32_u24 v{T+3}, 5, v{T+1}
    v_add_u32 v{T+3}, s24, v{T+3}
    v_mul_lo_u32 v{T+3}, v{T+3}, s40
    v_add_u32 v{T+3}, s41, v{T+3}
    v_mul_u32_u24 v{T+3}, {2*ZP}, v{T+3}
    v_add_u32 v{VZ}, v{VZ}, v{T+3}
    {p3_addr(0)}
    v_lshlrev_b32 v{HPA}, 2, v0
    v_add_u32 v{HPA}, {LFB}, v{HPA}
    v_mov_b32 v{HONE}, 1
    s_and_b32 s23, s2, 63
    s_lshl_b32 s23, s23, 5
    s_lshr_b32 s24, s2, 6
    s_add_u32 s23, s23, s24
    s_lshl_b32 s23, s23, 2
    s_add_u32 s23, s23, {FLG_OFF + 32768}
    v_mov_b32 v{YFA}, s23
    v_lshrrev_b32 v{FZ}, 4, v0
    v_mul_u32_u24 v{FZ}, {2*ZP}, v{FZ}
    v_and_b32 v{T}, 15, v0
    v_lshl_add_u32 v{FZ}, v{T}, 4, v{FZ}
    v_lshlrev_b32 v{SG}, 31, v0
    v_and_b32 v{XA5}, 48, v0
    v_lshlrev_b32 v{LF}, 7, v0
    v_bfe_u32 v{LT}, v0, 1, 2
    v_lshlrev_b32 v{LT}, 13, v{LT}
    v_and_b32 v{T}, 1, v0
    v_lshl_add_u32 v{LT}, v{T}, 7, v{LT}
    s_setprio 3
    s_lshr_b32 s19, s18, 3
    s_lshl_b32 s23, s17, 2
    s_add_u32 s19, s19, s23
    s_and_b32 s62, s18, 7
    s_mul_i32 s21, s19, {HG}
    v_lshlrev_b32 v1, 4, v0
    {st(3)}
    s_lshr_b32 s23, s19, 3
    s_lshl_b32 s23, s23, 13
    s_add_u32 s23, s23, {FLG_OFF}
    v_lshlrev_b32 v2, 7, v0
    v_add_u32 v2, s23, v2
    s_add_u32 s24, s21, {KV_OFF}
    s_lshl_b32 s40, 0x10000, s16
    s_lshl_b32 s41, 1, s16
    s_mul_i32 s22, s16, 10240
    s_add_u32 s26, s24, s22
    s_cmp_lg_u32 s16, 3
    s_cbranch_scc1 H_JA
    s_lshl_b32 s25, s62, 1
    s_lshl_b32 s40, 3, s25
    s_mov_b32 s41, 0
    s_mov_b32 s22, {QLDS}
    s_mul_i32 s26, s19, {HQ}
    s_mul_i32 s25, s62, 10240
    s_add_u32 s26, s26, s25
    s_add_u32 s26, s26, {Q_OFF}
H_JA:
    """)
    def job():
        r = f"s_add_u32 s25, s22, 5120\ns_cmp_ge_u32 s25, {LFB}\ns_cselect_b32 s25, 0, s25\n"
        for n in range(10):
            if n in (0, 3): r += f"s_add_u32 m0, s22, {1024*n}\ns_add_u32 s27, s26, {1024*n}\n"; o = 0
            if n in (5, 8): r += f"s_add_u32 m0, s25, {1024*(n-5)}\ns_add_u32 s27, s26, {1024*n}\n"; o = 0
            r += f"buffer_load_dwordx4 v1, s[28:31], s27 offen offset:{o} sc1 lds\n"; o += 1024
        return r
    if opt("latep", 1):
        a(f"s_mul_i32 s23, s12, 12\ns_cmp_eq_u32 s61, 3\ns_cselect_b32 s23, 12, s23\ns_add_u32 s23, s23, {LFB + 44}\nv_mov_b32 v3, s23")
        lwait(a, 3, 4, 1, 4, 2)
        if opt("lps", 0): a(f"s_sleep {opt('lps', 0)}")
    poll4(a, 2, 4, "s[40:41]")
    a(st(11)); a(job())
    a(f"""
    s_lshl_b32 s40, 0x80000, s16
    s_lshl_b32 s41, 8, s16
    s_add_u32 s22, s16, 3
    s_mul_i32 s22, s22, 10240
    s_add_u32 s26, s24, s22
    s_waitcnt vmcnt(0)
    {st(12)}
    s_barrier
    """)
    poll4(a, 2, 4, "s[40:41]")
    a(job())
    a(f"""
H_JB:
    s_lshl_b32 s41, 0x8880, s16
    s_and_b32 s41, s41, 0xffff
    s_lshl_b32 s40, s41, 16
    s_add_u32 s22, s16, 7
    s_mul_i32 s22, s22, 10240
    s_add_u32 s26, s24, s22
    s_waitcnt vmcnt(0)
    """)
    ladd(a, HPA, HONE, 64)
    a("s_cmp_lg_u32 s16, 0\ns_cbranch_scc1 H_NW")
    lwait(a, HPA, 4, 0xff, 1)
    a("H_NW:")
    poll4(a, 2, 4, "s[40:41]", slp=8)
    a(f"{st(13)}\nH_JC:"); a(job())
    a(f"""
    s_add_u32 s22, s22, 40960
    s_add_u32 s26, s26, 40960
    s_cmp_lt_u32 s22, {HS}
    s_cbranch_scc1 H_JC
    s_waitcnt vmcnt(0)
    {st(4)}
    """)
    ladd(a, HPA, HONE, 72)
    a(f"""
    s_cmp_lt_u32 s16, 3
    s_cbranch_scc1 H_FNET
    """)
    a(f"""
    {srd(32, X_P, 2048*1280)}
    {srd(36, GATE_P, 1280)}
    v_lshrrev_b32 v2, 3, v0
    v_and_b32 v3, 7, v0
    v_lshlrev_b32 v3, 4, v3
    s_movk_i32 s22, 1280
    v_mad_u32_u24 v4, v2, s22, v3
    s_mul_i32 s23, s2, {8*1280}
    """)
    for j in range(10):
        a(f"buffer_load_dwordx4 {vr(24+8*j,4)}, v4, s[32:35], s23 offen offset:{128*j}")
        a(f"buffer_load_dwordx4 {vr(28+8*j,4)}, v3, s[36:39], 0 offen offset:{128*j}")
    a("v_mov_b32 v5, 0\nv_mov_b32 v6, 0\ns_waitcnt vmcnt(0)")
    for j in range(10):
        for q in range(4):
            a(f"v_dot2c_f32_bf16 v{5 + (q & 1)}, v{24+8*j+q}, v{28+8*j+q}")
    a(f"""
    s_nop 2
    v_add_f32 v5, v5, v6
    s_nop 1
    v_add_f32_dpp v5, v5, v5 quad_perm:[1,0,3,2] row_mask:0xf bank_mask:0xf
    s_nop 1
    v_add_f32_dpp v5, v5, v5 quad_perm:[2,3,0,1] row_mask:0xf bank_mask:0xf
    s_nop 1
    v_add_f32_dpp v5, v5, v5 row_half_mirror row_mask:0xf bank_mask:0xf
    v_mul_f32 v5, {f32bits(-math.log2(math.e)):#x}, v5
    v_exp_f32 v5, v5
    v_lshlrev_b32 v2, 2, v2
    v_add_f32 v5, 1.0, v5
    v_rcp_f32 v5, v5
    s_lshl_b32 s23, s2, 5
    s_add_u32 s23, s23, {G_OFF}
    buffer_store_dword v5, v2, s[28:31], s23 offen sc1
    s_branch H_MID
    """)
    C, SN, FB = 0, 8, 16
    a(f"""
H_FNET:
    {'s_branch H_MID' if opt('nofnet', 0) == 1 else ''}
    s_lshl_b32 s22, s16, 5
    s_add_u32 s22, s22, s18
    s_cmp_lt_u32 s22, 84
    s_cbranch_scc1 H_FN_A
    s_sub_u32 s24, s22, 84
    s_lshl_b32 s24, s24, 3
    s_add_u32 s24, s24, s17
    s_cmp_ge_u32 s24, 21
    s_cbranch_scc1 H_MID
    s_mov_b32 s23, 32
    s_branch H_FN_B
H_FN_A:
    s_mul_i32 s23, s22, 3121
    s_lshr_b32 s23, s23, 16
    s_mul_i32 s24, s23, 21
    s_sub_u32 s24, s22, s24
    s_lshl_b32 s23, s23, 3
    s_add_u32 s23, s23, s17
H_FN_B:
    s_and_b32 s25, s23, 1
    s_add_u32 s26, s24, 20
    s_cmp_eq_u32 s24, 20
    s_cselect_b32 s26, 20, s26
    s_mul_i32 s32, s24, 26
    s_lshr_b32 s32, s32, 8
    s_lshl_b32 s32, s32, 13
    s_add_u32 s32, s32, {48 * 128}
    s_mul_i32 s33, s26, 26
    s_lshr_b32 s33, s33, 8
    s_lshl_b32 s33, s33, 13
    s_add_u32 s33, s33, {32 * 128}
    s_and_b32 s34, s23, 31
    s_lshl_b32 s34, s34, 8
    s_mov_b64 exec, 0xffff
    v_add_u32 v2, s32, v{LF}
    s_mov_b32 exec_lo, 0xffff0000
    v_add_u32 v2, s33, v{LF}
    s_mov_b32 exec_lo, 0
    s_mov_b32 exec_hi, 0xff
    v_add_u32 v2, s34, v{LT}
    s_mov_b32 s40, -1
    s_movk_i32 s41, 0xff
    s_mov_b32 s27, {FLG_OFF}
    """)
    poll4(a, 2, 4, "s[40:41]", "s27", slp=8)
    a(st(14))
    a(f"""
    s_lshl_b32 s32, s23, 16
    s_add_u32 s32, s32, {TB_OFF}
    s_mul_i32 s27, s25, {FO_DELTA}
    s_add_u32 s27, s27, {FE_OFF}
    s_lshl_b32 s33, s24, 14
    s_add_u32 s33, s33, s27
    s_lshl_b32 s34, s26, 14
    s_add_u32 s34, s34, s27
    s_cmp_eq_u32 s25, 0
    s_cselect_b32 s35, s24, s26
    s_lshl_b32 s35, s35, 6
    s_add_u32 s35, s35, {X512_OFF}
    buffer_load_dwordx4 v[128:131], v{XA5}, s[28:31], s35 offen sc1
    """)
    def fl(j):
        r = FB + 24 * j
        s_ = f"buffer_load_dwordx4 {vr(r,4)}, v163, s[28:31], s33 offen offset:{1024*j} sc1\n"
        s_ += f"buffer_load_dwordx4 {vr(r+4,4)}, v163, s[28:31], s34 offen offset:{1024*j} sc1\n"
        for k in range(4): s_ += f"buffer_load_dwordx4 {vr(r+8+4*k,4)}, v163, s[28:31], s32 offen offset:{1024*k} sc1\n"
        s_ += "s_add_u32 s32, s32, 4096\n"
        if j == 3: s_ += "s_add_u32 s33, s33, 4096\ns_add_u32 s34, s34, 4096\n"
        return s_
    def fm(j):
        r = FB + 24 * j
        s_ = ""
        if opt("nofnet", 0) == 2: return s_
        for sub in range(2):
            s_ += f"v_mfma_f32_16x16x32_bf16 {vr(C+4*sub,4)}, {vr(r,4)}, {vr(r+8+8*sub,4)}, {vr(C+4*sub,4)}\n"
            s_ += f"v_mfma_f32_16x16x32_bf16 {vr(SN+4*sub,4)}, {vr(r+4,4)}, {vr(r+12+8*sub,4)}, {vr(SN+4*sub,4)}\n"
        return s_
    for j in range(4): a(fl(j))
    a(f"""
    s_cmp_eq_u32 s25, 0
    s_cselect_b32 s36, 1.0, 0
    s_cselect_b32 s37, 0, 1.0
    v_or_b32 v161, s37, v{SG}
    v_or_b32 v160, s36, v{SG}
    s_waitcnt vmcnt(24)
    """)
    for r in range(8): a(f"v_mul_f32 v{C+r}, v160, v{128 + r % 4}\nv_mul_f32 v{SN+r}, v161, v{128 + r % 4}")
    a("s_mov_b32 s38, 0\nH_FN_LOOP:")
    for j in range(4):
        a("s_waitcnt vmcnt(18)"); a(fm(j)); a(fl(j))
    a("s_add_u32 s38, s38, 1\ns_cmp_lt_u32 s38, 3\ns_cbranch_scc1 H_FN_LOOP")
    for j in range(4):
        a(f"s_waitcnt vmcnt({18-6*j})"); a(fm(j))
    a(f"""
    s_cmp_eq_u32 s26, 20
    s_cselect_b32 s44, 0xffff, 0
    s_mov_b32 s45, 0
    s_mul_i32 s26, s24, {8*ZP}
    s_mul_i32 s27, s25, {ZP}
    s_add_u32 s26, s26, s27
    s_lshr_b32 s27, s23, 1
    s_lshl_b32 s27, s27, 9
    s_add_u32 s26, s26, s27
    s_add_u32 s26, s26, {Y_OFF}
    v_cndmask_b32 v{SN}, v{SN}, 0, s[44:45]
    v_cndmask_b32 v{SN+4}, v{SN+4}, 0, s[44:45]
    """)
    for r in range(8):
        a(f"v_add_f32 v{16+r}, v{C+r}, v{SN+r}\nv_sub_f32 v{C+r}, v{C+r}, v{SN+r}")
    for r in range(8): a(f"v_cvt_pk_bf16_f32 v{16+r}, v{16+r}, v{C+r}")
    a(f"buffer_store_dwordx4 v[16:19], v{FZ}, s[28:31], s26 offen sc1\nbuffer_store_dwordx4 v[20:23], v{FZ}, s[28:31], s26 offen offset:256 sc1")
    a(f"""
H_MID:
    s_lshl_b32 s19, s17, 2
    s_and_b32 s20, s18, 3
    s_add_u32 s19, s19, s20
    s_lshr_b32 s20, s18, 2
    {srd(32, WO_P, 640*1280)}
    {srd(36, OUT_P, 2621440)}
    s_mul_i32 s26, s20, 160
    s_mul_i32 s27, s16, {160*1280}
    s_add_u32 s27, s27, s26
    s_movk_i32 s23, {1280 - 160}
    """)
    a(f"""
    s_add_u32 s25, s16, 1
    s_and_b32 s25, s25, 3
    s_mul_i32 s22, s25, 25600
    s_add_u32 s22, s22, {WOL}
    s_add_u32 s25, s25, 3
    s_waitcnt vmcnt(0)
    {st(5)}
    """)
    lwait(a, HPA, T + 1, 0xff, 3)
    a(f"""s_mov_b64 exec, 1
    ds_add_rtn_u32 v{T+1}, v{HPA}, v{HONE} offset:48
    s_waitcnt lgkmcnt(0)
    v_cmp_eq_u32 vcc, 3, v{T+1}
    s_cbranch_vccz H_NOY
    buffer_store_dword v{HONE}, v{YFA}, s[28:31], 0 offen sc1
H_NOY:
    s_mov_b64 exec, -1""")
    lwait(a, HPA, T + 1, 0xff, "s25")
    a(f"{st(6)}\ns_mov_b32 s25, 0\nH_WO:")
    for i in range(5):
        a(f"s_add_u32 m0, s22, {1024*i}\ns_nop 0\nbuffer_load_dwordx4 v{WA+i}, s[32:35], s27 offen lds")
    a(f"""
    s_add_u32 s22, s22, 5120
    s_add_u32 s27, s27, {32*1280}
    s_add_u32 s25, s25, 1
    s_cmp_lt_u32 s25, 5
    s_cbranch_scc1 H_WO
    s_cmp_lg_u32 s16, 3
    s_cbranch_scc1 H_YW
    """)
    lwait(a, HPA, T + 1, 0xff, opt("ypr", 5), 16)
    a(f"s_mov_b32 s27, {FLG_OFF + 32768}")
    poll4(a, LF, 4, "-1", "s27", slp=opt("ys", 16))
    ladd(a, HPA, HONE, 40)
    a(f"H_YW:\nv_add_u32 v{T}, 40, v{HPA}")
    lwait(a, T, T + 1, 1, 1, 16)
    a("s_waitcnt vmcnt(0)")
    a(f"v_mov_b32 v{T}, 2")
    ladd(a, HPA, T, 32)
    a(f"{st(7)}\ns_mov_b32 s26, {Y_OFF}\ns_mov_b32 s27, {G_OFF}\nbuffer_load_dword v{G}, v{VG}, s[28:31], s27 offen sc1")
    for j in range(6):
        a(f"buffer_load_dwordx4 {vr(ZL+4*j,4)}, v{VZ}, s[28:31], s26 offen sc1\ns_add_u32 s26, s26, {2*ZP}")
    BF, OFR, ACC, YG = 0, 100, 120, 140
    VY2, G2 = 162, 167
    a(f"""
    s_waitcnt vmcnt(0)
    s_cmp_ge_u32 s20, 4
    s_cbranch_scc1 H_DESC
    """)
    for k in range(10): a(f"v_perm_b32 v{YG+10+k}, v{ZL+2*k+1}, v{ZL+2*k}, v{SH}")
    a("s_branch H_UNP\nH_DESC:")
    for k in range(10): a(f"v_perm_b32 v{YG+10+k}, v{ZL+19-2*k}, v{ZL+20-2*k}, v{SH}")
    a("H_UNP:")
    lwait(a, HPA, 8, 0xf, 8)
    a(f"""
    {st(8)}
    s_mov_b32 s41, s16
    s_mov_b32 s47, 0
P3_GO:
    s_setprio {opt('p3o', 0)}
    s_lshl_b32 s22, s17, 3
    s_and_b32 s23, s18, 3
    s_add_u32 s22, s22, s23
    s_lshl_b32 s22, s22, 1
    s_add_u32 s22, s22, s47
    s_mul_i32 s22, s22, 20480
    s_add_u32 s22, s22, {OF_OFF}
    s_lshl_b32 s44, s41, 12
    s_add_u32 s44, s44, s22
    s_lshl_b32 s45, s41, 10
    s_add_u32 s45, s45, s22
    s_add_u32 s45, s45, 16384
    s_lshl_b32 s46, s47, 2
    s_add_u32 s40, s46, {LFB + 80}
    s_add_u32 s46, s46, s41
    s_mul_i32 s46, s46, 5120
    s_add_u32 s46, s46, {WOL}
    s_mov_b32 s26, 0
    s_mov_b32 s42, 0
    v_mov_b32 v{CM}, {LFB + 32}
    """)
    lwait(a, CM, CT, 1, 8)
    a("P3_TRY:")
    for k in range(4):
        a(f"buffer_load_dwordx4 {vr(OFR+4*k,4)}, v{VA}, s[28:31], s44 offen offset:{1024*k} sc1")
    a(f"buffer_load_dwordx2 {vr(OFR+16,2)}, v{VT}, s[28:31], s45 offen sc1\nbuffer_load_dwordx2 {vr(OFR+18,2)}, v{VT}, s[28:31], s45 offen offset:128 sc1")
    a(f"""
    s_cmp_lg_u32 s26, 0
    s_cbranch_scc1 P3_CHK
    s_add_u32 s23, s41, 1
    s_and_b32 s23, s23, 3
    s_mul_i32 s23, s23, 25600
    s_add_u32 s23, s23, {WOL}
    v_add_u32 v{CM}, s23, v{BMM}
    v_add_u32 v{CT}, s23, v{BMT}
    """)
    for n in range(25):
        k, t = divmod(n, 5); d = BF + 4 * n
        bb, o, dj = (CM, k * 6400 + t * 8, 1280) if k < 4 else (CT, t * 8, 3200)
        a(f"ds_read_b64_tr_b16 {vr(d,2)}, v{bb} offset:{o}\nds_read_b64_tr_b16 {vr(d+2,2)}, v{bb} offset:{o+dj}")
    a(f"v_mov_b32 v{BMM}, {LFB + 36}\nv_mov_b32 v{BMT}, 1\ns_waitcnt lgkmcnt(0)")
    ladd(a, BMM, BMT, 0)
    b = OFR
    def mfs(k): return "\n".join(f"v_mfma_f32_16x16x32_bf16 {vr(ACC+4*t,4)}, {vr(BF+4*(5*k+t),4)}, {vr(OFR+4*k,4)}, {vr(ACC+4*t,4) if k else 0}" for t in range(5))
    if opt("spec", 1):
        a("P3_CHK:\ns_add_u32 s26, s26, 1\ns_mov_b32 s43, -1")
        for k in range(5):
            r = b + 4 * k
            a(f"""P3_C{k}:
            s_waitcnt vmcnt({max(0, 5 - k) if k < 4 else 0})
            v_max3_u32 v{CM}, v{r}, v{r+1}, v{r+2}
            v_max3_u32 v{CM}, v{r+3}, v{CM}, 1
            v_cmp_eq_u32 vcc, s43, v{CM}
            s_cbranch_vccnz P3_B{k}
            {mfs(k)}""")
        a(f"{'' if opt('fst', 0) else st(11)}\ns_branch P3_OK")
        for k in range(5):
            a(f"P3_B{k}:\ns_sleep {opt('p3s', 4)}")
            for kk in range(k, 4):
                a(f"buffer_load_dwordx4 {vr(OFR+4*kk,4)}, v{VA}, s[28:31], s44 offen offset:{1024*kk} sc1")
            a(f"buffer_load_dwordx2 {vr(OFR+16,2)}, v{VT}, s[28:31], s45 offen sc1\nbuffer_load_dwordx2 {vr(OFR+18,2)}, v{VT}, s[28:31], s45 offen offset:128 sc1")
            a(f"s_add_u32 s26, s26, 1\ns_cmp_lt_u32 s26, 0x40000\ns_cselect_b32 s43, -1, 0\ns_branch P3_C{k}")
        a("P3_OK:")
    else:
        a(f"P3_CHK:\ns_add_u32 s26, s26, 1\ns_waitcnt vmcnt(4)\nv_max3_u32 v{CM}, v{b}, v{b+1}, v{b+2}\nv_max3_u32 v{CT}, v{b+3}, v{b+4}, v{b+5}\nv_max3_u32 v{CM}, v{b+6}, v{b+7}, v{CM}\ns_waitcnt vmcnt(2)")
        a(f"v_max3_u32 v{CT}, v{b+8}, v{b+9}, v{CT}\nv_max3_u32 v{CM}, v{b+10}, v{b+11}, v{CM}\nv_max3_u32 v{CT}, v{b+12}, v{b+13}, v{CT}\nv_max3_u32 v{CM}, v{b+14}, v{b+15}, v{CM}\ns_waitcnt vmcnt(0)")
        a(f"""
    v_max3_u32 v{CT}, v{b+16}, v{b+17}, v{CT}
    v_max3_u32 v{CM}, v{b+18}, v{b+19}, v{CM}
    s_cmp_lt_u32 s26, 0x40000
    v_max_u32 v{CM}, v{CM}, v{CT}
    s_cbranch_scc0 P3_OK
    v_cmp_eq_u32 vcc, -1, v{CM}
    s_cbranch_vccz P3_OK
    s_sleep {opt("p3s", 4)}
    s_branch P3_TRY
P3_OK:
    {'' if opt('fst', 0) else st(11)}
    s_setprio {opt('p3p', 0)}
    """)
        for n in range(25):
            k, t = divmod(n, 5)
            a(f"v_mfma_f32_16x16x32_bf16 {vr(ACC+4*t,4)}, {vr(BF+4*n,4)}, {vr(OFR+4*k,4)}, {vr(ACC+4*t,4) if k else 0}")
    a("s_cmp_lg_u32 s42, 0\ns_cbranch_scc1 P3_WR")
    lwait(a, BMM, CT, 1, 8, 2)
    a(f"{str() if opt('fst', 0) else st(12)}\nP3_WR:\nv_add_u32 v{CM}, s46, v{VA}\nv_mov_b32 v{CT}, s40\ns_nop 1")
    for j in range(5): a(f"ds_write_b128 v{CM}, {vr(ACC+4*j,4)} offset:{1024*j}")
    a("s_waitcnt lgkmcnt(0)")
    ladd(a, CT, BMT, 0)
    a(f"""
    s_add_u32 s44, s44, {8*20480}
    s_add_u32 s45, s45, {8*20480}
    s_add_u32 s46, s46, {8*5120}
    s_add_u32 s40, s40, 8
    s_add_u32 s42, s42, 1
    s_cmp_ge_u32 s42, 2
    s_cbranch_scc1 P3_END
    s_cmp_ge_u32 s16, 4
    s_cbranch_scc1 P3_TRY
    """)
    for k in range(10): a(f"v_lshlrev_b32 v{YG+2*k}, 16, v{YG+10+k}\nv_and_b32 v{YG+2*k+1}, 0xffff0000, v{YG+10+k}")
    for k in range(20): a(f"v_mul_f32 v{YG+k}, v{YG+k}, v{G2}")
    a(f"""
    v_sub_f32 v{G2}, 1.0, v{G2}
    s_branch P3_TRY
P3_END:
    {st(10)}
    s_cmp_ge_u32 s16, 4
    s_cbranch_scc1 {"L_DONE" if STAMP else "L_END"}
    s_setprio 3
    s_lshl_b32 s23, s16, 2
    s_add_u32 s23, s23, {LFB + 80}
    v_mov_b32 v{CT}, s23
    s_mul_i32 s23, s16, 20480
    s_add_u32 s23, s23, {WOL}
    v_add_u32 v{CM}, s23, v{VA}
    """)
    lwait(a, CT, BMM, 1, 4, 1)
    a(st(9))
    for j in range(5):
        for g in range(4): a(f"ds_read_b128 {vr(16*j+4*g,4)}, v{CM} offset:{5120*g+1024*j}")
    for j in range(5):
        a(f"s_waitcnt lgkmcnt({min(15, 16-4*j)})")
        for r in (0, 2): a(f"v_pk_add_f32 {vr(16*j+r,2)}, {vr(16*j+r,2)}, {vr(16*j+4+r,2)}\nv_pk_add_f32 {vr(16*j+8+r,2)}, {vr(16*j+8+r,2)}, {vr(16*j+12+r,2)}")
        for r in (0, 2): a(f"v_pk_add_f32 {vr(16*j+r,2)}, {vr(16*j+r,2)}, {vr(16*j+8+r,2)}")
        for r in range(4): a(f"v_fmac_f32 v{YG+4*j+r}, v{16*j+r}, v{G2}")
        a(f"v_cvt_pk_bf16_f32 v{84+2*j}, v{YG+4*j}, v{YG+4*j+1}\nv_cvt_pk_bf16_f32 v{84+2*j+1}, v{YG+4*j+2}, v{YG+4*j+3}")
        if j == 1: a(f"buffer_store_dwordx4 v[84:87], v{VY2}, s[36:39], 0 offen" + OSC)
        if j == 3: a(f"buffer_store_dwordx4 v[88:91], v{VY2}, s[36:39], 0 offen offset:16" + OSC)
    a(f"buffer_store_dwordx2 v[92:93], v{VY2}, s[36:39], 0 offen offset:32" + OSC)

DOC = """;
"""
def main():
    a = A()
    top = open("cdna_kernels/" + NAME + ".s.ref").read().split("; Override launch")[0]
    top += "; @launch grid=(256,1,1) block=(768,1,1) lds=163840\n"
    top += DOC
    a('.amdgcn_target "amdgcn-amd-amdhsa--gfx950"\n.text')
    d = gen(a)
    open(sys.argv[1], "w").write(top + a.text() + '.section .rodata,"a"\n.p2align 6\n' + d)
if __name__ == "__main__":
    main()
```

```python
import sys, math, struct

OPT = dict(x.split("=") for x in sys.argv[2:])
def opt(k, d): return int(OPT.get(k, d))
NAME = "gated_mix__spectral_fnet__softmax_full_mha__prompt"
HS = 163840
KV_OFF = 0
HG = HS + opt('pad', 512)
HQ = 81920 + opt('pad', 512)
Q_OFF = 32 * HG
FE_OFF = Q_OFF + 32 * HQ
FO_DELTA = 655360
X512_OFF = FE_OFF + 2 * FO_DELTA
TB_OFF = X512_OFF + 4096
Y_OFF = TB_OFF + 33 * 65536
ZP = 8704
G_OFF = Y_OFF + 85 * 2 * ZP
OF_OFF = G_OFF + 8192
FLG_OFF = OF_OFF + 2621440
WS_USED = FLG_OFF + 320 * 128
XB = 102400
L_Y = 256
QLDS = 71680
RB0, RSL = 11264, 36864
LFB = 158720
WOL = 5120
AK1, AK2, AV, BK1, BK2, BV, OA1, OA2, ONES, PA, FA = range(152, 163)
VA, VT, BMM, BMT, CM, CT = 163, 164, 165, 166, 160, 161
PXB = 107520
def p3_addr(l):
    return f"""v_lshlrev_b32 v{VA}, 4, v{l}
    v_and_b32 v2, 7, v{l}
    v_bfe_u32 v4, v{l}, 3, 1
    v_lshrrev_b32 v3, 4, v{l}
    v_lshlrev_b32 v{VT}, 8, v3
    v_lshl_add_u32 v{VT}, v2, 4, v{VT}
    v_lshl_add_u32 v{VT}, v4, 3, v{VT}
    v_bfe_u32 v2, v{l}, 2, 2
    v_and_b32 v5, 3, v{l}
    v_mul_u32_u24 v5, 40, v5
    v_mul_u32_u24 v4, 40, v3
    v_add3_u32 v4, v4, v2, 16
    v_mul_u32_u24 v4, 160, v4
    v_add_u32 v{BMT}, v4, v5
    v_lshrrev_b32 v4, 1, v3
    v_mul_u32_u24 v4, 20, v4
    v_and_b32 v3, 1, v3
    v_lshl_add_u32 v4, v3, 2, v4
    v_add_u32 v4, v4, v2
    v_mul_u32_u24 v4, 160, v4
    v_add_u32 v{BMM}, v4, v5"""

def f32bits(x): return struct.unpack("<I", struct.pack("<f", x))[0]
QSCALE = f32bits((20 ** -0.5) * math.log2(math.e))
STAMP = opt("stamp", 0)
STAMP_OFF = 1 << 25
NST = 16

class A:
    def __init__(self): self.l = []; self.n = 0
    def __call__(self, s):
        for line in s.split("\n"):
            t = line.strip()
            if not t: continue
            self.l.append(t if t.endswith(":") or t.startswith(".") else "    " + t)
    def uid(self): self.n += 1; return self.n
    def text(self): return "\n".join(self.l) + "\n"

def vr(a, n): return f"v[{a}:{a+n-1}]" if n > 1 else f"v{a}"
def srd(lo, base, size):
    return f"s_mov_b32 s{lo}, s{base}\ns_mov_b32 s{lo+1}, s{base+1}\ns_mov_b32 s{lo+2}, {size}\ns_mov_b32 s{lo+3}, 0x20000"
OSC = " sc1" if opt("outsc1", 0) else ""
ALN = (f".p2align {opt('al', 0)}" if opt("al", 0) else "") + ("\ns_nop 0" if opt("al4", 0) else "")
ALN2 = f".p2align {opt('al2', 0)}" if opt("al2", 0) else ""
P1ST = opt("p1st", 0)
def st(i, p1=False):
    if not STAMP: return ""
    if P1ST and not p1 and 0 < i < 15 and i not in (4, 5): return ""
    if P1ST and not p1 and i in (4, 5): i += 8
    if p1 and not P1ST: return ""
    return f"{'s_memrealtime' if STAMP in (1, 3, 4) else 's_memtime'} s[{64+2*i}:{65+2*i}]"
def fin(): return "s_branch L_DONE" if STAMP else "s_endpgm"

X_P, WD_P, WQKV_P, WO_P, GATE_P, OUT_P, DBG_P, WS_P = 4, 8, 48, 50, 52, 54, 56, 58

def poll(a, vaddr, vdat, mask, target, sreg=60):
    u = a.uid()
    a(f"""
    s_mov_b64 exec, {mask}
    s_mov_b32 s{sreg}, 0
L_POLL{u}:
    buffer_load_dword v{vdat}, v{vaddr}, s[28:31], 0 offen sc1
    s_waitcnt vmcnt(0)
    v_cmp_gt_u32 vcc, {target}, v{vdat}
    s_cbranch_vccz L_POLLD{u}
    {'s_sleep 1' if opt('psleep', 0) else ''}
    s_add_u32 s{sreg}, s{sreg}, 1
    s_cmp_lt_u32 s{sreg}, 0x40000
    s_cbranch_scc1 L_POLL{u}
L_POLLD{u}:
    s_mov_b64 exec, -1
    """)

def poll4(a, vaddr, vdat, mask, soff="0", sreg=60, slp=None):
    u = a.uid()
    a(f"""
    s_mov_b64 exec, {mask}
    s_mov_b32 s{sreg}, 0
    s_branch L_POLLE{u}
L_POLL{u}:
    s_sleep {slp or opt("ps4", 2)}
L_POLLE{u}:
    buffer_load_dwordx4 {vr(vdat,4)}, v{vaddr}, s[28:31], {soff} offen sc1
    s_add_u32 s{sreg}, s{sreg}, 1
    s_waitcnt vmcnt(0)
    v_min3_u32 v{vdat}, v{vdat}, v{vdat+1}, v{vdat+2}
    s_cmp_lt_u32 s{sreg}, 0x40000
    v_min_u32 v{vdat}, v{vdat}, v{vdat+3}
    s_cbranch_scc0 L_POLLD{u}
    v_cmp_eq_u32 vcc, 0, v{vdat}
    s_cbranch_vccnz L_POLL{u}
L_POLLD{u}:
    s_mov_b64 exec, -1
    """)

def gen(a):
    label = NAME + "_kernel"
    a(f".p2align 8\n.globl {label}\n.type {label},@function\n{label}:")
    a(f"""
    s_cmp_ge_u32 s2, 256
    s_cbranch_scc1 L_END
    {st(0) + chr(10) + 's_waitcnt lgkmcnt(0)' if opt("st0first", 0) else ''}
    s_load_dwordx2 s[4:5], s[0:1], 0
    s_load_dwordx8 s[48:55], s[0:1], 48
    s_load_dwordx4 s[8:11], s[0:1], 24
    s_load_dwordx4 s[56:59], s[0:1], 80
    """)
    if STAMP:
        a("\n".join(f"s_mov_b32 s{64+j}, 0" for j in range(2, 2 * NST)) + "\n" + ("" if opt("st0first", 0) else st(0)))
    a(f"""
    v_lshrrev_b32 v1, 6, v0
    v_and_b32 v0, 63, v0
    s_and_b32 s17, s2, 7
    v_readfirstlane_b32 s16, v1
    s_lshr_b32 s18, s2, 3
    s_and_b32 s19, s18, 7
    s_lshr_b32 s22, s18, 3
    s_and_b32 s21, s17, 1
    s_lshl_b32 s23, s19, 1
    s_add_u32 s21, s21, s23
    s_lshr_b32 s20, s17, 1
    s_cmp_ge_u32 s19, {opt("numl", 4)}
    s_cselect_b32 s12, 1, 0
    s_cmp_eq_u32 s22, 0
    s_cselect_b32 s12, 0, s12
    s_cmp_ge_u32 s16, 4
    s_cbranch_scc1 P1_NOTLOADER
    """)
    p1_loader(a)
    a(f"""
P1_NOTLOADER:
    s_lshl_b32 s63, s17, 2
    s_add_u32 s63, s63, s22
    s_mul_i32 s14, s63, {HG}
    s_sub_u32 s13, s16, 4
    s_lshl_b32 s23, s19, 3
    s_add_u32 s23, s23, s13
    s_mul_i32 s23, s23, 40960
    s_add_u32 s23, s23, {OF_OFF}
    s_lshl_b32 s6, s63, 9
    s_add_u32 s6, s6, s23
    s_lshl_b32 s7, s63, 7
    s_add_u32 s7, s7, s23
    s_add_u32 s7, s7, 16384
    s_lshl_b32 s15, s20, 2
    s_add_u32 s15, s15, s22
    s_lshl_b32 s15, s15, 4
    s_add_u32 s15, s15, s21
    s_lshl_b32 s15, s15, 5
    s_add_u32 s15, s15, s13
    s_lshl_b32 s15, s15, 2
    s_add_u32 s15, s15, {FLG_OFF}
    v_and_b32 v1, 31, v0
    v_lshrrev_b32 v2, 5, v0
    v_lshlrev_b32 v{AK1}, 4, v0
    v_lshrrev_b32 v3, 4, v1
    v_lshl_add_u32 v3, v3, 1, v2
    v_and_b32 v4, 15, v0
    v_lshl_add_u32 v3, v4, 2, v3
    v_lshlrev_b32 v{AK2}, 2, v3
    v_mul_u32_u24 v{AV}, 384, v2
    v_lshlrev_b32 v3, 6, v2
    v_cmp_gt_u32 vcc, 16, v1
    s_nop 1
    v_cndmask_b32 v{AV}, v3, v{AV}, vcc
    v_lshl_add_u32 v{AV}, v1, 4, v{AV}
    v_add_u32 v{BK1}, 15360, v{AK1}
    v_add_u32 v{BK2}, 15360, v{AK2}
    v_add_u32 v{BV}, 15360, v{AV}
    v_and_b32 v3, 27, v1
    v_cmp_eq_u32 vcc, 24, v3
    v_mov_b32 v3, 0x3f803f80
    v_bfe_u32 v{OA2}, v1, 3, 1
    v_cndmask_b32 v{ONES}, 0, v3, vcc
    v_mul_u32_u24 v{OA2}, 20480, v{OA2}
    v_and_b32 v3, 7, v1
    v_lshl_add_u32 v{OA2}, v3, 4, v{OA2}
    v_lshrrev_b32 v3, 4, v0
    v_lshl_add_u32 v{OA1}, v3, 7, v{OA2}
    s_lshl_b32 s23, s13, 2
    s_add_u32 s23, s23, {LFB}
    v_mov_b32 v{PA}, s23
    v_mov_b32 v{FA}, {LFB + 56}
    {p3_addr(0)}
    s_cmp_ge_u32 s16, 8
    s_cbranch_scc1 P1_EXTRA
    """)
    p1_compute(a)
    p1_extra(a)
    attention(a)
    helpers(a)
    a("L_DONE:")
    if STAMP == 4:
        i_, j_ = opt("ai", 0), opt("aj", 0)
        a(f"""s_waitcnt vmcnt(0)
        {st(NST-1)}
        s_waitcnt lgkmcnt(0)
        {f's_cmp_lg_u32 s16, {opt("aw1", 0)}' if opt("aw1", 0) else f's_cmp_ge_u32 s16, {opt("aw", 4)}'}
        s_cbranch_scc1 L_END
        s_and_b32 s60, s2, {opt("am", 31)}
        s_cmp_lg_u32 s60, {opt("av", 5)}
        s_cbranch_scc1 L_END
        s_sub_u32 s60, s{64+2*j_}, s{64+2*i_}
        s_lshl_b32 s60, s60, 2
        s_min_u32 s60, s60, 100000
        {f's_mov_b32 s60, {opt("fix", 0)}' if opt("fix", 0) else ''}
L_AMP:
        s_memrealtime s[44:45]
        s_waitcnt lgkmcnt(0)
        s_sub_u32 s44, s44, s{64 if opt("fix", 0) else 64+2*(NST-1)}
        s_cmp_lt_u32 s44, s60
        s_cbranch_scc1 L_AMP
        """)
    elif STAMP == 3:
        r = f"s_waitcnt vmcnt(0)\n{st(NST-1)}\ns_mov_b64 exec, 1\n{srd(44, DBG_P, 256)}\ns_waitcnt lgkmcnt(0)\nv_mov_b32 v16, 0\n"
        r += "s_not_b32 s60, s64\nv_mov_b32 v0, s60\nbuffer_atomic_umax v0, v16, s[44:47], 0 offen offset:4 sc1\n"
        r += "s_cmp_eq_u32 s16, 0\ns_cbranch_scc1 L_D0\ns_cmp_eq_u32 s16, 4\ns_cbranch_scc0 L_END\n"
        for n, i in enumerate((2, 3, 4, 5, 7, 8, 9)): r += f"v_mov_b32 v{n+1}, s{64+2*i}\nbuffer_atomic_umax v{n+1}, v16, s[44:47], 0 offen offset:{8+4*n} sc1\n"
        r += "s_endpgm\nL_D0:\n"
        for n, i in enumerate((0, 1, 6, 8, 9, 10, 15)): r += f"v_mov_b32 v{n+1}, s{64+2*i}\nbuffer_atomic_umax v{n+1}, v16, s[44:47], 0 offen offset:{36+4*n} sc1\n"
        a(r)
    elif STAMP:
        r = f"s_waitcnt vmcnt(0)\n{st(NST-1)}\ns_mov_b64 exec, 1\ns_add_u32 s44, s{WS_P}, {STAMP_OFF}\ns_addc_u32 s45, s{WS_P+1}, 0\ns_mov_b32 s46, 262144\ns_mov_b32 s47, 0x20000\n"
        r += "s_lshl_b32 s60, s2, 4\ns_add_u32 s60, s60, s16\ns_lshl_b32 s60, s60, 6\ns_waitcnt lgkmcnt(0)\nv_mov_b32 v16, 0\n"
        if opt("xcc", 0): r += "s_getreg_b32 s66, hwreg(HW_REG_XCC_ID)\ns_add_u32 s66, s66, 100\n"
        for i in range(NST): r += f"v_mov_b32 v{i}, s{64+2*i}\n"
        for i in range(4): r += f"buffer_store_dwordx4 v[{4*i}:{4*i+3}], v16, s[44:47], s60 offen offset:{16*i}\n"
        a(r)
    a("L_END:\ns_endpgm\n.fill 256, 4, 0xbf810000\nL_CODE_END:")
    return f""".amdhsa_kernel {label}
  .amdhsa_next_free_vgpr 168
  .amdhsa_next_free_sgpr {100 if STAMP else 64}
  .amdhsa_accum_offset 168
  .amdhsa_group_segment_fixed_size 0
  .amdhsa_kernarg_size 96
  .amdhsa_user_sgpr_count 2
  .amdhsa_user_sgpr_kernarg_segment_ptr 1
  .amdhsa_system_sgpr_workgroup_id_x 1
.end_amdhsa_kernel
"""

def p1_loader(a):
    a(f"""
    s_setprio 3
    """)
    if opt("pf", 0):
        a(f"""
        v_lshlrev_b32 v20, 4, v0
        s_mul_i32 s23, s2, 10240
        s_and_b32 s24, s16, 1
        s_mul_i32 s24, s24, 5120
        s_add_u32 s23, s23, s24
        s_mul_i32 s25, s2, 3
        s_mov_b32 s31, 0x20000
        s_mov_b32 s35, 0x20000
        s_mov_b32 s34, {640*1280}
        s_waitcnt lgkmcnt(0)
        s_mov_b32 s30, {2048*1280}
        s_cmp_lt_u32 s16, 2
        s_cselect_b32 s28, s{X_P}, s{WQKV_P}
        s_cselect_b32 s29, s{X_P+1}, s{WQKV_P+1}
        s_cselect_b32 s30, s30, {640*3840}
        s_cselect_b32 s32, s8, s10
        s_cselect_b32 s33, s9, s11
        buffer_load_dwordx4 v[24:27], v20, s[28:31], s23 offen
        buffer_load_dwordx4 v[28:31], v20, s[28:31], s23 offen offset:1024
        buffer_load_dwordx4 v[32:35], v20, s[28:31], s23 offen offset:2048
        buffer_load_dwordx4 v[36:39], v20, s[28:31], s23 offen offset:3072
        s_add_u32 s23, s23, 4096
        buffer_load_dwordx4 v[40:43], v20, s[28:31], s23 offen
        s_lshr_b32 s24, s24, 11
        s_add_u32 s25, s25, s24
        s_mul_i32 s25, s25, 1280
        s_mov_b32 exec_hi, 0xff
        buffer_load_dwordx4 v[44:47], v20, s[32:35], s25 offen
        s_bitcmp1_b32 s16, 0
        s_cbranch_scc1 P1_PF1
        buffer_load_dwordx4 v[48:51], v20, s[32:35], s25 offen offset:1280
P1_PF1:
        s_mov_b32 exec_hi, -1
        """)
    a(f"""
    v_lshrrev_b32 v2, 3, v0
    v_and_b32 v3, 7, v0
    v_lshrrev_b32 v4, 4, v0
    v_xor_b32 v3, v3, v4
    v_lshlrev_b32 v3, 4, v3
    v_xor_b32 v4, 64, v3
    s_lshl_b32 s23, s21, 5
    s_lshr_b32 s24, s16, 1
    s_lshl_b32 s24, s24, 4
    s_add_u32 s23, s23, s24
    s_cmp_eq_u32 s22, 2
    s_cselect_b32 s25, 4, 0
    v_and_b32 v9, s25, v2
    v_add3_u32 v9, v9, v2, s23
    s_sub_u32 s25, 8, s25
    s_bitcmp1_b32 s16, 0
    s_cselect_b32 s23, -1, 1
    s_cselect_b32 s24, 0x400, 0
    s_mul_i32 s25, s25, s23
    v_mul_lo_u32 v10, v9, s23
    s_sub_u32 s27, 0x800, s24
    v_add_u32 v5, s24, v10
    v_sub_u32 v7, s27, v10
    v_add_u32 v6, s25, v5
    v_subrev_u32 v8, s25, v7
    v_cmp_eq_u32 vcc, 0, v9
    s_add_u32 s24, s24, 0x200
    v_mov_b32 v9, s24
    s_cmp_lg_u32 s22, 2
    v_cndmask_b32 v7, v7, v9, vcc
    s_cbranch_scc1 P1_LD_NV
    v_swap_b32 v6, v7
P1_LD_NV:
    s_movk_i32 s27, 1280
    v_mad_u32_u24 v10, v5, s27, v3
    v_mad_u32_u24 v11, v6, s27, v4
    v_mad_u32_u24 v12, v7, s27, v3
    v_mad_u32_u24 v13, v8, s27, v4
    """)
    EX = opt("early", 1) and opt("stag1", 7) == 7
    if EX:
        a(f"""
        s_lshr_b32 s36, s17, 1
        s_xor_b32 s36, s36, s17
        s_and_b32 s36, s36, 1
        s_xor_b32 s36, s36, 9
        s_lshl_b32 s41, s36, 7
        s_lshl_b32 s44, s16, 12
        s_add_u32 m0, s44, {RB0 + 2 * RSL}
        s_waitcnt lgkmcnt(0)
        {srd(28, X_P, 2048*1280)}
        buffer_load_dwordx4 v10, s[28:31], s41 offen lds
        """)
        for i in range(1, 4):
            a(f"s_add_u32 m0, s44, {RB0 + 2 * RSL + 1024*i}\ns_nop 0\nbuffer_load_dwordx4 v{10+i}, s[28:31], s41 offen lds")
    a(f"""
    s_lshl_b32 s26, s22, 2
    s_add_u32 s26, s26, s20
    s_and_b32 s27, s20, 1
    s_movk_i32 s25, 3840
    s_cmp_eq_u32 s22, 3
    s_cselect_b32 s25, 1280, s25
    s_cselect_b32 s26, s27, s26
    s_mul_i32 s26, s26, 320
    s_lshl_b32 s27, s16, 4
    s_mul_i32 s27, s27, s25
    s_add_u32 s26, s26, s27
    s_sub_u32 s27, s25, 320
    """)
    for i in range(5):
        a(f"""
        v_add_u32 v5, {64*i}, v0
        v_mul_u32_u24 v6, 3277, v5
        v_lshrrev_b32 v6, 16, v6
        v_lshrrev_b32 v7, 2, v6
        v_and_b32 v7, 2, v7
        v_xor_b32 v5, v5, v7
        v_lshl_add_u32 v5, v5, 4, s26
        v_mad_u32_u24 v{14+i}, v6, s27, v5
        """)
    sg = opt("stag1", 7)
    if sg == 1:
        a("s_lshl_b32 s36, s19, 3\ns_lshl_b32 s37, s22, 4\ns_add_u32 s36, s36, s37\ns_add_u32 s36, s36, s17\ns_and_b32 s36, s36, 63\ns_mul_i32 s36, s36, 10\ns_lshr_b32 s36, s36, 6")
    elif sg == 2:
        a("s_add_u32 s36, s19, s22\ns_lshl_b32 s36, s36, 4\ns_add_u32 s36, s36, s17\ns_add_u32 s36, s36, s17\ns_and_b32 s36, s36, 63\ns_mul_i32 s36, s36, 10\ns_lshr_b32 s36, s36, 6")
    elif sg == 3:
        a("s_add_u32 s36, s19, s22\ns_lshl_b32 s36, s36, 5\ns_lshl_b32 s37, s17, 2\ns_add_u32 s36, s36, s37\ns_and_b32 s36, s36, 63\ns_mul_i32 s36, s36, 10\ns_lshr_b32 s36, s36, 6")
    elif sg >= 10:
        nc = sg - 9
        Gn = 5 - nc
        rot = [2 * (nc + k % Gn) for k in range(2 * Gn - 1)]
        rv = sum(v << (4 * k) for k, v in enumerate(rot))
        com = sum((2 * k) << (4 * k) for k in range(nc))
        a(f"""
        s_lshr_b32 s36, s17, 1
        s_xor_b32 s36, s36, s17
        s_and_b32 s36, s36, 1
        s_add_u32 s37, s22, s19
        s_lshr_b32 s46, s17, 2
        s_lshl_b32 s46, s46, {opt("xsh", 1)}
        s_add_u32 s37, s37, s46
        s_mul_i32 s46, s37, {256 // Gn + 1}
        s_lshr_b32 s46, s46, 8
        s_mul_i32 s46, s46, {Gn}
        s_sub_u32 s37, s37, s46
        s_lshl_b32 s37, s37, 2
        s_lshr_b32 s46, {rv:#x}, s37
        s_and_b32 s46, s46, {(1 << (4 * Gn)) - 1:#x}
        s_lshl_b32 s46, s46, {4 * nc}
        s_or_b32 s46, s46, {0x53100000 | com:#x}
        s_mov_b32 s47, 0x97
        s_mul_i32 s37, s36, 0x11111111
        s_xor_b32 s46, s46, s37
        s_xor_b32 s47, s47, s37
        s_and_b32 s36, s46, 15
        """)
    elif sg >= 5:
        tsh = {5: 0, 6: 1, 7: 0, 8: 0, 9: 0}[sg]
        a(f"""
        s_lshr_b32 s36, s17, 1
        s_xor_b32 s36, s36, s17
        s_and_b32 s36, s36, 1
        {'s_min_u32 s37, s22, 2' if sg == 9 else f's_lshr_b32 s37, s22, {tsh}'}
        s_add_u32 s37, s37, s19
        s_lshr_b32 s46, s17, 2
        s_lshl_b32 s46, s46, 1
        s_add_u32 s37, s37, s46
        s_mul_i32 s46, s37, 52
        s_lshr_b32 s46, s46, 8
        s_mul_i32 s46, s46, 5
        s_sub_u32 s37, s37, s46
        s_lshl_b32 s37, s37, 2
        s_mov_b32 s46, 0x42086420
        s_mov_b32 s47, 0x6
        s_lshr_b64 s[46:47], s[46:47], s37
        s_and_b32 s46, s46, 0xfffff
        {'s_or_b32 s47, s46, 0x11111' + chr(10) + 's_lshl_b32 s37, s47, 20' + chr(10) + 's_or_b32 s46, s46, s37' + chr(10) + 's_lshr_b32 s47, s47, 12' if sg == 8 else 's_or_b32 s46, s46, 0x53100000' + chr(10) + 's_mov_b32 s47, 0x97'}
        s_mul_i32 s37, s36, 0x11111111
        s_xor_b32 s46, s46, s37
        s_xor_b32 s47, s47, s37
        """)
        if sg == 7:
            a("s_lshr_b32 s37, s47, 4\ns_and_b32 s37, s37, 15\ns_lshl_b64 s[46:47], s[46:47], 4\ns_or_b32 s46, s46, s37")
        a("s_and_b32 s36, s46, 15")
    else:
        a("s_mov_b32 s36, 0")
    a(f"""
    s_lshl_b32 s38, s16, 12
    s_add_u32 s38, s38, {RB0}
    s_mul_i32 s39, s16, 5120
    s_add_u32 s39, s39, {RB0 + 16384}
    s_mov_b32 s40, 0
    s_mul_i32 s34, s25, 640
    s_lshl_b32 s25, s25, 6
    s_mov_b32 s35, 0x20000
    s_waitcnt lgkmcnt(0)
    {srd(28, X_P, 2048*1280)}
    s_cmp_lt_u32 s20, 2
    s_cselect_b32 s32, s8, s10
    s_cselect_b32 s33, s9, s11
    s_cmp_eq_u32 s22, 3
    s_cselect_b32 s32, s32, s{WQKV_P}
    s_cselect_b32 s33, s33, s{WQKV_P+1}
    {st(1)}
    """)
    if opt("dftdelay", 0):
        a(f"""s_cmp_lg_u32 s22, 3
        s_cbranch_scc1 P1_LD_LOOP
        s_memrealtime s[42:43]
        s_waitcnt lgkmcnt(0)
        s_add_u32 s42, s42, {opt("dftdelay", 0)}
P1_DLY:
        s_memrealtime s[44:45]
        s_waitcnt lgkmcnt(0)
        s_cmp_lt_u32 s44, s42
        s_cbranch_scc1 P1_DLY
        """)
    a(f"""
P1_LD_LOOP:
    s_lshl_b32 s41, s36, 7
    s_mul_i32 s42, s36, s25
    s_add_u32 s43, s40, 2
    s_and_b32 s43, s43, 3
    s_mul_i32 s43, s43, {RSL}
    s_add_u32 s44, s43, s38
    s_add_u32 s45, s43, s39
    """)
    if EX: a("s_cmp_eq_u32 s40, 0\ns_cbranch_scc1 P1_LD_WW")
    for i in range(4):
        a(f"s_add_u32 m0, s44, {1024*i}\ns_nop 0\nbuffer_load_dwordx4 v{10+i}, s[28:31], s41 offen lds")
    a("P1_LD_WW:")
    for i in range(5):
        a(f"s_add_u32 m0, s45, {1024*i}\ns_nop 0\nbuffer_load_dwordx4 v{14+i}, s[32:35], s42 offen lds")
    if opt("noload", 0): a("s_cmp_ge_u32 s40, 3\ns_cselect_b32 s30, 0, s30\ns_cselect_b32 s34, 0, s34")
    a(f"""
    {'s_lshr_b64 s[46:47], s[46:47], 4' + chr(10) + 's_and_b32 s36, s46, 15' if sg >= 5 else 's_add_u32 s36, s36, 1' + chr(10) + 's_cmp_eq_u32 s36, 10' + chr(10) + 's_cselect_b32 s36, 0, s36'}
    s_add_u32 s40, s40, 1
    s_cmp_eq_u32 s40, 1
    s_cbranch_scc1 P1_LD_LOOP
    s_waitcnt vmcnt(9)
    s_barrier
    s_cmp_lt_u32 s40, 10
    s_cbranch_scc1 P1_LD_LOOP
    s_waitcnt vmcnt(0)
    s_barrier
    s_branch HELPER
    """)

def p1_compute(a):
    X = 80; W = [96, 116]; XA = 136; WA = 137; CX = 142; CW = 144; PC = 149; L = 150; TT = 96
    def acc(b, T): return 20 * b + 4 * T
    a(f"""
    s_sub_u32 s61, s16, 4
    s_and_b32 s36, s61, 1
    s_lshr_b32 s37, s61, 1
    v_mov_b32 v{L}, v0
    v_and_b32 v1, 15, v0
    v_lshrrev_b32 v2, 4, v0
    v_lshrrev_b32 v3, 1, v1
    v_xor_b32 v3, v3, v2
    v_lshlrev_b32 v3, 4, v3
    v_lshl_add_u32 v3, v1, 7, v3
    s_lshl_b32 s23, s36, 13
    s_add_u32 s23, s23, {RB0}
    v_add_u32 v{XA}, s23, v3
    v_bfe_u32 v3, v0, 2, 2
    v_lshl_add_u32 v3, v2, 3, v3
    v_mul_u32_u24 v3, 320, v3
    v_add_u32 v3, {RB0 + 16384}, v3
    v_and_b32 v4, 16, v0
    v_lshlrev_b32 v4, 1, v4
    v_and_b32 v5, 3, v0
    s_mul_i32 s23, s37, 160
    v_lshl_add_u32 v6, v5, 3, s23
    """)
    for T in range(4):
        a(f"v_xor_b32 v7, v6, v4\nv_add_u32 v{WA+T}, v7, v3\nv_add_u32 v6, 40, v6")
    a(f"""
    v_mul_u32_u24 v6, 40, v5
    v_add3_u32 v6, v6, s23, 32
    v_xor_b32 v7, v6, v4
    v_add_u32 v{WA+4}, v7, v3
    v_mov_b32 v{PC}, 0xbf803f80
    s_lshl_b32 s26, s22, 2
    s_add_u32 s26, s26, s20
    s_lshl_b32 s26, s26, 1
    s_add_u32 s26, s26, s37
    s_cmp_eq_u32 s26, 28
    s_cselect_b32 s24, 0x10001, 0
    s_mov_b32 s25, s24
    s_cmp_eq_u32 s22, 3
    s_cselect_b32 s43, 10, 8
    s_mov_b32 s40, 0
    s_mov_b32 s42, {2 * RSL}
    """)
    for r in range(96): a(f"v_mov_b32 v{r}, 0")
    for r in range(20): a(f"v_mov_b32 v{W[1]+r}, 0")
    a(f"v_add_u32 v{CX}, s42, v{XA}")
    for T in range(5): a(f"v_add_u32 v{CW+T}, s42, v{WA+T}")
    a(f"s_waitcnt lgkmcnt(0)\n{srd(28, WS_P, WS_USED)}")
    a(f"s_setprio {opt('cp', 2)}\ns_cmp_ge_u32 s22, 2\ns_cbranch_scc1 P1_PRE_V")
    def mf(b, T, x, w, qk):
        d = vr(acc(b, T), 4)
        return f"v_mfma_f32_16x16x32_bf16 {d}, {vr(w,4)}, {vr(x,4)}, {d}" if qk else f"v_mfma_f32_16x16x32_bf16 {d}, {vr(x,4)}, {vr(w,4)}, {d}"
    def rdw(d, T, step): return [f"ds_read_b64_tr_b16 {vr(d+2*j,2)}, v{CW+T} offset:{(step // 2) * RSL + (step % 2) * 10240 + 1280 * j}" for j in range(2)]
    def rdx(d, b, step): return f"ds_read_b128 {vr(d,4)}, v{CX + step % 2} offset:{(step // 2) * RSL + 2048 * b}"
    TO = (1, 2, 3, 4, 0)
    def group(step, qk, reads=True, patch=True):
        cur = W[1 - step]; nxt = W[step]
        rq = []
        for T in TO: rq += rdw(nxt + 4 * T, T, step)
        fill = []
        if step == 1:
            fill = ["s_add_u32 s40, s40, 1", "s_add_u32 s41, s40, 2", "s_and_b32 s41, s41, 3", f"s_mul_i32 s42, s41, {RSL}", f"v_add_u32 v{CX}, s42, v{XA}"] + [f"v_add_u32 v{CW+T}, s42, v{WA+T}" for T in range(5)]
        issued = 0
        for b in range(4):
            if reads:
                allow = [2, 15, issued + 1, issued][b]
                if b != 1: a(f"s_waitcnt lgkmcnt({min(15, allow)})")
            elif b == 0: a("s_waitcnt lgkmcnt(0)")
            for n, T in enumerate(TO):
                a(mf(b, T, X + 4 * b, cur + 4 * T, qk))
                if b == 0 and n < 2 and not qk and patch:
                    for j in range(2): a(f"v_cndmask_b32 v{cur+2*n+j}, v{cur+2*n+j}, v{PC}, s[24:25]")
                if not reads: continue
                if step == 0 and b == 0:
                    if n == 0: a(f"v_xor_b32 v{CX+1}, 64, v{CX}")
                    if n == opt("bn", 1): a("s_barrier")
                    if n <= opt("bn", 1): continue
                if n == 4: a(rdx(X + 4 * b, b, step)); issued += 1
                elif rq:
                    a(rq.pop(0)); issued += 1
                    if rq and (opt("rd2", 0) or (step == 0 and b == 1 and n < opt("bn", 1) - 1)): a(rq.pop(0)); issued += 1
                elif fill:
                    a(fill.pop(0))
                    if fill: a(fill.pop(0))
        assert not reads or (not rq and not fill), (rq, fill)

    def tail(qk, epi):
        seq = [(b, T, ("x0", b), ("w0", T)) for b in range(4) for T in TO]
        marks = {}
        win = opt("win", 2)
        for step in range(4 - win):
            for b in range(4):
                for T in TO: seq.append((b, T, ("x", 0, step, b), ("w", step, T)))
        for T in range(5):
            for jj in range(2):
                for step in range(4 - win, 4):
                    for b in (2 * jj, 2 * jj + 1): seq.append((b, T, ("x", 0, step, b), ("w", step, T)))
                marks[len(seq) - 1] = (T, jj)
        last = {}
        for n, (_, _, x, w) in enumerate(seq): last[x] = n; last[w] = n
        loc = {("x0", b): X + 4 * b for b in range(4)}; loc.update({("w0", T): W[1] + 4 * T for T in range(5)})
        free = [W[0] + 4 * k for k in range(5)] + [XA]
        order = []
        for _, _, x, w in seq:
            for f in (w, x):
                if f not in loc and f not in order: order.append(f)
        done_at = {}; nrd = 0; waited = 0; pend = []; fill = []
        cnt = [0]; prev = [0]
        def em(t): a(t); cnt[0] += 1
        a(f"v_xor_b32 v{CX+1}, 64, v{CX}\ns_waitcnt lgkmcnt(0)\ns_barrier")
        bar2 = [True]
        def take():
            f = order.pop(0); loc[f] = free.pop(0)
            if bar2 and (f[1] if f[0] == "w" else f[2]) >= 2: em("s_barrier"); bar2.pop()
            p_ = rdw(loc[f], f[2], f[1]) if f[0] == "w" else [rdx(loc[f], f[3], f[2])]
            done_at[f] = nrd + len(p_)
            return p_
        def gap():
            t, at, after = fill[0]
            return max(at - cnt[0], prev[0] + after - cnt[0], 0)
        def put():
            em(fill.pop(0)[0]); prev[0] = cnt[0]
        for n, (b, T, x, w) in enumerate(seq):
            while any(f not in loc or (f in done_at and done_at[f] > nrd) for f in (x, w)):
                if not pend: pend = take()
                em(pend.pop(0)); nrd += 1
            need = max(done_at.get(x, 0), done_at.get(w, 0))
            if need > waited:
                waited = max(need, nrd - opt("tw", 6)); em(f"s_waitcnt lgkmcnt({nrd - waited})")
            em(mf(b, T, loc[x], loc[w], qk))
            if n in marks: fill += [(t, cnt[0] + 8, after) for t, after in epi(*marks[n])]
            for f in (x, w):
                if last[f] == n: free.append(loc[f])
            if not pend and order and free: pend = take()
            if pend: em(pend.pop(0)); nrd += 1
            for _ in range(2):
                if fill and gap() == 0: put()
        a(st(3))
        while fill:
            g_ = gap()
            if g_: a(f"s_nop {g_ - 1}"); cnt[0] += g_
            put()

    EA, EB = 167, 151
    def cv(d, r): return [f"v_cvt_pk_bf16_f32 v{d}, v{r}, v{r+1}", f"v_cvt_pk_bf16_f32 v{d+1}, v{r+2}, v{r+3}"]
    def epi_qk(ph, jj=0):
        if ph < 0:
            return f"""s_mov_b32 s35, {HG}
            s_movk_i32 s38, 2560
            s_cmp_eq_u32 s22, 0
            s_cselect_b32 s35, {HQ}, s35
            s_cselect_b32 s27, {Q_OFF}, {KV_OFF}
            s_cselect_b32 s38, 1280, s38
            s_lshl_b32 s26, s20, 1
            s_add_u32 s26, s26, s37
            s_lshl_b32 s26, s26, 2
            s_mul_i32 s26, s26, s35
            s_add_u32 s26, s26, s27
            s_lshl_b32 s23, s21, 1
            s_add_u32 s23, s23, s36
            s_lshl_b32 s23, s23, 1
            s_mul_i32 s23, s23, s38
            s_add_u32 s26, s26, s23
            s_add_u32 s27, s26, s38
            v_lshrrev_b32 v{EA}, 4, v{L}
            v_mul_lo_u32 v{EA}, v{EA}, s35
            v_and_b32 v{TT}, 15, v{L}
            v_lshl_add_u32 v{EA}, v{TT}, 4, v{EA}
            v_lshlrev_b32 v{EB}, 4, v{L}
            s_add_u32 s44, s26, s35
            s_add_u32 s45, s27, s35
            s_add_u32 s46, s44, s35
            s_add_u32 s47, s45, s35
            s_add_u32 s32, s46, s35
            s_add_u32 s33, s47, s35""".split("\n")
        T = ph
        r0, r1 = acc(2 * jj, T), acc(2 * jj + 1, T)
        o = [(t, 0) for t in cv(r0, r0) + cv(r0 + 2, r1)]
        if T < 4:
            o += [(f"v_permlane16_swap_b32 v{r0}, v{r0+2}", 1), (f"v_permlane16_swap_b32 v{r0+1}, v{r0+3}", 0)]
            o.append((f"buffer_store_dwordx4 {vr(r0,4)}, v{EB}, s[28:31], s{(26, 44, 46, 32)[T] + jj} offen sc1", 0))
        else:
            o.append((f"buffer_store_dwordx4 {vr(r0,4)}, v{EA}, s[28:31], s{26 + jj} offen offset:1024 sc1", 0))
        return o
    def epi_v(ph, jj=0):
        if ph < 0:
            return f"""s_lshl_b32 s26, s20, 1
            s_add_u32 s26, s26, s37
            s_mul_i32 s26, s26, {4*HG}
            s_lshl_b32 s23, s21, 1
            s_add_u32 s23, s23, s36
            s_mul_i32 s23, s23, 5120
            s_add_u32 s26, s26, s23
            s_add_u32 s26, s26, {KV_OFF + 1280}
            s_add_u32 s44, s26, {HG}
            s_add_u32 s45, s26, {2*HG}
            s_add_u32 s46, s26, {3*HG}
            s_mov_b32 s35, {HG}
            v_lshrrev_b32 v{EA}, 5, v{L}
            v_mul_u32_u24 v{EA}, 640, v{EA}
            v_bfe_u32 v{TT}, v{L}, 4, 1
            v_lshl_add_u32 v{EB}, v{TT}, 6, v{EA}
            v_mul_u32_u24 v{TT}, 384, v{TT}
            v_add_u32 v{EA}, v{EA}, v{TT}
            v_and_b32 v{TT}, 15, v{L}
            v_lshl_add_u32 v{EA}, v{TT}, 4, v{EA}
            v_and_b32 v{TT}, 3, v{L}
            v_lshl_add_u32 v{EB}, v{TT}, 4, v{EB}
            v_bfe_u32 v{TT}, v{L}, 2, 2
            v_mul_lo_u32 v{TT}, v{TT}, s35
            v_add_u32 v{EB}, v{EB}, v{TT}""".split("\n")
        T = ph
        r0, r1 = acc(2 * jj, T), acc(2 * jj + 1, T)
        o = [(t, 0) for t in cv(r0, r0) + cv(r0 + 2, r1)]
        if T < 4: o.append((f"buffer_store_dwordx4 {vr(r0,4)}, v{EA}, s[28:31], s{(26, 44, 45, 46)[T]} offen offset:{2560 * jj} sc1", 0))
        else: o.append((f"buffer_store_dwordx4 {vr(r0,4)}, v{EB}, s[28:31], s26 offen offset:{2560 * jj + 256} sc1", 0))
        return o

    for qk, lab in ((True, "QK"), (False, "V")):
        a(f"P1_PRE_{lab}:")
        for f in (epi_qk if qk else epi_v)(-1): a(f)
        SEP = opt("sep", 0)
        if SEP and not qk: a("s_cmp_eq_u32 s22, 3\ns_cbranch_scc1 P1_LOOP_D")
        a(ALN2)
        a(f"P1_LOOP_{lab}:")
        group(0, qk, patch=not SEP)
        if STAMP: a(f"s_cmp_lg_u32 s40, 0\ns_cbranch_scc1 P1_ST_{lab}\n{st(2)}\nP1_ST_{lab}:\ns_cmp_lg_u32 s40, 5\ns_cbranch_scc1 P1_SU_{lab}\n{st(1)}\nP1_SU_{lab}:")
        group(1, qk, patch=not SEP)
        a(f"s_cmp_lt_u32 s40, s43\ns_cbranch_scc1 P1_LOOP_{lab}")
        if not qk: a("s_cmp_eq_u32 s22, 3\ns_cbranch_scc1 P1_EPI_DFT")
        a("s_cmp_eq_u32 s12, 1\ns_cselect_b32 s30, 0, s30")
        tail(qk, epi_qk if qk else epi_v)
        a(f"s_cmp_eq_u32 s12, 0\ns_cbranch_scc1 P1_DONE\ns_mov_b32 s30, {WS_USED}\nv_mov_b32 v88, {LFB + 56}\nv_mov_b32 v89, 1")
        ladd(a, 88, 89, 0)
        a(f"s_mov_b32 s34, 1\ns_branch ATT\nNU_{lab}:")
        for T in range(5):
            for jj in range(2): a((epi_qk if qk else epi_v)(T, jj)[-1][0])
        a("s_branch ATT_SIG")
    if SEP:
        a("P1_LOOP_D:"); group(0, False); group(1, False)
        a("s_cmp_lt_u32 s40, s43\ns_cbranch_scc1 P1_LOOP_D")
    a("P1_EPI_DFT:")
    group(0, False, reads=False)
    TAU, TAU0, E0 = 80, 81, 140
    a(f"""
    {st(3)}
    s_cmp_lt_u32 s20, 2
    s_cselect_b32 s38, 1.0, -1.0
    v_mov_b32 v{TAU}, s38
    v_cndmask_b32 v{TAU0}, v{TAU}, 1.0, s[24:25]
    s_lshl_b32 s26, s20, 1
    s_add_u32 s26, s26, s37
    s_mul_i32 s26, s26, 80
    v_and_b32 v88, 15, v{L}
    v_add_u32 v{E0}, s26, v88
    v_add_u32 v{E0+1}, 20, v{E0}
    v_add_u32 v{E0+2}, 40, v{E0}
    v_add_u32 v{E0+3}, 60, v{E0}
    v_and_b32 v89, 12, v{L}
    v_lshl_add_u32 v{E0+4}, v89, 2, v{E0}
    v_add_u32 v{E0+4}, 16, v{E0+4}
    s_lshl_b32 s23, s21, 1
    s_add_u32 s23, s23, s36
    s_cmp_lg_u32 s23, 0
    s_cbranch_scc1 P1_EPI_DFT2
    s_mov_b64 exec, 0xffff
    s_mov_b32 s27, {X512_OFF}
    """)
    for T in range(5):
        a(f"v_fma_f32 v{96+T}, v{acc(3,T)}, v{TAU0 if T == 0 else TAU}, v{acc(1,T)}")
        a(f"v_lshlrev_b32 v{104+T}, 2, v{E0+T}\nv_mov_b32 v{acc(1,T)}, 0\nv_mov_b32 v{acc(3,T)}, 0")
        a(f"buffer_store_dword v{96+T}, v{104+T}, s[28:31], s27 offen sc1")
    a(f"""
    s_mov_b64 exec, -1
P1_EPI_DFT2:
    s_lshl_b32 s26, s23, 9
    s_add_u32 s26, s26, {FE_OFF}
    s_mov_b32 s27, {FO_DELTA}
    v_bfe_u32 v88, v{L}, 4, 1
    v_mul_lo_u32 v88, v88, s27
    v_lshrrev_b32 v89, 5, v{L}
    v_lshl_add_u32 v88, v89, 8, v88
    """)
    for T in range(5):
        tau = TAU0 if T == 0 else TAU
        a0, a1, a2, a3 = (acc(b, T) for b in range(4))
        for q in range(4):
            a(f"v_fma_f32 v{a0+q}, v{a1+q}, v{tau}, v{a0+q}\nv_fma_f32 v{a3+q}, v{a2+q}, v{tau}, v{a3+q}")
        for q in range(4):
            a(f"v_add_f32 v{a1+q}, v{a0+q}, v{a3+q}\nv_sub_f32 v{a2+q}, v{a0+q}, v{a3+q}")
        for f in cv(a0, a1) + cv(a0 + 2, a2): a(f)
        a(f"""
        v_lshrrev_b32 v89, 4, v{E0+T}
        v_lshl_add_u32 v89, v89, 14, v88
        v_and_b32 v{E0+T}, 15, v{E0+T}
        v_lshl_add_u32 v{E0+T}, v{E0+T}, 4, v89
        v_permlane16_swap_b32 v{a0}, v{a0+2}
        v_permlane16_swap_b32 v{a0+1}, v{a0+3}
        """)
    a(f"v_mov_b32 v88, {LFB + 56}\nv_mov_b32 v89, 1\ns_mov_b32 s12, {opt('dnu', 1)}")
    ladd(a, 88, 89, 0)
    a("s_mov_b32 s34, 1\ns_branch ATT\nNU_D:")
    for T in range(5): a(f"buffer_store_dwordx4 {vr(4*T,4)}, v{E0+T}, s[28:31], s26 offen sc1")
    a("s_branch ATT_SIG")
    a(f"""
P1_DONE:
    {st(14)}
    s_mov_b32 s34, 0
    v_mov_b32 v84, 1
    v_mov_b32 v85, 1
    v_mov_b32 v86, 1
    v_mov_b32 v87, 1
    v_mov_b32 v88, {LFB + 44}
    v_mov_b32 v89, 0
    s_and_b32 s23, s15, -128
    s_mov_b64 exec, 1
    s_waitcnt vmcnt(0)
    ds_add_rtn_u32 v88, v88, v84
    s_waitcnt lgkmcnt(0)
    v_cmp_eq_u32 vcc, 3, v88
    s_cbranch_vccz P1_NS
    buffer_store_dwordx4 v[84:87], v89, s[28:31], s23 offen sc1
P1_NS:
    s_mov_b64 exec, -1
    s_branch ATT
    """)

def p1_extra(a):
    T0 = 40
    a(f"""
P1_EXTRA:
    s_sub_u32 s61, s16, 8
    """)
    if opt("cwarm", 1):
        a(f"""
        s_cmp_lg_u32 s16, 10
        s_cbranch_scc1 P1_NOCW
        s_lshl_b32 s23, s18, 10
        s_cmp_ge_u32 s23, L_CODE_END - {NAME}_kernel - 1023
        s_cbranch_scc1 P1_NOCW
        s_getpc_b64 s[44:45]
L_PC:
        s_sub_u32 s44, s44, L_PC - {NAME}_kernel
        s_subb_u32 s45, s45, 0
        v_lshl_add_u32 v40, v0, 4, s23
        global_load_dwordx4 v[44:47], v40, s[44:45]
P1_NOCW:
        """)
    a(f"""
    v_lshrrev_b32 v37, 4, v0
    v_and_b32 v38, 15, v0
    v_lshlrev_b32 v39, 4, v0
    v_mov_b32 v36, v0
    s_waitcnt lgkmcnt(0)
    {srd(28, WS_P, WS_USED)}
    {srd(32, DBG_P, 256)}
    s_cmp_lg_u32 s61, 0
    s_cbranch_scc1 P1_EX_A
    v_mov_b32 v1, 0
    v_lshlrev_b32 v2, 2, v0
    v_add_u32 v2, {LFB}, v2
    ds_write_b32 v2, v1
    s_waitcnt lgkmcnt(0)
    s_cmp_lt_u32 s2, 248
    s_cbranch_scc1 P1_EX_WAITRDY
    v_mov_b32 v4, 0
    v_mov_b32 v5, 0
    v_mov_b32 v6, 0
    v_mov_b32 v7, 0
    s_lshl_b32 s23, s17, 12
    s_add_u32 s23, s23, {FLG_OFF}
    buffer_store_dwordx4 v[4:7], v39, s[28:31], s23 offen sc1
    buffer_store_dwordx4 v[4:7], v39, s[28:31], s23 offen offset:1024 sc1
    buffer_store_dwordx4 v[4:7], v39, s[28:31], s23 offen offset:2048 sc1
    buffer_store_dwordx4 v[4:7], v39, s[28:31], s23 offen offset:3072 sc1
    s_lshl_b32 s23, s17, 10
    s_add_u32 s23, s23, {FLG_OFF + 32768}
    buffer_store_dwordx4 v[4:7], v39, s[28:31], s23 offen sc1
P1_EX_WAITRDY:
P1_EX_A:
    s_lshl_b32 s23, s2, 2
    s_add_u32 s23, s23, s61
    s_mov_b32 s40, 0
P1_TBL:
    s_lshr_b32 s24, s23, 5
    s_and_b32 s25, s23, 30
    s_and_b32 s26, s24, 1
    s_lshr_b32 s27, s24, 1
    s_lshl_b32 s27, s27, 6
    s_add_u32 s27, s27, s26
    s_and_b32 s26, s23, 1
    s_lshl_b32 s26, s26, 5
    s_add_u32 s27, s27, s26
    v_lshl_add_u32 v{T0}, v38, 1, s27
    s_lshl_b32 s25, s25, 4
    v_lshl_add_u32 v{T0+1}, v37, 3, s25
    v_mul_u32_u24 v{T0+1}, v{T0}, v{T0+1}
    v_and_b32 v{T0+1}, 0x7ff, v{T0+1}
    v_cvt_f32_u32 v{T0}, v{T0}
    v_cvt_f32_u32 v{T0+1}, v{T0+1}
    v_mul_f32 v{T0}, 0x3a000000, v{T0}
    v_mul_f32 v0, 0x3a000000, v{T0+1}
    """)
    for u in range(1, 8): a(f"v_add_f32 v{u}, v{u-1}, v{T0}")
    for u in range(1, 8): a(f"v_fract_f32 v{u}, v{u}")
    for u in range(8): a(f"v_cos_f32 v{8+u}, v{u}")
    for u in range(8): a(f"v_sin_f32 v{16+u}, v{u}")
    for j in range(4): a(f"v_cvt_pk_bf16_f32 v{24+j}, v{8+2*j}, v{9+2*j}")
    for j in range(4): a(f"v_cvt_pk_bf16_f32 v{28+j}, v{16+2*j}, v{17+2*j}")
    NB0 = opt("tblbar", 2)
    a(f"""
    s_cmp_lg_u32 s40, 0
    s_cbranch_scc1 P1_TBL_ST
    s_barrier
    {st(1, True)}
    s_cmp_lg_u32 s61, 0
    s_cbranch_scc1 P1_EX_NR
    s_cmp_lt_u32 s2, 248
    s_cbranch_scc1 P1_EX_NR
    v_mov_b32 v32, 1
    v_mov_b32 v33, 0
    s_lshl_b32 s24, s17, 2
    s_waitcnt vmcnt(0)
    s_mov_b64 exec, 1
    buffer_store_dword v32, v33, s[32:35], s24 offen sc1
    s_mov_b64 exec, -1
P1_EX_NR:
    """ + "".join(f"s_barrier\n{st(1 + b_, True)}\n" for b_ in range(1, NB0)) + f"""
    s_mov_b32 s40, 1
P1_TBL_ST:
    s_lshl_b32 s24, s23, 11
    s_add_u32 s24, s24, {TB_OFF}
    buffer_store_dwordx4 v[24:27], v39, s[28:31], s24 offen sc1
    buffer_store_dwordx4 v[28:31], v39, s[28:31], s24 offen offset:1024 sc1
    s_add_u32 s23, s23, 1024
    s_cmp_lt_u32 s23, 1056
    s_cbranch_scc1 P1_TBL
    """)
    nb = NB0
    assert nb <= 6
    a("".join(f"s_barrier\n{st(1 + b_, True)}\n" for b_ in range(nb, 6)))
    u = a.uid()
    a(f"""
    v_and_b32 v1, 7, v36
    v_lshlrev_b32 v1, 2, v1
    v_mov_b32 v2, 1
    s_mov_b32 s60, 0
    s_cmp_lg_u32 s61, 0
    s_cbranch_scc1 P1_EX_C
    buffer_load_dword v2, v1, s[32:35], 0 offen sc1
P1_EX_C:
    s_barrier
    {st(7, True)}
    s_barrier
    {st(8, True)}
L_RDY{u}:
    s_waitcnt vmcnt(0)
    v_cmp_eq_u32 vcc, 0, v2
    s_cbranch_vccz P1_EX_B
    s_sleep 1
    buffer_load_dword v2, v1, s[32:35], 0 offen sc1
    s_add_u32 s60, s60, 1
    s_cmp_lt_u32 s60, 0x40000
    s_cbranch_scc1 L_RDY{u}
P1_EX_B:
    s_waitcnt vmcnt(0)
    s_barrier
    {st(9, True)}
    s_barrier
    {st(10, True)}
    s_mov_b32 s34, 0
    """)

def attention(a):
    O = 20; S = [0, 40, 136, 120]; IX = 114; P = 36; P2 = 64; Q1 = 56; Q2 = 60; K2 = 62; K1 = 16; V1 = 68; V2 = [72, 76]; T = 80
    a(f"""
ATT:
    s_cmp_lt_u32 s13, 4
    s_cselect_b32 s40, {opt("o1", 4)}, {opt("y1", 4)}
    s_cselect_b32 s41, {opt("o2", 7)}, {opt("y2", 6)}
    s_movk_i32 s35, 0x10a
    s_bitset1_b32 s35, s40
    s_bitset1_b32 s35, s41
    s_mov_b32 s24, 0xfffff
    s_mov_b32 s25, 0xfffff
    s_mul_i32 s39, s13, 1280
    s_add_u32 s39, s39, {QLDS}
    v_mov_b32 v{Q2+1}, 0
    v_mov_b32 v{K2+1}, 0x3f803f80
    v_add_u32 v{T}, s39, v{AK1}
    v_add_u32 v{T+1}, s39, v{AK2}
    v_mov_b32 v{T+2}, 1
    """)
    NQ = opt("nq", 2)
    OX = [84, O]; QX1 = [100, Q1]; QX2 = [104, Q2]; U = 106; TM = 136; XS = 107520
    if NQ == 2:
        a(f"""
        s_xor_b32 s36, s13, 1
        s_mul_i32 s39, s36, 1280
        s_add_u32 s39, s39, {QLDS}
        v_add_u32 v{U}, s39, v{AK1}
        v_add_u32 v{U+1}, s39, v{AK2}
        v_mov_b32 v{U+2}, v{AK1}
        v_mov_b32 v{U+3}, v{AK2}
        v_mov_b32 v{QX2[0]+1}, 0
        s_mov_b32 s42, {QSCALE:#x}
        s_mov_b32 s43, s42
        s_and_b32 s37, s13, 1
        s_mul_i32 s37, s37, 2560
        v_and_b32 v{U+4}, 0x70, v{VA}
        v_lshrrev_b32 v{U+4}, 2, v{U+4}
        v_add_u32 v{U+4}, {LFB}, v{U+4}
        s_lshl_b32 s23, s13, 12
        s_add_u32 s23, s23, {XS}
        v_add_u32 v{U+5}, s23, v{VA}
        v_xor_b32 v{U+7}, 4, v{PA}
        s_lshl_b32 s23, s36, 12
        s_add_u32 s23, s23, {XS}
        v_add_u32 v{U+6}, s23, v{VA}
        s_lshr_b32 s38, s13, 2
        s_add_u32 s38, s38, 7
        """)
        for r in (AK1, AK2, AV, BK1, BK2, BV): a(f"v_add_u32 v{r}, s37, v{r}")
        for r in range(16): a(f"v_mov_b32 v{OX[0]+r}, 0")
    for r in range(12): a(f"v_mov_b32 v{V1+r}, v{ONES}")
    for r in range(16): a(f"v_mov_b32 v{O+r}, 0")
    for r in range(4): a(f"v_mov_b32 v{P+r}, -1")
    for r in range(8): a(f"v_mov_b32 v{S[3]+8+r}, 0")
    a(f"v_mov_b32 v{IX}, 0xdddddddd")
    def rk1(d): return f"v_mfma_f32_32x32x8_bf16 {vr(d,16)}, {vr(K2,2)}, {vr(Q2,2)}, 0"
    def rk2(d): return f"v_mfma_f32_32x32x16_bf16 {vr(d,16)}, {vr(K1,4)}, {vr(Q1,4)}, {vr(d,16)}"
    def qk1(d): return f"v_mfma_f32_32x32x16_bf16 {vr(d,16)}, {vr(K1,4)}, {vr(Q1,4)}, 0"
    def qk2(d): return f"v_mfma_f32_32x32x8_bf16 {vr(d,16)}, {vr(K2,2)}, {vr(Q2,2)}, {vr(d,16)}"
    def pv(v, p): return f"v_smfmac_f32_32x32x32_bf16 {vr(O,16)}, {vr(v,4)}, {vr(p,8)}, v{IX}"
    def of(t): return (t - 6 if t in (6, 7) else t) * 2560
    def rdk1(t): return f"ds_read_b128 {vr(K1,4)}, v{BK1 if t in (6, 7) else AK1} offset:{of(t)}"
    def rdk2(t): return f"ds_read_b32 v{K2}, v{BK2 if t in (6, 7) else AK2} offset:{of(t)+1024}"
    def rdv(t, v2):
        b = BV if t in (6, 7) else AV
        return f"s_mov_b64 exec, s[24:25]\nds_read_b128 {vr(V1,4)}, v{b} offset:{of(t)+1280}\nds_read_b128 {vr(v2,4)}, v{b} offset:{of(t)+1920}\ns_mov_b64 exec, -1"
    def maxtree(s, m, first):
        if first:
            a(f"v_max3_f32 v{m}, v{s}, v{s+1}, v{s+2}\nv_max3_f32 v{m+1}, v{s+3}, v{s+4}, v{s+5}")
            for j in range(6, 14, 4): a(f"v_max3_f32 v{m}, v{s+j}, v{s+j+1}, v{m}\nv_max3_f32 v{m+1}, v{s+j+2}, v{s+j+3}, v{m+1}")
            a(f"v_max3_f32 v{m}, v{s+14}, v{s+15}, v{m}\nv_max_f32 v{m}, v{m}, v{m+1}")
        else:
            for j in range(0, 16, 2): a(f"v_max3_f32 v{m}, v{s+j}, v{s+j+1}, v{m}")
    def xhalf(m):
        a(f"v_mov_b32 v{m+1}, v{m}\ns_nop 1\nv_permlane32_swap_b32 v{m}, v{m+1}\ns_nop 0\nv_max_f32 v{m}, v{m}, v{m+1}")
    a(f"""
    {st(4)}
    s_barrier
    s_setprio 3
    s_cmp_lg_u32 s34, 1
    s_cbranch_scc1 ATT_NOSIG
    s_cmp_eq_u32 s22, 1
    s_cbranch_scc1 NU_QK
    s_cmp_eq_u32 s22, 2
    s_cbranch_scc1 NU_V
    s_branch NU_D
ATT_SIG:
    """)
    if opt("comb", 1):
        a(f"""
        v_mov_b32 v{T+3}, {LFB + 44}
        s_and_b32 s23, s15, -128
        s_mov_b64 exec, 1
        s_waitcnt vmcnt(0)
        ds_add_rtn_u32 v{T+3}, v{T+3}, v{T+2}
        s_waitcnt lgkmcnt(0)
        v_cmp_eq_u32 vcc, 3, v{T+3}
        s_cbranch_vccz ATT_NOSIG
        buffer_store_dwordx4 {vr(P,4)}, v{O}, s[28:31], s23 offen sc1
        """)
    else:
        a(f"s_waitcnt vmcnt(0)\ns_mov_b64 exec, 1\nbuffer_store_dword v{T+2}, v{O}, s[28:31], s15 offen sc1")
    a(f"""
ATT_NOSIG:
    s_mov_b64 exec, -1
    {st(6)}
    """)
    def e(s, j): return f"v_exp_f32 v{s+j}, v{s+j}"
    def c(s, j): return f"v_cvt_pk_bf16_f32 v{P+j}, v{s+2*j}, v{s+2*j+1}"
    if NQ == 2:
        def xk1(x, d=None): return f"v_mfma_f32_32x32x16_bf16 {vr(S[x if d is None else d],16)}, {vr(K1,4)}, {vr(QX1[x],4)}, 0"
        def xk2(x, d=None): return f"v_mfma_f32_32x32x8_bf16 {vr(S[x if d is None else d],16)}, {vr(K2,2)}, {vr(QX2[x],2)}, {vr(S[x if d is None else d],16)}"
        def xpv(x, v, p): return f"v_smfmac_f32_32x32x32_bf16 {vr(OX[x],16)}, {vr(v,4)}, {vr(p,8)}, v{IX}"
        def scale(x):
            for j in range(5): a(f"v_lshlrev_b32 v{TM+2*j}, 16, v{QX1[x]+j}\nv_and_b32 v{TM+2*j+1}, 0xffff0000, v{QX1[x]+j}")
            if opt("pkq", 0):
                for j in range(0, 10, 2): a(f"v_pk_mul_f32 {vr(TM+j,2)}, {vr(TM+j,2)}, s[42:43]")
            else:
                for j in range(10): a(f"v_mul_f32 v{TM+j}, s42, v{TM+j}")
            for j in range(5): a(f"v_cvt_pk_bf16_f32 v{QX1[x]+j}, v{TM+2*j}, v{TM+2*j+1}")
        MH = f32bits(-0.5 * (20 ** -0.5) * math.log2(math.e))
        a(f"""
        ds_read_b128 {vr(K1,4)}, v{U+2}
        ds_read_b32 v{K2}, v{U+3} offset:1024
        ds_read_b128 {vr(QX1[0],4)}, v{U}
        ds_read_b32 v{QX2[0]}, v{U+1} offset:1024
        ds_read_b128 {vr(Q1,4)}, v{T}
        ds_read_b32 v{Q2}, v{T+1} offset:1024
        {rdv(0, V2[0])}
        s_waitcnt lgkmcnt(4)
        {xk1(0)}
        {xk2(0)}
        s_waitcnt lgkmcnt(2)
        {xk1(1)}
        {xk2(1)}
        {rdk1(0)}
        {rdk2(0)}
        s_mov_b32 s26, 0
        """)
        scale(0)
        maxtree(S[0], T, True)
        a(f"v_mul_f32 v{T}, {MH:#x}, v{T}\nv_cvt_pk_bf16_f32 v{QX2[0]+1}, v{T}, 0\ns_waitcnt lgkmcnt(0)\n{xk1(0)}\n{xk2(0)}")
        scale(1)
        maxtree(S[1], T, True)
        a(f"""
        v_mul_f32 v{T}, {MH:#x}, v{T}
        v_cvt_pk_bf16_f32 v{Q2+1}, v{T}, 0
        {xk1(1)}
        {rdk1(2)}
        {st(7)}
        {ALN}
ATT_LOOP:
        """)
        for i in range(4):
            for x in (0, 1):
                SP = {0: (4, 8, 12), 1: (5, 8, 13), 2: (4, 7, 11), 3: (5, 9, 13)}[opt('sp', 0)]
                n = 2 * i + x; cur = S[n % 4]; y = 1 - x; t_ = 2 * (i + 1)
                if x == 1: a("s_waitcnt lgkmcnt(0)")
                a(xk2(y, (n + 1) % 4))
                if x == 0: a(rdk2(t_))
                for q in range(SP[0]): a(e(cur, q))
                a(xpv(y, V2[(i + 1) % 2] if x == 0 else V2[i % 2], S[(n - 1) % 4] + 8))
                if x == 0: a("s_waitcnt lgkmcnt(1)")
                if x == 0 and i == 3: a.l[-1] = "    s_waitcnt vmcnt(0) lgkmcnt(1)"
                if x == 1 and i == 1: a(f"ds_write_b32 v{PA}, v{T+2}")
                if x == 1 and i == 3: a(f"ds_read_b32 v{U}, v{U+4}")
                for q in range(SP[0], SP[1]): a(e(cur, q))
                a(xk1(x, (n + 2) % 4))
                if x == 1: a(rdk1(t_ + 2))
                for q in range(SP[1], SP[2]): a(e(cur, q))
                a(xpv(x, V1, cur))
                if x == 1: a(rdv(t_, V2[(i + 1) % 2]))
                for q in range(SP[2], 16): a(e(cur, q))
    a(f"""
    s_add_u32 s26, s26, 1
    s_movk_i32 s27, 0x5000
    s_cmp_eq_u32 s26, 7
    s_cselect_b32 s27, {(0x5000 - 62 * 2560) & 0xffffffff}, s27
    v_add_u32 v{AK1}, 0x5000, v{AK1}
    v_add_u32 v{AK2}, 0x5000, v{AK2}
    v_add_u32 v{AV}, 0x5000, v{AV}
    v_add_u32 v{BK1}, s27, v{BK1}
    v_add_u32 v{BK2}, s27, v{BK2}
    v_add_u32 v{BV}, s27, v{BV}
    v_add_u32 v{T+2}, 1, v{T+2}
    s_bitcmp1_b32 s35, s26
    s_cbranch_scc0 ATT_LOOP
    s_cmp_gt_u32 s26, 3
    s_cbranch_scc1 ATT_EV
    v_add_u32 v{FA}, 8, v{FA}
    s_cmp_eq_u32 s26, 1
    s_cbranch_scc0 ATT_WAIT
    buffer_store_dwordx4 {vr(P,4)}, v{OA1}, s[28:31], s6 offen sc1
    s_mov_b64 exec, 0xffff
    buffer_store_dwordx4 {vr(P,4)}, v{OA2}, s[28:31], s7 offen sc1
    s_mov_b64 exec, -1
ATT_WAIT:
    ds_read_b32 v{T}, v{FA}
    s_waitcnt lgkmcnt(0)
    v_readfirstlane_b32 s23, v{T}
    s_cmp_ge_u32 s23, 4
    s_cbranch_scc1 ATT_LOOP
    s_sleep 1
    s_branch ATT_WAIT
ATT_EV:
    s_setprio 2
    s_cmp_eq_u32 s26, s40
    s_cbranch_scc1 ATT_LOOP
    s_setprio 1
    s_cmp_lt_u32 s26, 8
    s_cbranch_scc1 ATT_LOOP
    s_setprio 3
    {pv(V2[1], S[3]+8)}
    {st(8)}
    """)
    if NQ == 2:
        a(f"""
        s_mov_b32 s27, 0x3e800000
        s_mov_b32 s23, 0x71800000
        s_waitcnt lgkmcnt(3)
        v_cmp_gt_u32 vcc, s38, v{U}
        s_cbranch_vccz ATT_X0
ATT_X1:
        s_sleep 2
        ds_read_b32 v{U}, v{U+4}
        s_waitcnt lgkmcnt(0)
        v_cmp_gt_u32 vcc, s38, v{U}
        s_cbranch_vccnz ATT_X1
ATT_X0:
        """)
        for j in range(3): a(f"ds_write_b128 v{U+5}, {vr(OX[0]+4*j,4)} offset:{1024*j}")
        a(f"ds_write_b64 v{U+5}, {vr(OX[0]+12,2)} offset:3072\nds_write_b32 v{PA}, v{T+2} offset:96\nATT_X2:\nds_read_b32 v{U}, v{U+7} offset:96")
        for j in range(3): a(f"ds_read_b128 {vr(S[0]+4*j,4)}, v{U+6} offset:{1024*j}")
        a(f"ds_read_b64 {vr(S[0]+12,2)}, v{U+6} offset:3072\ns_waitcnt lgkmcnt(0)\nv_cmp_eq_u32 vcc, 0, v{U}\ns_cbranch_vccz ATT_X3\ns_sleep 1\ns_branch ATT_X2\nATT_X3:\ns_nop 1")
        for r in range(0, 14, 2): a(f"v_pk_add_f32 {vr(O+r,2)}, {vr(O+r,2)}, {vr(S[0]+r,2)}")
    else:
        a("s_mov_b32 s27, 0x3e800000\ns_mov_b32 s23, 0x71800000\ns_nop 9")
    a(f"v_rcp_f32 v{T+2}, v{O+12}\nv_add_f32 v{T}, |v{O}|, |v{O+1}|\nv_add_f32 v{T+1}, |v{O+2}|, |v{O+3}|")
    for j in range(4, 12, 2): a(f"v_add_f32 v{T}, |v{O+j}|, v{T}\nv_add_f32 v{T+1}, |v{O+j+1}|, v{T+1}")
    a(f"""
    v_add_f32 v{T}, v{T}, v{O+12}
    v_cmp_le_f32 s[42:43], s27, v{O+12}
    v_add_f32 v{T}, v{T}, v{T+1}
    v_cmp_gt_f32 vcc, s23, v{T}
    s_and_b64 vcc, vcc, s[42:43]
    s_cmp_eq_u64 vcc, -1
    s_cbranch_scc0 ATT_FALLBACK
ATT_FINISH:
    """)
    for j in range(0, 8, 2): a(f"v_pk_mul_f32 {vr(O+j,2)}, {vr(O+j,2)}, {vr(T+2,2)} op_sel_hi:[1,0]")
    for j in range(4): a(f"v_cvt_pk_bf16_f32 v{P+j}, v{O+2*j}, v{O+2*j+1}")
    for j in range(4): a(f"v_min_u32 v{P+j}, -2, v{P+j}")
    a(f"buffer_store_dwordx4 {vr(P,4)}, v{OA1}, s[28:31], s6 offen sc1")
    for j in range(8, 12, 2): a(f"v_pk_mul_f32 {vr(O+j,2)}, {vr(O+j,2)}, {vr(T+2,2)} op_sel_hi:[1,0]")
    for j in range(4, 6): a(f"v_cvt_pk_bf16_f32 v{P2+j-4}, v{O+2*j}, v{O+2*j+1}")
    for j in range(4, 6): a(f"v_min_u32 v{P2+j-4}, -2, v{P2+j-4}")
    a(f"""
    s_nop 1
    v_permlane16_swap_b32 v{P2}, v{P2+2}
    v_permlane16_swap_b32 v{P2+1}, v{P2+3}
    s_mov_b64 exec, 0xffff
    buffer_store_dwordx4 {vr(P2,4)}, v{OA2}, s[28:31], s7 offen sc1
    {st(9)}
    s_cmp_ge_u32 s13, 4
    s_cbranch_scc1 {"L_DONE" if STAMP else "L_END"}
    s_mov_b64 exec, -1
    s_xor_b32 s41, s13, {opt('gx', 2)}
    s_mov_b32 s47, 1
    s_branch P3_GO
    """)
    def gk(): return f"buffer_load_dwordx4 {vr(K1,4)}, v{AK1}, s[28:31], s23 offen sc1\nbuffer_load_dword v{K2}, v{AK2}, s[28:31], s23 offen offset:1024 sc1"
    a(f"""
ATT_FALLBACK:
    s_waitcnt lgkmcnt(0)
    v_mov_b32 v{Q2+1}, 0
    v_mov_b32 v{T}, 0xff800000
    {f's_add_u32 s23, s37, {HS}' if NQ == 2 else f's_mov_b32 s23, {HS}'}
    v_subrev_u32 v{AK1}, s23, v{AK1}
    v_subrev_u32 v{AK2}, s23, v{AK2}
    v_subrev_u32 v{AV}, s23, v{AV}
    s_add_u32 s23, s14, {KV_OFF}
    s_mov_b32 s26, 0
ATT_FB1:
    {gk()}
    s_add_u32 s23, s23, 2560
    s_waitcnt vmcnt(0)
    {qk1(S[0])}
    {qk2(S[0])}
    s_nop 15
    """)
    maxtree(S[0], T, False)
    a("s_add_u32 s26, s26, 1\ns_cmp_lt_u32 s26, 64\ns_cbranch_scc1 ATT_FB1")
    xhalf(T)
    a(f"s_add_u32 s23, s14, {KV_OFF}\ns_mov_b32 s26, 0")
    for r in range(16): a(f"v_mov_b32 v{O+r}, 0")
    a(f"""
ATT_FB2:
    {gk()}
    s_mov_b64 exec, s[24:25]
    buffer_load_dwordx4 {vr(V1,4)}, v{AV}, s[28:31], s23 offen offset:1280 sc1
    buffer_load_dwordx4 {vr(V2[0],4)}, v{AV}, s[28:31], s23 offen offset:1920 sc1
    s_mov_b64 exec, -1
    s_add_u32 s23, s23, 2560
    s_waitcnt vmcnt(0)
    {qk1(S[0])}
    {qk2(S[0])}
    s_nop 15
    """)
    for q in range(16): a(f"v_sub_f32 v{S[0]+q}, v{S[0]+q}, v{T}")
    for q in range(16): a(e(S[0], q))
    a(f"""
    s_nop 1
    {pv(V1, S[0])}
    {pv(V2[0], S[0]+8)}
    s_add_u32 s26, s26, 1
    s_cmp_lt_u32 s26, 64
    s_cbranch_scc1 ATT_FB2
    s_nop 15
    s_nop 3
    v_rcp_f32 v{T+2}, v{O+12}
    s_nop 0
    s_branch ATT_FINISH
    """)

def lwait(a, vaddr, vdat, mask, target, slp=8):
    u = a.uid()
    a(f"""
    s_mov_b64 exec, {mask}
    s_branch L_LWE{u}
L_LW{u}:
    s_sleep {slp}
L_LWE{u}:
    ds_read_b32 v{vdat}, v{vaddr}
    s_waitcnt lgkmcnt(0)
    v_cmp_gt_u32 vcc, {target}, v{vdat}
    s_cbranch_vccnz L_LW{u}
    s_mov_b64 exec, -1
    """)
def ladd(a, vaddr, vone, off):
    a(f"s_mov_b64 exec, 1\nds_add_u32 v{vaddr}, v{vone} offset:{off}\ns_mov_b64 exec, -1")

def helpers(a):
    WA, VG, VZ, SH, HPA, HONE, YFA, FZ, SG, XA5, LF = 112, 117, 118, 119, 120, 121, 122, 123, 124, 125, 126
    ZL = 40; G = 167; VY = 162; T = 132; LT = 127
    a(f"""
HELPER:
    s_mov_b32 s61, s22
    {st(2)}
    {srd(28, WS_P, WS_USED)}
    s_setprio 0
    s_lshr_b32 s20, s18, 2
    s_mul_i32 s26, s20, 160
    s_movk_i32 s23, {1280 - 160}
    """)
    for i in range(5):
        a(f"""
        v_add_u32 v{T}, {64*i}, v0
        v_mul_u32_u24 v{T+1}, 6554, v{T}
        v_lshrrev_b32 v{T+1}, 16, v{T+1}
        v_lshlrev_b32 v{T}, 4, v{T}
        v_mad_u32_u24 v{WA+i}, v{T+1}, s23, v{T}
        """)
    a(f"""
    s_lshl_b32 s21, s17, 3
    s_and_b32 s22, s18, 3
    s_add_u32 s21, s21, s22
    s_lshr_b32 s22, s16, 1
    s_lshl_b32 s22, s22, 2
    s_add_u32 s21, s21, s22
    s_lshl_b32 s21, s21, 1
    s_and_b32 s22, s16, 1
    s_add_u32 s21, s21, s22
    s_lshr_b32 s22, s21, 2
    s_lshl_b32 s22, s22, 1
    s_and_b32 s24, s21, 1
    s_add_u32 s22, s22, s24
    s_lshl_b32 s22, s22, 3
    v_and_b32 v{T}, 7, v0
    v_add_u32 v{T}, s22, v{T}
    s_bitcmp1_b32 s21, 1
    s_cselect_b32 s22, 0x400, 0
    s_cselect_b32 s24, -1, 1
    v_mul_lo_u32 v{T+1}, v{T}, s24
    s_sub_u32 s24, 0x800, s22
    v_sub_u32 v{T+2}, s24, v{T+1}
    v_add_u32 v{T+1}, s22, v{T+1}
    v_and_b32 v{T+3}, 8, v0
    v_cmp_ne_u32 vcc, 0, v{T+3}
    v_cmp_eq_u32 s[42:43], 0, v{T}
    v_lshlrev_b32 v{T+3}, 6, v{T+3}
    v_add_u32 v{T+3}, s22, v{T+3}
    v_cndmask_b32 v{T}, v{T+1}, v{T+2}, vcc
    v_lshrrev_b32 v{T+1}, 4, v0
    v_cndmask_b32 v{T}, v{T}, v{T+3}, s[42:43]
    v_mul_u32_u24 v{VY}, 1280, v{T}
    v_mul_u32_u24 v{T+2}, 40, v{T+1}
    v_add3_u32 v{VY}, v{VY}, v{T+2}, s26
    v_lshlrev_b32 v{VG}, 2, v{T}
    v_sub_u32 v{T+3}, 0x800, v{T}
    v_cmp_lt_u32 vcc, 0x400, v{T}
    v_min_u32 v{T}, v{T}, v{T+3}
    v_and_b32 v{T+3}, 1, v{T}
    v_mul_u32_u24 v{VZ}, {ZP}, v{T+3}
    v_lshrrev_b32 v{T+3}, 1, v{T}
    v_lshl_add_u32 v{VZ}, v{T+3}, 4, v{VZ}
    v_mov_b32 v{T+3}, 0x02020202
    v_cndmask_b32 v{SH}, 0, v{T+3}, vcc
    s_cmp_ge_u32 s20, 4
    s_mov_b32 s24, 0x05040100
    s_cselect_b32 s24, 0x07060302, s24
    s_cselect_b32 s40, -1, 1
    s_cselect_b32 s41, 155, 0
    v_xor_b32 v{SH}, s24, v{SH}
    s_mul_i32 s24, s20, 20
    v_mul_u32_u24 v{T+3}, 5, v{T+1}
    v_add_u32 v{T+3}, s24, v{T+3}
    v_mul_lo_u32 v{T+3}, v{T+3}, s40
    v_add_u32 v{T+3}, s41, v{T+3}
    v_mul_u32_u24 v{T+3}, {2*ZP}, v{T+3}
    v_add_u32 v{VZ}, v{VZ}, v{T+3}
    {p3_addr(0)}
    v_lshlrev_b32 v{HPA}, 2, v0
    v_add_u32 v{HPA}, {LFB}, v{HPA}
    v_mov_b32 v{HONE}, 1
    s_and_b32 s23, s2, 63
    s_lshl_b32 s23, s23, 5
    s_lshr_b32 s24, s2, 6
    s_add_u32 s23, s23, s24
    s_lshl_b32 s23, s23, 2
    s_add_u32 s23, s23, {FLG_OFF + 32768}
    v_mov_b32 v{YFA}, s23
    v_lshrrev_b32 v{FZ}, 4, v0
    v_mul_u32_u24 v{FZ}, {2*ZP}, v{FZ}
    v_and_b32 v{T}, 15, v0
    v_lshl_add_u32 v{FZ}, v{T}, 4, v{FZ}
    v_lshlrev_b32 v{SG}, 31, v0
    v_and_b32 v{XA5}, 48, v0
    v_lshlrev_b32 v{LF}, 7, v0
    v_bfe_u32 v{LT}, v0, 1, 2
    v_lshlrev_b32 v{LT}, 13, v{LT}
    v_and_b32 v{T}, 1, v0
    v_lshl_add_u32 v{LT}, v{T}, 7, v{LT}
    s_setprio 3
    s_lshr_b32 s19, s18, 3
    s_lshl_b32 s23, s17, 2
    s_add_u32 s19, s19, s23
    s_and_b32 s62, s18, 7
    s_mul_i32 s21, s19, {HG}
    v_lshlrev_b32 v1, 4, v0
    {st(3)}
    s_lshr_b32 s23, s19, 3
    s_lshl_b32 s23, s23, 13
    s_add_u32 s23, s23, {FLG_OFF}
    v_lshlrev_b32 v2, 7, v0
    v_add_u32 v2, s23, v2
    s_add_u32 s24, s21, {KV_OFF}
    s_lshl_b32 s40, 0x10000, s16
    s_lshl_b32 s41, 1, s16
    s_mul_i32 s22, s16, 10240
    s_add_u32 s26, s24, s22
    s_cmp_lg_u32 s16, 3
    s_cbranch_scc1 H_JA
    s_lshl_b32 s25, s62, 1
    s_lshl_b32 s40, 3, s25
    s_mov_b32 s41, 0
    s_mov_b32 s22, {QLDS}
    s_mul_i32 s26, s19, {HQ}
    s_mul_i32 s25, s62, 10240
    s_add_u32 s26, s26, s25
    s_add_u32 s26, s26, {Q_OFF}
H_JA:
    """)
    def job():
        r = f"s_add_u32 s25, s22, 5120\ns_cmp_ge_u32 s25, {LFB}\ns_cselect_b32 s25, 0, s25\n"
        for n in range(10):
            if n in (0, 3): r += f"s_add_u32 m0, s22, {1024*n}\ns_add_u32 s27, s26, {1024*n}\n"; o = 0
            if n in (5, 8): r += f"s_add_u32 m0, s25, {1024*(n-5)}\ns_add_u32 s27, s26, {1024*n}\n"; o = 0
            r += f"buffer_load_dwordx4 v1, s[28:31], s27 offen offset:{o} sc1 lds\n"; o += 1024
        return r
    if opt("latep", 1):
        a(f"s_mul_i32 s23, s12, 12\ns_cmp_eq_u32 s61, 3\ns_cselect_b32 s23, 12, s23\ns_add_u32 s23, s23, {LFB + 44}\nv_mov_b32 v3, s23")
        lwait(a, 3, 4, 1, 4, 2)
        if opt("lps", 0): a(f"s_sleep {opt('lps', 0)}")
    poll4(a, 2, 4, "s[40:41]")
    a(st(11)); a(job())
    a(f"""
    s_lshl_b32 s40, 0x80000, s16
    s_lshl_b32 s41, 8, s16
    s_add_u32 s22, s16, 3
    s_mul_i32 s22, s22, 10240
    s_add_u32 s26, s24, s22
    s_waitcnt vmcnt(0)
    {st(12)}
    s_barrier
    """)
    poll4(a, 2, 4, "s[40:41]")
    a(job())
    a(f"""
H_JB:
    s_lshl_b32 s41, 0x8880, s16
    s_and_b32 s41, s41, 0xffff
    s_lshl_b32 s40, s41, 16
    s_add_u32 s22, s16, 7
    s_mul_i32 s22, s22, 10240
    s_add_u32 s26, s24, s22
    s_waitcnt vmcnt(0)
    """)
    ladd(a, HPA, HONE, 64)
    a("s_cmp_lg_u32 s16, 0\ns_cbranch_scc1 H_NW")
    lwait(a, HPA, 4, 0xff, 1)
    a("H_NW:")
    poll4(a, 2, 4, "s[40:41]", slp=8)
    a(f"{st(13)}\nH_JC:"); a(job())
    a(f"""
    s_add_u32 s22, s22, 40960
    s_add_u32 s26, s26, 40960
    s_cmp_lt_u32 s22, {HS}
    s_cbranch_scc1 H_JC
    s_waitcnt vmcnt(0)
    {st(4)}
    """)
    ladd(a, HPA, HONE, 72)
    a(f"""
    s_cmp_lt_u32 s16, 3
    s_cbranch_scc1 H_FNET
    """)
    a(f"""
    {srd(32, X_P, 2048*1280)}
    {srd(36, GATE_P, 1280)}
    v_lshrrev_b32 v2, 3, v0
    v_and_b32 v3, 7, v0
    v_lshlrev_b32 v3, 4, v3
    s_movk_i32 s22, 1280
    v_mad_u32_u24 v4, v2, s22, v3
    s_mul_i32 s23, s2, {8*1280}
    """)
    for j in range(10):
        a(f"buffer_load_dwordx4 {vr(24+8*j,4)}, v4, s[32:35], s23 offen offset:{128*j}")
        a(f"buffer_load_dwordx4 {vr(28+8*j,4)}, v3, s[36:39], 0 offen offset:{128*j}")
    a("v_mov_b32 v5, 0\nv_mov_b32 v6, 0\ns_waitcnt vmcnt(0)")
    for j in range(10):
        for q in range(4):
            a(f"v_dot2c_f32_bf16 v{5 + (q & 1)}, v{24+8*j+q}, v{28+8*j+q}")
    a(f"""
    s_nop 2
    v_add_f32 v5, v5, v6
    s_nop 1
    v_add_f32_dpp v5, v5, v5 quad_perm:[1,0,3,2] row_mask:0xf bank_mask:0xf
    s_nop 1
    v_add_f32_dpp v5, v5, v5 quad_perm:[2,3,0,1] row_mask:0xf bank_mask:0xf
    s_nop 1
    v_add_f32_dpp v5, v5, v5 row_half_mirror row_mask:0xf bank_mask:0xf
    v_mul_f32 v5, {f32bits(-math.log2(math.e)):#x}, v5
    v_exp_f32 v5, v5
    v_lshlrev_b32 v2, 2, v2
    v_add_f32 v5, 1.0, v5
    v_rcp_f32 v5, v5
    s_lshl_b32 s23, s2, 5
    s_add_u32 s23, s23, {G_OFF}
    buffer_store_dword v5, v2, s[28:31], s23 offen sc1
    s_branch H_MID
    """)
    C, SN, FB = 0, 8, 16
    a(f"""
H_FNET:
    {'s_branch H_MID' if opt('nofnet', 0) == 1 else ''}
    s_lshl_b32 s22, s16, 5
    s_add_u32 s22, s22, s18
    s_cmp_lt_u32 s22, 84
    s_cbranch_scc1 H_FN_A
    s_sub_u32 s24, s22, 84
    s_lshl_b32 s24, s24, 3
    s_add_u32 s24, s24, s17
    s_cmp_ge_u32 s24, 21
    s_cbranch_scc1 H_MID
    s_mov_b32 s23, 32
    s_branch H_FN_B
H_FN_A:
    s_mul_i32 s23, s22, 3121
    s_lshr_b32 s23, s23, 16
    s_mul_i32 s24, s23, 21
    s_sub_u32 s24, s22, s24
    s_lshl_b32 s23, s23, 3
    s_add_u32 s23, s23, s17
H_FN_B:
    s_and_b32 s25, s23, 1
    s_add_u32 s26, s24, 20
    s_cmp_eq_u32 s24, 20
    s_cselect_b32 s26, 20, s26
    s_mul_i32 s32, s24, 26
    s_lshr_b32 s32, s32, 8
    s_lshl_b32 s32, s32, 13
    s_add_u32 s32, s32, {48 * 128}
    s_mul_i32 s33, s26, 26
    s_lshr_b32 s33, s33, 8
    s_lshl_b32 s33, s33, 13
    s_add_u32 s33, s33, {32 * 128}
    s_and_b32 s34, s23, 31
    s_lshl_b32 s34, s34, 8
    s_mov_b64 exec, 0xffff
    v_add_u32 v2, s32, v{LF}
    s_mov_b32 exec_lo, 0xffff0000
    v_add_u32 v2, s33, v{LF}
    s_mov_b32 exec_lo, 0
    s_mov_b32 exec_hi, 0xff
    v_add_u32 v2, s34, v{LT}
    s_mov_b32 s40, -1
    s_movk_i32 s41, 0xff
    s_mov_b32 s27, {FLG_OFF}
    """)
    poll4(a, 2, 4, "s[40:41]", "s27", slp=8)
    a(st(14))
    a(f"""
    s_lshl_b32 s32, s23, 16
    s_add_u32 s32, s32, {TB_OFF}
    s_mul_i32 s27, s25, {FO_DELTA}
    s_add_u32 s27, s27, {FE_OFF}
    s_lshl_b32 s33, s24, 14
    s_add_u32 s33, s33, s27
    s_lshl_b32 s34, s26, 14
    s_add_u32 s34, s34, s27
    s_cmp_eq_u32 s25, 0
    s_cselect_b32 s35, s24, s26
    s_lshl_b32 s35, s35, 6
    s_add_u32 s35, s35, {X512_OFF}
    buffer_load_dwordx4 v[128:131], v{XA5}, s[28:31], s35 offen sc1
    """)
    def fl(j):
        r = FB + 24 * j
        s_ = f"buffer_load_dwordx4 {vr(r,4)}, v163, s[28:31], s33 offen offset:{1024*j} sc1\n"
        s_ += f"buffer_load_dwordx4 {vr(r+4,4)}, v163, s[28:31], s34 offen offset:{1024*j} sc1\n"
        for k in range(4): s_ += f"buffer_load_dwordx4 {vr(r+8+4*k,4)}, v163, s[28:31], s32 offen offset:{1024*k} sc1\n"
        s_ += "s_add_u32 s32, s32, 4096\n"
        if j == 3: s_ += "s_add_u32 s33, s33, 4096\ns_add_u32 s34, s34, 4096\n"
        return s_
    def fm(j):
        r = FB + 24 * j
        s_ = ""
        if opt("nofnet", 0) == 2: return s_
        for sub in range(2):
            s_ += f"v_mfma_f32_16x16x32_bf16 {vr(C+4*sub,4)}, {vr(r,4)}, {vr(r+8+8*sub,4)}, {vr(C+4*sub,4)}\n"
            if opt("fsp", 0): s_ += f"s_nop {opt('fsp', 0)}\n"
            s_ += f"v_mfma_f32_16x16x32_bf16 {vr(SN+4*sub,4)}, {vr(r+4,4)}, {vr(r+12+8*sub,4)}, {vr(SN+4*sub,4)}\n"
            if opt("fsp", 0): s_ += f"s_nop {opt('fsp', 0)}\n"
        return s_
    for j in range(4): a(fl(j))
    a(f"""
    s_cmp_eq_u32 s25, 0
    s_cselect_b32 s36, 1.0, 0
    s_cselect_b32 s37, 0, 1.0
    v_or_b32 v161, s37, v{SG}
    v_or_b32 v160, s36, v{SG}
    s_waitcnt vmcnt(24)
    """)
    for r in range(8): a(f"v_mul_f32 v{C+r}, v160, v{128 + r % 4}\nv_mul_f32 v{SN+r}, v161, v{128 + r % 4}")
    a(f"s_setprio {opt('fp', 3)}\ns_mov_b32 s38, 0\nH_FN_LOOP:")
    for j in range(4):
        a("s_waitcnt vmcnt(18)"); a(fm(j)); a(fl(j))
    a("s_add_u32 s38, s38, 1\ns_cmp_lt_u32 s38, 3\ns_cbranch_scc1 H_FN_LOOP")
    for j in range(4):
        a(f"s_waitcnt vmcnt({18-6*j})"); a(fm(j))
    a(f"""
    s_cmp_eq_u32 s26, 20
    s_cselect_b32 s44, 0xffff, 0
    s_mov_b32 s45, 0
    s_mul_i32 s26, s24, {8*ZP}
    s_mul_i32 s27, s25, {ZP}
    s_add_u32 s26, s26, s27
    s_lshr_b32 s27, s23, 1
    s_lshl_b32 s27, s27, 9
    s_add_u32 s26, s26, s27
    s_add_u32 s26, s26, {Y_OFF}
    v_cndmask_b32 v{SN}, v{SN}, 0, s[44:45]
    v_cndmask_b32 v{SN+4}, v{SN+4}, 0, s[44:45]
    """)
    for r in range(8):
        a(f"v_add_f32 v{16+r}, v{C+r}, v{SN+r}\nv_sub_f32 v{C+r}, v{C+r}, v{SN+r}")
    for r in range(8): a(f"v_cvt_pk_bf16_f32 v{16+r}, v{16+r}, v{C+r}")
    a(f"buffer_store_dwordx4 v[16:19], v{FZ}, s[28:31], s26 offen sc1\nbuffer_store_dwordx4 v[20:23], v{FZ}, s[28:31], s26 offen offset:256 sc1")
    a(f"""
H_MID:
    s_setprio 3
    s_lshl_b32 s19, s17, 2
    s_and_b32 s20, s18, 3
    s_add_u32 s19, s19, s20
    s_lshr_b32 s20, s18, 2
    {srd(32, WO_P, 640*1280)}
    {srd(36, OUT_P, 2621440)}
    s_mul_i32 s26, s20, 160
    s_mul_i32 s27, s16, {160*1280}
    s_add_u32 s27, s27, s26
    s_movk_i32 s23, {1280 - 160}
    """)
    a(f"""
    s_add_u32 s25, s16, 1
    s_and_b32 s25, s25, 3
    s_mul_i32 s22, s25, 25600
    s_add_u32 s22, s22, {WOL}
    s_add_u32 s25, s25, 3
    s_waitcnt vmcnt(0)
    {st(5)}
    """)
    lwait(a, HPA, T + 1, 0xff, 3)
    a(f"""s_mov_b64 exec, 1
    ds_add_rtn_u32 v{T+1}, v{HPA}, v{HONE} offset:48
    s_waitcnt lgkmcnt(0)
    v_cmp_eq_u32 vcc, 3, v{T+1}
    s_cbranch_vccz H_NOY
    buffer_store_dword v{HONE}, v{YFA}, s[28:31], 0 offen sc1
H_NOY:
    s_mov_b64 exec, -1""")
    lwait(a, HPA, T + 1, 0xff, "s25")
    a(f"{st(6)}\ns_mov_b32 s25, 0\nH_WO:")
    for i in range(5):
        a(f"s_add_u32 m0, s22, {1024*i}\ns_nop 0\nbuffer_load_dwordx4 v{WA+i}, s[32:35], s27 offen lds")
    a(f"""
    s_add_u32 s22, s22, 5120
    s_add_u32 s27, s27, {32*1280}
    s_add_u32 s25, s25, 1
    s_cmp_lt_u32 s25, 5
    s_cbranch_scc1 H_WO
    s_cmp_lg_u32 s16, 3
    s_cbranch_scc1 H_YW
    """)
    lwait(a, HPA, T + 1, 0xff, opt("ypr", 5), 16)
    a(f"s_mov_b32 s27, {FLG_OFF + 32768}")
    poll4(a, LF, 4, "-1", "s27", slp=opt("ys", 16))
    ladd(a, HPA, HONE, 40)
    a(f"H_YW:\nv_add_u32 v{T}, 40, v{HPA}")
    lwait(a, T, T + 1, 1, 1, 16)
    a("s_waitcnt vmcnt(0)")
    a(f"v_mov_b32 v{T}, 2")
    ladd(a, HPA, T, 32)
    a(f"{st(7)}\ns_mov_b32 s26, {Y_OFF}\ns_mov_b32 s27, {G_OFF}\nbuffer_load_dword v{G}, v{VG}, s[28:31], s27 offen sc1")
    for j in range(6):
        a(f"buffer_load_dwordx4 {vr(ZL+4*j,4)}, v{VZ}, s[28:31], s26 offen sc1\ns_add_u32 s26, s26, {2*ZP}")
    BF, OFR, ACC, YG = 0, 100, 120, 140
    VY2, G2 = 162, 167
    a(f"""
    s_waitcnt vmcnt(0)
    s_cmp_ge_u32 s20, 4
    s_cbranch_scc1 H_DESC
    """)
    for k in range(10): a(f"v_perm_b32 v{YG+10+k}, v{ZL+2*k+1}, v{ZL+2*k}, v{SH}")
    a("s_branch H_UNP\nH_DESC:")
    for k in range(10): a(f"v_perm_b32 v{YG+10+k}, v{ZL+19-2*k}, v{ZL+20-2*k}, v{SH}")
    a("H_UNP:")
    lwait(a, HPA, 8, 0xf, 8)
    a(f"""
    {st(8)}
    s_mov_b32 s41, s16
    s_mov_b32 s47, 0
P3_GO:
    s_setprio {opt('p3o', 0)}
    s_lshl_b32 s22, s17, 3
    s_and_b32 s23, s18, 3
    s_add_u32 s22, s22, s23
    s_lshl_b32 s22, s22, 1
    s_add_u32 s22, s22, s47
    s_mul_i32 s22, s22, 20480
    s_add_u32 s22, s22, {OF_OFF}
    s_lshl_b32 s44, s41, 12
    s_add_u32 s44, s44, s22
    s_lshl_b32 s45, s41, 10
    s_add_u32 s45, s45, s22
    s_add_u32 s45, s45, 16384
    s_lshl_b32 s46, s47, 2
    s_add_u32 s40, s46, {LFB + 80}
    s_add_u32 s46, s46, s41
    s_mul_i32 s46, s46, 5120
    s_add_u32 s46, s46, {WOL}
    s_mov_b32 s26, 0
    s_mov_b32 s42, 0
    v_mov_b32 v{CM}, {LFB + 32}
    """)
    lwait(a, CM, CT, 1, 8)
    a("P3_TRY:")
    for k in range(4):
        a(f"buffer_load_dwordx4 {vr(OFR+4*k,4)}, v{VA}, s[28:31], s44 offen offset:{1024*k} sc1")
    a(f"buffer_load_dwordx2 {vr(OFR+16,2)}, v{VT}, s[28:31], s45 offen sc1\nbuffer_load_dwordx2 {vr(OFR+18,2)}, v{VT}, s[28:31], s45 offen offset:128 sc1")
    a(f"""
    s_cmp_lg_u32 s26, 0
    s_cbranch_scc1 P3_CHK
    s_add_u32 s23, s41, 1
    s_and_b32 s23, s23, 3
    s_mul_i32 s23, s23, 25600
    s_add_u32 s23, s23, {WOL}
    v_add_u32 v{CM}, s23, v{BMM}
    v_add_u32 v{CT}, s23, v{BMT}
    """)
    for n in range(25):
        k, t = divmod(n, 5); d = BF + 4 * n
        bb, o, dj = (CM, k * 6400 + t * 8, 1280) if k < 4 else (CT, t * 8, 3200)
        a(f"ds_read_b64_tr_b16 {vr(d,2)}, v{bb} offset:{o}\nds_read_b64_tr_b16 {vr(d+2,2)}, v{bb} offset:{o+dj}")
    a(f"v_mov_b32 v{BMM}, {LFB + 36}\nv_mov_b32 v{BMT}, 1\ns_waitcnt lgkmcnt(0)")
    ladd(a, BMM, BMT, 0)
    b = OFR
    def mfs(k): return "\n".join(f"v_mfma_f32_16x16x32_bf16 {vr(ACC+4*t,4)}, {vr(BF+4*(5*k+t),4)}, {vr(OFR+4*k,4)}, {vr(ACC+4*t,4) if k else 0}" for t in range(5))
    if opt("spec", 1):
        a("P3_CHK:\ns_add_u32 s26, s26, 1\ns_mov_b32 s43, -1")
        for k in range(5):
            r = b + 4 * k
            a(f"""P3_C{k}:
            s_waitcnt vmcnt({max(0, 5 - k) if k < 4 else 0})
            v_max3_u32 v{CM}, v{r}, v{r+1}, v{r+2}
            v_max3_u32 v{CM}, v{r+3}, v{CM}, 1
            v_cmp_eq_u32 vcc, s43, v{CM}
            s_cbranch_vccnz P3_B{k}
            {mfs(k)}""")
        a(f"{'' if opt('fst', 0) else st(11)}\ns_branch P3_OK")
        for k in range(5):
            a(f"P3_B{k}:\ns_sleep {opt('p3s', 4)}")
            for kk in range(k, 4):
                a(f"buffer_load_dwordx4 {vr(OFR+4*kk,4)}, v{VA}, s[28:31], s44 offen offset:{1024*kk} sc1")
            a(f"buffer_load_dwordx2 {vr(OFR+16,2)}, v{VT}, s[28:31], s45 offen sc1\nbuffer_load_dwordx2 {vr(OFR+18,2)}, v{VT}, s[28:31], s45 offen offset:128 sc1")
            a(f"s_add_u32 s26, s26, 1\ns_cmp_lt_u32 s26, 0x40000\ns_cselect_b32 s43, -1, 0\ns_branch P3_C{k}")
        a("P3_OK:")
    else:
        a(f"P3_CHK:\ns_add_u32 s26, s26, 1\ns_waitcnt vmcnt(4)\nv_max3_u32 v{CM}, v{b}, v{b+1}, v{b+2}\nv_max3_u32 v{CT}, v{b+3}, v{b+4}, v{b+5}\nv_max3_u32 v{CM}, v{b+6}, v{b+7}, v{CM}\ns_waitcnt vmcnt(2)")
        a(f"v_max3_u32 v{CT}, v{b+8}, v{b+9}, v{CT}\nv_max3_u32 v{CM}, v{b+10}, v{b+11}, v{CM}\nv_max3_u32 v{CT}, v{b+12}, v{b+13}, v{CT}\nv_max3_u32 v{CM}, v{b+14}, v{b+15}, v{CM}\ns_waitcnt vmcnt(0)")
        a(f"""
    v_max3_u32 v{CT}, v{b+16}, v{b+17}, v{CT}
    v_max3_u32 v{CM}, v{b+18}, v{b+19}, v{CM}
    s_cmp_lt_u32 s26, 0x40000
    v_max_u32 v{CM}, v{CM}, v{CT}
    s_cbranch_scc0 P3_OK
    v_cmp_eq_u32 vcc, -1, v{CM}
    s_cbranch_vccz P3_OK
    s_sleep {opt("p3s", 4)}
    s_branch P3_TRY
P3_OK:
    {'' if opt('fst', 0) else st(11)}
    s_setprio {opt('p3p', 0)}
    """)
        for n in range(25):
            k, t = divmod(n, 5)
            a(f"v_mfma_f32_16x16x32_bf16 {vr(ACC+4*t,4)}, {vr(BF+4*n,4)}, {vr(OFR+4*k,4)}, {vr(ACC+4*t,4) if k else 0}")
    a("s_cmp_lg_u32 s42, 0\ns_cbranch_scc1 P3_WR")
    lwait(a, BMM, CT, 1, 8, 2)
    a(f"{str() if opt('fst', 0) else st(12)}\nP3_WR:\nv_add_u32 v{CM}, s46, v{VA}\nv_mov_b32 v{CT}, s40\ns_nop 1")
    for j in range(5): a(f"ds_write_b128 v{CM}, {vr(ACC+4*j,4)} offset:{1024*j}")
    a("s_waitcnt lgkmcnt(0)")
    ladd(a, CT, BMT, 0)
    a(f"""
    s_add_u32 s44, s44, {8*20480}
    s_add_u32 s45, s45, {8*20480}
    s_add_u32 s46, s46, {8*5120}
    s_add_u32 s40, s40, 8
    s_add_u32 s42, s42, 1
    s_cmp_ge_u32 s42, 2
    s_cbranch_scc1 P3_END
    s_cmp_ge_u32 s16, 4
    s_cbranch_scc1 P3_TRY
    """)
    for k in range(10): a(f"v_lshlrev_b32 v{YG+2*k}, 16, v{YG+10+k}\nv_and_b32 v{YG+2*k+1}, 0xffff0000, v{YG+10+k}")
    for k in range(20): a(f"v_mul_f32 v{YG+k}, v{YG+k}, v{G2}")
    a(f"""
    v_sub_f32 v{G2}, 1.0, v{G2}
    s_branch P3_TRY
P3_END:
    {st(10)}
    s_cmp_ge_u32 s16, 4
    s_cbranch_scc1 {"L_DONE" if STAMP else "L_END"}
    s_setprio 3
    s_lshl_b32 s23, s16, 2
    s_add_u32 s23, s23, {LFB + 80}
    v_mov_b32 v{CT}, s23
    s_mul_i32 s23, s16, 20480
    s_add_u32 s23, s23, {WOL}
    v_add_u32 v{CM}, s23, v{VA}
    """)
    lwait(a, CT, BMM, 1, 4, 1)
    a(st(9))
    for j in range(5):
        for g in range(4): a(f"ds_read_b128 {vr(16*j+4*g,4)}, v{CM} offset:{5120*g+1024*j}")
    for j in range(5):
        a(f"s_waitcnt lgkmcnt({min(15, 16-4*j)})")
        for r in (0, 2): a(f"v_pk_add_f32 {vr(16*j+r,2)}, {vr(16*j+r,2)}, {vr(16*j+4+r,2)}\nv_pk_add_f32 {vr(16*j+8+r,2)}, {vr(16*j+8+r,2)}, {vr(16*j+12+r,2)}")
        for r in (0, 2): a(f"v_pk_add_f32 {vr(16*j+r,2)}, {vr(16*j+r,2)}, {vr(16*j+8+r,2)}")
        for r in range(4): a(f"v_fmac_f32 v{YG+4*j+r}, v{16*j+r}, v{G2}")
        a(f"v_cvt_pk_bf16_f32 v{84+2*j}, v{YG+4*j}, v{YG+4*j+1}\nv_cvt_pk_bf16_f32 v{84+2*j+1}, v{YG+4*j+2}, v{YG+4*j+3}")
        if j == 1: a(f"buffer_store_dwordx4 v[84:87], v{VY2}, s[36:39], 0 offen" + OSC)
        if j == 3: a(f"buffer_store_dwordx4 v[88:91], v{VY2}, s[36:39], 0 offen offset:16" + OSC)
    a(f"buffer_store_dwordx2 v[92:93], v{VY2}, s[36:39], 0 offen offset:32" + OSC)

DOC = """;
"""
def main():
    a = A()
    top = open("cdna_kernels/" + NAME + ".s.ref").read().split("; Override launch")[0]
    top += "; @launch grid=(256,1,1) block=(768,1,1) lds=163840\n"
    top += DOC
    a('.amdgcn_target "amdgcn-amd-amdhsa--gfx950"\n.text')
    d = gen(a)
    open(sys.argv[1], "w").write(top + a.text() + '.section .rodata,"a"\n.p2align 6\n' + d)
if __name__ == "__main__":
    main()
```

```python
import sys, math, struct

OPT = dict(x.split("=") for x in sys.argv[2:])
def opt(k, d): return int(OPT.get(k, d))
NAME = "gated_mix__spectral_fnet__softmax_full_mha__prompt"
HS = 163840
KV_OFF = 0
HG = HS + opt('pad', 512)
HQ = 81920 + opt('pad', 512)
Q_OFF = 32 * HG
FE_OFF = Q_OFF + 32 * HQ
FO_DELTA = 655360
X512_OFF = FE_OFF + 2 * FO_DELTA
TB_OFF = X512_OFF + 4096
Y_OFF = TB_OFF + 33 * 65536
ZP = 8704
G_OFF = Y_OFF + 85 * 2 * ZP
OF_OFF = G_OFF + 8192
FLG_OFF = OF_OFF + 2621440
WS_USED = FLG_OFF + 320 * 128
XB = 102400
L_Y = 256
QLDS = 71680
RB0, RSL = 11264, 36864
LFB = 158720
WOL = 5120
AK1, AK2, AV, BK1, BK2, BV, OA1, OA2, ONES, PA, FA = range(152, 163)
VA, VT, BMM, BMT, CM, CT = 163, 164, 165, 166, 160, 161
PXB = 107520
def p3_addr(l):
    return f"""v_lshlrev_b32 v{VA}, 4, v{l}
    v_and_b32 v2, 7, v{l}
    v_bfe_u32 v4, v{l}, 3, 1
    v_lshrrev_b32 v3, 4, v{l}
    v_lshlrev_b32 v{VT}, 8, v3
    v_lshl_add_u32 v{VT}, v2, 4, v{VT}
    v_lshl_add_u32 v{VT}, v4, 3, v{VT}
    v_bfe_u32 v2, v{l}, 2, 2
    v_and_b32 v5, 3, v{l}
    v_mul_u32_u24 v5, 40, v5
    v_mul_u32_u24 v4, 40, v3
    v_add3_u32 v4, v4, v2, 16
    v_mul_u32_u24 v4, 160, v4
    v_add_u32 v{BMT}, v4, v5
    v_lshrrev_b32 v4, 1, v3
    v_mul_u32_u24 v4, 20, v4
    v_and_b32 v3, 1, v3
    v_lshl_add_u32 v4, v3, 2, v4
    v_add_u32 v4, v4, v2
    v_mul_u32_u24 v4, 160, v4
    v_add_u32 v{BMM}, v4, v5"""

def f32bits(x): return struct.unpack("<I", struct.pack("<f", x))[0]
QSCALE = f32bits((20 ** -0.5) * math.log2(math.e))
STAMP = opt("stamp", 0)
STAMP_OFF = 1 << 25
NST = 16

class A:
    def __init__(self): self.l = []; self.n = 0
    def __call__(self, s):
        for line in s.split("\n"):
            t = line.strip()
            if not t: continue
            self.l.append(t if t.endswith(":") or t.startswith(".") else "    " + t)
    def uid(self): self.n += 1; return self.n
    def text(self): return "\n".join(self.l) + "\n"

def vr(a, n): return f"v[{a}:{a+n-1}]" if n > 1 else f"v{a}"
def srd(lo, base, size):
    return f"s_mov_b32 s{lo}, s{base}\ns_mov_b32 s{lo+1}, s{base+1}\ns_mov_b32 s{lo+2}, {size}\ns_mov_b32 s{lo+3}, 0x20000"
OSC = " sc1" if opt("outsc1", 0) else ""
ALN = (f".p2align {opt('al', 0)}" if opt("al", 0) else "") + ("\ns_nop 0" if opt("al4", 0) else "")
ALN2 = f".p2align {opt('al2', 0)}" if opt("al2", 0) else ""
P1ST = opt("p1st", 0)
def st(i, p1=False):
    if not STAMP: return ""
    if P1ST and not p1 and 0 < i < 15 and i not in (4, 5): return ""
    if P1ST and not p1 and i in (4, 5): i += 8
    if p1 and not P1ST: return ""
    return f"{'s_memrealtime' if STAMP in (1, 3, 4) else 's_memtime'} s[{64+2*i}:{65+2*i}]"
def fin(): return "s_branch L_DONE" if STAMP else "s_endpgm"

X_P, WD_P, WQKV_P, WO_P, GATE_P, OUT_P, DBG_P, WS_P = 4, 8, 48, 50, 52, 54, 56, 58

def poll(a, vaddr, vdat, mask, target, sreg=60):
    u = a.uid()
    a(f"""
    s_mov_b64 exec, {mask}
    s_mov_b32 s{sreg}, 0
L_POLL{u}:
    buffer_load_dword v{vdat}, v{vaddr}, s[28:31], 0 offen sc1
    s_waitcnt vmcnt(0)
    v_cmp_gt_u32 vcc, {target}, v{vdat}
    s_cbranch_vccz L_POLLD{u}
    {'s_sleep 1' if opt('psleep', 0) else ''}
    s_add_u32 s{sreg}, s{sreg}, 1
    s_cmp_lt_u32 s{sreg}, 0x40000
    s_cbranch_scc1 L_POLL{u}
L_POLLD{u}:
    s_mov_b64 exec, -1
    """)

def poll4(a, vaddr, vdat, mask, soff="0", sreg=60, slp=None):
    u = a.uid()
    a(f"""
    s_mov_b64 exec, {mask}
    s_mov_b32 s{sreg}, 0
    s_branch L_POLLE{u}
L_POLL{u}:
    s_sleep {slp or opt("ps4", 2)}
L_POLLE{u}:
    buffer_load_dwordx4 {vr(vdat,4)}, v{vaddr}, s[28:31], {soff} offen sc1
    s_add_u32 s{sreg}, s{sreg}, 1
    s_waitcnt vmcnt(0)
    v_min3_u32 v{vdat}, v{vdat}, v{vdat+1}, v{vdat+2}
    s_cmp_lt_u32 s{sreg}, 0x40000
    v_min_u32 v{vdat}, v{vdat}, v{vdat+3}
    s_cbranch_scc0 L_POLLD{u}
    v_cmp_eq_u32 vcc, 0, v{vdat}
    s_cbranch_vccnz L_POLL{u}
L_POLLD{u}:
    s_mov_b64 exec, -1
    """)

def gen(a):
    label = NAME + "_kernel"
    a(f".p2align 8\n.globl {label}\n.type {label},@function\n{label}:")
    a(f"""
    s_cmp_ge_u32 s2, 256
    s_cbranch_scc1 L_END
    {st(0) + chr(10) + 's_waitcnt lgkmcnt(0)' if opt("st0first", 0) else ''}
    s_load_dwordx2 s[4:5], s[0:1], 0
    s_load_dwordx8 s[48:55], s[0:1], 48
    s_load_dwordx4 s[8:11], s[0:1], 24
    s_load_dwordx4 s[56:59], s[0:1], 80
    """)
    if STAMP:
        a("\n".join(f"s_mov_b32 s{64+j}, 0" for j in range(2, 2 * NST)) + "\n" + ("" if opt("st0first", 0) else st(0)))
    a(f"""
    v_lshrrev_b32 v1, 6, v0
    v_and_b32 v0, 63, v0
    s_and_b32 s17, s2, 7
    v_readfirstlane_b32 s16, v1
    s_lshr_b32 s18, s2, 3
    s_and_b32 s19, s18, 7
    s_lshr_b32 s22, s18, 3
    s_and_b32 s21, s17, 1
    s_lshl_b32 s23, s19, 1
    s_add_u32 s21, s21, s23
    s_lshr_b32 s20, s17, 1
    s_cmp_ge_u32 s19, {opt("numl", 4)}
    s_cselect_b32 s12, 1, 0
    s_cmp_eq_u32 s22, 0
    s_cselect_b32 s12, 0, s12
    s_cmp_ge_u32 s16, 4
    s_cbranch_scc1 P1_NOTLOADER
    """)
    p1_loader(a)
    a(f"""
P1_NOTLOADER:
    s_lshl_b32 s63, s17, 2
    s_add_u32 s63, s63, s22
    s_mul_i32 s14, s63, {HG}
    s_sub_u32 s13, s16, 4
    s_lshl_b32 s23, s19, 3
    s_add_u32 s23, s23, s13
    s_mul_i32 s23, s23, 40960
    s_add_u32 s23, s23, {OF_OFF}
    s_lshl_b32 s6, s63, 9
    s_add_u32 s6, s6, s23
    s_lshl_b32 s7, s63, 7
    s_add_u32 s7, s7, s23
    s_add_u32 s7, s7, 16384
    s_lshl_b32 s15, s20, 2
    s_add_u32 s15, s15, s22
    s_lshl_b32 s15, s15, 4
    s_add_u32 s15, s15, s21
    s_lshl_b32 s15, s15, 5
    s_add_u32 s15, s15, s13
    s_lshl_b32 s15, s15, 2
    s_add_u32 s15, s15, {FLG_OFF}
    v_and_b32 v1, 31, v0
    v_lshrrev_b32 v2, 5, v0
    v_lshlrev_b32 v{AK1}, 4, v0
    v_lshrrev_b32 v3, 4, v1
    v_lshl_add_u32 v3, v3, 1, v2
    v_and_b32 v4, 15, v0
    v_lshl_add_u32 v3, v4, 2, v3
    v_lshlrev_b32 v{AK2}, 2, v3
    v_mul_u32_u24 v{AV}, 384, v2
    v_lshlrev_b32 v3, 6, v2
    v_cmp_gt_u32 vcc, 16, v1
    s_nop 1
    v_cndmask_b32 v{AV}, v3, v{AV}, vcc
    v_lshl_add_u32 v{AV}, v1, 4, v{AV}
    v_add_u32 v{BK1}, 15360, v{AK1}
    v_add_u32 v{BK2}, 15360, v{AK2}
    v_add_u32 v{BV}, 15360, v{AV}
    v_and_b32 v3, 27, v1
    v_cmp_eq_u32 vcc, 24, v3
    v_mov_b32 v3, 0x3f803f80
    v_bfe_u32 v{OA2}, v1, 3, 1
    v_cndmask_b32 v{ONES}, 0, v3, vcc
    v_mul_u32_u24 v{OA2}, 20480, v{OA2}
    v_and_b32 v3, 7, v1
    v_lshl_add_u32 v{OA2}, v3, 4, v{OA2}
    v_lshrrev_b32 v3, 4, v0
    v_lshl_add_u32 v{OA1}, v3, 7, v{OA2}
    s_lshl_b32 s23, s13, 2
    s_add_u32 s23, s23, {LFB}
    v_mov_b32 v{PA}, s23
    v_mov_b32 v{FA}, {LFB + 56}
    {p3_addr(0)}
    s_cmp_ge_u32 s16, 8
    s_cbranch_scc1 P1_EXTRA
    """)
    p1_compute(a)
    p1_extra(a)
    attention(a)
    helpers(a)
    a("L_DONE:")
    if STAMP == 4:
        i_, j_ = opt("ai", 0), opt("aj", 0)
        a(f"""s_waitcnt vmcnt(0)
        {st(NST-1)}
        s_waitcnt lgkmcnt(0)
        {f's_cmp_lg_u32 s16, {opt("aw1", 0)}' if opt("aw1", 0) else f's_cmp_ge_u32 s16, {opt("aw", 4)}'}
        s_cbranch_scc1 L_END
        s_and_b32 s60, s2, {opt("am", 31)}
        s_cmp_lg_u32 s60, {opt("av", 5)}
        s_cbranch_scc1 L_END
        s_sub_u32 s60, s{64+2*j_}, s{64+2*i_}
        s_lshl_b32 s60, s60, 2
        s_min_u32 s60, s60, 100000
        {f's_mov_b32 s60, {opt("fix", 0)}' if opt("fix", 0) else ''}
L_AMP:
        s_memrealtime s[44:45]
        s_waitcnt lgkmcnt(0)
        s_sub_u32 s44, s44, s{64 if opt("fix", 0) else 64+2*(NST-1)}
        s_cmp_lt_u32 s44, s60
        s_cbranch_scc1 L_AMP
        """)
    elif STAMP == 3:
        r = f"s_waitcnt vmcnt(0)\n{st(NST-1)}\ns_mov_b64 exec, 1\n{srd(44, DBG_P, 256)}\ns_waitcnt lgkmcnt(0)\nv_mov_b32 v16, 0\n"
        r += "s_not_b32 s60, s64\nv_mov_b32 v0, s60\nbuffer_atomic_umax v0, v16, s[44:47], 0 offen offset:4 sc1\n"
        r += "s_cmp_eq_u32 s16, 0\ns_cbranch_scc1 L_D0\ns_cmp_eq_u32 s16, 4\ns_cbranch_scc0 L_END\n"
        for n, i in enumerate((2, 3, 4, 5, 7, 8, 9)): r += f"v_mov_b32 v{n+1}, s{64+2*i}\nbuffer_atomic_umax v{n+1}, v16, s[44:47], 0 offen offset:{8+4*n} sc1\n"
        r += "s_endpgm\nL_D0:\n"
        for n, i in enumerate((0, 1, 6, 8, 9, 10, 15)): r += f"v_mov_b32 v{n+1}, s{64+2*i}\nbuffer_atomic_umax v{n+1}, v16, s[44:47], 0 offen offset:{36+4*n} sc1\n"
        a(r)
    elif STAMP:
        r = f"s_waitcnt vmcnt(0)\n{st(NST-1)}\ns_mov_b64 exec, 1\ns_add_u32 s44, s{WS_P}, {STAMP_OFF}\ns_addc_u32 s45, s{WS_P+1}, 0\ns_mov_b32 s46, 262144\ns_mov_b32 s47, 0x20000\n"
        r += "s_lshl_b32 s60, s2, 4\ns_add_u32 s60, s60, s16\ns_lshl_b32 s60, s60, 6\ns_waitcnt lgkmcnt(0)\nv_mov_b32 v16, 0\n"
        if opt("xcc", 0): r += "s_getreg_b32 s66, hwreg(HW_REG_XCC_ID)\ns_add_u32 s66, s66, 100\n"
        for i in range(NST): r += f"v_mov_b32 v{i}, s{64+2*i}\n"
        for i in range(4): r += f"buffer_store_dwordx4 v[{4*i}:{4*i+3}], v16, s[44:47], s60 offen offset:{16*i}\n"
        a(r)
    a("L_END:\ns_endpgm\n.fill 256, 4, 0xbf810000\nL_CODE_END:")
    return f""".amdhsa_kernel {label}
  .amdhsa_next_free_vgpr 168
  .amdhsa_next_free_sgpr {100 if STAMP else 64}
  .amdhsa_accum_offset 168
  .amdhsa_group_segment_fixed_size 0
  .amdhsa_kernarg_size 96
  .amdhsa_user_sgpr_count 2
  .amdhsa_user_sgpr_kernarg_segment_ptr 1
  .amdhsa_system_sgpr_workgroup_id_x 1
.end_amdhsa_kernel
"""

def p1_loader(a):
    a(f"""
    s_setprio 3
    """)
    if opt("pf", 0):
        a(f"""
        v_lshlrev_b32 v20, 4, v0
        s_mul_i32 s23, s2, 10240
        s_and_b32 s24, s16, 1
        s_mul_i32 s24, s24, 5120
        s_add_u32 s23, s23, s24
        s_mul_i32 s25, s2, 3
        s_mov_b32 s31, 0x20000
        s_mov_b32 s35, 0x20000
        s_mov_b32 s34, {640*1280}
        s_waitcnt lgkmcnt(0)
        s_mov_b32 s30, {2048*1280}
        s_cmp_lt_u32 s16, 2
        s_cselect_b32 s28, s{X_P}, s{WQKV_P}
        s_cselect_b32 s29, s{X_P+1}, s{WQKV_P+1}
        s_cselect_b32 s30, s30, {640*3840}
        s_cselect_b32 s32, s8, s10
        s_cselect_b32 s33, s9, s11
        buffer_load_dwordx4 v[24:27], v20, s[28:31], s23 offen
        buffer_load_dwordx4 v[28:31], v20, s[28:31], s23 offen offset:1024
        buffer_load_dwordx4 v[32:35], v20, s[28:31], s23 offen offset:2048
        buffer_load_dwordx4 v[36:39], v20, s[28:31], s23 offen offset:3072
        s_add_u32 s23, s23, 4096
        buffer_load_dwordx4 v[40:43], v20, s[28:31], s23 offen
        s_lshr_b32 s24, s24, 11
        s_add_u32 s25, s25, s24
        s_mul_i32 s25, s25, 1280
        s_mov_b32 exec_hi, 0xff
        buffer_load_dwordx4 v[44:47], v20, s[32:35], s25 offen
        s_bitcmp1_b32 s16, 0
        s_cbranch_scc1 P1_PF1
        buffer_load_dwordx4 v[48:51], v20, s[32:35], s25 offen offset:1280
P1_PF1:
        s_mov_b32 exec_hi, -1
        """)
    a(f"""
    v_lshrrev_b32 v2, 3, v0
    v_and_b32 v3, 7, v0
    v_lshrrev_b32 v4, 4, v0
    v_xor_b32 v3, v3, v4
    v_lshlrev_b32 v3, 4, v3
    v_xor_b32 v4, 64, v3
    s_lshl_b32 s23, s21, 5
    s_lshr_b32 s24, s16, 1
    s_lshl_b32 s24, s24, 4
    s_add_u32 s23, s23, s24
    s_cmp_eq_u32 s22, 2
    s_cselect_b32 s25, 4, 0
    v_and_b32 v9, s25, v2
    v_add3_u32 v9, v9, v2, s23
    s_sub_u32 s25, 8, s25
    s_bitcmp1_b32 s16, 0
    s_cselect_b32 s23, -1, 1
    s_cselect_b32 s24, 0x400, 0
    s_mul_i32 s25, s25, s23
    v_mul_lo_u32 v10, v9, s23
    s_sub_u32 s27, 0x800, s24
    v_add_u32 v5, s24, v10
    v_sub_u32 v7, s27, v10
    v_add_u32 v6, s25, v5
    v_subrev_u32 v8, s25, v7
    v_cmp_eq_u32 vcc, 0, v9
    s_add_u32 s24, s24, 0x200
    v_mov_b32 v9, s24
    s_cmp_lg_u32 s22, 2
    v_cndmask_b32 v7, v7, v9, vcc
    s_cbranch_scc1 P1_LD_NV
    v_swap_b32 v6, v7
P1_LD_NV:
    s_movk_i32 s27, 1280
    v_mad_u32_u24 v10, v5, s27, v3
    v_mad_u32_u24 v11, v6, s27, v4
    v_mad_u32_u24 v12, v7, s27, v3
    v_mad_u32_u24 v13, v8, s27, v4
    """)
    EX = opt("early", 1) and opt("stag1", 7) == 7
    if EX:
        a(f"""
        s_lshr_b32 s36, s17, 1
        s_xor_b32 s36, s36, s17
        s_and_b32 s36, s36, 1
        s_xor_b32 s36, s36, 9
        s_lshl_b32 s41, s36, 7
        s_lshl_b32 s44, s16, 12
        s_add_u32 m0, s44, {RB0 + 2 * RSL}
        s_waitcnt lgkmcnt(0)
        {srd(28, X_P, 2048*1280)}
        buffer_load_dwordx4 v10, s[28:31], s41 offen lds
        """)
        for i in range(1, 4):
            a(f"s_add_u32 m0, s44, {RB0 + 2 * RSL + 1024*i}\ns_nop 0\nbuffer_load_dwordx4 v{10+i}, s[28:31], s41 offen lds")
    a(f"""
    s_lshl_b32 s26, s22, 2
    s_add_u32 s26, s26, s20
    s_and_b32 s27, s20, 1
    s_movk_i32 s25, 3840
    s_cmp_eq_u32 s22, 3
    s_cselect_b32 s25, 1280, s25
    s_cselect_b32 s26, s27, s26
    s_mul_i32 s26, s26, 320
    s_lshl_b32 s27, s16, 4
    s_mul_i32 s27, s27, s25
    s_add_u32 s26, s26, s27
    s_sub_u32 s27, s25, 320
    """)
    for i in range(5):
        a(f"""
        v_add_u32 v5, {64*i}, v0
        v_mul_u32_u24 v6, 3277, v5
        v_lshrrev_b32 v6, 16, v6
        v_lshrrev_b32 v7, 2, v6
        v_and_b32 v7, 2, v7
        v_xor_b32 v5, v5, v7
        v_lshl_add_u32 v5, v5, 4, s26
        v_mad_u32_u24 v{14+i}, v6, s27, v5
        """)
    sg = opt("stag1", 7)
    if sg == 1:
        a("s_lshl_b32 s36, s19, 3\ns_lshl_b32 s37, s22, 4\ns_add_u32 s36, s36, s37\ns_add_u32 s36, s36, s17\ns_and_b32 s36, s36, 63\ns_mul_i32 s36, s36, 10\ns_lshr_b32 s36, s36, 6")
    elif sg == 2:
        a("s_add_u32 s36, s19, s22\ns_lshl_b32 s36, s36, 4\ns_add_u32 s36, s36, s17\ns_add_u32 s36, s36, s17\ns_and_b32 s36, s36, 63\ns_mul_i32 s36, s36, 10\ns_lshr_b32 s36, s36, 6")
    elif sg == 3:
        a("s_add_u32 s36, s19, s22\ns_lshl_b32 s36, s36, 5\ns_lshl_b32 s37, s17, 2\ns_add_u32 s36, s36, s37\ns_and_b32 s36, s36, 63\ns_mul_i32 s36, s36, 10\ns_lshr_b32 s36, s36, 6")
    elif sg >= 10:
        nc = sg - 9
        Gn = 5 - nc
        rot = [2 * (nc + k % Gn) for k in range(2 * Gn - 1)]
        rv = sum(v << (4 * k) for k, v in enumerate(rot))
        com = sum((2 * k) << (4 * k) for k in range(nc))
        a(f"""
        s_lshr_b32 s36, s17, 1
        s_xor_b32 s36, s36, s17
        s_and_b32 s36, s36, 1
        s_add_u32 s37, s22, s19
        s_lshr_b32 s46, s17, 2
        s_lshl_b32 s46, s46, {opt("xsh", 1)}
        s_add_u32 s37, s37, s46
        s_mul_i32 s46, s37, {256 // Gn + 1}
        s_lshr_b32 s46, s46, 8
        s_mul_i32 s46, s46, {Gn}
        s_sub_u32 s37, s37, s46
        s_lshl_b32 s37, s37, 2
        s_lshr_b32 s46, {rv:#x}, s37
        s_and_b32 s46, s46, {(1 << (4 * Gn)) - 1:#x}
        s_lshl_b32 s46, s46, {4 * nc}
        s_or_b32 s46, s46, {0x53100000 | com:#x}
        s_mov_b32 s47, 0x97
        s_mul_i32 s37, s36, 0x11111111
        s_xor_b32 s46, s46, s37
        s_xor_b32 s47, s47, s37
        s_and_b32 s36, s46, 15
        """)
    elif sg >= 5:
        tsh = {5: 0, 6: 1, 7: 0, 8: 0, 9: 0}[sg]
        a(f"""
        s_lshr_b32 s36, s17, 1
        s_xor_b32 s36, s36, s17
        s_and_b32 s36, s36, 1
        {'s_min_u32 s37, s22, 2' if sg == 9 else f's_lshr_b32 s37, s22, {tsh}'}
        s_add_u32 s37, s37, s19
        s_lshr_b32 s46, s17, 2
        s_lshl_b32 s46, s46, 1
        s_add_u32 s37, s37, s46
        s_mul_i32 s46, s37, 52
        s_lshr_b32 s46, s46, 8
        s_mul_i32 s46, s46, 5
        s_sub_u32 s37, s37, s46
        s_lshl_b32 s37, s37, 2
        s_mov_b32 s46, 0x42086420
        s_mov_b32 s47, 0x6
        s_lshr_b64 s[46:47], s[46:47], s37
        s_and_b32 s46, s46, 0xfffff
        {'s_or_b32 s47, s46, 0x11111' + chr(10) + 's_lshl_b32 s37, s47, 20' + chr(10) + 's_or_b32 s46, s46, s37' + chr(10) + 's_lshr_b32 s47, s47, 12' if sg == 8 else 's_or_b32 s46, s46, 0x53100000' + chr(10) + 's_mov_b32 s47, 0x97'}
        s_mul_i32 s37, s36, 0x11111111
        s_xor_b32 s46, s46, s37
        s_xor_b32 s47, s47, s37
        """)
        if sg == 7:
            a("s_lshr_b32 s37, s47, 4\ns_and_b32 s37, s37, 15\ns_lshl_b64 s[46:47], s[46:47], 4\ns_or_b32 s46, s46, s37")
        a("s_and_b32 s36, s46, 15")
    else:
        a("s_mov_b32 s36, 0")
    a(f"""
    s_lshl_b32 s38, s16, 12
    s_add_u32 s38, s38, {RB0}
    s_mul_i32 s39, s16, 5120
    s_add_u32 s39, s39, {RB0 + 16384}
    s_mov_b32 s40, 0
    s_mul_i32 s34, s25, 640
    s_lshl_b32 s25, s25, 6
    s_mov_b32 s35, 0x20000
    s_waitcnt lgkmcnt(0)
    {srd(28, X_P, 2048*1280)}
    s_cmp_lt_u32 s20, 2
    s_cselect_b32 s32, s8, s10
    s_cselect_b32 s33, s9, s11
    s_cmp_eq_u32 s22, 3
    s_cselect_b32 s32, s32, s{WQKV_P}
    s_cselect_b32 s33, s33, s{WQKV_P+1}
    {st(1)}
    """)
    if opt("dftdelay", 0):
        a(f"""s_cmp_lg_u32 s22, 3
        s_cbranch_scc1 P1_LD_LOOP
        s_memrealtime s[42:43]
        s_waitcnt lgkmcnt(0)
        s_add_u32 s42, s42, {opt("dftdelay", 0)}
P1_DLY:
        s_memrealtime s[44:45]
        s_waitcnt lgkmcnt(0)
        s_cmp_lt_u32 s44, s42
        s_cbranch_scc1 P1_DLY
        """)
    a(f"""
P1_LD_LOOP:
    s_lshl_b32 s41, s36, 7
    s_mul_i32 s42, s36, s25
    s_add_u32 s43, s40, 2
    s_and_b32 s43, s43, 3
    s_mul_i32 s43, s43, {RSL}
    s_add_u32 s44, s43, s38
    s_add_u32 s45, s43, s39
    """)
    if EX: a("s_cmp_eq_u32 s40, 0\ns_cbranch_scc1 P1_LD_WW")
    for i in range(4):
        a(f"s_add_u32 m0, s44, {1024*i}\ns_nop 0\nbuffer_load_dwordx4 v{10+i}, s[28:31], s41 offen lds")
    a("P1_LD_WW:")
    for i in range(5):
        a(f"s_add_u32 m0, s45, {1024*i}\ns_nop 0\nbuffer_load_dwordx4 v{14+i}, s[32:35], s42 offen lds")
    if opt("noload", 0): a("s_cmp_ge_u32 s40, 3\ns_cselect_b32 s30, 0, s30\ns_cselect_b32 s34, 0, s34")
    a(f"""
    {'s_lshr_b64 s[46:47], s[46:47], 4' + chr(10) + 's_and_b32 s36, s46, 15' if sg >= 5 else 's_add_u32 s36, s36, 1' + chr(10) + 's_cmp_eq_u32 s36, 10' + chr(10) + 's_cselect_b32 s36, 0, s36'}
    s_add_u32 s40, s40, 1
    s_cmp_eq_u32 s40, 1
    s_cbranch_scc1 P1_LD_LOOP
    s_waitcnt vmcnt(9)
    s_barrier
    s_cmp_lt_u32 s40, 10
    s_cbranch_scc1 P1_LD_LOOP
    s_waitcnt vmcnt(0)
    s_barrier
    s_branch HELPER
    """)

def p1_compute(a):
    X = 80; W = [96, 116]; XA = 136; WA = 137; CX = 142; CW = 144; PC = 149; L = 150; TT = 96
    def acc(b, T): return 20 * b + 4 * T
    a(f"""
    s_sub_u32 s61, s16, 4
    s_and_b32 s36, s61, 1
    s_lshr_b32 s37, s61, 1
    v_mov_b32 v{L}, v0
    v_and_b32 v1, 15, v0
    v_lshrrev_b32 v2, 4, v0
    v_lshrrev_b32 v3, 1, v1
    v_xor_b32 v3, v3, v2
    v_lshlrev_b32 v3, 4, v3
    v_lshl_add_u32 v3, v1, 7, v3
    s_lshl_b32 s23, s36, 13
    s_add_u32 s23, s23, {RB0}
    v_add_u32 v{XA}, s23, v3
    v_bfe_u32 v3, v0, 2, 2
    v_lshl_add_u32 v3, v2, 3, v3
    v_mul_u32_u24 v3, 320, v3
    v_add_u32 v3, {RB0 + 16384}, v3
    v_and_b32 v4, 16, v0
    v_lshlrev_b32 v4, 1, v4
    v_and_b32 v5, 3, v0
    s_mul_i32 s23, s37, 160
    v_lshl_add_u32 v6, v5, 3, s23
    """)
    for T in range(4):
        a(f"v_xor_b32 v7, v6, v4\nv_add_u32 v{WA+T}, v7, v3\nv_add_u32 v6, 40, v6")
    a(f"""
    v_mul_u32_u24 v6, 40, v5
    v_add3_u32 v6, v6, s23, 32
    v_xor_b32 v7, v6, v4
    v_add_u32 v{WA+4}, v7, v3
    v_mov_b32 v{PC}, 0xbf803f80
    s_lshl_b32 s26, s22, 2
    s_add_u32 s26, s26, s20
    s_lshl_b32 s26, s26, 1
    s_add_u32 s26, s26, s37
    s_cmp_eq_u32 s26, 28
    s_cselect_b32 s24, 0x10001, 0
    s_mov_b32 s25, s24
    s_cmp_eq_u32 s22, 3
    s_cselect_b32 s43, 10, 8
    s_mov_b32 s40, 0
    s_mov_b32 s42, {2 * RSL}
    """)
    for r in range(96): a(f"v_mov_b32 v{r}, 0")
    for r in range(20): a(f"v_mov_b32 v{W[1]+r}, 0")
    a(f"v_add_u32 v{CX}, s42, v{XA}")
    for T in range(5): a(f"v_add_u32 v{CW+T}, s42, v{WA+T}")
    a(f"s_waitcnt lgkmcnt(0)\n{srd(28, WS_P, WS_USED)}")
    a(f"s_setprio {opt('cp', 2)}\ns_cmp_ge_u32 s22, 2\ns_cbranch_scc1 P1_PRE_V")
    def mf(b, T, x, w, qk):
        d = vr(acc(b, T), 4)
        return f"v_mfma_f32_16x16x32_bf16 {d}, {vr(w,4)}, {vr(x,4)}, {d}" if qk else f"v_mfma_f32_16x16x32_bf16 {d}, {vr(x,4)}, {vr(w,4)}, {d}"
    def rdw(d, T, step): return [f"ds_read_b64_tr_b16 {vr(d+2*j,2)}, v{CW+T} offset:{(step // 2) * RSL + (step % 2) * 10240 + 1280 * j}" for j in range(2)]
    def rdx(d, b, step): return f"ds_read_b128 {vr(d,4)}, v{CX + step % 2} offset:{(step // 2) * RSL + 2048 * b}"
    TO = (1, 2, 3, 4, 0)
    def group(step, qk, reads=True, patch=True):
        cur = W[1 - step]; nxt = W[step]
        rq = []
        for T in TO: rq += rdw(nxt + 4 * T, T, step)
        fill = []
        if step == 1:
            fill = ["s_add_u32 s40, s40, 1", "s_add_u32 s41, s40, 2", "s_and_b32 s41, s41, 3", f"s_mul_i32 s42, s41, {RSL}", f"v_add_u32 v{CX}, s42, v{XA}"] + [f"v_add_u32 v{CW+T}, s42, v{WA+T}" for T in range(5)]
        issued = 0
        for b in range(4):
            if reads:
                allow = [2, 15, issued + 1, issued][b]
                if b != 1: a(f"s_waitcnt lgkmcnt({min(15, allow)})")
            elif b == 0: a("s_waitcnt lgkmcnt(0)")
            for n, T in enumerate(TO):
                a(mf(b, T, X + 4 * b, cur + 4 * T, qk))
                if b == 0 and n < 2 and not qk and patch:
                    for j in range(2): a(f"v_cndmask_b32 v{cur+2*n+j}, v{cur+2*n+j}, v{PC}, s[24:25]")
                if not reads: continue
                if step == 0 and b == 0:
                    if n == 0: a(f"v_xor_b32 v{CX+1}, 64, v{CX}")
                    if n == opt("bn", 1): a("s_barrier")
                    if n <= opt("bn", 1): continue
                if n == 4: a(rdx(X + 4 * b, b, step)); issued += 1
                elif rq:
                    a(rq.pop(0)); issued += 1
                    if rq and (opt("rd2", 0) or (step == 0 and b == 1 and n < opt("bn", 1) - 1)): a(rq.pop(0)); issued += 1
                elif fill:
                    a(fill.pop(0))
                    if fill: a(fill.pop(0))
        assert not reads or (not rq and not fill), (rq, fill)

    def tail(qk, epi):
        seq = [(b, T, ("x0", b), ("w0", T)) for b in range(4) for T in TO]
        marks = {}
        win = opt("win", 2)
        for step in range(4 - win):
            for b in range(4):
                for T in TO: seq.append((b, T, ("x", 0, step, b), ("w", step, T)))
        for T in range(5):
            for jj in range(2):
                for step in range(4 - win, 4):
                    for b in (2 * jj, 2 * jj + 1): seq.append((b, T, ("x", 0, step, b), ("w", step, T)))
                marks[len(seq) - 1] = (T, jj)
        last = {}
        for n, (_, _, x, w) in enumerate(seq): last[x] = n; last[w] = n
        loc = {("x0", b): X + 4 * b for b in range(4)}; loc.update({("w0", T): W[1] + 4 * T for T in range(5)})
        free = [W[0] + 4 * k for k in range(5)] + [XA]
        order = []
        for _, _, x, w in seq:
            for f in (w, x):
                if f not in loc and f not in order: order.append(f)
        done_at = {}; nrd = 0; waited = 0; pend = []; fill = []
        cnt = [0]; prev = [0]
        def em(t): a(t); cnt[0] += 1
        a(f"v_xor_b32 v{CX+1}, 64, v{CX}\ns_waitcnt lgkmcnt(0)\ns_barrier")
        bar2 = [True]
        def take():
            f = order.pop(0); loc[f] = free.pop(0)
            if bar2 and (f[1] if f[0] == "w" else f[2]) >= 2: em("s_barrier"); bar2.pop()
            p_ = rdw(loc[f], f[2], f[1]) if f[0] == "w" else [rdx(loc[f], f[3], f[2])]
            done_at[f] = nrd + len(p_)
            return p_
        def gap():
            t, at, after = fill[0]
            return max(at - cnt[0], prev[0] + after - cnt[0], 0)
        def put():
            em(fill.pop(0)[0]); prev[0] = cnt[0]
        for n, (b, T, x, w) in enumerate(seq):
            while any(f not in loc or (f in done_at and done_at[f] > nrd) for f in (x, w)):
                if not pend: pend = take()
                em(pend.pop(0)); nrd += 1
            need = max(done_at.get(x, 0), done_at.get(w, 0))
            if need > waited:
                waited = max(need, nrd - opt("tw", 6)); em(f"s_waitcnt lgkmcnt({nrd - waited})")
            em(mf(b, T, loc[x], loc[w], qk))
            if n in marks: fill += [(t, cnt[0] + 8, after) for t, after in epi(*marks[n])]
            for f in (x, w):
                if last[f] == n: free.append(loc[f])
            if not pend and order and free: pend = take()
            if pend: em(pend.pop(0)); nrd += 1
            for _ in range(2):
                if fill and gap() == 0: put()
        a(st(3))
        while fill:
            g_ = gap()
            if g_: a(f"s_nop {g_ - 1}"); cnt[0] += g_
            put()

    EA, EB = 167, 151
    def cv(d, r): return [f"v_cvt_pk_bf16_f32 v{d}, v{r}, v{r+1}", f"v_cvt_pk_bf16_f32 v{d+1}, v{r+2}, v{r+3}"]
    def epi_qk(ph, jj=0):
        if ph < 0:
            return f"""s_mov_b32 s35, {HG}
            s_movk_i32 s38, 2560
            s_cmp_eq_u32 s22, 0
            s_cselect_b32 s35, {HQ}, s35
            s_cselect_b32 s27, {Q_OFF}, {KV_OFF}
            s_cselect_b32 s38, 1280, s38
            s_lshl_b32 s26, s20, 1
            s_add_u32 s26, s26, s37
            s_lshl_b32 s26, s26, 2
            s_mul_i32 s26, s26, s35
            s_add_u32 s26, s26, s27
            s_lshl_b32 s23, s21, 1
            s_add_u32 s23, s23, s36
            s_lshl_b32 s23, s23, 1
            s_mul_i32 s23, s23, s38
            s_add_u32 s26, s26, s23
            s_add_u32 s27, s26, s38
            v_lshrrev_b32 v{EA}, 4, v{L}
            v_mul_lo_u32 v{EA}, v{EA}, s35
            v_and_b32 v{TT}, 15, v{L}
            v_lshl_add_u32 v{EA}, v{TT}, 4, v{EA}
            v_lshlrev_b32 v{EB}, 4, v{L}
            s_add_u32 s44, s26, s35
            s_add_u32 s45, s27, s35
            s_add_u32 s46, s44, s35
            s_add_u32 s47, s45, s35
            s_add_u32 s32, s46, s35
            s_add_u32 s33, s47, s35""".split("\n")
        T = ph
        r0, r1 = acc(2 * jj, T), acc(2 * jj + 1, T)
        o = [(t, 0) for t in cv(r0, r0) + cv(r0 + 2, r1)]
        if T < 4:
            o += [(f"v_permlane16_swap_b32 v{r0}, v{r0+2}", 1), (f"v_permlane16_swap_b32 v{r0+1}, v{r0+3}", 0)]
            o.append((f"buffer_store_dwordx4 {vr(r0,4)}, v{EB}, s[28:31], s{(26, 44, 46, 32)[T] + jj} offen sc1", 0))
        else:
            o.append((f"buffer_store_dwordx4 {vr(r0,4)}, v{EA}, s[28:31], s{26 + jj} offen offset:1024 sc1", 0))
        return o
    def epi_v(ph, jj=0):
        if ph < 0:
            return f"""s_lshl_b32 s26, s20, 1
            s_add_u32 s26, s26, s37
            s_mul_i32 s26, s26, {4*HG}
            s_lshl_b32 s23, s21, 1
            s_add_u32 s23, s23, s36
            s_mul_i32 s23, s23, 5120
            s_add_u32 s26, s26, s23
            s_add_u32 s26, s26, {KV_OFF + 1280}
            s_add_u32 s44, s26, {HG}
            s_add_u32 s45, s26, {2*HG}
            s_add_u32 s46, s26, {3*HG}
            s_mov_b32 s35, {HG}
            v_lshrrev_b32 v{EA}, 5, v{L}
            v_mul_u32_u24 v{EA}, 640, v{EA}
            v_bfe_u32 v{TT}, v{L}, 4, 1
            v_lshl_add_u32 v{EB}, v{TT}, 6, v{EA}
            v_mul_u32_u24 v{TT}, 384, v{TT}
            v_add_u32 v{EA}, v{EA}, v{TT}
            v_and_b32 v{TT}, 15, v{L}
            v_lshl_add_u32 v{EA}, v{TT}, 4, v{EA}
            v_and_b32 v{TT}, 3, v{L}
            v_lshl_add_u32 v{EB}, v{TT}, 4, v{EB}
            v_bfe_u32 v{TT}, v{L}, 2, 2
            v_mul_lo_u32 v{TT}, v{TT}, s35
            v_add_u32 v{EB}, v{EB}, v{TT}""".split("\n")
        T = ph
        r0, r1 = acc(2 * jj, T), acc(2 * jj + 1, T)
        o = [(t, 0) for t in cv(r0, r0) + cv(r0 + 2, r1)]
        if T < 4: o.append((f"buffer_store_dwordx4 {vr(r0,4)}, v{EA}, s[28:31], s{(26, 44, 45, 46)[T]} offen offset:{2560 * jj} sc1", 0))
        else: o.append((f"buffer_store_dwordx4 {vr(r0,4)}, v{EB}, s[28:31], s26 offen offset:{2560 * jj + 256} sc1", 0))
        return o

    for qk, lab in ((True, "QK"), (False, "V")):
        a(f"P1_PRE_{lab}:")
        for f in (epi_qk if qk else epi_v)(-1): a(f)
        SEP = opt("sep", 0)
        if SEP and not qk: a("s_cmp_eq_u32 s22, 3\ns_cbranch_scc1 P1_LOOP_D")
        a(ALN2)
        a(f"P1_LOOP_{lab}:")
        group(0, qk, patch=not SEP)
        if STAMP: a(f"s_cmp_lg_u32 s40, 0\ns_cbranch_scc1 P1_ST_{lab}\n{st(2)}\nP1_ST_{lab}:\ns_cmp_lg_u32 s40, 5\ns_cbranch_scc1 P1_SU_{lab}\n{st(1)}\nP1_SU_{lab}:")
        group(1, qk, patch=not SEP)
        a(f"s_cmp_lt_u32 s40, s43\ns_cbranch_scc1 P1_LOOP_{lab}")
        if not qk: a("s_cmp_eq_u32 s22, 3\ns_cbranch_scc1 P1_EPI_DFT")
        a("s_cmp_eq_u32 s12, 1\ns_cselect_b32 s30, 0, s30")
        tail(qk, epi_qk if qk else epi_v)
        a(f"s_cmp_eq_u32 s12, 0\ns_cbranch_scc1 P1_DONE\ns_mov_b32 s30, {WS_USED}\nv_mov_b32 v88, {LFB + 56}\nv_mov_b32 v89, 1")
        ladd(a, 88, 89, 0)
        a(f"s_mov_b32 s34, 1\ns_branch ATT\nNU_{lab}:")
        for T in range(5):
            for jj in range(2): a((epi_qk if qk else epi_v)(T, jj)[-1][0])
        a("s_branch ATT_SIG")
    if SEP:
        a("P1_LOOP_D:"); group(0, False); group(1, False)
        a("s_cmp_lt_u32 s40, s43\ns_cbranch_scc1 P1_LOOP_D")
    a("P1_EPI_DFT:")
    group(0, False, reads=False)
    TAU, TAU0, E0 = 80, 81, 140
    a(f"""
    {st(3)}
    s_cmp_lt_u32 s20, 2
    s_cselect_b32 s38, 1.0, -1.0
    v_mov_b32 v{TAU}, s38
    v_cndmask_b32 v{TAU0}, v{TAU}, 1.0, s[24:25]
    s_lshl_b32 s26, s20, 1
    s_add_u32 s26, s26, s37
    s_mul_i32 s26, s26, 80
    v_and_b32 v88, 15, v{L}
    v_add_u32 v{E0}, s26, v88
    v_add_u32 v{E0+1}, 20, v{E0}
    v_add_u32 v{E0+2}, 40, v{E0}
    v_add_u32 v{E0+3}, 60, v{E0}
    v_and_b32 v89, 12, v{L}
    v_lshl_add_u32 v{E0+4}, v89, 2, v{E0}
    v_add_u32 v{E0+4}, 16, v{E0+4}
    s_lshl_b32 s23, s21, 1
    s_add_u32 s23, s23, s36
    s_cmp_lg_u32 s23, 0
    s_cbranch_scc1 P1_EPI_DFT2
    s_mov_b64 exec, 0xffff
    s_mov_b32 s27, {X512_OFF}
    """)
    for T in range(5):
        a(f"v_fma_f32 v{96+T}, v{acc(3,T)}, v{TAU0 if T == 0 else TAU}, v{acc(1,T)}")
        a(f"v_lshlrev_b32 v{104+T}, 2, v{E0+T}\nv_mov_b32 v{acc(1,T)}, 0\nv_mov_b32 v{acc(3,T)}, 0")
        a(f"buffer_store_dword v{96+T}, v{104+T}, s[28:31], s27 offen sc1")
    a(f"""
    s_mov_b64 exec, -1
P1_EPI_DFT2:
    s_lshl_b32 s26, s23, 9
    s_add_u32 s26, s26, {FE_OFF}
    s_mov_b32 s27, {FO_DELTA}
    v_bfe_u32 v88, v{L}, 4, 1
    v_mul_lo_u32 v88, v88, s27
    v_lshrrev_b32 v89, 5, v{L}
    v_lshl_add_u32 v88, v89, 8, v88
    """)
    for T in range(5):
        tau = TAU0 if T == 0 else TAU
        a0, a1, a2, a3 = (acc(b, T) for b in range(4))
        for q in range(4):
            a(f"v_fma_f32 v{a0+q}, v{a1+q}, v{tau}, v{a0+q}\nv_fma_f32 v{a3+q}, v{a2+q}, v{tau}, v{a3+q}")
        for q in range(4):
            a(f"v_add_f32 v{a1+q}, v{a0+q}, v{a3+q}\nv_sub_f32 v{a2+q}, v{a0+q}, v{a3+q}")
        for f in cv(a0, a1) + cv(a0 + 2, a2): a(f)
        a(f"""
        v_lshrrev_b32 v89, 4, v{E0+T}
        v_lshl_add_u32 v89, v89, 14, v88
        v_and_b32 v{E0+T}, 15, v{E0+T}
        v_lshl_add_u32 v{E0+T}, v{E0+T}, 4, v89
        v_permlane16_swap_b32 v{a0}, v{a0+2}
        v_permlane16_swap_b32 v{a0+1}, v{a0+3}
        """)
    a(f"v_mov_b32 v88, {LFB + 56}\nv_mov_b32 v89, 1\ns_mov_b32 s12, {opt('dnu', 1)}")
    ladd(a, 88, 89, 0)
    a("s_mov_b32 s34, 1\ns_branch ATT\nNU_D:")
    for T in range(5): a(f"buffer_store_dwordx4 {vr(4*T,4)}, v{E0+T}, s[28:31], s26 offen sc1")
    a("s_branch ATT_SIG")
    a(f"""
P1_DONE:
    {st(14)}
    s_mov_b32 s34, 0
    v_mov_b32 v84, 1
    v_mov_b32 v85, 1
    v_mov_b32 v86, 1
    v_mov_b32 v87, 1
    v_mov_b32 v88, {LFB + 44}
    v_mov_b32 v89, 0
    s_and_b32 s23, s15, -128
    s_mov_b64 exec, 1
    s_waitcnt vmcnt(0)
    ds_add_rtn_u32 v88, v88, v84
    s_waitcnt lgkmcnt(0)
    v_cmp_eq_u32 vcc, 3, v88
    s_cbranch_vccz P1_NS
    buffer_store_dwordx4 v[84:87], v89, s[28:31], s23 offen sc1
P1_NS:
    s_mov_b64 exec, -1
    s_branch ATT
    """)

def p1_extra(a):
    T0 = 40
    a(f"""
P1_EXTRA:
    s_sub_u32 s61, s16, 8
    """)
    if opt("cwarm", 1):
        a(f"""
        s_cmp_lg_u32 s16, 10
        s_cbranch_scc1 P1_NOCW
        s_lshl_b32 s23, s18, 10
        s_cmp_ge_u32 s23, L_CODE_END - {NAME}_kernel - 1023
        s_cbranch_scc1 P1_NOCW
        s_getpc_b64 s[44:45]
L_PC:
        s_sub_u32 s44, s44, L_PC - {NAME}_kernel
        s_subb_u32 s45, s45, 0
        v_lshl_add_u32 v40, v0, 4, s23
        global_load_dwordx4 v[44:47], v40, s[44:45]
P1_NOCW:
        """)
    a(f"""
    v_lshrrev_b32 v37, 4, v0
    v_and_b32 v38, 15, v0
    v_lshlrev_b32 v39, 4, v0
    v_mov_b32 v36, v0
    s_waitcnt lgkmcnt(0)
    {srd(28, WS_P, WS_USED)}
    {srd(32, DBG_P, 256)}
    s_cmp_lg_u32 s61, 0
    s_cbranch_scc1 P1_EX_A
    v_mov_b32 v1, 0
    v_lshlrev_b32 v2, 2, v0
    v_add_u32 v2, {LFB}, v2
    ds_write_b32 v2, v1
    s_waitcnt lgkmcnt(0)
    s_cmp_lt_u32 s2, 248
    s_cbranch_scc1 P1_EX_WAITRDY
    v_mov_b32 v4, 0
    v_mov_b32 v5, 0
    v_mov_b32 v6, 0
    v_mov_b32 v7, 0
    s_lshl_b32 s23, s17, 12
    s_add_u32 s23, s23, {FLG_OFF}
    buffer_store_dwordx4 v[4:7], v39, s[28:31], s23 offen sc1
    buffer_store_dwordx4 v[4:7], v39, s[28:31], s23 offen offset:1024 sc1
    buffer_store_dwordx4 v[4:7], v39, s[28:31], s23 offen offset:2048 sc1
    buffer_store_dwordx4 v[4:7], v39, s[28:31], s23 offen offset:3072 sc1
    s_lshl_b32 s23, s17, 10
    s_add_u32 s23, s23, {FLG_OFF + 32768}
    buffer_store_dwordx4 v[4:7], v39, s[28:31], s23 offen sc1
P1_EX_WAITRDY:
P1_EX_A:
    s_lshl_b32 s23, s2, 2
    s_add_u32 s23, s23, s61
    s_mov_b32 s40, 0
P1_TBL:
    s_lshr_b32 s24, s23, 5
    s_and_b32 s25, s23, 30
    s_and_b32 s26, s24, 1
    s_lshr_b32 s27, s24, 1
    s_lshl_b32 s27, s27, 6
    s_add_u32 s27, s27, s26
    s_and_b32 s26, s23, 1
    s_lshl_b32 s26, s26, 5
    s_add_u32 s27, s27, s26
    v_lshl_add_u32 v{T0}, v38, 1, s27
    s_lshl_b32 s25, s25, 4
    v_lshl_add_u32 v{T0+1}, v37, 3, s25
    v_mul_u32_u24 v{T0+1}, v{T0}, v{T0+1}
    v_and_b32 v{T0+1}, 0x7ff, v{T0+1}
    v_cvt_f32_u32 v{T0}, v{T0}
    v_cvt_f32_u32 v{T0+1}, v{T0+1}
    v_mul_f32 v{T0}, 0x3a000000, v{T0}
    v_mul_f32 v0, 0x3a000000, v{T0+1}
    """)
    for u in range(1, 8): a(f"v_add_f32 v{u}, v{u-1}, v{T0}")
    for u in range(1, 8): a(f"v_fract_f32 v{u}, v{u}")
    for u in range(8): a(f"v_cos_f32 v{8+u}, v{u}")
    for u in range(8): a(f"v_sin_f32 v{16+u}, v{u}")
    for j in range(4): a(f"v_cvt_pk_bf16_f32 v{24+j}, v{8+2*j}, v{9+2*j}")
    for j in range(4): a(f"v_cvt_pk_bf16_f32 v{28+j}, v{16+2*j}, v{17+2*j}")
    NB0 = opt("tblbar", 2)
    a(f"""
    s_cmp_lg_u32 s40, 0
    s_cbranch_scc1 P1_TBL_ST
    s_barrier
    {st(1, True)}
    s_cmp_lg_u32 s61, 0
    s_cbranch_scc1 P1_EX_NR
    s_cmp_lt_u32 s2, 248
    s_cbranch_scc1 P1_EX_NR
    v_mov_b32 v32, 1
    v_mov_b32 v33, 0
    s_lshl_b32 s24, s17, 2
    s_waitcnt vmcnt(0)
    s_mov_b64 exec, 1
    buffer_store_dword v32, v33, s[32:35], s24 offen sc1
    s_mov_b64 exec, -1
P1_EX_NR:
    """ + "".join(f"s_barrier\n{st(1 + b_, True)}\n" for b_ in range(1, NB0)) + f"""
    s_mov_b32 s40, 1
P1_TBL_ST:
    s_lshl_b32 s24, s23, 11
    s_add_u32 s24, s24, {TB_OFF}
    buffer_store_dwordx4 v[24:27], v39, s[28:31], s24 offen sc1
    buffer_store_dwordx4 v[28:31], v39, s[28:31], s24 offen offset:1024 sc1
    s_add_u32 s23, s23, 1024
    s_cmp_lt_u32 s23, 1056
    s_cbranch_scc1 P1_TBL
    """)
    nb = NB0
    assert nb <= 6
    a("".join(f"s_barrier\n{st(1 + b_, True)}\n" for b_ in range(nb, 6)))
    u = a.uid()
    a(f"""
    v_and_b32 v1, 7, v36
    v_lshlrev_b32 v1, 2, v1
    v_mov_b32 v2, 1
    s_mov_b32 s60, 0
    s_cmp_lg_u32 s61, 0
    s_cbranch_scc1 P1_EX_C
    buffer_load_dword v2, v1, s[32:35], 0 offen sc1
P1_EX_C:
    s_barrier
    {st(7, True)}
    s_barrier
    {st(8, True)}
L_RDY{u}:
    s_waitcnt vmcnt(0)
    v_cmp_eq_u32 vcc, 0, v2
    s_cbranch_vccz P1_EX_B
    s_sleep 1
    buffer_load_dword v2, v1, s[32:35], 0 offen sc1
    s_add_u32 s60, s60, 1
    s_cmp_lt_u32 s60, 0x40000
    s_cbranch_scc1 L_RDY{u}
P1_EX_B:
    s_waitcnt vmcnt(0)
    s_barrier
    {st(9, True)}
    s_barrier
    {st(10, True)}
    s_mov_b32 s34, 0
    """)

def attention(a):
    O = 20; S = [0, 40, 136, 120]; IX = 114; P = 36; P2 = 64; Q1 = 56; Q2 = 60; K2 = 62; K1 = 16; V1 = 68; V2 = [72, 76]; T = 80
    a(f"""
ATT:
    s_cmp_lt_u32 s13, 4
    s_cselect_b32 s40, {opt("o1", 4)}, {opt("y1", 4)}
    s_cselect_b32 s41, {opt("o2", 7)}, {opt("y2", 6)}
    s_movk_i32 s35, 0x10a
    s_bitset1_b32 s35, s40
    s_bitset1_b32 s35, s41
    s_mov_b32 s24, 0xfffff
    s_mov_b32 s25, 0xfffff
    s_mul_i32 s39, s13, 1280
    s_add_u32 s39, s39, {QLDS}
    v_mov_b32 v{Q2+1}, 0
    v_mov_b32 v{K2+1}, 0x3f803f80
    v_add_u32 v{T}, s39, v{AK1}
    v_add_u32 v{T+1}, s39, v{AK2}
    v_mov_b32 v{T+2}, 1
    """)
    NQ = opt("nq", 2)
    OX = [84, O]; QX1 = [100, Q1]; QX2 = [104, Q2]; U = 106; TM = 136; XS = 107520
    if NQ == 2:
        a(f"""
        s_xor_b32 s36, s13, 1
        s_mul_i32 s39, s36, 1280
        s_add_u32 s39, s39, {QLDS}
        v_add_u32 v{U}, s39, v{AK1}
        v_add_u32 v{U+1}, s39, v{AK2}
        v_mov_b32 v{U+2}, v{AK1}
        v_mov_b32 v{U+3}, v{AK2}
        v_mov_b32 v{QX2[0]+1}, 0
        s_mov_b32 s42, {QSCALE:#x}
        s_mov_b32 s43, s42
        s_and_b32 s37, s13, 1
        s_mul_i32 s37, s37, 2560
        v_and_b32 v{U+4}, 0x70, v{VA}
        v_lshrrev_b32 v{U+4}, 2, v{U+4}
        v_add_u32 v{U+4}, {LFB}, v{U+4}
        s_lshl_b32 s23, s13, 12
        s_add_u32 s23, s23, {XS}
        v_add_u32 v{U+5}, s23, v{VA}
        v_xor_b32 v{U+7}, 4, v{PA}
        s_lshl_b32 s23, s36, 12
        s_add_u32 s23, s23, {XS}
        v_add_u32 v{U+6}, s23, v{VA}
        s_lshr_b32 s38, s13, 2
        s_add_u32 s38, s38, 7
        """)
        for r in (AK1, AK2, AV, BK1, BK2, BV): a(f"v_add_u32 v{r}, s37, v{r}")
        for r in range(16): a(f"v_mov_b32 v{OX[0]+r}, 0")
    for r in range(12): a(f"v_mov_b32 v{V1+r}, v{ONES}")
    for r in range(16): a(f"v_mov_b32 v{O+r}, 0")
    for r in range(4): a(f"v_mov_b32 v{P+r}, -1")
    for r in range(8): a(f"v_mov_b32 v{S[3]+8+r}, 0")
    a(f"v_mov_b32 v{IX}, 0xdddddddd")
    def rk1(d): return f"v_mfma_f32_32x32x8_bf16 {vr(d,16)}, {vr(K2,2)}, {vr(Q2,2)}, 0"
    def rk2(d): return f"v_mfma_f32_32x32x16_bf16 {vr(d,16)}, {vr(K1,4)}, {vr(Q1,4)}, {vr(d,16)}"
    def qk1(d): return f"v_mfma_f32_32x32x16_bf16 {vr(d,16)}, {vr(K1,4)}, {vr(Q1,4)}, 0"
    def qk2(d): return f"v_mfma_f32_32x32x8_bf16 {vr(d,16)}, {vr(K2,2)}, {vr(Q2,2)}, {vr(d,16)}"
    def pv(v, p): return f"v_smfmac_f32_32x32x32_bf16 {vr(O,16)}, {vr(v,4)}, {vr(p,8)}, v{IX}"
    def of(t): return (t - 6 if t in (6, 7) else t) * 2560
    def rdk1(t): return f"ds_read_b128 {vr(K1,4)}, v{BK1 if t in (6, 7) else AK1} offset:{of(t)}"
    def rdk2(t): return f"ds_read_b32 v{K2}, v{BK2 if t in (6, 7) else AK2} offset:{of(t)+1024}"
    def rdv(t, v2):
        b = BV if t in (6, 7) else AV
        return f"s_mov_b64 exec, s[24:25]\nds_read_b128 {vr(V1,4)}, v{b} offset:{of(t)+1280}\nds_read_b128 {vr(v2,4)}, v{b} offset:{of(t)+1920}\ns_mov_b64 exec, -1"
    def maxtree(s, m, first):
        if first:
            a(f"v_max3_f32 v{m}, v{s}, v{s+1}, v{s+2}\nv_max3_f32 v{m+1}, v{s+3}, v{s+4}, v{s+5}")
            for j in range(6, 14, 4): a(f"v_max3_f32 v{m}, v{s+j}, v{s+j+1}, v{m}\nv_max3_f32 v{m+1}, v{s+j+2}, v{s+j+3}, v{m+1}")
            a(f"v_max3_f32 v{m}, v{s+14}, v{s+15}, v{m}\nv_max_f32 v{m}, v{m}, v{m+1}")
        else:
            for j in range(0, 16, 2): a(f"v_max3_f32 v{m}, v{s+j}, v{s+j+1}, v{m}")
    def xhalf(m):
        a(f"v_mov_b32 v{m+1}, v{m}\ns_nop 1\nv_permlane32_swap_b32 v{m}, v{m+1}\ns_nop 0\nv_max_f32 v{m}, v{m}, v{m+1}")
    a(f"""
    {st(4)}
    s_barrier
    s_setprio 3
    s_cmp_lg_u32 s34, 1
    s_cbranch_scc1 ATT_NOSIG
    s_cmp_eq_u32 s22, 1
    s_cbranch_scc1 NU_QK
    s_cmp_eq_u32 s22, 2
    s_cbranch_scc1 NU_V
    s_branch NU_D
ATT_SIG:
    """)
    if opt("comb", 1):
        a(f"""
        v_mov_b32 v{T+3}, {LFB + 44}
        s_and_b32 s23, s15, -128
        s_mov_b64 exec, 1
        s_waitcnt vmcnt(0)
        ds_add_rtn_u32 v{T+3}, v{T+3}, v{T+2}
        s_waitcnt lgkmcnt(0)
        v_cmp_eq_u32 vcc, 3, v{T+3}
        s_cbranch_vccz ATT_NOSIG
        buffer_store_dwordx4 {vr(P,4)}, v{O}, s[28:31], s23 offen sc1
        """)
    else:
        a(f"s_waitcnt vmcnt(0)\ns_mov_b64 exec, 1\nbuffer_store_dword v{T+2}, v{O}, s[28:31], s15 offen sc1")
    a(f"""
ATT_NOSIG:
    s_mov_b64 exec, -1
    {st(6)}
    """)
    def e(s, j): return f"v_exp_f32 v{s+j}, v{s+j}"
    def c(s, j): return f"v_cvt_pk_bf16_f32 v{P+j}, v{s+2*j}, v{s+2*j+1}"
    if NQ == 2:
        def xk1(x, d=None): return f"v_mfma_f32_32x32x16_bf16 {vr(S[x if d is None else d],16)}, {vr(K1,4)}, {vr(QX1[x],4)}, 0"
        def xk2(x, d=None): return f"v_mfma_f32_32x32x8_bf16 {vr(S[x if d is None else d],16)}, {vr(K2,2)}, {vr(QX2[x],2)}, {vr(S[x if d is None else d],16)}"
        def xpv(x, v, p): return f"v_smfmac_f32_32x32x32_bf16 {vr(OX[x],16)}, {vr(v,4)}, {vr(p,8)}, v{IX}"
        def scale(x):
            for j in range(5): a(f"v_lshlrev_b32 v{TM+2*j}, 16, v{QX1[x]+j}\nv_and_b32 v{TM+2*j+1}, 0xffff0000, v{QX1[x]+j}")
            if opt("pkq", 0):
                for j in range(0, 10, 2): a(f"v_pk_mul_f32 {vr(TM+j,2)}, {vr(TM+j,2)}, s[42:43]")
            else:
                for j in range(10): a(f"v_mul_f32 v{TM+j}, s42, v{TM+j}")
            for j in range(5): a(f"v_cvt_pk_bf16_f32 v{QX1[x]+j}, v{TM+2*j}, v{TM+2*j+1}")
        MH = f32bits(-0.5 * (20 ** -0.5) * math.log2(math.e))
        a(f"""
        ds_read_b128 {vr(K1,4)}, v{U+2}
        ds_read_b32 v{K2}, v{U+3} offset:1024
        ds_read_b128 {vr(QX1[0],4)}, v{U}
        ds_read_b32 v{QX2[0]}, v{U+1} offset:1024
        ds_read_b128 {vr(Q1,4)}, v{T}
        ds_read_b32 v{Q2}, v{T+1} offset:1024
        {rdv(0, V2[0])}
        s_waitcnt lgkmcnt(4)
        {xk1(0)}
        {xk2(0)}
        s_waitcnt lgkmcnt(2)
        {xk1(1)}
        {xk2(1)}
        {rdk1(0)}
        {rdk2(0)}
        s_mov_b32 s26, 0
        """)
        scale(0)
        maxtree(S[0], T, True)
        a(f"v_mul_f32 v{T}, {MH:#x}, v{T}\nv_cvt_pk_bf16_f32 v{QX2[0]+1}, v{T}, 0\ns_waitcnt lgkmcnt(0)\n{xk1(0)}\n{xk2(0)}")
        scale(1)
        maxtree(S[1], T, True)
        a(f"""
        v_mul_f32 v{T}, {MH:#x}, v{T}
        v_cvt_pk_bf16_f32 v{Q2+1}, v{T}, 0
        {xk1(1)}
        {rdk1(2)}
        {st(7)}
        {ALN}
ATT_LOOP:
        """)
        for i in range(4):
            for x in (0, 1):
                SP = {0: (4, 8, 12), 1: (5, 8, 13), 2: (4, 7, 11), 3: (5, 9, 13)}[opt('sp', 0)]
                n = 2 * i + x; cur = S[n % 4]; y = 1 - x; t_ = 2 * (i + 1)
                if x == 1: a("s_waitcnt lgkmcnt(0)")
                a(xk2(y, (n + 1) % 4))
                if x == 0: a(rdk2(t_))
                for q in range(SP[0]): a(e(cur, q))
                a(xpv(y, V2[(i + 1) % 2] if x == 0 else V2[i % 2], S[(n - 1) % 4] + 8))
                if x == 0: a("s_waitcnt lgkmcnt(1)")
                if x == 0 and i == 3: a.l[-1] = "    s_waitcnt vmcnt(0) lgkmcnt(1)"
                if x == 1 and i == 1: a(f"ds_write_b32 v{PA}, v{T+2}")
                if x == 1 and i == 3: a(f"ds_read_b32 v{U}, v{U+4}")
                for q in range(SP[0], SP[1]): a(e(cur, q))
                a(xk1(x, (n + 2) % 4))
                if x == 1: a(rdk1(t_ + 2))
                for q in range(SP[1], SP[2]): a(e(cur, q))
                a(xpv(x, V1, cur))
                if x == 1: a(rdv(t_, V2[(i + 1) % 2]))
                for q in range(SP[2], 16): a(e(cur, q))
    a(f"""
    s_add_u32 s26, s26, 1
    s_movk_i32 s27, 0x5000
    s_cmp_eq_u32 s26, 7
    s_cselect_b32 s27, {(0x5000 - 62 * 2560) & 0xffffffff}, s27
    v_add_u32 v{AK1}, 0x5000, v{AK1}
    v_add_u32 v{AK2}, 0x5000, v{AK2}
    v_add_u32 v{AV}, 0x5000, v{AV}
    v_add_u32 v{BK1}, s27, v{BK1}
    v_add_u32 v{BK2}, s27, v{BK2}
    v_add_u32 v{BV}, s27, v{BV}
    v_add_u32 v{T+2}, 1, v{T+2}
    s_bitcmp1_b32 s35, s26
    s_cbranch_scc0 ATT_LOOP
    s_cmp_gt_u32 s26, 3
    s_cbranch_scc1 ATT_EV
    v_add_u32 v{FA}, 8, v{FA}
    s_cmp_eq_u32 s26, 1
    s_cbranch_scc0 ATT_WAIT
    buffer_store_dwordx4 {vr(P,4)}, v{OA1}, s[28:31], s6 offen sc1
    s_mov_b64 exec, 0xffff
    buffer_store_dwordx4 {vr(P,4)}, v{OA2}, s[28:31], s7 offen sc1
    s_mov_b64 exec, -1
ATT_WAIT:
    ds_read_b32 v{T}, v{FA}
    s_waitcnt lgkmcnt(0)
    v_readfirstlane_b32 s23, v{T}
    s_cmp_ge_u32 s23, 4
    s_cbranch_scc1 ATT_LOOP
    s_sleep 1
    s_branch ATT_WAIT
ATT_EV:
    s_setprio 2
    s_cmp_eq_u32 s26, s40
    s_cbranch_scc1 ATT_LOOP
    s_setprio 1
    s_cmp_lt_u32 s26, 8
    s_cbranch_scc1 ATT_LOOP
    s_setprio 3
    {pv(V2[1], S[3]+8)}
    {st(8)}
    """)
    if NQ == 2:
        a(f"""
        s_mov_b32 s27, 0x3e800000
        s_mov_b32 s23, 0x71800000
        s_waitcnt lgkmcnt(3)
        v_cmp_gt_u32 vcc, s38, v{U}
        s_cbranch_vccz ATT_X0
ATT_X1:
        s_sleep 2
        ds_read_b32 v{U}, v{U+4}
        s_waitcnt lgkmcnt(0)
        v_cmp_gt_u32 vcc, s38, v{U}
        s_cbranch_vccnz ATT_X1
ATT_X0:
        """)
        for j in range(3): a(f"ds_write_b128 v{U+5}, {vr(OX[0]+4*j,4)} offset:{1024*j}")
        a(f"ds_write_b64 v{U+5}, {vr(OX[0]+12,2)} offset:3072\nds_write_b32 v{PA}, v{T+2} offset:96\nATT_X2:\nds_read_b32 v{U}, v{U+7} offset:96")
        for j in range(3): a(f"ds_read_b128 {vr(S[0]+4*j,4)}, v{U+6} offset:{1024*j}")
        a(f"ds_read_b64 {vr(S[0]+12,2)}, v{U+6} offset:3072\ns_waitcnt lgkmcnt(0)\nv_cmp_eq_u32 vcc, 0, v{U}\ns_cbranch_vccz ATT_X3\ns_sleep 1\ns_branch ATT_X2\nATT_X3:\ns_nop 1")
        for r in range(0, 14, 2): a(f"v_pk_add_f32 {vr(O+r,2)}, {vr(O+r,2)}, {vr(S[0]+r,2)}")
    else:
        a("s_mov_b32 s27, 0x3e800000\ns_mov_b32 s23, 0x71800000\ns_nop 9")
    a(f"v_rcp_f32 v{T+2}, v{O+12}\nv_add_f32 v{T}, |v{O}|, |v{O+1}|\nv_add_f32 v{T+1}, |v{O+2}|, |v{O+3}|")
    for j in range(4, 12, 2): a(f"v_add_f32 v{T}, |v{O+j}|, v{T}\nv_add_f32 v{T+1}, |v{O+j+1}|, v{T+1}")
    a(f"""
    v_add_f32 v{T}, v{T}, v{O+12}
    v_cmp_le_f32 s[42:43], s27, v{O+12}
    v_add_f32 v{T}, v{T}, v{T+1}
    v_cmp_gt_f32 vcc, s23, v{T}
    s_and_b64 vcc, vcc, s[42:43]
    s_cmp_eq_u64 vcc, -1
    s_cbranch_scc0 ATT_FALLBACK
ATT_FINISH:
    """)
    for j in range(0, 8, 2): a(f"v_pk_mul_f32 {vr(O+j,2)}, {vr(O+j,2)}, {vr(T+2,2)} op_sel_hi:[1,0]")
    for j in range(4): a(f"v_cvt_pk_bf16_f32 v{P+j}, v{O+2*j}, v{O+2*j+1}")
    for j in range(4): a(f"v_min_u32 v{P+j}, -2, v{P+j}")
    a(f"buffer_store_dwordx4 {vr(P,4)}, v{OA1}, s[28:31], s6 offen sc1")
    for j in range(8, 12, 2): a(f"v_pk_mul_f32 {vr(O+j,2)}, {vr(O+j,2)}, {vr(T+2,2)} op_sel_hi:[1,0]")
    for j in range(4, 6): a(f"v_cvt_pk_bf16_f32 v{P2+j-4}, v{O+2*j}, v{O+2*j+1}")
    for j in range(4, 6): a(f"v_min_u32 v{P2+j-4}, -2, v{P2+j-4}")
    a(f"""
    s_nop 1
    v_permlane16_swap_b32 v{P2}, v{P2+2}
    v_permlane16_swap_b32 v{P2+1}, v{P2+3}
    s_mov_b64 exec, 0xffff
    buffer_store_dwordx4 {vr(P2,4)}, v{OA2}, s[28:31], s7 offen sc1
    {st(9)}
    s_cmp_ge_u32 s13, 4
    s_cbranch_scc1 {"L_DONE" if STAMP else "L_END"}
    s_mov_b64 exec, -1
    s_xor_b32 s41, s13, {opt('gx', 2)}
    s_mov_b32 s47, 1
    s_branch P3_GO
    """)
    def gk(): return f"buffer_load_dwordx4 {vr(K1,4)}, v{AK1}, s[28:31], s23 offen sc1\nbuffer_load_dword v{K2}, v{AK2}, s[28:31], s23 offen offset:1024 sc1"
    a(f"""
ATT_FALLBACK:
    s_waitcnt lgkmcnt(0)
    v_mov_b32 v{Q2+1}, 0
    v_mov_b32 v{T}, 0xff800000
    {f's_add_u32 s23, s37, {HS}' if NQ == 2 else f's_mov_b32 s23, {HS}'}
    v_subrev_u32 v{AK1}, s23, v{AK1}
    v_subrev_u32 v{AK2}, s23, v{AK2}
    v_subrev_u32 v{AV}, s23, v{AV}
    s_add_u32 s23, s14, {KV_OFF}
    s_mov_b32 s26, 0
ATT_FB1:
    {gk()}
    s_add_u32 s23, s23, 2560
    s_waitcnt vmcnt(0)
    {qk1(S[0])}
    {qk2(S[0])}
    s_nop 15
    """)
    maxtree(S[0], T, False)
    a("s_add_u32 s26, s26, 1\ns_cmp_lt_u32 s26, 64\ns_cbranch_scc1 ATT_FB1")
    xhalf(T)
    a(f"s_add_u32 s23, s14, {KV_OFF}\ns_mov_b32 s26, 0")
    for r in range(16): a(f"v_mov_b32 v{O+r}, 0")
    a(f"""
ATT_FB2:
    {gk()}
    s_mov_b64 exec, s[24:25]
    buffer_load_dwordx4 {vr(V1,4)}, v{AV}, s[28:31], s23 offen offset:1280 sc1
    buffer_load_dwordx4 {vr(V2[0],4)}, v{AV}, s[28:31], s23 offen offset:1920 sc1
    s_mov_b64 exec, -1
    s_add_u32 s23, s23, 2560
    s_waitcnt vmcnt(0)
    {qk1(S[0])}
    {qk2(S[0])}
    s_nop 15
    """)
    for q in range(16): a(f"v_sub_f32 v{S[0]+q}, v{S[0]+q}, v{T}")
    for q in range(16): a(e(S[0], q))
    a(f"""
    s_nop 1
    {pv(V1, S[0])}
    {pv(V2[0], S[0]+8)}
    s_add_u32 s26, s26, 1
    s_cmp_lt_u32 s26, 64
    s_cbranch_scc1 ATT_FB2
    s_nop 15
    s_nop 3
    v_rcp_f32 v{T+2}, v{O+12}
    s_nop 0
    s_branch ATT_FINISH
    """)

def lwait(a, vaddr, vdat, mask, target, slp=8):
    u = a.uid()
    a(f"""
    s_mov_b64 exec, {mask}
    s_branch L_LWE{u}
L_LW{u}:
    s_sleep {slp}
L_LWE{u}:
    ds_read_b32 v{vdat}, v{vaddr}
    s_waitcnt lgkmcnt(0)
    v_cmp_gt_u32 vcc, {target}, v{vdat}
    s_cbranch_vccnz L_LW{u}
    s_mov_b64 exec, -1
    """)
def ladd(a, vaddr, vone, off):
    a(f"s_mov_b64 exec, 1\nds_add_u32 v{vaddr}, v{vone} offset:{off}\ns_mov_b64 exec, -1")

def helpers(a):
    WA, VG, VZ, SH, HPA, HONE, YFA, FZ, SG, XA5, LF = 112, 117, 118, 119, 120, 121, 122, 123, 124, 125, 126
    ZL = 40; G = 167; VY = 162; T = 132; LT = 127
    a(f"""
HELPER:
    s_mov_b32 s61, s22
    {st(2)}
    {srd(28, WS_P, WS_USED)}
    s_setprio 0
    s_lshr_b32 s20, s18, 2
    s_mul_i32 s26, s20, 160
    s_movk_i32 s23, {1280 - 160}
    """)
    for i in range(5):
        a(f"""
        v_add_u32 v{T}, {64*i}, v0
        v_mul_u32_u24 v{T+1}, 6554, v{T}
        v_lshrrev_b32 v{T+1}, 16, v{T+1}
        v_lshlrev_b32 v{T}, 4, v{T}
        v_mad_u32_u24 v{WA+i}, v{T+1}, s23, v{T}
        """)
    a(f"""
    s_lshl_b32 s21, s17, 3
    s_and_b32 s22, s18, 3
    s_add_u32 s21, s21, s22
    s_lshr_b32 s22, s16, 1
    s_lshl_b32 s22, s22, 2
    s_add_u32 s21, s21, s22
    s_lshl_b32 s21, s21, 1
    s_and_b32 s22, s16, 1
    s_add_u32 s21, s21, s22
    s_lshr_b32 s22, s21, 2
    s_lshl_b32 s22, s22, 1
    s_and_b32 s24, s21, 1
    s_add_u32 s22, s22, s24
    s_lshl_b32 s22, s22, 3
    v_and_b32 v{T}, 7, v0
    v_add_u32 v{T}, s22, v{T}
    s_bitcmp1_b32 s21, 1
    s_cselect_b32 s22, 0x400, 0
    s_cselect_b32 s24, -1, 1
    v_mul_lo_u32 v{T+1}, v{T}, s24
    s_sub_u32 s24, 0x800, s22
    v_sub_u32 v{T+2}, s24, v{T+1}
    v_add_u32 v{T+1}, s22, v{T+1}
    v_and_b32 v{T+3}, 8, v0
    v_cmp_ne_u32 vcc, 0, v{T+3}
    v_cmp_eq_u32 s[42:43], 0, v{T}
    v_lshlrev_b32 v{T+3}, 6, v{T+3}
    v_add_u32 v{T+3}, s22, v{T+3}
    v_cndmask_b32 v{T}, v{T+1}, v{T+2}, vcc
    v_lshrrev_b32 v{T+1}, 4, v0
    v_cndmask_b32 v{T}, v{T}, v{T+3}, s[42:43]
    v_mul_u32_u24 v{VY}, 1280, v{T}
    v_mul_u32_u24 v{T+2}, 40, v{T+1}
    v_add3_u32 v{VY}, v{VY}, v{T+2}, s26
    v_lshlrev_b32 v{VG}, 2, v{T}
    v_sub_u32 v{T+3}, 0x800, v{T}
    v_cmp_lt_u32 vcc, 0x400, v{T}
    v_min_u32 v{T}, v{T}, v{T+3}
    v_and_b32 v{T+3}, 1, v{T}
    v_mul_u32_u24 v{VZ}, {ZP}, v{T+3}
    v_lshrrev_b32 v{T+3}, 1, v{T}
    v_lshl_add_u32 v{VZ}, v{T+3}, 4, v{VZ}
    v_mov_b32 v{T+3}, 0x02020202
    v_cndmask_b32 v{SH}, 0, v{T+3}, vcc
    s_cmp_ge_u32 s20, 4
    s_mov_b32 s24, 0x05040100
    s_cselect_b32 s24, 0x07060302, s24
    s_cselect_b32 s40, -1, 1
    s_cselect_b32 s41, 155, 0
    v_xor_b32 v{SH}, s24, v{SH}
    s_mul_i32 s24, s20, 20
    v_mul_u32_u24 v{T+3}, 5, v{T+1}
    v_add_u32 v{T+3}, s24, v{T+3}
    v_mul_lo_u32 v{T+3}, v{T+3}, s40
    v_add_u32 v{T+3}, s41, v{T+3}
    v_mul_u32_u24 v{T+3}, {2*ZP}, v{T+3}
    v_add_u32 v{VZ}, v{VZ}, v{T+3}
    {p3_addr(0)}
    v_lshlrev_b32 v{HPA}, 2, v0
    v_add_u32 v{HPA}, {LFB}, v{HPA}
    v_mov_b32 v{HONE}, 1
    s_and_b32 s23, s2, 63
    s_lshl_b32 s23, s23, 5
    s_lshr_b32 s24, s2, 6
    s_add_u32 s23, s23, s24
    s_lshl_b32 s23, s23, 2
    s_add_u32 s23, s23, {FLG_OFF + 32768}
    v_mov_b32 v{YFA}, s23
    v_lshrrev_b32 v{FZ}, 4, v0
    v_mul_u32_u24 v{FZ}, {2*ZP}, v{FZ}
    v_and_b32 v{T}, 15, v0
    v_lshl_add_u32 v{FZ}, v{T}, 4, v{FZ}
    v_lshlrev_b32 v{SG}, 31, v0
    v_and_b32 v{XA5}, 48, v0
    v_lshlrev_b32 v{LF}, 7, v0
    v_bfe_u32 v{LT}, v0, 1, 2
    v_lshlrev_b32 v{LT}, 13, v{LT}
    v_and_b32 v{T}, 1, v0
    v_lshl_add_u32 v{LT}, v{T}, 7, v{LT}
    s_setprio 3
    s_lshr_b32 s19, s18, 3
    s_lshl_b32 s23, s17, 2
    s_add_u32 s19, s19, s23
    s_and_b32 s62, s18, 7
    s_mul_i32 s21, s19, {HG}
    v_lshlrev_b32 v1, 4, v0
    {st(3)}
    s_lshr_b32 s23, s19, 3
    s_lshl_b32 s23, s23, 13
    s_add_u32 s23, s23, {FLG_OFF}
    v_lshlrev_b32 v2, 7, v0
    v_add_u32 v2, s23, v2
    s_add_u32 s24, s21, {KV_OFF}
    s_lshl_b32 s40, 0x10000, s16
    s_lshl_b32 s41, 1, s16
    s_mul_i32 s22, s16, 10240
    s_add_u32 s26, s24, s22
    s_cmp_lg_u32 s16, 3
    s_cbranch_scc1 H_JA
    s_lshl_b32 s25, s62, 1
    s_lshl_b32 s40, 3, s25
    s_mov_b32 s41, 0
    s_mov_b32 s22, {QLDS}
    s_mul_i32 s26, s19, {HQ}
    s_mul_i32 s25, s62, 10240
    s_add_u32 s26, s26, s25
    s_add_u32 s26, s26, {Q_OFF}
H_JA:
    """)
    def job():
        r = f"s_add_u32 s25, s22, 5120\ns_cmp_ge_u32 s25, {LFB}\ns_cselect_b32 s25, 0, s25\n"
        for n in range(10):
            if n in (0, 3): r += f"s_add_u32 m0, s22, {1024*n}\ns_add_u32 s27, s26, {1024*n}\n"; o = 0
            if n in (5, 8): r += f"s_add_u32 m0, s25, {1024*(n-5)}\ns_add_u32 s27, s26, {1024*n}\n"; o = 0
            r += f"buffer_load_dwordx4 v1, s[28:31], s27 offen offset:{o} sc1 lds\n"; o += 1024
        return r
    if opt("latep", 1):
        a(f"s_mul_i32 s23, s12, 12\ns_cmp_eq_u32 s61, 3\ns_cselect_b32 s23, 12, s23\ns_add_u32 s23, s23, {LFB + 44}\nv_mov_b32 v3, s23")
        lwait(a, 3, 4, 1, 4, 2)
        if opt("lps", 0): a(f"s_sleep {opt('lps', 0)}")
    poll4(a, 2, 4, "s[40:41]")
    a(st(11)); a(job())
    a(f"""
    s_lshl_b32 s40, 0x80000, s16
    s_lshl_b32 s41, 8, s16
    s_add_u32 s22, s16, 3
    s_mul_i32 s22, s22, 10240
    s_add_u32 s26, s24, s22
    s_waitcnt vmcnt(0)
    {st(12)}
    s_barrier
    """)
    poll4(a, 2, 4, "s[40:41]")
    a(job())
    a(f"""
H_JB:
    s_lshl_b32 s41, 0x8880, s16
    s_and_b32 s41, s41, 0xffff
    s_lshl_b32 s40, s41, 16
    s_add_u32 s22, s16, 7
    s_mul_i32 s22, s22, 10240
    s_add_u32 s26, s24, s22
    s_waitcnt vmcnt(0)
    """)
    ladd(a, HPA, HONE, 64)
    a("s_cmp_lg_u32 s16, 0\ns_cbranch_scc1 H_NW")
    lwait(a, HPA, 4, 0xff, 1)
    a("H_NW:")
    poll4(a, 2, 4, "s[40:41]", slp=8)
    a(f"{st(13)}\nH_JC:"); a(job())
    a(f"""
    s_add_u32 s22, s22, 40960
    s_add_u32 s26, s26, 40960
    s_cmp_lt_u32 s22, {HS}
    s_cbranch_scc1 H_JC
    s_waitcnt vmcnt(0)
    {st(4)}
    """)
    ladd(a, HPA, HONE, 72)
    a(f"""
    s_cmp_lt_u32 s16, 3
    s_cbranch_scc1 H_FNET
    """)
    a(f"""
    {srd(32, X_P, 2048*1280)}
    {srd(36, GATE_P, 1280)}
    v_lshrrev_b32 v2, 3, v0
    v_and_b32 v3, 7, v0
    v_lshlrev_b32 v3, 4, v3
    s_movk_i32 s22, 1280
    v_mad_u32_u24 v4, v2, s22, v3
    s_mul_i32 s23, s2, {8*1280}
    """)
    for j in range(10):
        a(f"buffer_load_dwordx4 {vr(24+8*j,4)}, v4, s[32:35], s23 offen offset:{128*j}")
        a(f"buffer_load_dwordx4 {vr(28+8*j,4)}, v3, s[36:39], 0 offen offset:{128*j}")
    a("v_mov_b32 v5, 0\nv_mov_b32 v6, 0\ns_waitcnt vmcnt(0)")
    for j in range(10):
        for q in range(4):
            a(f"v_dot2c_f32_bf16 v{5 + (q & 1)}, v{24+8*j+q}, v{28+8*j+q}")
    a(f"""
    s_nop 2
    v_add_f32 v5, v5, v6
    s_nop 1
    v_add_f32_dpp v5, v5, v5 quad_perm:[1,0,3,2] row_mask:0xf bank_mask:0xf
    s_nop 1
    v_add_f32_dpp v5, v5, v5 quad_perm:[2,3,0,1] row_mask:0xf bank_mask:0xf
    s_nop 1
    v_add_f32_dpp v5, v5, v5 row_half_mirror row_mask:0xf bank_mask:0xf
    v_mul_f32 v5, {f32bits(-math.log2(math.e)):#x}, v5
    v_exp_f32 v5, v5
    v_lshlrev_b32 v2, 2, v2
    v_add_f32 v5, 1.0, v5
    v_rcp_f32 v5, v5
    s_lshl_b32 s23, s2, 5
    s_add_u32 s23, s23, {G_OFF}
    buffer_store_dword v5, v2, s[28:31], s23 offen sc1
    s_branch H_MID
    """)
    C, SN, FB = 0, 8, 16
    a(f"""
H_FNET:
    {'s_branch H_MID' if opt('nofnet', 0) == 1 else ''}
    {'s_mul_i32 s22, s18, 3' + chr(10) + 's_add_u32 s22, s22, s16' if opt("fm", 1) else 's_lshl_b32 s22, s16, 5' + chr(10) + 's_add_u32 s22, s22, s18'}
    s_cmp_lt_u32 s22, 84
    s_cbranch_scc1 H_FN_A
    s_sub_u32 s24, s22, 84
    s_lshl_b32 s24, s24, 3
    s_add_u32 s24, s24, s17
    s_cmp_ge_u32 s24, 21
    s_cbranch_scc1 H_MID
    s_mov_b32 s23, 32
    s_branch H_FN_B
H_FN_A:
    s_mul_i32 s23, s22, 3121
    s_lshr_b32 s23, s23, 16
    s_mul_i32 s24, s23, 21
    s_sub_u32 s24, s22, s24
    s_lshl_b32 s23, s23, 3
    s_add_u32 s23, s23, s17
H_FN_B:
    s_and_b32 s25, s23, 1
    s_add_u32 s26, s24, 20
    s_cmp_eq_u32 s24, 20
    s_cselect_b32 s26, 20, s26
    s_mul_i32 s32, s24, 26
    s_lshr_b32 s32, s32, 8
    s_lshl_b32 s32, s32, 13
    s_add_u32 s32, s32, {48 * 128}
    s_mul_i32 s33, s26, 26
    s_lshr_b32 s33, s33, 8
    s_lshl_b32 s33, s33, 13
    s_add_u32 s33, s33, {32 * 128}
    s_and_b32 s34, s23, 31
    s_lshl_b32 s34, s34, 8
    s_mov_b64 exec, 0xffff
    v_add_u32 v2, s32, v{LF}
    s_mov_b32 exec_lo, 0xffff0000
    v_add_u32 v2, s33, v{LF}
    s_mov_b32 exec_lo, 0
    s_mov_b32 exec_hi, 0xff
    v_add_u32 v2, s34, v{LT}
    s_mov_b32 s40, -1
    s_movk_i32 s41, 0xff
    s_mov_b32 s27, {FLG_OFF}
    """)
    poll4(a, 2, 4, "s[40:41]", "s27", slp=8)
    a(st(14))
    if opt("l1", 1): a("buffer_inv sc1")
    a(f"""
    s_lshl_b32 s32, s23, 16
    s_add_u32 s32, s32, {TB_OFF}
    s_mul_i32 s27, s25, {FO_DELTA}
    s_add_u32 s27, s27, {FE_OFF}
    s_lshl_b32 s33, s24, 14
    s_add_u32 s33, s33, s27
    s_lshl_b32 s34, s26, 14
    s_add_u32 s34, s34, s27
    s_cmp_eq_u32 s25, 0
    s_cselect_b32 s35, s24, s26
    s_lshl_b32 s35, s35, 6
    s_add_u32 s35, s35, {X512_OFF}
    buffer_load_dwordx4 v[128:131], v{XA5}, s[28:31], s35 offen sc1
    """)
    def flist(j):
        r = FB + 24 * j
        F = lambda d, sr: f"buffer_load_dwordx4 {vr(r+d,4)}, v163, s[28:31], {sr} offen offset:{1024*j} sc1"
        Tb = lambda k: f"buffer_load_dwordx4 {vr(r+8+4*k,4)}, v163, s[28:31], s32 offen offset:{1024*k}" + ("" if opt("l1", 1) else " sc1")
        last = "\ns_add_u32 s32, s32, 4096" + ("\ns_add_u32 s33, s33, 4096\ns_add_u32 s34, s34, 4096" if j == 3 else "")
        return [Tb(0), F(0, "s33") + "\n" + Tb(2), Tb(1), F(4, "s34") + "\n" + Tb(3) + last]
    def fl(j): return "\n".join(flist(j))
    def mlist(j):
        r = FB + 24 * j
        M = lambda d, x, y: f"v_mfma_f32_16x16x32_bf16 {vr(d,4)}, {vr(x,4)}, {vr(y,4)}, {vr(d,4)}"
        return [M(C, r, r + 8), M(C + 4, r, r + 16), M(SN, r + 4, r + 12), M(SN + 4, r + 4, r + 20)]
    for j in range(4): a(fl(j))
    a(f"""
    s_cmp_eq_u32 s25, 0
    s_cselect_b32 s36, 1.0, 0
    s_cselect_b32 s37, 0, 1.0
    v_or_b32 v161, s37, v{SG}
    v_or_b32 v160, s36, v{SG}
    s_waitcnt vmcnt(24)
    """)
    for r in range(8): a(f"v_mul_f32 v{C+r}, v160, v{128 + r % 4}\nv_mul_f32 v{SN+r}, v161, v{128 + r % 4}")
    a(f"s_setprio {opt('fp', 2)}\ns_mov_b32 s38, 0\nH_FN_LOOP:")
    for j in range(4):
        if opt("fil", 1):
            for m_, l_ in zip(mlist(j), flist(j)): a("s_waitcnt vmcnt(22)"); a(m_); a(l_)
        else:
            a("s_waitcnt vmcnt(18)"); a("\n".join(mlist(j))); a(fl(j))
    a("s_add_u32 s38, s38, 1\ns_cmp_lt_u32 s38, 3\ns_cbranch_scc1 H_FN_LOOP")
    for j in range(4):
        for m_, nd in zip(mlist(j), (2, 3, 5, 6)): a(f"s_waitcnt vmcnt({24 - 6 * j - nd})"); a(m_)
    a(f"""
    s_cmp_eq_u32 s26, 20
    s_cselect_b32 s44, 0xffff, 0
    s_mov_b32 s45, 0
    s_mul_i32 s26, s24, {8*ZP}
    s_mul_i32 s27, s25, {ZP}
    s_add_u32 s26, s26, s27
    s_lshr_b32 s27, s23, 1
    s_lshl_b32 s27, s27, 9
    s_add_u32 s26, s26, s27
    s_add_u32 s26, s26, {Y_OFF}
    v_cndmask_b32 v{SN}, v{SN}, 0, s[44:45]
    v_cndmask_b32 v{SN+4}, v{SN+4}, 0, s[44:45]
    """)
    for r in range(8):
        a(f"v_add_f32 v{16+r}, v{C+r}, v{SN+r}\nv_sub_f32 v{C+r}, v{C+r}, v{SN+r}")
    for r in range(8): a(f"v_cvt_pk_bf16_f32 v{16+r}, v{16+r}, v{C+r}")
    a(f"buffer_store_dwordx4 v[16:19], v{FZ}, s[28:31], s26 offen sc1\nbuffer_store_dwordx4 v[20:23], v{FZ}, s[28:31], s26 offen offset:256 sc1")
    a(f"""
H_MID:
    s_setprio 3
    s_lshl_b32 s19, s17, 2
    s_and_b32 s20, s18, 3
    s_add_u32 s19, s19, s20
    s_lshr_b32 s20, s18, 2
    {srd(32, WO_P, 640*1280)}
    {srd(36, OUT_P, 2621440)}
    s_mul_i32 s26, s20, 160
    s_mul_i32 s27, s16, {160*1280}
    s_add_u32 s27, s27, s26
    s_movk_i32 s23, {1280 - 160}
    """)
    a(f"""
    s_add_u32 s25, s16, 1
    s_and_b32 s25, s25, 3
    s_mul_i32 s22, s25, 25600
    s_add_u32 s22, s22, {WOL}
    s_add_u32 s25, s25, 3
    s_waitcnt vmcnt(0)
    {st(5)}
    """)
    lwait(a, HPA, T + 1, 0xff, 3)
    a(f"""s_mov_b64 exec, 1
    ds_add_rtn_u32 v{T+1}, v{HPA}, v{HONE} offset:48
    s_waitcnt lgkmcnt(0)
    v_cmp_eq_u32 vcc, 3, v{T+1}
    s_cbranch_vccz H_NOY
    buffer_store_dword v{HONE}, v{YFA}, s[28:31], 0 offen sc1
H_NOY:
    s_mov_b64 exec, -1""")
    lwait(a, HPA, T + 1, 0xff, "s25")
    a(f"{st(6)}\ns_mov_b32 s25, 0\nH_WO:")
    for i in range(5):
        a(f"s_add_u32 m0, s22, {1024*i}\ns_nop 0\nbuffer_load_dwordx4 v{WA+i}, s[32:35], s27 offen lds")
    a(f"""
    s_add_u32 s22, s22, 5120
    s_add_u32 s27, s27, {32*1280}
    s_add_u32 s25, s25, 1
    s_cmp_lt_u32 s25, 5
    s_cbranch_scc1 H_WO
    s_cmp_lg_u32 s16, 3
    s_cbranch_scc1 H_YW
    """)
    lwait(a, HPA, T + 1, 0xff, opt("ypr", 5), 16)
    a(f"s_mov_b32 s27, {FLG_OFF + 32768}")
    poll4(a, LF, 4, "-1", "s27", slp=opt("ys", 16))
    ladd(a, HPA, HONE, 40)
    a(f"H_YW:\nv_add_u32 v{T}, 40, v{HPA}")
    lwait(a, T, T + 1, 1, 1, 16)
    a("s_waitcnt vmcnt(0)")
    a(f"v_mov_b32 v{T}, 2")
    ladd(a, HPA, T, 32)
    a(f"{st(7)}\ns_mov_b32 s26, {Y_OFF}\ns_mov_b32 s27, {G_OFF}\nbuffer_load_dword v{G}, v{VG}, s[28:31], s27 offen sc1")
    for j in range(6):
        a(f"buffer_load_dwordx4 {vr(ZL+4*j,4)}, v{VZ}, s[28:31], s26 offen sc1\ns_add_u32 s26, s26, {2*ZP}")
    BF, OFR, ACC, YG = 0, 100, 120, 140
    VY2, G2 = 162, 167
    a(f"""
    s_waitcnt vmcnt(0)
    s_cmp_ge_u32 s20, 4
    s_cbranch_scc1 H_DESC
    """)
    for k in range(10): a(f"v_perm_b32 v{YG+10+k}, v{ZL+2*k+1}, v{ZL+2*k}, v{SH}")
    a("s_branch H_UNP\nH_DESC:")
    for k in range(10): a(f"v_perm_b32 v{YG+10+k}, v{ZL+19-2*k}, v{ZL+20-2*k}, v{SH}")
    a("H_UNP:")
    lwait(a, HPA, 8, 0xf, 8)
    a(f"""
    {st(8)}
    s_mov_b32 s41, s16
    s_mov_b32 s47, 0
P3_GO:
    s_setprio {opt('p3o', 0)}
    s_lshl_b32 s22, s17, 3
    s_and_b32 s23, s18, 3
    s_add_u32 s22, s22, s23
    s_lshl_b32 s22, s22, 1
    s_add_u32 s22, s22, s47
    s_mul_i32 s22, s22, 20480
    s_add_u32 s22, s22, {OF_OFF}
    s_lshl_b32 s44, s41, 12
    s_add_u32 s44, s44, s22
    s_lshl_b32 s45, s41, 10
    s_add_u32 s45, s45, s22
    s_add_u32 s45, s45, 16384
    s_lshl_b32 s46, s47, 2
    s_add_u32 s40, s46, {LFB + 80}
    s_add_u32 s46, s46, s41
    s_mul_i32 s46, s46, 5120
    s_add_u32 s46, s46, {WOL}
    s_mov_b32 s26, 0
    s_mov_b32 s42, 0
    v_mov_b32 v{CM}, {LFB + 32}
    """)
    lwait(a, CM, CT, 1, 8)
    a("P3_TRY:")
    for k in range(4):
        a(f"buffer_load_dwordx4 {vr(OFR+4*k,4)}, v{VA}, s[28:31], s44 offen offset:{1024*k} sc1")
    a(f"buffer_load_dwordx2 {vr(OFR+16,2)}, v{VT}, s[28:31], s45 offen sc1\nbuffer_load_dwordx2 {vr(OFR+18,2)}, v{VT}, s[28:31], s45 offen offset:128 sc1")
    a(f"""
    s_cmp_lg_u32 s26, 0
    s_cbranch_scc1 P3_CHK
    s_add_u32 s23, s41, 1
    s_and_b32 s23, s23, 3
    s_mul_i32 s23, s23, 25600
    s_add_u32 s23, s23, {WOL}
    v_add_u32 v{CM}, s23, v{BMM}
    v_add_u32 v{CT}, s23, v{BMT}
    """)
    for n in range(25):
        k, t = divmod(n, 5); d = BF + 4 * n
        bb, o, dj = (CM, k * 6400 + t * 8, 1280) if k < 4 else (CT, t * 8, 3200)
        a(f"ds_read_b64_tr_b16 {vr(d,2)}, v{bb} offset:{o}\nds_read_b64_tr_b16 {vr(d+2,2)}, v{bb} offset:{o+dj}")
    a(f"v_mov_b32 v{BMM}, {LFB + 36}\nv_mov_b32 v{BMT}, 1\ns_waitcnt lgkmcnt(0)")
    ladd(a, BMM, BMT, 0)
    b = OFR
    def mfs(k): return "\n".join(f"v_mfma_f32_16x16x32_bf16 {vr(ACC+4*t,4)}, {vr(BF+4*(5*k+t),4)}, {vr(OFR+4*k,4)}, {vr(ACC+4*t,4) if k else 0}" for t in range(5))
    if opt("spec", 1):
        a("P3_CHK:\ns_add_u32 s26, s26, 1\ns_mov_b32 s43, -1")
        for k in range(5):
            r = b + 4 * k
            a(f"""P3_C{k}:
            s_waitcnt vmcnt({max(0, 5 - k) if k < 4 else 0})
            v_max3_u32 v{CM}, v{r}, v{r+1}, v{r+2}
            v_max3_u32 v{CM}, v{r+3}, v{CM}, 1
            v_cmp_eq_u32 vcc, s43, v{CM}
            s_cbranch_vccnz P3_B{k}
            {mfs(k)}""")
        a(f"{'' if opt('fst', 0) else st(11)}\ns_branch P3_OK")
        for k in range(5):
            a(f"P3_B{k}:\ns_sleep {opt('p3s', 4)}")
            for kk in range(k, 4):
                a(f"buffer_load_dwordx4 {vr(OFR+4*kk,4)}, v{VA}, s[28:31], s44 offen offset:{1024*kk} sc1")
            a(f"buffer_load_dwordx2 {vr(OFR+16,2)}, v{VT}, s[28:31], s45 offen sc1\nbuffer_load_dwordx2 {vr(OFR+18,2)}, v{VT}, s[28:31], s45 offen offset:128 sc1")
            a(f"s_add_u32 s26, s26, 1\ns_cmp_lt_u32 s26, 0x40000\ns_cselect_b32 s43, -1, 0\ns_branch P3_C{k}")
        a("P3_OK:")
    else:
        a(f"P3_CHK:\ns_add_u32 s26, s26, 1\ns_waitcnt vmcnt(4)\nv_max3_u32 v{CM}, v{b}, v{b+1}, v{b+2}\nv_max3_u32 v{CT}, v{b+3}, v{b+4}, v{b+5}\nv_max3_u32 v{CM}, v{b+6}, v{b+7}, v{CM}\ns_waitcnt vmcnt(2)")
        a(f"v_max3_u32 v{CT}, v{b+8}, v{b+9}, v{CT}\nv_max3_u32 v{CM}, v{b+10}, v{b+11}, v{CM}\nv_max3_u32 v{CT}, v{b+12}, v{b+13}, v{CT}\nv_max3_u32 v{CM}, v{b+14}, v{b+15}, v{CM}\ns_waitcnt vmcnt(0)")
        a(f"""
    v_max3_u32 v{CT}, v{b+16}, v{b+17}, v{CT}
    v_max3_u32 v{CM}, v{b+18}, v{b+19}, v{CM}
    s_cmp_lt_u32 s26, 0x40000
    v_max_u32 v{CM}, v{CM}, v{CT}
    s_cbranch_scc0 P3_OK
    v_cmp_eq_u32 vcc, -1, v{CM}
    s_cbranch_vccz P3_OK
    s_sleep {opt("p3s", 4)}
    s_branch P3_TRY
P3_OK:
    {'' if opt('fst', 0) else st(11)}
    s_setprio {opt('p3p', 0)}
    """)
        for n in range(25):
            k, t = divmod(n, 5)
            a(f"v_mfma_f32_16x16x32_bf16 {vr(ACC+4*t,4)}, {vr(BF+4*n,4)}, {vr(OFR+4*k,4)}, {vr(ACC+4*t,4) if k else 0}")
    a("s_cmp_lg_u32 s42, 0\ns_cbranch_scc1 P3_WR")
    lwait(a, BMM, CT, 1, 8, 2)
    a(f"{str() if opt('fst', 0) else st(12)}\nP3_WR:\nv_add_u32 v{CM}, s46, v{VA}\nv_mov_b32 v{CT}, s40\ns_nop 1")
    for j in range(5): a(f"ds_write_b128 v{CM}, {vr(ACC+4*j,4)} offset:{1024*j}")
    a("s_waitcnt lgkmcnt(0)")
    ladd(a, CT, BMT, 0)
    a(f"""
    s_add_u32 s44, s44, {8*20480}
    s_add_u32 s45, s45, {8*20480}
    s_add_u32 s46, s46, {8*5120}
    s_add_u32 s40, s40, 8
    s_add_u32 s42, s42, 1
    s_cmp_ge_u32 s42, 2
    s_cbranch_scc1 P3_END
    s_cmp_ge_u32 s16, 4
    s_cbranch_scc1 P3_TRY
    """)
    for k in range(10): a(f"v_lshlrev_b32 v{YG+2*k}, 16, v{YG+10+k}\nv_and_b32 v{YG+2*k+1}, 0xffff0000, v{YG+10+k}")
    for k in range(20): a(f"v_mul_f32 v{YG+k}, v{YG+k}, v{G2}")
    a(f"""
    v_sub_f32 v{G2}, 1.0, v{G2}
    s_branch P3_TRY
P3_END:
    {st(10)}
    s_cmp_ge_u32 s16, 4
    s_cbranch_scc1 {"L_DONE" if STAMP else "L_END"}
    s_setprio 3
    s_lshl_b32 s23, s16, 2
    s_add_u32 s23, s23, {LFB + 80}
    v_mov_b32 v{CT}, s23
    s_mul_i32 s23, s16, 20480
    s_add_u32 s23, s23, {WOL}
    v_add_u32 v{CM}, s23, v{VA}
    """)
    lwait(a, CT, BMM, 1, 4, 1)
    a(st(9))
    for j in range(5):
        for g in range(4): a(f"ds_read_b128 {vr(16*j+4*g,4)}, v{CM} offset:{5120*g+1024*j}")
    for j in range(5):
        a(f"s_waitcnt lgkmcnt({min(15, 16-4*j)})")
        for r in (0, 2): a(f"v_pk_add_f32 {vr(16*j+r,2)}, {vr(16*j+r,2)}, {vr(16*j+4+r,2)}\nv_pk_add_f32 {vr(16*j+8+r,2)}, {vr(16*j+8+r,2)}, {vr(16*j+12+r,2)}")
        for r in (0, 2): a(f"v_pk_add_f32 {vr(16*j+r,2)}, {vr(16*j+r,2)}, {vr(16*j+8+r,2)}")
        for r in range(4): a(f"v_fmac_f32 v{YG+4*j+r}, v{16*j+r}, v{G2}")
        a(f"v_cvt_pk_bf16_f32 v{84+2*j}, v{YG+4*j}, v{YG+4*j+1}\nv_cvt_pk_bf16_f32 v{84+2*j+1}, v{YG+4*j+2}, v{YG+4*j+3}")
        if j == 1: a(f"buffer_store_dwordx4 v[84:87], v{VY2}, s[36:39], 0 offen" + OSC)
        if j == 3: a(f"buffer_store_dwordx4 v[88:91], v{VY2}, s[36:39], 0 offen offset:16" + OSC)
    a(f"buffer_store_dwordx2 v[92:93], v{VY2}, s[36:39], 0 offen offset:32" + OSC)

DOC = """;
"""
def main():
    a = A()
    top = open("cdna_kernels/" + NAME + ".s.ref").read().split("; Override launch")[0]
    top += "; @launch grid=(256,1,1) block=(768,1,1) lds=163840\n"
    top += DOC
    a('.amdgcn_target "amdgcn-amd-amdhsa--gfx950"\n.text')
    d = gen(a)
    open(sys.argv[1], "w").write(top + a.text() + '.section .rodata,"a"\n.p2align 6\n' + d)
if __name__ == "__main__":
    main()
```

```python
import sys, math, struct

OPT = dict(x.split("=") for x in sys.argv[2:])
def opt(k, d): return int(OPT.get(k, d))
NAME = "gated_mix__spectral_fnet__softmax_full_mha__prompt"
HS = 163840
KV_OFF = 0
HG = HS + opt('pad', 512)
HQ = 81920 + opt('pad', 512)
Q_OFF = 32 * HG
FE_OFF = Q_OFF + 32 * HQ
FO_DELTA = 655360
X512_OFF = FE_OFF + 2 * FO_DELTA
TB_OFF = X512_OFF + 4096
Y_OFF = TB_OFF + 33 * 65536
ZP = 8704
G_OFF = Y_OFF + 85 * 2 * ZP
OF_OFF = G_OFF + 8192
FLG_OFF = OF_OFF + 2621440
WS_USED = FLG_OFF + 320 * 128
XB = 102400
L_Y = 256
QLDS = 71680
RB0, RSL = 11264, 36864
LFB = 158720
WOL = 5120
AK1, AK2, AV, BK1, BK2, BV, OA1, OA2, ONES, PA, FA = range(152, 163)
VA, VT, BMM, BMT, CM, CT = 163, 164, 165, 166, 160, 161
PXB = 107520
def p3_addr(l):
    return f"""v_lshlrev_b32 v{VA}, 4, v{l}
    v_and_b32 v2, 7, v{l}
    v_bfe_u32 v4, v{l}, 3, 1
    v_lshrrev_b32 v3, 4, v{l}
    v_lshlrev_b32 v{VT}, 8, v3
    v_lshl_add_u32 v{VT}, v2, 4, v{VT}
    v_lshl_add_u32 v{VT}, v4, 3, v{VT}
    v_bfe_u32 v2, v{l}, 2, 2
    v_and_b32 v5, 3, v{l}
    v_mul_u32_u24 v5, 40, v5
    v_mul_u32_u24 v4, 40, v3
    v_add3_u32 v4, v4, v2, 16
    v_mul_u32_u24 v4, 160, v4
    v_add_u32 v{BMT}, v4, v5
    v_lshrrev_b32 v4, 1, v3
    v_mul_u32_u24 v4, 20, v4
    v_and_b32 v3, 1, v3
    v_lshl_add_u32 v4, v3, 2, v4
    v_add_u32 v4, v4, v2
    v_mul_u32_u24 v4, 160, v4
    v_add_u32 v{BMM}, v4, v5"""

def f32bits(x): return struct.unpack("<I", struct.pack("<f", x))[0]
QSCALE = f32bits((20 ** -0.5) * math.log2(math.e))
STAMP = opt("stamp", 0)
STAMP_OFF = 1 << 25
NST = 16

class A:
    def __init__(self): self.l = []; self.n = 0
    def __call__(self, s):
        for line in s.split("\n"):
            t = line.strip()
            if not t: continue
            self.l.append(t if t.endswith(":") or t.startswith(".") else "    " + t)
    def uid(self): self.n += 1; return self.n
    def text(self): return "\n".join(self.l) + "\n"

def vr(a, n): return f"v[{a}:{a+n-1}]" if n > 1 else f"v{a}"
def srd(lo, base, size):
    return f"s_mov_b32 s{lo}, s{base}\ns_mov_b32 s{lo+1}, s{base+1}\ns_mov_b32 s{lo+2}, {size}\ns_mov_b32 s{lo+3}, 0x20000"
OSC = " sc1" if opt("outsc1", 0) else ""
ALN = (f".p2align {opt('al', 0)}" if opt("al", 0) else "") + ("\ns_nop 0" if opt("al4", 0) else "")
ALN2 = f".p2align {opt('al2', 0)}" if opt("al2", 0) else ""
P1ST = opt("p1st", 0)
def st(i, p1=False):
    if not STAMP: return ""
    if P1ST and not p1 and 0 < i < 15 and i not in (4, 5): return ""
    if P1ST and not p1 and i in (4, 5): i += 8
    if p1 and not P1ST: return ""
    return f"{'s_memrealtime' if STAMP in (1, 3, 4) else 's_memtime'} s[{64+2*i}:{65+2*i}]"
def fin(): return "s_branch L_DONE" if STAMP else "s_endpgm"

X_P, WD_P, WQKV_P, WO_P, GATE_P, OUT_P, DBG_P, WS_P = 4, 8, 48, 50, 52, 54, 56, 58

def poll(a, vaddr, vdat, mask, target, sreg=60):
    u = a.uid()
    a(f"""
    s_mov_b64 exec, {mask}
    s_mov_b32 s{sreg}, 0
L_POLL{u}:
    buffer_load_dword v{vdat}, v{vaddr}, s[28:31], 0 offen sc1
    s_waitcnt vmcnt(0)
    v_cmp_gt_u32 vcc, {target}, v{vdat}
    s_cbranch_vccz L_POLLD{u}
    {'s_sleep 1' if opt('psleep', 0) else ''}
    s_add_u32 s{sreg}, s{sreg}, 1
    s_cmp_lt_u32 s{sreg}, 0x40000
    s_cbranch_scc1 L_POLL{u}
L_POLLD{u}:
    s_mov_b64 exec, -1
    """)

def poll4(a, vaddr, vdat, mask, soff="0", sreg=60, slp=None):
    u = a.uid()
    a(f"""
    s_mov_b64 exec, {mask}
    s_mov_b32 s{sreg}, 0
    s_branch L_POLLE{u}
L_POLL{u}:
    s_sleep {slp or opt("ps4", 2)}
L_POLLE{u}:
    buffer_load_dwordx4 {vr(vdat,4)}, v{vaddr}, s[28:31], {soff} offen sc1
    s_add_u32 s{sreg}, s{sreg}, 1
    s_waitcnt vmcnt(0)
    v_min3_u32 v{vdat}, v{vdat}, v{vdat+1}, v{vdat+2}
    s_cmp_lt_u32 s{sreg}, 0x40000
    v_min_u32 v{vdat}, v{vdat}, v{vdat+3}
    s_cbranch_scc0 L_POLLD{u}
    v_cmp_eq_u32 vcc, 0, v{vdat}
    s_cbranch_vccnz L_POLL{u}
L_POLLD{u}:
    s_mov_b64 exec, -1
    """)

def gen(a):
    label = NAME + "_kernel"
    a(f".p2align 8\n.globl {label}\n.type {label},@function\n{label}:")
    a(f"""
    s_cmp_ge_u32 s2, 256
    s_cbranch_scc1 L_END
    {st(0) + chr(10) + 's_waitcnt lgkmcnt(0)' if opt("st0first", 0) else ''}
    s_load_dwordx2 s[4:5], s[0:1], 0
    s_load_dwordx8 s[48:55], s[0:1], 48
    s_load_dwordx4 s[8:11], s[0:1], 24
    s_load_dwordx4 s[56:59], s[0:1], 80
    """)
    if STAMP:
        a("\n".join(f"s_mov_b32 s{64+j}, 0" for j in range(2, 2 * NST)) + "\n" + ("" if opt("st0first", 0) else st(0)))
    a(f"""
    v_lshrrev_b32 v1, 6, v0
    v_and_b32 v0, 63, v0
    s_and_b32 s17, s2, 7
    v_readfirstlane_b32 s16, v1
    s_lshr_b32 s18, s2, 3
    s_and_b32 s19, s18, 7
    s_lshr_b32 s22, s18, 3
    s_and_b32 s21, s17, 1
    s_lshl_b32 s23, s19, 1
    s_add_u32 s21, s21, s23
    s_lshr_b32 s20, s17, 1
    s_cmp_ge_u32 s19, {opt("numl", 4)}
    s_cselect_b32 s12, 1, 0
    s_cmp_eq_u32 s22, 0
    s_cselect_b32 s12, 0, s12
    s_cmp_ge_u32 s16, 4
    s_cbranch_scc1 P1_NOTLOADER
    """)
    p1_loader(a)
    a(f"""
P1_NOTLOADER:
    s_lshl_b32 s63, s17, 2
    s_add_u32 s63, s63, s22
    s_mul_i32 s14, s63, {HG}
    s_sub_u32 s13, s16, 4
    s_lshl_b32 s23, s19, 3
    s_add_u32 s23, s23, s13
    s_mul_i32 s23, s23, 40960
    s_add_u32 s23, s23, {OF_OFF}
    s_lshl_b32 s6, s63, 9
    s_add_u32 s6, s6, s23
    s_lshl_b32 s7, s63, 7
    s_add_u32 s7, s7, s23
    s_add_u32 s7, s7, 16384
    s_lshl_b32 s15, s20, 2
    s_add_u32 s15, s15, s22
    s_lshl_b32 s15, s15, 4
    s_add_u32 s15, s15, s21
    s_lshl_b32 s15, s15, 5
    s_add_u32 s15, s15, s13
    s_lshl_b32 s15, s15, 2
    s_add_u32 s15, s15, {FLG_OFF}
    v_and_b32 v1, 31, v0
    v_lshrrev_b32 v2, 5, v0
    v_lshlrev_b32 v{AK1}, 4, v0
    v_lshrrev_b32 v3, 4, v1
    v_lshl_add_u32 v3, v3, 1, v2
    v_and_b32 v4, 15, v0
    v_lshl_add_u32 v3, v4, 2, v3
    v_lshlrev_b32 v{AK2}, 2, v3
    v_mul_u32_u24 v{AV}, 384, v2
    v_lshlrev_b32 v3, 6, v2
    v_cmp_gt_u32 vcc, 16, v1
    s_nop 1
    v_cndmask_b32 v{AV}, v3, v{AV}, vcc
    v_lshl_add_u32 v{AV}, v1, 4, v{AV}
    v_add_u32 v{BK1}, 15360, v{AK1}
    v_add_u32 v{BK2}, 15360, v{AK2}
    v_add_u32 v{BV}, 15360, v{AV}
    v_and_b32 v3, 27, v1
    v_cmp_eq_u32 vcc, 24, v3
    v_mov_b32 v3, 0x3f803f80
    v_bfe_u32 v{OA2}, v1, 3, 1
    v_cndmask_b32 v{ONES}, 0, v3, vcc
    v_mul_u32_u24 v{OA2}, 20480, v{OA2}
    v_and_b32 v3, 7, v1
    v_lshl_add_u32 v{OA2}, v3, 4, v{OA2}
    v_lshrrev_b32 v3, 4, v0
    v_lshl_add_u32 v{OA1}, v3, 7, v{OA2}
    s_lshl_b32 s23, s13, 2
    s_add_u32 s23, s23, {LFB}
    v_mov_b32 v{PA}, s23
    v_mov_b32 v{FA}, {LFB + 56}
    {p3_addr(0)}
    s_cmp_ge_u32 s16, 8
    s_cbranch_scc1 P1_EXTRA
    """)
    p1_compute(a)
    p1_extra(a)
    attention(a)
    helpers(a)
    a("L_DONE:")
    if STAMP == 4:
        i_, j_ = opt("ai", 0), opt("aj", 0)
        a(f"""s_waitcnt vmcnt(0)
        {st(NST-1)}
        s_waitcnt lgkmcnt(0)
        {f's_cmp_lg_u32 s16, {opt("aw1", 0)}' if opt("aw1", 0) else f's_cmp_ge_u32 s16, {opt("aw", 4)}'}
        s_cbranch_scc1 L_END
        s_and_b32 s60, s2, {opt("am", 31)}
        s_cmp_lg_u32 s60, {opt("av", 5)}
        s_cbranch_scc1 L_END
        s_sub_u32 s60, s{64+2*j_}, s{64+2*i_}
        s_lshl_b32 s60, s60, 2
        s_min_u32 s60, s60, 100000
        {f's_mov_b32 s60, {opt("fix", 0)}' if opt("fix", 0) else ''}
L_AMP:
        s_memrealtime s[44:45]
        s_waitcnt lgkmcnt(0)
        s_sub_u32 s44, s44, s{64 if opt("fix", 0) else 64+2*(NST-1)}
        s_cmp_lt_u32 s44, s60
        s_cbranch_scc1 L_AMP
        """)
    elif STAMP == 3:
        r = f"s_waitcnt vmcnt(0)\n{st(NST-1)}\ns_mov_b64 exec, 1\n{srd(44, DBG_P, 256)}\ns_waitcnt lgkmcnt(0)\nv_mov_b32 v16, 0\n"
        r += "s_not_b32 s60, s64\nv_mov_b32 v0, s60\nbuffer_atomic_umax v0, v16, s[44:47], 0 offen offset:4 sc1\n"
        r += "s_cmp_eq_u32 s16, 0\ns_cbranch_scc1 L_D0\ns_cmp_eq_u32 s16, 4\ns_cbranch_scc0 L_END\n"
        for n, i in enumerate((2, 3, 4, 5, 7, 8, 9)): r += f"v_mov_b32 v{n+1}, s{64+2*i}\nbuffer_atomic_umax v{n+1}, v16, s[44:47], 0 offen offset:{8+4*n} sc1\n"
        r += "s_endpgm\nL_D0:\n"
        for n, i in enumerate((0, 1, 6, 8, 9, 10, 15)): r += f"v_mov_b32 v{n+1}, s{64+2*i}\nbuffer_atomic_umax v{n+1}, v16, s[44:47], 0 offen offset:{36+4*n} sc1\n"
        a(r)
    elif STAMP:
        r = f"s_waitcnt vmcnt(0)\n{st(NST-1)}\ns_mov_b64 exec, 1\ns_add_u32 s44, s{WS_P}, {STAMP_OFF}\ns_addc_u32 s45, s{WS_P+1}, 0\ns_mov_b32 s46, 262144\ns_mov_b32 s47, 0x20000\n"
        r += "s_lshl_b32 s60, s2, 4\ns_add_u32 s60, s60, s16\ns_lshl_b32 s60, s60, 6\ns_waitcnt lgkmcnt(0)\nv_mov_b32 v16, 0\n"
        if opt("xcc", 0): r += "s_getreg_b32 s66, hwreg(HW_REG_XCC_ID)\ns_add_u32 s66, s66, 100\n"
        for i in range(NST): r += f"v_mov_b32 v{i}, s{64+2*i}\n"
        for i in range(4): r += f"buffer_store_dwordx4 v[{4*i}:{4*i+3}], v16, s[44:47], s60 offen offset:{16*i}\n"
        a(r)
    a("L_END:\ns_endpgm\n.fill 256, 4, 0xbf810000\nL_CODE_END:")
    return f""".amdhsa_kernel {label}
  .amdhsa_next_free_vgpr 168
  .amdhsa_next_free_sgpr {100 if STAMP else 64}
  .amdhsa_accum_offset 168
  .amdhsa_group_segment_fixed_size 0
  .amdhsa_kernarg_size 96
  .amdhsa_user_sgpr_count 2
  .amdhsa_user_sgpr_kernarg_segment_ptr 1
  .amdhsa_system_sgpr_workgroup_id_x 1
.end_amdhsa_kernel
"""

def p1_loader(a):
    a(f"""
    s_setprio 3
    """)
    if opt("pf", 0):
        a(f"""
        v_lshlrev_b32 v20, 4, v0
        s_mul_i32 s23, s2, 10240
        s_and_b32 s24, s16, 1
        s_mul_i32 s24, s24, 5120
        s_add_u32 s23, s23, s24
        s_mul_i32 s25, s2, 3
        s_mov_b32 s31, 0x20000
        s_mov_b32 s35, 0x20000
        s_mov_b32 s34, {640*1280}
        s_waitcnt lgkmcnt(0)
        s_mov_b32 s30, {2048*1280}
        s_cmp_lt_u32 s16, 2
        s_cselect_b32 s28, s{X_P}, s{WQKV_P}
        s_cselect_b32 s29, s{X_P+1}, s{WQKV_P+1}
        s_cselect_b32 s30, s30, {640*3840}
        s_cselect_b32 s32, s8, s10
        s_cselect_b32 s33, s9, s11
        buffer_load_dwordx4 v[24:27], v20, s[28:31], s23 offen
        buffer_load_dwordx4 v[28:31], v20, s[28:31], s23 offen offset:1024
        buffer_load_dwordx4 v[32:35], v20, s[28:31], s23 offen offset:2048
        buffer_load_dwordx4 v[36:39], v20, s[28:31], s23 offen offset:3072
        s_add_u32 s23, s23, 4096
        buffer_load_dwordx4 v[40:43], v20, s[28:31], s23 offen
        s_lshr_b32 s24, s24, 11
        s_add_u32 s25, s25, s24
        s_mul_i32 s25, s25, 1280
        s_mov_b32 exec_hi, 0xff
        buffer_load_dwordx4 v[44:47], v20, s[32:35], s25 offen
        s_bitcmp1_b32 s16, 0
        s_cbranch_scc1 P1_PF1
        buffer_load_dwordx4 v[48:51], v20, s[32:35], s25 offen offset:1280
P1_PF1:
        s_mov_b32 exec_hi, -1
        """)
    a(f"""
    v_lshrrev_b32 v2, 3, v0
    v_and_b32 v3, 7, v0
    v_lshrrev_b32 v4, 4, v0
    v_xor_b32 v3, v3, v4
    v_lshlrev_b32 v3, 4, v3
    v_xor_b32 v4, 64, v3
    s_lshl_b32 s23, s21, 5
    s_lshr_b32 s24, s16, 1
    s_lshl_b32 s24, s24, 4
    s_add_u32 s23, s23, s24
    s_cmp_eq_u32 s22, 2
    s_cselect_b32 s25, 4, 0
    v_and_b32 v9, s25, v2
    v_add3_u32 v9, v9, v2, s23
    s_sub_u32 s25, 8, s25
    s_bitcmp1_b32 s16, 0
    s_cselect_b32 s23, -1, 1
    s_cselect_b32 s24, 0x400, 0
    s_mul_i32 s25, s25, s23
    v_mul_lo_u32 v10, v9, s23
    s_sub_u32 s27, 0x800, s24
    v_add_u32 v5, s24, v10
    v_sub_u32 v7, s27, v10
    v_add_u32 v6, s25, v5
    v_subrev_u32 v8, s25, v7
    v_cmp_eq_u32 vcc, 0, v9
    s_add_u32 s24, s24, 0x200
    v_mov_b32 v9, s24
    s_cmp_lg_u32 s22, 2
    v_cndmask_b32 v7, v7, v9, vcc
    s_cbranch_scc1 P1_LD_NV
    v_swap_b32 v6, v7
P1_LD_NV:
    s_movk_i32 s27, 1280
    v_mad_u32_u24 v10, v5, s27, v3
    v_mad_u32_u24 v11, v6, s27, v4
    v_mad_u32_u24 v12, v7, s27, v3
    v_mad_u32_u24 v13, v8, s27, v4
    """)
    EX = opt("early", 1) and opt("stag1", 7) == 7
    if EX:
        a(f"""
        s_lshr_b32 s36, s17, 1
        s_xor_b32 s36, s36, s17
        s_and_b32 s36, s36, 1
        s_xor_b32 s36, s36, 9
        s_lshl_b32 s41, s36, 7
        s_lshl_b32 s44, s16, 12
        s_add_u32 m0, s44, {RB0 + 2 * RSL}
        s_waitcnt lgkmcnt(0)
        {srd(28, X_P, 2048*1280)}
        buffer_load_dwordx4 v10, s[28:31], s41 offen lds
        """)
        for i in range(1, 4):
            a(f"s_add_u32 m0, s44, {RB0 + 2 * RSL + 1024*i}\ns_nop 0\nbuffer_load_dwordx4 v{10+i}, s[28:31], s41 offen lds")
    a(f"""
    s_lshl_b32 s26, s22, 2
    s_add_u32 s26, s26, s20
    s_and_b32 s27, s20, 1
    s_movk_i32 s25, 3840
    s_cmp_eq_u32 s22, 3
    s_cselect_b32 s25, 1280, s25
    s_cselect_b32 s26, s27, s26
    s_mul_i32 s26, s26, 320
    s_lshl_b32 s27, s16, 4
    s_mul_i32 s27, s27, s25
    s_add_u32 s26, s26, s27
    s_sub_u32 s27, s25, 320
    """)
    for i in range(5):
        a(f"""
        v_add_u32 v5, {64*i}, v0
        v_mul_u32_u24 v6, 3277, v5
        v_lshrrev_b32 v6, 16, v6
        v_lshrrev_b32 v7, 2, v6
        v_and_b32 v7, 2, v7
        v_xor_b32 v5, v5, v7
        v_lshl_add_u32 v5, v5, 4, s26
        v_mad_u32_u24 v{14+i}, v6, s27, v5
        """)
    sg = opt("stag1", 7)
    if sg == 1:
        a("s_lshl_b32 s36, s19, 3\ns_lshl_b32 s37, s22, 4\ns_add_u32 s36, s36, s37\ns_add_u32 s36, s36, s17\ns_and_b32 s36, s36, 63\ns_mul_i32 s36, s36, 10\ns_lshr_b32 s36, s36, 6")
    elif sg == 2:
        a("s_add_u32 s36, s19, s22\ns_lshl_b32 s36, s36, 4\ns_add_u32 s36, s36, s17\ns_add_u32 s36, s36, s17\ns_and_b32 s36, s36, 63\ns_mul_i32 s36, s36, 10\ns_lshr_b32 s36, s36, 6")
    elif sg == 3:
        a("s_add_u32 s36, s19, s22\ns_lshl_b32 s36, s36, 5\ns_lshl_b32 s37, s17, 2\ns_add_u32 s36, s36, s37\ns_and_b32 s36, s36, 63\ns_mul_i32 s36, s36, 10\ns_lshr_b32 s36, s36, 6")
    elif sg >= 10:
        nc = sg - 9
        Gn = 5 - nc
        rot = [2 * (nc + k % Gn) for k in range(2 * Gn - 1)]
        rv = sum(v << (4 * k) for k, v in enumerate(rot))
        com = sum((2 * k) << (4 * k) for k in range(nc))
        a(f"""
        s_lshr_b32 s36, s17, 1
        s_xor_b32 s36, s36, s17
        s_and_b32 s36, s36, 1
        s_add_u32 s37, s22, s19
        s_lshr_b32 s46, s17, 2
        s_lshl_b32 s46, s46, {opt("xsh", 1)}
        s_add_u32 s37, s37, s46
        s_mul_i32 s46, s37, {256 // Gn + 1}
        s_lshr_b32 s46, s46, 8
        s_mul_i32 s46, s46, {Gn}
        s_sub_u32 s37, s37, s46
        s_lshl_b32 s37, s37, 2
        s_lshr_b32 s46, {rv:#x}, s37
        s_and_b32 s46, s46, {(1 << (4 * Gn)) - 1:#x}
        s_lshl_b32 s46, s46, {4 * nc}
        s_or_b32 s46, s46, {0x53100000 | com:#x}
        s_mov_b32 s47, 0x97
        s_mul_i32 s37, s36, 0x11111111
        s_xor_b32 s46, s46, s37
        s_xor_b32 s47, s47, s37
        s_and_b32 s36, s46, 15
        """)
    elif sg >= 5:
        tsh = {5: 0, 6: 1, 7: 0, 8: 0, 9: 0}[sg]
        a(f"""
        s_lshr_b32 s36, s17, 1
        s_xor_b32 s36, s36, s17
        s_and_b32 s36, s36, 1
        {'s_min_u32 s37, s22, 2' if sg == 9 else f's_lshr_b32 s37, s22, {tsh}'}
        s_add_u32 s37, s37, s19
        s_lshr_b32 s46, s17, 2
        s_lshl_b32 s46, s46, 1
        s_add_u32 s37, s37, s46
        s_mul_i32 s46, s37, 52
        s_lshr_b32 s46, s46, 8
        s_mul_i32 s46, s46, 5
        s_sub_u32 s37, s37, s46
        s_lshl_b32 s37, s37, 2
        s_mov_b32 s46, 0x42086420
        s_mov_b32 s47, 0x6
        s_lshr_b64 s[46:47], s[46:47], s37
        s_and_b32 s46, s46, 0xfffff
        {'s_or_b32 s47, s46, 0x11111' + chr(10) + 's_lshl_b32 s37, s47, 20' + chr(10) + 's_or_b32 s46, s46, s37' + chr(10) + 's_lshr_b32 s47, s47, 12' if sg == 8 else 's_or_b32 s46, s46, 0x53100000' + chr(10) + 's_mov_b32 s47, 0x97'}
        s_mul_i32 s37, s36, 0x11111111
        s_xor_b32 s46, s46, s37
        s_xor_b32 s47, s47, s37
        """)
        if sg == 7:
            a("s_lshr_b32 s37, s47, 4\ns_and_b32 s37, s37, 15\ns_lshl_b64 s[46:47], s[46:47], 4\ns_or_b32 s46, s46, s37")
        a("s_and_b32 s36, s46, 15")
    else:
        a("s_mov_b32 s36, 0")
    a(f"""
    s_lshl_b32 s38, s16, 12
    s_add_u32 s38, s38, {RB0}
    s_mul_i32 s39, s16, 5120
    s_add_u32 s39, s39, {RB0 + 16384}
    s_mov_b32 s40, 0
    s_mul_i32 s34, s25, 640
    s_lshl_b32 s25, s25, 6
    s_mov_b32 s35, 0x20000
    s_waitcnt lgkmcnt(0)
    {srd(28, X_P, 2048*1280)}
    s_cmp_lt_u32 s20, 2
    s_cselect_b32 s32, s8, s10
    s_cselect_b32 s33, s9, s11
    s_cmp_eq_u32 s22, 3
    s_cselect_b32 s32, s32, s{WQKV_P}
    s_cselect_b32 s33, s33, s{WQKV_P+1}
    {st(1)}
    """)
    if opt("dftdelay", 0):
        a(f"""s_cmp_lg_u32 s22, 3
        s_cbranch_scc1 P1_LD_LOOP
        s_memrealtime s[42:43]
        s_waitcnt lgkmcnt(0)
        s_add_u32 s42, s42, {opt("dftdelay", 0)}
P1_DLY:
        s_memrealtime s[44:45]
        s_waitcnt lgkmcnt(0)
        s_cmp_lt_u32 s44, s42
        s_cbranch_scc1 P1_DLY
        """)
    a(f"""
P1_LD_LOOP:
    s_lshl_b32 s41, s36, 7
    s_mul_i32 s42, s36, s25
    s_add_u32 s43, s40, 2
    s_and_b32 s43, s43, 3
    s_mul_i32 s43, s43, {RSL}
    s_add_u32 s44, s43, s38
    s_add_u32 s45, s43, s39
    """)
    if EX: a("s_cmp_eq_u32 s40, 0\ns_cbranch_scc1 P1_LD_WW")
    for i in range(4):
        a(f"s_add_u32 m0, s44, {1024*i}\ns_nop 0\nbuffer_load_dwordx4 v{10+i}, s[28:31], s41 offen lds")
    a("P1_LD_WW:")
    for i in range(5):
        a(f"s_add_u32 m0, s45, {1024*i}\ns_nop 0\nbuffer_load_dwordx4 v{14+i}, s[32:35], s42 offen lds")
    if opt("noload", 0): a("s_cmp_ge_u32 s40, 3\ns_cselect_b32 s30, 0, s30\ns_cselect_b32 s34, 0, s34")
    a(f"""
    {'s_lshr_b64 s[46:47], s[46:47], 4' + chr(10) + 's_and_b32 s36, s46, 15' if sg >= 5 else 's_add_u32 s36, s36, 1' + chr(10) + 's_cmp_eq_u32 s36, 10' + chr(10) + 's_cselect_b32 s36, 0, s36'}
    s_add_u32 s40, s40, 1
    s_cmp_eq_u32 s40, 1
    s_cbranch_scc1 P1_LD_LOOP
    s_waitcnt vmcnt(9)
    s_barrier
    s_cmp_lt_u32 s40, 10
    s_cbranch_scc1 P1_LD_LOOP
    s_waitcnt vmcnt(0)
    s_barrier
    s_branch HELPER
    """)

def p1_compute(a):
    X = 80; W = [96, 116]; XA = 136; WA = 137; CX = 142; CW = 144; PC = 149; L = 150; TT = 96
    def acc(b, T): return 20 * b + 4 * T
    a(f"""
    s_sub_u32 s61, s16, 4
    s_and_b32 s36, s61, 1
    s_lshr_b32 s37, s61, 1
    v_mov_b32 v{L}, v0
    v_and_b32 v1, 15, v0
    v_lshrrev_b32 v2, 4, v0
    v_lshrrev_b32 v3, 1, v1
    v_xor_b32 v3, v3, v2
    v_lshlrev_b32 v3, 4, v3
    v_lshl_add_u32 v3, v1, 7, v3
    s_lshl_b32 s23, s36, 13
    s_add_u32 s23, s23, {RB0}
    v_add_u32 v{XA}, s23, v3
    v_bfe_u32 v3, v0, 2, 2
    v_lshl_add_u32 v3, v2, 3, v3
    v_mul_u32_u24 v3, 320, v3
    v_add_u32 v3, {RB0 + 16384}, v3
    v_and_b32 v4, 16, v0
    v_lshlrev_b32 v4, 1, v4
    v_and_b32 v5, 3, v0
    s_mul_i32 s23, s37, 160
    v_lshl_add_u32 v6, v5, 3, s23
    """)
    for T in range(4):
        a(f"v_xor_b32 v7, v6, v4\nv_add_u32 v{WA+T}, v7, v3\nv_add_u32 v6, 40, v6")
    a(f"""
    v_mul_u32_u24 v6, 40, v5
    v_add3_u32 v6, v6, s23, 32
    v_xor_b32 v7, v6, v4
    v_add_u32 v{WA+4}, v7, v3
    v_mov_b32 v{PC}, 0xbf803f80
    s_lshl_b32 s26, s22, 2
    s_add_u32 s26, s26, s20
    s_lshl_b32 s26, s26, 1
    s_add_u32 s26, s26, s37
    s_cmp_eq_u32 s26, 28
    s_cselect_b32 s24, 0x10001, 0
    s_mov_b32 s25, s24
    s_cmp_eq_u32 s22, 3
    s_cselect_b32 s43, 10, 8
    s_mov_b32 s40, 0
    s_mov_b32 s42, {2 * RSL}
    """)
    for r in range(96): a(f"v_mov_b32 v{r}, 0")
    for r in range(20): a(f"v_mov_b32 v{W[1]+r}, 0")
    a(f"v_add_u32 v{CX}, s42, v{XA}")
    for T in range(5): a(f"v_add_u32 v{CW+T}, s42, v{WA+T}")
    a(f"s_waitcnt lgkmcnt(0)\n{srd(28, WS_P, WS_USED)}")
    a(f"s_setprio {opt('cp', 2)}\ns_cmp_ge_u32 s22, 2\ns_cbranch_scc1 P1_PRE_V")
    def mf(b, T, x, w, qk):
        d = vr(acc(b, T), 4)
        return f"v_mfma_f32_16x16x32_bf16 {d}, {vr(w,4)}, {vr(x,4)}, {d}" if qk else f"v_mfma_f32_16x16x32_bf16 {d}, {vr(x,4)}, {vr(w,4)}, {d}"
    def rdw(d, T, step): return [f"ds_read_b64_tr_b16 {vr(d+2*j,2)}, v{CW+T} offset:{(step // 2) * RSL + (step % 2) * 10240 + 1280 * j}" for j in range(2)]
    def rdx(d, b, step): return f"ds_read_b128 {vr(d,4)}, v{CX + step % 2} offset:{(step // 2) * RSL + 2048 * b}"
    TO = (1, 2, 3, 4, 0)
    def group(step, qk, reads=True, patch=True):
        cur = W[1 - step]; nxt = W[step]
        rq = []
        for T in TO: rq += rdw(nxt + 4 * T, T, step)
        fill = []
        if step == 1:
            fill = ["s_add_u32 s40, s40, 1", "s_add_u32 s41, s40, 2", "s_and_b32 s41, s41, 3", f"s_mul_i32 s42, s41, {RSL}", f"v_add_u32 v{CX}, s42, v{XA}"] + [f"v_add_u32 v{CW+T}, s42, v{WA+T}" for T in range(5)]
        issued = 0
        for b in range(4):
            if reads:
                allow = [2, 15, issued + 1, issued][b]
                if b != 1: a(f"s_waitcnt lgkmcnt({min(15, allow)})")
            elif b == 0: a("s_waitcnt lgkmcnt(0)")
            for n, T in enumerate(TO):
                a(mf(b, T, X + 4 * b, cur + 4 * T, qk))
                if b == 0 and n < 2 and not qk and patch:
                    for j in range(2): a(f"v_cndmask_b32 v{cur+2*n+j}, v{cur+2*n+j}, v{PC}, s[24:25]")
                if not reads: continue
                if step == 0 and b == 0:
                    if n == 0: a(f"v_xor_b32 v{CX+1}, 64, v{CX}")
                    if n == opt("bn", 1): a("s_barrier")
                    if n <= opt("bn", 1): continue
                if n == 4: a(rdx(X + 4 * b, b, step)); issued += 1
                elif rq:
                    a(rq.pop(0)); issued += 1
                    if rq and (opt("rd2", 0) or (step == 0 and b == 1 and n < opt("bn", 1) - 1)): a(rq.pop(0)); issued += 1
                elif fill:
                    a(fill.pop(0))
                    if fill: a(fill.pop(0))
        assert not reads or (not rq and not fill), (rq, fill)

    def tail(qk, epi, win=None, nf=2):
        seq = [(b, T, ("x0", b), ("w0", T)) for b in range(4) for T in TO]
        marks = {}
        win = win or opt("win", 2)
        for step in range(4 - win):
            for b in range(4):
                for T in TO: seq.append((b, T, ("x", 0, step, b), ("w", step, T)))
        for T in range(5):
            for jj in range(2):
                for step in range(4 - win, 4):
                    for b in (2 * jj, 2 * jj + 1): seq.append((b, T, ("x", 0, step, b), ("w", step, T)))
                marks[len(seq) - 1] = (T, jj)
        last = {}
        for n, (_, _, x, w) in enumerate(seq): last[x] = n; last[w] = n
        loc = {("x0", b): X + 4 * b for b in range(4)}; loc.update({("w0", T): W[1] + 4 * T for T in range(5)})
        free = [W[0] + 4 * k for k in range(5)] + [XA]
        order = []
        for _, _, x, w in seq:
            for f in (w, x):
                if f not in loc and f not in order: order.append(f)
        done_at = {}; nrd = 0; waited = 0; pend = []; fill = []
        cnt = [0]; prev = [0]
        def em(t): a(t); cnt[0] += 1
        a(f"v_xor_b32 v{CX+1}, 64, v{CX}\ns_waitcnt lgkmcnt(0)\ns_barrier")
        bar2 = [True]
        def take():
            f = order.pop(0); loc[f] = free.pop(0)
            if bar2 and (f[1] if f[0] == "w" else f[2]) >= 2: em("s_barrier"); bar2.pop()
            p_ = rdw(loc[f], f[2], f[1]) if f[0] == "w" else [rdx(loc[f], f[3], f[2])]
            done_at[f] = nrd + len(p_)
            return p_
        def gap():
            t, at, after = fill[0]
            return max(at - cnt[0], prev[0] + after - cnt[0], 0)
        def put():
            em(fill.pop(0)[0]); prev[0] = cnt[0]
        for n, (b, T, x, w) in enumerate(seq):
            while any(f not in loc or (f in done_at and done_at[f] > nrd) for f in (x, w)):
                if not pend: pend = take()
                em(pend.pop(0)); nrd += 1
            need = max(done_at.get(x, 0), done_at.get(w, 0))
            if need > waited:
                waited = max(need, nrd - opt("tw", 6)); em(f"s_waitcnt lgkmcnt({nrd - waited})")
            em(mf(b, T, loc[x], loc[w], qk))
            if n in marks: fill += [(t, cnt[0] + 8, after) for t, after in epi(*marks[n])]
            for f in (x, w):
                if last[f] == n: free.append(loc[f])
            if not pend and order and free: pend = take()
            if pend: em(pend.pop(0)); nrd += 1
            for _ in range(nf):
                if fill and gap() == 0: put()
        a(st(3))
        while fill:
            g_ = gap()
            if g_: a(f"s_nop {g_ - 1}"); cnt[0] += g_
            put()

    EA, EB = 167, 151
    def cv(d, r): return [f"v_cvt_pk_bf16_f32 v{d}, v{r}, v{r+1}", f"v_cvt_pk_bf16_f32 v{d+1}, v{r+2}, v{r+3}"]
    def epi_qk(ph, jj=0):
        if ph < 0:
            return f"""s_mov_b32 s35, {HG}
            s_movk_i32 s38, 2560
            s_cmp_eq_u32 s22, 0
            s_cselect_b32 s35, {HQ}, s35
            s_cselect_b32 s27, {Q_OFF}, {KV_OFF}
            s_cselect_b32 s38, 1280, s38
            s_lshl_b32 s26, s20, 1
            s_add_u32 s26, s26, s37
            s_lshl_b32 s26, s26, 2
            s_mul_i32 s26, s26, s35
            s_add_u32 s26, s26, s27
            s_lshl_b32 s23, s21, 1
            s_add_u32 s23, s23, s36
            s_lshl_b32 s23, s23, 1
            s_mul_i32 s23, s23, s38
            s_add_u32 s26, s26, s23
            s_add_u32 s27, s26, s38
            v_lshrrev_b32 v{EA}, 4, v{L}
            v_mul_lo_u32 v{EA}, v{EA}, s35
            v_and_b32 v{TT}, 15, v{L}
            v_lshl_add_u32 v{EA}, v{TT}, 4, v{EA}
            v_lshlrev_b32 v{EB}, 4, v{L}
            s_add_u32 s44, s26, s35
            s_add_u32 s45, s27, s35
            s_add_u32 s46, s44, s35
            s_add_u32 s47, s45, s35
            s_add_u32 s32, s46, s35
            s_add_u32 s33, s47, s35""".split("\n")
        T = ph
        r0, r1 = acc(2 * jj, T), acc(2 * jj + 1, T)
        o = [(t, 0) for t in cv(r0, r0) + cv(r0 + 2, r1)]
        if T < 4:
            o += [(f"v_permlane16_swap_b32 v{r0}, v{r0+2}", 1), (f"v_permlane16_swap_b32 v{r0+1}, v{r0+3}", 0)]
            o.append((f"buffer_store_dwordx4 {vr(r0,4)}, v{EB}, s[28:31], s{(26, 44, 46, 32)[T] + jj} offen sc1", 0))
        else:
            o.append((f"buffer_store_dwordx4 {vr(r0,4)}, v{EA}, s[28:31], s{26 + jj} offen offset:1024 sc1", 0))
        return o
    def epi_v(ph, jj=0):
        if ph < 0:
            return f"""s_lshl_b32 s26, s20, 1
            s_add_u32 s26, s26, s37
            s_mul_i32 s26, s26, {4*HG}
            s_lshl_b32 s23, s21, 1
            s_add_u32 s23, s23, s36
            s_mul_i32 s23, s23, 5120
            s_add_u32 s26, s26, s23
            s_add_u32 s26, s26, {KV_OFF + 1280}
            s_add_u32 s44, s26, {HG}
            s_add_u32 s45, s26, {2*HG}
            s_add_u32 s46, s26, {3*HG}
            s_mov_b32 s35, {HG}
            v_lshrrev_b32 v{EA}, 5, v{L}
            v_mul_u32_u24 v{EA}, 640, v{EA}
            v_bfe_u32 v{TT}, v{L}, 4, 1
            v_lshl_add_u32 v{EB}, v{TT}, 6, v{EA}
            v_mul_u32_u24 v{TT}, 384, v{TT}
            v_add_u32 v{EA}, v{EA}, v{TT}
            v_and_b32 v{TT}, 15, v{L}
            v_lshl_add_u32 v{EA}, v{TT}, 4, v{EA}
            v_and_b32 v{TT}, 3, v{L}
            v_lshl_add_u32 v{EB}, v{TT}, 4, v{EB}
            v_bfe_u32 v{TT}, v{L}, 2, 2
            v_mul_lo_u32 v{TT}, v{TT}, s35
            v_add_u32 v{EB}, v{EB}, v{TT}""".split("\n")
        T = ph
        r0, r1 = acc(2 * jj, T), acc(2 * jj + 1, T)
        o = [(t, 0) for t in cv(r0, r0) + cv(r0 + 2, r1)]
        if T < 4: o.append((f"buffer_store_dwordx4 {vr(r0,4)}, v{EA}, s[28:31], s{(26, 44, 45, 46)[T]} offen offset:{2560 * jj} sc1", 0))
        else: o.append((f"buffer_store_dwordx4 {vr(r0,4)}, v{EB}, s[28:31], s26 offen offset:{2560 * jj + 256} sc1", 0))
        return o

    for qk, lab in ((True, "QK"), (False, "V")):
        a(f"P1_PRE_{lab}:")
        for f in (epi_qk if qk else epi_v)(-1): a(f)
        SEP = opt("sep", 0)
        if SEP and not qk: a("s_cmp_eq_u32 s22, 3\ns_cbranch_scc1 P1_LOOP_D")
        a(ALN2)
        a(f"P1_LOOP_{lab}:")
        group(0, qk, patch=not SEP)
        if STAMP: a(f"s_cmp_lg_u32 s40, 0\ns_cbranch_scc1 P1_ST_{lab}\n{st(2)}\nP1_ST_{lab}:\ns_cmp_lg_u32 s40, 5\ns_cbranch_scc1 P1_SU_{lab}\n{st(1)}\nP1_SU_{lab}:")
        group(1, qk, patch=not SEP)
        a(f"s_cmp_lt_u32 s40, s43\ns_cbranch_scc1 P1_LOOP_{lab}")
        if not qk: a("s_cmp_eq_u32 s22, 3\ns_cbranch_scc1 P1_EPI_DFT")
        if qk and opt("qs", 1):
            def epi_q(T, jj):
                r0, r1 = acc(2 * jj, T), acc(2 * jj + 1, T)
                return [(f"v_mul_f32 v{r+q}, s39, v{r+q}", 0) for r in (r0, r1) for q in range(4)] + epi_qk(T, jj)
            a(f"s_cmp_lg_u32 s22, 0\ns_cbranch_scc1 P1_TAIL_K\ns_mov_b32 s39, {QSCALE:#x}")
            tail(True, epi_q, opt("qwin", 2), opt("qnf", 4))
            a("s_branch P1_DONE\nP1_TAIL_K:")
        a("s_cmp_eq_u32 s12, 1\ns_cselect_b32 s30, 0, s30")
        tail(qk, epi_qk if qk else epi_v)
        a(f"s_cmp_eq_u32 s12, 0\ns_cbranch_scc1 P1_DONE\ns_mov_b32 s30, {WS_USED}\nv_mov_b32 v88, {LFB + 56}\nv_mov_b32 v89, 1")
        ladd(a, 88, 89, 0)
        a(f"s_mov_b32 s34, 1\ns_branch ATT\nNU_{lab}:")
        for T in range(5):
            for jj in range(2): a((epi_qk if qk else epi_v)(T, jj)[-1][0])
        a("s_branch ATT_SIG")
    if SEP:
        a("P1_LOOP_D:"); group(0, False); group(1, False)
        a("s_cmp_lt_u32 s40, s43\ns_cbranch_scc1 P1_LOOP_D")
    a("P1_EPI_DFT:")
    group(0, False, reads=False)
    TAU, TAU0, E0 = 80, 81, 140
    a(f"""
    {st(3)}
    s_cmp_lt_u32 s20, 2
    s_cselect_b32 s38, 1.0, -1.0
    v_mov_b32 v{TAU}, s38
    v_cndmask_b32 v{TAU0}, v{TAU}, 1.0, s[24:25]
    s_lshl_b32 s26, s20, 1
    s_add_u32 s26, s26, s37
    s_mul_i32 s26, s26, 80
    v_and_b32 v88, 15, v{L}
    v_add_u32 v{E0}, s26, v88
    v_add_u32 v{E0+1}, 20, v{E0}
    v_add_u32 v{E0+2}, 40, v{E0}
    v_add_u32 v{E0+3}, 60, v{E0}
    v_and_b32 v89, 12, v{L}
    v_lshl_add_u32 v{E0+4}, v89, 2, v{E0}
    v_add_u32 v{E0+4}, 16, v{E0+4}
    s_lshl_b32 s23, s21, 1
    s_add_u32 s23, s23, s36
    s_cmp_lg_u32 s23, 0
    s_cbranch_scc1 P1_EPI_DFT2
    s_mov_b64 exec, 0xffff
    s_mov_b32 s27, {X512_OFF}
    """)
    for T in range(5):
        a(f"v_fma_f32 v{96+T}, v{acc(3,T)}, v{TAU0 if T == 0 else TAU}, v{acc(1,T)}")
        a(f"v_lshlrev_b32 v{104+T}, 2, v{E0+T}\nv_mov_b32 v{acc(1,T)}, 0\nv_mov_b32 v{acc(3,T)}, 0")
        a(f"buffer_store_dword v{96+T}, v{104+T}, s[28:31], s27 offen sc1")
    a(f"""
    s_mov_b64 exec, -1
P1_EPI_DFT2:
    s_lshl_b32 s26, s23, 9
    s_add_u32 s26, s26, {FE_OFF}
    s_mov_b32 s27, {FO_DELTA}
    v_bfe_u32 v88, v{L}, 4, 1
    v_mul_lo_u32 v88, v88, s27
    v_lshrrev_b32 v89, 5, v{L}
    v_lshl_add_u32 v88, v89, 8, v88
    """)
    for T in range(5):
        tau = TAU0 if T == 0 else TAU
        a0, a1, a2, a3 = (acc(b, T) for b in range(4))
        for q in range(4):
            a(f"v_fma_f32 v{a0+q}, v{a1+q}, v{tau}, v{a0+q}\nv_fma_f32 v{a3+q}, v{a2+q}, v{tau}, v{a3+q}")
        for q in range(4):
            a(f"v_add_f32 v{a1+q}, v{a0+q}, v{a3+q}\nv_sub_f32 v{a2+q}, v{a0+q}, v{a3+q}")
        for f in cv(a0, a1) + cv(a0 + 2, a2): a(f)
        a(f"""
        v_lshrrev_b32 v89, 4, v{E0+T}
        v_lshl_add_u32 v89, v89, 14, v88
        v_and_b32 v{E0+T}, 15, v{E0+T}
        v_lshl_add_u32 v{E0+T}, v{E0+T}, 4, v89
        v_permlane16_swap_b32 v{a0}, v{a0+2}
        v_permlane16_swap_b32 v{a0+1}, v{a0+3}
        """)
    a(f"v_mov_b32 v88, {LFB + 56}\nv_mov_b32 v89, 1\ns_mov_b32 s12, {opt('dnu', 1)}")
    ladd(a, 88, 89, 0)
    a("s_mov_b32 s34, 1\ns_branch ATT\nNU_D:")
    for T in range(5): a(f"buffer_store_dwordx4 {vr(4*T,4)}, v{E0+T}, s[28:31], s26 offen sc1")
    a("s_branch ATT_SIG")
    a(f"""
P1_DONE:
    {st(14)}
    s_mov_b32 s34, 0
    v_mov_b32 v84, 1
    v_mov_b32 v85, 1
    v_mov_b32 v86, 1
    v_mov_b32 v87, 1
    v_mov_b32 v88, {LFB + 44}
    v_mov_b32 v89, 0
    s_and_b32 s23, s15, -128
    s_mov_b64 exec, 1
    s_waitcnt vmcnt(0)
    ds_add_rtn_u32 v88, v88, v84
    s_waitcnt lgkmcnt(0)
    v_cmp_eq_u32 vcc, 3, v88
    s_cbranch_vccz P1_NS
    buffer_store_dwordx4 v[84:87], v89, s[28:31], s23 offen sc1
P1_NS:
    s_mov_b64 exec, -1
    s_branch ATT
    """)

def p1_extra(a):
    T0 = 40
    a(f"""
P1_EXTRA:
    s_sub_u32 s61, s16, 8
    """)
    if opt("cwarm", 1):
        a(f"""
        s_cmp_lg_u32 s16, 10
        s_cbranch_scc1 P1_NOCW
        s_lshl_b32 s23, s18, 10
        s_cmp_ge_u32 s23, L_CODE_END - {NAME}_kernel - 1023
        s_cbranch_scc1 P1_NOCW
        s_getpc_b64 s[44:45]
L_PC:
        s_sub_u32 s44, s44, L_PC - {NAME}_kernel
        s_subb_u32 s45, s45, 0
        v_lshl_add_u32 v40, v0, 4, s23
        global_load_dwordx4 v[44:47], v40, s[44:45]
P1_NOCW:
        """)
    a(f"""
    v_lshrrev_b32 v37, 4, v0
    v_and_b32 v38, 15, v0
    v_lshlrev_b32 v39, 4, v0
    v_mov_b32 v36, v0
    s_waitcnt lgkmcnt(0)
    {srd(28, WS_P, WS_USED)}
    {srd(32, DBG_P, 256)}
    s_cmp_lg_u32 s61, 0
    s_cbranch_scc1 P1_EX_A
    v_mov_b32 v1, 0
    v_lshlrev_b32 v2, 2, v0
    v_add_u32 v2, {LFB}, v2
    ds_write_b32 v2, v1
    s_waitcnt lgkmcnt(0)
    s_cmp_lt_u32 s2, 248
    s_cbranch_scc1 P1_EX_WAITRDY
    v_mov_b32 v4, 0
    v_mov_b32 v5, 0
    v_mov_b32 v6, 0
    v_mov_b32 v7, 0
    s_lshl_b32 s23, s17, 12
    s_add_u32 s23, s23, {FLG_OFF}
    buffer_store_dwordx4 v[4:7], v39, s[28:31], s23 offen sc1
    buffer_store_dwordx4 v[4:7], v39, s[28:31], s23 offen offset:1024 sc1
    buffer_store_dwordx4 v[4:7], v39, s[28:31], s23 offen offset:2048 sc1
    buffer_store_dwordx4 v[4:7], v39, s[28:31], s23 offen offset:3072 sc1
    s_lshl_b32 s23, s17, 10
    s_add_u32 s23, s23, {FLG_OFF + 32768}
    buffer_store_dwordx4 v[4:7], v39, s[28:31], s23 offen sc1
P1_EX_WAITRDY:
P1_EX_A:
    s_lshl_b32 s23, s2, 2
    s_add_u32 s23, s23, s61
    s_mov_b32 s40, 0
P1_TBL:
    s_lshr_b32 s24, s23, 5
    s_and_b32 s25, s23, 30
    s_and_b32 s26, s24, 1
    s_lshr_b32 s27, s24, 1
    s_lshl_b32 s27, s27, 6
    s_add_u32 s27, s27, s26
    s_and_b32 s26, s23, 1
    s_lshl_b32 s26, s26, 5
    s_add_u32 s27, s27, s26
    v_lshl_add_u32 v{T0}, v38, 1, s27
    s_lshl_b32 s25, s25, 4
    v_lshl_add_u32 v{T0+1}, v37, 3, s25
    v_mul_u32_u24 v{T0+1}, v{T0}, v{T0+1}
    v_and_b32 v{T0+1}, 0x7ff, v{T0+1}
    v_cvt_f32_u32 v{T0}, v{T0}
    v_cvt_f32_u32 v{T0+1}, v{T0+1}
    v_mul_f32 v{T0}, 0x3a000000, v{T0}
    v_mul_f32 v0, 0x3a000000, v{T0+1}
    """)
    for u in range(1, 8): a(f"v_add_f32 v{u}, v{u-1}, v{T0}")
    for u in range(1, 8): a(f"v_fract_f32 v{u}, v{u}")
    for u in range(8): a(f"v_cos_f32 v{8+u}, v{u}")
    for u in range(8): a(f"v_sin_f32 v{16+u}, v{u}")
    for j in range(4): a(f"v_cvt_pk_bf16_f32 v{24+j}, v{8+2*j}, v{9+2*j}")
    for j in range(4): a(f"v_cvt_pk_bf16_f32 v{28+j}, v{16+2*j}, v{17+2*j}")
    NB0 = opt("tblbar", 2)
    a(f"""
    s_cmp_lg_u32 s40, 0
    s_cbranch_scc1 P1_TBL_ST
    s_barrier
    {st(1, True)}
    s_cmp_lg_u32 s61, 0
    s_cbranch_scc1 P1_EX_NR
    s_cmp_lt_u32 s2, 248
    s_cbranch_scc1 P1_EX_NR
    v_mov_b32 v32, 1
    v_mov_b32 v33, 0
    s_lshl_b32 s24, s17, 2
    s_waitcnt vmcnt(0)
    s_mov_b64 exec, 1
    buffer_store_dword v32, v33, s[32:35], s24 offen sc1
    s_mov_b64 exec, -1
P1_EX_NR:
    """ + "".join(f"s_barrier\n{st(1 + b_, True)}\n" for b_ in range(1, NB0)) + f"""
    s_mov_b32 s40, 1
P1_TBL_ST:
    s_lshl_b32 s24, s23, 11
    s_add_u32 s24, s24, {TB_OFF}
    buffer_store_dwordx4 v[24:27], v39, s[28:31], s24 offen sc1
    buffer_store_dwordx4 v[28:31], v39, s[28:31], s24 offen offset:1024 sc1
    s_add_u32 s23, s23, 1024
    s_cmp_lt_u32 s23, 1056
    s_cbranch_scc1 P1_TBL
    """)
    nb = NB0
    assert nb <= 6
    a("".join(f"s_barrier\n{st(1 + b_, True)}\n" for b_ in range(nb, 6)))
    u = a.uid()
    a(f"""
    v_and_b32 v1, 7, v36
    v_lshlrev_b32 v1, 2, v1
    v_mov_b32 v2, 1
    s_mov_b32 s60, 0
    s_cmp_lg_u32 s61, 0
    s_cbranch_scc1 P1_EX_C
    buffer_load_dword v2, v1, s[32:35], 0 offen sc1
P1_EX_C:
    s_barrier
    {st(7, True)}
    s_barrier
    {st(8, True)}
L_RDY{u}:
    s_waitcnt vmcnt(0)
    v_cmp_eq_u32 vcc, 0, v2
    s_cbranch_vccz P1_EX_B
    s_sleep 1
    buffer_load_dword v2, v1, s[32:35], 0 offen sc1
    s_add_u32 s60, s60, 1
    s_cmp_lt_u32 s60, 0x40000
    s_cbranch_scc1 L_RDY{u}
P1_EX_B:
    s_waitcnt vmcnt(0)
    s_barrier
    {st(9, True)}
    s_barrier
    {st(10, True)}
    s_mov_b32 s34, 0
    """)

def attention(a):
    O = 20; S = [0, 40, 136, 120]; IX = 114; P = 36; P2 = 64; Q1 = 56; Q2 = 60; K2 = 62; K1 = 16; V1 = 68; V2 = [72, 76]; T = 80
    a(f"""
ATT:
    s_cmp_lt_u32 s13, 4
    s_cselect_b32 s40, {opt("o1", 4)}, {opt("y1", 4)}
    s_cselect_b32 s41, {opt("o2", 7)}, {opt("y2", 6)}
    s_movk_i32 s35, 0x10a
    s_bitset1_b32 s35, s40
    s_bitset1_b32 s35, s41
    s_mov_b32 s24, 0xfffff
    s_mov_b32 s25, 0xfffff
    s_mul_i32 s39, s13, 1280
    s_add_u32 s39, s39, {QLDS}
    v_mov_b32 v{Q2+1}, 0
    v_mov_b32 v{K2+1}, 0x3f803f80
    v_add_u32 v{T}, s39, v{AK1}
    v_add_u32 v{T+1}, s39, v{AK2}
    v_mov_b32 v{T+2}, 1
    """)
    NQ = opt("nq", 2)
    OX = [84, O]; QX1 = [100, Q1]; QX2 = [104, Q2]; U = 106; TM = 136; XS = 107520
    if NQ == 2:
        a(f"""
        s_xor_b32 s36, s13, 1
        s_mul_i32 s39, s36, 1280
        s_add_u32 s39, s39, {QLDS}
        v_add_u32 v{U}, s39, v{AK1}
        v_add_u32 v{U+1}, s39, v{AK2}
        v_mov_b32 v{U+2}, v{AK1}
        v_mov_b32 v{U+3}, v{AK2}
        v_mov_b32 v{QX2[0]+1}, 0
        s_mov_b32 s42, {QSCALE:#x}
        s_mov_b32 s43, s42
        s_and_b32 s37, s13, 1
        s_mul_i32 s37, s37, 2560
        v_and_b32 v{U+4}, 0x70, v{VA}
        v_lshrrev_b32 v{U+4}, 2, v{U+4}
        v_add_u32 v{U+4}, {LFB}, v{U+4}
        s_lshl_b32 s23, s13, 12
        s_add_u32 s23, s23, {XS}
        v_add_u32 v{U+5}, s23, v{VA}
        v_xor_b32 v{U+7}, 4, v{PA}
        s_lshl_b32 s23, s36, 12
        s_add_u32 s23, s23, {XS}
        v_add_u32 v{U+6}, s23, v{VA}
        s_lshr_b32 s38, s13, 2
        s_add_u32 s38, s38, 7
        """)
        for r in (AK1, AK2, AV, BK1, BK2, BV): a(f"v_add_u32 v{r}, s37, v{r}")
        for r in range(16): a(f"v_mov_b32 v{OX[0]+r}, 0")
    for r in range(12): a(f"v_mov_b32 v{V1+r}, v{ONES}")
    for r in range(16): a(f"v_mov_b32 v{O+r}, 0")
    for r in range(4): a(f"v_mov_b32 v{P+r}, -1")
    for r in range(8): a(f"v_mov_b32 v{S[3]+8+r}, 0")
    a(f"v_mov_b32 v{IX}, 0xdddddddd")
    def rk1(d): return f"v_mfma_f32_32x32x8_bf16 {vr(d,16)}, {vr(K2,2)}, {vr(Q2,2)}, 0"
    def rk2(d): return f"v_mfma_f32_32x32x16_bf16 {vr(d,16)}, {vr(K1,4)}, {vr(Q1,4)}, {vr(d,16)}"
    def qk1(d): return f"v_mfma_f32_32x32x16_bf16 {vr(d,16)}, {vr(K1,4)}, {vr(Q1,4)}, 0"
    def qk2(d): return f"v_mfma_f32_32x32x8_bf16 {vr(d,16)}, {vr(K2,2)}, {vr(Q2,2)}, {vr(d,16)}"
    def pv(v, p): return f"v_smfmac_f32_32x32x32_bf16 {vr(O,16)}, {vr(v,4)}, {vr(p,8)}, v{IX}"
    def of(t): return (t - 6 if t in (6, 7) else t) * 2560
    def rdk1(t): return f"ds_read_b128 {vr(K1,4)}, v{BK1 if t in (6, 7) else AK1} offset:{of(t)}"
    def rdk2(t): return f"ds_read_b32 v{K2}, v{BK2 if t in (6, 7) else AK2} offset:{of(t)+1024}"
    def rdv(t, v2):
        b = BV if t in (6, 7) else AV
        return f"s_mov_b64 exec, s[24:25]\nds_read_b128 {vr(V1,4)}, v{b} offset:{of(t)+1280}\nds_read_b128 {vr(v2,4)}, v{b} offset:{of(t)+1920}\ns_mov_b64 exec, -1"
    def maxtree(s, m, first):
        if first:
            a(f"v_max3_f32 v{m}, v{s}, v{s+1}, v{s+2}\nv_max3_f32 v{m+1}, v{s+3}, v{s+4}, v{s+5}")
            for j in range(6, 14, 4): a(f"v_max3_f32 v{m}, v{s+j}, v{s+j+1}, v{m}\nv_max3_f32 v{m+1}, v{s+j+2}, v{s+j+3}, v{m+1}")
            a(f"v_max3_f32 v{m}, v{s+14}, v{s+15}, v{m}\nv_max_f32 v{m}, v{m}, v{m+1}")
        else:
            for j in range(0, 16, 2): a(f"v_max3_f32 v{m}, v{s+j}, v{s+j+1}, v{m}")
    def xhalf(m):
        a(f"v_mov_b32 v{m+1}, v{m}\ns_nop 1\nv_permlane32_swap_b32 v{m}, v{m+1}\ns_nop 0\nv_max_f32 v{m}, v{m}, v{m+1}")
    a(f"""
    {st(4)}
    s_barrier
    s_setprio 3
    s_cmp_lg_u32 s34, 1
    s_cbranch_scc1 ATT_NOSIG
    s_cmp_eq_u32 s22, 1
    s_cbranch_scc1 NU_QK
    s_cmp_eq_u32 s22, 2
    s_cbranch_scc1 NU_V
    s_branch NU_D
ATT_SIG:
    """)
    if opt("comb", 1):
        a(f"""
        v_mov_b32 v{T+3}, {LFB + 44}
        s_and_b32 s23, s15, -128
        s_mov_b64 exec, 1
        s_waitcnt vmcnt(0)
        ds_add_rtn_u32 v{T+3}, v{T+3}, v{T+2}
        s_waitcnt lgkmcnt(0)
        v_cmp_eq_u32 vcc, 3, v{T+3}
        s_cbranch_vccz ATT_NOSIG
        buffer_store_dwordx4 {vr(P,4)}, v{O}, s[28:31], s23 offen sc1
        """)
    else:
        a(f"s_waitcnt vmcnt(0)\ns_mov_b64 exec, 1\nbuffer_store_dword v{T+2}, v{O}, s[28:31], s15 offen sc1")
    a(f"""
ATT_NOSIG:
    s_mov_b64 exec, -1
    {st(6)}
    """)
    def e(s, j): return f"v_exp_f32 v{s+j}, v{s+j}"
    def c(s, j): return f"v_cvt_pk_bf16_f32 v{P+j}, v{s+2*j}, v{s+2*j+1}"
    if NQ == 2:
        def xk1(x, d=None): return f"v_mfma_f32_32x32x16_bf16 {vr(S[x if d is None else d],16)}, {vr(K1,4)}, {vr(QX1[x],4)}, 0"
        def xk2(x, d=None): return f"v_mfma_f32_32x32x8_bf16 {vr(S[x if d is None else d],16)}, {vr(K2,2)}, {vr(QX2[x],2)}, {vr(S[x if d is None else d],16)}"
        def xpv(x, v, p): return f"v_smfmac_f32_32x32x32_bf16 {vr(OX[x],16)}, {vr(v,4)}, {vr(p,8)}, v{IX}"
        def scale(x):
            if opt('qs', 1): return
            for j in range(5): a(f"v_lshlrev_b32 v{TM+2*j}, 16, v{QX1[x]+j}\nv_and_b32 v{TM+2*j+1}, 0xffff0000, v{QX1[x]+j}")
            if opt("pkq", 0):
                for j in range(0, 10, 2): a(f"v_pk_mul_f32 {vr(TM+j,2)}, {vr(TM+j,2)}, s[42:43]")
            else:
                for j in range(10): a(f"v_mul_f32 v{TM+j}, s42, v{TM+j}")
            for j in range(5): a(f"v_cvt_pk_bf16_f32 v{QX1[x]+j}, v{TM+2*j}, v{TM+2*j+1}")
        MH = f32bits(-0.5) if opt('qs', 1) else f32bits(-0.5 * (20 ** -0.5) * math.log2(math.e))
        a(f"""
        ds_read_b128 {vr(K1,4)}, v{U+2}
        ds_read_b32 v{K2}, v{U+3} offset:1024
        ds_read_b128 {vr(QX1[0],4)}, v{U}
        ds_read_b32 v{QX2[0]}, v{U+1} offset:1024
        ds_read_b128 {vr(Q1,4)}, v{T}
        ds_read_b32 v{Q2}, v{T+1} offset:1024
        {rdv(0, V2[0])}
        s_waitcnt lgkmcnt(4)
        {xk1(0)}
        {xk2(0)}
        s_waitcnt lgkmcnt(2)
        {xk1(1)}
        {xk2(1)}
        {rdk1(0)}
        {rdk2(0)}
        s_mov_b32 s26, 0
        """)
        scale(0)
        if opt("qs", 1): a("s_nop 5")
        maxtree(S[0], T, True)
        a(f"v_mul_f32 v{T}, {MH:#x}, v{T}\nv_cvt_pk_bf16_f32 v{QX2[0]+1}, v{T}, 0\ns_waitcnt lgkmcnt(0)\n{xk1(0)}\n{xk2(0)}")
        scale(1)
        maxtree(S[1], T, True)
        a(f"""
        v_mul_f32 v{T}, {MH:#x}, v{T}
        v_cvt_pk_bf16_f32 v{Q2+1}, v{T}, 0
        {xk1(1)}
        {rdk1(2)}
        {st(7)}
        {ALN}
ATT_LOOP:
        """)
        for i in range(4):
            for x in (0, 1):
                SP = {0: (4, 8, 12), 1: (5, 8, 13), 2: (4, 7, 11), 3: (5, 9, 13)}[opt('sp', 0)]
                n = 2 * i + x; cur = S[n % 4]; y = 1 - x; t_ = 2 * (i + 1)
                if x == 1: a("s_waitcnt lgkmcnt(0)")
                a(xk2(y, (n + 1) % 4))
                if x == 0: a(rdk2(t_))
                for q in range(SP[0]): a(e(cur, q))
                a(xpv(y, V2[(i + 1) % 2] if x == 0 else V2[i % 2], S[(n - 1) % 4] + 8))
                if x == 0: a("s_waitcnt lgkmcnt(1)")
                if x == 0 and i == 3: a.l[-1] = "    s_waitcnt vmcnt(0) lgkmcnt(1)"
                if x == 1 and i == 1: a(f"ds_write_b32 v{PA}, v{T+2}")
                if x == 1 and i == 3: a(f"ds_read_b32 v{U}, v{U+4}")
                for q in range(SP[0], SP[1]): a(e(cur, q))
                a(xk1(x, (n + 2) % 4))
                if x == 1: a(rdk1(t_ + 2))
                for q in range(SP[1], SP[2]): a(e(cur, q))
                a(xpv(x, V1, cur))
                if x == 1: a(rdv(t_, V2[(i + 1) % 2]))
                for q in range(SP[2], 16): a(e(cur, q))
    a(f"""
    s_add_u32 s26, s26, 1
    s_movk_i32 s27, 0x5000
    s_cmp_eq_u32 s26, 7
    s_cselect_b32 s27, {(0x5000 - 62 * 2560) & 0xffffffff}, s27
    v_add_u32 v{AK1}, 0x5000, v{AK1}
    v_add_u32 v{AK2}, 0x5000, v{AK2}
    v_add_u32 v{AV}, 0x5000, v{AV}
    v_add_u32 v{BK1}, s27, v{BK1}
    v_add_u32 v{BK2}, s27, v{BK2}
    v_add_u32 v{BV}, s27, v{BV}
    v_add_u32 v{T+2}, 1, v{T+2}
    s_bitcmp1_b32 s35, s26
    s_cbranch_scc0 ATT_LOOP
    s_cmp_gt_u32 s26, 3
    s_cbranch_scc1 ATT_EV
    v_add_u32 v{FA}, 8, v{FA}
    s_cmp_eq_u32 s26, 1
    s_cbranch_scc0 ATT_WAIT
    buffer_store_dwordx4 {vr(P,4)}, v{OA1}, s[28:31], s6 offen sc1
    s_mov_b64 exec, 0xffff
    buffer_store_dwordx4 {vr(P,4)}, v{OA2}, s[28:31], s7 offen sc1
    s_mov_b64 exec, -1
ATT_WAIT:
    ds_read_b32 v{T}, v{FA}
    s_waitcnt lgkmcnt(0)
    v_readfirstlane_b32 s23, v{T}
    s_cmp_ge_u32 s23, 4
    s_cbranch_scc1 ATT_LOOP
    s_sleep 1
    s_branch ATT_WAIT
ATT_EV:
    s_setprio 2
    s_cmp_eq_u32 s26, s40
    s_cbranch_scc1 ATT_LOOP
    s_setprio 1
    s_cmp_lt_u32 s26, 8
    s_cbranch_scc1 ATT_LOOP
    s_setprio 3
    {pv(V2[1], S[3]+8)}
    {st(8)}
    """)
    if NQ == 2:
        a(f"""
        s_mov_b32 s27, 0x3e800000
        s_mov_b32 s23, 0x71800000
        s_waitcnt lgkmcnt(3)
        v_cmp_gt_u32 vcc, s38, v{U}
        s_cbranch_vccz ATT_X0
ATT_X1:
        s_sleep 2
        ds_read_b32 v{U}, v{U+4}
        s_waitcnt lgkmcnt(0)
        v_cmp_gt_u32 vcc, s38, v{U}
        s_cbranch_vccnz ATT_X1
ATT_X0:
        """)
        for j in range(3): a(f"ds_write_b128 v{U+5}, {vr(OX[0]+4*j,4)} offset:{1024*j}")
        a(f"ds_write_b64 v{U+5}, {vr(OX[0]+12,2)} offset:3072\nds_write_b32 v{PA}, v{T+2} offset:96\nATT_X2:\nds_read_b32 v{U}, v{U+7} offset:96")
        for j in range(3): a(f"ds_read_b128 {vr(S[0]+4*j,4)}, v{U+6} offset:{1024*j}")
        a(f"ds_read_b64 {vr(S[0]+12,2)}, v{U+6} offset:3072\ns_waitcnt lgkmcnt(0)\nv_cmp_eq_u32 vcc, 0, v{U}\ns_cbranch_vccz ATT_X3\ns_sleep 1\ns_branch ATT_X2\nATT_X3:\ns_nop 1")
        for r in range(0, 14, 2): a(f"v_pk_add_f32 {vr(O+r,2)}, {vr(O+r,2)}, {vr(S[0]+r,2)}")
    else:
        a("s_mov_b32 s27, 0x3e800000\ns_mov_b32 s23, 0x71800000\ns_nop 9")
    a(f"v_rcp_f32 v{T+2}, v{O+12}\nv_add_f32 v{T}, |v{O}|, |v{O+1}|\nv_add_f32 v{T+1}, |v{O+2}|, |v{O+3}|")
    for j in range(4, 12, 2): a(f"v_add_f32 v{T}, |v{O+j}|, v{T}\nv_add_f32 v{T+1}, |v{O+j+1}|, v{T+1}")
    a(f"""
    v_add_f32 v{T}, v{T}, v{O+12}
    v_cmp_le_f32 s[42:43], s27, v{O+12}
    v_add_f32 v{T}, v{T}, v{T+1}
    v_cmp_gt_f32 vcc, s23, v{T}
    s_and_b64 vcc, vcc, s[42:43]
    s_cmp_eq_u64 vcc, -1
    s_cbranch_scc0 ATT_FALLBACK
ATT_FINISH:
    """)
    for j in range(0, 8, 2): a(f"v_pk_mul_f32 {vr(O+j,2)}, {vr(O+j,2)}, {vr(T+2,2)} op_sel_hi:[1,0]")
    for j in range(4): a(f"v_cvt_pk_bf16_f32 v{P+j}, v{O+2*j}, v{O+2*j+1}")
    for j in range(4): a(f"v_min_u32 v{P+j}, -2, v{P+j}")
    a(f"buffer_store_dwordx4 {vr(P,4)}, v{OA1}, s[28:31], s6 offen sc1")
    for j in range(8, 12, 2): a(f"v_pk_mul_f32 {vr(O+j,2)}, {vr(O+j,2)}, {vr(T+2,2)} op_sel_hi:[1,0]")
    for j in range(4, 6): a(f"v_cvt_pk_bf16_f32 v{P2+j-4}, v{O+2*j}, v{O+2*j+1}")
    for j in range(4, 6): a(f"v_min_u32 v{P2+j-4}, -2, v{P2+j-4}")
    a(f"""
    s_nop 1
    v_permlane16_swap_b32 v{P2}, v{P2+2}
    v_permlane16_swap_b32 v{P2+1}, v{P2+3}
    s_mov_b64 exec, 0xffff
    buffer_store_dwordx4 {vr(P2,4)}, v{OA2}, s[28:31], s7 offen sc1
    {st(9)}
    s_cmp_ge_u32 s13, 4
    s_cbranch_scc1 {"L_DONE" if STAMP else "L_END"}
    s_mov_b64 exec, -1
    s_xor_b32 s41, s13, {opt('gx', 2)}
    s_mov_b32 s47, 1
    s_branch P3_GO
    """)
    def gk(): return f"buffer_load_dwordx4 {vr(K1,4)}, v{AK1}, s[28:31], s23 offen sc1\nbuffer_load_dword v{K2}, v{AK2}, s[28:31], s23 offen offset:1024 sc1"
    a(f"""
ATT_FALLBACK:
    s_waitcnt lgkmcnt(0)
    v_mov_b32 v{Q2+1}, 0
    v_mov_b32 v{T}, 0xff800000
    {f's_add_u32 s23, s37, {HS}' if NQ == 2 else f's_mov_b32 s23, {HS}'}
    v_subrev_u32 v{AK1}, s23, v{AK1}
    v_subrev_u32 v{AK2}, s23, v{AK2}
    v_subrev_u32 v{AV}, s23, v{AV}
    s_add_u32 s23, s14, {KV_OFF}
    s_mov_b32 s26, 0
ATT_FB1:
    {gk()}
    s_add_u32 s23, s23, 2560
    s_waitcnt vmcnt(0)
    {qk1(S[0])}
    {qk2(S[0])}
    s_nop 15
    """)
    maxtree(S[0], T, False)
    a("s_add_u32 s26, s26, 1\ns_cmp_lt_u32 s26, 64\ns_cbranch_scc1 ATT_FB1")
    xhalf(T)
    a(f"s_add_u32 s23, s14, {KV_OFF}\ns_mov_b32 s26, 0")
    for r in range(16): a(f"v_mov_b32 v{O+r}, 0")
    a(f"""
ATT_FB2:
    {gk()}
    s_mov_b64 exec, s[24:25]
    buffer_load_dwordx4 {vr(V1,4)}, v{AV}, s[28:31], s23 offen offset:1280 sc1
    buffer_load_dwordx4 {vr(V2[0],4)}, v{AV}, s[28:31], s23 offen offset:1920 sc1
    s_mov_b64 exec, -1
    s_add_u32 s23, s23, 2560
    s_waitcnt vmcnt(0)
    {qk1(S[0])}
    {qk2(S[0])}
    s_nop 15
    """)
    for q in range(16): a(f"v_sub_f32 v{S[0]+q}, v{S[0]+q}, v{T}")
    for q in range(16): a(e(S[0], q))
    a(f"""
    s_nop 1
    {pv(V1, S[0])}
    {pv(V2[0], S[0]+8)}
    s_add_u32 s26, s26, 1
    s_cmp_lt_u32 s26, 64
    s_cbranch_scc1 ATT_FB2
    s_nop 15
    s_nop 3
    v_rcp_f32 v{T+2}, v{O+12}
    s_nop 0
    s_branch ATT_FINISH
    """)

def lwait(a, vaddr, vdat, mask, target, slp=8):
    u = a.uid()
    a(f"""
    s_mov_b64 exec, {mask}
    s_branch L_LWE{u}
L_LW{u}:
    s_sleep {slp}
L_LWE{u}:
    ds_read_b32 v{vdat}, v{vaddr}
    s_waitcnt lgkmcnt(0)
    v_cmp_gt_u32 vcc, {target}, v{vdat}
    s_cbranch_vccnz L_LW{u}
    s_mov_b64 exec, -1
    """)
def ladd(a, vaddr, vone, off):
    a(f"s_mov_b64 exec, 1\nds_add_u32 v{vaddr}, v{vone} offset:{off}\ns_mov_b64 exec, -1")

def helpers(a):
    WA, VG, VZ, SH, HPA, HONE, YFA, FZ, SG, XA5, LF = 112, 117, 118, 119, 120, 121, 122, 123, 124, 125, 126
    ZL = 40; G = 167; VY = 162; T = 132; LT = 127
    a(f"""
HELPER:
    s_mov_b32 s61, s22
    {st(2)}
    {srd(28, WS_P, WS_USED)}
    s_setprio 0
    s_lshr_b32 s20, s18, 2
    s_mul_i32 s26, s20, 160
    s_movk_i32 s23, {1280 - 160}
    """)
    for i in range(5):
        a(f"""
        v_add_u32 v{T}, {64*i}, v0
        v_mul_u32_u24 v{T+1}, 6554, v{T}
        v_lshrrev_b32 v{T+1}, 16, v{T+1}
        v_lshlrev_b32 v{T}, 4, v{T}
        v_mad_u32_u24 v{WA+i}, v{T+1}, s23, v{T}
        """)
    a(f"""
    s_lshl_b32 s21, s17, 3
    s_and_b32 s22, s18, 3
    s_add_u32 s21, s21, s22
    s_lshr_b32 s22, s16, 1
    s_lshl_b32 s22, s22, 2
    s_add_u32 s21, s21, s22
    s_lshl_b32 s21, s21, 1
    s_and_b32 s22, s16, 1
    s_add_u32 s21, s21, s22
    s_lshr_b32 s22, s21, 2
    s_lshl_b32 s22, s22, 1
    s_and_b32 s24, s21, 1
    s_add_u32 s22, s22, s24
    s_lshl_b32 s22, s22, 3
    v_and_b32 v{T}, 7, v0
    v_add_u32 v{T}, s22, v{T}
    s_bitcmp1_b32 s21, 1
    s_cselect_b32 s22, 0x400, 0
    s_cselect_b32 s24, -1, 1
    v_mul_lo_u32 v{T+1}, v{T}, s24
    s_sub_u32 s24, 0x800, s22
    v_sub_u32 v{T+2}, s24, v{T+1}
    v_add_u32 v{T+1}, s22, v{T+1}
    v_and_b32 v{T+3}, 8, v0
    v_cmp_ne_u32 vcc, 0, v{T+3}
    v_cmp_eq_u32 s[42:43], 0, v{T}
    v_lshlrev_b32 v{T+3}, 6, v{T+3}
    v_add_u32 v{T+3}, s22, v{T+3}
    v_cndmask_b32 v{T}, v{T+1}, v{T+2}, vcc
    v_lshrrev_b32 v{T+1}, 4, v0
    v_cndmask_b32 v{T}, v{T}, v{T+3}, s[42:43]
    v_mul_u32_u24 v{VY}, 1280, v{T}
    v_mul_u32_u24 v{T+2}, 40, v{T+1}
    v_add3_u32 v{VY}, v{VY}, v{T+2}, s26
    v_lshlrev_b32 v{VG}, 2, v{T}
    v_sub_u32 v{T+3}, 0x800, v{T}
    v_cmp_lt_u32 vcc, 0x400, v{T}
    v_min_u32 v{T}, v{T}, v{T+3}
    v_and_b32 v{T+3}, 1, v{T}
    v_mul_u32_u24 v{VZ}, {ZP}, v{T+3}
    v_lshrrev_b32 v{T+3}, 1, v{T}
    v_lshl_add_u32 v{VZ}, v{T+3}, 4, v{VZ}
    v_mov_b32 v{T+3}, 0x02020202
    v_cndmask_b32 v{SH}, 0, v{T+3}, vcc
    s_cmp_ge_u32 s20, 4
    s_mov_b32 s24, 0x05040100
    s_cselect_b32 s24, 0x07060302, s24
    s_cselect_b32 s40, -1, 1
    s_cselect_b32 s41, 155, 0
    v_xor_b32 v{SH}, s24, v{SH}
    s_mul_i32 s24, s20, 20
    v_mul_u32_u24 v{T+3}, 5, v{T+1}
    v_add_u32 v{T+3}, s24, v{T+3}
    v_mul_lo_u32 v{T+3}, v{T+3}, s40
    v_add_u32 v{T+3}, s41, v{T+3}
    v_mul_u32_u24 v{T+3}, {2*ZP}, v{T+3}
    v_add_u32 v{VZ}, v{VZ}, v{T+3}
    {p3_addr(0)}
    v_lshlrev_b32 v{HPA}, 2, v0
    v_add_u32 v{HPA}, {LFB}, v{HPA}
    v_mov_b32 v{HONE}, 1
    s_and_b32 s23, s2, 63
    s_lshl_b32 s23, s23, 5
    s_lshr_b32 s24, s2, 6
    s_add_u32 s23, s23, s24
    s_lshl_b32 s23, s23, 2
    s_add_u32 s23, s23, {FLG_OFF + 32768}
    v_mov_b32 v{YFA}, s23
    v_lshrrev_b32 v{FZ}, 4, v0
    v_mul_u32_u24 v{FZ}, {2*ZP}, v{FZ}
    v_and_b32 v{T}, 15, v0
    v_lshl_add_u32 v{FZ}, v{T}, 4, v{FZ}
    v_lshlrev_b32 v{SG}, 31, v0
    v_and_b32 v{XA5}, 48, v0
    v_lshlrev_b32 v{LF}, 7, v0
    v_bfe_u32 v{LT}, v0, 1, 2
    v_lshlrev_b32 v{LT}, 13, v{LT}
    v_and_b32 v{T}, 1, v0
    v_lshl_add_u32 v{LT}, v{T}, 7, v{LT}
    s_setprio 3
    s_lshr_b32 s19, s18, 3
    s_lshl_b32 s23, s17, 2
    s_add_u32 s19, s19, s23
    s_and_b32 s62, s18, 7
    s_mul_i32 s21, s19, {HG}
    v_lshlrev_b32 v1, 4, v0
    {st(3)}
    s_lshr_b32 s23, s19, 3
    s_lshl_b32 s23, s23, 13
    s_add_u32 s23, s23, {FLG_OFF}
    v_lshlrev_b32 v2, 7, v0
    v_add_u32 v2, s23, v2
    s_add_u32 s24, s21, {KV_OFF}
    s_lshl_b32 s40, 0x10000, s16
    s_lshl_b32 s41, 1, s16
    s_mul_i32 s22, s16, 10240
    s_add_u32 s26, s24, s22
    s_cmp_lg_u32 s16, 3
    s_cbranch_scc1 H_JA
    s_lshl_b32 s25, s62, 1
    s_lshl_b32 s40, 3, s25
    s_mov_b32 s41, 0
    s_mov_b32 s22, {QLDS}
    s_mul_i32 s26, s19, {HQ}
    s_mul_i32 s25, s62, 10240
    s_add_u32 s26, s26, s25
    s_add_u32 s26, s26, {Q_OFF}
H_JA:
    """)
    def job():
        r = f"s_add_u32 s25, s22, 5120\ns_cmp_ge_u32 s25, {LFB}\ns_cselect_b32 s25, 0, s25\n"
        for n in range(10):
            if n in (0, 3): r += f"s_add_u32 m0, s22, {1024*n}\ns_add_u32 s27, s26, {1024*n}\n"; o = 0
            if n in (5, 8): r += f"s_add_u32 m0, s25, {1024*(n-5)}\ns_add_u32 s27, s26, {1024*n}\n"; o = 0
            r += f"buffer_load_dwordx4 v1, s[28:31], s27 offen offset:{o} sc1 lds\n"; o += 1024
        return r
    if opt("latep", 1):
        a(f"s_mul_i32 s23, s12, 12\ns_cmp_eq_u32 s61, 3\ns_cselect_b32 s23, 12, s23\ns_add_u32 s23, s23, {LFB + 44}\nv_mov_b32 v3, s23")
        lwait(a, 3, 4, 1, 4, 2)
        if opt("lps", 0): a(f"s_sleep {opt('lps', 0)}")
    poll4(a, 2, 4, "s[40:41]")
    a(st(11)); a(job())
    a(f"""
    s_lshl_b32 s40, 0x80000, s16
    s_lshl_b32 s41, 8, s16
    s_add_u32 s22, s16, 3
    s_mul_i32 s22, s22, 10240
    s_add_u32 s26, s24, s22
    s_waitcnt vmcnt(0)
    {st(12)}
    s_barrier
    """)
    poll4(a, 2, 4, "s[40:41]")
    a(job())
    a(f"""
H_JB:
    s_lshl_b32 s41, 0x8880, s16
    s_and_b32 s41, s41, 0xffff
    s_lshl_b32 s40, s41, 16
    s_add_u32 s22, s16, 7
    s_mul_i32 s22, s22, 10240
    s_add_u32 s26, s24, s22
    s_waitcnt vmcnt(0)
    """)
    ladd(a, HPA, HONE, 64)
    a("s_cmp_lg_u32 s16, 0\ns_cbranch_scc1 H_NW")
    lwait(a, HPA, 4, 0xff, 1)
    a("H_NW:")
    poll4(a, 2, 4, "s[40:41]", slp=8)
    a(f"{st(13)}\nH_JC:"); a(job())
    a(f"""
    s_add_u32 s22, s22, 40960
    s_add_u32 s26, s26, 40960
    s_cmp_lt_u32 s22, {HS}
    s_cbranch_scc1 H_JC
    s_waitcnt vmcnt(0)
    {st(4)}
    """)
    ladd(a, HPA, HONE, 72)
    a(f"""
    s_cmp_lt_u32 s16, 3
    s_cbranch_scc1 H_FNET
    """)
    a(f"""
    {srd(32, X_P, 2048*1280)}
    {srd(36, GATE_P, 1280)}
    v_lshrrev_b32 v2, 3, v0
    v_and_b32 v3, 7, v0
    v_lshlrev_b32 v3, 4, v3
    s_movk_i32 s22, 1280
    v_mad_u32_u24 v4, v2, s22, v3
    s_mul_i32 s23, s2, {8*1280}
    """)
    for j in range(10):
        a(f"buffer_load_dwordx4 {vr(24+8*j,4)}, v4, s[32:35], s23 offen offset:{128*j}")
        a(f"buffer_load_dwordx4 {vr(28+8*j,4)}, v3, s[36:39], 0 offen offset:{128*j}")
    a("v_mov_b32 v5, 0\nv_mov_b32 v6, 0\ns_waitcnt vmcnt(0)")
    for j in range(10):
        for q in range(4):
            a(f"v_dot2c_f32_bf16 v{5 + (q & 1)}, v{24+8*j+q}, v{28+8*j+q}")
    a(f"""
    s_nop 2
    v_add_f32 v5, v5, v6
    s_nop 1
    v_add_f32_dpp v5, v5, v5 quad_perm:[1,0,3,2] row_mask:0xf bank_mask:0xf
    s_nop 1
    v_add_f32_dpp v5, v5, v5 quad_perm:[2,3,0,1] row_mask:0xf bank_mask:0xf
    s_nop 1
    v_add_f32_dpp v5, v5, v5 row_half_mirror row_mask:0xf bank_mask:0xf
    v_mul_f32 v5, {f32bits(-math.log2(math.e)):#x}, v5
    v_exp_f32 v5, v5
    v_lshlrev_b32 v2, 2, v2
    v_add_f32 v5, 1.0, v5
    v_rcp_f32 v5, v5
    s_lshl_b32 s23, s2, 5
    s_add_u32 s23, s23, {G_OFF}
    buffer_store_dword v5, v2, s[28:31], s23 offen sc1
    s_branch H_MID
    """)
    C, SN, FB = 0, 8, 16
    a(f"""
H_FNET:
    {'s_branch H_MID' if opt('nofnet', 0) == 1 else ''}
    s_lshl_b32 s22, s16, 5
    s_add_u32 s22, s22, s18
    s_cmp_lt_u32 s22, 84
    s_cbranch_scc1 H_FN_A
    s_sub_u32 s24, s22, 84
    s_lshl_b32 s24, s24, 3
    s_add_u32 s24, s24, s17
    s_cmp_ge_u32 s24, 21
    s_cbranch_scc1 H_MID
    s_mov_b32 s23, 32
    s_branch H_FN_B
H_FN_A:
    s_mul_i32 s23, s22, 3121
    s_lshr_b32 s23, s23, 16
    s_mul_i32 s24, s23, 21
    s_sub_u32 s24, s22, s24
    s_lshl_b32 s23, s23, 3
    s_add_u32 s23, s23, s17
H_FN_B:
    s_and_b32 s25, s23, 1
    s_add_u32 s26, s24, 20
    s_cmp_eq_u32 s24, 20
    s_cselect_b32 s26, 20, s26
    s_mul_i32 s32, s24, 26
    s_lshr_b32 s32, s32, 8
    s_lshl_b32 s32, s32, 13
    s_add_u32 s32, s32, {48 * 128}
    s_mul_i32 s33, s26, 26
    s_lshr_b32 s33, s33, 8
    s_lshl_b32 s33, s33, 13
    s_add_u32 s33, s33, {32 * 128}
    s_and_b32 s34, s23, 31
    s_lshl_b32 s34, s34, 8
    s_mov_b64 exec, 0xffff
    v_add_u32 v2, s32, v{LF}
    s_mov_b32 exec_lo, 0xffff0000
    v_add_u32 v2, s33, v{LF}
    s_mov_b32 exec_lo, 0
    s_mov_b32 exec_hi, 0xff
    v_add_u32 v2, s34, v{LT}
    s_mov_b32 s40, -1
    s_movk_i32 s41, 0xff
    s_mov_b32 s27, {FLG_OFF}
    """)
    poll4(a, 2, 4, "s[40:41]", "s27", slp=8)
    a(st(14))
    a(f"""
    s_lshl_b32 s32, s23, 16
    s_add_u32 s32, s32, {TB_OFF}
    s_mul_i32 s27, s25, {FO_DELTA}
    s_add_u32 s27, s27, {FE_OFF}
    s_lshl_b32 s33, s24, 14
    s_add_u32 s33, s33, s27
    s_lshl_b32 s34, s26, 14
    s_add_u32 s34, s34, s27
    s_cmp_eq_u32 s25, 0
    s_cselect_b32 s35, s24, s26
    s_lshl_b32 s35, s35, 6
    s_add_u32 s35, s35, {X512_OFF}
    buffer_load_dwordx4 v[128:131], v{XA5}, s[28:31], s35 offen sc1
    """)
    def flist(j):
        r = FB + 24 * j
        F = lambda d, sr: f"buffer_load_dwordx4 {vr(r+d,4)}, v163, s[28:31], {sr} offen offset:{1024*j} sc1"
        Tb = lambda k: f"buffer_load_dwordx4 {vr(r+8+4*k,4)}, v163, s[28:31], s32 offen offset:{1024*k} sc1"
        last = "\ns_add_u32 s32, s32, 4096" + ("\ns_add_u32 s33, s33, 4096\ns_add_u32 s34, s34, 4096" if j == 3 else "")
        return [Tb(0), F(0, "s33") + "\n" + Tb(2), Tb(1), F(4, "s34") + "\n" + Tb(3) + last]
    def fl(j): return "\n".join(flist(j))
    def mlist(j):
        r = FB + 24 * j
        M = lambda d, x, y: f"v_mfma_f32_16x16x32_bf16 {vr(d,4)}, {vr(x,4)}, {vr(y,4)}, {vr(d,4)}"
        return [M(C, r, r + 8), M(C + 4, r, r + 16), M(SN, r + 4, r + 12), M(SN + 4, r + 4, r + 20)]
    for j in range(4): a(fl(j))
    a(f"""
    s_cmp_eq_u32 s25, 0
    s_cselect_b32 s36, 1.0, 0
    s_cselect_b32 s37, 0, 1.0
    v_or_b32 v161, s37, v{SG}
    v_or_b32 v160, s36, v{SG}
    s_waitcnt vmcnt(24)
    """)
    for r in range(8): a(f"v_mul_f32 v{C+r}, v160, v{128 + r % 4}\nv_mul_f32 v{SN+r}, v161, v{128 + r % 4}")
    a(f"s_setprio {opt('fp', 2)}\ns_mov_b32 s38, 0\nH_FN_LOOP:")
    for j in range(4):
        if opt("fil", 1):
            for m_, l_ in zip(mlist(j), flist(j)): a("s_waitcnt vmcnt(22)"); a(m_); a(l_)
        else:
            a("s_waitcnt vmcnt(18)"); a("\n".join(mlist(j))); a(fl(j))
    a("s_add_u32 s38, s38, 1\ns_cmp_lt_u32 s38, 3\ns_cbranch_scc1 H_FN_LOOP")
    for j in range(4):
        for m_, nd in zip(mlist(j), (2, 3, 5, 6)): a(f"s_waitcnt vmcnt({24 - 6 * j - nd})"); a(m_)
    a(f"""
    s_cmp_eq_u32 s26, 20
    s_cselect_b32 s44, 0xffff, 0
    s_mov_b32 s45, 0
    s_mul_i32 s26, s24, {8*ZP}
    s_mul_i32 s27, s25, {ZP}
    s_add_u32 s26, s26, s27
    s_lshr_b32 s27, s23, 1
    s_lshl_b32 s27, s27, 9
    s_add_u32 s26, s26, s27
    s_add_u32 s26, s26, {Y_OFF}
    v_cndmask_b32 v{SN}, v{SN}, 0, s[44:45]
    v_cndmask_b32 v{SN+4}, v{SN+4}, 0, s[44:45]
    """)
    for r in range(8):
        a(f"v_add_f32 v{16+r}, v{C+r}, v{SN+r}\nv_sub_f32 v{C+r}, v{C+r}, v{SN+r}")
    for r in range(8): a(f"v_cvt_pk_bf16_f32 v{16+r}, v{16+r}, v{C+r}")
    a(f"buffer_store_dwordx4 v[16:19], v{FZ}, s[28:31], s26 offen sc1\nbuffer_store_dwordx4 v[20:23], v{FZ}, s[28:31], s26 offen offset:256 sc1")
    a(f"""
H_MID:
    s_setprio 3
    s_lshl_b32 s19, s17, 2
    s_and_b32 s20, s18, 3
    s_add_u32 s19, s19, s20
    s_lshr_b32 s20, s18, 2
    {srd(32, WO_P, 640*1280)}
    {srd(36, OUT_P, 2621440)}
    s_mul_i32 s26, s20, 160
    s_mul_i32 s27, s16, {160*1280}
    s_add_u32 s27, s27, s26
    s_movk_i32 s23, {1280 - 160}
    """)
    a(f"""
    s_add_u32 s25, s16, 1
    s_and_b32 s25, s25, 3
    s_mul_i32 s22, s25, 25600
    s_add_u32 s22, s22, {WOL}
    s_add_u32 s25, s25, 3
    s_waitcnt vmcnt(0)
    {st(5)}
    """)
    lwait(a, HPA, T + 1, 0xff, 3)
    a(f"""s_mov_b64 exec, 1
    ds_add_rtn_u32 v{T+1}, v{HPA}, v{HONE} offset:48
    s_waitcnt lgkmcnt(0)
    v_cmp_eq_u32 vcc, 3, v{T+1}
    s_cbranch_vccz H_NOY
    buffer_store_dword v{HONE}, v{YFA}, s[28:31], 0 offen sc1
H_NOY:
    s_mov_b64 exec, -1""")
    lwait(a, HPA, T + 1, 0xff, "s25")
    a(f"{st(6)}\ns_mov_b32 s25, 0\nH_WO:")
    for i in range(5):
        a(f"s_add_u32 m0, s22, {1024*i}\ns_nop 0\nbuffer_load_dwordx4 v{WA+i}, s[32:35], s27 offen lds")
    a(f"""
    s_add_u32 s22, s22, 5120
    s_add_u32 s27, s27, {32*1280}
    s_add_u32 s25, s25, 1
    s_cmp_lt_u32 s25, 5
    s_cbranch_scc1 H_WO
    s_cmp_lg_u32 s16, 3
    s_cbranch_scc1 H_YW
    """)
    lwait(a, HPA, T + 1, 0xff, opt("ypr", 5), 16)
    a(f"s_mov_b32 s27, {FLG_OFF + 32768}")
    poll4(a, LF, 4, "-1", "s27", slp=opt("ys", 16))
    ladd(a, HPA, HONE, 40)
    a(f"H_YW:\nv_add_u32 v{T}, 40, v{HPA}")
    lwait(a, T, T + 1, 1, 1, 16)
    a("s_waitcnt vmcnt(0)")
    a(f"v_mov_b32 v{T}, 2")
    ladd(a, HPA, T, 32)
    a(f"{st(7)}\ns_mov_b32 s26, {Y_OFF}\ns_mov_b32 s27, {G_OFF}\nbuffer_load_dword v{G}, v{VG}, s[28:31], s27 offen sc1")
    for j in range(6):
        a(f"buffer_load_dwordx4 {vr(ZL+4*j,4)}, v{VZ}, s[28:31], s26 offen sc1\ns_add_u32 s26, s26, {2*ZP}")
    BF, OFR, ACC, YG = 0, 100, 120, 140
    VY2, G2 = 162, 167
    a(f"""
    s_waitcnt vmcnt(0)
    s_cmp_ge_u32 s20, 4
    s_cbranch_scc1 H_DESC
    """)
    for k in range(10): a(f"v_perm_b32 v{YG+10+k}, v{ZL+2*k+1}, v{ZL+2*k}, v{SH}")
    a("s_branch H_UNP\nH_DESC:")
    for k in range(10): a(f"v_perm_b32 v{YG+10+k}, v{ZL+19-2*k}, v{ZL+20-2*k}, v{SH}")
    a("H_UNP:")
    lwait(a, HPA, 8, 0xf, 8)
    a(f"""
    {st(8)}
    s_mov_b32 s41, s16
    s_mov_b32 s47, 0
P3_GO:
    s_setprio {opt('p3o', 0)}
    s_lshl_b32 s22, s17, 3
    s_and_b32 s23, s18, 3
    s_add_u32 s22, s22, s23
    s_lshl_b32 s22, s22, 1
    s_add_u32 s22, s22, s47
    s_mul_i32 s22, s22, 20480
    s_add_u32 s22, s22, {OF_OFF}
    s_lshl_b32 s44, s41, 12
    s_add_u32 s44, s44, s22
    s_lshl_b32 s45, s41, 10
    s_add_u32 s45, s45, s22
    s_add_u32 s45, s45, 16384
    s_lshl_b32 s46, s47, 2
    s_add_u32 s40, s46, {LFB + 80}
    s_add_u32 s46, s46, s41
    s_mul_i32 s46, s46, 5120
    s_add_u32 s46, s46, {WOL}
    s_mov_b32 s26, 0
    s_mov_b32 s42, 0
    v_mov_b32 v{CM}, {LFB + 32}
    """)
    lwait(a, CM, CT, 1, 8)
    a("P3_TRY:")
    for k in range(4):
        a(f"buffer_load_dwordx4 {vr(OFR+4*k,4)}, v{VA}, s[28:31], s44 offen offset:{1024*k} sc1")
    a(f"buffer_load_dwordx2 {vr(OFR+16,2)}, v{VT}, s[28:31], s45 offen sc1\nbuffer_load_dwordx2 {vr(OFR+18,2)}, v{VT}, s[28:31], s45 offen offset:128 sc1")
    a(f"""
    s_cmp_lg_u32 s26, 0
    s_cbranch_scc1 P3_CHK
    s_add_u32 s23, s41, 1
    s_and_b32 s23, s23, 3
    s_mul_i32 s23, s23, 25600
    s_add_u32 s23, s23, {WOL}
    v_add_u32 v{CM}, s23, v{BMM}
    v_add_u32 v{CT}, s23, v{BMT}
    """)
    for n in range(25):
        k, t = divmod(n, 5); d = BF + 4 * n
        bb, o, dj = (CM, k * 6400 + t * 8, 1280) if k < 4 else (CT, t * 8, 3200)
        a(f"ds_read_b64_tr_b16 {vr(d,2)}, v{bb} offset:{o}\nds_read_b64_tr_b16 {vr(d+2,2)}, v{bb} offset:{o+dj}")
    a(f"v_mov_b32 v{BMM}, {LFB + 36}\nv_mov_b32 v{BMT}, 1\ns_waitcnt lgkmcnt(0)")
    ladd(a, BMM, BMT, 0)
    b = OFR
    def mfs(k): return "\n".join(f"v_mfma_f32_16x16x32_bf16 {vr(ACC+4*t,4)}, {vr(BF+4*(5*k+t),4)}, {vr(OFR+4*k,4)}, {vr(ACC+4*t,4) if k else 0}" for t in range(5))
    if opt("spec", 1):
        a("P3_CHK:\ns_add_u32 s26, s26, 1\ns_mov_b32 s43, -1")
        for k in range(5):
            r = b + 4 * k
            a(f"""P3_C{k}:
            s_waitcnt vmcnt({max(0, 5 - k) if k < 4 else 0})
            v_max3_u32 v{CM}, v{r}, v{r+1}, v{r+2}
            v_max3_u32 v{CM}, v{r+3}, v{CM}, 1
            v_cmp_eq_u32 vcc, s43, v{CM}
            s_cbranch_vccnz P3_B{k}
            {mfs(k)}""")
        a(f"{'' if opt('fst', 0) else st(11)}\ns_branch P3_OK")
        for k in range(5):
            a(f"P3_B{k}:\ns_sleep {opt('p3s', 4)}")
            for kk in range(k, 4):
                a(f"buffer_load_dwordx4 {vr(OFR+4*kk,4)}, v{VA}, s[28:31], s44 offen offset:{1024*kk} sc1")
            a(f"buffer_load_dwordx2 {vr(OFR+16,2)}, v{VT}, s[28:31], s45 offen sc1\nbuffer_load_dwordx2 {vr(OFR+18,2)}, v{VT}, s[28:31], s45 offen offset:128 sc1")
            a(f"s_add_u32 s26, s26, 1\ns_cmp_lt_u32 s26, 0x40000\ns_cselect_b32 s43, -1, 0\ns_branch P3_C{k}")
        a("P3_OK:")
    else:
        a(f"P3_CHK:\ns_add_u32 s26, s26, 1\ns_waitcnt vmcnt(4)\nv_max3_u32 v{CM}, v{b}, v{b+1}, v{b+2}\nv_max3_u32 v{CT}, v{b+3}, v{b+4}, v{b+5}\nv_max3_u32 v{CM}, v{b+6}, v{b+7}, v{CM}\ns_waitcnt vmcnt(2)")
        a(f"v_max3_u32 v{CT}, v{b+8}, v{b+9}, v{CT}\nv_max3_u32 v{CM}, v{b+10}, v{b+11}, v{CM}\nv_max3_u32 v{CT}, v{b+12}, v{b+13}, v{CT}\nv_max3_u32 v{CM}, v{b+14}, v{b+15}, v{CM}\ns_waitcnt vmcnt(0)")
        a(f"""
    v_max3_u32 v{CT}, v{b+16}, v{b+17}, v{CT}
    v_max3_u32 v{CM}, v{b+18}, v{b+19}, v{CM}
    s_cmp_lt_u32 s26, 0x40000
    v_max_u32 v{CM}, v{CM}, v{CT}
    s_cbranch_scc0 P3_OK
    v_cmp_eq_u32 vcc, -1, v{CM}
    s_cbranch_vccz P3_OK
    s_sleep {opt("p3s", 4)}
    s_branch P3_TRY
P3_OK:
    {'' if opt('fst', 0) else st(11)}
    s_setprio {opt('p3p', 0)}
    """)
        for n in range(25):
            k, t = divmod(n, 5)
            a(f"v_mfma_f32_16x16x32_bf16 {vr(ACC+4*t,4)}, {vr(BF+4*n,4)}, {vr(OFR+4*k,4)}, {vr(ACC+4*t,4) if k else 0}")
    a("s_cmp_lg_u32 s42, 0\ns_cbranch_scc1 P3_WR")
    lwait(a, BMM, CT, 1, 8, 2)
    a(f"{str() if opt('fst', 0) else st(12)}\nP3_WR:\nv_add_u32 v{CM}, s46, v{VA}\nv_mov_b32 v{CT}, s40\ns_nop 1")
    for j in range(5): a(f"ds_write_b128 v{CM}, {vr(ACC+4*j,4)} offset:{1024*j}")
    a("s_waitcnt lgkmcnt(0)")
    ladd(a, CT, BMT, 0)
    a(f"""
    s_add_u32 s44, s44, {8*20480}
    s_add_u32 s45, s45, {8*20480}
    s_add_u32 s46, s46, {8*5120}
    s_add_u32 s40, s40, 8
    s_add_u32 s42, s42, 1
    s_cmp_ge_u32 s42, 2
    s_cbranch_scc1 P3_END
    s_cmp_ge_u32 s16, 4
    s_cbranch_scc1 P3_TRY
    """)
    for k in range(10): a(f"v_lshlrev_b32 v{YG+2*k}, 16, v{YG+10+k}\nv_and_b32 v{YG+2*k+1}, 0xffff0000, v{YG+10+k}")
    for k in range(20): a(f"v_mul_f32 v{YG+k}, v{YG+k}, v{G2}")
    a(f"""
    v_sub_f32 v{G2}, 1.0, v{G2}
    s_branch P3_TRY
P3_END:
    {st(10)}
    s_cmp_ge_u32 s16, 4
    s_cbranch_scc1 {"L_DONE" if STAMP else "L_END"}
    s_setprio 3
    s_lshl_b32 s23, s16, 2
    s_add_u32 s23, s23, {LFB + 80}
    v_mov_b32 v{CT}, s23
    s_mul_i32 s23, s16, 20480
    s_add_u32 s23, s23, {WOL}
    v_add_u32 v{CM}, s23, v{VA}
    """)
    lwait(a, CT, BMM, 1, 4, 1)
    a(st(9))
    for j in range(5):
        for g in range(4): a(f"ds_read_b128 {vr(16*j+4*g,4)}, v{CM} offset:{5120*g+1024*j}")
    for j in range(5):
        a(f"s_waitcnt lgkmcnt({min(15, 16-4*j)})")
        for r in (0, 2): a(f"v_pk_add_f32 {vr(16*j+r,2)}, {vr(16*j+r,2)}, {vr(16*j+4+r,2)}\nv_pk_add_f32 {vr(16*j+8+r,2)}, {vr(16*j+8+r,2)}, {vr(16*j+12+r,2)}")
        for r in (0, 2): a(f"v_pk_add_f32 {vr(16*j+r,2)}, {vr(16*j+r,2)}, {vr(16*j+8+r,2)}")
        for r in range(4): a(f"v_fmac_f32 v{YG+4*j+r}, v{16*j+r}, v{G2}")
        a(f"v_cvt_pk_bf16_f32 v{84+2*j}, v{YG+4*j}, v{YG+4*j+1}\nv_cvt_pk_bf16_f32 v{84+2*j+1}, v{YG+4*j+2}, v{YG+4*j+3}")
        if j == 1: a(f"buffer_store_dwordx4 v[84:87], v{VY2}, s[36:39], 0 offen" + OSC)
        if j == 3: a(f"buffer_store_dwordx4 v[88:91], v{VY2}, s[36:39], 0 offen offset:16" + OSC)
    a(f"buffer_store_dwordx2 v[92:93], v{VY2}, s[36:39], 0 offen offset:32" + OSC)

DOC = """;
"""
def main():
    a = A()
    top = open("cdna_kernels/" + NAME + ".s.ref").read().split("; Override launch")[0]
    top += "; @launch grid=(256,1,1) block=(768,1,1) lds=163840\n"
    top += DOC
    a('.amdgcn_target "amdgcn-amd-amdhsa--gfx950"\n.text')
    d = gen(a)
    open(sys.argv[1], "w").write(top + a.text() + '.section .rodata,"a"\n.p2align 6\n' + d)
if __name__ == "__main__":
    main()
```

```python
import sys, math, struct

OPT = dict(x.split("=") for x in sys.argv[2:])
def opt(k, d): return int(OPT.get(k, d))
NAME = "gated_mix__spectral_fnet__softmax_full_mha__prompt"
HS = 163840
KV_OFF = 0
HG = HS + opt('pad', 512)
HQ = 81920 + opt('pad', 512)
Q_OFF = 32 * HG
FE_OFF = Q_OFF + 32 * HQ
FO_DELTA = 655360
X512_OFF = FE_OFF + 2 * FO_DELTA
TB_OFF = X512_OFF + 4096
Y_OFF = TB_OFF + 33 * 65536
ZP = 8704
G_OFF = Y_OFF + 85 * 2 * ZP
OF_OFF = G_OFF + 8192
FLG_OFF = OF_OFF + 2621440
WS_USED = FLG_OFF + 320 * 128
XB = 102400
L_Y = 256
QLDS = 71680
RB0, RSL = 11264, 36864
LFB = 158720
WOL = 5120
AK1, AK2, AV, BK1, BK2, BV, OA1, OA2, ONES, PA, FA = range(152, 163)
VA, VT, BMM, BMT, CM, CT = 163, 164, 165, 166, 160, 161
PXB = 107520
def p3_addr(l):
    return f"""v_lshlrev_b32 v{VA}, 4, v{l}
    v_and_b32 v2, 7, v{l}
    v_bfe_u32 v4, v{l}, 3, 1
    v_lshrrev_b32 v3, 4, v{l}
    v_lshlrev_b32 v{VT}, 8, v3
    v_lshl_add_u32 v{VT}, v2, 4, v{VT}
    v_lshl_add_u32 v{VT}, v4, 3, v{VT}
    v_bfe_u32 v2, v{l}, 2, 2
    v_and_b32 v5, 3, v{l}
    v_mul_u32_u24 v5, 40, v5
    v_mul_u32_u24 v4, 40, v3
    v_add3_u32 v4, v4, v2, 16
    v_mul_u32_u24 v4, 160, v4
    v_add_u32 v{BMT}, v4, v5
    v_lshrrev_b32 v4, 1, v3
    v_mul_u32_u24 v4, 20, v4
    v_and_b32 v3, 1, v3
    v_lshl_add_u32 v4, v3, 2, v4
    v_add_u32 v4, v4, v2
    v_mul_u32_u24 v4, 160, v4
    v_add_u32 v{BMM}, v4, v5"""

def f32bits(x): return struct.unpack("<I", struct.pack("<f", x))[0]
QSCALE = f32bits((20 ** -0.5) * math.log2(math.e))
STAMP = opt("stamp", 0)
STAMP_OFF = 1 << 25
NST = 16

class A:
    def __init__(self): self.l = []; self.n = 0
    def __call__(self, s):
        for line in s.split("\n"):
            t = line.strip()
            if not t: continue
            self.l.append(t if t.endswith(":") or t.startswith(".") else "    " + t)
    def uid(self): self.n += 1; return self.n
    def text(self): return "\n".join(self.l) + "\n"

def vr(a, n): return f"v[{a}:{a+n-1}]" if n > 1 else f"v{a}"
def srd(lo, base, size):
    return f"s_mov_b32 s{lo}, s{base}\ns_mov_b32 s{lo+1}, s{base+1}\ns_mov_b32 s{lo+2}, {size}\ns_mov_b32 s{lo+3}, 0x20000"
OSC = " sc1" if opt("outsc1", 0) else ""
ALN = (f".p2align {opt('al', 0)}" if opt("al", 0) else "") + ("\ns_nop 0" if opt("al4", 0) else "")
ALN2 = f".p2align {opt('al2', 0)}" if opt("al2", 0) else ""
U2 = opt('u2', 1)
WT = 14 if U2 else 6
P1ST = opt("p1st", 0)
def st(i, p1=False):
    if not STAMP: return ""
    if P1ST and not p1 and 0 < i < 15 and i not in (4, 5): return ""
    if P1ST and not p1 and i in (4, 5): i += 8
    if p1 and not P1ST: return ""
    return f"{'s_memrealtime' if STAMP in (1, 3, 4) else 's_memtime'} s[{64+2*i}:{65+2*i}]"
def fin(): return "s_branch L_DONE" if STAMP else "s_endpgm"

X_P, WD_P, WQKV_P, WO_P, GATE_P, OUT_P, DBG_P, WS_P = 4, 8, 48, 50, 52, 54, 56, 58

def poll(a, vaddr, vdat, mask, target, sreg=60):
    u = a.uid()
    a(f"""
    s_mov_b64 exec, {mask}
    s_mov_b32 s{sreg}, 0
L_POLL{u}:
    buffer_load_dword v{vdat}, v{vaddr}, s[28:31], 0 offen sc1
    s_waitcnt vmcnt(0)
    v_cmp_gt_u32 vcc, {target}, v{vdat}
    s_cbranch_vccz L_POLLD{u}
    {'s_sleep 1' if opt('psleep', 0) else ''}
    s_add_u32 s{sreg}, s{sreg}, 1
    s_cmp_lt_u32 s{sreg}, 0x40000
    s_cbranch_scc1 L_POLL{u}
L_POLLD{u}:
    s_mov_b64 exec, -1
    """)

def poll4(a, vaddr, vdat, mask, soff="0", sreg=60, slp=None):
    u = a.uid()
    a(f"""
    s_mov_b64 exec, {mask}
    s_mov_b32 s{sreg}, 0
    s_branch L_POLLE{u}
L_POLL{u}:
    s_sleep {slp or opt("ps4", 2)}
L_POLLE{u}:
    buffer_load_dwordx4 {vr(vdat,4)}, v{vaddr}, s[28:31], {soff} offen sc1
    s_add_u32 s{sreg}, s{sreg}, 1
    s_waitcnt vmcnt(0)
    v_min3_u32 v{vdat}, v{vdat}, v{vdat+1}, v{vdat+2}
    s_cmp_lt_u32 s{sreg}, 0x40000
    v_min_u32 v{vdat}, v{vdat}, v{vdat+3}
    s_cbranch_scc0 L_POLLD{u}
    v_cmp_eq_u32 vcc, 0, v{vdat}
    s_cbranch_vccnz L_POLL{u}
L_POLLD{u}:
    s_mov_b64 exec, -1
    """)

def gen(a):
    label = NAME + "_kernel"
    a(f".p2align 8\n.globl {label}\n.type {label},@function\n{label}:")
    a(f"""
    s_cmp_ge_u32 s2, 256
    s_cbranch_scc1 L_END
    {st(0) + chr(10) + 's_waitcnt lgkmcnt(0)' if opt("st0first", 0) else ''}
    s_load_dwordx2 s[4:5], s[0:1], 0
    s_load_dwordx8 s[48:55], s[0:1], 48
    s_load_dwordx4 s[8:11], s[0:1], 24
    s_load_dwordx4 s[56:59], s[0:1], 80
    """)
    if STAMP:
        a("\n".join(f"s_mov_b32 s{64+j}, 0" for j in range(2, 2 * NST)) + "\n" + ("" if opt("st0first", 0) else st(0)))
    a(f"""
    v_lshrrev_b32 v1, 6, v0
    v_and_b32 v0, 63, v0
    s_and_b32 s17, s2, 7
    v_readfirstlane_b32 s16, v1
    s_lshr_b32 s18, s2, 3
    s_and_b32 s19, s18, 7
    s_lshr_b32 s22, s18, 3
    s_and_b32 s21, s17, 1
    s_lshl_b32 s23, s19, 1
    s_add_u32 s21, s21, s23
    s_lshr_b32 s20, s17, 1
    s_cmp_ge_u32 s19, {opt("numl", 4)}
    s_cselect_b32 s12, 1, 0
    s_cmp_eq_u32 s22, 0
    s_cselect_b32 s12, 0, s12
    s_cmp_ge_u32 s16, 4
    s_cbranch_scc1 P1_NOTLOADER
    """)
    p1_loader(a)
    a(f"""
P1_NOTLOADER:
    s_lshl_b32 s63, s17, 2
    s_add_u32 s63, s63, s22
    s_mul_i32 s14, s63, {HG}
    s_sub_u32 s13, s16, 4
    s_lshl_b32 s23, s19, 3
    s_add_u32 s23, s23, s13
    s_mul_i32 s23, s23, 40960
    s_add_u32 s23, s23, {OF_OFF}
    s_lshl_b32 s6, s63, 9
    s_add_u32 s6, s6, s23
    s_lshl_b32 s7, s63, 7
    s_add_u32 s7, s7, s23
    s_add_u32 s7, s7, 16384
    s_lshl_b32 s15, s20, 2
    s_add_u32 s15, s15, s22
    s_lshl_b32 s15, s15, 4
    s_add_u32 s15, s15, s21
    s_lshl_b32 s15, s15, 5
    s_add_u32 s15, s15, s13
    s_lshl_b32 s15, s15, 2
    s_add_u32 s15, s15, {FLG_OFF}
    v_and_b32 v1, 31, v0
    v_lshrrev_b32 v2, 5, v0
    v_lshlrev_b32 v{AK1}, 4, v0
    v_lshrrev_b32 v3, 4, v1
    v_lshl_add_u32 v3, v3, 1, v2
    v_and_b32 v4, 15, v0
    v_lshl_add_u32 v3, v4, 2, v3
    v_lshlrev_b32 v{AK2}, 2, v3
    v_mul_u32_u24 v{AV}, 384, v2
    v_lshlrev_b32 v3, 6, v2
    v_cmp_gt_u32 vcc, 16, v1
    s_nop 1
    v_cndmask_b32 v{AV}, v3, v{AV}, vcc
    v_lshl_add_u32 v{AV}, v1, 4, v{AV}
    v_add_u32 v{BK1}, {WT*2560}, v{AK1}
    v_add_u32 v{BK2}, {WT*2560}, v{AK2}
    v_add_u32 v{BV}, {WT*2560}, v{AV}
    v_and_b32 v3, 27, v1
    v_cmp_eq_u32 vcc, 24, v3
    v_mov_b32 v3, 0x3f803f80
    v_bfe_u32 v{OA2}, v1, 3, 1
    v_cndmask_b32 v{ONES}, 0, v3, vcc
    v_mul_u32_u24 v{OA2}, 20480, v{OA2}
    v_and_b32 v3, 7, v1
    v_lshl_add_u32 v{OA2}, v3, 4, v{OA2}
    v_lshrrev_b32 v3, 4, v0
    v_lshl_add_u32 v{OA1}, v3, 7, v{OA2}
    s_lshl_b32 s23, s13, 2
    s_add_u32 s23, s23, {LFB}
    v_mov_b32 v{PA}, s23
    v_mov_b32 v{FA}, {LFB + 56}
    {p3_addr(0)}
    s_cmp_ge_u32 s16, 8
    s_cbranch_scc1 P1_EXTRA
    """)
    p1_compute(a)
    p1_extra(a)
    attention(a)
    helpers(a)
    a("L_DONE:")
    if STAMP == 4:
        i_, j_ = opt("ai", 0), opt("aj", 0)
        a(f"""s_waitcnt vmcnt(0)
        {st(NST-1)}
        s_waitcnt lgkmcnt(0)
        {f's_cmp_lg_u32 s16, {opt("aw1", 0)}' if opt("aw1", 0) else f's_cmp_ge_u32 s16, {opt("aw", 4)}'}
        s_cbranch_scc1 L_END
        s_and_b32 s60, s2, {opt("am", 31)}
        s_cmp_lg_u32 s60, {opt("av", 5)}
        s_cbranch_scc1 L_END
        s_sub_u32 s60, s{64+2*j_}, s{64+2*i_}
        s_lshl_b32 s60, s60, 2
        s_min_u32 s60, s60, 100000
        {f's_mov_b32 s60, {opt("fix", 0)}' if opt("fix", 0) else ''}
L_AMP:
        s_memrealtime s[44:45]
        s_waitcnt lgkmcnt(0)
        s_sub_u32 s44, s44, s{64 if opt("fix", 0) else 64+2*(NST-1)}
        s_cmp_lt_u32 s44, s60
        s_cbranch_scc1 L_AMP
        """)
    elif STAMP == 3:
        r = f"s_waitcnt vmcnt(0)\n{st(NST-1)}\ns_mov_b64 exec, 1\n{srd(44, DBG_P, 256)}\ns_waitcnt lgkmcnt(0)\nv_mov_b32 v16, 0\n"
        r += "s_not_b32 s60, s64\nv_mov_b32 v0, s60\nbuffer_atomic_umax v0, v16, s[44:47], 0 offen offset:4 sc1\n"
        r += "s_cmp_eq_u32 s16, 0\ns_cbranch_scc1 L_D0\ns_cmp_eq_u32 s16, 4\ns_cbranch_scc0 L_END\n"
        for n, i in enumerate((2, 3, 4, 5, 7, 8, 9)): r += f"v_mov_b32 v{n+1}, s{64+2*i}\nbuffer_atomic_umax v{n+1}, v16, s[44:47], 0 offen offset:{8+4*n} sc1\n"
        r += "s_endpgm\nL_D0:\n"
        for n, i in enumerate((0, 1, 6, 8, 9, 10, 15)): r += f"v_mov_b32 v{n+1}, s{64+2*i}\nbuffer_atomic_umax v{n+1}, v16, s[44:47], 0 offen offset:{36+4*n} sc1\n"
        a(r)
    elif STAMP:
        r = f"s_waitcnt vmcnt(0)\n{st(NST-1)}\ns_mov_b64 exec, 1\ns_add_u32 s44, s{WS_P}, {STAMP_OFF}\ns_addc_u32 s45, s{WS_P+1}, 0\ns_mov_b32 s46, 262144\ns_mov_b32 s47, 0x20000\n"
        r += "s_lshl_b32 s60, s2, 4\ns_add_u32 s60, s60, s16\ns_lshl_b32 s60, s60, 6\ns_waitcnt lgkmcnt(0)\nv_mov_b32 v16, 0\n"
        if opt("xcc", 0): r += "s_getreg_b32 s66, hwreg(HW_REG_XCC_ID)\ns_add_u32 s66, s66, 100\n"
        for i in range(NST): r += f"v_mov_b32 v{i}, s{64+2*i}\n"
        for i in range(4): r += f"buffer_store_dwordx4 v[{4*i}:{4*i+3}], v16, s[44:47], s60 offen offset:{16*i}\n"
        a(r)
    a("L_END:\ns_endpgm\n.fill 256, 4, 0xbf810000\nL_CODE_END:")
    return f""".amdhsa_kernel {label}
  .amdhsa_next_free_vgpr 168
  .amdhsa_next_free_sgpr {100 if STAMP else 64}
  .amdhsa_accum_offset 168
  .amdhsa_group_segment_fixed_size 0
  .amdhsa_kernarg_size 96
  .amdhsa_user_sgpr_count 2
  .amdhsa_user_sgpr_kernarg_segment_ptr 1
  .amdhsa_system_sgpr_workgroup_id_x 1
.end_amdhsa_kernel
"""

def p1_loader(a):
    a(f"""
    s_setprio 3
    """)
    if opt("pf", 0):
        a(f"""
        v_lshlrev_b32 v20, 4, v0
        s_mul_i32 s23, s2, 10240
        s_and_b32 s24, s16, 1
        s_mul_i32 s24, s24, 5120
        s_add_u32 s23, s23, s24
        s_mul_i32 s25, s2, 3
        s_mov_b32 s31, 0x20000
        s_mov_b32 s35, 0x20000
        s_mov_b32 s34, {640*1280}
        s_waitcnt lgkmcnt(0)
        s_mov_b32 s30, {2048*1280}
        s_cmp_lt_u32 s16, 2
        s_cselect_b32 s28, s{X_P}, s{WQKV_P}
        s_cselect_b32 s29, s{X_P+1}, s{WQKV_P+1}
        s_cselect_b32 s30, s30, {640*3840}
        s_cselect_b32 s32, s8, s10
        s_cselect_b32 s33, s9, s11
        buffer_load_dwordx4 v[24:27], v20, s[28:31], s23 offen
        buffer_load_dwordx4 v[28:31], v20, s[28:31], s23 offen offset:1024
        buffer_load_dwordx4 v[32:35], v20, s[28:31], s23 offen offset:2048
        buffer_load_dwordx4 v[36:39], v20, s[28:31], s23 offen offset:3072
        s_add_u32 s23, s23, 4096
        buffer_load_dwordx4 v[40:43], v20, s[28:31], s23 offen
        s_lshr_b32 s24, s24, 11
        s_add_u32 s25, s25, s24
        s_mul_i32 s25, s25, 1280
        s_mov_b32 exec_hi, 0xff
        buffer_load_dwordx4 v[44:47], v20, s[32:35], s25 offen
        s_bitcmp1_b32 s16, 0
        s_cbranch_scc1 P1_PF1
        buffer_load_dwordx4 v[48:51], v20, s[32:35], s25 offen offset:1280
P1_PF1:
        s_mov_b32 exec_hi, -1
        """)
    a(f"""
    v_lshrrev_b32 v2, 3, v0
    v_and_b32 v3, 7, v0
    v_lshrrev_b32 v4, 4, v0
    v_xor_b32 v3, v3, v4
    v_lshlrev_b32 v3, 4, v3
    v_xor_b32 v4, 64, v3
    s_lshl_b32 s23, s21, 5
    s_lshr_b32 s24, s16, 1
    s_lshl_b32 s24, s24, 4
    s_add_u32 s23, s23, s24
    s_cmp_eq_u32 s22, 2
    s_cselect_b32 s25, 4, 0
    v_and_b32 v9, s25, v2
    v_add3_u32 v9, v9, v2, s23
    s_sub_u32 s25, 8, s25
    s_bitcmp1_b32 s16, 0
    s_cselect_b32 s23, -1, 1
    s_cselect_b32 s24, 0x400, 0
    s_mul_i32 s25, s25, s23
    v_mul_lo_u32 v10, v9, s23
    s_sub_u32 s27, 0x800, s24
    v_add_u32 v5, s24, v10
    v_sub_u32 v7, s27, v10
    v_add_u32 v6, s25, v5
    v_subrev_u32 v8, s25, v7
    v_cmp_eq_u32 vcc, 0, v9
    s_add_u32 s24, s24, 0x200
    v_mov_b32 v9, s24
    s_cmp_lg_u32 s22, 2
    v_cndmask_b32 v7, v7, v9, vcc
    s_cbranch_scc1 P1_LD_NV
    v_swap_b32 v6, v7
P1_LD_NV:
    s_movk_i32 s27, 1280
    v_mad_u32_u24 v10, v5, s27, v3
    v_mad_u32_u24 v11, v6, s27, v4
    v_mad_u32_u24 v12, v7, s27, v3
    v_mad_u32_u24 v13, v8, s27, v4
    """)
    EX = opt("early", 1) and opt("stag1", 7) == 7
    if EX:
        a(f"""
        s_lshr_b32 s36, s17, 1
        s_xor_b32 s36, s36, s17
        s_and_b32 s36, s36, 1
        s_xor_b32 s36, s36, 9
        s_lshl_b32 s41, s36, 7
        s_lshl_b32 s44, s16, 12
        s_add_u32 m0, s44, {RB0 + 2 * RSL}
        s_waitcnt lgkmcnt(0)
        {srd(28, X_P, 2048*1280)}
        buffer_load_dwordx4 v10, s[28:31], s41 offen lds
        """)
        for i in range(1, 4):
            a(f"s_add_u32 m0, s44, {RB0 + 2 * RSL + 1024*i}\ns_nop 0\nbuffer_load_dwordx4 v{10+i}, s[28:31], s41 offen lds")
    a(f"""
    s_lshl_b32 s26, s22, 2
    s_add_u32 s26, s26, s20
    s_and_b32 s27, s20, 1
    s_movk_i32 s25, 3840
    s_cmp_eq_u32 s22, 3
    s_cselect_b32 s25, 1280, s25
    s_cselect_b32 s26, s27, s26
    s_mul_i32 s26, s26, 320
    s_lshl_b32 s27, s16, 4
    s_mul_i32 s27, s27, s25
    s_add_u32 s26, s26, s27
    s_sub_u32 s27, s25, 320
    """)
    for i in range(5):
        a(f"""
        v_add_u32 v5, {64*i}, v0
        v_mul_u32_u24 v6, 3277, v5
        v_lshrrev_b32 v6, 16, v6
        v_lshrrev_b32 v7, 2, v6
        v_and_b32 v7, 2, v7
        v_xor_b32 v5, v5, v7
        v_lshl_add_u32 v5, v5, 4, s26
        v_mad_u32_u24 v{14+i}, v6, s27, v5
        """)
    sg = opt("stag1", 7)
    if sg == 1:
        a("s_lshl_b32 s36, s19, 3\ns_lshl_b32 s37, s22, 4\ns_add_u32 s36, s36, s37\ns_add_u32 s36, s36, s17\ns_and_b32 s36, s36, 63\ns_mul_i32 s36, s36, 10\ns_lshr_b32 s36, s36, 6")
    elif sg == 2:
        a("s_add_u32 s36, s19, s22\ns_lshl_b32 s36, s36, 4\ns_add_u32 s36, s36, s17\ns_add_u32 s36, s36, s17\ns_and_b32 s36, s36, 63\ns_mul_i32 s36, s36, 10\ns_lshr_b32 s36, s36, 6")
    elif sg == 3:
        a("s_add_u32 s36, s19, s22\ns_lshl_b32 s36, s36, 5\ns_lshl_b32 s37, s17, 2\ns_add_u32 s36, s36, s37\ns_and_b32 s36, s36, 63\ns_mul_i32 s36, s36, 10\ns_lshr_b32 s36, s36, 6")
    elif sg >= 10:
        nc = sg - 9
        Gn = 5 - nc
        rot = [2 * (nc + k % Gn) for k in range(2 * Gn - 1)]
        rv = sum(v << (4 * k) for k, v in enumerate(rot))
        com = sum((2 * k) << (4 * k) for k in range(nc))
        a(f"""
        s_lshr_b32 s36, s17, 1
        s_xor_b32 s36, s36, s17
        s_and_b32 s36, s36, 1
        s_add_u32 s37, s22, s19
        s_lshr_b32 s46, s17, 2
        s_lshl_b32 s46, s46, {opt("xsh", 1)}
        s_add_u32 s37, s37, s46
        s_mul_i32 s46, s37, {256 // Gn + 1}
        s_lshr_b32 s46, s46, 8
        s_mul_i32 s46, s46, {Gn}
        s_sub_u32 s37, s37, s46
        s_lshl_b32 s37, s37, 2
        s_lshr_b32 s46, {rv:#x}, s37
        s_and_b32 s46, s46, {(1 << (4 * Gn)) - 1:#x}
        s_lshl_b32 s46, s46, {4 * nc}
        s_or_b32 s46, s46, {0x53100000 | com:#x}
        s_mov_b32 s47, 0x97
        s_mul_i32 s37, s36, 0x11111111
        s_xor_b32 s46, s46, s37
        s_xor_b32 s47, s47, s37
        s_and_b32 s36, s46, 15
        """)
    elif sg >= 5:
        tsh = {5: 0, 6: 1, 7: 0, 8: 0, 9: 0}[sg]
        a(f"""
        s_lshr_b32 s36, s17, 1
        s_xor_b32 s36, s36, s17
        s_and_b32 s36, s36, 1
        {'s_min_u32 s37, s22, 2' if sg == 9 else f's_lshr_b32 s37, s22, {tsh}'}
        s_add_u32 s37, s37, s19
        s_lshr_b32 s46, s17, 2
        s_lshl_b32 s46, s46, 1
        s_add_u32 s37, s37, s46
        s_mul_i32 s46, s37, 52
        s_lshr_b32 s46, s46, 8
        s_mul_i32 s46, s46, 5
        s_sub_u32 s37, s37, s46
        s_lshl_b32 s37, s37, 2
        s_mov_b32 s46, 0x42086420
        s_mov_b32 s47, 0x6
        s_lshr_b64 s[46:47], s[46:47], s37
        s_and_b32 s46, s46, 0xfffff
        {'s_or_b32 s47, s46, 0x11111' + chr(10) + 's_lshl_b32 s37, s47, 20' + chr(10) + 's_or_b32 s46, s46, s37' + chr(10) + 's_lshr_b32 s47, s47, 12' if sg == 8 else 's_or_b32 s46, s46, 0x53100000' + chr(10) + 's_mov_b32 s47, 0x97'}
        s_mul_i32 s37, s36, 0x11111111
        s_xor_b32 s46, s46, s37
        s_xor_b32 s47, s47, s37
        """)
        if sg == 7:
            a("s_lshr_b32 s37, s47, 4\ns_and_b32 s37, s37, 15\ns_lshl_b64 s[46:47], s[46:47], 4\ns_or_b32 s46, s46, s37")
        a("s_and_b32 s36, s46, 15")
    else:
        a("s_mov_b32 s36, 0")
    a(f"""
    s_lshl_b32 s38, s16, 12
    s_add_u32 s38, s38, {RB0}
    s_mul_i32 s39, s16, 5120
    s_add_u32 s39, s39, {RB0 + 16384}
    s_mov_b32 s40, 0
    s_mul_i32 s34, s25, 640
    s_lshl_b32 s25, s25, 6
    s_mov_b32 s35, 0x20000
    s_waitcnt lgkmcnt(0)
    {srd(28, X_P, 2048*1280)}
    s_cmp_lt_u32 s20, 2
    s_cselect_b32 s32, s8, s10
    s_cselect_b32 s33, s9, s11
    s_cmp_eq_u32 s22, 3
    s_cselect_b32 s32, s32, s{WQKV_P}
    s_cselect_b32 s33, s33, s{WQKV_P+1}
    {st(1)}
    """)
    if opt("dftdelay", 0):
        a(f"""s_cmp_lg_u32 s22, 3
        s_cbranch_scc1 P1_LD_LOOP
        s_memrealtime s[42:43]
        s_waitcnt lgkmcnt(0)
        s_add_u32 s42, s42, {opt("dftdelay", 0)}
P1_DLY:
        s_memrealtime s[44:45]
        s_waitcnt lgkmcnt(0)
        s_cmp_lt_u32 s44, s42
        s_cbranch_scc1 P1_DLY
        """)
    a(f"""
P1_LD_LOOP:
    s_lshl_b32 s41, s36, 7
    s_mul_i32 s42, s36, s25
    s_add_u32 s43, s40, 2
    s_and_b32 s43, s43, 3
    s_mul_i32 s43, s43, {RSL}
    s_add_u32 s44, s43, s38
    s_add_u32 s45, s43, s39
    """)
    if EX: a("s_cmp_eq_u32 s40, 0\ns_cbranch_scc1 P1_LD_WW")
    for i in range(4):
        a(f"s_add_u32 m0, s44, {1024*i}\ns_nop 0\nbuffer_load_dwordx4 v{10+i}, s[28:31], s41 offen lds")
    a("P1_LD_WW:")
    for i in range(5):
        a(f"s_add_u32 m0, s45, {1024*i}\ns_nop 0\nbuffer_load_dwordx4 v{14+i}, s[32:35], s42 offen lds")
    if opt("noload", 0): a("s_cmp_ge_u32 s40, 3\ns_cselect_b32 s30, 0, s30\ns_cselect_b32 s34, 0, s34")
    a(f"""
    {'s_lshr_b64 s[46:47], s[46:47], 4' + chr(10) + 's_and_b32 s36, s46, 15' if sg >= 5 else 's_add_u32 s36, s36, 1' + chr(10) + 's_cmp_eq_u32 s36, 10' + chr(10) + 's_cselect_b32 s36, 0, s36'}
    s_add_u32 s40, s40, 1
    s_cmp_eq_u32 s40, 1
    s_cbranch_scc1 P1_LD_LOOP
    s_waitcnt vmcnt(9)
    s_barrier
    s_cmp_lt_u32 s40, 10
    s_cbranch_scc1 P1_LD_LOOP
    s_waitcnt vmcnt(0)
    s_barrier
    s_branch HELPER
    """)

def p1_compute(a):
    X = 80; W = [96, 116]; XA = 136; WA = 137; CX = 142; CW = 144; PC = 149; L = 150; TT = 96
    def acc(b, T): return 20 * b + 4 * T
    a(f"""
    s_sub_u32 s61, s16, 4
    s_and_b32 s36, s61, 1
    s_lshr_b32 s37, s61, 1
    v_mov_b32 v{L}, v0
    v_and_b32 v1, 15, v0
    v_lshrrev_b32 v2, 4, v0
    v_lshrrev_b32 v3, 1, v1
    v_xor_b32 v3, v3, v2
    v_lshlrev_b32 v3, 4, v3
    v_lshl_add_u32 v3, v1, 7, v3
    s_lshl_b32 s23, s36, 13
    s_add_u32 s23, s23, {RB0}
    v_add_u32 v{XA}, s23, v3
    v_bfe_u32 v3, v0, 2, 2
    v_lshl_add_u32 v3, v2, 3, v3
    v_mul_u32_u24 v3, 320, v3
    v_add_u32 v3, {RB0 + 16384}, v3
    v_and_b32 v4, 16, v0
    v_lshlrev_b32 v4, 1, v4
    v_and_b32 v5, 3, v0
    s_mul_i32 s23, s37, 160
    v_lshl_add_u32 v6, v5, 3, s23
    """)
    for T in range(4):
        a(f"v_xor_b32 v7, v6, v4\nv_add_u32 v{WA+T}, v7, v3\nv_add_u32 v6, 40, v6")
    a(f"""
    v_mul_u32_u24 v6, 40, v5
    v_add3_u32 v6, v6, s23, 32
    v_xor_b32 v7, v6, v4
    v_add_u32 v{WA+4}, v7, v3
    v_mov_b32 v{PC}, 0xbf803f80
    s_lshl_b32 s26, s22, 2
    s_add_u32 s26, s26, s20
    s_lshl_b32 s26, s26, 1
    s_add_u32 s26, s26, s37
    s_cmp_eq_u32 s26, 28
    s_cselect_b32 s24, 0x10001, 0
    s_mov_b32 s25, s24
    s_cmp_eq_u32 s22, 3
    s_cselect_b32 s43, 10, 8
    s_mov_b32 s40, 0
    s_mov_b32 s42, {2 * RSL}
    """)
    for r in range(96): a(f"v_mov_b32 v{r}, 0")
    for r in range(20): a(f"v_mov_b32 v{W[1]+r}, 0")
    a(f"v_add_u32 v{CX}, s42, v{XA}")
    for T in range(5): a(f"v_add_u32 v{CW+T}, s42, v{WA+T}")
    a(f"s_waitcnt lgkmcnt(0)\n{srd(28, WS_P, WS_USED)}")
    a(f"s_setprio {opt('cp', 2)}\ns_cmp_ge_u32 s22, 2\ns_cbranch_scc1 P1_PRE_V")
    def mf(b, T, x, w, qk):
        d = vr(acc(b, T), 4)
        return f"v_mfma_f32_16x16x32_bf16 {d}, {vr(w,4)}, {vr(x,4)}, {d}" if qk else f"v_mfma_f32_16x16x32_bf16 {d}, {vr(x,4)}, {vr(w,4)}, {d}"
    def rdw(d, T, step): return [f"ds_read_b64_tr_b16 {vr(d+2*j,2)}, v{CW+T} offset:{(step // 2) * RSL + (step % 2) * 10240 + 1280 * j}" for j in range(2)]
    def rdx(d, b, step): return f"ds_read_b128 {vr(d,4)}, v{CX + step % 2} offset:{(step // 2) * RSL + 2048 * b}"
    TO = (1, 2, 3, 4, 0)
    def group(step, qk, reads=True, patch=True):
        cur = W[1 - step]; nxt = W[step]
        rq = []
        for T in TO: rq += rdw(nxt + 4 * T, T, step)
        fill = []
        if step == 1:
            fill = ["s_add_u32 s40, s40, 1", "s_add_u32 s41, s40, 2", "s_and_b32 s41, s41, 3", f"s_mul_i32 s42, s41, {RSL}", f"v_add_u32 v{CX}, s42, v{XA}"] + [f"v_add_u32 v{CW+T}, s42, v{WA+T}" for T in range(5)]
        issued = 0
        for b in range(4):
            if reads:
                allow = [2, 15, issued + 1, issued][b]
                if b != 1: a(f"s_waitcnt lgkmcnt({min(15, allow)})")
            elif b == 0: a("s_waitcnt lgkmcnt(0)")
            for n, T in enumerate(TO):
                a(mf(b, T, X + 4 * b, cur + 4 * T, qk))
                if b == 0 and n < 2 and not qk and patch:
                    for j in range(2): a(f"v_cndmask_b32 v{cur+2*n+j}, v{cur+2*n+j}, v{PC}, s[24:25]")
                if not reads: continue
                if step == 0 and b == 0:
                    if n == 0: a(f"v_xor_b32 v{CX+1}, 64, v{CX}")
                    if n == opt("bn", 1): a("s_barrier")
                    if n <= opt("bn", 1): continue
                if n == 4: a(rdx(X + 4 * b, b, step)); issued += 1
                elif rq:
                    a(rq.pop(0)); issued += 1
                    if rq and (opt("rd2", 0) or (step == 0 and b == 1 and n < opt("bn", 1) - 1)): a(rq.pop(0)); issued += 1
                elif fill:
                    a(fill.pop(0))
                    if fill: a(fill.pop(0))
        assert not reads or (not rq and not fill), (rq, fill)

    def tail(qk, epi, win=None, nf=2):
        seq = [(b, T, ("x0", b), ("w0", T)) for b in range(4) for T in TO]
        marks = {}
        win = win or opt("win", 2)
        for step in range(4 - win):
            for b in range(4):
                for T in TO: seq.append((b, T, ("x", 0, step, b), ("w", step, T)))
        for T in range(5):
            for jj in range(2):
                for step in range(4 - win, 4):
                    for b in (2 * jj, 2 * jj + 1): seq.append((b, T, ("x", 0, step, b), ("w", step, T)))
                marks[len(seq) - 1] = (T, jj)
        last = {}
        for n, (_, _, x, w) in enumerate(seq): last[x] = n; last[w] = n
        loc = {("x0", b): X + 4 * b for b in range(4)}; loc.update({("w0", T): W[1] + 4 * T for T in range(5)})
        free = [W[0] + 4 * k for k in range(5)] + [XA]
        order = []
        for _, _, x, w in seq:
            for f in (w, x):
                if f not in loc and f not in order: order.append(f)
        done_at = {}; nrd = 0; waited = 0; pend = []; fill = []
        cnt = [0]; prev = [0]
        def em(t): a(t); cnt[0] += 1
        a(f"v_xor_b32 v{CX+1}, 64, v{CX}\ns_waitcnt lgkmcnt(0)\ns_barrier")
        bar2 = [True]
        def take():
            f = order.pop(0); loc[f] = free.pop(0)
            if bar2 and (f[1] if f[0] == "w" else f[2]) >= 2: em("s_barrier"); bar2.pop()
            p_ = rdw(loc[f], f[2], f[1]) if f[0] == "w" else [rdx(loc[f], f[3], f[2])]
            done_at[f] = nrd + len(p_)
            return p_
        def gap():
            t, at, after = fill[0]
            return max(at - cnt[0], prev[0] + after - cnt[0], 0)
        def put():
            em(fill.pop(0)[0]); prev[0] = cnt[0]
        for n, (b, T, x, w) in enumerate(seq):
            while any(f not in loc or (f in done_at and done_at[f] > nrd) for f in (x, w)):
                if not pend: pend = take()
                em(pend.pop(0)); nrd += 1
            need = max(done_at.get(x, 0), done_at.get(w, 0))
            if need > waited:
                waited = max(need, nrd - opt("tw", 6)); em(f"s_waitcnt lgkmcnt({nrd - waited})")
            em(mf(b, T, loc[x], loc[w], qk))
            if n in marks: fill += [(t, cnt[0] + 8, after) for t, after in epi(*marks[n])]
            for f in (x, w):
                if last[f] == n: free.append(loc[f])
            if not pend and order and free: pend = take()
            if pend: em(pend.pop(0)); nrd += 1
            for _ in range(nf):
                if fill and gap() == 0: put()
        a(st(3))
        while fill:
            g_ = gap()
            if g_: a(f"s_nop {g_ - 1}"); cnt[0] += g_
            put()

    EA, EB = 167, 151
    def cv(d, r): return [f"v_cvt_pk_bf16_f32 v{d}, v{r}, v{r+1}", f"v_cvt_pk_bf16_f32 v{d+1}, v{r+2}, v{r+3}"]
    def epi_qk(ph, jj=0):
        if ph < 0:
            return f"""s_mov_b32 s35, {HG}
            s_movk_i32 s38, 2560
            s_cmp_eq_u32 s22, 0
            s_cselect_b32 s35, {HQ}, s35
            s_cselect_b32 s27, {Q_OFF}, {KV_OFF}
            s_cselect_b32 s38, 1280, s38
            s_lshl_b32 s26, s20, 1
            s_add_u32 s26, s26, s37
            s_lshl_b32 s26, s26, 2
            s_mul_i32 s26, s26, s35
            s_add_u32 s26, s26, s27
            s_lshl_b32 s23, s21, 1
            s_add_u32 s23, s23, s36
            s_lshl_b32 s23, s23, 1
            s_mul_i32 s23, s23, s38
            s_add_u32 s26, s26, s23
            s_add_u32 s27, s26, s38
            v_lshrrev_b32 v{EA}, 4, v{L}
            v_mul_lo_u32 v{EA}, v{EA}, s35
            v_and_b32 v{TT}, 15, v{L}
            v_lshl_add_u32 v{EA}, v{TT}, 4, v{EA}
            v_lshlrev_b32 v{EB}, 4, v{L}
            s_add_u32 s44, s26, s35
            s_add_u32 s45, s27, s35
            s_add_u32 s46, s44, s35
            s_add_u32 s47, s45, s35
            s_add_u32 s32, s46, s35
            s_add_u32 s33, s47, s35""".split("\n")
        T = ph
        r0, r1 = acc(2 * jj, T), acc(2 * jj + 1, T)
        o = [(t, 0) for t in cv(r0, r0) + cv(r0 + 2, r1)]
        if T < 4:
            o += [(f"v_permlane16_swap_b32 v{r0}, v{r0+2}", 1), (f"v_permlane16_swap_b32 v{r0+1}, v{r0+3}", 0)]
            o.append((f"buffer_store_dwordx4 {vr(r0,4)}, v{EB}, s[28:31], s{(26, 44, 46, 32)[T] + jj} offen sc1", 0))
        else:
            o.append((f"buffer_store_dwordx4 {vr(r0,4)}, v{EA}, s[28:31], s{26 + jj} offen offset:1024 sc1", 0))
        return o
    def epi_v(ph, jj=0):
        if ph < 0:
            return f"""s_lshl_b32 s26, s20, 1
            s_add_u32 s26, s26, s37
            s_mul_i32 s26, s26, {4*HG}
            s_lshl_b32 s23, s21, 1
            s_add_u32 s23, s23, s36
            s_mul_i32 s23, s23, 5120
            s_add_u32 s26, s26, s23
            s_add_u32 s26, s26, {KV_OFF + 1280}
            s_add_u32 s44, s26, {HG}
            s_add_u32 s45, s26, {2*HG}
            s_add_u32 s46, s26, {3*HG}
            s_mov_b32 s35, {HG}
            v_lshrrev_b32 v{EA}, 5, v{L}
            v_mul_u32_u24 v{EA}, 640, v{EA}
            v_bfe_u32 v{TT}, v{L}, 4, 1
            v_lshl_add_u32 v{EB}, v{TT}, 6, v{EA}
            v_mul_u32_u24 v{TT}, 384, v{TT}
            v_add_u32 v{EA}, v{EA}, v{TT}
            v_and_b32 v{TT}, 15, v{L}
            v_lshl_add_u32 v{EA}, v{TT}, 4, v{EA}
            v_and_b32 v{TT}, 3, v{L}
            v_lshl_add_u32 v{EB}, v{TT}, 4, v{EB}
            v_bfe_u32 v{TT}, v{L}, 2, 2
            v_mul_lo_u32 v{TT}, v{TT}, s35
            v_add_u32 v{EB}, v{EB}, v{TT}""".split("\n")
        T = ph
        r0, r1 = acc(2 * jj, T), acc(2 * jj + 1, T)
        o = [(t, 0) for t in cv(r0, r0) + cv(r0 + 2, r1)]
        if T < 4: o.append((f"buffer_store_dwordx4 {vr(r0,4)}, v{EA}, s[28:31], s{(26, 44, 45, 46)[T]} offen offset:{2560 * jj} sc1", 0))
        else: o.append((f"buffer_store_dwordx4 {vr(r0,4)}, v{EB}, s[28:31], s26 offen offset:{2560 * jj + 256} sc1", 0))
        return o

    for qk, lab in ((True, "QK"), (False, "V")):
        a(f"P1_PRE_{lab}:")
        for f in (epi_qk if qk else epi_v)(-1): a(f)
        SEP = opt("sep", 0)
        if SEP and not qk: a("s_cmp_eq_u32 s22, 3\ns_cbranch_scc1 P1_LOOP_D")
        a(ALN2)
        a(f"P1_LOOP_{lab}:")
        group(0, qk, patch=not SEP)
        if STAMP: a(f"s_cmp_lg_u32 s40, 0\ns_cbranch_scc1 P1_ST_{lab}\n{st(2)}\nP1_ST_{lab}:\ns_cmp_lg_u32 s40, 5\ns_cbranch_scc1 P1_SU_{lab}\n{st(1)}\nP1_SU_{lab}:")
        group(1, qk, patch=not SEP)
        a(f"s_cmp_lt_u32 s40, s43\ns_cbranch_scc1 P1_LOOP_{lab}")
        if not qk: a("s_cmp_eq_u32 s22, 3\ns_cbranch_scc1 P1_EPI_DFT")
        if qk and opt("qs", 1):
            def epi_q(T, jj):
                r0, r1 = acc(2 * jj, T), acc(2 * jj + 1, T)
                return [(f"v_mul_f32 v{r+q}, s39, v{r+q}", 0) for r in (r0, r1) for q in range(4)] + epi_qk(T, jj)
            a(f"s_cmp_lg_u32 s22, 0\ns_cbranch_scc1 P1_TAIL_K\ns_mov_b32 s39, {QSCALE:#x}")
            tail(True, epi_q, opt("qwin", 2), opt("qnf", 4))
            a("s_branch P1_DONE\nP1_TAIL_K:")
        a("s_cmp_eq_u32 s12, 1\ns_cselect_b32 s30, 0, s30")
        tail(qk, epi_qk if qk else epi_v)
        a(f"s_cmp_eq_u32 s12, 0\ns_cbranch_scc1 P1_DONE\ns_mov_b32 s30, {WS_USED}\nv_mov_b32 v88, {LFB + 56}\nv_mov_b32 v89, 1")
        ladd(a, 88, 89, 0)
        a(f"s_mov_b32 s34, 1\ns_branch ATT\nNU_{lab}:")
        for T in range(5):
            for jj in range(2): a((epi_qk if qk else epi_v)(T, jj)[-1][0])
        a("s_branch ATT_SIG")
    if SEP:
        a("P1_LOOP_D:"); group(0, False); group(1, False)
        a("s_cmp_lt_u32 s40, s43\ns_cbranch_scc1 P1_LOOP_D")
    a("P1_EPI_DFT:")
    group(0, False, reads=False)
    TAU, TAU0, E0 = 80, 81, 140
    a(f"""
    {st(3)}
    s_cmp_lt_u32 s20, 2
    s_cselect_b32 s38, 1.0, -1.0
    v_mov_b32 v{TAU}, s38
    v_cndmask_b32 v{TAU0}, v{TAU}, 1.0, s[24:25]
    s_lshl_b32 s26, s20, 1
    s_add_u32 s26, s26, s37
    s_mul_i32 s26, s26, 80
    v_and_b32 v88, 15, v{L}
    v_add_u32 v{E0}, s26, v88
    v_add_u32 v{E0+1}, 20, v{E0}
    v_add_u32 v{E0+2}, 40, v{E0}
    v_add_u32 v{E0+3}, 60, v{E0}
    v_and_b32 v89, 12, v{L}
    v_lshl_add_u32 v{E0+4}, v89, 2, v{E0}
    v_add_u32 v{E0+4}, 16, v{E0+4}
    s_lshl_b32 s23, s21, 1
    s_add_u32 s23, s23, s36
    s_cmp_lg_u32 s23, 0
    s_cbranch_scc1 P1_EPI_DFT2
    s_mov_b64 exec, 0xffff
    s_mov_b32 s27, {X512_OFF}
    """)
    for T in range(5):
        a(f"v_fma_f32 v{96+T}, v{acc(3,T)}, v{TAU0 if T == 0 else TAU}, v{acc(1,T)}")
        a(f"v_lshlrev_b32 v{104+T}, 2, v{E0+T}\nv_mov_b32 v{acc(1,T)}, 0\nv_mov_b32 v{acc(3,T)}, 0")
        a(f"buffer_store_dword v{96+T}, v{104+T}, s[28:31], s27 offen sc1")
    a(f"""
    s_mov_b64 exec, -1
P1_EPI_DFT2:
    s_lshl_b32 s26, s23, 9
    s_add_u32 s26, s26, {FE_OFF}
    s_mov_b32 s27, {FO_DELTA}
    v_bfe_u32 v88, v{L}, 4, 1
    v_mul_lo_u32 v88, v88, s27
    v_lshrrev_b32 v89, 5, v{L}
    v_lshl_add_u32 v88, v89, 8, v88
    """)
    for T in range(5):
        tau = TAU0 if T == 0 else TAU
        a0, a1, a2, a3 = (acc(b, T) for b in range(4))
        for q in range(4):
            a(f"v_fma_f32 v{a0+q}, v{a1+q}, v{tau}, v{a0+q}\nv_fma_f32 v{a3+q}, v{a2+q}, v{tau}, v{a3+q}")
        for q in range(4):
            a(f"v_add_f32 v{a1+q}, v{a0+q}, v{a3+q}\nv_sub_f32 v{a2+q}, v{a0+q}, v{a3+q}")
        for f in cv(a0, a1) + cv(a0 + 2, a2): a(f)
        a(f"""
        v_lshrrev_b32 v89, 4, v{E0+T}
        v_lshl_add_u32 v89, v89, 14, v88
        v_and_b32 v{E0+T}, 15, v{E0+T}
        v_lshl_add_u32 v{E0+T}, v{E0+T}, 4, v89
        v_permlane16_swap_b32 v{a0}, v{a0+2}
        v_permlane16_swap_b32 v{a0+1}, v{a0+3}
        """)
    a(f"v_mov_b32 v88, {LFB + 56}\nv_mov_b32 v89, 1\ns_mov_b32 s12, {opt('dnu', 1)}")
    ladd(a, 88, 89, 0)
    a("s_mov_b32 s34, 1\ns_branch ATT\nNU_D:")
    for T in range(5): a(f"buffer_store_dwordx4 {vr(4*T,4)}, v{E0+T}, s[28:31], s26 offen sc1")
    a("s_branch ATT_SIG")
    a(f"""
P1_DONE:
    {st(14)}
    s_mov_b32 s34, 0
    v_mov_b32 v84, 1
    v_mov_b32 v85, 1
    v_mov_b32 v86, 1
    v_mov_b32 v87, 1
    v_mov_b32 v88, {LFB + 44}
    v_mov_b32 v89, 0
    s_and_b32 s23, s15, -128
    s_mov_b64 exec, 1
    s_waitcnt vmcnt(0)
    ds_add_rtn_u32 v88, v88, v84
    s_waitcnt lgkmcnt(0)
    v_cmp_eq_u32 vcc, 3, v88
    s_cbranch_vccz P1_NS
    buffer_store_dwordx4 v[84:87], v89, s[28:31], s23 offen sc1
P1_NS:
    s_mov_b64 exec, -1
    s_branch ATT
    """)

def p1_extra(a):
    T0 = 40
    a(f"""
P1_EXTRA:
    s_sub_u32 s61, s16, 8
    """)
    if opt("cwarm", 1):
        a(f"""
        s_cmp_lg_u32 s16, 10
        s_cbranch_scc1 P1_NOCW
        s_lshl_b32 s23, s18, 10
        s_cmp_ge_u32 s23, L_CODE_END - {NAME}_kernel - 1023
        s_cbranch_scc1 P1_NOCW
        s_getpc_b64 s[44:45]
L_PC:
        s_sub_u32 s44, s44, L_PC - {NAME}_kernel
        s_subb_u32 s45, s45, 0
        v_lshl_add_u32 v40, v0, 4, s23
        global_load_dwordx4 v[44:47], v40, s[44:45]
P1_NOCW:
        """)
    a(f"""
    v_lshrrev_b32 v37, 4, v0
    v_and_b32 v38, 15, v0
    v_lshlrev_b32 v39, 4, v0
    v_mov_b32 v36, v0
    s_waitcnt lgkmcnt(0)
    {srd(28, WS_P, WS_USED)}
    {srd(32, DBG_P, 256)}
    s_cmp_lg_u32 s61, 0
    s_cbranch_scc1 P1_EX_A
    v_mov_b32 v1, 0
    v_lshlrev_b32 v2, 2, v0
    v_add_u32 v2, {LFB}, v2
    ds_write_b32 v2, v1
    s_waitcnt lgkmcnt(0)
    s_cmp_lt_u32 s2, 248
    s_cbranch_scc1 P1_EX_WAITRDY
    v_mov_b32 v4, 0
    v_mov_b32 v5, 0
    v_mov_b32 v6, 0
    v_mov_b32 v7, 0
    s_lshl_b32 s23, s17, 12
    s_add_u32 s23, s23, {FLG_OFF}
    buffer_store_dwordx4 v[4:7], v39, s[28:31], s23 offen sc1
    buffer_store_dwordx4 v[4:7], v39, s[28:31], s23 offen offset:1024 sc1
    buffer_store_dwordx4 v[4:7], v39, s[28:31], s23 offen offset:2048 sc1
    buffer_store_dwordx4 v[4:7], v39, s[28:31], s23 offen offset:3072 sc1
    s_lshl_b32 s23, s17, 10
    s_add_u32 s23, s23, {FLG_OFF + 32768}
    buffer_store_dwordx4 v[4:7], v39, s[28:31], s23 offen sc1
P1_EX_WAITRDY:
P1_EX_A:
    s_lshl_b32 s23, s2, 2
    s_add_u32 s23, s23, s61
    s_mov_b32 s40, 0
P1_TBL:
    s_lshr_b32 s24, s23, 5
    s_and_b32 s25, s23, 30
    s_and_b32 s26, s24, 1
    s_lshr_b32 s27, s24, 1
    s_lshl_b32 s27, s27, 6
    s_add_u32 s27, s27, s26
    s_and_b32 s26, s23, 1
    s_lshl_b32 s26, s26, 5
    s_add_u32 s27, s27, s26
    v_lshl_add_u32 v{T0}, v38, 1, s27
    s_lshl_b32 s25, s25, 4
    v_lshl_add_u32 v{T0+1}, v37, 3, s25
    v_mul_u32_u24 v{T0+1}, v{T0}, v{T0+1}
    v_and_b32 v{T0+1}, 0x7ff, v{T0+1}
    v_cvt_f32_u32 v{T0}, v{T0}
    v_cvt_f32_u32 v{T0+1}, v{T0+1}
    v_mul_f32 v{T0}, 0x3a000000, v{T0}
    v_mul_f32 v0, 0x3a000000, v{T0+1}
    """)
    for u in range(1, 8): a(f"v_add_f32 v{u}, v{u-1}, v{T0}")
    for u in range(1, 8): a(f"v_fract_f32 v{u}, v{u}")
    for u in range(8): a(f"v_cos_f32 v{8+u}, v{u}")
    for u in range(8): a(f"v_sin_f32 v{16+u}, v{u}")
    for j in range(4): a(f"v_cvt_pk_bf16_f32 v{24+j}, v{8+2*j}, v{9+2*j}")
    for j in range(4): a(f"v_cvt_pk_bf16_f32 v{28+j}, v{16+2*j}, v{17+2*j}")
    NB0 = opt("tblbar", 2)
    a(f"""
    s_cmp_lg_u32 s40, 0
    s_cbranch_scc1 P1_TBL_ST
    s_barrier
    {st(1, True)}
    s_cmp_lg_u32 s61, 0
    s_cbranch_scc1 P1_EX_NR
    s_cmp_lt_u32 s2, 248
    s_cbranch_scc1 P1_EX_NR
    v_mov_b32 v32, 1
    v_mov_b32 v33, 0
    s_lshl_b32 s24, s17, 2
    s_waitcnt vmcnt(0)
    s_mov_b64 exec, 1
    buffer_store_dword v32, v33, s[32:35], s24 offen sc1
    s_mov_b64 exec, -1
P1_EX_NR:
    """ + "".join(f"s_barrier\n{st(1 + b_, True)}\n" for b_ in range(1, NB0)) + f"""
    s_mov_b32 s40, 1
P1_TBL_ST:
    s_lshl_b32 s24, s23, 11
    s_add_u32 s24, s24, {TB_OFF}
    buffer_store_dwordx4 v[24:27], v39, s[28:31], s24 offen sc1
    buffer_store_dwordx4 v[28:31], v39, s[28:31], s24 offen offset:1024 sc1
    s_add_u32 s23, s23, 1024
    s_cmp_lt_u32 s23, 1056
    s_cbranch_scc1 P1_TBL
    """)
    nb = NB0
    assert nb <= 6
    a("".join(f"s_barrier\n{st(1 + b_, True)}\n" for b_ in range(nb, 6)))
    u = a.uid()
    a(f"""
    v_and_b32 v1, 7, v36
    v_lshlrev_b32 v1, 2, v1
    v_mov_b32 v2, 1
    s_mov_b32 s60, 0
    s_cmp_lg_u32 s61, 0
    s_cbranch_scc1 P1_EX_C
    buffer_load_dword v2, v1, s[32:35], 0 offen sc1
P1_EX_C:
    s_barrier
    {st(7, True)}
    s_barrier
    {st(8, True)}
L_RDY{u}:
    s_waitcnt vmcnt(0)
    v_cmp_eq_u32 vcc, 0, v2
    s_cbranch_vccz P1_EX_B
    s_sleep 1
    buffer_load_dword v2, v1, s[32:35], 0 offen sc1
    s_add_u32 s60, s60, 1
    s_cmp_lt_u32 s60, 0x40000
    s_cbranch_scc1 L_RDY{u}
P1_EX_B:
    s_waitcnt vmcnt(0)
    s_barrier
    {st(9, True)}
    s_barrier
    {st(10, True)}
    s_mov_b32 s34, 0
    """)

def attention(a):
    O = 20; S = [0, 40, 136, 120]; IX = 114; P = 36; P2 = 64; Q1 = 56; Q2 = 60; K2 = 62; K1 = 16; V1 = 68; V2 = [72, 76]; T = 80
    a(f"""
ATT:
    s_cmp_lt_u32 s13, 4
    s_cselect_b32 s40, {opt("o1", 4)}, {opt("y1", 4)}
    s_cselect_b32 s41, {opt("o2", 7)}, {opt("y2", 6)}
    s_movk_i32 s35, 0x10a
    s_bitset1_b32 s35, s40
    s_bitset1_b32 s35, s41
    s_mov_b32 s24, 0xfffff
    s_mov_b32 s25, 0xfffff
    s_mul_i32 s39, s13, 1280
    s_add_u32 s39, s39, {QLDS}
    v_mov_b32 v{Q2+1}, 0
    v_mov_b32 v{K2+1}, 0x3f803f80
    v_add_u32 v{T}, s39, v{AK1}
    v_add_u32 v{T+1}, s39, v{AK2}
    v_mov_b32 v{T+2}, 1
    """)
    NQ = opt("nq", 2)
    OX = [84, O]; QX1 = [100, Q1]; QX2 = [104, Q2]; U = 106; TM = 136; XS = 107520
    if NQ == 2:
        a(f"""
        s_xor_b32 s36, s13, 1
        s_mul_i32 s39, s36, 1280
        s_add_u32 s39, s39, {QLDS}
        v_add_u32 v{U}, s39, v{AK1}
        v_add_u32 v{U+1}, s39, v{AK2}
        v_mov_b32 v{U+2}, v{AK1}
        v_mov_b32 v{U+3}, v{AK2}
        v_mov_b32 v{QX2[0]+1}, 0
        s_mov_b32 s42, {QSCALE:#x}
        s_mov_b32 s43, s42
        s_and_b32 s37, s13, 1
        s_mul_i32 s37, s37, 2560
        v_and_b32 v{U+4}, 0x70, v{VA}
        v_lshrrev_b32 v{U+4}, 2, v{U+4}
        v_add_u32 v{U+4}, {LFB}, v{U+4}
        s_lshl_b32 s23, s13, 12
        s_add_u32 s23, s23, {XS}
        v_add_u32 v{U+5}, s23, v{VA}
        v_xor_b32 v{U+7}, 4, v{PA}
        s_lshl_b32 s23, s36, 12
        s_add_u32 s23, s23, {XS}
        v_add_u32 v{U+6}, s23, v{VA}
        s_lshr_b32 s38, s13, 2
        s_add_u32 s38, s38, 7
        """)
        for r in (AK1, AK2, AV, BK1, BK2, BV): a(f"v_add_u32 v{r}, s37, v{r}")
        for r in range(16): a(f"v_mov_b32 v{OX[0]+r}, 0")
    for r in range(12): a(f"v_mov_b32 v{V1+r}, v{ONES}")
    for r in range(16): a(f"v_mov_b32 v{O+r}, 0")
    for r in range(4): a(f"v_mov_b32 v{P+r}, -1")
    for r in range(8): a(f"v_mov_b32 v{S[3]+8+r}, 0")
    a(f"v_mov_b32 v{IX}, 0xdddddddd")
    def rk1(d): return f"v_mfma_f32_32x32x8_bf16 {vr(d,16)}, {vr(K2,2)}, {vr(Q2,2)}, 0"
    def rk2(d): return f"v_mfma_f32_32x32x16_bf16 {vr(d,16)}, {vr(K1,4)}, {vr(Q1,4)}, {vr(d,16)}"
    def qk1(d): return f"v_mfma_f32_32x32x16_bf16 {vr(d,16)}, {vr(K1,4)}, {vr(Q1,4)}, 0"
    def qk2(d): return f"v_mfma_f32_32x32x8_bf16 {vr(d,16)}, {vr(K2,2)}, {vr(Q2,2)}, {vr(d,16)}"
    def pv(v, p): return f"v_smfmac_f32_32x32x32_bf16 {vr(O,16)}, {vr(v,4)}, {vr(p,8)}, v{IX}"
    def of(t): return (0 if t == WT else t) * 2560
    def rdk1(t): return f"ds_read_b128 {vr(K1,4)}, v{BK1 if t == WT else AK1} offset:{of(t)}"
    def rdk2(t): return f"ds_read_b32 v{K2}, v{BK2 if t == WT else AK2} offset:{of(t)+1024}"
    def rdv(t, v2):
        b = BV if t == WT else AV
        return f"s_mov_b64 exec, s[24:25]\nds_read_b128 {vr(V1,4)}, v{b} offset:{of(t)+1280}\nds_read_b128 {vr(v2,4)}, v{b} offset:{of(t)+1920}\ns_mov_b64 exec, -1"
    def maxtree(s, m, first):
        if first:
            a(f"v_max3_f32 v{m}, v{s}, v{s+1}, v{s+2}\nv_max3_f32 v{m+1}, v{s+3}, v{s+4}, v{s+5}")
            for j in range(6, 14, 4): a(f"v_max3_f32 v{m}, v{s+j}, v{s+j+1}, v{m}\nv_max3_f32 v{m+1}, v{s+j+2}, v{s+j+3}, v{m+1}")
            a(f"v_max3_f32 v{m}, v{s+14}, v{s+15}, v{m}\nv_max_f32 v{m}, v{m}, v{m+1}")
        else:
            for j in range(0, 16, 2): a(f"v_max3_f32 v{m}, v{s+j}, v{s+j+1}, v{m}")
    def xhalf(m):
        a(f"v_mov_b32 v{m+1}, v{m}\ns_nop 1\nv_permlane32_swap_b32 v{m}, v{m+1}\ns_nop 0\nv_max_f32 v{m}, v{m}, v{m+1}")
    a(f"""
    {st(4)}
    s_barrier
    s_setprio 3
    s_cmp_lg_u32 s34, 1
    s_cbranch_scc1 ATT_NOSIG
    s_cmp_eq_u32 s22, 1
    s_cbranch_scc1 NU_QK
    s_cmp_eq_u32 s22, 2
    s_cbranch_scc1 NU_V
    s_branch NU_D
ATT_SIG:
    """)
    if opt("comb", 1):
        a(f"""
        v_mov_b32 v{T+3}, {LFB + 44}
        s_and_b32 s23, s15, -128
        s_mov_b64 exec, 1
        s_waitcnt vmcnt(0)
        ds_add_rtn_u32 v{T+3}, v{T+3}, v{T+2}
        s_waitcnt lgkmcnt(0)
        v_cmp_eq_u32 vcc, 3, v{T+3}
        s_cbranch_vccz ATT_NOSIG
        buffer_store_dwordx4 {vr(P,4)}, v{O}, s[28:31], s23 offen sc1
        """)
    else:
        a(f"s_waitcnt vmcnt(0)\ns_mov_b64 exec, 1\nbuffer_store_dword v{T+2}, v{O}, s[28:31], s15 offen sc1")
    a(f"""
ATT_NOSIG:
    s_mov_b64 exec, -1
    {st(6)}
    """)
    def e(s, j): return f"v_exp_f32 v{s+j}, v{s+j}"
    def c(s, j): return f"v_cvt_pk_bf16_f32 v{P+j}, v{s+2*j}, v{s+2*j+1}"
    if NQ == 2:
        def xk1(x, d=None): return f"v_mfma_f32_32x32x16_bf16 {vr(S[x if d is None else d],16)}, {vr(K1,4)}, {vr(QX1[x],4)}, 0"
        def xk2(x, d=None): return f"v_mfma_f32_32x32x8_bf16 {vr(S[x if d is None else d],16)}, {vr(K2,2)}, {vr(QX2[x],2)}, {vr(S[x if d is None else d],16)}"
        def xpv(x, v, p): return f"v_smfmac_f32_32x32x32_bf16 {vr(OX[x],16)}, {vr(v,4)}, {vr(p,8)}, v{IX}"
        def scale(x):
            if opt('qs', 1): return
            for j in range(5): a(f"v_lshlrev_b32 v{TM+2*j}, 16, v{QX1[x]+j}\nv_and_b32 v{TM+2*j+1}, 0xffff0000, v{QX1[x]+j}")
            if opt("pkq", 0):
                for j in range(0, 10, 2): a(f"v_pk_mul_f32 {vr(TM+j,2)}, {vr(TM+j,2)}, s[42:43]")
            else:
                for j in range(10): a(f"v_mul_f32 v{TM+j}, s42, v{TM+j}")
            for j in range(5): a(f"v_cvt_pk_bf16_f32 v{QX1[x]+j}, v{TM+2*j}, v{TM+2*j+1}")
        MH = f32bits(-0.5) if opt('qs', 1) else f32bits(-0.5 * (20 ** -0.5) * math.log2(math.e))
        a(f"""
        ds_read_b128 {vr(K1,4)}, v{U+2}
        ds_read_b32 v{K2}, v{U+3} offset:1024
        ds_read_b128 {vr(QX1[0],4)}, v{U}
        ds_read_b32 v{QX2[0]}, v{U+1} offset:1024
        ds_read_b128 {vr(Q1,4)}, v{T}
        ds_read_b32 v{Q2}, v{T+1} offset:1024
        {rdv(0, V2[0])}
        s_waitcnt lgkmcnt(4)
        {xk1(0)}
        {xk2(0)}
        s_waitcnt lgkmcnt(2)
        {xk1(1)}
        {xk2(1)}
        {rdk1(0)}
        {rdk2(0)}
        s_mov_b32 s26, 0
        """)
        scale(0)
        if opt("qs", 1): a("s_nop 5")
        maxtree(S[0], T, True)
        a(f"v_mul_f32 v{T}, {MH:#x}, v{T}\nv_cvt_pk_bf16_f32 v{QX2[0]+1}, v{T}, 0\ns_waitcnt lgkmcnt(0)\n{xk1(0)}\n{xk2(0)}")
        scale(1)
        maxtree(S[1], T, True)
        a(f"""
        v_mul_f32 v{T}, {MH:#x}, v{T}
        v_cvt_pk_bf16_f32 v{Q2+1}, v{T}, 0
        {xk1(1)}
        {rdk1(2)}
        {st(7)}
        {ALN}
ATT_LOOP:
        """)
        for i in range(8 if U2 else 4):
            if i == 4: a(f"s_add_u32 s26, s26, 1\nv_add_u32 v{T+2}, 1, v{T+2}\ns_bitcmp1_b32 s35, s26\ns_cbranch_scc1 ATT_EVT\nATT_MID:")
            for x in (0, 1):
                SP = {0: (4, 8, 12), 1: (5, 8, 13), 2: (4, 7, 11), 3: (5, 9, 13)}[opt('sp', 0)]
                n = 2 * i + x; cur = S[n % 4]; y = 1 - x; t_ = 2 * (i + 1)
                if x == 1: a("s_waitcnt lgkmcnt(0)")
                a(xk2(y, (n + 1) % 4))
                if x == 0: a(rdk2(t_))
                for q in range(SP[0]): a(e(cur, q))
                a(xpv(y, V2[(i + 1) % 2] if x == 0 else V2[i % 2], S[(n - 1) % 4] + 8))
                if x == 0: a("s_waitcnt lgkmcnt(1)")
                if x == 0 and i % 4 == 3: a.l[-1] = "    s_waitcnt vmcnt(0) lgkmcnt(1)"
                if x == 1 and i % 4 == 1: a(f"ds_write_b32 v{PA}, v{T+2}")
                if x == 1 and i == (7 if U2 else 3): a(f"ds_read_b32 v{U}, v{U+4}")
                for q in range(SP[0], SP[1]): a(e(cur, q))
                a(xk1(x, (n + 2) % 4))
                if x == 1: a(rdk1(t_ + 2))
                for q in range(SP[1], SP[2]): a(e(cur, q))
                a(xpv(x, V1, cur))
                if x == 1: a(rdv(t_, V2[(i + 1) % 2]))
                for q in range(SP[2], 16): a(e(cur, q))
    a(f"""
    s_add_u32 s26, s26, 1
    s_mov_b32 s27, {0x5000 << U2}
    s_cmp_eq_u32 s26, {7 - U2}
    s_cselect_b32 s27, {((0x5000 << U2) - 62 * 2560) & 0xffffffff}, s27
    v_add_u32 v{AK1}, {0x5000 << U2}, v{AK1}
    v_add_u32 v{AK2}, {0x5000 << U2}, v{AK2}
    v_add_u32 v{AV}, {0x5000 << U2}, v{AV}
    v_add_u32 v{BK1}, s27, v{BK1}
    v_add_u32 v{BK2}, s27, v{BK2}
    v_add_u32 v{BV}, s27, v{BV}
    v_add_u32 v{T+2}, 1, v{T+2}
    s_bitcmp1_b32 s35, s26
    s_cbranch_scc0 ATT_LOOP
ATT_EVT:
    s_cmp_gt_u32 s26, 3
    s_cbranch_scc1 ATT_EV
    v_add_u32 v{FA}, 8, v{FA}
    s_cmp_eq_u32 s26, 1
    s_cbranch_scc0 ATT_WAIT
    buffer_store_dwordx4 {vr(P,4)}, v{OA1}, s[28:31], s6 offen sc1
    s_mov_b64 exec, 0xffff
    buffer_store_dwordx4 {vr(P,4)}, v{OA2}, s[28:31], s7 offen sc1
    s_mov_b64 exec, -1
ATT_WAIT:
    ds_read_b32 v{T}, v{FA}
    s_waitcnt lgkmcnt(0)
    v_readfirstlane_b32 s23, v{T}
    s_cmp_ge_u32 s23, 4
    s_cbranch_scc1 {'ATT_MID' if U2 else 'ATT_LOOP'}
    s_sleep 1
    s_branch ATT_WAIT
ATT_EV:
    s_setprio 2
    s_cmp_eq_u32 s26, s40
    s_cbranch_scc1 ATT_RET
    s_setprio 1
ATT_RET:
    {'s_bitcmp1_b32 s26, 0' + chr(10) + 's_cbranch_scc1 ATT_MID' if U2 else ''}
    s_cmp_lt_u32 s26, 8
    s_cbranch_scc1 ATT_LOOP
    s_setprio 3
    {pv(V2[1], S[3]+8)}
    {st(8)}
    """)
    if NQ == 2:
        a(f"""
        s_mov_b32 s27, 0x3e800000
        s_mov_b32 s23, 0x71800000
        s_waitcnt lgkmcnt(3)
        v_cmp_gt_u32 vcc, s38, v{U}
        s_cbranch_vccz ATT_X0
ATT_X1:
        s_sleep 2
        ds_read_b32 v{U}, v{U+4}
        s_waitcnt lgkmcnt(0)
        v_cmp_gt_u32 vcc, s38, v{U}
        s_cbranch_vccnz ATT_X1
ATT_X0:
        """)
        for j in range(3): a(f"ds_write_b128 v{U+5}, {vr(OX[0]+4*j,4)} offset:{1024*j}")
        a(f"ds_write_b64 v{U+5}, {vr(OX[0]+12,2)} offset:3072\nds_write_b32 v{PA}, v{T+2} offset:96\nATT_X2:\nds_read_b32 v{U}, v{U+7} offset:96")
        for j in range(3): a(f"ds_read_b128 {vr(S[0]+4*j,4)}, v{U+6} offset:{1024*j}")
        a(f"ds_read_b64 {vr(S[0]+12,2)}, v{U+6} offset:3072\ns_waitcnt lgkmcnt(0)\nv_cmp_eq_u32 vcc, 0, v{U}\ns_cbranch_vccz ATT_X3\ns_sleep 1\ns_branch ATT_X2\nATT_X3:\ns_nop 1")
        for r in range(0, 14, 2): a(f"v_pk_add_f32 {vr(O+r,2)}, {vr(O+r,2)}, {vr(S[0]+r,2)}")
    else:
        a("s_mov_b32 s27, 0x3e800000\ns_mov_b32 s23, 0x71800000\ns_nop 9")
    a(f"v_rcp_f32 v{T+2}, v{O+12}\nv_add_f32 v{T}, |v{O}|, |v{O+1}|\nv_add_f32 v{T+1}, |v{O+2}|, |v{O+3}|")
    for j in range(4, 12, 2): a(f"v_add_f32 v{T}, |v{O+j}|, v{T}\nv_add_f32 v{T+1}, |v{O+j+1}|, v{T+1}")
    a(f"""
    v_add_f32 v{T}, v{T}, v{O+12}
    v_cmp_le_f32 s[42:43], s27, v{O+12}
    v_add_f32 v{T}, v{T}, v{T+1}
    v_cmp_gt_f32 vcc, s23, v{T}
    s_and_b64 vcc, vcc, s[42:43]
    s_cmp_eq_u64 vcc, -1
    s_cbranch_scc0 ATT_FALLBACK
ATT_FINISH:
    """)
    for j in range(0, 8, 2): a(f"v_pk_mul_f32 {vr(O+j,2)}, {vr(O+j,2)}, {vr(T+2,2)} op_sel_hi:[1,0]")
    for j in range(4): a(f"v_cvt_pk_bf16_f32 v{P+j}, v{O+2*j}, v{O+2*j+1}")
    for j in range(4): a(f"v_min_u32 v{P+j}, -2, v{P+j}")
    a(f"buffer_store_dwordx4 {vr(P,4)}, v{OA1}, s[28:31], s6 offen sc1")
    for j in range(8, 12, 2): a(f"v_pk_mul_f32 {vr(O+j,2)}, {vr(O+j,2)}, {vr(T+2,2)} op_sel_hi:[1,0]")
    for j in range(4, 6): a(f"v_cvt_pk_bf16_f32 v{P2+j-4}, v{O+2*j}, v{O+2*j+1}")
    for j in range(4, 6): a(f"v_min_u32 v{P2+j-4}, -2, v{P2+j-4}")
    a(f"""
    s_nop 1
    v_permlane16_swap_b32 v{P2}, v{P2+2}
    v_permlane16_swap_b32 v{P2+1}, v{P2+3}
    s_mov_b64 exec, 0xffff
    buffer_store_dwordx4 {vr(P2,4)}, v{OA2}, s[28:31], s7 offen sc1
    {st(9)}
    s_cmp_ge_u32 s13, 4
    s_cbranch_scc1 {"L_DONE" if STAMP else "L_END"}
    s_mov_b64 exec, -1
    s_xor_b32 s41, s13, {opt('gx', 2)}
    s_mov_b32 s47, 1
    s_branch P3_GO
    """)
    def gk(): return f"buffer_load_dwordx4 {vr(K1,4)}, v{AK1}, s[28:31], s23 offen sc1\nbuffer_load_dword v{K2}, v{AK2}, s[28:31], s23 offen offset:1024 sc1"
    a(f"""
ATT_FALLBACK:
    s_waitcnt lgkmcnt(0)
    v_mov_b32 v{Q2+1}, 0
    v_mov_b32 v{T}, 0xff800000
    {f's_add_u32 s23, s37, {HS}' if NQ == 2 else f's_mov_b32 s23, {HS}'}
    v_subrev_u32 v{AK1}, s23, v{AK1}
    v_subrev_u32 v{AK2}, s23, v{AK2}
    v_subrev_u32 v{AV}, s23, v{AV}
    s_add_u32 s23, s14, {KV_OFF}
    s_mov_b32 s26, 0
ATT_FB1:
    {gk()}
    s_add_u32 s23, s23, 2560
    s_waitcnt vmcnt(0)
    {qk1(S[0])}
    {qk2(S[0])}
    s_nop 15
    """)
    maxtree(S[0], T, False)
    a("s_add_u32 s26, s26, 1\ns_cmp_lt_u32 s26, 64\ns_cbranch_scc1 ATT_FB1")
    xhalf(T)
    a(f"s_add_u32 s23, s14, {KV_OFF}\ns_mov_b32 s26, 0")
    for r in range(16): a(f"v_mov_b32 v{O+r}, 0")
    a(f"""
ATT_FB2:
    {gk()}
    s_mov_b64 exec, s[24:25]
    buffer_load_dwordx4 {vr(V1,4)}, v{AV}, s[28:31], s23 offen offset:1280 sc1
    buffer_load_dwordx4 {vr(V2[0],4)}, v{AV}, s[28:31], s23 offen offset:1920 sc1
    s_mov_b64 exec, -1
    s_add_u32 s23, s23, 2560
    s_waitcnt vmcnt(0)
    {qk1(S[0])}
    {qk2(S[0])}
    s_nop 15
    """)
    for q in range(16): a(f"v_sub_f32 v{S[0]+q}, v{S[0]+q}, v{T}")
    for q in range(16): a(e(S[0], q))
    a(f"""
    s_nop 1
    {pv(V1, S[0])}
    {pv(V2[0], S[0]+8)}
    s_add_u32 s26, s26, 1
    s_cmp_lt_u32 s26, 64
    s_cbranch_scc1 ATT_FB2
    s_nop 15
    s_nop 3
    v_rcp_f32 v{T+2}, v{O+12}
    s_nop 0
    s_branch ATT_FINISH
    """)

def lwait(a, vaddr, vdat, mask, target, slp=8):
    u = a.uid()
    a(f"""
    s_mov_b64 exec, {mask}
    s_branch L_LWE{u}
L_LW{u}:
    s_sleep {slp}
L_LWE{u}:
    ds_read_b32 v{vdat}, v{vaddr}
    s_waitcnt lgkmcnt(0)
    v_cmp_gt_u32 vcc, {target}, v{vdat}
    s_cbranch_vccnz L_LW{u}
    s_mov_b64 exec, -1
    """)
def ladd(a, vaddr, vone, off):
    a(f"s_mov_b64 exec, 1\nds_add_u32 v{vaddr}, v{vone} offset:{off}\ns_mov_b64 exec, -1")

def helpers(a):
    WA, VG, VZ, SH, HPA, HONE, YFA, FZ, SG, XA5, LF = 112, 117, 118, 119, 120, 121, 122, 123, 124, 125, 126
    ZL = 40; G = 167; VY = 162; T = 132; LT = 127
    a(f"""
HELPER:
    s_mov_b32 s61, s22
    {st(2)}
    {srd(28, WS_P, WS_USED)}
    s_setprio 0
    s_lshr_b32 s20, s18, 2
    s_mul_i32 s26, s20, 160
    s_movk_i32 s23, {1280 - 160}
    """)
    for i in range(5):
        a(f"""
        v_add_u32 v{T}, {64*i}, v0
        v_mul_u32_u24 v{T+1}, 6554, v{T}
        v_lshrrev_b32 v{T+1}, 16, v{T+1}
        v_lshlrev_b32 v{T}, 4, v{T}
        v_mad_u32_u24 v{WA+i}, v{T+1}, s23, v{T}
        """)
    a(f"""
    s_lshl_b32 s21, s17, 3
    s_and_b32 s22, s18, 3
    s_add_u32 s21, s21, s22
    s_lshr_b32 s22, s16, 1
    s_lshl_b32 s22, s22, 2
    s_add_u32 s21, s21, s22
    s_lshl_b32 s21, s21, 1
    s_and_b32 s22, s16, 1
    s_add_u32 s21, s21, s22
    s_lshr_b32 s22, s21, 2
    s_lshl_b32 s22, s22, 1
    s_and_b32 s24, s21, 1
    s_add_u32 s22, s22, s24
    s_lshl_b32 s22, s22, 3
    v_and_b32 v{T}, 7, v0
    v_add_u32 v{T}, s22, v{T}
    s_bitcmp1_b32 s21, 1
    s_cselect_b32 s22, 0x400, 0
    s_cselect_b32 s24, -1, 1
    v_mul_lo_u32 v{T+1}, v{T}, s24
    s_sub_u32 s24, 0x800, s22
    v_sub_u32 v{T+2}, s24, v{T+1}
    v_add_u32 v{T+1}, s22, v{T+1}
    v_and_b32 v{T+3}, 8, v0
    v_cmp_ne_u32 vcc, 0, v{T+3}
    v_cmp_eq_u32 s[42:43], 0, v{T}
    v_lshlrev_b32 v{T+3}, 6, v{T+3}
    v_add_u32 v{T+3}, s22, v{T+3}
    v_cndmask_b32 v{T}, v{T+1}, v{T+2}, vcc
    v_lshrrev_b32 v{T+1}, 4, v0
    v_cndmask_b32 v{T}, v{T}, v{T+3}, s[42:43]
    v_mul_u32_u24 v{VY}, 1280, v{T}
    v_mul_u32_u24 v{T+2}, 40, v{T+1}
    v_add3_u32 v{VY}, v{VY}, v{T+2}, s26
    v_lshlrev_b32 v{VG}, 2, v{T}
    v_sub_u32 v{T+3}, 0x800, v{T}
    v_cmp_lt_u32 vcc, 0x400, v{T}
    v_min_u32 v{T}, v{T}, v{T+3}
    v_and_b32 v{T+3}, 1, v{T}
    v_mul_u32_u24 v{VZ}, {ZP}, v{T+3}
    v_lshrrev_b32 v{T+3}, 1, v{T}
    v_lshl_add_u32 v{VZ}, v{T+3}, 4, v{VZ}
    v_mov_b32 v{T+3}, 0x02020202
    v_cndmask_b32 v{SH}, 0, v{T+3}, vcc
    s_cmp_ge_u32 s20, 4
    s_mov_b32 s24, 0x05040100
    s_cselect_b32 s24, 0x07060302, s24
    s_cselect_b32 s40, -1, 1
    s_cselect_b32 s41, 155, 0
    v_xor_b32 v{SH}, s24, v{SH}
    s_mul_i32 s24, s20, 20
    v_mul_u32_u24 v{T+3}, 5, v{T+1}
    v_add_u32 v{T+3}, s24, v{T+3}
    v_mul_lo_u32 v{T+3}, v{T+3}, s40
    v_add_u32 v{T+3}, s41, v{T+3}
    v_mul_u32_u24 v{T+3}, {2*ZP}, v{T+3}
    v_add_u32 v{VZ}, v{VZ}, v{T+3}
    {p3_addr(0)}
    v_lshlrev_b32 v{HPA}, 2, v0
    v_add_u32 v{HPA}, {LFB}, v{HPA}
    v_mov_b32 v{HONE}, 1
    s_and_b32 s23, s2, 63
    s_lshl_b32 s23, s23, 5
    s_lshr_b32 s24, s2, 6
    s_add_u32 s23, s23, s24
    s_lshl_b32 s23, s23, 2
    s_add_u32 s23, s23, {FLG_OFF + 32768}
    v_mov_b32 v{YFA}, s23
    v_lshrrev_b32 v{FZ}, 4, v0
    v_mul_u32_u24 v{FZ}, {2*ZP}, v{FZ}
    v_and_b32 v{T}, 15, v0
    v_lshl_add_u32 v{FZ}, v{T}, 4, v{FZ}
    v_lshlrev_b32 v{SG}, 31, v0
    v_and_b32 v{XA5}, 48, v0
    v_lshlrev_b32 v{LF}, 7, v0
    v_bfe_u32 v{LT}, v0, 1, 2
    v_lshlrev_b32 v{LT}, 13, v{LT}
    v_and_b32 v{T}, 1, v0
    v_lshl_add_u32 v{LT}, v{T}, 7, v{LT}
    s_setprio 3
    s_lshr_b32 s19, s18, 3
    s_lshl_b32 s23, s17, 2
    s_add_u32 s19, s19, s23
    s_and_b32 s62, s18, 7
    s_mul_i32 s21, s19, {HG}
    v_lshlrev_b32 v1, 4, v0
    {st(3)}
    s_lshr_b32 s23, s19, 3
    s_lshl_b32 s23, s23, 13
    s_add_u32 s23, s23, {FLG_OFF}
    v_lshlrev_b32 v2, 7, v0
    v_add_u32 v2, s23, v2
    s_add_u32 s24, s21, {KV_OFF}
    s_lshl_b32 s40, 0x10000, s16
    s_lshl_b32 s41, 1, s16
    s_mul_i32 s22, s16, 10240
    s_add_u32 s26, s24, s22
    s_cmp_lg_u32 s16, 3
    s_cbranch_scc1 H_JA
    s_lshl_b32 s25, s62, 1
    s_lshl_b32 s40, 3, s25
    s_mov_b32 s41, 0
    s_mov_b32 s22, {QLDS}
    s_mul_i32 s26, s19, {HQ}
    s_mul_i32 s25, s62, 10240
    s_add_u32 s26, s26, s25
    s_add_u32 s26, s26, {Q_OFF}
H_JA:
    """)
    def job():
        r = f"s_add_u32 s25, s22, 5120\ns_cmp_ge_u32 s25, {LFB}\ns_cselect_b32 s25, 0, s25\n"
        for n in range(10):
            if n in (0, 3): r += f"s_add_u32 m0, s22, {1024*n}\ns_add_u32 s27, s26, {1024*n}\n"; o = 0
            if n in (5, 8): r += f"s_add_u32 m0, s25, {1024*(n-5)}\ns_add_u32 s27, s26, {1024*n}\n"; o = 0
            r += f"buffer_load_dwordx4 v1, s[28:31], s27 offen offset:{o} sc1 lds\n"; o += 1024
        return r
    if opt("latep", 1):
        a(f"s_mul_i32 s23, s12, 12\ns_cmp_eq_u32 s61, 3\ns_cselect_b32 s23, 12, s23\ns_add_u32 s23, s23, {LFB + 44}\nv_mov_b32 v3, s23")
        lwait(a, 3, 4, 1, 4, 2)
        if opt("lps", 0): a(f"s_sleep {opt('lps', 0)}")
    poll4(a, 2, 4, "s[40:41]")
    a(st(11)); a(job())
    a(f"""
    s_lshl_b32 s40, 0x80000, s16
    s_lshl_b32 s41, 8, s16
    s_add_u32 s22, s16, 3
    s_mul_i32 s22, s22, 10240
    s_add_u32 s26, s24, s22
    s_waitcnt vmcnt(0)
    {st(12)}
    s_barrier
    """)
    poll4(a, 2, 4, "s[40:41]")
    a(job())
    a(f"""
H_JB:
    s_lshl_b32 s41, 0x8880, s16
    s_and_b32 s41, s41, 0xffff
    s_lshl_b32 s40, s41, 16
    s_add_u32 s22, s16, 7
    s_mul_i32 s22, s22, 10240
    s_add_u32 s26, s24, s22
    s_waitcnt vmcnt(0)
    """)
    ladd(a, HPA, HONE, 64)
    a("s_cmp_lg_u32 s16, 0\ns_cbranch_scc1 H_NW")
    lwait(a, HPA, 4, 0xff, 1)
    a("H_NW:")
    poll4(a, 2, 4, "s[40:41]", slp=8)
    a(f"{st(13)}\nH_JC:"); a(job())
    a(f"""
    s_add_u32 s22, s22, 40960
    s_add_u32 s26, s26, 40960
    s_cmp_lt_u32 s22, {HS}
    s_cbranch_scc1 H_JC
    s_waitcnt vmcnt(0)
    {st(4)}
    """)
    ladd(a, HPA, HONE, 72)
    a(f"""
    s_cmp_lt_u32 s16, 3
    s_cbranch_scc1 H_FNET
    """)
    a(f"""
    {srd(32, X_P, 2048*1280)}
    {srd(36, GATE_P, 1280)}
    v_lshrrev_b32 v2, 3, v0
    v_and_b32 v3, 7, v0
    v_lshlrev_b32 v3, 4, v3
    s_movk_i32 s22, 1280
    v_mad_u32_u24 v4, v2, s22, v3
    s_mul_i32 s23, s2, {8*1280}
    """)
    for j in range(10):
        a(f"buffer_load_dwordx4 {vr(24+8*j,4)}, v4, s[32:35], s23 offen offset:{128*j}")
        a(f"buffer_load_dwordx4 {vr(28+8*j,4)}, v3, s[36:39], 0 offen offset:{128*j}")
    a("v_mov_b32 v5, 0\nv_mov_b32 v6, 0\ns_waitcnt vmcnt(0)")
    for j in range(10):
        for q in range(4):
            a(f"v_dot2c_f32_bf16 v{5 + (q & 1)}, v{24+8*j+q}, v{28+8*j+q}")
    a(f"""
    s_nop 2
    v_add_f32 v5, v5, v6
    s_nop 1
    v_add_f32_dpp v5, v5, v5 quad_perm:[1,0,3,2] row_mask:0xf bank_mask:0xf
    s_nop 1
    v_add_f32_dpp v5, v5, v5 quad_perm:[2,3,0,1] row_mask:0xf bank_mask:0xf
    s_nop 1
    v_add_f32_dpp v5, v5, v5 row_half_mirror row_mask:0xf bank_mask:0xf
    v_mul_f32 v5, {f32bits(-math.log2(math.e)):#x}, v5
    v_exp_f32 v5, v5
    v_lshlrev_b32 v2, 2, v2
    v_add_f32 v5, 1.0, v5
    v_rcp_f32 v5, v5
    s_lshl_b32 s23, s2, 5
    s_add_u32 s23, s23, {G_OFF}
    buffer_store_dword v5, v2, s[28:31], s23 offen sc1
    s_branch H_MID
    """)
    C, SN, FB = 0, 8, 16
    a(f"""
H_FNET:
    {'s_branch H_MID' if opt('nofnet', 0) == 1 else ''}
    s_lshl_b32 s22, s16, 5
    s_add_u32 s22, s22, s18
    s_cmp_lt_u32 s22, 84
    s_cbranch_scc1 H_FN_A
    s_sub_u32 s24, s22, 84
    s_lshl_b32 s24, s24, 3
    s_add_u32 s24, s24, s17
    s_cmp_ge_u32 s24, 21
    s_cbranch_scc1 H_MID
    s_mov_b32 s23, 32
    s_branch H_FN_B
H_FN_A:
    s_mul_i32 s23, s22, 3121
    s_lshr_b32 s23, s23, 16
    s_mul_i32 s24, s23, 21
    s_sub_u32 s24, s22, s24
    s_lshl_b32 s23, s23, 3
    s_add_u32 s23, s23, s17
H_FN_B:
    s_and_b32 s25, s23, 1
    s_add_u32 s26, s24, 20
    s_cmp_eq_u32 s24, 20
    s_cselect_b32 s26, 20, s26
    s_mul_i32 s32, s24, 26
    s_lshr_b32 s32, s32, 8
    s_lshl_b32 s32, s32, 13
    s_add_u32 s32, s32, {48 * 128}
    s_mul_i32 s33, s26, 26
    s_lshr_b32 s33, s33, 8
    s_lshl_b32 s33, s33, 13
    s_add_u32 s33, s33, {32 * 128}
    s_and_b32 s34, s23, 31
    s_lshl_b32 s34, s34, 8
    s_mov_b64 exec, 0xffff
    v_add_u32 v2, s32, v{LF}
    s_mov_b32 exec_lo, 0xffff0000
    v_add_u32 v2, s33, v{LF}
    s_mov_b32 exec_lo, 0
    s_mov_b32 exec_hi, 0xff
    v_add_u32 v2, s34, v{LT}
    s_mov_b32 s40, -1
    s_movk_i32 s41, 0xff
    s_mov_b32 s27, {FLG_OFF}
    """)
    poll4(a, 2, 4, "s[40:41]", "s27", slp=8)
    a(st(14))
    a(f"""
    s_lshl_b32 s32, s23, 16
    s_add_u32 s32, s32, {TB_OFF}
    s_mul_i32 s27, s25, {FO_DELTA}
    s_add_u32 s27, s27, {FE_OFF}
    s_lshl_b32 s33, s24, 14
    s_add_u32 s33, s33, s27
    s_lshl_b32 s34, s26, 14
    s_add_u32 s34, s34, s27
    s_cmp_eq_u32 s25, 0
    s_cselect_b32 s35, s24, s26
    s_lshl_b32 s35, s35, 6
    s_add_u32 s35, s35, {X512_OFF}
    buffer_load_dwordx4 v[128:131], v{XA5}, s[28:31], s35 offen sc1
    """)
    def flist(j):
        r = FB + 24 * j
        F = lambda d, sr: f"buffer_load_dwordx4 {vr(r+d,4)}, v163, s[28:31], {sr} offen offset:{1024*j} sc1"
        Tb = lambda k: f"buffer_load_dwordx4 {vr(r+8+4*k,4)}, v163, s[28:31], s32 offen offset:{1024*k} sc1"
        last = "\ns_add_u32 s32, s32, 4096" + ("\ns_add_u32 s33, s33, 4096\ns_add_u32 s34, s34, 4096" if j == 3 else "")
        return [Tb(0), F(0, "s33") + "\n" + Tb(2), Tb(1), F(4, "s34") + "\n" + Tb(3) + last]
    def fl(j): return "\n".join(flist(j))
    def mlist(j):
        r = FB + 24 * j
        M = lambda d, x, y: f"v_mfma_f32_16x16x32_bf16 {vr(d,4)}, {vr(x,4)}, {vr(y,4)}, {vr(d,4)}"
        return [M(C, r, r + 8), M(C + 4, r, r + 16), M(SN, r + 4, r + 12), M(SN + 4, r + 4, r + 20)]
    for j in range(4): a(fl(j))
    a(f"""
    s_cmp_eq_u32 s25, 0
    s_cselect_b32 s36, 1.0, 0
    s_cselect_b32 s37, 0, 1.0
    v_or_b32 v161, s37, v{SG}
    v_or_b32 v160, s36, v{SG}
    s_waitcnt vmcnt(24)
    """)
    for r in range(8): a(f"v_mul_f32 v{C+r}, v160, v{128 + r % 4}\nv_mul_f32 v{SN+r}, v161, v{128 + r % 4}")
    a(f"s_setprio {opt('fp', 2)}\ns_mov_b32 s38, 0\nH_FN_LOOP:")
    for j in range(4):
        if opt("fil", 1):
            for m_, l_ in zip(mlist(j), flist(j)): a("s_waitcnt vmcnt(22)"); a(m_); a(l_)
        else:
            a("s_waitcnt vmcnt(18)"); a("\n".join(mlist(j))); a(fl(j))
    a("s_add_u32 s38, s38, 1\ns_cmp_lt_u32 s38, 3\ns_cbranch_scc1 H_FN_LOOP")
    for j in range(4):
        for m_, nd in zip(mlist(j), (2, 3, 5, 6)): a(f"s_waitcnt vmcnt({24 - 6 * j - nd})"); a(m_)
    a(f"""
    s_cmp_eq_u32 s26, 20
    s_cselect_b32 s44, 0xffff, 0
    s_mov_b32 s45, 0
    s_mul_i32 s26, s24, {8*ZP}
    s_mul_i32 s27, s25, {ZP}
    s_add_u32 s26, s26, s27
    s_lshr_b32 s27, s23, 1
    s_lshl_b32 s27, s27, 9
    s_add_u32 s26, s26, s27
    s_add_u32 s26, s26, {Y_OFF}
    v_cndmask_b32 v{SN}, v{SN}, 0, s[44:45]
    v_cndmask_b32 v{SN+4}, v{SN+4}, 0, s[44:45]
    """)
    for r in range(8):
        a(f"v_add_f32 v{16+r}, v{C+r}, v{SN+r}\nv_sub_f32 v{C+r}, v{C+r}, v{SN+r}")
    for r in range(8): a(f"v_cvt_pk_bf16_f32 v{16+r}, v{16+r}, v{C+r}")
    a(f"buffer_store_dwordx4 v[16:19], v{FZ}, s[28:31], s26 offen sc1\nbuffer_store_dwordx4 v[20:23], v{FZ}, s[28:31], s26 offen offset:256 sc1")
    a(f"""
H_MID:
    s_setprio 3
    s_lshl_b32 s19, s17, 2
    s_and_b32 s20, s18, 3
    s_add_u32 s19, s19, s20
    s_lshr_b32 s20, s18, 2
    {srd(32, WO_P, 640*1280)}
    {srd(36, OUT_P, 2621440)}
    s_mul_i32 s26, s20, 160
    s_mul_i32 s27, s16, {160*1280}
    s_add_u32 s27, s27, s26
    s_movk_i32 s23, {1280 - 160}
    """)
    a(f"""
    s_add_u32 s25, s16, 1
    s_and_b32 s25, s25, 3
    s_mul_i32 s22, s25, 25600
    s_add_u32 s22, s22, {WOL}
    s_add_u32 s25, s25, 3
    s_waitcnt vmcnt(0)
    {st(5)}
    """)
    lwait(a, HPA, T + 1, 0xff, 3)
    a(f"""s_mov_b64 exec, 1
    ds_add_rtn_u32 v{T+1}, v{HPA}, v{HONE} offset:48
    s_waitcnt lgkmcnt(0)
    v_cmp_eq_u32 vcc, 3, v{T+1}
    s_cbranch_vccz H_NOY
    buffer_store_dword v{HONE}, v{YFA}, s[28:31], 0 offen sc1
H_NOY:
    s_mov_b64 exec, -1""")
    lwait(a, HPA, T + 1, 0xff, "s25")
    a(f"{st(6)}\ns_mov_b32 s25, 0\nH_WO:")
    for i in range(5):
        a(f"s_add_u32 m0, s22, {1024*i}\ns_nop 0\nbuffer_load_dwordx4 v{WA+i}, s[32:35], s27 offen lds")
    a(f"""
    s_add_u32 s22, s22, 5120
    s_add_u32 s27, s27, {32*1280}
    s_add_u32 s25, s25, 1
    s_cmp_lt_u32 s25, 5
    s_cbranch_scc1 H_WO
    s_cmp_lg_u32 s16, 3
    s_cbranch_scc1 H_YW
    """)
    lwait(a, HPA, T + 1, 0xff, opt("ypr", 5), 16)
    a(f"s_mov_b32 s27, {FLG_OFF + 32768}")
    poll4(a, LF, 4, "-1", "s27", slp=opt("ys", 16))
    ladd(a, HPA, HONE, 40)
    a(f"H_YW:\nv_add_u32 v{T}, 40, v{HPA}")
    lwait(a, T, T + 1, 1, 1, 16)
    a("s_waitcnt vmcnt(0)")
    a(f"v_mov_b32 v{T}, 2")
    ladd(a, HPA, T, 32)
    a(f"{st(7)}\ns_mov_b32 s26, {Y_OFF}\ns_mov_b32 s27, {G_OFF}\nbuffer_load_dword v{G}, v{VG}, s[28:31], s27 offen sc1")
    for j in range(6):
        a(f"buffer_load_dwordx4 {vr(ZL+4*j,4)}, v{VZ}, s[28:31], s26 offen sc1\ns_add_u32 s26, s26, {2*ZP}")
    BF, OFR, ACC, YG = 0, 100, 120, 140
    VY2, G2 = 162, 167
    a(f"""
    s_waitcnt vmcnt(0)
    s_cmp_ge_u32 s20, 4
    s_cbranch_scc1 H_DESC
    """)
    for k in range(10): a(f"v_perm_b32 v{YG+10+k}, v{ZL+2*k+1}, v{ZL+2*k}, v{SH}")
    a("s_branch H_UNP\nH_DESC:")
    for k in range(10): a(f"v_perm_b32 v{YG+10+k}, v{ZL+19-2*k}, v{ZL+20-2*k}, v{SH}")
    a("H_UNP:")
    lwait(a, HPA, 8, 0xf, 8)
    a(f"""
    {st(8)}
    s_mov_b32 s41, s16
    s_mov_b32 s47, 0
P3_GO:
    s_setprio {opt('p3o', 0)}
    s_lshl_b32 s22, s17, 3
    s_and_b32 s23, s18, 3
    s_add_u32 s22, s22, s23
    s_lshl_b32 s22, s22, 1
    s_add_u32 s22, s22, s47
    s_mul_i32 s22, s22, 20480
    s_add_u32 s22, s22, {OF_OFF}
    s_lshl_b32 s44, s41, 12
    s_add_u32 s44, s44, s22
    s_lshl_b32 s45, s41, 10
    s_add_u32 s45, s45, s22
    s_add_u32 s45, s45, 16384
    s_lshl_b32 s46, s47, 2
    s_add_u32 s40, s46, {LFB + 80}
    s_add_u32 s46, s46, s41
    s_mul_i32 s46, s46, 5120
    s_add_u32 s46, s46, {WOL}
    s_mov_b32 s26, 0
    s_mov_b32 s42, 0
    v_mov_b32 v{CM}, {LFB + 32}
    """)
    lwait(a, CM, CT, 1, 8)
    a("P3_TRY:")
    for k in range(4):
        a(f"buffer_load_dwordx4 {vr(OFR+4*k,4)}, v{VA}, s[28:31], s44 offen offset:{1024*k} sc1")
    a(f"buffer_load_dwordx2 {vr(OFR+16,2)}, v{VT}, s[28:31], s45 offen sc1\nbuffer_load_dwordx2 {vr(OFR+18,2)}, v{VT}, s[28:31], s45 offen offset:128 sc1")
    a(f"""
    s_cmp_lg_u32 s26, 0
    s_cbranch_scc1 P3_CHK
    s_add_u32 s23, s41, 1
    s_and_b32 s23, s23, 3
    s_mul_i32 s23, s23, 25600
    s_add_u32 s23, s23, {WOL}
    v_add_u32 v{CM}, s23, v{BMM}
    v_add_u32 v{CT}, s23, v{BMT}
    """)
    for n in range(25):
        k, t = divmod(n, 5); d = BF + 4 * n
        bb, o, dj = (CM, k * 6400 + t * 8, 1280) if k < 4 else (CT, t * 8, 3200)
        a(f"ds_read_b64_tr_b16 {vr(d,2)}, v{bb} offset:{o}\nds_read_b64_tr_b16 {vr(d+2,2)}, v{bb} offset:{o+dj}")
    a(f"v_mov_b32 v{BMM}, {LFB + 36}\nv_mov_b32 v{BMT}, 1\ns_waitcnt lgkmcnt(0)")
    ladd(a, BMM, BMT, 0)
    b = OFR
    def mfs(k): return "\n".join(f"v_mfma_f32_16x16x32_bf16 {vr(ACC+4*t,4)}, {vr(BF+4*(5*k+t),4)}, {vr(OFR+4*k,4)}, {vr(ACC+4*t,4) if k else 0}" for t in range(5))
    if opt("spec", 1):
        a("P3_CHK:\ns_add_u32 s26, s26, 1\ns_mov_b32 s43, -1")
        for k in range(5):
            r = b + 4 * k
            a(f"""P3_C{k}:
            s_waitcnt vmcnt({max(0, 5 - k) if k < 4 else 0})
            v_max3_u32 v{CM}, v{r}, v{r+1}, v{r+2}
            v_max3_u32 v{CM}, v{r+3}, v{CM}, 1
            v_cmp_eq_u32 vcc, s43, v{CM}
            s_cbranch_vccnz P3_B{k}
            {mfs(k)}""")
        a(f"{'' if opt('fst', 0) else st(11)}\ns_branch P3_OK")
        for k in range(5):
            a(f"P3_B{k}:\ns_sleep {opt('p3s', 4)}")
            for kk in range(k, 4):
                a(f"buffer_load_dwordx4 {vr(OFR+4*kk,4)}, v{VA}, s[28:31], s44 offen offset:{1024*kk} sc1")
            a(f"buffer_load_dwordx2 {vr(OFR+16,2)}, v{VT}, s[28:31], s45 offen sc1\nbuffer_load_dwordx2 {vr(OFR+18,2)}, v{VT}, s[28:31], s45 offen offset:128 sc1")
            a(f"s_add_u32 s26, s26, 1\ns_cmp_lt_u32 s26, 0x40000\ns_cselect_b32 s43, -1, 0\ns_branch P3_C{k}")
        a("P3_OK:")
    else:
        a(f"P3_CHK:\ns_add_u32 s26, s26, 1\ns_waitcnt vmcnt(4)\nv_max3_u32 v{CM}, v{b}, v{b+1}, v{b+2}\nv_max3_u32 v{CT}, v{b+3}, v{b+4}, v{b+5}\nv_max3_u32 v{CM}, v{b+6}, v{b+7}, v{CM}\ns_waitcnt vmcnt(2)")
        a(f"v_max3_u32 v{CT}, v{b+8}, v{b+9}, v{CT}\nv_max3_u32 v{CM}, v{b+10}, v{b+11}, v{CM}\nv_max3_u32 v{CT}, v{b+12}, v{b+13}, v{CT}\nv_max3_u32 v{CM}, v{b+14}, v{b+15}, v{CM}\ns_waitcnt vmcnt(0)")
        a(f"""
    v_max3_u32 v{CT}, v{b+16}, v{b+17}, v{CT}
    v_max3_u32 v{CM}, v{b+18}, v{b+19}, v{CM}
    s_cmp_lt_u32 s26, 0x40000
    v_max_u32 v{CM}, v{CM}, v{CT}
    s_cbranch_scc0 P3_OK
    v_cmp_eq_u32 vcc, -1, v{CM}
    s_cbranch_vccz P3_OK
    s_sleep {opt("p3s", 4)}
    s_branch P3_TRY
P3_OK:
    {'' if opt('fst', 0) else st(11)}
    s_setprio {opt('p3p', 0)}
    """)
        for n in range(25):
            k, t = divmod(n, 5)
            a(f"v_mfma_f32_16x16x32_bf16 {vr(ACC+4*t,4)}, {vr(BF+4*n,4)}, {vr(OFR+4*k,4)}, {vr(ACC+4*t,4) if k else 0}")
    a("s_cmp_lg_u32 s42, 0\ns_cbranch_scc1 P3_WR")
    lwait(a, BMM, CT, 1, 8, 2)
    a(f"{str() if opt('fst', 0) else st(12)}\nP3_WR:\nv_add_u32 v{CM}, s46, v{VA}\nv_mov_b32 v{CT}, s40\ns_nop 1")
    for j in range(5): a(f"ds_write_b128 v{CM}, {vr(ACC+4*j,4)} offset:{1024*j}")
    a("s_waitcnt lgkmcnt(0)")
    ladd(a, CT, BMT, 0)
    a(f"""
    s_add_u32 s44, s44, {8*20480}
    s_add_u32 s45, s45, {8*20480}
    s_add_u32 s46, s46, {8*5120}
    s_add_u32 s40, s40, 8
    s_add_u32 s42, s42, 1
    s_cmp_ge_u32 s42, 2
    s_cbranch_scc1 P3_END
    s_cmp_ge_u32 s16, 4
    s_cbranch_scc1 P3_TRY
    """)
    for k in range(10): a(f"v_lshlrev_b32 v{YG+2*k}, 16, v{YG+10+k}\nv_and_b32 v{YG+2*k+1}, 0xffff0000, v{YG+10+k}")
    for k in range(20): a(f"v_mul_f32 v{YG+k}, v{YG+k}, v{G2}")
    a(f"""
    v_sub_f32 v{G2}, 1.0, v{G2}
    s_branch P3_TRY
P3_END:
    {st(10)}
    s_cmp_ge_u32 s16, 4
    s_cbranch_scc1 {"L_DONE" if STAMP else "L_END"}
    s_setprio 3
    s_lshl_b32 s23, s16, 2
    s_add_u32 s23, s23, {LFB + 80}
    v_mov_b32 v{CT}, s23
    s_mul_i32 s23, s16, 20480
    s_add_u32 s23, s23, {WOL}
    v_add_u32 v{CM}, s23, v{VA}
    """)
    lwait(a, CT, BMM, 1, 4, 1)
    a(st(9))
    for j in range(5):
        for g in range(4): a(f"ds_read_b128 {vr(16*j+4*g,4)}, v{CM} offset:{5120*g+1024*j}")
    for j in range(5):
        a(f"s_waitcnt lgkmcnt({min(15, 16-4*j)})")
        for r in (0, 2): a(f"v_pk_add_f32 {vr(16*j+r,2)}, {vr(16*j+r,2)}, {vr(16*j+4+r,2)}\nv_pk_add_f32 {vr(16*j+8+r,2)}, {vr(16*j+8+r,2)}, {vr(16*j+12+r,2)}")
        for r in (0, 2): a(f"v_pk_add_f32 {vr(16*j+r,2)}, {vr(16*j+r,2)}, {vr(16*j+8+r,2)}")
        for r in range(4): a(f"v_fmac_f32 v{YG+4*j+r}, v{16*j+r}, v{G2}")
        a(f"v_cvt_pk_bf16_f32 v{84+2*j}, v{YG+4*j}, v{YG+4*j+1}\nv_cvt_pk_bf16_f32 v{84+2*j+1}, v{YG+4*j+2}, v{YG+4*j+3}")
        if j == 1: a(f"buffer_store_dwordx4 v[84:87], v{VY2}, s[36:39], 0 offen" + OSC)
        if j == 3: a(f"buffer_store_dwordx4 v[88:91], v{VY2}, s[36:39], 0 offen offset:16" + OSC)
    a(f"buffer_store_dwordx2 v[92:93], v{VY2}, s[36:39], 0 offen offset:32" + OSC)

DOC = """;
"""
def main():
    a = A()
    top = open("cdna_kernels/" + NAME + ".s.ref").read().split("; Override launch")[0]
    top += "; @launch grid=(256,1,1) block=(768,1,1) lds=163840\n"
    top += DOC
    a('.amdgcn_target "amdgcn-amd-amdhsa--gfx950"\n.text')
    d = gen(a)
    open(sys.argv[1], "w").write(top + a.text() + '.section .rodata,"a"\n.p2align 6\n' + d)
if __name__ == "__main__":
    main()
```

```python
import sys, math, struct

OPT = dict(x.split("=") for x in sys.argv[2:])
def opt(k, d): return int(OPT.get(k, d))
NAME = "gated_mix__spectral_fnet__softmax_full_mha__prompt"
HS = 163840
KV_OFF = 0
HG = HS + opt('pad', 512)
HQ = 81920 + opt('pad', 512)
Q_OFF = 32 * HG
FE_OFF = Q_OFF + 32 * HQ
FO_DELTA = 655360
X512_OFF = FE_OFF + 2 * FO_DELTA
TB_OFF = X512_OFF + 4096
Y_OFF = TB_OFF + 33 * 65536
ZP = 8704
G_OFF = Y_OFF + 88 * 2 * ZP
OF_OFF = G_OFF + 8192
FLG_OFF = OF_OFF + 2621440
WS_USED = FLG_OFF + 320 * 128
XB = 102400
L_Y = 256
QLDS = 71680
RB0, RSL = 11264, 36864
LFB = 158720
WOL = 5120
AK1, AK2, AV, BK1, BK2, BV, OA1, OA2, ONES, PA, FA = range(152, 163)
VA, VT, BMM, BMT, CM, CT = 163, 164, 165, 166, 160, 161
PXB = 107520
def p3_addr(l):
    return f"""v_lshlrev_b32 v{VA}, 4, v{l}
    v_and_b32 v2, 7, v{l}
    v_bfe_u32 v4, v{l}, 3, 1
    v_lshrrev_b32 v3, 4, v{l}
    v_lshlrev_b32 v{VT}, 8, v3
    v_lshl_add_u32 v{VT}, v2, 4, v{VT}
    v_lshl_add_u32 v{VT}, v4, 3, v{VT}
    v_bfe_u32 v2, v{l}, 2, 2
    v_and_b32 v5, 3, v{l}
    v_mul_u32_u24 v5, 40, v5
    v_mul_u32_u24 v4, 40, v3
    v_add3_u32 v4, v4, v2, 16
    v_mul_u32_u24 v4, 160, v4
    v_add_u32 v{BMT}, v4, v5
    v_lshrrev_b32 v4, 1, v3
    v_mul_u32_u24 v4, 20, v4
    v_and_b32 v3, 1, v3
    v_lshl_add_u32 v4, v3, 2, v4
    v_add_u32 v4, v4, v2
    v_mul_u32_u24 v4, 160, v4
    v_add_u32 v{BMM}, v4, v5"""

def f32bits(x): return struct.unpack("<I", struct.pack("<f", x))[0]
QSCALE = f32bits((20 ** -0.5) * math.log2(math.e))
STAMP = opt("stamp", 0)
STAMP_OFF = 1 << 25
NST = 16

class A:
    def __init__(self): self.l = []; self.n = 0
    def __call__(self, s):
        for line in s.split("\n"):
            t = line.strip()
            if not t: continue
            self.l.append(t if t.endswith(":") or t.startswith(".") else "    " + t)
    def uid(self): self.n += 1; return self.n
    def text(self): return "\n".join(self.l) + "\n"

def vr(a, n): return f"v[{a}:{a+n-1}]" if n > 1 else f"v{a}"
def srd(lo, base, size):
    return f"s_mov_b32 s{lo}, s{base}\ns_mov_b32 s{lo+1}, s{base+1}\ns_mov_b32 s{lo+2}, {size}\ns_mov_b32 s{lo+3}, 0x20000"
OSC = " sc1" if opt("outsc1", 0) else ""
ALN = (f".p2align {opt('al', 0)}" if opt("al", 0) else "") + ("\ns_nop 0" if opt("al4", 0) else "")
ALN2 = f".p2align {opt('al2', 0)}" if opt("al2", 0) else ""
P1ST = opt("p1st", 0)
def st(i, p1=False):
    if not STAMP: return ""
    if P1ST and not p1 and 0 < i < 15 and i not in (4, 5): return ""
    if P1ST and not p1 and i in (4, 5): i += 8
    if p1 and not P1ST: return ""
    return f"{'s_memrealtime' if STAMP in (1, 3, 4) else 's_memtime'} s[{64+2*i}:{65+2*i}]"
def fin(): return "s_branch L_DONE" if STAMP else "s_endpgm"

X_P, WD_P, WQKV_P, WO_P, GATE_P, OUT_P, DBG_P, WS_P = 4, 8, 48, 50, 52, 54, 56, 58

def poll(a, vaddr, vdat, mask, target, sreg=60):
    u = a.uid()
    a(f"""
    s_mov_b64 exec, {mask}
    s_mov_b32 s{sreg}, 0
L_POLL{u}:
    buffer_load_dword v{vdat}, v{vaddr}, s[28:31], 0 offen sc1
    s_waitcnt vmcnt(0)
    v_cmp_gt_u32 vcc, {target}, v{vdat}
    s_cbranch_vccz L_POLLD{u}
    {'s_sleep 1' if opt('psleep', 0) else ''}
    s_add_u32 s{sreg}, s{sreg}, 1
    s_cmp_lt_u32 s{sreg}, 0x40000
    s_cbranch_scc1 L_POLL{u}
L_POLLD{u}:
    s_mov_b64 exec, -1
    """)

def poll4(a, vaddr, vdat, mask, soff="0", sreg=60, slp=None):
    u = a.uid()
    a(f"""
    s_mov_b64 exec, {mask}
    s_mov_b32 s{sreg}, 0
    s_branch L_POLLE{u}
L_POLL{u}:
    s_sleep {slp or opt("ps4", 2)}
L_POLLE{u}:
    buffer_load_dwordx4 {vr(vdat,4)}, v{vaddr}, s[28:31], {soff} offen sc1
    s_add_u32 s{sreg}, s{sreg}, 1
    s_waitcnt vmcnt(0)
    v_min3_u32 v{vdat}, v{vdat}, v{vdat+1}, v{vdat+2}
    s_cmp_lt_u32 s{sreg}, 0x40000
    v_min_u32 v{vdat}, v{vdat}, v{vdat+3}
    s_cbranch_scc0 L_POLLD{u}
    v_cmp_eq_u32 vcc, 0, v{vdat}
    s_cbranch_vccnz L_POLL{u}
L_POLLD{u}:
    s_mov_b64 exec, -1
    """)

def gen(a):
    label = NAME + "_kernel"
    a(f".p2align 8\n.globl {label}\n.type {label},@function\n{label}:")
    a(f"""
    s_cmp_ge_u32 s2, 256
    s_cbranch_scc1 L_END
    {st(0) + chr(10) + 's_waitcnt lgkmcnt(0)' if opt("st0first", 0) else ''}
    s_load_dwordx2 s[4:5], s[0:1], 0
    s_load_dwordx8 s[48:55], s[0:1], 48
    s_load_dwordx4 s[8:11], s[0:1], 24
    s_load_dwordx4 s[56:59], s[0:1], 80
    """)
    if STAMP:
        a("\n".join(f"s_mov_b32 s{64+j}, 0" for j in range(2, 2 * NST)) + "\n" + ("" if opt("st0first", 0) else st(0)))
    a(f"""
    v_lshrrev_b32 v1, 6, v0
    v_and_b32 v0, 63, v0
    s_and_b32 s17, s2, 7
    v_readfirstlane_b32 s16, v1
    s_lshr_b32 s18, s2, 3
    s_and_b32 s19, s18, 7
    s_lshr_b32 s22, s18, 3
    s_and_b32 s21, s17, 1
    s_lshl_b32 s23, s19, 1
    s_add_u32 s21, s21, s23
    s_lshr_b32 s20, s17, 1
    s_cmp_ge_u32 s19, {opt("numl", 4)}
    s_cselect_b32 s12, 1, 0
    s_cmp_eq_u32 s22, 0
    s_cselect_b32 s12, 0, s12
    s_cmp_ge_u32 s16, 4
    s_cbranch_scc1 P1_NOTLOADER
    """)
    p1_loader(a)
    a(f"""
P1_NOTLOADER:
    s_lshl_b32 s63, s17, 2
    s_add_u32 s63, s63, s22
    s_mul_i32 s14, s63, {HG}
    s_sub_u32 s13, s16, 4
    s_lshl_b32 s23, s19, 3
    s_add_u32 s23, s23, s13
    s_mul_i32 s23, s23, 40960
    s_add_u32 s23, s23, {OF_OFF}
    s_lshl_b32 s6, s63, 9
    s_add_u32 s6, s6, s23
    s_lshl_b32 s7, s63, 7
    s_add_u32 s7, s7, s23
    s_add_u32 s7, s7, 16384
    s_lshl_b32 s15, s20, 2
    s_add_u32 s15, s15, s22
    s_lshl_b32 s15, s15, 4
    s_add_u32 s15, s15, s21
    s_lshl_b32 s15, s15, 5
    s_add_u32 s15, s15, s13
    s_lshl_b32 s15, s15, 2
    s_add_u32 s15, s15, {FLG_OFF}
    v_and_b32 v1, 31, v0
    v_lshrrev_b32 v2, 5, v0
    v_lshlrev_b32 v{AK1}, 4, v0
    v_lshrrev_b32 v3, 4, v1
    v_lshl_add_u32 v3, v3, 1, v2
    v_and_b32 v4, 15, v0
    v_lshl_add_u32 v3, v4, 2, v3
    v_lshlrev_b32 v{AK2}, 2, v3
    v_mul_u32_u24 v{AV}, 384, v2
    v_lshlrev_b32 v3, 6, v2
    v_cmp_gt_u32 vcc, 16, v1
    s_nop 1
    v_cndmask_b32 v{AV}, v3, v{AV}, vcc
    v_lshl_add_u32 v{AV}, v1, 4, v{AV}
    v_add_u32 v{BK1}, 15360, v{AK1}
    v_add_u32 v{BK2}, 15360, v{AK2}
    v_add_u32 v{BV}, 15360, v{AV}
    v_and_b32 v3, 27, v1
    v_cmp_eq_u32 vcc, 24, v3
    v_mov_b32 v3, 0x3f803f80
    v_bfe_u32 v{OA2}, v1, 3, 1
    v_cndmask_b32 v{ONES}, 0, v3, vcc
    v_mul_u32_u24 v{OA2}, 20480, v{OA2}
    v_and_b32 v3, 7, v1
    v_lshl_add_u32 v{OA2}, v3, 4, v{OA2}
    v_lshrrev_b32 v3, 4, v0
    v_lshl_add_u32 v{OA1}, v3, 7, v{OA2}
    s_lshl_b32 s23, s13, 2
    s_add_u32 s23, s23, {LFB}
    v_mov_b32 v{PA}, s23
    v_mov_b32 v{FA}, {LFB + 56}
    {p3_addr(0)}
    s_cmp_ge_u32 s16, 8
    s_cbranch_scc1 P1_EXTRA
    """)
    p1_compute(a)
    p1_extra(a)
    attention(a)
    helpers(a)
    a("L_DONE:")
    if STAMP == 4:
        i_, j_ = opt("ai", 0), opt("aj", 0)
        a(f"""s_waitcnt vmcnt(0)
        {st(NST-1)}
        s_waitcnt lgkmcnt(0)
        {f's_cmp_lg_u32 s16, {opt("aw1", 0)}' if opt("aw1", 0) else f's_cmp_ge_u32 s16, {opt("aw", 4)}'}
        s_cbranch_scc1 L_END
        s_and_b32 s60, s2, {opt("am", 31)}
        s_cmp_lg_u32 s60, {opt("av", 5)}
        s_cbranch_scc1 L_END
        s_sub_u32 s60, s{64+2*j_}, s{64+2*i_}
        s_lshl_b32 s60, s60, 2
        s_min_u32 s60, s60, 100000
        {f's_mov_b32 s60, {opt("fix", 0)}' if opt("fix", 0) else ''}
L_AMP:
        s_memrealtime s[44:45]
        s_waitcnt lgkmcnt(0)
        s_sub_u32 s44, s44, s{64 if opt("fix", 0) else 64+2*(NST-1)}
        s_cmp_lt_u32 s44, s60
        s_cbranch_scc1 L_AMP
        """)
    elif STAMP == 3:
        r = f"s_waitcnt vmcnt(0)\n{st(NST-1)}\ns_mov_b64 exec, 1\n{srd(44, DBG_P, 256)}\ns_waitcnt lgkmcnt(0)\nv_mov_b32 v16, 0\n"
        r += "s_not_b32 s60, s64\nv_mov_b32 v0, s60\nbuffer_atomic_umax v0, v16, s[44:47], 0 offen offset:4 sc1\n"
        r += "s_cmp_eq_u32 s16, 0\ns_cbranch_scc1 L_D0\ns_cmp_eq_u32 s16, 4\ns_cbranch_scc0 L_END\n"
        for n, i in enumerate((2, 3, 4, 5, 7, 8, 9)): r += f"v_mov_b32 v{n+1}, s{64+2*i}\nbuffer_atomic_umax v{n+1}, v16, s[44:47], 0 offen offset:{8+4*n} sc1\n"
        r += "s_endpgm\nL_D0:\n"
        for n, i in enumerate((0, 1, 6, 8, 9, 10, 15)): r += f"v_mov_b32 v{n+1}, s{64+2*i}\nbuffer_atomic_umax v{n+1}, v16, s[44:47], 0 offen offset:{36+4*n} sc1\n"
        a(r)
    elif STAMP:
        r = f"s_waitcnt vmcnt(0)\n{st(NST-1)}\ns_mov_b64 exec, 1\ns_add_u32 s44, s{WS_P}, {STAMP_OFF}\ns_addc_u32 s45, s{WS_P+1}, 0\ns_mov_b32 s46, 262144\ns_mov_b32 s47, 0x20000\n"
        r += "s_lshl_b32 s60, s2, 4\ns_add_u32 s60, s60, s16\ns_lshl_b32 s60, s60, 6\ns_waitcnt lgkmcnt(0)\nv_mov_b32 v16, 0\n"
        if opt("xcc", 0): r += "s_getreg_b32 s66, hwreg(HW_REG_XCC_ID)\ns_add_u32 s66, s66, 100\n"
        for i in range(NST): r += f"v_mov_b32 v{i}, s{64+2*i}\n"
        for i in range(4): r += f"buffer_store_dwordx4 v[{4*i}:{4*i+3}], v16, s[44:47], s60 offen offset:{16*i}\n"
        a(r)
    a("L_END:\ns_endpgm\n.fill 256, 4, 0xbf810000\nL_CODE_END:")
    return f""".amdhsa_kernel {label}
  .amdhsa_next_free_vgpr 168
  .amdhsa_next_free_sgpr {100 if STAMP else 64}
  .amdhsa_accum_offset 168
  .amdhsa_group_segment_fixed_size 0
  .amdhsa_kernarg_size 96
  .amdhsa_user_sgpr_count 2
  .amdhsa_user_sgpr_kernarg_segment_ptr 1
  .amdhsa_system_sgpr_workgroup_id_x 1
.end_amdhsa_kernel
"""

def p1_loader(a):
    a(f"""
    s_setprio 3
    """)
    if opt("pf", 0):
        a(f"""
        v_lshlrev_b32 v20, 4, v0
        s_mul_i32 s23, s2, 10240
        s_and_b32 s24, s16, 1
        s_mul_i32 s24, s24, 5120
        s_add_u32 s23, s23, s24
        s_mul_i32 s25, s2, 3
        s_mov_b32 s31, 0x20000
        s_mov_b32 s35, 0x20000
        s_mov_b32 s34, {640*1280}
        s_waitcnt lgkmcnt(0)
        s_mov_b32 s30, {2048*1280}
        s_cmp_lt_u32 s16, 2
        s_cselect_b32 s28, s{X_P}, s{WQKV_P}
        s_cselect_b32 s29, s{X_P+1}, s{WQKV_P+1}
        s_cselect_b32 s30, s30, {640*3840}
        s_cselect_b32 s32, s8, s10
        s_cselect_b32 s33, s9, s11
        buffer_load_dwordx4 v[24:27], v20, s[28:31], s23 offen
        buffer_load_dwordx4 v[28:31], v20, s[28:31], s23 offen offset:1024
        buffer_load_dwordx4 v[32:35], v20, s[28:31], s23 offen offset:2048
        buffer_load_dwordx4 v[36:39], v20, s[28:31], s23 offen offset:3072
        s_add_u32 s23, s23, 4096
        buffer_load_dwordx4 v[40:43], v20, s[28:31], s23 offen
        s_lshr_b32 s24, s24, 11
        s_add_u32 s25, s25, s24
        s_mul_i32 s25, s25, 1280
        s_mov_b32 exec_hi, 0xff
        buffer_load_dwordx4 v[44:47], v20, s[32:35], s25 offen
        s_bitcmp1_b32 s16, 0
        s_cbranch_scc1 P1_PF1
        buffer_load_dwordx4 v[48:51], v20, s[32:35], s25 offen offset:1280
P1_PF1:
        s_mov_b32 exec_hi, -1
        """)
    a(f"""
    v_lshrrev_b32 v2, 3, v0
    v_and_b32 v3, 7, v0
    v_lshrrev_b32 v4, 4, v0
    v_xor_b32 v3, v3, v4
    v_lshlrev_b32 v3, 4, v3
    v_xor_b32 v4, 64, v3
    s_lshl_b32 s23, s21, 5
    s_lshr_b32 s24, s16, 1
    s_lshl_b32 s24, s24, 4
    s_add_u32 s23, s23, s24
    s_cmp_eq_u32 s22, 2
    s_cselect_b32 s25, 4, 0
    v_and_b32 v9, s25, v2
    v_add3_u32 v9, v9, v2, s23
    s_sub_u32 s25, 8, s25
    s_bitcmp1_b32 s16, 0
    s_cselect_b32 s23, -1, 1
    s_cselect_b32 s24, 0x400, 0
    s_mul_i32 s25, s25, s23
    v_mul_lo_u32 v10, v9, s23
    s_sub_u32 s27, 0x800, s24
    v_add_u32 v5, s24, v10
    v_sub_u32 v7, s27, v10
    v_add_u32 v6, s25, v5
    v_subrev_u32 v8, s25, v7
    v_cmp_eq_u32 vcc, 0, v9
    s_add_u32 s24, s24, 0x200
    v_mov_b32 v9, s24
    s_cmp_lg_u32 s22, 2
    v_cndmask_b32 v7, v7, v9, vcc
    s_cbranch_scc1 P1_LD_NV
    v_swap_b32 v6, v7
P1_LD_NV:
    s_movk_i32 s27, 1280
    v_mad_u32_u24 v10, v5, s27, v3
    v_mad_u32_u24 v11, v6, s27, v4
    v_mad_u32_u24 v12, v7, s27, v3
    v_mad_u32_u24 v13, v8, s27, v4
    """)
    EX = opt("early", 1) and opt("stag1", 7) == 7
    if EX:
        a(f"""
        s_lshr_b32 s36, s17, 1
        s_xor_b32 s36, s36, s17
        s_and_b32 s36, s36, 1
        s_xor_b32 s36, s36, 9
        s_lshl_b32 s41, s36, 7
        s_lshl_b32 s44, s16, 12
        s_add_u32 m0, s44, {RB0 + 2 * RSL}
        s_waitcnt lgkmcnt(0)
        {srd(28, X_P, 2048*1280)}
        buffer_load_dwordx4 v10, s[28:31], s41 offen lds
        """)
        for i in range(1, 4):
            a(f"s_add_u32 m0, s44, {RB0 + 2 * RSL + 1024*i}\ns_nop 0\nbuffer_load_dwordx4 v{10+i}, s[28:31], s41 offen lds")
    a(f"""
    s_lshl_b32 s26, s22, 2
    s_add_u32 s26, s26, s20
    s_and_b32 s27, s20, 1
    s_movk_i32 s25, 3840
    s_cmp_eq_u32 s22, 3
    s_cselect_b32 s25, 1280, s25
    s_cselect_b32 s26, s27, s26
    s_mul_i32 s26, s26, 320
    s_lshl_b32 s27, s16, 4
    s_mul_i32 s27, s27, s25
    s_add_u32 s26, s26, s27
    s_sub_u32 s27, s25, 320
    """)
    for i in range(5):
        a(f"""
        v_add_u32 v5, {64*i}, v0
        v_mul_u32_u24 v6, 3277, v5
        v_lshrrev_b32 v6, 16, v6
        v_lshrrev_b32 v7, 2, v6
        v_and_b32 v7, 2, v7
        v_xor_b32 v5, v5, v7
        v_lshl_add_u32 v5, v5, 4, s26
        v_mad_u32_u24 v{14+i}, v6, s27, v5
        """)
    sg = opt("stag1", 7)
    if sg == 1:
        a("s_lshl_b32 s36, s19, 3\ns_lshl_b32 s37, s22, 4\ns_add_u32 s36, s36, s37\ns_add_u32 s36, s36, s17\ns_and_b32 s36, s36, 63\ns_mul_i32 s36, s36, 10\ns_lshr_b32 s36, s36, 6")
    elif sg == 2:
        a("s_add_u32 s36, s19, s22\ns_lshl_b32 s36, s36, 4\ns_add_u32 s36, s36, s17\ns_add_u32 s36, s36, s17\ns_and_b32 s36, s36, 63\ns_mul_i32 s36, s36, 10\ns_lshr_b32 s36, s36, 6")
    elif sg == 3:
        a("s_add_u32 s36, s19, s22\ns_lshl_b32 s36, s36, 5\ns_lshl_b32 s37, s17, 2\ns_add_u32 s36, s36, s37\ns_and_b32 s36, s36, 63\ns_mul_i32 s36, s36, 10\ns_lshr_b32 s36, s36, 6")
    elif sg >= 10:
        nc = sg - 9
        Gn = 5 - nc
        rot = [2 * (nc + k % Gn) for k in range(2 * Gn - 1)]
        rv = sum(v << (4 * k) for k, v in enumerate(rot))
        com = sum((2 * k) << (4 * k) for k in range(nc))
        a(f"""
        s_lshr_b32 s36, s17, 1
        s_xor_b32 s36, s36, s17
        s_and_b32 s36, s36, 1
        s_add_u32 s37, s22, s19
        s_lshr_b32 s46, s17, 2
        s_lshl_b32 s46, s46, {opt("xsh", 1)}
        s_add_u32 s37, s37, s46
        s_mul_i32 s46, s37, {256 // Gn + 1}
        s_lshr_b32 s46, s46, 8
        s_mul_i32 s46, s46, {Gn}
        s_sub_u32 s37, s37, s46
        s_lshl_b32 s37, s37, 2
        s_lshr_b32 s46, {rv:#x}, s37
        s_and_b32 s46, s46, {(1 << (4 * Gn)) - 1:#x}
        s_lshl_b32 s46, s46, {4 * nc}
        s_or_b32 s46, s46, {0x53100000 | com:#x}
        s_mov_b32 s47, 0x97
        s_mul_i32 s37, s36, 0x11111111
        s_xor_b32 s46, s46, s37
        s_xor_b32 s47, s47, s37
        s_and_b32 s36, s46, 15
        """)
    elif sg >= 5:
        tsh = {5: 0, 6: 1, 7: 0, 8: 0, 9: 0}[sg]
        a(f"""
        s_lshr_b32 s36, s17, 1
        s_xor_b32 s36, s36, s17
        s_and_b32 s36, s36, 1
        {'s_min_u32 s37, s22, 2' if sg == 9 else f's_lshr_b32 s37, s22, {tsh}'}
        s_add_u32 s37, s37, s19
        s_lshr_b32 s46, s17, 2
        s_lshl_b32 s46, s46, 1
        s_add_u32 s37, s37, s46
        s_mul_i32 s46, s37, 52
        s_lshr_b32 s46, s46, 8
        s_mul_i32 s46, s46, 5
        s_sub_u32 s37, s37, s46
        s_lshl_b32 s37, s37, 2
        s_mov_b32 s46, 0x42086420
        s_mov_b32 s47, 0x6
        s_lshr_b64 s[46:47], s[46:47], s37
        s_and_b32 s46, s46, 0xfffff
        {'s_or_b32 s47, s46, 0x11111' + chr(10) + 's_lshl_b32 s37, s47, 20' + chr(10) + 's_or_b32 s46, s46, s37' + chr(10) + 's_lshr_b32 s47, s47, 12' if sg == 8 else 's_or_b32 s46, s46, 0x53100000' + chr(10) + 's_mov_b32 s47, 0x97'}
        s_mul_i32 s37, s36, 0x11111111
        s_xor_b32 s46, s46, s37
        s_xor_b32 s47, s47, s37
        """)
        if sg == 7:
            a("s_lshr_b32 s37, s47, 4\ns_and_b32 s37, s37, 15\ns_lshl_b64 s[46:47], s[46:47], 4\ns_or_b32 s46, s46, s37")
        a("s_and_b32 s36, s46, 15")
    else:
        a("s_mov_b32 s36, 0")
    a(f"""
    s_lshl_b32 s38, s16, 12
    s_add_u32 s38, s38, {RB0}
    s_mul_i32 s39, s16, 5120
    s_add_u32 s39, s39, {RB0 + 16384}
    s_mov_b32 s40, 0
    s_mul_i32 s34, s25, 640
    s_lshl_b32 s25, s25, 6
    s_mov_b32 s35, 0x20000
    s_waitcnt lgkmcnt(0)
    {srd(28, X_P, 2048*1280)}
    s_cmp_lt_u32 s20, 2
    s_cselect_b32 s32, s8, s10
    s_cselect_b32 s33, s9, s11
    s_cmp_eq_u32 s22, 3
    s_cselect_b32 s32, s32, s{WQKV_P}
    s_cselect_b32 s33, s33, s{WQKV_P+1}
    {st(1)}
    """)
    if opt("dftdelay", 0):
        a(f"""s_cmp_lg_u32 s22, 3
        s_cbranch_scc1 P1_LD_LOOP
        s_memrealtime s[42:43]
        s_waitcnt lgkmcnt(0)
        s_add_u32 s42, s42, {opt("dftdelay", 0)}
P1_DLY:
        s_memrealtime s[44:45]
        s_waitcnt lgkmcnt(0)
        s_cmp_lt_u32 s44, s42
        s_cbranch_scc1 P1_DLY
        """)
    a(f"""
P1_LD_LOOP:
    s_lshl_b32 s41, s36, 7
    s_mul_i32 s42, s36, s25
    s_add_u32 s43, s40, 2
    s_and_b32 s43, s43, 3
    s_mul_i32 s43, s43, {RSL}
    s_add_u32 s44, s43, s38
    s_add_u32 s45, s43, s39
    """)
    if EX: a("s_cmp_eq_u32 s40, 0\ns_cbranch_scc1 P1_LD_WW")
    for i in range(4):
        a(f"s_add_u32 m0, s44, {1024*i}\ns_nop 0\nbuffer_load_dwordx4 v{10+i}, s[28:31], s41 offen lds")
    a("P1_LD_WW:")
    for i in range(5):
        a(f"s_add_u32 m0, s45, {1024*i}\ns_nop 0\nbuffer_load_dwordx4 v{14+i}, s[32:35], s42 offen lds")
    if opt("noload", 0): a("s_cmp_ge_u32 s40, 3\ns_cselect_b32 s30, 0, s30\ns_cselect_b32 s34, 0, s34")
    a(f"""
    {'s_lshr_b64 s[46:47], s[46:47], 4' + chr(10) + 's_and_b32 s36, s46, 15' if sg >= 5 else 's_add_u32 s36, s36, 1' + chr(10) + 's_cmp_eq_u32 s36, 10' + chr(10) + 's_cselect_b32 s36, 0, s36'}
    s_add_u32 s40, s40, 1
    s_cmp_eq_u32 s40, 1
    s_cbranch_scc1 P1_LD_LOOP
    s_waitcnt vmcnt(9)
    s_barrier
    s_cmp_lt_u32 s40, 10
    s_cbranch_scc1 P1_LD_LOOP
    s_waitcnt vmcnt(0)
    s_barrier
    s_branch HELPER
    """)

def p1_compute(a):
    X = 80; W = [96, 116]; XA = 136; WA = 137; CX = 142; CW = 144; PC = 149; L = 150; TT = 96
    def acc(b, T): return 20 * b + 4 * T
    a(f"""
    s_sub_u32 s61, s16, 4
    s_and_b32 s36, s61, 1
    s_lshr_b32 s37, s61, 1
    v_mov_b32 v{L}, v0
    v_and_b32 v1, 15, v0
    v_lshrrev_b32 v2, 4, v0
    v_lshrrev_b32 v3, 1, v1
    v_xor_b32 v3, v3, v2
    v_lshlrev_b32 v3, 4, v3
    v_lshl_add_u32 v3, v1, 7, v3
    s_lshl_b32 s23, s36, 13
    s_add_u32 s23, s23, {RB0}
    v_add_u32 v{XA}, s23, v3
    v_bfe_u32 v3, v0, 2, 2
    v_lshl_add_u32 v3, v2, 3, v3
    v_mul_u32_u24 v3, 320, v3
    v_add_u32 v3, {RB0 + 16384}, v3
    v_and_b32 v4, 16, v0
    v_lshlrev_b32 v4, 1, v4
    v_and_b32 v5, 3, v0
    s_mul_i32 s23, s37, 160
    v_lshl_add_u32 v6, v5, 3, s23
    """)
    for T in range(4):
        a(f"v_xor_b32 v7, v6, v4\nv_add_u32 v{WA+T}, v7, v3\nv_add_u32 v6, 40, v6")
    a(f"""
    v_mul_u32_u24 v6, 40, v5
    v_add3_u32 v6, v6, s23, 32
    v_xor_b32 v7, v6, v4
    v_add_u32 v{WA+4}, v7, v3
    v_mov_b32 v{PC}, 0xbf803f80
    s_lshl_b32 s26, s22, 2
    s_add_u32 s26, s26, s20
    s_lshl_b32 s26, s26, 1
    s_add_u32 s26, s26, s37
    s_cmp_eq_u32 s26, 28
    s_cselect_b32 s24, 0x10001, 0
    s_mov_b32 s25, s24
    s_cmp_eq_u32 s22, 3
    s_cselect_b32 s43, 10, 8
    s_mov_b32 s40, 0
    s_mov_b32 s42, {2 * RSL}
    """)
    for r in range(96): a(f"v_mov_b32 v{r}, 0")
    for r in range(20): a(f"v_mov_b32 v{W[1]+r}, 0")
    a(f"v_add_u32 v{CX}, s42, v{XA}")
    for T in range(5): a(f"v_add_u32 v{CW+T}, s42, v{WA+T}")
    a(f"s_waitcnt lgkmcnt(0)\n{srd(28, WS_P, WS_USED)}")
    a(f"s_setprio {opt('cp', 2)}\ns_cmp_ge_u32 s22, 2\ns_cbranch_scc1 P1_PRE_V")
    def mf(b, T, x, w, qk):
        d = vr(acc(b, T), 4)
        return f"v_mfma_f32_16x16x32_bf16 {d}, {vr(w,4)}, {vr(x,4)}, {d}" if qk else f"v_mfma_f32_16x16x32_bf16 {d}, {vr(x,4)}, {vr(w,4)}, {d}"
    def rdw(d, T, step): return [f"ds_read_b64_tr_b16 {vr(d+2*j,2)}, v{CW+T} offset:{(step // 2) * RSL + (step % 2) * 10240 + 1280 * j}" for j in range(2)]
    def rdx(d, b, step): return f"ds_read_b128 {vr(d,4)}, v{CX + step % 2} offset:{(step // 2) * RSL + 2048 * b}"
    TO = (1, 2, 3, 4, 0)
    def group(step, qk, reads=True, patch=True):
        cur = W[1 - step]; nxt = W[step]
        rq = []
        for T in TO: rq += rdw(nxt + 4 * T, T, step)
        fill = []
        if step == 1:
            fill = ["s_add_u32 s40, s40, 1", "s_add_u32 s41, s40, 2", "s_and_b32 s41, s41, 3", f"s_mul_i32 s42, s41, {RSL}", f"v_add_u32 v{CX}, s42, v{XA}"] + [f"v_add_u32 v{CW+T}, s42, v{WA+T}" for T in range(5)]
        issued = 0
        for b in range(4):
            if reads:
                allow = [2, 15, issued + 1, issued][b]
                if b != 1: a(f"s_waitcnt lgkmcnt({min(15, allow)})")
            elif b == 0: a("s_waitcnt lgkmcnt(0)")
            for n, T in enumerate(TO):
                a(mf(b, T, X + 4 * b, cur + 4 * T, qk))
                if b == 0 and n < 2 and not qk and patch:
                    for j in range(2): a(f"v_cndmask_b32 v{cur+2*n+j}, v{cur+2*n+j}, v{PC}, s[24:25]")
                if not reads: continue
                if step == 0 and b == 0:
                    if n == 0: a(f"v_xor_b32 v{CX+1}, 64, v{CX}")
                    if n == opt("bn", 1): a("s_barrier")
                    if n <= opt("bn", 1): continue
                if n == 4: a(rdx(X + 4 * b, b, step)); issued += 1
                elif rq:
                    a(rq.pop(0)); issued += 1
                    if rq and (opt("rd2", 0) or (step == 0 and b == 1 and n < opt("bn", 1) - 1)): a(rq.pop(0)); issued += 1
                elif fill:
                    a(fill.pop(0))
                    if fill: a(fill.pop(0))
        assert not reads or (not rq and not fill), (rq, fill)

    def tail(qk, epi, win=None, nf=2):
        seq = [(b, T, ("x0", b), ("w0", T)) for b in range(4) for T in TO]
        marks = {}
        win = win or opt("win", 2)
        for step in range(4 - win):
            for b in range(4):
                for T in TO: seq.append((b, T, ("x", 0, step, b), ("w", step, T)))
        for T in range(5):
            for jj in range(2):
                for step in range(4 - win, 4):
                    for b in (2 * jj, 2 * jj + 1): seq.append((b, T, ("x", 0, step, b), ("w", step, T)))
                marks[len(seq) - 1] = (T, jj)
        last = {}
        for n, (_, _, x, w) in enumerate(seq): last[x] = n; last[w] = n
        loc = {("x0", b): X + 4 * b for b in range(4)}; loc.update({("w0", T): W[1] + 4 * T for T in range(5)})
        free = [W[0] + 4 * k for k in range(5)] + [XA]
        order = []
        for _, _, x, w in seq:
            for f in (w, x):
                if f not in loc and f not in order: order.append(f)
        done_at = {}; nrd = 0; waited = 0; pend = []; fill = []
        cnt = [0]; prev = [0]
        def em(t): a(t); cnt[0] += 1
        a(f"v_xor_b32 v{CX+1}, 64, v{CX}\ns_waitcnt lgkmcnt(0)\ns_barrier")
        bar2 = [True]
        def take():
            f = order.pop(0); loc[f] = free.pop(0)
            if bar2 and (f[1] if f[0] == "w" else f[2]) >= 2: em("s_barrier"); bar2.pop()
            p_ = rdw(loc[f], f[2], f[1]) if f[0] == "w" else [rdx(loc[f], f[3], f[2])]
            done_at[f] = nrd + len(p_)
            return p_
        def gap():
            t, at, after = fill[0]
            return max(at - cnt[0], prev[0] + after - cnt[0], 0)
        def put():
            em(fill.pop(0)[0]); prev[0] = cnt[0]
        for n, (b, T, x, w) in enumerate(seq):
            while any(f not in loc or (f in done_at and done_at[f] > nrd) for f in (x, w)):
                if not pend: pend = take()
                em(pend.pop(0)); nrd += 1
            need = max(done_at.get(x, 0), done_at.get(w, 0))
            if need > waited:
                waited = max(need, nrd - opt("tw", 6)); em(f"s_waitcnt lgkmcnt({nrd - waited})")
            em(mf(b, T, loc[x], loc[w], qk))
            if n in marks: fill += [(t, cnt[0] + 8, after) for t, after in epi(*marks[n])]
            for f in (x, w):
                if last[f] == n: free.append(loc[f])
            if not pend and order and free: pend = take()
            if pend: em(pend.pop(0)); nrd += 1
            for _ in range(nf):
                if fill and gap() == 0: put()
        a(st(3))
        while fill:
            g_ = gap()
            if g_: a(f"s_nop {g_ - 1}"); cnt[0] += g_
            put()

    EA, EB = 167, 151
    def cv(d, r): return [f"v_cvt_pk_bf16_f32 v{d}, v{r}, v{r+1}", f"v_cvt_pk_bf16_f32 v{d+1}, v{r+2}, v{r+3}"]
    def epi_qk(ph, jj=0):
        if ph < 0:
            return f"""s_mov_b32 s35, {HG}
            s_movk_i32 s38, 2560
            s_cmp_eq_u32 s22, 0
            s_cselect_b32 s35, {HQ}, s35
            s_cselect_b32 s27, {Q_OFF}, {KV_OFF}
            s_cselect_b32 s38, 1280, s38
            s_lshl_b32 s26, s20, 1
            s_add_u32 s26, s26, s37
            s_lshl_b32 s26, s26, 2
            s_mul_i32 s26, s26, s35
            s_add_u32 s26, s26, s27
            s_lshl_b32 s23, s21, 1
            s_add_u32 s23, s23, s36
            s_lshl_b32 s23, s23, 1
            s_mul_i32 s23, s23, s38
            s_add_u32 s26, s26, s23
            s_add_u32 s27, s26, s38
            v_lshrrev_b32 v{EA}, 4, v{L}
            v_mul_lo_u32 v{EA}, v{EA}, s35
            v_and_b32 v{TT}, 15, v{L}
            v_lshl_add_u32 v{EA}, v{TT}, 4, v{EA}
            v_lshlrev_b32 v{EB}, 4, v{L}
            s_add_u32 s44, s26, s35
            s_add_u32 s45, s27, s35
            s_add_u32 s46, s44, s35
            s_add_u32 s47, s45, s35
            s_add_u32 s32, s46, s35
            s_add_u32 s33, s47, s35""".split("\n")
        T = ph
        r0, r1 = acc(2 * jj, T), acc(2 * jj + 1, T)
        o = [(t, 0) for t in cv(r0, r0) + cv(r0 + 2, r1)]
        if T < 4:
            o += [(f"v_permlane16_swap_b32 v{r0}, v{r0+2}", 1), (f"v_permlane16_swap_b32 v{r0+1}, v{r0+3}", 0)]
            o.append((f"buffer_store_dwordx4 {vr(r0,4)}, v{EB}, s[28:31], s{(26, 44, 46, 32)[T] + jj} offen sc1", 0))
        else:
            o.append((f"buffer_store_dwordx4 {vr(r0,4)}, v{EA}, s[28:31], s{26 + jj} offen offset:1024 sc1", 0))
        return o
    def epi_v(ph, jj=0):
        if ph < 0:
            return f"""s_lshl_b32 s26, s20, 1
            s_add_u32 s26, s26, s37
            s_mul_i32 s26, s26, {4*HG}
            s_lshl_b32 s23, s21, 1
            s_add_u32 s23, s23, s36
            s_mul_i32 s23, s23, 5120
            s_add_u32 s26, s26, s23
            s_add_u32 s26, s26, {KV_OFF + 1280}
            s_add_u32 s44, s26, {HG}
            s_add_u32 s45, s26, {2*HG}
            s_add_u32 s46, s26, {3*HG}
            s_mov_b32 s35, {HG}
            v_lshrrev_b32 v{EA}, 5, v{L}
            v_mul_u32_u24 v{EA}, 640, v{EA}
            v_bfe_u32 v{TT}, v{L}, 4, 1
            v_lshl_add_u32 v{EB}, v{TT}, 6, v{EA}
            v_mul_u32_u24 v{TT}, 384, v{TT}
            v_add_u32 v{EA}, v{EA}, v{TT}
            v_and_b32 v{TT}, 15, v{L}
            v_lshl_add_u32 v{EA}, v{TT}, 4, v{EA}
            v_and_b32 v{TT}, 3, v{L}
            v_lshl_add_u32 v{EB}, v{TT}, 4, v{EB}
            v_bfe_u32 v{TT}, v{L}, 2, 2
            v_mul_lo_u32 v{TT}, v{TT}, s35
            v_add_u32 v{EB}, v{EB}, v{TT}""".split("\n")
        T = ph
        r0, r1 = acc(2 * jj, T), acc(2 * jj + 1, T)
        o = [(t, 0) for t in cv(r0, r0) + cv(r0 + 2, r1)]
        if T < 4: o.append((f"buffer_store_dwordx4 {vr(r0,4)}, v{EA}, s[28:31], s{(26, 44, 45, 46)[T]} offen offset:{2560 * jj} sc1", 0))
        else: o.append((f"buffer_store_dwordx4 {vr(r0,4)}, v{EB}, s[28:31], s26 offen offset:{2560 * jj + 256} sc1", 0))
        return o

    for qk, lab in ((True, "QK"), (False, "V")):
        a(f"P1_PRE_{lab}:")
        for f in (epi_qk if qk else epi_v)(-1): a(f)
        SEP = opt("sep", 0)
        if SEP and not qk: a("s_cmp_eq_u32 s22, 3\ns_cbranch_scc1 P1_LOOP_D")
        a(ALN2)
        a(f"P1_LOOP_{lab}:")
        group(0, qk, patch=not SEP)
        if STAMP: a(f"s_cmp_lg_u32 s40, 0\ns_cbranch_scc1 P1_ST_{lab}\n{st(2)}\nP1_ST_{lab}:\ns_cmp_lg_u32 s40, 5\ns_cbranch_scc1 P1_SU_{lab}\n{st(1)}\nP1_SU_{lab}:")
        group(1, qk, patch=not SEP)
        a(f"s_cmp_lt_u32 s40, s43\ns_cbranch_scc1 P1_LOOP_{lab}")
        if not qk: a("s_cmp_eq_u32 s22, 3\ns_cbranch_scc1 P1_EPI_DFT")
        if qk and opt("qs", 1):
            def epi_q(T, jj):
                r0, r1 = acc(2 * jj, T), acc(2 * jj + 1, T)
                return [(f"v_mul_f32 v{r+q}, s39, v{r+q}", 0) for r in (r0, r1) for q in range(4)] + epi_qk(T, jj)
            a(f"s_cmp_lg_u32 s22, 0\ns_cbranch_scc1 P1_TAIL_K\ns_mov_b32 s39, {QSCALE:#x}")
            tail(True, epi_q, opt("qwin", 2), opt("qnf", 4))
            a("s_branch P1_DONE\nP1_TAIL_K:")
        a("s_cmp_eq_u32 s12, 1\ns_cselect_b32 s30, 0, s30")
        tail(qk, epi_qk if qk else epi_v)
        a(f"s_cmp_eq_u32 s12, 0\ns_cbranch_scc1 P1_DONE\ns_mov_b32 s30, {WS_USED}\nv_mov_b32 v88, {LFB + 56}\nv_mov_b32 v89, 1")
        ladd(a, 88, 89, 0)
        a(f"s_mov_b32 s34, 1\ns_branch ATT\nNU_{lab}:")
        for T in range(5):
            for jj in range(2): a((epi_qk if qk else epi_v)(T, jj)[-1][0])
        a("s_branch ATT_SIG")
    if SEP:
        a("P1_LOOP_D:"); group(0, False); group(1, False)
        a("s_cmp_lt_u32 s40, s43\ns_cbranch_scc1 P1_LOOP_D")
    a("P1_EPI_DFT:")
    group(0, False, reads=False)
    TAU, TAU0, E0 = 80, 81, 140
    a(f"""
    {st(3)}
    s_cmp_lt_u32 s20, 2
    s_cselect_b32 s38, 1.0, -1.0
    v_mov_b32 v{TAU}, s38
    v_cndmask_b32 v{TAU0}, v{TAU}, 1.0, s[24:25]
    s_lshl_b32 s26, s20, 1
    s_add_u32 s26, s26, s37
    s_mul_i32 s26, s26, 80
    v_and_b32 v88, 15, v{L}
    v_add_u32 v{E0}, s26, v88
    v_add_u32 v{E0+1}, 20, v{E0}
    v_add_u32 v{E0+2}, 40, v{E0}
    v_add_u32 v{E0+3}, 60, v{E0}
    v_and_b32 v89, 12, v{L}
    v_lshl_add_u32 v{E0+4}, v89, 2, v{E0}
    v_add_u32 v{E0+4}, 16, v{E0+4}
    s_lshl_b32 s23, s21, 1
    s_add_u32 s23, s23, s36
    s_cmp_lg_u32 s23, 0
    s_cbranch_scc1 P1_EPI_DFT2
    s_mov_b64 exec, 0xffff
    s_mov_b32 s27, {X512_OFF}
    """)
    for T in range(5):
        a(f"v_fma_f32 v{96+T}, v{acc(3,T)}, v{TAU0 if T == 0 else TAU}, v{acc(1,T)}")
        a(f"v_lshlrev_b32 v{104+T}, 2, v{E0+T}\nv_mov_b32 v{acc(1,T)}, 0\nv_mov_b32 v{acc(3,T)}, 0")
        a(f"buffer_store_dword v{96+T}, v{104+T}, s[28:31], s27 offen sc1")
    a(f"""
    s_mov_b64 exec, -1
P1_EPI_DFT2:
    s_lshl_b32 s26, s23, 9
    s_add_u32 s26, s26, {FE_OFF}
    s_mov_b32 s27, {FO_DELTA}
    v_bfe_u32 v88, v{L}, 4, 1
    v_mul_lo_u32 v88, v88, s27
    v_lshrrev_b32 v89, 5, v{L}
    v_lshl_add_u32 v88, v89, 8, v88
    """)
    for T in range(5):
        tau = TAU0 if T == 0 else TAU
        a0, a1, a2, a3 = (acc(b, T) for b in range(4))
        for q in range(4):
            a(f"v_fma_f32 v{a0+q}, v{a1+q}, v{tau}, v{a0+q}\nv_fma_f32 v{a3+q}, v{a2+q}, v{tau}, v{a3+q}")
        for q in range(4):
            a(f"v_add_f32 v{a1+q}, v{a0+q}, v{a3+q}\nv_sub_f32 v{a2+q}, v{a0+q}, v{a3+q}")
        for f in cv(a0, a1) + cv(a0 + 2, a2): a(f)
        a(f"""
        v_lshrrev_b32 v89, 4, v{E0+T}
        v_lshl_add_u32 v89, v89, 14, v88
        v_and_b32 v{E0+T}, 15, v{E0+T}
        v_lshl_add_u32 v{E0+T}, v{E0+T}, 4, v89
        v_permlane16_swap_b32 v{a0}, v{a0+2}
        v_permlane16_swap_b32 v{a0+1}, v{a0+3}
        """)
    a(f"v_mov_b32 v88, {LFB + 56}\nv_mov_b32 v89, 1\ns_mov_b32 s12, {opt('dnu', 1)}")
    ladd(a, 88, 89, 0)
    a("s_mov_b32 s34, 1\ns_branch ATT\nNU_D:")
    for T in range(5): a(f"buffer_store_dwordx4 {vr(4*T,4)}, v{E0+T}, s[28:31], s26 offen sc1")
    a("s_branch ATT_SIG")
    a(f"""
P1_DONE:
    {st(14)}
    s_mov_b32 s34, 0
    v_mov_b32 v84, 1
    v_mov_b32 v85, 1
    v_mov_b32 v86, 1
    v_mov_b32 v87, 1
    v_mov_b32 v88, {LFB + 44}
    v_mov_b32 v89, 0
    s_and_b32 s23, s15, -128
    s_mov_b64 exec, 1
    s_waitcnt vmcnt(0)
    ds_add_rtn_u32 v88, v88, v84
    s_waitcnt lgkmcnt(0)
    v_cmp_eq_u32 vcc, 3, v88
    s_cbranch_vccz P1_NS
    buffer_store_dwordx4 v[84:87], v89, s[28:31], s23 offen sc1
P1_NS:
    s_mov_b64 exec, -1
    s_branch ATT
    """)

def p1_extra(a):
    T0 = 40
    a(f"""
P1_EXTRA:
    s_sub_u32 s61, s16, 8
    """)
    if opt("cwarm", 1):
        a(f"""
        s_cmp_lg_u32 s16, 10
        s_cbranch_scc1 P1_NOCW
        s_lshl_b32 s23, s18, 10
        s_cmp_ge_u32 s23, L_CODE_END - {NAME}_kernel - 1023
        s_cbranch_scc1 P1_NOCW
        s_getpc_b64 s[44:45]
L_PC:
        s_sub_u32 s44, s44, L_PC - {NAME}_kernel
        s_subb_u32 s45, s45, 0
        v_lshl_add_u32 v40, v0, 4, s23
        global_load_dwordx4 v[44:47], v40, s[44:45]
P1_NOCW:
        """)
    a(f"""
    v_lshrrev_b32 v37, 4, v0
    v_and_b32 v38, 15, v0
    v_lshlrev_b32 v39, 4, v0
    v_mov_b32 v36, v0
    s_waitcnt lgkmcnt(0)
    {srd(28, WS_P, WS_USED)}
    {srd(32, DBG_P, 256)}
    s_cmp_lg_u32 s61, 0
    s_cbranch_scc1 P1_EX_A
    v_mov_b32 v1, 0
    v_lshlrev_b32 v2, 2, v0
    v_add_u32 v2, {LFB}, v2
    ds_write_b32 v2, v1
    s_waitcnt lgkmcnt(0)
    s_cmp_lt_u32 s2, 248
    s_cbranch_scc1 P1_EX_WAITRDY
    v_mov_b32 v4, 0
    v_mov_b32 v5, 0
    v_mov_b32 v6, 0
    v_mov_b32 v7, 0
    s_lshl_b32 s23, s17, 12
    s_add_u32 s23, s23, {FLG_OFF}
    buffer_store_dwordx4 v[4:7], v39, s[28:31], s23 offen sc1
    buffer_store_dwordx4 v[4:7], v39, s[28:31], s23 offen offset:1024 sc1
    buffer_store_dwordx4 v[4:7], v39, s[28:31], s23 offen offset:2048 sc1
    buffer_store_dwordx4 v[4:7], v39, s[28:31], s23 offen offset:3072 sc1
    s_lshl_b32 s23, s17, 10
    s_add_u32 s23, s23, {FLG_OFF + 32768}
    buffer_store_dwordx4 v[4:7], v39, s[28:31], s23 offen sc1
P1_EX_WAITRDY:
P1_EX_A:
    s_lshl_b32 s23, s2, 2
    s_add_u32 s23, s23, s61
    s_mov_b32 s40, 0
P1_TBL:
    s_lshr_b32 s24, s23, 5
    s_and_b32 s25, s23, 30
    s_and_b32 s26, s24, 1
    s_lshr_b32 s27, s24, 1
    s_lshl_b32 s27, s27, 6
    s_add_u32 s27, s27, s26
    s_and_b32 s26, s23, 1
    s_lshl_b32 s26, s26, 5
    s_add_u32 s27, s27, s26
    v_lshl_add_u32 v{T0}, v38, 1, s27
    s_lshl_b32 s25, s25, 4
    v_lshl_add_u32 v{T0+1}, v37, 3, s25
    v_mul_u32_u24 v{T0+1}, v{T0}, v{T0+1}
    v_and_b32 v{T0+1}, 0x7ff, v{T0+1}
    v_cvt_f32_u32 v{T0}, v{T0}
    v_cvt_f32_u32 v{T0+1}, v{T0+1}
    v_mul_f32 v{T0}, 0x3a000000, v{T0}
    v_mul_f32 v0, 0x3a000000, v{T0+1}
    """)
    for u in range(1, 8): a(f"v_add_f32 v{u}, v{u-1}, v{T0}")
    for u in range(1, 8): a(f"v_fract_f32 v{u}, v{u}")
    for u in range(8): a(f"v_cos_f32 v{8+u}, v{u}")
    for u in range(8): a(f"v_sin_f32 v{16+u}, v{u}")
    for j in range(4): a(f"v_cvt_pk_bf16_f32 v{24+j}, v{8+2*j}, v{9+2*j}")
    for j in range(4): a(f"v_cvt_pk_bf16_f32 v{28+j}, v{16+2*j}, v{17+2*j}")
    NB0 = opt("tblbar", 2)
    a(f"""
    s_cmp_lg_u32 s40, 0
    s_cbranch_scc1 P1_TBL_ST
    s_barrier
    {st(1, True)}
    s_cmp_lg_u32 s61, 0
    s_cbranch_scc1 P1_EX_NR
    s_cmp_lt_u32 s2, 248
    s_cbranch_scc1 P1_EX_NR
    v_mov_b32 v32, 1
    v_mov_b32 v33, 0
    s_lshl_b32 s24, s17, 2
    s_waitcnt vmcnt(0)
    s_mov_b64 exec, 1
    buffer_store_dword v32, v33, s[32:35], s24 offen sc1
    s_mov_b64 exec, -1
P1_EX_NR:
    """ + "".join(f"s_barrier\n{st(1 + b_, True)}\n" for b_ in range(1, NB0)) + f"""
    s_mov_b32 s40, 1
P1_TBL_ST:
    s_lshl_b32 s24, s23, 11
    s_add_u32 s24, s24, {TB_OFF}
    buffer_store_dwordx4 v[24:27], v39, s[28:31], s24 offen sc1
    buffer_store_dwordx4 v[28:31], v39, s[28:31], s24 offen offset:1024 sc1
    s_add_u32 s23, s23, 1024
    s_cmp_lt_u32 s23, 1056
    s_cbranch_scc1 P1_TBL
    """)
    nb = NB0
    assert nb <= 6
    a("".join(f"s_barrier\n{st(1 + b_, True)}\n" for b_ in range(nb, 6)))
    u = a.uid()
    a(f"""
    v_and_b32 v1, 7, v36
    v_lshlrev_b32 v1, 2, v1
    v_mov_b32 v2, 1
    s_mov_b32 s60, 0
    s_cmp_lg_u32 s61, 0
    s_cbranch_scc1 P1_EX_C
    buffer_load_dword v2, v1, s[32:35], 0 offen sc1
P1_EX_C:
    s_barrier
    {st(7, True)}
    s_barrier
    {st(8, True)}
L_RDY{u}:
    s_waitcnt vmcnt(0)
    v_cmp_eq_u32 vcc, 0, v2
    s_cbranch_vccz P1_EX_B
    s_sleep 1
    buffer_load_dword v2, v1, s[32:35], 0 offen sc1
    s_add_u32 s60, s60, 1
    s_cmp_lt_u32 s60, 0x40000
    s_cbranch_scc1 L_RDY{u}
P1_EX_B:
    s_waitcnt vmcnt(0)
    s_barrier
    {st(9, True)}
    s_barrier
    {st(10, True)}
    s_mov_b32 s34, 0
    """)

def attention(a):
    O = 20; S = [0, 40, 136, 120]; IX = 114; P = 36; P2 = 64; Q1 = 56; Q2 = 60; K2 = 62; K1 = 16; V1 = 68; V2 = [72, 76]; T = 80
    a(f"""
ATT:
    s_cmp_lt_u32 s13, 4
    s_cselect_b32 s40, {opt("o1", 4)}, {opt("y1", 4)}
    s_cselect_b32 s41, {opt("o2", 7)}, {opt("y2", 6)}
    s_movk_i32 s35, 0x10a
    s_bitset1_b32 s35, s40
    s_bitset1_b32 s35, s41
    s_mov_b32 s24, 0xfffff
    s_mov_b32 s25, 0xfffff
    s_mul_i32 s39, s13, 1280
    s_add_u32 s39, s39, {QLDS}
    v_mov_b32 v{Q2+1}, 0
    v_mov_b32 v{K2+1}, 0x3f803f80
    v_add_u32 v{T}, s39, v{AK1}
    v_add_u32 v{T+1}, s39, v{AK2}
    v_mov_b32 v{T+2}, 1
    """)
    NQ = opt("nq", 2)
    OX = [84, O]; QX1 = [100, Q1]; QX2 = [104, Q2]; U = 106; TM = 136; XS = 107520
    if NQ == 2:
        a(f"""
        s_xor_b32 s36, s13, 1
        s_mul_i32 s39, s36, 1280
        s_add_u32 s39, s39, {QLDS}
        v_add_u32 v{U}, s39, v{AK1}
        v_add_u32 v{U+1}, s39, v{AK2}
        v_mov_b32 v{U+2}, v{AK1}
        v_mov_b32 v{U+3}, v{AK2}
        v_mov_b32 v{QX2[0]+1}, 0
        s_mov_b32 s42, {QSCALE:#x}
        s_mov_b32 s43, s42
        s_and_b32 s37, s13, 1
        s_mul_i32 s37, s37, 2560
        v_and_b32 v{U+4}, 0x70, v{VA}
        v_lshrrev_b32 v{U+4}, 2, v{U+4}
        v_add_u32 v{U+4}, {LFB}, v{U+4}
        s_lshl_b32 s23, s13, 12
        s_add_u32 s23, s23, {XS}
        v_add_u32 v{U+5}, s23, v{VA}
        v_xor_b32 v{U+7}, 4, v{PA}
        s_lshl_b32 s23, s36, 12
        s_add_u32 s23, s23, {XS}
        v_add_u32 v{U+6}, s23, v{VA}
        s_lshr_b32 s38, s13, 2
        s_add_u32 s38, s38, 7
        """)
        for r in (AK1, AK2, AV, BK1, BK2, BV): a(f"v_add_u32 v{r}, s37, v{r}")
        for r in range(16): a(f"v_mov_b32 v{OX[0]+r}, 0")
    for r in range(12): a(f"v_mov_b32 v{V1+r}, v{ONES}")
    for r in range(16): a(f"v_mov_b32 v{O+r}, 0")
    for r in range(4): a(f"v_mov_b32 v{P+r}, -1")
    for r in range(8): a(f"v_mov_b32 v{S[3]+8+r}, 0")
    a(f"v_mov_b32 v{IX}, 0xdddddddd")
    def rk1(d): return f"v_mfma_f32_32x32x8_bf16 {vr(d,16)}, {vr(K2,2)}, {vr(Q2,2)}, 0"
    def rk2(d): return f"v_mfma_f32_32x32x16_bf16 {vr(d,16)}, {vr(K1,4)}, {vr(Q1,4)}, {vr(d,16)}"
    def qk1(d): return f"v_mfma_f32_32x32x16_bf16 {vr(d,16)}, {vr(K1,4)}, {vr(Q1,4)}, 0"
    def qk2(d): return f"v_mfma_f32_32x32x8_bf16 {vr(d,16)}, {vr(K2,2)}, {vr(Q2,2)}, {vr(d,16)}"
    def pv(v, p): return f"v_smfmac_f32_32x32x32_bf16 {vr(O,16)}, {vr(v,4)}, {vr(p,8)}, v{IX}"
    def of(t): return (t - 6 if t in (6, 7) else t) * 2560
    def rdk1(t): return f"ds_read_b128 {vr(K1,4)}, v{BK1 if t in (6, 7) else AK1} offset:{of(t)}"
    def rdk2(t): return f"ds_read_b32 v{K2}, v{BK2 if t in (6, 7) else AK2} offset:{of(t)+1024}"
    def rdv(t, v2):
        b = BV if t in (6, 7) else AV
        return f"s_mov_b64 exec, s[24:25]\nds_read_b128 {vr(V1,4)}, v{b} offset:{of(t)+1280}\nds_read_b128 {vr(v2,4)}, v{b} offset:{of(t)+1920}\ns_mov_b64 exec, -1"
    def maxtree(s, m, first):
        if first:
            a(f"v_max3_f32 v{m}, v{s}, v{s+1}, v{s+2}\nv_max3_f32 v{m+1}, v{s+3}, v{s+4}, v{s+5}")
            for j in range(6, 14, 4): a(f"v_max3_f32 v{m}, v{s+j}, v{s+j+1}, v{m}\nv_max3_f32 v{m+1}, v{s+j+2}, v{s+j+3}, v{m+1}")
            a(f"v_max3_f32 v{m}, v{s+14}, v{s+15}, v{m}\nv_max_f32 v{m}, v{m}, v{m+1}")
        else:
            for j in range(0, 16, 2): a(f"v_max3_f32 v{m}, v{s+j}, v{s+j+1}, v{m}")
    def xhalf(m):
        a(f"v_mov_b32 v{m+1}, v{m}\ns_nop 1\nv_permlane32_swap_b32 v{m}, v{m+1}\ns_nop 0\nv_max_f32 v{m}, v{m}, v{m+1}")
    a(f"""
    {st(4)}
    s_barrier
    s_setprio 3
    s_cmp_lg_u32 s34, 1
    s_cbranch_scc1 ATT_NOSIG
    s_cmp_eq_u32 s22, 1
    s_cbranch_scc1 NU_QK
    s_cmp_eq_u32 s22, 2
    s_cbranch_scc1 NU_V
    s_branch NU_D
ATT_SIG:
    """)
    if opt("comb", 1):
        a(f"""
        v_mov_b32 v{T+3}, {LFB + 44}
        s_and_b32 s23, s15, -128
        s_mov_b64 exec, 1
        s_waitcnt vmcnt(0)
        ds_add_rtn_u32 v{T+3}, v{T+3}, v{T+2}
        s_waitcnt lgkmcnt(0)
        v_cmp_eq_u32 vcc, 3, v{T+3}
        s_cbranch_vccz ATT_NOSIG
        buffer_store_dwordx4 {vr(P,4)}, v{O}, s[28:31], s23 offen sc1
        """)
    else:
        a(f"s_waitcnt vmcnt(0)\ns_mov_b64 exec, 1\nbuffer_store_dword v{T+2}, v{O}, s[28:31], s15 offen sc1")
    a(f"""
ATT_NOSIG:
    s_mov_b64 exec, -1
    {st(6)}
    """)
    def e(s, j): return f"v_exp_f32 v{s+j}, v{s+j}"
    def c(s, j): return f"v_cvt_pk_bf16_f32 v{P+j}, v{s+2*j}, v{s+2*j+1}"
    if NQ == 2:
        def xk1(x, d=None): return f"v_mfma_f32_32x32x16_bf16 {vr(S[x if d is None else d],16)}, {vr(K1,4)}, {vr(QX1[x],4)}, 0"
        def xk2(x, d=None): return f"v_mfma_f32_32x32x8_bf16 {vr(S[x if d is None else d],16)}, {vr(K2,2)}, {vr(QX2[x],2)}, {vr(S[x if d is None else d],16)}"
        def xpv(x, v, p): return f"v_smfmac_f32_32x32x32_bf16 {vr(OX[x],16)}, {vr(v,4)}, {vr(p,8)}, v{IX}"
        def scale(x):
            if opt('qs', 1): return
            for j in range(5): a(f"v_lshlrev_b32 v{TM+2*j}, 16, v{QX1[x]+j}\nv_and_b32 v{TM+2*j+1}, 0xffff0000, v{QX1[x]+j}")
            if opt("pkq", 0):
                for j in range(0, 10, 2): a(f"v_pk_mul_f32 {vr(TM+j,2)}, {vr(TM+j,2)}, s[42:43]")
            else:
                for j in range(10): a(f"v_mul_f32 v{TM+j}, s42, v{TM+j}")
            for j in range(5): a(f"v_cvt_pk_bf16_f32 v{QX1[x]+j}, v{TM+2*j}, v{TM+2*j+1}")
        MH = f32bits(-0.5) if opt('qs', 1) else f32bits(-0.5 * (20 ** -0.5) * math.log2(math.e))
        a(f"""
        ds_read_b128 {vr(K1,4)}, v{U+2}
        ds_read_b32 v{K2}, v{U+3} offset:1024
        ds_read_b128 {vr(QX1[0],4)}, v{U}
        ds_read_b32 v{QX2[0]}, v{U+1} offset:1024
        ds_read_b128 {vr(Q1,4)}, v{T}
        ds_read_b32 v{Q2}, v{T+1} offset:1024
        {rdv(0, V2[0])}
        s_waitcnt lgkmcnt(4)
        {xk1(0)}
        {xk2(0)}
        s_waitcnt lgkmcnt(2)
        {xk1(1)}
        {xk2(1)}
        {rdk1(0)}
        {rdk2(0)}
        s_mov_b32 s26, 0
        """)
        scale(0)
        if opt("qs", 1): a("s_nop 5")
        maxtree(S[0], T, True)
        a(f"v_mul_f32 v{T}, {MH:#x}, v{T}\nv_cvt_pk_bf16_f32 v{QX2[0]+1}, v{T}, 0\ns_waitcnt lgkmcnt(0)\n{xk1(0)}\n{xk2(0)}")
        scale(1)
        maxtree(S[1], T, True)
        a(f"""
        v_mul_f32 v{T}, {MH:#x}, v{T}
        v_cvt_pk_bf16_f32 v{Q2+1}, v{T}, 0
        {xk1(1)}
        {rdk1(2)}
        {st(7)}
        {ALN}
ATT_LOOP:
        """)
        for i in range(4):
            for x in (0, 1):
                SP = {0: (4, 8, 12), 1: (5, 8, 13), 2: (4, 7, 11), 3: (5, 9, 13)}[opt('sp', 0)]
                n = 2 * i + x; cur = S[n % 4]; y = 1 - x; t_ = 2 * (i + 1)
                if x == 1: a("s_waitcnt lgkmcnt(0)")
                a(xk2(y, (n + 1) % 4))
                if x == 0: a(rdk2(t_))
                for q in range(SP[0]): a(e(cur, q))
                a(xpv(y, V2[(i + 1) % 2] if x == 0 else V2[i % 2], S[(n - 1) % 4] + 8))
                if x == 0: a("s_waitcnt lgkmcnt(1)")
                if x == 0 and i == 3: a.l[-1] = "    s_waitcnt vmcnt(0) lgkmcnt(1)"
                if x == 1 and i == 1: a(f"ds_write_b32 v{PA}, v{T+2}")
                if x == 1 and i == 3: a(f"ds_read_b32 v{U}, v{U+4}")
                for q in range(SP[0], SP[1]): a(e(cur, q))
                a(xk1(x, (n + 2) % 4))
                if x == 1: a(rdk1(t_ + 2))
                for q in range(SP[1], SP[2]): a(e(cur, q))
                a(xpv(x, V1, cur))
                if x == 1: a(rdv(t_, V2[(i + 1) % 2]))
                for q in range(SP[2], 16): a(e(cur, q))
    a(f"""
    s_add_u32 s26, s26, 1
    s_movk_i32 s27, 0x5000
    s_cmp_eq_u32 s26, 7
    s_cselect_b32 s27, {(0x5000 - 62 * 2560) & 0xffffffff}, s27
    v_add_u32 v{AK1}, 0x5000, v{AK1}
    v_add_u32 v{AK2}, 0x5000, v{AK2}
    v_add_u32 v{AV}, 0x5000, v{AV}
    v_add_u32 v{BK1}, s27, v{BK1}
    v_add_u32 v{BK2}, s27, v{BK2}
    v_add_u32 v{BV}, s27, v{BV}
    v_add_u32 v{T+2}, 1, v{T+2}
    s_bitcmp1_b32 s35, s26
    s_cbranch_scc0 ATT_LOOP
    s_cmp_gt_u32 s26, 3
    s_cbranch_scc1 ATT_EV
    v_add_u32 v{FA}, 8, v{FA}
    s_cmp_eq_u32 s26, 1
    s_cbranch_scc0 ATT_WAIT
    buffer_store_dwordx4 {vr(P,4)}, v{OA1}, s[28:31], s6 offen sc1
    s_mov_b64 exec, 0xffff
    buffer_store_dwordx4 {vr(P,4)}, v{OA2}, s[28:31], s7 offen sc1
    s_mov_b64 exec, -1
ATT_WAIT:
    ds_read_b32 v{T}, v{FA}
    s_waitcnt lgkmcnt(0)
    v_readfirstlane_b32 s23, v{T}
    s_cmp_ge_u32 s23, 4
    s_cbranch_scc1 ATT_LOOP
    s_sleep 1
    s_branch ATT_WAIT
ATT_EV:
    s_setprio 2
    s_cmp_eq_u32 s26, s40
    s_cbranch_scc1 ATT_LOOP
    s_setprio 1
    s_cmp_lt_u32 s26, 8
    s_cbranch_scc1 ATT_LOOP
    s_setprio 3
    {pv(V2[1], S[3]+8)}
    {st(8)}
    """)
    if NQ == 2:
        a(f"""
        s_mov_b32 s27, 0x3e800000
        s_mov_b32 s23, 0x71800000
        s_waitcnt lgkmcnt(3)
        v_cmp_gt_u32 vcc, s38, v{U}
        s_cbranch_vccz ATT_X0
ATT_X1:
        s_sleep 2
        ds_read_b32 v{U}, v{U+4}
        s_waitcnt lgkmcnt(0)
        v_cmp_gt_u32 vcc, s38, v{U}
        s_cbranch_vccnz ATT_X1
ATT_X0:
        """)
        for j in range(3): a(f"ds_write_b128 v{U+5}, {vr(OX[0]+4*j,4)} offset:{1024*j}")
        a(f"ds_write_b64 v{U+5}, {vr(OX[0]+12,2)} offset:3072\nds_write_b32 v{PA}, v{T+2} offset:96\nATT_X2:\nds_read_b32 v{U}, v{U+7} offset:96")
        for j in range(3): a(f"ds_read_b128 {vr(S[0]+4*j,4)}, v{U+6} offset:{1024*j}")
        a(f"ds_read_b64 {vr(S[0]+12,2)}, v{U+6} offset:3072\ns_waitcnt lgkmcnt(0)\nv_cmp_eq_u32 vcc, 0, v{U}\ns_cbranch_vccz ATT_X3\ns_sleep 1\ns_branch ATT_X2\nATT_X3:\ns_nop 1")
        for r in range(0, 14, 2): a(f"v_pk_add_f32 {vr(O+r,2)}, {vr(O+r,2)}, {vr(S[0]+r,2)}")
    else:
        a("s_mov_b32 s27, 0x3e800000\ns_mov_b32 s23, 0x71800000\ns_nop 9")
    a(f"v_rcp_f32 v{T+2}, v{O+12}\nv_add_f32 v{T}, |v{O}|, |v{O+1}|\nv_add_f32 v{T+1}, |v{O+2}|, |v{O+3}|")
    for j in range(4, 12, 2): a(f"v_add_f32 v{T}, |v{O+j}|, v{T}\nv_add_f32 v{T+1}, |v{O+j+1}|, v{T+1}")
    a(f"""
    v_add_f32 v{T}, v{T}, v{O+12}
    v_cmp_le_f32 s[42:43], s27, v{O+12}
    v_add_f32 v{T}, v{T}, v{T+1}
    v_cmp_gt_f32 vcc, s23, v{T}
    s_and_b64 vcc, vcc, s[42:43]
    s_cmp_eq_u64 vcc, -1
    s_cbranch_scc0 ATT_FALLBACK
ATT_FINISH:
    """)
    for j in range(0, 8, 2): a(f"v_pk_mul_f32 {vr(O+j,2)}, {vr(O+j,2)}, {vr(T+2,2)} op_sel_hi:[1,0]")
    for j in range(4): a(f"v_cvt_pk_bf16_f32 v{P+j}, v{O+2*j}, v{O+2*j+1}")
    for j in range(4): a(f"v_min_u32 v{P+j}, -2, v{P+j}")
    a(f"buffer_store_dwordx4 {vr(P,4)}, v{OA1}, s[28:31], s6 offen sc1")
    for j in range(8, 12, 2): a(f"v_pk_mul_f32 {vr(O+j,2)}, {vr(O+j,2)}, {vr(T+2,2)} op_sel_hi:[1,0]")
    for j in range(4, 6): a(f"v_cvt_pk_bf16_f32 v{P2+j-4}, v{O+2*j}, v{O+2*j+1}")
    for j in range(4, 6): a(f"v_min_u32 v{P2+j-4}, -2, v{P2+j-4}")
    a(f"""
    s_nop 1
    v_permlane16_swap_b32 v{P2}, v{P2+2}
    v_permlane16_swap_b32 v{P2+1}, v{P2+3}
    s_mov_b64 exec, 0xffff
    buffer_store_dwordx4 {vr(P2,4)}, v{OA2}, s[28:31], s7 offen sc1
    {st(9)}
    s_cmp_ge_u32 s13, 4
    s_cbranch_scc1 {"L_DONE" if STAMP else "L_END"}
    s_mov_b64 exec, -1
    s_xor_b32 s41, s13, {opt('gx', 2)}
    s_mov_b32 s47, 1
    s_branch P3_GO
    """)
    def gk(): return f"buffer_load_dwordx4 {vr(K1,4)}, v{AK1}, s[28:31], s23 offen sc1\nbuffer_load_dword v{K2}, v{AK2}, s[28:31], s23 offen offset:1024 sc1"
    a(f"""
ATT_FALLBACK:
    s_waitcnt lgkmcnt(0)
    v_mov_b32 v{Q2+1}, 0
    v_mov_b32 v{T}, 0xff800000
    {f's_add_u32 s23, s37, {HS}' if NQ == 2 else f's_mov_b32 s23, {HS}'}
    v_subrev_u32 v{AK1}, s23, v{AK1}
    v_subrev_u32 v{AK2}, s23, v{AK2}
    v_subrev_u32 v{AV}, s23, v{AV}
    s_add_u32 s23, s14, {KV_OFF}
    s_mov_b32 s26, 0
ATT_FB1:
    {gk()}
    s_add_u32 s23, s23, 2560
    s_waitcnt vmcnt(0)
    {qk1(S[0])}
    {qk2(S[0])}
    s_nop 15
    """)
    maxtree(S[0], T, False)
    a("s_add_u32 s26, s26, 1\ns_cmp_lt_u32 s26, 64\ns_cbranch_scc1 ATT_FB1")
    xhalf(T)
    a(f"s_add_u32 s23, s14, {KV_OFF}\ns_mov_b32 s26, 0")
    for r in range(16): a(f"v_mov_b32 v{O+r}, 0")
    a(f"""
ATT_FB2:
    {gk()}
    s_mov_b64 exec, s[24:25]
    buffer_load_dwordx4 {vr(V1,4)}, v{AV}, s[28:31], s23 offen offset:1280 sc1
    buffer_load_dwordx4 {vr(V2[0],4)}, v{AV}, s[28:31], s23 offen offset:1920 sc1
    s_mov_b64 exec, -1
    s_add_u32 s23, s23, 2560
    s_waitcnt vmcnt(0)
    {qk1(S[0])}
    {qk2(S[0])}
    s_nop 15
    """)
    for q in range(16): a(f"v_sub_f32 v{S[0]+q}, v{S[0]+q}, v{T}")
    for q in range(16): a(e(S[0], q))
    a(f"""
    s_nop 1
    {pv(V1, S[0])}
    {pv(V2[0], S[0]+8)}
    s_add_u32 s26, s26, 1
    s_cmp_lt_u32 s26, 64
    s_cbranch_scc1 ATT_FB2
    s_nop 15
    s_nop 3
    v_rcp_f32 v{T+2}, v{O+12}
    s_nop 0
    s_branch ATT_FINISH
    """)

def lwait(a, vaddr, vdat, mask, target, slp=8):
    u = a.uid()
    a(f"""
    s_mov_b64 exec, {mask}
    s_branch L_LWE{u}
L_LW{u}:
    s_sleep {slp}
L_LWE{u}:
    ds_read_b32 v{vdat}, v{vaddr}
    s_waitcnt lgkmcnt(0)
    v_cmp_gt_u32 vcc, {target}, v{vdat}
    s_cbranch_vccnz L_LW{u}
    s_mov_b64 exec, -1
    """)
def ladd(a, vaddr, vone, off):
    a(f"s_mov_b64 exec, 1\nds_add_u32 v{vaddr}, v{vone} offset:{off}\ns_mov_b64 exec, -1")

def helpers(a):
    WA, VG, VZ, SH, HPA, HONE, YFA, FZ, SG, XA5, LF = 112, 117, 118, 119, 120, 121, 122, 123, 124, 125, 126
    ZL = 40; G = 167; VY = 162; T = 132; LT = 127
    a(f"""
HELPER:
    s_mov_b32 s61, s22
    {st(2)}
    {srd(28, WS_P, WS_USED)}
    s_setprio 0
    s_lshr_b32 s20, s18, 2
    s_mul_i32 s26, s20, 160
    s_movk_i32 s23, {1280 - 160}
    """)
    for i in range(5):
        a(f"""
        v_add_u32 v{T}, {64*i}, v0
        v_mul_u32_u24 v{T+1}, 6554, v{T}
        v_lshrrev_b32 v{T+1}, 16, v{T+1}
        v_lshlrev_b32 v{T}, 4, v{T}
        v_mad_u32_u24 v{WA+i}, v{T+1}, s23, v{T}
        """)
    a(f"""
    s_lshl_b32 s21, s17, 3
    s_and_b32 s22, s18, 3
    s_add_u32 s21, s21, s22
    s_lshr_b32 s22, s16, 1
    s_lshl_b32 s22, s22, 2
    s_add_u32 s21, s21, s22
    s_lshl_b32 s21, s21, 1
    s_and_b32 s22, s16, 1
    s_add_u32 s21, s21, s22
    s_lshr_b32 s22, s21, 2
    s_lshl_b32 s22, s22, 1
    s_and_b32 s24, s21, 1
    s_add_u32 s22, s22, s24
    s_lshl_b32 s22, s22, 3
    v_and_b32 v{T}, 7, v0
    v_add_u32 v{T}, s22, v{T}
    s_bitcmp1_b32 s21, 1
    s_cselect_b32 s22, 0x400, 0
    s_cselect_b32 s24, -1, 1
    v_mul_lo_u32 v{T+1}, v{T}, s24
    s_sub_u32 s24, 0x800, s22
    v_sub_u32 v{T+2}, s24, v{T+1}
    v_add_u32 v{T+1}, s22, v{T+1}
    v_and_b32 v{T+3}, 8, v0
    v_cmp_ne_u32 vcc, 0, v{T+3}
    v_cmp_eq_u32 s[42:43], 0, v{T}
    v_lshlrev_b32 v{T+3}, 6, v{T+3}
    v_add_u32 v{T+3}, s22, v{T+3}
    v_cndmask_b32 v{T}, v{T+1}, v{T+2}, vcc
    v_lshrrev_b32 v{T+1}, 4, v0
    v_cndmask_b32 v{T}, v{T}, v{T+3}, s[42:43]
    v_mul_u32_u24 v{VY}, 1280, v{T}
    v_mul_u32_u24 v{T+2}, 40, v{T+1}
    v_add3_u32 v{VY}, v{VY}, v{T+2}, s26
    v_lshlrev_b32 v{VG}, 2, v{T}
    v_sub_u32 v{T+3}, 0x800, v{T}
    v_cmp_lt_u32 vcc, 0x400, v{T}
    v_min_u32 v{T}, v{T}, v{T+3}
    v_and_b32 v{T+3}, 1, v{T}
    v_mul_u32_u24 v{VZ}, {ZP}, v{T+3}
    v_lshrrev_b32 v{T+3}, 1, v{T}
    v_lshl_add_u32 v{VZ}, v{T+3}, 4, v{VZ}
    v_mov_b32 v{T+3}, 0x02020202
    v_cndmask_b32 v{SH}, 0, v{T+3}, vcc
    s_cmp_ge_u32 s20, 4
    s_mov_b32 s24, 0x05040100
    s_cselect_b32 s24, 0x07060302, s24
    s_cselect_b32 s40, -1, 1
    s_cselect_b32 s41, 155, 0
    v_xor_b32 v{SH}, s24, v{SH}
    s_mul_i32 s24, s20, 20
    v_mul_u32_u24 v{T+3}, 5, v{T+1}
    v_add_u32 v{T+3}, s24, v{T+3}
    v_mul_lo_u32 v{T+3}, v{T+3}, s40
    v_add_u32 v{T+3}, s41, v{T+3}
    v_mul_u32_u24 v{T+3}, {2*ZP}, v{T+3}
    v_add_u32 v{VZ}, v{VZ}, v{T+3}
    {p3_addr(0)}
    v_lshlrev_b32 v{HPA}, 2, v0
    v_add_u32 v{HPA}, {LFB}, v{HPA}
    v_mov_b32 v{HONE}, 1
    s_and_b32 s23, s2, 63
    s_lshl_b32 s23, s23, 5
    s_lshr_b32 s24, s2, 6
    s_add_u32 s23, s23, s24
    s_lshl_b32 s23, s23, 2
    s_add_u32 s23, s23, {FLG_OFF + 32768}
    v_mov_b32 v{YFA}, s23
    v_lshrrev_b32 v{T+1}, 5, v0
    v_mul_u32_u24 v{FZ}, {2*ZP}, v{T+1}
    v_and_b32 v{T}, 31, v0
    v_lshl_add_u32 v{FZ}, v{T}, 4, v{FZ}
    v_lshlrev_b32 v{SG}, 31, v0
    v_lshlrev_b32 v{XA5}, 4, v{T+1}
    v_and_b32 v{T}, 15, v0
    v_lshlrev_b32 v{T}, 4, v{T}
    v_lshl_add_u32 v{T}, v{T+1}, 8, v{T}
    v_bfe_u32 v{T+1}, v0, 4, 1
    v_lshl_add_u32 v128, v{T+1}, 14, v{T}
    v_lshl_add_u32 v129, v{T+1}, 11, v{T}
    v_lshlrev_b32 v{LF}, 7, v0
    v_bfe_u32 v{LT}, v0, 1, 2
    v_lshlrev_b32 v{LT}, 13, v{LT}
    v_and_b32 v{T}, 1, v0
    v_lshl_add_u32 v{LT}, v{T}, 7, v{LT}
    s_setprio 3
    s_lshr_b32 s19, s18, 3
    s_lshl_b32 s23, s17, 2
    s_add_u32 s19, s19, s23
    s_and_b32 s62, s18, 7
    s_mul_i32 s21, s19, {HG}
    v_lshlrev_b32 v1, 4, v0
    {st(3)}
    s_lshr_b32 s23, s19, 3
    s_lshl_b32 s23, s23, 13
    s_add_u32 s23, s23, {FLG_OFF}
    v_lshlrev_b32 v2, 7, v0
    v_add_u32 v2, s23, v2
    s_add_u32 s24, s21, {KV_OFF}
    s_lshl_b32 s40, 0x10000, s16
    s_lshl_b32 s41, 1, s16
    s_mul_i32 s22, s16, 10240
    s_add_u32 s26, s24, s22
    s_cmp_lg_u32 s16, 3
    s_cbranch_scc1 H_JA
    s_lshl_b32 s25, s62, 1
    s_lshl_b32 s40, 3, s25
    s_mov_b32 s41, 0
    s_mov_b32 s22, {QLDS}
    s_mul_i32 s26, s19, {HQ}
    s_mul_i32 s25, s62, 10240
    s_add_u32 s26, s26, s25
    s_add_u32 s26, s26, {Q_OFF}
H_JA:
    """)
    def job():
        r = f"s_add_u32 s25, s22, 5120\ns_cmp_ge_u32 s25, {LFB}\ns_cselect_b32 s25, 0, s25\n"
        for n in range(10):
            if n in (0, 3): r += f"s_add_u32 m0, s22, {1024*n}\ns_add_u32 s27, s26, {1024*n}\n"; o = 0
            if n in (5, 8): r += f"s_add_u32 m0, s25, {1024*(n-5)}\ns_add_u32 s27, s26, {1024*n}\n"; o = 0
            r += f"buffer_load_dwordx4 v1, s[28:31], s27 offen offset:{o} sc1 lds\n"; o += 1024
        return r
    if opt("latep", 1):
        a(f"s_mul_i32 s23, s12, 12\ns_cmp_eq_u32 s61, 3\ns_cselect_b32 s23, 12, s23\ns_add_u32 s23, s23, {LFB + 44}\nv_mov_b32 v3, s23")
        lwait(a, 3, 4, 1, 4, 2)
        if opt("lps", 0): a(f"s_sleep {opt('lps', 0)}")
    poll4(a, 2, 4, "s[40:41]")
    a(st(11)); a(job())
    a(f"""
    s_lshl_b32 s40, 0x80000, s16
    s_lshl_b32 s41, 8, s16
    s_add_u32 s22, s16, 3
    s_mul_i32 s22, s22, 10240
    s_add_u32 s26, s24, s22
    s_waitcnt vmcnt(0)
    {st(12)}
    s_barrier
    """)
    poll4(a, 2, 4, "s[40:41]")
    a(job())
    a(f"""
H_JB:
    s_lshl_b32 s41, 0x8880, s16
    s_and_b32 s41, s41, 0xffff
    s_lshl_b32 s40, s41, 16
    s_add_u32 s22, s16, 7
    s_mul_i32 s22, s22, 10240
    s_add_u32 s26, s24, s22
    s_waitcnt vmcnt(0)
    """)
    ladd(a, HPA, HONE, 64)
    a("s_cmp_lg_u32 s16, 0\ns_cbranch_scc1 H_NW")
    lwait(a, HPA, 4, 0xff, 1)
    a("H_NW:")
    poll4(a, 2, 4, "s[40:41]", slp=8)
    a(f"{st(13)}\nH_JC:"); a(job())
    a(f"""
    s_add_u32 s22, s22, 40960
    s_add_u32 s26, s26, 40960
    s_cmp_lt_u32 s22, {HS}
    s_cbranch_scc1 H_JC
    s_waitcnt vmcnt(0)
    {st(4)}
    """)
    ladd(a, HPA, HONE, 72)
    a(f"""
    s_lshr_b32 s22, s16, 1
    s_lshl_b32 s22, s22, 5
    s_add_u32 s22, s22, s18
    s_and_b32 s39, s16, 1
    s_cmp_lt_u32 s22, 48
    s_cbranch_scc1 H_FNET
    s_sub_u32 s24, s22, 48
    s_lshl_b32 s24, s24, 1
    s_add_u32 s24, s24, s39
    s_lshl_b32 s25, s17, 5
    s_add_u32 s24, s24, s25
    """)
    a(f"""
    {srd(32, X_P, 2048*1280)}
    {srd(36, GATE_P, 1280)}
    v_lshrrev_b32 v2, 3, v0
    v_and_b32 v3, 7, v0
    v_lshlrev_b32 v3, 4, v3
    s_movk_i32 s22, 1280
    v_mad_u32_u24 v4, v2, s22, v3
    s_mul_i32 s23, s24, {8*1280}
    """)
    for j in range(10):
        a(f"buffer_load_dwordx4 {vr(24+8*j,4)}, v4, s[32:35], s23 offen offset:{128*j}")
        a(f"buffer_load_dwordx4 {vr(28+8*j,4)}, v3, s[36:39], 0 offen offset:{128*j}")
    a("v_mov_b32 v5, 0\nv_mov_b32 v6, 0\ns_waitcnt vmcnt(0)")
    for j in range(10):
        for q in range(4):
            a(f"v_dot2c_f32_bf16 v{5 + (q & 1)}, v{24+8*j+q}, v{28+8*j+q}")
    a(f"""
    s_nop 2
    v_add_f32 v5, v5, v6
    s_nop 1
    v_add_f32_dpp v5, v5, v5 quad_perm:[1,0,3,2] row_mask:0xf bank_mask:0xf
    s_nop 1
    v_add_f32_dpp v5, v5, v5 quad_perm:[2,3,0,1] row_mask:0xf bank_mask:0xf
    s_nop 1
    v_add_f32_dpp v5, v5, v5 row_half_mirror row_mask:0xf bank_mask:0xf
    v_mul_f32 v5, {f32bits(-math.log2(math.e)):#x}, v5
    v_exp_f32 v5, v5
    v_lshlrev_b32 v2, 2, v2
    v_add_f32 v5, 1.0, v5
    v_rcp_f32 v5, v5
    s_lshl_b32 s23, s24, 5
    s_add_u32 s23, s23, {G_OFF}
    buffer_store_dword v5, v2, s[28:31], s23 offen sc1
    s_branch H_MID
    """)
    C, FB, RX = 0, 16, 80
    a(f"""
H_FNET:
    s_cmp_lt_u32 s22, 44
    s_cbranch_scc1 H_FN_A
    s_sub_u32 s24, s22, 44
    s_lshl_b32 s24, s24, 3
    s_add_u32 s24, s24, s17
    s_cmp_ge_u32 s24, 11
    s_cbranch_scc1 H_MID
    s_mov_b32 s23, 32
    s_branch H_FN_B
H_FN_A:
    s_mul_i32 s23, s22, 5958
    s_lshr_b32 s23, s23, 16
    s_mul_i32 s24, s23, 11
    s_sub_u32 s24, s22, s24
    s_lshl_b32 s23, s23, 3
    s_add_u32 s23, s23, s17
H_FN_B:
    s_and_b32 s25, s23, 1
    s_add_u32 s26, s24, 10
    s_cmp_eq_u32 s24, 10
    s_cselect_b32 s26, 10, s26
    s_cmp_eq_u32 s39, 0
    s_cselect_b32 s26, s24, s26
    s_mul_i32 s32, s26, 52
    s_lshr_b32 s32, s32, 8
    s_lshl_b32 s32, s32, 13
    s_add_u32 s32, s32, {48 * 128}
    s_and_b32 s34, s23, 31
    s_lshl_b32 s34, s34, 8
    s_mov_b64 exec, 0xffff
    v_add_u32 v2, s32, v{LF}
    s_mov_b32 exec_lo, 0xff0000
    v_add_u32 v2, s34, v{LT}
    s_mov_b32 s27, {FLG_OFF}
    """)
    poll4(a, 2, 4, "0xffffff", "s27", slp=8)
    a(st(14))
    a(f"""
    s_lshl_b32 s32, s23, 16
    s_lshl_b32 s27, s39, 10
    s_add_u32 s32, s32, s27
    s_add_u32 s32, s32, {TB_OFF}
    s_mul_i32 s27, s25, {FO_DELTA}
    s_lshl_b32 s33, s26, 15
    s_add_u32 s33, s33, s27
    s_add_u32 s33, s33, {FE_OFF}
    s_lshl_b32 s35, s26, 7
    s_add_u32 s35, s35, {X512_OFF}
    """)
    for g in range(4): a(f"buffer_load_dwordx4 {vr(C+4*g,4)}, v{XA5}, s[28:31], s35 offen offset:{32*g} sc1")
    def fl(j):
        r = FB + 8 * j
        s_ = f"buffer_load_dwordx4 {vr(r,4)}, v128, s[28:31], s33 offen offset:{512*j} sc1\n"
        s_ += f"buffer_load_dwordx4 {vr(r+4,4)}, v129, s[28:31], s32 offen offset:{512*(j%2)} sc1\n"
        if j % 2: s_ += "s_add_u32 s32, s32, 4096\n"
        if j == 7: s_ += "s_add_u32 s33, s33, 4096\n"
        return s_
    def fm(j): return f"v_mfma_f32_32x32x16_bf16 {vr(C,16)}, {vr(FB+8*j,4)}, {vr(FB+8*j+4,4)}, {vr(C,16)}"
    for j in range(8): a(fl(j))
    a(f"""
    s_cmp_eq_u32 s25, s39
    s_cselect_b32 s36, 1.0, 0
    v_or_b32 v160, s36, v{SG}
    s_waitcnt vmcnt(16)
    """)
    for r in range(0, 16, 2): a(f"v_pk_mul_f32 {vr(C+r,2)}, {vr(C+r,2)}, v[160:161] op_sel_hi:[1,0]")
    a(f"s_setprio {opt('fp', 2)}\ns_mov_b32 s38, 0\nH_FN_LOOP:")
    for j in range(8):
        a("s_waitcnt vmcnt(14)"); a(fm(j)); a(fl(j))
    a("s_add_u32 s38, s38, 1\ns_cmp_lt_u32 s38, 3\ns_cbranch_scc1 H_FN_LOOP")
    for j in range(8):
        a(f"s_waitcnt vmcnt({14-2*j})"); a(fm(j))
    a("s_setprio 3")
    lwait(a, HPA, T + 1, 0xff, 2)
    a(f"""
    s_lshl_b32 s27, s16, 11
    s_add_u32 s27, s27, {WOL}
    v_add_u32 v{T}, s27, v{VA}
    s_xor_b32 s27, s16, 1
    s_lshl_b32 s36, s27, 11
    s_add_u32 s36, s36, {WOL}
    v_add_u32 v{T+1}, s36, v{VA}
    s_lshl_b32 s27, s27, 2
    s_add_u32 s27, s27, {LFB + 128}
    v_mov_b32 v{T+2}, s27
    v_xor_b32 v{T+3}, 4, v{T+2}
    s_mul_i32 s34, s24, {16*ZP}
    s_mul_i32 s27, s25, {ZP}
    s_add_u32 s34, s34, s27
    s_lshr_b32 s27, s23, 1
    s_lshl_b32 s27, s27, 9
    s_add_u32 s34, s34, s27
    s_mul_i32 s27, s39, {8*ZP}
    s_add_u32 s34, s34, s27
    s_add_u32 s34, s34, {Y_OFF}
    s_add_u32 s35, s34, {4*ZP}
    s_cmp_eq_u32 s39, 0
    s_cbranch_scc1 H_FX0
    s_cmp_eq_u32 s26, 10
    s_cselect_b32 s44, -1, 0
    s_mov_b32 s45, 0
    v_cndmask_b32 v{C}, v{C}, 0, s[44:45]
    ds_write_b128 v{T}, {vr(C,4)}
    ds_write_b128 v{T}, {vr(C+4,4)} offset:1024
    s_branch H_FX1
H_FX0:
    ds_write_b128 v{T}, {vr(C+8,4)}
    ds_write_b128 v{T}, {vr(C+12,4)} offset:1024
H_FX1:
    ds_write_b32 v{T+3}, v{HONE}
H_FX2:
    ds_read_b32 v{T+4}, v{T+2}
    ds_read_b128 {vr(RX,4)}, v{T+1}
    ds_read_b128 {vr(RX+4,4)}, v{T+1} offset:1024
    s_waitcnt lgkmcnt(0)
    v_cmp_eq_u32 vcc, 0, v{T+4}
    s_cbranch_vccz H_FX3
    s_sleep 4
    s_branch H_FX2
H_FX3:
    s_cmp_eq_u32 s39, 0
    s_cbranch_scc1 H_FX4
    """)
    for r in range(0, 8, 2): a(f"v_pk_add_f32 {vr(16+r,2)}, {vr(RX+r,2)}, {vr(C+8+r,2)}\nv_pk_add_f32 {vr(24+r,2)}, {vr(RX+r,2)}, {vr(C+8+r,2)} neg_lo:[0,1] neg_hi:[0,1]")
    a("s_branch H_FX5\nH_FX4:")
    for r in range(0, 8, 2): a(f"v_pk_add_f32 {vr(16+r,2)}, {vr(C+r,2)}, {vr(RX+r,2)}\nv_pk_add_f32 {vr(24+r,2)}, {vr(C+r,2)}, {vr(RX+r,2)} neg_lo:[0,1] neg_hi:[0,1]")
    a("H_FX5:")
    for r in range(8): a(f"v_cvt_pk_bf16_f32 v{16+r}, v{16+r}, v{24+r}")
    a(f"buffer_store_dwordx4 v[16:19], v{FZ}, s[28:31], s34 offen sc1\nbuffer_store_dwordx4 v[20:23], v{FZ}, s[28:31], s35 offen sc1")
    a(f"""
H_MID:
    s_setprio 3
    s_lshl_b32 s19, s17, 2
    s_and_b32 s20, s18, 3
    s_add_u32 s19, s19, s20
    s_lshr_b32 s20, s18, 2
    {srd(32, WO_P, 640*1280)}
    {srd(36, OUT_P, 2621440)}
    s_mul_i32 s26, s20, 160
    s_mul_i32 s27, s16, {160*1280}
    s_add_u32 s27, s27, s26
    s_movk_i32 s23, {1280 - 160}
    """)
    a(f"""
    s_add_u32 s25, s16, 1
    s_and_b32 s25, s25, 3
    s_mul_i32 s22, s25, 25600
    s_add_u32 s22, s22, {WOL}
    s_add_u32 s25, s25, 3
    s_waitcnt vmcnt(0)
    {st(5)}
    """)
    lwait(a, HPA, T + 1, 0xff, 3)
    a(f"""s_mov_b64 exec, 1
    ds_add_rtn_u32 v{T+1}, v{HPA}, v{HONE} offset:48
    s_waitcnt lgkmcnt(0)
    v_cmp_eq_u32 vcc, 3, v{T+1}
    s_cbranch_vccz H_NOY
    buffer_store_dword v{HONE}, v{YFA}, s[28:31], 0 offen sc1
H_NOY:
    s_mov_b64 exec, -1""")
    lwait(a, HPA, T + 1, 0xff, "s25")
    a(f"s_cmp_lg_u32 s16, 3\ns_cbranch_scc1 H_NX\nv_add_u32 v{T}, 48, v{HPA}")
    lwait(a, T, T + 1, 1, 4)
    a("H_NX:")
    a(f"{st(6)}\ns_mov_b32 s25, 0\nH_WO:")
    for i in range(5):
        a(f"s_add_u32 m0, s22, {1024*i}\ns_nop 0\nbuffer_load_dwordx4 v{WA+i}, s[32:35], s27 offen lds")
    a(f"""
    s_add_u32 s22, s22, 5120
    s_add_u32 s27, s27, {32*1280}
    s_add_u32 s25, s25, 1
    s_cmp_lt_u32 s25, 5
    s_cbranch_scc1 H_WO
    s_cmp_lg_u32 s16, 3
    s_cbranch_scc1 H_YW
    """)
    lwait(a, HPA, T + 1, 0xff, opt("ypr", 5), 16)
    a(f"s_mov_b32 s27, {FLG_OFF + 32768}")
    poll4(a, LF, 4, "-1", "s27", slp=opt("ys", 16))
    ladd(a, HPA, HONE, 40)
    a(f"H_YW:\nv_add_u32 v{T}, 40, v{HPA}")
    lwait(a, T, T + 1, 1, 1, 16)
    a("s_waitcnt vmcnt(0)")
    a(f"v_mov_b32 v{T}, 2")
    ladd(a, HPA, T, 32)
    a(f"{st(7)}\ns_mov_b32 s26, {Y_OFF}\ns_mov_b32 s27, {G_OFF}\nbuffer_load_dword v{G}, v{VG}, s[28:31], s27 offen sc1")
    for j in range(6):
        a(f"buffer_load_dwordx4 {vr(ZL+4*j,4)}, v{VZ}, s[28:31], s26 offen sc1\ns_add_u32 s26, s26, {2*ZP}")
    BF, OFR, ACC, YG = 0, 100, 120, 140
    VY2, G2 = 162, 167
    a(f"""
    s_waitcnt vmcnt(0)
    s_cmp_ge_u32 s20, 4
    s_cbranch_scc1 H_DESC
    """)
    for k in range(10): a(f"v_perm_b32 v{YG+10+k}, v{ZL+2*k+1}, v{ZL+2*k}, v{SH}")
    a("s_branch H_UNP\nH_DESC:")
    for k in range(10): a(f"v_perm_b32 v{YG+10+k}, v{ZL+19-2*k}, v{ZL+20-2*k}, v{SH}")
    a("H_UNP:")
    lwait(a, HPA, 8, 0xf, 8)
    a(f"""
    {st(8)}
    s_mov_b32 s41, s16
    s_mov_b32 s47, 0
P3_GO:
    s_setprio {opt('p3o', 0)}
    s_lshl_b32 s22, s17, 3
    s_and_b32 s23, s18, 3
    s_add_u32 s22, s22, s23
    s_lshl_b32 s22, s22, 1
    s_add_u32 s22, s22, s47
    s_mul_i32 s22, s22, 20480
    s_add_u32 s22, s22, {OF_OFF}
    s_lshl_b32 s44, s41, 12
    s_add_u32 s44, s44, s22
    s_lshl_b32 s45, s41, 10
    s_add_u32 s45, s45, s22
    s_add_u32 s45, s45, 16384
    s_lshl_b32 s46, s47, 2
    s_add_u32 s40, s46, {LFB + 80}
    s_add_u32 s46, s46, s41
    s_mul_i32 s46, s46, 5120
    s_add_u32 s46, s46, {WOL}
    s_mov_b32 s26, 0
    s_mov_b32 s42, 0
    v_mov_b32 v{CM}, {LFB + 32}
    """)
    lwait(a, CM, CT, 1, 8)
    a("P3_TRY:")
    for k in range(4):
        a(f"buffer_load_dwordx4 {vr(OFR+4*k,4)}, v{VA}, s[28:31], s44 offen offset:{1024*k} sc1")
    a(f"buffer_load_dwordx2 {vr(OFR+16,2)}, v{VT}, s[28:31], s45 offen sc1\nbuffer_load_dwordx2 {vr(OFR+18,2)}, v{VT}, s[28:31], s45 offen offset:128 sc1")
    a(f"""
    s_cmp_lg_u32 s26, 0
    s_cbranch_scc1 P3_CHK
    s_add_u32 s23, s41, 1
    s_and_b32 s23, s23, 3
    s_mul_i32 s23, s23, 25600
    s_add_u32 s23, s23, {WOL}
    v_add_u32 v{CM}, s23, v{BMM}
    v_add_u32 v{CT}, s23, v{BMT}
    """)
    for n in range(25):
        k, t = divmod(n, 5); d = BF + 4 * n
        bb, o, dj = (CM, k * 6400 + t * 8, 1280) if k < 4 else (CT, t * 8, 3200)
        a(f"ds_read_b64_tr_b16 {vr(d,2)}, v{bb} offset:{o}\nds_read_b64_tr_b16 {vr(d+2,2)}, v{bb} offset:{o+dj}")
    a(f"v_mov_b32 v{BMM}, {LFB + 36}\nv_mov_b32 v{BMT}, 1\ns_waitcnt lgkmcnt(0)")
    ladd(a, BMM, BMT, 0)
    b = OFR
    def mfs(k): return "\n".join(f"v_mfma_f32_16x16x32_bf16 {vr(ACC+4*t,4)}, {vr(BF+4*(5*k+t),4)}, {vr(OFR+4*k,4)}, {vr(ACC+4*t,4) if k else 0}" for t in range(5))
    if opt("spec", 1):
        a("P3_CHK:\ns_add_u32 s26, s26, 1\ns_mov_b32 s43, -1")
        for k in range(5):
            r = b + 4 * k
            a(f"""P3_C{k}:
            s_waitcnt vmcnt({max(0, 5 - k) if k < 4 else 0})
            v_max3_u32 v{CM}, v{r}, v{r+1}, v{r+2}
            v_max3_u32 v{CM}, v{r+3}, v{CM}, 1
            v_cmp_eq_u32 vcc, s43, v{CM}
            s_cbranch_vccnz P3_B{k}
            {mfs(k)}""")
        a(f"{'' if opt('fst', 0) else st(11)}\ns_branch P3_OK")
        for k in range(5):
            a(f"P3_B{k}:\ns_sleep {opt('p3s', 4)}")
            for kk in range(k, 4):
                a(f"buffer_load_dwordx4 {vr(OFR+4*kk,4)}, v{VA}, s[28:31], s44 offen offset:{1024*kk} sc1")
            a(f"buffer_load_dwordx2 {vr(OFR+16,2)}, v{VT}, s[28:31], s45 offen sc1\nbuffer_load_dwordx2 {vr(OFR+18,2)}, v{VT}, s[28:31], s45 offen offset:128 sc1")
            a(f"s_add_u32 s26, s26, 1\ns_cmp_lt_u32 s26, 0x40000\ns_cselect_b32 s43, -1, 0\ns_branch P3_C{k}")
        a("P3_OK:")
    else:
        a(f"P3_CHK:\ns_add_u32 s26, s26, 1\ns_waitcnt vmcnt(4)\nv_max3_u32 v{CM}, v{b}, v{b+1}, v{b+2}\nv_max3_u32 v{CT}, v{b+3}, v{b+4}, v{b+5}\nv_max3_u32 v{CM}, v{b+6}, v{b+7}, v{CM}\ns_waitcnt vmcnt(2)")
        a(f"v_max3_u32 v{CT}, v{b+8}, v{b+9}, v{CT}\nv_max3_u32 v{CM}, v{b+10}, v{b+11}, v{CM}\nv_max3_u32 v{CT}, v{b+12}, v{b+13}, v{CT}\nv_max3_u32 v{CM}, v{b+14}, v{b+15}, v{CM}\ns_waitcnt vmcnt(0)")
        a(f"""
    v_max3_u32 v{CT}, v{b+16}, v{b+17}, v{CT}
    v_max3_u32 v{CM}, v{b+18}, v{b+19}, v{CM}
    s_cmp_lt_u32 s26, 0x40000
    v_max_u32 v{CM}, v{CM}, v{CT}
    s_cbranch_scc0 P3_OK
    v_cmp_eq_u32 vcc, -1, v{CM}
    s_cbranch_vccz P3_OK
    s_sleep {opt("p3s", 4)}
    s_branch P3_TRY
P3_OK:
    {'' if opt('fst', 0) else st(11)}
    s_setprio {opt('p3p', 0)}
    """)
        for n in range(25):
            k, t = divmod(n, 5)
            a(f"v_mfma_f32_16x16x32_bf16 {vr(ACC+4*t,4)}, {vr(BF+4*n,4)}, {vr(OFR+4*k,4)}, {vr(ACC+4*t,4) if k else 0}")
    a("s_cmp_lg_u32 s42, 0\ns_cbranch_scc1 P3_WR")
    lwait(a, BMM, CT, 1, 8, 2)
    a(f"{str() if opt('fst', 0) else st(12)}\nP3_WR:\nv_add_u32 v{CM}, s46, v{VA}\nv_mov_b32 v{CT}, s40\ns_nop 1")
    for j in range(5): a(f"ds_write_b128 v{CM}, {vr(ACC+4*j,4)} offset:{1024*j}")
    a("s_waitcnt lgkmcnt(0)")
    ladd(a, CT, BMT, 0)
    a(f"""
    s_add_u32 s44, s44, {8*20480}
    s_add_u32 s45, s45, {8*20480}
    s_add_u32 s46, s46, {8*5120}
    s_add_u32 s40, s40, 8
    s_add_u32 s42, s42, 1
    s_cmp_ge_u32 s42, 2
    s_cbranch_scc1 P3_END
    s_cmp_ge_u32 s16, 4
    s_cbranch_scc1 P3_TRY
    """)
    for k in range(10): a(f"v_lshlrev_b32 v{YG+2*k}, 16, v{YG+10+k}\nv_and_b32 v{YG+2*k+1}, 0xffff0000, v{YG+10+k}")
    for k in range(20): a(f"v_mul_f32 v{YG+k}, v{YG+k}, v{G2}")
    a(f"""
    v_sub_f32 v{G2}, 1.0, v{G2}
    s_branch P3_TRY
P3_END:
    {st(10)}
    s_cmp_ge_u32 s16, 4
    s_cbranch_scc1 {"L_DONE" if STAMP else "L_END"}
    s_setprio 3
    s_lshl_b32 s23, s16, 2
    s_add_u32 s23, s23, {LFB + 80}
    v_mov_b32 v{CT}, s23
    s_mul_i32 s23, s16, 20480
    s_add_u32 s23, s23, {WOL}
    v_add_u32 v{CM}, s23, v{VA}
    """)
    lwait(a, CT, BMM, 1, 4, 1)
    a(st(9))
    for j in range(5):
        for g in range(4): a(f"ds_read_b128 {vr(16*j+4*g,4)}, v{CM} offset:{5120*g+1024*j}")
    for j in range(5):
        a(f"s_waitcnt lgkmcnt({min(15, 16-4*j)})")
        for r in (0, 2): a(f"v_pk_add_f32 {vr(16*j+r,2)}, {vr(16*j+r,2)}, {vr(16*j+4+r,2)}\nv_pk_add_f32 {vr(16*j+8+r,2)}, {vr(16*j+8+r,2)}, {vr(16*j+12+r,2)}")
        for r in (0, 2): a(f"v_pk_add_f32 {vr(16*j+r,2)}, {vr(16*j+r,2)}, {vr(16*j+8+r,2)}")
        for r in range(4): a(f"v_fmac_f32 v{YG+4*j+r}, v{16*j+r}, v{G2}")
        a(f"v_cvt_pk_bf16_f32 v{84+2*j}, v{YG+4*j}, v{YG+4*j+1}\nv_cvt_pk_bf16_f32 v{84+2*j+1}, v{YG+4*j+2}, v{YG+4*j+3}")
        if j == 1: a(f"buffer_store_dwordx4 v[84:87], v{VY2}, s[36:39], 0 offen" + OSC)
        if j == 3: a(f"buffer_store_dwordx4 v[88:91], v{VY2}, s[36:39], 0 offen offset:16" + OSC)
    a(f"buffer_store_dwordx2 v[92:93], v{VY2}, s[36:39], 0 offen offset:32" + OSC)

DOC = """;
"""
def main():
    a = A()
    top = open("cdna_kernels/" + NAME + ".s.ref").read().split("; Override launch")[0]
    top += "; @launch grid=(256,1,1) block=(768,1,1) lds=163840\n"
    top += DOC
    a('.amdgcn_target "amdgcn-amd-amdhsa--gfx950"\n.text')
    d = gen(a)
    open(sys.argv[1], "w").write(top + a.text() + '.section .rodata,"a"\n.p2align 6\n' + d)
if __name__ == "__main__":
    main()
```

```python
import sys, math, struct

OPT = dict(x.split("=") for x in sys.argv[2:])
def opt(k, d): return int(OPT.get(k, d))
NAME = "gated_mix__spectral_fnet__softmax_full_mha__prompt"
HS = 163840
KV_OFF = 0
HG = HS + opt('pad', 512)
HQ = 81920 + opt('pad', 512)
Q_OFF = 32 * HG
FE_OFF = Q_OFF + 32 * HQ
FO_DELTA = 655360
X512_OFF = FE_OFF + 2 * FO_DELTA
TB_OFF = X512_OFF + 4096
Y_OFF = TB_OFF + 33 * 65536
ZP = 8704
G_OFF = Y_OFF + 88 * 2 * ZP
OF_OFF = G_OFF + 8192
FLG_OFF = OF_OFF + 2621440
WS_USED = FLG_OFF + 320 * 128
XB = 102400
L_Y = 256
QLDS = 71680
RB0, RSL = 11264, 36864
LFB = 158720
WOL = 5120
AK1, AK2, AV, BK1, BK2, BV, OA1, OA2, ONES, PA, FA = range(152, 163)
VA, VT, BMM, BMT, CM, CT = 163, 164, 165, 166, 160, 161
PXB = 107520
def p3_addr(l):
    return f"""v_lshlrev_b32 v{VA}, 4, v{l}
    v_and_b32 v2, 7, v{l}
    v_bfe_u32 v4, v{l}, 3, 1
    v_lshrrev_b32 v3, 4, v{l}
    v_lshlrev_b32 v{VT}, 8, v3
    v_lshl_add_u32 v{VT}, v2, 4, v{VT}
    v_lshl_add_u32 v{VT}, v4, 3, v{VT}
    v_bfe_u32 v2, v{l}, 2, 2
    v_and_b32 v5, 3, v{l}
    v_mul_u32_u24 v5, 40, v5
    v_mul_u32_u24 v4, 40, v3
    v_add3_u32 v4, v4, v2, 16
    v_mul_u32_u24 v4, 160, v4
    v_add_u32 v{BMT}, v4, v5
    v_lshrrev_b32 v4, 1, v3
    v_mul_u32_u24 v4, 20, v4
    v_and_b32 v3, 1, v3
    v_lshl_add_u32 v4, v3, 2, v4
    v_add_u32 v4, v4, v2
    v_mul_u32_u24 v4, 160, v4
    v_add_u32 v{BMM}, v4, v5"""

def f32bits(x): return struct.unpack("<I", struct.pack("<f", x))[0]
QSCALE = f32bits((20 ** -0.5) * math.log2(math.e))
STAMP = opt("stamp", 0)
STAMP_OFF = 1 << 25
NST = 16

class A:
    def __init__(self): self.l = []; self.n = 0
    def __call__(self, s):
        for line in s.split("\n"):
            t = line.strip()
            if not t: continue
            self.l.append(t if t.endswith(":") or t.startswith(".") else "    " + t)
    def uid(self): self.n += 1; return self.n
    def text(self): return "\n".join(self.l) + "\n"

def vr(a, n): return f"v[{a}:{a+n-1}]" if n > 1 else f"v{a}"
def srd(lo, base, size):
    return f"s_mov_b32 s{lo}, s{base}\ns_mov_b32 s{lo+1}, s{base+1}\ns_mov_b32 s{lo+2}, {size}\ns_mov_b32 s{lo+3}, 0x20000"
OSC = " sc1" if opt("outsc1", 0) else ""
ALN = (f".p2align {opt('al', 0)}" if opt("al", 0) else "") + ("\ns_nop 0" if opt("al4", 0) else "")
ALN2 = f".p2align {opt('al2', 0)}" if opt("al2", 0) else ""
P1ST = opt("p1st", 0)
def st(i, p1=False):
    if not STAMP: return ""
    if P1ST and not p1 and 0 < i < 15 and i not in (4, 5): return ""
    if P1ST and not p1 and i in (4, 5): i += 8
    if p1 and not P1ST: return ""
    return f"{'s_memrealtime' if STAMP in (1, 3, 4) else 's_memtime'} s[{64+2*i}:{65+2*i}]"
def fin(): return "s_branch L_DONE" if STAMP else "s_endpgm"

X_P, WD_P, WQKV_P, WO_P, GATE_P, OUT_P, DBG_P, WS_P = 4, 8, 48, 50, 52, 54, 56, 58

def poll(a, vaddr, vdat, mask, target, sreg=60):
    u = a.uid()
    a(f"""
    s_mov_b64 exec, {mask}
    s_mov_b32 s{sreg}, 0
L_POLL{u}:
    buffer_load_dword v{vdat}, v{vaddr}, s[28:31], 0 offen sc1
    s_waitcnt vmcnt(0)
    v_cmp_gt_u32 vcc, {target}, v{vdat}
    s_cbranch_vccz L_POLLD{u}
    {'s_sleep 1' if opt('psleep', 0) else ''}
    s_add_u32 s{sreg}, s{sreg}, 1
    s_cmp_lt_u32 s{sreg}, 0x40000
    s_cbranch_scc1 L_POLL{u}
L_POLLD{u}:
    s_mov_b64 exec, -1
    """)

def poll4(a, vaddr, vdat, mask, soff="0", sreg=60, slp=None):
    u = a.uid()
    a(f"""
    s_mov_b64 exec, {mask}
    s_mov_b32 s{sreg}, 0
    s_branch L_POLLE{u}
L_POLL{u}:
    s_sleep {slp or opt("ps4", 2)}
L_POLLE{u}:
    buffer_load_dwordx4 {vr(vdat,4)}, v{vaddr}, s[28:31], {soff} offen sc1
    s_add_u32 s{sreg}, s{sreg}, 1
    s_waitcnt vmcnt(0)
    v_min3_u32 v{vdat}, v{vdat}, v{vdat+1}, v{vdat+2}
    s_cmp_lt_u32 s{sreg}, 0x40000
    v_min_u32 v{vdat}, v{vdat}, v{vdat+3}
    s_cbranch_scc0 L_POLLD{u}
    v_cmp_eq_u32 vcc, 0, v{vdat}
    s_cbranch_vccnz L_POLL{u}
L_POLLD{u}:
    s_mov_b64 exec, -1
    """)

def gen(a):
    label = NAME + "_kernel"
    a(f".p2align 8\n.globl {label}\n.type {label},@function\n{label}:")
    a(f"""
    s_cmp_ge_u32 s2, 256
    s_cbranch_scc1 L_END
    {st(0) + chr(10) + 's_waitcnt lgkmcnt(0)' if opt("st0first", 0) else ''}
    s_load_dwordx2 s[4:5], s[0:1], 0
    s_load_dwordx8 s[48:55], s[0:1], 48
    s_load_dwordx4 s[8:11], s[0:1], 24
    s_load_dwordx4 s[56:59], s[0:1], 80
    """)
    if STAMP:
        a("\n".join(f"s_mov_b32 s{64+j}, 0" for j in range(2, 2 * NST)) + "\n" + ("" if opt("st0first", 0) else st(0)))
    a(f"""
    v_lshrrev_b32 v1, 6, v0
    v_and_b32 v0, 63, v0
    s_and_b32 s17, s2, 7
    v_readfirstlane_b32 s16, v1
    s_lshr_b32 s18, s2, 3
    s_and_b32 s19, s18, 7
    s_lshr_b32 s22, s18, 3
    s_and_b32 s21, s17, 1
    s_lshl_b32 s23, s19, 1
    s_add_u32 s21, s21, s23
    s_lshr_b32 s20, s17, 1
    s_cmp_ge_u32 s19, {opt("numl", 4)}
    s_cselect_b32 s12, 1, 0
    s_cmp_eq_u32 s22, 0
    s_cselect_b32 s12, 0, s12
    s_cmp_ge_u32 s16, 4
    s_cbranch_scc1 P1_NOTLOADER
    """)
    p1_loader(a)
    a(f"""
P1_NOTLOADER:
    s_lshl_b32 s63, s17, 2
    s_add_u32 s63, s63, s22
    s_mul_i32 s14, s63, {HG}
    s_sub_u32 s13, s16, 4
    s_lshl_b32 s23, s19, 3
    s_add_u32 s23, s23, s13
    s_mul_i32 s23, s23, 40960
    s_add_u32 s23, s23, {OF_OFF}
    s_lshl_b32 s6, s63, 9
    s_add_u32 s6, s6, s23
    s_lshl_b32 s7, s63, 7
    s_add_u32 s7, s7, s23
    s_add_u32 s7, s7, 16384
    s_lshl_b32 s15, s20, 2
    s_add_u32 s15, s15, s22
    s_lshl_b32 s15, s15, 4
    s_add_u32 s15, s15, s21
    s_lshl_b32 s15, s15, 5
    s_add_u32 s15, s15, s13
    s_lshl_b32 s15, s15, 2
    s_add_u32 s15, s15, {FLG_OFF}
    v_and_b32 v1, 31, v0
    v_lshrrev_b32 v2, 5, v0
    v_lshlrev_b32 v{AK1}, 4, v0
    v_lshrrev_b32 v3, 4, v1
    v_lshl_add_u32 v3, v3, 1, v2
    v_and_b32 v4, 15, v0
    v_lshl_add_u32 v3, v4, 2, v3
    v_lshlrev_b32 v{AK2}, 2, v3
    v_mul_u32_u24 v{AV}, 384, v2
    v_lshlrev_b32 v3, 6, v2
    v_cmp_gt_u32 vcc, 16, v1
    s_nop 1
    v_cndmask_b32 v{AV}, v3, v{AV}, vcc
    v_lshl_add_u32 v{AV}, v1, 4, v{AV}
    v_add_u32 v{BK1}, 15360, v{AK1}
    v_add_u32 v{BK2}, 15360, v{AK2}
    v_add_u32 v{BV}, 15360, v{AV}
    v_cmp_eq_u32 vcc, 20, v1
    v_mov_b32 v3, 0x3f803f80
    v_bfe_u32 v{OA2}, v1, 3, 1
    v_cndmask_b32 v{ONES}, 0, v3, vcc
    v_mul_u32_u24 v{OA2}, 20480, v{OA2}
    v_and_b32 v3, 7, v1
    v_lshl_add_u32 v{OA2}, v3, 4, v{OA2}
    v_lshrrev_b32 v3, 4, v0
    v_lshl_add_u32 v{OA1}, v3, 7, v{OA2}
    s_lshl_b32 s23, s13, 2
    s_add_u32 s23, s23, {LFB}
    v_mov_b32 v{PA}, s23
    v_mov_b32 v{FA}, {LFB + 56}
    {p3_addr(0)}
    s_cmp_ge_u32 s16, 8
    s_cbranch_scc1 P1_EXTRA
    """)
    p1_compute(a)
    p1_extra(a)
    attention(a)
    helpers(a)
    a("L_DONE:")
    if STAMP == 4:
        i_, j_ = opt("ai", 0), opt("aj", 0)
        a(f"""s_waitcnt vmcnt(0)
        {st(NST-1)}
        s_waitcnt lgkmcnt(0)
        {f's_cmp_lg_u32 s16, {opt("aw1", 0)}' if opt("aw1", 0) else f's_cmp_ge_u32 s16, {opt("aw", 4)}'}
        s_cbranch_scc1 L_END
        s_and_b32 s60, s2, {opt("am", 31)}
        s_cmp_lg_u32 s60, {opt("av", 5)}
        s_cbranch_scc1 L_END
        s_sub_u32 s60, s{64+2*j_}, s{64+2*i_}
        s_lshl_b32 s60, s60, 2
        s_min_u32 s60, s60, 100000
        {f's_mov_b32 s60, {opt("fix", 0)}' if opt("fix", 0) else ''}
L_AMP:
        s_memrealtime s[44:45]
        s_waitcnt lgkmcnt(0)
        s_sub_u32 s44, s44, s{64 if opt("fix", 0) else 64+2*(NST-1)}
        s_cmp_lt_u32 s44, s60
        s_cbranch_scc1 L_AMP
        """)
    elif STAMP == 3:
        r = f"s_waitcnt vmcnt(0)\n{st(NST-1)}\ns_mov_b64 exec, 1\n{srd(44, DBG_P, 256)}\ns_waitcnt lgkmcnt(0)\nv_mov_b32 v16, 0\n"
        r += "s_not_b32 s60, s64\nv_mov_b32 v0, s60\nbuffer_atomic_umax v0, v16, s[44:47], 0 offen offset:4 sc1\n"
        r += "s_cmp_eq_u32 s16, 0\ns_cbranch_scc1 L_D0\ns_cmp_eq_u32 s16, 4\ns_cbranch_scc0 L_END\n"
        for n, i in enumerate((2, 3, 4, 5, 7, 8, 9)): r += f"v_mov_b32 v{n+1}, s{64+2*i}\nbuffer_atomic_umax v{n+1}, v16, s[44:47], 0 offen offset:{8+4*n} sc1\n"
        r += "s_endpgm\nL_D0:\n"
        for n, i in enumerate((0, 1, 6, 8, 9, 10, 15)): r += f"v_mov_b32 v{n+1}, s{64+2*i}\nbuffer_atomic_umax v{n+1}, v16, s[44:47], 0 offen offset:{36+4*n} sc1\n"
        a(r)
    elif STAMP:
        r = f"s_waitcnt vmcnt(0)\n{st(NST-1)}\ns_mov_b64 exec, 1\ns_add_u32 s44, s{WS_P}, {STAMP_OFF}\ns_addc_u32 s45, s{WS_P+1}, 0\ns_mov_b32 s46, 262144\ns_mov_b32 s47, 0x20000\n"
        r += "s_lshl_b32 s60, s2, 4\ns_add_u32 s60, s60, s16\ns_lshl_b32 s60, s60, 6\ns_waitcnt lgkmcnt(0)\nv_mov_b32 v16, 0\n"
        if opt("xcc", 0): r += "s_getreg_b32 s66, hwreg(HW_REG_XCC_ID)\ns_add_u32 s66, s66, 100\n"
        for i in range(NST): r += f"v_mov_b32 v{i}, s{64+2*i}\n"
        for i in range(4): r += f"buffer_store_dwordx4 v[{4*i}:{4*i+3}], v16, s[44:47], s60 offen offset:{16*i}\n"
        a(r)
    a("L_END:\ns_endpgm\n.fill 256, 4, 0xbf810000\nL_CODE_END:")
    return f""".amdhsa_kernel {label}
  .amdhsa_next_free_vgpr 168
  .amdhsa_next_free_sgpr {100 if STAMP else 64}
  .amdhsa_accum_offset 168
  .amdhsa_group_segment_fixed_size 0
  .amdhsa_kernarg_size 96
  .amdhsa_user_sgpr_count 2
  .amdhsa_user_sgpr_kernarg_segment_ptr 1
  .amdhsa_system_sgpr_workgroup_id_x 1
.end_amdhsa_kernel
"""

def p1_loader(a):
    a(f"""
    s_setprio 3
    """)
    if opt("pf", 0):
        a(f"""
        v_lshlrev_b32 v20, 4, v0
        s_mul_i32 s23, s2, 10240
        s_and_b32 s24, s16, 1
        s_mul_i32 s24, s24, 5120
        s_add_u32 s23, s23, s24
        s_mul_i32 s25, s2, 3
        s_mov_b32 s31, 0x20000
        s_mov_b32 s35, 0x20000
        s_mov_b32 s34, {640*1280}
        s_waitcnt lgkmcnt(0)
        s_mov_b32 s30, {2048*1280}
        s_cmp_lt_u32 s16, 2
        s_cselect_b32 s28, s{X_P}, s{WQKV_P}
        s_cselect_b32 s29, s{X_P+1}, s{WQKV_P+1}
        s_cselect_b32 s30, s30, {640*3840}
        s_cselect_b32 s32, s8, s10
        s_cselect_b32 s33, s9, s11
        buffer_load_dwordx4 v[24:27], v20, s[28:31], s23 offen
        buffer_load_dwordx4 v[28:31], v20, s[28:31], s23 offen offset:1024
        buffer_load_dwordx4 v[32:35], v20, s[28:31], s23 offen offset:2048
        buffer_load_dwordx4 v[36:39], v20, s[28:31], s23 offen offset:3072
        s_add_u32 s23, s23, 4096
        buffer_load_dwordx4 v[40:43], v20, s[28:31], s23 offen
        s_lshr_b32 s24, s24, 11
        s_add_u32 s25, s25, s24
        s_mul_i32 s25, s25, 1280
        s_mov_b32 exec_hi, 0xff
        buffer_load_dwordx4 v[44:47], v20, s[32:35], s25 offen
        s_bitcmp1_b32 s16, 0
        s_cbranch_scc1 P1_PF1
        buffer_load_dwordx4 v[48:51], v20, s[32:35], s25 offen offset:1280
P1_PF1:
        s_mov_b32 exec_hi, -1
        """)
    a(f"""
    v_lshrrev_b32 v2, 3, v0
    v_and_b32 v3, 7, v0
    v_lshrrev_b32 v4, 4, v0
    v_xor_b32 v3, v3, v4
    v_lshlrev_b32 v3, 4, v3
    v_xor_b32 v4, 64, v3
    s_lshl_b32 s23, s21, 5
    s_lshr_b32 s24, s16, 1
    s_lshl_b32 s24, s24, 4
    s_add_u32 s23, s23, s24
    s_cmp_eq_u32 s22, 2
    s_cselect_b32 s25, 4, 0
    v_and_b32 v9, s25, v2
    v_add3_u32 v9, v9, v2, s23
    s_sub_u32 s25, 8, s25
    s_bitcmp1_b32 s16, 0
    s_cselect_b32 s23, -1, 1
    s_cselect_b32 s24, 0x400, 0
    s_mul_i32 s25, s25, s23
    v_mul_lo_u32 v10, v9, s23
    s_sub_u32 s27, 0x800, s24
    v_add_u32 v5, s24, v10
    v_sub_u32 v7, s27, v10
    v_add_u32 v6, s25, v5
    v_subrev_u32 v8, s25, v7
    v_cmp_eq_u32 vcc, 0, v9
    s_add_u32 s24, s24, 0x200
    v_mov_b32 v9, s24
    s_cmp_lg_u32 s22, 2
    v_cndmask_b32 v7, v7, v9, vcc
    s_cbranch_scc1 P1_LD_NV
    v_swap_b32 v6, v7
P1_LD_NV:
    s_movk_i32 s27, 1280
    v_mad_u32_u24 v10, v5, s27, v3
    v_mad_u32_u24 v11, v6, s27, v4
    v_mad_u32_u24 v12, v7, s27, v3
    v_mad_u32_u24 v13, v8, s27, v4
    """)
    EX = opt("early", 1) and opt("stag1", 7) == 7
    if EX:
        a(f"""
        s_lshr_b32 s36, s17, 1
        s_xor_b32 s36, s36, s17
        s_and_b32 s36, s36, 1
        s_xor_b32 s36, s36, 9
        s_lshl_b32 s41, s36, 7
        s_lshl_b32 s44, s16, 12
        s_add_u32 m0, s44, {RB0 + 2 * RSL}
        s_waitcnt lgkmcnt(0)
        {srd(28, X_P, 2048*1280)}
        buffer_load_dwordx4 v10, s[28:31], s41 offen lds
        """)
        for i in range(1, 4):
            a(f"s_add_u32 m0, s44, {RB0 + 2 * RSL + 1024*i}\ns_nop 0\nbuffer_load_dwordx4 v{10+i}, s[28:31], s41 offen lds")
    a(f"""
    s_lshl_b32 s26, s22, 2
    s_add_u32 s26, s26, s20
    s_and_b32 s27, s20, 1
    s_movk_i32 s25, 3840
    s_cmp_eq_u32 s22, 3
    s_cselect_b32 s25, 1280, s25
    s_cselect_b32 s26, s27, s26
    s_mul_i32 s26, s26, 320
    s_lshl_b32 s27, s16, 4
    s_mul_i32 s27, s27, s25
    s_add_u32 s26, s26, s27
    s_sub_u32 s27, s25, 320
    """)
    for i in range(5):
        a(f"""
        v_add_u32 v5, {64*i}, v0
        v_mul_u32_u24 v6, 3277, v5
        v_lshrrev_b32 v6, 16, v6
        v_lshrrev_b32 v7, 2, v6
        v_and_b32 v7, 2, v7
        v_xor_b32 v5, v5, v7
        v_lshl_add_u32 v5, v5, 4, s26
        v_mad_u32_u24 v{14+i}, v6, s27, v5
        """)
    sg = opt("stag1", 7)
    if sg == 1:
        a("s_lshl_b32 s36, s19, 3\ns_lshl_b32 s37, s22, 4\ns_add_u32 s36, s36, s37\ns_add_u32 s36, s36, s17\ns_and_b32 s36, s36, 63\ns_mul_i32 s36, s36, 10\ns_lshr_b32 s36, s36, 6")
    elif sg == 2:
        a("s_add_u32 s36, s19, s22\ns_lshl_b32 s36, s36, 4\ns_add_u32 s36, s36, s17\ns_add_u32 s36, s36, s17\ns_and_b32 s36, s36, 63\ns_mul_i32 s36, s36, 10\ns_lshr_b32 s36, s36, 6")
    elif sg == 3:
        a("s_add_u32 s36, s19, s22\ns_lshl_b32 s36, s36, 5\ns_lshl_b32 s37, s17, 2\ns_add_u32 s36, s36, s37\ns_and_b32 s36, s36, 63\ns_mul_i32 s36, s36, 10\ns_lshr_b32 s36, s36, 6")
    elif sg >= 10:
        nc = sg - 9
        Gn = 5 - nc
        rot = [2 * (nc + k % Gn) for k in range(2 * Gn - 1)]
        rv = sum(v << (4 * k) for k, v in enumerate(rot))
        com = sum((2 * k) << (4 * k) for k in range(nc))
        a(f"""
        s_lshr_b32 s36, s17, 1
        s_xor_b32 s36, s36, s17
        s_and_b32 s36, s36, 1
        s_add_u32 s37, s22, s19
        s_lshr_b32 s46, s17, 2
        s_lshl_b32 s46, s46, {opt("xsh", 1)}
        s_add_u32 s37, s37, s46
        s_mul_i32 s46, s37, {256 // Gn + 1}
        s_lshr_b32 s46, s46, 8
        s_mul_i32 s46, s46, {Gn}
        s_sub_u32 s37, s37, s46
        s_lshl_b32 s37, s37, 2
        s_lshr_b32 s46, {rv:#x}, s37
        s_and_b32 s46, s46, {(1 << (4 * Gn)) - 1:#x}
        s_lshl_b32 s46, s46, {4 * nc}
        s_or_b32 s46, s46, {0x53100000 | com:#x}
        s_mov_b32 s47, 0x97
        s_mul_i32 s37, s36, 0x11111111
        s_xor_b32 s46, s46, s37
        s_xor_b32 s47, s47, s37
        s_and_b32 s36, s46, 15
        """)
    elif sg >= 5:
        tsh = {5: 0, 6: 1, 7: 0, 8: 0, 9: 0}[sg]
        a(f"""
        s_lshr_b32 s36, s17, 1
        s_xor_b32 s36, s36, s17
        s_and_b32 s36, s36, 1
        {'s_min_u32 s37, s22, 2' if sg == 9 else f's_lshr_b32 s37, s22, {tsh}'}
        s_add_u32 s37, s37, s19
        s_lshr_b32 s46, s17, 2
        s_lshl_b32 s46, s46, 1
        s_add_u32 s37, s37, s46
        s_mul_i32 s46, s37, 52
        s_lshr_b32 s46, s46, 8
        s_mul_i32 s46, s46, 5
        s_sub_u32 s37, s37, s46
        s_lshl_b32 s37, s37, 2
        s_mov_b32 s46, 0x42086420
        s_mov_b32 s47, 0x6
        s_lshr_b64 s[46:47], s[46:47], s37
        s_and_b32 s46, s46, 0xfffff
        {'s_or_b32 s47, s46, 0x11111' + chr(10) + 's_lshl_b32 s37, s47, 20' + chr(10) + 's_or_b32 s46, s46, s37' + chr(10) + 's_lshr_b32 s47, s47, 12' if sg == 8 else 's_or_b32 s46, s46, 0x53100000' + chr(10) + 's_mov_b32 s47, 0x97'}
        s_mul_i32 s37, s36, 0x11111111
        s_xor_b32 s46, s46, s37
        s_xor_b32 s47, s47, s37
        """)
        if sg == 7:
            a("s_lshr_b32 s37, s47, 4\ns_and_b32 s37, s37, 15\ns_lshl_b64 s[46:47], s[46:47], 4\ns_or_b32 s46, s46, s37")
        a("s_and_b32 s36, s46, 15")
    else:
        a("s_mov_b32 s36, 0")
    a(f"""
    s_lshl_b32 s38, s16, 12
    s_add_u32 s38, s38, {RB0}
    s_mul_i32 s39, s16, 5120
    s_add_u32 s39, s39, {RB0 + 16384}
    s_mov_b32 s40, 0
    s_mul_i32 s34, s25, 640
    s_lshl_b32 s25, s25, 6
    s_mov_b32 s35, 0x20000
    s_waitcnt lgkmcnt(0)
    {srd(28, X_P, 2048*1280)}
    s_cmp_lt_u32 s20, 2
    s_cselect_b32 s32, s8, s10
    s_cselect_b32 s33, s9, s11
    s_cmp_eq_u32 s22, 3
    s_cselect_b32 s32, s32, s{WQKV_P}
    s_cselect_b32 s33, s33, s{WQKV_P+1}
    {st(1)}
    """)
    if opt("dftdelay", 0):
        a(f"""s_cmp_lg_u32 s22, 3
        s_cbranch_scc1 P1_LD_LOOP
        s_memrealtime s[42:43]
        s_waitcnt lgkmcnt(0)
        s_add_u32 s42, s42, {opt("dftdelay", 0)}
P1_DLY:
        s_memrealtime s[44:45]
        s_waitcnt lgkmcnt(0)
        s_cmp_lt_u32 s44, s42
        s_cbranch_scc1 P1_DLY
        """)
    a(f"""
P1_LD_LOOP:
    s_lshl_b32 s41, s36, 7
    s_mul_i32 s42, s36, s25
    s_add_u32 s43, s40, 2
    s_and_b32 s43, s43, 3
    s_mul_i32 s43, s43, {RSL}
    s_add_u32 s44, s43, s38
    s_add_u32 s45, s43, s39
    """)
    if EX: a("s_cmp_eq_u32 s40, 0\ns_cbranch_scc1 P1_LD_WW")
    for i in range(4):
        a(f"s_add_u32 m0, s44, {1024*i}\ns_nop 0\nbuffer_load_dwordx4 v{10+i}, s[28:31], s41 offen lds")
    a("P1_LD_WW:")
    for i in range(5):
        a(f"s_add_u32 m0, s45, {1024*i}\ns_nop 0\nbuffer_load_dwordx4 v{14+i}, s[32:35], s42 offen lds")
    if opt("noload", 0): a("s_cmp_ge_u32 s40, 3\ns_cselect_b32 s30, 0, s30\ns_cselect_b32 s34, 0, s34")
    a(f"""
    {'s_lshr_b64 s[46:47], s[46:47], 4' + chr(10) + 's_and_b32 s36, s46, 15' if sg >= 5 else 's_add_u32 s36, s36, 1' + chr(10) + 's_cmp_eq_u32 s36, 10' + chr(10) + 's_cselect_b32 s36, 0, s36'}
    s_add_u32 s40, s40, 1
    s_cmp_eq_u32 s40, 1
    s_cbranch_scc1 P1_LD_LOOP
    s_waitcnt vmcnt(9)
    s_barrier
    s_cmp_lt_u32 s40, 10
    s_cbranch_scc1 P1_LD_LOOP
    s_waitcnt vmcnt(0)
    s_barrier
    s_branch HELPER
    """)

def p1_compute(a):
    X = 80; W = [96, 116]; XA = 136; WA = 137; CX = 142; CW = 144; PC = 149; L = 150; TT = 96
    def acc(b, T): return 20 * b + 4 * T
    a(f"""
    s_sub_u32 s61, s16, 4
    s_and_b32 s36, s61, 1
    s_lshr_b32 s37, s61, 1
    v_mov_b32 v{L}, v0
    v_and_b32 v1, 15, v0
    v_lshrrev_b32 v2, 4, v0
    v_lshrrev_b32 v3, 1, v1
    v_xor_b32 v3, v3, v2
    v_lshlrev_b32 v3, 4, v3
    v_lshl_add_u32 v3, v1, 7, v3
    s_lshl_b32 s23, s36, 13
    s_add_u32 s23, s23, {RB0}
    v_add_u32 v{XA}, s23, v3
    v_bfe_u32 v3, v0, 2, 2
    v_lshl_add_u32 v3, v2, 3, v3
    v_mul_u32_u24 v3, 320, v3
    v_add_u32 v3, {RB0 + 16384}, v3
    v_and_b32 v4, 16, v0
    v_lshlrev_b32 v4, 1, v4
    v_and_b32 v5, 3, v0
    s_mul_i32 s23, s37, 160
    v_lshl_add_u32 v6, v5, 3, s23
    """)
    for T in range(4):
        a(f"v_xor_b32 v7, v6, v4\nv_add_u32 v{WA+T}, v7, v3\nv_add_u32 v6, 40, v6")
    a(f"""
    v_mul_u32_u24 v6, 40, v5
    v_add3_u32 v6, v6, s23, 32
    v_xor_b32 v7, v6, v4
    v_add_u32 v{WA+4}, v7, v3
    v_mov_b32 v{PC}, 0xbf803f80
    s_lshl_b32 s26, s22, 2
    s_add_u32 s26, s26, s20
    s_lshl_b32 s26, s26, 1
    s_add_u32 s26, s26, s37
    s_cmp_eq_u32 s26, 28
    s_cselect_b32 s24, 0x10001, 0
    s_mov_b32 s25, s24
    s_cmp_eq_u32 s22, 3
    s_cselect_b32 s43, 10, 8
    s_mov_b32 s40, 0
    s_mov_b32 s42, {2 * RSL}
    """)
    for r in range(96): a(f"v_mov_b32 v{r}, 0")
    for r in range(20): a(f"v_mov_b32 v{W[1]+r}, 0")
    a(f"v_add_u32 v{CX}, s42, v{XA}")
    for T in range(5): a(f"v_add_u32 v{CW+T}, s42, v{WA+T}")
    a(f"s_waitcnt lgkmcnt(0)\n{srd(28, WS_P, WS_USED)}")
    a(f"s_setprio {opt('cp', 2)}\ns_cmp_ge_u32 s22, 2\ns_cbranch_scc1 P1_PRE_V")
    def mf(b, T, x, w, qk):
        d = vr(acc(b, T), 4)
        return f"v_mfma_f32_16x16x32_bf16 {d}, {vr(w,4)}, {vr(x,4)}, {d}" if qk else f"v_mfma_f32_16x16x32_bf16 {d}, {vr(x,4)}, {vr(w,4)}, {d}"
    def rdw(d, T, step): return [f"ds_read_b64_tr_b16 {vr(d+2*j,2)}, v{CW+T} offset:{(step // 2) * RSL + (step % 2) * 10240 + 1280 * j}" for j in range(2)]
    def rdx(d, b, step): return f"ds_read_b128 {vr(d,4)}, v{CX + step % 2} offset:{(step // 2) * RSL + 2048 * b}"
    TO = (1, 2, 3, 4, 0)
    def group(step, qk, reads=True, patch=True):
        cur = W[1 - step]; nxt = W[step]
        rq = []
        for T in TO: rq += rdw(nxt + 4 * T, T, step)
        fill = []
        if step == 1:
            fill = ["s_add_u32 s40, s40, 1", "s_add_u32 s41, s40, 2", "s_and_b32 s41, s41, 3", f"s_mul_i32 s42, s41, {RSL}", f"v_add_u32 v{CX}, s42, v{XA}"] + [f"v_add_u32 v{CW+T}, s42, v{WA+T}" for T in range(5)]
        issued = 0
        for b in range(4):
            if reads:
                allow = [2, 15, issued + 1, issued][b]
                if b != 1: a(f"s_waitcnt lgkmcnt({min(15, allow)})")
            elif b == 0: a("s_waitcnt lgkmcnt(0)")
            for n, T in enumerate(TO):
                a(mf(b, T, X + 4 * b, cur + 4 * T, qk))
                if b == 0 and n < 2 and not qk and patch:
                    for j in range(2): a(f"v_cndmask_b32 v{cur+2*n+j}, v{cur+2*n+j}, v{PC}, s[24:25]")
                if not reads: continue
                if step == 0 and b == 0:
                    if n == 0: a(f"v_xor_b32 v{CX+1}, 64, v{CX}")
                    if n == opt("bn", 1): a("s_barrier")
                    if n <= opt("bn", 1): continue
                if n == 4: a(rdx(X + 4 * b, b, step)); issued += 1
                elif rq:
                    a(rq.pop(0)); issued += 1
                    if rq and (opt("rd2", 0) or (step == 0 and b == 1 and n < opt("bn", 1) - 1)): a(rq.pop(0)); issued += 1
                elif fill:
                    a(fill.pop(0))
                    if fill: a(fill.pop(0))
        assert not reads or (not rq and not fill), (rq, fill)

    def tail(qk, epi, win=None, nf=2):
        seq = [(b, T, ("x0", b), ("w0", T)) for b in range(4) for T in TO]
        marks = {}
        win = win or opt("win", 2)
        for step in range(4 - win):
            for b in range(4):
                for T in TO: seq.append((b, T, ("x", 0, step, b), ("w", step, T)))
        for T in range(5):
            for jj in range(2):
                for step in range(4 - win, 4):
                    for b in (2 * jj, 2 * jj + 1): seq.append((b, T, ("x", 0, step, b), ("w", step, T)))
                marks[len(seq) - 1] = (T, jj)
        last = {}
        for n, (_, _, x, w) in enumerate(seq): last[x] = n; last[w] = n
        loc = {("x0", b): X + 4 * b for b in range(4)}; loc.update({("w0", T): W[1] + 4 * T for T in range(5)})
        free = [W[0] + 4 * k for k in range(5)] + [XA]
        order = []
        for _, _, x, w in seq:
            for f in (w, x):
                if f not in loc and f not in order: order.append(f)
        done_at = {}; nrd = 0; waited = 0; pend = []; fill = []
        cnt = [0]; prev = [0]
        def em(t): a(t); cnt[0] += 1
        a(f"v_xor_b32 v{CX+1}, 64, v{CX}\ns_waitcnt lgkmcnt(0)\ns_barrier")
        bar2 = [True]
        def take():
            f = order.pop(0); loc[f] = free.pop(0)
            if bar2 and (f[1] if f[0] == "w" else f[2]) >= 2: em("s_barrier"); bar2.pop()
            p_ = rdw(loc[f], f[2], f[1]) if f[0] == "w" else [rdx(loc[f], f[3], f[2])]
            done_at[f] = nrd + len(p_)
            return p_
        def gap():
            t, at, after = fill[0]
            return max(at - cnt[0], prev[0] + after - cnt[0], 0)
        def put():
            em(fill.pop(0)[0]); prev[0] = cnt[0]
        for n, (b, T, x, w) in enumerate(seq):
            while any(f not in loc or (f in done_at and done_at[f] > nrd) for f in (x, w)):
                if not pend: pend = take()
                em(pend.pop(0)); nrd += 1
            need = max(done_at.get(x, 0), done_at.get(w, 0))
            if need > waited:
                waited = max(need, nrd - opt("tw", 6)); em(f"s_waitcnt lgkmcnt({nrd - waited})")
            em(mf(b, T, loc[x], loc[w], qk))
            if n in marks: fill += [(t, cnt[0] + 8, after) for t, after in epi(*marks[n])]
            for f in (x, w):
                if last[f] == n: free.append(loc[f])
            if not pend and order and free: pend = take()
            if pend: em(pend.pop(0)); nrd += 1
            for _ in range(nf):
                if fill and gap() == 0: put()
        a(st(3))
        while fill:
            g_ = gap()
            if g_: a(f"s_nop {g_ - 1}"); cnt[0] += g_
            put()

    EA, EB = 167, 151
    def cv(d, r): return [f"v_cvt_pk_bf16_f32 v{d}, v{r}, v{r+1}", f"v_cvt_pk_bf16_f32 v{d+1}, v{r+2}, v{r+3}"]
    def epi_qk(ph, jj=0):
        if ph < 0:
            return f"""s_mov_b32 s35, {HG}
            s_movk_i32 s38, 2560
            s_cmp_eq_u32 s22, 0
            s_cselect_b32 s35, {HQ}, s35
            s_cselect_b32 s27, {Q_OFF}, {KV_OFF}
            s_cselect_b32 s38, 1280, s38
            s_lshl_b32 s26, s20, 1
            s_add_u32 s26, s26, s37
            s_lshl_b32 s26, s26, 2
            s_mul_i32 s26, s26, s35
            s_add_u32 s26, s26, s27
            s_lshl_b32 s23, s21, 1
            s_add_u32 s23, s23, s36
            s_lshl_b32 s23, s23, 1
            s_mul_i32 s23, s23, s38
            s_add_u32 s26, s26, s23
            s_add_u32 s27, s26, s38
            v_lshrrev_b32 v{EA}, 4, v{L}
            v_mul_lo_u32 v{EA}, v{EA}, s35
            v_and_b32 v{TT}, 15, v{L}
            v_lshl_add_u32 v{EA}, v{TT}, 4, v{EA}
            v_lshlrev_b32 v{EB}, 4, v{L}
            s_add_u32 s44, s26, s35
            s_add_u32 s45, s27, s35
            s_add_u32 s46, s44, s35
            s_add_u32 s47, s45, s35
            s_add_u32 s32, s46, s35
            s_add_u32 s33, s47, s35""".split("\n")
        T = ph
        r0, r1 = acc(2 * jj, T), acc(2 * jj + 1, T)
        o = [(t, 0) for t in cv(r0, r0) + cv(r0 + 2, r1)]
        if T < 4:
            o += [(f"v_permlane16_swap_b32 v{r0}, v{r0+2}", 1), (f"v_permlane16_swap_b32 v{r0+1}, v{r0+3}", 0)]
            o.append((f"buffer_store_dwordx4 {vr(r0,4)}, v{EB}, s[28:31], s{(26, 44, 46, 32)[T] + jj} offen sc1", 0))
        else:
            o.append((f"buffer_store_dwordx4 {vr(r0,4)}, v{EA}, s[28:31], s{26 + jj} offen offset:1024 sc1", 0))
        return o
    def epi_v(ph, jj=0):
        if ph < 0:
            return f"""s_lshl_b32 s26, s20, 1
            s_add_u32 s26, s26, s37
            s_mul_i32 s26, s26, {4*HG}
            s_lshl_b32 s23, s21, 1
            s_add_u32 s23, s23, s36
            s_mul_i32 s23, s23, 5120
            s_add_u32 s26, s26, s23
            s_add_u32 s26, s26, {KV_OFF + 1280}
            s_add_u32 s44, s26, {HG}
            s_add_u32 s45, s26, {2*HG}
            s_add_u32 s46, s26, {3*HG}
            s_mov_b32 s35, {HG}
            v_lshrrev_b32 v{EA}, 5, v{L}
            v_mul_u32_u24 v{EA}, 640, v{EA}
            v_bfe_u32 v{TT}, v{L}, 4, 1
            v_lshl_add_u32 v{EB}, v{TT}, 6, v{EA}
            v_mul_u32_u24 v{TT}, 384, v{TT}
            v_add_u32 v{EA}, v{EA}, v{TT}
            v_and_b32 v{TT}, 15, v{L}
            v_lshl_add_u32 v{EA}, v{TT}, 4, v{EA}
            v_and_b32 v{TT}, 3, v{L}
            v_lshl_add_u32 v{EB}, v{TT}, 4, v{EB}
            v_bfe_u32 v{TT}, v{L}, 2, 2
            v_mul_lo_u32 v{TT}, v{TT}, s35
            v_add_u32 v{EB}, v{EB}, v{TT}""".split("\n")
        T = ph
        r0, r1 = acc(2 * jj, T), acc(2 * jj + 1, T)
        o = [(t, 0) for t in cv(r0, r0) + cv(r0 + 2, r1)]
        if T < 4: o.append((f"buffer_store_dwordx4 {vr(r0,4)}, v{EA}, s[28:31], s{(26, 44, 45, 46)[T]} offen offset:{2560 * jj} sc1", 0))
        else: o.append((f"buffer_store_dwordx4 {vr(r0,4)}, v{EB}, s[28:31], s26 offen offset:{2560 * jj + 256} sc1", 0))
        return o

    for qk, lab in ((True, "QK"), (False, "V")):
        a(f"P1_PRE_{lab}:")
        for f in (epi_qk if qk else epi_v)(-1): a(f)
        SEP = opt("sep", 0)
        if SEP and not qk: a("s_cmp_eq_u32 s22, 3\ns_cbranch_scc1 P1_LOOP_D")
        a(ALN2)
        a(f"P1_LOOP_{lab}:")
        group(0, qk, patch=not SEP)
        if STAMP: a(f"s_cmp_lg_u32 s40, 0\ns_cbranch_scc1 P1_ST_{lab}\n{st(2)}\nP1_ST_{lab}:\ns_cmp_lg_u32 s40, 5\ns_cbranch_scc1 P1_SU_{lab}\n{st(1)}\nP1_SU_{lab}:")
        group(1, qk, patch=not SEP)
        a(f"s_cmp_lt_u32 s40, s43\ns_cbranch_scc1 P1_LOOP_{lab}")
        if not qk: a("s_cmp_eq_u32 s22, 3\ns_cbranch_scc1 P1_EPI_DFT")
        if qk and opt("qs", 1):
            def epi_q(T, jj):
                r0, r1 = acc(2 * jj, T), acc(2 * jj + 1, T)
                return [(f"v_mul_f32 v{r+q}, s39, v{r+q}", 0) for r in (r0, r1) for q in range(4)] + epi_qk(T, jj)
            a(f"s_cmp_lg_u32 s22, 0\ns_cbranch_scc1 P1_TAIL_K\ns_mov_b32 s39, {QSCALE:#x}")
            tail(True, epi_q, opt("qwin", 2), opt("qnf", 4))
            a("s_branch P1_DONE\nP1_TAIL_K:")
        a("s_cmp_eq_u32 s12, 1\ns_cselect_b32 s30, 0, s30")
        tail(qk, epi_qk if qk else epi_v)
        a(f"s_cmp_eq_u32 s12, 0\ns_cbranch_scc1 P1_DONE\ns_mov_b32 s30, {WS_USED}\nv_mov_b32 v88, {LFB + 56}\nv_mov_b32 v89, 1")
        ladd(a, 88, 89, 0)
        a(f"s_mov_b32 s34, 1\ns_branch ATT\nNU_{lab}:")
        for T in range(5):
            for jj in range(2): a((epi_qk if qk else epi_v)(T, jj)[-1][0])
        a("s_branch ATT_SIG")
    if SEP:
        a("P1_LOOP_D:"); group(0, False); group(1, False)
        a("s_cmp_lt_u32 s40, s43\ns_cbranch_scc1 P1_LOOP_D")
    a("P1_EPI_DFT:")
    group(0, False, reads=False)
    TAU, TAU0, E0 = 80, 81, 140
    a(f"""
    {st(3)}
    s_cmp_lt_u32 s20, 2
    s_cselect_b32 s38, 1.0, -1.0
    v_mov_b32 v{TAU}, s38
    v_cndmask_b32 v{TAU0}, v{TAU}, 1.0, s[24:25]
    s_lshl_b32 s26, s20, 1
    s_add_u32 s26, s26, s37
    s_mul_i32 s26, s26, 80
    v_and_b32 v88, 15, v{L}
    v_add_u32 v{E0}, s26, v88
    v_add_u32 v{E0+1}, 20, v{E0}
    v_add_u32 v{E0+2}, 40, v{E0}
    v_add_u32 v{E0+3}, 60, v{E0}
    v_and_b32 v89, 12, v{L}
    v_lshl_add_u32 v{E0+4}, v89, 2, v{E0}
    v_add_u32 v{E0+4}, 16, v{E0+4}
    s_lshl_b32 s23, s21, 1
    s_add_u32 s23, s23, s36
    s_cmp_lg_u32 s23, 0
    s_cbranch_scc1 P1_EPI_DFT2
    s_mov_b64 exec, 0xffff
    s_mov_b32 s27, {X512_OFF}
    """)
    for T in range(5):
        a(f"v_fma_f32 v{96+T}, v{acc(3,T)}, v{TAU0 if T == 0 else TAU}, v{acc(1,T)}")
        a(f"v_lshlrev_b32 v{104+T}, 2, v{E0+T}\nv_mov_b32 v{acc(1,T)}, 0\nv_mov_b32 v{acc(3,T)}, 0")
        a(f"buffer_store_dword v{96+T}, v{104+T}, s[28:31], s27 offen sc1")
    a(f"""
    s_mov_b64 exec, -1
P1_EPI_DFT2:
    s_lshl_b32 s26, s23, 9
    s_add_u32 s26, s26, {FE_OFF}
    s_mov_b32 s27, {FO_DELTA}
    v_bfe_u32 v88, v{L}, 4, 1
    v_mul_lo_u32 v88, v88, s27
    v_lshrrev_b32 v89, 5, v{L}
    v_lshl_add_u32 v88, v89, 8, v88
    """)
    for T in range(5):
        tau = TAU0 if T == 0 else TAU
        a0, a1, a2, a3 = (acc(b, T) for b in range(4))
        for q in range(4):
            a(f"v_fma_f32 v{a0+q}, v{a1+q}, v{tau}, v{a0+q}\nv_fma_f32 v{a3+q}, v{a2+q}, v{tau}, v{a3+q}")
        for q in range(4):
            a(f"v_add_f32 v{a1+q}, v{a0+q}, v{a3+q}\nv_sub_f32 v{a2+q}, v{a0+q}, v{a3+q}")
        for f in cv(a0, a1) + cv(a0 + 2, a2): a(f)
        a(f"""
        v_lshrrev_b32 v89, 4, v{E0+T}
        v_lshl_add_u32 v89, v89, 14, v88
        v_and_b32 v{E0+T}, 15, v{E0+T}
        v_lshl_add_u32 v{E0+T}, v{E0+T}, 4, v89
        v_permlane16_swap_b32 v{a0}, v{a0+2}
        v_permlane16_swap_b32 v{a0+1}, v{a0+3}
        """)
    a(f"v_mov_b32 v88, {LFB + 56}\nv_mov_b32 v89, 1\ns_mov_b32 s12, {opt('dnu', 1)}")
    ladd(a, 88, 89, 0)
    a("s_mov_b32 s34, 1\ns_branch ATT\nNU_D:")
    for T in range(5): a(f"buffer_store_dwordx4 {vr(4*T,4)}, v{E0+T}, s[28:31], s26 offen sc1")
    a("s_branch ATT_SIG")
    a(f"""
P1_DONE:
    {st(14)}
    s_mov_b32 s34, 0
    v_mov_b32 v84, 1
    v_mov_b32 v85, 1
    v_mov_b32 v86, 1
    v_mov_b32 v87, 1
    v_mov_b32 v88, {LFB + 44}
    v_mov_b32 v89, 0
    s_and_b32 s23, s15, -128
    s_mov_b64 exec, 1
    s_waitcnt vmcnt(0)
    ds_add_rtn_u32 v88, v88, v84
    s_waitcnt lgkmcnt(0)
    v_cmp_eq_u32 vcc, 3, v88
    s_cbranch_vccz P1_NS
    buffer_store_dwordx4 v[84:87], v89, s[28:31], s23 offen sc1
P1_NS:
    s_mov_b64 exec, -1
    s_branch ATT
    """)

def p1_extra(a):
    T0 = 40
    a(f"""
P1_EXTRA:
    s_sub_u32 s61, s16, 8
    """)
    if opt("cwarm", 1):
        a(f"""
        s_cmp_lg_u32 s16, 10
        s_cbranch_scc1 P1_NOCW
        s_lshl_b32 s23, s18, 10
        s_cmp_ge_u32 s23, L_CODE_END - {NAME}_kernel - 1023
        s_cbranch_scc1 P1_NOCW
        s_getpc_b64 s[44:45]
L_PC:
        s_sub_u32 s44, s44, L_PC - {NAME}_kernel
        s_subb_u32 s45, s45, 0
        v_lshl_add_u32 v40, v0, 4, s23
        global_load_dwordx4 v[44:47], v40, s[44:45]
P1_NOCW:
        """)
    a(f"""
    v_lshrrev_b32 v37, 4, v0
    v_and_b32 v38, 15, v0
    v_lshlrev_b32 v39, 4, v0
    v_mov_b32 v36, v0
    s_waitcnt lgkmcnt(0)
    {srd(28, WS_P, WS_USED)}
    {srd(32, DBG_P, 256)}
    s_cmp_lg_u32 s61, 0
    s_cbranch_scc1 P1_EX_A
    v_mov_b32 v1, 0
    v_lshlrev_b32 v2, 2, v0
    v_add_u32 v2, {LFB}, v2
    ds_write_b32 v2, v1
    s_waitcnt lgkmcnt(0)
    s_cmp_lt_u32 s2, 248
    s_cbranch_scc1 P1_EX_WAITRDY
    v_mov_b32 v4, 0
    v_mov_b32 v5, 0
    v_mov_b32 v6, 0
    v_mov_b32 v7, 0
    s_lshl_b32 s23, s17, 12
    s_add_u32 s23, s23, {FLG_OFF}
    buffer_store_dwordx4 v[4:7], v39, s[28:31], s23 offen sc1
    buffer_store_dwordx4 v[4:7], v39, s[28:31], s23 offen offset:1024 sc1
    buffer_store_dwordx4 v[4:7], v39, s[28:31], s23 offen offset:2048 sc1
    buffer_store_dwordx4 v[4:7], v39, s[28:31], s23 offen offset:3072 sc1
    s_lshl_b32 s23, s17, 10
    s_add_u32 s23, s23, {FLG_OFF + 32768}
    buffer_store_dwordx4 v[4:7], v39, s[28:31], s23 offen sc1
P1_EX_WAITRDY:
P1_EX_A:
    s_lshl_b32 s23, s2, 2
    s_add_u32 s23, s23, s61
    s_mov_b32 s40, 0
P1_TBL:
    s_lshr_b32 s24, s23, 5
    s_and_b32 s25, s23, 30
    s_and_b32 s26, s24, 1
    s_lshr_b32 s27, s24, 1
    s_lshl_b32 s27, s27, 6
    s_add_u32 s27, s27, s26
    s_and_b32 s26, s23, 1
    s_lshl_b32 s26, s26, 5
    s_add_u32 s27, s27, s26
    v_lshl_add_u32 v{T0}, v38, 1, s27
    s_lshl_b32 s25, s25, 4
    v_lshl_add_u32 v{T0+1}, v37, 3, s25
    v_mul_u32_u24 v{T0+1}, v{T0}, v{T0+1}
    v_and_b32 v{T0+1}, 0x7ff, v{T0+1}
    v_cvt_f32_u32 v{T0}, v{T0}
    v_cvt_f32_u32 v{T0+1}, v{T0+1}
    v_mul_f32 v{T0}, 0x3a000000, v{T0}
    v_mul_f32 v0, 0x3a000000, v{T0+1}
    """)
    for u in range(1, 8): a(f"v_add_f32 v{u}, v{u-1}, v{T0}")
    for u in range(1, 8): a(f"v_fract_f32 v{u}, v{u}")
    for u in range(8): a(f"v_cos_f32 v{8+u}, v{u}")
    for u in range(8): a(f"v_sin_f32 v{16+u}, v{u}")
    for j in range(4): a(f"v_cvt_pk_bf16_f32 v{24+j}, v{8+2*j}, v{9+2*j}")
    for j in range(4): a(f"v_cvt_pk_bf16_f32 v{28+j}, v{16+2*j}, v{17+2*j}")
    NB0 = opt("tblbar", 2)
    a(f"""
    s_cmp_lg_u32 s40, 0
    s_cbranch_scc1 P1_TBL_ST
    s_barrier
    {st(1, True)}
    s_cmp_lg_u32 s61, 0
    s_cbranch_scc1 P1_EX_NR
    s_cmp_lt_u32 s2, 248
    s_cbranch_scc1 P1_EX_NR
    v_mov_b32 v32, 1
    v_mov_b32 v33, 0
    s_lshl_b32 s24, s17, 2
    s_waitcnt vmcnt(0)
    s_mov_b64 exec, 1
    buffer_store_dword v32, v33, s[32:35], s24 offen sc1
    s_mov_b64 exec, -1
P1_EX_NR:
    """ + "".join(f"s_barrier\n{st(1 + b_, True)}\n" for b_ in range(1, NB0)) + f"""
    s_mov_b32 s40, 1
P1_TBL_ST:
    s_lshl_b32 s24, s23, 11
    s_add_u32 s24, s24, {TB_OFF}
    buffer_store_dwordx4 v[24:27], v39, s[28:31], s24 offen sc1
    buffer_store_dwordx4 v[28:31], v39, s[28:31], s24 offen offset:1024 sc1
    s_add_u32 s23, s23, 1024
    s_cmp_lt_u32 s23, 1056
    s_cbranch_scc1 P1_TBL
    """)
    nb = NB0
    assert nb <= 6
    a("".join(f"s_barrier\n{st(1 + b_, True)}\n" for b_ in range(nb, 6)))
    u = a.uid()
    a(f"""
    v_and_b32 v1, 7, v36
    v_lshlrev_b32 v1, 2, v1
    v_mov_b32 v2, 1
    s_mov_b32 s60, 0
    s_cmp_lg_u32 s61, 0
    s_cbranch_scc1 P1_EX_C
    buffer_load_dword v2, v1, s[32:35], 0 offen sc1
P1_EX_C:
    s_barrier
    {st(7, True)}
    s_barrier
    {st(8, True)}
L_RDY{u}:
    s_waitcnt vmcnt(0)
    v_cmp_eq_u32 vcc, 0, v2
    s_cbranch_vccz P1_EX_B
    s_sleep 1
    buffer_load_dword v2, v1, s[32:35], 0 offen sc1
    s_add_u32 s60, s60, 1
    s_cmp_lt_u32 s60, 0x40000
    s_cbranch_scc1 L_RDY{u}
P1_EX_B:
    s_waitcnt vmcnt(0)
    s_barrier
    {st(9, True)}
    s_barrier
    {st(10, True)}
    s_mov_b32 s34, 0
    """)

def attention(a):
    O = 20; S = [0, 40, 136, 120]; IX = 114; P = 36; P2 = 64; Q1 = 56; Q2 = 60; K2 = 62; K1 = 16; V1 = 68; V2 = [72, 76]; T = 80
    a(f"""
ATT:
    s_cmp_lt_u32 s13, 4
    s_cselect_b32 s40, {opt("o1", 4)}, {opt("y1", 4)}
    s_cselect_b32 s41, {opt("o2", 7)}, {opt("y2", 6)}
    s_movk_i32 s35, 0x10a
    s_bitset1_b32 s35, s40
    s_bitset1_b32 s35, s41
    s_mov_b32 s24, 0xfffff
    s_mov_b32 s25, 0xfffff
    s_mul_i32 s39, s13, 1280
    s_add_u32 s39, s39, {QLDS}
    v_mov_b32 v{Q2+1}, 0
    v_mov_b32 v{K2+1}, 0x3f803f80
    v_add_u32 v{T}, s39, v{AK1}
    v_add_u32 v{T+1}, s39, v{AK2}
    v_mov_b32 v{T+2}, 1
    """)
    NQ = opt("nq", 2)
    OX = [84, O]; QX1 = [100, Q1]; QX2 = [104, Q2]; U = 106; TM = 136; XS = 107520
    if NQ == 2:
        a(f"""
        s_xor_b32 s36, s13, 1
        s_mul_i32 s39, s36, 1280
        s_add_u32 s39, s39, {QLDS}
        v_add_u32 v{U}, s39, v{AK1}
        v_add_u32 v{U+1}, s39, v{AK2}
        v_mov_b32 v{U+2}, v{AK1}
        v_mov_b32 v{U+3}, v{AK2}
        v_mov_b32 v{QX2[0]+1}, 0
        s_mov_b32 s42, {QSCALE:#x}
        s_mov_b32 s43, s42
        s_and_b32 s37, s13, 1
        s_mul_i32 s37, s37, 2560
        v_and_b32 v{U+4}, 0x70, v{VA}
        v_lshrrev_b32 v{U+4}, 2, v{U+4}
        v_add_u32 v{U+4}, {LFB}, v{U+4}
        s_lshl_b32 s23, s13, 12
        s_add_u32 s23, s23, {XS}
        v_add_u32 v{U+5}, s23, v{VA}
        v_xor_b32 v{U+7}, 4, v{PA}
        s_lshl_b32 s23, s36, 12
        s_add_u32 s23, s23, {XS}
        v_add_u32 v{U+6}, s23, v{VA}
        s_lshr_b32 s38, s13, 2
        s_add_u32 s38, s38, 7
        """)
        for r in (AK1, AK2, AV, BK1, BK2, BV): a(f"v_add_u32 v{r}, s37, v{r}")
        for r in range(16): a(f"v_mov_b32 v{OX[0]+r}, 0")
    for r in range(12): a(f"v_mov_b32 v{V1+r}, v{ONES}")
    for r in range(16): a(f"v_mov_b32 v{O+r}, 0")
    for r in range(4): a(f"v_mov_b32 v{P+r}, -1")
    for r in range(8): a(f"v_mov_b32 v{S[3]+8+r}, 0")
    a(f"v_mov_b32 v{IX}, 0xdddddddd")
    def rk1(d): return f"v_mfma_f32_32x32x8_bf16 {vr(d,16)}, {vr(K2,2)}, {vr(Q2,2)}, 0"
    def rk2(d): return f"v_mfma_f32_32x32x16_bf16 {vr(d,16)}, {vr(K1,4)}, {vr(Q1,4)}, {vr(d,16)}"
    def qk1(d): return f"v_mfma_f32_32x32x16_bf16 {vr(d,16)}, {vr(K1,4)}, {vr(Q1,4)}, 0"
    def qk2(d): return f"v_mfma_f32_32x32x8_bf16 {vr(d,16)}, {vr(K2,2)}, {vr(Q2,2)}, {vr(d,16)}"
    def pv(v, p): return f"v_smfmac_f32_32x32x32_bf16 {vr(O,16)}, {vr(v,4)}, {vr(p,8)}, v{IX}"
    def of(t): return (t - 6 if t in (6, 7) else t) * 2560
    def rdk1(t): return f"ds_read_b128 {vr(K1,4)}, v{BK1 if t in (6, 7) else AK1} offset:{of(t)}"
    def rdk2(t): return f"ds_read_b32 v{K2}, v{BK2 if t in (6, 7) else AK2} offset:{of(t)+1024}"
    def rdv(t, v2):
        b = BV if t in (6, 7) else AV
        return f"s_mov_b64 exec, s[24:25]\nds_read_b128 {vr(V1,4)}, v{b} offset:{of(t)+1280}\nds_read_b128 {vr(v2,4)}, v{b} offset:{of(t)+1920}\ns_mov_b64 exec, -1"
    def maxtree(s, m, first):
        if first:
            a(f"v_max3_f32 v{m}, v{s}, v{s+1}, v{s+2}\nv_max3_f32 v{m+1}, v{s+3}, v{s+4}, v{s+5}")
            for j in range(6, 14, 4): a(f"v_max3_f32 v{m}, v{s+j}, v{s+j+1}, v{m}\nv_max3_f32 v{m+1}, v{s+j+2}, v{s+j+3}, v{m+1}")
            a(f"v_max3_f32 v{m}, v{s+14}, v{s+15}, v{m}\nv_max_f32 v{m}, v{m}, v{m+1}")
        else:
            for j in range(0, 16, 2): a(f"v_max3_f32 v{m}, v{s+j}, v{s+j+1}, v{m}")
    def xhalf(m):
        a(f"v_mov_b32 v{m+1}, v{m}\ns_nop 1\nv_permlane32_swap_b32 v{m}, v{m+1}\ns_nop 0\nv_max_f32 v{m}, v{m}, v{m+1}")
    a(f"""
    {st(4)}
    s_barrier
    s_setprio 3
    s_cmp_lg_u32 s34, 1
    s_cbranch_scc1 ATT_NOSIG
    s_cmp_eq_u32 s22, 1
    s_cbranch_scc1 NU_QK
    s_cmp_eq_u32 s22, 2
    s_cbranch_scc1 NU_V
    s_branch NU_D
ATT_SIG:
    """)
    if opt("comb", 1):
        a(f"""
        v_mov_b32 v{T+3}, {LFB + 44}
        s_and_b32 s23, s15, -128
        s_mov_b64 exec, 1
        s_waitcnt vmcnt(0)
        ds_add_rtn_u32 v{T+3}, v{T+3}, v{T+2}
        s_waitcnt lgkmcnt(0)
        v_cmp_eq_u32 vcc, 3, v{T+3}
        s_cbranch_vccz ATT_NOSIG
        buffer_store_dwordx4 {vr(P,4)}, v{O}, s[28:31], s23 offen sc1
        """)
    else:
        a(f"s_waitcnt vmcnt(0)\ns_mov_b64 exec, 1\nbuffer_store_dword v{T+2}, v{O}, s[28:31], s15 offen sc1")
    a(f"""
ATT_NOSIG:
    s_mov_b64 exec, -1
    {st(6)}
    """)
    def e(s, j): return f"v_exp_f32 v{s+j}, v{s+j}"
    def c(s, j): return f"v_cvt_pk_bf16_f32 v{P+j}, v{s+2*j}, v{s+2*j+1}"
    if NQ == 2:
        def xk1(x, d=None): return f"v_mfma_f32_32x32x16_bf16 {vr(S[x if d is None else d],16)}, {vr(K1,4)}, {vr(QX1[x],4)}, 0"
        def xk2(x, d=None): return f"v_mfma_f32_32x32x8_bf16 {vr(S[x if d is None else d],16)}, {vr(K2,2)}, {vr(QX2[x],2)}, {vr(S[x if d is None else d],16)}"
        def xpv(x, v, p): return f"v_smfmac_f32_32x32x32_bf16 {vr(OX[x],16)}, {vr(v,4)}, {vr(p,8)}, v{IX}"
        def scale(x):
            if opt('qs', 1): return
            for j in range(5): a(f"v_lshlrev_b32 v{TM+2*j}, 16, v{QX1[x]+j}\nv_and_b32 v{TM+2*j+1}, 0xffff0000, v{QX1[x]+j}")
            if opt("pkq", 0):
                for j in range(0, 10, 2): a(f"v_pk_mul_f32 {vr(TM+j,2)}, {vr(TM+j,2)}, s[42:43]")
            else:
                for j in range(10): a(f"v_mul_f32 v{TM+j}, s42, v{TM+j}")
            for j in range(5): a(f"v_cvt_pk_bf16_f32 v{QX1[x]+j}, v{TM+2*j}, v{TM+2*j+1}")
        MH = f32bits(-0.5) if opt('qs', 1) else f32bits(-0.5 * (20 ** -0.5) * math.log2(math.e))
        a(f"""
        ds_read_b128 {vr(K1,4)}, v{U+2}
        ds_read_b32 v{K2}, v{U+3} offset:1024
        ds_read_b128 {vr(QX1[0],4)}, v{U}
        ds_read_b32 v{QX2[0]}, v{U+1} offset:1024
        ds_read_b128 {vr(Q1,4)}, v{T}
        ds_read_b32 v{Q2}, v{T+1} offset:1024
        {rdv(0, V2[0])}
        s_waitcnt lgkmcnt(4)
        {xk1(0)}
        {xk2(0)}
        s_waitcnt lgkmcnt(2)
        {xk1(1)}
        {xk2(1)}
        {rdk1(0)}
        {rdk2(0)}
        s_mov_b32 s26, 0
        """)
        scale(0)
        if opt("qs", 1): a("s_nop 5")
        maxtree(S[0], T, True)
        a(f"v_mul_f32 v{T}, {MH:#x}, v{T}\nv_cvt_pk_bf16_f32 v{QX2[0]+1}, v{T}, 0\ns_waitcnt lgkmcnt(0)\n{xk1(0)}\n{xk2(0)}")
        scale(1)
        maxtree(S[1], T, True)
        a(f"""
        v_mul_f32 v{T}, {MH:#x}, v{T}
        v_cvt_pk_bf16_f32 v{Q2+1}, v{T}, 0
        {xk1(1)}
        {rdk1(2)}
        {st(7)}
        {ALN}
ATT_LOOP:
        """)
        for i in range(4):
            for x in (0, 1):
                SP = {0: (4, 8, 12), 1: (5, 8, 13), 2: (4, 7, 11), 3: (5, 9, 13)}[opt('sp', 0)]
                n = 2 * i + x; cur = S[n % 4]; y = 1 - x; t_ = 2 * (i + 1)
                if x == 1: a("s_waitcnt lgkmcnt(0)")
                a(xk2(y, (n + 1) % 4))
                if x == 0: a(rdk2(t_))
                for q in range(SP[0]): a(e(cur, q))
                a(xpv(y, V2[(i + 1) % 2] if x == 0 else V2[i % 2], S[(n - 1) % 4] + 8))
                if x == 0: a("s_waitcnt lgkmcnt(1)")
                if x == 0 and i == 3: a.l[-1] = "    s_waitcnt vmcnt(0) lgkmcnt(1)"
                if x == 1 and i == 1: a(f"ds_write_b32 v{PA}, v{T+2}")
                if x == 1 and i == 3: a(f"ds_read_b32 v{U}, v{U+4}")
                for q in range(SP[0], SP[1]): a(e(cur, q))
                a(xk1(x, (n + 2) % 4))
                if x == 1: a(rdk1(t_ + 2))
                for q in range(SP[1], SP[2]): a(e(cur, q))
                a(xpv(x, V1, cur))
                if x == 1: a(rdv(t_, V2[(i + 1) % 2]))
                for q in range(SP[2], 16): a(e(cur, q))
    a(f"""
    s_add_u32 s26, s26, 1
    s_movk_i32 s27, 0x5000
    s_cmp_eq_u32 s26, 7
    s_cselect_b32 s27, {(0x5000 - 62 * 2560) & 0xffffffff}, s27
    v_add_u32 v{AK1}, 0x5000, v{AK1}
    v_add_u32 v{AK2}, 0x5000, v{AK2}
    v_add_u32 v{AV}, 0x5000, v{AV}
    v_add_u32 v{BK1}, s27, v{BK1}
    v_add_u32 v{BK2}, s27, v{BK2}
    v_add_u32 v{BV}, s27, v{BV}
    v_add_u32 v{T+2}, 1, v{T+2}
    s_bitcmp1_b32 s35, s26
    s_cbranch_scc0 ATT_LOOP
    s_cmp_gt_u32 s26, 3
    s_cbranch_scc1 ATT_EV
    v_add_u32 v{FA}, 8, v{FA}
    s_cmp_eq_u32 s26, 1
    s_cbranch_scc0 ATT_WAIT
    buffer_store_dwordx4 {vr(P,4)}, v{OA1}, s[28:31], s6 offen sc1
    s_mov_b64 exec, 0xffff
    buffer_store_dwordx4 {vr(P,4)}, v{OA2}, s[28:31], s7 offen sc1
    s_mov_b64 exec, -1
ATT_WAIT:
    ds_read_b32 v{T}, v{FA}
    s_waitcnt lgkmcnt(0)
    v_readfirstlane_b32 s23, v{T}
    s_cmp_ge_u32 s23, 4
    s_cbranch_scc1 ATT_LOOP
    s_sleep 1
    s_branch ATT_WAIT
ATT_EV:
    s_setprio 2
    s_cmp_eq_u32 s26, s40
    s_cbranch_scc1 ATT_LOOP
    s_setprio 1
    s_cmp_lt_u32 s26, 8
    s_cbranch_scc1 ATT_LOOP
    s_setprio 3
    {pv(V2[1], S[3]+8)}
    {st(8)}
    """)
    if NQ == 2:
        a(f"""
        s_mov_b32 s27, 0x3e800000
        s_mov_b32 s23, 0x71800000
        s_waitcnt lgkmcnt(3)
        v_cmp_gt_u32 vcc, s38, v{U}
        s_cbranch_vccz ATT_X0
ATT_X1:
        s_sleep 2
        ds_read_b32 v{U}, v{U+4}
        s_waitcnt lgkmcnt(0)
        v_cmp_gt_u32 vcc, s38, v{U}
        s_cbranch_vccnz ATT_X1
ATT_X0:
        """)
        for j in range(3): a(f"ds_write_b128 v{U+5}, {vr(OX[0]+4*j,4)} offset:{1024*j}")
        a(f"ds_write_b32 v{PA}, v{T+2} offset:96\nATT_X2:\nds_read_b32 v{U}, v{U+7} offset:96")
        for j in range(3): a(f"ds_read_b128 {vr(S[0]+4*j,4)}, v{U+6} offset:{1024*j}")
        a(f"s_waitcnt lgkmcnt(0)\nv_cmp_eq_u32 vcc, 0, v{U}\ns_cbranch_vccz ATT_X3\ns_sleep 1\ns_branch ATT_X2\nATT_X3:\ns_nop 3")
        a(f"v_add_f32 v{O+12}, v{O+8}, v{S[0]+8}\nv_add_f32 v{O+13}, v{O+8}, v{S[0]+8}")
        for r in range(0, 12, 2): a(f"v_pk_add_f32 {vr(O+r,2)}, {vr(O+r,2)}, {vr(S[0]+r,2)}")
        a(f"v_permlane32_swap_b32 v{O+13}, v{O+12}\ns_nop 0")
    else:
        a("s_mov_b32 s27, 0x3e800000\ns_mov_b32 s23, 0x71800000\ns_nop 9")
    a(f"v_rcp_f32 v{T+2}, v{O+12}\nv_add_f32 v{T}, |v{O}|, |v{O+1}|\nv_add_f32 v{T+1}, |v{O+2}|, |v{O+3}|")
    for j in range(4, 12, 2): a(f"v_add_f32 v{T}, |v{O+j}|, v{T}\nv_add_f32 v{T+1}, |v{O+j+1}|, v{T+1}")
    a(f"""
    v_add_f32 v{T}, v{T}, v{O+12}
    v_cmp_le_f32 s[42:43], s27, v{O+12}
    v_add_f32 v{T}, v{T}, v{T+1}
    v_cmp_gt_f32 vcc, s23, v{T}
    s_and_b64 vcc, vcc, s[42:43]
    s_cmp_eq_u64 vcc, -1
    s_cbranch_scc0 ATT_FALLBACK
ATT_FINISH:
    """)
    for j in range(0, 8, 2): a(f"v_pk_mul_f32 {vr(O+j,2)}, {vr(O+j,2)}, {vr(T+2,2)} op_sel_hi:[1,0]")
    for j in range(4): a(f"v_cvt_pk_bf16_f32 v{P+j}, v{O+2*j}, v{O+2*j+1}")
    for j in range(4): a(f"v_min_u32 v{P+j}, -2, v{P+j}")
    a(f"buffer_store_dwordx4 {vr(P,4)}, v{OA1}, s[28:31], s6 offen sc1")
    for j in range(8, 12, 2): a(f"v_pk_mul_f32 {vr(O+j,2)}, {vr(O+j,2)}, {vr(T+2,2)} op_sel_hi:[1,0]")
    for j in range(4, 6): a(f"v_cvt_pk_bf16_f32 v{P2+j-4}, v{O+2*j}, v{O+2*j+1}")
    for j in range(4, 6): a(f"v_min_u32 v{P2+j-4}, -2, v{P2+j-4}")
    a(f"""
    s_nop 1
    v_permlane16_swap_b32 v{P2}, v{P2+2}
    v_permlane16_swap_b32 v{P2+1}, v{P2+3}
    s_mov_b64 exec, 0xffff
    buffer_store_dwordx4 {vr(P2,4)}, v{OA2}, s[28:31], s7 offen sc1
    {st(9)}
    s_cmp_ge_u32 s13, 4
    s_cbranch_scc1 {"L_DONE" if STAMP else "L_END"}
    s_mov_b64 exec, -1
    s_xor_b32 s41, s13, {opt('gx', 2)}
    s_mov_b32 s47, 1
    s_branch P3_GO
    """)
    def gk(): return f"buffer_load_dwordx4 {vr(K1,4)}, v{AK1}, s[28:31], s23 offen sc1\nbuffer_load_dword v{K2}, v{AK2}, s[28:31], s23 offen offset:1024 sc1"
    a(f"""
ATT_FALLBACK:
    s_waitcnt lgkmcnt(0)
    v_mov_b32 v{Q2+1}, 0
    v_mov_b32 v{T}, 0xff800000
    {f's_add_u32 s23, s37, {HS}' if NQ == 2 else f's_mov_b32 s23, {HS}'}
    v_subrev_u32 v{AK1}, s23, v{AK1}
    v_subrev_u32 v{AK2}, s23, v{AK2}
    v_subrev_u32 v{AV}, s23, v{AV}
    s_add_u32 s23, s14, {KV_OFF}
    s_mov_b32 s26, 0
ATT_FB1:
    {gk()}
    s_add_u32 s23, s23, 2560
    s_waitcnt vmcnt(0)
    {qk1(S[0])}
    {qk2(S[0])}
    s_nop 15
    """)
    maxtree(S[0], T, False)
    a("s_add_u32 s26, s26, 1\ns_cmp_lt_u32 s26, 64\ns_cbranch_scc1 ATT_FB1")
    xhalf(T)
    a(f"s_add_u32 s23, s14, {KV_OFF}\ns_mov_b32 s26, 0")
    for r in range(16): a(f"v_mov_b32 v{O+r}, 0")
    a(f"""
ATT_FB2:
    {gk()}
    s_mov_b64 exec, s[24:25]
    buffer_load_dwordx4 {vr(V1,4)}, v{AV}, s[28:31], s23 offen offset:1280 sc1
    buffer_load_dwordx4 {vr(V2[0],4)}, v{AV}, s[28:31], s23 offen offset:1920 sc1
    s_mov_b64 exec, -1
    s_add_u32 s23, s23, 2560
    s_waitcnt vmcnt(0)
    {qk1(S[0])}
    {qk2(S[0])}
    s_nop 15
    """)
    for q in range(16): a(f"v_sub_f32 v{S[0]+q}, v{S[0]+q}, v{T}")
    for q in range(16): a(e(S[0], q))
    a(f"""
    s_nop 1
    {pv(V1, S[0])}
    {pv(V2[0], S[0]+8)}
    s_add_u32 s26, s26, 1
    s_cmp_lt_u32 s26, 64
    s_cbranch_scc1 ATT_FB2
    s_nop 15
    s_nop 3
    v_mov_b32 v{O+12}, v{O+8}
    v_mov_b32 v{O+13}, v{O+8}
    s_nop 1
    v_permlane32_swap_b32 v{O+13}, v{O+12}
    s_nop 0
    v_rcp_f32 v{T+2}, v{O+12}
    s_nop 0
    s_branch ATT_FINISH
    """)

def lwait(a, vaddr, vdat, mask, target, slp=8):
    u = a.uid()
    a(f"""
    s_mov_b64 exec, {mask}
    s_branch L_LWE{u}
L_LW{u}:
    s_sleep {slp}
L_LWE{u}:
    ds_read_b32 v{vdat}, v{vaddr}
    s_waitcnt lgkmcnt(0)
    v_cmp_gt_u32 vcc, {target}, v{vdat}
    s_cbranch_vccnz L_LW{u}
    s_mov_b64 exec, -1
    """)
def ladd(a, vaddr, vone, off):
    a(f"s_mov_b64 exec, 1\nds_add_u32 v{vaddr}, v{vone} offset:{off}\ns_mov_b64 exec, -1")

def helpers(a):
    WA, VG, VZ, SH, HPA, HONE, YFA, FZ, SG, XA5, LF = 112, 117, 118, 119, 120, 121, 122, 123, 124, 125, 126
    ZL = 40; G = 167; VY = 162; T = 132; LT = 127
    a(f"""
HELPER:
    s_mov_b32 s61, s22
    {st(2)}
    {srd(28, WS_P, WS_USED)}
    s_setprio 0
    s_lshr_b32 s20, s18, 2
    s_mul_i32 s26, s20, 160
    s_movk_i32 s23, {1280 - 160}
    """)
    for i in range(5):
        a(f"""
        v_add_u32 v{T}, {64*i}, v0
        v_mul_u32_u24 v{T+1}, 6554, v{T}
        v_lshrrev_b32 v{T+1}, 16, v{T+1}
        v_lshlrev_b32 v{T}, 4, v{T}
        v_mad_u32_u24 v{WA+i}, v{T+1}, s23, v{T}
        """)
    a(f"""
    s_lshl_b32 s21, s17, 3
    s_and_b32 s22, s18, 3
    s_add_u32 s21, s21, s22
    s_lshr_b32 s22, s16, 1
    s_lshl_b32 s22, s22, 2
    s_add_u32 s21, s21, s22
    s_lshl_b32 s21, s21, 1
    s_and_b32 s22, s16, 1
    s_add_u32 s21, s21, s22
    s_lshr_b32 s22, s21, 2
    s_lshl_b32 s22, s22, 1
    s_and_b32 s24, s21, 1
    s_add_u32 s22, s22, s24
    s_lshl_b32 s22, s22, 3
    v_and_b32 v{T}, 7, v0
    v_add_u32 v{T}, s22, v{T}
    s_bitcmp1_b32 s21, 1
    s_cselect_b32 s22, 0x400, 0
    s_cselect_b32 s24, -1, 1
    v_mul_lo_u32 v{T+1}, v{T}, s24
    s_sub_u32 s24, 0x800, s22
    v_sub_u32 v{T+2}, s24, v{T+1}
    v_add_u32 v{T+1}, s22, v{T+1}
    v_and_b32 v{T+3}, 8, v0
    v_cmp_ne_u32 vcc, 0, v{T+3}
    v_cmp_eq_u32 s[42:43], 0, v{T}
    v_lshlrev_b32 v{T+3}, 6, v{T+3}
    v_add_u32 v{T+3}, s22, v{T+3}
    v_cndmask_b32 v{T}, v{T+1}, v{T+2}, vcc
    v_lshrrev_b32 v{T+1}, 4, v0
    v_cndmask_b32 v{T}, v{T}, v{T+3}, s[42:43]
    v_mul_u32_u24 v{VY}, 1280, v{T}
    v_mul_u32_u24 v{T+2}, 40, v{T+1}
    v_add3_u32 v{VY}, v{VY}, v{T+2}, s26
    v_lshlrev_b32 v{VG}, 2, v{T}
    v_sub_u32 v{T+3}, 0x800, v{T}
    v_cmp_lt_u32 vcc, 0x400, v{T}
    v_min_u32 v{T}, v{T}, v{T+3}
    v_and_b32 v{T+3}, 1, v{T}
    v_mul_u32_u24 v{VZ}, {ZP}, v{T+3}
    v_lshrrev_b32 v{T+3}, 1, v{T}
    v_lshl_add_u32 v{VZ}, v{T+3}, 4, v{VZ}
    v_mov_b32 v{T+3}, 0x02020202
    v_cndmask_b32 v{SH}, 0, v{T+3}, vcc
    s_cmp_ge_u32 s20, 4
    s_mov_b32 s24, 0x05040100
    s_cselect_b32 s24, 0x07060302, s24
    s_cselect_b32 s40, -1, 1
    s_cselect_b32 s41, 155, 0
    v_xor_b32 v{SH}, s24, v{SH}
    s_mul_i32 s24, s20, 20
    v_mul_u32_u24 v{T+3}, 5, v{T+1}
    v_add_u32 v{T+3}, s24, v{T+3}
    v_mul_lo_u32 v{T+3}, v{T+3}, s40
    v_add_u32 v{T+3}, s41, v{T+3}
    v_mul_u32_u24 v{T+3}, {2*ZP}, v{T+3}
    v_add_u32 v{VZ}, v{VZ}, v{T+3}
    {p3_addr(0)}
    v_lshlrev_b32 v{HPA}, 2, v0
    v_add_u32 v{HPA}, {LFB}, v{HPA}
    v_mov_b32 v{HONE}, 1
    s_and_b32 s23, s2, 63
    s_lshl_b32 s23, s23, 5
    s_lshr_b32 s24, s2, 6
    s_add_u32 s23, s23, s24
    s_lshl_b32 s23, s23, 2
    s_add_u32 s23, s23, {FLG_OFF + 32768}
    v_mov_b32 v{YFA}, s23
    v_lshrrev_b32 v{T+1}, 5, v0
    v_mul_u32_u24 v{FZ}, {2*ZP}, v{T+1}
    v_and_b32 v{T}, 31, v0
    v_lshl_add_u32 v{FZ}, v{T}, 4, v{FZ}
    v_lshlrev_b32 v{SG}, 31, v0
    v_lshlrev_b32 v{XA5}, 4, v{T+1}
    v_and_b32 v{T}, 15, v0
    v_lshlrev_b32 v{T}, 4, v{T}
    v_lshl_add_u32 v{T}, v{T+1}, 8, v{T}
    v_bfe_u32 v{T+1}, v0, 4, 1
    v_lshl_add_u32 v128, v{T+1}, 14, v{T}
    v_lshl_add_u32 v129, v{T+1}, 11, v{T}
    v_lshlrev_b32 v{LF}, 7, v0
    v_bfe_u32 v{LT}, v0, 1, 2
    v_lshlrev_b32 v{LT}, 13, v{LT}
    v_and_b32 v{T}, 1, v0
    v_lshl_add_u32 v{LT}, v{T}, 7, v{LT}
    s_setprio 3
    s_lshr_b32 s19, s18, 3
    s_lshl_b32 s23, s17, 2
    s_add_u32 s19, s19, s23
    s_and_b32 s62, s18, 7
    s_mul_i32 s21, s19, {HG}
    v_lshlrev_b32 v1, 4, v0
    {st(3)}
    s_lshr_b32 s23, s19, 3
    s_lshl_b32 s23, s23, 13
    s_add_u32 s23, s23, {FLG_OFF}
    v_lshlrev_b32 v2, 7, v0
    v_add_u32 v2, s23, v2
    s_add_u32 s24, s21, {KV_OFF}
    s_lshl_b32 s40, 0x10000, s16
    s_lshl_b32 s41, 1, s16
    s_mul_i32 s22, s16, 10240
    s_add_u32 s26, s24, s22
    s_cmp_lg_u32 s16, 3
    s_cbranch_scc1 H_JA
    s_lshl_b32 s25, s62, 1
    s_lshl_b32 s40, 3, s25
    s_mov_b32 s41, 0
    s_mov_b32 s22, {QLDS}
    s_mul_i32 s26, s19, {HQ}
    s_mul_i32 s25, s62, 10240
    s_add_u32 s26, s26, s25
    s_add_u32 s26, s26, {Q_OFF}
H_JA:
    """)
    def job():
        r = f"s_add_u32 s25, s22, 5120\ns_cmp_ge_u32 s25, {LFB}\ns_cselect_b32 s25, 0, s25\n"
        for n in range(10):
            if n in (0, 3): r += f"s_add_u32 m0, s22, {1024*n}\ns_add_u32 s27, s26, {1024*n}\n"; o = 0
            if n in (5, 8): r += f"s_add_u32 m0, s25, {1024*(n-5)}\ns_add_u32 s27, s26, {1024*n}\n"; o = 0
            r += f"buffer_load_dwordx4 v1, s[28:31], s27 offen offset:{o} sc1 lds\n"; o += 1024
        return r
    if opt("latep", 1):
        a(f"s_mul_i32 s23, s12, 12\ns_cmp_eq_u32 s61, 3\ns_cselect_b32 s23, 12, s23\ns_add_u32 s23, s23, {LFB + 44}\nv_mov_b32 v3, s23")
        lwait(a, 3, 4, 1, 4, 2)
        if opt("lps", 0): a(f"s_sleep {opt('lps', 0)}")
    poll4(a, 2, 4, "s[40:41]")
    a(st(11)); a(job())
    a(f"""
    s_lshl_b32 s40, 0x80000, s16
    s_lshl_b32 s41, 8, s16
    s_add_u32 s22, s16, 3
    s_mul_i32 s22, s22, 10240
    s_add_u32 s26, s24, s22
    s_waitcnt vmcnt(0)
    {st(12)}
    s_barrier
    """)
    poll4(a, 2, 4, "s[40:41]")
    a(job())
    a(f"""
H_JB:
    s_lshl_b32 s41, 0x8880, s16
    s_and_b32 s41, s41, 0xffff
    s_lshl_b32 s40, s41, 16
    s_add_u32 s22, s16, 7
    s_mul_i32 s22, s22, 10240
    s_add_u32 s26, s24, s22
    s_waitcnt vmcnt(0)
    """)
    ladd(a, HPA, HONE, 64)
    a("s_cmp_lg_u32 s16, 0\ns_cbranch_scc1 H_NW")
    lwait(a, HPA, 4, 0xff, 1)
    a("H_NW:")
    poll4(a, 2, 4, "s[40:41]", slp=8)
    a(f"{st(13)}\nH_JC:"); a(job())
    a(f"""
    s_add_u32 s22, s22, 40960
    s_add_u32 s26, s26, 40960
    s_cmp_lt_u32 s22, {HS}
    s_cbranch_scc1 H_JC
    s_waitcnt vmcnt(0)
    {st(4)}
    """)
    ladd(a, HPA, HONE, 72)
    a(f"""
    s_lshr_b32 s22, s16, 1
    s_lshl_b32 s22, s22, 5
    s_add_u32 s22, s22, s18
    s_and_b32 s39, s16, 1
    s_cmp_lt_u32 s22, 48
    s_cbranch_scc1 H_FNET
    s_sub_u32 s24, s22, 48
    s_lshl_b32 s24, s24, 1
    s_add_u32 s24, s24, s39
    s_lshl_b32 s25, s17, 5
    s_add_u32 s24, s24, s25
    """)
    a(f"""
    {srd(32, X_P, 2048*1280)}
    {srd(36, GATE_P, 1280)}
    v_lshrrev_b32 v2, 3, v0
    v_and_b32 v3, 7, v0
    v_lshlrev_b32 v3, 4, v3
    s_movk_i32 s22, 1280
    v_mad_u32_u24 v4, v2, s22, v3
    s_mul_i32 s23, s24, {8*1280}
    """)
    for j in range(10):
        a(f"buffer_load_dwordx4 {vr(24+8*j,4)}, v4, s[32:35], s23 offen offset:{128*j}")
        a(f"buffer_load_dwordx4 {vr(28+8*j,4)}, v3, s[36:39], 0 offen offset:{128*j}")
    a("v_mov_b32 v5, 0\nv_mov_b32 v6, 0\ns_waitcnt vmcnt(0)")
    for j in range(10):
        for q in range(4):
            a(f"v_dot2c_f32_bf16 v{5 + (q & 1)}, v{24+8*j+q}, v{28+8*j+q}")
    a(f"""
    s_nop 2
    v_add_f32 v5, v5, v6
    s_nop 1
    v_add_f32_dpp v5, v5, v5 quad_perm:[1,0,3,2] row_mask:0xf bank_mask:0xf
    s_nop 1
    v_add_f32_dpp v5, v5, v5 quad_perm:[2,3,0,1] row_mask:0xf bank_mask:0xf
    s_nop 1
    v_add_f32_dpp v5, v5, v5 row_half_mirror row_mask:0xf bank_mask:0xf
    v_mul_f32 v5, {f32bits(-math.log2(math.e)):#x}, v5
    v_exp_f32 v5, v5
    v_lshlrev_b32 v2, 2, v2
    v_add_f32 v5, 1.0, v5
    v_rcp_f32 v5, v5
    s_lshl_b32 s23, s24, 5
    s_add_u32 s23, s23, {G_OFF}
    buffer_store_dword v5, v2, s[28:31], s23 offen sc1
    s_branch H_MID
    """)
    C, FB, RX = 0, 16, 80
    a(f"""
H_FNET:
    s_cmp_lt_u32 s22, 44
    s_cbranch_scc1 H_FN_A
    s_sub_u32 s24, s22, 44
    s_lshl_b32 s24, s24, 3
    s_add_u32 s24, s24, s17
    s_cmp_ge_u32 s24, 11
    s_cbranch_scc1 H_MID
    s_mov_b32 s23, 32
    s_branch H_FN_B
H_FN_A:
    s_mul_i32 s23, s22, 5958
    s_lshr_b32 s23, s23, 16
    s_mul_i32 s24, s23, 11
    s_sub_u32 s24, s22, s24
    s_lshl_b32 s23, s23, 3
    s_add_u32 s23, s23, s17
H_FN_B:
    s_and_b32 s25, s23, 1
    s_add_u32 s26, s24, 10
    s_cmp_eq_u32 s24, 10
    s_cselect_b32 s26, 10, s26
    s_cmp_eq_u32 s39, 0
    s_cselect_b32 s26, s24, s26
    s_mul_i32 s32, s26, 52
    s_lshr_b32 s32, s32, 8
    s_lshl_b32 s32, s32, 13
    s_add_u32 s32, s32, {48 * 128}
    s_and_b32 s34, s23, 31
    s_lshl_b32 s34, s34, 8
    s_mov_b64 exec, 0xffff
    v_add_u32 v2, s32, v{LF}
    s_mov_b32 exec_lo, 0xff0000
    v_add_u32 v2, s34, v{LT}
    s_mov_b32 s27, {FLG_OFF}
    """)
    poll4(a, 2, 4, "0xffffff", "s27", slp=8)
    a(st(14))
    a(f"""
    s_lshl_b32 s32, s23, 16
    s_lshl_b32 s27, s39, 10
    s_add_u32 s32, s32, s27
    s_add_u32 s32, s32, {TB_OFF}
    s_mul_i32 s27, s25, {FO_DELTA}
    s_lshl_b32 s33, s26, 15
    s_add_u32 s33, s33, s27
    s_add_u32 s33, s33, {FE_OFF}
    s_lshl_b32 s35, s26, 7
    s_add_u32 s35, s35, {X512_OFF}
    """)
    for g in range(4): a(f"buffer_load_dwordx4 {vr(C+4*g,4)}, v{XA5}, s[28:31], s35 offen offset:{32*g} sc1")
    def fl(j):
        r = FB + 8 * j
        s_ = f"buffer_load_dwordx4 {vr(r,4)}, v128, s[28:31], s33 offen offset:{512*j} sc1\n"
        s_ += f"buffer_load_dwordx4 {vr(r+4,4)}, v129, s[28:31], s32 offen offset:{512*(j%2)} sc1\n"
        if j % 2: s_ += "s_add_u32 s32, s32, 4096\n"
        if j == 7: s_ += "s_add_u32 s33, s33, 4096\n"
        return s_
    def fm(j): return f"v_mfma_f32_32x32x16_bf16 {vr(C,16)}, {vr(FB+8*j,4)}, {vr(FB+8*j+4,4)}, {vr(C,16)}"
    for j in range(8): a(fl(j))
    a(f"""
    s_cmp_eq_u32 s25, s39
    s_cselect_b32 s36, 1.0, 0
    v_or_b32 v160, s36, v{SG}
    s_waitcnt vmcnt(16)
    """)
    for r in range(0, 16, 2): a(f"v_pk_mul_f32 {vr(C+r,2)}, {vr(C+r,2)}, v[160:161] op_sel_hi:[1,0]")
    a(f"s_setprio {opt('fp', 2)}\ns_mov_b32 s38, 0\nH_FN_LOOP:")
    for j in range(8):
        a("s_waitcnt vmcnt(14)"); a(fm(j)); a(fl(j))
    a("s_add_u32 s38, s38, 1\ns_cmp_lt_u32 s38, 3\ns_cbranch_scc1 H_FN_LOOP")
    for j in range(8):
        a(f"s_waitcnt vmcnt({14-2*j})"); a(fm(j))
    a("s_setprio 3")
    lwait(a, HPA, T + 1, 0xff, 2)
    a(f"""
    s_lshl_b32 s27, s16, 11
    s_add_u32 s27, s27, {WOL}
    v_add_u32 v{T}, s27, v{VA}
    s_xor_b32 s27, s16, 1
    s_lshl_b32 s36, s27, 11
    s_add_u32 s36, s36, {WOL}
    v_add_u32 v{T+1}, s36, v{VA}
    s_lshl_b32 s27, s27, 2
    s_add_u32 s27, s27, {LFB + 128}
    v_mov_b32 v{T+2}, s27
    v_xor_b32 v{T+3}, 4, v{T+2}
    s_mul_i32 s34, s24, {16*ZP}
    s_mul_i32 s27, s25, {ZP}
    s_add_u32 s34, s34, s27
    s_lshr_b32 s27, s23, 1
    s_lshl_b32 s27, s27, 9
    s_add_u32 s34, s34, s27
    s_mul_i32 s27, s39, {8*ZP}
    s_add_u32 s34, s34, s27
    s_add_u32 s34, s34, {Y_OFF}
    s_add_u32 s35, s34, {4*ZP}
    s_cmp_eq_u32 s39, 0
    s_cbranch_scc1 H_FX0
    s_cmp_eq_u32 s26, 10
    s_cselect_b32 s44, -1, 0
    s_mov_b32 s45, 0
    v_cndmask_b32 v{C}, v{C}, 0, s[44:45]
    ds_write_b128 v{T}, {vr(C,4)}
    ds_write_b128 v{T}, {vr(C+4,4)} offset:1024
    s_branch H_FX1
H_FX0:
    ds_write_b128 v{T}, {vr(C+8,4)}
    ds_write_b128 v{T}, {vr(C+12,4)} offset:1024
H_FX1:
    ds_write_b32 v{T+3}, v{HONE}
H_FX2:
    ds_read_b32 v{T+4}, v{T+2}
    ds_read_b128 {vr(RX,4)}, v{T+1}
    ds_read_b128 {vr(RX+4,4)}, v{T+1} offset:1024
    s_waitcnt lgkmcnt(0)
    v_cmp_eq_u32 vcc, 0, v{T+4}
    s_cbranch_vccz H_FX3
    s_sleep 4
    s_branch H_FX2
H_FX3:
    s_cmp_eq_u32 s39, 0
    s_cbranch_scc1 H_FX4
    """)
    for r in range(0, 8, 2): a(f"v_pk_add_f32 {vr(16+r,2)}, {vr(RX+r,2)}, {vr(C+8+r,2)}\nv_pk_add_f32 {vr(24+r,2)}, {vr(RX+r,2)}, {vr(C+8+r,2)} neg_lo:[0,1] neg_hi:[0,1]")
    a("s_branch H_FX5\nH_FX4:")
    for r in range(0, 8, 2): a(f"v_pk_add_f32 {vr(16+r,2)}, {vr(C+r,2)}, {vr(RX+r,2)}\nv_pk_add_f32 {vr(24+r,2)}, {vr(C+r,2)}, {vr(RX+r,2)} neg_lo:[0,1] neg_hi:[0,1]")
    a("H_FX5:")
    for r in range(8): a(f"v_cvt_pk_bf16_f32 v{16+r}, v{16+r}, v{24+r}")
    a(f"buffer_store_dwordx4 v[16:19], v{FZ}, s[28:31], s34 offen sc1\nbuffer_store_dwordx4 v[20:23], v{FZ}, s[28:31], s35 offen sc1")
    a(f"""
H_MID:
    s_setprio 3
    s_lshl_b32 s19, s17, 2
    s_and_b32 s20, s18, 3
    s_add_u32 s19, s19, s20
    s_lshr_b32 s20, s18, 2
    {srd(32, WO_P, 640*1280)}
    {srd(36, OUT_P, 2621440)}
    s_mul_i32 s26, s20, 160
    s_mul_i32 s27, s16, {160*1280}
    s_add_u32 s27, s27, s26
    s_movk_i32 s23, {1280 - 160}
    """)
    a(f"""
    s_add_u32 s25, s16, 1
    s_and_b32 s25, s25, 3
    s_mul_i32 s22, s25, 25600
    s_add_u32 s22, s22, {WOL}
    s_add_u32 s25, s25, 3
    s_waitcnt vmcnt(0)
    {st(5)}
    """)
    lwait(a, HPA, T + 1, 0xff, 3)
    a(f"""s_mov_b64 exec, 1
    ds_add_rtn_u32 v{T+1}, v{HPA}, v{HONE} offset:48
    s_waitcnt lgkmcnt(0)
    v_cmp_eq_u32 vcc, 3, v{T+1}
    s_cbranch_vccz H_NOY
    buffer_store_dword v{HONE}, v{YFA}, s[28:31], 0 offen sc1
H_NOY:
    s_mov_b64 exec, -1""")
    lwait(a, HPA, T + 1, 0xff, "s25")
    a(f"s_cmp_lg_u32 s16, 3\ns_cbranch_scc1 H_NX\nv_add_u32 v{T}, 48, v{HPA}")
    lwait(a, T, T + 1, 1, 4)
    a("H_NX:")
    a(f"{st(6)}\ns_mov_b32 s25, 0\nH_WO:")
    for i in range(5):
        a(f"s_add_u32 m0, s22, {1024*i}\ns_nop 0\nbuffer_load_dwordx4 v{WA+i}, s[32:35], s27 offen lds")
    a(f"""
    s_add_u32 s22, s22, 5120
    s_add_u32 s27, s27, {32*1280}
    s_add_u32 s25, s25, 1
    s_cmp_lt_u32 s25, 5
    s_cbranch_scc1 H_WO
    s_cmp_lg_u32 s16, 3
    s_cbranch_scc1 H_YW
    """)
    lwait(a, HPA, T + 1, 0xff, opt("ypr", 5), 16)
    a(f"s_mov_b32 s27, {FLG_OFF + 32768}")
    poll4(a, LF, 4, "-1", "s27", slp=opt("ys", 16))
    ladd(a, HPA, HONE, 40)
    a(f"H_YW:\nv_add_u32 v{T}, 40, v{HPA}")
    lwait(a, T, T + 1, 1, 1, 16)
    a("s_waitcnt vmcnt(0)")
    a(f"v_mov_b32 v{T}, 2")
    ladd(a, HPA, T, 32)
    a(f"{st(7)}\ns_mov_b32 s26, {Y_OFF}\ns_mov_b32 s27, {G_OFF}\nbuffer_load_dword v{G}, v{VG}, s[28:31], s27 offen sc1")
    for j in range(6):
        a(f"buffer_load_dwordx4 {vr(ZL+4*j,4)}, v{VZ}, s[28:31], s26 offen sc1\ns_add_u32 s26, s26, {2*ZP}")
    BF, OFR, ACC, YG = 0, 100, 120, 140
    VY2, G2 = 162, 167
    a(f"""
    s_waitcnt vmcnt(0)
    s_cmp_ge_u32 s20, 4
    s_cbranch_scc1 H_DESC
    """)
    for k in range(10): a(f"v_perm_b32 v{YG+10+k}, v{ZL+2*k+1}, v{ZL+2*k}, v{SH}")
    a("s_branch H_UNP\nH_DESC:")
    for k in range(10): a(f"v_perm_b32 v{YG+10+k}, v{ZL+19-2*k}, v{ZL+20-2*k}, v{SH}")
    a("H_UNP:")
    lwait(a, HPA, 8, 0xf, 8)
    a(f"""
    {st(8)}
    s_mov_b32 s41, s16
    s_mov_b32 s47, 0
P3_GO:
    s_setprio {opt('p3o', 0)}
    s_lshl_b32 s22, s17, 3
    s_and_b32 s23, s18, 3
    s_add_u32 s22, s22, s23
    s_lshl_b32 s22, s22, 1
    s_add_u32 s22, s22, s47
    s_mul_i32 s22, s22, 20480
    s_add_u32 s22, s22, {OF_OFF}
    s_lshl_b32 s44, s41, 12
    s_add_u32 s44, s44, s22
    s_lshl_b32 s45, s41, 10
    s_add_u32 s45, s45, s22
    s_add_u32 s45, s45, 16384
    s_lshl_b32 s46, s47, 2
    s_add_u32 s40, s46, {LFB + 80}
    s_add_u32 s46, s46, s41
    s_mul_i32 s46, s46, 5120
    s_add_u32 s46, s46, {WOL}
    s_mov_b32 s26, 0
    s_mov_b32 s42, 0
    v_mov_b32 v{CM}, {LFB + 32}
    """)
    lwait(a, CM, CT, 1, 8)
    a("P3_TRY:")
    for k in range(4):
        a(f"buffer_load_dwordx4 {vr(OFR+4*k,4)}, v{VA}, s[28:31], s44 offen offset:{1024*k} sc1")
    a(f"buffer_load_dwordx2 {vr(OFR+16,2)}, v{VT}, s[28:31], s45 offen sc1\nbuffer_load_dwordx2 {vr(OFR+18,2)}, v{VT}, s[28:31], s45 offen offset:128 sc1")
    a(f"""
    s_cmp_lg_u32 s26, 0
    s_cbranch_scc1 P3_CHK
    s_add_u32 s23, s41, 1
    s_and_b32 s23, s23, 3
    s_mul_i32 s23, s23, 25600
    s_add_u32 s23, s23, {WOL}
    v_add_u32 v{CM}, s23, v{BMM}
    v_add_u32 v{CT}, s23, v{BMT}
    """)
    for n in range(25):
        k, t = divmod(n, 5); d = BF + 4 * n
        bb, o, dj = (CM, k * 6400 + t * 8, 1280) if k < 4 else (CT, t * 8, 3200)
        a(f"ds_read_b64_tr_b16 {vr(d,2)}, v{bb} offset:{o}\nds_read_b64_tr_b16 {vr(d+2,2)}, v{bb} offset:{o+dj}")
    a(f"v_mov_b32 v{BMM}, {LFB + 36}\nv_mov_b32 v{BMT}, 1\ns_waitcnt lgkmcnt(0)")
    ladd(a, BMM, BMT, 0)
    b = OFR
    def mfs(k): return "\n".join(f"v_mfma_f32_16x16x32_bf16 {vr(ACC+4*t,4)}, {vr(BF+4*(5*k+t),4)}, {vr(OFR+4*k,4)}, {vr(ACC+4*t,4) if k else 0}" for t in range(5))
    if opt("spec", 1):
        a("P3_CHK:\ns_add_u32 s26, s26, 1\ns_mov_b32 s43, -1")
        for k in range(5):
            r = b + 4 * k
            a(f"""P3_C{k}:
            s_waitcnt vmcnt({max(0, 5 - k) if k < 4 else 0})
            v_max3_u32 v{CM}, v{r}, v{r+1}, v{r+2}
            v_max3_u32 v{CM}, v{r+3}, v{CM}, 1
            v_cmp_eq_u32 vcc, s43, v{CM}
            s_cbranch_vccnz P3_B{k}
            {mfs(k)}""")
        a(f"{'' if opt('fst', 0) else st(11)}\ns_branch P3_OK")
        for k in range(5):
            a(f"P3_B{k}:\ns_sleep {opt('p3s', 4)}")
            for kk in range(k, 4):
                a(f"buffer_load_dwordx4 {vr(OFR+4*kk,4)}, v{VA}, s[28:31], s44 offen offset:{1024*kk} sc1")
            a(f"buffer_load_dwordx2 {vr(OFR+16,2)}, v{VT}, s[28:31], s45 offen sc1\nbuffer_load_dwordx2 {vr(OFR+18,2)}, v{VT}, s[28:31], s45 offen offset:128 sc1")
            a(f"s_add_u32 s26, s26, 1\ns_cmp_lt_u32 s26, 0x40000\ns_cselect_b32 s43, -1, 0\ns_branch P3_C{k}")
        a("P3_OK:")
    else:
        a(f"P3_CHK:\ns_add_u32 s26, s26, 1\ns_waitcnt vmcnt(4)\nv_max3_u32 v{CM}, v{b}, v{b+1}, v{b+2}\nv_max3_u32 v{CT}, v{b+3}, v{b+4}, v{b+5}\nv_max3_u32 v{CM}, v{b+6}, v{b+7}, v{CM}\ns_waitcnt vmcnt(2)")
        a(f"v_max3_u32 v{CT}, v{b+8}, v{b+9}, v{CT}\nv_max3_u32 v{CM}, v{b+10}, v{b+11}, v{CM}\nv_max3_u32 v{CT}, v{b+12}, v{b+13}, v{CT}\nv_max3_u32 v{CM}, v{b+14}, v{b+15}, v{CM}\ns_waitcnt vmcnt(0)")
        a(f"""
    v_max3_u32 v{CT}, v{b+16}, v{b+17}, v{CT}
    v_max3_u32 v{CM}, v{b+18}, v{b+19}, v{CM}
    s_cmp_lt_u32 s26, 0x40000
    v_max_u32 v{CM}, v{CM}, v{CT}
    s_cbranch_scc0 P3_OK
    v_cmp_eq_u32 vcc, -1, v{CM}
    s_cbranch_vccz P3_OK
    s_sleep {opt("p3s", 4)}
    s_branch P3_TRY
P3_OK:
    {'' if opt('fst', 0) else st(11)}
    s_setprio {opt('p3p', 0)}
    """)
        for n in range(25):
            k, t = divmod(n, 5)
            a(f"v_mfma_f32_16x16x32_bf16 {vr(ACC+4*t,4)}, {vr(BF+4*n,4)}, {vr(OFR+4*k,4)}, {vr(ACC+4*t,4) if k else 0}")
    a("s_cmp_lg_u32 s42, 0\ns_cbranch_scc1 P3_WR")
    lwait(a, BMM, CT, 1, 8, 2)
    a(f"{str() if opt('fst', 0) else st(12)}\nP3_WR:\nv_add_u32 v{CM}, s46, v{VA}\nv_mov_b32 v{CT}, s40\ns_nop 1")
    for j in range(5): a(f"ds_write_b128 v{CM}, {vr(ACC+4*j,4)} offset:{1024*j}")
    a("s_waitcnt lgkmcnt(0)")
    ladd(a, CT, BMT, 0)
    a(f"""
    s_add_u32 s44, s44, {8*20480}
    s_add_u32 s45, s45, {8*20480}
    s_add_u32 s46, s46, {8*5120}
    s_add_u32 s40, s40, 8
    s_add_u32 s42, s42, 1
    s_cmp_ge_u32 s42, 2
    s_cbranch_scc1 P3_END
    s_cmp_ge_u32 s16, 4
    s_cbranch_scc1 P3_TRY
    """)
    for k in range(10): a(f"v_lshlrev_b32 v{YG+2*k}, 16, v{YG+10+k}\nv_and_b32 v{YG+2*k+1}, 0xffff0000, v{YG+10+k}")
    for k in range(20): a(f"v_mul_f32 v{YG+k}, v{YG+k}, v{G2}")
    a(f"""
    v_sub_f32 v{G2}, 1.0, v{G2}
    s_branch P3_TRY
P3_END:
    {st(10)}
    s_cmp_ge_u32 s16, 4
    s_cbranch_scc1 {"L_DONE" if STAMP else "L_END"}
    s_setprio 3
    s_lshl_b32 s23, s16, 2
    s_add_u32 s23, s23, {LFB + 80}
    v_mov_b32 v{CT}, s23
    s_mul_i32 s23, s16, 20480
    s_add_u32 s23, s23, {WOL}
    v_add_u32 v{CM}, s23, v{VA}
    """)
    lwait(a, CT, BMM, 1, 4, 1)
    a(st(9))
    for j in range(5):
        for g in range(4): a(f"ds_read_b128 {vr(16*j+4*g,4)}, v{CM} offset:{5120*g+1024*j}")
    for j in range(5):
        a(f"s_waitcnt lgkmcnt({min(15, 16-4*j)})")
        for r in (0, 2): a(f"v_pk_add_f32 {vr(16*j+r,2)}, {vr(16*j+r,2)}, {vr(16*j+4+r,2)}\nv_pk_add_f32 {vr(16*j+8+r,2)}, {vr(16*j+8+r,2)}, {vr(16*j+12+r,2)}")
        for r in (0, 2): a(f"v_pk_add_f32 {vr(16*j+r,2)}, {vr(16*j+r,2)}, {vr(16*j+8+r,2)}")
        for r in range(4): a(f"v_fmac_f32 v{YG+4*j+r}, v{16*j+r}, v{G2}")
        a(f"v_cvt_pk_bf16_f32 v{84+2*j}, v{YG+4*j}, v{YG+4*j+1}\nv_cvt_pk_bf16_f32 v{84+2*j+1}, v{YG+4*j+2}, v{YG+4*j+3}")
        if j == 1: a(f"buffer_store_dwordx4 v[84:87], v{VY2}, s[36:39], 0 offen" + OSC)
        if j == 3: a(f"buffer_store_dwordx4 v[88:91], v{VY2}, s[36:39], 0 offen offset:16" + OSC)
    a(f"buffer_store_dwordx2 v[92:93], v{VY2}, s[36:39], 0 offen offset:32" + OSC)

DOC = """;
"""
def main():
    a = A()
    top = open("cdna_kernels/" + NAME + ".s.ref").read().split("; Override launch")[0]
    top += "; @launch grid=(256,1,1) block=(768,1,1) lds=163840\n"
    top += DOC
    a('.amdgcn_target "amdgcn-amd-amdhsa--gfx950"\n.text')
    d = gen(a)
    open(sys.argv[1], "w").write(top + a.text() + '.section .rodata,"a"\n.p2align 6\n' + d)
if __name__ == "__main__":
    main()
```
